```python
import torch

def _softmax(x, axis=-1):
    return torch.softmax(x, dim=axis)
def _gelu(x):
    return torch.nn.functional.gelu(x, approximate="tanh")
def _silu(x):
    return torch.nn.functional.silu(x)
def _sigmoid(x):
    return torch.sigmoid(x)
def _layernorm(x, axis=-1, eps=1e-5):
    m = x.mean(dim=axis, keepdim=True)
    v = x.var(dim=axis, keepdim=True, unbiased=False)
    return (x - m) / torch.sqrt(v + eps)
def _scatter_add(tgt, idx, src, axis=0):
    return tgt.clone().index_add_(axis, idx, src)
def _segment_sum(src, seg, n):
    out = torch.zeros((n,) + src.shape[1:], dtype=src.dtype)
    return out.index_add_(0, seg, src)
def _pad(x, pw):
    flat = tuple(v for pair in reversed(pw) for v in pair)
    return torch.nn.functional.pad(x, flat)

kernel_name = 'parallel_sum__linear_attn_block__glu_gated_bilinear__prompt'

def setup_inputs():

    _w = (lambda a: (lambda t: t.to(torch.bfloat16) if t.is_floating_point() else t)(torch.as_tensor(a)))
    def _A_setup():
        B, S, D = 1, 2048, 512
        return {
            "x": _w((lambda *s: torch.randn(*s, dtype=torch.bfloat16) * 0.05)(B, S, D)),
            "wqkv": _w((lambda *s: torch.randn(*s, dtype=torch.bfloat16) * 0.05)(D, 3 * D)),
            "wo": _w((lambda *s: torch.randn(*s, dtype=torch.bfloat16) * 0.05)(D, D)),
        }
    _A_in = _A_setup()

    def _B_setup():
        B, S, D, F = 1, 2048, 512, 1792
        return {
            "x": _w((lambda *s: torch.randn(*s, dtype=torch.bfloat16) * 0.05)(B, S, D)),
            "w_gate": _w((lambda *s: torch.randn(*s, dtype=torch.bfloat16) * 0.2)(D, F) * (D ** -0.5)),
            "w_up": _w((lambda *s: torch.randn(*s, dtype=torch.bfloat16) * 0.2)(D, F) * (D ** -0.5)),
            "w_down": _w((lambda *s: torch.randn(*s, dtype=torch.bfloat16) * 0.2)(F, D) * (F ** -0.5)),
        }
    _B_in = _B_setup()

    return {
        "A_x": _A_in["x"],
        "A_wqkv": _A_in["wqkv"],
        "A_wo": _A_in["wo"],
        "B_x": _B_in["x"],
        "B_w_gate": _B_in["w_gate"],
        "B_w_up": _B_in["w_up"],
        "B_w_down": _B_in["w_down"],
    }

def reference(A_x, A_wqkv, A_wo, B_x, B_w_gate, B_w_up, B_w_down):
    def _A_ref(x, wqkv, wo):
        B, S, D = x.shape
        H = 32; Dh = D // H
        qkv = (lambda x, *d: x.permute(*d))((x @ wqkv).reshape(B, S, 3, H, Dh), 2, 0, 3, 1, 4)
        q, k, v = qkv[0], qkv[1], qkv[2]
        phi = lambda t: torch.where(t > 0, t + 1, torch.exp(t)) + 1e-6
        pq, pk = phi(q), phi(k)
        kv = torch.einsum("bhsd,bhse->bhde", pk, v)
        z = torch.einsum("bhsd->bhd", pk)
        num = torch.einsum("bhqd,bhde->bhqe", pq, kv)
        den = torch.einsum("bhqd,bhd->bhq", pq, z)[..., None] + 1e-6
        o = num / den
        return (lambda x, *d: x.permute(*d))(o, 0, 2, 1, 3).reshape(B, S, D) @ wo

    def _B_ref(x, w_gate, w_up, w_down):
        g = torch.einsum("bsd,df->bsf", x, w_gate)
        u = torch.einsum("bsd,df->bsf", x, w_up)
        h = g * u
        return torch.einsum("bsf,fd->bsd", h, w_down)

    x = A_x
    xn = _layernorm(x, axis=-1)
    return x + _A_ref(xn, A_wqkv, A_wo) + _B_ref(xn, B_w_gate, B_w_up, B_w_down)
```

```python
import sys

NAME = "parallel_sum__linear_attn_block__glu_gated_bilinear__prompt"

WS_M = 0
WS_R = 8192
WS_CS = 16384
WS_KV = 40960
KV_HEAD = 1152
WS_H = 131072
H_BYTES = 32*4*36*2048
OOB = 0x40000000

class Asm:
    def __init__(self): self.l = []
    def __call__(self, s): self.l.append("  " + s)
    def label(self, s): self.l.append(s + ":")
    def raw(self, s): self.l.append(s)
    def text(self): return "\n".join(self.l)

def vr(b, n=1): return f"v{b}" if n == 1 else f"v[{b}:{b+n-1}]"
def ar(b, n=1): return f"a{b}" if n == 1 else f"a[{b}:{b+n-1}]"
def sr(b, n=1): return f"s{b}" if n == 1 else f"s[{b}:{b+n-1}]"

def srd(A, d, lo, hi, size):
    A(f"s_mov_b32 s{d}, s{lo}")
    A(f"s_and_b32 s{d+1}, s{hi}, 0xffff")
    A(f"s_mov_b32 s{d+2}, {size}")
    A(f"s_mov_b32 s{d+3}, 0x20000")

def srd_off(A, d, lo, hi, off_sgpr_or_imm, size, tmp=None):
    A(f"s_add_u32 s{d}, s{lo}, {off_sgpr_or_imm}")
    A(f"s_addc_u32 s{d+1}, s{hi}, 0")
    A(f"s_and_b32 s{d+1}, s{d+1}, 0xffff")
    if isinstance(off_sgpr_or_imm, int): A(f"s_mov_b32 s{d+2}, {size - off_sgpr_or_imm}")
    else: A(f"s_sub_u32 s{d+2}, {size}, {off_sgpr_or_imm}")
    A(f"s_mov_b32 s{d+3}, 0x20000")

def gen_k0():
    A = Asm()
    A("s_cmp_ge_u32 s2, 256"); A("s_cbranch_scc1 K0_end")
    A("s_load_dwordx2 s[4:5], s[0:1], 0")
    A("s_load_dwordx2 s[6:7], s[0:1], 8")
    A("s_load_dwordx2 s[8:9], s[0:1], 32")
    A("s_load_dwordx2 s[10:11], s[0:1], 40")
    A("s_load_dwordx2 s[12:13], s[0:1], 72")
    A("v_and_b32 v1, 63, v0")
    A("v_lshrrev_b32 v2, 6, v0")
    A("s_waitcnt lgkmcnt(0)")
    A("v_readfirstlane_b32 s14, v2")
    A("s_lshl_b32 s15, s2, 3"); A("s_lshl_b32 s16, s14, 1"); A("s_add_u32 s15, s15, s16")
    A("s_lshl_b32 s16, s15, 10")
    A("v_lshlrev_b32 v3, 4, v1"); A("v_add_u32 v3, s16, v3")
    A("global_load_dwordx4 v[4:7], v3, s[4:5]")
    A("global_load_dwordx4 v[8:11], v3, s[4:5] offset:1024")
    for tok in range(2):
        b = 4 + 4*tok
        A(f"s_waitcnt vmcnt({1-tok})")
        A("v_mov_b32 v20, 0"); A("v_mov_b32 v21, 0")
        for i in range(4):
            A(f"v_lshlrev_b32 v12, 16, v{b+i}"); A(f"v_and_b32 v13, 0xffff0000, v{b+i}")
            A("v_add_f32 v20, v20, v12"); A("v_fmac_f32 v21, v12, v12")
            A("v_add_f32 v20, v20, v13"); A("v_fmac_f32 v21, v13, v13")
        for rot in (1,2,4,8):
            A("s_nop 1")
            A(f"v_add_f32_dpp v20, v20, v20 row_ror:{rot} row_mask:0xf bank_mask:0xf")
            A(f"v_add_f32_dpp v21, v21, v21 row_ror:{rot} row_mask:0xf bank_mask:0xf")
        A("s_nop 1")
        for j,ln in enumerate((0,16,32,48)):
            A(f"v_readlane_b32 s{20+j}, v20, {ln}"); A(f"v_readlane_b32 s{24+j}, v21, {ln}")
        A("s_nop 1")
        A("v_mov_b32 v22, s20"); A("v_add_f32 v22, s21, v22"); A("v_add_f32 v22, s22, v22"); A("v_add_f32 v22, s23, v22")
        A("v_mov_b32 v23, s24"); A("v_add_f32 v23, s25, v23"); A("v_add_f32 v23, s26, v23"); A("v_add_f32 v23, s27, v23")
        A("v_mul_f32 v22, 0x3b000000, v22")
        A("v_mul_f32 v23, 0x3b000000, v23")
        A("v_fma_f32 v23, -v22, v22, v23")
        A("v_max_f32 v23, 0, v23")
        A("v_add_f32 v23, 0x3727c5ac, v23")
        A("v_rsq_f32 v23, v23")
        A(f"s_add_u32 s17, s15, {tok}"); A("s_lshl_b32 s17, s17, 2")
        A("v_mov_b32 v24, s17")
        A("v_cmp_eq_u32 vcc, 0, v1"); A("s_and_saveexec_b64 s[30:31], vcc")
        A(f"global_store_dword v24, v22, s[12:13] offset:{WS_M}")
        A("v_add_u32 v24, 8192, v24")
        A("global_store_dword v24, v23, s[12:13]")
        A("s_mov_b64 exec, s[30:31]")
    A("s_cmp_ge_u32 s2, 80"); A("s_cbranch_scc1 K0_zero")
    A("s_cmp_lt_u32 s2, 24"); A("s_cbranch_scc0 K0_notq")
    A("s_mov_b32 s32, s6"); A("s_mov_b32 s33, s7"); A("s_mov_b32 s34, 3072"); A("s_lshl_b32 s35, s2, 7"); A("s_branch K0_cs")
    A.label("K0_notq")
    A("s_cmp_lt_u32 s2, 52"); A("s_cbranch_scc0 K0_up")
    A("s_mov_b32 s32, s8"); A("s_mov_b32 s33, s9"); A("s_mov_b32 s34, 3584"); A("s_sub_u32 s35, s2, 24"); A("s_lshl_b32 s35, s35, 7"); A("s_branch K0_cs")
    A.label("K0_up")
    A("s_mov_b32 s32, s10"); A("s_mov_b32 s33, s11"); A("s_mov_b32 s34, 3584"); A("s_sub_u32 s35, s2, 52"); A("s_lshl_b32 s35, s35, 7")
    A.label("K0_cs")
    A("v_and_b32 v3, 31, v0"); A("v_lshrrev_b32 v4, 5, v0")
    A("v_lshlrev_b32 v5, 6, v4"); A("v_mul_lo_u32 v5, v5, s34"); A("v_lshlrev_b32 v6, 2, v3"); A("v_add_u32 v5, v5, v6"); A("v_add_u32 v5, s35, v5")
    A("v_mov_b32 v20, 0"); A("v_mov_b32 v21, 0")
    A("s_mov_b32 s36, 0")
    A.label("K0_csl")
    for i in range(8):
        A(f"global_load_dword v{8+i}, v5, s[32:33]"); A("v_add_u32 v5, s34, v5")
    for i in range(8):
        A(f"s_waitcnt vmcnt({7-i})")
        A(f"v_lshlrev_b32 v12, 16, v{8+i}") if False else None
        A(f"v_lshlrev_b32 v22, 16, v{8+i}"); A(f"v_and_b32 v23, 0xffff0000, v{8+i}")
        A("v_add_f32 v20, v20, v22"); A("v_add_f32 v21, v21, v23")
    A("s_add_u32 s36, s36, 8"); A("s_cmp_lt_u32 s36, 64"); A("s_cbranch_scc1 K0_csl")
    A("v_lshlrev_b32 v6, 3, v0")
    A("ds_write_b64 v6, v[20:21]")
    A("s_waitcnt lgkmcnt(0)"); A("s_barrier")
    A("v_cmp_gt_u32 vcc, 32, v0"); A("s_and_saveexec_b64 s[30:31], vcc"); A("s_cbranch_execz K0_csd")
    A("v_lshlrev_b32 v6, 3, v0")
    for g in range(8): A(f"ds_read_b64 v[{8+2*g}:{9+2*g}], v6 offset:{g*256}")
    A("s_waitcnt lgkmcnt(0)")
    for g in range(1,8):
        A(f"v_add_f32 v8, v8, v{8+2*g}"); A(f"v_add_f32 v9, v9, v{9+2*g}")
    A("s_lshl_b32 s37, s2, 8"); A(f"s_add_u32 s37, s37, {WS_CS}")
    A("v_add_u32 v6, s37, v6")
    A("global_store_dwordx2 v6, v[8:9], s[12:13]")
    A.label("K0_csd")
    A("s_mov_b64 exec, s[30:31]")
    A("s_branch K0_end")
    A.label("K0_zero")
    A("s_cmp_ge_u32 s2, 89"); A("s_cbranch_scc1 K0_end")
    A("s_sub_u32 s37, s2, 80"); A("s_lshl_b32 s37, s37, 12"); A(f"s_add_u32 s37, s37, {WS_KV}")
    A("v_lshlrev_b32 v6, 4, v0"); A("v_add_u32 v6, s37, v6")
    for i in range(4): A(f"v_mov_b32 v{8+i}, 0")
    A("global_store_dwordx4 v6, v[8:11], s[12:13]")
    A.label("K0_end")
    A.l = [x for x in A.l if x is not None and x.strip() != "None"]
    return A.text()

X_BASE = 0; X_SLOT = 16384; X_NS = 3
W_BASE = 49152; W_SLOT = 20480; W_NS = 4
MISC = 131072
LDS_R = MISC
LDS_KV = MISC + 1024

ACC = 0
WF = 160
XF = 200
TRA = 216
XA = 221
VOW = 225
VOX = 230
VCS = 234
VM = 239
VR = 241
VLANE = 243
VL16 = 244
VT = 245

def acc(blk, tb): return ACC + (blk*2+tb)*16

S_X = 4
S_W = 8
S_H = 28
S_WSP = 32
S_WV = 34; S_WM = 35; S_WN = 36; S_T = 37; S_IDX = 38
S_KW = 39; S_KH = 40; S_R30 = 41; S_R35 = 42; S_RH = 43; S_GC = 44
S_WSL = 45
S_XSL = 46
S_KX = 47
S_XC = 48
S_DW = 49; S_DX = 50
S_IT = 51
S_XB = 52
S_T0 = 53; S_T1 = 54; S_T2 = 55; S_T3 = 56
S_OOB = 57
S_XSI = 58
S_HB = 59
S_P = 64
S_CX = 72; S_CW = 73

def k1_common_prologue(A):
    A("s_cmp_ge_u32 s2, 256"); A("s_cbranch_scc1 K1_end")
    A(f"s_load_dwordx2 s[{S_P}:{S_P+1}], s[0:1], 0")
    A(f"s_load_dwordx2 s[{S_P+2}:{S_P+3}], s[0:1], 8")
    A(f"s_load_dwordx2 s[{S_P+4}:{S_P+5}], s[0:1], 32")
    A(f"s_load_dwordx2 s[{S_P+6}:{S_P+7}], s[0:1], 40")
    A(f"s_load_dwordx2 s[{S_WSP}:{S_WSP+1}], s[0:1], 72")
    A(f"v_and_b32 v{VLANE}, 63, v0")
    A(f"v_lshrrev_b32 v{VT}, 6, v0")
    A(f"v_mov_b32 v255, v0")
    A(f"v_lshlrev_b32 v{VL16}, 4, v{VLANE}")
    A(f"v_readfirstlane_b32 s{S_WV}, v{VT}")
    A(f"s_and_b32 s{S_T0}, s2, 7")
    A(f"s_lshr_b32 s{S_T1}, s2, 3")
    A(f"s_and_b32 s{S_T2}, s{S_T1}, 7")
    A(f"s_lshr_b32 s{S_T3}, s{S_T1}, 3")
    A(f"s_lshr_b32 s{S_T}, s{S_T0}, 2"); A(f"s_lshl_b32 s{S_T}, s{S_T}, 3"); A(f"s_add_u32 s{S_T}, s{S_T}, s{S_T2}")
    A(f"s_and_b32 s{S_IDX}, s{S_T0}, 3"); A(f"s_lshl_b32 s{S_IDX}, s{S_IDX}, 1")
    A(f"s_and_b32 s{S_T0}, s{S_T3}, 1"); A(f"s_add_u32 s{S_IDX}, s{S_IDX}, s{S_T0}")
    A(f"s_add_u32 s{S_T0}, s{S_T3}, s{S_T2}"); A(f"s_and_b32 s{S_T0}, s{S_T0}, 3"); A(f"s_lshl_b32 s{S_T0}, s{S_T0}, 1")
    A(f"s_lshr_b32 s{S_T1}, s{S_T2}, 2"); A(f"s_add_u32 s{S_T0}, s{S_T0}, s{S_T1}")
    A(f"s_lshl_b32 s{S_KW}, s{S_T0}, 6")
    A(f"s_lshr_b32 s{S_WM}, s{S_WV}, 1"); A(f"s_and_b32 s{S_WN}, s{S_WV}, 1")
    A("s_waitcnt lgkmcnt(0)")
    srd(A, S_X, S_P, S_P+1, 2048*1024)
    srd_off(A, S_H, S_WSP, S_WSP+1, WS_H, WS_H + H_BYTES)
    A(f"s_cmp_ge_u32 s{S_T3}, 2"); A("s_cbranch_scc1 K1_typeB")

def k1_type(A, typ):
    L = f"K1{typ}"
    kinds = ["gu","gu","gu","gu","q"] if typ == "A" else ["kv","kv","gu","gu","guh"]
    wq, wg, wu = S_P+2, S_P+4, S_P+6
    SZQ, SZG = 512*3072, 512*3584
    if typ == "A":
        A(f"s_lshl_b32 s{S_T0}, s{S_IDX}, 8")
        srd_off(A, S_W+0, wg, wg+1, f"s{S_T0}", SZG); srd_off(A, S_W+4, wu, wu+1, f"s{S_T0}", SZG)
        A(f"s_add_u32 s{S_T0}, s{S_T0}, 128")
        srd_off(A, S_W+8, wg, wg+1, f"s{S_T0}", SZG); srd_off(A, S_W+12, wu, wu+1, f"s{S_T0}", SZG)
        A(f"s_lshl_b32 s{S_T0}, s{S_IDX}, 7")
        srd_off(A, S_W+16, wq, wq+1, f"s{S_T0}", SZQ)
        strides = [3584,3584,3584,3584,3072]; swz = ["g","u","g","u","q"]
    else:
        A(f"s_lshl_b32 s{S_T0}, s{S_IDX}, 7"); A(f"s_add_u32 s{S_T0}, s{S_T0}, 1024")
        srd_off(A, S_W+0, wq, wq+1, f"s{S_T0}", SZQ)
        A(f"s_add_u32 s{S_T0}, s{S_T0}, 1024")
        srd_off(A, S_W+4, wq, wq+1, f"s{S_T0}", SZQ)
        A(f"s_lshl_b32 s{S_T0}, s{S_IDX}, 7"); A(f"s_add_u32 s{S_T0}, s{S_T0}, {16*128}")
        srd_off(A, S_W+8, wg, wg+1, f"s{S_T0}", SZG); srd_off(A, S_W+12, wu, wu+1, f"s{S_T0}", SZG)
        A(f"s_lshr_b32 s{S_T0}, s{S_IDX}, 1"); A(f"s_add_u32 s{S_T0}, s{S_T0}, 24"); A(f"s_lshl_b32 s{S_T0}, s{S_T0}, 7")
        A(f"s_and_b32 s{S_T1}, s{S_IDX}, 1"); A(f"s_lshl_b32 s{S_T1}, s{S_T1}, 6"); A(f"s_add_u32 s{S_T0}, s{S_T0}, s{S_T1}")
        A(f"s_cmp_ge_u32 s{S_WV}, 2")
        A(f"s_cselect_b32 s{S_T2}, s{wu}, s{wg}"); A(f"s_cselect_b32 s{S_T3}, s{wu+1}, s{wg+1}")
        srd_off(A, S_W+16, S_T2, S_T3, f"s{S_T0}", SZG)
        strides = [3072,3072,3584,3584,3584]; swz = ["g","u","g","u","h"]
    t0, t1, t2, t3, t4 = VT, VT+1, VT+2, VT+3, VT+4
    A(f"v_lshrrev_b32 v{t0}, 3, v{VLANE}")
    A(f"v_and_b32 v{t1}, 7, v{VLANE}")
    A(f"v_lshrrev_b32 v{t2}, 4, v{VLANE}"); A(f"v_and_b32 v{t2}, 1, v{t2}")
    for rho in range(5):
        if swz[rho] == "h":
            A(f"v_lshrrev_b32 v{t3}, 2, v{VLANE}"); A(f"v_and_b32 v{t4}, 3, v{VLANE}")
            A(f"s_lshr_b32 s{S_T0}, s{S_WV}, 1"); A(f"s_lshl_b32 s{S_T0}, s{S_T0}, 1")
            A(f"v_xor_b32 v{t4}, s{S_T0}, v{t4}")
            A(f"v_mul_u32_u24 v{t3}, 3584, v{t3}"); A(f"v_lshlrev_b32 v{t4}, 4, v{t4}"); A(f"v_add_u32 v{VOW+rho}, v{t3}, v{t4}")
        else:
            if swz[rho] == "q": A(f"v_lshlrev_b32 v{t3}, 2, v{t2}")
            else:
                A(f"v_lshlrev_b32 v{t3}, 1, v{t2}")
                if swz[rho] == "u": A(f"v_or_b32 v{t3}, 4, v{t3}")
            A(f"v_xor_b32 v{t3}, v{t1}, v{t3}"); A(f"v_lshlrev_b32 v{t3}, 4, v{t3}")
            A(f"v_mul_u32_u24 v{t4}, {strides[rho]}, v{t0}"); A(f"v_add_u32 v{VOW+rho}, v{t3}, v{t4}")
    for j in range(4):
        A(f"v_lshrrev_b32 v{t3}, 4, v{VLANE}")
        if j & 1: A(f"v_or_b32 v{t3}, 4, v{t3}")
        A(f"v_xor_b32 v{t3}, v{t1}, v{t3}"); A(f"v_lshlrev_b32 v{t3}, 4, v{t3}")
        A(f"v_add_u32 v{t4}, {8*j}, v{t0}"); A(f"v_lshlrev_b32 v{t4}, 10, v{t4}"); A(f"v_add_u32 v{VOX+j}, v{t3}, v{t4}")
    A(f"s_lshl_b32 s{S_XB}, s{S_T}, 7"); A(f"s_lshl_b32 s{S_T0}, s{S_WV}, 5"); A(f"s_add_u32 s{S_XB}, s{S_XB}, s{S_T0}"); A(f"s_lshl_b32 s{S_XB}, s{S_XB}, 10")
    A(f"s_lshl_b32 s{S_KX}, s{S_KW}, 1")
    A(f"s_and_b32 s{S_T0}, s{S_WV}, 1"); A(f"s_lshl_b32 s{S_T0}, s{S_T0}, 4"); A(f"s_add_u32 s{S_KH}, s{S_KW}, s{S_T0}")
    A(f"s_lshl_b32 s{S_T0}, s{S_WV}, 3"); A(f"s_add_u32 s{S_KW}, s{S_KW}, s{S_T0}")
    A(f"s_mov_b32 s{S_GC}, 0"); A(f"s_mov_b32 s{S_XC}, 0")
    A(f"s_lshl_b32 s{S_T0}, s{S_WV}, 10"); A(f"s_add_u32 s{S_WSL}, s{S_T0}, {W_BASE}")
    A(f"s_lshl_b32 s{S_T0}, s{S_WV}, 12"); A(f"s_add_u32 s{S_XSL}, s{S_T0}, {X_BASE}")

    def w_group_setup():
        o = []
        o.append([f"s_cmp_ge_u32 s{S_GC}, 16", f"s_cselect_b32 s{S_OOB}, {OOB}, 0"])
        o.append([f"s_mul_i32 s{S_R30}, s{S_KW}, 3072", f"s_or_b32 s{S_R30}, s{S_R30}, s{S_OOB}"])
        o.append([f"s_mul_i32 s{S_R35}, s{S_KW}, 3584", f"s_or_b32 s{S_R35}, s{S_R35}, s{S_OOB}"])
        if typ == "B":
            o.append([f"s_mul_i32 s{S_RH}, s{S_KH}, 3584", f"s_or_b32 s{S_RH}, s{S_RH}, s{S_OOB}"])
        return o
    def w_group_dma():
        o = []
        for rho in range(5):
            so = S_RH if swz[rho] == "h" else (S_R30 if strides[rho] == 3072 else S_R35)
            o.append([f"s_add_u32 m0, s{S_WSL}, {rho*4096}", f"buffer_load_dwordx4 v{VOW+rho}, s[{S_W+4*rho}:{S_W+4*rho+3}], s{so} offen lds"])
        return o
    def w_group_adv():
        o = [[f"s_add_u32 s{S_KW}, s{S_KW}, 32", f"s_and_b32 s{S_KW}, s{S_KW}, 511"]]
        if typ == "B": o += [[f"s_add_u32 s{S_KH}, s{S_KH}, 32", f"s_and_b32 s{S_KH}, s{S_KH}, 511"]]
        o += [[f"s_add_u32 s{S_GC}, s{S_GC}, 1",
              f"s_add_u32 s{S_WSL}, s{S_WSL}, {W_SLOT}"],
              [f"s_cmp_ge_u32 s{S_WSL}, {W_BASE + W_NS*W_SLOT}",
              f"s_cselect_b32 s{S_T0}, {W_NS*W_SLOT}, 0",
              f"s_sub_u32 s{S_WSL}, s{S_WSL}, s{S_T0}"]]
        return o
    def x_group_setup():
        return [[f"s_cmp_ge_u32 s{S_XC}, 8", f"s_cselect_b32 s{S_T1}, {OOB}, 0"],
                [f"s_add_u32 s{S_T2}, s{S_XB}, s{S_KX}", f"s_or_b32 s{S_T2}, s{S_T2}, s{S_T1}"]]
    def x_group_dma():
        return [[f"s_add_u32 m0, s{S_XSL}, {j*1024}", f"buffer_load_dwordx4 v{VOX+j}, s[{S_X}:{S_X+3}], s{S_T2} offen lds"] for j in range(4)]
    def x_group_adv():
        return [[f"s_add_u32 s{S_KX}, s{S_KX}, 128", f"s_and_b32 s{S_KX}, s{S_KX}, 1023"], [f"s_add_u32 s{S_XC}, s{S_XC}, 1",
                f"s_add_u32 s{S_XSL}, s{S_XSL}, {X_SLOT}"], [f"s_cmp_ge_u32 s{S_XSL}, {X_BASE + X_NS*X_SLOT}",
                f"s_cselect_b32 s{S_T3}, {X_NS*X_SLOT}, 0", f"s_sub_u32 s{S_XSL}, s{S_XSL}, s{S_T3}"]]
    def emit_dma(lst):
        for m0s, ld in lst:
            A(m0s); A("s_nop 0"); A(ld)

    A(f"v_and_b32 v{t0}, 31, v{VLANE}")
    A(f"s_lshl_b32 s{S_T0}, s{S_T}, 7"); A(f"s_lshl_b32 s{S_T1}, s{S_WM}, 6"); A(f"s_add_u32 s{S_T0}, s{S_T0}, s{S_T1}")
    A(f"v_add_u32 v{t1}, s{S_T0}, v{t0}"); A(f"v_lshlrev_b32 v{t1}, 2, v{t1}")
    A(f"global_load_dword v{VM}, v{t1}, s[{S_WSP}:{S_WSP+1}]"); A(f"global_load_dword v{VM+1}, v{t1}, s[{S_WSP}:{S_WSP+1}] offset:128")
    A(f"v_add_u32 v{t2}, {WS_R}, v{t1}")
    A(f"global_load_dword v{VR}, v{t2}, s[{S_WSP}:{S_WSP+1}]"); A(f"global_load_dword v{VR+1}, v{t2}, s[{S_WSP}:{S_WSP+1}] offset:128")
    A(f"v_and_b32 v{t1}, 15, v{t0}")
    A(f"v_lshrrev_b32 v{t2}, 4, v{t0}")
    for blk, kd in enumerate(kinds):
        if kd in ("gu", "guh"):
            if typ == "A":
                A(f"s_lshl_b32 s{S_T0}, s{S_IDX}, 1"); A(f"s_add_u32 s{S_T0}, s{S_T0}, s{S_WN}"); A(f"s_lshl_b32 s{S_T0}, s{S_T0}, 6"); A(f"s_add_u32 s{S_T0}, s{S_T0}, {16*blk + 1536}")
            elif kd == "gu":
                A(f"s_add_u32 s{S_T0}, s{S_IDX}, 16"); A(f"s_lshl_b32 s{S_T0}, s{S_T0}, 6"); A(f"s_lshl_b32 s{S_T1}, s{S_WN}, 5"); A(f"s_add_u32 s{S_T0}, s{S_T0}, s{S_T1}"); A(f"s_add_u32 s{S_T0}, s{S_T0}, {16*(blk-2) + 1536}")
            else:
                A(f"s_lshr_b32 s{S_T0}, s{S_IDX}, 1"); A(f"s_add_u32 s{S_T0}, s{S_T0}, 24"); A(f"s_lshl_b32 s{S_T0}, s{S_T0}, 6")
                A(f"s_and_b32 s{S_T1}, s{S_IDX}, 1"); A(f"s_lshl_b32 s{S_T1}, s{S_T1}, 1"); A(f"s_add_u32 s{S_T1}, s{S_T1}, s{S_WN}"); A(f"s_lshl_b32 s{S_T1}, s{S_T1}, 4")
                A(f"s_add_u32 s{S_T0}, s{S_T0}, s{S_T1}"); A(f"s_add_u32 s{S_T0}, s{S_T0}, 1536")
            A(f"v_mul_u32_u24 v{t3}, 1792, v{t2}"); A(f"v_add_u32 v{t3}, v{t3}, v{t1}"); A(f"v_add_u32 v{t3}, s{S_T0}, v{t3}")
        elif kd == "q":
            A(f"s_lshl_b32 s{S_T0}, s{S_IDX}, 6"); A(f"s_lshl_b32 s{S_T1}, s{S_WN}, 5"); A(f"s_add_u32 s{S_T0}, s{S_T0}, s{S_T1}")
            A(f"v_add_u32 v{t3}, s{S_T0}, v{t0}")
        else:
            A(f"s_lshl_b32 s{S_T0}, s{S_IDX}, 6"); A(f"s_lshl_b32 s{S_T1}, s{S_WN}, 5"); A(f"s_add_u32 s{S_T0}, s{S_T0}, s{S_T1}"); A(f"s_add_u32 s{S_T0}, s{S_T0}, {512 + 16*blk}")
            A(f"v_lshlrev_b32 v{t3}, 9, v{t2}"); A(f"v_add_u32 v{t3}, v{t3}, v{t1}"); A(f"v_add_u32 v{t3}, s{S_T0}, v{t3}")
        A(f"v_lshlrev_b32 v{t3}, 2, v{t3}"); A(f"v_add_u32 v{t3}, {WS_CS}, v{t3}")
        A(f"global_load_dword v{VCS+blk}, v{t3}, s[{S_WSP}:{S_WSP+1}]")
    if typ == "B":
        A(f"s_lshl_b32 s{S_T0}, s{S_T}, 7"); A(f"v_add_u32 v{t3}, s{S_T0}, v0"); A(f"v_lshlrev_b32 v{t3}, 2, v{t3}"); A(f"v_add_u32 v{t3}, {WS_R}, v{t3}")
        A(f"global_load_dword v{XF+12}, v{t3}, s[{S_WSP}:{S_WSP+1}]")
    def flat(ll):
        for g in ll:
            for s in g: A(s)
    def do_x():
        flat(x_group_setup()); emit_dma(x_group_dma()); flat(x_group_adv())
    def do_w():
        flat(w_group_setup()); emit_dma(w_group_dma()); flat(w_group_adv())
    do_x(); do_w(); do_w(); do_x(); do_w()
    G, p, r, c = t0, t1, t2, t3
    A(f"v_lshrrev_b32 v{G}, 4, v{VLANE}"); A(f"v_and_b32 v{G}, 1, v{G}")
    A(f"v_lshrrev_b32 v{p}, 5, v{VLANE}")
    A(f"v_and_b32 v{r}, 15, v{VLANE}"); A(f"v_lshrrev_b32 v{r}, 2, v{r}")
    A(f"v_and_b32 v{c}, 3, v{VLANE}")
    k_, rb, u1, u2 = t4, t4+1, t4+2, t4+3
    A(f"v_lshlrev_b32 v{k_}, 3, v{p}"); A(f"v_add_u32 v{k_}, v{k_}, v{r}")
    A(f"v_lshrrev_b32 v{rb}, 1, v{r}"); A(f"v_and_b32 v{rb}, 1, v{rb}")
    for blk, kd in enumerate(kinds):
        d = TRA + blk
        if kd == "guh":
            A(f"v_lshrrev_b32 v{u1}, 1, v{c}"); A(f"s_lshl_b32 s{S_T0}, s{S_WN}, 1"); A(f"v_add_u32 v{u1}, s{S_T0}, v{u1}")
            A(f"v_lshlrev_b32 v{u2}, 1, v{G}"); A(f"v_xor_b32 v{u1}, v{u1}, v{u2}"); A(f"v_lshlrev_b32 v{u1}, 4, v{u1}")
            A(f"v_lshlrev_b32 v{u2}, 6, v{k_}"); A(f"v_add_u32 v{u1}, v{u1}, v{u2}")
            A(f"v_lshlrev_b32 v{u2}, 11, v{G}"); A(f"v_add_u32 v{u1}, v{u1}, v{u2}")
            A(f"v_add_u32 v{u1}, {W_BASE + 4*4096}, v{u1}")
        else:
            if kd == "q":
                A(f"s_lshl_b32 s{S_T0}, s{S_WN}, 1"); A(f"v_add_u32 v{u1}, s{S_T0}, v{G}")
            elif typ == "A":
                A(f"v_mov_b32 v{u1}, {blk}")
            else:
                A(f"s_lshl_b32 s{S_T0}, s{S_WN}, 1"); A(f"s_add_u32 s{S_T0}, s{S_T0}, {blk if kd == 'kv' else blk-2}"); A(f"v_mov_b32 v{u1}, s{S_T0}")
            A(f"v_lshlrev_b32 v{u1}, 1, v{u1}"); A(f"v_lshrrev_b32 v{u2}, 1, v{c}"); A(f"v_add_u32 v{u1}, v{u1}, v{u2}")
            if kd == "q": A(f"v_lshlrev_b32 v{u2}, 2, v{rb}")
            else:
                A(f"v_lshlrev_b32 v{u2}, 1, v{rb}"); A(f"v_lshlrev_b32 v{d}, 2, v{G}"); A(f"v_or_b32 v{u2}, v{u2}, v{d}")
            A(f"v_xor_b32 v{u1}, v{u1}, v{u2}"); A(f"v_lshlrev_b32 v{u1}, 4, v{u1}")
            A(f"v_lshlrev_b32 v{u2}, 7, v{k_}"); A(f"v_add_u32 v{u1}, v{u1}, v{u2}")
            if kd == "q": A(f"v_add_u32 v{u1}, {W_BASE + 4*4096}, v{u1}")
            else:
                if typ == "A":
                    A(f"s_lshl_b32 s{S_T0}, s{S_WN}, 13"); A(f"s_add_u32 s{S_T0}, s{S_T0}, {W_BASE}")
                else:
                    A(f"s_mov_b32 s{S_T0}, {W_BASE + (0 if kd == 'kv' else 2*4096)}")
                A(f"v_lshlrev_b32 v{u2}, 12, v{G}"); A(f"v_add_u32 v{u1}, v{u1}, v{u2}"); A(f"v_add_u32 v{u1}, s{S_T0}, v{u1}")
        A(f"v_and_b32 v{u2}, 1, v{c}"); A(f"v_lshlrev_b32 v{u2}, 3, v{u2}"); A(f"v_add_u32 v{d}, v{u1}, v{u2}")
    A(f"v_and_b32 v{u1}, 31, v{VLANE}"); A(f"s_lshl_b32 s{S_T0}, s{S_WM}, 6"); A(f"v_add_u32 v{u1}, s{S_T0}, v{u1}")
    A(f"v_lshrrev_b32 v{u2}, 1, v{u1}"); A(f"v_and_b32 v{u2}, 7, v{u2}"); A(f"v_xor_b32 v{u2}, v{u2}, v{p}"); A(f"v_lshlrev_b32 v{u2}, 4, v{u2}")
    A(f"v_lshlrev_b32 v{u1}, 7, v{u1}"); A(f"v_add_u32 v{u1}, v{u1}, v{u2}")
    if X_BASE: A(f"v_add_u32 v{u1}, {X_BASE}, v{u1}")
    for kk in range(4): A(f"v_xor_b32 v{XA+kk}, {kk*32}, v{u1}")
    for i in range(160): A(f"v_mov_b32 v{ACC+i}, 0")
    A(f"s_mov_b32 s{S_IT}, 0"); A(f"s_mov_b32 s{S_XSI}, 0")
    A(f"s_mov_b32 s{S_CX}, {X_SLOT}"); A(f"s_mov_b32 s{S_CW}, {W_SLOT}")

    def reads(par, kk, second):
        o = []
        o.append(f"ds_read_b128 v[{XF+8*par}:{XF+8*par+3}], v{XA+kk}")
        o.append(f"ds_read_b128 v[{XF+8*par+4}:{XF+8*par+7}], v{XA+kk} offset:4096")
        for blk, kd in enumerate(kinds):
            b = WF + 20*par + 4*blk
            if kd == "guh": o1, o2 = (1024 if second else 0), 256
            else: o1, o2 = (2048 if second else 0), 512
            o.append(f"ds_read_b64_tr_b16 v[{b}:{b+1}], v{TRA+blk} offset:{o1}")
            o.append(f"ds_read_b64_tr_b16 v[{b+2}:{b+3}], v{TRA+blk} offset:{o1+o2}")
        return o
    def mfmas(par):
        o = []
        for blk, kd in enumerate(kinds):
            wf = f"v[{WF+20*par+4*blk}:{WF+20*par+4*blk+3}]"
            for tb in range(2):
                xf = f"v[{XF+8*par+4*tb}:{XF+8*par+4*tb+3}]"
                a = acc(blk, tb)
                if kd == "kv": o.append(f"v_mfma_f32_32x32x16_bf16 v[{a}:{a+15}], {xf}, {wf}, v[{a}:{a+15}]")
                else: o.append(f"v_mfma_f32_32x32x16_bf16 v[{a}:{a+15}], {wf}, {xf}, v[{a}:{a+15}]")
        return o

    A("s_waitcnt vmcnt(14)")
    if typ == "B":
        A(f"v_lshlrev_b32 v{u1}, 2, v255"); A(f"v_add_u32 v{u1}, {LDS_R}, v{u1}")
        A(f"v_cmp_gt_u32 vcc, 128, v255"); A(f"s_and_saveexec_b64 s[60:61], vcc")
        A(f"ds_write_b32 v{u1}, v{XF+12}")
        A(f"s_mov_b64 exec, s[60:61]")
        A("s_waitcnt lgkmcnt(0)")
    A("s_barrier")
    flat(w_group_setup()); emit_dma(w_group_dma())
    for s in reads(0, 0, False): A(s)
    A.label(f"{L}_loop")
    pre = [[f"s_cmp_eq_u32 s{S_XSI}, 2", f"s_cselect_b32 s{S_DX}, {-2*X_SLOT & 0xffffffff}, s{S_CX}"],
           [f"s_add_u32 s{S_XSI}, s{S_XSI}, 1", f"s_cmp_eq_u32 s{S_XSI}, 3", f"s_cselect_b32 s{S_XSI}, 0, s{S_XSI}"],
           [f"s_bitcmp1_b32 s{S_IT}, 0", f"s_cselect_b32 s{S_DW}, {(-3*W_SLOT) & 0xffffffff}, s{S_CW}"]]
    carry = []
    for q in range(4):
        par = q & 1
        M = mfmas(par)
        kk_next = (q + 1) & 3
        second_next = ((q + 1) & 1) == 1
        rd = reads(1 - par, kk_next, second_next)
        gaps = [[] for _ in range(10)]
        head = ["s_waitcnt lgkmcnt(0)"]
        fill = []
        if q & 1:
            N = 18 if q == 1 else 14
            gaps[0] += [f"s_waitcnt vmcnt({N})", "s_barrier"]
            for i, s in enumerate(rd): gaps[1 + i//2].append(s)
            if q == 3: gaps[0].insert(0, f"v_add_u32 v{XA+kk_next}, s{S_DX}, v{XA+kk_next}")
            else: gaps[2].append(f"v_add_u32 v{XA+kk_next}, s{S_DX}, v{XA+kk_next}")
            fill += carry; carry = []
            fill += [("s", s) for s in w_group_setup()]
            fill += [("d", d) for d in w_group_dma()]
            if q == 1: fill += [("s", s) for s in w_group_adv()]
        else:
            for i, s in enumerate(rd): gaps[i//2].append(s)
            adv = []
            for blk in range(5):
                if q == 0: adv.append(f"v_add_u32 v{TRA+blk}, {W_SLOT}, v{TRA+blk}")
                else:      adv.append(f"v_add_u32 v{TRA+blk}, s{S_DW}, v{TRA+blk}")
            for i, s in enumerate(adv): gaps[6 + i//2].append(s)
            if q == 0:
                head = head + [x for g in pre for x in g]
                fill += [("s", s) for s in w_group_adv()]
                fill += [("s", s) for s in x_group_setup()]
                fill += [("d", d) for d in x_group_dma()]
                fill += [("s", s) for s in x_group_adv()]
            gaps[1].append(f"v_add_u32 v{XA+kk_next}, s{S_DX}, v{XA+kk_next}")
            fill = carry + fill
            carry = []
        gi = 1 if (q & 1) else 0
        items = list(fill); pend = []
        while items:
            it = items.pop(0)
            need = len(it[1]) if it[0] == "s" else 2
            while gi < 10 and len(gaps[gi]) + need > 5: gi += 1
            if gi >= 10:
                pend.append(it); pend += items; break
            if it[0] == "s": gaps[gi] += it[1]
            else:
                gaps[gi].append(it[1][0])
                gaps[gi].append("__NOP__" )
                gaps[gi].append(it[1][1])
                gi += 1
        carry = pend
        for g in gaps:
            while "__NOP__" in g:
                i = g.index("__NOP__")
                cand = [j for j in range(i-1) if g[j].startswith("ds_read") or g[j].startswith("v_add")]
                if cand:
                    x = g.pop(cand[-1]); i -= 1; g[i] = x
                else: g[i] = "s_nop 0"
        for s in head: A(s)
        for i in range(10):
            A(M[i])
            for s in gaps[i]: A(s)
    assert not carry, carry
    A(f"s_add_u32 s{S_IT}, s{S_IT}, 1"); A(f"s_cmp_lt_u32 s{S_IT}, 8"); A(f"s_cbranch_scc1 {L}_loop")

    A("s_waitcnt lgkmcnt(0)")
    A(f"v_cmp_gt_u32 vcc, 32, v{VLANE}")
    A("s_nop 1")
    MF = XF
    CF = WF
    tt = VT
    for tb in range(2):
        b = MF + 4*tb
        A(f"v_cndmask_b32 v{tt}, 0, v{VM+tb}, vcc")
        A(f"v_cvt_pk_bf16_f32 v{b}, v{tt}, v{tt}")
        A(f"v_and_b32 v{tt+1}, 0xffff0000, v{b}")
        A(f"v_sub_f32 v{tt+1}, v{tt}, v{tt+1}")
        A(f"v_cvt_pk_bf16_f32 v{b+1}, v{tt+1}, 0")
        A(f"v_mov_b32 v{b+2}, 0"); A(f"v_mov_b32 v{b+3}, 0")
    for blk in range(5):
        b = CF + 4*blk
        A(f"v_cndmask_b32 v{tt}, 0, v{VCS+blk}, vcc")
        A(f"v_sub_f32 v{tt}, 0, v{tt}")
        A(f"v_cvt_pk_bf16_f32 v{b+1}, v{tt}, 0")
        A(f"v_lshlrev_b32 v{tt+1}, 16, v{b+1}")
        A(f"v_sub_f32 v{tt+1}, v{tt}, v{tt+1}")
        A(f"v_cvt_pk_bf16_f32 v{b}, v{tt}, v{tt+1}")
        A(f"v_mov_b32 v{b+2}, 0"); A(f"v_mov_b32 v{b+3}, 0")
    A("s_nop 1")
    order = [b for b, kd in enumerate(kinds) if kd in ("gu","guh")] + [b for b, kd in enumerate(kinds) if kd not in ("gu","guh")]
    for blk in order:
        for tb in range(2):
            a = acc(blk, tb); cf = f"v[{CF+4*blk}:{CF+4*blk+3}]"; mf = f"v[{MF+4*tb}:{MF+4*tb+3}]"
            if kinds[blk] == "kv": A(f"v_mfma_f32_32x32x16_bf16 v[{a}:{a+15}], {mf}, {cf}, v[{a}:{a+15}]")
            else: A(f"v_mfma_f32_32x32x16_bf16 v[{a}:{a+15}], {cf}, {mf}, v[{a}:{a+15}]")
    A(f"s_lshl_b32 s{S_T0}, s{S_T}, 1"); A(f"s_add_u32 s{S_T0}, s{S_T0}, s{S_WM}"); A(f"s_lshl_b32 s{S_T0}, s{S_T0}, 2")
    A(f"s_lshr_b32 s{S_T1}, s{S_IDX}, 1"); A(f"s_add_u32 s{S_T0}, s{S_T0}, s{S_T1}"); A(f"s_mul_i32 s{S_HB}, s{S_T0}, {36*2048}")
    A(f"s_and_b32 s{S_T1}, s{S_IDX}, 1")
    R2 = XF + 8
    A(f"v_mul_f32 v{R2}, v{VR}, v{VR}"); A(f"v_mul_f32 v{R2+1}, v{VR+1}, v{VR+1}")
    PK = WF + 20
    A("s_nop 7"); A("s_nop 7")
    nst = 0
    for blk in order:
        kd = kinds[blk]
        if kd in ("gu", "guh"):
            if typ == "A":
                A(f"s_lshl_b32 s{S_T2}, s{S_T1}, 1"); A(f"s_add_u32 s{S_T2}, s{S_T2}, s{S_WN}"); A(f"s_lshl_b32 s{S_T2}, s{S_T2}, 2"); A(f"s_add_u32 s{S_T2}, s{S_T2}, {blk}")
            elif kd == "gu":
                A(f"s_lshl_b32 s{S_T2}, s{S_T1}, 2"); A(f"s_lshl_b32 s{S_T3}, s{S_WN}, 1"); A(f"s_add_u32 s{S_T2}, s{S_T2}, s{S_T3}"); A(f"s_add_u32 s{S_T2}, s{S_T2}, {16 + blk - 2}")
            else:
                A(f"s_lshl_b32 s{S_T2}, s{S_T1}, 1"); A(f"s_add_u32 s{S_T2}, s{S_T2}, s{S_WN}"); A(f"s_add_u32 s{S_T2}, s{S_T2}, 24")
            A(f"s_lshl_b32 s{S_T2}, s{S_T2}, 11"); A(f"s_add_u32 s{S_T2}, s{S_T2}, s{S_HB}")
            for tb in range(2):
                a = acc(blk, tb); pk = PK + 4*(nst % 4); nst += 1
                for i in range(8): A(f"v_mul_f32 v{a+i}, v{a+i}, v{a+8+i}")
                for i in range(8): A(f"v_mul_f32 v{a+i}, v{R2+tb}, v{a+i}")
                for i in range(4): A(f"v_cvt_pk_bf16_f32 v{pk+i}, v{a+2*i}, v{a+2*i+1}")
                A(f"buffer_store_dwordx4 v[{pk}:{pk+3}], v{VL16}, s[{S_H}:{S_H+3}], s{S_T2} offen offset:{tb*1024}")
        elif kd == "q":
            A(f"s_lshl_b32 s{S_T2}, s{S_T1}, 2"); A(f"s_lshl_b32 s{S_T3}, s{S_WN}, 1"); A(f"s_add_u32 s{S_T2}, s{S_T2}, s{S_T3}"); A(f"s_add_u32 s{S_T2}, s{S_T2}, 28")
            A(f"s_lshl_b32 s{S_T2}, s{S_T2}, 11"); A(f"s_add_u32 s{S_T2}, s{S_T2}, s{S_HB}")
            A(f"s_mov_b32 s{S_T3}, 0x358637bd")
            for tb in range(2):
                a = acc(blk, tb)
                RL = XF + 10
                A(f"v_mul_f32 v{RL}, 0x3fb8aa3b, v{VR+tb}")
                for i in range(16):
                    A(f"v_mul_f32 v{tt}, v{RL}, v{a+i}")
                    A(f"v_fma_f32 v{a+i}, v{a+i}, v{VR+tb}, s{S_T3}")
                    A(f"v_exp_f32_e64 v{tt}, v{tt} clamp")
                    A(f"v_max_f32 v{a+i}, s{S_T3}, v{a+i}")
                    A(f"v_add_f32 v{a+i}, v{a+i}, v{tt}")
                for hs in range(2):
                    pk = PK + 4*(nst % 4); nst += 1
                    for i in range(4): A(f"v_cvt_pk_bf16_f32 v{pk+i}, v{a+8*hs+2*i}, v{a+8*hs+2*i+1}")
                    if hs == 1:
                        A(f"s_add_u32 s{S_GC}, s{S_T2}, 2048")
                        A(f"buffer_store_dwordx4 v[{pk}:{pk+3}], v{VL16}, s[{S_H}:{S_H+3}], s{S_GC} offen offset:{tb*1024}")
                    else:
                        A(f"buffer_store_dwordx4 v[{pk}:{pk+3}], v{VL16}, s[{S_H}:{S_H+3}], s{S_T2} offen offset:{tb*1024}")
    if typ == "B":
        CL, C2, KM = XF+10, XF+11, XF+12
        A(f"v_and_b32 v{tt}, 31, v{VLANE}"); A(f"v_cmp_gt_u32 vcc, 16, v{tt}")
        A(f"v_mov_b32 v{tt+1}, 0x358637bd"); A("s_nop 0")
        A(f"v_cndmask_b32 v{CL}, 0, v{tt+1}, vcc")
        A(f"v_mov_b32 v{tt+2}, 0xff800000")
        A(f"v_cndmask_b32 v{C2}, v{tt+2}, v{tt+1}, vcc")
        A(f"v_cndmask_b32 v{KM}, 0, 1.0, vcc")
        A(f"s_mov_b64 s[62:63], vcc")
        RR = WF
        RL = WF + 16
        TP = PK
        A(f"v_lshrrev_b32 v{tt}, 5, v{VLANE}"); A(f"v_lshlrev_b32 v{tt}, 4, v{tt}")
        A(f"s_lshl_b32 s{S_T0}, s{S_WM}, 8"); A(f"s_add_u32 s{S_T0}, s{S_T0}, {LDS_R}"); A(f"v_add_u32 v{tt+3}, s{S_T0}, v{tt}")
        D2 = [acc(2,0), acc(2,1)]
        for hb in range(2):
            for i in range(16): A(f"v_mov_b32 v{D2[hb]+i}, 0")
        for tb in range(2):
            for q4 in range(4): A(f"ds_read_b128 v[{RR+4*q4}:{RR+4*q4+3}], v{tt+3} offset:{tb*128 + q4*32}")
            A("s_waitcnt lgkmcnt(0)")
            for hb in range(2):
                a = acc(hb, tb)
                for i in range(16):
                    A(f"v_mul_f32 v{tt}, 0x3fb8aa3b, v{RR+i}")
                    A(f"v_mul_f32 v{tt}, v{tt}, v{a+i}")
                    A(f"v_fma_f32 v{a+i}, v{a+i}, v{RR+i}, v{CL}")
                    A(f"v_exp_f32_e64 v{tt}, v{tt} clamp")
                    A(f"v_max_f32 v{tt+1}, v{a+i}, v{C2}")
                    A(f"v_fma_f32 v{a+i}, v{tt}, v{KM}, v{tt+1}")
                for i in range(8): A(f"v_cvt_pk_bf16_f32 v{TP+i}, v{a+2*i}, v{a+2*i+1}")
                A(f"v_mov_b32 v{tt}, 0x3f803f80")
                for i in range(8): A(f"v_cndmask_b32 v{TP+8+i}, v{TP+i}, v{tt}, s[62:63]")
                A("s_nop 1")
                for f in range(2):
                    A(f"v_mfma_f32_32x32x16_bf16 v[{D2[hb]}:{D2[hb]+15}], v[{TP+4*f}:{TP+4*f+3}], v[{TP+8+4*f}:{TP+8+4*f+3}], v[{D2[hb]}:{D2[hb]+15}]")
                A("s_nop 7")
        A("s_nop 7"); A("s_nop 7")
        A(f"s_lshl_b32 s{S_T0}, s{S_WM}, 13"); A(f"s_lshl_b32 s{S_T1}, s{S_WN}, 12"); A(f"s_add_u32 s{S_T0}, s{S_T0}, s{S_T1}"); A(f"s_add_u32 s{S_T0}, s{S_T0}, {LDS_KV}")
        A(f"v_lshlrev_b32 v{tt}, 2, v{VLANE}"); A(f"v_add_u32 v{tt}, s{S_T0}, v{tt}")
        for hb in range(2):
            for r_ in range(8): A(f"ds_write_b32 v{tt}, v{D2[hb]+r_} offset:{hb*2048 + r_*256}")
        A("s_waitcnt lgkmcnt(0)"); A("s_barrier")
        A(f"s_lshl_b32 s{S_T0}, s{S_WV}, 11"); A(f"s_add_u32 s{S_T0}, s{S_T0}, {LDS_KV}")
        A(f"s_lshl_b32 s{S_T1}, s{S_IDX}, 2"); A(f"s_add_u32 s{S_T1}, s{S_T1}, s{S_WV}"); A(f"s_mul_i32 s{S_T1}, s{S_T1}, {KV_HEAD}"); A(f"s_add_u32 s{S_T1}, s{S_T1}, {WS_KV}")
        A(f"v_and_b32 v{tt}, 7, v{VLANE}"); A(f"v_lshlrev_b32 v{tt}, 8, v{tt}")
        A(f"v_lshrrev_b32 v{tt+1}, 3, v{VLANE}")
        B0 = ACC
        for n in range(4):
            A(f"v_add_u32 v{tt+2}, {32*(n>>1) + 16 + 8*(n&1)}, v{tt+1}"); A(f"v_lshlrev_b32 v{tt+2}, 2, v{tt+2}"); A(f"v_add_u32 v{tt+2}, v{tt+2}, v{tt}"); A(f"v_add_u32 v{tt+2}, s{S_T0}, v{tt+2}")
            A(f"ds_read_b32 v{B0+2*n}, v{tt+2}"); A(f"ds_read_b32 v{B0+2*n+1}, v{tt+2} offset:8192")
        A(f"v_lshlrev_b32 v{tt+2}, 7, v{tt+1}"); A(f"v_add_u32 v{tt+2}, v{tt+2}, v{tt}"); A(f"v_add_u32 v{tt+2}, s{S_T0}, v{tt+2}")
        A(f"v_and_b32 v{tt+2}, 0x3ffff, v{tt+2}")
        A(f"v_cmp_gt_u32 vcc, 16, v{VLANE}"); A(f"s_and_saveexec_b64 s[60:61], vcc")
        A(f"ds_read_b32 v{B0+8}, v{tt+2}"); A(f"ds_read_b32 v{B0+9}, v{tt+2} offset:8192")
        A(f"s_mov_b64 exec, s[60:61]")
        A("s_waitcnt lgkmcnt(0)")
        A(f"v_lshlrev_b32 v{tt+2}, 2, v{VLANE}"); A(f"v_add_u32 v{tt+2}, s{S_T1}, v{tt+2}")
        for n in range(4):
            A(f"v_add_f32 v{B0+2*n}, v{B0+2*n}, v{B0+2*n+1}")
            A(f"global_atomic_add_f32 v{tt+2}, v{B0+2*n}, s[{S_WSP}:{S_WSP+1}] offset:{n*256}")
        A(f"v_add_f32 v{B0+8}, v{B0+8}, v{B0+9}")
        A(f"s_and_saveexec_b64 s[60:61], vcc")
        A(f"global_atomic_add_f32 v{tt+2}, v{B0+8}, s[{S_WSP}:{S_WSP+1}] offset:1024")
        A(f"s_mov_b64 exec, s[60:61]")
    A("s_branch K1_end")

def gen_k1():
    A = Asm()
    k1_common_prologue(A)
    k1_type(A, "A")
    A.label("K1_typeB")
    k1_type(A, "B")
    A.label("K1_end")
    A.l = [x for x in A.l if x is not None and x.strip() != "None"]
    return A.text()

def gen_k2():
    A = Asm()
    ACC2 = 0
    W2V = 64
    HB = 96
    NH = 32
    DO = 224
    VL = 240; VL16_ = 241; VTR = 242; VDM = 243; T = 244
    def w2(ks, nb):
        f = ks*2 + nb
        return ar(4*f, 4) if f < 64 else vr(W2V + 4*(f-64), 4)
    def w2h(ks, nb, half):
        f = ks*2 + nb
        return ar(4*f + 2*half, 2) if f < 64 else vr(W2V + 4*(f-64) + 2*half, 2)
    S_WD=4; S_WO=8; S_HH=12; S_O=16; S_XX=20; WSP=24; WV=26; TAU=27; J=28; T0=29; T1=30; T2=31; LB=32; HO=33; P=40
    A("s_cmp_ge_u32 s2, 256"); A("s_cbranch_scc1 K2_end")
    A(f"s_load_dwordx2 s[{P}:{P+1}], s[0:1], 0")
    A(f"s_load_dwordx2 s[{P+2}:{P+3}], s[0:1], 16")
    A(f"s_load_dwordx2 s[{P+4}:{P+5}], s[0:1], 48")
    A(f"s_load_dwordx2 s[{P+6}:{P+7}], s[0:1], 56")
    A(f"s_load_dwordx2 s[{WSP}:{WSP+1}], s[0:1], 72")
    A(f"v_and_b32 v{VL}, 63, v0"); A(f"v_lshrrev_b32 v{T}, 6, v0"); A(f"v_lshlrev_b32 v{VL16_}, 4, v{VL}")
    A(f"v_readfirstlane_b32 s{WV}, v{T}")
    A(f"s_and_b32 s{T0}, s2, 7"); A(f"s_lshr_b32 s{T1}, s2, 3"); A(f"s_and_b32 s{TAU}, s{T1}, 3"); A(f"s_lshl_b32 s{T0}, s{T0}, 2"); A(f"s_add_u32 s{TAU}, s{TAU}, s{T0}")
    A(f"s_lshr_b32 s{J}, s{T1}, 2")
    A("s_waitcnt lgkmcnt(0)")
    A(f"s_lshl_b32 s{T0}, s{J}, 7")
    srd_off(A, S_WD, P+4, P+5, f"s{T0}", 1792*1024)
    srd_off(A, S_WO, P+2, P+3, f"s{T0}", 512*1024)
    srd_off(A, S_HH, WSP, WSP+1, WS_H, WS_H + H_BYTES)
    srd(A, S_O, P+6, P+7, 2048*1024)
    srd(A, S_XX, P, P+1, 2048*1024)
    A(f"v_lshrrev_b32 v{T}, 3, v{VL}"); A(f"v_and_b32 v{T+1}, 7, v{VL}"); A(f"v_lshrrev_b32 v{T+2}, 4, v{VL}"); A(f"v_and_b32 v{T+2}, 1, v{T+2}"); A(f"v_lshlrev_b32 v{T+2}, 2, v{T+2}")
    A(f"v_xor_b32 v{T+1}, v{T+1}, v{T+2}"); A(f"v_lshlrev_b32 v{T+1}, 4, v{T+1}"); A(f"v_lshlrev_b32 v{T}, 10, v{T}"); A(f"v_add_u32 v{VDM}, v{T}, v{T+1}")
    A(f"v_lshrrev_b32 v{T}, 4, v{VL}"); A(f"v_and_b32 v{T}, 1, v{T}")
    A(f"v_lshrrev_b32 v{T+1}, 5, v{VL}")
    A(f"v_and_b32 v{T+2}, 15, v{VL}"); A(f"v_lshrrev_b32 v{T+2}, 2, v{T+2}")
    A(f"v_and_b32 v{T+3}, 3, v{VL}")
    A(f"v_lshlrev_b32 v{T+4}, 2, v{T+1}"); A(f"v_add_u32 v{T+4}, v{T+4}, v{T+2}")
    A(f"v_lshlrev_b32 v{T+5}, 1, v{T}"); A(f"v_lshrrev_b32 v{T+6}, 1, v{T+3}"); A(f"v_add_u32 v{T+5}, v{T+5}, v{T+6}")
    A(f"v_lshrrev_b32 v{T+6}, 1, v{T+2}"); A(f"v_and_b32 v{T+6}, 1, v{T+6}"); A(f"v_lshlrev_b32 v{T+6}, 2, v{T+6}"); A(f"v_xor_b32 v{T+5}, v{T+5}, v{T+6}")
    A(f"v_lshlrev_b32 v{T+5}, 4, v{T+5}"); A(f"v_lshlrev_b32 v{T+4}, 7, v{T+4}"); A(f"v_add_u32 v{T+5}, v{T+5}, v{T+4}")
    A(f"v_and_b32 v{T+6}, 1, v{T+3}"); A(f"v_lshlrev_b32 v{T+6}, 3, v{T+6}"); A(f"v_add_u32 v{T+5}, v{T+5}, v{T+6}")
    RING = 16
    A(f"s_lshl_b32 s{LB}, s{WV}, 15")
    A(f"v_add_u32 v{VTR}, s{LB}, v{T+5}")
    VTR1 = T + 11
    A(f"v_xor_b32 v{VTR1}, 64, v{VTR}")
    SA, SB, SC, SD = 34, 35, 36, 37
    A(f"s_lshl_b32 s{SA}, s{WV}, 18")
    A(f"s_lshl_b32 s{SB}, s{WV}, 17"); A(f"s_add_u32 s{SB}, s{SB}, {1024*1024}")
    A(f"s_lshl_b32 s{SC}, s{WV}, 16"); A(f"s_add_u32 s{SC}, s{SC}, {1536*1024}")
    A(f"s_lshl_b32 s{SD}, s{WV}, 17")
    def w2_dma(i):
        if i < 16: base, off, s = SA, 16*i, S_WD
        elif i < 24: base, off, s = SB, 16*(i-16), S_WD
        elif i < 28: base, off, s = SC, 16*(i-24), S_WD
        else: base, off, s = SD, 16*(i-28), S_WO
        for hf in range(2):
            A(f"s_add_u32 m0, s{LB}, {(i % RING)*2048 + hf*1024}")
            A(f"s_add_u32 s{T0}, s{base}, {(off + 8*hf)*1024}")
            A(f"buffer_load_dwordx4 v{VDM}, s[{s}:{s+3}], s{T0} offen lds")
    def w2_read(i):
        o = (i % RING)*2048
        for nb in range(2):
            va = VTR if nb == 0 else VTR1
            A(f"ds_read_b64_tr_b16 {w2h(i, nb, 0)}, v{va} offset:{o}")
            A(f"ds_read_b64_tr_b16 {w2h(i, nb, 1)}, v{va} offset:{o+1024}")
    A(f"s_lshl_b32 s{HO}, s{TAU}, 2"); A(f"s_add_u32 s{HO}, s{HO}, s{WV}"); A(f"s_mul_i32 s{HO}, s{HO}, {36*2048}")
    def h_load(f):
        hb = HB + 4*(f % NH)
        if f % 4 == 0 and f > 0: A(f"s_add_u32 s{HO}, s{HO}, 4096")
        A(f"buffer_load_dwordx4 v[{hb}:{hb+3}], v{VL16_}, s[{S_HH}:{S_HH+3}], s{HO} offen offset:{(f%4)*1024}")
    for i in range(RING): w2_dma(i)
    KVA = T + 10
    A(f"v_and_b32 v{T}, 31, v{VL}"); A(f"v_lshrrev_b32 v{T+1}, 5, v{VL}")
    A(f"v_lshlrev_b32 v{T+2}, 4, v{T+1}"); A(f"v_add_u32 v{T+2}, v{T+2}, v{T}"); A(f"v_subrev_u32 v{T+2}, 16, v{T+2}"); A(f"v_lshlrev_b32 v{T+2}, 5, v{T+2}")
    A(f"v_lshlrev_b32 v{T+3}, 5, v{T+1}"); A(f"v_add_u32 v{T+3}, 1024, v{T+3}")
    A(f"v_cmp_gt_u32 vcc, 16, v{T}"); A("s_nop 1"); A(f"v_cndmask_b32 v{T+2}, v{T+2}, v{T+3}, vcc")
    A(f"s_lshl_b32 s{T0}, s{WV}, 3"); A(f"s_mul_i32 s{T0}, s{T0}, {KV_HEAD}"); A(f"s_add_u32 s{T0}, s{T0}, {WS_KV}")
    A(f"v_add_u32 v{KVA}, s{T0}, v{T+2}")
    for i in range(36):
        later = 2*(min(36, i + RING) - (i+1))
        A(f"s_waitcnt vmcnt({later})")
        w2_read(i)
        if i + RING < 36:
            A("s_waitcnt lgkmcnt(0)")
            w2_dma(i + RING)
    for i in range(64): A(f"v_mov_b32 v{ACC2+i}, 0")
    for f in range(NH): h_load(f)
    A("s_waitcnt lgkmcnt(0)")
    nextf = NH
    for i in range(28):
        out_after = nextf - (2*i + 2)
        A(f"s_waitcnt vmcnt({min(63,out_after)})")
        for tb in range(2):
            hb = HB + 4*((2*i+tb) % NH)
            for nb in range(2):
                a = ACC2 + 16*(2*nb+tb)
                A(f"v_mfma_f32_32x32x16_bf16 v[{a}:{a+15}], {w2(i,nb)}, v[{hb}:{hb+3}], v[{a}:{a+15}]")
        for tb in range(2):
            if nextf < 72: h_load(nextf); nextf += 1
    KVF = HB + 4*8
    A(f"s_mov_b32 s{T1}, {KV_HEAD}")
    for h in range(8):
        A(f"global_load_dwordx4 v[{KVF+8*h}:{KVF+8*h+3}], v{KVA}, s[{WSP}:{WSP+1}]")
        A(f"global_load_dwordx4 v[{KVF+8*h+4}:{KVF+8*h+7}], v{KVA}, s[{WSP}:{WSP+1}] offset:16")
        A(f"v_add_u32 v{KVA}, s{T1}, v{KVA}")
    A("s_waitcnt vmcnt(0)")
    for h in range(8):
        for i in range(4): A(f"v_cvt_pk_bf16_f32 v{KVF+8*h+i}, v{KVF+8*h+2*i}, v{KVF+8*h+2*i+1}")
    A("s_nop 1")
    A(f"s_mov_b32 s{T1}, 0x358637bd")
    for h in range(8):
        i = 28 + h
        for tb in range(2):
            hb = HB + 4*((2*i+tb) % NH)
            A(f"v_mfma_f32_32x32x16_bf16 v[{DO}:{DO+15}], v[{KVF+8*h}:{KVF+8*h+3}], v[{hb}:{hb+3}], 0")
            A("s_nop 7"); A("s_nop 7")
            A(f"v_add_f32 v{T}, s{T1}, v{DO}")
            A(f"v_rcp_f32 v{T}, v{T}")
            A("s_nop 0")
            for e in range(8): A(f"v_mul_f32 v{DO+8+e}, v{T}, v{DO+8+e}")
            for e in range(4): A(f"v_cvt_pk_bf16_f32 v{hb+e}, v{DO+8+2*e}, v{DO+8+2*e+1}")
            A("s_nop 1")
            for nb in range(2):
                a = ACC2 + 16*(2*nb+tb)
                A(f"v_mfma_f32_32x32x16_bf16 v[{a}:{a+15}], {w2(i,nb)}, v[{hb}:{hb+3}], v[{a}:{a+15}]")
    RS = 272; WSZ = 64*RS
    A("s_nop 7"); A("s_nop 7")
    A("s_barrier")
    A(f"v_and_b32 v{T}, 31, v{VL}"); A(f"v_mul_u32_u24 v{T}, {RS}, v{T}"); A(f"v_lshrrev_b32 v{T+1}, 5, v{VL}"); A(f"v_lshlrev_b32 v{T+1}, 4, v{T+1}"); A(f"v_add_u32 v{T}, v{T}, v{T+1}")
    A(f"s_mul_i32 s{T0}, s{WV}, {WSZ}"); A(f"v_add_u32 v{T}, s{T0}, v{T}")
    for nb in range(2):
        for tb in range(2):
            a = ACC2 + 16*(2*nb+tb)
            for q in range(4):
                A(f"ds_write_b128 v{T}, v[{a+4*q}:{a+4*q+3}] offset:{tb*32*RS + nb*128 + q*32}")
    A(f"s_lshl_b32 s{T1}, s{WV}, 6"); A(f"v_add_u32 v{T+3}, s{T1}, v{VL}")
    A(f"v_lshrrev_b32 v{T+2}, 3, v{T+3}"); A(f"v_and_b32 v{T+3}, 7, v{T+3}")
    A(f"s_lshl_b32 s{T0}, s{TAU}, 16"); A(f"s_lshl_b32 s{T1}, s{J}, 7"); A(f"s_add_u32 s{T0}, s{T0}, s{T1}")
    A(f"v_lshlrev_b32 v{T+4}, 10, v{T+2}"); A(f"v_lshlrev_b32 v{T+5}, 4, v{T+3}"); A(f"v_add_u32 v{T+4}, v{T+4}, v{T+5}")
    A(f"buffer_load_dwordx4 v[64:67], v{T+4}, s[{S_XX}:{S_XX+3}], s{T0} offen")
    A(f"s_add_u32 s{T1}, s{T0}, {32*1024}")
    A(f"buffer_load_dwordx4 v[68:71], v{T+4}, s[{S_XX}:{S_XX+3}], s{T1} offen")
    A("s_waitcnt lgkmcnt(0)"); A("s_barrier")
    A(f"v_mul_u32_u24 v{T+6}, {RS}, v{T+2}"); A(f"v_lshlrev_b32 v{T+7}, 5, v{T+3}"); A(f"v_add_u32 v{T+6}, v{T+6}, v{T+7}")
    for ps in range(2):
        for w in range(4):
            A(f"ds_read_b128 v[{96+8*w}:{96+8*w+3}], v{T+6} offset:{w*WSZ + ps*32*RS}")
            A(f"ds_read_b128 v[{96+8*w+4}:{96+8*w+7}], v{T+6} offset:{w*WSZ + ps*32*RS + 16}")
        A("s_waitcnt lgkmcnt(0)")
        for e in range(8):
            A(f"v_add_f32 v{96+e}, v{96+e}, v{104+e}"); A(f"v_add_f32 v{112+e}, v{112+e}, v{120+e}"); A(f"v_add_f32 v{96+e}, v{96+e}, v{112+e}")
        A(f"s_waitcnt vmcnt({1-ps})" if ps == 0 else "s_waitcnt vmcnt(1)")
        xb = 64 + 4*ps
        for e in range(4):
            A(f"v_lshlrev_b32 v{T+8}, 16, v{xb+e}"); A(f"v_and_b32 v{T+9}, 0xffff0000, v{xb+e}")
            A(f"v_add_f32 v{96+2*e}, v{96+2*e}, v{T+8}"); A(f"v_add_f32 v{96+2*e+1}, v{96+2*e+1}, v{T+9}")
            A(f"v_cvt_pk_bf16_f32 v{72+4*ps+e}, v{96+2*e}, v{96+2*e+1}")
        A(f"buffer_store_dwordx4 v[{72+4*ps}:{72+4*ps+3}], v{T+4}, s[{S_O}:{S_O+3}], s{T0 if ps == 0 else T1} offen")
    A.label("K2_end")
    return A.text()

def kernel_block(name, body, vgpr, agpr, sgpr=96):
    return f""".globl {name}
.p2align 8
.type {name},@function
{name}:
{body}
  s_endpgm
""", f""".amdhsa_kernel {name}
  .amdhsa_next_free_vgpr {vgpr+agpr}
  .amdhsa_next_free_sgpr {sgpr}
  .amdhsa_accum_offset {vgpr}
  .amdhsa_group_segment_fixed_size 0
  .amdhsa_kernarg_size 80
  .amdhsa_user_sgpr_count 2
  .amdhsa_user_sgpr_kernarg_segment_ptr 1
  .amdhsa_system_sgpr_workgroup_id_x 1
.end_amdhsa_kernel
"""

def main(path):
    hdr = open("cdna_kernels/" + NAME + ".s.ref").read().split("; Override")[0]
    ks = [("k0_kernel", gen_k0(), 64, 0, 2048), ("k1_kernel", gen_k1(), 256, 256, 163840), ("k2_kernel", gen_k2(), 256, 256, 131072)]
    out = hdr
    for n, _, _, _, lds in ks:
        out += f"; @launch kernel={n} grid=(256,1,1) block=(256,1,1) lds={lds}\n"
    out += '.amdgcn_target "amdgcn-amd-amdhsa--gfx950"\n.text\n'
    descs = ""
    for n, body, v, a, lds in ks:
        c, d = kernel_block(n, body, v, a)
        out += c; descs += ".p2align 6\n" + d
    out += '.section .rodata,"a"\n' + descs
    open(path, "w").write(out)

if __name__ == "__main__":
    main(sys.argv[1] if len(sys.argv) > 1 else "cdna_kernels/" + NAME + ".s")
```

```python
import sys

NAME = "parallel_sum__linear_attn_block__glu_gated_bilinear__prompt"

WS_M = 0
WS_R = 8192
WS_CS = 16384
WS_KV = 65536
KV_HEAD = 1152
WS_FLAG = 65536 + 36864
WS_KVCNT = WS_FLAG + 8192
ZERO_BYTES = 36864 + 8192 + 2048 + 2048
WS_H = 131072
H_BYTES = 32*4*36*2048
OOB = 0x40000000
POLL_MAX = 200000

STAMP = False
STAMP_INS = 's_memrealtime'
WS_STAMP = 1 << 24
SB = 84

class Asm:
    def __init__(self): self.l = []
    def __call__(self, s):
        if s is not None: self.l.append("  " + s)
    def label(self, s): self.l.append(s + ":")
    def text(self): return "\n".join(self.l)
    def stamp(self, i):
        if STAMP: self.l.append(f"  {STAMP_INS} s[{SB+2*i}:{SB+2*i+1}]")
    def dump_stamps(self, kid, n, wsp, wave_sgpr, tmpv, tmps):
        if not STAMP: return
        A = self
        A("s_waitcnt vmcnt(0) lgkmcnt(0)")
        A(f"{STAMP_INS} s[{SB+2*n}:{SB+2*n+1}]")
        A("s_waitcnt lgkmcnt(0)")
        A(f"s_lshl_b32 s{tmps}, s2, 2"); A(f"s_add_u32 s{tmps}, s{tmps}, s{wave_sgpr}"); A(f"s_lshl_b32 s{tmps}, s{tmps}, 6")
        A(f"s_add_u32 s{tmps}, s{tmps}, {WS_STAMP + kid*65536}")
        A(f"v_mov_b32 v{tmpv}, s{tmps}")
        for i in range(n+1):
            A(f"v_mov_b32 v{tmpv+1}, s{SB+2*i}")
            A(f"global_store_dword v{tmpv}, v{tmpv+1}, s[{wsp}:{wsp+1}] offset:{4*i}")

def vr(b, n=1): return f"v{b}" if n == 1 else f"v[{b}:{b+n-1}]"
def ar(b, n=1): return f"a{b}" if n == 1 else f"a[{b}:{b+n-1}]"

def srd(A, d, lo, hi, size):
    A(f"s_mov_b32 s{d}, s{lo}"); A(f"s_and_b32 s{d+1}, s{hi}, 0xffff"); A(f"s_mov_b32 s{d+2}, {size}"); A(f"s_mov_b32 s{d+3}, 0x20000")
def srd_off(A, d, lo, hi, off, size):
    A(f"s_add_u32 s{d}, s{lo}, {off}"); A(f"s_addc_u32 s{d+1}, s{hi}, 0"); A(f"s_and_b32 s{d+1}, s{d+1}, 0xffff")
    if isinstance(off, int): A(f"s_mov_b32 s{d+2}, {size - off}")
    else: A(f"s_sub_u32 s{d+2}, {size}, {off}")
    A(f"s_mov_b32 s{d+3}, 0x20000")

def gen_k0():
    A = Asm()
    A("s_cmp_ge_u32 s2, 256"); A("s_cbranch_scc1 K0_end2")
    A.stamp(0)
    A("s_load_dwordx4 s[4:7], s[0:1], 0")
    A("s_load_dwordx4 s[8:11], s[0:1], 32")
    A("s_load_dwordx2 s[12:13], s[0:1], 72")
    A("v_and_b32 v1, 63, v0")
    A("v_lshrrev_b32 v2, 6, v0")
    A("v_lshlrev_b32 v3, 4, v1")
    A("v_readfirstlane_b32 s14, v2")
    A("s_lshl_b32 s15, s2, 3"); A("s_lshl_b32 s16, s14, 1"); A("s_add_u32 s15, s15, s16")
    A("s_lshl_b32 s16, s15, 10")
    A("v_add_u32 v3, s16, v3")
    A("s_waitcnt lgkmcnt(0)")
    A("global_load_dwordx4 v[4:7], v3, s[4:5]")
    A("global_load_dwordx4 v[8:11], v3, s[4:5] offset:1024")
    A("s_cmp_ge_u32 s2, 160"); A("s_cbranch_scc1 K0_nocs1")
    A("s_cmp_ge_u32 s2, 80"); A("s_cselect_b32 s36, 1, 0"); A("s_mul_i32 s37, s36, 80"); A("s_sub_u32 s37, s2, s37")
    A("s_cmp_lt_u32 s37, 24"); A("s_cbranch_scc0 K0_notq")
    A("s_mov_b32 s32, s6"); A("s_mov_b32 s33, s7"); A("s_mov_b32 s34, 3072"); A("s_lshl_b32 s35, s37, 7"); A("s_branch K0_cs")
    A.label("K0_notq")
    A("s_cmp_lt_u32 s37, 52"); A("s_cbranch_scc0 K0_up")
    A("s_mov_b32 s32, s8"); A("s_mov_b32 s33, s9"); A("s_mov_b32 s34, 3584"); A("s_sub_u32 s35, s37, 24"); A("s_lshl_b32 s35, s35, 7"); A("s_branch K0_cs")
    A.label("K0_up")
    A("s_mov_b32 s32, s10"); A("s_mov_b32 s33, s11"); A("s_mov_b32 s34, 3584"); A("s_sub_u32 s35, s37, 52"); A("s_lshl_b32 s35, s35, 7")
    A.label("K0_cs")
    A("v_and_b32 v20, 7, v0"); A("v_lshrrev_b32 v21, 3, v0")
    A("s_lshl_b32 s38, s36, 8"); A("v_add_u32 v21, s38, v21"); A("v_mul_lo_u32 v21, v21, s34")
    A("v_lshlrev_b32 v20, 4, v20"); A("v_add_u32 v21, v21, v20"); A("v_add_u32 v21, s35, v21")
    A("s_lshl_b32 s39, s34, 5")
    for i in range(8):
        A(f"global_load_dwordx4 v[{32+4*i}:{35+4*i}], v21, s[32:33]"); A("v_add_u32 v21, s39, v21")
    A.label("K0_nocs1")
    for tok in range(2):
        b = 4 + 4*tok
        if tok == 0:
            A("s_cmp_ge_u32 s2, 160"); A("s_cbranch_scc1 K0_w0")
            A("s_waitcnt vmcnt(8)"); A("s_branch K0_w1")
            A.label("K0_w0"); A("s_waitcnt vmcnt(0)"); A.label("K0_w1")
        A("v_mov_b32 v20, 0"); A("v_mov_b32 v22, 0") ; A("v_mov_b32 v23, 0"); A("v_mov_b32 v24, 0")
        for i in range(4):
            A(f"v_lshlrev_b32 v12, 16, v{b+i}"); A(f"v_and_b32 v13, 0xffff0000, v{b+i}")
            A("v_add_f32 v20, v20, v12"); A("v_fmac_f32 v22, v12, v12")
            A("v_add_f32 v23, v23, v13"); A("v_fmac_f32 v24, v13, v13")
        A("v_add_f32 v20, v20, v23"); A("v_add_f32 v22, v22, v24")
        for rot in (1,2,4,8):
            A("s_nop 1")
            A(f"v_add_f32_dpp v20, v20, v20 row_ror:{rot} row_mask:0xf bank_mask:0xf")
            A(f"v_add_f32_dpp v22, v22, v22 row_ror:{rot} row_mask:0xf bank_mask:0xf")
        A("s_nop 1")
        for j,ln in enumerate((0,16,32,48)):
            A(f"v_readlane_b32 s{20+j}, v20, {ln}"); A(f"v_readlane_b32 s{24+j}, v22, {ln}")
        A("s_nop 1")
        A("v_mov_b32 v25, s20"); A("v_add_f32 v25, s21, v25"); A("v_add_f32 v25, s22, v25"); A("v_add_f32 v25, s23, v25")
        A("v_mov_b32 v26, s24"); A("v_add_f32 v26, s25, v26"); A("v_add_f32 v26, s26, v26"); A("v_add_f32 v26, s27, v26")
        A("v_mul_f32 v25, 0x3b000000, v25"); A("v_mul_f32 v26, 0x3b000000, v26")
        A("v_fma_f32 v26, -v25, v25, v26"); A("v_max_f32 v26, 0, v26"); A("v_add_f32 v26, 0x3727c5ac, v26"); A("v_rsq_f32 v26, v26")
        A(f"s_add_u32 s17, s15, {tok}"); A("s_lshl_b32 s17, s17, 2")
        A("v_mov_b32 v27, s17")
        A("v_cmp_eq_u32 vcc, 0, v1"); A("s_and_saveexec_b64 s[30:31], vcc")
        A(f"global_store_dword v27, v25, s[12:13] offset:{WS_M}")
        A("v_add_u32 v27, 8192, v27")
        A("global_store_dword v27, v26, s[12:13]")
        A("s_mov_b64 exec, s[30:31]")
    A("s_cmp_ge_u32 s2, 160"); A("s_cbranch_scc1 K0_zero")
    for c in range(8): A(f"v_mov_b32 v{64+c}, 0")
    for i in range(8):
        A(f"s_waitcnt vmcnt({min(63, 7-i+4)})")
        for d in range(4):
            A(f"v_lshlrev_b32 v12, 16, v{32+4*i+d}"); A(f"v_and_b32 v13, 0xffff0000, v{32+4*i+d}")
            A(f"v_add_f32 v{64+2*d}, v{64+2*d}, v12"); A(f"v_add_f32 v{65+2*d}, v{65+2*d}, v13")
    A("v_lshrrev_b32 v12, 3, v0"); A("v_mul_u32_u24 v12, 272, v12"); A("v_and_b32 v13, 7, v0"); A("v_lshlrev_b32 v13, 5, v13"); A("v_add_u32 v12, v12, v13")
    A("ds_write_b128 v12, v[64:67]"); A("ds_write_b128 v12, v[68:71] offset:16")
    A("s_waitcnt lgkmcnt(0)"); A("s_barrier")
    A("v_lshlrev_b32 v12, 2, v1"); A("s_mul_i32 s40, s14, 2176"); A("v_add_u32 v12, s40, v12")
    for g in range(8): A(f"ds_read_b32 v{32+g}, v12 offset:{g*272}")
    A("s_waitcnt lgkmcnt(0)")
    for g in range(1,8): A(f"v_add_f32 v32, v32, v{32+g}")
    A("s_barrier")
    A("v_lshlrev_b32 v12, 2, v0"); A("ds_write_b32 v12, v32")
    A("s_waitcnt lgkmcnt(0)"); A("s_barrier")
    A("s_cmp_eq_u32 s14, 0"); A("s_cbranch_scc0 K0_end")
    A("v_lshlrev_b32 v12, 2, v1")
    for g in range(4): A(f"ds_read_b32 v{32+g}, v12 offset:{g*256}")
    A("s_waitcnt lgkmcnt(0)")
    A("v_add_f32 v32, v32, v33"); A("v_add_f32 v34, v34, v35"); A("v_add_f32 v32, v32, v34")
    A("s_mul_i32 s40, s36, 20480"); A("s_lshl_b32 s41, s37, 8"); A("s_add_u32 s40, s40, s41"); A(f"s_add_u32 s40, s40, {WS_CS}")
    A("v_add_u32 v12, s40, v12")
    A("global_store_dword v12, v32, s[12:13]")
    A("s_branch K0_end")
    A.label("K0_zero")
    A("s_cmp_ge_u32 s2, 172"); A("s_cbranch_scc1 K0_end")
    A("s_sub_u32 s37, s2, 160"); A("s_lshl_b32 s37, s37, 12"); A(f"s_add_u32 s37, s37, {WS_KV}")
    A("v_lshlrev_b32 v6, 4, v0"); A("v_add_u32 v6, s37, v6")
    for i in range(4): A(f"v_mov_b32 v{8+i}, 0")
    A("global_store_dwordx4 v6, v[8:11], s[12:13] sc1")
    A.label("K0_end")
    A.dump_stamps(0, 1, 12, 14, 30, 42)
    A.label("K0_end2")
    return A.text()

X_BASE = 0; X_SLOT = 16384; X_NS = 3
W_BASE = 49152; W_SLOT = 20480; W_NS = 4
MISC = 131072
LDS_R = MISC
LDS_KV = MISC + 1024

ACC = 0; WF = 160; XF = 200; TRA = 216; XA = 221; VOW = 225; VOX = 230
VR = 234
VLANE = 236; VL16 = 237; VTID = 238
VT = 240
AMF = 228
ACF = 236
def acc(blk, tb): return ACC + (blk*2+tb)*16

S_X = 4; S_W = 8; S_H = 28; S_WSP = 32
S_WV = 34; S_WM = 35; S_WN = 36; S_T = 37; S_IDX = 38
S_KW = 39; S_KH = 40; S_R30 = 41; S_R35 = 42; S_RH = 43; S_GC = 44
S_WSL = 45; S_XSL = 46; S_KX = 47; S_XC = 48; S_DW = 49; S_DX = 50; S_IT = 51; S_XB = 52
S_T0 = 53; S_T1 = 54; S_T2 = 55; S_T3 = 56; S_OOB = 57; S_XSI = 58; S_HB = 59
S_E0 = 60
S_P = 64
S_CX = 80; S_CW = 81; S_TYP = 82; S_CP = 83
P_X, P_WQ, P_WO, P_G, P_U, P_D, P_O = 64, 66, 68, 72, 74, 76, 78

def prologue_common(A):
    A("s_cmp_ge_u32 s2, 256"); A("s_cbranch_scc1 K12_end")
    A.stamp(0)
    A(f"s_load_dwordx16 s[{S_P}:{S_P+15}], s[0:1], 0")
    A(f"s_load_dwordx2 s[{S_WSP}:{S_WSP+1}], s[0:1], 72")
    A(f"v_and_b32 v{VLANE}, 63, v0")
    A(f"v_lshrrev_b32 v{VT}, 6, v0")
    A(f"v_mov_b32 v{VTID}, v0")
    A(f"v_lshlrev_b32 v{VL16}, 4, v{VLANE}")
    A(f"v_readfirstlane_b32 s{S_WV}, v{VT}")
    A(f"s_and_b32 s{S_T0}, s2, 7"); A(f"s_lshr_b32 s{S_T1}, s2, 3")
    A(f"s_and_b32 s{S_T2}, s{S_T1}, 7"); A(f"s_lshr_b32 s{S_CP}, s{S_T1}, 3")
    A(f"s_lshr_b32 s{S_T}, s{S_T0}, 2"); A(f"s_lshl_b32 s{S_T}, s{S_T}, 3"); A(f"s_add_u32 s{S_T}, s{S_T}, s{S_T2}")
    A(f"s_and_b32 s{S_IDX}, s{S_T0}, 3"); A(f"s_lshl_b32 s{S_IDX}, s{S_IDX}, 1")
    A(f"s_and_b32 s{S_T0}, s{S_CP}, 1"); A(f"s_add_u32 s{S_IDX}, s{S_IDX}, s{S_T0}")
    A(f"s_add_u32 s{S_T0}, s{S_CP}, s{S_T2}"); A(f"s_and_b32 s{S_T0}, s{S_T0}, 3"); A(f"s_lshl_b32 s{S_T0}, s{S_T0}, 1")
    A(f"s_lshr_b32 s{S_T1}, s{S_T2}, 2"); A(f"s_add_u32 s{S_T0}, s{S_T0}, s{S_T1}")
    A(f"s_lshl_b32 s{S_KW}, s{S_T0}, 6")
    A(f"s_lshr_b32 s{S_WM}, s{S_WV}, 1"); A(f"s_and_b32 s{S_WN}, s{S_WV}, 1")
    t0, t1, t3, t4 = VT, VT+1, VT+3, VT+4
    A(f"v_lshrrev_b32 v{t0}, 3, v{VLANE}"); A(f"v_and_b32 v{t1}, 7, v{VLANE}")
    for j in range(4):
        A(f"v_lshrrev_b32 v{t3}, 4, v{VLANE}")
        if j & 1: A(f"v_or_b32 v{t3}, 4, v{t3}")
        A(f"v_xor_b32 v{t3}, v{t1}, v{t3}"); A(f"v_lshlrev_b32 v{t3}, 4, v{t3}")
        A(f"v_add_u32 v{t4}, {8*j}, v{t0}"); A(f"v_lshlrev_b32 v{t4}, 10, v{t4}"); A(f"v_add_u32 v{VOX+j}, v{t3}, v{t4}")
    A(f"s_lshl_b32 s{S_XB}, s{S_T}, 7"); A(f"s_lshl_b32 s{S_T0}, s{S_WV}, 5"); A(f"s_add_u32 s{S_XB}, s{S_XB}, s{S_T0}"); A(f"s_lshl_b32 s{S_XB}, s{S_XB}, 10")
    A(f"s_lshl_b32 s{S_KX}, s{S_KW}, 1")
    A(f"s_and_b32 s{S_T0}, s{S_WV}, 1"); A(f"s_lshl_b32 s{S_T0}, s{S_T0}, 4"); A(f"s_add_u32 s{S_KH}, s{S_KW}, s{S_T0}")
    A(f"s_lshl_b32 s{S_T0}, s{S_WV}, 3"); A(f"s_add_u32 s{S_KW}, s{S_KW}, s{S_T0}")
    A(f"s_mov_b32 s{S_GC}, 0"); A(f"s_mov_b32 s{S_XC}, 0")
    A(f"s_lshl_b32 s{S_T0}, s{S_WV}, 10"); A(f"s_add_u32 s{S_WSL}, s{S_T0}, {W_BASE}")
    A(f"s_lshl_b32 s{S_T0}, s{S_WV}, 12"); A(f"s_add_u32 s{S_XSL}, s{S_T0}, {X_BASE}")
    A("s_waitcnt lgkmcnt(0)")
    srd(A, S_X, P_X, P_X+1, 2048*1024)

class G1:
    def __init__(self, A, typ):
        self.A = A; self.typ = typ
        self.kinds = ["gu","gu","gu","gu","q"] if typ == "A" else ["kv","kv","gu","gu","guh"]
        if typ == "A": self.strides = [3584,3584,3584,3584,3072]; self.swz = ["g","u","g","u","q"]
        else: self.strides = [3072,3072,3584,3584,3584]; self.swz = ["g","u","g","u","h"]
    def w_setup(self, oob=True):
        o = []
        if oob:
            o.append([f"s_cmp_ge_u32 s{S_GC}, 16", f"s_cselect_b32 s{S_OOB}, {OOB}, 0"])
            o.append([f"s_mul_i32 s{S_R30}, s{S_KW}, 3072", f"s_or_b32 s{S_R30}, s{S_R30}, s{S_OOB}"])
            o.append([f"s_mul_i32 s{S_R35}, s{S_KW}, 3584", f"s_or_b32 s{S_R35}, s{S_R35}, s{S_OOB}"])
            if self.typ == "B": o.append([f"s_mul_i32 s{S_RH}, s{S_KH}, 3584", f"s_or_b32 s{S_RH}, s{S_RH}, s{S_OOB}"])
        else:
            o.append([f"s_mul_i32 s{S_R30}, s{S_KW}, 3072"]); o.append([f"s_mul_i32 s{S_R35}, s{S_KW}, 3584"])
            if self.typ == "B": o.append([f"s_mul_i32 s{S_RH}, s{S_KH}, 3584"])
        return o
    def w_dma(self):
        o = []
        for rho in range(5):
            so = S_RH if self.swz[rho] == "h" else (S_R30 if self.strides[rho] == 3072 else S_R35)
            o.append([f"s_add_u32 m0, s{S_WSL}, {rho*4096}", f"buffer_load_dwordx4 v{VOW+rho}, s[{S_W+4*rho}:{S_W+4*rho+3}], s{so} offen lds"])
        return o
    def w_adv(self):
        o = [[f"s_add_u32 s{S_KW}, s{S_KW}, 32", f"s_and_b32 s{S_KW}, s{S_KW}, 511"]]
        if self.typ == "B": o += [[f"s_add_u32 s{S_KH}, s{S_KH}, 32", f"s_and_b32 s{S_KH}, s{S_KH}, 511"]]
        o += [[f"s_add_u32 s{S_GC}, s{S_GC}, 1", f"s_add_u32 s{S_WSL}, s{S_WSL}, {W_SLOT}"],
              [f"s_cmp_ge_u32 s{S_WSL}, {W_BASE + W_NS*W_SLOT}", f"s_cselect_b32 s{S_T0}, {W_NS*W_SLOT}, 0", f"s_sub_u32 s{S_WSL}, s{S_WSL}, s{S_T0}"]]
        return o
    def x_setup(self, oob=True):
        if oob:
            return [[f"s_cmp_ge_u32 s{S_XC}, 8", f"s_cselect_b32 s{S_T1}, {OOB}, 0"],
                    [f"s_add_u32 s{S_T2}, s{S_XB}, s{S_KX}", f"s_or_b32 s{S_T2}, s{S_T2}, s{S_T1}"]]
        return [[f"s_add_u32 s{S_T2}, s{S_XB}, s{S_KX}"]]
    def x_dma(self):
        return [[f"s_add_u32 m0, s{S_XSL}, {j*1024}", f"buffer_load_dwordx4 v{VOX+j}, s[{S_X}:{S_X+3}], s{S_T2} offen lds"] for j in range(4)]
    def x_adv(self):
        return [[f"s_add_u32 s{S_KX}, s{S_KX}, 128", f"s_and_b32 s{S_KX}, s{S_KX}, 1023"], [f"s_add_u32 s{S_XC}, s{S_XC}, 1",
                f"s_add_u32 s{S_XSL}, s{S_XSL}, {X_SLOT}"], [f"s_cmp_ge_u32 s{S_XSL}, {X_BASE + X_NS*X_SLOT}",
                f"s_cselect_b32 s{S_T3}, {X_NS*X_SLOT}, 0", f"s_sub_u32 s{S_XSL}, s{S_XSL}, s{S_T3}"]]
    def flat(self, ll):
        for g in ll:
            for s in g: self.A(s)
    def emit_dma(self, lst):
        for m0s, ld in lst:
            self.A(m0s); self.A("s_nop 0"); self.A(ld)
    def do_x(self): self.flat(self.x_setup(False)); self.emit_dma(self.x_dma()); self.flat(self.x_adv())
    def do_w(self, adv=True):
        self.flat(self.w_setup(False)); self.emit_dma(self.w_dma())
        if adv: self.flat(self.w_adv())
    def reads(self, par, kk, second):
        o = [f"ds_read_b128 v[{XF+8*par}:{XF+8*par+3}], v{XA+kk}", f"ds_read_b128 v[{XF+8*par+4}:{XF+8*par+7}], v{XA+kk} offset:4096"]
        for blk, kd in enumerate(self.kinds):
            b = WF + 20*par + 4*blk
            if kd == "guh": o1, o2 = (1024 if second else 0), 256
            else: o1, o2 = (2048 if second else 0), 512
            o.append(f"ds_read_b64_tr_b16 v[{b}:{b+1}], v{TRA+blk} offset:{o1}")
            o.append(f"ds_read_b64_tr_b16 v[{b+2}:{b+3}], v{TRA+blk} offset:{o1+o2}")
        return o
    def mfmas(self, par):
        o = []
        for blk, kd in enumerate(self.kinds):
            wf = f"v[{WF+20*par+4*blk}:{WF+20*par+4*blk+3}]"
            for tb in range(2):
                xf = f"v[{XF+8*par+4*tb}:{XF+8*par+4*tb+3}]"; a = acc(blk, tb)
                if kd == "kv": o.append(f"v_mfma_f32_32x32x16_bf16 v[{a}:{a+15}], {xf}, {wf}, v[{a}:{a+15}]")
                else: o.append(f"v_mfma_f32_32x32x16_bf16 v[{a}:{a+15}], {wf}, {xf}, v[{a}:{a+15}]")
        return o

    def prologue(self):
        A, typ, kinds = self.A, self.typ, self.kinds
        SZQ, SZG = 512*3072, 512*3584
        self.do_x()
        if typ == "A":
            A(f"s_lshl_b32 s{S_T0}, s{S_IDX}, 8")
            srd_off(A, S_W+0, P_G, P_G+1, f"s{S_T0}", SZG); srd_off(A, S_W+4, P_U, P_U+1, f"s{S_T0}", SZG)
            A(f"s_add_u32 s{S_T0}, s{S_T0}, 128")
            srd_off(A, S_W+8, P_G, P_G+1, f"s{S_T0}", SZG); srd_off(A, S_W+12, P_U, P_U+1, f"s{S_T0}", SZG)
            A(f"s_lshl_b32 s{S_T0}, s{S_IDX}, 7")
            srd_off(A, S_W+16, P_WQ, P_WQ+1, f"s{S_T0}", SZQ)
        else:
            A(f"s_lshl_b32 s{S_T0}, s{S_IDX}, 7"); A(f"s_add_u32 s{S_T0}, s{S_T0}, 1024")
            srd_off(A, S_W+0, P_WQ, P_WQ+1, f"s{S_T0}", SZQ)
            A(f"s_add_u32 s{S_T0}, s{S_T0}, 1024")
            srd_off(A, S_W+4, P_WQ, P_WQ+1, f"s{S_T0}", SZQ)
            A(f"s_lshl_b32 s{S_T0}, s{S_IDX}, 7"); A(f"s_add_u32 s{S_T0}, s{S_T0}, {16*128}")
            srd_off(A, S_W+8, P_G, P_G+1, f"s{S_T0}", SZG); srd_off(A, S_W+12, P_U, P_U+1, f"s{S_T0}", SZG)
            A(f"s_lshr_b32 s{S_T0}, s{S_IDX}, 1"); A(f"s_add_u32 s{S_T0}, s{S_T0}, 24"); A(f"s_lshl_b32 s{S_T0}, s{S_T0}, 7")
            A(f"s_and_b32 s{S_T1}, s{S_IDX}, 1"); A(f"s_lshl_b32 s{S_T1}, s{S_T1}, 6"); A(f"s_add_u32 s{S_T0}, s{S_T0}, s{S_T1}")
            A(f"s_cmp_ge_u32 s{S_WV}, 2")
            A(f"s_cselect_b32 s{S_T2}, s{P_U}, s{P_G}"); A(f"s_cselect_b32 s{S_T3}, s{P_U+1}, s{P_G+1}")
            srd_off(A, S_W+16, S_T2, S_T3, f"s{S_T0}", SZG)
        t0, t1, t2, t3, t4 = VT, VT+1, VT+2, VT+3, VT+4
        A(f"v_lshrrev_b32 v{t0}, 3, v{VLANE}"); A(f"v_and_b32 v{t1}, 7, v{VLANE}")
        A(f"v_lshrrev_b32 v{t2}, 4, v{VLANE}"); A(f"v_and_b32 v{t2}, 1, v{t2}")
        done = {}
        for rho in range(5):
            key = (self.swz[rho], self.strides[rho])
            if key in done:
                A(f"v_mov_b32 v{VOW+rho}, v{VOW+done[key]}"); continue
            done[key] = rho
            if self.swz[rho] == "h":
                A(f"v_lshrrev_b32 v{t3}, 2, v{VLANE}"); A(f"v_and_b32 v{t4}, 3, v{VLANE}")
                A(f"s_lshr_b32 s{S_T0}, s{S_WV}, 1"); A(f"s_lshl_b32 s{S_T0}, s{S_T0}, 1")
                A(f"v_xor_b32 v{t4}, s{S_T0}, v{t4}")
                A(f"v_mul_u32_u24 v{t3}, 3584, v{t3}"); A(f"v_lshlrev_b32 v{t4}, 4, v{t4}"); A(f"v_add_u32 v{VOW+rho}, v{t3}, v{t4}")
            else:
                if self.swz[rho] == "q": A(f"v_lshlrev_b32 v{t3}, 2, v{t2}")
                else:
                    A(f"v_lshlrev_b32 v{t3}, 1, v{t2}")
                    if self.swz[rho] == "u": A(f"v_or_b32 v{t3}, 4, v{t3}")
                A(f"v_xor_b32 v{t3}, v{t1}, v{t3}"); A(f"v_lshlrev_b32 v{t3}, 4, v{t3}")
                A(f"v_mul_u32_u24 v{t4}, {self.strides[rho]}, v{t0}"); A(f"v_add_u32 v{VOW+rho}, v{t3}, v{t4}")
        self.do_w(); self.do_w(); self.do_x(); self.do_w()
        A.stamp(1)
        VM = WF; VCS = WF+2; VCS2 = WF+7
        A(f"v_and_b32 v{t0}, 31, v{VLANE}")
        A(f"s_lshl_b32 s{S_T0}, s{S_T}, 7"); A(f"s_lshl_b32 s{S_T1}, s{S_WM}, 6"); A(f"s_add_u32 s{S_T0}, s{S_T0}, s{S_T1}")
        A(f"v_add_u32 v{t1}, s{S_T0}, v{t0}"); A(f"v_lshlrev_b32 v{t1}, 2, v{t1}")
        wsp = f"s[{S_WSP}:{S_WSP+1}]"
        A(f"global_load_dword v{VM}, v{t1}, {wsp}"); A(f"global_load_dword v{VM+1}, v{t1}, {wsp} offset:128")
        A(f"v_add_u32 v{t2}, {WS_R}, v{t1}")
        A(f"global_load_dword v{VR}, v{t2}, {wsp}"); A(f"global_load_dword v{VR+1}, v{t2}, {wsp} offset:128")
        A(f"v_and_b32 v{t1}, 15, v{t0}"); A(f"v_lshrrev_b32 v{t2}, 4, v{t0}")
        for blk, kd in enumerate(kinds):
            if kd in ("gu", "guh"):
                if typ == "A":
                    A(f"s_lshl_b32 s{S_T0}, s{S_IDX}, 1"); A(f"s_add_u32 s{S_T0}, s{S_T0}, s{S_WN}"); A(f"s_lshl_b32 s{S_T0}, s{S_T0}, 6"); A(f"s_add_u32 s{S_T0}, s{S_T0}, {16*blk + 1536}")
                elif kd == "gu":
                    A(f"s_add_u32 s{S_T0}, s{S_IDX}, 16"); A(f"s_lshl_b32 s{S_T0}, s{S_T0}, 6"); A(f"s_lshl_b32 s{S_T1}, s{S_WN}, 5"); A(f"s_add_u32 s{S_T0}, s{S_T0}, s{S_T1}"); A(f"s_add_u32 s{S_T0}, s{S_T0}, {16*(blk-2) + 1536}")
                else:
                    A(f"s_lshr_b32 s{S_T0}, s{S_IDX}, 1"); A(f"s_add_u32 s{S_T0}, s{S_T0}, 24"); A(f"s_lshl_b32 s{S_T0}, s{S_T0}, 6")
                    A(f"s_and_b32 s{S_T1}, s{S_IDX}, 1"); A(f"s_lshl_b32 s{S_T1}, s{S_T1}, 1"); A(f"s_add_u32 s{S_T1}, s{S_T1}, s{S_WN}"); A(f"s_lshl_b32 s{S_T1}, s{S_T1}, 4")
                    A(f"s_add_u32 s{S_T0}, s{S_T0}, s{S_T1}"); A(f"s_add_u32 s{S_T0}, s{S_T0}, 1536")
                A(f"v_mul_u32_u24 v{t3}, 1792, v{t2}"); A(f"v_add_u32 v{t3}, v{t3}, v{t1}"); A(f"v_add_u32 v{t3}, s{S_T0}, v{t3}")
            elif kd == "q":
                A(f"s_lshl_b32 s{S_T0}, s{S_IDX}, 6"); A(f"s_lshl_b32 s{S_T1}, s{S_WN}, 5"); A(f"s_add_u32 s{S_T0}, s{S_T0}, s{S_T1}")
                A(f"v_add_u32 v{t3}, s{S_T0}, v{t0}")
            else:
                A(f"s_lshl_b32 s{S_T0}, s{S_IDX}, 6"); A(f"s_lshl_b32 s{S_T1}, s{S_WN}, 5"); A(f"s_add_u32 s{S_T0}, s{S_T0}, s{S_T1}"); A(f"s_add_u32 s{S_T0}, s{S_T0}, {512 + 16*blk}")
                A(f"v_lshlrev_b32 v{t3}, 9, v{t2}"); A(f"v_add_u32 v{t3}, v{t3}, v{t1}"); A(f"v_add_u32 v{t3}, s{S_T0}, v{t3}")
            A(f"v_lshlrev_b32 v{t3}, 2, v{t3}"); A(f"v_add_u32 v{t3}, {WS_CS}, v{t3}")
            A(f"global_load_dword v{VCS+blk}, v{t3}, {wsp}")
            A(f"v_add_u32 v{t3}, 20480, v{t3}")
            A(f"global_load_dword v{VCS2+blk}, v{t3}, {wsp}")
        nsmall = 14
        if typ == "B":
            A(f"s_lshl_b32 s{S_T0}, s{S_T}, 7"); A(f"v_add_u32 v{t3}, s{S_T0}, v{VTID}"); A(f"v_lshlrev_b32 v{t3}, 2, v{t3}"); A(f"v_add_u32 v{t3}, {WS_R}, v{t3}")
            A(f"global_load_dword v{WF+12}, v{t3}, {wsp}"); nsmall += 1
        srd_off(A, S_H, S_WSP, S_WSP+1, WS_H, WS_H + H_BYTES)
        G, p, r, c = t0, t1, t2, t3
        A(f"v_lshrrev_b32 v{G}, 4, v{VLANE}"); A(f"v_and_b32 v{G}, 1, v{G}")
        A(f"v_lshrrev_b32 v{p}, 5, v{VLANE}")
        A(f"v_and_b32 v{r}, 15, v{VLANE}"); A(f"v_lshrrev_b32 v{r}, 2, v{r}")
        A(f"v_and_b32 v{c}, 3, v{VLANE}")
        k_, rb, u1, u2 = t4, t4+1, t4+2, t4+3
        A(f"v_lshlrev_b32 v{k_}, 3, v{p}"); A(f"v_add_u32 v{k_}, v{k_}, v{r}")
        A(f"v_lshrrev_b32 v{rb}, 1, v{r}"); A(f"v_and_b32 v{rb}, 1, v{rb}")
        for blk, kd in enumerate(kinds):
            d = TRA + blk
            if typ == "A" and kd == "gu" and blk > 0:
                A(f"v_xor_b32 v{d}, {blk*32}, v{TRA}"); continue
            if typ == "B" and blk in (1, 3):
                A(f"v_xor_b32 v{d}, 32, v{d-1}") ; continue
            if kd == "guh":
                A(f"v_lshrrev_b32 v{u1}, 1, v{c}"); A(f"s_lshl_b32 s{S_T0}, s{S_WN}, 1"); A(f"v_add_u32 v{u1}, s{S_T0}, v{u1}")
                A(f"v_lshlrev_b32 v{u2}, 1, v{G}"); A(f"v_xor_b32 v{u1}, v{u1}, v{u2}"); A(f"v_lshlrev_b32 v{u1}, 4, v{u1}")
                A(f"v_lshlrev_b32 v{u2}, 6, v{k_}"); A(f"v_add_u32 v{u1}, v{u1}, v{u2}")
                A(f"v_lshlrev_b32 v{u2}, 11, v{G}"); A(f"v_add_u32 v{u1}, v{u1}, v{u2}")
                A(f"v_add_u32 v{u1}, {W_BASE + 4*4096}, v{u1}")
            else:
                if kd == "q":
                    A(f"s_lshl_b32 s{S_T0}, s{S_WN}, 1"); A(f"v_add_u32 v{u1}, s{S_T0}, v{G}")
                elif typ == "A": A(f"v_mov_b32 v{u1}, 0")
                else:
                    A(f"s_lshl_b32 s{S_T0}, s{S_WN}, 1"); A(f"v_mov_b32 v{u1}, s{S_T0}")
                A(f"v_lshlrev_b32 v{u1}, 1, v{u1}"); A(f"v_lshrrev_b32 v{u2}, 1, v{c}"); A(f"v_add_u32 v{u1}, v{u1}, v{u2}")
                if kd == "q": A(f"v_lshlrev_b32 v{u2}, 2, v{rb}")
                else:
                    A(f"v_lshlrev_b32 v{u2}, 1, v{rb}"); A(f"v_lshlrev_b32 v{d}, 2, v{G}"); A(f"v_or_b32 v{u2}, v{u2}, v{d}")
                A(f"v_xor_b32 v{u1}, v{u1}, v{u2}"); A(f"v_lshlrev_b32 v{u1}, 4, v{u1}")
                A(f"v_lshlrev_b32 v{u2}, 7, v{k_}"); A(f"v_add_u32 v{u1}, v{u1}, v{u2}")
                if kd == "q": A(f"v_add_u32 v{u1}, {W_BASE + 4*4096}, v{u1}")
                else:
                    if typ == "A":
                        A(f"s_lshl_b32 s{S_T0}, s{S_WN}, 13"); A(f"s_add_u32 s{S_T0}, s{S_T0}, {W_BASE}")
                    else: A(f"s_mov_b32 s{S_T0}, {W_BASE + (0 if kd == 'kv' else 2*4096)}")
                    A(f"v_lshlrev_b32 v{u2}, 12, v{G}"); A(f"v_add_u32 v{u1}, v{u1}, v{u2}"); A(f"v_add_u32 v{u1}, s{S_T0}, v{u1}")
            A(f"v_and_b32 v{u2}, 1, v{c}"); A(f"v_lshlrev_b32 v{u2}, 3, v{u2}"); A(f"v_add_u32 v{d}, v{u1}, v{u2}")
        A(f"v_and_b32 v{u1}, 31, v{VLANE}"); A(f"s_lshl_b32 s{S_T0}, s{S_WM}, 6"); A(f"v_add_u32 v{u1}, s{S_T0}, v{u1}")
        A(f"v_lshrrev_b32 v{u2}, 1, v{u1}"); A(f"v_and_b32 v{u2}, 7, v{u2}"); A(f"v_xor_b32 v{u2}, v{u2}, v{p}"); A(f"v_lshlrev_b32 v{u2}, 4, v{u2}")
        A(f"v_lshlrev_b32 v{u1}, 7, v{u1}"); A(f"v_add_u32 v{u1}, v{u1}, v{u2}")
        for kk in range(4): A(f"v_xor_b32 v{XA+kk}, {kk*32}, v{u1}")
        for i in range(160): A(f"v_mov_b32 v{ACC+i}, 0")
        A(f"s_mov_b32 s{S_IT}, 0"); A(f"s_mov_b32 s{S_XSI}, 0")
        A(f"s_mov_b32 s{S_CX}, {X_SLOT}"); A(f"s_mov_b32 s{S_CW}, {W_SLOT}")
        A.stamp(2)
        A("s_waitcnt vmcnt(0)")
        A(f"v_cmp_gt_u32 vcc, 32, v{VLANE}"); A("s_nop 1")
        tt = VT
        for tb in range(2):
            b = XF + 8
            A(f"v_cndmask_b32 v{tt}, 0, v{VM+tb}, vcc")
            A(f"v_cvt_pk_bf16_f32 v{b}, v{tt}, v{tt}")
            A(f"v_and_b32 v{tt+1}, 0xffff0000, v{b}"); A(f"v_sub_f32 v{tt+1}, v{tt}, v{tt+1}")
            A(f"v_cvt_pk_bf16_f32 v{b+1}, v{tt+1}, 0")
            A(f"v_accvgpr_write_b32 a{AMF+4*tb}, v{b}"); A(f"v_accvgpr_write_b32 a{AMF+4*tb+1}, v{b+1}")
            A(f"v_accvgpr_write_b32 a{AMF+4*tb+2}, 0"); A(f"v_accvgpr_write_b32 a{AMF+4*tb+3}, 0")
        for blk in range(5):
            b = XF + 8
            A(f"v_add_f32 v{tt}, v{VCS+blk}, v{VCS2+blk}")
            A(f"v_cndmask_b32 v{tt}, 0, v{tt}, vcc"); A(f"v_sub_f32 v{tt}, 0, v{tt}")
            A(f"v_cvt_pk_bf16_f32 v{b+1}, v{tt}, 0")
            A(f"v_lshlrev_b32 v{tt+1}, 16, v{b+1}"); A(f"v_sub_f32 v{tt+1}, v{tt}, v{tt+1}")
            A(f"v_cvt_pk_bf16_f32 v{b}, v{tt}, v{tt+1}")
            A(f"v_accvgpr_write_b32 a{ACF+4*blk}, v{b}"); A(f"v_accvgpr_write_b32 a{ACF+4*blk+1}, v{b+1}")
            A(f"v_accvgpr_write_b32 a{ACF+4*blk+2}, 0"); A(f"v_accvgpr_write_b32 a{ACF+4*blk+3}, 0")
        if typ == "B":
            A(f"v_lshlrev_b32 v{u1}, 2, v{VTID}"); A(f"v_add_u32 v{u1}, {LDS_R}, v{u1}")
            A(f"v_cmp_gt_u32 vcc, 128, v{VTID}"); A(f"s_and_saveexec_b64 s[{S_E0}:{S_E0+1}], vcc")
            A(f"ds_write_b32 v{u1}, v{WF+12}")
            A(f"s_mov_b64 exec, s[{S_E0}:{S_E0+1}]")
            A("s_waitcnt lgkmcnt(0)")
        A("s_barrier")
        A.stamp(3)
        self.flat(self.w_setup(False)); self.emit_dma(self.w_dma())
        for s in self.reads(0, 0, False): A(s)

    def loop(self):
        A, typ = self.A, self.typ
        L = f"K12{typ}"
        A.label(f"{L}_loop")
        pre = [[f"s_cmp_eq_u32 s{S_XSI}, 2", f"s_cselect_b32 s{S_DX}, {-2*X_SLOT & 0xffffffff}, s{S_CX}"],
               [f"s_add_u32 s{S_XSI}, s{S_XSI}, 1", f"s_cmp_eq_u32 s{S_XSI}, 3", f"s_cselect_b32 s{S_XSI}, 0, s{S_XSI}"],
               [f"s_bitcmp1_b32 s{S_IT}, 0", f"s_cselect_b32 s{S_DW}, {(-3*W_SLOT) & 0xffffffff}, s{S_CW}"]]
        carry = []
        for q in range(4):
            par = q & 1
            M = self.mfmas(par)
            kk_next = (q + 1) & 3; second_next = ((q + 1) & 1) == 1
            rd = self.reads(1 - par, kk_next, second_next)
            gaps = [[] for _ in range(10)]
            head = ["s_waitcnt lgkmcnt(0)"]
            fill = []
            if q & 1:
                N = 18 if q == 1 else 14
                gaps[0] += [f"s_waitcnt vmcnt({N})", "s_barrier"]
                for i, s in enumerate(rd): gaps[1 + i//2].append(s)
                if q == 3: gaps[0].insert(0, f"v_add_u32 v{XA+kk_next}, s{S_DX}, v{XA+kk_next}")
                else: gaps[2].append(f"v_add_u32 v{XA+kk_next}, s{S_DX}, v{XA+kk_next}")
                fill += carry; carry = []
                fill += [("s", s) for s in self.w_setup()]
                fill += [("d", d) for d in self.w_dma()]
                if q == 1: fill += [("s", s) for s in self.w_adv()]
            else:
                for i, s in enumerate(rd): gaps[i//2].append(s)
                adv = []
                for blk in range(5):
                    if q == 0: adv.append(f"v_add_u32 v{TRA+blk}, {W_SLOT}, v{TRA+blk}")
                    else:      adv.append(f"v_add_u32 v{TRA+blk}, s{S_DW}, v{TRA+blk}")
                for i, s in enumerate(adv): gaps[6 + i//2].append(s)
                if q == 0:
                    fill += [("s", s) for s in pre]
                    fill += [("s", s) for s in self.w_adv()]
                    fill += [("s", s) for s in self.x_setup()]
                    fill += [("d", d) for d in self.x_dma()]
                    fill += [("s", s) for s in self.x_adv()]
                    xadv_late = f"v_add_u32 v{XA+kk_next}, s{S_DX}, v{XA+kk_next}"
                    gaps[9].append(xadv_late)
                else:
                    gaps[1].append(f"v_add_u32 v{XA+kk_next}, s{S_DX}, v{XA+kk_next}")
                fill = carry + fill; carry = []
            gi = 1 if (q & 1) else 0
            items = list(fill); pend = []
            while items:
                it = items.pop(0)
                need = len(it[1]) if it[0] == "s" else 2
                while gi < 10 and len(gaps[gi]) + need > 5: gi += 1
                if gi >= 10:
                    pend.append(it); pend += items; break
                if it[0] == "s": gaps[gi] += it[1]
                else:
                    gaps[gi].append(it[1][0]); gaps[gi].append("__NOP__"); gaps[gi].append(it[1][1]); gi += 1
            carry = pend
            for g in gaps:
                while "__NOP__" in g:
                    i = g.index("__NOP__")
                    cand = [j for j in range(i-1) if g[j].startswith("ds_read") or g[j].startswith("v_add")]
                    if cand:
                        x = g.pop(cand[-1]); i -= 1; g[i] = x
                    else: g[i] = "s_nop 0"
            for s in head: A(s)
            for i in range(10):
                A(M[i])
                for s in gaps[i]: A(s)
        assert not carry, carry
        A(f"s_add_u32 s{S_IT}, s{S_IT}, 1"); A(f"s_cmp_lt_u32 s{S_IT}, 8"); A(f"s_cbranch_scc1 {L}_loop")

    def flag_addr(self, slot_imm, vtmp):
        A = self.A
        A(f"s_lshl_b32 s{S_T0}, s{S_T}, 1"); A(f"s_add_u32 s{S_T0}, s{S_T0}, s{S_WM}"); A(f"s_lshl_b32 s{S_T0}, s{S_T0}, 2")
        A(f"s_lshr_b32 s{S_T1}, s{S_IDX}, 1"); A(f"s_add_u32 s{S_T0}, s{S_T0}, s{S_T1}"); A(f"s_lshl_b32 s{S_T0}, s{S_T0}, 4")
        A(f"s_and_b32 s{S_T1}, s{S_IDX}, 1"); A(f"s_lshl_b32 s{S_T1}, s{S_T1}, 1"); A(f"s_add_u32 s{S_T0}, s{S_T0}, s{S_T1}"); A(f"s_add_u32 s{S_T0}, s{S_T0}, s{S_WN}")
        A(f"s_add_u32 s{S_T0}, s{S_T0}, {slot_imm}"); A(f"s_lshl_b32 s{S_T0}, s{S_T0}, 2"); A(f"s_add_u32 s{S_T0}, s{S_T0}, {WS_FLAG}")
        A(f"v_mov_b32 v{vtmp}, s{S_T0}")

    def set_flag(self, vaddr, vone):
        A = self.A
        A(f"s_mov_b64 s[{S_E0}:{S_E0+1}], exec"); A("s_mov_b64 exec, 1")
        A(f"global_store_dword v{vaddr}, v{vone}, s[{S_WSP}:{S_WSP+1}] sc1")
        A(f"s_mov_b64 exec, s[{S_E0}:{S_E0+1}]")

    def epilogue(self, g2):
        A, typ, kinds = self.A, self.typ, self.kinds
        tt = VT
        A("s_waitcnt vmcnt(0) lgkmcnt(0)"); A("s_barrier")
        order = [b for b, kd in enumerate(kinds) if kd in ("gu","guh")] + [b for b, kd in enumerate(kinds) if kd not in ("gu","guh")]
        corr = []
        for blk in order:
            for tb in range(2):
                a = acc(blk, tb); cf = ar(ACF+4*blk, 4); mf = ar(AMF+4*tb, 4)
                if kinds[blk] == "kv": corr.append(f"v_mfma_f32_32x32x16_bf16 v[{a}:{a+15}], {mf}, {cf}, v[{a}:{a+15}]")
                else: corr.append(f"v_mfma_f32_32x32x16_bf16 v[{a}:{a+15}], {cf}, {mf}, v[{a}:{a+15}]")
        g2.setup()
        nd = 0
        for i, m in enumerate(corr):
            A(m)
            g2.w2_dma(nd); nd += 1
        A(f"s_lshl_b32 s{S_T0}, s{S_T}, 1"); A(f"s_add_u32 s{S_T0}, s{S_T0}, s{S_WM}"); A(f"s_lshl_b32 s{S_T0}, s{S_T0}, 2")
        A(f"s_lshr_b32 s{S_T1}, s{S_IDX}, 1"); A(f"s_add_u32 s{S_T0}, s{S_T0}, s{S_T1}"); A(f"s_mul_i32 s{S_HB}, s{S_T0}, {36*2048}")
        A(f"s_and_b32 s{S_TYP}, s{S_IDX}, 1")
        I1 = S_TYP
        R2 = XF + 8
        A(f"v_mul_f32 v{R2}, v{VR}, v{VR}"); A(f"v_mul_f32 v{R2+1}, v{VR+1}, v{VR+1}")
        PK = WF + 20
        nst = 0
        nvm = 2*nd
        for blk in order:
            kd = kinds[blk]
            if kd not in ("gu", "guh"): continue
            if typ == "A":
                A(f"s_lshl_b32 s{S_T2}, s{I1}, 1"); A(f"s_add_u32 s{S_T2}, s{S_T2}, s{S_WN}"); A(f"s_lshl_b32 s{S_T2}, s{S_T2}, 2"); A(f"s_add_u32 s{S_T2}, s{S_T2}, {blk}")
            elif kd == "gu":
                A(f"s_lshl_b32 s{S_T2}, s{I1}, 2"); A(f"s_lshl_b32 s{S_T3}, s{S_WN}, 1"); A(f"s_add_u32 s{S_T2}, s{S_T2}, s{S_T3}"); A(f"s_add_u32 s{S_T2}, s{S_T2}, {16 + blk - 2}")
            else:
                A(f"s_lshl_b32 s{S_T2}, s{I1}, 1"); A(f"s_add_u32 s{S_T2}, s{S_T2}, s{S_WN}"); A(f"s_add_u32 s{S_T2}, s{S_T2}, 24")
            A(f"s_lshl_b32 s{S_T2}, s{S_T2}, 11"); A(f"s_add_u32 s{S_T2}, s{S_T2}, s{S_HB}")
            for tb in range(2):
                a = acc(blk, tb); pk = PK + 4*(nst % 4); nst += 1
                for i in range(8): A(f"v_mul_f32 v{a+i}, v{a+i}, v{a+8+i}")
                for i in range(8): A(f"v_mul_f32 v{a+i}, v{R2+tb}, v{a+i}")
                for i in range(4): A(f"v_cvt_pk_bf16_f32 v{pk+i}, v{a+2*i}, v{a+2*i+1}")
                A(f"buffer_store_dwordx4 v[{pk}:{pk+3}], v{VL16}, s[{S_H}:{S_H+3}], s{S_T2} offen offset:{tb*1024} sc1")
        A.stamp(5)
        after_h = 0
        while nd < 16: g2.w2_dma(nd); nd += 1; after_h += 2
        FA, ONE = XF+13, XF+14
        A(f"v_mov_b32 v{ONE}, 1")
        if typ == "A":
            A(f"s_lshl_b32 s{S_T2}, s{I1}, 2"); A(f"s_lshl_b32 s{S_T3}, s{S_WN}, 1"); A(f"s_add_u32 s{S_T2}, s{S_T2}, s{S_T3}"); A(f"s_add_u32 s{S_T2}, s{S_T2}, 28")
            A(f"s_lshl_b32 s{S_T2}, s{S_T2}, 11"); A(f"s_add_u32 s{S_T2}, s{S_T2}, s{S_HB}")
            A(f"s_add_u32 s{S_XSI}, s{S_T2}, 2048")
            A(f"s_mov_b32 s{S_IT}, s{S_T2}")
            A(f"s_mov_b32 s{S_T3}, 0x358637bd")
            RL = XF + 10
            npq = 0
            for tb in range(2):
                a = acc(4, tb)
                A(f"v_mul_f32 v{RL}, 0x3fb8aa3b, v{VR+tb}")
                for i in range(16):
                    A(f"v_mul_f32 v{tt}, v{RL}, v{a+i}")
                    A(f"v_fma_f32 v{a+i}, v{a+i}, v{VR+tb}, s{S_T3}")
                    A(f"v_exp_f32_e64 v{tt}, v{tt} clamp")
                    A(f"v_max_f32 v{a+i}, s{S_T3}, v{a+i}")
                    A(f"v_add_f32 v{a+i}, v{a+i}, v{tt}")
                if tb == 0:
                    A(f"s_waitcnt vmcnt({after_h})")
                    self.flag_addr(0, FA); self.set_flag(FA, ONE); after_h += 1
                    A(f"s_mov_b32 s{S_T3}, 0x358637bd")
                for hs in range(2):
                    pk = PK + 4*(nst % 4); nst += 1
                    for i in range(4): A(f"v_cvt_pk_bf16_f32 v{pk+i}, v{a+8*hs+2*i}, v{a+8*hs+2*i+1}")
                    A(f"buffer_store_dwordx4 v[{pk}:{pk+3}], v{VL16}, s[{S_H}:{S_H+3}], s{S_XSI if hs else S_IT} offen offset:{tb*1024} sc1")
            A("s_waitcnt vmcnt(4)")
            for i in range(16): g2.w2_read(i)
            A("s_waitcnt vmcnt(0)")
            self.flag_addr(8, FA); self.set_flag(FA, ONE)
        else:
            CL, C2, KM = XF+10, XF+11, XF+12
            A(f"v_and_b32 v{tt}, 31, v{VLANE}"); A(f"v_cmp_gt_u32 vcc, 16, v{tt}")
            A(f"v_mov_b32 v{tt+1}, 0x358637bd"); A("s_nop 0")
            A(f"v_cndmask_b32 v{CL}, 0, v{tt+1}, vcc")
            A(f"v_mov_b32 v{tt+2}, 0xff800000")
            A(f"v_cndmask_b32 v{C2}, v{tt+2}, v{tt+1}, vcc")
            A(f"v_cndmask_b32 v{KM}, 0, 1.0, vcc")
            A(f"s_mov_b64 s[62:63], vcc")
            RR = WF; TP = PK
            A(f"v_lshrrev_b32 v{tt}, 5, v{VLANE}"); A(f"v_lshlrev_b32 v{tt}, 4, v{tt}")
            A(f"s_lshl_b32 s{S_T0}, s{S_WM}, 8"); A(f"s_add_u32 s{S_T0}, s{S_T0}, {LDS_R}"); A(f"v_add_u32 v{tt+3}, s{S_T0}, v{tt}")
            D2 = [acc(2,0), acc(2,1)]
            for hb in range(2):
                for i in range(16): A(f"v_mov_b32 v{D2[hb]+i}, 0")
            for tb in range(2):
                for q4 in range(4): A(f"ds_read_b128 v[{RR+4*q4}:{RR+4*q4+3}], v{tt+3} offset:{tb*128 + q4*32}")
                A("s_waitcnt lgkmcnt(0)")
                for hb in range(2):
                    a = acc(hb, tb)
                    for i in range(16):
                        A(f"v_mul_f32 v{tt}, 0x3fb8aa3b, v{RR+i}")
                        A(f"v_mul_f32 v{tt}, v{tt}, v{a+i}")
                        A(f"v_fma_f32 v{a+i}, v{a+i}, v{RR+i}, v{CL}")
                        A(f"v_exp_f32_e64 v{tt}, v{tt} clamp")
                        A(f"v_max_f32 v{tt+1}, v{a+i}, v{C2}")
                        A(f"v_fma_f32 v{a+i}, v{tt}, v{KM}, v{tt+1}")
                    if tb == 0 and hb == 0:
                        A(f"s_waitcnt vmcnt({after_h})")
                        self.flag_addr(4, FA); self.set_flag(FA, ONE); after_h += 1
                    for i in range(8): A(f"v_cvt_pk_bf16_f32 v{TP+i}, v{a+2*i}, v{a+2*i+1}")
                    A(f"v_mov_b32 v{tt}, 0x3f803f80")
                    for i in range(8): A(f"v_cndmask_b32 v{TP+8+i}, v{TP+i}, v{tt}, s[62:63]")
                    A("s_nop 1")
                    for f in range(2):
                        A(f"v_mfma_f32_32x32x16_bf16 v[{D2[hb]}:{D2[hb]+15}], v[{TP+4*f}:{TP+4*f+3}], v[{TP+8+4*f}:{TP+8+4*f+3}], v[{D2[hb]}:{D2[hb]+15}]")
            A("s_nop 7"); A("s_nop 7")
            A(f"s_lshl_b32 s{S_T0}, s{S_WM}, 13"); A(f"s_lshl_b32 s{S_T1}, s{S_WN}, 12"); A(f"s_add_u32 s{S_T0}, s{S_T0}, s{S_T1}"); A(f"s_add_u32 s{S_T0}, s{S_T0}, {LDS_KV}")
            A(f"v_lshlrev_b32 v{tt}, 2, v{VLANE}"); A(f"v_add_u32 v{tt}, s{S_T0}, v{tt}")
            for hb in range(2):
                for r_ in range(8): A(f"ds_write_b32 v{tt}, v{D2[hb]+r_} offset:{hb*2048 + r_*256}")
            A("s_waitcnt lgkmcnt(0)"); A("s_barrier")
            A(f"s_lshl_b32 s{S_T0}, s{S_WV}, 11"); A(f"s_add_u32 s{S_T0}, s{S_T0}, {LDS_KV}")
            A(f"s_lshl_b32 s{S_T1}, s{S_IDX}, 2"); A(f"s_add_u32 s{S_T1}, s{S_T1}, s{S_WV}")
            A(f"s_lshl_b32 s{S_T2}, s{S_T1}, 6"); A(f"s_add_u32 s{S_T2}, s{S_T2}, {WS_KVCNT}")
            A(f"s_mul_i32 s{S_T1}, s{S_T1}, {KV_HEAD}"); A(f"s_add_u32 s{S_T1}, s{S_T1}, {WS_KV}")
            A(f"v_and_b32 v{tt}, 7, v{VLANE}"); A(f"v_lshlrev_b32 v{tt}, 8, v{tt}")
            A(f"v_lshrrev_b32 v{tt+1}, 3, v{VLANE}")
            B0 = ACC
            for n in range(4):
                A(f"v_add_u32 v{tt+2}, {32*(n>>1) + 16 + 8*(n&1)}, v{tt+1}"); A(f"v_lshlrev_b32 v{tt+2}, 2, v{tt+2}"); A(f"v_add_u32 v{tt+2}, v{tt+2}, v{tt}"); A(f"v_add_u32 v{tt+2}, s{S_T0}, v{tt+2}")
                A(f"ds_read_b32 v{B0+2*n}, v{tt+2}"); A(f"ds_read_b32 v{B0+2*n+1}, v{tt+2} offset:8192")
            A(f"v_lshlrev_b32 v{tt+2}, 7, v{tt+1}"); A(f"v_add_u32 v{tt+2}, v{tt+2}, v{tt}"); A(f"v_add_u32 v{tt+2}, s{S_T0}, v{tt+2}")
            A(f"v_cmp_gt_u32 vcc, 16, v{VLANE}"); A(f"s_and_saveexec_b64 s[{S_E0}:{S_E0+1}], vcc")
            A(f"ds_read_b32 v{B0+8}, v{tt+2}"); A(f"ds_read_b32 v{B0+9}, v{tt+2} offset:8192")
            A(f"s_mov_b64 exec, s[{S_E0}:{S_E0+1}]")
            A("s_waitcnt lgkmcnt(0)")
            A(f"v_lshlrev_b32 v{tt+2}, 2, v{VLANE}"); A(f"v_add_u32 v{tt+2}, s{S_T1}, v{tt+2}")
            for n in range(4):
                A(f"v_add_f32 v{B0+2*n}, v{B0+2*n}, v{B0+2*n+1}")
                A(f"global_atomic_add_f32 v{tt+2}, v{B0+2*n}, s[{S_WSP}:{S_WSP+1}] offset:{n*256}")
            A(f"v_add_f32 v{B0+8}, v{B0+8}, v{B0+9}")
            A(f"s_and_saveexec_b64 s[{S_E0}:{S_E0+1}], vcc")
            A(f"global_atomic_add_f32 v{tt+2}, v{B0+8}, s[{S_WSP}:{S_WSP+1}] offset:1024")
            A(f"s_mov_b64 exec, s[{S_E0}:{S_E0+1}]")
            A("s_waitcnt vmcnt(5)")
            for i in range(16): g2.w2_read(i)
            A("s_waitcnt vmcnt(0)")
            A(f"v_mov_b32 v{tt+2}, s{S_T2}")
            A(f"s_mov_b64 s[{S_E0}:{S_E0+1}], exec"); A("s_mov_b64 exec, 1")
            A(f"global_atomic_add v{tt+2}, v{ONE}, s[{S_WSP}:{S_WSP+1}] sc1")
            A(f"s_mov_b64 exec, s[{S_E0}:{S_E0+1}]")
        A.stamp(6)

class G2:
    ACC2 = 0; HB = 64; NH = 32; W2V = 192; DO = 224
    S_WD = 8; S_WO = 12; S_O = 16; S_XX = 20
    TAU = 39; J = 40; LB = 41; HO = 42; SA = 43; SBb = 44; SC = 45; SD = 46
    VDM = 225; VTR = 226; VTR1 = 227; KVA = 228
    RING = 16
    def __init__(self, A): self.A = A
    def w2(self, ks, nb):
        f = ks*2 + nb
        return ar(4*f, 4) if f < 64 else vr(self.W2V + 4*(f-64), 4)
    def w2h(self, ks, nb, half):
        f = ks*2 + nb
        return ar(4*f + 2*half, 2) if f < 64 else vr(self.W2V + 4*(f-64) + 2*half, 2)
    def setup(self):
        A = self.A; T = VT
        A(f"s_and_b32 s{S_T0}, s2, 7"); A(f"s_lshr_b32 s{S_T1}, s2, 3"); A(f"s_and_b32 s{self.TAU}, s{S_T1}, 3"); A(f"s_lshl_b32 s{S_T0}, s{S_T0}, 2"); A(f"s_add_u32 s{self.TAU}, s{self.TAU}, s{S_T0}")
        A(f"s_lshr_b32 s{self.J}, s{S_T1}, 2")
        A(f"s_lshl_b32 s{S_T0}, s{self.J}, 7")
        srd_off(A, self.S_WD, P_D, P_D+1, f"s{S_T0}", 1792*1024)
        srd_off(A, self.S_WO, P_WO, P_WO+1, f"s{S_T0}", 512*1024)
        srd(A, self.S_O, P_O, P_O+1, 2048*1024)
        srd(A, self.S_XX, P_X, P_X+1, 2048*1024)
        VL = VLANE
        A(f"v_lshrrev_b32 v{T}, 3, v{VL}"); A(f"v_and_b32 v{T+1}, 7, v{VL}"); A(f"v_lshrrev_b32 v{T+2}, 4, v{VL}"); A(f"v_and_b32 v{T+2}, 1, v{T+2}"); A(f"v_lshlrev_b32 v{T+2}, 2, v{T+2}")
        A(f"v_xor_b32 v{T+1}, v{T+1}, v{T+2}"); A(f"v_lshlrev_b32 v{T+1}, 4, v{T+1}"); A(f"v_lshlrev_b32 v{T}, 10, v{T}"); A(f"v_add_u32 v{self.VDM}, v{T}, v{T+1}")
        A(f"v_lshrrev_b32 v{T}, 4, v{VL}"); A(f"v_and_b32 v{T}, 1, v{T}")
        A(f"v_lshrrev_b32 v{T+1}, 5, v{VL}")
        A(f"v_and_b32 v{T+2}, 15, v{VL}"); A(f"v_lshrrev_b32 v{T+2}, 2, v{T+2}")
        A(f"v_and_b32 v{T+3}, 3, v{VL}")
        A(f"v_lshlrev_b32 v{T+4}, 2, v{T+1}"); A(f"v_add_u32 v{T+4}, v{T+4}, v{T+2}")
        A(f"v_lshlrev_b32 v{T+5}, 1, v{T}"); A(f"v_lshrrev_b32 v{T+6}, 1, v{T+3}"); A(f"v_add_u32 v{T+5}, v{T+5}, v{T+6}")
        A(f"v_lshrrev_b32 v{T+6}, 1, v{T+2}"); A(f"v_and_b32 v{T+6}, 1, v{T+6}"); A(f"v_lshlrev_b32 v{T+6}, 2, v{T+6}"); A(f"v_xor_b32 v{T+5}, v{T+5}, v{T+6}")
        A(f"v_lshlrev_b32 v{T+5}, 4, v{T+5}"); A(f"v_lshlrev_b32 v{T+4}, 7, v{T+4}"); A(f"v_add_u32 v{T+5}, v{T+5}, v{T+4}")
        A(f"v_and_b32 v{T+6}, 1, v{T+3}"); A(f"v_lshlrev_b32 v{T+6}, 3, v{T+6}"); A(f"v_add_u32 v{T+5}, v{T+5}, v{T+6}")
        A(f"s_lshl_b32 s{self.LB}, s{S_WV}, 15")
        A(f"v_add_u32 v{self.VTR}, s{self.LB}, v{T+5}")
        A(f"v_xor_b32 v{self.VTR1}, 64, v{self.VTR}")
        A(f"s_lshl_b32 s{self.SA}, s{S_WV}, 18")
        A(f"s_lshl_b32 s{self.SBb}, s{S_WV}, 17"); A(f"s_add_u32 s{self.SBb}, s{self.SBb}, {1024*1024}")
        A(f"s_lshl_b32 s{self.SC}, s{S_WV}, 16"); A(f"s_add_u32 s{self.SC}, s{self.SC}, {1536*1024}")
        A(f"s_lshl_b32 s{self.SD}, s{S_WV}, 17")
    def w2_dma(self, i):
        A = self.A
        if i < 16: base, off, s = self.SA, 16*i, self.S_WD
        elif i < 24: base, off, s = self.SBb, 16*(i-16), self.S_WD
        elif i < 28: base, off, s = self.SC, 16*(i-24), self.S_WD
        else: base, off, s = self.SD, 16*(i-28), self.S_WO
        for hf in range(2):
            A(f"s_add_u32 m0, s{self.LB}, {(i % self.RING)*2048 + hf*1024}")
            A(f"s_add_u32 s{S_OOB}, s{base}, {(off + 8*hf)*1024}")
            A(f"buffer_load_dwordx4 v{self.VDM}, s[{s}:{s+3}], s{S_OOB} offen lds")
    def w2_read(self, i):
        A = self.A; o = (i % self.RING)*2048
        for nb in range(2):
            va = self.VTR if nb == 0 else self.VTR1
            A(f"ds_read_b64_tr_b16 {self.w2h(i, nb, 0)}, v{va} offset:{o}")
            A(f"ds_read_b64_tr_b16 {self.w2h(i, nb, 1)}, v{va} offset:{o+1024}")
    def poll(self, label, vaddr, nl, expect_eq=None):
        A = self.A; T = VT
        A(f"s_mov_b32 s{S_T3}, 0")
        A(f"s_mov_b64 s[{S_E0}:{S_E0+1}], exec"); A(f"s_mov_b64 exec, {(1<<nl)-1}")
        A.label(label)
        A(f"global_load_dword v{T+9}, v{vaddr}, s[{S_WSP}:{S_WSP+1}] sc1")
        A("s_waitcnt vmcnt(0)")
        if expect_eq is None: A(f"v_cmp_ne_u32 vcc, 0, v{T+9}")
        else: A(f"v_cmp_le_u32 vcc, {expect_eq}, v{T+9}")
        A(f"s_add_u32 s{S_T3}, s{S_T3}, 1")
        A(f"s_cmp_ge_u32 s{S_T3}, {POLL_MAX}"); A(f"s_cbranch_scc1 {label}_x")
        A(f"s_cmp_eq_u64 vcc, exec"); A(f"s_cbranch_scc1 {label}_x")
        A("s_sleep 1"); A(f"s_branch {label}")
        A.label(label + "_x")
        A(f"s_mov_b64 exec, s[{S_E0}:{S_E0+1}]")
    def body(self):
        A = self.A; T = VT; VL = VLANE
        ACC2, HB, NH, DO = self.ACC2, self.HB, self.NH, self.DO
        A("s_waitcnt lgkmcnt(0)")
        for i in range(16, 32): self.w2_dma(i)
        A(f"v_and_b32 v{T}, 31, v{VL}"); A(f"v_lshrrev_b32 v{T+1}, 5, v{VL}")
        A(f"v_lshlrev_b32 v{T+2}, 4, v{T+1}"); A(f"v_add_u32 v{T+2}, v{T+2}, v{T}"); A(f"v_subrev_u32 v{T+2}, 16, v{T+2}"); A(f"v_lshlrev_b32 v{T+2}, 5, v{T+2}")
        A(f"v_lshlrev_b32 v{T+3}, 5, v{T+1}"); A(f"v_add_u32 v{T+3}, 1024, v{T+3}")
        A(f"v_cmp_gt_u32 vcc, 16, v{T}"); A("s_nop 1"); A(f"v_cndmask_b32 v{T+2}, v{T+2}, v{T+3}, vcc")
        A(f"s_lshl_b32 s{S_T0}, s{S_WV}, 3"); A(f"s_mul_i32 s{S_T0}, s{S_T0}, {KV_HEAD}"); A(f"s_add_u32 s{S_T0}, s{S_T0}, {WS_KV}")
        A(f"v_add_u32 v{self.KVA}, s{S_T0}, v{T+2}")
        for i in range(64): A(f"v_mov_b32 v{ACC2+i}, 0")
        for i in range(16, 32):
            A(f"s_waitcnt vmcnt({2*(31-i)})")
            self.w2_read(i)
        A("s_waitcnt lgkmcnt(0)")
        for i in range(32, 36): self.w2_dma(i)
        A(f"s_lshl_b32 s{self.HO}, s{self.TAU}, 2"); A(f"s_add_u32 s{self.HO}, s{self.HO}, s{S_WV}")
        A(f"s_lshl_b32 s{S_T0}, s{self.HO}, 6"); A(f"s_add_u32 s{S_T0}, s{S_T0}, {WS_FLAG}")
        A(f"v_lshlrev_b32 v{T+8}, 2, v{VL}"); A(f"v_add_u32 v{T+8}, s{S_T0}, v{T+8}")
        A(f"s_mul_i32 s{self.HO}, s{self.HO}, {36*2048}")
        A("s_waitcnt vmcnt(0)")
        for i in range(32, 36): self.w2_read(i)
        A.stamp(7)
        self.poll("K12_pollH", T+8, 8)
        A.stamp(8)
        def h_load(f):
            hb = HB + 4*(f % NH)
            if f % 4 == 0 and f > 0: A(f"s_add_u32 s{self.HO}, s{self.HO}, 4096")
            A(f"buffer_load_dwordx4 v[{hb}:{hb+3}], v{VL16}, s[{S_H}:{S_H+3}], s{self.HO} offen offset:{(f%4)*1024} sc1")
        for f in range(NH): h_load(f)
        A("s_waitcnt lgkmcnt(0)")
        nextf = NH
        for i in range(28):
            out_after = nextf - (2*i + 2)
            A(f"s_waitcnt vmcnt({min(63,out_after)})")
            for tb in range(2):
                hb = HB + 4*((2*i+tb) % NH)
                for nb in range(2):
                    a = ACC2 + 16*(2*nb+tb)
                    A(f"v_mfma_f32_32x32x16_bf16 v[{a}:{a+15}], {self.w2(i,nb)}, v[{hb}:{hb+3}], v[{a}:{a+15}]")
            for tb in range(2):
                if nextf < 56: h_load(nextf); nextf += 1
        A(f"v_add_u32 v{T+8}, 32, v{T+8}")
        self.poll("K12_pollQ", T+8, 4)
        A(f"s_lshl_b32 s{S_T0}, s{S_WV}, 9"); A(f"s_add_u32 s{S_T0}, s{S_T0}, {WS_KVCNT}")
        A(f"v_lshlrev_b32 v{T+8}, 6, v{VL}"); A(f"v_add_u32 v{T+8}, s{S_T0}, v{T+8}")
        self.poll("K12_pollKV", T+8, 8, expect_eq=16)
        for f in range(56, 72): h_load(f)
        KVF = HB + 4*8
        A(f"s_mov_b32 s{S_T1}, {KV_HEAD}")
        for h in range(8):
            A(f"global_load_dwordx4 v[{KVF+8*h}:{KVF+8*h+3}], v{self.KVA}, s[{S_WSP}:{S_WSP+1}] sc1")
            A(f"global_load_dwordx4 v[{KVF+8*h+4}:{KVF+8*h+7}], v{self.KVA}, s[{S_WSP}:{S_WSP+1}] offset:16 sc1")
            A(f"v_add_u32 v{self.KVA}, s{S_T1}, v{self.KVA}")
        A("s_waitcnt vmcnt(0)")
        for h in range(8):
            for i in range(4): A(f"v_cvt_pk_bf16_f32 v{KVF+4*h+i}, v{KVF+8*h+2*i}, v{KVF+8*h+2*i+1}")
        DO = KVF + 32
        A("s_nop 1")
        A(f"s_mov_b32 s{S_T1}, 0x358637bd")
        units = [(h, tb) for h in range(8) for tb in range(2)]
        for u, (h, tb) in enumerate(units):
            i = 28 + h
            hb = HB + 4*((2*i+tb) % NH)
            A(f"v_mfma_f32_32x32x16_bf16 v[{DO}:{DO+15}], v[{KVF+4*h}:{KVF+4*h+3}], v[{hb}:{hb+3}], 0")
            A("s_nop 7"); A("s_nop 7")
            A(f"v_add_f32 v{T}, s{S_T1}, v{DO}")
            A(f"v_rcp_f32 v{T}, v{T}")
            A("s_nop 0")
            for e in range(8): A(f"v_mul_f32 v{DO+8+e}, v{T}, v{DO+8+e}")
            for e in range(4): A(f"v_cvt_pk_bf16_f32 v{hb+e}, v{DO+8+2*e}, v{DO+8+2*e+1}")
            A("s_nop 1")
            for nb in range(2):
                a = ACC2 + 16*(2*nb+tb)
                A(f"v_mfma_f32_32x32x16_bf16 v[{a}:{a+15}], {self.w2(i,nb)}, v[{hb}:{hb+3}], v[{a}:{a+15}]")
        RS = 272; WSZ = 64*RS
        A("s_nop 7"); A("s_nop 7")
        A("s_barrier")
        A(f"v_and_b32 v{T}, 31, v{VL}"); A(f"v_mul_u32_u24 v{T}, {RS}, v{T}"); A(f"v_lshrrev_b32 v{T+1}, 5, v{VL}"); A(f"v_lshlrev_b32 v{T+1}, 4, v{T+1}"); A(f"v_add_u32 v{T}, v{T}, v{T+1}")
        A(f"s_mul_i32 s{S_T0}, s{S_WV}, {WSZ}"); A(f"v_add_u32 v{T}, s{S_T0}, v{T}")
        for nb in range(2):
            for tb in range(2):
                a = ACC2 + 16*(2*nb+tb)
                for q in range(4):
                    A(f"ds_write_b128 v{T}, v[{a+4*q}:{a+4*q+3}] offset:{tb*32*RS + nb*128 + q*32}")
        A(f"v_lshrrev_b32 v{T+2}, 3, v{VTID}"); A(f"v_and_b32 v{T+3}, 7, v{VTID}")
        A(f"s_lshl_b32 s{S_T0}, s{self.TAU}, 16"); A(f"s_lshl_b32 s{S_T1}, s{self.J}, 7"); A(f"s_add_u32 s{S_T0}, s{S_T0}, s{S_T1}")
        A(f"v_lshlrev_b32 v{T+4}, 10, v{T+2}"); A(f"v_lshlrev_b32 v{T+5}, 4, v{T+3}"); A(f"v_add_u32 v{T+4}, v{T+4}, v{T+5}")
        A(f"buffer_load_dwordx4 v[64:67], v{T+4}, s[{self.S_XX}:{self.S_XX+3}], s{S_T0} offen")
        A(f"s_add_u32 s{S_T1}, s{S_T0}, {32*1024}")
        A(f"buffer_load_dwordx4 v[68:71], v{T+4}, s[{self.S_XX}:{self.S_XX+3}], s{S_T1} offen")
        A("s_waitcnt lgkmcnt(0)"); A("s_barrier")
        A(f"v_mul_u32_u24 v{T+6}, {RS}, v{T+2}"); A(f"v_lshlrev_b32 v{T+7}, 5, v{T+3}"); A(f"v_add_u32 v{T+6}, v{T+6}, v{T+7}")
        for ps in range(2):
            for w in range(4):
                A(f"ds_read_b128 v[{96+8*w}:{96+8*w+3}], v{T+6} offset:{w*WSZ + ps*32*RS}")
                A(f"ds_read_b128 v[{96+8*w+4}:{96+8*w+7}], v{T+6} offset:{w*WSZ + ps*32*RS + 16}")
            A("s_waitcnt lgkmcnt(0)")
            for e in range(8):
                A(f"v_add_f32 v{96+e}, v{96+e}, v{104+e}"); A(f"v_add_f32 v{112+e}, v{112+e}, v{120+e}"); A(f"v_add_f32 v{96+e}, v{96+e}, v{112+e}")
            A("s_waitcnt vmcnt(1)")
            xb = 64 + 4*ps
            for e in range(4):
                A(f"v_lshlrev_b32 v{T+8}, 16, v{xb+e}"); A(f"v_and_b32 v{T+9}, 0xffff0000, v{xb+e}")
                A(f"v_add_f32 v{96+2*e}, v{96+2*e}, v{T+8}"); A(f"v_add_f32 v{96+2*e+1}, v{96+2*e+1}, v{T+9}")
                A(f"v_cvt_pk_bf16_f32 v{72+4*ps+e}, v{96+2*e}, v{96+2*e+1}")
            A(f"buffer_store_dwordx4 v[{72+4*ps}:{72+4*ps+3}], v{T+4}, s[{self.S_O}:{self.S_O+3}], s{S_T0 if ps == 0 else S_T1} offen")

def gen_k12():
    A = Asm()
    prologue_common(A)
    A(f"s_cmp_ge_u32 s{S_CP}, 2"); A("s_cbranch_scc1 K12_typeB")
    g2 = G2(A)
    for typ in ("A", "B"):
        if typ == "B": A.label("K12_typeB")
        g = G1(A, typ)
        g.prologue(); g.loop()
        A.stamp(4)
        g.epilogue(g2)
        if typ == "A": A("s_branch K12_g2")
    A.label("K12_g2")
    g2.body()
    A.dump_stamps(1, 8 if False else 8, S_WSP, S_WV, VT, S_T0) if False else None
    if STAMP:
        A("s_waitcnt vmcnt(0) lgkmcnt(0)")
        A(f"{STAMP_INS} s[60:61]")
        A("s_waitcnt lgkmcnt(0)")
        A(f"s_lshl_b32 s{S_T0}, s2, 2"); A(f"s_add_u32 s{S_T0}, s{S_T0}, s{S_WV}"); A(f"s_lshl_b32 s{S_T0}, s{S_T0}, 6")
        A(f"s_add_u32 s{S_T0}, s{S_T0}, {WS_STAMP + 65536}")
        A(f"v_mov_b32 v{VT}, s{S_T0}")
        for i in range(9):
            A(f"v_mov_b32 v{VT+1}, s{SB+2*i}")
            A(f"global_store_dword v{VT}, v{VT+1}, s[{S_WSP}:{S_WSP+1}] offset:{4*i}")
        A(f"v_mov_b32 v{VT+1}, s60")
        A(f"global_store_dword v{VT}, v{VT+1}, s[{S_WSP}:{S_WSP+1}] offset:36")
    A.label("K12_end")
    return A.text()

def kernel_block(name, body, vgpr, agpr, sgpr=102):
    return f""".globl {name}
.p2align 8
.type {name},@function
{name}:
{body}
  s_endpgm
""", f""".amdhsa_kernel {name}
  .amdhsa_next_free_vgpr {vgpr+agpr}
  .amdhsa_next_free_sgpr {sgpr}
  .amdhsa_accum_offset {vgpr}
  .amdhsa_group_segment_fixed_size 0
  .amdhsa_kernarg_size 80
  .amdhsa_user_sgpr_count 2
  .amdhsa_user_sgpr_kernarg_segment_ptr 1
  .amdhsa_system_sgpr_workgroup_id_x 1
.end_amdhsa_kernel
"""

def main(path):
    hdr = open("cdna_kernels/" + NAME + ".s.ref").read().split("; Override")[0]
    ks = [("k0_kernel", gen_k0(), 96, 0, 10240), ("k12_kernel", gen_k12(), 256, 256, 163840)]
    out = hdr
    for n, _, _, _, lds in ks:
        out += f"; @launch kernel={n} grid=(256,1,1) block=(256,1,1) lds={lds}\n"
    out += '.amdgcn_target "amdgcn-amd-amdhsa--gfx950"\n.text\n'
    descs = ""
    for n, body, v, a, lds in ks:
        c, d = kernel_block(n, body, v, a)
        out += c; descs += ".p2align 6\n" + d
    out += '.section .rodata,"a"\n' + descs
    open(path, "w").write(out)

if __name__ == "__main__":
    if "--stamp" in sys.argv:
        STAMP = True; sys.argv.remove("--stamp")
    if "--cyc" in sys.argv:
        STAMP = True; STAMP_INS = "s_memtime"; sys.argv.remove("--cyc")
    main(sys.argv[1] if len(sys.argv) > 1 else "cdna_kernels/" + NAME + ".s")
```

```python
import sys

NAME = "parallel_sum__linear_attn_block__glu_gated_bilinear__prompt"

WS_M = 0
WS_R = 8192
WS_CS = 16384
WS_KV = 65536
KV_HEAD = 1152
WS_FLAG = 65536 + 36864
WS_KVCNT = WS_FLAG + 8192
ZERO_BYTES = 36864 + 8192 + 2048 + 2048
WS_H = 131072
H_BYTES = 32*4*36*2048
OOB = 0x40000000
POLL_MAX = 200000

STAMP = False
PSTAMP = False
STAMP_INS = 's_memrealtime'
WS_STAMP = 1 << 24
SB = 84

class Asm:
    def __init__(self): self.l = []
    def __call__(self, s):
        if s is not None: self.l.append("  " + s)
    def label(self, s): self.l.append(s + ":")
    def text(self): return "\n".join(self.l)
    def pstamp(self, i):
        if STAMP and PSTAMP: self.l.append(f"  {STAMP_INS} s[{SB+2*i}:{SB+2*i+1}]")
    def stamp(self, i):
        if PSTAMP and i > 0: return
        if STAMP: self.l.append(f"  {STAMP_INS} s[{SB+2*i}:{SB+2*i+1}]")
    def dump_stamps(self, kid, n, wsp, wave_sgpr, tmpv, tmps):
        if not STAMP: return
        A = self
        A("s_waitcnt vmcnt(0) lgkmcnt(0)")
        A(f"{STAMP_INS} s[{SB+2*n}:{SB+2*n+1}]")
        A("s_waitcnt lgkmcnt(0)")
        A(f"s_lshl_b32 s{tmps}, s2, 2"); A(f"s_add_u32 s{tmps}, s{tmps}, s{wave_sgpr}"); A(f"s_lshl_b32 s{tmps}, s{tmps}, 6")
        A(f"s_add_u32 s{tmps}, s{tmps}, {WS_STAMP + kid*65536}")
        A(f"v_mov_b32 v{tmpv}, s{tmps}")
        for i in range(n+1):
            A(f"v_mov_b32 v{tmpv+1}, s{SB+2*i}")
            A(f"global_store_dword v{tmpv}, v{tmpv+1}, s[{wsp}:{wsp+1}] offset:{4*i}")

def vr(b, n=1): return f"v{b}" if n == 1 else f"v[{b}:{b+n-1}]"
def ar(b, n=1): return f"a{b}" if n == 1 else f"a[{b}:{b+n-1}]"

def srd(A, d, lo, hi, size):
    A(f"s_mov_b32 s{d}, s{lo}"); A(f"s_and_b32 s{d+1}, s{hi}, 0xffff"); A(f"s_mov_b32 s{d+2}, {size}"); A(f"s_mov_b32 s{d+3}, 0x20000")
def srd_off(A, d, lo, hi, off, size):
    A(f"s_add_u32 s{d}, s{lo}, {off}"); A(f"s_addc_u32 s{d+1}, s{hi}, 0"); A(f"s_and_b32 s{d+1}, s{d+1}, 0xffff")
    if isinstance(off, int): A(f"s_mov_b32 s{d+2}, {size - off}")
    else: A(f"s_sub_u32 s{d+2}, {size}, {off}")
    A(f"s_mov_b32 s{d+3}, 0x20000")

def gen_k0():
    A = Asm()
    A("s_cmp_ge_u32 s2, 256"); A("s_cbranch_scc1 K0_end2")
    A.stamp(0)
    A("s_load_dwordx4 s[4:7], s[0:1], 0")
    A("s_load_dwordx4 s[8:11], s[0:1], 32")
    A("s_load_dwordx2 s[12:13], s[0:1], 72")
    A("v_and_b32 v1, 63, v0")
    A("v_lshrrev_b32 v2, 6, v0")
    A("v_lshlrev_b32 v3, 4, v1")
    A("v_readfirstlane_b32 s14, v2")
    A("s_lshl_b32 s15, s2, 3"); A("s_lshl_b32 s16, s14, 1"); A("s_add_u32 s15, s15, s16")
    A("s_lshl_b32 s16, s15, 10")
    A("v_add_u32 v3, s16, v3")
    A("s_waitcnt lgkmcnt(0)")
    A("global_load_dwordx4 v[4:7], v3, s[4:5]")
    A("global_load_dwordx4 v[8:11], v3, s[4:5] offset:1024")
    A("s_cmp_ge_u32 s2, 160"); A("s_cbranch_scc1 K0_nocs1")
    A("s_cmp_ge_u32 s2, 80"); A("s_cselect_b32 s36, 1, 0"); A("s_mul_i32 s37, s36, 80"); A("s_sub_u32 s37, s2, s37")
    A("s_cmp_lt_u32 s37, 24"); A("s_cbranch_scc0 K0_notq")
    A("s_mov_b32 s32, s6"); A("s_mov_b32 s33, s7"); A("s_mov_b32 s34, 3072"); A("s_lshl_b32 s35, s37, 7"); A("s_branch K0_cs")
    A.label("K0_notq")
    A("s_cmp_lt_u32 s37, 52"); A("s_cbranch_scc0 K0_up")
    A("s_mov_b32 s32, s8"); A("s_mov_b32 s33, s9"); A("s_mov_b32 s34, 3584"); A("s_sub_u32 s35, s37, 24"); A("s_lshl_b32 s35, s35, 7"); A("s_branch K0_cs")
    A.label("K0_up")
    A("s_mov_b32 s32, s10"); A("s_mov_b32 s33, s11"); A("s_mov_b32 s34, 3584"); A("s_sub_u32 s35, s37, 52"); A("s_lshl_b32 s35, s35, 7")
    A.label("K0_cs")
    A("v_and_b32 v20, 7, v0"); A("v_lshrrev_b32 v21, 3, v0")
    A("s_lshl_b32 s38, s36, 8"); A("v_add_u32 v21, s38, v21"); A("v_mul_lo_u32 v21, v21, s34")
    A("v_lshlrev_b32 v20, 4, v20"); A("v_add_u32 v21, v21, v20"); A("v_add_u32 v21, s35, v21")
    A("s_lshl_b32 s39, s34, 5")
    for i in range(8):
        A(f"global_load_dwordx4 v[{32+4*i}:{35+4*i}], v21, s[32:33]"); A("v_add_u32 v21, s39, v21")
    A.label("K0_nocs1")
    for tok in range(2):
        b = 4 + 4*tok
        if tok == 0:
            A("s_cmp_ge_u32 s2, 160"); A("s_cbranch_scc1 K0_w0")
            A("s_waitcnt vmcnt(8)"); A("s_branch K0_w1")
            A.label("K0_w0"); A("s_waitcnt vmcnt(0)"); A.label("K0_w1")
        A("v_mov_b32 v20, 0"); A("v_mov_b32 v22, 0") ; A("v_mov_b32 v23, 0"); A("v_mov_b32 v24, 0")
        for i in range(4):
            A(f"v_lshlrev_b32 v12, 16, v{b+i}"); A(f"v_and_b32 v13, 0xffff0000, v{b+i}")
            A("v_add_f32 v20, v20, v12"); A("v_fmac_f32 v22, v12, v12")
            A("v_add_f32 v23, v23, v13"); A("v_fmac_f32 v24, v13, v13")
        A("v_add_f32 v20, v20, v23"); A("v_add_f32 v22, v22, v24")
        for rot in (1,2,4,8):
            A("s_nop 1")
            A(f"v_add_f32_dpp v20, v20, v20 row_ror:{rot} row_mask:0xf bank_mask:0xf")
            A(f"v_add_f32_dpp v22, v22, v22 row_ror:{rot} row_mask:0xf bank_mask:0xf")
        A("s_nop 1")
        for j,ln in enumerate((0,16,32,48)):
            A(f"v_readlane_b32 s{20+j}, v20, {ln}"); A(f"v_readlane_b32 s{24+j}, v22, {ln}")
        A("s_nop 1")
        A("v_mov_b32 v25, s20"); A("v_add_f32 v25, s21, v25"); A("v_add_f32 v25, s22, v25"); A("v_add_f32 v25, s23, v25")
        A("v_mov_b32 v26, s24"); A("v_add_f32 v26, s25, v26"); A("v_add_f32 v26, s26, v26"); A("v_add_f32 v26, s27, v26")
        A("v_mul_f32 v25, 0x3b000000, v25"); A("v_mul_f32 v26, 0x3b000000, v26")
        A("v_fma_f32 v26, -v25, v25, v26"); A("v_max_f32 v26, 0, v26"); A("v_add_f32 v26, 0x3727c5ac, v26"); A("v_rsq_f32 v26, v26")
        A(f"s_add_u32 s17, s15, {tok}"); A("s_lshl_b32 s17, s17, 2")
        A("v_mov_b32 v27, s17")
        A("v_cmp_eq_u32 vcc, 0, v1"); A("s_and_saveexec_b64 s[30:31], vcc")
        A(f"global_store_dword v27, v25, s[12:13] offset:{WS_M}")
        A("v_add_u32 v27, 8192, v27")
        A("global_store_dword v27, v26, s[12:13]")
        A("s_mov_b64 exec, s[30:31]")
    A("s_cmp_ge_u32 s2, 160"); A("s_cbranch_scc1 K0_zero")
    for c in range(8): A(f"v_mov_b32 v{64+c}, 0")
    for i in range(8):
        A(f"s_waitcnt vmcnt({min(63, 7-i+4)})")
        for d in range(4):
            A(f"v_lshlrev_b32 v12, 16, v{32+4*i+d}"); A(f"v_and_b32 v13, 0xffff0000, v{32+4*i+d}")
            A(f"v_add_f32 v{64+2*d}, v{64+2*d}, v12"); A(f"v_add_f32 v{65+2*d}, v{65+2*d}, v13")
    A("v_lshrrev_b32 v12, 3, v0"); A("v_mul_u32_u24 v12, 272, v12"); A("v_and_b32 v13, 7, v0"); A("v_lshlrev_b32 v13, 5, v13"); A("v_add_u32 v12, v12, v13")
    A("ds_write_b128 v12, v[64:67]"); A("ds_write_b128 v12, v[68:71] offset:16")
    A("s_waitcnt lgkmcnt(0)"); A("s_barrier")
    A("v_lshlrev_b32 v12, 2, v1"); A("s_mul_i32 s40, s14, 2176"); A("v_add_u32 v12, s40, v12")
    for g in range(8): A(f"ds_read_b32 v{32+g}, v12 offset:{g*272}")
    A("s_waitcnt lgkmcnt(0)")
    for g in range(1,8): A(f"v_add_f32 v32, v32, v{32+g}")
    A("s_barrier")
    A("v_lshlrev_b32 v12, 2, v0"); A("ds_write_b32 v12, v32")
    A("s_waitcnt lgkmcnt(0)"); A("s_barrier")
    A("s_cmp_eq_u32 s14, 0"); A("s_cbranch_scc0 K0_end")
    A("v_lshlrev_b32 v12, 2, v1")
    for g in range(4): A(f"ds_read_b32 v{32+g}, v12 offset:{g*256}")
    A("s_waitcnt lgkmcnt(0)")
    A("v_add_f32 v32, v32, v33"); A("v_add_f32 v34, v34, v35"); A("v_add_f32 v32, v32, v34")
    A("s_mul_i32 s40, s36, 20480"); A("s_lshl_b32 s41, s37, 8"); A("s_add_u32 s40, s40, s41"); A(f"s_add_u32 s40, s40, {WS_CS}")
    A("v_add_u32 v12, s40, v12")
    A("global_store_dword v12, v32, s[12:13]")
    A("s_branch K0_end")
    A.label("K0_zero")
    A("s_cmp_ge_u32 s2, 172"); A("s_cbranch_scc1 K0_end")
    A("s_sub_u32 s37, s2, 160"); A("s_lshl_b32 s37, s37, 12"); A(f"s_add_u32 s37, s37, {WS_KV}")
    A("v_lshlrev_b32 v6, 4, v0"); A("v_add_u32 v6, s37, v6")
    for i in range(4): A(f"v_mov_b32 v{8+i}, 0")
    A("global_store_dwordx4 v6, v[8:11], s[12:13] sc1")
    A.label("K0_end")
    A.dump_stamps(0, 1, 12, 14, 30, 42)
    A.label("K0_end2")
    return A.text()

X_BASE = 0; X_SLOT = 16384; X_NS = 3
W_BASE = 49152; W_SLOT = 20480; W_NS = 4
MISC = 131072
LDS_R = MISC
LDS_KV = MISC + 1024

ACC = 0; WF = 160; XF = 200; TRA = 216; XA = 221; VOW = 225; VOX = 230
VR = 234
VLANE = 236; VL16 = 237; VTID = 238
VT = 240
AMF = 228
ACF = 236
def acc(blk, tb): return ACC + (blk*2+tb)*16

S_X = 4; S_W = 8; S_H = 28; S_WSP = 32
S_WV = 34; S_WM = 35; S_WN = 36; S_T = 37; S_IDX = 38
S_KW = 39; S_KH = 40; S_R30 = 41; S_R35 = 42; S_RH = 43; S_GC = 44
S_WSL = 45; S_XSL = 46; S_KX = 47; S_XC = 48; S_DW = 49; S_DX = 50; S_IT = 51; S_XB = 52
S_T0 = 53; S_T1 = 54; S_T2 = 55; S_T3 = 56; S_OOB = 57; S_XSI = 58; S_HB = 59
S_E0 = 60
S_P = 64
S_CX = 80; S_CW = 81; S_TYP = 82; S_CP = 83
P_X, P_WQ, P_WO, P_G, P_U, P_D, P_O = 64, 66, 68, 72, 74, 76, 78

def prologue_common(A):
    A("s_cmp_ge_u32 s2, 256"); A("s_cbranch_scc1 K12_end")
    A.stamp(0)
    A(f"s_load_dwordx16 s[{S_P}:{S_P+15}], s[0:1], 0")
    A(f"s_load_dwordx2 s[{S_WSP}:{S_WSP+1}], s[0:1], 72")
    A(f"v_and_b32 v{VLANE}, 63, v0")
    A(f"v_lshrrev_b32 v{VT}, 6, v0")
    A(f"v_mov_b32 v{VTID}, v0")
    A(f"v_lshlrev_b32 v{VL16}, 4, v{VLANE}")
    A(f"v_readfirstlane_b32 s{S_WV}, v{VT}")
    A(f"s_and_b32 s{S_T0}, s2, 7"); A(f"s_lshr_b32 s{S_T1}, s2, 3")
    A(f"s_and_b32 s{S_T2}, s{S_T1}, 7"); A(f"s_lshr_b32 s{S_CP}, s{S_T1}, 3")
    A(f"s_lshr_b32 s{S_T}, s{S_T0}, 2"); A(f"s_lshl_b32 s{S_T}, s{S_T}, 3"); A(f"s_add_u32 s{S_T}, s{S_T}, s{S_T2}")
    A(f"s_and_b32 s{S_IDX}, s{S_T0}, 3"); A(f"s_lshl_b32 s{S_IDX}, s{S_IDX}, 1")
    A(f"s_and_b32 s{S_T0}, s{S_CP}, 1"); A(f"s_add_u32 s{S_IDX}, s{S_IDX}, s{S_T0}")
    A(f"s_add_u32 s{S_T0}, s{S_CP}, s{S_T2}"); A(f"s_and_b32 s{S_T0}, s{S_T0}, 3"); A(f"s_lshl_b32 s{S_T0}, s{S_T0}, 1")
    A(f"s_lshr_b32 s{S_T1}, s{S_T2}, 2"); A(f"s_add_u32 s{S_T0}, s{S_T0}, s{S_T1}")
    A(f"s_lshl_b32 s{S_KW}, s{S_T0}, 6")
    A(f"s_lshr_b32 s{S_WM}, s{S_WV}, 1"); A(f"s_and_b32 s{S_WN}, s{S_WV}, 1")
    t0, t1, t3, t4 = VT, VT+1, VT+3, VT+4
    A(f"v_lshrrev_b32 v{t0}, 3, v{VLANE}"); A(f"v_and_b32 v{t1}, 7, v{VLANE}")
    for j in range(4):
        A(f"v_lshrrev_b32 v{t3}, 4, v{VLANE}")
        if j & 1: A(f"v_or_b32 v{t3}, 4, v{t3}")
        A(f"v_xor_b32 v{t3}, v{t1}, v{t3}"); A(f"v_lshlrev_b32 v{t3}, 4, v{t3}")
        A(f"v_add_u32 v{t4}, {8*j}, v{t0}"); A(f"v_lshlrev_b32 v{t4}, 10, v{t4}"); A(f"v_add_u32 v{VOX+j}, v{t3}, v{t4}")
    A(f"s_lshl_b32 s{S_XB}, s{S_T}, 7"); A(f"s_lshl_b32 s{S_T0}, s{S_WV}, 5"); A(f"s_add_u32 s{S_XB}, s{S_XB}, s{S_T0}"); A(f"s_lshl_b32 s{S_XB}, s{S_XB}, 10")
    A(f"s_lshl_b32 s{S_KX}, s{S_KW}, 1")
    A(f"s_and_b32 s{S_T0}, s{S_WV}, 1"); A(f"s_lshl_b32 s{S_T0}, s{S_T0}, 4"); A(f"s_add_u32 s{S_KH}, s{S_KW}, s{S_T0}")
    A(f"s_lshl_b32 s{S_T0}, s{S_WV}, 3"); A(f"s_add_u32 s{S_KW}, s{S_KW}, s{S_T0}")
    A(f"s_mov_b32 s{S_GC}, 0"); A(f"s_mov_b32 s{S_XC}, 0")
    A(f"s_lshl_b32 s{S_T0}, s{S_WV}, 10"); A(f"s_add_u32 s{S_WSL}, s{S_T0}, {W_BASE}")
    A(f"s_lshl_b32 s{S_T0}, s{S_WV}, 12"); A(f"s_add_u32 s{S_XSL}, s{S_T0}, {X_BASE}")
    A.pstamp(1)
    A("s_waitcnt lgkmcnt(0)")
    A.pstamp(2)
    srd(A, S_X, P_X, P_X+1, 2048*1024)

class G1:
    def __init__(self, A, typ):
        self.A = A; self.typ = typ
        self.kinds = ["gu","gu","gu","gu","q"] if typ == "A" else ["kv","kv","gu","gu","guh"]
        if typ == "A": self.strides = [3584,3584,3584,3584,3072]; self.swz = ["g","u","g","u","q"]
        else: self.strides = [3072,3072,3584,3584,3584]; self.swz = ["g","u","g","u","h"]
    def w_setup(self, oob=True):
        o = []
        if oob:
            o.append([f"s_cmp_ge_u32 s{S_GC}, 16", f"s_cselect_b32 s{S_OOB}, {OOB}, 0"])
            o.append([f"s_mul_i32 s{S_R30}, s{S_KW}, 3072", f"s_or_b32 s{S_R30}, s{S_R30}, s{S_OOB}"])
            o.append([f"s_mul_i32 s{S_R35}, s{S_KW}, 3584", f"s_or_b32 s{S_R35}, s{S_R35}, s{S_OOB}"])
            if self.typ == "B": o.append([f"s_mul_i32 s{S_RH}, s{S_KH}, 3584", f"s_or_b32 s{S_RH}, s{S_RH}, s{S_OOB}"])
        else:
            o.append([f"s_mul_i32 s{S_R30}, s{S_KW}, 3072"]); o.append([f"s_mul_i32 s{S_R35}, s{S_KW}, 3584"])
            if self.typ == "B": o.append([f"s_mul_i32 s{S_RH}, s{S_KH}, 3584"])
        return o
    def w_dma(self):
        o = []
        for rho in range(5):
            so = S_RH if self.swz[rho] == "h" else (S_R30 if self.strides[rho] == 3072 else S_R35)
            o.append([f"s_add_u32 m0, s{S_WSL}, {rho*4096}", f"buffer_load_dwordx4 v{VOW+rho}, s[{S_W+4*rho}:{S_W+4*rho+3}], s{so} offen lds"])
        return o
    def w_adv(self):
        o = [[f"s_add_u32 s{S_KW}, s{S_KW}, 32", f"s_and_b32 s{S_KW}, s{S_KW}, 511"]]
        if self.typ == "B": o += [[f"s_add_u32 s{S_KH}, s{S_KH}, 32", f"s_and_b32 s{S_KH}, s{S_KH}, 511"]]
        o += [[f"s_add_u32 s{S_GC}, s{S_GC}, 1", f"s_add_u32 s{S_WSL}, s{S_WSL}, {W_SLOT}"],
              [f"s_cmp_ge_u32 s{S_WSL}, {W_BASE + W_NS*W_SLOT}", f"s_cselect_b32 s{S_T0}, {W_NS*W_SLOT}, 0", f"s_sub_u32 s{S_WSL}, s{S_WSL}, s{S_T0}"]]
        return o
    def x_setup(self, oob=True):
        if oob:
            return [[f"s_cmp_ge_u32 s{S_XC}, 8", f"s_cselect_b32 s{S_T1}, {OOB}, 0"],
                    [f"s_add_u32 s{S_T2}, s{S_XB}, s{S_KX}", f"s_or_b32 s{S_T2}, s{S_T2}, s{S_T1}"]]
        return [[f"s_add_u32 s{S_T2}, s{S_XB}, s{S_KX}"]]
    def x_dma(self):
        return [[f"s_add_u32 m0, s{S_XSL}, {j*1024}", f"buffer_load_dwordx4 v{VOX+j}, s[{S_X}:{S_X+3}], s{S_T2} offen lds"] for j in range(4)]
    def x_adv(self):
        return [[f"s_add_u32 s{S_KX}, s{S_KX}, 128", f"s_and_b32 s{S_KX}, s{S_KX}, 1023"], [f"s_add_u32 s{S_XC}, s{S_XC}, 1",
                f"s_add_u32 s{S_XSL}, s{S_XSL}, {X_SLOT}"], [f"s_cmp_ge_u32 s{S_XSL}, {X_BASE + X_NS*X_SLOT}",
                f"s_cselect_b32 s{S_T3}, {X_NS*X_SLOT}, 0", f"s_sub_u32 s{S_XSL}, s{S_XSL}, s{S_T3}"]]
    def flat(self, ll):
        for g in ll:
            for s in g: self.A(s)
    def emit_dma(self, lst):
        for m0s, ld in lst:
            self.A(m0s); self.A("s_nop 0"); self.A(ld)
    def do_x(self): self.flat(self.x_setup(False)); self.emit_dma(self.x_dma()); self.flat(self.x_adv())
    def do_w(self, adv=True):
        self.flat(self.w_setup(False)); self.emit_dma(self.w_dma())
        if adv: self.flat(self.w_adv())
    def reads(self, par, kk, second):
        o = [f"ds_read_b128 v[{XF+8*par}:{XF+8*par+3}], v{XA+kk}", f"ds_read_b128 v[{XF+8*par+4}:{XF+8*par+7}], v{XA+kk} offset:4096"]
        for blk, kd in enumerate(self.kinds):
            b = WF + 20*par + 4*blk
            if kd == "guh": o1, o2 = (1024 if second else 0), 256
            else: o1, o2 = (2048 if second else 0), 512
            o.append(f"ds_read_b64_tr_b16 v[{b}:{b+1}], v{TRA+blk} offset:{o1}")
            o.append(f"ds_read_b64_tr_b16 v[{b+2}:{b+3}], v{TRA+blk} offset:{o1+o2}")
        return o
    def mfmas(self, par):
        o = []
        for blk, kd in enumerate(self.kinds):
            wf = f"v[{WF+20*par+4*blk}:{WF+20*par+4*blk+3}]"
            for tb in range(2):
                xf = f"v[{XF+8*par+4*tb}:{XF+8*par+4*tb+3}]"; a = acc(blk, tb)
                if kd == "kv": o.append(f"v_mfma_f32_32x32x16_bf16 v[{a}:{a+15}], {xf}, {wf}, v[{a}:{a+15}]")
                else: o.append(f"v_mfma_f32_32x32x16_bf16 v[{a}:{a+15}], {wf}, {xf}, v[{a}:{a+15}]")
        return o

    def prologue(self):
        A, typ, kinds = self.A, self.typ, self.kinds
        SZQ, SZG = 512*3072, 512*3584
        self.do_x()
        A.pstamp(3)
        if typ == "A":
            A(f"s_lshl_b32 s{S_T0}, s{S_IDX}, 8")
            srd_off(A, S_W+0, P_G, P_G+1, f"s{S_T0}", SZG); srd_off(A, S_W+4, P_U, P_U+1, f"s{S_T0}", SZG)
            A(f"s_add_u32 s{S_T0}, s{S_T0}, 128")
            srd_off(A, S_W+8, P_G, P_G+1, f"s{S_T0}", SZG); srd_off(A, S_W+12, P_U, P_U+1, f"s{S_T0}", SZG)
            A(f"s_lshl_b32 s{S_T0}, s{S_IDX}, 7")
            srd_off(A, S_W+16, P_WQ, P_WQ+1, f"s{S_T0}", SZQ)
        else:
            A(f"s_lshl_b32 s{S_T0}, s{S_IDX}, 7"); A(f"s_add_u32 s{S_T0}, s{S_T0}, 1024")
            srd_off(A, S_W+0, P_WQ, P_WQ+1, f"s{S_T0}", SZQ)
            A(f"s_add_u32 s{S_T0}, s{S_T0}, 1024")
            srd_off(A, S_W+4, P_WQ, P_WQ+1, f"s{S_T0}", SZQ)
            A(f"s_lshl_b32 s{S_T0}, s{S_IDX}, 7"); A(f"s_add_u32 s{S_T0}, s{S_T0}, {16*128}")
            srd_off(A, S_W+8, P_G, P_G+1, f"s{S_T0}", SZG); srd_off(A, S_W+12, P_U, P_U+1, f"s{S_T0}", SZG)
            A(f"s_lshr_b32 s{S_T0}, s{S_IDX}, 1"); A(f"s_add_u32 s{S_T0}, s{S_T0}, 24"); A(f"s_lshl_b32 s{S_T0}, s{S_T0}, 7")
            A(f"s_and_b32 s{S_T1}, s{S_IDX}, 1"); A(f"s_lshl_b32 s{S_T1}, s{S_T1}, 6"); A(f"s_add_u32 s{S_T0}, s{S_T0}, s{S_T1}")
            A(f"s_cmp_ge_u32 s{S_WV}, 2")
            A(f"s_cselect_b32 s{S_T2}, s{P_U}, s{P_G}"); A(f"s_cselect_b32 s{S_T3}, s{P_U+1}, s{P_G+1}")
            srd_off(A, S_W+16, S_T2, S_T3, f"s{S_T0}", SZG)
        t0, t1, t2, t3, t4 = VT, VT+1, VT+2, VT+3, VT+4
        A(f"v_lshrrev_b32 v{t0}, 3, v{VLANE}"); A(f"v_and_b32 v{t1}, 7, v{VLANE}")
        A(f"v_lshrrev_b32 v{t2}, 4, v{VLANE}"); A(f"v_and_b32 v{t2}, 1, v{t2}")
        done = {}
        for rho in range(5):
            key = (self.swz[rho], self.strides[rho])
            if key in done:
                A(f"v_mov_b32 v{VOW+rho}, v{VOW+done[key]}"); continue
            done[key] = rho
            if self.swz[rho] == "h":
                A(f"v_lshrrev_b32 v{t3}, 2, v{VLANE}"); A(f"v_and_b32 v{t4}, 3, v{VLANE}")
                A(f"s_lshr_b32 s{S_T0}, s{S_WV}, 1"); A(f"s_lshl_b32 s{S_T0}, s{S_T0}, 1")
                A(f"v_xor_b32 v{t4}, s{S_T0}, v{t4}")
                A(f"v_mul_u32_u24 v{t3}, 3584, v{t3}"); A(f"v_lshlrev_b32 v{t4}, 4, v{t4}"); A(f"v_add_u32 v{VOW+rho}, v{t3}, v{t4}")
            else:
                if self.swz[rho] == "q": A(f"v_lshlrev_b32 v{t3}, 2, v{t2}")
                else:
                    A(f"v_lshlrev_b32 v{t3}, 1, v{t2}")
                    if self.swz[rho] == "u": A(f"v_or_b32 v{t3}, 4, v{t3}")
                A(f"v_xor_b32 v{t3}, v{t1}, v{t3}"); A(f"v_lshlrev_b32 v{t3}, 4, v{t3}")
                A(f"v_mul_u32_u24 v{t4}, {self.strides[rho]}, v{t0}"); A(f"v_add_u32 v{VOW+rho}, v{t3}, v{t4}")
        A.pstamp(4)
        self.do_w(); A.pstamp(5); self.do_w(); A.pstamp(6); self.do_x(); A.pstamp(7); self.do_w(); A.pstamp(8)
        A.stamp(1)
        VM = WF; VCS = WF+2; VCS2 = WF+7
        A(f"v_and_b32 v{t0}, 31, v{VLANE}")
        A(f"s_lshl_b32 s{S_T0}, s{S_T}, 7"); A(f"s_lshl_b32 s{S_T1}, s{S_WM}, 6"); A(f"s_add_u32 s{S_T0}, s{S_T0}, s{S_T1}")
        A(f"v_add_u32 v{t1}, s{S_T0}, v{t0}"); A(f"v_lshlrev_b32 v{t1}, 2, v{t1}")
        wsp = f"s[{S_WSP}:{S_WSP+1}]"
        A(f"global_load_dword v{VM}, v{t1}, {wsp}"); A(f"global_load_dword v{VM+1}, v{t1}, {wsp} offset:128")
        A(f"v_add_u32 v{t2}, {WS_R}, v{t1}")
        A(f"global_load_dword v{VR}, v{t2}, {wsp}"); A(f"global_load_dword v{VR+1}, v{t2}, {wsp} offset:128")
        A(f"v_and_b32 v{t1}, 15, v{t0}"); A(f"v_lshrrev_b32 v{t2}, 4, v{t0}")
        for blk, kd in enumerate(kinds):
            if kd in ("gu", "guh"):
                if typ == "A":
                    A(f"s_lshl_b32 s{S_T0}, s{S_IDX}, 1"); A(f"s_add_u32 s{S_T0}, s{S_T0}, s{S_WN}"); A(f"s_lshl_b32 s{S_T0}, s{S_T0}, 6"); A(f"s_add_u32 s{S_T0}, s{S_T0}, {16*blk + 1536}")
                elif kd == "gu":
                    A(f"s_add_u32 s{S_T0}, s{S_IDX}, 16"); A(f"s_lshl_b32 s{S_T0}, s{S_T0}, 6"); A(f"s_lshl_b32 s{S_T1}, s{S_WN}, 5"); A(f"s_add_u32 s{S_T0}, s{S_T0}, s{S_T1}"); A(f"s_add_u32 s{S_T0}, s{S_T0}, {16*(blk-2) + 1536}")
                else:
                    A(f"s_lshr_b32 s{S_T0}, s{S_IDX}, 1"); A(f"s_add_u32 s{S_T0}, s{S_T0}, 24"); A(f"s_lshl_b32 s{S_T0}, s{S_T0}, 6")
                    A(f"s_and_b32 s{S_T1}, s{S_IDX}, 1"); A(f"s_lshl_b32 s{S_T1}, s{S_T1}, 1"); A(f"s_add_u32 s{S_T1}, s{S_T1}, s{S_WN}"); A(f"s_lshl_b32 s{S_T1}, s{S_T1}, 4")
                    A(f"s_add_u32 s{S_T0}, s{S_T0}, s{S_T1}"); A(f"s_add_u32 s{S_T0}, s{S_T0}, 1536")
                A(f"v_mul_u32_u24 v{t3}, 1792, v{t2}"); A(f"v_add_u32 v{t3}, v{t3}, v{t1}"); A(f"v_add_u32 v{t3}, s{S_T0}, v{t3}")
            elif kd == "q":
                A(f"s_lshl_b32 s{S_T0}, s{S_IDX}, 6"); A(f"s_lshl_b32 s{S_T1}, s{S_WN}, 5"); A(f"s_add_u32 s{S_T0}, s{S_T0}, s{S_T1}")
                A(f"v_add_u32 v{t3}, s{S_T0}, v{t0}")
            else:
                A(f"s_lshl_b32 s{S_T0}, s{S_IDX}, 6"); A(f"s_lshl_b32 s{S_T1}, s{S_WN}, 5"); A(f"s_add_u32 s{S_T0}, s{S_T0}, s{S_T1}"); A(f"s_add_u32 s{S_T0}, s{S_T0}, {512 + 16*blk}")
                A(f"v_lshlrev_b32 v{t3}, 9, v{t2}"); A(f"v_add_u32 v{t3}, v{t3}, v{t1}"); A(f"v_add_u32 v{t3}, s{S_T0}, v{t3}")
            A(f"v_lshlrev_b32 v{t3}, 2, v{t3}"); A(f"v_add_u32 v{t3}, {WS_CS}, v{t3}")
            A(f"global_load_dword v{VCS+blk}, v{t3}, {wsp}")
            A(f"v_add_u32 v{t3}, 20480, v{t3}")
            A(f"global_load_dword v{VCS2+blk}, v{t3}, {wsp}")
        nsmall = 14
        if typ == "B":
            A(f"s_lshl_b32 s{S_T0}, s{S_T}, 7"); A(f"v_add_u32 v{t3}, s{S_T0}, v{VTID}"); A(f"v_lshlrev_b32 v{t3}, 2, v{t3}"); A(f"v_add_u32 v{t3}, {WS_R}, v{t3}")
            A(f"global_load_dword v{WF+12}, v{t3}, {wsp}"); nsmall += 1
        srd_off(A, S_H, S_WSP, S_WSP+1, WS_H, WS_H + H_BYTES)
        G, p, r, c = t0, t1, t2, t3
        A(f"v_lshrrev_b32 v{G}, 4, v{VLANE}"); A(f"v_and_b32 v{G}, 1, v{G}")
        A(f"v_lshrrev_b32 v{p}, 5, v{VLANE}")
        A(f"v_and_b32 v{r}, 15, v{VLANE}"); A(f"v_lshrrev_b32 v{r}, 2, v{r}")
        A(f"v_and_b32 v{c}, 3, v{VLANE}")
        k_, rb, u1, u2 = t4, t4+1, t4+2, t4+3
        A(f"v_lshlrev_b32 v{k_}, 3, v{p}"); A(f"v_add_u32 v{k_}, v{k_}, v{r}")
        A(f"v_lshrrev_b32 v{rb}, 1, v{r}"); A(f"v_and_b32 v{rb}, 1, v{rb}")
        for blk, kd in enumerate(kinds):
            d = TRA + blk
            if typ == "A" and kd == "gu" and blk > 0:
                A(f"v_xor_b32 v{d}, {blk*32}, v{TRA}"); continue
            if typ == "B" and blk in (1, 3):
                A(f"v_xor_b32 v{d}, 32, v{d-1}") ; continue
            if kd == "guh":
                A(f"v_lshrrev_b32 v{u1}, 1, v{c}"); A(f"s_lshl_b32 s{S_T0}, s{S_WN}, 1"); A(f"v_add_u32 v{u1}, s{S_T0}, v{u1}")
                A(f"v_lshlrev_b32 v{u2}, 1, v{G}"); A(f"v_xor_b32 v{u1}, v{u1}, v{u2}"); A(f"v_lshlrev_b32 v{u1}, 4, v{u1}")
                A(f"v_lshlrev_b32 v{u2}, 6, v{k_}"); A(f"v_add_u32 v{u1}, v{u1}, v{u2}")
                A(f"v_lshlrev_b32 v{u2}, 11, v{G}"); A(f"v_add_u32 v{u1}, v{u1}, v{u2}")
                A(f"v_add_u32 v{u1}, {W_BASE + 4*4096}, v{u1}")
            else:
                if kd == "q":
                    A(f"s_lshl_b32 s{S_T0}, s{S_WN}, 1"); A(f"v_add_u32 v{u1}, s{S_T0}, v{G}")
                elif typ == "A": A(f"v_mov_b32 v{u1}, 0")
                else:
                    A(f"s_lshl_b32 s{S_T0}, s{S_WN}, 1"); A(f"v_mov_b32 v{u1}, s{S_T0}")
                A(f"v_lshlrev_b32 v{u1}, 1, v{u1}"); A(f"v_lshrrev_b32 v{u2}, 1, v{c}"); A(f"v_add_u32 v{u1}, v{u1}, v{u2}")
                if kd == "q": A(f"v_lshlrev_b32 v{u2}, 2, v{rb}")
                else:
                    A(f"v_lshlrev_b32 v{u2}, 1, v{rb}"); A(f"v_lshlrev_b32 v{d}, 2, v{G}"); A(f"v_or_b32 v{u2}, v{u2}, v{d}")
                A(f"v_xor_b32 v{u1}, v{u1}, v{u2}"); A(f"v_lshlrev_b32 v{u1}, 4, v{u1}")
                A(f"v_lshlrev_b32 v{u2}, 7, v{k_}"); A(f"v_add_u32 v{u1}, v{u1}, v{u2}")
                if kd == "q": A(f"v_add_u32 v{u1}, {W_BASE + 4*4096}, v{u1}")
                else:
                    if typ == "A":
                        A(f"s_lshl_b32 s{S_T0}, s{S_WN}, 13"); A(f"s_add_u32 s{S_T0}, s{S_T0}, {W_BASE}")
                    else: A(f"s_mov_b32 s{S_T0}, {W_BASE + (0 if kd == 'kv' else 2*4096)}")
                    A(f"v_lshlrev_b32 v{u2}, 12, v{G}"); A(f"v_add_u32 v{u1}, v{u1}, v{u2}"); A(f"v_add_u32 v{u1}, s{S_T0}, v{u1}")
            A(f"v_and_b32 v{u2}, 1, v{c}"); A(f"v_lshlrev_b32 v{u2}, 3, v{u2}"); A(f"v_add_u32 v{d}, v{u1}, v{u2}")
        A(f"v_and_b32 v{u1}, 31, v{VLANE}"); A(f"s_lshl_b32 s{S_T0}, s{S_WM}, 6"); A(f"v_add_u32 v{u1}, s{S_T0}, v{u1}")
        A(f"v_lshrrev_b32 v{u2}, 1, v{u1}"); A(f"v_and_b32 v{u2}, 7, v{u2}"); A(f"v_xor_b32 v{u2}, v{u2}, v{p}"); A(f"v_lshlrev_b32 v{u2}, 4, v{u2}")
        A(f"v_lshlrev_b32 v{u1}, 7, v{u1}"); A(f"v_add_u32 v{u1}, v{u1}, v{u2}")
        for kk in range(4): A(f"v_xor_b32 v{XA+kk}, {kk*32}, v{u1}")
        for i in range(160): A(f"v_mov_b32 v{ACC+i}, 0")
        A(f"s_mov_b32 s{S_IT}, 0"); A(f"s_mov_b32 s{S_XSI}, 0")
        A(f"s_mov_b32 s{S_CX}, {X_SLOT}"); A(f"s_mov_b32 s{S_CW}, {W_SLOT}")
        A.stamp(2)
        A("s_waitcnt vmcnt(0)")
        A(f"v_cmp_gt_u32 vcc, 32, v{VLANE}"); A("s_nop 1")
        tt = VT
        for tb in range(2):
            b = XF + 8
            A(f"v_cndmask_b32 v{tt}, 0, v{VM+tb}, vcc")
            A(f"v_cvt_pk_bf16_f32 v{b}, v{tt}, v{tt}")
            A(f"v_and_b32 v{tt+1}, 0xffff0000, v{b}"); A(f"v_sub_f32 v{tt+1}, v{tt}, v{tt+1}")
            A(f"v_cvt_pk_bf16_f32 v{b+1}, v{tt+1}, 0")
            A(f"v_accvgpr_write_b32 a{AMF+4*tb}, v{b}"); A(f"v_accvgpr_write_b32 a{AMF+4*tb+1}, v{b+1}")
            A(f"v_accvgpr_write_b32 a{AMF+4*tb+2}, 0"); A(f"v_accvgpr_write_b32 a{AMF+4*tb+3}, 0")
        for blk in range(5):
            b = XF + 8
            A(f"v_add_f32 v{tt}, v{VCS+blk}, v{VCS2+blk}")
            A(f"v_cndmask_b32 v{tt}, 0, v{tt}, vcc"); A(f"v_sub_f32 v{tt}, 0, v{tt}")
            A(f"v_cvt_pk_bf16_f32 v{b+1}, v{tt}, 0")
            A(f"v_lshlrev_b32 v{tt+1}, 16, v{b+1}"); A(f"v_sub_f32 v{tt+1}, v{tt}, v{tt+1}")
            A(f"v_cvt_pk_bf16_f32 v{b}, v{tt}, v{tt+1}")
            A(f"v_accvgpr_write_b32 a{ACF+4*blk}, v{b}"); A(f"v_accvgpr_write_b32 a{ACF+4*blk+1}, v{b+1}")
            A(f"v_accvgpr_write_b32 a{ACF+4*blk+2}, 0"); A(f"v_accvgpr_write_b32 a{ACF+4*blk+3}, 0")
        if typ == "B":
            A(f"v_lshlrev_b32 v{u1}, 2, v{VTID}"); A(f"v_add_u32 v{u1}, {LDS_R}, v{u1}")
            A(f"v_cmp_gt_u32 vcc, 128, v{VTID}"); A(f"s_and_saveexec_b64 s[{S_E0}:{S_E0+1}], vcc")
            A(f"ds_write_b32 v{u1}, v{WF+12}")
            A(f"s_mov_b64 exec, s[{S_E0}:{S_E0+1}]")
            A("s_waitcnt lgkmcnt(0)")
        A("s_barrier")
        A.stamp(3)
        self.flat(self.w_setup(False)); self.emit_dma(self.w_dma())
        for s in self.reads(0, 0, False): A(s)

    def loop(self):
        A, typ = self.A, self.typ
        L = f"K12{typ}"
        A.label(f"{L}_loop")
        pre = [[f"s_cmp_eq_u32 s{S_XSI}, 2", f"s_cselect_b32 s{S_DX}, {-2*X_SLOT & 0xffffffff}, s{S_CX}"],
               [f"s_add_u32 s{S_XSI}, s{S_XSI}, 1", f"s_cmp_eq_u32 s{S_XSI}, 3", f"s_cselect_b32 s{S_XSI}, 0, s{S_XSI}"],
               [f"s_bitcmp1_b32 s{S_IT}, 0", f"s_cselect_b32 s{S_DW}, {(-3*W_SLOT) & 0xffffffff}, s{S_CW}"]]
        carry = []
        for q in range(4):
            par = q & 1
            M = self.mfmas(par)
            kk_next = (q + 1) & 3; second_next = ((q + 1) & 1) == 1
            rd = self.reads(1 - par, kk_next, second_next)
            gaps = [[] for _ in range(10)]
            head = ["s_waitcnt lgkmcnt(0)"]
            fill = []
            if q & 1:
                N = 18 if q == 1 else 14
                gaps[0] += [f"s_waitcnt vmcnt({N})", "s_barrier"]
                for i, s in enumerate(rd): gaps[1 + i//2].append(s)
                if q == 3: gaps[0].insert(0, f"v_add_u32 v{XA+kk_next}, s{S_DX}, v{XA+kk_next}")
                else: gaps[2].append(f"v_add_u32 v{XA+kk_next}, s{S_DX}, v{XA+kk_next}")
                fill += carry; carry = []
                fill += [("s", s) for s in self.w_setup()]
                fill += [("d", d) for d in self.w_dma()]
                if q == 1: fill += [("s", s) for s in self.w_adv()]
            else:
                for i, s in enumerate(rd): gaps[i//2].append(s)
                adv = []
                for blk in range(5):
                    if q == 0: adv.append(f"v_add_u32 v{TRA+blk}, {W_SLOT}, v{TRA+blk}")
                    else:      adv.append(f"v_add_u32 v{TRA+blk}, s{S_DW}, v{TRA+blk}")
                for i, s in enumerate(adv): gaps[6 + i//2].append(s)
                if q == 0:
                    fill += [("s", s) for s in pre]
                    fill += [("s", s) for s in self.w_adv()]
                    fill += [("s", s) for s in self.x_setup()]
                    fill += [("d", d) for d in self.x_dma()]
                    fill += [("s", s) for s in self.x_adv()]
                    xadv_late = f"v_add_u32 v{XA+kk_next}, s{S_DX}, v{XA+kk_next}"
                    gaps[9].append(xadv_late)
                else:
                    gaps[1].append(f"v_add_u32 v{XA+kk_next}, s{S_DX}, v{XA+kk_next}")
                fill = carry + fill; carry = []
            gi = 1 if (q & 1) else 0
            items = list(fill); pend = []
            while items:
                it = items.pop(0)
                need = len(it[1]) if it[0] == "s" else 2
                while gi < 10 and len(gaps[gi]) + need > 5: gi += 1
                if gi >= 10:
                    pend.append(it); pend += items; break
                if it[0] == "s": gaps[gi] += it[1]
                else:
                    gaps[gi].append(it[1][0]); gaps[gi].append("__NOP__"); gaps[gi].append(it[1][1]); gi += 1
            carry = pend
            for g in gaps:
                while "__NOP__" in g:
                    i = g.index("__NOP__")
                    cand = [j for j in range(i-1) if g[j].startswith("ds_read") or g[j].startswith("v_add")]
                    if cand:
                        x = g.pop(cand[-1]); i -= 1; g[i] = x
                    else: g[i] = "s_nop 0"
            for s in head: A(s)
            for i in range(10):
                A(M[i])
                for s in gaps[i]: A(s)
        assert not carry, carry
        A(f"s_add_u32 s{S_IT}, s{S_IT}, 1"); A(f"s_cmp_lt_u32 s{S_IT}, 8"); A(f"s_cbranch_scc1 {L}_loop")

    def flag_addr(self, slot_imm, vtmp):
        A = self.A
        A(f"s_lshl_b32 s{S_T0}, s{S_T}, 1"); A(f"s_add_u32 s{S_T0}, s{S_T0}, s{S_WM}"); A(f"s_lshl_b32 s{S_T0}, s{S_T0}, 2")
        A(f"s_lshr_b32 s{S_T1}, s{S_IDX}, 1"); A(f"s_add_u32 s{S_T0}, s{S_T0}, s{S_T1}"); A(f"s_lshl_b32 s{S_T0}, s{S_T0}, 4")
        A(f"s_and_b32 s{S_T1}, s{S_IDX}, 1"); A(f"s_lshl_b32 s{S_T1}, s{S_T1}, 1"); A(f"s_add_u32 s{S_T0}, s{S_T0}, s{S_T1}"); A(f"s_add_u32 s{S_T0}, s{S_T0}, s{S_WN}")
        A(f"s_add_u32 s{S_T0}, s{S_T0}, {slot_imm}"); A(f"s_lshl_b32 s{S_T0}, s{S_T0}, 2"); A(f"s_add_u32 s{S_T0}, s{S_T0}, {WS_FLAG}")
        A(f"v_mov_b32 v{vtmp}, s{S_T0}")

    def set_flag(self, vaddr, vone):
        A = self.A
        A(f"s_mov_b64 s[{S_E0}:{S_E0+1}], exec"); A("s_mov_b64 exec, 1")
        A(f"global_store_dword v{vaddr}, v{vone}, s[{S_WSP}:{S_WSP+1}] sc1")
        A(f"s_mov_b64 exec, s[{S_E0}:{S_E0+1}]")

    def epilogue(self, g2):
        A, typ, kinds = self.A, self.typ, self.kinds
        tt = VT
        A("s_waitcnt vmcnt(0) lgkmcnt(0)"); A("s_barrier")
        order = [b for b, kd in enumerate(kinds) if kd in ("gu","guh")] + [b for b, kd in enumerate(kinds) if kd not in ("gu","guh")]
        corr = []
        for blk in order:
            for tb in range(2):
                a = acc(blk, tb); cf = ar(ACF+4*blk, 4); mf = ar(AMF+4*tb, 4)
                if kinds[blk] == "kv": corr.append(f"v_mfma_f32_32x32x16_bf16 v[{a}:{a+15}], {mf}, {cf}, v[{a}:{a+15}]")
                else: corr.append(f"v_mfma_f32_32x32x16_bf16 v[{a}:{a+15}], {cf}, {mf}, v[{a}:{a+15}]")
        g2.setup()
        nd = 0
        for i, m in enumerate(corr):
            A(m)
            g2.w2_dma(nd); nd += 1
        A(f"s_lshl_b32 s{S_T0}, s{S_T}, 1"); A(f"s_add_u32 s{S_T0}, s{S_T0}, s{S_WM}"); A(f"s_lshl_b32 s{S_T0}, s{S_T0}, 2")
        A(f"s_lshr_b32 s{S_T1}, s{S_IDX}, 1"); A(f"s_add_u32 s{S_T0}, s{S_T0}, s{S_T1}"); A(f"s_mul_i32 s{S_HB}, s{S_T0}, {36*2048}")
        A(f"s_and_b32 s{S_TYP}, s{S_IDX}, 1")
        I1 = S_TYP
        R2 = XF + 8
        A(f"v_mul_f32 v{R2}, v{VR}, v{VR}"); A(f"v_mul_f32 v{R2+1}, v{VR+1}, v{VR+1}")
        PK = WF + 20
        nst = 0
        nvm = 2*nd
        for blk in order:
            kd = kinds[blk]
            if kd not in ("gu", "guh"): continue
            if typ == "A":
                A(f"s_lshl_b32 s{S_T2}, s{I1}, 1"); A(f"s_add_u32 s{S_T2}, s{S_T2}, s{S_WN}"); A(f"s_lshl_b32 s{S_T2}, s{S_T2}, 2"); A(f"s_add_u32 s{S_T2}, s{S_T2}, {blk}")
            elif kd == "gu":
                A(f"s_lshl_b32 s{S_T2}, s{I1}, 2"); A(f"s_lshl_b32 s{S_T3}, s{S_WN}, 1"); A(f"s_add_u32 s{S_T2}, s{S_T2}, s{S_T3}"); A(f"s_add_u32 s{S_T2}, s{S_T2}, {16 + blk - 2}")
            else:
                A(f"s_lshl_b32 s{S_T2}, s{I1}, 1"); A(f"s_add_u32 s{S_T2}, s{S_T2}, s{S_WN}"); A(f"s_add_u32 s{S_T2}, s{S_T2}, 24")
            A(f"s_lshl_b32 s{S_T2}, s{S_T2}, 11"); A(f"s_add_u32 s{S_T2}, s{S_T2}, s{S_HB}")
            for tb in range(2):
                a = acc(blk, tb); pk = PK + 4*(nst % 4); nst += 1
                for i in range(8): A(f"v_mul_f32 v{a+i}, v{a+i}, v{a+8+i}")
                for i in range(8): A(f"v_mul_f32 v{a+i}, v{R2+tb}, v{a+i}")
                for i in range(4): A(f"v_cvt_pk_bf16_f32 v{pk+i}, v{a+2*i}, v{a+2*i+1}")
                A(f"buffer_store_dwordx4 v[{pk}:{pk+3}], v{VL16}, s[{S_H}:{S_H+3}], s{S_T2} offen offset:{tb*1024} sc1")
        A.stamp(5)
        after_h = 0
        while nd < 16: g2.w2_dma(nd); nd += 1; after_h += 2
        FA, ONE = XF+13, XF+14
        A(f"v_mov_b32 v{ONE}, 1")
        if typ == "A":
            A(f"s_lshl_b32 s{S_T2}, s{I1}, 2"); A(f"s_lshl_b32 s{S_T3}, s{S_WN}, 1"); A(f"s_add_u32 s{S_T2}, s{S_T2}, s{S_T3}"); A(f"s_add_u32 s{S_T2}, s{S_T2}, 28")
            A(f"s_lshl_b32 s{S_T2}, s{S_T2}, 11"); A(f"s_add_u32 s{S_T2}, s{S_T2}, s{S_HB}")
            A(f"s_add_u32 s{S_XSI}, s{S_T2}, 2048")
            A(f"s_mov_b32 s{S_IT}, s{S_T2}")
            A(f"s_mov_b32 s{S_T3}, 0x358637bd")
            RL = XF + 10
            npq = 0
            for tb in range(2):
                a = acc(4, tb)
                A(f"v_mul_f32 v{RL}, 0x3fb8aa3b, v{VR+tb}")
                for i in range(16):
                    A(f"v_mul_f32 v{tt}, v{RL}, v{a+i}")
                    A(f"v_fma_f32 v{a+i}, v{a+i}, v{VR+tb}, s{S_T3}")
                    A(f"v_exp_f32_e64 v{tt}, v{tt} clamp")
                    A(f"v_max_f32 v{a+i}, s{S_T3}, v{a+i}")
                    A(f"v_add_f32 v{a+i}, v{a+i}, v{tt}")
                if tb == 0:
                    A(f"s_waitcnt vmcnt({after_h})")
                    self.flag_addr(0, FA); self.set_flag(FA, ONE); after_h += 1
                    A(f"s_mov_b32 s{S_T3}, 0x358637bd")
                for hs in range(2):
                    pk = PK + 4*(nst % 4); nst += 1
                    for i in range(4): A(f"v_cvt_pk_bf16_f32 v{pk+i}, v{a+8*hs+2*i}, v{a+8*hs+2*i+1}")
                    A(f"buffer_store_dwordx4 v[{pk}:{pk+3}], v{VL16}, s[{S_H}:{S_H+3}], s{S_XSI if hs else S_IT} offen offset:{tb*1024} sc1")
            A("s_waitcnt vmcnt(4)")
            for i in range(16): g2.w2_read(i)
            A("s_waitcnt vmcnt(0)")
            self.flag_addr(8, FA); self.set_flag(FA, ONE)
        else:
            CL, C2, KM = XF+10, XF+11, XF+12
            A(f"v_and_b32 v{tt}, 31, v{VLANE}"); A(f"v_cmp_gt_u32 vcc, 16, v{tt}")
            A(f"v_mov_b32 v{tt+1}, 0x358637bd"); A("s_nop 0")
            A(f"v_cndmask_b32 v{CL}, 0, v{tt+1}, vcc")
            A(f"v_mov_b32 v{tt+2}, 0xff800000")
            A(f"v_cndmask_b32 v{C2}, v{tt+2}, v{tt+1}, vcc")
            A(f"v_cndmask_b32 v{KM}, 0, 1.0, vcc")
            A(f"s_mov_b64 s[62:63], vcc")
            RR = WF; TP = PK
            A(f"v_lshrrev_b32 v{tt}, 5, v{VLANE}"); A(f"v_lshlrev_b32 v{tt}, 4, v{tt}")
            A(f"s_lshl_b32 s{S_T0}, s{S_WM}, 8"); A(f"s_add_u32 s{S_T0}, s{S_T0}, {LDS_R}"); A(f"v_add_u32 v{tt+3}, s{S_T0}, v{tt}")
            D2 = [acc(2,0), acc(2,1)]
            for hb in range(2):
                for i in range(16): A(f"v_mov_b32 v{D2[hb]+i}, 0")
            for tb in range(2):
                for q4 in range(4): A(f"ds_read_b128 v[{RR+4*q4}:{RR+4*q4+3}], v{tt+3} offset:{tb*128 + q4*32}")
                A("s_waitcnt lgkmcnt(0)")
                for hb in range(2):
                    a = acc(hb, tb)
                    for i in range(16):
                        A(f"v_mul_f32 v{tt}, 0x3fb8aa3b, v{RR+i}")
                        A(f"v_mul_f32 v{tt}, v{tt}, v{a+i}")
                        A(f"v_fma_f32 v{a+i}, v{a+i}, v{RR+i}, v{CL}")
                        A(f"v_exp_f32_e64 v{tt}, v{tt} clamp")
                        A(f"v_max_f32 v{tt+1}, v{a+i}, v{C2}")
                        A(f"v_fma_f32 v{a+i}, v{tt}, v{KM}, v{tt+1}")
                    if tb == 0 and hb == 0:
                        A(f"s_waitcnt vmcnt({after_h})")
                        self.flag_addr(4, FA); self.set_flag(FA, ONE); after_h += 1
                    for i in range(8): A(f"v_cvt_pk_bf16_f32 v{TP+i}, v{a+2*i}, v{a+2*i+1}")
                    A(f"v_mov_b32 v{tt}, 0x3f803f80")
                    for i in range(8): A(f"v_cndmask_b32 v{TP+8+i}, v{TP+i}, v{tt}, s[62:63]")
                    A("s_nop 1")
                    for f in range(2):
                        A(f"v_mfma_f32_32x32x16_bf16 v[{D2[hb]}:{D2[hb]+15}], v[{TP+4*f}:{TP+4*f+3}], v[{TP+8+4*f}:{TP+8+4*f+3}], v[{D2[hb]}:{D2[hb]+15}]")
            A("s_nop 7"); A("s_nop 7")
            A(f"s_lshl_b32 s{S_T0}, s{S_WM}, 13"); A(f"s_lshl_b32 s{S_T1}, s{S_WN}, 12"); A(f"s_add_u32 s{S_T0}, s{S_T0}, s{S_T1}"); A(f"s_add_u32 s{S_T0}, s{S_T0}, {LDS_KV}")
            A(f"v_lshlrev_b32 v{tt}, 2, v{VLANE}"); A(f"v_add_u32 v{tt}, s{S_T0}, v{tt}")
            for hb in range(2):
                for r_ in range(8): A(f"ds_write_b32 v{tt}, v{D2[hb]+r_} offset:{hb*2048 + r_*256}")
            A("s_waitcnt lgkmcnt(0)"); A("s_barrier")
            A(f"s_lshl_b32 s{S_T0}, s{S_WV}, 11"); A(f"s_add_u32 s{S_T0}, s{S_T0}, {LDS_KV}")
            A(f"s_lshl_b32 s{S_T1}, s{S_IDX}, 2"); A(f"s_add_u32 s{S_T1}, s{S_T1}, s{S_WV}")
            A(f"s_lshl_b32 s{S_T2}, s{S_T1}, 6"); A(f"s_add_u32 s{S_T2}, s{S_T2}, {WS_KVCNT}")
            A(f"s_mul_i32 s{S_T1}, s{S_T1}, {KV_HEAD}"); A(f"s_add_u32 s{S_T1}, s{S_T1}, {WS_KV}")
            A(f"v_and_b32 v{tt}, 7, v{VLANE}"); A(f"v_lshlrev_b32 v{tt}, 8, v{tt}")
            A(f"v_lshrrev_b32 v{tt+1}, 3, v{VLANE}")
            B0 = ACC
            for n in range(4):
                A(f"v_add_u32 v{tt+2}, {32*(n>>1) + 16 + 8*(n&1)}, v{tt+1}"); A(f"v_lshlrev_b32 v{tt+2}, 2, v{tt+2}"); A(f"v_add_u32 v{tt+2}, v{tt+2}, v{tt}"); A(f"v_add_u32 v{tt+2}, s{S_T0}, v{tt+2}")
                A(f"ds_read_b32 v{B0+2*n}, v{tt+2}"); A(f"ds_read_b32 v{B0+2*n+1}, v{tt+2} offset:8192")
            A(f"v_lshlrev_b32 v{tt+2}, 7, v{tt+1}"); A(f"v_add_u32 v{tt+2}, v{tt+2}, v{tt}"); A(f"v_add_u32 v{tt+2}, s{S_T0}, v{tt+2}")
            A(f"v_cmp_gt_u32 vcc, 16, v{VLANE}"); A(f"s_and_saveexec_b64 s[{S_E0}:{S_E0+1}], vcc")
            A(f"ds_read_b32 v{B0+8}, v{tt+2}"); A(f"ds_read_b32 v{B0+9}, v{tt+2} offset:8192")
            A(f"s_mov_b64 exec, s[{S_E0}:{S_E0+1}]")
            A("s_waitcnt lgkmcnt(0)")
            A(f"v_lshlrev_b32 v{tt+2}, 2, v{VLANE}"); A(f"v_add_u32 v{tt+2}, s{S_T1}, v{tt+2}")
            for n in range(4):
                A(f"v_add_f32 v{B0+2*n}, v{B0+2*n}, v{B0+2*n+1}")
                A(f"global_atomic_add_f32 v{tt+2}, v{B0+2*n}, s[{S_WSP}:{S_WSP+1}] offset:{n*256}")
            A(f"v_add_f32 v{B0+8}, v{B0+8}, v{B0+9}")
            A(f"s_and_saveexec_b64 s[{S_E0}:{S_E0+1}], vcc")
            A(f"global_atomic_add_f32 v{tt+2}, v{B0+8}, s[{S_WSP}:{S_WSP+1}] offset:1024")
            A(f"s_mov_b64 exec, s[{S_E0}:{S_E0+1}]")
            A("s_waitcnt vmcnt(5)")
            for i in range(16): g2.w2_read(i)
            A("s_waitcnt vmcnt(0)")
            A(f"v_mov_b32 v{tt+2}, s{S_T2}")
            A(f"s_mov_b64 s[{S_E0}:{S_E0+1}], exec"); A("s_mov_b64 exec, 1")
            A(f"global_atomic_add v{tt+2}, v{ONE}, s[{S_WSP}:{S_WSP+1}] sc1")
            A(f"s_mov_b64 exec, s[{S_E0}:{S_E0+1}]")
        A.stamp(6)

class G2:
    ACC2 = 0; HB = 64; NH = 32; W2V = 192; DO = 224
    S_WD = 8; S_WO = 12; S_O = 16; S_XX = 20
    TAU = 39; J = 40; LB = 41; HO = 42; SA = 43; SBb = 44; SC = 45; SD = 46
    VDM = 225; VTR = 226; VTR1 = 227; KVA = 228
    RING = 16
    def __init__(self, A): self.A = A
    def w2(self, ks, nb):
        f = ks*2 + nb
        return ar(4*f, 4) if f < 64 else vr(self.W2V + 4*(f-64), 4)
    def w2h(self, ks, nb, half):
        f = ks*2 + nb
        return ar(4*f + 2*half, 2) if f < 64 else vr(self.W2V + 4*(f-64) + 2*half, 2)
    def setup(self):
        A = self.A; T = VT
        A(f"s_and_b32 s{S_T0}, s2, 7"); A(f"s_lshr_b32 s{S_T1}, s2, 3"); A(f"s_and_b32 s{self.TAU}, s{S_T1}, 3"); A(f"s_lshl_b32 s{S_T0}, s{S_T0}, 2"); A(f"s_add_u32 s{self.TAU}, s{self.TAU}, s{S_T0}")
        A(f"s_lshr_b32 s{self.J}, s{S_T1}, 2")
        A(f"s_lshl_b32 s{S_T0}, s{self.J}, 7")
        srd_off(A, self.S_WD, P_D, P_D+1, f"s{S_T0}", 1792*1024)
        srd_off(A, self.S_WO, P_WO, P_WO+1, f"s{S_T0}", 512*1024)
        srd(A, self.S_O, P_O, P_O+1, 2048*1024)
        srd(A, self.S_XX, P_X, P_X+1, 2048*1024)
        VL = VLANE
        A(f"v_lshrrev_b32 v{T}, 3, v{VL}"); A(f"v_and_b32 v{T+1}, 7, v{VL}"); A(f"v_lshrrev_b32 v{T+2}, 4, v{VL}"); A(f"v_and_b32 v{T+2}, 1, v{T+2}"); A(f"v_lshlrev_b32 v{T+2}, 2, v{T+2}")
        A(f"v_xor_b32 v{T+1}, v{T+1}, v{T+2}"); A(f"v_lshlrev_b32 v{T+1}, 4, v{T+1}"); A(f"v_lshlrev_b32 v{T}, 10, v{T}"); A(f"v_add_u32 v{self.VDM}, v{T}, v{T+1}")
        A(f"v_lshrrev_b32 v{T}, 4, v{VL}"); A(f"v_and_b32 v{T}, 1, v{T}")
        A(f"v_lshrrev_b32 v{T+1}, 5, v{VL}")
        A(f"v_and_b32 v{T+2}, 15, v{VL}"); A(f"v_lshrrev_b32 v{T+2}, 2, v{T+2}")
        A(f"v_and_b32 v{T+3}, 3, v{VL}")
        A(f"v_lshlrev_b32 v{T+4}, 2, v{T+1}"); A(f"v_add_u32 v{T+4}, v{T+4}, v{T+2}")
        A(f"v_lshlrev_b32 v{T+5}, 1, v{T}"); A(f"v_lshrrev_b32 v{T+6}, 1, v{T+3}"); A(f"v_add_u32 v{T+5}, v{T+5}, v{T+6}")
        A(f"v_lshrrev_b32 v{T+6}, 1, v{T+2}"); A(f"v_and_b32 v{T+6}, 1, v{T+6}"); A(f"v_lshlrev_b32 v{T+6}, 2, v{T+6}"); A(f"v_xor_b32 v{T+5}, v{T+5}, v{T+6}")
        A(f"v_lshlrev_b32 v{T+5}, 4, v{T+5}"); A(f"v_lshlrev_b32 v{T+4}, 7, v{T+4}"); A(f"v_add_u32 v{T+5}, v{T+5}, v{T+4}")
        A(f"v_and_b32 v{T+6}, 1, v{T+3}"); A(f"v_lshlrev_b32 v{T+6}, 3, v{T+6}"); A(f"v_add_u32 v{T+5}, v{T+5}, v{T+6}")
        A(f"s_lshl_b32 s{self.LB}, s{S_WV}, 15")
        A(f"v_add_u32 v{self.VTR}, s{self.LB}, v{T+5}")
        A(f"v_xor_b32 v{self.VTR1}, 64, v{self.VTR}")
        A(f"s_lshl_b32 s{self.SA}, s{S_WV}, 18")
        A(f"s_lshl_b32 s{self.SBb}, s{S_WV}, 17"); A(f"s_add_u32 s{self.SBb}, s{self.SBb}, {1024*1024}")
        A(f"s_lshl_b32 s{self.SC}, s{S_WV}, 16"); A(f"s_add_u32 s{self.SC}, s{self.SC}, {1536*1024}")
        A(f"s_lshl_b32 s{self.SD}, s{S_WV}, 17")
    def w2_dma(self, i):
        A = self.A
        if i < 16: base, off, s = self.SA, 16*i, self.S_WD
        elif i < 24: base, off, s = self.SBb, 16*(i-16), self.S_WD
        elif i < 28: base, off, s = self.SC, 16*(i-24), self.S_WD
        else: base, off, s = self.SD, 16*(i-28), self.S_WO
        for hf in range(2):
            A(f"s_add_u32 m0, s{self.LB}, {(i % self.RING)*2048 + hf*1024}")
            A(f"s_add_u32 s{S_OOB}, s{base}, {(off + 8*hf)*1024}")
            A(f"buffer_load_dwordx4 v{self.VDM}, s[{s}:{s+3}], s{S_OOB} offen lds")
    def w2_read(self, i):
        A = self.A; o = (i % self.RING)*2048
        for nb in range(2):
            va = self.VTR if nb == 0 else self.VTR1
            A(f"ds_read_b64_tr_b16 {self.w2h(i, nb, 0)}, v{va} offset:{o}")
            A(f"ds_read_b64_tr_b16 {self.w2h(i, nb, 1)}, v{va} offset:{o+1024}")
    def poll(self, label, vaddr, nl, expect_eq=None):
        A = self.A; T = VT
        A(f"s_mov_b32 s{S_T3}, 0")
        A(f"s_mov_b64 s[{S_E0}:{S_E0+1}], exec"); A(f"s_mov_b64 exec, {(1<<nl)-1}")
        A.label(label)
        A(f"global_load_dword v{T+9}, v{vaddr}, s[{S_WSP}:{S_WSP+1}] sc1")
        A("s_waitcnt vmcnt(0)")
        if expect_eq is None: A(f"v_cmp_ne_u32 vcc, 0, v{T+9}")
        else: A(f"v_cmp_le_u32 vcc, {expect_eq}, v{T+9}")
        A(f"s_add_u32 s{S_T3}, s{S_T3}, 1")
        A(f"s_cmp_ge_u32 s{S_T3}, {POLL_MAX}"); A(f"s_cbranch_scc1 {label}_x")
        A(f"s_cmp_eq_u64 vcc, exec"); A(f"s_cbranch_scc1 {label}_x")
        A("s_sleep 1"); A(f"s_branch {label}")
        A.label(label + "_x")
        A(f"s_mov_b64 exec, s[{S_E0}:{S_E0+1}]")
    def body(self):
        A = self.A; T = VT; VL = VLANE
        ACC2, HB, NH, DO = self.ACC2, self.HB, self.NH, self.DO
        A("s_waitcnt lgkmcnt(0)")
        for i in range(16, 32): self.w2_dma(i)
        A(f"v_and_b32 v{T}, 31, v{VL}"); A(f"v_lshrrev_b32 v{T+1}, 5, v{VL}")
        A(f"v_lshlrev_b32 v{T+2}, 4, v{T+1}"); A(f"v_add_u32 v{T+2}, v{T+2}, v{T}"); A(f"v_subrev_u32 v{T+2}, 16, v{T+2}"); A(f"v_lshlrev_b32 v{T+2}, 5, v{T+2}")
        A(f"v_lshlrev_b32 v{T+3}, 5, v{T+1}"); A(f"v_add_u32 v{T+3}, 1024, v{T+3}")
        A(f"v_cmp_gt_u32 vcc, 16, v{T}"); A("s_nop 1"); A(f"v_cndmask_b32 v{T+2}, v{T+2}, v{T+3}, vcc")
        A(f"s_lshl_b32 s{S_T0}, s{S_WV}, 3"); A(f"s_mul_i32 s{S_T0}, s{S_T0}, {KV_HEAD}"); A(f"s_add_u32 s{S_T0}, s{S_T0}, {WS_KV}")
        A(f"v_add_u32 v{self.KVA}, s{S_T0}, v{T+2}")
        for i in range(64): A(f"v_mov_b32 v{ACC2+i}, 0")
        for i in range(16, 32):
            A(f"s_waitcnt vmcnt({2*(31-i)})")
            self.w2_read(i)
        A("s_waitcnt lgkmcnt(0)")
        for i in range(32, 36): self.w2_dma(i)
        A(f"s_lshl_b32 s{self.HO}, s{self.TAU}, 2"); A(f"s_add_u32 s{self.HO}, s{self.HO}, s{S_WV}")
        A(f"s_lshl_b32 s{S_T0}, s{self.HO}, 6"); A(f"s_add_u32 s{S_T0}, s{S_T0}, {WS_FLAG}")
        A(f"v_lshlrev_b32 v{T+8}, 2, v{VL}"); A(f"v_add_u32 v{T+8}, s{S_T0}, v{T+8}")
        A(f"s_mul_i32 s{self.HO}, s{self.HO}, {36*2048}")
        A("s_waitcnt vmcnt(0)")
        for i in range(32, 36): self.w2_read(i)
        A.stamp(7)
        self.poll("K12_pollH", T+8, 8)
        A.stamp(8)
        def h_load(f):
            hb = HB + 4*(f % NH)
            if f % 4 == 0 and f > 0: A(f"s_add_u32 s{self.HO}, s{self.HO}, 4096")
            A(f"buffer_load_dwordx4 v[{hb}:{hb+3}], v{VL16}, s[{S_H}:{S_H+3}], s{self.HO} offen offset:{(f%4)*1024} sc1")
        for f in range(NH): h_load(f)
        A("s_waitcnt lgkmcnt(0)")
        nextf = NH
        for i in range(28):
            out_after = nextf - (2*i + 2)
            A(f"s_waitcnt vmcnt({min(63,out_after)})")
            for tb in range(2):
                hb = HB + 4*((2*i+tb) % NH)
                for nb in range(2):
                    a = ACC2 + 16*(2*nb+tb)
                    A(f"v_mfma_f32_32x32x16_bf16 v[{a}:{a+15}], {self.w2(i,nb)}, v[{hb}:{hb+3}], v[{a}:{a+15}]")
            for tb in range(2):
                if nextf < 56: h_load(nextf); nextf += 1
        A(f"v_add_u32 v{T+8}, 32, v{T+8}")
        self.poll("K12_pollQ", T+8, 4)
        A(f"s_lshl_b32 s{S_T0}, s{S_WV}, 9"); A(f"s_add_u32 s{S_T0}, s{S_T0}, {WS_KVCNT}")
        A(f"v_lshlrev_b32 v{T+8}, 6, v{VL}"); A(f"v_add_u32 v{T+8}, s{S_T0}, v{T+8}")
        self.poll("K12_pollKV", T+8, 8, expect_eq=16)
        for f in range(56, 72): h_load(f)
        KVF = HB + 4*8
        A(f"s_mov_b32 s{S_T1}, {KV_HEAD}")
        for h in range(8):
            A(f"global_load_dwordx4 v[{KVF+8*h}:{KVF+8*h+3}], v{self.KVA}, s[{S_WSP}:{S_WSP+1}] sc1")
            A(f"global_load_dwordx4 v[{KVF+8*h+4}:{KVF+8*h+7}], v{self.KVA}, s[{S_WSP}:{S_WSP+1}] offset:16 sc1")
            A(f"v_add_u32 v{self.KVA}, s{S_T1}, v{self.KVA}")
        A("s_waitcnt vmcnt(0)")
        for h in range(8):
            for i in range(4): A(f"v_cvt_pk_bf16_f32 v{KVF+4*h+i}, v{KVF+8*h+2*i}, v{KVF+8*h+2*i+1}")
        DO = KVF + 32
        A("s_nop 1")
        A(f"s_mov_b32 s{S_T1}, 0x358637bd")
        units = [(h, tb) for h in range(8) for tb in range(2)]
        for u, (h, tb) in enumerate(units):
            i = 28 + h
            hb = HB + 4*((2*i+tb) % NH)
            A(f"v_mfma_f32_32x32x16_bf16 v[{DO}:{DO+15}], v[{KVF+4*h}:{KVF+4*h+3}], v[{hb}:{hb+3}], 0")
            A("s_nop 7"); A("s_nop 7")
            A(f"v_add_f32 v{T}, s{S_T1}, v{DO}")
            A(f"v_rcp_f32 v{T}, v{T}")
            A("s_nop 0")
            for e in range(8): A(f"v_mul_f32 v{DO+8+e}, v{T}, v{DO+8+e}")
            for e in range(4): A(f"v_cvt_pk_bf16_f32 v{hb+e}, v{DO+8+2*e}, v{DO+8+2*e+1}")
            A("s_nop 1")
            for nb in range(2):
                a = ACC2 + 16*(2*nb+tb)
                A(f"v_mfma_f32_32x32x16_bf16 v[{a}:{a+15}], {self.w2(i,nb)}, v[{hb}:{hb+3}], v[{a}:{a+15}]")
        RS = 272; WSZ = 64*RS
        A("s_nop 7"); A("s_nop 7")
        A("s_barrier")
        A(f"v_and_b32 v{T}, 31, v{VL}"); A(f"v_mul_u32_u24 v{T}, {RS}, v{T}"); A(f"v_lshrrev_b32 v{T+1}, 5, v{VL}"); A(f"v_lshlrev_b32 v{T+1}, 4, v{T+1}"); A(f"v_add_u32 v{T}, v{T}, v{T+1}")
        A(f"s_mul_i32 s{S_T0}, s{S_WV}, {WSZ}"); A(f"v_add_u32 v{T}, s{S_T0}, v{T}")
        for nb in range(2):
            for tb in range(2):
                a = ACC2 + 16*(2*nb+tb)
                for q in range(4):
                    A(f"ds_write_b128 v{T}, v[{a+4*q}:{a+4*q+3}] offset:{tb*32*RS + nb*128 + q*32}")
        A(f"v_lshrrev_b32 v{T+2}, 3, v{VTID}"); A(f"v_and_b32 v{T+3}, 7, v{VTID}")
        A(f"s_lshl_b32 s{S_T0}, s{self.TAU}, 16"); A(f"s_lshl_b32 s{S_T1}, s{self.J}, 7"); A(f"s_add_u32 s{S_T0}, s{S_T0}, s{S_T1}")
        A(f"v_lshlrev_b32 v{T+4}, 10, v{T+2}"); A(f"v_lshlrev_b32 v{T+5}, 4, v{T+3}"); A(f"v_add_u32 v{T+4}, v{T+4}, v{T+5}")
        A(f"buffer_load_dwordx4 v[64:67], v{T+4}, s[{self.S_XX}:{self.S_XX+3}], s{S_T0} offen")
        A(f"s_add_u32 s{S_T1}, s{S_T0}, {32*1024}")
        A(f"buffer_load_dwordx4 v[68:71], v{T+4}, s[{self.S_XX}:{self.S_XX+3}], s{S_T1} offen")
        A("s_waitcnt lgkmcnt(0)"); A("s_barrier")
        A(f"v_mul_u32_u24 v{T+6}, {RS}, v{T+2}"); A(f"v_lshlrev_b32 v{T+7}, 5, v{T+3}"); A(f"v_add_u32 v{T+6}, v{T+6}, v{T+7}")
        for ps in range(2):
            for w in range(4):
                A(f"ds_read_b128 v[{96+8*w}:{96+8*w+3}], v{T+6} offset:{w*WSZ + ps*32*RS}")
                A(f"ds_read_b128 v[{96+8*w+4}:{96+8*w+7}], v{T+6} offset:{w*WSZ + ps*32*RS + 16}")
            A("s_waitcnt lgkmcnt(0)")
            for e in range(8):
                A(f"v_add_f32 v{96+e}, v{96+e}, v{104+e}"); A(f"v_add_f32 v{112+e}, v{112+e}, v{120+e}"); A(f"v_add_f32 v{96+e}, v{96+e}, v{112+e}")
            A("s_waitcnt vmcnt(1)")
            xb = 64 + 4*ps
            for e in range(4):
                A(f"v_lshlrev_b32 v{T+8}, 16, v{xb+e}"); A(f"v_and_b32 v{T+9}, 0xffff0000, v{xb+e}")
                A(f"v_add_f32 v{96+2*e}, v{96+2*e}, v{T+8}"); A(f"v_add_f32 v{96+2*e+1}, v{96+2*e+1}, v{T+9}")
                A(f"v_cvt_pk_bf16_f32 v{72+4*ps+e}, v{96+2*e}, v{96+2*e+1}")
            A(f"buffer_store_dwordx4 v[{72+4*ps}:{72+4*ps+3}], v{T+4}, s[{self.S_O}:{self.S_O+3}], s{S_T0 if ps == 0 else S_T1} offen")

def gen_k12():
    A = Asm()
    prologue_common(A)
    A(f"s_cmp_ge_u32 s{S_CP}, 2"); A("s_cbranch_scc1 K12_typeB")
    g2 = G2(A)
    for typ in ("A", "B"):
        if typ == "B": A.label("K12_typeB")
        g = G1(A, typ)
        g.prologue(); g.loop()
        A.stamp(4)
        g.epilogue(g2)
        if typ == "A": A("s_branch K12_g2")
    A.label("K12_g2")
    g2.body()
    A.dump_stamps(1, 8 if False else 8, S_WSP, S_WV, VT, S_T0) if False else None
    if STAMP:
        A("s_waitcnt vmcnt(0) lgkmcnt(0)")
        A(f"{STAMP_INS} s[60:61]")
        A("s_waitcnt lgkmcnt(0)")
        A(f"s_lshl_b32 s{S_T0}, s2, 2"); A(f"s_add_u32 s{S_T0}, s{S_T0}, s{S_WV}"); A(f"s_lshl_b32 s{S_T0}, s{S_T0}, 6")
        A(f"s_add_u32 s{S_T0}, s{S_T0}, {WS_STAMP + 65536}")
        A(f"v_mov_b32 v{VT}, s{S_T0}")
        for i in range(9):
            A(f"v_mov_b32 v{VT+1}, s{SB+2*i}")
            A(f"global_store_dword v{VT}, v{VT+1}, s[{S_WSP}:{S_WSP+1}] offset:{4*i}")
        A(f"v_mov_b32 v{VT+1}, s60")
        A(f"global_store_dword v{VT}, v{VT+1}, s[{S_WSP}:{S_WSP+1}] offset:36")
    A.label("K12_end")
    return A.text()

def kernel_block(name, body, vgpr, agpr, sgpr=102):
    return f""".globl {name}
.p2align 8
.type {name},@function
{name}:
{body}
  s_endpgm
""", f""".amdhsa_kernel {name}
  .amdhsa_next_free_vgpr {vgpr+agpr}
  .amdhsa_next_free_sgpr {sgpr}
  .amdhsa_accum_offset {vgpr}
  .amdhsa_group_segment_fixed_size 0
  .amdhsa_kernarg_size 80
  .amdhsa_user_sgpr_count 2
  .amdhsa_user_sgpr_kernarg_segment_ptr 1
  .amdhsa_system_sgpr_workgroup_id_x 1
.end_amdhsa_kernel
"""

def main(path):
    hdr = open("cdna_kernels/" + NAME + ".s.ref").read().split("; Override")[0]
    ks = [("k0_kernel", gen_k0(), 96, 0, 10240), ("k12_kernel", gen_k12(), 256, 256, 163840)]
    out = hdr
    for n, _, _, _, lds in ks:
        out += f"; @launch kernel={n} grid=(256,1,1) block=(256,1,1) lds={lds}\n"
    out += '.amdgcn_target "amdgcn-amd-amdhsa--gfx950"\n.text\n'
    descs = ""
    for n, body, v, a, lds in ks:
        c, d = kernel_block(n, body, v, a)
        out += c; descs += ".p2align 6\n" + d
    out += '.section .rodata,"a"\n' + descs
    open(path, "w").write(out)

if __name__ == "__main__":
    if "--stamp" in sys.argv:
        STAMP = True; sys.argv.remove("--stamp")
    if "--pstamp" in sys.argv:
        PSTAMP = True; sys.argv.remove("--pstamp")
    if "--cyc" in sys.argv:
        STAMP = True; STAMP_INS = "s_memtime"; sys.argv.remove("--cyc")
    main(sys.argv[1] if len(sys.argv) > 1 else "cdna_kernels/" + NAME + ".s")
```

```python
import sys
from gen2 import gen_k0 as gen_k0_v2
import gen2

NAME = "parallel_sum__linear_attn_block__glu_gated_bilinear__prompt"
WS_M, WS_R, WS_CS, WS_KV, KV_HEAD = 0, 8192, 16384, 65536, 1152
WS_FLAG = 65536 + 36864
WS_KVCNT = WS_FLAG + 8192
WS_H = 131072
H_BYTES = 32*4*36*2048
POLL_MAX = 200000
STAMP = False
STAMP_INS = 's_memrealtime'
WS_STAMP = 1 << 24
SB = 84
CORR_AT = 28
N_IN = 31
CAP = 5
SMODE = 'main'
ROT = 8
CODE_KB = 48

class Prog:
    def __init__(self): self.l = []; self.nvm = 0; self.ids = {}
    def __call__(self, s):
        if s is None: return
        if isinstance(s, tuple):
            if s[0] == "vm":
                self.l.append("  " + s[2]); self.nvm += 1
                if s[1] is not None: self.ids[s[1]] = self.nvm
            elif s[0] == "wait":
                last = max(self.ids[i] for i in s[1])
                n = self.nvm - last
                assert n <= 63, (s, n)
                self.l.append(f"  s_waitcnt vmcnt({n})" + (" " + s[2] if len(s) > 2 and s[2] else ""))
            else: raise ValueError(s)
        else:
            assert not ("buffer_" in s or "global_" in s), s
            self.l.append("  " + s)
    def vm(self, text, id=None): self(("vm", id, text))
    def wait(self, *ids): self(("wait", list(ids)))
    def label(self, s): self.l.append(s + ":")
    def text(self): return "\n".join(self.l)
    def stamp(self, i, mode="main"):
        if STAMP and (mode == SMODE or i == 0): self.l.append(f"  {STAMP_INS} s[{SB+2*i}:{SB+2*i+1}]")
    def reset_vm(self):
        self.ids = {}

def vr(b, n=1): return f"v{b}" if n == 1 else f"v[{b}:{b+n-1}]"
def ar(b, n=1): return f"a{b}" if n == 1 else f"a[{b}:{b+n-1}]"
def srd(A, d, lo, hi, size):
    A(f"s_mov_b32 s{d}, s{lo}"); A(f"s_and_b32 s{d+1}, s{hi}, 0xffff"); A(f"s_mov_b32 s{d+2}, {size}"); A(f"s_mov_b32 s{d+3}, 0x20000")
def srd_off(A, d, lo, hi, off, size):
    A(f"s_add_u32 s{d}, s{lo}, {off}"); A(f"s_addc_u32 s{d+1}, s{hi}, 0"); A(f"s_and_b32 s{d+1}, s{d+1}, 0xffff")
    if isinstance(off, int): A(f"s_mov_b32 s{d+2}, {size - off}")
    else: A(f"s_sub_u32 s{d+2}, {size}, {off}")
    A(f"s_mov_b32 s{d+3}, 0x20000")

X_BASE = 0; X_SLOT = 16384
W_BASE = 49152; W_SLOT = 20480; W_NS = 3
W2IN = W_BASE + W_NS*W_SLOT
NSL = 6
LDS_R = W2IN + 4*NSL*2048
LDS_KV = 0
DLAG = 5

ACC = 0; WF = 160; XF = 200; TRA = 216; XA = 221; VOW = 225; VOX = 230
VR = 234; VLANE = 236; VL16 = 237; VTID = 238; VDM = 239
VT = 240
VTR = 254; VTR1 = 255
AMF = 228; ACF = 236
def acc(blk, tb): return ACC + (blk*2+tb)*16

S_X = 4; S_W = 8; S_H = 28; S_WSP = 32
S_WV = 34; S_WM = 35; S_WN = 36; S_T = 37; S_IDX = 38
S_KW = 39; S_KH = 40; S_R30 = 41; S_R35 = 42; S_RH = 43; S_KX = 44; S_W1K = 45; S_W4K = 46; S_XB = 47
S_WD = 48; S_LB = 52; S_W2O = 53
S_T0 = 54; S_T1 = 55; S_T2 = 56; S_T3 = 57; S_T4 = 58; S_XO = 59
S_E0 = 60; S_E2 = 62
S_P = 64
P_X, P_WQ, P_WO, P_G, P_U, P_D, P_O = 64, 66, 68, 72, 74, 76, 78
S_HB = 80; S_I1 = 81; S_CP = 82; S_TAU = 83; S_J = 70; S_HO = 71
S_WO = 8; S_O = 12; S_XX = 16
S_C6 = 20

def w2row(i):
    if i < 16: return ("D", 256, 16*i)
    if i < 24: return ("D", 128, 1024 + 16*(i-16))
    if i < 28: return ("D", 64, 1536 + 16*(i-24))
    return ("O", 128, 16*(i-28))

class W2:
    def __init__(self, A): self.A = A
    def frag(self, ks, nb, W2V=192):
        f = ks*2 + nb
        return ar(4*f, 4) if f < 64 else vr(W2V + 4*(f-64), 4)
    def half(self, ks, nb, h, W2V=192):
        f = ks*2 + nb
        return ar(4*f + 2*h, 2) if f < 64 else vr(W2V + 4*(f-64) + 2*h, 2)
    def slot_off(self, i):
        return (i % NSL)*2048
    def D(self, i):
        kind, mul, const = w2row(i)
        s = S_WD if kind == "D" else S_WO
        sh = {256: 18, 128: 17, 64: 16}[mul]
        o = []
        for hf in range(2):
            o.append([f"s_lshl_b32 s{S_W2O}, s{S_WV}, {sh}", f"s_add_u32 s{S_W2O}, s{S_W2O}, {(const + 8*hf)*1024}"] if hf == 0 else [f"s_add_u32 s{S_W2O}, s{S_W2O}, 8192"])
            o.append(("dma", f"s_add_u32 m0, s{S_LB}, {self.slot_off(i) + hf*1024}", ("vm", f"w2_{i}_{hf}", f"buffer_load_dwordx4 v{VDM}, s[{s}:{s+3}], s{S_W2O} offen lds")))
        return o
    def R(self, i):
        o = self.slot_off(i)
        r = [[("wait", [f"w2_{i}_1"])]]
        for nb in range(2):
            va = VTR if nb == 0 else VTR1
            r.append([f"ds_read_b64_tr_b16 {self.half(i, nb, 0)}, v{va} offset:{o}", f"ds_read_b64_tr_b16 {self.half(i, nb, 1)}, v{va} offset:{o+1024}"])
        return r

def emit_items(A, items):
    for it in items:
        if isinstance(it, tuple) and it[0] == "dma":
            A(it[1]); A("s_nop 0"); A(it[2])
        else:
            for s in it: A(s)

def prologue_common(A):
    A("s_cmp_ge_u32 s2, 256"); A("s_cbranch_scc1 K12_end")
    A.stamp(0)
    A(f"s_load_dwordx16 s[{S_P}:{S_P+15}], s[0:1], 0")
    A(f"s_load_dwordx2 s[{S_WSP}:{S_WSP+1}], s[0:1], 72")
    A(f"v_and_b32 v{VLANE}, 63, v0")
    A(f"v_lshrrev_b32 v{VT}, 6, v0")
    A(f"v_mov_b32 v{VTID}, v0")
    A(f"v_lshlrev_b32 v{VL16}, 4, v{VLANE}")
    A(f"v_readfirstlane_b32 s{S_WV}, v{VT}")
    A(f"s_and_b32 s{S_T0}, s2, 7"); A(f"s_lshr_b32 s{S_T1}, s2, 3")
    A(f"s_and_b32 s{S_T2}, s{S_T1}, 7"); A(f"s_lshr_b32 s{S_CP}, s{S_T1}, 3")
    A(f"s_lshr_b32 s{S_T}, s{S_T0}, 2"); A(f"s_lshl_b32 s{S_T}, s{S_T}, 3"); A(f"s_add_u32 s{S_T}, s{S_T}, s{S_T2}")
    A(f"s_and_b32 s{S_IDX}, s{S_T0}, 3"); A(f"s_lshl_b32 s{S_IDX}, s{S_IDX}, 1")
    A(f"s_and_b32 s{S_T3}, s{S_CP}, 1"); A(f"s_add_u32 s{S_IDX}, s{S_IDX}, s{S_T3}")
    A(f"s_and_b32 s{S_TAU}, s{S_T1}, 3"); A(f"s_lshl_b32 s{S_T3}, s{S_T0}, 2"); A(f"s_add_u32 s{S_TAU}, s{S_TAU}, s{S_T3}")
    A(f"s_lshr_b32 s{S_T4}, s{S_T1}, 2")
    A(f"s_add_u32 s{S_T0}, s{S_CP}, s{S_T2}"); A(f"s_and_b32 s{S_T0}, s{S_T0}, 3"); A(f"s_lshl_b32 s{S_T0}, s{S_T0}, 1")
    A(f"s_lshr_b32 s{S_T1}, s{S_T2}, 2"); A(f"s_add_u32 s{S_T0}, s{S_T0}, s{S_T1}")
    A(f"s_lshl_b32 s{S_KW}, s{S_T0}, 6")
    if ROT == 0: A(f"s_mov_b32 s{S_KW}, 0")
    elif ROT == 2: A(f"s_and_b32 s{S_KW}, s{S_KW}, 256")
    elif ROT == 4: A(f"s_and_b32 s{S_KW}, s{S_KW}, 384")
    A(f"s_lshr_b32 s{S_WM}, s{S_WV}, 1"); A(f"s_and_b32 s{S_WN}, s{S_WV}, 1")
    t0, t1, t3, t4 = VT, VT+1, VT+3, VT+4
    A(f"v_lshrrev_b32 v{t0}, 3, v{VLANE}"); A(f"v_and_b32 v{t1}, 7, v{VLANE}")
    A(f"v_lshrrev_b32 v{t3}, 4, v{VLANE}"); A(f"v_xor_b32 v{t3}, v{t1}, v{t3}"); A(f"v_lshlrev_b32 v{t3}, 4, v{t3}")
    A(f"v_lshlrev_b32 v{t4}, 10, v{t0}"); A(f"v_add_u32 v{VOX}, v{t3}, v{t4}")
    A(f"v_xor_b32 v{VOX+1}, 64, v{VOX}"); A(f"v_add_u32 v{VOX+1}, {8*1024}, v{VOX+1}")
    A(f"v_add_u32 v{VOX+2}, {16*1024}, v{VOX}"); A(f"v_add_u32 v{VOX+3}, {16*1024}, v{VOX+1}")
    A(f"s_lshl_b32 s{S_XB}, s{S_T}, 7"); A(f"s_lshl_b32 s{S_T0}, s{S_WV}, 5"); A(f"s_add_u32 s{S_XB}, s{S_XB}, s{S_T0}"); A(f"s_lshl_b32 s{S_XB}, s{S_XB}, 10")
    A(f"s_lshl_b32 s{S_KX}, s{S_KW}, 1")
    A(f"s_and_b32 s{S_T0}, s{S_WV}, 1"); A(f"s_lshl_b32 s{S_T0}, s{S_T0}, 4"); A(f"s_add_u32 s{S_KH}, s{S_KW}, s{S_T0}")
    A(f"s_lshl_b32 s{S_T0}, s{S_WV}, 3"); A(f"s_add_u32 s{S_KW}, s{S_KW}, s{S_T0}")
    A(f"s_lshl_b32 s{S_W1K}, s{S_WV}, 10"); A(f"s_lshl_b32 s{S_W4K}, s{S_WV}, 12")
    A("s_waitcnt lgkmcnt(0)")
    A(f"s_mov_b32 s{S_J}, s{S_T4}")
    srd(A, S_X, P_X, P_X+1, 2048*1024)

class G1:
    def __init__(self, A, typ):
        self.A = A; self.typ = typ; self.w2 = W2(A)
        self.kinds = ["gu","gu","gu","gu","q"] if typ == "A" else ["kv","kv","gu","gu","guh"]
        if typ == "A": self.strides = [3584,3584,3584,3584,3072]; self.swz = ["g","u","g","u","q"]
        else: self.strides = [3072,3072,3584,3584,3584]; self.swz = ["g","u","g","u","h"]
    def Wg(self, h):
        o = []
        if h > 0:
            o.append([f"s_add_u32 s{S_KW}, s{S_KW}, 32", f"s_and_b32 s{S_KW}, s{S_KW}, 511"])
            if self.typ == "B": o.append([f"s_add_u32 s{S_KH}, s{S_KH}, 32", f"s_and_b32 s{S_KH}, s{S_KH}, 511"])
        o.append([f"s_mul_i32 s{S_R30}, s{S_KW}, 3072", f"s_mul_i32 s{S_R35}, s{S_KW}, 3584"])
        if self.typ == "B": o.append([f"s_mul_i32 s{S_RH}, s{S_KH}, 3584"])
        for rho in range(5):
            so = S_RH if self.swz[rho] == "h" else (S_R30 if self.strides[rho] == 3072 else S_R35)
            o.append(("dma", f"s_add_u32 m0, s{S_W1K}, {W_BASE + (h % W_NS)*W_SLOT + rho*4096}",
                      ("vm", f"W{h}_{rho}", f"buffer_load_dwordx4 v{VOW+rho}, s[{S_W+4*rho}:{S_W+4*rho+3}], s{so} offen lds")))
        return o
    def Xg(self, sg):
        o = []
        if sg > 0: o.append([f"s_add_u32 s{S_KX}, s{S_KX}, 128", f"s_and_b32 s{S_KX}, s{S_KX}, 1023"])
        o.append([f"s_add_u32 s{S_XO}, s{S_XB}, s{S_KX}"])
        for j in range(4):
            o.append(("dma", f"s_add_u32 m0, s{S_W4K}, {X_BASE + (sg % 3)*X_SLOT + j*1024}",
                      ("vm", f"X{sg}_{j}", f"buffer_load_dwordx4 v{VOX+j}, s[{S_X}:{S_X+3}], s{S_XO} offen lds")))
        return o
    def reads(self, s):
        par = s & 1; kk = s & 3; sg = s >> 2; h = s >> 1; second = s & 1
        xo = (sg % 3)*X_SLOT
        o = [f"ds_read_b128 v[{XF+8*par}:{XF+8*par+3}], v{XA+kk} offset:{xo}", f"ds_read_b128 v[{XF+8*par+4}:{XF+8*par+7}], v{XA+kk} offset:{xo+4096}"]
        for blk, kd in enumerate(self.kinds):
            b = WF + 20*par + 4*blk
            if kd == "guh": o1, o2 = (1024 if second else 0), 256
            else: o1, o2 = (2048 if second else 0), 512
            o1 += (h % W_NS)*W_SLOT
            o.append(f"ds_read_b64_tr_b16 v[{b}:{b+1}], v{TRA+blk} offset:{o1}")
            o.append(f"ds_read_b64_tr_b16 v[{b+2}:{b+3}], v{TRA+blk} offset:{o1+o2}")
        return o
    def mfmas(self, s, order=None):
        par = s & 1; o = []
        for blk in (order or range(5)):
            kd = self.kinds[blk]
            wf = f"v[{WF+20*par+4*blk}:{WF+20*par+4*blk+3}]"
            for tb in range(2):
                xf = f"v[{XF+8*par+4*tb}:{XF+8*par+4*tb+3}]"; a = acc(blk, tb)
                c = "0" if s == 0 else f"v[{a}:{a+15}]"
                if kd == "kv": o.append(f"v_mfma_f32_32x32x16_bf16 v[{a}:{a+15}], {xf}, {wf}, {c}")
                else: o.append(f"v_mfma_f32_32x32x16_bf16 v[{a}:{a+15}], {wf}, {xf}, {c}")
        return o
    def corr(self):
        o = []
        for blk in range(5):
            for tb in range(2):
                a = acc(blk, tb); cf = ar(ACF+4*blk, 4); mf = ar(AMF+4*tb, 4)
                if self.kinds[blk] == "kv": o.append(f"v_mfma_f32_32x32x16_bf16 v[{a}:{a+15}], {mf}, {cf}, v[{a}:{a+15}]")
                else: o.append(f"v_mfma_f32_32x32x16_bf16 v[{a}:{a+15}], {cf}, {mf}, v[{a}:{a+15}]")
        return o

    def prologue(self):
        A, typ, kinds = self.A, self.typ, self.kinds
        SZQ, SZG = 512*3072, 512*3584
        emit_items(A, self.Xg(0))
        if typ == "A":
            A(f"s_lshl_b32 s{S_T0}, s{S_IDX}, 8")
            srd_off(A, S_W+0, P_G, P_G+1, f"s{S_T0}", SZG); srd_off(A, S_W+4, P_U, P_U+1, f"s{S_T0}", SZG)
            A(f"s_add_u32 s{S_T0}, s{S_T0}, 128")
            srd_off(A, S_W+8, P_G, P_G+1, f"s{S_T0}", SZG); srd_off(A, S_W+12, P_U, P_U+1, f"s{S_T0}", SZG)
            A(f"s_lshl_b32 s{S_T0}, s{S_IDX}, 7")
            srd_off(A, S_W+16, P_WQ, P_WQ+1, f"s{S_T0}", SZQ)
        else:
            A(f"s_lshl_b32 s{S_T0}, s{S_IDX}, 7"); A(f"s_add_u32 s{S_T0}, s{S_T0}, 1024")
            srd_off(A, S_W+0, P_WQ, P_WQ+1, f"s{S_T0}", SZQ)
            A(f"s_add_u32 s{S_T0}, s{S_T0}, 1024")
            srd_off(A, S_W+4, P_WQ, P_WQ+1, f"s{S_T0}", SZQ)
            A(f"s_lshl_b32 s{S_T0}, s{S_IDX}, 7"); A(f"s_add_u32 s{S_T0}, s{S_T0}, {16*128}")
            srd_off(A, S_W+8, P_G, P_G+1, f"s{S_T0}", SZG); srd_off(A, S_W+12, P_U, P_U+1, f"s{S_T0}", SZG)
            A(f"s_lshr_b32 s{S_T0}, s{S_IDX}, 1"); A(f"s_add_u32 s{S_T0}, s{S_T0}, 24"); A(f"s_lshl_b32 s{S_T0}, s{S_T0}, 7")
            A(f"s_and_b32 s{S_T1}, s{S_IDX}, 1"); A(f"s_lshl_b32 s{S_T1}, s{S_T1}, 6"); A(f"s_add_u32 s{S_T0}, s{S_T0}, s{S_T1}")
            A(f"s_cmp_ge_u32 s{S_WV}, 2")
            A(f"s_cselect_b32 s{S_T2}, s{P_U}, s{P_G}"); A(f"s_cselect_b32 s{S_T3}, s{P_U+1}, s{P_G+1}")
            srd_off(A, S_W+16, S_T2, S_T3, f"s{S_T0}", SZG)
        t0, t1, t2, t3, t4 = VT, VT+1, VT+2, VT+3, VT+4
        A(f"v_lshrrev_b32 v{t0}, 3, v{VLANE}"); A(f"v_and_b32 v{t1}, 7, v{VLANE}")
        A(f"v_lshrrev_b32 v{t2}, 4, v{VLANE}"); A(f"v_and_b32 v{t2}, 1, v{t2}")
        done = {}
        for rho in range(5):
            key = (self.swz[rho], self.strides[rho])
            if key in done:
                A(f"v_mov_b32 v{VOW+rho}, v{VOW+done[key]}"); continue
            done[key] = rho
            if self.swz[rho] == "h":
                A(f"v_lshrrev_b32 v{t3}, 2, v{VLANE}"); A(f"v_and_b32 v{t4}, 3, v{VLANE}")
                A(f"s_lshr_b32 s{S_T0}, s{S_WV}, 1"); A(f"s_lshl_b32 s{S_T0}, s{S_T0}, 1")
                A(f"v_xor_b32 v{t4}, s{S_T0}, v{t4}")
                A(f"v_mul_u32_u24 v{t3}, 3584, v{t3}"); A(f"v_lshlrev_b32 v{t4}, 4, v{t4}"); A(f"v_add_u32 v{VOW+rho}, v{t3}, v{t4}")
            else:
                if self.swz[rho] == "q": A(f"v_lshlrev_b32 v{t3}, 2, v{t2}")
                else:
                    A(f"v_lshlrev_b32 v{t3}, 1, v{t2}")
                    if self.swz[rho] == "u": A(f"v_or_b32 v{t3}, 4, v{t3}")
                A(f"v_xor_b32 v{t3}, v{t1}, v{t3}"); A(f"v_lshlrev_b32 v{t3}, 4, v{t3}")
                A(f"v_mul_u32_u24 v{t4}, {self.strides[rho]}, v{t0}"); A(f"v_add_u32 v{VOW+rho}, v{t3}, v{t4}")
        emit_items(A, self.Wg(0)); emit_items(A, self.Wg(1))
        A.stamp(1)
        A(f"v_lshlrev_b32 v{t3}, 2, v{t2}"); A(f"v_xor_b32 v{t3}, v{t1}, v{t3}"); A(f"v_lshlrev_b32 v{t3}, 4, v{t3}")
        A(f"v_lshlrev_b32 v{t4}, 10, v{t0}"); A(f"v_add_u32 v{VDM}, v{t3}, v{t4}")
        A(f"s_lshl_b32 s{S_T0}, s{S_J}, 7")
        srd_off(A, S_WD, P_D, P_D+1, f"s{S_T0}", 1792*1024)
        A(f"s_mul_i32 s{S_LB}, s{S_WV}, {NSL*2048}"); A(f"s_add_u32 s{S_LB}, s{S_LB}, {W2IN}")
        srd_wo_done = False
        VM = WF+20; VCS = WF+22; VCS2 = WF+27; VRB = WF+32
        A(f"v_and_b32 v{t0}, 31, v{VLANE}")
        A(f"s_lshl_b32 s{S_T0}, s{S_T}, 7"); A(f"s_lshl_b32 s{S_T1}, s{S_WM}, 6"); A(f"s_add_u32 s{S_T0}, s{S_T0}, s{S_T1}")
        A(f"v_add_u32 v{t1}, s{S_T0}, v{t0}"); A(f"v_lshlrev_b32 v{t1}, 2, v{t1}")
        wsp = f"s[{S_WSP}:{S_WSP+1}]"
        A.vm(f"global_load_dword v{VM}, v{t1}, {wsp}"); A.vm(f"global_load_dword v{VM+1}, v{t1}, {wsp} offset:128")
        A(f"v_add_u32 v{t2}, {WS_R}, v{t1}")
        A.vm(f"global_load_dword v{VR}, v{t2}, {wsp}"); A.vm(f"global_load_dword v{VR+1}, v{t2}, {wsp} offset:128")
        A(f"v_and_b32 v{t1}, 15, v{t0}"); A(f"v_lshrrev_b32 v{t2}, 4, v{t0}")
        for blk, kd in enumerate(kinds):
            if kd in ("gu", "guh"):
                if typ == "A":
                    if blk == 0:
                        A(f"s_lshl_b32 s{S_T0}, s{S_IDX}, 1"); A(f"s_add_u32 s{S_T0}, s{S_T0}, s{S_WN}"); A(f"s_lshl_b32 s{S_T0}, s{S_T0}, 6"); A(f"s_add_u32 s{S_T0}, s{S_T0}, 1536")
                        A(f"v_mul_u32_u24 v{t3}, 1792, v{t2}"); A(f"v_add_u32 v{t3}, v{t3}, v{t1}"); A(f"v_add_u32 v{t3}, s{S_T0}, v{t3}")
                        A(f"v_lshlrev_b32 v{t3}, 2, v{t3}"); A(f"v_add_u32 v{t3}, {WS_CS}, v{t3}"); A(f"v_add_u32 v{t4}, 20480, v{t3}")
                    A.vm(f"global_load_dword v{VCS+blk}, v{t3}, {wsp} offset:{64*blk}"); A.vm(f"global_load_dword v{VCS2+blk}, v{t4}, {wsp} offset:{64*blk}")
                    continue
                elif kd == "gu":
                    A(f"s_add_u32 s{S_T0}, s{S_IDX}, 16"); A(f"s_lshl_b32 s{S_T0}, s{S_T0}, 6"); A(f"s_lshl_b32 s{S_T1}, s{S_WN}, 5"); A(f"s_add_u32 s{S_T0}, s{S_T0}, s{S_T1}"); A(f"s_add_u32 s{S_T0}, s{S_T0}, {16*(blk-2) + 1536}")
                else:
                    A(f"s_lshr_b32 s{S_T0}, s{S_IDX}, 1"); A(f"s_add_u32 s{S_T0}, s{S_T0}, 24"); A(f"s_lshl_b32 s{S_T0}, s{S_T0}, 6")
                    A(f"s_and_b32 s{S_T1}, s{S_IDX}, 1"); A(f"s_lshl_b32 s{S_T1}, s{S_T1}, 1"); A(f"s_add_u32 s{S_T1}, s{S_T1}, s{S_WN}"); A(f"s_lshl_b32 s{S_T1}, s{S_T1}, 4")
                    A(f"s_add_u32 s{S_T0}, s{S_T0}, s{S_T1}"); A(f"s_add_u32 s{S_T0}, s{S_T0}, 1536")
                A(f"v_mul_u32_u24 v{t3}, 1792, v{t2}"); A(f"v_add_u32 v{t3}, v{t3}, v{t1}"); A(f"v_add_u32 v{t3}, s{S_T0}, v{t3}")
            elif kd == "q":
                A(f"s_lshl_b32 s{S_T0}, s{S_IDX}, 6"); A(f"s_lshl_b32 s{S_T1}, s{S_WN}, 5"); A(f"s_add_u32 s{S_T0}, s{S_T0}, s{S_T1}")
                A(f"v_add_u32 v{t3}, s{S_T0}, v{t0}")
            else:
                A(f"s_lshl_b32 s{S_T0}, s{S_IDX}, 6"); A(f"s_lshl_b32 s{S_T1}, s{S_WN}, 5"); A(f"s_add_u32 s{S_T0}, s{S_T0}, s{S_T1}"); A(f"s_add_u32 s{S_T0}, s{S_T0}, {512 + 16*blk}")
                A(f"v_lshlrev_b32 v{t3}, 9, v{t2}"); A(f"v_add_u32 v{t3}, v{t3}, v{t1}"); A(f"v_add_u32 v{t3}, s{S_T0}, v{t3}")
            A(f"v_lshlrev_b32 v{t3}, 2, v{t3}"); A(f"v_add_u32 v{t3}, {WS_CS}, v{t3}")
            A.vm(f"global_load_dword v{VCS+blk}, v{t3}, {wsp}")
            A(f"v_add_u32 v{t3}, 20480, v{t3}")
            A.vm(f"global_load_dword v{VCS2+blk}, v{t3}, {wsp}")
        if typ == "B":
            A(f"s_lshl_b32 s{S_T0}, s{S_T}, 7"); A(f"v_add_u32 v{t3}, s{S_T0}, v{VTID}"); A(f"v_lshlrev_b32 v{t3}, 2, v{t3}"); A(f"v_add_u32 v{t3}, {WS_R}, v{t3}")
            A.vm(f"global_load_dword v{VRB}, v{t3}, {wsp}")
        A.vm("s_nop 0", id="small_end") if False else None
        self.small_last = A.nvm; A.ids["small"] = A.nvm
        srd_off(A, S_H, S_WSP, S_WSP+1, WS_H, WS_H + H_BYTES)
        G, p, r, c = t0, t1, t2, t3
        A(f"v_lshrrev_b32 v{G}, 4, v{VLANE}"); A(f"v_and_b32 v{G}, 1, v{G}")
        A(f"v_lshrrev_b32 v{p}, 5, v{VLANE}")
        A(f"v_and_b32 v{r}, 15, v{VLANE}"); A(f"v_lshrrev_b32 v{r}, 2, v{r}")
        A(f"v_and_b32 v{c}, 3, v{VLANE}")
        k_, rb, u1, u2 = t4, t4+1, t4+2, t4+3
        A(f"v_lshlrev_b32 v{k_}, 3, v{p}"); A(f"v_add_u32 v{k_}, v{k_}, v{r}")
        A(f"v_lshrrev_b32 v{rb}, 1, v{r}"); A(f"v_and_b32 v{rb}, 1, v{rb}")
        for blk, kd in enumerate(kinds):
            d = TRA + blk
            if typ == "A" and kd == "gu" and blk > 0:
                A(f"v_xor_b32 v{d}, {blk*32}, v{TRA}"); continue
            if typ == "B" and blk in (1, 3):
                A(f"v_xor_b32 v{d}, 32, v{d-1}"); continue
            if kd == "guh":
                A(f"v_lshrrev_b32 v{u1}, 1, v{c}"); A(f"s_lshl_b32 s{S_T0}, s{S_WN}, 1"); A(f"v_add_u32 v{u1}, s{S_T0}, v{u1}")
                A(f"v_lshlrev_b32 v{u2}, 1, v{G}"); A(f"v_xor_b32 v{u1}, v{u1}, v{u2}"); A(f"v_lshlrev_b32 v{u1}, 4, v{u1}")
                A(f"v_lshlrev_b32 v{u2}, 6, v{k_}"); A(f"v_add_u32 v{u1}, v{u1}, v{u2}")
                A(f"v_lshlrev_b32 v{u2}, 11, v{G}"); A(f"v_add_u32 v{u1}, v{u1}, v{u2}")
                A(f"v_add_u32 v{u1}, {W_BASE + 4*4096}, v{u1}")
            else:
                if kd == "q":
                    A(f"s_lshl_b32 s{S_T0}, s{S_WN}, 1"); A(f"v_add_u32 v{u1}, s{S_T0}, v{G}")
                elif typ == "A": A(f"v_mov_b32 v{u1}, 0")
                else:
                    A(f"s_lshl_b32 s{S_T0}, s{S_WN}, 1"); A(f"v_mov_b32 v{u1}, s{S_T0}")
                A(f"v_lshlrev_b32 v{u1}, 1, v{u1}"); A(f"v_lshrrev_b32 v{u2}, 1, v{c}"); A(f"v_add_u32 v{u1}, v{u1}, v{u2}")
                if kd == "q": A(f"v_lshlrev_b32 v{u2}, 2, v{rb}")
                else:
                    A(f"v_lshlrev_b32 v{u2}, 1, v{rb}"); A(f"v_lshlrev_b32 v{d}, 2, v{G}"); A(f"v_or_b32 v{u2}, v{u2}, v{d}")
                A(f"v_xor_b32 v{u1}, v{u1}, v{u2}"); A(f"v_lshlrev_b32 v{u1}, 4, v{u1}")
                A(f"v_lshlrev_b32 v{u2}, 7, v{k_}"); A(f"v_add_u32 v{u1}, v{u1}, v{u2}")
                if kd == "q": A(f"v_add_u32 v{u1}, {W_BASE + 4*4096}, v{u1}")
                else:
                    if typ == "A":
                        A(f"s_lshl_b32 s{S_T0}, s{S_WN}, 13"); A(f"s_add_u32 s{S_T0}, s{S_T0}, {W_BASE}")
                    else: A(f"s_mov_b32 s{S_T0}, {W_BASE + (0 if kd == 'kv' else 2*4096)}")
                    A(f"v_lshlrev_b32 v{u2}, 12, v{G}"); A(f"v_add_u32 v{u1}, v{u1}, v{u2}"); A(f"v_add_u32 v{u1}, s{S_T0}, v{u1}")
            A(f"v_and_b32 v{u2}, 1, v{c}"); A(f"v_lshlrev_b32 v{u2}, 3, v{u2}"); A(f"v_add_u32 v{d}, v{u1}, v{u2}")
        A(f"v_lshlrev_b32 v{u1}, 2, v{p}"); A(f"v_add_u32 v{u1}, v{u1}, v{r}"); A(f"v_lshlrev_b32 v{u1}, 7, v{u1}")
        A(f"v_lshlrev_b32 v{u2}, 1, v{G}"); A(f"v_lshrrev_b32 v{VTR}, 1, v{c}"); A(f"v_add_u32 v{u2}, v{u2}, v{VTR}")
        A(f"v_lshlrev_b32 v{VTR}, 2, v{rb}"); A(f"v_xor_b32 v{u2}, v{u2}, v{VTR}"); A(f"v_lshlrev_b32 v{u2}, 4, v{u2}"); A(f"v_add_u32 v{u1}, v{u1}, v{u2}")
        A(f"v_and_b32 v{u2}, 1, v{c}"); A(f"v_lshlrev_b32 v{u2}, 3, v{u2}"); A(f"v_add_u32 v{u1}, v{u1}, v{u2}")
        A(f"v_add_u32 v{VTR}, s{S_LB}, v{u1}"); A(f"v_xor_b32 v{VTR1}, 64, v{VTR}")
        A(f"v_and_b32 v{u1}, 31, v{VLANE}"); A(f"s_lshl_b32 s{S_T0}, s{S_WM}, 6"); A(f"v_add_u32 v{u1}, s{S_T0}, v{u1}")
        A(f"v_lshrrev_b32 v{u2}, 1, v{u1}"); A(f"v_and_b32 v{u2}, 7, v{u2}"); A(f"v_xor_b32 v{u2}, v{u2}, v{p}"); A(f"v_lshlrev_b32 v{u2}, 4, v{u2}")
        A(f"v_lshlrev_b32 v{u1}, 7, v{u1}"); A(f"v_add_u32 v{u1}, v{u1}, v{u2}")
        for kk in range(4): A(f"v_xor_b32 v{XA+kk}, {kk*32}, v{u1}")
        A.stamp(2)
        A.wait("X0_3", "W0_4")
        A("s_barrier")
        A.stamp(3)
        for s in self.reads(0): A(s)
        tt = VT; b = VT + 2
        items = [[("wait", ["small"])],
                 [f"v_cmp_gt_u32 vcc, 32, v{VLANE}", "s_nop 1"]]
        for tb in range(2):
            items += [[f"v_cndmask_b32 v{tt}, 0, v{VM+tb}, vcc"], [f"v_cvt_pk_bf16_f32 v{b}, v{tt}, v{tt}"],
                      [f"v_and_b32 v{tt+1}, 0xffff0000, v{b}"], [f"v_sub_f32 v{tt+1}, v{tt}, v{tt+1}"],
                      [f"v_cvt_pk_bf16_f32 v{b+1}, v{tt+1}, 0"],
                      [f"v_accvgpr_write_b32 a{AMF+4*tb}, v{b}"], [f"v_accvgpr_write_b32 a{AMF+4*tb+1}, v{b+1}"],
                      [f"v_accvgpr_write_b32 a{AMF+4*tb+2}, 0"], [f"v_accvgpr_write_b32 a{AMF+4*tb+3}, 0"]]
        for blk in range(5):
            items += [[f"v_add_f32 v{tt}, v{VCS+blk}, v{VCS2+blk}"], [f"v_cndmask_b32 v{tt}, 0, v{tt}, vcc"], [f"v_sub_f32 v{tt}, 0, v{tt}"],
                      [f"v_cvt_pk_bf16_f32 v{b+1}, v{tt}, 0"], [f"v_lshlrev_b32 v{tt+1}, 16, v{b+1}"], [f"v_sub_f32 v{tt+1}, v{tt}, v{tt+1}"],
                      [f"v_cvt_pk_bf16_f32 v{b}, v{tt}, v{tt+1}"],
                      [f"v_accvgpr_write_b32 a{ACF+4*blk}, v{b}"], [f"v_accvgpr_write_b32 a{ACF+4*blk+1}, v{b+1}"],
                      [f"v_accvgpr_write_b32 a{ACF+4*blk+2}, 0"], [f"v_accvgpr_write_b32 a{ACF+4*blk+3}, 0"]]
        if typ == "B":
            items += [[f"v_lshlrev_b32 v{tt}, 2, v{VTID}"], [f"v_add_u32 v{tt}, {LDS_R}, v{tt}"],
                      [f"v_cmp_gt_u32 vcc, 128, v{VTID}", f"s_and_saveexec_b64 s[{S_E0}:{S_E0+1}], vcc", f"ds_write_b32 v{tt}, v{VRB}", f"s_mov_b64 exec, s[{S_E0}:{S_E0+1}]"]]
        self.rank1_items = items

    def loop(self):
        A = self.A
        self.loop_start = len(A.l)
        steps = []
        for s in range(32):
            if s == CORR_AT: steps.append(("c", None))
            steps.append(("k", s))
        order_last = [b for b, kd in enumerate(self.kinds) if kd in ("gu","guh")] + [b for b, kd in enumerate(self.kinds) if kd not in ("gu","guh")]
        idx_of = {st: i for i, st in enumerate(steps)}
        def at(s, g=0): return (idx_of[("k", s)], g)
        flex = []
        def add(pos, items):
            for it in items: flex.append((pos, it))
        add(at(0), self.Wg(2)); add(at(0), self.Xg(1)); add(at(1, 1), self.Xg(2))
        for h in range(1, 14): add(at(2*h-1, 1), self.Wg(h+2))
        for sg in range(1, 6): add(at(4*sg-1, 1), self.Xg(sg+2))
        self.w2_done_R = []
        for i in range(N_IN):
            if i == 28: add(at(min(i+1, 31)), [["__WOSRD__"]])
            add(at(min(i+1, 31)), self.w2.D(i))
            if i + 1 + DLAG <= 31:
                add(at(i+1+DLAG), self.w2.R(i)); self.w2_done_R.append(i)
        flex.sort(key=lambda x: x[0])
        gaps_all = []
        pending = list(flex)
        for si, st in enumerate(steps):
            gaps = [[] for _ in range(10)]
            head = []
            if st[0] == "k":
                s = st[1]
                M = self.mfmas(s, order_last if s == 31 else None)
                head = ["s_waitcnt lgkmcnt(0)"]
                odd = s & 1
                if odd:
                    h = (s + 1)//2
                    if h <= 15:
                        ids = [f"W{h}_4"] + ([f"X{h//2}_3"] if h % 2 == 0 else [])
                        gaps[0] += [("wait", ids), "s_barrier"]
                    else:
                        gaps[0] += ["s_barrier"]
                nxt = s + 1
                if nxt < 32:
                    rd = self.reads(nxt)
                    g0 = 1 if odd else 0
                    for i, x in enumerate(rd): gaps[g0 + i//2].append(x)
            else:
                M = self.corr()
            gi = 0
            rest = []
            blocked = False
            for (pos, it) in pending:
                if blocked or pos[0] > si:
                    rest.append((pos, it)); blocked = blocked or False; continue
                g = max(gi, pos[1] if pos[0] == si else 0)
                need = 2 if (isinstance(it, tuple) and it[0] == "dma") else len(it)
                while g < 10 and len(gaps[g]) + need > CAP: g += 1
                if g >= 10:
                    rest.append((pos, it)); blocked = True; continue
                if isinstance(it, tuple) and it[0] == "dma":
                    gaps[g].append(it[1]); gaps[g].append("__NOP__"); gaps[g].append(it[2]); gi = g + 1
                else:
                    gaps[g] += it; gi = g
            pending = rest
            for g in gaps:
                while "__NOP__" in g:
                    i = g.index("__NOP__")
                    cand = [j for j in range(i-1) if isinstance(g[j], str) and g[j].startswith("ds_read")]
                    if cand:
                        x = g.pop(cand[-1]); i -= 1; g[i] = x
                    else: g[i] = "s_nop 0"
            for x in head: A(x)
            for i in range(10):
                A(M[i])
                for x in gaps[i]:
                    if x == "__WOSRD__":
                        assert "W15_4" in A.ids
                        A(f"s_lshl_b32 s{S_T0}, s{S_J}, 7")
                        srd_off(A, S_WO, P_WO, P_WO+1, f"s{S_T0}", 512*1024)
                    else: A(x)
        assert not pending, pending[:3]
        txt = A.l
        for i in range(N_IN - NSL):
            rd = [n for n, x in enumerate(txt) if n > self.loop_start and "ds_read_b64_tr_b16 a[%d:" % (8*i+6) in x]
            assert rd, i
            pos_r = rd[-1]
            kind, mul, const = w2row(i+NSL)
            dm = [n for n, x in enumerate(txt) if n > pos_r - 400 and n > self.loop_start and ("s_add_u32 s%d, s%d, %d" % (S_W2O, S_W2O, const*1024)) in x and "s_lshl_b32 s%d" % S_W2O in txt[n-1]]
            dm = [n for n in dm if n > pos_r]
            assert dm, (i, pos_r)
            assert any("lgkmcnt(0)" in x for x in txt[pos_r:dm[0]]), ("no lgkm wait", i)

    def flag_store(self, slot_imm, FA, ONE):
        A = self.A
        FA, ONE = VT+4, VT+5
        A(f"v_mov_b32 v{ONE}, 1")
        A(f"s_lshl_b32 s{S_T0}, s{S_T}, 1"); A(f"s_add_u32 s{S_T0}, s{S_T0}, s{S_WM}"); A(f"s_lshl_b32 s{S_T0}, s{S_T0}, 2")
        A(f"s_lshr_b32 s{S_T1}, s{S_IDX}, 1"); A(f"s_add_u32 s{S_T0}, s{S_T0}, s{S_T1}"); A(f"s_lshl_b32 s{S_T0}, s{S_T0}, 4")
        A(f"s_lshl_b32 s{S_T1}, s{S_I1}, 1"); A(f"s_add_u32 s{S_T0}, s{S_T0}, s{S_T1}"); A(f"s_add_u32 s{S_T0}, s{S_T0}, s{S_WN}")
        A(f"s_add_u32 s{S_T0}, s{S_T0}, {slot_imm}"); A(f"s_lshl_b32 s{S_T0}, s{S_T0}, 2"); A(f"s_add_u32 s{S_T0}, s{S_T0}, {WS_FLAG}")
        A(f"v_mov_b32 v{FA}, s{S_T0}")
        A(f"s_mov_b64 s[{S_E0}:{S_E0+1}], exec"); A("s_mov_b64 exec, 1")
        A.vm(f"global_store_dword v{FA}, v{ONE}, s[{S_WSP}:{S_WSP+1}] sc1")
        A(f"s_mov_b64 exec, s[{S_E0}:{S_E0+1}]")

    def transition(self):
        A, typ, kinds = self.A, self.typ, self.kinds
        w2 = self.w2
        tt = VT
        state = {"D": N_IN, "R": len(self.w2_done_R)}
        assert self.w2_done_R == list(range(len(self.w2_done_R)))
        A.stamp(1, "tr")
        def bgD(n=1):
            for _ in range(n):
                i = state["D"]
                if i >= 36 or i - state["R"] >= NSL: return
                emit_items(A, w2.D(i)); state["D"] += 1
        def bgR(n=1):
            for _ in range(n):
                i = state["R"]
                if i >= state["D"]: return
                if i >= 32 and not state.get("vfree"): return
                emit_items(A, w2.R(i)); state["R"] += 1
        def bgD_safe(n=1):
            A("s_waitcnt lgkmcnt(0)"); bgD(n)
        A(f"s_lshl_b32 s{S_T0}, s{S_T}, 1"); A(f"s_add_u32 s{S_T0}, s{S_T0}, s{S_WM}"); A(f"s_lshl_b32 s{S_T0}, s{S_T0}, 2")
        A(f"s_lshr_b32 s{S_T1}, s{S_IDX}, 1"); A(f"s_add_u32 s{S_T0}, s{S_T0}, s{S_T1}"); A(f"s_mul_i32 s{S_HB}, s{S_T0}, {36*2048}")
        A(f"s_and_b32 s{S_I1}, s{S_IDX}, 1")
        I1 = S_I1
        R2 = XF
        for tb in range(2):
            A(f"v_mul_f32 v{R2+2*tb}, v{VR+tb}, v{VR+tb}"); A(f"v_mul_f32 v{R2+2*tb+1}, v{VR+tb}, v{VR+tb}")
        bgR(2)
        PK = WF
        nst = 0
        gublks = [b for b, kd in enumerate(kinds) if kd in ("gu", "guh")]
        lasth = None
        for blk in gublks:
            kd = kinds[blk]
            if typ == "A":
                if blk == 0:
                    A(f"s_lshl_b32 s{S_T2}, s{I1}, 1"); A(f"s_add_u32 s{S_T2}, s{S_T2}, s{S_WN}"); A(f"s_lshl_b32 s{S_T2}, s{S_T2}, 13"); A(f"s_add_u32 s{S_T2}, s{S_T2}, s{S_HB}")
                else: A(f"s_add_u32 s{S_T2}, s{S_T2}, 2048")
            elif kd == "gu":
                if blk == 2:
                    A(f"s_lshl_b32 s{S_T2}, s{I1}, 2"); A(f"s_lshl_b32 s{S_T3}, s{S_WN}, 1"); A(f"s_add_u32 s{S_T2}, s{S_T2}, s{S_T3}"); A(f"s_add_u32 s{S_T2}, s{S_T2}, 16")
                    A(f"s_lshl_b32 s{S_T2}, s{S_T2}, 11"); A(f"s_add_u32 s{S_T2}, s{S_T2}, s{S_HB}")
                else: A(f"s_add_u32 s{S_T2}, s{S_T2}, 2048")
            else:
                A(f"s_lshl_b32 s{S_T2}, s{I1}, 1"); A(f"s_add_u32 s{S_T2}, s{S_T2}, s{S_WN}"); A(f"s_add_u32 s{S_T2}, s{S_T2}, 24")
                A(f"s_lshl_b32 s{S_T2}, s{S_T2}, 11"); A(f"s_add_u32 s{S_T2}, s{S_T2}, s{S_HB}")
            for tb in range(2):
                a = acc(blk, tb); pk = PK + 4*(nst % 4); nst += 1
                for i in range(4): A(f"v_pk_mul_f32 v[{a+2*i}:{a+2*i+1}], v[{a+2*i}:{a+2*i+1}], v[{a+8+2*i}:{a+8+2*i+1}]")
                for i in range(4): A(f"v_pk_mul_f32 v[{a+2*i}:{a+2*i+1}], v[{a+2*i}:{a+2*i+1}], v[{R2+2*tb}:{R2+2*tb+1}]")
                for i in range(4): A(f"v_cvt_pk_bf16_f32 v{pk+i}, v{a+2*i}, v{a+2*i+1}")
                lasth = f"hs_{blk}_{tb}"
                A.vm(f"buffer_store_dwordx4 v[{pk}:{pk+3}], v{VL16}, s[{S_H}:{S_H+3}], s{S_T2} offen offset:{tb*1024} sc1", id=lasth)
            if state["R"] < N_IN: bgR(1)
        bgD_safe(5)
        A.stamp(5); A.stamp(2, "tr")
        FA, ONE = VT+4, VT+5
        A(f"s_mov_b32 s{S_C6}, 0x358637bd"); A(f"s_mov_b32 s{S_C6+1}, 0x358637bd")
        C6 = f"s[{S_C6}:{S_C6+1}]"
        if typ == "A":
            A(f"s_lshl_b32 s{S_T2}, s{I1}, 2"); A(f"s_lshl_b32 s{S_T3}, s{S_WN}, 1"); A(f"s_add_u32 s{S_T2}, s{S_T2}, s{S_T3}"); A(f"s_add_u32 s{S_T2}, s{S_T2}, 28")
            A(f"s_lshl_b32 s{S_T2}, s{S_T2}, 11"); A(f"s_add_u32 s{S_T4}, s{S_T2}, s{S_HB}"); A(f"s_add_u32 s{S_XO}, s{S_T4}, 2048")
            RP = XF + 4; RLP = XF + 6
            for tb in range(2):
                a = acc(4, tb)
                A(f"v_mov_b32 v{RP}, v{VR+tb}"); A(f"v_mov_b32 v{RP+1}, v{VR+tb}")
                A(f"v_mul_f32 v{RLP}, 0x3fb8aa3b, v{VR+tb}"); A(f"v_mul_f32 v{RLP+1}, 0x3fb8aa3b, v{VR+tb}")
                for i in range(0, 16, 4):
                    for j in (0, 2): A(f"v_pk_mul_f32 v[{tt+j}:{tt+j+1}], v[{a+i+j}:{a+i+j+1}], v[{RLP}:{RLP+1}]")
                    for j in (0, 2): A(f"v_pk_fma_f32 v[{a+i+j}:{a+i+j+1}], v[{a+i+j}:{a+i+j+1}], v[{RP}:{RP+1}], {C6}")
                    for j in range(4): A(f"v_exp_f32_e64 v{tt+j}, v{tt+j} clamp")
                    for j in range(4): A(f"v_max_f32 v{a+i+j}, s{S_C6}, v{a+i+j}")
                    for j in (0, 2): A(f"v_pk_add_f32 v[{a+i+j}:{a+i+j+1}], v[{a+i+j}:{a+i+j+1}], v[{tt+j}:{tt+j+1}]")
                for hs in range(2):
                    pk = PK + 4*(nst % 4); nst += 1
                    for i in range(4): A(f"v_cvt_pk_bf16_f32 v{pk+i}, v{a+8*hs+2*i}, v{a+8*hs+2*i+1}")
                    A.vm(f"buffer_store_dwordx4 v[{pk}:{pk+3}], v{VL16}, s[{S_H}:{S_H+3}], s{S_XO if hs else S_T4} offen offset:{tb*1024} sc1", id=f"pq_{tb}_{hs}")
            A.stamp(3, "tr")
            A.wait(lasth)
            A.stamp(4, "tr")
            self.flag_store(0, FA, ONE)
            state["vfree"] = True
            bgR(6); bgD_safe(6)
            A.stamp(5, "tr")
            A.wait("pq_1_1")
            self.flag_store(8, FA, ONE)
        else:
            CLP, KMP, C2 = XF+4, XF+6, XF+12
            A(f"v_and_b32 v{tt}, 31, v{VLANE}"); A(f"v_cmp_gt_u32 vcc, 16, v{tt}")
            A(f"v_mov_b32 v{tt+1}, 0x358637bd"); A("s_nop 0")
            A(f"v_cndmask_b32 v{CLP}, 0, v{tt+1}, vcc"); A(f"v_cndmask_b32 v{CLP+1}, 0, v{tt+1}, vcc")
            A(f"v_mov_b32 v{tt+2}, 0xff800000")
            A(f"v_cndmask_b32 v{C2}, v{tt+2}, v{tt+1}, vcc")
            A(f"v_cndmask_b32 v{KMP}, 0, 1.0, vcc"); A(f"v_cndmask_b32 v{KMP+1}, 0, 1.0, vcc")
            A(f"s_mov_b64 s[{S_E2}:{S_E2+1}], vcc")
            RR = WF; RL = WF + 16; TP = WF + 32; B2 = XF + 8 - 0
            B2 = VT + 6
            ONES = XF + 8
            A(f"v_mov_b32 v{ONES}, 0x3f803f80")
            A(f"v_lshrrev_b32 v{tt}, 5, v{VLANE}"); A(f"v_lshlrev_b32 v{tt}, 4, v{tt}")
            A(f"s_lshl_b32 s{S_T0}, s{S_WM}, 8"); A(f"s_add_u32 s{S_T0}, s{S_T0}, {LDS_R}"); A(f"v_add_u32 v{XF+9}, s{S_T0}, v{tt}")
            D2 = [acc(2,0), acc(2,1)]
            A(f"s_mov_b32 s{S_T0}, 0x3fb8aa3b"); A(f"s_mov_b32 s{S_T1}, 0x3fb8aa3b")
            first = True
            for tb in range(2):
                for q4 in range(4): A(f"ds_read_b128 v[{RR+4*q4}:{RR+4*q4+3}], v{XF+9} offset:{tb*128 + q4*32}")
                A("s_waitcnt lgkmcnt(0)")
                A(f"s_mov_b32 s{S_T0}, 0x3fb8aa3b"); A(f"s_mov_b32 s{S_T1}, 0x3fb8aa3b")
                for i in range(8): A(f"v_pk_mul_f32 v[{RL+2*i}:{RL+2*i+1}], v[{RR+2*i}:{RR+2*i+1}], s[{S_T0}:{S_T1}]")
                for hb in range(2):
                    a = acc(hb, tb)
                    for i in range(0, 16, 4):
                        for j in (0, 2): A(f"v_pk_mul_f32 v[{tt+j}:{tt+j+1}], v[{a+i+j}:{a+i+j+1}], v[{RL+i+j}:{RL+i+j+1}]")
                        for j in (0, 2): A(f"v_pk_fma_f32 v[{a+i+j}:{a+i+j+1}], v[{a+i+j}:{a+i+j+1}], v[{RR+i+j}:{RR+i+j+1}], v[{CLP}:{CLP+1}]")
                        for j in range(4): A(f"v_exp_f32_e64 v{tt+j}, v{tt+j} clamp")
                        for j in range(4): A(f"v_max_f32 v{a+i+j}, v{a+i+j}, v{C2}")
                        for j in (0, 2): A(f"v_pk_fma_f32 v[{a+i+j}:{a+i+j+1}], v[{tt+j}:{tt+j+1}], v[{KMP}:{KMP+1}], v[{a+i+j}:{a+i+j+1}]")
                    for i in range(8): A(f"v_cvt_pk_bf16_f32 v{TP+i}, v{a+2*i}, v{a+2*i+1}")
                    for i in range(8): A(f"v_cndmask_b32 v{B2+i}, v{TP+i}, v{ONES}, s[{S_E2}:{S_E2+1}]")
                    A("s_nop 1")
                    for f in range(2):
                        c = "0" if (tb == 0 and f == 0) else f"v[{D2[hb]}:{D2[hb]+15}]"
                        A(f"v_mfma_f32_32x32x16_bf16 v[{D2[hb]}:{D2[hb]+15}], v[{TP+4*f}:{TP+4*f+3}], v[{B2+4*f}:{B2+4*f+3}], {c}")
                    if tb == 0 and hb == 1:
                        A.stamp(3, "tr"); A.wait(lasth); A.stamp(4, "tr"); self.flag_store(4, FA, ONE)
            A("s_nop 7"); A("s_nop 7")
            A(f"s_lshl_b32 s{S_T0}, s{S_WM}, 13"); A(f"s_lshl_b32 s{S_T1}, s{S_WN}, 12"); A(f"s_add_u32 s{S_T0}, s{S_T0}, s{S_T1}"); A(f"s_add_u32 s{S_T0}, s{S_T0}, {LDS_KV}")
            A(f"v_lshlrev_b32 v{tt}, 2, v{VLANE}"); A(f"v_add_u32 v{tt}, s{S_T0}, v{tt}")
            for hb in range(2):
                for r_ in range(8): A(f"ds_write_b32 v{tt}, v{D2[hb]+r_} offset:{hb*2048 + r_*256}")
            A("s_waitcnt lgkmcnt(0)"); A("s_barrier")
            A(f"s_lshl_b32 s{S_T0}, s{S_WV}, 11"); A(f"s_add_u32 s{S_T0}, s{S_T0}, {LDS_KV}")
            A(f"s_lshl_b32 s{S_T1}, s{S_IDX}, 2"); A(f"s_add_u32 s{S_T1}, s{S_T1}, s{S_WV}")
            A(f"s_lshl_b32 s{S_T2}, s{S_T1}, 6"); A(f"s_add_u32 s{S_T2}, s{S_T2}, {WS_KVCNT}")
            A(f"s_mul_i32 s{S_T1}, s{S_T1}, {KV_HEAD}"); A(f"s_add_u32 s{S_T1}, s{S_T1}, {WS_KV}")
            A(f"v_and_b32 v{tt}, 7, v{VLANE}"); A(f"v_lshlrev_b32 v{tt}, 8, v{tt}")
            A(f"v_lshrrev_b32 v{tt+1}, 3, v{VLANE}")
            B0 = ACC
            for n in range(4):
                A(f"v_add_u32 v{tt+2}, {32*(n>>1) + 16 + 8*(n&1)}, v{tt+1}"); A(f"v_lshlrev_b32 v{tt+2}, 2, v{tt+2}"); A(f"v_add_u32 v{tt+2}, v{tt+2}, v{tt}"); A(f"v_add_u32 v{tt+2}, s{S_T0}, v{tt+2}")
                A(f"ds_read_b32 v{B0+2*n}, v{tt+2}"); A(f"ds_read_b32 v{B0+2*n+1}, v{tt+2} offset:8192")
            A(f"v_lshlrev_b32 v{tt+2}, 7, v{tt+1}"); A(f"v_add_u32 v{tt+2}, v{tt+2}, v{tt}"); A(f"v_add_u32 v{tt+2}, s{S_T0}, v{tt+2}")
            A(f"v_cmp_gt_u32 vcc, 16, v{VLANE}"); A(f"s_and_saveexec_b64 s[{S_E0}:{S_E0+1}], vcc")
            A(f"ds_read_b32 v{B0+8}, v{tt+2}"); A(f"ds_read_b32 v{B0+9}, v{tt+2} offset:8192")
            A(f"s_mov_b64 exec, s[{S_E0}:{S_E0+1}]")
            A("s_waitcnt lgkmcnt(0)")
            A(f"v_lshlrev_b32 v{tt+2}, 2, v{VLANE}"); A(f"v_add_u32 v{tt+2}, s{S_T1}, v{tt+2}")
            for n in range(4):
                A(f"v_add_f32 v{B0+2*n}, v{B0+2*n}, v{B0+2*n+1}")
                A.vm(f"global_atomic_add_f32 v{tt+2}, v{B0+2*n}, s[{S_WSP}:{S_WSP+1}] offset:{n*256}")
            A(f"v_add_f32 v{B0+8}, v{B0+8}, v{B0+9}")
            A(f"s_and_saveexec_b64 s[{S_E0}:{S_E0+1}], vcc")
            A.vm(f"global_atomic_add_f32 v{tt+2}, v{B0+8}, s[{S_WSP}:{S_WSP+1}] offset:1024", id="kvat")
            A(f"s_mov_b64 exec, s[{S_E0}:{S_E0+1}]")
            A(f"s_mov_b32 s{S_T4}, s{S_T2}")
            state["vfree"] = True
            A.stamp(5, "tr")
            bgR(8); bgD_safe(8)
            A.wait("kvat")
            A(f"v_mov_b32 v{tt+2}, s{S_T4}"); A(f"v_mov_b32 v{ONE}, 1")
            A(f"s_mov_b64 s[{S_E0}:{S_E0+1}], exec"); A("s_mov_b64 exec, 1")
            A.vm(f"global_atomic_add v{tt+2}, v{ONE}, s[{S_WSP}:{S_WSP+1}] sc1")
            A(f"s_mov_b64 exec, s[{S_E0}:{S_E0+1}]")
        A.stamp(6); A.stamp(6, "tr")
        while state["R"] < 36:
            bgR(4); bgD_safe(4)
        A("s_waitcnt lgkmcnt(0)")

class G2:
    ACC2 = 0; HB = 64; NH = 32; W2V = 192
    def __init__(self, A): self.A = A; self.w2 = W2(A)
    def poll(self, label, vaddr, nl, expect=None, novm=False):
        A = self.A; T = VT
        A(f"s_mov_b32 s{S_T3}, 0")
        A(f"s_mov_b64 s[{S_E0}:{S_E0+1}], exec"); A(f"s_mov_b64 exec, {(1<<nl)-1}")
        A.label(label)
        if novm: A.l.append(f"  global_load_dword v{T+9}, v{vaddr}, s[{S_WSP}:{S_WSP+1}] sc1")
        else: A.vm(f"global_load_dword v{T+9}, v{vaddr}, s[{S_WSP}:{S_WSP+1}] sc1")
        A("s_waitcnt vmcnt(0)")
        if expect is None: A(f"v_cmp_ne_u32 vcc, 0, v{T+9}")
        else: A(f"v_cmp_le_u32 vcc, {expect}, v{T+9}")
        A(f"s_add_u32 s{S_T3}, s{S_T3}, 1")
        A(f"s_cmp_ge_u32 s{S_T3}, {POLL_MAX}"); A(f"s_cbranch_scc1 {label}_x")
        A(f"s_cmp_eq_u64 vcc, exec"); A(f"s_cbranch_scc1 {label}_x")
        A("s_sleep 1"); A(f"s_branch {label}")
        A.label(label + "_x")
        A(f"s_mov_b64 exec, s[{S_E0}:{S_E0+1}]")
    def check(self, label, vreg, nl, expect=None):
        pass
    def body(self):
        A = self.A; T = VT; VL = VLANE
        ACC2 = 0; HB = 64; NH = 16; KVR0 = 128
        A.reset_vm()
        VFL, VKV, VCN = T+10, T+11, T+12
        VF1, VF2 = T+8, T+9
        srd(A, S_O, P_O, P_O+1, 2048*1024)
        srd(A, S_XX, P_X, P_X+1, 2048*1024)
        A(f"s_lshl_b32 s{S_HO}, s{S_TAU}, 2"); A(f"s_add_u32 s{S_HO}, s{S_HO}, s{S_WV}")
        A(f"s_lshl_b32 s{S_T0}, s{S_HO}, 6"); A(f"s_add_u32 s{S_T0}, s{S_T0}, {WS_FLAG}")
        A(f"v_lshlrev_b32 v{VFL}, 2, v{VL}"); A(f"v_add_u32 v{VFL}, s{S_T0}, v{VFL}")
        A(f"s_mul_i32 s{S_HO}, s{S_HO}, {36*2048}")
        A(f"s_add_u32 s{S_T4}, s{S_HO}, {56*1024}")
        A(f"v_and_b32 v{T}, 31, v{VL}"); A(f"v_lshrrev_b32 v{T+1}, 5, v{VL}")
        A(f"v_lshlrev_b32 v{T+2}, 4, v{T+1}"); A(f"v_add_u32 v{T+2}, v{T+2}, v{T}"); A(f"v_subrev_u32 v{T+2}, 16, v{T+2}"); A(f"v_lshlrev_b32 v{T+2}, 5, v{T+2}")
        A(f"v_lshlrev_b32 v{T+3}, 5, v{T+1}"); A(f"v_add_u32 v{T+3}, 1024, v{T+3}")
        A(f"v_cmp_gt_u32 vcc, 16, v{T}"); A("s_nop 1"); A(f"v_cndmask_b32 v{T+2}, v{T+2}, v{T+3}, vcc")
        A(f"s_lshl_b32 s{S_T0}, s{S_WV}, 3"); A(f"s_mul_i32 s{S_T0}, s{S_T0}, {KV_HEAD}"); A(f"s_add_u32 s{S_T0}, s{S_T0}, {WS_KV}")
        A(f"v_add_u32 v{VKV}, s{S_T0}, v{T+2}")
        A(f"s_lshl_b32 s{S_T0}, s{S_WV}, 9"); A(f"s_add_u32 s{S_T0}, s{S_T0}, {WS_KVCNT}")
        A(f"v_lshlrev_b32 v{VCN}, 6, v{VL}"); A(f"v_add_u32 v{VCN}, s{S_T0}, v{VCN}")
        A("s_barrier")
        A.stamp(7); A.stamp(7, "tr")
        self.poll("K12_pollH", VFL, 8)
        A.stamp(8, "tr")
        A.stamp(8); A.stamp(1, "g2")
        hstate = {"off": 0}
        def h_items(f):
            o = []
            base = (f // 4) * 4096
            if base != hstate["off"]:
                o.append(f"s_add_u32 s{S_HO}, s{S_HO}, {base - hstate['off']}"); hstate["off"] = base
            hb = HB + 4*(f % NH)
            o.append(("vm", f"h{f}", f"buffer_load_dwordx4 v[{hb}:{hb+3}], v{VL16}, s[{S_H}:{S_H+3}], s{S_HO} offen offset:{(f%4)*1024} sc1"))
            return o
        def pq_items(g):
            o = []
            if g % 4 == 0 and g > 0: o.append(f"s_add_u32 s{S_T4}, s{S_T4}, 4096")
            o.append(("vm", f"pq{g}", f"buffer_load_dwordx4 a[{4*g}:{4*g+3}], v{VL16}, s[{S_H}:{S_H+3}], s{S_T4} offen offset:{(g%4)*1024} sc1"))
            return o
        def kv_items(h):
            b = KVR0 + 8*h
            return [("vm", None, f"global_load_dwordx4 v[{b}:{b+3}], v{VKV}, s[{S_WSP}:{S_WSP+1}] sc1"),
                    ("vm", f"kv{h}", f"global_load_dwordx4 v[{b+4}:{b+7}], v{VKV}, s[{S_WSP}:{S_WSP+1}] offset:16 sc1"),
                    f"v_add_u32 v{VKV}, {KV_HEAD}, v{VKV}"]
        AHEAD = 12
        nextf = 0
        while nextf < AHEAD:
            for x in h_items(nextf): A(x)
            nextf += 1
        A.stamp(2, "g2")
        CHK = 9
        aux = []
        for i in range(28):
            A.wait(f"h{2*i+1}")
            if i == 1: A.stamp(3, "g2")
            gaps = [[] for _ in range(4)]
            if i == CHK - 4:
                gaps[0] += [f"v_add_u32 v{VFL}, 32, v{VFL}", f"s_mov_b64 s[{S_E0}:{S_E0+1}], exec", "s_mov_b64 exec, 15",
                            ("vm", "fq", f"global_load_dword v{VF1}, v{VFL}, s[{S_WSP}:{S_WSP+1}] sc1"), "s_mov_b64 exec, 255",
                            ("vm", "fkv", f"global_load_dword v{VF2}, v{VCN}, s[{S_WSP}:{S_WSP+1}] sc1"), f"s_mov_b64 exec, s[{S_E0}:{S_E0+1}]"]
            for k in range(2):
                if nextf < 56:
                    gaps[1+k] += h_items(nextf); nextf += 1
            if i > CHK and aux:
                n = 1 if nextf < 56 else 2
                for _ in range(n):
                    if aux: gaps[3 if n == 1 else _ + 1] += aux.pop(0)
            mf = []
            for tb in range(2):
                hb = HB + 4*((2*i+tb) % NH)
                for nb in range(2):
                    a = ACC2 + 16*(2*nb+tb)
                    c = "0" if i == 0 else f"v[{a}:{a+15}]"
                    mf.append(f"v_mfma_f32_32x32x16_bf16 v[{a}:{a+15}], {self.w2.frag(i,nb)}, v[{hb}:{hb+3}], {c}")
            for g in range(4):
                A(mf[g])
                for x in gaps[g]: A(x)
            if i == CHK:
                A.stamp(4, "g2")
                A.wait("fkv")
                A(f"s_mov_b64 s[{S_E0}:{S_E0+1}], exec"); A("s_mov_b64 exec, 15")
                A(f"v_cmp_ne_u32 vcc, 0, v{VF1}"); A("s_nop 3"); A("s_cmp_eq_u64 vcc, exec"); A(f"s_mov_b64 exec, s[{S_E0}:{S_E0+1}]")
                A("s_cbranch_scc1 K12_qok")
                self.poll("K12_pollQ", VFL, 4, novm=True)
                A.label("K12_qok")
                A(f"s_mov_b64 s[{S_E0}:{S_E0+1}], exec"); A("s_mov_b64 exec, 255")
                A(f"v_cmp_le_u32 vcc, 16, v{VF2}"); A("s_nop 3"); A("s_cmp_eq_u64 vcc, exec"); A(f"s_mov_b64 exec, s[{S_E0}:{S_E0+1}]")
                A("s_cbranch_scc1 K12_kvok")
                self.poll("K12_pollKV", VCN, 8, expect=16, novm=True)
                A.label("K12_kvok")
                A.stamp(5, "g2")
                for h in range(8):
                    aux.append(kv_items(h)); aux.append(pq_items(2*h)); aux.append(pq_items(2*h+1))
        while aux:
            for x in aux.pop(0): A(x)
        A.stamp(6, "g2")
        A(f"v_lshrrev_b32 v{T+8}, 3, v{VTID}"); A(f"v_and_b32 v{T+9}, 7, v{VTID}")
        A(f"s_lshl_b32 s{S_T0}, s{S_TAU}, 16"); A(f"s_lshl_b32 s{S_T2}, s{S_J}, 7"); A(f"s_add_u32 s{S_T0}, s{S_T0}, s{S_T2}")
        VG = VFL
        A(f"v_lshlrev_b32 v{VG}, 10, v{T+8}"); A(f"v_lshlrev_b32 v{VCN}, 4, v{T+9}"); A(f"v_add_u32 v{VG}, v{VG}, v{VCN}")
        XR = HB
        A.vm(f"buffer_load_dwordx4 v[{XR}:{XR+3}], v{VG}, s[{S_XX}:{S_XX+3}], s{S_T0} offen", id="x0")
        A(f"s_add_u32 s{S_T2}, s{S_T0}, {32*1024}")
        A.vm(f"buffer_load_dwordx4 v[{XR+4}:{XR+7}], v{VG}, s[{S_XX}:{S_XX+3}], s{S_T2} offen", id="x1")
        A(f"s_mov_b32 s{S_T1}, 0x358637bd")
        KVB = [KVR0 + 4*h for h in range(8)]
        DO = [160, 176]
        OF = [T, T+4]
        A.wait("kv7")
        for h in range(8):
            for e in range(4): A(f"v_cvt_pk_bf16_f32 v{KVB[h]+e}, v{KVR0+8*h+2*e}, v{KVR0+8*h+2*e+1}")
        A.wait("pq15")
        units = [(h, tb) for h in range(8) for tb in range(2)]
        def stA(u):
            h, tb = units[u]; d = DO[u & 1]
            return f"v_mfma_f32_32x32x16_bf16 v[{d}:{d+15}], v[{KVB[h]}:{KVB[h]+3}], {ar(4*(2*h+tb), 4)}, 0"
        def stB(u):
            d = DO[u & 1]; o = OF[u & 1]; rc = T + 8
            l = [f"v_add_f32 v{rc}, s{S_T1}, v{d}", f"v_rcp_f32 v{rc}, v{rc}", "s_nop 0"]
            l += [f"v_mul_f32 v{d+8+e}, v{rc}, v{d+8+e}" for e in range(8)]
            l += [f"v_cvt_pk_bf16_f32 v{o+e}, v{d+8+2*e}, v{d+8+2*e+1}" for e in range(4)]
            return l
        def stC(u):
            h, tb = units[u]; o = OF[u & 1]; i = 28 + h
            return [f"v_mfma_f32_32x32x16_bf16 v[{ACC2+16*(2*nb+tb)}:{ACC2+16*(2*nb+tb)+15}], {self.w2.frag(i,nb)}, v[{o}:{o+3}], v[{ACC2+16*(2*nb+tb)}:{ACC2+16*(2*nb+tb)+15}]" for nb in range(2)]
        A("s_nop 1")
        A(stA(0)); A(stA(1))
        A("s_nop 7"); A("s_nop 3")
        for x in stB(0): A(x)
        for u in range(16):
            c = stC(u)
            nb_ = stB(u+1) if u + 1 < 16 else []
            A("s_nop 1"); A(c[0])
            for x in nb_[:5]: A(x)
            if u + 2 < 16: A(stA(u+2))
            for x in nb_[5:10]: A(x)
            A(c[1])
            for x in nb_[10:]: A(x)
        A.stamp(7, "g2")
        RS = 272; WSZ = 64*RS
        A(f"v_and_b32 v{T}, 31, v{VL}"); A(f"v_mul_u32_u24 v{T}, {RS}, v{T}"); A(f"v_lshrrev_b32 v{T+1}, 5, v{VL}"); A(f"v_lshlrev_b32 v{T+1}, 4, v{T+1}"); A(f"v_add_u32 v{T}, v{T}, v{T+1}")
        A(f"s_mul_i32 s{S_T3}, s{S_WV}, {WSZ}"); A(f"v_add_u32 v{T}, s{S_T3}, v{T}")
        A(f"v_lshrrev_b32 v{T+2}, 3, v{VTID}"); A(f"v_and_b32 v{T+3}, 7, v{VTID}")
        A(f"v_mul_u32_u24 v{T+6}, {RS}, v{T+2}"); A(f"v_lshlrev_b32 v{T+7}, 5, v{T+3}"); A(f"v_add_u32 v{T+6}, v{T+6}, v{T+7}")
        A("s_nop 1")
        for tb in range(2):
            if tb == 1: A("s_nop 7")
            for nb in range(2):
                a = ACC2 + 16*(2*nb+tb)
                for q in range(4):
                    A(f"ds_write_b128 v{T}, v[{a+4*q}:{a+4*q+3}] offset:{tb*32*RS + nb*128 + q*32}")
        A("s_waitcnt lgkmcnt(0)"); A("s_barrier")
        A.stamp(8, "g2")
        for ps in range(2):
            b = 72 + 40*ps
            for w in range(4):
                A(f"ds_read_b128 v[{b+8*w}:{b+8*w+3}], v{T+6} offset:{w*WSZ + ps*32*RS}")
                A(f"ds_read_b128 v[{b+8*w+4}:{b+8*w+7}], v{T+6} offset:{w*WSZ + ps*32*RS + 16}")
        for ps in range(2):
            b = 72 + 40*ps
            A(f"s_waitcnt lgkmcnt({8 if ps == 0 else 0})")
            for e in range(0, 8, 2):
                A(f"v_pk_add_f32 v[{b+e}:{b+e+1}], v[{b+e}:{b+e+1}], v[{b+8+e}:{b+8+e+1}]")
                A(f"v_pk_add_f32 v[{b+16+e}:{b+16+e+1}], v[{b+16+e}:{b+16+e+1}], v[{b+24+e}:{b+24+e+1}]")
            for e in range(0, 8, 2):
                A(f"v_pk_add_f32 v[{b+e}:{b+e+1}], v[{b+e}:{b+e+1}], v[{b+16+e}:{b+16+e+1}]")
            A.wait(f"x{ps}")
            xb = XR + 4*ps
            for e in range(4):
                A(f"v_lshlrev_b32 v{T+8}, 16, v{xb+e}"); A(f"v_and_b32 v{T+9}, 0xffff0000, v{xb+e}")
                A(f"v_pk_add_f32 v[{b+2*e}:{b+2*e+1}], v[{b+2*e}:{b+2*e+1}], v[{T+8}:{T+9}]")
                A(f"v_cvt_pk_bf16_f32 v{b+32+e}, v{b+2*e}, v{b+2*e+1}")
            A.vm(f"buffer_store_dwordx4 v[{b+32}:{b+35}], v{VG}, s[{S_O}:{S_O+3}], s{S_T0 if ps == 0 else S_T2} offen")

def gen_k12():
    A = Prog()
    prologue_common(A)
    A(f"s_cmp_ge_u32 s{S_CP}, 2"); A("s_cbranch_scc1 K12_typeB")
    base_nvm = A.nvm
    for typ in ("A", "B"):
        if typ == "B":
            A.label("K12_typeB"); A.nvm = base_nvm; A.ids = {}
        g = G1(A, typ)
        g.prologue()
        emit_items(A, g.rank1_items)
        g.loop()
        A.stamp(4)
        g.transition()
        if typ == "A": A("s_branch K12_g2")
    A.label("K12_g2")
    G2(A).body()
    if STAMP:
        A("s_waitcnt vmcnt(0) lgkmcnt(0)")
        A(f"{STAMP_INS} s[60:61]")
        A("s_waitcnt lgkmcnt(0)")
        A(f"s_lshl_b32 s{S_T0}, s2, 2"); A(f"s_add_u32 s{S_T0}, s{S_T0}, s{S_WV}"); A(f"s_lshl_b32 s{S_T0}, s{S_T0}, 6")
        A(f"s_add_u32 s{S_T0}, s{S_T0}, {WS_STAMP + 65536}")
        A(f"v_mov_b32 v{VT}, s{S_T0}")
        for i in range(9):
            A(f"v_mov_b32 v{VT+1}, s{SB+2*i}")
            A.vm(f"global_store_dword v{VT}, v{VT+1}, s[{S_WSP}:{S_WSP+1}] offset:{4*i}")
        A(f"v_mov_b32 v{VT+1}, s60")
        A.vm(f"global_store_dword v{VT}, v{VT+1}, s[{S_WSP}:{S_WSP+1}] offset:36")
    A.label("K12_end")
    return A.text()

def main(path):
    gen2.STAMP = STAMP; gen2.STAMP_INS = STAMP_INS
    hdr = open("cdna_kernels/" + NAME + ".s.ref").read().split("; Override")[0]
    ks = [("k0_kernel", gen_k0_v2(), 96, 0, 10240), ("k12_kernel", gen_k12(), 256, 256, 163840)]
    out = hdr
    for n, _, _, _, lds in ks:
        out += f"; @launch kernel={n} grid=(256,1,1) block=(256,1,1) lds={lds}\n"
    out += '.amdgcn_target "amdgcn-amd-amdhsa--gfx950"\n.text\n'
    descs = ""
    for n, body, v, a, lds in ks:
        c, d = gen2.kernel_block(n, body, v, a)
        out += c; descs += ".p2align 6\n" + d
    out += '.section .rodata,"a"\n' + descs
    open(path, "w").write(out)

if __name__ == "__main__":
    if "--stamp" in sys.argv:
        STAMP = True; sys.argv.remove("--stamp")
    for a in list(sys.argv):
        if a.startswith("--nin="): N_IN = int(a[6:]); sys.argv.remove(a)
        if a.startswith("--smode="): SMODE = a[8:]; sys.argv.remove(a)
        if a.startswith("--rot="): ROT = int(a[6:]); sys.argv.remove(a)
        if a.startswith("--cap="): CAP = int(a[6:]); sys.argv.remove(a)
    if "--cyc" in sys.argv:
        STAMP = True; STAMP_INS = "s_memtime"; sys.argv.remove("--cyc")
    main(sys.argv[1] if len(sys.argv) > 1 else "cdna_kernels/" + NAME + ".s")
```

```python
import sys

NAME = "parallel_sum__linear_attn_block__glu_gated_bilinear__prompt"
WS_M, WS_R, WS_KV, KV_HEAD = 0, 8192, 32768, 1152
WS_FLAG = WS_KV + 36864
WS_KVCNT = WS_FLAG + 8192
WS_CS = WS_KVCNT + 2048
WS_STCNT = WS_CS + 20480
WS_CSCNT = WS_STCNT + 2048
NZERO = 18
assert WS_CSCNT + 2048 <= WS_KV + NZERO*4096 <= 131072
DBG_INIT = 0
CS_TMP = 140
A_ONES = 220
VC1, VC2, VC3 = 251, 252, 253
WS_H = 131072
H_BYTES = 32*4*36*2048
POLL_MAX = 200000
STAMP = False
STAMP_INS = 's_memrealtime'
WS_STAMP = 1 << 24
SB = 84
CORR_AT = 28
N_IN = 31
CAP = 5
SMODE = 'main'
ROT = 8
K_INITLD = 1; K_CSAT = 5; K_CNTLD = 17; H_CNT = 11; K_RANK = 25
CODE_KB = 48

class Prog:
    def __init__(self): self.l = []; self.nvm = 0; self.ids = {}
    def __call__(self, s):
        if s is None: return
        if isinstance(s, tuple):
            if s[0] == "vm":
                self.l.append("  " + s[2]); self.nvm += 1
                if s[1] is not None: self.ids[s[1]] = self.nvm
            elif s[0] == "vmu":
                self.l.append("  " + s[2]); self.ids[s[1]] = self.nvm
            elif s[0] == "wait":
                last = max(self.ids[i] for i in s[1])
                n = self.nvm - last
                assert n <= 63, (s, n)
                self.l.append(f"  s_waitcnt vmcnt({n})" + (" " + s[2] if len(s) > 2 and s[2] else ""))
            else: raise ValueError(s)
        elif s.endswith(":"): self.l.append(s)
        elif s.startswith("!"):
            self.l.append("  " + s[1:])
        else:
            assert not ("buffer_" in s or "global_" in s), s
            self.l.append("  " + s)
    def vm(self, text, id=None): self(("vm", id, text))
    def wait(self, *ids): self(("wait", list(ids)))
    def label(self, s): self.l.append(s + ":")
    def text(self): return "\n".join(self.l)
    def stamp(self, i, mode="main"):
        if STAMP and (mode == SMODE or i == 0): self.l.append(f"  {STAMP_INS} s[{SB+2*i}:{SB+2*i+1}]")
    def reset_vm(self):
        self.ids = {}

def vr(b, n=1): return f"v{b}" if n == 1 else f"v[{b}:{b+n-1}]"
def ar(b, n=1): return f"a{b}" if n == 1 else f"a[{b}:{b+n-1}]"
def srd(A, d, lo, hi, size):
    A(f"s_mov_b32 s{d}, s{lo}"); A(f"s_and_b32 s{d+1}, s{hi}, 0xffff"); A(f"s_mov_b32 s{d+2}, {size}"); A(f"s_mov_b32 s{d+3}, 0x20000")
def srd_off(A, d, lo, hi, off, size):
    A(f"s_add_u32 s{d}, s{lo}, {off}"); A(f"s_addc_u32 s{d+1}, s{hi}, 0"); A(f"s_and_b32 s{d+1}, s{d+1}, 0xffff")
    if isinstance(off, int): A(f"s_mov_b32 s{d+2}, {size - off}")
    else: A(f"s_sub_u32 s{d+2}, {size}, {off}")
    A(f"s_mov_b32 s{d+3}, 0x20000")

X_BASE = 0; X_SLOT = 16384
W_BASE = 49152; W_SLOT = 20480; W_NS = 3
W2IN = W_BASE + W_NS*W_SLOT
NSL = 6
LDS_R = W2IN + 4*NSL*2048
LDS_KV = 0
DLAG = 5

ACC = 0; WF = 160; XF = 200; TRA = 216; XA = 221; VOW = 225; VOX = 230
VR = 234; VLANE = 236; VL16 = 237; VTID = 238; VDM = 239
VT = 240
VTR = 254; VTR1 = 255
AMF = 228; ACF = 236
def acc(blk, tb): return ACC + (blk*2+tb)*16

S_X = 4; S_W = 8; S_H = 28; S_WSP = 32
S_WV = 34; S_WM = 35; S_WN = 36; S_T = 37; S_IDX = 38
S_KW = 39; S_KH = 40; S_R30 = 41; S_R35 = 42; S_RH = 43; S_KX = 44; S_W1K = 45; S_W4K = 46; S_XB = 47
S_WD = 48; S_LB = 52; S_W2O = 53
S_T0 = 54; S_T1 = 55; S_T2 = 56; S_T3 = 57; S_T4 = 58; S_XO = 59
S_E0 = 60; S_E2 = 62
S_P = 64
P_X, P_WQ, P_WO, P_G, P_U, P_D, P_O = 64, 66, 68, 72, 74, 76, 78
S_DBG = 72; S_KSC = 66; S_CG = 67
S_HB = 80; S_I1 = 81; S_CP = 82; S_TAU = 83; S_J = 70; S_HO = 71
S_WO = 8; S_O = 12; S_XX = 16
S_C6 = 20

def w2row(i):
    if i < 16: return ("D", 256, 16*i)
    if i < 24: return ("D", 128, 1024 + 16*(i-16))
    if i < 28: return ("D", 64, 1536 + 16*(i-24))
    return ("O", 128, 16*(i-28))

class W2:
    def __init__(self, A): self.A = A
    def frag(self, ks, nb, W2V=192):
        f = ks*2 + nb
        return ar(4*f, 4) if f < 64 else vr(W2V + 4*(f-64), 4)
    def half(self, ks, nb, h, W2V=192):
        f = ks*2 + nb
        return ar(4*f + 2*h, 2) if f < 64 else vr(W2V + 4*(f-64) + 2*h, 2)
    def slot_off(self, i):
        return (i % NSL)*2048
    def D(self, i):
        kind, mul, const = w2row(i)
        s = S_WD if kind == "D" else S_WO
        sh = {256: 18, 128: 17, 64: 16}[mul]
        o = []
        for hf in range(2):
            o.append([f"s_lshl_b32 s{S_W2O}, s{S_WV}, {sh}", f"s_add_u32 s{S_W2O}, s{S_W2O}, {(const + 8*hf)*1024}"] if hf == 0 else [f"s_add_u32 s{S_W2O}, s{S_W2O}, 8192"])
            o.append(("dma", f"s_add_u32 m0, s{S_LB}, {self.slot_off(i) + hf*1024}", ("vm", f"w2_{i}_{hf}", f"buffer_load_dwordx4 v{VDM}, s[{s}:{s+3}], s{S_W2O} offen lds")))
        return o
    def R(self, i):
        o = self.slot_off(i)
        r = [[("wait", [f"w2_{i}_1"])]]
        for nb in range(2):
            va = VTR if nb == 0 else VTR1
            r.append([f"ds_read_b64_tr_b16 {self.half(i, nb, 0)}, v{va} offset:{o}", f"ds_read_b64_tr_b16 {self.half(i, nb, 1)}, v{va} offset:{o+1024}"])
        return r

def emit_items(A, items):
    for it in items:
        if isinstance(it, tuple) and it[0] == "dma":
            A(it[1]); A("s_nop 0"); A(it[2])
        else:
            for s in it: A(s)

def prologue_common(A):
    A("s_cmp_ge_u32 s2, 256"); A("s_cbranch_scc1 K12_end")
    A.stamp(0)
    A(f"s_load_dwordx16 s[{S_P}:{S_P+15}], s[0:1], 0")
    A(f"s_load_dwordx2 s[{S_WSP}:{S_WSP+1}], s[0:1], 72")
    A(f"s_getpc_b64 s[{S_E2}:{S_E2+1}]")
    A("K12_pc:")
    A(f"v_and_b32 v{VLANE}, 63, v0")
    A(f"v_lshrrev_b32 v{VT}, 6, v0")
    A(f"v_mov_b32 v{VTID}, v0")
    A(f"v_lshlrev_b32 v{VL16}, 4, v{VLANE}")
    A(f"v_readfirstlane_b32 s{S_WV}, v{VT}")
    A(f"s_and_b32 s{S_T0}, s2, 7"); A(f"s_lshr_b32 s{S_T1}, s2, 3")
    A(f"s_lshl_b32 s{S_T2}, s{S_T1}, 2"); A(f"s_add_u32 s{S_T2}, s{S_T2}, s{S_WV}"); A(f"s_min_u32 s{S_T2}, s{S_T2}, ((K12_end-K12_pc)>>10)-1"); A(f"s_lshl_b32 s{S_T2}, s{S_T2}, 10")
    A(f"v_add_u32 v{VT+4}, s{S_T2}, v{VL16}")
    A.vm(f"global_load_dwordx4 v[{WF+36}:{WF+39}], v{VT+4}, s[{S_E2}:{S_E2+1}]")
    A(f"s_and_b32 s{S_T2}, s{S_T1}, 7"); A(f"s_lshr_b32 s{S_CP}, s{S_T1}, 3")
    A(f"s_lshr_b32 s{S_T}, s{S_T0}, 2"); A(f"s_lshl_b32 s{S_T}, s{S_T}, 3"); A(f"s_add_u32 s{S_T}, s{S_T}, s{S_T2}")
    A(f"s_and_b32 s{S_IDX}, s{S_T0}, 3"); A(f"s_lshl_b32 s{S_IDX}, s{S_IDX}, 1")
    A(f"s_and_b32 s{S_T3}, s{S_CP}, 1"); A(f"s_add_u32 s{S_IDX}, s{S_IDX}, s{S_T3}")
    A(f"s_and_b32 s{S_TAU}, s{S_T1}, 3"); A(f"s_lshl_b32 s{S_T3}, s{S_T0}, 2"); A(f"s_add_u32 s{S_TAU}, s{S_TAU}, s{S_T3}")
    A(f"s_lshr_b32 s{S_T4}, s{S_T1}, 2")
    A(f"s_add_u32 s{S_T0}, s{S_CP}, s{S_T2}"); A(f"s_and_b32 s{S_T0}, s{S_T0}, 3"); A(f"s_lshl_b32 s{S_T0}, s{S_T0}, 1")
    A(f"s_lshr_b32 s{S_T1}, s{S_T2}, 2"); A(f"s_add_u32 s{S_T0}, s{S_T0}, s{S_T1}")
    A(f"s_lshl_b32 s{S_KW}, s{S_T0}, 6")
    A(f"s_lshr_b32 s{S_WM}, s{S_WV}, 1"); A(f"s_and_b32 s{S_WN}, s{S_WV}, 1")
    t0, t1, t3, t4 = VT, VT+1, VT+3, VT+4
    A(f"v_lshrrev_b32 v{t0}, 3, v{VLANE}"); A(f"v_and_b32 v{t1}, 7, v{VLANE}")
    A(f"v_lshrrev_b32 v{t3}, 4, v{VLANE}"); A(f"v_xor_b32 v{t3}, v{t1}, v{t3}"); A(f"v_lshlrev_b32 v{t3}, 4, v{t3}")
    A(f"v_lshlrev_b32 v{t4}, 10, v{t0}"); A(f"v_add_u32 v{VOX}, v{t3}, v{t4}")
    A(f"v_xor_b32 v{VOX+1}, 64, v{VOX}"); A(f"v_add_u32 v{VOX+1}, {8*1024}, v{VOX+1}")
    A(f"v_add_u32 v{VOX+2}, {16*1024}, v{VOX}"); A(f"v_add_u32 v{VOX+3}, {16*1024}, v{VOX+1}")
    A(f"s_lshl_b32 s{S_XB}, s{S_T}, 7"); A(f"s_lshl_b32 s{S_T0}, s{S_WV}, 5"); A(f"s_add_u32 s{S_XB}, s{S_XB}, s{S_T0}"); A(f"s_lshl_b32 s{S_XB}, s{S_XB}, 10")
    A(f"s_lshl_b32 s{S_KX}, s{S_KW}, 1")
    A(f"s_and_b32 s{S_T0}, s{S_WV}, 1"); A(f"s_lshl_b32 s{S_T0}, s{S_T0}, 4"); A(f"s_add_u32 s{S_KH}, s{S_KW}, s{S_T0}")
    A(f"s_lshl_b32 s{S_T0}, s{S_WV}, 3"); A(f"s_add_u32 s{S_KW}, s{S_KW}, s{S_T0}")
    A(f"s_lshl_b32 s{S_W1K}, s{S_WV}, 10"); A(f"s_lshl_b32 s{S_W4K}, s{S_WV}, 12")
    A(f"s_lshr_b32 s{S_T0}, s{S_CP}, 1"); A(f"s_lshl_b32 s{S_T0}, s{S_T0}, 3"); A(f"s_add_u32 s{S_T3}, s{S_T0}, s{S_IDX}")
    A(f"s_lshl_b32 s{S_T0}, s{S_T}, 7"); A(f"s_lshl_b32 s{S_T1}, s{S_T3}, 3"); A(f"s_add_u32 s{S_T0}, s{S_T0}, s{S_T1}"); A(f"s_lshl_b32 s{S_T1}, s{S_WV}, 1"); A(f"s_add_u32 s{S_T2}, s{S_T0}, s{S_T1}")
    A(f"s_lshl_b32 s{S_T0}, s{S_T2}, 10"); A(f"v_add_u32 v{VT+5}, s{S_T0}, v{VL16}")
    A("s_waitcnt lgkmcnt(0)")
    A(f"s_mov_b32 s{S_J}, s{S_T4}")
    A(f"s_cmp_ge_u32 s2, {NZERO}"); A("s_cbranch_scc1 K12_nozero")
    A(f"s_lshl_b32 s{S_T0}, s2, 12"); A(f"s_add_u32 s{S_T0}, s{S_T0}, {WS_KV}")
    A(f"v_lshlrev_b32 v{VT+6}, 4, v{VTID}"); A(f"v_add_u32 v{VT+6}, s{S_T0}, v{VT+6}")
    for i in range(4): A(f"v_mov_b32 v{VT+8+i}, 0")
    A(f"!global_store_dwordx4 v{VT+6}, v[{VT+8}:{VT+11}], s[{S_WSP}:{S_WSP+1}] sc1")
    A("K12_nozero:")
    SX = WF + 20
    A.vm(f"global_load_dwordx4 v[{SX}:{SX+3}], v{VT+5}, s[{P_X}:{P_X+1}]")
    A.vm(f"global_load_dwordx4 v[{SX+4}:{SX+7}], v{VT+5}, s[{P_X}:{P_X+1}] offset:1024", id="strow")
    A(f"s_lshl_b32 s{S_HB}, s{S_T2}, 2")
    A(f"s_mov_b32 s{S_I1}, s{S_T3}")
    srd(A, S_X, P_X, P_X+1, 2048*1024)

class G1:
    def __init__(self, A, typ):
        self.A = A; self.typ = typ; self.w2 = W2(A)
        self.kinds = ["gu","gu","gu","gu","q"] if typ == "A" else ["kv","kv","gu","gu","guh"]
        if typ == "A": self.strides = [3584,3584,3584,3584,3072]; self.swz = ["g","u","g","u","q"]
        else: self.strides = [3072,3072,3584,3584,3584]; self.swz = ["g","u","g","u","h"]
    def Wg(self, h):
        o = []
        if h > 0:
            o.append([f"s_add_u32 s{S_KW}, s{S_KW}, 32", f"s_and_b32 s{S_KW}, s{S_KW}, 511"])
            if self.typ == "B": o.append([f"s_add_u32 s{S_KH}, s{S_KH}, 32", f"s_and_b32 s{S_KH}, s{S_KH}, 511"])
        o.append([f"s_mul_i32 s{S_R30}, s{S_KW}, 3072", f"s_mul_i32 s{S_R35}, s{S_KW}, 3584"])
        if self.typ == "B": o.append([f"s_mul_i32 s{S_RH}, s{S_KH}, 3584"])
        for rho in range(5):
            so = S_RH if self.swz[rho] == "h" else (S_R30 if self.strides[rho] == 3072 else S_R35)
            o.append(("dma", f"s_add_u32 m0, s{S_W1K}, {W_BASE + (h % W_NS)*W_SLOT + rho*4096}",
                      ("vm", f"W{h}_{rho}", f"buffer_load_dwordx4 v{VOW+rho}, s[{S_W+4*rho}:{S_W+4*rho+3}], s{so} offen lds")))
        return o
    def Xg(self, sg):
        o = []
        if sg > 0: o.append([f"s_add_u32 s{S_KX}, s{S_KX}, 128", f"s_and_b32 s{S_KX}, s{S_KX}, 1023"])
        o.append([f"s_add_u32 s{S_XO}, s{S_XB}, s{S_KX}"])
        for j in range(4):
            o.append(("dma", f"s_add_u32 m0, s{S_W4K}, {X_BASE + (sg % 3)*X_SLOT + j*1024}",
                      ("vm", f"X{sg}_{j}", f"buffer_load_dwordx4 v{VOX+j}, s[{S_X}:{S_X+3}], s{S_XO} offen lds")))
        return o
    def reads(self, s):
        par = s & 1; kk = s & 3; sg = s >> 2; h = s >> 1; second = s & 1
        xo = (sg % 3)*X_SLOT
        o = [f"ds_read_b128 v[{XF+8*par}:{XF+8*par+3}], v{XA+kk} offset:{xo}", f"ds_read_b128 v[{XF+8*par+4}:{XF+8*par+7}], v{XA+kk} offset:{xo+4096}"]
        for blk, kd in enumerate(self.kinds):
            b = WF + 20*par + 4*blk
            if kd == "guh": o1, o2 = (1024 if second else 0), 256
            else: o1, o2 = (2048 if second else 0), 512
            o1 += (h % W_NS)*W_SLOT
            o.append(f"ds_read_b64_tr_b16 v[{b}:{b+1}], v{TRA+blk} offset:{o1}")
            o.append(f"ds_read_b64_tr_b16 v[{b+2}:{b+3}], v{TRA+blk} offset:{o1+o2}")
        return o
    def mfmas(self, s, order=None):
        par = s & 1; o = []
        for blk in (order or range(5)):
            kd = self.kinds[blk]
            wf = f"v[{WF+20*par+4*blk}:{WF+20*par+4*blk+3}]"
            for tb in range(2):
                xf = f"v[{XF+8*par+4*tb}:{XF+8*par+4*tb+3}]"; a = acc(blk, tb)
                c = "0" if s == 0 else f"v[{a}:{a+15}]"
                if kd == "kv": o.append(f"v_mfma_f32_32x32x16_bf16 v[{a}:{a+15}], {xf}, {wf}, {c}")
                else: o.append(f"v_mfma_f32_32x32x16_bf16 v[{a}:{a+15}], {wf}, {xf}, {c}")
        return o
    def corr(self):
        o = []
        for blk in range(5):
            for tb in range(2):
                a = acc(blk, tb); cf = ar(ACF+4*blk, 4); mf = ar(AMF+4*tb, 4)
                if self.kinds[blk] == "kv": o.append(f"v_mfma_f32_32x32x16_bf16 v[{a}:{a+15}], {mf}, {cf}, v[{a}:{a+15}]")
                else: o.append(f"v_mfma_f32_32x32x16_bf16 v[{a}:{a+15}], {cf}, {mf}, v[{a}:{a+15}]")
        return o

    def prologue(self):
        A, typ, kinds = self.A, self.typ, self.kinds
        SZQ, SZG = 512*3072, 512*3584
        emit_items(A, self.Xg(0))
        if typ == "A":
            A(f"s_lshl_b32 s{S_T0}, s{S_IDX}, 8")
            srd_off(A, S_W+0, P_G, P_G+1, f"s{S_T0}", SZG); srd_off(A, S_W+4, P_U, P_U+1, f"s{S_T0}", SZG)
            A(f"s_add_u32 s{S_T0}, s{S_T0}, 128")
            srd_off(A, S_W+8, P_G, P_G+1, f"s{S_T0}", SZG); srd_off(A, S_W+12, P_U, P_U+1, f"s{S_T0}", SZG)
            A(f"s_lshl_b32 s{S_T0}, s{S_IDX}, 7")
            srd_off(A, S_W+16, P_WQ, P_WQ+1, f"s{S_T0}", SZQ)
        else:
            A(f"s_lshl_b32 s{S_T0}, s{S_IDX}, 7"); A(f"s_add_u32 s{S_T0}, s{S_T0}, 1024")
            srd_off(A, S_W+0, P_WQ, P_WQ+1, f"s{S_T0}", SZQ)
            A(f"s_add_u32 s{S_T0}, s{S_T0}, 1024")
            srd_off(A, S_W+4, P_WQ, P_WQ+1, f"s{S_T0}", SZQ)
            A(f"s_lshl_b32 s{S_T0}, s{S_IDX}, 7"); A(f"s_add_u32 s{S_T0}, s{S_T0}, {16*128}")
            srd_off(A, S_W+8, P_G, P_G+1, f"s{S_T0}", SZG); srd_off(A, S_W+12, P_U, P_U+1, f"s{S_T0}", SZG)
            A(f"s_lshr_b32 s{S_T0}, s{S_IDX}, 1"); A(f"s_add_u32 s{S_T0}, s{S_T0}, 24"); A(f"s_lshl_b32 s{S_T0}, s{S_T0}, 7")
            A(f"s_and_b32 s{S_T1}, s{S_IDX}, 1"); A(f"s_lshl_b32 s{S_T1}, s{S_T1}, 6"); A(f"s_add_u32 s{S_T0}, s{S_T0}, s{S_T1}")
            A(f"s_cmp_ge_u32 s{S_WV}, 2")
            A(f"s_cselect_b32 s{S_T2}, s{P_U}, s{P_G}"); A(f"s_cselect_b32 s{S_T3}, s{P_U+1}, s{P_G+1}")
            srd_off(A, S_W+16, S_T2, S_T3, f"s{S_T0}", SZG)
        t0, t1, t2, t3, t4 = VT, VT+1, VT+2, VT+3, VT+4
        A(f"v_lshrrev_b32 v{t0}, 3, v{VLANE}"); A(f"v_and_b32 v{t1}, 7, v{VLANE}")
        A(f"v_lshrrev_b32 v{t2}, 4, v{VLANE}"); A(f"v_and_b32 v{t2}, 1, v{t2}")
        done = {}
        for rho in range(5):
            key = (self.swz[rho], self.strides[rho])
            if key in done:
                A(f"v_mov_b32 v{VOW+rho}, v{VOW+done[key]}"); continue
            done[key] = rho
            if self.swz[rho] == "h":
                A(f"v_lshrrev_b32 v{t3}, 2, v{VLANE}"); A(f"v_and_b32 v{t4}, 3, v{VLANE}")
                A(f"s_lshr_b32 s{S_T0}, s{S_WV}, 1"); A(f"s_lshl_b32 s{S_T0}, s{S_T0}, 1")
                A(f"v_xor_b32 v{t4}, s{S_T0}, v{t4}")
                A(f"v_mul_u32_u24 v{t3}, 3584, v{t3}"); A(f"v_lshlrev_b32 v{t4}, 4, v{t4}"); A(f"v_add_u32 v{VOW+rho}, v{t3}, v{t4}")
            else:
                if self.swz[rho] == "q": A(f"v_lshlrev_b32 v{t3}, 2, v{t2}")
                else:
                    A(f"v_lshlrev_b32 v{t3}, 1, v{t2}")
                    if self.swz[rho] == "u": A(f"v_or_b32 v{t3}, 4, v{t3}")
                A(f"v_xor_b32 v{t3}, v{t1}, v{t3}"); A(f"v_lshlrev_b32 v{t3}, 4, v{t3}")
                A(f"v_mul_u32_u24 v{t4}, {self.strides[rho]}, v{t0}"); A(f"v_add_u32 v{VOW+rho}, v{t3}, v{t4}")
        emit_items(A, self.Wg(0)); emit_items(A, self.Wg(1))
        A.stamp(1)
        A(f"v_lshlrev_b32 v{t3}, 2, v{t2}"); A(f"v_xor_b32 v{t3}, v{t1}, v{t3}"); A(f"v_lshlrev_b32 v{t3}, 4, v{t3}")
        A(f"v_lshlrev_b32 v{t4}, 10, v{t0}"); A(f"v_add_u32 v{VDM}, v{t3}, v{t4}")
        A(f"s_lshl_b32 s{S_T0}, s{S_J}, 7")
        srd_off(A, S_WD, P_D, P_D+1, f"s{S_T0}", 1792*1024)
        A(f"s_mul_i32 s{S_LB}, s{S_WV}, {NSL*2048}"); A(f"s_add_u32 s{S_LB}, s{S_LB}, {W2IN}")
        srd_wo_done = False
        A(f"s_load_dwordx2 s[{S_DBG}:{S_DBG+1}], s[0:1], 64")
        A(f"s_mov_b32 s{S_CG}, s{S_I1}")
        A(f"s_lshr_b32 s{S_T0}, s{S_T}, 3"); A(f"s_lshl_b32 s{S_T0}, s{S_T0}, 1"); A(f"s_add_u32 s{S_KSC}, s{S_T0}, s{S_WM}")
        A(f"v_and_b32 v{t0}, 31, v{VLANE}")
        A(f"v_and_b32 v{t1}, 15, v{t0}"); A(f"v_lshrrev_b32 v{t2}, 4, v{t0}")
        def cs_addr(dst, soff_code, lane_kind):
            soff_code()
            if lane_kind == "gu":
                A(f"v_mul_u32_u24 v{t3}, 1792, v{t2}"); A(f"v_add_u32 v{t3}, v{t3}, v{t1}")
            elif lane_kind == "kv":
                A(f"v_lshlrev_b32 v{t3}, 9, v{t2}"); A(f"v_add_u32 v{t3}, v{t3}, v{t1}")
            else: A(f"v_mov_b32 v{t3}, v{t0}")
            A(f"v_add_u32 v{t3}, s{S_T0}, v{t3}"); A(f"v_lshlrev_b32 v{t3}, 2, v{t3}"); A(f"v_add_u32 v{dst}, {WS_CS}, v{t3}")
        if typ == "A":
            cs_addr(VC1, lambda: (A(f"s_lshl_b32 s{S_T0}, s{S_IDX}, 1"), A(f"s_add_u32 s{S_T0}, s{S_T0}, s{S_WN}"), A(f"s_lshl_b32 s{S_T0}, s{S_T0}, 6"), A(f"s_add_u32 s{S_T0}, s{S_T0}, 1536")), "gu")
            cs_addr(VC2, lambda: (A(f"s_lshl_b32 s{S_T0}, s{S_IDX}, 6"), A(f"s_lshl_b32 s{S_T1}, s{S_WN}, 5"), A(f"s_add_u32 s{S_T0}, s{S_T0}, s{S_T1}")), "q")
            self.csa = [(VC1, 0), (VC1, 64), (VC1, 128), (VC1, 192), (VC2, 0)]
        else:
            cs_addr(VC2, lambda: (A(f"s_lshl_b32 s{S_T0}, s{S_IDX}, 6"), A(f"s_lshl_b32 s{S_T1}, s{S_WN}, 5"), A(f"s_add_u32 s{S_T0}, s{S_T0}, s{S_T1}"), A(f"s_add_u32 s{S_T0}, s{S_T0}, 512")), "kv")
            cs_addr(VC1, lambda: (A(f"s_add_u32 s{S_T0}, s{S_IDX}, 16"), A(f"s_lshl_b32 s{S_T0}, s{S_T0}, 6"), A(f"s_lshl_b32 s{S_T1}, s{S_WN}, 5"), A(f"s_add_u32 s{S_T0}, s{S_T0}, s{S_T1}"), A(f"s_add_u32 s{S_T0}, s{S_T0}, 1536")), "gu")
            cs_addr(VC3, lambda: (A(f"s_lshr_b32 s{S_T0}, s{S_IDX}, 1"), A(f"s_add_u32 s{S_T0}, s{S_T0}, 24"), A(f"s_lshl_b32 s{S_T0}, s{S_T0}, 6"),
                                  A(f"s_and_b32 s{S_T1}, s{S_IDX}, 1"), A(f"s_lshl_b32 s{S_T1}, s{S_T1}, 1"), A(f"s_add_u32 s{S_T1}, s{S_T1}, s{S_WN}"), A(f"s_lshl_b32 s{S_T1}, s{S_T1}, 4"),
                                  A(f"s_add_u32 s{S_T0}, s{S_T0}, s{S_T1}"), A(f"s_add_u32 s{S_T0}, s{S_T0}, 1536")), "gu")
            self.csa = [(VC2, 0), (VC2, 64), (VC1, 0), (VC1, 64), (VC3, 0)]
        A(f"v_mov_b32 v{t3}, 0x3f803f80")
        for i in range(4): A(f"v_accvgpr_write_b32 a{A_ONES+i}, v{t3}")
        srd_off(A, S_H, S_WSP, S_WSP+1, WS_H, WS_H + H_BYTES)
        G, p, r, c = t0, t1, t2, t3
        A(f"v_lshrrev_b32 v{G}, 4, v{VLANE}"); A(f"v_and_b32 v{G}, 1, v{G}")
        A(f"v_lshrrev_b32 v{p}, 5, v{VLANE}")
        A(f"v_and_b32 v{r}, 15, v{VLANE}"); A(f"v_lshrrev_b32 v{r}, 2, v{r}")
        A(f"v_and_b32 v{c}, 3, v{VLANE}")
        k_, rb, u1, u2 = t4, t4+1, t4+2, t4+3
        A(f"v_lshlrev_b32 v{k_}, 3, v{p}"); A(f"v_add_u32 v{k_}, v{k_}, v{r}")
        A(f"v_lshrrev_b32 v{rb}, 1, v{r}"); A(f"v_and_b32 v{rb}, 1, v{rb}")
        for blk, kd in enumerate(kinds):
            d = TRA + blk
            if typ == "A" and kd == "gu" and blk > 0:
                A(f"v_xor_b32 v{d}, {blk*32}, v{TRA}"); continue
            if typ == "B" and blk in (1, 3):
                A(f"v_xor_b32 v{d}, 32, v{d-1}"); continue
            if kd == "guh":
                A(f"v_lshrrev_b32 v{u1}, 1, v{c}"); A(f"s_lshl_b32 s{S_T0}, s{S_WN}, 1"); A(f"v_add_u32 v{u1}, s{S_T0}, v{u1}")
                A(f"v_lshlrev_b32 v{u2}, 1, v{G}"); A(f"v_xor_b32 v{u1}, v{u1}, v{u2}"); A(f"v_lshlrev_b32 v{u1}, 4, v{u1}")
                A(f"v_lshlrev_b32 v{u2}, 6, v{k_}"); A(f"v_add_u32 v{u1}, v{u1}, v{u2}")
                A(f"v_lshlrev_b32 v{u2}, 11, v{G}"); A(f"v_add_u32 v{u1}, v{u1}, v{u2}")
                A(f"v_add_u32 v{u1}, {W_BASE + 4*4096}, v{u1}")
            else:
                if kd == "q":
                    A(f"s_lshl_b32 s{S_T0}, s{S_WN}, 1"); A(f"v_add_u32 v{u1}, s{S_T0}, v{G}")
                elif typ == "A": A(f"v_mov_b32 v{u1}, 0")
                else:
                    A(f"s_lshl_b32 s{S_T0}, s{S_WN}, 1"); A(f"v_mov_b32 v{u1}, s{S_T0}")
                A(f"v_lshlrev_b32 v{u1}, 1, v{u1}"); A(f"v_lshrrev_b32 v{u2}, 1, v{c}"); A(f"v_add_u32 v{u1}, v{u1}, v{u2}")
                if kd == "q": A(f"v_lshlrev_b32 v{u2}, 2, v{rb}")
                else:
                    A(f"v_lshlrev_b32 v{u2}, 1, v{rb}"); A(f"v_lshlrev_b32 v{d}, 2, v{G}"); A(f"v_or_b32 v{u2}, v{u2}, v{d}")
                A(f"v_xor_b32 v{u1}, v{u1}, v{u2}"); A(f"v_lshlrev_b32 v{u1}, 4, v{u1}")
                A(f"v_lshlrev_b32 v{u2}, 7, v{k_}"); A(f"v_add_u32 v{u1}, v{u1}, v{u2}")
                if kd == "q": A(f"v_add_u32 v{u1}, {W_BASE + 4*4096}, v{u1}")
                else:
                    if typ == "A":
                        A(f"s_lshl_b32 s{S_T0}, s{S_WN}, 13"); A(f"s_add_u32 s{S_T0}, s{S_T0}, {W_BASE}")
                    else: A(f"s_mov_b32 s{S_T0}, {W_BASE + (0 if kd == 'kv' else 2*4096)}")
                    A(f"v_lshlrev_b32 v{u2}, 12, v{G}"); A(f"v_add_u32 v{u1}, v{u1}, v{u2}"); A(f"v_add_u32 v{u1}, s{S_T0}, v{u1}")
            A(f"v_and_b32 v{u2}, 1, v{c}"); A(f"v_lshlrev_b32 v{u2}, 3, v{u2}"); A(f"v_add_u32 v{d}, v{u1}, v{u2}")
        A(f"v_lshlrev_b32 v{u1}, 2, v{p}"); A(f"v_add_u32 v{u1}, v{u1}, v{r}"); A(f"v_lshlrev_b32 v{u1}, 7, v{u1}")
        A(f"v_lshlrev_b32 v{u2}, 1, v{G}"); A(f"v_lshrrev_b32 v{VTR}, 1, v{c}"); A(f"v_add_u32 v{u2}, v{u2}, v{VTR}")
        A(f"v_lshlrev_b32 v{VTR}, 2, v{rb}"); A(f"v_xor_b32 v{u2}, v{u2}, v{VTR}"); A(f"v_lshlrev_b32 v{u2}, 4, v{u2}"); A(f"v_add_u32 v{u1}, v{u1}, v{u2}")
        A(f"v_and_b32 v{u2}, 1, v{c}"); A(f"v_lshlrev_b32 v{u2}, 3, v{u2}"); A(f"v_add_u32 v{u1}, v{u1}, v{u2}")
        A(f"v_add_u32 v{VTR}, s{S_LB}, v{u1}"); A(f"v_xor_b32 v{VTR1}, 64, v{VTR}")
        A(f"v_and_b32 v{u1}, 31, v{VLANE}"); A(f"s_lshl_b32 s{S_T0}, s{S_WM}, 6"); A(f"v_add_u32 v{u1}, s{S_T0}, v{u1}")
        A(f"v_lshrrev_b32 v{u2}, 1, v{u1}"); A(f"v_and_b32 v{u2}, 7, v{u2}"); A(f"v_xor_b32 v{u2}, v{u2}, v{p}"); A(f"v_lshlrev_b32 v{u2}, 4, v{u2}")
        A(f"v_lshlrev_b32 v{u1}, 7, v{u1}"); A(f"v_add_u32 v{u1}, v{u1}, v{u2}")
        for kk in range(4): A(f"v_xor_b32 v{XA+kk}, {kk*32}, v{u1}")
        SX = WF + 20
        A.wait("strow")
        P0, P1, Q0, Q1, U = VT, VT+2, VT+4, VT+6, VT+8
        for tok, (P, Q) in enumerate(((P0, Q0), (P1, Q1))):
            for i in range(4):
                src = SX + 4*tok + i
                A(f"v_lshlrev_b32 v{U}, 16, v{src}"); A(f"v_and_b32 v{U+1}, 0xffff0000, v{src}")
                if i == 0:
                    A(f"v_pk_mul_f32 v[{Q}:{Q+1}], v[{U}:{U+1}], v[{U}:{U+1}]"); A(f"v_mov_b32 v{P}, v{U}"); A(f"v_mov_b32 v{P+1}, v{U+1}")
                else:
                    A(f"v_pk_add_f32 v[{P}:{P+1}], v[{P}:{P+1}], v[{U}:{U+1}]"); A(f"v_pk_fma_f32 v[{Q}:{Q+1}], v[{U}:{U+1}], v[{U}:{U+1}], v[{Q}:{Q+1}]")
        for r_ in (P0, P1, Q0, Q1): A(f"v_add_f32 v{r_}, v{r_}, v{r_+1}")
        for dpp in ("row_shr:1 row_mask:0xf bank_mask:0xf", "row_shr:2 row_mask:0xf bank_mask:0xf", "row_shr:4 row_mask:0xf bank_mask:0xf", "row_shr:8 row_mask:0xf bank_mask:0xf",
                    "row_bcast:15 row_mask:0xa bank_mask:0xf", "row_bcast:31 row_mask:0xc bank_mask:0xf"):
            for r_ in (P0, P1, Q0, Q1): A(f"v_add_f32_dpp v{r_}, v{r_}, v{r_} {dpp}")
        A(f"v_mul_f32 v{P0}, 0x3b000000, v{P0}"); A(f"v_mul_f32 v{P0+1}, 0x3b000000, v{P1}")
        A(f"v_mul_f32 v{Q0}, 0x3b000000, v{Q0}"); A(f"v_mul_f32 v{Q0+1}, 0x3b000000, v{Q1}")
        for j in range(2):
            A(f"v_fma_f32 v{Q0+j}, -v{P0+j}, v{P0+j}, v{Q0+j}"); A(f"v_max_f32 v{Q0+j}, 0, v{Q0+j}"); A(f"v_add_f32 v{Q0+j}, 0x3727c5ac, v{Q0+j}"); A(f"v_rsq_f32 v{Q0+j}, v{Q0+j}")
        A(f"v_mov_b32 v{U}, s{S_HB}"); A(f"v_add_u32 v{U+1}, {WS_R}, v{U}")
        A(f"s_mov_b64 s[{S_E0}:{S_E0+1}], exec"); A("s_mov_b32 exec_lo, 0"); A("s_mov_b32 exec_hi, 0x80000000")
        A.vm(f"global_store_dwordx2 v{U}, v[{P0}:{P0+1}], s[{S_WSP}:{S_WSP+1}] sc1")
        A.vm(f"global_store_dwordx2 v{U+1}, v[{Q0}:{Q0+1}], s[{S_WSP}:{S_WSP+1}] sc1", id="stst")
        A(f"s_mov_b64 exec, s[{S_E0}:{S_E0+1}]")
        A.stamp(2)
        A("s_waitcnt lgkmcnt(0)")
        A.wait("X0_3", "W0_4")
        A("s_barrier")
        A.stamp(3)
        for s in self.reads(0): A(s)
        for x in self.sig(f"s_cmp_lt_u32 s2, {NZERO}", S_DBG, DBG_INIT, None, "init"): A(x)

    def sig(self, cond, base, off_imm, off_sgpr, tag):
        L = f"K12{self.typ}_sig_{tag}"
        o = []
        if cond: o += [cond, f"s_cbranch_scc0 {L}"]
        o += [f"s_cmp_eq_u32 s{S_WV}, 0", f"s_cbranch_scc0 {L}"]
        if off_sgpr is None: o += [f"v_mov_b32 v{VT+9}, {off_imm}"]
        else: o += [f"s_lshl_b32 s{S_T4}, s{off_sgpr}, 7", f"s_add_u32 s{S_T4}, s{S_T4}, {off_imm}", f"v_mov_b32 v{VT+9}, s{S_T4}"]
        o += [f"v_mov_b32 v{VT+8}, 1", f"s_mov_b64 s[{S_E0}:{S_E0+1}], exec", "s_mov_b64 exec, 1",
              f"!global_atomic_add v{VT+9}, v{VT+8}, s[{base}:{base+1}] sc1", f"s_mov_b64 exec, s[{S_E0}:{S_E0+1}]", f"{L}:"]
        return o

    def spin(self, tag, base, vaddr, expect):
        L = f"K12{self.typ}_spin_{tag}"
        return [f"s_mov_b32 s{S_T3}, 0", f"{L}:", f"!global_load_dword v{VT+10}, v{vaddr}, s[{base}:{base+1}] sc1", "s_waitcnt vmcnt(0)",
                f"v_readfirstlane_b32 s{S_T4}, v{VT+10}", f"s_add_u32 s{S_T3}, s{S_T3}, 1", f"s_cmp_ge_u32 s{S_T3}, {POLL_MAX}", f"s_cbranch_scc1 {L}_x",
                f"s_cmp_ge_u32 s{S_T4}, {expect}", f"s_cbranch_scc1 {L}_x", "s_sleep 2", f"s_branch {L}", f"{L}_x:"]

    def w0(self, tag, code):
        L = f"K12{self.typ}_w0_{tag}"
        return [f"s_cmp_eq_u32 s{S_WV}, 0", f"s_cbranch_scc0 {L}"] + code + [f"{L}:"]

    def pre_barrier(self, h):
        typ = self.typ; T = VT
        if h == 2:
            return self.w0("initchk", [("wait", ["initld"]), f"v_readfirstlane_b32 s{S_T4}, v{T+10}", "s_nop 0", f"s_cmp_ge_u32 s{S_T4}, {NZERO}", f"s_cbranch_scc1 K12{typ}_initok",
                                       f"v_mov_b32 v{T+9}, {DBG_INIT}"] + self.spin("init", S_DBG, T+9, NZERO) + [f"K12{typ}_initok:"])
        if h == H_CNT:
            return self.w0("cntchk", [("wait", ["cntld"]), f"v_readfirstlane_b32 s{S_T4}, v{T+5}", "s_nop 0", f"s_cmp_ge_u32 s{S_T4}, 16", f"s_cbranch_scc1 K12{typ}_stok"]
                           + self.spin("st", S_WSP, T+7, 16) + [f"K12{typ}_stok:",
                           f"v_readfirstlane_b32 s{S_T4}, v{T+6}", "s_nop 0", f"s_cmp_ge_u32 s{S_T4}, 16", f"s_cbranch_scc1 K12{typ}_csok"]
                           + self.spin("cs", S_WSP, T+8, 16) + [f"K12{typ}_csok:"])
        return []

    def oneshot_items(self, add, at):
        typ = self.typ; wsp = f"s[{S_WSP}:{S_WSP+1}]"; dbg = f"s[{S_DBG}:{S_DBG+1}]"
        T = VT
        for s in range(4):
            par = s & 1
            it = [f"s_cmp_eq_u32 s{S_KSC}, {s}", f"s_cbranch_scc0 K12{typ}_nocs{s}"]
            for blk in range(5):
                b = WF + 20*par + 4*blk
                it.append(f"v_mfma_f32_32x32x16_bf16 a[{CS_TMP+16*blk}:{CS_TMP+16*blk+15}], a[{A_ONES}:{A_ONES+3}], v[{b}:{b+3}], 0")
            it.append(f"K12{typ}_nocs{s}:")
            self.fixed.setdefault(s, []).append(it)
        self.fixed.setdefault(K_INITLD, []).append(self.w0("initld", [f"v_mov_b32 v{T+9}, {DBG_INIT}", f"s_mov_b64 s[{S_E0}:{S_E0+1}], exec", "s_mov_b64 exec, 1",
                                      ("vmu", "initld", f"global_load_dword v{T+10}, v{T+9}, {dbg} sc1"), f"s_mov_b64 exec, s[{S_E0}:{S_E0+1}]"]))
        it = [[f"v_accvgpr_read_b32 v{T+blk}, a{CS_TMP+16*blk}"] for blk in range(5)]
        at_ = [f"s_mov_b64 s[{S_E0}:{S_E0+1}], exec", "s_mov_b32 exec_hi, 0"]
        for blk in range(5):
            va, off = self.csa[blk]
            at_.append(("vm", f"csat{blk}", f"global_atomic_add_f32 v{va}, v{T+blk}, {wsp} offset:{off}"))
        at_.append(f"s_mov_b64 exec, s[{S_E0}:{S_E0+1}]")
        add(at(K_CSAT), it + [at_])
        self.fixed.setdefault(K_CNTLD, []).append(self.w0("cntld", [f"s_lshl_b32 s{S_T4}, s{S_T}, 7", f"s_add_u32 s{S_T4}, s{S_T4}, {WS_STCNT}", f"v_mov_b32 v{T+7}, s{S_T4}",
                          f"s_lshl_b32 s{S_T4}, s{S_CG}, 7", f"s_add_u32 s{S_T4}, s{S_T4}, {WS_CSCNT}", f"v_mov_b32 v{T+8}, s{S_T4}",
                          f"s_mov_b64 s[{S_E0}:{S_E0+1}], exec", "s_mov_b64 exec, 1",
                          f"!global_load_dword v{T+5}, v{T+7}, {wsp} sc1", ("vmu", "cntld", f"global_load_dword v{T+6}, v{T+8}, {wsp} sc1"),
                          f"s_mov_b64 exec, s[{S_E0}:{S_E0+1}]"]))
        VM = T; VCS = T + 2; VRB = T + 7
        lds = [[f"v_and_b32 v{T+8}, 31, v{VLANE}", f"s_lshl_b32 s{S_T4}, s{S_T}, 7", f"s_lshl_b32 s{S_T3}, s{S_WM}, 6", f"s_add_u32 s{S_T4}, s{S_T4}, s{S_T3}"],
               [f"v_add_u32 v{T+8}, s{S_T4}, v{T+8}", f"v_lshlrev_b32 v{T+8}, 2, v{T+8}", f"v_add_u32 v{T+9}, {WS_R}, v{T+8}"],
               [("vm", None, f"global_load_dword v{VM}, v{T+8}, {wsp} sc1")], [("vm", None, f"global_load_dword v{VM+1}, v{T+8}, {wsp} offset:128 sc1")],
               [("vm", None, f"global_load_dword v{VR}, v{T+9}, {wsp} sc1")], [("vm", None, f"global_load_dword v{VR+1}, v{T+9}, {wsp} offset:128 sc1")]]
        for blk in range(5):
            va, off = self.csa[blk]
            lds.append([("vm", "csld" if blk == 4 and typ == "A" else None, f"global_load_dword v{VCS+blk}, v{va}, {wsp} offset:{off} sc1")])
        if typ == "B":
            lds.append([f"s_lshl_b32 s{S_T4}, s{S_T}, 7", f"v_add_u32 v{T+8}, s{S_T4}, v{VTID}", f"v_lshlrev_b32 v{T+8}, 2, v{T+8}", f"v_add_u32 v{T+8}, {WS_R}, v{T+8}"])
            lds.append([("vm", "csld", f"global_load_dword v{VRB}, v{T+8}, {wsp} sc1")])
        add(at(2*H_CNT-1, 1), lds)
        tt = T + 8; b = T + 10
        items = [[("wait", ["csld"])], [f"v_cmp_gt_u32 vcc, 32, v{VLANE}", "s_nop 1"]]
        for tb in range(2):
            items += [[f"v_cndmask_b32 v{tt}, 0, v{VM+tb}, vcc"], [f"v_cvt_pk_bf16_f32 v{b}, v{tt}, v{tt}"],
                      [f"v_and_b32 v{tt+1}, 0xffff0000, v{b}"], [f"v_sub_f32 v{tt+1}, v{tt}, v{tt+1}"],
                      [f"v_cvt_pk_bf16_f32 v{b+1}, v{tt+1}, 0"],
                      [f"v_accvgpr_write_b32 a{AMF+4*tb}, v{b}"], [f"v_accvgpr_write_b32 a{AMF+4*tb+1}, v{b+1}"],
                      [f"v_accvgpr_write_b32 a{AMF+4*tb+2}, 0"], [f"v_accvgpr_write_b32 a{AMF+4*tb+3}, 0"]]
        for blk in range(5):
            items += [[f"v_cndmask_b32 v{tt}, 0, v{VCS+blk}, vcc"], [f"v_sub_f32 v{tt}, 0, v{tt}"],
                      [f"v_cvt_pk_bf16_f32 v{b+1}, v{tt}, 0"], [f"v_lshlrev_b32 v{tt+1}, 16, v{b+1}"], [f"v_sub_f32 v{tt+1}, v{tt}, v{tt+1}"],
                      [f"v_cvt_pk_bf16_f32 v{b}, v{tt}, v{tt+1}"],
                      [f"v_accvgpr_write_b32 a{ACF+4*blk}, v{b}"], [f"v_accvgpr_write_b32 a{ACF+4*blk+1}, v{b+1}"],
                      [f"v_accvgpr_write_b32 a{ACF+4*blk+2}, 0"], [f"v_accvgpr_write_b32 a{ACF+4*blk+3}, 0"]]
        if typ == "B":
            items += [[f"v_lshlrev_b32 v{tt}, 2, v{VTID}"], [f"v_add_u32 v{tt}, {LDS_R}, v{tt}"],
                      [f"v_cmp_gt_u32 vcc, 128, v{VTID}", f"s_and_saveexec_b64 s[{S_E0}:{S_E0+1}], vcc", f"ds_write_b32 v{tt}, v{VRB}", f"s_mov_b64 exec, s[{S_E0}:{S_E0+1}]"]]
        add(at(K_RANK), items)

    def loop(self):
        A = self.A
        self.loop_start = len(A.l)
        steps = []
        for s in range(32):
            if s == CORR_AT: steps.append(("c", None))
            steps.append(("k", s))
        order_last = [b for b, kd in enumerate(self.kinds) if kd in ("gu","guh")] + [b for b, kd in enumerate(self.kinds) if kd not in ("gu","guh")]
        idx_of = {st: i for i, st in enumerate(steps)}
        def at(s, g=0): return (idx_of[("k", s)], g)
        flex = []
        def add(pos, items):
            for it in items: flex.append((pos, it))
        add(at(0), self.Wg(2)); add(at(0), self.Xg(1)); add(at(1, 1), self.Xg(2))
        for h in range(1, 14): add(at(2*h-1, 1), self.Wg(h+2))
        for sg in range(1, 6): add(at(4*sg-1, 1), self.Xg(sg+2))
        self.fixed = {}
        tagD = {}; tagR = {}; keep = []; placedR = {}
        self.oneshot_items(add, at)
        self.w2_done_R = []
        for i in range(N_IN):
            if i == 28: add(at(min(i+1, 31)), [["__WOSRD__"]])
            dd = self.w2.D(i); tagD[id(dd[0])] = i; keep.append(dd)
            add(at(min(i+1, 31)), dd)
            if i + 1 + DLAG <= 31:
                rr = self.w2.R(i); tagR[id(rr[-1])] = i; keep.append(rr)
                add(at(i+1+DLAG), rr); self.w2_done_R.append(i)
        flex.sort(key=lambda x: x[0])
        gaps_all = []
        pending = list(flex)
        for si, st in enumerate(steps):
            gaps = [[] for _ in range(10)]
            head = []
            if st[0] == "k":
                s = st[1]
                M = self.mfmas(s, order_last if s == 31 else None)
                head = ["s_waitcnt lgkmcnt(0)"]
                odd = s & 1
                if odd:
                    h = (s + 1)//2
                    if h <= 15:
                        ids = [f"W{h}_4"] + ([f"X{h//2}_3"] if h % 2 == 0 else [])
                        if h == 2: ids.append("stst")
                        if h == 6: ids.append("csat4")
                        gaps[0] += self.pre_barrier(h) + [("wait", ids), "s_barrier"]
                        if h == 2: gaps[0] += self.sig(None, S_WSP, WS_STCNT, S_T, "st")
                        if h == 6: gaps[0] += self.sig(None, S_WSP, WS_CSCNT, S_CG, "cs")
                    else:
                        gaps[0] += ["s_barrier"]
                nxt = s + 1
                if nxt < 32:
                    rd = self.reads(nxt)
                    g0 = 1 if odd else 0
                    for i, x in enumerate(rd): gaps[g0 + i//2].append(x)
            else:
                M = self.corr(); head = ["s_waitcnt lgkmcnt(0)"]
            if st[0] == "k" and st[1] in self.fixed:
                for it in self.fixed[st[1]]: gaps[9] += it
            gi = 0
            rest = []
            blocked = False
            for (pos, it) in pending:
                if blocked or pos[0] > si:
                    rest.append((pos, it)); blocked = blocked or False; continue
                if id(it) in tagD and placedR.get(tagD[id(it)] - NSL, -1) == si:
                    rest.append((pos, it)); blocked = True; continue
                g = max(gi, pos[1] if pos[0] == si else 0)
                need = 2 if (isinstance(it, tuple) and it[0] == "dma") else len(it)
                while g < 10 and len(gaps[g]) + min(need, CAP) > CAP: g += 1
                if g >= 10:
                    rest.append((pos, it)); blocked = True; continue
                if id(it) in tagR: placedR[tagR[id(it)]] = si
                if isinstance(it, tuple) and it[0] == "dma":
                    gaps[g].append(it[1]); gaps[g].append("__NOP__"); gaps[g].append(it[2]); gi = g + 1
                else:
                    gaps[g] += it; gi = g
            pending = rest
            for g in gaps:
                while "__NOP__" in g:
                    i = g.index("__NOP__")
                    cand = [j for j in range(i-1) if isinstance(g[j], str) and g[j].startswith("ds_read")]
                    if cand:
                        x = g.pop(cand[-1]); i -= 1; g[i] = x
                    else: g[i] = "s_nop 0"
            for x in head: A(x)
            for i in range(10):
                A(M[i])
                for x in gaps[i]:
                    if x == "__WOSRD__":
                        assert "W15_4" in A.ids
                        A(f"s_lshl_b32 s{S_T0}, s{S_J}, 7")
                        srd_off(A, S_WO, P_WO, P_WO+1, f"s{S_T0}", 512*1024)
                    else: A(x)
        assert not pending, pending[:3]
        txt = A.l
        for i in range(N_IN - NSL):
            rd = [n for n, x in enumerate(txt) if n > self.loop_start and "ds_read_b64_tr_b16 a[%d:" % (8*i+6) in x]
            assert rd, i
            pos_r = rd[-1]
            kind, mul, const = w2row(i+NSL)
            dm = [n for n, x in enumerate(txt) if n > self.loop_start and x.strip() == ("s_add_u32 s%d, s%d, %d" % (S_W2O, S_W2O, const*1024)) and "s_lshl_b32 s%d" % S_W2O in txt[n-1]]
            dm = [n for n in dm if n > pos_r]
            assert dm, (i, pos_r)
            assert any("lgkmcnt(0)" in x for x in txt[pos_r:dm[0]]), ("no lgkm wait", i)

    def flag_store(self, slot_imm, FA, ONE):
        A = self.A
        FA, ONE = VT+4, VT+5
        A(f"v_mov_b32 v{ONE}, 1")
        A(f"s_lshl_b32 s{S_T0}, s{S_T}, 1"); A(f"s_add_u32 s{S_T0}, s{S_T0}, s{S_WM}"); A(f"s_lshl_b32 s{S_T0}, s{S_T0}, 2")
        A(f"s_lshr_b32 s{S_T1}, s{S_IDX}, 1"); A(f"s_add_u32 s{S_T0}, s{S_T0}, s{S_T1}"); A(f"s_lshl_b32 s{S_T0}, s{S_T0}, 4")
        A(f"s_lshl_b32 s{S_T1}, s{S_I1}, 1"); A(f"s_add_u32 s{S_T0}, s{S_T0}, s{S_T1}"); A(f"s_add_u32 s{S_T0}, s{S_T0}, s{S_WN}")
        A(f"s_add_u32 s{S_T0}, s{S_T0}, {slot_imm}"); A(f"s_lshl_b32 s{S_T0}, s{S_T0}, 2"); A(f"s_add_u32 s{S_T0}, s{S_T0}, {WS_FLAG}")
        A(f"v_mov_b32 v{FA}, s{S_T0}")
        A(f"s_mov_b64 s[{S_E0}:{S_E0+1}], exec"); A("s_mov_b64 exec, 1")
        A.vm(f"global_store_dword v{FA}, v{ONE}, s[{S_WSP}:{S_WSP+1}] sc1")
        A(f"s_mov_b64 exec, s[{S_E0}:{S_E0+1}]")

    def transition(self):
        A, typ, kinds = self.A, self.typ, self.kinds
        w2 = self.w2
        tt = VT
        state = {"D": N_IN, "R": len(self.w2_done_R)}
        assert self.w2_done_R == list(range(len(self.w2_done_R)))
        A.stamp(1, "tr")
        def bgD(n=1):
            for _ in range(n):
                i = state["D"]
                if i >= 36 or i - state["R"] >= NSL: return
                emit_items(A, w2.D(i)); state["D"] += 1
        def bgR(n=1):
            for _ in range(n):
                i = state["R"]
                if i >= state["D"]: return
                if i >= 32 and not state.get("vfree"): return
                emit_items(A, w2.R(i)); state["R"] += 1
        def bgD_safe(n=1):
            A("s_waitcnt lgkmcnt(0)"); bgD(n)
        A(f"s_lshl_b32 s{S_T0}, s{S_T}, 1"); A(f"s_add_u32 s{S_T0}, s{S_T0}, s{S_WM}"); A(f"s_lshl_b32 s{S_T0}, s{S_T0}, 2")
        A(f"s_lshr_b32 s{S_T1}, s{S_IDX}, 1"); A(f"s_add_u32 s{S_T0}, s{S_T0}, s{S_T1}"); A(f"s_mul_i32 s{S_HB}, s{S_T0}, {36*2048}")
        A(f"s_and_b32 s{S_I1}, s{S_IDX}, 1")
        I1 = S_I1
        R2 = XF
        for tb in range(2):
            A(f"v_mul_f32 v{R2+2*tb}, v{VR+tb}, v{VR+tb}"); A(f"v_mul_f32 v{R2+2*tb+1}, v{VR+tb}, v{VR+tb}")
        bgR(2)
        PK = WF
        nst = 0
        gublks = [b for b, kd in enumerate(kinds) if kd in ("gu", "guh")]
        lasth = None
        for blk in gublks:
            kd = kinds[blk]
            if typ == "A":
                if blk == 0:
                    A(f"s_lshl_b32 s{S_T2}, s{I1}, 1"); A(f"s_add_u32 s{S_T2}, s{S_T2}, s{S_WN}"); A(f"s_lshl_b32 s{S_T2}, s{S_T2}, 13"); A(f"s_add_u32 s{S_T2}, s{S_T2}, s{S_HB}")
                else: A(f"s_add_u32 s{S_T2}, s{S_T2}, 2048")
            elif kd == "gu":
                if blk == 2:
                    A(f"s_lshl_b32 s{S_T2}, s{I1}, 2"); A(f"s_lshl_b32 s{S_T3}, s{S_WN}, 1"); A(f"s_add_u32 s{S_T2}, s{S_T2}, s{S_T3}"); A(f"s_add_u32 s{S_T2}, s{S_T2}, 16")
                    A(f"s_lshl_b32 s{S_T2}, s{S_T2}, 11"); A(f"s_add_u32 s{S_T2}, s{S_T2}, s{S_HB}")
                else: A(f"s_add_u32 s{S_T2}, s{S_T2}, 2048")
            else:
                A(f"s_lshl_b32 s{S_T2}, s{I1}, 1"); A(f"s_add_u32 s{S_T2}, s{S_T2}, s{S_WN}"); A(f"s_add_u32 s{S_T2}, s{S_T2}, 24")
                A(f"s_lshl_b32 s{S_T2}, s{S_T2}, 11"); A(f"s_add_u32 s{S_T2}, s{S_T2}, s{S_HB}")
            for tb in range(2):
                a = acc(blk, tb); pk = PK + 4*(nst % 4); nst += 1
                for i in range(4): A(f"v_pk_mul_f32 v[{a+2*i}:{a+2*i+1}], v[{a+2*i}:{a+2*i+1}], v[{a+8+2*i}:{a+8+2*i+1}]")
                for i in range(4): A(f"v_pk_mul_f32 v[{a+2*i}:{a+2*i+1}], v[{a+2*i}:{a+2*i+1}], v[{R2+2*tb}:{R2+2*tb+1}]")
                for i in range(4): A(f"v_cvt_pk_bf16_f32 v{pk+i}, v{a+2*i}, v{a+2*i+1}")
                lasth = f"hs_{blk}_{tb}"
                A.vm(f"buffer_store_dwordx4 v[{pk}:{pk+3}], v{VL16}, s[{S_H}:{S_H+3}], s{S_T2} offen offset:{tb*1024} sc1", id=lasth)
            if state["R"] < N_IN: bgR(1)
        bgD_safe(5)
        A.stamp(5); A.stamp(2, "tr")
        FA, ONE = VT+4, VT+5
        A(f"s_mov_b32 s{S_C6}, 0x358637bd"); A(f"s_mov_b32 s{S_C6+1}, 0x358637bd")
        C6 = f"s[{S_C6}:{S_C6+1}]"
        if typ == "A":
            A(f"s_lshl_b32 s{S_T2}, s{I1}, 2"); A(f"s_lshl_b32 s{S_T3}, s{S_WN}, 1"); A(f"s_add_u32 s{S_T2}, s{S_T2}, s{S_T3}"); A(f"s_add_u32 s{S_T2}, s{S_T2}, 28")
            A(f"s_lshl_b32 s{S_T2}, s{S_T2}, 11"); A(f"s_add_u32 s{S_T4}, s{S_T2}, s{S_HB}"); A(f"s_add_u32 s{S_XO}, s{S_T4}, 2048")
            RP = XF + 4; RLP = XF + 6
            for tb in range(2):
                a = acc(4, tb)
                A(f"v_mov_b32 v{RP}, v{VR+tb}"); A(f"v_mov_b32 v{RP+1}, v{VR+tb}")
                A(f"v_mul_f32 v{RLP}, 0x3fb8aa3b, v{VR+tb}"); A(f"v_mul_f32 v{RLP+1}, 0x3fb8aa3b, v{VR+tb}")
                for i in range(0, 16, 4):
                    for j in (0, 2): A(f"v_pk_mul_f32 v[{tt+j}:{tt+j+1}], v[{a+i+j}:{a+i+j+1}], v[{RLP}:{RLP+1}]")
                    for j in (0, 2): A(f"v_pk_fma_f32 v[{a+i+j}:{a+i+j+1}], v[{a+i+j}:{a+i+j+1}], v[{RP}:{RP+1}], {C6}")
                    for j in range(4): A(f"v_exp_f32_e64 v{tt+j}, v{tt+j} clamp")
                    for j in range(4): A(f"v_max_f32 v{a+i+j}, s{S_C6}, v{a+i+j}")
                    for j in (0, 2): A(f"v_pk_add_f32 v[{a+i+j}:{a+i+j+1}], v[{a+i+j}:{a+i+j+1}], v[{tt+j}:{tt+j+1}]")
                for hs in range(2):
                    pk = PK + 4*(nst % 4); nst += 1
                    for i in range(4): A(f"v_cvt_pk_bf16_f32 v{pk+i}, v{a+8*hs+2*i}, v{a+8*hs+2*i+1}")
                    A.vm(f"buffer_store_dwordx4 v[{pk}:{pk+3}], v{VL16}, s[{S_H}:{S_H+3}], s{S_XO if hs else S_T4} offen offset:{tb*1024} sc1", id=f"pq_{tb}_{hs}")
            A.stamp(3, "tr")
            A.wait(lasth)
            A.stamp(4, "tr")
            self.flag_store(0, FA, ONE)
            state["vfree"] = True
            bgR(6); bgD_safe(6)
            A.stamp(5, "tr")
            A.wait("pq_1_1")
            self.flag_store(8, FA, ONE)
        else:
            CLP, KMP, C2 = XF+4, XF+6, XF+12
            A(f"v_and_b32 v{tt}, 31, v{VLANE}"); A(f"v_cmp_gt_u32 vcc, 16, v{tt}")
            A(f"v_mov_b32 v{tt+1}, 0x358637bd"); A("s_nop 0")
            A(f"v_cndmask_b32 v{CLP}, 0, v{tt+1}, vcc"); A(f"v_cndmask_b32 v{CLP+1}, 0, v{tt+1}, vcc")
            A(f"v_mov_b32 v{tt+2}, 0xff800000")
            A(f"v_cndmask_b32 v{C2}, v{tt+2}, v{tt+1}, vcc")
            A(f"v_cndmask_b32 v{KMP}, 0, 1.0, vcc"); A(f"v_cndmask_b32 v{KMP+1}, 0, 1.0, vcc")
            A(f"s_mov_b64 s[{S_E2}:{S_E2+1}], vcc")
            RR = WF; RL = WF + 16; TP = WF + 32; B2 = XF + 8 - 0
            B2 = VT + 6
            ONES = XF + 8
            A(f"v_mov_b32 v{ONES}, 0x3f803f80")
            A(f"v_lshrrev_b32 v{tt}, 5, v{VLANE}"); A(f"v_lshlrev_b32 v{tt}, 4, v{tt}")
            A(f"s_lshl_b32 s{S_T0}, s{S_WM}, 8"); A(f"s_add_u32 s{S_T0}, s{S_T0}, {LDS_R}"); A(f"v_add_u32 v{XF+9}, s{S_T0}, v{tt}")
            D2 = [acc(2,0), acc(2,1)]
            A(f"s_mov_b32 s{S_T0}, 0x3fb8aa3b"); A(f"s_mov_b32 s{S_T1}, 0x3fb8aa3b")
            first = True
            for tb in range(2):
                for q4 in range(4): A(f"ds_read_b128 v[{RR+4*q4}:{RR+4*q4+3}], v{XF+9} offset:{tb*128 + q4*32}")
                A("s_waitcnt lgkmcnt(0)")
                A(f"s_mov_b32 s{S_T0}, 0x3fb8aa3b"); A(f"s_mov_b32 s{S_T1}, 0x3fb8aa3b")
                for i in range(8): A(f"v_pk_mul_f32 v[{RL+2*i}:{RL+2*i+1}], v[{RR+2*i}:{RR+2*i+1}], s[{S_T0}:{S_T1}]")
                for hb in range(2):
                    a = acc(hb, tb)
                    for i in range(0, 16, 4):
                        for j in (0, 2): A(f"v_pk_mul_f32 v[{tt+j}:{tt+j+1}], v[{a+i+j}:{a+i+j+1}], v[{RL+i+j}:{RL+i+j+1}]")
                        for j in (0, 2): A(f"v_pk_fma_f32 v[{a+i+j}:{a+i+j+1}], v[{a+i+j}:{a+i+j+1}], v[{RR+i+j}:{RR+i+j+1}], v[{CLP}:{CLP+1}]")
                        for j in range(4): A(f"v_exp_f32_e64 v{tt+j}, v{tt+j} clamp")
                        for j in range(4): A(f"v_max_f32 v{a+i+j}, v{a+i+j}, v{C2}")
                        for j in (0, 2): A(f"v_pk_fma_f32 v[{a+i+j}:{a+i+j+1}], v[{tt+j}:{tt+j+1}], v[{KMP}:{KMP+1}], v[{a+i+j}:{a+i+j+1}]")
                    for i in range(8): A(f"v_cvt_pk_bf16_f32 v{TP+i}, v{a+2*i}, v{a+2*i+1}")
                    for i in range(8): A(f"v_cndmask_b32 v{B2+i}, v{TP+i}, v{ONES}, s[{S_E2}:{S_E2+1}]")
                    A("s_nop 1")
                    for f in range(2):
                        c = "0" if (tb == 0 and f == 0) else f"v[{D2[hb]}:{D2[hb]+15}]"
                        A(f"v_mfma_f32_32x32x16_bf16 v[{D2[hb]}:{D2[hb]+15}], v[{TP+4*f}:{TP+4*f+3}], v[{B2+4*f}:{B2+4*f+3}], {c}")
                    if tb == 0 and hb == 1:
                        A.stamp(3, "tr"); A.wait(lasth); A.stamp(4, "tr"); self.flag_store(4, FA, ONE)
            A("s_nop 7"); A("s_nop 7")
            A(f"s_lshl_b32 s{S_T0}, s{S_WM}, 13"); A(f"s_lshl_b32 s{S_T1}, s{S_WN}, 12"); A(f"s_add_u32 s{S_T0}, s{S_T0}, s{S_T1}"); A(f"s_add_u32 s{S_T0}, s{S_T0}, {LDS_KV}")
            A(f"v_lshlrev_b32 v{tt}, 2, v{VLANE}"); A(f"v_add_u32 v{tt}, s{S_T0}, v{tt}")
            for hb in range(2):
                for r_ in range(8): A(f"ds_write_b32 v{tt}, v{D2[hb]+r_} offset:{hb*2048 + r_*256}")
            A("s_waitcnt lgkmcnt(0)"); A("s_barrier")
            A(f"s_lshl_b32 s{S_T0}, s{S_WV}, 11"); A(f"s_add_u32 s{S_T0}, s{S_T0}, {LDS_KV}")
            A(f"s_lshl_b32 s{S_T1}, s{S_IDX}, 2"); A(f"s_add_u32 s{S_T1}, s{S_T1}, s{S_WV}")
            A(f"s_lshl_b32 s{S_T2}, s{S_T1}, 6"); A(f"s_add_u32 s{S_T2}, s{S_T2}, {WS_KVCNT}")
            A(f"s_mul_i32 s{S_T1}, s{S_T1}, {KV_HEAD}"); A(f"s_add_u32 s{S_T1}, s{S_T1}, {WS_KV}")
            A(f"v_and_b32 v{tt}, 7, v{VLANE}"); A(f"v_lshlrev_b32 v{tt}, 8, v{tt}")
            A(f"v_lshrrev_b32 v{tt+1}, 3, v{VLANE}")
            B0 = ACC
            for n in range(4):
                A(f"v_add_u32 v{tt+2}, {32*(n>>1) + 16 + 8*(n&1)}, v{tt+1}"); A(f"v_lshlrev_b32 v{tt+2}, 2, v{tt+2}"); A(f"v_add_u32 v{tt+2}, v{tt+2}, v{tt}"); A(f"v_add_u32 v{tt+2}, s{S_T0}, v{tt+2}")
                A(f"ds_read_b32 v{B0+2*n}, v{tt+2}"); A(f"ds_read_b32 v{B0+2*n+1}, v{tt+2} offset:8192")
            A(f"v_lshlrev_b32 v{tt+2}, 7, v{tt+1}"); A(f"v_add_u32 v{tt+2}, v{tt+2}, v{tt}"); A(f"v_add_u32 v{tt+2}, s{S_T0}, v{tt+2}")
            A(f"v_cmp_gt_u32 vcc, 16, v{VLANE}"); A(f"s_and_saveexec_b64 s[{S_E0}:{S_E0+1}], vcc")
            A(f"ds_read_b32 v{B0+8}, v{tt+2}"); A(f"ds_read_b32 v{B0+9}, v{tt+2} offset:8192")
            A(f"s_mov_b64 exec, s[{S_E0}:{S_E0+1}]")
            A("s_waitcnt lgkmcnt(0)")
            A(f"v_lshlrev_b32 v{tt+2}, 2, v{VLANE}"); A(f"v_add_u32 v{tt+2}, s{S_T1}, v{tt+2}")
            for n in range(4):
                A(f"v_add_f32 v{B0+2*n}, v{B0+2*n}, v{B0+2*n+1}")
                A.vm(f"global_atomic_add_f32 v{tt+2}, v{B0+2*n}, s[{S_WSP}:{S_WSP+1}] offset:{n*256}")
            A(f"v_add_f32 v{B0+8}, v{B0+8}, v{B0+9}")
            A(f"s_and_saveexec_b64 s[{S_E0}:{S_E0+1}], vcc")
            A.vm(f"global_atomic_add_f32 v{tt+2}, v{B0+8}, s[{S_WSP}:{S_WSP+1}] offset:1024", id="kvat")
            A(f"s_mov_b64 exec, s[{S_E0}:{S_E0+1}]")
            A(f"s_mov_b32 s{S_T4}, s{S_T2}")
            state["vfree"] = True
            A.stamp(5, "tr")
            bgR(8); bgD_safe(8)
            A.wait("kvat")
            A(f"v_mov_b32 v{tt+2}, s{S_T4}"); A(f"v_mov_b32 v{ONE}, 1")
            A(f"s_mov_b64 s[{S_E0}:{S_E0+1}], exec"); A("s_mov_b64 exec, 1")
            A.vm(f"global_atomic_add v{tt+2}, v{ONE}, s[{S_WSP}:{S_WSP+1}] sc1")
            A(f"s_mov_b64 exec, s[{S_E0}:{S_E0+1}]")
        A.stamp(6); A.stamp(6, "tr")
        while state["R"] < 36:
            bgR(4); bgD_safe(4)
        A("s_waitcnt lgkmcnt(0)")

class G2:
    ACC2 = 0; HB = 64; NH = 32; W2V = 192
    def __init__(self, A): self.A = A; self.w2 = W2(A)
    def poll(self, label, vaddr, nl, expect=None, novm=False):
        A = self.A; T = VT
        A(f"s_mov_b32 s{S_T3}, 0")
        A(f"s_mov_b64 s[{S_E0}:{S_E0+1}], exec"); A(f"s_mov_b64 exec, {(1<<nl)-1}")
        A.label(label)
        if novm: A.l.append(f"  global_load_dword v{T+9}, v{vaddr}, s[{S_WSP}:{S_WSP+1}] sc1")
        else: A.vm(f"global_load_dword v{T+9}, v{vaddr}, s[{S_WSP}:{S_WSP+1}] sc1")
        A("s_waitcnt vmcnt(0)")
        if expect is None: A(f"v_cmp_ne_u32 vcc, 0, v{T+9}")
        else: A(f"v_cmp_le_u32 vcc, {expect}, v{T+9}")
        A(f"s_add_u32 s{S_T3}, s{S_T3}, 1")
        A(f"s_cmp_ge_u32 s{S_T3}, {POLL_MAX}"); A(f"s_cbranch_scc1 {label}_x")
        A(f"s_cmp_eq_u64 vcc, exec"); A(f"s_cbranch_scc1 {label}_x")
        A("s_sleep 1"); A(f"s_branch {label}")
        A.label(label + "_x")
        A(f"s_mov_b64 exec, s[{S_E0}:{S_E0+1}]")
    def check(self, label, vreg, nl, expect=None):
        pass
    def body(self):
        A = self.A; T = VT; VL = VLANE
        ACC2 = 0; HB = 64; NH = 16; KVR0 = 128
        A.reset_vm()
        VFL, VKV, VCN = T+10, T+11, T+12
        VF1, VF2 = T+8, T+9
        srd(A, S_O, P_O, P_O+1, 2048*1024)
        srd(A, S_XX, P_X, P_X+1, 2048*1024)
        A(f"s_lshl_b32 s{S_HO}, s{S_TAU}, 2"); A(f"s_add_u32 s{S_HO}, s{S_HO}, s{S_WV}")
        A(f"s_lshl_b32 s{S_T0}, s{S_HO}, 6"); A(f"s_add_u32 s{S_T0}, s{S_T0}, {WS_FLAG}")
        A(f"v_lshlrev_b32 v{VFL}, 2, v{VL}"); A(f"v_add_u32 v{VFL}, s{S_T0}, v{VFL}")
        A(f"s_mul_i32 s{S_HO}, s{S_HO}, {36*2048}")
        A(f"s_add_u32 s{S_T4}, s{S_HO}, {56*1024}")
        A(f"v_and_b32 v{T}, 31, v{VL}"); A(f"v_lshrrev_b32 v{T+1}, 5, v{VL}")
        A(f"v_lshlrev_b32 v{T+2}, 4, v{T+1}"); A(f"v_add_u32 v{T+2}, v{T+2}, v{T}"); A(f"v_subrev_u32 v{T+2}, 16, v{T+2}"); A(f"v_lshlrev_b32 v{T+2}, 5, v{T+2}")
        A(f"v_lshlrev_b32 v{T+3}, 5, v{T+1}"); A(f"v_add_u32 v{T+3}, 1024, v{T+3}")
        A(f"v_cmp_gt_u32 vcc, 16, v{T}"); A("s_nop 1"); A(f"v_cndmask_b32 v{T+2}, v{T+2}, v{T+3}, vcc")
        A(f"s_lshl_b32 s{S_T0}, s{S_WV}, 3"); A(f"s_mul_i32 s{S_T0}, s{S_T0}, {KV_HEAD}"); A(f"s_add_u32 s{S_T0}, s{S_T0}, {WS_KV}")
        A(f"v_add_u32 v{VKV}, s{S_T0}, v{T+2}")
        A(f"s_lshl_b32 s{S_T0}, s{S_WV}, 9"); A(f"s_add_u32 s{S_T0}, s{S_T0}, {WS_KVCNT}")
        A(f"v_lshlrev_b32 v{VCN}, 6, v{VL}"); A(f"v_add_u32 v{VCN}, s{S_T0}, v{VCN}")
        A("s_barrier")
        A.stamp(7); A.stamp(7, "tr")
        self.poll("K12_pollH", VFL, 8)
        A.stamp(8, "tr")
        A.stamp(8); A.stamp(1, "g2")
        hstate = {"off": 0}
        def h_items(f):
            o = []
            base = (f // 4) * 4096
            if base != hstate["off"]:
                o.append(f"s_add_u32 s{S_HO}, s{S_HO}, {base - hstate['off']}"); hstate["off"] = base
            hb = HB + 4*(f % NH)
            o.append(("vm", f"h{f}", f"buffer_load_dwordx4 v[{hb}:{hb+3}], v{VL16}, s[{S_H}:{S_H+3}], s{S_HO} offen offset:{(f%4)*1024} sc1"))
            return o
        def pq_items(g):
            o = []
            if g % 4 == 0 and g > 0: o.append(f"s_add_u32 s{S_T4}, s{S_T4}, 4096")
            o.append(("vm", f"pq{g}", f"buffer_load_dwordx4 a[{4*g}:{4*g+3}], v{VL16}, s[{S_H}:{S_H+3}], s{S_T4} offen offset:{(g%4)*1024} sc1"))
            return o
        def kv_items(h):
            b = KVR0 + 8*h
            return [("vm", None, f"global_load_dwordx4 v[{b}:{b+3}], v{VKV}, s[{S_WSP}:{S_WSP+1}] sc1"),
                    ("vm", f"kv{h}", f"global_load_dwordx4 v[{b+4}:{b+7}], v{VKV}, s[{S_WSP}:{S_WSP+1}] offset:16 sc1"),
                    f"v_add_u32 v{VKV}, {KV_HEAD}, v{VKV}"]
        AHEAD = 12
        nextf = 0
        while nextf < AHEAD:
            for x in h_items(nextf): A(x)
            nextf += 1
        A.stamp(2, "g2")
        CHK = 9
        aux = []
        for i in range(28):
            A.wait(f"h{2*i+1}")
            if i == 1: A.stamp(3, "g2")
            gaps = [[] for _ in range(4)]
            if i == CHK - 4:
                gaps[0] += [f"v_add_u32 v{VFL}, 32, v{VFL}", f"s_mov_b64 s[{S_E0}:{S_E0+1}], exec", "s_mov_b64 exec, 15",
                            ("vm", "fq", f"global_load_dword v{VF1}, v{VFL}, s[{S_WSP}:{S_WSP+1}] sc1"), "s_mov_b64 exec, 255",
                            ("vm", "fkv", f"global_load_dword v{VF2}, v{VCN}, s[{S_WSP}:{S_WSP+1}] sc1"), f"s_mov_b64 exec, s[{S_E0}:{S_E0+1}]"]
            for k in range(2):
                if nextf < 56:
                    gaps[1+k] += h_items(nextf); nextf += 1
            if i > CHK and aux:
                n = 1 if nextf < 56 else 2
                for _ in range(n):
                    if aux: gaps[3 if n == 1 else _ + 1] += aux.pop(0)
            mf = []
            for tb in range(2):
                hb = HB + 4*((2*i+tb) % NH)
                for nb in range(2):
                    a = ACC2 + 16*(2*nb+tb)
                    c = "0" if i == 0 else f"v[{a}:{a+15}]"
                    mf.append(f"v_mfma_f32_32x32x16_bf16 v[{a}:{a+15}], {self.w2.frag(i,nb)}, v[{hb}:{hb+3}], {c}")
            for g in range(4):
                A(mf[g])
                for x in gaps[g]: A(x)
            if i == CHK:
                A.stamp(4, "g2")
                A.wait("fkv")
                A(f"s_mov_b64 s[{S_E0}:{S_E0+1}], exec"); A("s_mov_b64 exec, 15")
                A(f"v_cmp_ne_u32 vcc, 0, v{VF1}"); A("s_nop 3"); A("s_cmp_eq_u64 vcc, exec"); A(f"s_mov_b64 exec, s[{S_E0}:{S_E0+1}]")
                A("s_cbranch_scc1 K12_qok")
                self.poll("K12_pollQ", VFL, 4, novm=True)
                A.label("K12_qok")
                A(f"s_mov_b64 s[{S_E0}:{S_E0+1}], exec"); A("s_mov_b64 exec, 255")
                A(f"v_cmp_le_u32 vcc, 16, v{VF2}"); A("s_nop 3"); A("s_cmp_eq_u64 vcc, exec"); A(f"s_mov_b64 exec, s[{S_E0}:{S_E0+1}]")
                A("s_cbranch_scc1 K12_kvok")
                self.poll("K12_pollKV", VCN, 8, expect=16, novm=True)
                A.label("K12_kvok")
                A.stamp(5, "g2")
                for h in range(8):
                    aux.append(kv_items(h)); aux.append(pq_items(2*h)); aux.append(pq_items(2*h+1))
        while aux:
            for x in aux.pop(0): A(x)
        A.stamp(6, "g2")
        A(f"v_lshrrev_b32 v{T+8}, 3, v{VTID}"); A(f"v_and_b32 v{T+9}, 7, v{VTID}")
        A(f"s_lshl_b32 s{S_T0}, s{S_TAU}, 16"); A(f"s_lshl_b32 s{S_T2}, s{S_J}, 7"); A(f"s_add_u32 s{S_T0}, s{S_T0}, s{S_T2}")
        VG = VFL
        A(f"v_lshlrev_b32 v{VG}, 10, v{T+8}"); A(f"v_lshlrev_b32 v{VCN}, 4, v{T+9}"); A(f"v_add_u32 v{VG}, v{VG}, v{VCN}")
        XR = HB
        A.vm(f"buffer_load_dwordx4 v[{XR}:{XR+3}], v{VG}, s[{S_XX}:{S_XX+3}], s{S_T0} offen", id="x0")
        A(f"s_add_u32 s{S_T2}, s{S_T0}, {32*1024}")
        A.vm(f"buffer_load_dwordx4 v[{XR+4}:{XR+7}], v{VG}, s[{S_XX}:{S_XX+3}], s{S_T2} offen", id="x1")
        A(f"s_mov_b32 s{S_T1}, 0x358637bd")
        KVB = [KVR0 + 4*h for h in range(8)]
        DO = [160, 176]
        OF = [T, T+4]
        A.wait("kv7")
        for h in range(8):
            for e in range(4): A(f"v_cvt_pk_bf16_f32 v{KVB[h]+e}, v{KVR0+8*h+2*e}, v{KVR0+8*h+2*e+1}")
        A.wait("pq15")
        units = [(h, tb) for h in range(8) for tb in range(2)]
        def stA(u):
            h, tb = units[u]; d = DO[u & 1]
            return f"v_mfma_f32_32x32x16_bf16 v[{d}:{d+15}], v[{KVB[h]}:{KVB[h]+3}], {ar(4*(2*h+tb), 4)}, 0"
        def stB(u):
            d = DO[u & 1]; o = OF[u & 1]; rc = T + 8
            l = [f"v_add_f32 v{rc}, s{S_T1}, v{d}", f"v_rcp_f32 v{rc}, v{rc}", "s_nop 0"]
            l += [f"v_mul_f32 v{d+8+e}, v{rc}, v{d+8+e}" for e in range(8)]
            l += [f"v_cvt_pk_bf16_f32 v{o+e}, v{d+8+2*e}, v{d+8+2*e+1}" for e in range(4)]
            return l
        def stC(u):
            h, tb = units[u]; o = OF[u & 1]; i = 28 + h
            return [f"v_mfma_f32_32x32x16_bf16 v[{ACC2+16*(2*nb+tb)}:{ACC2+16*(2*nb+tb)+15}], {self.w2.frag(i,nb)}, v[{o}:{o+3}], v[{ACC2+16*(2*nb+tb)}:{ACC2+16*(2*nb+tb)+15}]" for nb in range(2)]
        A("s_nop 1")
        A(stA(0)); A(stA(1))
        A("s_nop 7"); A("s_nop 3")
        for x in stB(0): A(x)
        for u in range(16):
            c = stC(u)
            nb_ = stB(u+1) if u + 1 < 16 else []
            A("s_nop 1"); A(c[0])
            for x in nb_[:5]: A(x)
            if u + 2 < 16: A(stA(u+2))
            for x in nb_[5:10]: A(x)
            A(c[1])
            for x in nb_[10:]: A(x)
        A.stamp(7, "g2")
        RS = 272; WSZ = 64*RS
        A(f"v_and_b32 v{T}, 31, v{VL}"); A(f"v_mul_u32_u24 v{T}, {RS}, v{T}"); A(f"v_lshrrev_b32 v{T+1}, 5, v{VL}"); A(f"v_lshlrev_b32 v{T+1}, 4, v{T+1}"); A(f"v_add_u32 v{T}, v{T}, v{T+1}")
        A(f"s_mul_i32 s{S_T3}, s{S_WV}, {WSZ}"); A(f"v_add_u32 v{T}, s{S_T3}, v{T}")
        A(f"v_lshrrev_b32 v{T+2}, 3, v{VTID}"); A(f"v_and_b32 v{T+3}, 7, v{VTID}")
        A(f"v_mul_u32_u24 v{T+6}, {RS}, v{T+2}"); A(f"v_lshlrev_b32 v{T+7}, 5, v{T+3}"); A(f"v_add_u32 v{T+6}, v{T+6}, v{T+7}")
        A("s_nop 1")
        for tb in range(2):
            if tb == 1: A("s_nop 7")
            for nb in range(2):
                a = ACC2 + 16*(2*nb+tb)
                for q in range(4):
                    A(f"ds_write_b128 v{T}, v[{a+4*q}:{a+4*q+3}] offset:{tb*32*RS + nb*128 + q*32}")
        A("s_waitcnt lgkmcnt(0)"); A("s_barrier")
        A.stamp(8, "g2")
        for ps in range(2):
            b = 72 + 40*ps
            for w in range(4):
                A(f"ds_read_b128 v[{b+8*w}:{b+8*w+3}], v{T+6} offset:{w*WSZ + ps*32*RS}")
                A(f"ds_read_b128 v[{b+8*w+4}:{b+8*w+7}], v{T+6} offset:{w*WSZ + ps*32*RS + 16}")
        for ps in range(2):
            b = 72 + 40*ps
            A(f"s_waitcnt lgkmcnt({8 if ps == 0 else 0})")
            for e in range(0, 8, 2):
                A(f"v_pk_add_f32 v[{b+e}:{b+e+1}], v[{b+e}:{b+e+1}], v[{b+8+e}:{b+8+e+1}]")
                A(f"v_pk_add_f32 v[{b+16+e}:{b+16+e+1}], v[{b+16+e}:{b+16+e+1}], v[{b+24+e}:{b+24+e+1}]")
            for e in range(0, 8, 2):
                A(f"v_pk_add_f32 v[{b+e}:{b+e+1}], v[{b+e}:{b+e+1}], v[{b+16+e}:{b+16+e+1}]")
            A.wait(f"x{ps}")
            xb = XR + 4*ps
            for e in range(4):
                A(f"v_lshlrev_b32 v{T+8}, 16, v{xb+e}"); A(f"v_and_b32 v{T+9}, 0xffff0000, v{xb+e}")
                A(f"v_pk_add_f32 v[{b+2*e}:{b+2*e+1}], v[{b+2*e}:{b+2*e+1}], v[{T+8}:{T+9}]")
                A(f"v_cvt_pk_bf16_f32 v{b+32+e}, v{b+2*e}, v{b+2*e+1}")
            A.vm(f"buffer_store_dwordx4 v[{b+32}:{b+35}], v{VG}, s[{S_O}:{S_O+3}], s{S_T0 if ps == 0 else S_T2} offen")

def gen_k12():
    A = Prog()
    prologue_common(A)
    A(f"s_cmp_ge_u32 s{S_CP}, 2"); A("s_cbranch_scc1 K12_typeB")
    base_nvm = A.nvm; base_ids = dict(A.ids)
    for typ in ("A", "B"):
        if typ == "B":
            A.label("K12_typeB"); A.nvm = base_nvm; A.ids = dict(base_ids)
        g = G1(A, typ)
        g.prologue()
        g.loop()
        A.stamp(4)
        g.transition()
        if typ == "A": A("s_branch K12_g2")
    A.label("K12_g2")
    G2(A).body()
    if STAMP:
        A("s_waitcnt vmcnt(0) lgkmcnt(0)")
        A(f"{STAMP_INS} s[60:61]")
        A("s_waitcnt lgkmcnt(0)")
        A(f"s_lshl_b32 s{S_T0}, s2, 2"); A(f"s_add_u32 s{S_T0}, s{S_T0}, s{S_WV}"); A(f"s_lshl_b32 s{S_T0}, s{S_T0}, 6")
        A(f"s_add_u32 s{S_T0}, s{S_T0}, {WS_STAMP + 65536}")
        A(f"v_mov_b32 v{VT}, s{S_T0}")
        for i in range(9):
            A(f"v_mov_b32 v{VT+1}, s{SB+2*i}")
            A.vm(f"global_store_dword v{VT}, v{VT+1}, s[{S_WSP}:{S_WSP+1}] offset:{4*i}")
        A(f"v_mov_b32 v{VT+1}, s60")
        A.vm(f"global_store_dword v{VT}, v{VT+1}, s[{S_WSP}:{S_WSP+1}] offset:36")
    A.label("K12_end")
    return A.text()

def main(path):
    hdr = open("cdna_kernels/" + NAME + ".s.ref").read().split("; Override")[0]
    n = NAME + "_kernel"
    body = gen_k12()
    out = hdr + "; @launch grid=(256,1,1) block=(256,1,1) lds=163840\n"
    out += '.amdgcn_target "amdgcn-amd-amdhsa--gfx950"\n.text\n'
    out += f""".globl {n}
.p2align 8
.type {n},@function
{n}:
{body}
  s_endpgm
.section .rodata,"a"
.p2align 6
.amdhsa_kernel {n}
  .amdhsa_next_free_vgpr 512
  .amdhsa_next_free_sgpr 102
  .amdhsa_accum_offset 256
  .amdhsa_group_segment_fixed_size 0
  .amdhsa_kernarg_size 80
  .amdhsa_user_sgpr_count 2
  .amdhsa_user_sgpr_kernarg_segment_ptr 1
  .amdhsa_system_sgpr_workgroup_id_x 1
.end_amdhsa_kernel
"""
    open(path, "w").write(out)

if __name__ == "__main__":
    if "--stamp" in sys.argv:
        STAMP = True; sys.argv.remove("--stamp")
    for a in list(sys.argv):
        if a.startswith("--nin="): N_IN = int(a[6:]); sys.argv.remove(a)
        if a.startswith("--smode="): SMODE = a[8:]; sys.argv.remove(a)
        if a.startswith("--rot="): ROT = int(a[6:]); sys.argv.remove(a)
        if a.startswith("--cap="): CAP = int(a[6:]); sys.argv.remove(a)
    if "--cyc" in sys.argv:
        STAMP = True; STAMP_INS = "s_memtime"; sys.argv.remove("--cyc")
    main(sys.argv[1] if len(sys.argv) > 1 else "cdna_kernels/" + NAME + ".s")
```

```python
import sys

NAME = "parallel_sum__linear_attn_block__glu_gated_bilinear__prompt"
WS_M, WS_R, WS_KV, KV_HEAD = 0, 8192, 32768, 1152
WS_FLAG = WS_KV + 36864
WS_KVCNT = WS_FLAG + 8192
WS_CS = WS_KVCNT + 2048
WS_STCNT = WS_CS + 20480
WS_CSCNT = WS_STCNT + 2048
NZERO = 18
assert WS_CSCNT + 2048 <= WS_KV + NZERO*4096 <= 131072
DBG_INIT = 0
CS_TMP = 140
A_ONES = 220
VC1, VC2, VC3 = 251, 252, 253
WS_H = 131072
H_BYTES = 32*4*36*2048
POLL_MAX = 200000
STAMP = False
STAMP_INS = 's_memrealtime'
WS_STAMP = 1 << 24
SB = 84
CORR_AT = 28
N_IN = 31
CAP = 5
SMODE = 'main'
ROT = 8
CODE_PF2 = 0
G2_AHEAD = 12; G2_CHK = 20; G2_PF = 1
K_INITLD = 1; K_CSAT = 5; K_CNTLD = 17; H_CNT = 11; K_RANK = 25
CODE_KB = 48

class Prog:
    def __init__(self): self.l = []; self.nvm = 0; self.ids = {}
    def __call__(self, s):
        if s is None: return
        if isinstance(s, tuple):
            if s[0] == "vm":
                self.l.append("  " + s[2]); self.nvm += 1
                if s[1] is not None: self.ids[s[1]] = self.nvm
            elif s[0] == "vmu":
                self.l.append("  " + s[2]); self.ids[s[1]] = self.nvm
            elif s[0] == "wait":
                last = max(self.ids[i] for i in s[1])
                n = self.nvm - last
                assert n <= 63, (s, n)
                self.l.append(f"  s_waitcnt vmcnt({n})" + (" " + s[2] if len(s) > 2 and s[2] else ""))
            else: raise ValueError(s)
        elif s.endswith(":"): self.l.append(s)
        elif s.startswith("!"):
            self.l.append("  " + s[1:])
        else:
            assert not ("buffer_" in s or "global_" in s), s
            self.l.append("  " + s)
    def vm(self, text, id=None): self(("vm", id, text))
    def wait(self, *ids): self(("wait", list(ids)))
    def label(self, s): self.l.append(s + ":")
    def text(self): return "\n".join(self.l)
    def stamp(self, i, mode="main"):
        if STAMP and (mode == SMODE or i == 0): self.l.append(f"  {STAMP_INS} s[{SB+2*i}:{SB+2*i+1}]")
    def reset_vm(self):
        self.ids = {}

def vr(b, n=1): return f"v{b}" if n == 1 else f"v[{b}:{b+n-1}]"
def ar(b, n=1): return f"a{b}" if n == 1 else f"a[{b}:{b+n-1}]"
def srd(A, d, lo, hi, size):
    A(f"s_mov_b32 s{d}, s{lo}"); A(f"s_and_b32 s{d+1}, s{hi}, 0xffff"); A(f"s_mov_b32 s{d+2}, {size}"); A(f"s_mov_b32 s{d+3}, 0x20000")
def srd_off(A, d, lo, hi, off, size):
    A(f"s_add_u32 s{d}, s{lo}, {off}"); A(f"s_addc_u32 s{d+1}, s{hi}, 0"); A(f"s_and_b32 s{d+1}, s{d+1}, 0xffff")
    if isinstance(off, int): A(f"s_mov_b32 s{d+2}, {size - off}")
    else: A(f"s_sub_u32 s{d+2}, {size}, {off}")
    A(f"s_mov_b32 s{d+3}, 0x20000")

X_BASE = 0; X_SLOT = 16384
W_BASE = 49152; W_SLOT = 20480; W_NS = 3
W2IN = W_BASE + W_NS*W_SLOT
NSL = 6
LDS_R = W2IN + 4*NSL*2048
LDS_KV = 0
DLAG = 5

ACC = 0; WF = 160; XF = 200; TRA = 216; XA = 221; VOW = 225; VOX = 230
VR = 234; VLANE = 236; VL16 = 237; VTID = 238; VDM = 239
VT = 240
VTR = 254; VTR1 = 255
AMF = 228; ACF = 236
def acc(blk, tb): return ACC + (blk*2+tb)*16

S_X = 4; S_W = 8; S_H = 28; S_WSP = 32
S_WV = 34; S_WM = 35; S_WN = 36; S_T = 37; S_IDX = 38
S_KW = 39; S_KH = 40; S_R30 = 41; S_R35 = 42; S_RH = 43; S_KX = 44; S_W1K = 45; S_W4K = 46; S_XB = 47
S_WD = 48; S_LB = 52; S_W2O = 53
S_T0 = 54; S_T1 = 55; S_T2 = 56; S_T3 = 57; S_T4 = 58; S_XO = 59
S_E0 = 60; S_E2 = 62
S_P = 64
P_X, P_WQ, P_WO, P_G, P_U, P_D, P_O = 64, 66, 68, 72, 74, 76, 78
S_DBG = 72; S_KSC = 66; S_CG = 67
S_HB = 80; S_I1 = 81; S_CP = 82; S_TAU = 83; S_J = 70; S_HO = 71
S_WO = 8; S_O = 12; S_XX = 16
S_C6 = 20

def w2row(i):
    if i < 16: return ("D", 256, 16*i)
    if i < 24: return ("D", 128, 1024 + 16*(i-16))
    if i < 28: return ("D", 64, 1536 + 16*(i-24))
    return ("O", 128, 16*(i-28))

class W2:
    def __init__(self, A): self.A = A
    def frag(self, ks, nb, W2V=192):
        f = ks*2 + nb
        return ar(4*f, 4) if f < 64 else vr(W2V + 4*(f-64), 4)
    def half(self, ks, nb, h, W2V=192):
        f = ks*2 + nb
        return ar(4*f + 2*h, 2) if f < 64 else vr(W2V + 4*(f-64) + 2*h, 2)
    def slot_off(self, i):
        return (i % NSL)*2048
    def D(self, i):
        kind, mul, const = w2row(i)
        s = S_WD if kind == "D" else S_WO
        sh = {256: 18, 128: 17, 64: 16}[mul]
        o = []
        for hf in range(2):
            o.append([f"s_lshl_b32 s{S_W2O}, s{S_WV}, {sh}", f"s_add_u32 s{S_W2O}, s{S_W2O}, {(const + 8*hf)*1024}"] if hf == 0 else [f"s_add_u32 s{S_W2O}, s{S_W2O}, 8192"])
            o.append(("dma", f"s_add_u32 m0, s{S_LB}, {self.slot_off(i) + hf*1024}", ("vm", f"w2_{i}_{hf}", f"buffer_load_dwordx4 v{VDM}, s[{s}:{s+3}], s{S_W2O} offen lds")))
        return o
    def R(self, i):
        o = self.slot_off(i)
        r = [[("wait", [f"w2_{i}_1"])]]
        for nb in range(2):
            va = VTR if nb == 0 else VTR1
            r.append([f"ds_read_b64_tr_b16 {self.half(i, nb, 0)}, v{va} offset:{o}", f"ds_read_b64_tr_b16 {self.half(i, nb, 1)}, v{va} offset:{o+1024}"])
        return r

def emit_items(A, items):
    for it in items:
        if isinstance(it, tuple) and it[0] == "dma":
            A(it[1]); A("s_nop 0"); A(it[2])
        else:
            for s in it: A(s)

def prologue_common(A):
    A("s_cmp_ge_u32 s2, 256"); A("s_cbranch_scc1 K12_end")
    A.stamp(0)
    A(f"s_load_dwordx16 s[{S_P}:{S_P+15}], s[0:1], 0")
    A(f"s_load_dwordx2 s[{S_WSP}:{S_WSP+1}], s[0:1], 72")
    A(f"s_getpc_b64 s[{S_E2}:{S_E2+1}]")
    A("K12_pc:")
    A(f"v_and_b32 v{VLANE}, 63, v0")
    A(f"v_lshrrev_b32 v{VT}, 6, v0")
    A(f"v_mov_b32 v{VTID}, v0")
    A(f"v_lshlrev_b32 v{VL16}, 4, v{VLANE}")
    A(f"v_readfirstlane_b32 s{S_WV}, v{VT}")
    A(f"s_and_b32 s{S_T0}, s2, 7"); A(f"s_lshr_b32 s{S_T1}, s2, 3")
    A(f"s_lshl_b32 s{S_T2}, s{S_T1}, 2"); A(f"s_add_u32 s{S_T2}, s{S_T2}, s{S_WV}"); A(f"s_min_u32 s{S_T2}, s{S_T2}, ((K12_end-K12_pc)>>10)-1"); A(f"s_lshl_b32 s{S_T2}, s{S_T2}, 10")
    A(f"v_add_u32 v{VT+4}, s{S_T2}, v{VL16}")
    A.vm(f"global_load_dwordx4 v[{WF+36}:{WF+39}], v{VT+4}, s[{S_E2}:{S_E2+1}]")
    A(f"s_and_b32 s{S_T2}, s{S_T1}, 7"); A(f"s_lshr_b32 s{S_CP}, s{S_T1}, 3")
    A(f"s_lshr_b32 s{S_T}, s{S_T0}, 2"); A(f"s_lshl_b32 s{S_T}, s{S_T}, 3"); A(f"s_add_u32 s{S_T}, s{S_T}, s{S_T2}")
    A(f"s_and_b32 s{S_IDX}, s{S_T0}, 3"); A(f"s_lshl_b32 s{S_IDX}, s{S_IDX}, 1")
    A(f"s_and_b32 s{S_T3}, s{S_CP}, 1"); A(f"s_add_u32 s{S_IDX}, s{S_IDX}, s{S_T3}")
    A(f"s_and_b32 s{S_TAU}, s{S_T1}, 3"); A(f"s_lshl_b32 s{S_T3}, s{S_T0}, 2"); A(f"s_add_u32 s{S_TAU}, s{S_TAU}, s{S_T3}")
    A(f"s_lshr_b32 s{S_T4}, s{S_T1}, 2")
    A(f"s_add_u32 s{S_T0}, s{S_CP}, s{S_T2}"); A(f"s_and_b32 s{S_T0}, s{S_T0}, 3"); A(f"s_lshl_b32 s{S_T0}, s{S_T0}, 1")
    A(f"s_lshr_b32 s{S_T1}, s{S_T2}, 2"); A(f"s_add_u32 s{S_T0}, s{S_T0}, s{S_T1}")
    A(f"s_lshl_b32 s{S_KW}, s{S_T0}, 6")
    A(f"s_lshr_b32 s{S_WM}, s{S_WV}, 1"); A(f"s_and_b32 s{S_WN}, s{S_WV}, 1")
    t0, t1, t3, t4 = VT, VT+1, VT+3, VT+4
    A(f"v_lshrrev_b32 v{t0}, 3, v{VLANE}"); A(f"v_and_b32 v{t1}, 7, v{VLANE}")
    A(f"v_lshrrev_b32 v{t3}, 4, v{VLANE}"); A(f"v_xor_b32 v{t3}, v{t1}, v{t3}"); A(f"v_lshlrev_b32 v{t3}, 4, v{t3}")
    A(f"v_lshlrev_b32 v{t4}, 10, v{t0}"); A(f"v_add_u32 v{VOX}, v{t3}, v{t4}")
    A(f"v_xor_b32 v{VOX+1}, 64, v{VOX}"); A(f"v_add_u32 v{VOX+1}, {8*1024}, v{VOX+1}")
    A(f"v_add_u32 v{VOX+2}, {16*1024}, v{VOX}"); A(f"v_add_u32 v{VOX+3}, {16*1024}, v{VOX+1}")
    A(f"s_lshl_b32 s{S_XB}, s{S_T}, 7"); A(f"s_lshl_b32 s{S_T0}, s{S_WV}, 5"); A(f"s_add_u32 s{S_XB}, s{S_XB}, s{S_T0}"); A(f"s_lshl_b32 s{S_XB}, s{S_XB}, 10")
    A(f"s_lshl_b32 s{S_KX}, s{S_KW}, 1")
    A(f"s_and_b32 s{S_T0}, s{S_WV}, 1"); A(f"s_lshl_b32 s{S_T0}, s{S_T0}, 4"); A(f"s_add_u32 s{S_KH}, s{S_KW}, s{S_T0}")
    A(f"s_lshl_b32 s{S_T0}, s{S_WV}, 3"); A(f"s_add_u32 s{S_KW}, s{S_KW}, s{S_T0}")
    A(f"s_lshl_b32 s{S_W1K}, s{S_WV}, 10"); A(f"s_lshl_b32 s{S_W4K}, s{S_WV}, 12")
    A(f"s_lshr_b32 s{S_T0}, s{S_CP}, 1"); A(f"s_lshl_b32 s{S_T0}, s{S_T0}, 3"); A(f"s_add_u32 s{S_T3}, s{S_T0}, s{S_IDX}")
    A(f"s_lshl_b32 s{S_T0}, s{S_T}, 7"); A(f"s_lshl_b32 s{S_T1}, s{S_T3}, 3"); A(f"s_add_u32 s{S_T0}, s{S_T0}, s{S_T1}"); A(f"s_lshl_b32 s{S_T1}, s{S_WV}, 1"); A(f"s_add_u32 s{S_T2}, s{S_T0}, s{S_T1}")
    A(f"s_lshl_b32 s{S_T0}, s{S_T2}, 10"); A(f"v_add_u32 v{VT+5}, s{S_T0}, v{VL16}")
    A("s_waitcnt lgkmcnt(0)")
    A(f"s_mov_b32 s{S_J}, s{S_T4}")
    A(f"s_cmp_ge_u32 s2, {NZERO}"); A("s_cbranch_scc1 K12_nozero")
    A(f"s_lshl_b32 s{S_T0}, s2, 12"); A(f"s_add_u32 s{S_T0}, s{S_T0}, {WS_KV}")
    A(f"v_lshlrev_b32 v{VT+6}, 4, v{VTID}"); A(f"v_add_u32 v{VT+6}, s{S_T0}, v{VT+6}")
    for i in range(4): A(f"v_mov_b32 v{VT+8+i}, 0")
    A(f"!global_store_dwordx4 v{VT+6}, v[{VT+8}:{VT+11}], s[{S_WSP}:{S_WSP+1}] sc1")
    A("K12_nozero:")
    SX = WF + 20
    A.vm(f"global_load_dwordx4 v[{SX}:{SX+3}], v{VT+5}, s[{P_X}:{P_X+1}]")
    A.vm(f"global_load_dwordx4 v[{SX+4}:{SX+7}], v{VT+5}, s[{P_X}:{P_X+1}] offset:1024", id="strow")
    A(f"s_lshl_b32 s{S_HB}, s{S_T2}, 2")
    A(f"s_mov_b32 s{S_I1}, s{S_T3}")
    srd(A, S_X, P_X, P_X+1, 2048*1024)

class G1:
    def __init__(self, A, typ):
        self.A = A; self.typ = typ; self.w2 = W2(A)
        self.kinds = ["gu","gu","gu","gu","q"] if typ == "A" else ["k","v","gu","gu","guh"]
        if typ == "A": self.strides = [3584,3584,3584,3584,3072]; self.swz = ["g","u","g","u","q"]
        else: self.strides = [3072,3072,3584,3584,3584]; self.swz = ["q","q","g","u","h"]
    def Wg(self, h):
        o = []
        if h > 0:
            o.append([f"s_add_u32 s{S_KW}, s{S_KW}, 32", f"s_and_b32 s{S_KW}, s{S_KW}, 511"])
            if self.typ == "B": o.append([f"s_add_u32 s{S_KH}, s{S_KH}, 32", f"s_and_b32 s{S_KH}, s{S_KH}, 511"])
        o.append([f"s_mul_i32 s{S_R30}, s{S_KW}, 3072", f"s_mul_i32 s{S_R35}, s{S_KW}, 3584"])
        if self.typ == "B": o.append([f"s_mul_i32 s{S_RH}, s{S_KH}, 3584"])
        for rho in range(5):
            so = S_RH if self.swz[rho] == "h" else (S_R30 if self.strides[rho] == 3072 else S_R35)
            o.append(("dma", f"s_add_u32 m0, s{S_W1K}, {W_BASE + (h % W_NS)*W_SLOT + rho*4096}",
                      ("vm", f"W{h}_{rho}", f"buffer_load_dwordx4 v{VOW+rho}, s[{S_W+4*rho}:{S_W+4*rho+3}], s{so} offen lds")))
        return o
    def Xg(self, sg):
        o = []
        if sg > 0: o.append([f"s_add_u32 s{S_KX}, s{S_KX}, 128", f"s_and_b32 s{S_KX}, s{S_KX}, 1023"])
        o.append([f"s_add_u32 s{S_XO}, s{S_XB}, s{S_KX}"])
        for j in range(4):
            o.append(("dma", f"s_add_u32 m0, s{S_W4K}, {X_BASE + (sg % 3)*X_SLOT + j*1024}",
                      ("vm", f"X{sg}_{j}", f"buffer_load_dwordx4 v{VOX+j}, s[{S_X}:{S_X+3}], s{S_XO} offen lds")))
        return o
    def reads(self, s):
        par = s & 1; kk = s & 3; sg = s >> 2; h = s >> 1; second = s & 1
        xo = (sg % 3)*X_SLOT
        o = [f"ds_read_b128 v[{XF+8*par}:{XF+8*par+3}], v{XA+kk} offset:{xo}", f"ds_read_b128 v[{XF+8*par+4}:{XF+8*par+7}], v{XA+kk} offset:{xo+4096}"]
        for blk, kd in enumerate(self.kinds):
            b = WF + 20*par + 4*blk
            if kd == "guh": o1, o2 = (1024 if second else 0), 256
            else: o1, o2 = (2048 if second else 0), 512
            o1 += (h % W_NS)*W_SLOT
            o.append(f"ds_read_b64_tr_b16 v[{b}:{b+1}], v{TRA+blk} offset:{o1}")
            o.append(f"ds_read_b64_tr_b16 v[{b+2}:{b+3}], v{TRA+blk} offset:{o1+o2}")
        return o
    def mfmas(self, s, order=None):
        par = s & 1; o = []
        for blk in (order or range(5)):
            kd = self.kinds[blk]
            wf = f"v[{WF+20*par+4*blk}:{WF+20*par+4*blk+3}]"
            for tb in range(2):
                xf = f"v[{XF+8*par+4*tb}:{XF+8*par+4*tb+3}]"; a = acc(blk, tb)
                c = "0" if s == 0 else f"v[{a}:{a+15}]"
                if kd in ("k", "v"): o.append(f"v_mfma_f32_32x32x16_bf16 v[{a}:{a+15}], {xf}, {wf}, {c}")
                else: o.append(f"v_mfma_f32_32x32x16_bf16 v[{a}:{a+15}], {wf}, {xf}, {c}")
        return o
    def corr(self):
        o = []
        for blk in range(5):
            for tb in range(2):
                a = acc(blk, tb); cf = ar(ACF+4*blk, 4); mf = ar(AMF+4*tb, 4)
                if self.kinds[blk] in ("k", "v"): o.append(f"v_mfma_f32_32x32x16_bf16 v[{a}:{a+15}], {mf}, {cf}, v[{a}:{a+15}]")
                else: o.append(f"v_mfma_f32_32x32x16_bf16 v[{a}:{a+15}], {cf}, {mf}, v[{a}:{a+15}]")
        return o

    def prologue(self):
        A, typ, kinds = self.A, self.typ, self.kinds
        SZQ, SZG = 512*3072, 512*3584
        emit_items(A, self.Xg(0))
        if typ == "A":
            A(f"s_lshl_b32 s{S_T0}, s{S_IDX}, 8")
            srd_off(A, S_W+0, P_G, P_G+1, f"s{S_T0}", SZG); srd_off(A, S_W+4, P_U, P_U+1, f"s{S_T0}", SZG)
            A(f"s_add_u32 s{S_T0}, s{S_T0}, 128")
            srd_off(A, S_W+8, P_G, P_G+1, f"s{S_T0}", SZG); srd_off(A, S_W+12, P_U, P_U+1, f"s{S_T0}", SZG)
            A(f"s_lshl_b32 s{S_T0}, s{S_IDX}, 7")
            srd_off(A, S_W+16, P_WQ, P_WQ+1, f"s{S_T0}", SZQ)
        else:
            A(f"s_lshl_b32 s{S_T0}, s{S_IDX}, 7"); A(f"s_add_u32 s{S_T0}, s{S_T0}, 1024")
            srd_off(A, S_W+0, P_WQ, P_WQ+1, f"s{S_T0}", SZQ)
            A(f"s_add_u32 s{S_T0}, s{S_T0}, 1024")
            srd_off(A, S_W+4, P_WQ, P_WQ+1, f"s{S_T0}", SZQ)
            A(f"s_lshl_b32 s{S_T0}, s{S_IDX}, 7"); A(f"s_add_u32 s{S_T0}, s{S_T0}, {16*128}")
            srd_off(A, S_W+8, P_G, P_G+1, f"s{S_T0}", SZG); srd_off(A, S_W+12, P_U, P_U+1, f"s{S_T0}", SZG)
            A(f"s_lshr_b32 s{S_T0}, s{S_IDX}, 1"); A(f"s_add_u32 s{S_T0}, s{S_T0}, 24"); A(f"s_lshl_b32 s{S_T0}, s{S_T0}, 7")
            A(f"s_and_b32 s{S_T1}, s{S_IDX}, 1"); A(f"s_lshl_b32 s{S_T1}, s{S_T1}, 6"); A(f"s_add_u32 s{S_T0}, s{S_T0}, s{S_T1}")
            A(f"s_cmp_ge_u32 s{S_WV}, 2")
            A(f"s_cselect_b32 s{S_T2}, s{P_U}, s{P_G}"); A(f"s_cselect_b32 s{S_T3}, s{P_U+1}, s{P_G+1}")
            srd_off(A, S_W+16, S_T2, S_T3, f"s{S_T0}", SZG)
        t0, t1, t2, t3, t4 = VT, VT+1, VT+2, VT+3, VT+4
        A(f"v_lshrrev_b32 v{t0}, 3, v{VLANE}"); A(f"v_and_b32 v{t1}, 7, v{VLANE}")
        A(f"v_lshrrev_b32 v{t2}, 4, v{VLANE}"); A(f"v_and_b32 v{t2}, 1, v{t2}")
        done = {}
        for rho in range(5):
            key = (self.swz[rho], self.strides[rho])
            if key in done:
                A(f"v_mov_b32 v{VOW+rho}, v{VOW+done[key]}"); continue
            done[key] = rho
            if self.swz[rho] == "h":
                A(f"v_lshrrev_b32 v{t3}, 2, v{VLANE}"); A(f"v_and_b32 v{t4}, 3, v{VLANE}")
                A(f"s_lshr_b32 s{S_T0}, s{S_WV}, 1"); A(f"s_lshl_b32 s{S_T0}, s{S_T0}, 1")
                A(f"v_xor_b32 v{t4}, s{S_T0}, v{t4}")
                A(f"v_mul_u32_u24 v{t3}, 3584, v{t3}"); A(f"v_lshlrev_b32 v{t4}, 4, v{t4}"); A(f"v_add_u32 v{VOW+rho}, v{t3}, v{t4}")
            else:
                if self.swz[rho] == "q": A(f"v_lshlrev_b32 v{t3}, 2, v{t2}")
                else:
                    A(f"v_lshlrev_b32 v{t3}, 1, v{t2}")
                    if self.swz[rho] == "u": A(f"v_or_b32 v{t3}, 4, v{t3}")
                A(f"v_xor_b32 v{t3}, v{t1}, v{t3}"); A(f"v_lshlrev_b32 v{t3}, 4, v{t3}")
                A(f"v_mul_u32_u24 v{t4}, {self.strides[rho]}, v{t0}"); A(f"v_add_u32 v{VOW+rho}, v{t3}, v{t4}")
        emit_items(A, self.Wg(0)); emit_items(A, self.Wg(1))
        A.stamp(1)
        A(f"v_lshlrev_b32 v{t3}, 2, v{t2}"); A(f"v_xor_b32 v{t3}, v{t1}, v{t3}"); A(f"v_lshlrev_b32 v{t3}, 4, v{t3}")
        A(f"v_lshlrev_b32 v{t4}, 10, v{t0}"); A(f"v_add_u32 v{VDM}, v{t3}, v{t4}")
        A(f"s_lshl_b32 s{S_T0}, s{S_J}, 7")
        srd_off(A, S_WD, P_D, P_D+1, f"s{S_T0}", 1792*1024)
        A(f"s_mul_i32 s{S_LB}, s{S_WV}, {NSL*2048}"); A(f"s_add_u32 s{S_LB}, s{S_LB}, {W2IN}")
        srd_wo_done = False
        A(f"s_load_dwordx2 s[{S_DBG}:{S_DBG+1}], s[0:1], 64")
        A(f"s_mov_b32 s{S_CG}, s{S_I1}")
        A(f"s_lshr_b32 s{S_T0}, s{S_T}, 3"); A(f"s_lshl_b32 s{S_T0}, s{S_T0}, 1"); A(f"s_add_u32 s{S_KSC}, s{S_T0}, s{S_WM}")
        A(f"v_and_b32 v{t0}, 31, v{VLANE}")
        A(f"v_and_b32 v{t1}, 15, v{t0}"); A(f"v_lshrrev_b32 v{t2}, 4, v{t0}")
        def cs_addr(dst, soff_code, lane_kind):
            soff_code()
            if lane_kind == "gu":
                A(f"v_mul_u32_u24 v{t3}, 1792, v{t2}"); A(f"v_add_u32 v{t3}, v{t3}, v{t1}")
            elif lane_kind == "kv":
                A(f"v_lshlrev_b32 v{t3}, 9, v{t2}"); A(f"v_add_u32 v{t3}, v{t3}, v{t1}")
            else: A(f"v_mov_b32 v{t3}, v{t0}")
            A(f"v_add_u32 v{t3}, s{S_T0}, v{t3}"); A(f"v_lshlrev_b32 v{t3}, 2, v{t3}"); A(f"v_add_u32 v{dst}, {WS_CS}, v{t3}")
        if typ == "A":
            cs_addr(VC1, lambda: (A(f"s_lshl_b32 s{S_T0}, s{S_IDX}, 1"), A(f"s_add_u32 s{S_T0}, s{S_T0}, s{S_WN}"), A(f"s_lshl_b32 s{S_T0}, s{S_T0}, 6"), A(f"s_add_u32 s{S_T0}, s{S_T0}, 1536")), "gu")
            cs_addr(VC2, lambda: (A(f"s_lshl_b32 s{S_T0}, s{S_IDX}, 6"), A(f"s_lshl_b32 s{S_T1}, s{S_WN}, 5"), A(f"s_add_u32 s{S_T0}, s{S_T0}, s{S_T1}")), "q")
            self.csa = [(VC1, 0), (VC1, 64), (VC1, 128), (VC1, 192), (VC2, 0)]
        else:
            cs_addr(VC2, lambda: (A(f"s_lshl_b32 s{S_T0}, s{S_IDX}, 6"), A(f"s_lshl_b32 s{S_T1}, s{S_WN}, 5"), A(f"s_add_u32 s{S_T0}, s{S_T0}, s{S_T1}"), A(f"s_add_u32 s{S_T0}, s{S_T0}, 512")), "q")
            cs_addr(VC1, lambda: (A(f"s_add_u32 s{S_T0}, s{S_IDX}, 16"), A(f"s_lshl_b32 s{S_T0}, s{S_T0}, 6"), A(f"s_lshl_b32 s{S_T1}, s{S_WN}, 5"), A(f"s_add_u32 s{S_T0}, s{S_T0}, s{S_T1}"), A(f"s_add_u32 s{S_T0}, s{S_T0}, 1536")), "gu")
            cs_addr(VC3, lambda: (A(f"s_lshr_b32 s{S_T0}, s{S_IDX}, 1"), A(f"s_add_u32 s{S_T0}, s{S_T0}, 24"), A(f"s_lshl_b32 s{S_T0}, s{S_T0}, 6"),
                                  A(f"s_and_b32 s{S_T1}, s{S_IDX}, 1"), A(f"s_lshl_b32 s{S_T1}, s{S_T1}, 1"), A(f"s_add_u32 s{S_T1}, s{S_T1}, s{S_WN}"), A(f"s_lshl_b32 s{S_T1}, s{S_T1}, 4"),
                                  A(f"s_add_u32 s{S_T0}, s{S_T0}, s{S_T1}"), A(f"s_add_u32 s{S_T0}, s{S_T0}, 1536")), "gu")
            self.csa = [(VC2, 0), (VC2, 2048), (VC1, 0), (VC1, 64), (VC3, 0)]
        A(f"v_mov_b32 v{t3}, 0x3f803f80")
        for i in range(4): A(f"v_accvgpr_write_b32 a{A_ONES+i}, v{t3}")
        srd_off(A, S_H, S_WSP, S_WSP+1, WS_H, WS_H + H_BYTES)
        G, p, r, c = t0, t1, t2, t3
        A(f"v_lshrrev_b32 v{G}, 4, v{VLANE}"); A(f"v_and_b32 v{G}, 1, v{G}")
        A(f"v_lshrrev_b32 v{p}, 5, v{VLANE}")
        A(f"v_and_b32 v{r}, 15, v{VLANE}"); A(f"v_lshrrev_b32 v{r}, 2, v{r}")
        A(f"v_and_b32 v{c}, 3, v{VLANE}")
        k_, rb, u1, u2 = t4, t4+1, t4+2, t4+3
        A(f"v_lshlrev_b32 v{k_}, 3, v{p}"); A(f"v_add_u32 v{k_}, v{k_}, v{r}")
        A(f"v_lshrrev_b32 v{rb}, 1, v{r}"); A(f"v_and_b32 v{rb}, 1, v{rb}")
        for blk, kd in enumerate(kinds):
            d = TRA + blk
            if typ == "A" and kd == "gu" and blk > 0:
                A(f"v_xor_b32 v{d}, {blk*32}, v{TRA}"); continue
            if typ == "B" and blk == 1:
                A(f"v_add_u32 v{d}, 4096, v{d-1}"); continue
            if typ == "B" and blk == 3:
                A(f"v_xor_b32 v{d}, 32, v{d-1}"); continue
            if kd == "guh":
                A(f"v_lshrrev_b32 v{u1}, 1, v{c}"); A(f"s_lshl_b32 s{S_T0}, s{S_WN}, 1"); A(f"v_add_u32 v{u1}, s{S_T0}, v{u1}")
                A(f"v_lshlrev_b32 v{u2}, 1, v{G}"); A(f"v_xor_b32 v{u1}, v{u1}, v{u2}"); A(f"v_lshlrev_b32 v{u1}, 4, v{u1}")
                A(f"v_lshlrev_b32 v{u2}, 6, v{k_}"); A(f"v_add_u32 v{u1}, v{u1}, v{u2}")
                A(f"v_lshlrev_b32 v{u2}, 11, v{G}"); A(f"v_add_u32 v{u1}, v{u1}, v{u2}")
                A(f"v_add_u32 v{u1}, {W_BASE + 4*4096}, v{u1}")
            else:
                if kd in ("q", "k"):
                    A(f"s_lshl_b32 s{S_T0}, s{S_WN}, 1"); A(f"v_add_u32 v{u1}, s{S_T0}, v{G}")
                elif typ == "A": A(f"v_mov_b32 v{u1}, 0")
                else:
                    A(f"s_lshl_b32 s{S_T0}, s{S_WN}, 1"); A(f"v_mov_b32 v{u1}, s{S_T0}")
                A(f"v_lshlrev_b32 v{u1}, 1, v{u1}"); A(f"v_lshrrev_b32 v{u2}, 1, v{c}"); A(f"v_add_u32 v{u1}, v{u1}, v{u2}")
                if kd in ("q", "k"): A(f"v_lshlrev_b32 v{u2}, 2, v{rb}")
                else:
                    A(f"v_lshlrev_b32 v{u2}, 1, v{rb}"); A(f"v_lshlrev_b32 v{d}, 2, v{G}"); A(f"v_or_b32 v{u2}, v{u2}, v{d}")
                A(f"v_xor_b32 v{u1}, v{u1}, v{u2}"); A(f"v_lshlrev_b32 v{u1}, 4, v{u1}")
                A(f"v_lshlrev_b32 v{u2}, 7, v{k_}"); A(f"v_add_u32 v{u1}, v{u1}, v{u2}")
                if kd == "q": A(f"v_add_u32 v{u1}, {W_BASE + 4*4096}, v{u1}")
                elif kd == "k": A(f"v_add_u32 v{u1}, {W_BASE}, v{u1}")
                else:
                    if typ == "A":
                        A(f"s_lshl_b32 s{S_T0}, s{S_WN}, 13"); A(f"s_add_u32 s{S_T0}, s{S_T0}, {W_BASE}")
                    else: A(f"s_mov_b32 s{S_T0}, {W_BASE + 2*4096}")
                    A(f"v_lshlrev_b32 v{u2}, 12, v{G}"); A(f"v_add_u32 v{u1}, v{u1}, v{u2}"); A(f"v_add_u32 v{u1}, s{S_T0}, v{u1}")
            A(f"v_and_b32 v{u2}, 1, v{c}"); A(f"v_lshlrev_b32 v{u2}, 3, v{u2}"); A(f"v_add_u32 v{d}, v{u1}, v{u2}")
        A(f"v_lshlrev_b32 v{u1}, 2, v{p}"); A(f"v_add_u32 v{u1}, v{u1}, v{r}"); A(f"v_lshlrev_b32 v{u1}, 7, v{u1}")
        A(f"v_lshlrev_b32 v{u2}, 1, v{G}"); A(f"v_lshrrev_b32 v{VTR}, 1, v{c}"); A(f"v_add_u32 v{u2}, v{u2}, v{VTR}")
        A(f"v_lshlrev_b32 v{VTR}, 2, v{rb}"); A(f"v_xor_b32 v{u2}, v{u2}, v{VTR}"); A(f"v_lshlrev_b32 v{u2}, 4, v{u2}"); A(f"v_add_u32 v{u1}, v{u1}, v{u2}")
        A(f"v_and_b32 v{u2}, 1, v{c}"); A(f"v_lshlrev_b32 v{u2}, 3, v{u2}"); A(f"v_add_u32 v{u1}, v{u1}, v{u2}")
        A(f"v_add_u32 v{VTR}, s{S_LB}, v{u1}"); A(f"v_xor_b32 v{VTR1}, 64, v{VTR}")
        A(f"v_and_b32 v{u1}, 31, v{VLANE}"); A(f"s_lshl_b32 s{S_T0}, s{S_WM}, 6"); A(f"v_add_u32 v{u1}, s{S_T0}, v{u1}")
        A(f"v_lshrrev_b32 v{u2}, 1, v{u1}"); A(f"v_and_b32 v{u2}, 7, v{u2}"); A(f"v_xor_b32 v{u2}, v{u2}, v{p}"); A(f"v_lshlrev_b32 v{u2}, 4, v{u2}")
        A(f"v_lshlrev_b32 v{u1}, 7, v{u1}"); A(f"v_add_u32 v{u1}, v{u1}, v{u2}")
        for kk in range(4): A(f"v_xor_b32 v{XA+kk}, {kk*32}, v{u1}")
        SX = WF + 20
        A.wait("strow")
        P0, P1, Q0, Q1, U = VT, VT+2, VT+4, VT+6, VT+8
        for tok, (P, Q) in enumerate(((P0, Q0), (P1, Q1))):
            for i in range(4):
                src = SX + 4*tok + i
                A(f"v_lshlrev_b32 v{U}, 16, v{src}"); A(f"v_and_b32 v{U+1}, 0xffff0000, v{src}")
                if i == 0:
                    A(f"v_pk_mul_f32 v[{Q}:{Q+1}], v[{U}:{U+1}], v[{U}:{U+1}]"); A(f"v_mov_b32 v{P}, v{U}"); A(f"v_mov_b32 v{P+1}, v{U+1}")
                else:
                    A(f"v_pk_add_f32 v[{P}:{P+1}], v[{P}:{P+1}], v[{U}:{U+1}]"); A(f"v_pk_fma_f32 v[{Q}:{Q+1}], v[{U}:{U+1}], v[{U}:{U+1}], v[{Q}:{Q+1}]")
        for r_ in (P0, P1, Q0, Q1): A(f"v_add_f32 v{r_}, v{r_}, v{r_+1}")
        for dpp in ("row_shr:1 row_mask:0xf bank_mask:0xf", "row_shr:2 row_mask:0xf bank_mask:0xf", "row_shr:4 row_mask:0xf bank_mask:0xf", "row_shr:8 row_mask:0xf bank_mask:0xf",
                    "row_bcast:15 row_mask:0xa bank_mask:0xf", "row_bcast:31 row_mask:0xc bank_mask:0xf"):
            for r_ in (P0, P1, Q0, Q1): A(f"v_add_f32_dpp v{r_}, v{r_}, v{r_} {dpp}")
        A(f"v_mul_f32 v{P0}, 0x3b000000, v{P0}"); A(f"v_mul_f32 v{P0+1}, 0x3b000000, v{P1}")
        A(f"v_mul_f32 v{Q0}, 0x3b000000, v{Q0}"); A(f"v_mul_f32 v{Q0+1}, 0x3b000000, v{Q1}")
        for j in range(2):
            A(f"v_fma_f32 v{Q0+j}, -v{P0+j}, v{P0+j}, v{Q0+j}"); A(f"v_max_f32 v{Q0+j}, 0, v{Q0+j}"); A(f"v_add_f32 v{Q0+j}, 0x3727c5ac, v{Q0+j}"); A(f"v_rsq_f32 v{Q0+j}, v{Q0+j}")
        A(f"v_mov_b32 v{U}, s{S_HB}"); A(f"v_add_u32 v{U+1}, {WS_R}, v{U}")
        A(f"s_mov_b64 s[{S_E0}:{S_E0+1}], exec"); A("s_mov_b32 exec_lo, 0"); A("s_mov_b32 exec_hi, 0x80000000")
        A.vm(f"global_store_dwordx2 v{U}, v[{P0}:{P0+1}], s[{S_WSP}:{S_WSP+1}] sc1")
        A.vm(f"global_store_dwordx2 v{U+1}, v[{Q0}:{Q0+1}], s[{S_WSP}:{S_WSP+1}] sc1", id="stst")
        A(f"s_mov_b64 exec, s[{S_E0}:{S_E0+1}]")
        A.stamp(2)
        A("s_waitcnt lgkmcnt(0)")
        A.wait("X0_3", "W0_4")
        A("s_barrier")
        A.stamp(3)
        for s in self.reads(0): A(s)
        for x in self.sig(f"s_cmp_lt_u32 s2, {NZERO}", S_DBG, DBG_INIT, None, "init"): A(x)

    def sig(self, cond, base, off_imm, off_sgpr, tag):
        L = f"K12{self.typ}_sig_{tag}"
        o = []
        if cond: o += [cond, f"s_cbranch_scc0 {L}"]
        o += [f"s_cmp_eq_u32 s{S_WV}, 0", f"s_cbranch_scc0 {L}"]
        if off_sgpr is None: o += [f"v_mov_b32 v{VT+9}, {off_imm}"]
        else: o += [f"s_lshl_b32 s{S_T4}, s{off_sgpr}, 7", f"s_add_u32 s{S_T4}, s{S_T4}, {off_imm}", f"v_mov_b32 v{VT+9}, s{S_T4}"]
        o += [f"v_mov_b32 v{VT+8}, 1", f"s_mov_b64 s[{S_E0}:{S_E0+1}], exec", "s_mov_b64 exec, 1",
              f"!global_atomic_add v{VT+9}, v{VT+8}, s[{base}:{base+1}] sc1", f"s_mov_b64 exec, s[{S_E0}:{S_E0+1}]", f"{L}:"]
        return o

    def spin(self, tag, base, vaddr, expect):
        L = f"K12{self.typ}_spin_{tag}"
        return [f"s_mov_b32 s{S_T3}, 0", f"{L}:", f"!global_load_dword v{VT+10}, v{vaddr}, s[{base}:{base+1}] sc1", "s_waitcnt vmcnt(0)",
                f"v_readfirstlane_b32 s{S_T4}, v{VT+10}", f"s_add_u32 s{S_T3}, s{S_T3}, 1", f"s_cmp_ge_u32 s{S_T3}, {POLL_MAX}", f"s_cbranch_scc1 {L}_x",
                f"s_cmp_ge_u32 s{S_T4}, {expect}", f"s_cbranch_scc1 {L}_x", "s_sleep 2", f"s_branch {L}", f"{L}_x:"]

    def w0(self, tag, code):
        L = f"K12{self.typ}_w0_{tag}"
        return [f"s_cmp_eq_u32 s{S_WV}, 0", f"s_cbranch_scc0 {L}"] + code + [f"{L}:"]

    def pre_barrier(self, h):
        typ = self.typ; T = VT
        if h == 2:
            return self.w0("initchk", [("wait", ["initld"]), f"v_readfirstlane_b32 s{S_T4}, v{T+10}", "s_nop 0", f"s_cmp_ge_u32 s{S_T4}, {NZERO}", f"s_cbranch_scc1 K12{typ}_initok",
                                       f"v_mov_b32 v{T+9}, {DBG_INIT}"] + self.spin("init", S_DBG, T+9, NZERO) + [f"K12{typ}_initok:"])
        if h == H_CNT:
            return self.w0("cntchk", [("wait", ["cntld"]), f"v_readfirstlane_b32 s{S_T4}, v{T+5}", "s_nop 0", f"s_cmp_ge_u32 s{S_T4}, 16", f"s_cbranch_scc1 K12{typ}_stok"]
                           + self.spin("st", S_WSP, T+7, 16) + [f"K12{typ}_stok:",
                           f"v_readfirstlane_b32 s{S_T4}, v{T+6}", "s_nop 0", f"s_cmp_ge_u32 s{S_T4}, 16", f"s_cbranch_scc1 K12{typ}_csok"]
                           + self.spin("cs", S_WSP, T+8, 16) + [f"K12{typ}_csok:"])
        return []

    def oneshot_items(self, add, at):
        typ = self.typ; wsp = f"s[{S_WSP}:{S_WSP+1}]"; dbg = f"s[{S_DBG}:{S_DBG+1}]"
        T = VT
        for s in range(4):
            par = s & 1
            it = [f"s_cmp_eq_u32 s{S_KSC}, {s}", f"s_cbranch_scc0 K12{typ}_nocs{s}"]
            for blk in range(5):
                b = WF + 20*par + 4*blk
                it.append(f"v_mfma_f32_32x32x16_bf16 a[{CS_TMP+16*blk}:{CS_TMP+16*blk+15}], a[{A_ONES}:{A_ONES+3}], v[{b}:{b+3}], 0")
            it.append(f"K12{typ}_nocs{s}:")
            self.fixed.setdefault(s, []).append(it)
        self.fixed.setdefault(K_INITLD, []).append(self.w0("initld", [f"v_mov_b32 v{T+9}, {DBG_INIT}", f"s_mov_b64 s[{S_E0}:{S_E0+1}], exec", "s_mov_b64 exec, 1",
                                      ("vmu", "initld", f"global_load_dword v{T+10}, v{T+9}, {dbg} sc1"), f"s_mov_b64 exec, s[{S_E0}:{S_E0+1}]"]))
        it = [[f"v_accvgpr_read_b32 v{T+blk}, a{CS_TMP+16*blk}"] for blk in range(5)]
        at_ = [f"s_mov_b64 s[{S_E0}:{S_E0+1}], exec", "s_mov_b32 exec_hi, 0"]
        for blk in range(5):
            va, off = self.csa[blk]
            at_.append(("vm", f"csat{blk}", f"global_atomic_add_f32 v{va}, v{T+blk}, {wsp} offset:{off}"))
        at_.append(f"s_mov_b64 exec, s[{S_E0}:{S_E0+1}]")
        add(at(K_CSAT), it + [at_])
        self.fixed.setdefault(K_CNTLD, []).append(self.w0("cntld", [f"s_lshl_b32 s{S_T4}, s{S_T}, 7", f"s_add_u32 s{S_T4}, s{S_T4}, {WS_STCNT}", f"v_mov_b32 v{T+7}, s{S_T4}",
                          f"s_lshl_b32 s{S_T4}, s{S_CG}, 7", f"s_add_u32 s{S_T4}, s{S_T4}, {WS_CSCNT}", f"v_mov_b32 v{T+8}, s{S_T4}",
                          f"s_mov_b64 s[{S_E0}:{S_E0+1}], exec", "s_mov_b64 exec, 1",
                          f"!global_load_dword v{T+5}, v{T+7}, {wsp} sc1", ("vmu", "cntld", f"global_load_dword v{T+6}, v{T+8}, {wsp} sc1"),
                          f"s_mov_b64 exec, s[{S_E0}:{S_E0+1}]"]))
        VM = T; VCS = T + 2; VRB = T + 7
        lds = [[f"v_and_b32 v{T+8}, 31, v{VLANE}", f"s_lshl_b32 s{S_T4}, s{S_T}, 7", f"s_lshl_b32 s{S_T3}, s{S_WM}, 6", f"s_add_u32 s{S_T4}, s{S_T4}, s{S_T3}"],
               [f"v_add_u32 v{T+8}, s{S_T4}, v{T+8}", f"v_lshlrev_b32 v{T+8}, 2, v{T+8}", f"v_add_u32 v{T+9}, {WS_R}, v{T+8}"],
               [("vm", None, f"global_load_dword v{VM}, v{T+8}, {wsp} sc1")], [("vm", None, f"global_load_dword v{VM+1}, v{T+8}, {wsp} offset:128 sc1")],
               [("vm", None, f"global_load_dword v{VR}, v{T+9}, {wsp} sc1")], [("vm", None, f"global_load_dword v{VR+1}, v{T+9}, {wsp} offset:128 sc1")]]
        for blk in range(5):
            va, off = self.csa[blk]
            lds.append([("vm", "csld" if blk == 4 and typ == "A" else None, f"global_load_dword v{VCS+blk}, v{va}, {wsp} offset:{off} sc1")])
        if typ == "B":
            lds.append([f"s_lshl_b32 s{S_T4}, s{S_T}, 7", f"v_add_u32 v{T+8}, s{S_T4}, v{VTID}", f"v_lshlrev_b32 v{T+8}, 2, v{T+8}", f"v_add_u32 v{T+8}, {WS_R}, v{T+8}"])
            lds.append([("vm", "csld", f"global_load_dword v{VRB}, v{T+8}, {wsp} sc1")])
        add(at(2*H_CNT-1, 1), lds)
        if CODE_PF2:
            add(at(CODE_PF2), [[f"s_getpc_b64 s[{S_E2}:{S_E2+1}]", f"K12{typ}_pc2:", f"s_lshr_b32 s{S_T4}, s2, 3", f"s_lshl_b32 s{S_T4}, s{S_T4}, 2", f"s_add_u32 s{S_T4}, s{S_T4}, s{S_WV}"],
                               [f"s_min_u32 s{S_T4}, s{S_T4}, ((K12_end-K12{typ}_pc2)>>10)-1", f"s_lshl_b32 s{S_T4}, s{S_T4}, 10", f"v_add_u32 v{T+9}, s{S_T4}, v{VL16}"],
                               [("vm", None, f"global_load_dwordx4 a[224:227], v{T+9}, s[{S_E2}:{S_E2+1}]")]])
        tt = T + 8; b = T + 10
        items = [[("wait", ["csld"])], [f"v_cmp_gt_u32 vcc, 32, v{VLANE}", "s_nop 1"]]
        for tb in range(2):
            items += [[f"v_cndmask_b32 v{tt}, 0, v{VM+tb}, vcc"], [f"v_cvt_pk_bf16_f32 v{b}, v{tt}, v{tt}"],
                      [f"v_and_b32 v{tt+1}, 0xffff0000, v{b}"], [f"v_sub_f32 v{tt+1}, v{tt}, v{tt+1}"],
                      [f"v_cvt_pk_bf16_f32 v{b+1}, v{tt+1}, 0"],
                      [f"v_accvgpr_write_b32 a{AMF+4*tb}, v{b}"], [f"v_accvgpr_write_b32 a{AMF+4*tb+1}, v{b+1}"],
                      [f"v_accvgpr_write_b32 a{AMF+4*tb+2}, 0"], [f"v_accvgpr_write_b32 a{AMF+4*tb+3}, 0"]]
        for blk in range(5):
            items += [[f"v_cndmask_b32 v{tt}, 0, v{VCS+blk}, vcc"], [f"v_sub_f32 v{tt}, 0, v{tt}"],
                      [f"v_cvt_pk_bf16_f32 v{b+1}, v{tt}, 0"], [f"v_lshlrev_b32 v{tt+1}, 16, v{b+1}"], [f"v_sub_f32 v{tt+1}, v{tt}, v{tt+1}"],
                      [f"v_cvt_pk_bf16_f32 v{b}, v{tt}, v{tt+1}"],
                      [f"v_accvgpr_write_b32 a{ACF+4*blk}, v{b}"], [f"v_accvgpr_write_b32 a{ACF+4*blk+1}, v{b+1}"],
                      [f"v_accvgpr_write_b32 a{ACF+4*blk+2}, 0"], [f"v_accvgpr_write_b32 a{ACF+4*blk+3}, 0"]]
        if typ == "B":
            items += [[f"v_lshlrev_b32 v{tt}, 2, v{VTID}"], [f"v_add_u32 v{tt}, {LDS_R}, v{tt}"],
                      [f"v_cmp_gt_u32 vcc, 128, v{VTID}", f"s_and_saveexec_b64 s[{S_E0}:{S_E0+1}], vcc", f"ds_write_b32 v{tt}, v{VRB}", f"s_mov_b64 exec, s[{S_E0}:{S_E0+1}]"]]
        add(at(K_RANK), items)

    def loop(self):
        A = self.A
        self.loop_start = len(A.l)
        steps = []
        for s in range(32):
            if s == CORR_AT: steps.append(("c", None))
            steps.append(("k", s))
        order_last = [b for b, kd in enumerate(self.kinds) if kd in ("gu","guh")] + [b for b, kd in enumerate(self.kinds) if kd not in ("gu","guh")]
        idx_of = {st: i for i, st in enumerate(steps)}
        def at(s, g=0): return (idx_of[("k", s)], g)
        flex = []
        def add(pos, items):
            for it in items: flex.append((pos, it))
        add(at(0), self.Wg(2)); add(at(0), self.Xg(1)); add(at(1, 1), self.Xg(2))
        for h in range(1, 14): add(at(2*h-1, 1), self.Wg(h+2))
        for sg in range(1, 6): add(at(4*sg-1, 1), self.Xg(sg+2))
        self.fixed = {}
        tagD = {}; tagR = {}; keep = []; placedR = {}
        self.oneshot_items(add, at)
        self.w2_done_R = []
        for i in range(N_IN):
            if i == 28: add(at(min(i+1, 31)), [["__WOSRD__"]])
            dd = self.w2.D(i); tagD[id(dd[0])] = i; keep.append(dd)
            add(at(min(i+1, 31)), dd)
            if i + 1 + DLAG <= 31:
                rr = self.w2.R(i); tagR[id(rr[-1])] = i; keep.append(rr)
                add(at(i+1+DLAG), rr); self.w2_done_R.append(i)
        flex.sort(key=lambda x: x[0])
        gaps_all = []
        pending = list(flex)
        for si, st in enumerate(steps):
            gaps = [[] for _ in range(10)]
            head = []
            if st[0] == "k":
                s = st[1]
                M = self.mfmas(s, order_last if s == 31 else None)
                head = ["s_waitcnt lgkmcnt(0)"]
                odd = s & 1
                if odd:
                    h = (s + 1)//2
                    if h <= 15:
                        ids = [f"W{h}_4"] + ([f"X{h//2}_3"] if h % 2 == 0 else [])
                        if h == 2: ids.append("stst")
                        if h == 6: ids.append("csat4")
                        gaps[0] += self.pre_barrier(h) + [("wait", ids), "s_barrier"]
                        if h == 2: gaps[0] += self.sig(None, S_WSP, WS_STCNT, S_T, "st")
                        if h == 6: gaps[0] += self.sig(None, S_WSP, WS_CSCNT, S_CG, "cs")
                    else:
                        gaps[0] += ["s_barrier"]
                nxt = s + 1
                if nxt < 32:
                    rd = self.reads(nxt)
                    g0 = 1 if odd else 0
                    for i, x in enumerate(rd): gaps[g0 + i//2].append(x)
            else:
                M = self.corr(); head = ["s_waitcnt lgkmcnt(0)"]
            if st[0] == "k" and st[1] in self.fixed:
                for it in self.fixed[st[1]]: gaps[9] += it
            gi = 0
            rest = []
            blocked = False
            for (pos, it) in pending:
                if blocked or pos[0] > si:
                    rest.append((pos, it)); blocked = blocked or False; continue
                if id(it) in tagD and placedR.get(tagD[id(it)] - NSL, -1) == si:
                    rest.append((pos, it)); blocked = True; continue
                g = max(gi, pos[1] if pos[0] == si else 0)
                need = 2 if (isinstance(it, tuple) and it[0] == "dma") else len(it)
                while g < 10 and len(gaps[g]) + min(need, CAP) > CAP: g += 1
                if g >= 10:
                    rest.append((pos, it)); blocked = True; continue
                if id(it) in tagR: placedR[tagR[id(it)]] = si
                if isinstance(it, tuple) and it[0] == "dma":
                    gaps[g].append(it[1]); gaps[g].append("__NOP__"); gaps[g].append(it[2]); gi = g + 1
                else:
                    gaps[g] += it; gi = g
            pending = rest
            for g in gaps:
                while "__NOP__" in g:
                    i = g.index("__NOP__")
                    cand = [j for j in range(i-1) if isinstance(g[j], str) and g[j].startswith("ds_read")]
                    if cand:
                        x = g.pop(cand[-1]); i -= 1; g[i] = x
                    else: g[i] = "s_nop 0"
            for x in head: A(x)
            for i in range(10):
                A(M[i])
                for x in gaps[i]:
                    if x == "__WOSRD__":
                        assert "W15_4" in A.ids
                        A(f"s_lshl_b32 s{S_T0}, s{S_J}, 7")
                        srd_off(A, S_WO, P_WO, P_WO+1, f"s{S_T0}", 512*1024)
                    else: A(x)
        assert not pending, pending[:3]
        txt = A.l
        for i in range(N_IN - NSL):
            rd = [n for n, x in enumerate(txt) if n > self.loop_start and "ds_read_b64_tr_b16 a[%d:" % (8*i+6) in x]
            assert rd, i
            pos_r = rd[-1]
            kind, mul, const = w2row(i+NSL)
            dm = [n for n, x in enumerate(txt) if n > self.loop_start and x.strip() == ("s_add_u32 s%d, s%d, %d" % (S_W2O, S_W2O, const*1024)) and "s_lshl_b32 s%d" % S_W2O in txt[n-1]]
            dm = [n for n in dm if n > pos_r]
            assert dm, (i, pos_r)
            assert any("lgkmcnt(0)" in x for x in txt[pos_r:dm[0]]), ("no lgkm wait", i)

    def flag_store(self, slot_imm, FA, ONE):
        A = self.A
        FA, ONE = VT+4, VT+5
        A(f"v_mov_b32 v{ONE}, 1")
        A(f"s_lshl_b32 s{S_T0}, s{S_T}, 1"); A(f"s_add_u32 s{S_T0}, s{S_T0}, s{S_WM}"); A(f"s_lshl_b32 s{S_T0}, s{S_T0}, 2")
        A(f"s_lshr_b32 s{S_T1}, s{S_IDX}, 1"); A(f"s_add_u32 s{S_T0}, s{S_T0}, s{S_T1}"); A(f"s_lshl_b32 s{S_T0}, s{S_T0}, 4")
        A(f"s_lshl_b32 s{S_T1}, s{S_I1}, 1"); A(f"s_add_u32 s{S_T0}, s{S_T0}, s{S_T1}"); A(f"s_add_u32 s{S_T0}, s{S_T0}, s{S_WN}")
        A(f"s_add_u32 s{S_T0}, s{S_T0}, {slot_imm}"); A(f"s_lshl_b32 s{S_T0}, s{S_T0}, 2"); A(f"s_add_u32 s{S_T0}, s{S_T0}, {WS_FLAG}")
        A(f"v_mov_b32 v{FA}, s{S_T0}")
        A(f"s_mov_b64 s[{S_E0}:{S_E0+1}], exec"); A("s_mov_b64 exec, 1")
        A.vm(f"global_store_dword v{FA}, v{ONE}, s[{S_WSP}:{S_WSP+1}] sc1")
        A(f"s_mov_b64 exec, s[{S_E0}:{S_E0+1}]")

    def transition(self):
        A, typ, kinds = self.A, self.typ, self.kinds
        w2 = self.w2
        tt = VT
        state = {"D": N_IN, "R": len(self.w2_done_R)}
        assert self.w2_done_R == list(range(len(self.w2_done_R)))
        A.stamp(1, "tr")
        def bgD(n=1):
            for _ in range(n):
                i = state["D"]
                if i >= 36 or i - state["R"] >= NSL: return
                emit_items(A, w2.D(i)); state["D"] += 1
        def bgR(n=1):
            for _ in range(n):
                i = state["R"]
                if i >= state["D"]: return
                if i >= 32 and not state.get("vfree"): return
                emit_items(A, w2.R(i)); state["R"] += 1
        def bgD_safe(n=1):
            A("s_waitcnt lgkmcnt(0)"); bgD(n)
        A(f"s_lshl_b32 s{S_T0}, s{S_T}, 1"); A(f"s_add_u32 s{S_T0}, s{S_T0}, s{S_WM}"); A(f"s_lshl_b32 s{S_T0}, s{S_T0}, 2")
        A(f"s_lshr_b32 s{S_T1}, s{S_IDX}, 1"); A(f"s_add_u32 s{S_T0}, s{S_T0}, s{S_T1}"); A(f"s_mul_i32 s{S_HB}, s{S_T0}, {36*2048}")
        A(f"s_and_b32 s{S_I1}, s{S_IDX}, 1")
        I1 = S_I1
        R2 = XF
        for tb in range(2):
            A(f"v_mul_f32 v{R2+2*tb}, v{VR+tb}, v{VR+tb}"); A(f"v_mul_f32 v{R2+2*tb+1}, v{VR+tb}, v{VR+tb}")
        bgR(2)
        PK = WF
        nst = 0
        gublks = [b for b, kd in enumerate(kinds) if kd in ("gu", "guh")]
        lasth = None
        for blk in gublks:
            kd = kinds[blk]
            if typ == "A":
                if blk == 0:
                    A(f"s_lshl_b32 s{S_T2}, s{I1}, 1"); A(f"s_add_u32 s{S_T2}, s{S_T2}, s{S_WN}"); A(f"s_lshl_b32 s{S_T2}, s{S_T2}, 13"); A(f"s_add_u32 s{S_T2}, s{S_T2}, s{S_HB}")
                else: A(f"s_add_u32 s{S_T2}, s{S_T2}, 2048")
            elif kd == "gu":
                if blk == 2:
                    A(f"s_lshl_b32 s{S_T2}, s{I1}, 2"); A(f"s_lshl_b32 s{S_T3}, s{S_WN}, 1"); A(f"s_add_u32 s{S_T2}, s{S_T2}, s{S_T3}"); A(f"s_add_u32 s{S_T2}, s{S_T2}, 16")
                    A(f"s_lshl_b32 s{S_T2}, s{S_T2}, 11"); A(f"s_add_u32 s{S_T2}, s{S_T2}, s{S_HB}")
                else: A(f"s_add_u32 s{S_T2}, s{S_T2}, 2048")
            else:
                A(f"s_lshl_b32 s{S_T2}, s{I1}, 1"); A(f"s_add_u32 s{S_T2}, s{S_T2}, s{S_WN}"); A(f"s_add_u32 s{S_T2}, s{S_T2}, 24")
                A(f"s_lshl_b32 s{S_T2}, s{S_T2}, 11"); A(f"s_add_u32 s{S_T2}, s{S_T2}, s{S_HB}")
            for tb in range(2):
                a = acc(blk, tb); pk = PK + 4*(nst % 4); nst += 1
                for i in range(4): A(f"v_pk_mul_f32 v[{a+2*i}:{a+2*i+1}], v[{a+2*i}:{a+2*i+1}], v[{a+8+2*i}:{a+8+2*i+1}]")
                for i in range(4): A(f"v_pk_mul_f32 v[{a+2*i}:{a+2*i+1}], v[{a+2*i}:{a+2*i+1}], v[{R2+2*tb}:{R2+2*tb+1}]")
                for i in range(4): A(f"v_cvt_pk_bf16_f32 v{pk+i}, v{a+2*i}, v{a+2*i+1}")
                lasth = f"hs_{blk}_{tb}"
                A.vm(f"buffer_store_dwordx4 v[{pk}:{pk+3}], v{VL16}, s[{S_H}:{S_H+3}], s{S_T2} offen offset:{tb*1024} sc1", id=lasth)
            if state["R"] < N_IN: bgR(1)
        bgD_safe(5)
        A.stamp(5); A.stamp(2, "tr")
        FA, ONE = VT+4, VT+5
        A(f"s_mov_b32 s{S_C6}, 0x358637bd"); A(f"s_mov_b32 s{S_C6+1}, 0x358637bd")
        C6 = f"s[{S_C6}:{S_C6+1}]"
        if typ == "A":
            A(f"s_lshl_b32 s{S_T2}, s{I1}, 2"); A(f"s_lshl_b32 s{S_T3}, s{S_WN}, 1"); A(f"s_add_u32 s{S_T2}, s{S_T2}, s{S_T3}"); A(f"s_add_u32 s{S_T2}, s{S_T2}, 28")
            A(f"s_lshl_b32 s{S_T2}, s{S_T2}, 11"); A(f"s_add_u32 s{S_T4}, s{S_T2}, s{S_HB}"); A(f"s_add_u32 s{S_XO}, s{S_T4}, 2048")
            RP = XF + 4; RLP = XF + 6
            for tb in range(2):
                a = acc(4, tb)
                A(f"v_mov_b32 v{RP}, v{VR+tb}"); A(f"v_mov_b32 v{RP+1}, v{VR+tb}")
                A(f"v_mul_f32 v{RLP}, 0x3fb8aa3b, v{VR+tb}"); A(f"v_mul_f32 v{RLP+1}, 0x3fb8aa3b, v{VR+tb}")
                for i in range(0, 16, 4):
                    for j in (0, 2): A(f"v_pk_mul_f32 v[{tt+j}:{tt+j+1}], v[{a+i+j}:{a+i+j+1}], v[{RLP}:{RLP+1}]")
                    for j in (0, 2): A(f"v_pk_fma_f32 v[{a+i+j}:{a+i+j+1}], v[{a+i+j}:{a+i+j+1}], v[{RP}:{RP+1}], {C6}")
                    for j in range(4): A(f"v_exp_f32_e64 v{tt+j}, v{tt+j} clamp")
                    for j in range(4): A(f"v_max_f32 v{a+i+j}, s{S_C6}, v{a+i+j}")
                    for j in (0, 2): A(f"v_pk_add_f32 v[{a+i+j}:{a+i+j+1}], v[{a+i+j}:{a+i+j+1}], v[{tt+j}:{tt+j+1}]")
                for hs in range(2):
                    pk = PK + 4*(nst % 4); nst += 1
                    for i in range(4): A(f"v_cvt_pk_bf16_f32 v{pk+i}, v{a+8*hs+2*i}, v{a+8*hs+2*i+1}")
                    A.vm(f"buffer_store_dwordx4 v[{pk}:{pk+3}], v{VL16}, s[{S_H}:{S_H+3}], s{S_XO if hs else S_T4} offen offset:{tb*1024} sc1", id=f"pq_{tb}_{hs}")
            A.stamp(3, "tr")
            A.wait(lasth)
            A.stamp(4, "tr")
            self.flag_store(0, FA, ONE)
            state["vfree"] = True
            bgR(6); bgD_safe(6)
            A.stamp(5, "tr")
        else:
            RR = WF; RL = WF + 16; TK = WF + 32; TV = VT + 6
            ONES = XF + 4
            for i in range(4): A(f"v_mov_b32 v{ONES+i}, 0x3f803f80")
            A(f"v_lshrrev_b32 v{tt}, 5, v{VLANE}"); A(f"v_lshlrev_b32 v{tt}, 4, v{tt}")
            A(f"s_lshl_b32 s{S_T0}, s{S_WM}, 8"); A(f"s_add_u32 s{S_T0}, s{S_T0}, {LDS_R}"); A(f"v_add_u32 v{XF+9}, s{S_T0}, v{tt}")
            D2, DZ = acc(2,0), acc(2,1)
            for tb in range(2):
                for q4 in range(4): A(f"ds_read_b128 v[{RR+4*q4}:{RR+4*q4+3}], v{XF+9} offset:{tb*128 + q4*32}")
                A("s_waitcnt lgkmcnt(0)")
                A(f"s_mov_b32 s{S_T0}, 0x3fb8aa3b"); A(f"s_mov_b32 s{S_T1}, 0x3fb8aa3b")
                for i in range(8): A(f"v_pk_mul_f32 v[{RL+2*i}:{RL+2*i+1}], v[{RR+2*i}:{RR+2*i+1}], s[{S_T0}:{S_T1}]")
                a = acc(0, tb); av = acc(1, tb)
                for i in range(0, 16, 4):
                    for j in (0, 2): A(f"v_pk_mul_f32 v[{tt+j}:{tt+j+1}], v[{a+i+j}:{a+i+j+1}], v[{RL+i+j}:{RL+i+j+1}]")
                    for j in (0, 2): A(f"v_pk_fma_f32 v[{a+i+j}:{a+i+j+1}], v[{a+i+j}:{a+i+j+1}], v[{RR+i+j}:{RR+i+j+1}], {C6}")
                    for j in range(4): A(f"v_exp_f32_e64 v{tt+j}, v{tt+j} clamp")
                    for j in range(4): A(f"v_max_f32 v{a+i+j}, s{S_C6}, v{a+i+j}")
                    for j in (0, 2): A(f"v_pk_add_f32 v[{a+i+j}:{a+i+j+1}], v[{a+i+j}:{a+i+j+1}], v[{tt+j}:{tt+j+1}]")
                for i in range(8): A(f"v_pk_mul_f32 v[{av+2*i}:{av+2*i+1}], v[{av+2*i}:{av+2*i+1}], v[{RR+2*i}:{RR+2*i+1}]")
                for i in range(8): A(f"v_cvt_pk_bf16_f32 v{TK+i}, v{a+2*i}, v{a+2*i+1}")
                for i in range(8): A(f"v_cvt_pk_bf16_f32 v{TV+i}, v{av+2*i}, v{av+2*i+1}")
                A("s_nop 1")
                for f in range(2):
                    c = "0" if (tb == 0 and f == 0) else None
                    A(f"v_mfma_f32_32x32x16_bf16 v[{D2}:{D2+15}], v[{TK+4*f}:{TK+4*f+3}], v[{TV+4*f}:{TV+4*f+3}], {c or f'v[{D2}:{D2+15}]'}")
                    A(f"v_mfma_f32_32x32x16_bf16 v[{DZ}:{DZ+15}], v[{TK+4*f}:{TK+4*f+3}], v[{ONES}:{ONES+3}], {c or f'v[{DZ}:{DZ+15}]'}")
                if tb == 0:
                    A.stamp(3, "tr"); A.wait(lasth); A.stamp(4, "tr"); self.flag_store(4, FA, ONE)
            A(f"v_and_b32 v{tt}, 31, v{VLANE}"); A(f"v_cmp_gt_u32 vcc, 16, v{tt}")
            A(f"s_lshl_b32 s{S_T0}, s{S_WM}, 13"); A(f"s_lshl_b32 s{S_T1}, s{S_WN}, 12"); A(f"s_add_u32 s{S_T0}, s{S_T0}, s{S_T1}"); A(f"s_add_u32 s{S_T0}, s{S_T0}, {LDS_KV}")
            A(f"v_lshlrev_b32 v{tt}, 2, v{VLANE}"); A(f"v_add_u32 v{tt}, s{S_T0}, v{tt}")
            A("s_nop 7"); A("s_nop 3")
            for r_ in range(16):
                if r_ < 8: A(f"v_cndmask_b32 v{D2+r_}, v{DZ+r_}, v{D2+r_}, vcc")
                else: A(f"v_cndmask_b32 v{D2+r_}, v{D2+r_}, v{DZ+r_}, vcc")
            for r_ in range(16): A(f"ds_write_b32 v{tt}, v{D2+r_} offset:{r_*256}")
            A("s_waitcnt lgkmcnt(0)"); A("s_barrier")
            A(f"s_lshr_b32 s{S_T0}, s{S_WV}, 1"); A(f"s_lshl_b32 s{S_T0}, s{S_T0}, 12"); A(f"s_add_u32 s{S_T0}, s{S_T0}, {LDS_KV}")
            A(f"s_and_b32 s{S_T2}, s{S_WV}, 1")
            A(f"s_mul_i32 s{S_T3}, s{S_T2}, {8*256}"); A(f"s_add_u32 s{S_T0}, s{S_T0}, s{S_T3}")
            A(f"s_lshl_b32 s{S_T3}, s{S_T2}, 6")
            A(f"s_lshl_b32 s{S_T1}, s{S_IDX}, 2"); A(f"s_add_u32 s{S_T1}, s{S_T1}, s{S_WV}")
            A(f"s_mul_i32 s{S_T1}, s{S_T1}, {KV_HEAD}"); A(f"s_add_u32 s{S_T1}, s{S_T1}, {WS_KV}")
            A(f"v_and_b32 v{tt}, 7, v{VLANE}"); A(f"v_lshlrev_b32 v{tt}, 8, v{tt}"); A(f"v_add_u32 v{tt}, s{S_T0}, v{tt}")
            A(f"v_lshrrev_b32 v{tt+1}, 3, v{VLANE}"); A(f"v_lshlrev_b32 v{tt+1}, 2, v{tt+1}")
            A(f"v_add_u32 v{tt+2}, v{tt}, v{tt+1}"); A(f"v_add_u32 v{tt+2}, s{S_T3}, v{tt+2}")
            B0 = ACC
            for n in range(4):
                off = (32*(n>>1) + 8*(n&1))*4
                A(f"ds_read_b32 v{B0+2*n}, v{tt+2} offset:{off}"); A(f"ds_read_b32 v{B0+2*n+1}, v{tt+2} offset:{off+8192}")
            A(f"s_sub_u32 s{S_T3}, 64, s{S_T3}")
            A(f"v_lshlrev_b32 v{tt+3}, 5, v{tt+1}"); A(f"v_add_u32 v{tt+3}, v{tt+3}, v{tt}"); A(f"v_add_u32 v{tt+3}, s{S_T3}, v{tt+3}")
            A(f"v_cmp_gt_u32 vcc, 16, v{VLANE}"); A(f"s_and_saveexec_b64 s[{S_E0}:{S_E0+1}], vcc")
            A(f"ds_read_b32 v{B0+8}, v{tt+3}"); A(f"ds_read_b32 v{B0+9}, v{tt+3} offset:8192")
            A(f"s_mov_b64 exec, s[{S_E0}:{S_E0+1}]")
            A(f"v_lshlrev_b32 v{tt+2}, 2, v{VLANE}"); A(f"v_add_u32 v{tt+2}, s{S_T1}, v{tt+2}")
            A("s_waitcnt lgkmcnt(0)")
            for n in range(4):
                A(f"v_add_f32 v{B0+2*n}, v{B0+2*n}, v{B0+2*n+1}")
                A.vm(f"global_atomic_add_f32 v{tt+2}, v{B0+2*n}, s[{S_WSP}:{S_WSP+1}] offset:{n*256}")
            A(f"v_add_f32 v{B0+8}, v{B0+8}, v{B0+9}")
            A(f"s_and_saveexec_b64 s[{S_E0}:{S_E0+1}], vcc")
            A.vm(f"global_atomic_add_f32 v{tt+2}, v{B0+8}, s[{S_WSP}:{S_WSP+1}] offset:1024", id="kvat")
            A(f"s_mov_b64 exec, s[{S_E0}:{S_E0+1}]")
            state["vfree"] = True
            A.stamp(5, "tr")
        A.stamp(6); A.stamp(6, "tr")
        while state["R"] < 36:
            bgR(4); bgD_safe(4)
        A("s_waitcnt lgkmcnt(0)")

class G2:
    ACC2 = 0; HB = 64; NH = 32; W2V = 192
    def __init__(self, A): self.A = A; self.w2 = W2(A)
    def poll(self, label, vaddr, nl, expect=None, novm=False):
        A = self.A; T = VT
        A(f"s_mov_b32 s{S_T3}, 0")
        A(f"s_mov_b64 s[{S_E0}:{S_E0+1}], exec"); A(f"s_mov_b64 exec, {(1<<nl)-1}")
        A.label(label)
        if novm: A.l.append(f"  global_load_dword v{T+9}, v{vaddr}, s[{S_WSP}:{S_WSP+1}] sc1")
        else: A.vm(f"global_load_dword v{T+9}, v{vaddr}, s[{S_WSP}:{S_WSP+1}] sc1")
        A("s_waitcnt vmcnt(0)")
        if expect is None: A(f"v_cmp_ne_u32 vcc, 0, v{T+9}")
        else: A(f"v_cmp_le_u32 vcc, {expect}, v{T+9}")
        A(f"s_add_u32 s{S_T3}, s{S_T3}, 1")
        A(f"s_cmp_ge_u32 s{S_T3}, {POLL_MAX}"); A(f"s_cbranch_scc1 {label}_x")
        A(f"s_cmp_eq_u64 vcc, exec"); A(f"s_cbranch_scc1 {label}_x")
        A("s_sleep 1"); A(f"s_branch {label}")
        A.label(label + "_x")
        A(f"s_mov_b64 exec, s[{S_E0}:{S_E0+1}]")
    def check(self, label, vreg, nl, expect=None):
        pass
    def body(self):
        A = self.A; T = VT; VL = VLANE
        ACC2 = 0; HB = 64; NH = 16; KVR0 = 128
        A.reset_vm()
        VFL, VKV, VCN = T+10, T+11, T+12
        VF1, VF2 = T+8, T+9
        srd(A, S_O, P_O, P_O+1, 2048*1024)
        srd(A, S_XX, P_X, P_X+1, 2048*1024)
        A(f"s_lshl_b32 s{S_HO}, s{S_TAU}, 2"); A(f"s_add_u32 s{S_HO}, s{S_HO}, s{S_WV}")
        A(f"s_lshl_b32 s{S_T0}, s{S_HO}, 6"); A(f"s_add_u32 s{S_T0}, s{S_T0}, {WS_FLAG}")
        A(f"v_lshlrev_b32 v{VFL}, 2, v{VL}"); A(f"v_add_u32 v{VFL}, s{S_T0}, v{VFL}")
        A(f"s_mul_i32 s{S_HO}, s{S_HO}, {36*2048}")
        A(f"s_add_u32 s{S_T4}, s{S_HO}, {56*1024}")
        A(f"v_and_b32 v{T}, 31, v{VL}"); A(f"v_lshrrev_b32 v{T+1}, 5, v{VL}")
        A(f"v_lshlrev_b32 v{T+2}, 4, v{T+1}"); A(f"v_add_u32 v{T+2}, v{T+2}, v{T}"); A(f"v_subrev_u32 v{T+2}, 16, v{T+2}"); A(f"v_lshlrev_b32 v{T+2}, 5, v{T+2}")
        A(f"v_lshlrev_b32 v{T+3}, 5, v{T+1}"); A(f"v_add_u32 v{T+3}, 1024, v{T+3}")
        A(f"v_cmp_gt_u32 vcc, 16, v{T}"); A("s_nop 1"); A(f"v_cndmask_b32 v{T+2}, v{T+2}, v{T+3}, vcc")
        A(f"s_lshl_b32 s{S_T0}, s{S_WV}, 3"); A(f"s_mul_i32 s{S_T0}, s{S_T0}, {KV_HEAD}"); A(f"s_add_u32 s{S_T0}, s{S_T0}, {WS_KV}")
        A(f"v_add_u32 v{VKV}, s{S_T0}, v{T+2}")
        A(f"s_lshl_b32 s{S_T0}, s{S_WV}, 9"); A(f"s_add_u32 s{S_T0}, s{S_T0}, {WS_KVCNT}")
        A(f"v_lshlrev_b32 v{VCN}, 6, v{VL}"); A(f"v_add_u32 v{VCN}, s{S_T0}, v{VCN}")
        A("s_barrier")
        A("s_waitcnt vmcnt(0)")
        A(f"s_cmp_ge_u32 s{S_CP}, 2"); A("s_cbranch_scc1 K12_sigB")
        A(f"s_lshl_b32 s{S_T0}, s{S_T}, 1"); A(f"s_add_u32 s{S_T0}, s{S_T0}, s{S_WM}"); A(f"s_lshl_b32 s{S_T0}, s{S_T0}, 2")
        A(f"s_lshr_b32 s{S_T1}, s{S_IDX}, 1"); A(f"s_add_u32 s{S_T0}, s{S_T0}, s{S_T1}"); A(f"s_lshl_b32 s{S_T0}, s{S_T0}, 4")
        A(f"s_lshl_b32 s{S_T1}, s{S_I1}, 1"); A(f"s_add_u32 s{S_T0}, s{S_T0}, s{S_T1}"); A(f"s_add_u32 s{S_T0}, s{S_T0}, s{S_WN}")
        A(f"s_add_u32 s{S_T0}, s{S_T0}, 8"); A(f"s_lshl_b32 s{S_T0}, s{S_T0}, 2"); A(f"s_add_u32 s{S_T0}, s{S_T0}, {WS_FLAG}")
        A(f"v_mov_b32 v{T+4}, s{S_T0}"); A(f"v_mov_b32 v{T+5}, 1")
        A(f"s_mov_b64 s[{S_E0}:{S_E0+1}], exec"); A("s_mov_b64 exec, 1")
        A(f"!global_store_dword v{T+4}, v{T+5}, s[{S_WSP}:{S_WSP+1}] sc1")
        A(f"s_mov_b64 exec, s[{S_E0}:{S_E0+1}]"); A("s_branch K12_sigX")
        A("K12_sigB:")
        A(f"s_lshl_b32 s{S_T0}, s{S_IDX}, 2"); A(f"s_add_u32 s{S_T0}, s{S_T0}, s{S_WV}"); A(f"s_lshl_b32 s{S_T0}, s{S_T0}, 6"); A(f"s_add_u32 s{S_T0}, s{S_T0}, {WS_KVCNT}")
        A(f"v_mov_b32 v{T+4}, s{S_T0}"); A(f"v_mov_b32 v{T+5}, 1")
        A(f"s_mov_b64 s[{S_E0}:{S_E0+1}], exec"); A("s_mov_b64 exec, 1")
        A(f"!global_atomic_add v{T+4}, v{T+5}, s[{S_WSP}:{S_WSP+1}] sc1")
        A(f"s_mov_b64 exec, s[{S_E0}:{S_E0+1}]")
        A("K12_sigX:")
        A.stamp(7); A.stamp(7, "tr")
        self.poll("K12_pollH", VFL, 8)
        A.stamp(8, "tr")
        A.stamp(8); A.stamp(1, "g2")
        hstate = {"off": 0}
        def h_items(f):
            o = []
            base = (f // 4) * 4096
            if base != hstate["off"]:
                o.append(f"s_add_u32 s{S_HO}, s{S_HO}, {base - hstate['off']}"); hstate["off"] = base
            hb = HB + 4*(f % NH)
            o.append(("vm", f"h{f}", f"buffer_load_dwordx4 v[{hb}:{hb+3}], v{VL16}, s[{S_H}:{S_H+3}], s{S_HO} offen offset:{(f%4)*1024} sc1"))
            return o
        def pq_items(g):
            o = []
            if g % 4 == 0 and g > 0: o.append(f"s_add_u32 s{S_T4}, s{S_T4}, 4096")
            o.append(("vm", f"pq{g}", f"buffer_load_dwordx4 a[{4*g}:{4*g+3}], v{VL16}, s[{S_H}:{S_H+3}], s{S_T4} offen offset:{(g%4)*1024} sc1"))
            return o
        def kv_items(h):
            b = KVR0 + 8*h
            return [("vm", None, f"global_load_dwordx4 v[{b}:{b+3}], v{VKV}, s[{S_WSP}:{S_WSP+1}] sc1"),
                    ("vm", f"kv{h}", f"global_load_dwordx4 v[{b+4}:{b+7}], v{VKV}, s[{S_WSP}:{S_WSP+1}] offset:16 sc1"),
                    f"v_add_u32 v{VKV}, {KV_HEAD}, v{VKV}"]
        AHEAD = G2_AHEAD
        KVB = [KVR0 + 8*h for h in range(8)]
        DO = [224 - 32, 224 - 16]
        DO = [T - 16 - 16 + 0, 0]
        DO = [208, 224]
        DO = [HB + 32, HB + 48]
        OF = [T, T+4]
        loads = [("h", f) for f in range(56)]
        for h in range(8): loads += [("kv", h), ("pq", 2*h), ("pq", 2*h+1)]
        CHK = G2_CHK
        li = {"n": 0}
        def issue(n):
            o = []
            for _ in range(n):
                if li["n"] >= len(loads): break
                k, x = loads[li["n"]]; li["n"] += 1
                o.append(h_items(x) if k == "h" else (kv_items(x) if k == "kv" else pq_items(x)))
            return o
        A(f"s_mul_i32 s{S_T0}, s{S_J}, {7*1024}"); A(f"s_add_u32 s{S_T0}, s{S_T0}, s{S_HO}")
        for x in issue(4):
            for y in x: A(y)
        if G2_PF:
            for k in range(7):
                if k == 4: A(f"s_add_u32 s{S_T0}, s{S_T0}, 4096")
                A.vm(f"buffer_load_dwordx4 v[{T}:{T+3}], v{VL16}, s[{S_H}:{S_H+3}], s{S_T0} offen offset:{(k%4)*1024} sc1")
        for x in issue(AHEAD - 4):
            for y in x: A(y)
        A.stamp(2, "g2")
        for i in range(28):
            A.wait(f"h{2*i+1}")
            if i == 1: A.stamp(3, "g2")
            gaps = [[] for _ in range(4)]
            if i == CHK - 5:
                gaps[0] += [f"v_add_u32 v{VFL}, 32, v{VFL}", f"s_mov_b64 s[{S_E0}:{S_E0+1}], exec", "s_mov_b64 exec, 15",
                            ("vm", "fq", f"global_load_dword v{VF1}, v{VFL}, s[{S_WSP}:{S_WSP+1}] sc1"), "s_mov_b64 exec, 255",
                            ("vm", "fkv", f"global_load_dword v{VF2}, v{VCN}, s[{S_WSP}:{S_WSP+1}] sc1"), f"s_mov_b64 exec, s[{S_E0}:{S_E0+1}]"]
            n = 2
            if li["n"] + n > 56 and i < CHK: n = max(0, 56 - li["n"])
            for k, x in enumerate(issue(n)): gaps[1+k] += x
            mf = []
            for tb in range(2):
                hb = HB + 4*((2*i+tb) % NH)
                for nb in range(2):
                    a = ACC2 + 16*(2*nb+tb)
                    c = "0" if i == 0 else f"v[{a}:{a+15}]"
                    mf.append(f"v_mfma_f32_32x32x16_bf16 v[{a}:{a+15}], {self.w2.frag(i,nb)}, v[{hb}:{hb+3}], {c}")
            for g in range(4):
                A(mf[g])
                for x in gaps[g]: A(x)
            if i == CHK - 1:
                A.stamp(4, "g2")
                A.wait("fkv")
                A(f"s_mov_b64 s[{S_E0}:{S_E0+1}], exec"); A("s_mov_b64 exec, 15")
                A(f"v_cmp_ne_u32 vcc, 0, v{VF1}"); A("s_nop 3"); A("s_cmp_eq_u64 vcc, exec"); A(f"s_mov_b64 exec, s[{S_E0}:{S_E0+1}]")
                A("s_cbranch_scc1 K12_qok")
                self.poll("K12_pollQ", VFL, 4, novm=True)
                A.label("K12_qok")
                A(f"s_mov_b64 s[{S_E0}:{S_E0+1}], exec"); A("s_mov_b64 exec, 255")
                A(f"v_cmp_le_u32 vcc, 16, v{VF2}"); A("s_nop 3"); A("s_cmp_eq_u64 vcc, exec"); A(f"s_mov_b64 exec, s[{S_E0}:{S_E0+1}]")
                A("s_cbranch_scc1 K12_kvok")
                self.poll("K12_pollKV", VCN, 8, expect=16, novm=True)
                A.label("K12_kvok")
                A.stamp(5, "g2")
        A.stamp(6, "g2")
        A(f"v_lshrrev_b32 v{T+8}, 3, v{VTID}"); A(f"v_and_b32 v{T+9}, 7, v{VTID}")
        A(f"s_lshl_b32 s{S_T0}, s{S_TAU}, 16"); A(f"s_lshl_b32 s{S_T2}, s{S_J}, 7"); A(f"s_add_u32 s{S_T0}, s{S_T0}, s{S_T2}")
        VG = VFL
        A(f"v_lshlrev_b32 v{VG}, 10, v{T+8}"); A(f"v_lshlrev_b32 v{VCN}, 4, v{T+9}"); A(f"v_add_u32 v{VG}, v{VG}, v{VCN}")
        A(f"s_add_u32 s{S_T2}, s{S_T0}, {32*1024}")
        XR = HB
        A(f"s_mov_b32 s{S_T1}, 0x358637bd")
        units = [(h, tb) for h in range(8) for tb in range(2)]
        def stA(u):
            h, tb = units[u]; d = DO[u & 1]
            o = []
            if tb == 0:
                o.append(("wait", [f"kv{h}", f"pq{2*h}"]))
                o += [f"v_cvt_pk_bf16_f32 v{KVB[h]+e}, v{KVR0+8*h+2*e}, v{KVR0+8*h+2*e+1}" for e in range(4)]
                o.append("s_nop 1")
            else: o.append(("wait", [f"pq{2*h+1}"]))
            o.append(f"v_mfma_f32_32x32x16_bf16 v[{d}:{d+15}], v[{KVB[h]}:{KVB[h]+3}], {ar(4*(2*h+tb), 4)}, 0")
            return o
        def stB(u):
            d = DO[u & 1]; o = OF[u & 1]; rc = T + 8
            l = [f"v_add_f32 v{rc}, s{S_T1}, v{d}", f"v_rcp_f32 v{rc}, v{rc}", "s_nop 0"]
            l += [f"v_mul_f32 v{d+8+e}, v{rc}, v{d+8+e}" for e in range(8)]
            l += [f"v_cvt_pk_bf16_f32 v{o+e}, v{d+8+2*e}, v{d+8+2*e+1}" for e in range(4)]
            return l
        def stC(u):
            h, tb = units[u]; o = OF[u & 1]; i = 28 + h
            return [f"v_mfma_f32_32x32x16_bf16 v[{ACC2+16*(2*nb+tb)}:{ACC2+16*(2*nb+tb)+15}], {self.w2.frag(i,nb)}, v[{o}:{o+3}], v[{ACC2+16*(2*nb+tb)}:{ACC2+16*(2*nb+tb)+15}]" for nb in range(2)]
        for x in stA(0): A(x)
        for x in issue(1):
            for y in x: A(y)
        for x in stA(1): A(x)
        for x in issue(2):
            for y in x: A(y)
        A("s_nop 7"); A("s_nop 3")
        for x in stB(0): A(x)
        xdone = False
        for u in range(16):
            c = stC(u)
            nb_ = stB(u+1) if u + 1 < 16 else []
            A("s_nop 1"); A(c[0])
            for x in nb_[:5]: A(x)
            if u + 2 < 16:
                for x in stA(u+2): A(x)
            iss = issue(2)
            for x in iss:
                for y in x: A(y)
            if not iss and not xdone:
                A.vm(f"buffer_load_dwordx4 v[{XR}:{XR+3}], v{VG}, s[{S_XX}:{S_XX+3}], s{S_T0} offen", id="x0")
                A.vm(f"buffer_load_dwordx4 v[{XR+4}:{XR+7}], v{VG}, s[{S_XX}:{S_XX+3}], s{S_T2} offen", id="x1")
                xdone = True
            for x in nb_[5:10]: A(x)
            A(c[1])
            for x in nb_[10:]: A(x)
        assert xdone and li["n"] == len(loads)
        A.stamp(7, "g2")
        RS = 272; WSZ = 64*RS
        A(f"v_and_b32 v{T}, 31, v{VL}"); A(f"v_mul_u32_u24 v{T}, {RS}, v{T}"); A(f"v_lshrrev_b32 v{T+1}, 5, v{VL}"); A(f"v_lshlrev_b32 v{T+1}, 4, v{T+1}"); A(f"v_add_u32 v{T}, v{T}, v{T+1}")
        A(f"s_mul_i32 s{S_T3}, s{S_WV}, {WSZ}"); A(f"v_add_u32 v{T}, s{S_T3}, v{T}")
        A(f"v_lshrrev_b32 v{T+2}, 3, v{VTID}"); A(f"v_and_b32 v{T+3}, 7, v{VTID}")
        A(f"v_mul_u32_u24 v{T+6}, {RS}, v{T+2}"); A(f"v_lshlrev_b32 v{T+7}, 5, v{T+3}"); A(f"v_add_u32 v{T+6}, v{T+6}, v{T+7}")
        A("s_nop 1")
        for tb in range(2):
            if tb == 1: A("s_nop 7")
            for nb in range(2):
                a = ACC2 + 16*(2*nb+tb)
                for q in range(4):
                    A(f"ds_write_b128 v{T}, v[{a+4*q}:{a+4*q+3}] offset:{tb*32*RS + nb*128 + q*32}")
        A("s_waitcnt lgkmcnt(0)"); A("s_barrier")
        A.stamp(8, "g2")
        for ps in range(2):
            b = 72 + 40*ps
            for w in range(4):
                A(f"ds_read_b128 v[{b+8*w}:{b+8*w+3}], v{T+6} offset:{w*WSZ + ps*32*RS}")
                A(f"ds_read_b128 v[{b+8*w+4}:{b+8*w+7}], v{T+6} offset:{w*WSZ + ps*32*RS + 16}")
        for ps in range(2):
            b = 72 + 40*ps
            A(f"s_waitcnt lgkmcnt({8 if ps == 0 else 0})")
            for e in range(0, 8, 2):
                A(f"v_pk_add_f32 v[{b+e}:{b+e+1}], v[{b+e}:{b+e+1}], v[{b+8+e}:{b+8+e+1}]")
                A(f"v_pk_add_f32 v[{b+16+e}:{b+16+e+1}], v[{b+16+e}:{b+16+e+1}], v[{b+24+e}:{b+24+e+1}]")
            for e in range(0, 8, 2):
                A(f"v_pk_add_f32 v[{b+e}:{b+e+1}], v[{b+e}:{b+e+1}], v[{b+16+e}:{b+16+e+1}]")
            A.wait(f"x{ps}")
            xb = XR + 4*ps
            for e in range(4):
                A(f"v_lshlrev_b32 v{T+8}, 16, v{xb+e}"); A(f"v_and_b32 v{T+9}, 0xffff0000, v{xb+e}")
                A(f"v_pk_add_f32 v[{b+2*e}:{b+2*e+1}], v[{b+2*e}:{b+2*e+1}], v[{T+8}:{T+9}]")
                A(f"v_cvt_pk_bf16_f32 v{b+32+e}, v{b+2*e}, v{b+2*e+1}")
            A.vm(f"buffer_store_dwordx4 v[{b+32}:{b+35}], v{VG}, s[{S_O}:{S_O+3}], s{S_T0 if ps == 0 else S_T2} offen")

def gen_k12():
    A = Prog()
    prologue_common(A)
    A(f"s_cmp_ge_u32 s{S_CP}, 2"); A("s_cbranch_scc1 K12_typeB")
    base_nvm = A.nvm; base_ids = dict(A.ids)
    for typ in ("A", "B"):
        if typ == "B":
            A.label("K12_typeB"); A.nvm = base_nvm; A.ids = dict(base_ids)
        g = G1(A, typ)
        g.prologue()
        g.loop()
        A.stamp(4)
        g.transition()
        if typ == "A": A("s_branch K12_g2")
    A.label("K12_g2")
    G2(A).body()
    if STAMP:
        A("s_waitcnt vmcnt(0) lgkmcnt(0)")
        A(f"{STAMP_INS} s[60:61]")
        A("s_waitcnt lgkmcnt(0)")
        A(f"s_lshl_b32 s{S_T0}, s2, 2"); A(f"s_add_u32 s{S_T0}, s{S_T0}, s{S_WV}"); A(f"s_lshl_b32 s{S_T0}, s{S_T0}, 6")
        A(f"s_add_u32 s{S_T0}, s{S_T0}, {WS_STAMP + 65536}")
        A(f"v_mov_b32 v{VT}, s{S_T0}")
        for i in range(9):
            A(f"v_mov_b32 v{VT+1}, s{SB+2*i}")
            A.vm(f"global_store_dword v{VT}, v{VT+1}, s[{S_WSP}:{S_WSP+1}] offset:{4*i}")
        A(f"v_mov_b32 v{VT+1}, s60")
        A.vm(f"global_store_dword v{VT}, v{VT+1}, s[{S_WSP}:{S_WSP+1}] offset:36")
    A.label("K12_end")
    return A.text()

def main(path):
    hdr = open("cdna_kernels/" + NAME + ".s.ref").read().split("; Override")[0]
    n = NAME + "_kernel"
    body = gen_k12()
    out = hdr + "; @launch grid=(256,1,1) block=(256,1,1) lds=163840\n"
    out += '.amdgcn_target "amdgcn-amd-amdhsa--gfx950"\n.text\n'
    out += f""".globl {n}
.p2align 8
.type {n},@function
{n}:
{body}
  s_endpgm
.section .rodata,"a"
.p2align 6
.amdhsa_kernel {n}
  .amdhsa_next_free_vgpr 512
  .amdhsa_next_free_sgpr 102
  .amdhsa_accum_offset 256
  .amdhsa_group_segment_fixed_size 0
  .amdhsa_kernarg_size 80
  .amdhsa_user_sgpr_count 2
  .amdhsa_user_sgpr_kernarg_segment_ptr 1
  .amdhsa_system_sgpr_workgroup_id_x 1
.end_amdhsa_kernel
"""
    open(path, "w").write(out)

if __name__ == "__main__":
    if "--stamp" in sys.argv:
        STAMP = True; sys.argv.remove("--stamp")
    for a in list(sys.argv):
        if a.startswith("--nin="): N_IN = int(a[6:]); sys.argv.remove(a)
        if a.startswith("--smode="): SMODE = a[8:]; sys.argv.remove(a)
        if a.startswith("--ahead="): G2_AHEAD = int(a[8:]); sys.argv.remove(a)
        if a.startswith("--chk="): G2_CHK = int(a[6:]); sys.argv.remove(a)
        if a.startswith("--pf="): G2_PF = int(a[5:]); sys.argv.remove(a)
        if a.startswith("--cpf2="): CODE_PF2 = int(a[7:]); sys.argv.remove(a)
        if a.startswith("--wsh="): WS_H = int(a[6:])*1048576; sys.argv.remove(a)
        if a.startswith("--rot="): ROT = int(a[6:]); sys.argv.remove(a)
        if a.startswith("--cap="): CAP = int(a[6:]); sys.argv.remove(a)
    if "--cyc" in sys.argv:
        STAMP = True; STAMP_INS = "s_memtime"; sys.argv.remove("--cyc")
    main(sys.argv[1] if len(sys.argv) > 1 else "cdna_kernels/" + NAME + ".s")
```

```python
import sys

NAME = "parallel_sum__linear_attn_block__glu_gated_bilinear__prompt"
WS_M, WS_R, WS_KV, KV_HEAD = 0, 8192, 32768, 1152
WS_FLAG = WS_KV + 36864
WS_KVCNT = WS_FLAG + 8192
WS_CS = WS_KVCNT + 2048
WS_STCNT = WS_CS + 20480
WS_CSCNT = WS_STCNT + 2048
NZERO = 18
assert WS_CSCNT + 2048 <= WS_KV + NZERO*4096 <= 131072
DBG_INIT = 0
CS_TMP = 140
A_ONES = 220
VC1, VC2, VC3 = 251, 252, 253
WS_H = 131072
H_BYTES = 32*4*36*2048
POLL_MAX = 200000
STAMP = False
STAMP_INS = 's_memrealtime'
WS_STAMP = 1 << 24
SB = 84
CORR_AT = 28
N_IN = 31
CAP = 5
SMODE = 'main'
ROT = 8
DBGSTAMP = 0
CODE_PF2 = 0
G2_AHEAD = 12; G2_CHK = 20; G2_PF = 1
K_INITLD = 1; K_CSAT = 5; K_CNTLD = 17; H_CNT = 11; K_RANK = 25
CODE_KB = 48

class Prog:
    def __init__(self): self.l = []; self.nvm = 0; self.ids = {}
    def __call__(self, s):
        if s is None: return
        if isinstance(s, tuple):
            if s[0] == "vm":
                self.l.append("  " + s[2]); self.nvm += 1
                if s[1] is not None: self.ids[s[1]] = self.nvm
            elif s[0] == "vmu":
                self.l.append("  " + s[2]); self.ids[s[1]] = self.nvm
            elif s[0] == "wait":
                last = max(self.ids[i] for i in s[1])
                n = self.nvm - last
                assert n <= 63, (s, n)
                self.l.append(f"  s_waitcnt vmcnt({n})" + (" " + s[2] if len(s) > 2 and s[2] else ""))
            else: raise ValueError(s)
        elif s.endswith(":"): self.l.append(s)
        elif s.startswith("!"):
            self.l.append("  " + s[1:])
        else:
            assert not ("buffer_" in s or "global_" in s), s
            self.l.append("  " + s)
    def vm(self, text, id=None): self(("vm", id, text))
    def wait(self, *ids): self(("wait", list(ids)))
    def label(self, s): self.l.append(s + ":")
    def text(self): return "\n".join(self.l)
    def stamp(self, i, mode="main"):
        if STAMP and (mode == SMODE or i == 0): self.l.append(f"  {STAMP_INS} s[{SB+2*i}:{SB+2*i+1}]")
    def reset_vm(self):
        self.ids = {}

def vr(b, n=1): return f"v{b}" if n == 1 else f"v[{b}:{b+n-1}]"
def ar(b, n=1): return f"a{b}" if n == 1 else f"a[{b}:{b+n-1}]"
def srd(A, d, lo, hi, size):
    A(f"s_mov_b32 s{d}, s{lo}"); A(f"s_and_b32 s{d+1}, s{hi}, 0xffff"); A(f"s_mov_b32 s{d+2}, {size}"); A(f"s_mov_b32 s{d+3}, 0x20000")
def srd_off(A, d, lo, hi, off, size):
    A(f"s_add_u32 s{d}, s{lo}, {off}"); A(f"s_addc_u32 s{d+1}, s{hi}, 0"); A(f"s_and_b32 s{d+1}, s{d+1}, 0xffff")
    if isinstance(off, int): A(f"s_mov_b32 s{d+2}, {size - off}")
    else: A(f"s_sub_u32 s{d+2}, {size}, {off}")
    A(f"s_mov_b32 s{d+3}, 0x20000")

X_BASE = 0; X_SLOT = 16384
W_BASE = 49152; W_SLOT = 20480; W_NS = 3
W2IN = W_BASE + W_NS*W_SLOT
NSL = 6
LDS_R = W2IN + 4*NSL*2048
LDS_KV = 0
DLAG = 5

ACC = 0; WF = 160; XF = 200; TRA = 216; XA = 221; VOW = 225; VOX = 230
VR = 234; VLANE = 236; VL16 = 237; VTID = 238; VDM = 239
VT = 240
VTR = 254; VTR1 = 255
AMF = 228; ACF = 236
def acc(blk, tb): return ACC + (blk*2+tb)*16

S_X = 4; S_W = 8; S_H = 28; S_WSP = 32
S_WV = 34; S_WM = 35; S_WN = 36; S_T = 37; S_IDX = 38
S_KW = 39; S_KH = 40; S_R30 = 41; S_R35 = 42; S_RH = 43; S_KX = 44; S_W1K = 45; S_W4K = 46; S_XB = 47
S_WD = 48; S_LB = 52; S_W2O = 53
S_T0 = 54; S_T1 = 55; S_T2 = 56; S_T3 = 57; S_T4 = 58; S_XO = 59
S_E0 = 60; S_E2 = 62
S_P = 64
P_X, P_WQ, P_WO, P_G, P_U, P_D, P_O = 64, 66, 68, 72, 74, 76, 78
S_DBG = 72; S_KSC = 66; S_CG = 67
S_HB = 80; S_I1 = 81; S_CP = 82; S_TAU = 83; S_J = 70; S_HO = 71
S_WO = 8; S_O = 12; S_XX = 16
S_C6 = 20

def w2row(i):
    if i < 16: return ("D", 256, 16*i)
    if i < 24: return ("D", 128, 1024 + 16*(i-16))
    if i < 28: return ("D", 64, 1536 + 16*(i-24))
    return ("O", 128, 16*(i-28))

class W2:
    def __init__(self, A): self.A = A
    def frag(self, ks, nb, W2V=192):
        f = ks*2 + nb
        return ar(4*f, 4) if f < 64 else vr(W2V + 4*(f-64), 4)
    def half(self, ks, nb, h, W2V=192):
        f = ks*2 + nb
        return ar(4*f + 2*h, 2) if f < 64 else vr(W2V + 4*(f-64) + 2*h, 2)
    def slot_off(self, i):
        return (i % NSL)*2048
    def D(self, i):
        kind, mul, const = w2row(i)
        s = S_WD if kind == "D" else S_WO
        sh = {256: 18, 128: 17, 64: 16}[mul]
        o = []
        for hf in range(2):
            o.append([f"s_lshl_b32 s{S_W2O}, s{S_WV}, {sh}", f"s_add_u32 s{S_W2O}, s{S_W2O}, {(const + 8*hf)*1024}"] if hf == 0 else [f"s_add_u32 s{S_W2O}, s{S_W2O}, 8192"])
            o.append(("dma", f"s_add_u32 m0, s{S_LB}, {self.slot_off(i) + hf*1024}", ("vm", f"w2_{i}_{hf}", f"buffer_load_dwordx4 v{VDM}, s[{s}:{s+3}], s{S_W2O} offen lds")))
        return o
    def R(self, i):
        o = self.slot_off(i)
        r = [[("wait", [f"w2_{i}_1"])]]
        for nb in range(2):
            va = VTR if nb == 0 else VTR1
            r.append([f"ds_read_b64_tr_b16 {self.half(i, nb, 0)}, v{va} offset:{o}", f"ds_read_b64_tr_b16 {self.half(i, nb, 1)}, v{va} offset:{o+1024}"])
        return r

def emit_items(A, items):
    for it in items:
        if isinstance(it, tuple) and it[0] == "dma":
            A(it[1]); A("s_nop 0"); A(it[2])
        else:
            for s in it: A(s)

def prologue_common(A):
    A("s_cmp_ge_u32 s2, 256"); A("s_cbranch_scc1 K12_end")
    A.stamp(0)
    A(f"s_load_dwordx16 s[{S_P}:{S_P+15}], s[0:1], 0")
    A(f"s_load_dwordx2 s[{S_WSP}:{S_WSP+1}], s[0:1], 72")
    A(f"s_getpc_b64 s[{S_E2}:{S_E2+1}]")
    A("K12_pc:")
    A(f"v_and_b32 v{VLANE}, 63, v0")
    A(f"v_lshrrev_b32 v{VT}, 6, v0")
    A(f"v_mov_b32 v{VTID}, v0")
    A(f"v_lshlrev_b32 v{VL16}, 4, v{VLANE}")
    A(f"v_readfirstlane_b32 s{S_WV}, v{VT}")
    A(f"s_and_b32 s{S_T0}, s2, 7"); A(f"s_lshr_b32 s{S_T1}, s2, 3")
    A(f"s_lshl_b32 s{S_T2}, s{S_T1}, 2"); A(f"s_add_u32 s{S_T2}, s{S_T2}, s{S_WV}"); A(f"s_min_u32 s{S_T2}, s{S_T2}, ((K12_end-K12_pc)>>10)-1"); A(f"s_lshl_b32 s{S_T2}, s{S_T2}, 10")
    A(f"v_add_u32 v{VT+4}, s{S_T2}, v{VL16}")
    A.vm(f"global_load_dwordx4 v[{WF+36}:{WF+39}], v{VT+4}, s[{S_E2}:{S_E2+1}]")
    A(f"s_and_b32 s{S_T2}, s{S_T1}, 7"); A(f"s_lshr_b32 s{S_CP}, s{S_T1}, 3")
    A(f"s_lshr_b32 s{S_T}, s{S_T0}, 2"); A(f"s_lshl_b32 s{S_T}, s{S_T}, 3"); A(f"s_add_u32 s{S_T}, s{S_T}, s{S_T2}")
    A(f"s_and_b32 s{S_IDX}, s{S_T0}, 3"); A(f"s_lshl_b32 s{S_IDX}, s{S_IDX}, 1")
    A(f"s_and_b32 s{S_T3}, s{S_CP}, 1"); A(f"s_add_u32 s{S_IDX}, s{S_IDX}, s{S_T3}")
    A(f"s_and_b32 s{S_TAU}, s{S_T1}, 3"); A(f"s_lshl_b32 s{S_T3}, s{S_T0}, 2"); A(f"s_add_u32 s{S_TAU}, s{S_TAU}, s{S_T3}")
    A(f"s_lshr_b32 s{S_T4}, s{S_T1}, 2")
    A(f"s_add_u32 s{S_T0}, s{S_CP}, s{S_T2}"); A(f"s_and_b32 s{S_T0}, s{S_T0}, 3"); A(f"s_lshl_b32 s{S_T0}, s{S_T0}, 1")
    A(f"s_lshr_b32 s{S_T1}, s{S_T2}, 2"); A(f"s_add_u32 s{S_T0}, s{S_T0}, s{S_T1}")
    A(f"s_lshl_b32 s{S_KW}, s{S_T0}, 6")
    A(f"s_lshr_b32 s{S_WM}, s{S_WV}, 1"); A(f"s_and_b32 s{S_WN}, s{S_WV}, 1")
    t0, t1, t3, t4 = VT, VT+1, VT+3, VT+4
    A(f"v_lshrrev_b32 v{t0}, 3, v{VLANE}"); A(f"v_and_b32 v{t1}, 7, v{VLANE}")
    A(f"v_lshrrev_b32 v{t3}, 4, v{VLANE}"); A(f"v_xor_b32 v{t3}, v{t1}, v{t3}"); A(f"v_lshlrev_b32 v{t3}, 4, v{t3}")
    A(f"v_lshlrev_b32 v{t4}, 10, v{t0}"); A(f"v_add_u32 v{VOX}, v{t3}, v{t4}")
    A(f"v_xor_b32 v{VOX+1}, 64, v{VOX}"); A(f"v_add_u32 v{VOX+1}, {8*1024}, v{VOX+1}")
    A(f"v_add_u32 v{VOX+2}, {16*1024}, v{VOX}"); A(f"v_add_u32 v{VOX+3}, {16*1024}, v{VOX+1}")
    A(f"s_lshl_b32 s{S_XB}, s{S_T}, 7"); A(f"s_lshl_b32 s{S_T0}, s{S_WV}, 5"); A(f"s_add_u32 s{S_XB}, s{S_XB}, s{S_T0}"); A(f"s_lshl_b32 s{S_XB}, s{S_XB}, 10")
    A(f"s_lshl_b32 s{S_KX}, s{S_KW}, 1")
    A(f"s_and_b32 s{S_T0}, s{S_WV}, 1"); A(f"s_lshl_b32 s{S_T0}, s{S_T0}, 4"); A(f"s_add_u32 s{S_KH}, s{S_KW}, s{S_T0}")
    A(f"s_lshl_b32 s{S_T0}, s{S_WV}, 3"); A(f"s_add_u32 s{S_KW}, s{S_KW}, s{S_T0}")
    A(f"s_lshl_b32 s{S_W1K}, s{S_WV}, 10"); A(f"s_lshl_b32 s{S_W4K}, s{S_WV}, 12")
    A(f"s_lshr_b32 s{S_T0}, s{S_CP}, 1"); A(f"s_lshl_b32 s{S_T0}, s{S_T0}, 3"); A(f"s_add_u32 s{S_T3}, s{S_T0}, s{S_IDX}")
    A(f"s_lshl_b32 s{S_T0}, s{S_T}, 7"); A(f"s_lshl_b32 s{S_T1}, s{S_T3}, 3"); A(f"s_add_u32 s{S_T0}, s{S_T0}, s{S_T1}"); A(f"s_lshl_b32 s{S_T1}, s{S_WV}, 1"); A(f"s_add_u32 s{S_T2}, s{S_T0}, s{S_T1}")
    A(f"s_lshl_b32 s{S_T0}, s{S_T2}, 10"); A(f"v_add_u32 v{VT+5}, s{S_T0}, v{VL16}")
    A("s_waitcnt lgkmcnt(0)")
    A(f"s_mov_b32 s{S_J}, s{S_T4}")
    A(f"s_cmp_ge_u32 s2, {NZERO}"); A("s_cbranch_scc1 K12_nozero")
    A(f"s_lshl_b32 s{S_T0}, s2, 12"); A(f"s_add_u32 s{S_T0}, s{S_T0}, {WS_KV}")
    A(f"v_lshlrev_b32 v{VT+6}, 4, v{VTID}"); A(f"v_add_u32 v{VT+6}, s{S_T0}, v{VT+6}")
    for i in range(4): A(f"v_mov_b32 v{VT+8+i}, 0")
    A(f"!global_store_dwordx4 v{VT+6}, v[{VT+8}:{VT+11}], s[{S_WSP}:{S_WSP+1}] sc1")
    A("K12_nozero:")
    SX = WF + 20
    A.vm(f"global_load_dwordx4 v[{SX}:{SX+3}], v{VT+5}, s[{P_X}:{P_X+1}]")
    A.vm(f"global_load_dwordx4 v[{SX+4}:{SX+7}], v{VT+5}, s[{P_X}:{P_X+1}] offset:1024", id="strow")
    A(f"s_lshl_b32 s{S_HB}, s{S_T2}, 2")
    A(f"s_mov_b32 s{S_I1}, s{S_T3}")
    srd(A, S_X, P_X, P_X+1, 2048*1024)

class G1:
    def __init__(self, A, typ):
        self.A = A; self.typ = typ; self.w2 = W2(A)
        self.kinds = ["gu","gu","gu","gu","q"] if typ == "A" else ["k","v","gu","gu","guh"]
        if typ == "A": self.strides = [3584,3584,3584,3584,3072]; self.swz = ["g","u","g","u","q"]
        else: self.strides = [3072,3072,3584,3584,3584]; self.swz = ["q","q","g","u","h"]
    def Wg(self, h):
        o = []
        if h > 0:
            o.append([f"s_add_u32 s{S_KW}, s{S_KW}, 32", f"s_and_b32 s{S_KW}, s{S_KW}, 511"])
            if self.typ == "B": o.append([f"s_add_u32 s{S_KH}, s{S_KH}, 32", f"s_and_b32 s{S_KH}, s{S_KH}, 511"])
        o.append([f"s_mul_i32 s{S_R30}, s{S_KW}, 3072", f"s_mul_i32 s{S_R35}, s{S_KW}, 3584"])
        if self.typ == "B": o.append([f"s_mul_i32 s{S_RH}, s{S_KH}, 3584"])
        for rho in range(5):
            so = S_RH if self.swz[rho] == "h" else (S_R30 if self.strides[rho] == 3072 else S_R35)
            o.append(("dma", f"s_add_u32 m0, s{S_W1K}, {W_BASE + (h % W_NS)*W_SLOT + rho*4096}",
                      ("vm", f"W{h}_{rho}", f"buffer_load_dwordx4 v{VOW+rho}, s[{S_W+4*rho}:{S_W+4*rho+3}], s{so} offen lds")))
        return o
    def Xg(self, sg):
        o = []
        if sg > 0: o.append([f"s_add_u32 s{S_KX}, s{S_KX}, 128", f"s_and_b32 s{S_KX}, s{S_KX}, 1023"])
        o.append([f"s_add_u32 s{S_XO}, s{S_XB}, s{S_KX}"])
        for j in range(4):
            o.append(("dma", f"s_add_u32 m0, s{S_W4K}, {X_BASE + (sg % 3)*X_SLOT + j*1024}",
                      ("vm", f"X{sg}_{j}", f"buffer_load_dwordx4 v{VOX+j}, s[{S_X}:{S_X+3}], s{S_XO} offen lds")))
        return o
    def reads(self, s):
        par = s & 1; kk = s & 3; sg = s >> 2; h = s >> 1; second = s & 1
        xo = (sg % 3)*X_SLOT
        o = [f"ds_read_b128 v[{XF+8*par}:{XF+8*par+3}], v{XA+kk} offset:{xo}", f"ds_read_b128 v[{XF+8*par+4}:{XF+8*par+7}], v{XA+kk} offset:{xo+4096}"]
        for blk, kd in enumerate(self.kinds):
            b = WF + 20*par + 4*blk
            if kd == "guh": o1, o2 = (1024 if second else 0), 256
            else: o1, o2 = (2048 if second else 0), 512
            o1 += (h % W_NS)*W_SLOT
            o.append(f"ds_read_b64_tr_b16 v[{b}:{b+1}], v{TRA+blk} offset:{o1}")
            o.append(f"ds_read_b64_tr_b16 v[{b+2}:{b+3}], v{TRA+blk} offset:{o1+o2}")
        return o
    def mfmas(self, s, order=None):
        par = s & 1; o = []
        for blk in (order or range(5)):
            kd = self.kinds[blk]
            wf = f"v[{WF+20*par+4*blk}:{WF+20*par+4*blk+3}]"
            for tb in range(2):
                xf = f"v[{XF+8*par+4*tb}:{XF+8*par+4*tb+3}]"; a = acc(blk, tb)
                c = "0" if s == 0 else f"v[{a}:{a+15}]"
                if kd in ("k", "v"): o.append(f"v_mfma_f32_32x32x16_bf16 v[{a}:{a+15}], {xf}, {wf}, {c}")
                else: o.append(f"v_mfma_f32_32x32x16_bf16 v[{a}:{a+15}], {wf}, {xf}, {c}")
        return o
    def corr(self):
        o = []
        for blk in range(5):
            for tb in range(2):
                a = acc(blk, tb); cf = ar(ACF+4*blk, 4); mf = ar(AMF+4*tb, 4)
                if self.kinds[blk] in ("k", "v"): o.append(f"v_mfma_f32_32x32x16_bf16 v[{a}:{a+15}], {mf}, {cf}, v[{a}:{a+15}]")
                else: o.append(f"v_mfma_f32_32x32x16_bf16 v[{a}:{a+15}], {cf}, {mf}, v[{a}:{a+15}]")
        return o

    def prologue(self):
        A, typ, kinds = self.A, self.typ, self.kinds
        SZQ, SZG = 512*3072, 512*3584
        emit_items(A, self.Xg(0))
        if typ == "A":
            A(f"s_lshl_b32 s{S_T0}, s{S_IDX}, 8")
            srd_off(A, S_W+0, P_G, P_G+1, f"s{S_T0}", SZG); srd_off(A, S_W+4, P_U, P_U+1, f"s{S_T0}", SZG)
            A(f"s_add_u32 s{S_T0}, s{S_T0}, 128")
            srd_off(A, S_W+8, P_G, P_G+1, f"s{S_T0}", SZG); srd_off(A, S_W+12, P_U, P_U+1, f"s{S_T0}", SZG)
            A(f"s_lshl_b32 s{S_T0}, s{S_IDX}, 7")
            srd_off(A, S_W+16, P_WQ, P_WQ+1, f"s{S_T0}", SZQ)
        else:
            A(f"s_lshl_b32 s{S_T0}, s{S_IDX}, 7"); A(f"s_add_u32 s{S_T0}, s{S_T0}, 1024")
            srd_off(A, S_W+0, P_WQ, P_WQ+1, f"s{S_T0}", SZQ)
            A(f"s_add_u32 s{S_T0}, s{S_T0}, 1024")
            srd_off(A, S_W+4, P_WQ, P_WQ+1, f"s{S_T0}", SZQ)
            A(f"s_lshl_b32 s{S_T0}, s{S_IDX}, 7"); A(f"s_add_u32 s{S_T0}, s{S_T0}, {16*128}")
            srd_off(A, S_W+8, P_G, P_G+1, f"s{S_T0}", SZG); srd_off(A, S_W+12, P_U, P_U+1, f"s{S_T0}", SZG)
            A(f"s_lshr_b32 s{S_T0}, s{S_IDX}, 1"); A(f"s_add_u32 s{S_T0}, s{S_T0}, 24"); A(f"s_lshl_b32 s{S_T0}, s{S_T0}, 7")
            A(f"s_and_b32 s{S_T1}, s{S_IDX}, 1"); A(f"s_lshl_b32 s{S_T1}, s{S_T1}, 6"); A(f"s_add_u32 s{S_T0}, s{S_T0}, s{S_T1}")
            A(f"s_cmp_ge_u32 s{S_WV}, 2")
            A(f"s_cselect_b32 s{S_T2}, s{P_U}, s{P_G}"); A(f"s_cselect_b32 s{S_T3}, s{P_U+1}, s{P_G+1}")
            srd_off(A, S_W+16, S_T2, S_T3, f"s{S_T0}", SZG)
        t0, t1, t2, t3, t4 = VT, VT+1, VT+2, VT+3, VT+4
        A(f"v_lshrrev_b32 v{t0}, 3, v{VLANE}"); A(f"v_and_b32 v{t1}, 7, v{VLANE}")
        A(f"v_lshrrev_b32 v{t2}, 4, v{VLANE}"); A(f"v_and_b32 v{t2}, 1, v{t2}")
        done = {}
        for rho in range(5):
            key = (self.swz[rho], self.strides[rho])
            if key in done:
                A(f"v_mov_b32 v{VOW+rho}, v{VOW+done[key]}"); continue
            done[key] = rho
            if self.swz[rho] == "h":
                A(f"v_lshrrev_b32 v{t3}, 2, v{VLANE}"); A(f"v_and_b32 v{t4}, 3, v{VLANE}")
                A(f"s_lshr_b32 s{S_T0}, s{S_WV}, 1"); A(f"s_lshl_b32 s{S_T0}, s{S_T0}, 1")
                A(f"v_xor_b32 v{t4}, s{S_T0}, v{t4}")
                A(f"v_mul_u32_u24 v{t3}, 3584, v{t3}"); A(f"v_lshlrev_b32 v{t4}, 4, v{t4}"); A(f"v_add_u32 v{VOW+rho}, v{t3}, v{t4}")
            else:
                if self.swz[rho] == "q": A(f"v_lshlrev_b32 v{t3}, 2, v{t2}")
                else:
                    A(f"v_lshlrev_b32 v{t3}, 1, v{t2}")
                    if self.swz[rho] == "u": A(f"v_or_b32 v{t3}, 4, v{t3}")
                A(f"v_xor_b32 v{t3}, v{t1}, v{t3}"); A(f"v_lshlrev_b32 v{t3}, 4, v{t3}")
                A(f"v_mul_u32_u24 v{t4}, {self.strides[rho]}, v{t0}"); A(f"v_add_u32 v{VOW+rho}, v{t3}, v{t4}")
        emit_items(A, self.Wg(0)); emit_items(A, self.Wg(1))
        A.stamp(1)
        A(f"v_lshlrev_b32 v{t3}, 2, v{t2}"); A(f"v_xor_b32 v{t3}, v{t1}, v{t3}"); A(f"v_lshlrev_b32 v{t3}, 4, v{t3}")
        A(f"v_lshlrev_b32 v{t4}, 10, v{t0}"); A(f"v_add_u32 v{VDM}, v{t3}, v{t4}")
        A(f"s_lshl_b32 s{S_T0}, s{S_J}, 7")
        srd_off(A, S_WD, P_D, P_D+1, f"s{S_T0}", 1792*1024)
        A(f"s_mul_i32 s{S_LB}, s{S_WV}, {NSL*2048}"); A(f"s_add_u32 s{S_LB}, s{S_LB}, {W2IN}")
        srd_wo_done = False
        A(f"s_load_dwordx2 s[{S_DBG}:{S_DBG+1}], s[0:1], 64")
        A(f"s_mov_b32 s{S_CG}, s{S_I1}")
        A(f"s_lshr_b32 s{S_T0}, s{S_T}, 3"); A(f"s_lshl_b32 s{S_T0}, s{S_T0}, 1"); A(f"s_add_u32 s{S_KSC}, s{S_T0}, s{S_WM}")
        A(f"v_and_b32 v{t0}, 31, v{VLANE}")
        A(f"v_and_b32 v{t1}, 15, v{t0}"); A(f"v_lshrrev_b32 v{t2}, 4, v{t0}")
        def cs_addr(dst, soff_code, lane_kind):
            soff_code()
            if lane_kind == "gu":
                A(f"v_mul_u32_u24 v{t3}, 1792, v{t2}"); A(f"v_add_u32 v{t3}, v{t3}, v{t1}")
            elif lane_kind == "kv":
                A(f"v_lshlrev_b32 v{t3}, 9, v{t2}"); A(f"v_add_u32 v{t3}, v{t3}, v{t1}")
            else: A(f"v_mov_b32 v{t3}, v{t0}")
            A(f"v_add_u32 v{t3}, s{S_T0}, v{t3}"); A(f"v_lshlrev_b32 v{t3}, 2, v{t3}"); A(f"v_add_u32 v{dst}, {WS_CS}, v{t3}")
        if typ == "A":
            cs_addr(VC1, lambda: (A(f"s_lshl_b32 s{S_T0}, s{S_IDX}, 1"), A(f"s_add_u32 s{S_T0}, s{S_T0}, s{S_WN}"), A(f"s_lshl_b32 s{S_T0}, s{S_T0}, 6"), A(f"s_add_u32 s{S_T0}, s{S_T0}, 1536")), "gu")
            cs_addr(VC2, lambda: (A(f"s_lshl_b32 s{S_T0}, s{S_IDX}, 6"), A(f"s_lshl_b32 s{S_T1}, s{S_WN}, 5"), A(f"s_add_u32 s{S_T0}, s{S_T0}, s{S_T1}")), "q")
            self.csa = [(VC1, 0), (VC1, 64), (VC1, 128), (VC1, 192), (VC2, 0)]
        else:
            cs_addr(VC2, lambda: (A(f"s_lshl_b32 s{S_T0}, s{S_IDX}, 6"), A(f"s_lshl_b32 s{S_T1}, s{S_WN}, 5"), A(f"s_add_u32 s{S_T0}, s{S_T0}, s{S_T1}"), A(f"s_add_u32 s{S_T0}, s{S_T0}, 512")), "q")
            cs_addr(VC1, lambda: (A(f"s_add_u32 s{S_T0}, s{S_IDX}, 16"), A(f"s_lshl_b32 s{S_T0}, s{S_T0}, 6"), A(f"s_lshl_b32 s{S_T1}, s{S_WN}, 5"), A(f"s_add_u32 s{S_T0}, s{S_T0}, s{S_T1}"), A(f"s_add_u32 s{S_T0}, s{S_T0}, 1536")), "gu")
            cs_addr(VC3, lambda: (A(f"s_lshr_b32 s{S_T0}, s{S_IDX}, 1"), A(f"s_add_u32 s{S_T0}, s{S_T0}, 24"), A(f"s_lshl_b32 s{S_T0}, s{S_T0}, 6"),
                                  A(f"s_and_b32 s{S_T1}, s{S_IDX}, 1"), A(f"s_lshl_b32 s{S_T1}, s{S_T1}, 1"), A(f"s_add_u32 s{S_T1}, s{S_T1}, s{S_WN}"), A(f"s_lshl_b32 s{S_T1}, s{S_T1}, 4"),
                                  A(f"s_add_u32 s{S_T0}, s{S_T0}, s{S_T1}"), A(f"s_add_u32 s{S_T0}, s{S_T0}, 1536")), "gu")
            self.csa = [(VC2, 0), (VC2, 2048), (VC1, 0), (VC1, 64), (VC3, 0)]
        A(f"v_mov_b32 v{t3}, 0x3f803f80")
        for i in range(4): A(f"v_accvgpr_write_b32 a{A_ONES+i}, v{t3}")
        srd_off(A, S_H, S_WSP, S_WSP+1, WS_H, WS_H + H_BYTES)
        G, p, r, c = t0, t1, t2, t3
        A(f"v_lshrrev_b32 v{G}, 4, v{VLANE}"); A(f"v_and_b32 v{G}, 1, v{G}")
        A(f"v_lshrrev_b32 v{p}, 5, v{VLANE}")
        A(f"v_and_b32 v{r}, 15, v{VLANE}"); A(f"v_lshrrev_b32 v{r}, 2, v{r}")
        A(f"v_and_b32 v{c}, 3, v{VLANE}")
        k_, rb, u1, u2 = t4, t4+1, t4+2, t4+3
        A(f"v_lshlrev_b32 v{k_}, 3, v{p}"); A(f"v_add_u32 v{k_}, v{k_}, v{r}")
        A(f"v_lshrrev_b32 v{rb}, 1, v{r}"); A(f"v_and_b32 v{rb}, 1, v{rb}")
        for blk, kd in enumerate(kinds):
            d = TRA + blk
            if typ == "A" and kd == "gu" and blk > 0:
                A(f"v_xor_b32 v{d}, {blk*32}, v{TRA}"); continue
            if typ == "B" and blk == 1:
                A(f"v_add_u32 v{d}, 4096, v{d-1}"); continue
            if typ == "B" and blk == 3:
                A(f"v_xor_b32 v{d}, 32, v{d-1}"); continue
            if kd == "guh":
                A(f"v_lshrrev_b32 v{u1}, 1, v{c}"); A(f"s_lshl_b32 s{S_T0}, s{S_WN}, 1"); A(f"v_add_u32 v{u1}, s{S_T0}, v{u1}")
                A(f"v_lshlrev_b32 v{u2}, 1, v{G}"); A(f"v_xor_b32 v{u1}, v{u1}, v{u2}"); A(f"v_lshlrev_b32 v{u1}, 4, v{u1}")
                A(f"v_lshlrev_b32 v{u2}, 6, v{k_}"); A(f"v_add_u32 v{u1}, v{u1}, v{u2}")
                A(f"v_lshlrev_b32 v{u2}, 11, v{G}"); A(f"v_add_u32 v{u1}, v{u1}, v{u2}")
                A(f"v_add_u32 v{u1}, {W_BASE + 4*4096}, v{u1}")
            else:
                if kd in ("q", "k"):
                    A(f"s_lshl_b32 s{S_T0}, s{S_WN}, 1"); A(f"v_add_u32 v{u1}, s{S_T0}, v{G}")
                elif typ == "A": A(f"v_mov_b32 v{u1}, 0")
                else:
                    A(f"s_lshl_b32 s{S_T0}, s{S_WN}, 1"); A(f"v_mov_b32 v{u1}, s{S_T0}")
                A(f"v_lshlrev_b32 v{u1}, 1, v{u1}"); A(f"v_lshrrev_b32 v{u2}, 1, v{c}"); A(f"v_add_u32 v{u1}, v{u1}, v{u2}")
                if kd in ("q", "k"): A(f"v_lshlrev_b32 v{u2}, 2, v{rb}")
                else:
                    A(f"v_lshlrev_b32 v{u2}, 1, v{rb}"); A(f"v_lshlrev_b32 v{d}, 2, v{G}"); A(f"v_or_b32 v{u2}, v{u2}, v{d}")
                A(f"v_xor_b32 v{u1}, v{u1}, v{u2}"); A(f"v_lshlrev_b32 v{u1}, 4, v{u1}")
                A(f"v_lshlrev_b32 v{u2}, 7, v{k_}"); A(f"v_add_u32 v{u1}, v{u1}, v{u2}")
                if kd == "q": A(f"v_add_u32 v{u1}, {W_BASE + 4*4096}, v{u1}")
                elif kd == "k": A(f"v_add_u32 v{u1}, {W_BASE}, v{u1}")
                else:
                    if typ == "A":
                        A(f"s_lshl_b32 s{S_T0}, s{S_WN}, 13"); A(f"s_add_u32 s{S_T0}, s{S_T0}, {W_BASE}")
                    else: A(f"s_mov_b32 s{S_T0}, {W_BASE + 2*4096}")
                    A(f"v_lshlrev_b32 v{u2}, 12, v{G}"); A(f"v_add_u32 v{u1}, v{u1}, v{u2}"); A(f"v_add_u32 v{u1}, s{S_T0}, v{u1}")
            A(f"v_and_b32 v{u2}, 1, v{c}"); A(f"v_lshlrev_b32 v{u2}, 3, v{u2}"); A(f"v_add_u32 v{d}, v{u1}, v{u2}")
        A(f"v_lshlrev_b32 v{u1}, 2, v{p}"); A(f"v_add_u32 v{u1}, v{u1}, v{r}"); A(f"v_lshlrev_b32 v{u1}, 7, v{u1}")
        A(f"v_lshlrev_b32 v{u2}, 1, v{G}"); A(f"v_lshrrev_b32 v{VTR}, 1, v{c}"); A(f"v_add_u32 v{u2}, v{u2}, v{VTR}")
        A(f"v_lshlrev_b32 v{VTR}, 2, v{rb}"); A(f"v_xor_b32 v{u2}, v{u2}, v{VTR}"); A(f"v_lshlrev_b32 v{u2}, 4, v{u2}"); A(f"v_add_u32 v{u1}, v{u1}, v{u2}")
        A(f"v_and_b32 v{u2}, 1, v{c}"); A(f"v_lshlrev_b32 v{u2}, 3, v{u2}"); A(f"v_add_u32 v{u1}, v{u1}, v{u2}")
        A(f"v_add_u32 v{VTR}, s{S_LB}, v{u1}"); A(f"v_xor_b32 v{VTR1}, 64, v{VTR}")
        A(f"v_and_b32 v{u1}, 31, v{VLANE}"); A(f"s_lshl_b32 s{S_T0}, s{S_WM}, 6"); A(f"v_add_u32 v{u1}, s{S_T0}, v{u1}")
        A(f"v_lshrrev_b32 v{u2}, 1, v{u1}"); A(f"v_and_b32 v{u2}, 7, v{u2}"); A(f"v_xor_b32 v{u2}, v{u2}, v{p}"); A(f"v_lshlrev_b32 v{u2}, 4, v{u2}")
        A(f"v_lshlrev_b32 v{u1}, 7, v{u1}"); A(f"v_add_u32 v{u1}, v{u1}, v{u2}")
        for kk in range(4): A(f"v_xor_b32 v{XA+kk}, {kk*32}, v{u1}")
        SX = WF + 20
        A.wait("strow")
        P0, P1, Q0, Q1, U = VT, VT+2, VT+4, VT+6, VT+8
        for tok, (P, Q) in enumerate(((P0, Q0), (P1, Q1))):
            for i in range(4):
                src = SX + 4*tok + i
                A(f"v_lshlrev_b32 v{U}, 16, v{src}"); A(f"v_and_b32 v{U+1}, 0xffff0000, v{src}")
                if i == 0:
                    A(f"v_pk_mul_f32 v[{Q}:{Q+1}], v[{U}:{U+1}], v[{U}:{U+1}]"); A(f"v_mov_b32 v{P}, v{U}"); A(f"v_mov_b32 v{P+1}, v{U+1}")
                else:
                    A(f"v_pk_add_f32 v[{P}:{P+1}], v[{P}:{P+1}], v[{U}:{U+1}]"); A(f"v_pk_fma_f32 v[{Q}:{Q+1}], v[{U}:{U+1}], v[{U}:{U+1}], v[{Q}:{Q+1}]")
        for r_ in (P0, P1, Q0, Q1): A(f"v_add_f32 v{r_}, v{r_}, v{r_+1}")
        for dpp in ("row_shr:1 row_mask:0xf bank_mask:0xf", "row_shr:2 row_mask:0xf bank_mask:0xf", "row_shr:4 row_mask:0xf bank_mask:0xf", "row_shr:8 row_mask:0xf bank_mask:0xf",
                    "row_bcast:15 row_mask:0xa bank_mask:0xf", "row_bcast:31 row_mask:0xc bank_mask:0xf"):
            for r_ in (P0, P1, Q0, Q1): A(f"v_add_f32_dpp v{r_}, v{r_}, v{r_} {dpp}")
        A(f"v_mul_f32 v{P0}, 0x3b000000, v{P0}"); A(f"v_mul_f32 v{P0+1}, 0x3b000000, v{P1}")
        A(f"v_mul_f32 v{Q0}, 0x3b000000, v{Q0}"); A(f"v_mul_f32 v{Q0+1}, 0x3b000000, v{Q1}")
        for j in range(2):
            A(f"v_fma_f32 v{Q0+j}, -v{P0+j}, v{P0+j}, v{Q0+j}"); A(f"v_max_f32 v{Q0+j}, 0, v{Q0+j}"); A(f"v_add_f32 v{Q0+j}, 0x3727c5ac, v{Q0+j}"); A(f"v_rsq_f32 v{Q0+j}, v{Q0+j}")
        A(f"v_mov_b32 v{U}, s{S_HB}"); A(f"v_add_u32 v{U+1}, {WS_R}, v{U}")
        A(f"s_mov_b64 s[{S_E0}:{S_E0+1}], exec"); A("s_mov_b32 exec_lo, 0"); A("s_mov_b32 exec_hi, 0x80000000")
        A.vm(f"global_store_dwordx2 v{U}, v[{P0}:{P0+1}], s[{S_WSP}:{S_WSP+1}] sc1")
        A.vm(f"global_store_dwordx2 v{U+1}, v[{Q0}:{Q0+1}], s[{S_WSP}:{S_WSP+1}] sc1", id="stst")
        A(f"s_mov_b64 exec, s[{S_E0}:{S_E0+1}]")
        A.stamp(2)
        A("s_waitcnt lgkmcnt(0)")
        A.wait("X0_3", "W0_4")
        A("s_barrier")
        A.stamp(3)
        for s in self.reads(0): A(s)
        for x in self.sig(f"s_cmp_lt_u32 s2, {NZERO}", S_DBG, DBG_INIT, None, "init"): A(x)

    def sig(self, cond, base, off_imm, off_sgpr, tag):
        L = f"K12{self.typ}_sig_{tag}"
        o = []
        if cond: o += [cond, f"s_cbranch_scc0 {L}"]
        o += [f"s_cmp_eq_u32 s{S_WV}, 0", f"s_cbranch_scc0 {L}"]
        if off_sgpr is None: o += [f"v_mov_b32 v{VT+9}, {off_imm}"]
        else: o += [f"s_lshl_b32 s{S_T4}, s{off_sgpr}, 7", f"s_add_u32 s{S_T4}, s{S_T4}, {off_imm}", f"v_mov_b32 v{VT+9}, s{S_T4}"]
        o += [f"v_mov_b32 v{VT+8}, 1", f"s_mov_b64 s[{S_E0}:{S_E0+1}], exec", "s_mov_b64 exec, 1",
              f"!global_atomic_add v{VT+9}, v{VT+8}, s[{base}:{base+1}] sc1", f"s_mov_b64 exec, s[{S_E0}:{S_E0+1}]", f"{L}:"]
        return o

    def spin(self, tag, base, vaddr, expect):
        L = f"K12{self.typ}_spin_{tag}"
        return [f"s_mov_b32 s{S_T3}, 0", f"{L}:", f"!global_load_dword v{VT+10}, v{vaddr}, s[{base}:{base+1}] sc1", "s_waitcnt vmcnt(0)",
                f"v_readfirstlane_b32 s{S_T4}, v{VT+10}", f"s_add_u32 s{S_T3}, s{S_T3}, 1", f"s_cmp_ge_u32 s{S_T3}, {POLL_MAX}", f"s_cbranch_scc1 {L}_x",
                f"s_cmp_ge_u32 s{S_T4}, {expect}", f"s_cbranch_scc1 {L}_x", "s_sleep 2", f"s_branch {L}", f"{L}_x:"]

    def w0(self, tag, code):
        L = f"K12{self.typ}_w0_{tag}"
        return [f"s_cmp_eq_u32 s{S_WV}, 0", f"s_cbranch_scc0 {L}"] + code + [f"{L}:"]

    def pre_barrier(self, h):
        typ = self.typ; T = VT
        if h == 2:
            return self.w0("initchk", [("wait", ["initld"]), f"v_readfirstlane_b32 s{S_T4}, v{T+10}", "s_nop 0", f"s_cmp_ge_u32 s{S_T4}, {NZERO}", f"s_cbranch_scc1 K12{typ}_initok",
                                       f"v_mov_b32 v{T+9}, {DBG_INIT}"] + self.spin("init", S_DBG, T+9, NZERO) + [f"K12{typ}_initok:"])
        if h == H_CNT:
            return self.w0("cntchk", [("wait", ["cntld"]), f"v_readfirstlane_b32 s{S_T4}, v{T+5}", "s_nop 0", f"s_cmp_ge_u32 s{S_T4}, 16", f"s_cbranch_scc1 K12{typ}_stok"]
                           + self.spin("st", S_WSP, T+7, 16) + [f"K12{typ}_stok:",
                           f"v_readfirstlane_b32 s{S_T4}, v{T+6}", "s_nop 0", f"s_cmp_ge_u32 s{S_T4}, 16", f"s_cbranch_scc1 K12{typ}_csok"]
                           + self.spin("cs", S_WSP, T+8, 16) + [f"K12{typ}_csok:"])
        return []

    def oneshot_items(self, add, at):
        typ = self.typ; wsp = f"s[{S_WSP}:{S_WSP+1}]"; dbg = f"s[{S_DBG}:{S_DBG+1}]"
        T = VT
        for s in range(4):
            par = s & 1
            it = [f"s_cmp_eq_u32 s{S_KSC}, {s}", f"s_cbranch_scc0 K12{typ}_nocs{s}"]
            for blk in range(5):
                b = WF + 20*par + 4*blk
                it.append(f"v_mfma_f32_32x32x16_bf16 a[{CS_TMP+16*blk}:{CS_TMP+16*blk+15}], a[{A_ONES}:{A_ONES+3}], v[{b}:{b+3}], 0")
            it.append(f"K12{typ}_nocs{s}:")
            self.fixed.setdefault(s, []).append(it)
        self.fixed.setdefault(K_INITLD, []).append(self.w0("initld", [f"v_mov_b32 v{T+9}, {DBG_INIT}", f"s_mov_b64 s[{S_E0}:{S_E0+1}], exec", "s_mov_b64 exec, 1",
                                      ("vmu", "initld", f"global_load_dword v{T+10}, v{T+9}, {dbg} sc1"), f"s_mov_b64 exec, s[{S_E0}:{S_E0+1}]"]))
        it = [[f"v_accvgpr_read_b32 v{T+blk}, a{CS_TMP+16*blk}"] for blk in range(5)]
        at_ = [f"s_mov_b64 s[{S_E0}:{S_E0+1}], exec", "s_mov_b32 exec_hi, 0"]
        for blk in range(5):
            va, off = self.csa[blk]
            at_.append(("vm", f"csat{blk}", f"global_atomic_add_f32 v{va}, v{T+blk}, {wsp} offset:{off}"))
        at_.append(f"s_mov_b64 exec, s[{S_E0}:{S_E0+1}]")
        add(at(K_CSAT), it + [at_])
        self.fixed.setdefault(K_CNTLD, []).append(self.w0("cntld", [f"s_lshl_b32 s{S_T4}, s{S_T}, 7", f"s_add_u32 s{S_T4}, s{S_T4}, {WS_STCNT}", f"v_mov_b32 v{T+7}, s{S_T4}",
                          f"s_lshl_b32 s{S_T4}, s{S_CG}, 7", f"s_add_u32 s{S_T4}, s{S_T4}, {WS_CSCNT}", f"v_mov_b32 v{T+8}, s{S_T4}",
                          f"s_mov_b64 s[{S_E0}:{S_E0+1}], exec", "s_mov_b64 exec, 1",
                          f"!global_load_dword v{T+5}, v{T+7}, {wsp} sc1", ("vmu", "cntld", f"global_load_dword v{T+6}, v{T+8}, {wsp} sc1"),
                          f"s_mov_b64 exec, s[{S_E0}:{S_E0+1}]"]))
        VM = T; VCS = T + 2; VRB = T + 7
        lds = [[f"v_and_b32 v{T+8}, 31, v{VLANE}", f"s_lshl_b32 s{S_T4}, s{S_T}, 7", f"s_lshl_b32 s{S_T3}, s{S_WM}, 6", f"s_add_u32 s{S_T4}, s{S_T4}, s{S_T3}"],
               [f"v_add_u32 v{T+8}, s{S_T4}, v{T+8}", f"v_lshlrev_b32 v{T+8}, 2, v{T+8}", f"v_add_u32 v{T+9}, {WS_R}, v{T+8}"],
               [("vm", None, f"global_load_dword v{VM}, v{T+8}, {wsp} sc1")], [("vm", None, f"global_load_dword v{VM+1}, v{T+8}, {wsp} offset:128 sc1")],
               [("vm", None, f"global_load_dword v{VR}, v{T+9}, {wsp} sc1")], [("vm", None, f"global_load_dword v{VR+1}, v{T+9}, {wsp} offset:128 sc1")]]
        for blk in range(5):
            va, off = self.csa[blk]
            lds.append([("vm", "csld" if blk == 4 and typ == "A" else None, f"global_load_dword v{VCS+blk}, v{va}, {wsp} offset:{off} sc1")])
        if typ == "B":
            lds.append([f"s_lshl_b32 s{S_T4}, s{S_T}, 7", f"v_add_u32 v{T+8}, s{S_T4}, v{VTID}", f"v_lshlrev_b32 v{T+8}, 2, v{T+8}", f"v_add_u32 v{T+8}, {WS_R}, v{T+8}"])
            lds.append([("vm", "csld", f"global_load_dword v{VRB}, v{T+8}, {wsp} sc1")])
        add(at(2*H_CNT-1, 1), lds)
        if CODE_PF2:
            add(at(CODE_PF2), [[f"s_getpc_b64 s[{S_E2}:{S_E2+1}]", f"K12{typ}_pc2:", f"s_lshr_b32 s{S_T4}, s2, 3", f"s_lshl_b32 s{S_T4}, s{S_T4}, 2", f"s_add_u32 s{S_T4}, s{S_T4}, s{S_WV}"],
                               [f"s_min_u32 s{S_T4}, s{S_T4}, ((K12_end-K12{typ}_pc2)>>10)-1", f"s_lshl_b32 s{S_T4}, s{S_T4}, 10", f"v_add_u32 v{T+9}, s{S_T4}, v{VL16}"],
                               [("vm", None, f"global_load_dwordx4 a[224:227], v{T+9}, s[{S_E2}:{S_E2+1}]")]])
        tt = T + 8; b = T + 10
        items = [[("wait", ["csld"])], [f"v_cmp_gt_u32 vcc, 32, v{VLANE}", "s_nop 1"]]
        for tb in range(2):
            items += [[f"v_cndmask_b32 v{tt}, 0, v{VM+tb}, vcc"], [f"v_cvt_pk_bf16_f32 v{b}, v{tt}, v{tt}"],
                      [f"v_and_b32 v{tt+1}, 0xffff0000, v{b}"], [f"v_sub_f32 v{tt+1}, v{tt}, v{tt+1}"],
                      [f"v_cvt_pk_bf16_f32 v{b+1}, v{tt+1}, 0"],
                      [f"v_accvgpr_write_b32 a{AMF+4*tb}, v{b}"], [f"v_accvgpr_write_b32 a{AMF+4*tb+1}, v{b+1}"],
                      [f"v_accvgpr_write_b32 a{AMF+4*tb+2}, 0"], [f"v_accvgpr_write_b32 a{AMF+4*tb+3}, 0"]]
        for blk in range(5):
            items += [[f"v_cndmask_b32 v{tt}, 0, v{VCS+blk}, vcc"], [f"v_sub_f32 v{tt}, 0, v{tt}"],
                      [f"v_cvt_pk_bf16_f32 v{b+1}, v{tt}, 0"], [f"v_lshlrev_b32 v{tt+1}, 16, v{b+1}"], [f"v_sub_f32 v{tt+1}, v{tt}, v{tt+1}"],
                      [f"v_cvt_pk_bf16_f32 v{b}, v{tt}, v{tt+1}"],
                      [f"v_accvgpr_write_b32 a{ACF+4*blk}, v{b}"], [f"v_accvgpr_write_b32 a{ACF+4*blk+1}, v{b+1}"],
                      [f"v_accvgpr_write_b32 a{ACF+4*blk+2}, 0"], [f"v_accvgpr_write_b32 a{ACF+4*blk+3}, 0"]]
        if typ == "B":
            items += [[f"v_lshlrev_b32 v{tt}, 2, v{VTID}"], [f"v_add_u32 v{tt}, {LDS_R}, v{tt}"],
                      [f"v_cmp_gt_u32 vcc, 128, v{VTID}", f"s_and_saveexec_b64 s[{S_E0}:{S_E0+1}], vcc", f"ds_write_b32 v{tt}, v{VRB}", f"s_mov_b64 exec, s[{S_E0}:{S_E0+1}]"]]
        add(at(K_RANK), items)

    def loop(self):
        A = self.A
        self.loop_start = len(A.l)
        steps = []
        for s in range(32):
            if s == CORR_AT: steps.append(("c", None))
            steps.append(("k", s))
        order_last = [b for b, kd in enumerate(self.kinds) if kd in ("gu","guh")] + [b for b, kd in enumerate(self.kinds) if kd not in ("gu","guh")]
        idx_of = {st: i for i, st in enumerate(steps)}
        def at(s, g=0): return (idx_of[("k", s)], g)
        flex = []
        def add(pos, items):
            for it in items: flex.append((pos, it))
        add(at(0), self.Wg(2)); add(at(0), self.Xg(1)); add(at(1, 1), self.Xg(2))
        for h in range(1, 14): add(at(2*h-1, 1), self.Wg(h+2))
        for sg in range(1, 6): add(at(4*sg-1, 1), self.Xg(sg+2))
        self.fixed = {}
        tagD = {}; tagR = {}; keep = []; placedR = {}
        self.oneshot_items(add, at)
        self.w2_done_R = []
        for i in range(N_IN):
            if i == 28: add(at(min(i+1, 31)), [["__WOSRD__"]])
            dd = self.w2.D(i); tagD[id(dd[0])] = i; keep.append(dd)
            add(at(min(i+1, 31)), dd)
            if i + 1 + DLAG <= 31:
                rr = self.w2.R(i); tagR[id(rr[-1])] = i; keep.append(rr)
                add(at(i+1+DLAG), rr); self.w2_done_R.append(i)
        flex.sort(key=lambda x: x[0])
        gaps_all = []
        pending = list(flex)
        for si, st in enumerate(steps):
            gaps = [[] for _ in range(10)]
            head = []
            if st[0] == "k":
                s = st[1]
                M = self.mfmas(s, order_last if s == 31 else None)
                head = ["s_waitcnt lgkmcnt(0)"]
                odd = s & 1
                if odd:
                    h = (s + 1)//2
                    if h <= 15:
                        ids = [f"W{h}_4"] + ([f"X{h//2}_3"] if h % 2 == 0 else [])
                        if h == 2: ids.append("stst")
                        if h == 6: ids.append("csat4")
                        gaps[0] += self.pre_barrier(h) + [("wait", ids), "s_barrier"]
                        if h == 2: gaps[0] += self.sig(None, S_WSP, WS_STCNT, S_T, "st")
                        if h == 6: gaps[0] += self.sig(None, S_WSP, WS_CSCNT, S_CG, "cs")
                    else:
                        gaps[0] += ["s_barrier"]
                nxt = s + 1
                if nxt < 32:
                    rd = self.reads(nxt)
                    g0 = 1 if odd else 0
                    for i, x in enumerate(rd): gaps[g0 + i//2].append(x)
            else:
                M = self.corr(); head = ["s_waitcnt lgkmcnt(0)"]
            if st[0] == "k" and st[1] in self.fixed:
                for it in self.fixed[st[1]]: gaps[9] += it
            gi = 0
            rest = []
            blocked = False
            for (pos, it) in pending:
                if blocked or pos[0] > si:
                    rest.append((pos, it)); blocked = blocked or False; continue
                if id(it) in tagD and placedR.get(tagD[id(it)] - NSL, -1) == si:
                    rest.append((pos, it)); blocked = True; continue
                g = max(gi, pos[1] if pos[0] == si else 0)
                need = 2 if (isinstance(it, tuple) and it[0] == "dma") else len(it)
                while g < 10 and len(gaps[g]) + min(need, CAP) > CAP: g += 1
                if g >= 10:
                    rest.append((pos, it)); blocked = True; continue
                if id(it) in tagR: placedR[tagR[id(it)]] = si
                if isinstance(it, tuple) and it[0] == "dma":
                    gaps[g].append(it[1]); gaps[g].append("__NOP__"); gaps[g].append(it[2]); gi = g + 1
                else:
                    gaps[g] += it; gi = g
            pending = rest
            for g in gaps:
                while "__NOP__" in g:
                    i = g.index("__NOP__")
                    cand = [j for j in range(i-1) if isinstance(g[j], str) and g[j].startswith("ds_read")]
                    if cand:
                        x = g.pop(cand[-1]); i -= 1; g[i] = x
                    else: g[i] = "s_nop 0"
            for x in head: A(x)
            for i in range(10):
                A(M[i])
                for x in gaps[i]:
                    if x == "__WOSRD__":
                        assert "W15_4" in A.ids
                        A(f"s_lshl_b32 s{S_T0}, s{S_J}, 7")
                        srd_off(A, S_WO, P_WO, P_WO+1, f"s{S_T0}", 512*1024)
                    else: A(x)
        assert not pending, pending[:3]
        txt = A.l
        for i in range(N_IN - NSL):
            rd = [n for n, x in enumerate(txt) if n > self.loop_start and "ds_read_b64_tr_b16 a[%d:" % (8*i+6) in x]
            assert rd, i
            pos_r = rd[-1]
            kind, mul, const = w2row(i+NSL)
            dm = [n for n, x in enumerate(txt) if n > self.loop_start and x.strip() == ("s_add_u32 s%d, s%d, %d" % (S_W2O, S_W2O, const*1024)) and "s_lshl_b32 s%d" % S_W2O in txt[n-1]]
            dm = [n for n in dm if n > pos_r]
            assert dm, (i, pos_r)
            assert any("lgkmcnt(0)" in x for x in txt[pos_r:dm[0]]), ("no lgkm wait", i)

    def flag_store(self, slot_imm, FA, ONE):
        A = self.A
        FA, ONE = VT+4, VT+5
        A(f"v_mov_b32 v{ONE}, 1")
        A(f"s_lshl_b32 s{S_T0}, s{S_T}, 1"); A(f"s_add_u32 s{S_T0}, s{S_T0}, s{S_WM}"); A(f"s_lshl_b32 s{S_T0}, s{S_T0}, 2")
        A(f"s_lshr_b32 s{S_T1}, s{S_IDX}, 1"); A(f"s_add_u32 s{S_T0}, s{S_T0}, s{S_T1}"); A(f"s_lshl_b32 s{S_T0}, s{S_T0}, 4")
        A(f"s_lshl_b32 s{S_T1}, s{S_I1}, 1"); A(f"s_add_u32 s{S_T0}, s{S_T0}, s{S_T1}"); A(f"s_add_u32 s{S_T0}, s{S_T0}, s{S_WN}")
        A(f"s_add_u32 s{S_T0}, s{S_T0}, {slot_imm}"); A(f"s_lshl_b32 s{S_T0}, s{S_T0}, 2"); A(f"s_add_u32 s{S_T0}, s{S_T0}, {WS_FLAG}")
        A(f"v_mov_b32 v{FA}, s{S_T0}")
        A(f"s_mov_b64 s[{S_E0}:{S_E0+1}], exec"); A("s_mov_b64 exec, 1")
        A.vm(f"global_store_dword v{FA}, v{ONE}, s[{S_WSP}:{S_WSP+1}] sc1")
        A(f"s_mov_b64 exec, s[{S_E0}:{S_E0+1}]")

    def transition(self):
        A, typ, kinds = self.A, self.typ, self.kinds
        w2 = self.w2
        tt = VT
        state = {"D": N_IN, "R": len(self.w2_done_R)}
        assert self.w2_done_R == list(range(len(self.w2_done_R)))
        A.stamp(1, "tr")
        def bgD(n=1):
            for _ in range(n):
                i = state["D"]
                if i >= 36 or i - state["R"] >= NSL: return
                emit_items(A, w2.D(i)); state["D"] += 1
        def bgR(n=1):
            for _ in range(n):
                i = state["R"]
                if i >= state["D"]: return
                if i >= 32 and not state.get("vfree"): return
                emit_items(A, w2.R(i)); state["R"] += 1
        def bgD_safe(n=1):
            A("s_waitcnt lgkmcnt(0)"); bgD(n)
        A(f"s_lshl_b32 s{S_T0}, s{S_T}, 1"); A(f"s_add_u32 s{S_T0}, s{S_T0}, s{S_WM}"); A(f"s_lshl_b32 s{S_T0}, s{S_T0}, 2")
        A(f"s_lshr_b32 s{S_T1}, s{S_IDX}, 1"); A(f"s_add_u32 s{S_T0}, s{S_T0}, s{S_T1}"); A(f"s_mul_i32 s{S_HB}, s{S_T0}, {36*2048}")
        A(f"s_and_b32 s{S_I1}, s{S_IDX}, 1")
        I1 = S_I1
        R2 = XF
        for tb in range(2):
            A(f"v_mul_f32 v{R2+2*tb}, v{VR+tb}, v{VR+tb}"); A(f"v_mul_f32 v{R2+2*tb+1}, v{VR+tb}, v{VR+tb}")
        bgR(2)
        PK = WF
        nst = 0
        gublks = [b for b, kd in enumerate(kinds) if kd in ("gu", "guh")]
        lasth = None
        for blk in gublks:
            kd = kinds[blk]
            if typ == "A":
                if blk == 0:
                    A(f"s_lshl_b32 s{S_T2}, s{I1}, 1"); A(f"s_add_u32 s{S_T2}, s{S_T2}, s{S_WN}"); A(f"s_lshl_b32 s{S_T2}, s{S_T2}, 13"); A(f"s_add_u32 s{S_T2}, s{S_T2}, s{S_HB}")
                else: A(f"s_add_u32 s{S_T2}, s{S_T2}, 2048")
            elif kd == "gu":
                if blk == 2:
                    A(f"s_lshl_b32 s{S_T2}, s{I1}, 2"); A(f"s_lshl_b32 s{S_T3}, s{S_WN}, 1"); A(f"s_add_u32 s{S_T2}, s{S_T2}, s{S_T3}"); A(f"s_add_u32 s{S_T2}, s{S_T2}, 16")
                    A(f"s_lshl_b32 s{S_T2}, s{S_T2}, 11"); A(f"s_add_u32 s{S_T2}, s{S_T2}, s{S_HB}")
                else: A(f"s_add_u32 s{S_T2}, s{S_T2}, 2048")
            else:
                A(f"s_lshl_b32 s{S_T2}, s{I1}, 1"); A(f"s_add_u32 s{S_T2}, s{S_T2}, s{S_WN}"); A(f"s_add_u32 s{S_T2}, s{S_T2}, 24")
                A(f"s_lshl_b32 s{S_T2}, s{S_T2}, 11"); A(f"s_add_u32 s{S_T2}, s{S_T2}, s{S_HB}")
            for tb in range(2):
                a = acc(blk, tb); pk = PK + 4*(nst % 4); nst += 1
                for i in range(4): A(f"v_pk_mul_f32 v[{a+2*i}:{a+2*i+1}], v[{a+2*i}:{a+2*i+1}], v[{a+8+2*i}:{a+8+2*i+1}]")
                for i in range(4): A(f"v_pk_mul_f32 v[{a+2*i}:{a+2*i+1}], v[{a+2*i}:{a+2*i+1}], v[{R2+2*tb}:{R2+2*tb+1}]")
                for i in range(4): A(f"v_cvt_pk_bf16_f32 v{pk+i}, v{a+2*i}, v{a+2*i+1}")
                lasth = f"hs_{blk}_{tb}"
                A.vm(f"buffer_store_dwordx4 v[{pk}:{pk+3}], v{VL16}, s[{S_H}:{S_H+3}], s{S_T2} offen offset:{tb*1024} sc1", id=lasth)
            if state["R"] < N_IN: bgR(1)
        bgD_safe(5)
        A.stamp(5); A.stamp(2, "tr")
        FA, ONE = VT+4, VT+5
        A(f"s_mov_b32 s{S_C6}, 0x358637bd"); A(f"s_mov_b32 s{S_C6+1}, 0x358637bd")
        C6 = f"s[{S_C6}:{S_C6+1}]"
        if typ == "A":
            A(f"s_lshl_b32 s{S_T2}, s{I1}, 2"); A(f"s_lshl_b32 s{S_T3}, s{S_WN}, 1"); A(f"s_add_u32 s{S_T2}, s{S_T2}, s{S_T3}"); A(f"s_add_u32 s{S_T2}, s{S_T2}, 28")
            A(f"s_lshl_b32 s{S_T2}, s{S_T2}, 11"); A(f"s_add_u32 s{S_T4}, s{S_T2}, s{S_HB}"); A(f"s_add_u32 s{S_XO}, s{S_T4}, 2048")
            RP = XF + 4; RLP = XF + 6
            for tb in range(2):
                a = acc(4, tb)
                A(f"v_mov_b32 v{RP}, v{VR+tb}"); A(f"v_mov_b32 v{RP+1}, v{VR+tb}")
                A(f"v_mul_f32 v{RLP}, 0x3fb8aa3b, v{VR+tb}"); A(f"v_mul_f32 v{RLP+1}, 0x3fb8aa3b, v{VR+tb}")
                for i in range(0, 16, 4):
                    for j in (0, 2): A(f"v_pk_mul_f32 v[{tt+j}:{tt+j+1}], v[{a+i+j}:{a+i+j+1}], v[{RLP}:{RLP+1}]")
                    for j in (0, 2): A(f"v_pk_fma_f32 v[{a+i+j}:{a+i+j+1}], v[{a+i+j}:{a+i+j+1}], v[{RP}:{RP+1}], {C6}")
                    for j in range(4): A(f"v_exp_f32_e64 v{tt+j}, v{tt+j} clamp")
                    for j in range(4): A(f"v_max_f32 v{a+i+j}, s{S_C6}, v{a+i+j}")
                    for j in (0, 2): A(f"v_pk_add_f32 v[{a+i+j}:{a+i+j+1}], v[{a+i+j}:{a+i+j+1}], v[{tt+j}:{tt+j+1}]")
                for hs in range(2):
                    pk = PK + 4*(nst % 4); nst += 1
                    for i in range(4): A(f"v_cvt_pk_bf16_f32 v{pk+i}, v{a+8*hs+2*i}, v{a+8*hs+2*i+1}")
                    A.vm(f"buffer_store_dwordx4 v[{pk}:{pk+3}], v{VL16}, s[{S_H}:{S_H+3}], s{S_XO if hs else S_T4} offen offset:{tb*1024} sc1", id=f"pq_{tb}_{hs}")
            A.stamp(3, "tr")
            A.wait(lasth)
            A.stamp(4, "tr")
            self.flag_store(0, FA, ONE)
            state["vfree"] = True
            bgR(6); bgD_safe(6)
            A.stamp(5, "tr")
        else:
            RR = WF; RL = WF + 16; TK = WF + 32; TV = VT + 6
            ONES = XF + 4
            for i in range(4): A(f"v_mov_b32 v{ONES+i}, 0x3f803f80")
            A(f"v_lshrrev_b32 v{tt}, 5, v{VLANE}"); A(f"v_lshlrev_b32 v{tt}, 4, v{tt}")
            A(f"s_lshl_b32 s{S_T0}, s{S_WM}, 8"); A(f"s_add_u32 s{S_T0}, s{S_T0}, {LDS_R}"); A(f"v_add_u32 v{XF+9}, s{S_T0}, v{tt}")
            D2, DZ = acc(2,0), acc(2,1)
            for tb in range(2):
                for q4 in range(4): A(f"ds_read_b128 v[{RR+4*q4}:{RR+4*q4+3}], v{XF+9} offset:{tb*128 + q4*32}")
                A("s_waitcnt lgkmcnt(0)")
                A(f"s_mov_b32 s{S_T0}, 0x3fb8aa3b"); A(f"s_mov_b32 s{S_T1}, 0x3fb8aa3b")
                for i in range(8): A(f"v_pk_mul_f32 v[{RL+2*i}:{RL+2*i+1}], v[{RR+2*i}:{RR+2*i+1}], s[{S_T0}:{S_T1}]")
                a = acc(0, tb); av = acc(1, tb)
                for i in range(0, 16, 4):
                    for j in (0, 2): A(f"v_pk_mul_f32 v[{tt+j}:{tt+j+1}], v[{a+i+j}:{a+i+j+1}], v[{RL+i+j}:{RL+i+j+1}]")
                    for j in (0, 2): A(f"v_pk_fma_f32 v[{a+i+j}:{a+i+j+1}], v[{a+i+j}:{a+i+j+1}], v[{RR+i+j}:{RR+i+j+1}], {C6}")
                    for j in range(4): A(f"v_exp_f32_e64 v{tt+j}, v{tt+j} clamp")
                    for j in range(4): A(f"v_max_f32 v{a+i+j}, s{S_C6}, v{a+i+j}")
                    for j in (0, 2): A(f"v_pk_add_f32 v[{a+i+j}:{a+i+j+1}], v[{a+i+j}:{a+i+j+1}], v[{tt+j}:{tt+j+1}]")
                for i in range(8): A(f"v_pk_mul_f32 v[{av+2*i}:{av+2*i+1}], v[{av+2*i}:{av+2*i+1}], v[{RR+2*i}:{RR+2*i+1}]")
                for i in range(8): A(f"v_cvt_pk_bf16_f32 v{TK+i}, v{a+2*i}, v{a+2*i+1}")
                for i in range(8): A(f"v_cvt_pk_bf16_f32 v{TV+i}, v{av+2*i}, v{av+2*i+1}")
                A("s_nop 1")
                for f in range(2):
                    c = "0" if (tb == 0 and f == 0) else None
                    A(f"v_mfma_f32_32x32x16_bf16 v[{D2}:{D2+15}], v[{TK+4*f}:{TK+4*f+3}], v[{TV+4*f}:{TV+4*f+3}], {c or f'v[{D2}:{D2+15}]'}")
                    A(f"v_mfma_f32_32x32x16_bf16 v[{DZ}:{DZ+15}], v[{TK+4*f}:{TK+4*f+3}], v[{ONES}:{ONES+3}], {c or f'v[{DZ}:{DZ+15}]'}")
                if tb == 0:
                    A.stamp(3, "tr"); A.wait(lasth); A.stamp(4, "tr"); self.flag_store(4, FA, ONE)
            A(f"v_and_b32 v{tt}, 31, v{VLANE}"); A(f"v_cmp_gt_u32 vcc, 16, v{tt}")
            A(f"s_lshl_b32 s{S_T0}, s{S_WM}, 13"); A(f"s_lshl_b32 s{S_T1}, s{S_WN}, 12"); A(f"s_add_u32 s{S_T0}, s{S_T0}, s{S_T1}"); A(f"s_add_u32 s{S_T0}, s{S_T0}, {LDS_KV}")
            A(f"v_lshlrev_b32 v{tt}, 2, v{VLANE}"); A(f"v_add_u32 v{tt}, s{S_T0}, v{tt}")
            A("s_nop 7"); A("s_nop 3")
            for r_ in range(16):
                if r_ < 8: A(f"v_cndmask_b32 v{D2+r_}, v{DZ+r_}, v{D2+r_}, vcc")
                else: A(f"v_cndmask_b32 v{D2+r_}, v{D2+r_}, v{DZ+r_}, vcc")
            for r_ in range(16): A(f"ds_write_b32 v{tt}, v{D2+r_} offset:{r_*256}")
            A("s_waitcnt lgkmcnt(0)"); A("s_barrier")
            A(f"s_lshr_b32 s{S_T0}, s{S_WV}, 1"); A(f"s_lshl_b32 s{S_T0}, s{S_T0}, 12"); A(f"s_add_u32 s{S_T0}, s{S_T0}, {LDS_KV}")
            A(f"s_and_b32 s{S_T2}, s{S_WV}, 1")
            A(f"s_mul_i32 s{S_T3}, s{S_T2}, {8*256}"); A(f"s_add_u32 s{S_T0}, s{S_T0}, s{S_T3}")
            A(f"s_lshl_b32 s{S_T3}, s{S_T2}, 6")
            A(f"s_lshl_b32 s{S_T1}, s{S_IDX}, 2"); A(f"s_add_u32 s{S_T1}, s{S_T1}, s{S_WV}")
            A(f"s_mul_i32 s{S_T1}, s{S_T1}, {KV_HEAD}"); A(f"s_add_u32 s{S_T1}, s{S_T1}, {WS_KV}")
            A(f"v_and_b32 v{tt}, 7, v{VLANE}"); A(f"v_lshlrev_b32 v{tt}, 8, v{tt}"); A(f"v_add_u32 v{tt}, s{S_T0}, v{tt}")
            A(f"v_lshrrev_b32 v{tt+1}, 3, v{VLANE}"); A(f"v_lshlrev_b32 v{tt+1}, 2, v{tt+1}")
            A(f"v_add_u32 v{tt+2}, v{tt}, v{tt+1}"); A(f"v_add_u32 v{tt+2}, s{S_T3}, v{tt+2}")
            B0 = ACC
            for n in range(4):
                off = (32*(n>>1) + 8*(n&1))*4
                A(f"ds_read_b32 v{B0+2*n}, v{tt+2} offset:{off}"); A(f"ds_read_b32 v{B0+2*n+1}, v{tt+2} offset:{off+8192}")
            A(f"s_sub_u32 s{S_T3}, 64, s{S_T3}")
            A(f"v_lshlrev_b32 v{tt+3}, 5, v{tt+1}"); A(f"v_add_u32 v{tt+3}, v{tt+3}, v{tt}"); A(f"v_add_u32 v{tt+3}, s{S_T3}, v{tt+3}")
            A(f"v_cmp_gt_u32 vcc, 16, v{VLANE}"); A(f"s_and_saveexec_b64 s[{S_E0}:{S_E0+1}], vcc")
            A(f"ds_read_b32 v{B0+8}, v{tt+3}"); A(f"ds_read_b32 v{B0+9}, v{tt+3} offset:8192")
            A(f"s_mov_b64 exec, s[{S_E0}:{S_E0+1}]")
            A(f"v_lshlrev_b32 v{tt+2}, 2, v{VLANE}"); A(f"v_add_u32 v{tt+2}, s{S_T1}, v{tt+2}")
            A("s_waitcnt lgkmcnt(0)")
            for n in range(4):
                A(f"v_add_f32 v{B0+2*n}, v{B0+2*n}, v{B0+2*n+1}")
                A.vm(f"global_atomic_add_f32 v{tt+2}, v{B0+2*n}, s[{S_WSP}:{S_WSP+1}] offset:{n*256}")
            A(f"v_add_f32 v{B0+8}, v{B0+8}, v{B0+9}")
            A(f"s_and_saveexec_b64 s[{S_E0}:{S_E0+1}], vcc")
            A.vm(f"global_atomic_add_f32 v{tt+2}, v{B0+8}, s[{S_WSP}:{S_WSP+1}] offset:1024", id="kvat")
            A(f"s_mov_b64 exec, s[{S_E0}:{S_E0+1}]")
            state["vfree"] = True
            A.stamp(5, "tr")
        A.stamp(6); A.stamp(6, "tr")
        while state["R"] < 36:
            bgR(4); bgD_safe(4)
        A("s_waitcnt lgkmcnt(0)")

class G2:
    ACC2 = 0; HB = 64; NH = 32; W2V = 192
    def __init__(self, A): self.A = A; self.w2 = W2(A)
    def poll(self, label, vaddr, nl, expect=None, novm=False):
        A = self.A; T = VT
        A(f"s_mov_b32 s{S_T3}, 0")
        A(f"s_mov_b64 s[{S_E0}:{S_E0+1}], exec"); A(f"s_mov_b64 exec, {(1<<nl)-1}")
        A.label(label)
        if novm: A.l.append(f"  global_load_dword v{T+9}, v{vaddr}, s[{S_WSP}:{S_WSP+1}] sc1")
        else: A.vm(f"global_load_dword v{T+9}, v{vaddr}, s[{S_WSP}:{S_WSP+1}] sc1")
        A("s_waitcnt vmcnt(0)")
        if expect is None: A(f"v_cmp_ne_u32 vcc, 0, v{T+9}")
        else: A(f"v_cmp_le_u32 vcc, {expect}, v{T+9}")
        A(f"s_add_u32 s{S_T3}, s{S_T3}, 1")
        A(f"s_cmp_ge_u32 s{S_T3}, {POLL_MAX}"); A(f"s_cbranch_scc1 {label}_x")
        A(f"s_cmp_eq_u64 vcc, exec"); A(f"s_cbranch_scc1 {label}_x")
        A("s_sleep 1"); A(f"s_branch {label}")
        A.label(label + "_x")
        A(f"s_mov_b64 exec, s[{S_E0}:{S_E0+1}]")
    def check(self, label, vreg, nl, expect=None):
        pass
    def body(self):
        A = self.A; T = VT; VL = VLANE
        ACC2 = 0; HB = 64; NH = 16; KVR0 = 128
        A.reset_vm()
        VFL, VKV, VCN = T+10, T+11, T+12
        VF1, VF2 = T+8, T+9
        srd(A, S_O, P_O, P_O+1, 2048*1024)
        srd(A, S_XX, P_X, P_X+1, 2048*1024)
        A(f"s_lshl_b32 s{S_HO}, s{S_TAU}, 2"); A(f"s_add_u32 s{S_HO}, s{S_HO}, s{S_WV}")
        A(f"s_lshl_b32 s{S_T0}, s{S_HO}, 6"); A(f"s_add_u32 s{S_T0}, s{S_T0}, {WS_FLAG}")
        A(f"v_lshlrev_b32 v{VFL}, 2, v{VL}"); A(f"v_add_u32 v{VFL}, s{S_T0}, v{VFL}")
        A(f"s_mul_i32 s{S_HO}, s{S_HO}, {36*2048}")
        A(f"s_add_u32 s{S_T4}, s{S_HO}, {56*1024}")
        A(f"v_and_b32 v{T}, 31, v{VL}"); A(f"v_lshrrev_b32 v{T+1}, 5, v{VL}")
        A(f"v_lshlrev_b32 v{T+2}, 4, v{T+1}"); A(f"v_add_u32 v{T+2}, v{T+2}, v{T}"); A(f"v_subrev_u32 v{T+2}, 16, v{T+2}"); A(f"v_lshlrev_b32 v{T+2}, 5, v{T+2}")
        A(f"v_lshlrev_b32 v{T+3}, 5, v{T+1}"); A(f"v_add_u32 v{T+3}, 1024, v{T+3}")
        A(f"v_cmp_gt_u32 vcc, 16, v{T}"); A("s_nop 1"); A(f"v_cndmask_b32 v{T+2}, v{T+2}, v{T+3}, vcc")
        A(f"s_lshl_b32 s{S_T0}, s{S_WV}, 3"); A(f"s_mul_i32 s{S_T0}, s{S_T0}, {KV_HEAD}"); A(f"s_add_u32 s{S_T0}, s{S_T0}, {WS_KV}")
        A(f"v_add_u32 v{VKV}, s{S_T0}, v{T+2}")
        A(f"s_lshl_b32 s{S_T0}, s{S_WV}, 9"); A(f"s_add_u32 s{S_T0}, s{S_T0}, {WS_KVCNT}")
        A(f"v_lshlrev_b32 v{VCN}, 6, v{VL}"); A(f"v_add_u32 v{VCN}, s{S_T0}, v{VCN}")
        A("s_barrier")
        A("s_waitcnt vmcnt(0)")
        A(f"s_cmp_ge_u32 s{S_CP}, 2"); A("s_cbranch_scc1 K12_sigB")
        A(f"s_lshl_b32 s{S_T0}, s{S_T}, 1"); A(f"s_add_u32 s{S_T0}, s{S_T0}, s{S_WM}"); A(f"s_lshl_b32 s{S_T0}, s{S_T0}, 2")
        A(f"s_lshr_b32 s{S_T1}, s{S_IDX}, 1"); A(f"s_add_u32 s{S_T0}, s{S_T0}, s{S_T1}"); A(f"s_lshl_b32 s{S_T0}, s{S_T0}, 4")
        A(f"s_lshl_b32 s{S_T1}, s{S_I1}, 1"); A(f"s_add_u32 s{S_T0}, s{S_T0}, s{S_T1}"); A(f"s_add_u32 s{S_T0}, s{S_T0}, s{S_WN}")
        A(f"s_add_u32 s{S_T0}, s{S_T0}, 8"); A(f"s_lshl_b32 s{S_T0}, s{S_T0}, 2"); A(f"s_add_u32 s{S_T0}, s{S_T0}, {WS_FLAG}")
        A(f"v_mov_b32 v{T+4}, s{S_T0}"); A(f"v_mov_b32 v{T+5}, 1")
        A(f"s_mov_b64 s[{S_E0}:{S_E0+1}], exec"); A("s_mov_b64 exec, 1")
        A(f"!global_store_dword v{T+4}, v{T+5}, s[{S_WSP}:{S_WSP+1}] sc1")
        A(f"s_mov_b64 exec, s[{S_E0}:{S_E0+1}]"); A("s_branch K12_sigX")
        A("K12_sigB:")
        A(f"s_lshl_b32 s{S_T0}, s{S_IDX}, 2"); A(f"s_add_u32 s{S_T0}, s{S_T0}, s{S_WV}"); A(f"s_lshl_b32 s{S_T0}, s{S_T0}, 6"); A(f"s_add_u32 s{S_T0}, s{S_T0}, {WS_KVCNT}")
        A(f"v_mov_b32 v{T+4}, s{S_T0}"); A(f"v_mov_b32 v{T+5}, 1")
        A(f"s_mov_b64 s[{S_E0}:{S_E0+1}], exec"); A("s_mov_b64 exec, 1")
        A(f"!global_atomic_add v{T+4}, v{T+5}, s[{S_WSP}:{S_WSP+1}] sc1")
        A(f"s_mov_b64 exec, s[{S_E0}:{S_E0+1}]")
        A("K12_sigX:")
        A.stamp(7); A.stamp(7, "tr")
        self.poll("K12_pollH", VFL, 8)
        A.stamp(8, "tr")
        A.stamp(8); A.stamp(1, "g2")
        hstate = {"off": 0}
        def h_items(f):
            o = []
            base = (f // 4) * 4096
            if base != hstate["off"]:
                o.append(f"s_add_u32 s{S_HO}, s{S_HO}, {base - hstate['off']}"); hstate["off"] = base
            hb = HB + 4*(f % NH)
            o.append(("vm", f"h{f}", f"buffer_load_dwordx4 v[{hb}:{hb+3}], v{VL16}, s[{S_H}:{S_H+3}], s{S_HO} offen offset:{(f%4)*1024} sc1"))
            return o
        def pq_items(g):
            o = []
            if g % 4 == 0 and g > 0: o.append(f"s_add_u32 s{S_T4}, s{S_T4}, 4096")
            o.append(("vm", f"pq{g}", f"buffer_load_dwordx4 a[{4*g}:{4*g+3}], v{VL16}, s[{S_H}:{S_H+3}], s{S_T4} offen offset:{(g%4)*1024} sc1"))
            return o
        def kv_items(h):
            b = KVR0 + 8*h
            return [("vm", None, f"global_load_dwordx4 v[{b}:{b+3}], v{VKV}, s[{S_WSP}:{S_WSP+1}] sc1"),
                    ("vm", f"kv{h}", f"global_load_dwordx4 v[{b+4}:{b+7}], v{VKV}, s[{S_WSP}:{S_WSP+1}] offset:16 sc1"),
                    f"v_add_u32 v{VKV}, {KV_HEAD}, v{VKV}"]
        AHEAD = G2_AHEAD
        KVB = [KVR0 + 8*h for h in range(8)]
        DO = [224 - 32, 224 - 16]
        DO = [T - 16 - 16 + 0, 0]
        DO = [208, 224]
        DO = [HB + 32, HB + 48]
        OF = [T, T+4]
        loads = [("h", f) for f in range(56)]
        for h in range(8): loads += [("kv", h), ("pq", 2*h), ("pq", 2*h+1)]
        CHK = G2_CHK
        li = {"n": 0}
        def issue(n):
            o = []
            for _ in range(n):
                if li["n"] >= len(loads): break
                k, x = loads[li["n"]]; li["n"] += 1
                o.append(h_items(x) if k == "h" else (kv_items(x) if k == "kv" else pq_items(x)))
            return o
        A(f"s_mul_i32 s{S_T0}, s{S_J}, {7*1024}"); A(f"s_add_u32 s{S_T0}, s{S_T0}, s{S_HO}")
        for x in issue(4):
            for y in x: A(y)
        if G2_PF:
            for k in range(7):
                if k == 4: A(f"s_add_u32 s{S_T0}, s{S_T0}, 4096")
                A.vm(f"buffer_load_dwordx4 v[{T}:{T+3}], v{VL16}, s[{S_H}:{S_H+3}], s{S_T0} offen offset:{(k%4)*1024} sc1")
        for x in issue(AHEAD - 4):
            for y in x: A(y)
        A.stamp(2, "g2")
        for i in range(28):
            A.wait(f"h{2*i+1}")
            if i == 1: A.stamp(3, "g2")
            gaps = [[] for _ in range(4)]
            if i == CHK - 5:
                gaps[0] += [f"v_add_u32 v{VFL}, 32, v{VFL}", f"s_mov_b64 s[{S_E0}:{S_E0+1}], exec", "s_mov_b64 exec, 15",
                            ("vm", "fq", f"global_load_dword v{VF1}, v{VFL}, s[{S_WSP}:{S_WSP+1}] sc1"), "s_mov_b64 exec, 255",
                            ("vm", "fkv", f"global_load_dword v{VF2}, v{VCN}, s[{S_WSP}:{S_WSP+1}] sc1"), f"s_mov_b64 exec, s[{S_E0}:{S_E0+1}]"]
            n = 2
            if li["n"] + n > 56 and i < CHK: n = max(0, 56 - li["n"])
            for k, x in enumerate(issue(n)): gaps[1+k] += x
            mf = []
            for tb in range(2):
                hb = HB + 4*((2*i+tb) % NH)
                for nb in range(2):
                    a = ACC2 + 16*(2*nb+tb)
                    c = "0" if i == 0 else f"v[{a}:{a+15}]"
                    mf.append(f"v_mfma_f32_32x32x16_bf16 v[{a}:{a+15}], {self.w2.frag(i,nb)}, v[{hb}:{hb+3}], {c}")
            for g in range(4):
                A(mf[g])
                for x in gaps[g]: A(x)
            if i == CHK - 1:
                A.stamp(4, "g2")
                A.wait("fkv")
                A(f"s_mov_b64 s[{S_E0}:{S_E0+1}], exec"); A("s_mov_b64 exec, 15")
                A(f"v_cmp_ne_u32 vcc, 0, v{VF1}"); A("s_nop 3"); A("s_cmp_eq_u64 vcc, exec"); A(f"s_mov_b64 exec, s[{S_E0}:{S_E0+1}]")
                A("s_cbranch_scc1 K12_qok")
                self.poll("K12_pollQ", VFL, 4, novm=True)
                A.label("K12_qok")
                A(f"s_mov_b64 s[{S_E0}:{S_E0+1}], exec"); A("s_mov_b64 exec, 255")
                A(f"v_cmp_le_u32 vcc, 16, v{VF2}"); A("s_nop 3"); A("s_cmp_eq_u64 vcc, exec"); A(f"s_mov_b64 exec, s[{S_E0}:{S_E0+1}]")
                A("s_cbranch_scc1 K12_kvok")
                self.poll("K12_pollKV", VCN, 8, expect=16, novm=True)
                A.label("K12_kvok")
                A.stamp(5, "g2")
        A.stamp(6, "g2")
        A(f"v_lshrrev_b32 v{T+8}, 3, v{VTID}"); A(f"v_and_b32 v{T+9}, 7, v{VTID}")
        A(f"s_lshl_b32 s{S_T0}, s{S_TAU}, 16"); A(f"s_lshl_b32 s{S_T2}, s{S_J}, 7"); A(f"s_add_u32 s{S_T0}, s{S_T0}, s{S_T2}")
        VG = VFL
        A(f"v_lshlrev_b32 v{VG}, 10, v{T+8}"); A(f"v_lshlrev_b32 v{VCN}, 4, v{T+9}"); A(f"v_add_u32 v{VG}, v{VG}, v{VCN}")
        A(f"s_add_u32 s{S_T2}, s{S_T0}, {32*1024}")
        XR = HB
        A(f"s_mov_b32 s{S_T1}, 0x358637bd")
        units = [(h, tb) for h in range(8) for tb in range(2)]
        def stA(u):
            h, tb = units[u]; d = DO[u & 1]
            o = []
            if tb == 0:
                o.append(("wait", [f"kv{h}", f"pq{2*h}"]))
                o += [f"v_cvt_pk_bf16_f32 v{KVB[h]+e}, v{KVR0+8*h+2*e}, v{KVR0+8*h+2*e+1}" for e in range(4)]
                o.append("s_nop 1")
            else: o.append(("wait", [f"pq{2*h+1}"]))
            o.append(f"v_mfma_f32_32x32x16_bf16 v[{d}:{d+15}], v[{KVB[h]}:{KVB[h]+3}], {ar(4*(2*h+tb), 4)}, 0")
            return o
        def stB(u):
            d = DO[u & 1]; o = OF[u & 1]; rc = T + 8
            l = [f"v_add_f32 v{rc}, s{S_T1}, v{d}", f"v_rcp_f32 v{rc}, v{rc}", "s_nop 0"]
            l += [f"v_mul_f32 v{d+8+e}, v{rc}, v{d+8+e}" for e in range(8)]
            l += [f"v_cvt_pk_bf16_f32 v{o+e}, v{d+8+2*e}, v{d+8+2*e+1}" for e in range(4)]
            return l
        def stC(u):
            h, tb = units[u]; o = OF[u & 1]; i = 28 + h
            return [f"v_mfma_f32_32x32x16_bf16 v[{ACC2+16*(2*nb+tb)}:{ACC2+16*(2*nb+tb)+15}], {self.w2.frag(i,nb)}, v[{o}:{o+3}], v[{ACC2+16*(2*nb+tb)}:{ACC2+16*(2*nb+tb)+15}]" for nb in range(2)]
        for x in stA(0): A(x)
        for x in issue(1):
            for y in x: A(y)
        for x in stA(1): A(x)
        for x in issue(2):
            for y in x: A(y)
        A("s_nop 7"); A("s_nop 3")
        for x in stB(0): A(x)
        xdone = False
        for u in range(16):
            c = stC(u)
            nb_ = stB(u+1) if u + 1 < 16 else []
            A("s_nop 1"); A(c[0])
            for x in nb_[:5]: A(x)
            if u + 2 < 16:
                for x in stA(u+2): A(x)
            iss = issue(2)
            for x in iss:
                for y in x: A(y)
            if not iss and not xdone:
                A.vm(f"buffer_load_dwordx4 v[{XR}:{XR+3}], v{VG}, s[{S_XX}:{S_XX+3}], s{S_T0} offen", id="x0")
                A.vm(f"buffer_load_dwordx4 v[{XR+4}:{XR+7}], v{VG}, s[{S_XX}:{S_XX+3}], s{S_T2} offen", id="x1")
                xdone = True
            for x in nb_[5:10]: A(x)
            A(c[1])
            for x in nb_[10:]: A(x)
        assert xdone and li["n"] == len(loads)
        A.stamp(7, "g2")
        RS = 272; WSZ = 64*RS
        A(f"v_and_b32 v{T}, 31, v{VL}"); A(f"v_mul_u32_u24 v{T}, {RS}, v{T}"); A(f"v_lshrrev_b32 v{T+1}, 5, v{VL}"); A(f"v_lshlrev_b32 v{T+1}, 4, v{T+1}"); A(f"v_add_u32 v{T}, v{T}, v{T+1}")
        A(f"s_mul_i32 s{S_T3}, s{S_WV}, {WSZ}"); A(f"v_add_u32 v{T}, s{S_T3}, v{T}")
        A(f"v_lshrrev_b32 v{T+2}, 3, v{VTID}"); A(f"v_and_b32 v{T+3}, 7, v{VTID}")
        A(f"v_mul_u32_u24 v{T+6}, {RS}, v{T+2}"); A(f"v_lshlrev_b32 v{T+7}, 5, v{T+3}"); A(f"v_add_u32 v{T+6}, v{T+6}, v{T+7}")
        A("s_nop 1")
        for tb in range(2):
            if tb == 1: A("s_nop 7")
            for nb in range(2):
                a = ACC2 + 16*(2*nb+tb)
                for q in range(4):
                    A(f"ds_write_b128 v{T}, v[{a+4*q}:{a+4*q+3}] offset:{tb*32*RS + nb*128 + q*32}")
        A("s_waitcnt lgkmcnt(0)"); A("s_barrier")
        A.stamp(8, "g2")
        for ps in range(2):
            b = 72 + 40*ps
            for w in range(4):
                A(f"ds_read_b128 v[{b+8*w}:{b+8*w+3}], v{T+6} offset:{w*WSZ + ps*32*RS}")
                A(f"ds_read_b128 v[{b+8*w+4}:{b+8*w+7}], v{T+6} offset:{w*WSZ + ps*32*RS + 16}")
        for ps in range(2):
            b = 72 + 40*ps
            A(f"s_waitcnt lgkmcnt({8 if ps == 0 else 0})")
            for e in range(0, 8, 2):
                A(f"v_pk_add_f32 v[{b+e}:{b+e+1}], v[{b+e}:{b+e+1}], v[{b+8+e}:{b+8+e+1}]")
                A(f"v_pk_add_f32 v[{b+16+e}:{b+16+e+1}], v[{b+16+e}:{b+16+e+1}], v[{b+24+e}:{b+24+e+1}]")
            for e in range(0, 8, 2):
                A(f"v_pk_add_f32 v[{b+e}:{b+e+1}], v[{b+e}:{b+e+1}], v[{b+16+e}:{b+16+e+1}]")
            A.wait(f"x{ps}")
            xb = XR + 4*ps
            for e in range(4):
                A(f"v_lshlrev_b32 v{T+8}, 16, v{xb+e}"); A(f"v_and_b32 v{T+9}, 0xffff0000, v{xb+e}")
                A(f"v_pk_add_f32 v[{b+2*e}:{b+2*e+1}], v[{b+2*e}:{b+2*e+1}], v[{T+8}:{T+9}]")
                A(f"v_cvt_pk_bf16_f32 v{b+32+e}, v{b+2*e}, v{b+2*e+1}")
            A.vm(f"buffer_store_dwordx4 v[{b+32}:{b+35}], v{VG}, s[{S_O}:{S_O+3}], s{S_T0 if ps == 0 else S_T2} offen")

def gen_k12():
    A = Prog()
    prologue_common(A)
    A(f"s_cmp_ge_u32 s{S_CP}, 2"); A("s_cbranch_scc1 K12_typeB")
    base_nvm = A.nvm; base_ids = dict(A.ids)
    for typ in ("A", "B"):
        if typ == "B":
            A.label("K12_typeB"); A.nvm = base_nvm; A.ids = dict(base_ids)
        g = G1(A, typ)
        g.prologue()
        g.loop()
        A.stamp(4)
        g.transition()
        if typ == "A": A("s_branch K12_g2")
    A.label("K12_g2")
    G2(A).body()
    if STAMP:
        A("s_waitcnt vmcnt(0) lgkmcnt(0)")
        A(f"{STAMP_INS} s[60:61]")
        A("s_waitcnt lgkmcnt(0)")
        A(f"s_lshl_b32 s{S_T0}, s2, 2"); A(f"s_add_u32 s{S_T0}, s{S_T0}, s{S_WV}"); A(f"s_lshl_b32 s{S_T0}, s{S_T0}, 6")
        A(f"s_add_u32 s{S_T0}, s{S_T0}, {WS_STAMP + 65536}")
        A(f"v_mov_b32 v{VT}, s{S_T0}")
        for i in range(9):
            A(f"v_mov_b32 v{VT+1}, s{SB+2*i}")
            A.vm(f"global_store_dword v{VT}, v{VT+1}, s[{S_WSP}:{S_WSP+1}] offset:{4*i}")
        A(f"v_mov_b32 v{VT+1}, s60")
        A.vm(f"global_store_dword v{VT}, v{VT+1}, s[{S_WSP}:{S_WSP+1}] offset:36")
    if STAMP and DBGSTAMP:
        A(f"s_cmp_eq_u32 s{S_WV}, 0"); A("s_cbranch_scc0 K12_end")
        A("s_mov_b64 exec, 1")
        for i in range(9):
            A(f"v_mov_b32 v{VT}, {4*(1+i)}"); A(f"v_mov_b32 v{VT+1}, s{SB+2*i}")
            A.vm(f"global_atomic_umax v{VT}, v{VT+1}, s[{S_DBG}:{S_DBG+1}]")
        A(f"v_mov_b32 v{VT}, 40"); A(f"v_mov_b32 v{VT+1}, s60"); A.vm(f"global_atomic_umax v{VT}, v{VT+1}, s[{S_DBG}:{S_DBG+1}]")
        A(f"s_not_b32 s{S_T0}, s{SB}"); A(f"v_mov_b32 v{VT}, 44"); A(f"v_mov_b32 v{VT+1}, s{S_T0}"); A.vm(f"global_atomic_umax v{VT}, v{VT+1}, s[{S_DBG}:{S_DBG+1}]")
    A.label("K12_end")
    return A.text()

def main(path):
    hdr = open("cdna_kernels/" + NAME + ".s.ref").read().split("; Override")[0]
    n = NAME + "_kernel"
    body = gen_k12()
    out = hdr + "; @launch grid=(256,1,1) block=(256,1,1) lds=163840\n"
    out += '.amdgcn_target "amdgcn-amd-amdhsa--gfx950"\n.text\n'
    out += f""".globl {n}
.p2align 8
.type {n},@function
{n}:
{body}
  s_endpgm
.section .rodata,"a"
.p2align 6
.amdhsa_kernel {n}
  .amdhsa_next_free_vgpr 512
  .amdhsa_next_free_sgpr 102
  .amdhsa_accum_offset 256
  .amdhsa_group_segment_fixed_size 0
  .amdhsa_kernarg_size 80
  .amdhsa_user_sgpr_count 2
  .amdhsa_user_sgpr_kernarg_segment_ptr 1
  .amdhsa_system_sgpr_workgroup_id_x 1
.end_amdhsa_kernel
"""
    open(path, "w").write(out)

if __name__ == "__main__":
    if "--stamp" in sys.argv:
        STAMP = True; sys.argv.remove("--stamp")
    for a in list(sys.argv):
        if a.startswith("--nin="): N_IN = int(a[6:]); sys.argv.remove(a)
        if a.startswith("--smode="): SMODE = a[8:]; sys.argv.remove(a)
        if a.startswith("--ahead="): G2_AHEAD = int(a[8:]); sys.argv.remove(a)
        if a.startswith("--chk="): G2_CHK = int(a[6:]); sys.argv.remove(a)
        if a.startswith("--pf="): G2_PF = int(a[5:]); sys.argv.remove(a)
        if a.startswith("--cpf2="): CODE_PF2 = int(a[7:]); sys.argv.remove(a)
        if a.startswith("--wsh="): WS_H = int(a[6:])*1048576; sys.argv.remove(a)
        if a == "--dbgstamp": DBGSTAMP = 1; sys.argv.remove(a)
        if a.startswith("--rot="): ROT = int(a[6:]); sys.argv.remove(a)
        if a.startswith("--cap="): CAP = int(a[6:]); sys.argv.remove(a)
    if "--cyc" in sys.argv:
        STAMP = True; STAMP_INS = "s_memtime"; sys.argv.remove("--cyc")
    main(sys.argv[1] if len(sys.argv) > 1 else "cdna_kernels/" + NAME + ".s")
```

```python
import sys

NAME = "parallel_sum__linear_attn_block__glu_gated_bilinear__prompt"
WS_M, WS_R, WS_KV, KV_HEAD = 0, 8192, 32768, 1152
WS_FLAG = WS_KV + 36864
WS_KVCNT = WS_FLAG + 8192
WS_CS = WS_KVCNT + 2048
WS_STCNT = WS_CS + 20480
WS_CSCNT = WS_STCNT + 2048
NZERO = 18
assert WS_CSCNT + 2048 <= WS_KV + NZERO*4096 <= 131072
DBG_INIT = 0
CS_TMP = 140
A_ONES = 220
VC1, VC2, VC3 = 251, 252, 253
WS_H = 131072
H_BYTES = 32*4*36*2048
POLL_MAX = 200000
STAMP = False
STAMP_INS = 's_memrealtime'
WS_STAMP = 1 << 24
SB = 84
CORR_AT = 28
N_IN = 31
CAP = 5
SMODE = 'main'
ROT = 8
DBGSTAMP = 0
CODE_PF2 = 0
G2_AHEAD = 12; G2_CHK = 20; G2_PF = 1
K_INITLD = 1; K_CSAT = 5; K_CNTLD = 17; H_CNT = 11; K_RANK = 25
CODE_KB = 48

class Prog:
    def __init__(self): self.l = []; self.nvm = 0; self.ids = {}
    def __call__(self, s):
        if s is None: return
        if isinstance(s, tuple):
            if s[0] == "vm":
                self.l.append("  " + s[2]); self.nvm += 1
                if s[1] is not None: self.ids[s[1]] = self.nvm
            elif s[0] == "vmu":
                self.l.append("  " + s[2]); self.ids[s[1]] = self.nvm
            elif s[0] == "wait":
                last = max(self.ids[i] for i in s[1])
                n = self.nvm - last
                assert n <= 63, (s, n)
                self.l.append(f"  s_waitcnt vmcnt({n})" + (" " + s[2] if len(s) > 2 and s[2] else ""))
            else: raise ValueError(s)
        elif s.endswith(":"): self.l.append(s)
        elif s.startswith("!"):
            self.l.append("  " + s[1:])
        else:
            assert not ("buffer_" in s or "global_" in s), s
            self.l.append("  " + s)
    def vm(self, text, id=None): self(("vm", id, text))
    def wait(self, *ids): self(("wait", list(ids)))
    def label(self, s): self.l.append(s + ":")
    def text(self): return "\n".join(self.l)
    def stamp(self, i, mode="main"):
        if STAMP and (mode == SMODE or i == 0): self.l.append(f"  {STAMP_INS} s[{SB+2*i}:{SB+2*i+1}]")
    def reset_vm(self):
        self.ids = {}

def vr(b, n=1): return f"v{b}" if n == 1 else f"v[{b}:{b+n-1}]"
def ar(b, n=1): return f"a{b}" if n == 1 else f"a[{b}:{b+n-1}]"
def srd(A, d, lo, hi, size):
    A(f"s_mov_b32 s{d}, s{lo}"); A(f"s_and_b32 s{d+1}, s{hi}, 0xffff"); A(f"s_mov_b32 s{d+2}, {size}"); A(f"s_mov_b32 s{d+3}, 0x20000")
def srd_off(A, d, lo, hi, off, size):
    A(f"s_add_u32 s{d}, s{lo}, {off}"); A(f"s_addc_u32 s{d+1}, s{hi}, 0"); A(f"s_and_b32 s{d+1}, s{d+1}, 0xffff")
    if isinstance(off, int): A(f"s_mov_b32 s{d+2}, {size - off}")
    else: A(f"s_sub_u32 s{d+2}, {size}, {off}")
    A(f"s_mov_b32 s{d+3}, 0x20000")

X_BASE = 0; X_SLOT = 16384
W_BASE = 49152; W_SLOT = 20480; W_NS = 3
W2IN = W_BASE + W_NS*W_SLOT
NSL = 6
LDS_R = W2IN + 4*NSL*2048
LDS_KV = 0
DLAG = 5

ACC = 0; WF = 160; XF = 200; TRA = 216; XA = 221; VOW = 225; VOX = 230
VR = 234; VLANE = 236; VL16 = 237; VTID = 238; VDM = 239
VT = 240
VTR = 254; VTR1 = 255
AMF = 228; ACF = 236
def acc(blk, tb): return ACC + (blk*2+tb)*16

S_X = 4; S_W = 8; S_H = 28; S_WSP = 32
S_WV = 34; S_WM = 35; S_WN = 36; S_T = 37; S_IDX = 38
S_KW = 39; S_KH = 40; S_R30 = 41; S_R35 = 42; S_RH = 43; S_KX = 44; S_W1K = 45; S_W4K = 46; S_XB = 47
S_WD = 48; S_LB = 52; S_W2O = 53
S_T0 = 54; S_T1 = 55; S_T2 = 56; S_T3 = 57; S_T4 = 58; S_XO = 59
S_E0 = 60; S_E2 = 62
S_P = 64
P_X, P_WQ, P_WO, P_G, P_U, P_D, P_O = 64, 66, 68, 72, 74, 76, 78
S_DBG = 72; S_KSC = 66; S_CG = 67
S_HB = 80; S_I1 = 81; S_CP = 82; S_TAU = 83; S_J = 70; S_HO = 71
S_WO = 8; S_O = 12; S_XX = 16
S_C6 = 20

def w2row(i):
    if i < 16: return ("D", 256, 16*i)
    if i < 24: return ("D", 128, 1024 + 16*(i-16))
    if i < 28: return ("D", 64, 1536 + 16*(i-24))
    return ("O", 128, 16*(i-28))

class W2:
    def __init__(self, A): self.A = A
    def frag(self, ks, nb, W2V=192):
        f = ks*2 + nb
        return ar(4*f, 4) if f < 64 else vr(W2V + 4*(f-64), 4)
    def half(self, ks, nb, h, W2V=192):
        f = ks*2 + nb
        return ar(4*f + 2*h, 2) if f < 64 else vr(W2V + 4*(f-64) + 2*h, 2)
    def slot_off(self, i):
        return (i % NSL)*2048
    def D(self, i):
        kind, mul, const = w2row(i)
        s = S_WD if kind == "D" else S_WO
        sh = {256: 18, 128: 17, 64: 16}[mul]
        o = []
        for hf in range(2):
            o.append([f"s_lshl_b32 s{S_W2O}, s{S_WV}, {sh}", f"s_add_u32 s{S_W2O}, s{S_W2O}, {(const + 8*hf)*1024}"] if hf == 0 else [f"s_add_u32 s{S_W2O}, s{S_W2O}, 8192"])
            o.append(("dma", f"s_add_u32 m0, s{S_LB}, {self.slot_off(i) + hf*1024}", ("vm", f"w2_{i}_{hf}", f"buffer_load_dwordx4 v{VDM}, s[{s}:{s+3}], s{S_W2O} offen lds")))
        return o
    def R(self, i):
        o = self.slot_off(i)
        r = [[("wait", [f"w2_{i}_1"])]]
        for nb in range(2):
            va = VTR if nb == 0 else VTR1
            r.append([f"ds_read_b64_tr_b16 {self.half(i, nb, 0)}, v{va} offset:{o}", f"ds_read_b64_tr_b16 {self.half(i, nb, 1)}, v{va} offset:{o+1024}"])
        return r

def emit_items(A, items):
    for it in items:
        if isinstance(it, tuple) and it[0] == "dma":
            A(it[1]); A("s_nop 0"); A(it[2])
        else:
            for s in it: A(s)

def prologue_common(A):
    A("s_cmp_ge_u32 s2, 256"); A("s_cbranch_scc1 K12_end")
    A.stamp(0)
    A(f"s_load_dwordx16 s[{S_P}:{S_P+15}], s[0:1], 0")
    A(f"s_load_dwordx2 s[{S_WSP}:{S_WSP+1}], s[0:1], 72")
    A(f"s_getpc_b64 s[{S_E2}:{S_E2+1}]")
    A("K12_pc:")
    A(f"v_and_b32 v{VLANE}, 63, v0")
    A(f"v_lshrrev_b32 v{VT}, 6, v0")
    A(f"v_mov_b32 v{VTID}, v0")
    A(f"v_lshlrev_b32 v{VL16}, 4, v{VLANE}")
    A(f"v_readfirstlane_b32 s{S_WV}, v{VT}")
    A(f"s_and_b32 s{S_T0}, s2, 7"); A(f"s_lshr_b32 s{S_T1}, s2, 3")
    A(f"s_lshl_b32 s{S_T2}, s{S_T1}, 2"); A(f"s_add_u32 s{S_T2}, s{S_T2}, s{S_WV}"); A(f"s_min_u32 s{S_T2}, s{S_T2}, ((K12_end-K12_pc)>>10)-1"); A(f"s_lshl_b32 s{S_T2}, s{S_T2}, 10")
    A(f"v_add_u32 v{VT+4}, s{S_T2}, v{VL16}")
    A.vm(f"global_load_dwordx4 v[{WF+36}:{WF+39}], v{VT+4}, s[{S_E2}:{S_E2+1}]")
    A(f"s_and_b32 s{S_T2}, s{S_T1}, 7"); A(f"s_lshr_b32 s{S_CP}, s{S_T1}, 3")
    A(f"s_lshr_b32 s{S_T}, s{S_T0}, 2"); A(f"s_lshl_b32 s{S_T}, s{S_T}, 3"); A(f"s_add_u32 s{S_T}, s{S_T}, s{S_T2}")
    A(f"s_and_b32 s{S_IDX}, s{S_T0}, 3"); A(f"s_lshl_b32 s{S_IDX}, s{S_IDX}, 1")
    A(f"s_and_b32 s{S_T3}, s{S_CP}, 1"); A(f"s_add_u32 s{S_IDX}, s{S_IDX}, s{S_T3}")
    A(f"s_and_b32 s{S_TAU}, s{S_T1}, 3"); A(f"s_lshl_b32 s{S_T3}, s{S_T0}, 2"); A(f"s_add_u32 s{S_TAU}, s{S_TAU}, s{S_T3}")
    A(f"s_lshr_b32 s{S_T4}, s{S_T1}, 2")
    A(f"s_add_u32 s{S_T0}, s{S_CP}, s{S_T2}"); A(f"s_and_b32 s{S_T0}, s{S_T0}, 3"); A(f"s_lshl_b32 s{S_T0}, s{S_T0}, 1")
    A(f"s_lshr_b32 s{S_T1}, s{S_T2}, 2"); A(f"s_add_u32 s{S_T0}, s{S_T0}, s{S_T1}")
    A(f"s_lshl_b32 s{S_KW}, s{S_T0}, 6")
    A(f"s_lshr_b32 s{S_WM}, s{S_WV}, 1"); A(f"s_and_b32 s{S_WN}, s{S_WV}, 1")
    t0, t1, t3, t4 = VT, VT+1, VT+3, VT+4
    A(f"v_lshrrev_b32 v{t0}, 3, v{VLANE}"); A(f"v_and_b32 v{t1}, 7, v{VLANE}")
    A(f"v_lshrrev_b32 v{t3}, 4, v{VLANE}"); A(f"v_xor_b32 v{t3}, v{t1}, v{t3}"); A(f"v_lshlrev_b32 v{t3}, 4, v{t3}")
    A(f"v_lshlrev_b32 v{t4}, 10, v{t0}"); A(f"v_add_u32 v{VOX}, v{t3}, v{t4}")
    A(f"v_xor_b32 v{VOX+1}, 64, v{VOX}"); A(f"v_add_u32 v{VOX+1}, {8*1024}, v{VOX+1}")
    A(f"v_add_u32 v{VOX+2}, {16*1024}, v{VOX}"); A(f"v_add_u32 v{VOX+3}, {16*1024}, v{VOX+1}")
    A(f"s_lshl_b32 s{S_XB}, s{S_T}, 7"); A(f"s_lshl_b32 s{S_T0}, s{S_WV}, 5"); A(f"s_add_u32 s{S_XB}, s{S_XB}, s{S_T0}"); A(f"s_lshl_b32 s{S_XB}, s{S_XB}, 10")
    A(f"s_lshl_b32 s{S_KX}, s{S_KW}, 1")
    A(f"s_and_b32 s{S_T0}, s{S_WV}, 1"); A(f"s_lshl_b32 s{S_T0}, s{S_T0}, 4"); A(f"s_add_u32 s{S_KH}, s{S_KW}, s{S_T0}")
    A(f"s_lshl_b32 s{S_T0}, s{S_WV}, 3"); A(f"s_add_u32 s{S_KW}, s{S_KW}, s{S_T0}")
    A(f"s_lshl_b32 s{S_W1K}, s{S_WV}, 10"); A(f"s_lshl_b32 s{S_W4K}, s{S_WV}, 12")
    A(f"s_lshr_b32 s{S_T0}, s{S_CP}, 1"); A(f"s_lshl_b32 s{S_T0}, s{S_T0}, 3"); A(f"s_add_u32 s{S_T3}, s{S_T0}, s{S_IDX}")
    A(f"s_lshl_b32 s{S_T0}, s{S_T}, 7"); A(f"s_lshl_b32 s{S_T1}, s{S_T3}, 3"); A(f"s_add_u32 s{S_T0}, s{S_T0}, s{S_T1}"); A(f"s_lshl_b32 s{S_T1}, s{S_WV}, 1"); A(f"s_add_u32 s{S_T2}, s{S_T0}, s{S_T1}")
    A(f"s_lshl_b32 s{S_T0}, s{S_T2}, 10"); A(f"v_add_u32 v{VT+5}, s{S_T0}, v{VL16}")
    A("s_waitcnt lgkmcnt(0)")
    A(f"s_mov_b32 s{S_J}, s{S_T4}")
    A(f"s_cmp_ge_u32 s2, {NZERO}"); A("s_cbranch_scc1 K12_nozero")
    A(f"s_lshl_b32 s{S_T0}, s2, 12"); A(f"s_add_u32 s{S_T0}, s{S_T0}, {WS_KV}")
    A(f"v_lshlrev_b32 v{VT+6}, 4, v{VTID}"); A(f"v_add_u32 v{VT+6}, s{S_T0}, v{VT+6}")
    for i in range(4): A(f"v_mov_b32 v{VT+8+i}, 0")
    A(f"!global_store_dwordx4 v{VT+6}, v[{VT+8}:{VT+11}], s[{S_WSP}:{S_WSP+1}] sc1")
    A("K12_nozero:")
    SX = WF + 20
    A.vm(f"global_load_dwordx4 v[{SX}:{SX+3}], v{VT+5}, s[{P_X}:{P_X+1}]")
    A.vm(f"global_load_dwordx4 v[{SX+4}:{SX+7}], v{VT+5}, s[{P_X}:{P_X+1}] offset:1024", id="strow")
    A(f"s_lshl_b32 s{S_HB}, s{S_T2}, 2")
    A(f"s_mov_b32 s{S_I1}, s{S_T3}")
    srd(A, S_X, P_X, P_X+1, 2048*1024)

class G1:
    def __init__(self, A, typ):
        self.A = A; self.typ = typ; self.w2 = W2(A)
        self.kinds = ["gu","gu","gu","gu","q"] if typ == "A" else ["k","v","gu","gu","guh"]
        if typ == "A": self.strides = [3584,3584,3584,3584,3072]; self.swz = ["g","u","g","u","q"]
        else: self.strides = [3072,3072,3584,3584,3584]; self.swz = ["q","q","g","u","h"]
    def Wg(self, h):
        o = []
        if h > 0:
            o.append([f"s_add_u32 s{S_KW}, s{S_KW}, 32", f"s_and_b32 s{S_KW}, s{S_KW}, 511"])
            if self.typ == "B": o.append([f"s_add_u32 s{S_KH}, s{S_KH}, 32", f"s_and_b32 s{S_KH}, s{S_KH}, 511"])
        o.append([f"s_mul_i32 s{S_R30}, s{S_KW}, 3072", f"s_mul_i32 s{S_R35}, s{S_KW}, 3584"])
        if self.typ == "B": o.append([f"s_mul_i32 s{S_RH}, s{S_KH}, 3584"])
        for rho in range(5):
            so = S_RH if self.swz[rho] == "h" else (S_R30 if self.strides[rho] == 3072 else S_R35)
            o.append(("dma", f"s_add_u32 m0, s{S_W1K}, {W_BASE + (h % W_NS)*W_SLOT + rho*4096}",
                      ("vm", f"W{h}_{rho}", f"buffer_load_dwordx4 v{VOW+rho}, s[{S_W+4*rho}:{S_W+4*rho+3}], s{so} offen lds")))
        return o
    def Xg(self, sg):
        o = []
        if sg > 0: o.append([f"s_add_u32 s{S_KX}, s{S_KX}, 128", f"s_and_b32 s{S_KX}, s{S_KX}, 1023"])
        o.append([f"s_add_u32 s{S_XO}, s{S_XB}, s{S_KX}"])
        for j in range(4):
            o.append(("dma", f"s_add_u32 m0, s{S_W4K}, {X_BASE + (sg % 3)*X_SLOT + j*1024}",
                      ("vm", f"X{sg}_{j}", f"buffer_load_dwordx4 v{VOX+j}, s[{S_X}:{S_X+3}], s{S_XO} offen lds")))
        return o
    def reads(self, s):
        par = s & 1; kk = s & 3; sg = s >> 2; h = s >> 1; second = s & 1
        xo = (sg % 3)*X_SLOT
        o = [f"ds_read_b128 v[{XF+8*par}:{XF+8*par+3}], v{XA+kk} offset:{xo}", f"ds_read_b128 v[{XF+8*par+4}:{XF+8*par+7}], v{XA+kk} offset:{xo+4096}"]
        for blk, kd in enumerate(self.kinds):
            b = WF + 20*par + 4*blk
            if kd == "guh": o1, o2 = (1024 if second else 0), 256
            else: o1, o2 = (2048 if second else 0), 512
            o1 += (h % W_NS)*W_SLOT
            o.append(f"ds_read_b64_tr_b16 v[{b}:{b+1}], v{TRA+blk} offset:{o1}")
            o.append(f"ds_read_b64_tr_b16 v[{b+2}:{b+3}], v{TRA+blk} offset:{o1+o2}")
        return o
    def mfmas(self, s, order=None):
        par = s & 1; o = []
        for blk in (order or range(5)):
            kd = self.kinds[blk]
            wf = f"v[{WF+20*par+4*blk}:{WF+20*par+4*blk+3}]"
            for tb in range(2):
                xf = f"v[{XF+8*par+4*tb}:{XF+8*par+4*tb+3}]"; a = acc(blk, tb)
                c = "0" if s == 0 else f"v[{a}:{a+15}]"
                if kd in ("k", "v"): o.append(f"v_mfma_f32_32x32x16_bf16 v[{a}:{a+15}], {xf}, {wf}, {c}")
                else: o.append(f"v_mfma_f32_32x32x16_bf16 v[{a}:{a+15}], {wf}, {xf}, {c}")
        return o
    def corr(self):
        o = []
        for blk in range(5):
            for tb in range(2):
                a = acc(blk, tb); cf = ar(ACF+4*blk, 4); mf = ar(AMF+4*tb, 4)
                if self.kinds[blk] in ("k", "v"): o.append(f"v_mfma_f32_32x32x16_bf16 v[{a}:{a+15}], {mf}, {cf}, v[{a}:{a+15}]")
                else: o.append(f"v_mfma_f32_32x32x16_bf16 v[{a}:{a+15}], {cf}, {mf}, v[{a}:{a+15}]")
        return o

    def prologue(self):
        A, typ, kinds = self.A, self.typ, self.kinds
        SZQ, SZG = 512*3072, 512*3584
        emit_items(A, self.Xg(0))
        if typ == "A":
            A(f"s_lshl_b32 s{S_T0}, s{S_IDX}, 8")
            srd_off(A, S_W+0, P_G, P_G+1, f"s{S_T0}", SZG); srd_off(A, S_W+4, P_U, P_U+1, f"s{S_T0}", SZG)
            A(f"s_add_u32 s{S_T0}, s{S_T0}, 128")
            srd_off(A, S_W+8, P_G, P_G+1, f"s{S_T0}", SZG); srd_off(A, S_W+12, P_U, P_U+1, f"s{S_T0}", SZG)
            A(f"s_lshl_b32 s{S_T0}, s{S_IDX}, 7")
            srd_off(A, S_W+16, P_WQ, P_WQ+1, f"s{S_T0}", SZQ)
        else:
            A(f"s_lshl_b32 s{S_T0}, s{S_IDX}, 7"); A(f"s_add_u32 s{S_T0}, s{S_T0}, 1024")
            srd_off(A, S_W+0, P_WQ, P_WQ+1, f"s{S_T0}", SZQ)
            A(f"s_add_u32 s{S_T0}, s{S_T0}, 1024")
            srd_off(A, S_W+4, P_WQ, P_WQ+1, f"s{S_T0}", SZQ)
            A(f"s_lshl_b32 s{S_T0}, s{S_IDX}, 7"); A(f"s_add_u32 s{S_T0}, s{S_T0}, {16*128}")
            srd_off(A, S_W+8, P_G, P_G+1, f"s{S_T0}", SZG); srd_off(A, S_W+12, P_U, P_U+1, f"s{S_T0}", SZG)
            A(f"s_lshr_b32 s{S_T0}, s{S_IDX}, 1"); A(f"s_add_u32 s{S_T0}, s{S_T0}, 24"); A(f"s_lshl_b32 s{S_T0}, s{S_T0}, 7")
            A(f"s_and_b32 s{S_T1}, s{S_IDX}, 1"); A(f"s_lshl_b32 s{S_T1}, s{S_T1}, 6"); A(f"s_add_u32 s{S_T0}, s{S_T0}, s{S_T1}")
            A(f"s_cmp_ge_u32 s{S_WV}, 2")
            A(f"s_cselect_b32 s{S_T2}, s{P_U}, s{P_G}"); A(f"s_cselect_b32 s{S_T3}, s{P_U+1}, s{P_G+1}")
            srd_off(A, S_W+16, S_T2, S_T3, f"s{S_T0}", SZG)
        t0, t1, t2, t3, t4 = VT, VT+1, VT+2, VT+3, VT+4
        A(f"v_lshrrev_b32 v{t0}, 3, v{VLANE}"); A(f"v_and_b32 v{t1}, 7, v{VLANE}")
        A(f"v_lshrrev_b32 v{t2}, 4, v{VLANE}"); A(f"v_and_b32 v{t2}, 1, v{t2}")
        done = {}
        for rho in range(5):
            key = (self.swz[rho], self.strides[rho])
            if key in done:
                A(f"v_mov_b32 v{VOW+rho}, v{VOW+done[key]}"); continue
            done[key] = rho
            if self.swz[rho] == "h":
                A(f"v_lshrrev_b32 v{t3}, 2, v{VLANE}"); A(f"v_and_b32 v{t4}, 3, v{VLANE}")
                A(f"s_lshr_b32 s{S_T0}, s{S_WV}, 1"); A(f"s_lshl_b32 s{S_T0}, s{S_T0}, 1")
                A(f"v_xor_b32 v{t4}, s{S_T0}, v{t4}")
                A(f"v_mul_u32_u24 v{t3}, 3584, v{t3}"); A(f"v_lshlrev_b32 v{t4}, 4, v{t4}"); A(f"v_add_u32 v{VOW+rho}, v{t3}, v{t4}")
            else:
                if self.swz[rho] == "q": A(f"v_lshlrev_b32 v{t3}, 2, v{t2}")
                else:
                    A(f"v_lshlrev_b32 v{t3}, 1, v{t2}")
                    if self.swz[rho] == "u": A(f"v_or_b32 v{t3}, 4, v{t3}")
                A(f"v_xor_b32 v{t3}, v{t1}, v{t3}"); A(f"v_lshlrev_b32 v{t3}, 4, v{t3}")
                A(f"v_mul_u32_u24 v{t4}, {self.strides[rho]}, v{t0}"); A(f"v_add_u32 v{VOW+rho}, v{t3}, v{t4}")
        emit_items(A, self.Wg(0)); emit_items(A, self.Wg(1))
        A.stamp(1)
        A(f"v_lshlrev_b32 v{t3}, 2, v{t2}"); A(f"v_xor_b32 v{t3}, v{t1}, v{t3}"); A(f"v_lshlrev_b32 v{t3}, 4, v{t3}")
        A(f"v_lshlrev_b32 v{t4}, 10, v{t0}"); A(f"v_add_u32 v{VDM}, v{t3}, v{t4}")
        A(f"s_lshl_b32 s{S_T0}, s{S_J}, 7")
        srd_off(A, S_WD, P_D, P_D+1, f"s{S_T0}", 1792*1024)
        A(f"s_mul_i32 s{S_LB}, s{S_WV}, {NSL*2048}"); A(f"s_add_u32 s{S_LB}, s{S_LB}, {W2IN}")
        srd_wo_done = False
        A(f"s_load_dwordx2 s[{S_DBG}:{S_DBG+1}], s[0:1], 64")
        A(f"s_mov_b32 s{S_CG}, s{S_I1}")
        A(f"s_lshr_b32 s{S_T0}, s{S_T}, 3"); A(f"s_lshl_b32 s{S_T0}, s{S_T0}, 1"); A(f"s_add_u32 s{S_KSC}, s{S_T0}, s{S_WM}")
        A(f"v_and_b32 v{t0}, 31, v{VLANE}")
        A(f"v_and_b32 v{t1}, 15, v{t0}"); A(f"v_lshrrev_b32 v{t2}, 4, v{t0}")
        def cs_addr(dst, soff_code, lane_kind):
            soff_code()
            if lane_kind == "gu":
                A(f"v_mul_u32_u24 v{t3}, 1792, v{t2}"); A(f"v_add_u32 v{t3}, v{t3}, v{t1}")
            elif lane_kind == "kv":
                A(f"v_lshlrev_b32 v{t3}, 9, v{t2}"); A(f"v_add_u32 v{t3}, v{t3}, v{t1}")
            else: A(f"v_mov_b32 v{t3}, v{t0}")
            A(f"v_add_u32 v{t3}, s{S_T0}, v{t3}"); A(f"v_lshlrev_b32 v{t3}, 2, v{t3}"); A(f"v_add_u32 v{dst}, {WS_CS}, v{t3}")
        if typ == "A":
            cs_addr(VC1, lambda: (A(f"s_lshl_b32 s{S_T0}, s{S_IDX}, 1"), A(f"s_add_u32 s{S_T0}, s{S_T0}, s{S_WN}"), A(f"s_lshl_b32 s{S_T0}, s{S_T0}, 6"), A(f"s_add_u32 s{S_T0}, s{S_T0}, 1536")), "gu")
            cs_addr(VC2, lambda: (A(f"s_lshl_b32 s{S_T0}, s{S_IDX}, 6"), A(f"s_lshl_b32 s{S_T1}, s{S_WN}, 5"), A(f"s_add_u32 s{S_T0}, s{S_T0}, s{S_T1}")), "q")
            self.csa = [(VC1, 0), (VC1, 64), (VC1, 128), (VC1, 192), (VC2, 0)]
        else:
            cs_addr(VC2, lambda: (A(f"s_lshl_b32 s{S_T0}, s{S_IDX}, 6"), A(f"s_lshl_b32 s{S_T1}, s{S_WN}, 5"), A(f"s_add_u32 s{S_T0}, s{S_T0}, s{S_T1}"), A(f"s_add_u32 s{S_T0}, s{S_T0}, 512")), "q")
            cs_addr(VC1, lambda: (A(f"s_add_u32 s{S_T0}, s{S_IDX}, 16"), A(f"s_lshl_b32 s{S_T0}, s{S_T0}, 6"), A(f"s_lshl_b32 s{S_T1}, s{S_WN}, 5"), A(f"s_add_u32 s{S_T0}, s{S_T0}, s{S_T1}"), A(f"s_add_u32 s{S_T0}, s{S_T0}, 1536")), "gu")
            cs_addr(VC3, lambda: (A(f"s_lshr_b32 s{S_T0}, s{S_IDX}, 1"), A(f"s_add_u32 s{S_T0}, s{S_T0}, 24"), A(f"s_lshl_b32 s{S_T0}, s{S_T0}, 6"),
                                  A(f"s_and_b32 s{S_T1}, s{S_IDX}, 1"), A(f"s_lshl_b32 s{S_T1}, s{S_T1}, 1"), A(f"s_add_u32 s{S_T1}, s{S_T1}, s{S_WN}"), A(f"s_lshl_b32 s{S_T1}, s{S_T1}, 4"),
                                  A(f"s_add_u32 s{S_T0}, s{S_T0}, s{S_T1}"), A(f"s_add_u32 s{S_T0}, s{S_T0}, 1536")), "gu")
            self.csa = [(VC2, 0), (VC2, 2048), (VC1, 0), (VC1, 64), (VC3, 0)]
        A(f"v_mov_b32 v{t3}, 0x3f803f80")
        for i in range(4): A(f"v_accvgpr_write_b32 a{A_ONES+i}, v{t3}")
        srd_off(A, S_H, S_WSP, S_WSP+1, WS_H, WS_H + H_BYTES)
        G, p, r, c = t0, t1, t2, t3
        A(f"v_lshrrev_b32 v{G}, 4, v{VLANE}"); A(f"v_and_b32 v{G}, 1, v{G}")
        A(f"v_lshrrev_b32 v{p}, 5, v{VLANE}")
        A(f"v_and_b32 v{r}, 15, v{VLANE}"); A(f"v_lshrrev_b32 v{r}, 2, v{r}")
        A(f"v_and_b32 v{c}, 3, v{VLANE}")
        k_, rb, u1, u2 = t4, t4+1, t4+2, t4+3
        A(f"v_lshlrev_b32 v{k_}, 3, v{p}"); A(f"v_add_u32 v{k_}, v{k_}, v{r}")
        A(f"v_lshrrev_b32 v{rb}, 1, v{r}"); A(f"v_and_b32 v{rb}, 1, v{rb}")
        for blk, kd in enumerate(kinds):
            d = TRA + blk
            if typ == "A" and kd == "gu" and blk > 0:
                A(f"v_xor_b32 v{d}, {blk*32}, v{TRA}"); continue
            if typ == "B" and blk == 1:
                A(f"v_add_u32 v{d}, 4096, v{d-1}"); continue
            if typ == "B" and blk == 3:
                A(f"v_xor_b32 v{d}, 32, v{d-1}"); continue
            if kd == "guh":
                A(f"v_lshrrev_b32 v{u1}, 1, v{c}"); A(f"s_lshl_b32 s{S_T0}, s{S_WN}, 1"); A(f"v_add_u32 v{u1}, s{S_T0}, v{u1}")
                A(f"v_lshlrev_b32 v{u2}, 1, v{G}"); A(f"v_xor_b32 v{u1}, v{u1}, v{u2}"); A(f"v_lshlrev_b32 v{u1}, 4, v{u1}")
                A(f"v_lshlrev_b32 v{u2}, 6, v{k_}"); A(f"v_add_u32 v{u1}, v{u1}, v{u2}")
                A(f"v_lshlrev_b32 v{u2}, 11, v{G}"); A(f"v_add_u32 v{u1}, v{u1}, v{u2}")
                A(f"v_add_u32 v{u1}, {W_BASE + 4*4096}, v{u1}")
            else:
                if kd in ("q", "k"):
                    A(f"s_lshl_b32 s{S_T0}, s{S_WN}, 1"); A(f"v_add_u32 v{u1}, s{S_T0}, v{G}")
                elif typ == "A": A(f"v_mov_b32 v{u1}, 0")
                else:
                    A(f"s_lshl_b32 s{S_T0}, s{S_WN}, 1"); A(f"v_mov_b32 v{u1}, s{S_T0}")
                A(f"v_lshlrev_b32 v{u1}, 1, v{u1}"); A(f"v_lshrrev_b32 v{u2}, 1, v{c}"); A(f"v_add_u32 v{u1}, v{u1}, v{u2}")
                if kd in ("q", "k"): A(f"v_lshlrev_b32 v{u2}, 2, v{rb}")
                else:
                    A(f"v_lshlrev_b32 v{u2}, 1, v{rb}"); A(f"v_lshlrev_b32 v{d}, 2, v{G}"); A(f"v_or_b32 v{u2}, v{u2}, v{d}")
                A(f"v_xor_b32 v{u1}, v{u1}, v{u2}"); A(f"v_lshlrev_b32 v{u1}, 4, v{u1}")
                A(f"v_lshlrev_b32 v{u2}, 7, v{k_}"); A(f"v_add_u32 v{u1}, v{u1}, v{u2}")
                if kd == "q": A(f"v_add_u32 v{u1}, {W_BASE + 4*4096}, v{u1}")
                elif kd == "k": A(f"v_add_u32 v{u1}, {W_BASE}, v{u1}")
                else:
                    if typ == "A":
                        A(f"s_lshl_b32 s{S_T0}, s{S_WN}, 13"); A(f"s_add_u32 s{S_T0}, s{S_T0}, {W_BASE}")
                    else: A(f"s_mov_b32 s{S_T0}, {W_BASE + 2*4096}")
                    A(f"v_lshlrev_b32 v{u2}, 12, v{G}"); A(f"v_add_u32 v{u1}, v{u1}, v{u2}"); A(f"v_add_u32 v{u1}, s{S_T0}, v{u1}")
            A(f"v_and_b32 v{u2}, 1, v{c}"); A(f"v_lshlrev_b32 v{u2}, 3, v{u2}"); A(f"v_add_u32 v{d}, v{u1}, v{u2}")
        A(f"v_lshlrev_b32 v{u1}, 2, v{p}"); A(f"v_add_u32 v{u1}, v{u1}, v{r}"); A(f"v_lshlrev_b32 v{u1}, 7, v{u1}")
        A(f"v_lshlrev_b32 v{u2}, 1, v{G}"); A(f"v_lshrrev_b32 v{VTR}, 1, v{c}"); A(f"v_add_u32 v{u2}, v{u2}, v{VTR}")
        A(f"v_lshlrev_b32 v{VTR}, 2, v{rb}"); A(f"v_xor_b32 v{u2}, v{u2}, v{VTR}"); A(f"v_lshlrev_b32 v{u2}, 4, v{u2}"); A(f"v_add_u32 v{u1}, v{u1}, v{u2}")
        A(f"v_and_b32 v{u2}, 1, v{c}"); A(f"v_lshlrev_b32 v{u2}, 3, v{u2}"); A(f"v_add_u32 v{u1}, v{u1}, v{u2}")
        A(f"v_add_u32 v{VTR}, s{S_LB}, v{u1}"); A(f"v_xor_b32 v{VTR1}, 64, v{VTR}")
        A(f"v_and_b32 v{u1}, 31, v{VLANE}"); A(f"s_lshl_b32 s{S_T0}, s{S_WM}, 6"); A(f"v_add_u32 v{u1}, s{S_T0}, v{u1}")
        A(f"v_lshrrev_b32 v{u2}, 1, v{u1}"); A(f"v_and_b32 v{u2}, 7, v{u2}"); A(f"v_xor_b32 v{u2}, v{u2}, v{p}"); A(f"v_lshlrev_b32 v{u2}, 4, v{u2}")
        A(f"v_lshlrev_b32 v{u1}, 7, v{u1}"); A(f"v_add_u32 v{u1}, v{u1}, v{u2}")
        for kk in range(4): A(f"v_xor_b32 v{XA+kk}, {kk*32}, v{u1}")
        SX = WF + 20
        A.wait("strow")
        P0, P1, Q0, Q1, U = VT, VT+2, VT+4, VT+6, VT+8
        for tok, (P, Q) in enumerate(((P0, Q0), (P1, Q1))):
            for i in range(4):
                src = SX + 4*tok + i
                A(f"v_lshlrev_b32 v{U}, 16, v{src}"); A(f"v_and_b32 v{U+1}, 0xffff0000, v{src}")
                if i == 0:
                    A(f"v_pk_mul_f32 v[{Q}:{Q+1}], v[{U}:{U+1}], v[{U}:{U+1}]"); A(f"v_mov_b32 v{P}, v{U}"); A(f"v_mov_b32 v{P+1}, v{U+1}")
                else:
                    A(f"v_pk_add_f32 v[{P}:{P+1}], v[{P}:{P+1}], v[{U}:{U+1}]"); A(f"v_pk_fma_f32 v[{Q}:{Q+1}], v[{U}:{U+1}], v[{U}:{U+1}], v[{Q}:{Q+1}]")
        for r_ in (P0, P1, Q0, Q1): A(f"v_add_f32 v{r_}, v{r_}, v{r_+1}")
        for dpp in ("row_shr:1 row_mask:0xf bank_mask:0xf", "row_shr:2 row_mask:0xf bank_mask:0xf", "row_shr:4 row_mask:0xf bank_mask:0xf", "row_shr:8 row_mask:0xf bank_mask:0xf",
                    "row_bcast:15 row_mask:0xa bank_mask:0xf", "row_bcast:31 row_mask:0xc bank_mask:0xf"):
            for r_ in (P0, P1, Q0, Q1): A(f"v_add_f32_dpp v{r_}, v{r_}, v{r_} {dpp}")
        A(f"v_mul_f32 v{P0}, 0x3b000000, v{P0}"); A(f"v_mul_f32 v{P0+1}, 0x3b000000, v{P1}")
        A(f"v_mul_f32 v{Q0}, 0x3b000000, v{Q0}"); A(f"v_mul_f32 v{Q0+1}, 0x3b000000, v{Q1}")
        for j in range(2):
            A(f"v_fma_f32 v{Q0+j}, -v{P0+j}, v{P0+j}, v{Q0+j}"); A(f"v_max_f32 v{Q0+j}, 0, v{Q0+j}"); A(f"v_add_f32 v{Q0+j}, 0x3727c5ac, v{Q0+j}"); A(f"v_rsq_f32 v{Q0+j}, v{Q0+j}")
        A(f"v_mov_b32 v{U}, s{S_HB}"); A(f"v_add_u32 v{U+1}, {WS_R}, v{U}")
        A(f"s_mov_b64 s[{S_E0}:{S_E0+1}], exec"); A("s_mov_b32 exec_lo, 0"); A("s_mov_b32 exec_hi, 0x80000000")
        A.vm(f"global_store_dwordx2 v{U}, v[{P0}:{P0+1}], s[{S_WSP}:{S_WSP+1}] sc1")
        A.vm(f"global_store_dwordx2 v{U+1}, v[{Q0}:{Q0+1}], s[{S_WSP}:{S_WSP+1}] sc1", id="stst")
        A(f"s_mov_b64 exec, s[{S_E0}:{S_E0+1}]")
        A.stamp(2)
        A("s_waitcnt lgkmcnt(0)")
        A.wait("X0_3", "W0_4")
        A("s_barrier")
        A.stamp(3)
        for s in self.reads(0): A(s)
        for x in self.sig(f"s_cmp_lt_u32 s2, {NZERO}", S_DBG, DBG_INIT, None, "init"): A(x)

    def sig(self, cond, base, off_imm, off_sgpr, tag):
        L = f"K12{self.typ}_sig_{tag}"
        o = []
        if cond: o += [cond, f"s_cbranch_scc0 {L}"]
        o += [f"s_cmp_eq_u32 s{S_WV}, 0", f"s_cbranch_scc0 {L}"]
        if off_sgpr is None: o += [f"v_mov_b32 v{VT+9}, {off_imm}"]
        else: o += [f"s_lshl_b32 s{S_T4}, s{off_sgpr}, 7", f"s_add_u32 s{S_T4}, s{S_T4}, {off_imm}", f"v_mov_b32 v{VT+9}, s{S_T4}"]
        o += [f"v_mov_b32 v{VT+8}, 1", f"s_mov_b64 s[{S_E0}:{S_E0+1}], exec", "s_mov_b64 exec, 1",
              f"!global_atomic_add v{VT+9}, v{VT+8}, s[{base}:{base+1}] sc1", f"s_mov_b64 exec, s[{S_E0}:{S_E0+1}]", f"{L}:"]
        return o

    def spin(self, tag, base, vaddr, expect):
        L = f"K12{self.typ}_spin_{tag}"
        return [f"s_mov_b32 s{S_T3}, 0", f"{L}:", f"!global_load_dword v{VT+10}, v{vaddr}, s[{base}:{base+1}] sc1", "s_waitcnt vmcnt(0)",
                f"v_readfirstlane_b32 s{S_T4}, v{VT+10}", f"s_add_u32 s{S_T3}, s{S_T3}, 1", f"s_cmp_ge_u32 s{S_T3}, {POLL_MAX}", f"s_cbranch_scc1 {L}_x",
                f"s_cmp_ge_u32 s{S_T4}, {expect}", f"s_cbranch_scc1 {L}_x", "s_sleep 2", f"s_branch {L}", f"{L}_x:"]

    def w0(self, tag, code):
        L = f"K12{self.typ}_w0_{tag}"
        return [f"s_cmp_eq_u32 s{S_WV}, 0", f"s_cbranch_scc0 {L}"] + code + [f"{L}:"]

    def pre_barrier(self, h):
        typ = self.typ; T = VT
        if h == 2:
            return self.w0("initchk", [("wait", ["initld"]), f"v_readfirstlane_b32 s{S_T4}, v{T+10}", "s_nop 0", f"s_cmp_ge_u32 s{S_T4}, {NZERO}", f"s_cbranch_scc1 K12{typ}_initok",
                                       f"v_mov_b32 v{T+9}, {DBG_INIT}"] + self.spin("init", S_DBG, T+9, NZERO) + [f"K12{typ}_initok:"])
        if h == H_CNT:
            return self.w0("cntchk", [("wait", ["cntld"]), f"v_readfirstlane_b32 s{S_T4}, v{T+5}", "s_nop 0", f"s_cmp_ge_u32 s{S_T4}, 16", f"s_cbranch_scc1 K12{typ}_stok"]
                           + self.spin("st", S_WSP, T+7, 16) + [f"K12{typ}_stok:",
                           f"v_readfirstlane_b32 s{S_T4}, v{T+6}", "s_nop 0", f"s_cmp_ge_u32 s{S_T4}, 16", f"s_cbranch_scc1 K12{typ}_csok"]
                           + self.spin("cs", S_WSP, T+8, 16) + [f"K12{typ}_csok:"])
        return []

    def oneshot_items(self, add, at):
        typ = self.typ; wsp = f"s[{S_WSP}:{S_WSP+1}]"; dbg = f"s[{S_DBG}:{S_DBG+1}]"
        T = VT
        for s in range(4):
            par = s & 1
            it = [f"s_cmp_eq_u32 s{S_KSC}, {s}", f"s_cbranch_scc0 K12{typ}_nocs{s}"]
            for blk in range(5):
                b = WF + 20*par + 4*blk
                it.append(f"v_mfma_f32_32x32x16_bf16 a[{CS_TMP+16*blk}:{CS_TMP+16*blk+15}], a[{A_ONES}:{A_ONES+3}], v[{b}:{b+3}], 0")
            it.append(f"K12{typ}_nocs{s}:")
            self.fixed.setdefault(s, []).append(it)
        self.fixed.setdefault(K_INITLD, []).append(self.w0("initld", [f"v_mov_b32 v{T+9}, {DBG_INIT}", f"s_mov_b64 s[{S_E0}:{S_E0+1}], exec", "s_mov_b64 exec, 1",
                                      ("vmu", "initld", f"global_load_dword v{T+10}, v{T+9}, {dbg} sc1"), f"s_mov_b64 exec, s[{S_E0}:{S_E0+1}]"]))
        it = [[f"v_accvgpr_read_b32 v{T+blk}, a{CS_TMP+16*blk}"] for blk in range(5)]
        at_ = [f"s_mov_b64 s[{S_E0}:{S_E0+1}], exec", "s_mov_b32 exec_hi, 0"]
        for blk in range(5):
            va, off = self.csa[blk]
            at_.append(("vm", f"csat{blk}", f"global_atomic_add_f32 v{va}, v{T+blk}, {wsp} offset:{off}"))
        at_.append(f"s_mov_b64 exec, s[{S_E0}:{S_E0+1}]")
        add(at(K_CSAT), it + [at_])
        self.fixed.setdefault(K_CNTLD, []).append(self.w0("cntld", [f"s_lshl_b32 s{S_T4}, s{S_T}, 7", f"s_add_u32 s{S_T4}, s{S_T4}, {WS_STCNT}", f"v_mov_b32 v{T+7}, s{S_T4}",
                          f"s_lshl_b32 s{S_T4}, s{S_CG}, 7", f"s_add_u32 s{S_T4}, s{S_T4}, {WS_CSCNT}", f"v_mov_b32 v{T+8}, s{S_T4}",
                          f"s_mov_b64 s[{S_E0}:{S_E0+1}], exec", "s_mov_b64 exec, 1",
                          f"!global_load_dword v{T+5}, v{T+7}, {wsp} sc1", ("vmu", "cntld", f"global_load_dword v{T+6}, v{T+8}, {wsp} sc1"),
                          f"s_mov_b64 exec, s[{S_E0}:{S_E0+1}]"]))
        VM = T; VCS = T + 2; VRB = T + 7
        lds = [[f"v_and_b32 v{T+8}, 31, v{VLANE}", f"s_lshl_b32 s{S_T4}, s{S_T}, 7", f"s_lshl_b32 s{S_T3}, s{S_WM}, 6", f"s_add_u32 s{S_T4}, s{S_T4}, s{S_T3}"],
               [f"v_add_u32 v{T+8}, s{S_T4}, v{T+8}", f"v_lshlrev_b32 v{T+8}, 2, v{T+8}", f"v_add_u32 v{T+9}, {WS_R}, v{T+8}"],
               [("vm", None, f"global_load_dword v{VM}, v{T+8}, {wsp} sc1")], [("vm", None, f"global_load_dword v{VM+1}, v{T+8}, {wsp} offset:128 sc1")],
               [("vm", None, f"global_load_dword v{VR}, v{T+9}, {wsp} sc1")], [("vm", None, f"global_load_dword v{VR+1}, v{T+9}, {wsp} offset:128 sc1")]]
        for blk in range(5):
            va, off = self.csa[blk]
            lds.append([("vm", "csld" if blk == 4 and typ == "A" else None, f"global_load_dword v{VCS+blk}, v{va}, {wsp} offset:{off} sc1")])
        if typ == "B":
            lds.append([f"s_lshl_b32 s{S_T4}, s{S_T}, 7", f"v_add_u32 v{T+8}, s{S_T4}, v{VTID}", f"v_lshlrev_b32 v{T+8}, 2, v{T+8}", f"v_add_u32 v{T+8}, {WS_R}, v{T+8}"])
            lds.append([("vm", "csld", f"global_load_dword v{VRB}, v{T+8}, {wsp} sc1")])
        add(at(2*H_CNT-1, 1), lds)
        if CODE_PF2:
            add(at(CODE_PF2), [[f"s_getpc_b64 s[{S_E2}:{S_E2+1}]", f"K12{typ}_pc2:", f"s_lshr_b32 s{S_T4}, s2, 3", f"s_lshl_b32 s{S_T4}, s{S_T4}, 2", f"s_add_u32 s{S_T4}, s{S_T4}, s{S_WV}"],
                               [f"s_min_u32 s{S_T4}, s{S_T4}, ((K12_end-K12{typ}_pc2)>>10)-1", f"s_lshl_b32 s{S_T4}, s{S_T4}, 10", f"v_add_u32 v{T+9}, s{S_T4}, v{VL16}"],
                               [("vm", None, f"global_load_dwordx4 a[224:227], v{T+9}, s[{S_E2}:{S_E2+1}]")]])
        tt = T + 8; b = T + 10
        items = [[("wait", ["csld"])], [f"v_cmp_gt_u32 vcc, 32, v{VLANE}", "s_nop 1"]]
        for tb in range(2):
            items += [[f"v_cndmask_b32 v{tt}, 0, v{VM+tb}, vcc"], [f"v_cvt_pk_bf16_f32 v{b}, v{tt}, v{tt}"],
                      [f"v_and_b32 v{tt+1}, 0xffff0000, v{b}"], [f"v_sub_f32 v{tt+1}, v{tt}, v{tt+1}"],
                      [f"v_cvt_pk_bf16_f32 v{b+1}, v{tt+1}, 0"],
                      [f"v_accvgpr_write_b32 a{AMF+4*tb}, v{b}"], [f"v_accvgpr_write_b32 a{AMF+4*tb+1}, v{b+1}"],
                      [f"v_accvgpr_write_b32 a{AMF+4*tb+2}, 0"], [f"v_accvgpr_write_b32 a{AMF+4*tb+3}, 0"]]
        for blk in range(5):
            items += [[f"v_cndmask_b32 v{tt}, 0, v{VCS+blk}, vcc"], [f"v_sub_f32 v{tt}, 0, v{tt}"],
                      [f"v_cvt_pk_bf16_f32 v{b+1}, v{tt}, 0"], [f"v_lshlrev_b32 v{tt+1}, 16, v{b+1}"], [f"v_sub_f32 v{tt+1}, v{tt}, v{tt+1}"],
                      [f"v_cvt_pk_bf16_f32 v{b}, v{tt}, v{tt+1}"],
                      [f"v_accvgpr_write_b32 a{ACF+4*blk}, v{b}"], [f"v_accvgpr_write_b32 a{ACF+4*blk+1}, v{b+1}"],
                      [f"v_accvgpr_write_b32 a{ACF+4*blk+2}, 0"], [f"v_accvgpr_write_b32 a{ACF+4*blk+3}, 0"]]
        if typ == "B":
            items += [[f"v_lshlrev_b32 v{tt}, 2, v{VTID}"], [f"v_add_u32 v{tt}, {LDS_R}, v{tt}"],
                      [f"v_cmp_gt_u32 vcc, 128, v{VTID}", f"s_and_saveexec_b64 s[{S_E0}:{S_E0+1}], vcc", f"ds_write_b32 v{tt}, v{VRB}", f"s_mov_b64 exec, s[{S_E0}:{S_E0+1}]"]]
        add(at(K_RANK), items)

    def loop(self):
        A = self.A
        self.loop_start = len(A.l)
        steps = []
        for s in range(32):
            if s == CORR_AT: steps.append(("c", None))
            steps.append(("k", s))
        order_last = [b for b, kd in enumerate(self.kinds) if kd in ("gu","guh")] + [b for b, kd in enumerate(self.kinds) if kd not in ("gu","guh")]
        idx_of = {st: i for i, st in enumerate(steps)}
        def at(s, g=0): return (idx_of[("k", s)], g)
        flex = []
        def add(pos, items):
            for it in items: flex.append((pos, it))
        add(at(0), self.Wg(2)); add(at(0), self.Xg(1)); add(at(1, 1), self.Xg(2))
        for h in range(1, 14): add(at(2*h-1, 1), self.Wg(h+2))
        for sg in range(1, 6): add(at(4*sg-1, 1), self.Xg(sg+2))
        self.fixed = {}
        tagD = {}; tagR = {}; keep = []; placedR = {}
        self.oneshot_items(add, at)
        self.w2_done_R = []
        for i in range(N_IN):
            if i == 28: add(at(min(i+1, 31)), [["__WOSRD__"]])
            dd = self.w2.D(i); tagD[id(dd[0])] = i; keep.append(dd)
            add(at(min(i+1, 31)), dd)
            if i + 1 + DLAG <= 31:
                rr = self.w2.R(i); tagR[id(rr[-1])] = i; keep.append(rr)
                add(at(i+1+DLAG), rr); self.w2_done_R.append(i)
        flex.sort(key=lambda x: x[0])
        gaps_all = []
        pending = list(flex)
        for si, st in enumerate(steps):
            gaps = [[] for _ in range(10)]
            head = []
            if st[0] == "k":
                s = st[1]
                M = self.mfmas(s, order_last if s == 31 else None)
                head = ["s_waitcnt lgkmcnt(0)"]
                odd = s & 1
                if odd:
                    h = (s + 1)//2
                    if h <= 15:
                        ids = [f"W{h}_4"] + ([f"X{h//2}_3"] if h % 2 == 0 else [])
                        if h == 2: ids.append("stst")
                        if h == 6: ids.append("csat4")
                        gaps[0] += self.pre_barrier(h) + [("wait", ids), "s_barrier"]
                        if h == 2: gaps[0] += self.sig(None, S_WSP, WS_STCNT, S_T, "st")
                        if h == 6: gaps[0] += self.sig(None, S_WSP, WS_CSCNT, S_CG, "cs")
                    else:
                        gaps[0] += ["s_barrier"]
                nxt = s + 1
                if nxt < 32:
                    rd = self.reads(nxt)
                    g0 = 1 if odd else 0
                    for i, x in enumerate(rd): gaps[g0 + i//2].append(x)
            else:
                M = self.corr(); head = ["s_waitcnt lgkmcnt(0)"]
            if st[0] == "k" and st[1] in self.fixed:
                for it in self.fixed[st[1]]: gaps[9] += it
            gi = 0
            rest = []
            blocked = False
            for (pos, it) in pending:
                if blocked or pos[0] > si:
                    rest.append((pos, it)); blocked = blocked or False; continue
                if id(it) in tagD and placedR.get(tagD[id(it)] - NSL, -1) == si:
                    rest.append((pos, it)); blocked = True; continue
                g = max(gi, pos[1] if pos[0] == si else 0)
                need = 2 if (isinstance(it, tuple) and it[0] == "dma") else len(it)
                while g < 10 and len(gaps[g]) + min(need, CAP) > CAP: g += 1
                if g >= 10:
                    rest.append((pos, it)); blocked = True; continue
                if id(it) in tagR: placedR[tagR[id(it)]] = si
                if isinstance(it, tuple) and it[0] == "dma":
                    gaps[g].append(it[1]); gaps[g].append("__NOP__"); gaps[g].append(it[2]); gi = g + 1
                else:
                    gaps[g] += it; gi = g
            pending = rest
            for g in gaps:
                while "__NOP__" in g:
                    i = g.index("__NOP__")
                    cand = [j for j in range(i-1) if isinstance(g[j], str) and g[j].startswith("ds_read")]
                    if cand:
                        x = g.pop(cand[-1]); i -= 1; g[i] = x
                    else: g[i] = "s_nop 0"
            for x in head: A(x)
            for i in range(10):
                A(M[i])
                for x in gaps[i]:
                    if x == "__WOSRD__":
                        assert "W15_4" in A.ids
                        A(f"s_lshl_b32 s{S_T0}, s{S_J}, 7")
                        srd_off(A, S_WO, P_WO, P_WO+1, f"s{S_T0}", 512*1024)
                    else: A(x)
        assert not pending, pending[:3]
        txt = A.l
        for i in range(N_IN - NSL):
            rd = [n for n, x in enumerate(txt) if n > self.loop_start and "ds_read_b64_tr_b16 a[%d:" % (8*i+6) in x]
            assert rd, i
            pos_r = rd[-1]
            kind, mul, const = w2row(i+NSL)
            dm = [n for n, x in enumerate(txt) if n > self.loop_start and x.strip() == ("s_add_u32 s%d, s%d, %d" % (S_W2O, S_W2O, const*1024)) and "s_lshl_b32 s%d" % S_W2O in txt[n-1]]
            dm = [n for n in dm if n > pos_r]
            assert dm, (i, pos_r)
            assert any("lgkmcnt(0)" in x for x in txt[pos_r:dm[0]]), ("no lgkm wait", i)

    def flag_store(self, slot_imm, FA, ONE):
        A = self.A
        FA, ONE = VT+4, VT+5
        A(f"v_mov_b32 v{ONE}, 1")
        A(f"s_lshl_b32 s{S_T0}, s{S_T}, 1"); A(f"s_add_u32 s{S_T0}, s{S_T0}, s{S_WM}"); A(f"s_lshl_b32 s{S_T0}, s{S_T0}, 2")
        A(f"s_lshr_b32 s{S_T1}, s{S_IDX}, 1"); A(f"s_add_u32 s{S_T0}, s{S_T0}, s{S_T1}"); A(f"s_lshl_b32 s{S_T0}, s{S_T0}, 4")
        A(f"s_lshl_b32 s{S_T1}, s{S_I1}, 1"); A(f"s_add_u32 s{S_T0}, s{S_T0}, s{S_T1}"); A(f"s_add_u32 s{S_T0}, s{S_T0}, s{S_WN}")
        A(f"s_add_u32 s{S_T0}, s{S_T0}, {slot_imm}"); A(f"s_lshl_b32 s{S_T0}, s{S_T0}, 2"); A(f"s_add_u32 s{S_T0}, s{S_T0}, {WS_FLAG}")
        A(f"v_mov_b32 v{FA}, s{S_T0}")
        A(f"s_mov_b64 s[{S_E0}:{S_E0+1}], exec"); A("s_mov_b64 exec, 1")
        A.vm(f"global_store_dword v{FA}, v{ONE}, s[{S_WSP}:{S_WSP+1}] sc1")
        A(f"s_mov_b64 exec, s[{S_E0}:{S_E0+1}]")

    def transition(self):
        A, typ, kinds = self.A, self.typ, self.kinds
        w2 = self.w2
        tt = VT
        state = {"D": N_IN, "R": len(self.w2_done_R)}
        assert self.w2_done_R == list(range(len(self.w2_done_R)))
        A.stamp(1, "tr")
        def bgD(n=1):
            for _ in range(n):
                i = state["D"]
                if i >= 36 or i - state["R"] >= NSL: return
                emit_items(A, w2.D(i)); state["D"] += 1
        def bgR(n=1):
            for _ in range(n):
                i = state["R"]
                if i >= state["D"]: return
                if i >= 32 and not state.get("vfree"): return
                emit_items(A, w2.R(i)); state["R"] += 1
        def bgD_safe(n=1):
            A("s_waitcnt lgkmcnt(0)"); bgD(n)
        A(f"s_lshl_b32 s{S_T0}, s{S_T}, 1"); A(f"s_add_u32 s{S_T0}, s{S_T0}, s{S_WM}"); A(f"s_lshl_b32 s{S_T0}, s{S_T0}, 2")
        A(f"s_lshr_b32 s{S_T1}, s{S_IDX}, 1"); A(f"s_add_u32 s{S_T0}, s{S_T0}, s{S_T1}"); A(f"s_mul_i32 s{S_HB}, s{S_T0}, {36*2048}")
        A(f"s_and_b32 s{S_I1}, s{S_IDX}, 1")
        I1 = S_I1
        R2 = XF
        for tb in range(2):
            A(f"v_mul_f32 v{R2+2*tb}, v{VR+tb}, v{VR+tb}"); A(f"v_mul_f32 v{R2+2*tb+1}, v{VR+tb}, v{VR+tb}")
        bgR(2)
        PK = WF
        nst = 0
        gublks = [b for b, kd in enumerate(kinds) if kd in ("gu", "guh")]
        lasth = None
        for blk in gublks:
            kd = kinds[blk]
            if typ == "A":
                if blk == 0:
                    A(f"s_lshl_b32 s{S_T2}, s{I1}, 1"); A(f"s_add_u32 s{S_T2}, s{S_T2}, s{S_WN}"); A(f"s_lshl_b32 s{S_T2}, s{S_T2}, 13"); A(f"s_add_u32 s{S_T2}, s{S_T2}, s{S_HB}")
                else: A(f"s_add_u32 s{S_T2}, s{S_T2}, 2048")
            elif kd == "gu":
                if blk == 2:
                    A(f"s_lshl_b32 s{S_T2}, s{I1}, 2"); A(f"s_lshl_b32 s{S_T3}, s{S_WN}, 1"); A(f"s_add_u32 s{S_T2}, s{S_T2}, s{S_T3}"); A(f"s_add_u32 s{S_T2}, s{S_T2}, 16")
                    A(f"s_lshl_b32 s{S_T2}, s{S_T2}, 11"); A(f"s_add_u32 s{S_T2}, s{S_T2}, s{S_HB}")
                else: A(f"s_add_u32 s{S_T2}, s{S_T2}, 2048")
            else:
                A(f"s_lshl_b32 s{S_T2}, s{I1}, 1"); A(f"s_add_u32 s{S_T2}, s{S_T2}, s{S_WN}"); A(f"s_add_u32 s{S_T2}, s{S_T2}, 24")
                A(f"s_lshl_b32 s{S_T2}, s{S_T2}, 11"); A(f"s_add_u32 s{S_T2}, s{S_T2}, s{S_HB}")
            for tb in range(2):
                a = acc(blk, tb); pk = PK + 4*(nst % 4); nst += 1
                for i in range(4): A(f"v_pk_mul_f32 v[{a+2*i}:{a+2*i+1}], v[{a+2*i}:{a+2*i+1}], v[{a+8+2*i}:{a+8+2*i+1}]")
                for i in range(4): A(f"v_pk_mul_f32 v[{a+2*i}:{a+2*i+1}], v[{a+2*i}:{a+2*i+1}], v[{R2+2*tb}:{R2+2*tb+1}]")
                for i in range(4): A(f"v_cvt_pk_bf16_f32 v{pk+i}, v{a+2*i}, v{a+2*i+1}")
                lasth = f"hs_{blk}_{tb}"
                A.vm(f"buffer_store_dwordx4 v[{pk}:{pk+3}], v{VL16}, s[{S_H}:{S_H+3}], s{S_T2} offen offset:{tb*1024} sc1", id=lasth)
            if state["R"] < N_IN: bgR(1)
        bgD_safe(5)
        A.stamp(5); A.stamp(2, "tr")
        FA, ONE = VT+4, VT+5
        A(f"s_mov_b32 s{S_C6}, 0x358637bd"); A(f"s_mov_b32 s{S_C6+1}, 0x358637bd")
        C6 = f"s[{S_C6}:{S_C6+1}]"
        if typ == "A":
            A(f"s_lshl_b32 s{S_T2}, s{I1}, 2"); A(f"s_lshl_b32 s{S_T3}, s{S_WN}, 1"); A(f"s_add_u32 s{S_T2}, s{S_T2}, s{S_T3}"); A(f"s_add_u32 s{S_T2}, s{S_T2}, 28")
            A(f"s_lshl_b32 s{S_T2}, s{S_T2}, 11"); A(f"s_add_u32 s{S_T4}, s{S_T2}, s{S_HB}"); A(f"s_add_u32 s{S_XO}, s{S_T4}, 2048")
            RP = XF + 4; RLP = XF + 6
            for tb in range(2):
                a = acc(4, tb)
                A(f"v_mov_b32 v{RP}, v{VR+tb}"); A(f"v_mov_b32 v{RP+1}, v{VR+tb}")
                A(f"v_mul_f32 v{RLP}, 0x3fb8aa3b, v{VR+tb}"); A(f"v_mul_f32 v{RLP+1}, 0x3fb8aa3b, v{VR+tb}")
                for i in range(0, 16, 4):
                    for j in (0, 2): A(f"v_pk_mul_f32 v[{tt+j}:{tt+j+1}], v[{a+i+j}:{a+i+j+1}], v[{RLP}:{RLP+1}]")
                    for j in (0, 2): A(f"v_pk_fma_f32 v[{a+i+j}:{a+i+j+1}], v[{a+i+j}:{a+i+j+1}], v[{RP}:{RP+1}], {C6}")
                    for j in range(4): A(f"v_exp_f32_e64 v{tt+j}, v{tt+j} clamp")
                    for j in range(4): A(f"v_max_f32 v{a+i+j}, s{S_C6}, v{a+i+j}")
                    for j in (0, 2): A(f"v_pk_add_f32 v[{a+i+j}:{a+i+j+1}], v[{a+i+j}:{a+i+j+1}], v[{tt+j}:{tt+j+1}]")
                for hs in range(2):
                    pk = PK + 4*(nst % 4); nst += 1
                    for i in range(4): A(f"v_cvt_pk_bf16_f32 v{pk+i}, v{a+8*hs+2*i}, v{a+8*hs+2*i+1}")
                    A.vm(f"buffer_store_dwordx4 v[{pk}:{pk+3}], v{VL16}, s[{S_H}:{S_H+3}], s{S_XO if hs else S_T4} offen offset:{tb*1024} sc1", id=f"pq_{tb}_{hs}")
            A.stamp(3, "tr")
            A.wait(lasth)
            A.stamp(4, "tr")
            self.flag_store(0, FA, ONE)
            state["vfree"] = True
            bgR(6); bgD_safe(6)
            A.stamp(5, "tr")
        else:
            RR = WF; RL = WF + 16; TK = WF + 32; TV = VT + 6
            ONES = XF + 4
            for i in range(4): A(f"v_mov_b32 v{ONES+i}, 0x3f803f80")
            A(f"v_lshrrev_b32 v{tt}, 5, v{VLANE}"); A(f"v_lshlrev_b32 v{tt}, 4, v{tt}")
            A(f"s_lshl_b32 s{S_T0}, s{S_WM}, 8"); A(f"s_add_u32 s{S_T0}, s{S_T0}, {LDS_R}"); A(f"v_add_u32 v{XF+9}, s{S_T0}, v{tt}")
            D2, DZ = acc(2,0), acc(2,1)
            for tb in range(2):
                for q4 in range(4): A(f"ds_read_b128 v[{RR+4*q4}:{RR+4*q4+3}], v{XF+9} offset:{tb*128 + q4*32}")
                A("s_waitcnt lgkmcnt(0)")
                A(f"s_mov_b32 s{S_T0}, 0x3fb8aa3b"); A(f"s_mov_b32 s{S_T1}, 0x3fb8aa3b")
                for i in range(8): A(f"v_pk_mul_f32 v[{RL+2*i}:{RL+2*i+1}], v[{RR+2*i}:{RR+2*i+1}], s[{S_T0}:{S_T1}]")
                a = acc(0, tb); av = acc(1, tb)
                for i in range(0, 16, 4):
                    for j in (0, 2): A(f"v_pk_mul_f32 v[{tt+j}:{tt+j+1}], v[{a+i+j}:{a+i+j+1}], v[{RL+i+j}:{RL+i+j+1}]")
                    for j in (0, 2): A(f"v_pk_fma_f32 v[{a+i+j}:{a+i+j+1}], v[{a+i+j}:{a+i+j+1}], v[{RR+i+j}:{RR+i+j+1}], {C6}")
                    for j in range(4): A(f"v_exp_f32_e64 v{tt+j}, v{tt+j} clamp")
                    for j in range(4): A(f"v_max_f32 v{a+i+j}, s{S_C6}, v{a+i+j}")
                    for j in (0, 2): A(f"v_pk_add_f32 v[{a+i+j}:{a+i+j+1}], v[{a+i+j}:{a+i+j+1}], v[{tt+j}:{tt+j+1}]")
                for i in range(8): A(f"v_pk_mul_f32 v[{av+2*i}:{av+2*i+1}], v[{av+2*i}:{av+2*i+1}], v[{RR+2*i}:{RR+2*i+1}]")
                for i in range(8): A(f"v_cvt_pk_bf16_f32 v{TK+i}, v{a+2*i}, v{a+2*i+1}")
                for i in range(8): A(f"v_cvt_pk_bf16_f32 v{TV+i}, v{av+2*i}, v{av+2*i+1}")
                A("s_nop 1")
                for f in range(2):
                    c = "0" if (tb == 0 and f == 0) else None
                    A(f"v_mfma_f32_32x32x16_bf16 v[{D2}:{D2+15}], v[{TK+4*f}:{TK+4*f+3}], v[{TV+4*f}:{TV+4*f+3}], {c or f'v[{D2}:{D2+15}]'}")
                    A(f"v_mfma_f32_32x32x16_bf16 v[{DZ}:{DZ+15}], v[{TK+4*f}:{TK+4*f+3}], v[{ONES}:{ONES+3}], {c or f'v[{DZ}:{DZ+15}]'}")
                if tb == 0:
                    A.stamp(3, "tr"); A.wait(lasth); A.stamp(4, "tr"); self.flag_store(4, FA, ONE)
            A(f"v_and_b32 v{tt}, 31, v{VLANE}"); A(f"v_cmp_gt_u32 vcc, 16, v{tt}")
            A(f"s_lshl_b32 s{S_T0}, s{S_WM}, 13"); A(f"s_lshl_b32 s{S_T1}, s{S_WN}, 12"); A(f"s_add_u32 s{S_T0}, s{S_T0}, s{S_T1}"); A(f"s_add_u32 s{S_T0}, s{S_T0}, {LDS_KV}")
            A(f"v_lshlrev_b32 v{tt}, 2, v{VLANE}"); A(f"v_add_u32 v{tt}, s{S_T0}, v{tt}")
            A("s_nop 7"); A("s_nop 3")
            for r_ in range(16):
                if r_ < 8: A(f"v_cndmask_b32 v{D2+r_}, v{DZ+r_}, v{D2+r_}, vcc")
                else: A(f"v_cndmask_b32 v{D2+r_}, v{D2+r_}, v{DZ+r_}, vcc")
            for r_ in range(16): A(f"ds_write_b32 v{tt}, v{D2+r_} offset:{r_*256}")
            A("s_waitcnt lgkmcnt(0)"); A("s_barrier")
            A(f"s_lshr_b32 s{S_T0}, s{S_WV}, 1"); A(f"s_lshl_b32 s{S_T0}, s{S_T0}, 12"); A(f"s_add_u32 s{S_T0}, s{S_T0}, {LDS_KV}")
            A(f"s_and_b32 s{S_T2}, s{S_WV}, 1")
            A(f"s_mul_i32 s{S_T3}, s{S_T2}, {8*256}"); A(f"s_add_u32 s{S_T0}, s{S_T0}, s{S_T3}")
            A(f"s_lshl_b32 s{S_T3}, s{S_T2}, 6")
            A(f"s_lshl_b32 s{S_T1}, s{S_IDX}, 2"); A(f"s_add_u32 s{S_T1}, s{S_T1}, s{S_WV}")
            A(f"s_mul_i32 s{S_T1}, s{S_T1}, {KV_HEAD}"); A(f"s_add_u32 s{S_T1}, s{S_T1}, {WS_KV}")
            A(f"v_and_b32 v{tt}, 7, v{VLANE}"); A(f"v_lshlrev_b32 v{tt}, 8, v{tt}"); A(f"v_add_u32 v{tt}, s{S_T0}, v{tt}")
            A(f"v_lshrrev_b32 v{tt+1}, 3, v{VLANE}"); A(f"v_lshlrev_b32 v{tt+1}, 2, v{tt+1}")
            A(f"v_add_u32 v{tt+2}, v{tt}, v{tt+1}"); A(f"v_add_u32 v{tt+2}, s{S_T3}, v{tt+2}")
            B0 = ACC
            for n in range(4):
                off = (32*(n>>1) + 8*(n&1))*4
                A(f"ds_read_b32 v{B0+2*n}, v{tt+2} offset:{off}"); A(f"ds_read_b32 v{B0+2*n+1}, v{tt+2} offset:{off+8192}")
            A(f"s_sub_u32 s{S_T3}, 64, s{S_T3}")
            A(f"v_lshlrev_b32 v{tt+3}, 5, v{tt+1}"); A(f"v_add_u32 v{tt+3}, v{tt+3}, v{tt}"); A(f"v_add_u32 v{tt+3}, s{S_T3}, v{tt+3}")
            A(f"v_cmp_gt_u32 vcc, 16, v{VLANE}"); A(f"s_and_saveexec_b64 s[{S_E0}:{S_E0+1}], vcc")
            A(f"ds_read_b32 v{B0+8}, v{tt+3}"); A(f"ds_read_b32 v{B0+9}, v{tt+3} offset:8192")
            A(f"s_mov_b64 exec, s[{S_E0}:{S_E0+1}]")
            A(f"v_lshlrev_b32 v{tt+2}, 2, v{VLANE}"); A(f"v_add_u32 v{tt+2}, s{S_T1}, v{tt+2}")
            A("s_waitcnt lgkmcnt(0)")
            for n in range(4):
                A(f"v_add_f32 v{B0+2*n}, v{B0+2*n}, v{B0+2*n+1}")
                A.vm(f"global_atomic_add_f32 v{tt+2}, v{B0+2*n}, s[{S_WSP}:{S_WSP+1}] offset:{n*256}")
            A(f"v_add_f32 v{B0+8}, v{B0+8}, v{B0+9}")
            A(f"s_and_saveexec_b64 s[{S_E0}:{S_E0+1}], vcc")
            A.vm(f"global_atomic_add_f32 v{tt+2}, v{B0+8}, s[{S_WSP}:{S_WSP+1}] offset:1024", id="kvat")
            A(f"s_mov_b64 exec, s[{S_E0}:{S_E0+1}]")
            state["vfree"] = True
            A.stamp(5, "tr")
        A.stamp(6); A.stamp(6, "tr")
        while state["R"] < 36:
            bgR(4); bgD_safe(4)
        A("s_waitcnt lgkmcnt(0)")

class G2:
    ACC2 = 0; HB = 64; NH = 32; W2V = 192
    def __init__(self, A): self.A = A; self.w2 = W2(A)
    def poll(self, label, vaddr, nl, expect=None, novm=False):
        A = self.A; T = VT
        A(f"s_mov_b32 s{S_T3}, 0")
        A(f"s_mov_b64 s[{S_E0}:{S_E0+1}], exec"); A(f"s_mov_b64 exec, {(1<<nl)-1}")
        A.label(label)
        if novm: A.l.append(f"  global_load_dword v{T+9}, v{vaddr}, s[{S_WSP}:{S_WSP+1}] sc1")
        else: A.vm(f"global_load_dword v{T+9}, v{vaddr}, s[{S_WSP}:{S_WSP+1}] sc1")
        A("s_waitcnt vmcnt(0)")
        if expect is None: A(f"v_cmp_ne_u32 vcc, 0, v{T+9}")
        else: A(f"v_cmp_le_u32 vcc, {expect}, v{T+9}")
        A(f"s_add_u32 s{S_T3}, s{S_T3}, 1")
        A(f"s_cmp_ge_u32 s{S_T3}, {POLL_MAX}"); A(f"s_cbranch_scc1 {label}_x")
        A(f"s_cmp_eq_u64 vcc, exec"); A(f"s_cbranch_scc1 {label}_x")
        A("s_sleep 1"); A(f"s_branch {label}")
        A.label(label + "_x")
        A(f"s_mov_b64 exec, s[{S_E0}:{S_E0+1}]")
    def check(self, label, vreg, nl, expect=None):
        pass
    def body(self):
        A = self.A; T = VT; VL = VLANE
        ACC2 = 0; HB = 64; NH = 16; KVR0 = 128
        A.reset_vm()
        VFL, VKV, VCN = T+10, T+11, T+12
        VF1, VF2 = T+8, T+9
        srd(A, S_O, P_O, P_O+1, 2048*1024)
        srd(A, S_XX, P_X, P_X+1, 2048*1024)
        A(f"s_lshl_b32 s{S_HO}, s{S_TAU}, 2"); A(f"s_add_u32 s{S_HO}, s{S_HO}, s{S_WV}")
        A(f"s_lshl_b32 s{S_T0}, s{S_HO}, 6"); A(f"s_add_u32 s{S_T0}, s{S_T0}, {WS_FLAG}")
        A(f"v_lshlrev_b32 v{VFL}, 2, v{VL}"); A(f"v_add_u32 v{VFL}, s{S_T0}, v{VFL}")
        A(f"s_mul_i32 s{S_HO}, s{S_HO}, {36*2048}")
        A(f"s_add_u32 s{S_T4}, s{S_HO}, {56*1024}")
        A(f"v_and_b32 v{T}, 31, v{VL}"); A(f"v_lshrrev_b32 v{T+1}, 5, v{VL}")
        A(f"v_lshlrev_b32 v{T+2}, 4, v{T+1}"); A(f"v_add_u32 v{T+2}, v{T+2}, v{T}"); A(f"v_subrev_u32 v{T+2}, 16, v{T+2}"); A(f"v_lshlrev_b32 v{T+2}, 5, v{T+2}")
        A(f"v_lshlrev_b32 v{T+3}, 5, v{T+1}"); A(f"v_add_u32 v{T+3}, 1024, v{T+3}")
        A(f"v_cmp_gt_u32 vcc, 16, v{T}"); A("s_nop 1"); A(f"v_cndmask_b32 v{T+2}, v{T+2}, v{T+3}, vcc")
        A(f"s_lshl_b32 s{S_T0}, s{S_WV}, 3"); A(f"s_mul_i32 s{S_T0}, s{S_T0}, {KV_HEAD}"); A(f"s_add_u32 s{S_T0}, s{S_T0}, {WS_KV}")
        A(f"v_add_u32 v{VKV}, s{S_T0}, v{T+2}")
        A(f"s_lshl_b32 s{S_T0}, s{S_WV}, 9"); A(f"s_add_u32 s{S_T0}, s{S_T0}, {WS_KVCNT}")
        A(f"v_lshlrev_b32 v{VCN}, 6, v{VL}"); A(f"v_add_u32 v{VCN}, s{S_T0}, v{VCN}")
        A("s_barrier")
        A("s_waitcnt vmcnt(0)")
        A(f"s_cmp_ge_u32 s{S_CP}, 2"); A("s_cbranch_scc1 K12_sigB")
        A(f"s_lshl_b32 s{S_T0}, s{S_T}, 1"); A(f"s_add_u32 s{S_T0}, s{S_T0}, s{S_WM}"); A(f"s_lshl_b32 s{S_T0}, s{S_T0}, 2")
        A(f"s_lshr_b32 s{S_T1}, s{S_IDX}, 1"); A(f"s_add_u32 s{S_T0}, s{S_T0}, s{S_T1}"); A(f"s_lshl_b32 s{S_T0}, s{S_T0}, 4")
        A(f"s_lshl_b32 s{S_T1}, s{S_I1}, 1"); A(f"s_add_u32 s{S_T0}, s{S_T0}, s{S_T1}"); A(f"s_add_u32 s{S_T0}, s{S_T0}, s{S_WN}")
        A(f"s_add_u32 s{S_T0}, s{S_T0}, 8"); A(f"s_lshl_b32 s{S_T0}, s{S_T0}, 2"); A(f"s_add_u32 s{S_T0}, s{S_T0}, {WS_FLAG}")
        A(f"v_mov_b32 v{T+4}, s{S_T0}"); A(f"v_mov_b32 v{T+5}, 1")
        A(f"s_mov_b64 s[{S_E0}:{S_E0+1}], exec"); A("s_mov_b64 exec, 1")
        A(f"!global_store_dword v{T+4}, v{T+5}, s[{S_WSP}:{S_WSP+1}] sc1")
        A(f"s_mov_b64 exec, s[{S_E0}:{S_E0+1}]"); A("s_branch K12_sigX")
        A("K12_sigB:")
        A(f"s_lshl_b32 s{S_T0}, s{S_IDX}, 2"); A(f"s_add_u32 s{S_T0}, s{S_T0}, s{S_WV}"); A(f"s_lshl_b32 s{S_T0}, s{S_T0}, 6"); A(f"s_add_u32 s{S_T0}, s{S_T0}, {WS_KVCNT}")
        A(f"v_mov_b32 v{T+4}, s{S_T0}"); A(f"v_mov_b32 v{T+5}, 1")
        A(f"s_mov_b64 s[{S_E0}:{S_E0+1}], exec"); A("s_mov_b64 exec, 1")
        A(f"!global_atomic_add v{T+4}, v{T+5}, s[{S_WSP}:{S_WSP+1}] sc1")
        A(f"s_mov_b64 exec, s[{S_E0}:{S_E0+1}]")
        A("K12_sigX:")
        A.stamp(7); A.stamp(7, "tr")
        self.poll("K12_pollH", VFL, 8)
        A.stamp(8, "tr")
        A.stamp(8); A.stamp(1, "g2")
        hstate = {"off": 0}
        def h_items(f):
            o = []
            base = (f // 4) * 4096
            if base != hstate["off"]:
                o.append(f"s_add_u32 s{S_HO}, s{S_HO}, {base - hstate['off']}"); hstate["off"] = base
            hb = HB + 4*(f % NH)
            o.append(("vm", f"h{f}", f"buffer_load_dwordx4 v[{hb}:{hb+3}], v{VL16}, s[{S_H}:{S_H+3}], s{S_HO} offen offset:{(f%4)*1024} sc1"))
            return o
        def pq_items(g):
            o = []
            if g % 4 == 0 and g > 0: o.append(f"s_add_u32 s{S_T4}, s{S_T4}, 4096")
            o.append(("vm", f"pq{g}", f"buffer_load_dwordx4 a[{4*g}:{4*g+3}], v{VL16}, s[{S_H}:{S_H+3}], s{S_T4} offen offset:{(g%4)*1024} sc1"))
            return o
        def kv_items(h):
            b = KVR0 + 8*h
            return [("vm", None, f"global_load_dwordx4 v[{b}:{b+3}], v{VKV}, s[{S_WSP}:{S_WSP+1}] sc1"),
                    ("vm", f"kv{h}", f"global_load_dwordx4 v[{b+4}:{b+7}], v{VKV}, s[{S_WSP}:{S_WSP+1}] offset:16 sc1"),
                    f"v_add_u32 v{VKV}, {KV_HEAD}, v{VKV}"]
        AHEAD = G2_AHEAD
        KVB = [KVR0 + 8*h for h in range(8)]
        DO = [224 - 32, 224 - 16]
        DO = [T - 16 - 16 + 0, 0]
        DO = [208, 224]
        DO = [HB + 32, HB + 48]
        OF = [T, T+4]
        loads = [("h", f) for f in range(56)]
        for h in range(8): loads += [("kv", h), ("pq", 2*h), ("pq", 2*h+1)]
        CHK = G2_CHK
        li = {"n": 0}
        def issue(n):
            o = []
            for _ in range(n):
                if li["n"] >= len(loads): break
                k, x = loads[li["n"]]; li["n"] += 1
                o.append(h_items(x) if k == "h" else (kv_items(x) if k == "kv" else pq_items(x)))
            return o
        A(f"s_mul_i32 s{S_T0}, s{S_J}, {7*1024}"); A(f"s_add_u32 s{S_T0}, s{S_T0}, s{S_HO}")
        for x in issue(4):
            for y in x: A(y)
        if G2_PF:
            for k in range(7):
                if k == 4: A(f"s_add_u32 s{S_T0}, s{S_T0}, 4096")
                A.vm(f"buffer_load_dwordx4 v[{T}:{T+3}], v{VL16}, s[{S_H}:{S_H+3}], s{S_T0} offen offset:{(k%4)*1024} sc1")
        for x in issue(AHEAD - 4):
            for y in x: A(y)
        A.stamp(2, "g2")
        for i in range(28):
            A.wait(f"h{2*i+1}")
            if i == 1: A.stamp(3, "g2")
            gaps = [[] for _ in range(4)]
            if i == CHK - 5:
                gaps[0] += [f"v_add_u32 v{VFL}, 32, v{VFL}", f"s_mov_b64 s[{S_E0}:{S_E0+1}], exec", "s_mov_b64 exec, 15",
                            ("vm", "fq", f"global_load_dword v{VF1}, v{VFL}, s[{S_WSP}:{S_WSP+1}] sc1"), "s_mov_b64 exec, 255",
                            ("vm", "fkv", f"global_load_dword v{VF2}, v{VCN}, s[{S_WSP}:{S_WSP+1}] sc1"), f"s_mov_b64 exec, s[{S_E0}:{S_E0+1}]"]
            n = 2
            if li["n"] + n > 56 and i < CHK: n = max(0, 56 - li["n"])
            for k, x in enumerate(issue(n)): gaps[1+k] += x
            mf = []
            for tb in range(2):
                hb = HB + 4*((2*i+tb) % NH)
                for nb in range(2):
                    a = ACC2 + 16*(2*nb+tb)
                    c = "0" if i == 0 else f"v[{a}:{a+15}]"
                    mf.append(f"v_mfma_f32_32x32x16_bf16 v[{a}:{a+15}], {self.w2.frag(i,nb)}, v[{hb}:{hb+3}], {c}")
            for g in range(4):
                A(mf[g])
                for x in gaps[g]: A(x)
            if i == CHK - 1:
                A.stamp(4, "g2")
                A.wait("fkv")
                A(f"s_mov_b64 s[{S_E0}:{S_E0+1}], exec"); A("s_mov_b64 exec, 15")
                A(f"v_cmp_ne_u32 vcc, 0, v{VF1}"); A("s_nop 3"); A("s_cmp_eq_u64 vcc, exec"); A(f"s_mov_b64 exec, s[{S_E0}:{S_E0+1}]")
                A("s_cbranch_scc1 K12_qok")
                self.poll("K12_pollQ", VFL, 4, novm=True)
                A.label("K12_qok")
                A(f"s_mov_b64 s[{S_E0}:{S_E0+1}], exec"); A("s_mov_b64 exec, 255")
                A(f"v_cmp_le_u32 vcc, 16, v{VF2}"); A("s_nop 3"); A("s_cmp_eq_u64 vcc, exec"); A(f"s_mov_b64 exec, s[{S_E0}:{S_E0+1}]")
                A("s_cbranch_scc1 K12_kvok")
                self.poll("K12_pollKV", VCN, 8, expect=16, novm=True)
                A.label("K12_kvok")
                A.stamp(5, "g2")
        A.stamp(6, "g2"); A.stamp(1, "att")
        A(f"v_lshrrev_b32 v{T+8}, 3, v{VTID}"); A(f"v_and_b32 v{T+9}, 7, v{VTID}")
        A(f"s_lshl_b32 s{S_T0}, s{S_TAU}, 16"); A(f"s_lshl_b32 s{S_T2}, s{S_J}, 7"); A(f"s_add_u32 s{S_T0}, s{S_T0}, s{S_T2}")
        VG = VFL
        A(f"v_lshlrev_b32 v{VG}, 10, v{T+8}"); A(f"v_lshlrev_b32 v{VCN}, 4, v{T+9}"); A(f"v_add_u32 v{VG}, v{VG}, v{VCN}")
        A(f"s_add_u32 s{S_T2}, s{S_T0}, {32*1024}")
        XR = HB
        A(f"s_mov_b32 s{S_T1}, 0x358637bd")
        units = [(h, tb) for h in range(8) for tb in range(2)]
        def stA(u):
            h, tb = units[u]; d = DO[u & 1]
            o = []
            if tb == 0:
                o.append(("wait", [f"kv{h}", f"pq{2*h}"]))
                o += [f"v_cvt_pk_bf16_f32 v{KVB[h]+e}, v{KVR0+8*h+2*e}, v{KVR0+8*h+2*e+1}" for e in range(4)]
                o.append("s_nop 1")
            else: o.append(("wait", [f"pq{2*h+1}"]))
            o.append(f"v_mfma_f32_32x32x16_bf16 v[{d}:{d+15}], v[{KVB[h]}:{KVB[h]+3}], {ar(4*(2*h+tb), 4)}, 0")
            return o
        def stB(u):
            d = DO[u & 1]; o = OF[u & 1]; rc = T + 8
            l = [f"v_add_f32 v{rc}, s{S_T1}, v{d}", f"v_rcp_f32 v{rc}, v{rc}", "s_nop 0"]
            l += [f"v_mul_f32 v{d+8+e}, v{rc}, v{d+8+e}" for e in range(8)]
            l += [f"v_cvt_pk_bf16_f32 v{o+e}, v{d+8+2*e}, v{d+8+2*e+1}" for e in range(4)]
            return l
        def stC(u):
            h, tb = units[u]; o = OF[u & 1]; i = 28 + h
            return [f"v_mfma_f32_32x32x16_bf16 v[{ACC2+16*(2*nb+tb)}:{ACC2+16*(2*nb+tb)+15}], {self.w2.frag(i,nb)}, v[{o}:{o+3}], v[{ACC2+16*(2*nb+tb)}:{ACC2+16*(2*nb+tb)+15}]" for nb in range(2)]
        for x in stA(0): A(x)
        A.stamp(2, "att")
        for x in issue(1):
            for y in x: A(y)
        for x in stA(1): A(x)
        for x in issue(2):
            for y in x: A(y)
        A("s_nop 7"); A("s_nop 3")
        for x in stB(0): A(x)
        xdone = False
        for u in range(16):
            c = stC(u)
            nb_ = stB(u+1) if u + 1 < 16 else []
            if u in (2, 6, 10, 13): A.stamp({2:3, 6:4, 10:5, 13:6}[u], "att")
            A("s_nop 1"); A(c[0])
            for x in nb_[:5]: A(x)
            if u + 2 < 16:
                for x in stA(u+2): A(x)
            iss = issue(2)
            for x in iss:
                for y in x: A(y)
            if not iss and not xdone:
                A.vm(f"buffer_load_dwordx4 v[{XR}:{XR+3}], v{VG}, s[{S_XX}:{S_XX+3}], s{S_T0} offen", id="x0")
                A.vm(f"buffer_load_dwordx4 v[{XR+4}:{XR+7}], v{VG}, s[{S_XX}:{S_XX+3}], s{S_T2} offen", id="x1")
                xdone = True
            for x in nb_[5:10]: A(x)
            A(c[1])
            for x in nb_[10:]: A(x)
        assert xdone and li["n"] == len(loads)
        A.stamp(7, "g2"); A.stamp(7, "att")
        RS = 272; WSZ = 64*RS
        A(f"v_and_b32 v{T}, 31, v{VL}"); A(f"v_mul_u32_u24 v{T}, {RS}, v{T}"); A(f"v_lshrrev_b32 v{T+1}, 5, v{VL}"); A(f"v_lshlrev_b32 v{T+1}, 4, v{T+1}"); A(f"v_add_u32 v{T}, v{T}, v{T+1}")
        A(f"s_mul_i32 s{S_T3}, s{S_WV}, {WSZ}"); A(f"v_add_u32 v{T}, s{S_T3}, v{T}")
        A(f"v_lshrrev_b32 v{T+2}, 3, v{VTID}"); A(f"v_and_b32 v{T+3}, 7, v{VTID}")
        A(f"v_mul_u32_u24 v{T+6}, {RS}, v{T+2}"); A(f"v_lshlrev_b32 v{T+7}, 5, v{T+3}"); A(f"v_add_u32 v{T+6}, v{T+6}, v{T+7}")
        A("s_nop 1")
        for tb in range(2):
            if tb == 1: A("s_nop 7")
            for nb in range(2):
                a = ACC2 + 16*(2*nb+tb)
                for q in range(4):
                    A(f"ds_write_b128 v{T}, v[{a+4*q}:{a+4*q+3}] offset:{tb*32*RS + nb*128 + q*32}")
        A("s_waitcnt lgkmcnt(0)"); A("s_barrier")
        A.stamp(8, "g2"); A.stamp(8, "att")
        for ps in range(2):
            b = 72 + 40*ps
            for w in range(4):
                A(f"ds_read_b128 v[{b+8*w}:{b+8*w+3}], v{T+6} offset:{w*WSZ + ps*32*RS}")
                A(f"ds_read_b128 v[{b+8*w+4}:{b+8*w+7}], v{T+6} offset:{w*WSZ + ps*32*RS + 16}")
        for ps in range(2):
            b = 72 + 40*ps
            A(f"s_waitcnt lgkmcnt({8 if ps == 0 else 0})")
            for e in range(0, 8, 2):
                A(f"v_pk_add_f32 v[{b+e}:{b+e+1}], v[{b+e}:{b+e+1}], v[{b+8+e}:{b+8+e+1}]")
                A(f"v_pk_add_f32 v[{b+16+e}:{b+16+e+1}], v[{b+16+e}:{b+16+e+1}], v[{b+24+e}:{b+24+e+1}]")
            for e in range(0, 8, 2):
                A(f"v_pk_add_f32 v[{b+e}:{b+e+1}], v[{b+e}:{b+e+1}], v[{b+16+e}:{b+16+e+1}]")
            A.wait(f"x{ps}")
            xb = XR + 4*ps
            for e in range(4):
                A(f"v_lshlrev_b32 v{T+8}, 16, v{xb+e}"); A(f"v_and_b32 v{T+9}, 0xffff0000, v{xb+e}")
                A(f"v_pk_add_f32 v[{b+2*e}:{b+2*e+1}], v[{b+2*e}:{b+2*e+1}], v[{T+8}:{T+9}]")
                A(f"v_cvt_pk_bf16_f32 v{b+32+e}, v{b+2*e}, v{b+2*e+1}")
            A.vm(f"buffer_store_dwordx4 v[{b+32}:{b+35}], v{VG}, s[{S_O}:{S_O+3}], s{S_T0 if ps == 0 else S_T2} offen")

def gen_k12():
    A = Prog()
    prologue_common(A)
    A(f"s_cmp_ge_u32 s{S_CP}, 2"); A("s_cbranch_scc1 K12_typeB")
    base_nvm = A.nvm; base_ids = dict(A.ids)
    for typ in ("A", "B"):
        if typ == "B":
            A.label("K12_typeB"); A.nvm = base_nvm; A.ids = dict(base_ids)
        g = G1(A, typ)
        g.prologue()
        g.loop()
        A.stamp(4)
        g.transition()
        if typ == "A": A("s_branch K12_g2")
    A.label("K12_g2")
    G2(A).body()
    if STAMP:
        A("s_waitcnt vmcnt(0) lgkmcnt(0)")
        A(f"{STAMP_INS} s[60:61]")
        A("s_waitcnt lgkmcnt(0)")
        A(f"s_lshl_b32 s{S_T0}, s2, 2"); A(f"s_add_u32 s{S_T0}, s{S_T0}, s{S_WV}"); A(f"s_lshl_b32 s{S_T0}, s{S_T0}, 6")
        A(f"s_add_u32 s{S_T0}, s{S_T0}, {WS_STAMP + 65536}")
        A(f"v_mov_b32 v{VT}, s{S_T0}")
        for i in range(9):
            A(f"v_mov_b32 v{VT+1}, s{SB+2*i}")
            A.vm(f"global_store_dword v{VT}, v{VT+1}, s[{S_WSP}:{S_WSP+1}] offset:{4*i}")
        A(f"v_mov_b32 v{VT+1}, s60")
        A.vm(f"global_store_dword v{VT}, v{VT+1}, s[{S_WSP}:{S_WSP+1}] offset:36")
    if STAMP and DBGSTAMP:
        A(f"s_cmp_eq_u32 s{S_WV}, 0"); A("s_cbranch_scc0 K12_end")
        A("s_mov_b64 exec, 1")
        for i in range(9):
            A(f"v_mov_b32 v{VT}, {4*(1+i)}"); A(f"v_mov_b32 v{VT+1}, s{SB+2*i}")
            A.vm(f"global_atomic_umax v{VT}, v{VT+1}, s[{S_DBG}:{S_DBG+1}]")
        A(f"v_mov_b32 v{VT}, 40"); A(f"v_mov_b32 v{VT+1}, s60"); A.vm(f"global_atomic_umax v{VT}, v{VT+1}, s[{S_DBG}:{S_DBG+1}]")
        A(f"s_not_b32 s{S_T0}, s{SB}"); A(f"v_mov_b32 v{VT}, 44"); A(f"v_mov_b32 v{VT+1}, s{S_T0}"); A.vm(f"global_atomic_umax v{VT}, v{VT+1}, s[{S_DBG}:{S_DBG+1}]")
    A.label("K12_end")
    return A.text()

def main(path):
    hdr = open("cdna_kernels/" + NAME + ".s.ref").read().split("; Override")[0]
    n = NAME + "_kernel"
    body = gen_k12()
    out = hdr + "; @launch grid=(256,1,1) block=(256,1,1) lds=163840\n"
    out += '.amdgcn_target "amdgcn-amd-amdhsa--gfx950"\n.text\n'
    out += f""".globl {n}
.p2align 8
.type {n},@function
{n}:
{body}
  s_endpgm
.section .rodata,"a"
.p2align 6
.amdhsa_kernel {n}
  .amdhsa_next_free_vgpr 512
  .amdhsa_next_free_sgpr 102
  .amdhsa_accum_offset 256
  .amdhsa_group_segment_fixed_size 0
  .amdhsa_kernarg_size 80
  .amdhsa_user_sgpr_count 2
  .amdhsa_user_sgpr_kernarg_segment_ptr 1
  .amdhsa_system_sgpr_workgroup_id_x 1
.end_amdhsa_kernel
"""
    open(path, "w").write(out)

if __name__ == "__main__":
    if "--stamp" in sys.argv:
        STAMP = True; sys.argv.remove("--stamp")
    for a in list(sys.argv):
        if a.startswith("--nin="): N_IN = int(a[6:]); sys.argv.remove(a)
        if a.startswith("--smode="): SMODE = a[8:]; sys.argv.remove(a)
        if a.startswith("--ahead="): G2_AHEAD = int(a[8:]); sys.argv.remove(a)
        if a.startswith("--chk="): G2_CHK = int(a[6:]); sys.argv.remove(a)
        if a.startswith("--pf="): G2_PF = int(a[5:]); sys.argv.remove(a)
        if a.startswith("--cpf2="): CODE_PF2 = int(a[7:]); sys.argv.remove(a)
        if a.startswith("--wsh="): WS_H = int(a[6:])*1048576; sys.argv.remove(a)
        if a == "--dbgstamp": DBGSTAMP = 1; sys.argv.remove(a)
        if a.startswith("--rot="): ROT = int(a[6:]); sys.argv.remove(a)
        if a.startswith("--cap="): CAP = int(a[6:]); sys.argv.remove(a)
    if "--cyc" in sys.argv:
        STAMP = True; STAMP_INS = "s_memtime"; sys.argv.remove("--cyc")
    main(sys.argv[1] if len(sys.argv) > 1 else "cdna_kernels/" + NAME + ".s")
```

```python
import sys

NAME = "parallel_sum__linear_attn_block__glu_gated_bilinear__prompt"
WS_M, WS_R, WS_KV, KV_HEAD = 0, 8192, 32768, 1152
WS_FLAG = WS_KV + 36864
WS_KVCNT = WS_FLAG + 8192
WS_CS = WS_KVCNT + 2048
WS_STCNT = WS_CS + 20480
WS_CSCNT = WS_STCNT + 2048
NZERO = 18
assert WS_CSCNT + 2048 <= WS_KV + NZERO*4096 <= 131072
DBG_INIT = 0
CS_TMP = 140
A_ONES = 220
VC1, VC2, VC3 = 251, 252, 253
WS_H = 131072
H_BYTES = 32*4*36*2048
POLL_MAX = 200000
STAMP = False
STAMP_INS = 's_memrealtime'
WS_STAMP = 1 << 24
SB = 84
CORR_AT = 28
N_IN = 28
CAP = 5
SMODE = 'main'
ROT = 8
PHI_D = 0
FLAG_TB = 1
B_EARLY_D = 1
LATE_R = 1
X1_EARLY = 1
W2ROT = 1
DBGSTAMP = 0
CODE_PF2 = 0
G2_AHEAD = 12; G2_CHK = 20; G2_PF = 0
K_INITLD = 1; K_CSAT = 5; K_CNTLD = 17; H_CNT = 11; K_RANK = 25
CODE_KB = 48

class Prog:
    def __init__(self): self.l = []; self.nvm = 0; self.ids = {}; self.pos = {}; self.inloop = False
    def __call__(self, s):
        if s is None: return
        if isinstance(s, tuple):
            if s[0] == "vm":
                self.l.append("  " + s[2]); self.nvm += 1
                if s[1] is not None: self.ids[s[1]] = self.nvm; self.pos[s[1]] = len(self.l)
            elif s[0] == "vmu":
                self.l.append("  " + s[2]); self.ids[s[1]] = self.nvm
            elif s[0] == "wait":
                last = max(self.ids[i] for i in s[1])
                n = self.nvm - last
                assert n <= 63, (s, n)
                if STAMP and SMODE == "wait" and self.inloop:
                    cat = 2 if s[1][0].startswith("w2_") else (1 if s[1][0].startswith("W") else 3)
                    self.l.append(f"  s_memtime s[98:99]"); self.l.append("  s_waitcnt lgkmcnt(0)")
                    self.l.append(f"  s_waitcnt vmcnt({n})")
                    self.l.append(f"  s_memtime s[100:101]"); self.l.append("  s_waitcnt lgkmcnt(0)")
                    self.l.append(f"  s_sub_u32 s100, s100, s98"); self.l.append(f"  s_add_u32 s{SB+2*cat}, s{SB+2*cat}, s100")
                    return
                self.l.append(f"  s_waitcnt vmcnt({n})" + (" " + s[2] if len(s) > 2 and s[2] else ""))
            else: raise ValueError(s)
        elif s.endswith(":"): self.l.append(s)
        elif s.startswith("!"):
            self.l.append("  " + s[1:])
        else:
            assert not ("buffer_" in s or "global_" in s), s
            self.l.append("  " + s)
    def vm(self, text, id=None): self(("vm", id, text))
    def wait(self, *ids): self(("wait", list(ids)))
    def label(self, s): self.l.append(s + ":")
    def text(self): return "\n".join(self.l)
    def stamp(self, i, mode="main"):
        if STAMP and (mode == SMODE or i == 0): self.l.append(f"  {STAMP_INS} s[{SB+2*i}:{SB+2*i+1}]")
    def reset_vm(self):
        self.ids = {}

def vr(b, n=1): return f"v{b}" if n == 1 else f"v[{b}:{b+n-1}]"
def ar(b, n=1): return f"a{b}" if n == 1 else f"a[{b}:{b+n-1}]"
def srd(A, d, lo, hi, size):
    A(f"s_mov_b32 s{d}, s{lo}"); A(f"s_and_b32 s{d+1}, s{hi}, 0xffff"); A(f"s_mov_b32 s{d+2}, {size}"); A(f"s_mov_b32 s{d+3}, 0x20000")
def srd_off(A, d, lo, hi, off, size):
    A(f"s_add_u32 s{d}, s{lo}, {off}"); A(f"s_addc_u32 s{d+1}, s{hi}, 0"); A(f"s_and_b32 s{d+1}, s{d+1}, 0xffff")
    if isinstance(off, int): A(f"s_mov_b32 s{d+2}, {size - off}")
    else: A(f"s_sub_u32 s{d+2}, {size}, {off}")
    A(f"s_mov_b32 s{d+3}, 0x20000")

X_BASE = 0; X_SLOT = 16384
W_BASE = 49152; W_SLOT = 20480; W_NS = 3
W2IN = W_BASE + W_NS*W_SLOT
NSL = 6
LDS_R = W2IN + 4*NSL*2048
LDS_KV = 0
W2_START = 1
W2POST = 16384; NPOST = 11
DLAG = 5

ACC = 0; WF = 160; XF = 200; TRA = 216; XA = 221; VOW = 225; VOX = 230
VR = 234; VLANE = 236; VL16 = 237; VTID = 238; VDM = 239
VT = 240
VTR = 254; VTR1 = 255
AMF = 228; ACF = 236
def acc(blk, tb): return ACC + (blk*2+tb)*16

S_X = 4; S_W = 8; S_H = 28; S_WSP = 32
S_WV = 34; S_WM = 35; S_WN = 36; S_T = 37; S_IDX = 38
S_KW = 39; S_KH = 40; S_R30 = 41; S_R35 = 42; S_RH = 43; S_KX = 44; S_W1K = 45; S_W4K = 46; S_XB = 47
S_WD = 48; S_LB = 52; S_W2O = 53
S_W2B = 74; S_W2R = 75; S_W2T = 76; S_RHO = 77; S_HR = 75; S_HBASE = 74
S_T0 = 54; S_T1 = 55; S_T2 = 56; S_T3 = 57; S_T4 = 58; S_XO = 59
S_E0 = 60; S_E2 = 62
S_P = 64
P_X, P_WQ, P_WO, P_G, P_U, P_D, P_O = 64, 66, 68, 72, 74, 76, 78
S_DBG = 72; S_KSC = 66; S_CG = 67
S_HB = 80; S_I1 = 81; S_CP = 82; S_TAU = 83; S_J = 70; S_HO = 71
S_WO = 8; S_O = 12; S_XX = 16
S_C6 = 20

def w2row(i):
    if i < 16: return ("D", 256, 16*i)
    if i < 24: return ("D", 128, 1024 + 16*(i-16))
    if i < 28: return ("D", 64, 1536 + 16*(i-24))
    return ("O", 128, 16*(i-28))

class W2:
    def __init__(self, A, vdm2=None): self.A = A; self.vdm2 = vdm2
    def frag(self, ks, nb, W2V=192):
        f = ks*2 + nb
        return ar(4*f, 4) if f < 64 else vr(W2V + 4*(f-64), 4)
    def half(self, ks, nb, h, W2V=192):
        f = ks*2 + nb
        return ar(4*f + 2*h, 2) if f < 64 else vr(W2V + 4*(f-64) + 2*h, 2)
    def slot_off(self, i):
        return (i % NSL)*2048 if i < N_IN else ((i - N_IN) % NPOST)*2048
    def D(self, i):
        o = []
        if i < 28: s, so = S_WD, S_W2R
        else:
            s, so = S_WO, S_W2O
            o.append([f"s_mov_b32 s{S_W2O}, {16*(i-28)*1024}"])
        d0 = ("dma", f"s_add_u32 m0, s{S_LB}, {self.slot_off(i)}", ("vm", f"w2_{i}_0", f"buffer_load_dwordx4 v{VDM}, s[{s}:{s+3}], s{so} offen lds"))
        o.append(d0)
        o.append(("dma", f"s_add_u32 m0, s{S_LB}, {self.slot_off(i) + 1024}", ("vm", f"w2_{i}_1", f"buffer_load_dwordx4 v{self.vdm2}, s[{s}:{s+3}], s{so} offen lds")))
        if i < 27:
            o.append([f"s_add_u32 s{S_W2R}, s{S_W2R}, 16384", f"s_cmp_eq_u32 s{S_W2R}, {28*16384}", f"s_cselect_b32 s{S_W2R}, 0, s{S_W2R}"])
        return o
    def R(self, i):
        o = self.slot_off(i)
        r = [[("wait", [f"w2_{i}_1"])]]
        for nb in range(2):
            va = VTR if nb == 0 else VTR1
            r.append([f"ds_read_b64_tr_b16 {self.half(i, nb, 0)}, v{va} offset:{o}", f"ds_read_b64_tr_b16 {self.half(i, nb, 1)}, v{va} offset:{o+1024}"])
        return r

def emit_items(A, items):
    for it in items:
        if isinstance(it, tuple) and it[0] == "dma":
            A(it[1]); A("s_nop 0"); A(it[2])
        else:
            for s in it: A(s)

def prologue_common(A):
    A("s_cmp_ge_u32 s2, 256"); A("s_cbranch_scc1 K12_end")
    A.stamp(0)
    A(f"s_load_dwordx16 s[{S_P}:{S_P+15}], s[0:1], 0")
    A(f"s_load_dwordx2 s[{S_WSP}:{S_WSP+1}], s[0:1], 72")
    A(f"s_getpc_b64 s[{S_E2}:{S_E2+1}]")
    A("K12_pc:")
    A(f"v_and_b32 v{VLANE}, 63, v0")
    A(f"v_lshrrev_b32 v{VT}, 6, v0")
    A(f"v_mov_b32 v{VTID}, v0")
    A(f"v_lshlrev_b32 v{VL16}, 4, v{VLANE}")
    A(f"v_readfirstlane_b32 s{S_WV}, v{VT}")
    A(f"s_and_b32 s{S_T0}, s2, 7"); A(f"s_lshr_b32 s{S_T1}, s2, 3")
    A(f"s_lshl_b32 s{S_T2}, s{S_T1}, 2"); A(f"s_add_u32 s{S_T2}, s{S_T2}, s{S_WV}"); A(f"s_min_u32 s{S_T2}, s{S_T2}, ((K12_end-K12_pc)>>10)-1"); A(f"s_lshl_b32 s{S_T2}, s{S_T2}, 10")
    A(f"v_add_u32 v{VT+4}, s{S_T2}, v{VL16}")
    A.vm(f"global_load_dwordx4 v[{WF+36}:{WF+39}], v{VT+4}, s[{S_E2}:{S_E2+1}]")
    A(f"s_and_b32 s{S_T2}, s{S_T1}, 7"); A(f"s_lshr_b32 s{S_CP}, s{S_T1}, 3")
    A(f"s_lshr_b32 s{S_T}, s{S_T0}, 2"); A(f"s_lshl_b32 s{S_T}, s{S_T}, 3"); A(f"s_add_u32 s{S_T}, s{S_T}, s{S_T2}")
    A(f"s_and_b32 s{S_IDX}, s{S_T0}, 3"); A(f"s_lshl_b32 s{S_IDX}, s{S_IDX}, 1")
    A(f"s_and_b32 s{S_T3}, s{S_CP}, 1"); A(f"s_add_u32 s{S_IDX}, s{S_IDX}, s{S_T3}")
    A(f"s_and_b32 s{S_TAU}, s{S_T1}, 3"); A(f"s_lshl_b32 s{S_T3}, s{S_T0}, 2"); A(f"s_add_u32 s{S_TAU}, s{S_TAU}, s{S_T3}")
    A(f"s_lshr_b32 s{S_T4}, s{S_T1}, 2")
    A(f"s_add_u32 s{S_T0}, s{S_CP}, s{S_T2}"); A(f"s_and_b32 s{S_T0}, s{S_T0}, 3"); A(f"s_lshl_b32 s{S_T0}, s{S_T0}, 1")
    A(f"s_lshr_b32 s{S_T1}, s{S_T2}, 2"); A(f"s_add_u32 s{S_T0}, s{S_T0}, s{S_T1}")
    A(f"s_lshl_b32 s{S_KW}, s{S_T0}, 6")
    A(f"s_lshr_b32 s{S_WM}, s{S_WV}, 1"); A(f"s_and_b32 s{S_WN}, s{S_WV}, 1")
    t0, t1, t3, t4 = VT, VT+1, VT+3, VT+4
    A(f"v_lshrrev_b32 v{t0}, 3, v{VLANE}"); A(f"v_and_b32 v{t1}, 7, v{VLANE}")
    A(f"v_lshrrev_b32 v{t3}, 4, v{VLANE}"); A(f"v_xor_b32 v{t3}, v{t1}, v{t3}"); A(f"v_lshlrev_b32 v{t3}, 4, v{t3}")
    A(f"v_lshlrev_b32 v{t4}, 10, v{t0}"); A(f"v_add_u32 v{VOX}, v{t3}, v{t4}")
    A(f"v_xor_b32 v{VOX+1}, 64, v{VOX}"); A(f"v_add_u32 v{VOX+1}, {8*1024}, v{VOX+1}")
    A(f"v_add_u32 v{VOX+2}, {16*1024}, v{VOX}"); A(f"v_add_u32 v{VOX+3}, {16*1024}, v{VOX+1}")
    A(f"s_lshl_b32 s{S_XB}, s{S_T}, 7"); A(f"s_lshl_b32 s{S_T0}, s{S_WV}, 5"); A(f"s_add_u32 s{S_XB}, s{S_XB}, s{S_T0}"); A(f"s_lshl_b32 s{S_XB}, s{S_XB}, 10")
    A(f"s_lshl_b32 s{S_KX}, s{S_KW}, 1")
    A(f"s_and_b32 s{S_T0}, s{S_WV}, 1"); A(f"s_lshl_b32 s{S_T0}, s{S_T0}, 4"); A(f"s_add_u32 s{S_KH}, s{S_KW}, s{S_T0}")
    A(f"s_lshl_b32 s{S_T0}, s{S_WV}, 3"); A(f"s_add_u32 s{S_KW}, s{S_KW}, s{S_T0}")
    A(f"s_lshl_b32 s{S_W1K}, s{S_WV}, 10"); A(f"s_lshl_b32 s{S_W4K}, s{S_WV}, 12")
    A(f"s_lshr_b32 s{S_T0}, s{S_CP}, 1"); A(f"s_lshl_b32 s{S_T0}, s{S_T0}, 3"); A(f"s_add_u32 s{S_T3}, s{S_T0}, s{S_IDX}")
    A(f"s_lshl_b32 s{S_T0}, s{S_T}, 7"); A(f"s_lshl_b32 s{S_T1}, s{S_T3}, 3"); A(f"s_add_u32 s{S_T0}, s{S_T0}, s{S_T1}"); A(f"s_lshl_b32 s{S_T1}, s{S_WV}, 1"); A(f"s_add_u32 s{S_T2}, s{S_T0}, s{S_T1}")
    A(f"s_lshl_b32 s{S_T0}, s{S_T2}, 10"); A(f"v_add_u32 v{VT+5}, s{S_T0}, v{VL16}")
    A("s_waitcnt lgkmcnt(0)")
    A(f"s_mov_b32 s{S_J}, s{S_T4}")
    A(f"s_cmp_ge_u32 s2, {NZERO}"); A("s_cbranch_scc1 K12_nozero")
    A(f"s_lshl_b32 s{S_T0}, s2, 12"); A(f"s_add_u32 s{S_T0}, s{S_T0}, {WS_KV}")
    A(f"v_lshlrev_b32 v{VT+6}, 4, v{VTID}"); A(f"v_add_u32 v{VT+6}, s{S_T0}, v{VT+6}")
    for i in range(4): A(f"v_mov_b32 v{VT+8+i}, 0")
    A(f"!global_store_dwordx4 v{VT+6}, v[{VT+8}:{VT+11}], s[{S_WSP}:{S_WSP+1}] sc1")
    A("K12_nozero:")
    SX = WF + 20
    A.vm(f"global_load_dwordx4 v[{SX}:{SX+3}], v{VT+5}, s[{P_X}:{P_X+1}]")
    A.vm(f"global_load_dwordx4 v[{SX+4}:{SX+7}], v{VT+5}, s[{P_X}:{P_X+1}] offset:1024", id="strow")
    A(f"s_lshl_b32 s{S_HB}, s{S_T2}, 2")
    A(f"s_mov_b32 s{S_I1}, s{S_T3}")
    srd(A, S_X, P_X, P_X+1, 2048*1024)

class G1:
    def __init__(self, A, typ):
        self.A = A; self.typ = typ; self.w2 = W2(A, 227 if typ == 'A' else 226)
        self.kinds = ["gu","gu","gu","gu","q"] if typ == "A" else ["k","v","gu","gu","guh"]
        if typ == "A": self.strides = [3584,3584,3584,3584,3072]; self.swz = ["g","u","g","u","q"]
        else: self.strides = [3072,3072,3584,3584,3584]; self.swz = ["q","q","g","u","h"]
    def vow(self, rho):
        key = (self.swz[rho], self.strides[rho])
        for r in range(rho + 1):
            if (self.swz[r], self.strides[r]) == key: return VOW + r
    def Wg(self, h):
        o = []
        if h > 0:
            o.append([f"s_add_u32 s{S_KW}, s{S_KW}, 32", f"s_and_b32 s{S_KW}, s{S_KW}, 511"])
            if self.typ == "B": o.append([f"s_add_u32 s{S_KH}, s{S_KH}, 32", f"s_and_b32 s{S_KH}, s{S_KH}, 511"])
        o.append([f"s_mul_i32 s{S_R30}, s{S_KW}, 3072", f"s_mul_i32 s{S_R35}, s{S_KW}, 3584"])
        if self.typ == "B": o.append([f"s_mul_i32 s{S_RH}, s{S_KH}, 3584"])
        for rho in range(5):
            so = S_RH if self.swz[rho] == "h" else (S_R30 if self.strides[rho] == 3072 else S_R35)
            o.append(("dma", f"s_add_u32 m0, s{S_W1K}, {W_BASE + (h % W_NS)*W_SLOT + rho*4096}",
                      ("vm", f"W{h}_{rho}", f"buffer_load_dwordx4 v{self.vow(rho)}, s[{S_W+4*rho}:{S_W+4*rho+3}], s{so} offen lds")))
        return o
    def Xg(self, sg):
        o = []
        if sg > 0: o.append([f"s_add_u32 s{S_KX}, s{S_KX}, 128", f"s_and_b32 s{S_KX}, s{S_KX}, 1023"])
        o.append([f"s_add_u32 s{S_XO}, s{S_XB}, s{S_KX}"])
        for j in range(4):
            o.append(("dma", f"s_add_u32 m0, s{S_W4K}, {X_BASE + (sg % 3)*X_SLOT + j*1024}",
                      ("vm", f"X{sg}_{j}", f"buffer_load_dwordx4 v{VOX+j}, s[{S_X}:{S_X+3}], s{S_XO} offen lds")))
        return o
    def reads(self, s):
        par = s & 1; kk = s & 3; sg = s >> 2; h = s >> 1; second = s & 1
        xo = (sg % 3)*X_SLOT
        o = [f"ds_read_b128 v[{XF+8*par}:{XF+8*par+3}], v{XA+kk} offset:{xo}", f"ds_read_b128 v[{XF+8*par+4}:{XF+8*par+7}], v{XA+kk} offset:{xo+4096}"]
        for blk, kd in enumerate(self.kinds):
            b = WF + 20*par + 4*blk
            if kd == "guh": o1, o2 = (1024 if second else 0), 256
            else: o1, o2 = (2048 if second else 0), 512
            o1 += (h % W_NS)*W_SLOT
            o.append(f"ds_read_b64_tr_b16 v[{b}:{b+1}], v{TRA+blk} offset:{o1}")
            o.append(f"ds_read_b64_tr_b16 v[{b+2}:{b+3}], v{TRA+blk} offset:{o1+o2}")
        return o
    def mfmas(self, s, order=None):
        par = s & 1; o = []
        for blk in (order or range(5)):
            kd = self.kinds[blk]
            wf = f"v[{WF+20*par+4*blk}:{WF+20*par+4*blk+3}]"
            for tb in range(2):
                xf = f"v[{XF+8*par+4*tb}:{XF+8*par+4*tb+3}]"; a = acc(blk, tb)
                c = "0" if s == 0 else f"v[{a}:{a+15}]"
                if kd in ("k", "v"): o.append(f"v_mfma_f32_32x32x16_bf16 v[{a}:{a+15}], {xf}, {wf}, {c}")
                else: o.append(f"v_mfma_f32_32x32x16_bf16 v[{a}:{a+15}], {wf}, {xf}, {c}")
        return o
    def corr(self):
        o = []
        for blk in range(5):
            for tb in range(2):
                a = acc(blk, tb); cf = ar(ACF+4*blk, 4); mf = ar(AMF+4*tb, 4)
                if self.kinds[blk] in ("k", "v"): o.append(f"v_mfma_f32_32x32x16_bf16 v[{a}:{a+15}], {mf}, {cf}, v[{a}:{a+15}]")
                else: o.append(f"v_mfma_f32_32x32x16_bf16 v[{a}:{a+15}], {cf}, {mf}, v[{a}:{a+15}]")
        return o

    def prologue(self):
        A, typ, kinds = self.A, self.typ, self.kinds
        SZQ, SZG = 512*3072, 512*3584
        emit_items(A, self.Xg(0))
        if typ == "A":
            A(f"s_lshr_b32 s{S_T0}, s{S_IDX}, 1"); A(f"s_mul_i32 s{S_T0}, s{S_T0}, 7"); A(f"s_and_b32 s{S_T1}, s{S_IDX}, 1"); A(f"s_lshl_b32 s{S_T1}, s{S_T1}, 1")
            A(f"s_add_u32 s{S_T0}, s{S_T0}, s{S_T1}"); A(f"s_lshl_b32 s{S_T0}, s{S_T0}, 7")
            srd_off(A, S_W+0, P_G, P_G+1, f"s{S_T0}", SZG); srd_off(A, S_W+4, P_U, P_U+1, f"s{S_T0}", SZG)
            A(f"s_add_u32 s{S_T0}, s{S_T0}, 128")
            srd_off(A, S_W+8, P_G, P_G+1, f"s{S_T0}", SZG); srd_off(A, S_W+12, P_U, P_U+1, f"s{S_T0}", SZG)
            A(f"s_lshl_b32 s{S_T0}, s{S_IDX}, 7")
            srd_off(A, S_W+16, P_WQ, P_WQ+1, f"s{S_T0}", SZQ)
        else:
            A(f"s_lshl_b32 s{S_T0}, s{S_IDX}, 7"); A(f"s_add_u32 s{S_T0}, s{S_T0}, 1024")
            srd_off(A, S_W+0, P_WQ, P_WQ+1, f"s{S_T0}", SZQ)
            A(f"s_add_u32 s{S_T0}, s{S_T0}, 1024")
            srd_off(A, S_W+4, P_WQ, P_WQ+1, f"s{S_T0}", SZQ)
            A(f"s_lshr_b32 s{S_T0}, s{S_IDX}, 1"); A(f"s_mul_i32 s{S_T0}, s{S_T0}, 7"); A(f"s_and_b32 s{S_T1}, s{S_IDX}, 1")
            A(f"s_add_u32 s{S_T0}, s{S_T0}, s{S_T1}"); A(f"s_add_u32 s{S_T0}, s{S_T0}, 4"); A(f"s_lshl_b32 s{S_T0}, s{S_T0}, 7")
            srd_off(A, S_W+8, P_G, P_G+1, f"s{S_T0}", SZG); srd_off(A, S_W+12, P_U, P_U+1, f"s{S_T0}", SZG)
            A(f"s_lshr_b32 s{S_T0}, s{S_IDX}, 1"); A(f"s_mul_i32 s{S_T0}, s{S_T0}, 7"); A(f"s_add_u32 s{S_T0}, s{S_T0}, 6"); A(f"s_lshl_b32 s{S_T0}, s{S_T0}, 7")
            A(f"s_and_b32 s{S_T1}, s{S_IDX}, 1"); A(f"s_lshl_b32 s{S_T1}, s{S_T1}, 6"); A(f"s_add_u32 s{S_T0}, s{S_T0}, s{S_T1}")
            A(f"s_cmp_ge_u32 s{S_WV}, 2")
            A(f"s_cselect_b32 s{S_T2}, s{P_U}, s{P_G}"); A(f"s_cselect_b32 s{S_T3}, s{P_U+1}, s{P_G+1}")
            srd_off(A, S_W+16, S_T2, S_T3, f"s{S_T0}", SZG)
        t0, t1, t2, t3, t4 = VT, VT+1, VT+2, VT+3, VT+4
        A(f"v_lshrrev_b32 v{t0}, 3, v{VLANE}"); A(f"v_and_b32 v{t1}, 7, v{VLANE}")
        A(f"v_lshrrev_b32 v{t2}, 4, v{VLANE}"); A(f"v_and_b32 v{t2}, 1, v{t2}")
        done = {}
        for rho in range(5):
            key = (self.swz[rho], self.strides[rho])
            if key in done: continue
            done[key] = rho
            if self.swz[rho] == "h":
                A(f"v_lshrrev_b32 v{t3}, 2, v{VLANE}"); A(f"v_and_b32 v{t4}, 3, v{VLANE}")
                A(f"s_lshr_b32 s{S_T0}, s{S_WV}, 1"); A(f"s_lshl_b32 s{S_T0}, s{S_T0}, 1")
                A(f"v_xor_b32 v{t4}, s{S_T0}, v{t4}")
                A(f"v_mul_u32_u24 v{t3}, 3584, v{t3}"); A(f"v_lshlrev_b32 v{t4}, 4, v{t4}"); A(f"v_add_u32 v{VOW+rho}, v{t3}, v{t4}")
            else:
                if self.swz[rho] == "q": A(f"v_lshlrev_b32 v{t3}, 2, v{t2}")
                else:
                    A(f"v_lshlrev_b32 v{t3}, 1, v{t2}")
                    if self.swz[rho] == "u": A(f"v_or_b32 v{t3}, 4, v{t3}")
                A(f"v_xor_b32 v{t3}, v{t1}, v{t3}"); A(f"v_lshlrev_b32 v{t3}, 4, v{t3}")
                A(f"v_mul_u32_u24 v{t4}, {self.strides[rho]}, v{t0}"); A(f"v_add_u32 v{VOW+rho}, v{t3}, v{t4}")
        emit_items(A, self.Wg(0)); emit_items(A, self.Wg(1))
        A.stamp(1)
        A(f"v_lshlrev_b32 v{t3}, 2, v{t2}"); A(f"v_xor_b32 v{t3}, v{t1}, v{t3}"); A(f"v_lshlrev_b32 v{t3}, 4, v{t3}")
        A(f"v_lshlrev_b32 v{t4}, 10, v{t0}"); A(f"v_add_u32 v{VDM}, v{t3}, v{t4}")
        A(f"v_add_u32 v{self.w2.vdm2}, 8192, v{VDM}")
        A(f"s_lshl_b32 s{S_T0}, s{S_J}, 7"); A(f"s_mul_i32 s{S_T1}, s{S_WV}, {448*1024}"); A(f"s_add_u32 s{S_T0}, s{S_T0}, s{S_T1}")
        srd_off(A, S_WD, P_D, P_D+1, f"s{S_T0}", 1792*1024)
        A(f"s_mul_i32 s{S_LB}, s{S_WV}, {NSL*2048}"); A(f"s_add_u32 s{S_LB}, s{S_LB}, {W2IN}")
        A(f"s_lshr_b32 s{S_T0}, s2, 3"); A(f"s_and_b32 s{S_T1}, s{S_T0}, 3"); A(f"s_mul_i32 s{S_T1}, s{S_T1}, 7"); A(f"s_lshr_b32 s{S_T0}, s{S_T0}, 2"); A(f"s_mul_i32 s{S_T0}, s{S_T0}, 3")
        A(f"s_add_u32 s{S_RHO}, s{S_T0}, s{S_T1}"); A(f"s_cmp_ge_u32 s{S_RHO}, 28"); A(f"s_cselect_b32 s{S_T0}, 28, 0"); A(f"s_sub_u32 s{S_RHO}, s{S_RHO}, s{S_T0}")
        if not W2ROT: A(f"s_mov_b32 s{S_RHO}, 0")
        A(f"s_lshl_b32 s{S_W2R}, s{S_RHO}, 14")
        A(f"s_load_dwordx2 s[{S_DBG}:{S_DBG+1}], s[0:1], 64")
        A(f"s_mov_b32 s{S_CG}, s{S_I1}")
        A(f"s_lshr_b32 s{S_T0}, s{S_T}, 3"); A(f"s_lshl_b32 s{S_T0}, s{S_T0}, 1"); A(f"s_add_u32 s{S_KSC}, s{S_T0}, s{S_WM}")
        A(f"v_and_b32 v{t0}, 31, v{VLANE}")
        A(f"v_and_b32 v{t1}, 15, v{t0}"); A(f"v_lshrrev_b32 v{t2}, 4, v{t0}")
        def cs_addr(dst, soff_code, lane_kind):
            soff_code()
            if lane_kind == "gu":
                A(f"v_mul_u32_u24 v{t3}, 1792, v{t2}"); A(f"v_add_u32 v{t3}, v{t3}, v{t1}")
            elif lane_kind == "kv":
                A(f"v_lshlrev_b32 v{t3}, 9, v{t2}"); A(f"v_add_u32 v{t3}, v{t3}, v{t1}")
            else: A(f"v_mov_b32 v{t3}, v{t0}")
            A(f"v_add_u32 v{t3}, s{S_T0}, v{t3}"); A(f"v_lshlrev_b32 v{t3}, 2, v{t3}"); A(f"v_add_u32 v{dst}, {WS_CS}, v{t3}")
        if typ == "A":
            cs_addr(VC1, lambda: (A(f"s_lshr_b32 s{S_T0}, s{S_IDX}, 1"), A(f"s_mul_i32 s{S_T0}, s{S_T0}, 7"), A(f"s_and_b32 s{S_T1}, s{S_IDX}, 1"), A(f"s_lshl_b32 s{S_T1}, s{S_T1}, 1"), A(f"s_add_u32 s{S_T0}, s{S_T0}, s{S_T1}"),
                                  A(f"s_add_u32 s{S_T0}, s{S_T0}, s{S_WN}"), A(f"s_lshl_b32 s{S_T0}, s{S_T0}, 6"), A(f"s_add_u32 s{S_T0}, s{S_T0}, 1536")), "gu")
            cs_addr(VC2, lambda: (A(f"s_lshl_b32 s{S_T0}, s{S_IDX}, 6"), A(f"s_lshl_b32 s{S_T1}, s{S_WN}, 5"), A(f"s_add_u32 s{S_T0}, s{S_T0}, s{S_T1}")), "q")
            self.csa = [(VC1, 0), (VC1, 64), (VC1, 128), (VC1, 192), (VC2, 0)]
        else:
            cs_addr(VC2, lambda: (A(f"s_lshl_b32 s{S_T0}, s{S_IDX}, 6"), A(f"s_lshl_b32 s{S_T1}, s{S_WN}, 5"), A(f"s_add_u32 s{S_T0}, s{S_T0}, s{S_T1}"), A(f"s_add_u32 s{S_T0}, s{S_T0}, 512")), "q")
            cs_addr(VC1, lambda: (A(f"s_lshr_b32 s{S_T0}, s{S_IDX}, 1"), A(f"s_mul_i32 s{S_T0}, s{S_T0}, 7"), A(f"s_and_b32 s{S_T1}, s{S_IDX}, 1"), A(f"s_add_u32 s{S_T0}, s{S_T0}, s{S_T1}"), A(f"s_add_u32 s{S_T0}, s{S_T0}, 4"), A(f"s_lshl_b32 s{S_T0}, s{S_T0}, 6"), A(f"s_lshl_b32 s{S_T1}, s{S_WN}, 5"), A(f"s_add_u32 s{S_T0}, s{S_T0}, s{S_T1}"), A(f"s_add_u32 s{S_T0}, s{S_T0}, 1536")), "gu")
            cs_addr(VC3, lambda: (A(f"s_lshr_b32 s{S_T0}, s{S_IDX}, 1"), A(f"s_mul_i32 s{S_T0}, s{S_T0}, 7"), A(f"s_add_u32 s{S_T0}, s{S_T0}, 6"), A(f"s_lshl_b32 s{S_T0}, s{S_T0}, 6"),
                                  A(f"s_and_b32 s{S_T1}, s{S_IDX}, 1"), A(f"s_lshl_b32 s{S_T1}, s{S_T1}, 1"), A(f"s_add_u32 s{S_T1}, s{S_T1}, s{S_WN}"), A(f"s_lshl_b32 s{S_T1}, s{S_T1}, 4"),
                                  A(f"s_add_u32 s{S_T0}, s{S_T0}, s{S_T1}"), A(f"s_add_u32 s{S_T0}, s{S_T0}, 1536")), "gu")
            self.csa = [(VC2, 0), (VC2, 2048), (VC1, 0), (VC1, 64), (VC3, 0)]
        A(f"v_mov_b32 v{t3}, 0x3f803f80")
        for i in range(4): A(f"v_accvgpr_write_b32 a{A_ONES+i}, v{t3}")
        srd_off(A, S_H, S_WSP, S_WSP+1, WS_H, WS_H + H_BYTES)
        G, p, r, c = t0, t1, t2, t3
        A(f"v_lshrrev_b32 v{G}, 4, v{VLANE}"); A(f"v_and_b32 v{G}, 1, v{G}")
        A(f"v_lshrrev_b32 v{p}, 5, v{VLANE}")
        A(f"v_and_b32 v{r}, 15, v{VLANE}"); A(f"v_lshrrev_b32 v{r}, 2, v{r}")
        A(f"v_and_b32 v{c}, 3, v{VLANE}")
        k_, rb, u1, u2 = t4, t4+1, t4+2, t4+3
        A(f"v_lshlrev_b32 v{k_}, 3, v{p}"); A(f"v_add_u32 v{k_}, v{k_}, v{r}")
        A(f"v_lshrrev_b32 v{rb}, 1, v{r}"); A(f"v_and_b32 v{rb}, 1, v{rb}")
        for blk, kd in enumerate(kinds):
            d = TRA + blk
            if typ == "A" and kd == "gu" and blk > 0:
                A(f"v_xor_b32 v{d}, {blk*32}, v{TRA}"); continue
            if typ == "B" and blk == 1:
                A(f"v_add_u32 v{d}, 4096, v{d-1}"); continue
            if typ == "B" and blk == 3:
                A(f"v_xor_b32 v{d}, 32, v{d-1}"); continue
            if kd == "guh":
                A(f"v_lshrrev_b32 v{u1}, 1, v{c}"); A(f"s_lshl_b32 s{S_T0}, s{S_WN}, 1"); A(f"v_add_u32 v{u1}, s{S_T0}, v{u1}")
                A(f"v_lshlrev_b32 v{u2}, 1, v{G}"); A(f"v_xor_b32 v{u1}, v{u1}, v{u2}"); A(f"v_lshlrev_b32 v{u1}, 4, v{u1}")
                A(f"v_lshlrev_b32 v{u2}, 6, v{k_}"); A(f"v_add_u32 v{u1}, v{u1}, v{u2}")
                A(f"v_lshlrev_b32 v{u2}, 11, v{G}"); A(f"v_add_u32 v{u1}, v{u1}, v{u2}")
                A(f"v_add_u32 v{u1}, {W_BASE + 4*4096}, v{u1}")
            else:
                if kd in ("q", "k"):
                    A(f"s_lshl_b32 s{S_T0}, s{S_WN}, 1"); A(f"v_add_u32 v{u1}, s{S_T0}, v{G}")
                elif typ == "A": A(f"v_mov_b32 v{u1}, 0")
                else:
                    A(f"s_lshl_b32 s{S_T0}, s{S_WN}, 1"); A(f"v_mov_b32 v{u1}, s{S_T0}")
                A(f"v_lshlrev_b32 v{u1}, 1, v{u1}"); A(f"v_lshrrev_b32 v{u2}, 1, v{c}"); A(f"v_add_u32 v{u1}, v{u1}, v{u2}")
                if kd in ("q", "k"): A(f"v_lshlrev_b32 v{u2}, 2, v{rb}")
                else:
                    A(f"v_lshlrev_b32 v{u2}, 1, v{rb}"); A(f"v_lshlrev_b32 v{d}, 2, v{G}"); A(f"v_or_b32 v{u2}, v{u2}, v{d}")
                A(f"v_xor_b32 v{u1}, v{u1}, v{u2}"); A(f"v_lshlrev_b32 v{u1}, 4, v{u1}")
                A(f"v_lshlrev_b32 v{u2}, 7, v{k_}"); A(f"v_add_u32 v{u1}, v{u1}, v{u2}")
                if kd == "q": A(f"v_add_u32 v{u1}, {W_BASE + 4*4096}, v{u1}")
                elif kd == "k": A(f"v_add_u32 v{u1}, {W_BASE}, v{u1}")
                else:
                    if typ == "A":
                        A(f"s_lshl_b32 s{S_T0}, s{S_WN}, 13"); A(f"s_add_u32 s{S_T0}, s{S_T0}, {W_BASE}")
                    else: A(f"s_mov_b32 s{S_T0}, {W_BASE + 2*4096}")
                    A(f"v_lshlrev_b32 v{u2}, 12, v{G}"); A(f"v_add_u32 v{u1}, v{u1}, v{u2}"); A(f"v_add_u32 v{u1}, s{S_T0}, v{u1}")
            A(f"v_and_b32 v{u2}, 1, v{c}"); A(f"v_lshlrev_b32 v{u2}, 3, v{u2}"); A(f"v_add_u32 v{d}, v{u1}, v{u2}")
        A(f"v_lshlrev_b32 v{u1}, 2, v{p}"); A(f"v_add_u32 v{u1}, v{u1}, v{r}"); A(f"v_lshlrev_b32 v{u1}, 7, v{u1}")
        A(f"v_lshlrev_b32 v{u2}, 1, v{G}"); A(f"v_lshrrev_b32 v{VTR}, 1, v{c}"); A(f"v_add_u32 v{u2}, v{u2}, v{VTR}")
        A(f"v_lshlrev_b32 v{VTR}, 2, v{rb}"); A(f"v_xor_b32 v{u2}, v{u2}, v{VTR}"); A(f"v_lshlrev_b32 v{u2}, 4, v{u2}"); A(f"v_add_u32 v{u1}, v{u1}, v{u2}")
        A(f"v_and_b32 v{u2}, 1, v{c}"); A(f"v_lshlrev_b32 v{u2}, 3, v{u2}"); A(f"v_add_u32 v{u1}, v{u1}, v{u2}")
        A(f"v_add_u32 v{VTR}, s{S_LB}, v{u1}"); A(f"v_xor_b32 v{VTR1}, 64, v{VTR}")
        A(f"v_and_b32 v{u1}, 31, v{VLANE}"); A(f"s_lshl_b32 s{S_T0}, s{S_WM}, 6"); A(f"v_add_u32 v{u1}, s{S_T0}, v{u1}")
        A(f"v_lshrrev_b32 v{u2}, 1, v{u1}"); A(f"v_and_b32 v{u2}, 7, v{u2}"); A(f"v_xor_b32 v{u2}, v{u2}, v{p}"); A(f"v_lshlrev_b32 v{u2}, 4, v{u2}")
        A(f"v_lshlrev_b32 v{u1}, 7, v{u1}"); A(f"v_add_u32 v{u1}, v{u1}, v{u2}")
        for kk in range(4): A(f"v_xor_b32 v{XA+kk}, {kk*32}, v{u1}")
        if X1_EARLY: emit_items(A, self.Xg(1))
        SX = WF + 20
        A.wait("strow")
        P0, P1, Q0, Q1, U = VT, VT+2, VT+4, VT+6, VT+8
        for tok, (P, Q) in enumerate(((P0, Q0), (P1, Q1))):
            for i in range(4):
                src = SX + 4*tok + i
                A(f"v_lshlrev_b32 v{U}, 16, v{src}"); A(f"v_and_b32 v{U+1}, 0xffff0000, v{src}")
                if i == 0:
                    A(f"v_pk_mul_f32 v[{Q}:{Q+1}], v[{U}:{U+1}], v[{U}:{U+1}]"); A(f"v_mov_b32 v{P}, v{U}"); A(f"v_mov_b32 v{P+1}, v{U+1}")
                else:
                    A(f"v_pk_add_f32 v[{P}:{P+1}], v[{P}:{P+1}], v[{U}:{U+1}]"); A(f"v_pk_fma_f32 v[{Q}:{Q+1}], v[{U}:{U+1}], v[{U}:{U+1}], v[{Q}:{Q+1}]")
        for r_ in (P0, P1, Q0, Q1): A(f"v_add_f32 v{r_}, v{r_}, v{r_+1}")
        for dpp in ("row_shr:1 row_mask:0xf bank_mask:0xf", "row_shr:2 row_mask:0xf bank_mask:0xf", "row_shr:4 row_mask:0xf bank_mask:0xf", "row_shr:8 row_mask:0xf bank_mask:0xf",
                    "row_bcast:15 row_mask:0xa bank_mask:0xf", "row_bcast:31 row_mask:0xc bank_mask:0xf"):
            for r_ in (P0, P1, Q0, Q1): A(f"v_add_f32_dpp v{r_}, v{r_}, v{r_} {dpp}")
        A(f"v_mul_f32 v{P0}, 0x3b000000, v{P0}"); A(f"v_mul_f32 v{P0+1}, 0x3b000000, v{P1}")
        A(f"v_mul_f32 v{Q0}, 0x3b000000, v{Q0}"); A(f"v_mul_f32 v{Q0+1}, 0x3b000000, v{Q1}")
        for j in range(2):
            A(f"v_fma_f32 v{Q0+j}, -v{P0+j}, v{P0+j}, v{Q0+j}"); A(f"v_max_f32 v{Q0+j}, 0, v{Q0+j}"); A(f"v_add_f32 v{Q0+j}, 0x3727c5ac, v{Q0+j}"); A(f"v_rsq_f32 v{Q0+j}, v{Q0+j}")
        A(f"v_mov_b32 v{U}, s{S_HB}"); A(f"v_add_u32 v{U+1}, {WS_R}, v{U}")
        A(f"s_mov_b64 s[{S_E0}:{S_E0+1}], exec"); A("s_mov_b32 exec_lo, 0"); A("s_mov_b32 exec_hi, 0x80000000")
        A.vm(f"global_store_dwordx2 v{U}, v[{P0}:{P0+1}], s[{S_WSP}:{S_WSP+1}] sc1")
        A.vm(f"global_store_dwordx2 v{U+1}, v[{Q0}:{Q0+1}], s[{S_WSP}:{S_WSP+1}] sc1", id="stst")
        A(f"s_mov_b64 exec, s[{S_E0}:{S_E0+1}]")
        A.stamp(2)
        A("s_waitcnt lgkmcnt(0)")
        A.wait("X0_3", "W0_4")
        A("s_barrier")
        A.stamp(3)
        for s in self.reads(0): A(s)
        for x in self.sig(f"s_cmp_lt_u32 s2, {NZERO}", S_DBG, DBG_INIT, None, "init"): A(x)

    def sig(self, cond, base, off_imm, off_sgpr, tag):
        L = f"K12{self.typ}_sig_{tag}"
        o = []
        if cond: o += [cond, f"s_cbranch_scc0 {L}"]
        o += [f"s_cmp_eq_u32 s{S_WV}, 0", f"s_cbranch_scc0 {L}"]
        if off_sgpr is None: o += [f"v_mov_b32 v{VT+9}, {off_imm}"]
        else: o += [f"s_lshl_b32 s{S_T4}, s{off_sgpr}, 7", f"s_add_u32 s{S_T4}, s{S_T4}, {off_imm}", f"v_mov_b32 v{VT+9}, s{S_T4}"]
        o += [f"v_mov_b32 v{VT+8}, 1", f"s_mov_b64 s[{S_E0}:{S_E0+1}], exec", "s_mov_b64 exec, 1",
              f"!global_atomic_add v{VT+9}, v{VT+8}, s[{base}:{base+1}] sc1", f"s_mov_b64 exec, s[{S_E0}:{S_E0+1}]", f"{L}:"]
        return o

    def spin(self, tag, base, vaddr, expect):
        L = f"K12{self.typ}_spin_{tag}"
        return [f"s_mov_b32 s{S_T3}, 0", f"{L}:", f"!global_load_dword v{VT+10}, v{vaddr}, s[{base}:{base+1}] sc1", "s_waitcnt vmcnt(0)",
                f"v_readfirstlane_b32 s{S_T4}, v{VT+10}", f"s_add_u32 s{S_T3}, s{S_T3}, 1", f"s_cmp_ge_u32 s{S_T3}, {POLL_MAX}", f"s_cbranch_scc1 {L}_x",
                f"s_cmp_ge_u32 s{S_T4}, {expect}", f"s_cbranch_scc1 {L}_x", "s_sleep 2", f"s_branch {L}", f"{L}_x:"]

    def w0(self, tag, code):
        L = f"K12{self.typ}_w0_{tag}"
        return [f"s_cmp_eq_u32 s{S_WV}, 0", f"s_cbranch_scc0 {L}"] + code + [f"{L}:"]

    def pre_barrier(self, h):
        typ = self.typ; T = VT
        if h == 2:
            return self.w0("initchk", [("wait", ["initld"]), f"v_readfirstlane_b32 s{S_T4}, v{T+10}", "s_nop 0", f"s_cmp_ge_u32 s{S_T4}, {NZERO}", f"s_cbranch_scc1 K12{typ}_initok",
                                       f"v_mov_b32 v{T+9}, {DBG_INIT}"] + self.spin("init", S_DBG, T+9, NZERO) + [f"K12{typ}_initok:"])
        if h == H_CNT:
            return self.w0("cntchk", [("wait", ["cntld"]), f"v_readfirstlane_b32 s{S_T4}, v{T+5}", "s_nop 0", f"s_cmp_ge_u32 s{S_T4}, 16", f"s_cbranch_scc1 K12{typ}_stok"]
                           + self.spin("st", S_WSP, T+7, 16) + [f"K12{typ}_stok:",
                           f"v_readfirstlane_b32 s{S_T4}, v{T+6}", "s_nop 0", f"s_cmp_ge_u32 s{S_T4}, 16", f"s_cbranch_scc1 K12{typ}_csok"]
                           + self.spin("cs", S_WSP, T+8, 16) + [f"K12{typ}_csok:"])
        return []

    def oneshot_items(self, add, at):
        typ = self.typ; wsp = f"s[{S_WSP}:{S_WSP+1}]"; dbg = f"s[{S_DBG}:{S_DBG+1}]"
        T = VT
        for s in range(4):
            par = s & 1
            it = [f"s_cmp_eq_u32 s{S_KSC}, {s}", f"s_cbranch_scc0 K12{typ}_nocs{s}"]
            for blk in range(5):
                b = WF + 20*par + 4*blk
                it.append(f"v_mfma_f32_32x32x16_bf16 a[{CS_TMP+16*blk}:{CS_TMP+16*blk+15}], a[{A_ONES}:{A_ONES+3}], v[{b}:{b+3}], 0")
            it.append(f"K12{typ}_nocs{s}:")
            self.fixed.setdefault(s, []).append(it)
        self.fixed.setdefault(K_INITLD, []).append(self.w0("initld", [f"v_mov_b32 v{T+9}, {DBG_INIT}", f"s_mov_b64 s[{S_E0}:{S_E0+1}], exec", "s_mov_b64 exec, 1",
                                      ("vmu", "initld", f"global_load_dword v{T+10}, v{T+9}, {dbg} sc1"), f"s_mov_b64 exec, s[{S_E0}:{S_E0+1}]"]))
        it = [[f"v_accvgpr_read_b32 v{T+blk}, a{CS_TMP+16*blk}"] for blk in range(5)]
        at_ = [f"s_mov_b64 s[{S_E0}:{S_E0+1}], exec", "s_mov_b32 exec_hi, 0"]
        for blk in range(5):
            va, off = self.csa[blk]
            at_.append(("vm", f"csat{blk}", f"global_atomic_add_f32 v{va}, v{T+blk}, {wsp} offset:{off}"))
        at_.append(f"s_mov_b64 exec, s[{S_E0}:{S_E0+1}]")
        add(at(K_CSAT), it + [at_])
        self.fixed.setdefault(K_CNTLD, []).append(self.w0("cntld", [f"s_lshl_b32 s{S_T4}, s{S_T}, 7", f"s_add_u32 s{S_T4}, s{S_T4}, {WS_STCNT}", f"v_mov_b32 v{T+7}, s{S_T4}",
                          f"s_lshl_b32 s{S_T4}, s{S_CG}, 7", f"s_add_u32 s{S_T4}, s{S_T4}, {WS_CSCNT}", f"v_mov_b32 v{T+8}, s{S_T4}",
                          f"s_mov_b64 s[{S_E0}:{S_E0+1}], exec", "s_mov_b64 exec, 1",
                          f"!global_load_dword v{T+5}, v{T+7}, {wsp} sc1", ("vmu", "cntld", f"global_load_dword v{T+6}, v{T+8}, {wsp} sc1"),
                          f"s_mov_b64 exec, s[{S_E0}:{S_E0+1}]"]))
        VM = T; VCS = T + 2; VRB = T + 7
        lds = [[f"v_and_b32 v{T+8}, 31, v{VLANE}", f"s_lshl_b32 s{S_T4}, s{S_T}, 7", f"s_lshl_b32 s{S_T3}, s{S_WM}, 6", f"s_add_u32 s{S_T4}, s{S_T4}, s{S_T3}"],
               [f"v_add_u32 v{T+8}, s{S_T4}, v{T+8}", f"v_lshlrev_b32 v{T+8}, 2, v{T+8}", f"v_add_u32 v{T+9}, {WS_R}, v{T+8}"],
               [("vm", None, f"global_load_dword v{VM}, v{T+8}, {wsp} sc1")], [("vm", None, f"global_load_dword v{VM+1}, v{T+8}, {wsp} offset:128 sc1")],
               [("vm", None, f"global_load_dword v{VR}, v{T+9}, {wsp} sc1")], [("vm", None, f"global_load_dword v{VR+1}, v{T+9}, {wsp} offset:128 sc1")]]
        for blk in range(5):
            va, off = self.csa[blk]
            lds.append([("vm", "csld" if blk == 4 and typ == "A" else None, f"global_load_dword v{VCS+blk}, v{va}, {wsp} offset:{off} sc1")])
        if typ == "B":
            lds.append([f"s_lshl_b32 s{S_T4}, s{S_T}, 7", f"v_add_u32 v{T+8}, s{S_T4}, v{VTID}", f"v_lshlrev_b32 v{T+8}, 2, v{T+8}", f"v_add_u32 v{T+8}, {WS_R}, v{T+8}"])
            lds.append([("vm", "csld", f"global_load_dword v{VRB}, v{T+8}, {wsp} sc1")])
        add(at(2*H_CNT-1, 1), lds)
        if CODE_PF2:
            add(at(CODE_PF2), [[f"s_getpc_b64 s[{S_E2}:{S_E2+1}]", f"K12{typ}_pc2:", f"s_lshr_b32 s{S_T4}, s2, 3", f"s_lshl_b32 s{S_T4}, s{S_T4}, 2", f"s_add_u32 s{S_T4}, s{S_T4}, s{S_WV}"],
                               [f"s_min_u32 s{S_T4}, s{S_T4}, ((K12_end-K12{typ}_pc2)>>10)-1", f"s_lshl_b32 s{S_T4}, s{S_T4}, 10", f"v_add_u32 v{T+9}, s{S_T4}, v{VL16}"],
                               [("vm", None, f"global_load_dwordx4 a[224:227], v{T+9}, s[{S_E2}:{S_E2+1}]")]])
        tt = T + 8; b = T + 10
        items = [[("wait", ["csld"])], [f"v_cmp_gt_u32 vcc, 32, v{VLANE}", "s_nop 1"]]
        for tb in range(2):
            items += [[f"v_cndmask_b32 v{tt}, 0, v{VM+tb}, vcc"], [f"v_cvt_pk_bf16_f32 v{b}, v{tt}, v{tt}"],
                      [f"v_and_b32 v{tt+1}, 0xffff0000, v{b}"], [f"v_sub_f32 v{tt+1}, v{tt}, v{tt+1}"],
                      [f"v_cvt_pk_bf16_f32 v{b+1}, v{tt+1}, 0"],
                      [f"v_accvgpr_write_b32 a{AMF+4*tb}, v{b}"], [f"v_accvgpr_write_b32 a{AMF+4*tb+1}, v{b+1}"],
                      [f"v_accvgpr_write_b32 a{AMF+4*tb+2}, 0"], [f"v_accvgpr_write_b32 a{AMF+4*tb+3}, 0"]]
        for blk in range(5):
            items += [[f"v_cndmask_b32 v{tt}, 0, v{VCS+blk}, vcc"], [f"v_sub_f32 v{tt}, 0, v{tt}"],
                      [f"v_cvt_pk_bf16_f32 v{b+1}, v{tt}, 0"], [f"v_lshlrev_b32 v{tt+1}, 16, v{b+1}"], [f"v_sub_f32 v{tt+1}, v{tt}, v{tt+1}"],
                      [f"v_cvt_pk_bf16_f32 v{b}, v{tt}, v{tt+1}"],
                      [f"v_accvgpr_write_b32 a{ACF+4*blk}, v{b}"], [f"v_accvgpr_write_b32 a{ACF+4*blk+1}, v{b+1}"],
                      [f"v_accvgpr_write_b32 a{ACF+4*blk+2}, 0"], [f"v_accvgpr_write_b32 a{ACF+4*blk+3}, 0"]]
        if typ == "B":
            items += [[f"v_lshlrev_b32 v{tt}, 2, v{VTID}"], [f"v_add_u32 v{tt}, {LDS_R}, v{tt}"],
                      [f"v_cmp_gt_u32 vcc, 128, v{VTID}", f"s_and_saveexec_b64 s[{S_E0}:{S_E0+1}], vcc", f"ds_write_b32 v{tt}, v{VRB}", f"s_mov_b64 exec, s[{S_E0}:{S_E0+1}]"]]
        add(at(K_RANK), items)

    def loop(self):
        A = self.A
        self.loop_start = len(A.l)
        steps = []
        for s in range(32):
            if s == CORR_AT: steps.append(("c", None))
            steps.append(("k", s))
        order_last = [b for b, kd in enumerate(self.kinds) if kd in ("gu","guh")] + [b for b, kd in enumerate(self.kinds) if kd not in ("gu","guh")]
        idx_of = {st: i for i, st in enumerate(steps)}
        def at(s, g=0): return (idx_of[("k", s)], g)
        flex = []; flex2 = []
        def add(pos, items):
            for it in items: flex.append((pos, it))
        def add2(pos, items):
            for it in items: flex2.append((pos, it))
        add(at(0), self.Wg(2))
        if not X1_EARLY: add(at(0), self.Xg(1))
        add(at(1, 1), self.Xg(2))
        for h in range(1, 14): add(at(2*h-1, 1), self.Wg(h+2))
        for sg in range(1, 6): add(at(4*sg-1, 1), self.Xg(sg+2))
        self.fixed = {}
        tagD = {}; tagR = {}; keep = []; placedR = {}
        self.oneshot_items(add, at)
        self.w2_done_R = []
        for i in range(N_IN):
            dd = self.w2.D(i); tagD[id(dd[0])] = i; keep.append(dd)
            add2(at(min(i+W2_START, 31)), dd)
            rr = self.w2.R(i); tagR[id(rr[-1])] = i; keep.append(rr)
            add2(at(min(i+W2_START+DLAG, 31)), rr); self.w2_done_R.append(i)
        flex.sort(key=lambda x: x[0])
        gaps_all = []
        flex2.sort(key=lambda x: x[0])
        queues = [list(flex), list(flex2)]
        for si, st in enumerate(steps):
            gaps = [[] for _ in range(10)]
            head = []
            if st[0] == "k":
                s = st[1]
                M = self.mfmas(s, order_last if s == 31 else None)
                head = ["s_waitcnt lgkmcnt(0)"]
                odd = s & 1
                if odd:
                    h = (s + 1)//2
                    if h <= 15:
                        ids = [f"W{h}_4"] + ([f"X{h//2}_3"] if h % 2 == 0 else [])
                        if h == 2: ids.append("stst")
                        if h == 6: ids.append("csat4")
                        if STAMP and SMODE == "wait":
                            gaps[0] += self.pre_barrier(h) + [("wait", ids), "s_memtime s[98:99]", "s_waitcnt lgkmcnt(0)", "s_barrier", "s_memtime s[100:101]", "s_waitcnt lgkmcnt(0)", "s_sub_u32 s100, s100, s98", f"s_add_u32 s{SB+12}, s{SB+12}, s100"]
                        else:
                            gaps[0] += self.pre_barrier(h) + [("wait", ids), "s_barrier"]
                        if h == 2: gaps[0] += self.sig(None, S_WSP, WS_STCNT, S_T, "st")
                        if h == 6: gaps[0] += self.sig(None, S_WSP, WS_CSCNT, S_CG, "cs")
                    else:
                        gaps[0] += ["s_barrier"]
                nxt = s + 1
                if nxt < 32:
                    rd = self.reads(nxt)
                    g0 = 1 if odd else 0
                    for i, x in enumerate(rd): gaps[g0 + i//2].append(x)
            else:
                M = self.corr(); head = ["s_waitcnt lgkmcnt(0)"]
            if st[0] == "k" and st[1] in self.fixed:
                for it in self.fixed[st[1]]: gaps[9] += it
            for qi in range(2):
                pending = queues[qi]
                gi = 0
                rest = []
                blocked = False
                for (pos, it) in pending:
                    if blocked or pos[0] > si:
                        rest.append((pos, it)); continue
                    if id(it) in tagD and placedR.get(tagD[id(it)] - NSL, -1) == si:
                        rest.append((pos, it)); blocked = True; continue
                    if id(it) in tagD and tagD[id(it)] >= NSL and (tagD[id(it)] - NSL) not in placedR:
                        rest.append((pos, it)); blocked = True; continue
                    g = max(gi, pos[1] if pos[0] == si else 0)
                    need = 2 if (isinstance(it, tuple) and it[0] == "dma") else len(it)
                    while g < 10 and len(gaps[g]) + min(need, CAP) > CAP: g += 1
                    if g >= 10:
                        rest.append((pos, it)); blocked = True; continue
                    if id(it) in tagR: placedR[tagR[id(it)]] = si
                    if isinstance(it, tuple) and it[0] == "dma":
                        gaps[g].append(it[1]); gaps[g].append("__NOP__"); gaps[g].append(it[2]); gi = g + 1
                    else:
                        gaps[g] += it; gi = g
                queues[qi] = rest
            for g in gaps:
                while "__NOP__" in g:
                    i = g.index("__NOP__")
                    cand = [j for j in range(i-1) if isinstance(g[j], str) and g[j].startswith("ds_read")]
                    if cand:
                        x = g.pop(cand[-1]); i -= 1; g[i] = x
                    else: g[i] = "s_nop 0"
            if st[0] == "k" and st[1] % 4 == 0 and st[1] > 0: A.stamp(st[1]//4, "loop")
            for x in head: A(x)
            for i in range(10):
                A(M[i])
                for x in gaps[i]:
                    if x == "__WOSRD__":
                        assert "W15_4" in A.ids
                        A(f"s_lshl_b32 s{S_T0}, s{S_J}, 7"); A(f"s_lshl_b32 s{S_T1}, s{S_WV}, 17"); A(f"s_add_u32 s{S_T0}, s{S_T0}, s{S_T1}")
                        srd_off(A, S_WO, P_WO, P_WO+1, f"s{S_T0}", 512*1024)
                    else: A(x)
        assert not queues[0], queues[0][:3]
        self.leftover = queues[1]
        for (pos, it) in self.leftover:
            if id(it) in tagD: A("s_waitcnt lgkmcnt(0)")
            if it == ["__WOSRD__"]:
                A(f"s_lshl_b32 s{S_T0}, s{S_J}, 7"); A(f"s_lshl_b32 s{S_T1}, s{S_WV}, 17"); A(f"s_add_u32 s{S_T0}, s{S_T0}, s{S_T1}")
                srd_off(A, S_WO, P_WO, P_WO+1, f"s{S_T0}", 512*1024)
            else: emit_items(A, [it])
        self.nleft = len(self.leftover)
        txt = A.l
        for i in range(N_IN - NSL):
            rd = [n for n, x in enumerate(txt) if n > self.loop_start and "ds_read_b64_tr_b16 a[%d:" % (8*i+6) in x]
            if not rd: continue
            pos_r = rd[-1]; pos_d = A.pos[f"w2_{i+NSL}_0"]
            assert pos_d > pos_r and any("lgkmcnt(0)" in x for x in txt[pos_r:pos_d]), ("no lgkm wait", i)

    def flag_store(self, slot_imm, FA, ONE):
        A = self.A
        FA, ONE = VT+4, VT+5
        A(f"v_mov_b32 v{ONE}, 1")
        A(f"s_lshl_b32 s{S_T0}, s{S_T}, 1"); A(f"s_add_u32 s{S_T0}, s{S_T0}, s{S_WM}"); A(f"s_lshl_b32 s{S_T0}, s{S_T0}, 2")
        A(f"s_lshr_b32 s{S_T1}, s{S_IDX}, 1"); A(f"s_add_u32 s{S_T0}, s{S_T0}, s{S_T1}"); A(f"s_lshl_b32 s{S_T0}, s{S_T0}, 4")
        A(f"s_lshl_b32 s{S_T1}, s{S_I1}, 1"); A(f"s_add_u32 s{S_T0}, s{S_T0}, s{S_T1}"); A(f"s_add_u32 s{S_T0}, s{S_T0}, s{S_WN}")
        A(f"s_add_u32 s{S_T0}, s{S_T0}, {slot_imm}"); A(f"s_lshl_b32 s{S_T0}, s{S_T0}, 2"); A(f"s_add_u32 s{S_T0}, s{S_T0}, {WS_FLAG}")
        A(f"v_mov_b32 v{FA}, s{S_T0}")
        A(f"s_mov_b64 s[{S_E0}:{S_E0+1}], exec"); A("s_mov_b64 exec, 1")
        A.vm(f"global_store_dword v{FA}, v{ONE}, s[{S_WSP}:{S_WSP+1}] sc1")
        A(f"s_mov_b64 exec, s[{S_E0}:{S_E0+1}]")

    def transition(self):
        A, typ, kinds = self.A, self.typ, self.kinds
        w2 = self.w2
        tt = VT
        state = {"D": N_IN, "R": N_IN}
        A.stamp(1, "tr")
        A("s_waitcnt lgkmcnt(0)")
        A(f"s_mul_i32 s{S_T0}, s{S_WV}, {NPOST*2048}"); A(f"s_add_u32 s{S_T0}, s{S_T0}, {W2POST}")
        A(f"s_sub_u32 s{S_T1}, s{S_T0}, s{S_LB}"); A(f"s_mov_b32 s{S_LB}, s{S_T0}")
        A(f"v_add_u32 v{VTR}, s{S_T1}, v{VTR}"); A(f"v_xor_b32 v{VTR1}, 64, v{VTR}")
        A(f"s_lshl_b32 s{S_T0}, s{S_J}, 7"); A(f"s_lshl_b32 s{S_T1}, s{S_WV}, 17"); A(f"s_add_u32 s{S_T0}, s{S_T0}, s{S_T1}")
        srd_off(A, S_WO, P_WO, P_WO+1, f"s{S_T0}", 512*1024)
        def bgD(n=1):
            for _ in range(n):
                i = state["D"]
                if i >= 36 or i - state["R"] >= NPOST: return
                emit_items(A, w2.D(i)); state["D"] += 1
        def bgR(n=1):
            for _ in range(n):
                i = state["R"]
                if i >= state["D"]: return
                if i >= 32 and not state.get("vfree"): return
                emit_items(A, w2.R(i)); state["R"] += 1
        def bgD_safe(n=1):
            A("s_waitcnt lgkmcnt(0)"); bgD(n)
        A(f"s_lshl_b32 s{S_T0}, s{S_T}, 1"); A(f"s_add_u32 s{S_T0}, s{S_T0}, s{S_WM}"); A(f"s_lshl_b32 s{S_T0}, s{S_T0}, 2")
        A(f"s_lshr_b32 s{S_T1}, s{S_IDX}, 1"); A(f"s_add_u32 s{S_T0}, s{S_T0}, s{S_T1}"); A(f"s_mul_i32 s{S_HB}, s{S_T0}, {36*2048}")
        A(f"s_and_b32 s{S_I1}, s{S_IDX}, 1")
        I1 = S_I1
        R2 = XF
        for tb in range(2):
            A(f"v_mul_f32 v{R2+2*tb}, v{VR+tb}, v{VR+tb}"); A(f"v_mul_f32 v{R2+2*tb+1}, v{VR+tb}, v{VR+tb}")
        PK = WF
        nst = 0
        gublks = [b for b, kd in enumerate(kinds) if kd in ("gu", "guh")]
        lasth = None
        for blk in gublks:
            kd = kinds[blk]
            if typ == "A":
                if blk == 0:
                    A(f"s_lshl_b32 s{S_T2}, s{I1}, 1"); A(f"s_add_u32 s{S_T2}, s{S_T2}, s{S_WN}"); A(f"s_lshl_b32 s{S_T2}, s{S_T2}, 13"); A(f"s_add_u32 s{S_T2}, s{S_T2}, s{S_HB}")
                else: A(f"s_add_u32 s{S_T2}, s{S_T2}, 2048")
            elif kd == "gu":
                if blk == 2:
                    A(f"s_lshl_b32 s{S_T2}, s{I1}, 2"); A(f"s_lshl_b32 s{S_T3}, s{S_WN}, 1"); A(f"s_add_u32 s{S_T2}, s{S_T2}, s{S_T3}"); A(f"s_add_u32 s{S_T2}, s{S_T2}, 16")
                    A(f"s_lshl_b32 s{S_T2}, s{S_T2}, 11"); A(f"s_add_u32 s{S_T2}, s{S_T2}, s{S_HB}")
                else: A(f"s_add_u32 s{S_T2}, s{S_T2}, 2048")
            else:
                A(f"s_lshl_b32 s{S_T2}, s{I1}, 1"); A(f"s_add_u32 s{S_T2}, s{S_T2}, s{S_WN}"); A(f"s_add_u32 s{S_T2}, s{S_T2}, 24")
                A(f"s_lshl_b32 s{S_T2}, s{S_T2}, 11"); A(f"s_add_u32 s{S_T2}, s{S_T2}, s{S_HB}")
            for tb in range(2):
                a = acc(blk, tb); pk = PK + 4*(nst % 4); nst += 1
                for i in range(4): A(f"v_pk_mul_f32 v[{a+2*i}:{a+2*i+1}], v[{a+2*i}:{a+2*i+1}], v[{a+8+2*i}:{a+8+2*i+1}]")
                for i in range(4): A(f"v_pk_mul_f32 v[{a+2*i}:{a+2*i+1}], v[{a+2*i}:{a+2*i+1}], v[{R2+2*tb}:{R2+2*tb+1}]")
                for i in range(4): A(f"v_cvt_pk_bf16_f32 v{pk+i}, v{a+2*i}, v{a+2*i+1}")
                lasth = f"hs_{blk}_{tb}"
                A.vm(f"buffer_store_dwordx4 v[{pk}:{pk+3}], v{VL16}, s[{S_H}:{S_H+3}], s{S_T2} offen offset:{tb*1024} sc1", id=lasth)
        assert (not LATE_R) or 36 - N_IN <= NPOST
        A.stamp(5); A.stamp(2, "tr")
        FA, ONE = VT+4, VT+5
        A(f"s_mov_b32 s{S_C6}, 0x358637bd"); A(f"s_mov_b32 s{S_C6+1}, 0x358637bd")
        C6 = f"s[{S_C6}:{S_C6+1}]"
        if typ == "A":
            A(f"s_lshl_b32 s{S_T2}, s{I1}, 2"); A(f"s_lshl_b32 s{S_T3}, s{S_WN}, 1"); A(f"s_add_u32 s{S_T2}, s{S_T2}, s{S_T3}"); A(f"s_add_u32 s{S_T2}, s{S_T2}, 28")
            A(f"s_lshl_b32 s{S_T2}, s{S_T2}, 11"); A(f"s_add_u32 s{S_T4}, s{S_T2}, s{S_HB}"); A(f"s_add_u32 s{S_XO}, s{S_T4}, 2048")
            RP = XF + 4; RLP = XF + 6
            for tb in range(2):
                a = acc(4, tb)
                A(f"v_mov_b32 v{RP}, v{VR+tb}"); A(f"v_mov_b32 v{RP+1}, v{VR+tb}")
                A(f"v_mul_f32 v{RLP}, 0x3fb8aa3b, v{VR+tb}"); A(f"v_mul_f32 v{RLP+1}, 0x3fb8aa3b, v{VR+tb}")
                for i in range(0, 16, 4):
                    for j in (0, 2): A(f"v_pk_mul_f32 v[{tt+j}:{tt+j+1}], v[{a+i+j}:{a+i+j+1}], v[{RLP}:{RLP+1}]")
                    for j in (0, 2): A(f"v_pk_fma_f32 v[{a+i+j}:{a+i+j+1}], v[{a+i+j}:{a+i+j+1}], v[{RP}:{RP+1}], {C6}")
                    for j in range(4): A(f"v_exp_f32_e64 v{tt+j}, v{tt+j} clamp")
                    for j in range(4): A(f"v_max_f32 v{a+i+j}, s{S_C6}, v{a+i+j}")
                    for j in (0, 2): A(f"v_pk_add_f32 v[{a+i+j}:{a+i+j+1}], v[{a+i+j}:{a+i+j+1}], v[{tt+j}:{tt+j+1}]")
                    if PHI_D: bgD(1)
                if tb == FLAG_TB and FLAG_TB == 0:
                    A.stamp(3, "tr"); A.wait(lasth); A.stamp(4, "tr"); self.flag_store(0, FA, ONE)
                    if LATE_R == 1: bgD(36 - N_IN)
                for hs in range(2):
                    pk = PK + 4*(nst % 4); nst += 1
                    for i in range(4): A(f"v_cvt_pk_bf16_f32 v{pk+i}, v{a+8*hs+2*i}, v{a+8*hs+2*i+1}")
                    A.vm(f"buffer_store_dwordx4 v[{pk}:{pk+3}], v{VL16}, s[{S_H}:{S_H+3}], s{S_XO if hs else S_T4} offen offset:{tb*1024} sc1", id=f"pq_{tb}_{hs}")
            if FLAG_TB == 1:
                A.stamp(3, "tr"); A.wait(lasth); A.stamp(4, "tr"); self.flag_store(0, FA, ONE)
            bgD(11)
            state["vfree"] = True
            A.stamp(5, "tr")
        else:
            RR = WF; RL = WF + 16; TK = WF + 32; TV = VT + 6
            ONES = XF + 4
            for i in range(4): A(f"v_mov_b32 v{ONES+i}, 0x3f803f80")
            A(f"v_lshrrev_b32 v{tt}, 5, v{VLANE}"); A(f"v_lshlrev_b32 v{tt}, 4, v{tt}")
            A(f"s_lshl_b32 s{S_T0}, s{S_WM}, 8"); A(f"s_add_u32 s{S_T0}, s{S_T0}, {LDS_R}"); A(f"v_add_u32 v{XF+9}, s{S_T0}, v{tt}")
            D2, DZ = acc(2,0), acc(2,1)
            for tb in range(2):
                for q4 in range(4): A(f"ds_read_b128 v[{RR+4*q4}:{RR+4*q4+3}], v{XF+9} offset:{tb*128 + q4*32}")
                A("s_waitcnt lgkmcnt(0)")
                A(f"s_mov_b32 s{S_T0}, 0x3fb8aa3b"); A(f"s_mov_b32 s{S_T1}, 0x3fb8aa3b")
                for i in range(8): A(f"v_pk_mul_f32 v[{RL+2*i}:{RL+2*i+1}], v[{RR+2*i}:{RR+2*i+1}], s[{S_T0}:{S_T1}]")
                a = acc(0, tb); av = acc(1, tb)
                for i in range(0, 16, 4):
                    for j in (0, 2): A(f"v_pk_mul_f32 v[{tt+j}:{tt+j+1}], v[{a+i+j}:{a+i+j+1}], v[{RL+i+j}:{RL+i+j+1}]")
                    for j in (0, 2): A(f"v_pk_fma_f32 v[{a+i+j}:{a+i+j+1}], v[{a+i+j}:{a+i+j+1}], v[{RR+i+j}:{RR+i+j+1}], {C6}")
                    for j in range(4): A(f"v_exp_f32_e64 v{tt+j}, v{tt+j} clamp")
                    for j in range(4): A(f"v_max_f32 v{a+i+j}, s{S_C6}, v{a+i+j}")
                    for j in (0, 2): A(f"v_pk_add_f32 v[{a+i+j}:{a+i+j+1}], v[{a+i+j}:{a+i+j+1}], v[{tt+j}:{tt+j+1}]")
                    if PHI_D: bgD(1)
                for i in range(8): A(f"v_pk_mul_f32 v[{av+2*i}:{av+2*i+1}], v[{av+2*i}:{av+2*i+1}], v[{RR+2*i}:{RR+2*i+1}]")
                for i in range(8): A(f"v_cvt_pk_bf16_f32 v{TK+i}, v{a+2*i}, v{a+2*i+1}")
                for i in range(8): A(f"v_cvt_pk_bf16_f32 v{TV+i}, v{av+2*i}, v{av+2*i+1}")
                A("s_nop 1")
                for f in range(2):
                    c = "0" if (tb == 0 and f == 0) else None
                    A(f"v_mfma_f32_32x32x16_bf16 v[{D2}:{D2+15}], v[{TK+4*f}:{TK+4*f+3}], v[{TV+4*f}:{TV+4*f+3}], {c or f'v[{D2}:{D2+15}]'}")
                    A(f"v_mfma_f32_32x32x16_bf16 v[{DZ}:{DZ+15}], v[{TK+4*f}:{TK+4*f+3}], v[{ONES}:{ONES+3}], {c or f'v[{DZ}:{DZ+15}]'}")
                if tb == FLAG_TB:
                    A.stamp(3, "tr"); A.wait(lasth); A.stamp(4, "tr"); self.flag_store(4, FA, ONE)
                    if LATE_R == 1 and B_EARLY_D: bgD(36 - N_IN)
            if PHI_D: bgD(3)
            A(f"v_and_b32 v{tt}, 31, v{VLANE}"); A(f"v_cmp_gt_u32 vcc, 16, v{tt}")
            A(f"s_lshl_b32 s{S_T0}, s{S_WM}, 13"); A(f"s_lshl_b32 s{S_T1}, s{S_WN}, 12"); A(f"s_add_u32 s{S_T0}, s{S_T0}, s{S_T1}"); A(f"s_add_u32 s{S_T0}, s{S_T0}, {LDS_KV}")
            A(f"v_lshlrev_b32 v{tt}, 2, v{VLANE}"); A(f"v_add_u32 v{tt}, s{S_T0}, v{tt}")
            A("s_nop 7"); A("s_nop 3")
            for r_ in range(16):
                if r_ < 8: A(f"v_cndmask_b32 v{D2+r_}, v{DZ+r_}, v{D2+r_}, vcc")
                else: A(f"v_cndmask_b32 v{D2+r_}, v{D2+r_}, v{DZ+r_}, vcc")
            for r_ in range(16): A(f"ds_write_b32 v{tt}, v{D2+r_} offset:{r_*256}")
            A("s_waitcnt lgkmcnt(0)"); A("s_barrier")
            A(f"s_lshr_b32 s{S_T0}, s{S_WV}, 1"); A(f"s_lshl_b32 s{S_T0}, s{S_T0}, 12"); A(f"s_add_u32 s{S_T0}, s{S_T0}, {LDS_KV}")
            A(f"s_and_b32 s{S_T2}, s{S_WV}, 1")
            A(f"s_mul_i32 s{S_T3}, s{S_T2}, {8*256}"); A(f"s_add_u32 s{S_T0}, s{S_T0}, s{S_T3}")
            A(f"s_lshl_b32 s{S_T3}, s{S_T2}, 6")
            A(f"s_lshl_b32 s{S_T1}, s{S_IDX}, 2"); A(f"s_add_u32 s{S_T1}, s{S_T1}, s{S_WV}")
            A(f"s_mul_i32 s{S_T1}, s{S_T1}, {KV_HEAD}"); A(f"s_add_u32 s{S_T1}, s{S_T1}, {WS_KV}")
            A(f"v_and_b32 v{tt}, 7, v{VLANE}"); A(f"v_lshlrev_b32 v{tt}, 8, v{tt}"); A(f"v_add_u32 v{tt}, s{S_T0}, v{tt}")
            A(f"v_lshrrev_b32 v{tt+1}, 3, v{VLANE}"); A(f"v_lshlrev_b32 v{tt+1}, 2, v{tt+1}")
            A(f"v_add_u32 v{tt+2}, v{tt}, v{tt+1}"); A(f"v_add_u32 v{tt+2}, s{S_T3}, v{tt+2}")
            B0 = ACC
            for n in range(4):
                off = (32*(n>>1) + 8*(n&1))*4
                A(f"ds_read_b32 v{B0+2*n}, v{tt+2} offset:{off}"); A(f"ds_read_b32 v{B0+2*n+1}, v{tt+2} offset:{off+8192}")
            A(f"s_sub_u32 s{S_T3}, 64, s{S_T3}")
            A(f"v_lshlrev_b32 v{tt+3}, 5, v{tt+1}"); A(f"v_add_u32 v{tt+3}, v{tt+3}, v{tt}"); A(f"v_add_u32 v{tt+3}, s{S_T3}, v{tt+3}")
            A(f"v_cmp_gt_u32 vcc, 16, v{VLANE}"); A(f"s_and_saveexec_b64 s[{S_E0}:{S_E0+1}], vcc")
            A(f"ds_read_b32 v{B0+8}, v{tt+3}"); A(f"ds_read_b32 v{B0+9}, v{tt+3} offset:8192")
            A(f"s_mov_b64 exec, s[{S_E0}:{S_E0+1}]")
            A(f"v_lshlrev_b32 v{tt+2}, 2, v{VLANE}"); A(f"v_add_u32 v{tt+2}, s{S_T1}, v{tt+2}")
            A("s_waitcnt lgkmcnt(0)")
            for n in range(4):
                A(f"v_add_f32 v{B0+2*n}, v{B0+2*n}, v{B0+2*n+1}")
                A.vm(f"global_atomic_add_f32 v{tt+2}, v{B0+2*n}, s[{S_WSP}:{S_WSP+1}] offset:{n*256}")
            A(f"v_add_f32 v{B0+8}, v{B0+8}, v{B0+9}")
            A(f"s_and_saveexec_b64 s[{S_E0}:{S_E0+1}], vcc")
            A.vm(f"global_atomic_add_f32 v{tt+2}, v{B0+8}, s[{S_WSP}:{S_WSP+1}] offset:1024", id="kvat")
            A(f"s_mov_b64 exec, s[{S_E0}:{S_E0+1}]")
            bgD(11)
            state["vfree"] = True
            A.stamp(5, "tr")
        A.stamp(6); A.stamp(6, "tr")
        if not LATE_R:
            while state["R"] < 36:
                bgR(3); bgD_safe(3)
            A("s_waitcnt lgkmcnt(0)")

class G2:
    ACC2 = 0; HB = 64; NH = 32; W2V = 192
    def __init__(self, A): self.A = A; self.w2 = W2(A)
    def poll(self, label, vaddr, nl, expect=None, novm=False):
        A = self.A; T = VT
        A(f"s_mov_b32 s{S_T3}, 0")
        A(f"s_mov_b64 s[{S_E0}:{S_E0+1}], exec"); A(f"s_mov_b64 exec, {(1<<nl)-1}")
        A.label(label)
        if novm: A.l.append(f"  global_load_dword v{T+9}, v{vaddr}, s[{S_WSP}:{S_WSP+1}] sc1")
        else: A.vm(f"global_load_dword v{T+9}, v{vaddr}, s[{S_WSP}:{S_WSP+1}] sc1")
        A("s_waitcnt vmcnt(0)")
        if expect is None: A(f"v_cmp_ne_u32 vcc, 0, v{T+9}")
        else: A(f"v_cmp_le_u32 vcc, {expect}, v{T+9}")
        A(f"s_add_u32 s{S_T3}, s{S_T3}, 1")
        A(f"s_cmp_ge_u32 s{S_T3}, {POLL_MAX}"); A(f"s_cbranch_scc1 {label}_x")
        A(f"s_cmp_eq_u64 vcc, exec"); A(f"s_cbranch_scc1 {label}_x")
        A("s_sleep 1"); A(f"s_branch {label}")
        A.label(label + "_x")
        A(f"s_mov_b64 exec, s[{S_E0}:{S_E0+1}]")
    def check(self, label, vreg, nl, expect=None):
        pass
    def body(self):
        A = self.A; T = VT; VL = VLANE
        ACC2 = 0; HB = 64; NH = 16; KVR0 = 128
        A.reset_vm()
        VFL, VKV, VCN = T+10, T+11, T+12
        VF1, VF2 = T+8, T+9
        srd(A, S_O, P_O, P_O+1, 2048*1024)
        srd(A, S_XX, P_X, P_X+1, 2048*1024)
        A(f"s_lshl_b32 s{S_HO}, s{S_TAU}, 2"); A(f"s_add_u32 s{S_HO}, s{S_HO}, s{S_WV}")
        A(f"s_lshl_b32 s{S_T0}, s{S_HO}, 6"); A(f"s_add_u32 s{S_T0}, s{S_T0}, {WS_FLAG}")
        A(f"v_lshlrev_b32 v{VFL}, 2, v{VL}"); A(f"v_add_u32 v{VFL}, s{S_T0}, v{VFL}")
        A(f"s_mul_i32 s{S_HO}, s{S_HO}, {36*2048}")
        A(f"s_add_u32 s{S_T4}, s{S_HO}, {56*1024}")
        A(f"s_mov_b32 s{S_HBASE}, s{S_HO}"); A(f"s_lshl_b32 s{S_HR}, s{S_RHO}, 11")
        A(f"v_and_b32 v{T}, 31, v{VL}"); A(f"v_lshrrev_b32 v{T+1}, 5, v{VL}")
        A(f"v_lshlrev_b32 v{T+2}, 4, v{T+1}"); A(f"v_add_u32 v{T+2}, v{T+2}, v{T}"); A(f"v_subrev_u32 v{T+2}, 16, v{T+2}"); A(f"v_lshlrev_b32 v{T+2}, 5, v{T+2}")
        A(f"v_lshlrev_b32 v{T+3}, 5, v{T+1}"); A(f"v_add_u32 v{T+3}, 1024, v{T+3}")
        A(f"v_cmp_gt_u32 vcc, 16, v{T}"); A("s_nop 1"); A(f"v_cndmask_b32 v{T+2}, v{T+2}, v{T+3}, vcc")
        A(f"s_lshl_b32 s{S_T0}, s{S_WV}, 3"); A(f"s_mul_i32 s{S_T0}, s{S_T0}, {KV_HEAD}"); A(f"s_add_u32 s{S_T0}, s{S_T0}, {WS_KV}")
        A(f"v_add_u32 v{VKV}, s{S_T0}, v{T+2}")
        A(f"s_lshl_b32 s{S_T0}, s{S_WV}, 9"); A(f"s_add_u32 s{S_T0}, s{S_T0}, {WS_KVCNT}")
        A(f"v_lshlrev_b32 v{VCN}, 6, v{VL}"); A(f"v_add_u32 v{VCN}, s{S_T0}, v{VCN}")
        A("s_barrier")
        A("s_waitcnt vmcnt(0)")
        A(f"s_cmp_ge_u32 s{S_CP}, 2"); A("s_cbranch_scc1 K12_sigB")
        A(f"s_lshl_b32 s{S_T0}, s{S_T}, 1"); A(f"s_add_u32 s{S_T0}, s{S_T0}, s{S_WM}"); A(f"s_lshl_b32 s{S_T0}, s{S_T0}, 2")
        A(f"s_lshr_b32 s{S_T1}, s{S_IDX}, 1"); A(f"s_add_u32 s{S_T0}, s{S_T0}, s{S_T1}"); A(f"s_lshl_b32 s{S_T0}, s{S_T0}, 4")
        A(f"s_lshl_b32 s{S_T1}, s{S_I1}, 1"); A(f"s_add_u32 s{S_T0}, s{S_T0}, s{S_T1}"); A(f"s_add_u32 s{S_T0}, s{S_T0}, s{S_WN}")
        A(f"s_add_u32 s{S_T0}, s{S_T0}, 8"); A(f"s_lshl_b32 s{S_T0}, s{S_T0}, 2"); A(f"s_add_u32 s{S_T0}, s{S_T0}, {WS_FLAG}")
        A(f"v_mov_b32 v{T+4}, s{S_T0}"); A(f"v_mov_b32 v{T+5}, 1")
        A(f"s_mov_b64 s[{S_E0}:{S_E0+1}], exec"); A("s_mov_b64 exec, 1")
        A(f"!global_store_dword v{T+4}, v{T+5}, s[{S_WSP}:{S_WSP+1}] sc1")
        A(f"s_mov_b64 exec, s[{S_E0}:{S_E0+1}]"); A("s_branch K12_sigX")
        A("K12_sigB:")
        A(f"s_lshl_b32 s{S_T0}, s{S_IDX}, 2"); A(f"s_add_u32 s{S_T0}, s{S_T0}, s{S_WV}"); A(f"s_lshl_b32 s{S_T0}, s{S_T0}, 6"); A(f"s_add_u32 s{S_T0}, s{S_T0}, {WS_KVCNT}")
        A(f"v_mov_b32 v{T+4}, s{S_T0}"); A(f"v_mov_b32 v{T+5}, 1")
        A(f"s_mov_b64 s[{S_E0}:{S_E0+1}], exec"); A("s_mov_b64 exec, 1")
        A(f"!global_atomic_add v{T+4}, v{T+5}, s[{S_WSP}:{S_WSP+1}] sc1")
        A(f"s_mov_b64 exec, s[{S_E0}:{S_E0+1}]")
        A("K12_sigX:")
        A.stamp(7); A.stamp(7, "tr")
        self.poll("K12_pollH", VFL, 8)
        A.stamp(8, "tr")
        A.stamp(8); A.stamp(1, "g2")
        hstate = {"off": 0}
        def h_items(f):
            o = []
            hb = HB + 4*(f % NH)
            if f % 2 == 0: o.append(f"s_add_u32 s{S_HO}, s{S_HBASE}, s{S_HR}")
            o.append(("vm", f"h{f}", f"buffer_load_dwordx4 v[{hb}:{hb+3}], v{VL16}, s[{S_H}:{S_H+3}], s{S_HO} offen offset:{(f%2)*1024} sc1"))
            if f % 2 == 1 and f < 55:
                o += [f"s_add_u32 s{S_HR}, s{S_HR}, 2048", f"s_cmp_eq_u32 s{S_HR}, {28*2048}", f"s_cselect_b32 s{S_HR}, 0, s{S_HR}"]
            return o
        def pq_items(g):
            o = []
            if g % 4 == 0 and g > 0: o.append(f"s_add_u32 s{S_T4}, s{S_T4}, 4096")
            o.append(("vm", f"pq{g}", f"buffer_load_dwordx4 a[{4*g}:{4*g+3}], v{VL16}, s[{S_H}:{S_H+3}], s{S_T4} offen offset:{(g%4)*1024} sc1"))
            return o
        def kv_items(h):
            b = KVR0 + 8*h
            return [("vm", None, f"global_load_dwordx4 v[{b}:{b+3}], v{VKV}, s[{S_WSP}:{S_WSP+1}] sc1"),
                    ("vm", f"kv{h}", f"global_load_dwordx4 v[{b+4}:{b+7}], v{VKV}, s[{S_WSP}:{S_WSP+1}] offset:16 sc1"),
                    f"v_add_u32 v{VKV}, {KV_HEAD}, v{VKV}"]
        AHEAD = G2_AHEAD
        KVB = [KVR0 + 8*h for h in range(8)]
        DO = [224 - 32, 224 - 16]
        DO = [T - 16 - 16 + 0, 0]
        DO = [208, 224]
        DO = [HB + 32, HB + 48]
        OF = [T, T+4]
        loads = [("h", f) for f in range(56)]
        for h in range(8): loads += [("kv", h), ("pq", 2*h), ("pq", 2*h+1)]
        CHK = G2_CHK
        li = {"n": 0}
        def issue(n):
            o = []
            for _ in range(n):
                if li["n"] >= len(loads): break
                k, x = loads[li["n"]]; li["n"] += 1
                o.append(h_items(x) if k == "h" else (kv_items(x) if k == "kv" else pq_items(x)))
            return o
        A(f"s_mul_i32 s{S_T0}, s{S_J}, {7*1024}"); A(f"s_add_u32 s{S_T0}, s{S_T0}, s{S_HO}")
        for x in issue(4):
            for y in x: A(y)
        if G2_PF:
            for k in range(7):
                if k == 4: A(f"s_add_u32 s{S_T0}, s{S_T0}, 4096")
                A.vm(f"buffer_load_dwordx4 v[{T}:{T+3}], v{VL16}, s[{S_H}:{S_H+3}], s{S_T0} offen offset:{(k%4)*1024} sc1")
        for x in issue(AHEAD - 4):
            for y in x: A(y)
        A.stamp(2, "g2")
        for i in range(28):
            if LATE_R and i == N_IN: A("s_waitcnt lgkmcnt(0)")
            A.wait(f"h{2*i+1}")
            if i == 1: A.stamp(3, "g2")
            gaps = [[] for _ in range(4)]
            if i == CHK - 5:
                gaps[0] += [f"v_add_u32 v{VFL}, 32, v{VFL}", f"s_mov_b64 s[{S_E0}:{S_E0+1}], exec", "s_mov_b64 exec, 15",
                            ("vm", "fq", f"global_load_dword v{VF1}, v{VFL}, s[{S_WSP}:{S_WSP+1}] sc1"), "s_mov_b64 exec, 255",
                            ("vm", "fkv", f"global_load_dword v{VF2}, v{VCN}, s[{S_WSP}:{S_WSP+1}] sc1"), f"s_mov_b64 exec, s[{S_E0}:{S_E0+1}]"]
            if LATE_R and i >= 2 and N_IN + (i - 2) < 36:
                rr = self.w2.R(N_IN + (i - 2))[1:]
                gaps[0] += rr[0]; gaps[3] += rr[1]
            n = 2
            if li["n"] + n > 56 and i < CHK: n = max(0, 56 - li["n"])
            for k, x in enumerate(issue(n)): gaps[1+k] += x
            mf = []
            for tb in range(2):
                hb = HB + 4*((2*i+tb) % NH)
                for nb in range(2):
                    a = ACC2 + 16*(2*nb+tb)
                    c = "0" if i == 0 else f"v[{a}:{a+15}]"
                    mf.append(f"v_mfma_f32_32x32x16_bf16 v[{a}:{a+15}], {self.w2.frag(i,nb)}, v[{hb}:{hb+3}], {c}")
            for g in range(4):
                A(mf[g])
                for x in gaps[g]: A(x)
            if i == CHK - 1:
                A.stamp(4, "g2")
                A.wait("fkv")
                A(f"s_mov_b64 s[{S_E0}:{S_E0+1}], exec"); A("s_mov_b64 exec, 15")
                A(f"v_cmp_ne_u32 vcc, 0, v{VF1}"); A("s_nop 3"); A("s_cmp_eq_u64 vcc, exec"); A(f"s_mov_b64 exec, s[{S_E0}:{S_E0+1}]")
                A("s_cbranch_scc1 K12_qok")
                self.poll("K12_pollQ", VFL, 4, novm=True)
                A.label("K12_qok")
                A(f"s_mov_b64 s[{S_E0}:{S_E0+1}], exec"); A("s_mov_b64 exec, 255")
                A(f"v_cmp_le_u32 vcc, 16, v{VF2}"); A("s_nop 3"); A("s_cmp_eq_u64 vcc, exec"); A(f"s_mov_b64 exec, s[{S_E0}:{S_E0+1}]")
                A("s_cbranch_scc1 K12_kvok")
                self.poll("K12_pollKV", VCN, 8, expect=16, novm=True)
                A.label("K12_kvok")
                A.stamp(5, "g2")
        A.stamp(6, "g2"); A.stamp(1, "att")
        A(f"v_lshrrev_b32 v{T+8}, 3, v{VTID}"); A(f"v_and_b32 v{T+9}, 7, v{VTID}")
        A(f"s_lshl_b32 s{S_T0}, s{S_TAU}, 16"); A(f"s_lshl_b32 s{S_T2}, s{S_J}, 7"); A(f"s_add_u32 s{S_T0}, s{S_T0}, s{S_T2}")
        VG = VFL
        A(f"v_lshlrev_b32 v{VG}, 10, v{T+8}"); A(f"v_lshlrev_b32 v{VCN}, 4, v{T+9}"); A(f"v_add_u32 v{VG}, v{VG}, v{VCN}")
        A(f"s_add_u32 s{S_T2}, s{S_T0}, {32*1024}")
        XR = HB
        A(f"s_mov_b32 s{S_T1}, 0x358637bd")
        A("s_waitcnt lgkmcnt(0)")
        units = [(h, tb) for h in range(8) for tb in range(2)]
        def stA(u):
            h, tb = units[u]; d = DO[u & 1]
            o = []
            if tb == 0:
                o.append(("wait", [f"kv{h}", f"pq{2*h}"]))
                o += [f"v_cvt_pk_bf16_f32 v{KVB[h]+e}, v{KVR0+8*h+2*e}, v{KVR0+8*h+2*e+1}" for e in range(4)]
                o.append("s_nop 1")
            else: o.append(("wait", [f"pq{2*h+1}"]))
            o.append(f"v_mfma_f32_32x32x16_bf16 v[{d}:{d+15}], v[{KVB[h]}:{KVB[h]+3}], {ar(4*(2*h+tb), 4)}, 0")
            return o
        def stB(u):
            d = DO[u & 1]; o = OF[u & 1]; rc = T + 8
            l = [f"v_add_f32 v{rc}, s{S_T1}, v{d}", f"v_rcp_f32 v{rc}, v{rc}", "s_nop 0"]
            l += [f"v_mul_f32 v{d+8+e}, v{rc}, v{d+8+e}" for e in range(8)]
            l += [f"v_cvt_pk_bf16_f32 v{o+e}, v{d+8+2*e}, v{d+8+2*e+1}" for e in range(4)]
            return l
        def stC(u):
            h, tb = units[u]; o = OF[u & 1]; i = 28 + h
            return [f"v_mfma_f32_32x32x16_bf16 v[{ACC2+16*(2*nb+tb)}:{ACC2+16*(2*nb+tb)+15}], {self.w2.frag(i,nb)}, v[{o}:{o+3}], v[{ACC2+16*(2*nb+tb)}:{ACC2+16*(2*nb+tb)+15}]" for nb in range(2)]
        for x in stA(0): A(x)
        A.stamp(2, "att")
        for x in issue(1):
            for y in x: A(y)
        for x in stA(1): A(x)
        for x in issue(2):
            for y in x: A(y)
        A("s_nop 7"); A("s_nop 3")
        for x in stB(0): A(x)
        xdone = False
        for u in range(16):
            c = stC(u)
            nb_ = stB(u+1) if u + 1 < 16 else []
            if u in (2, 6, 10, 13): A.stamp({2:3, 6:4, 10:5, 13:6}[u], "att")
            A("s_nop 1"); A(c[0])
            for x in nb_[:5]: A(x)
            if u + 2 < 16:
                for x in stA(u+2): A(x)
            iss = issue(2)
            for x in iss:
                for y in x: A(y)
            if not iss and not xdone:
                A.vm(f"buffer_load_dwordx4 v[{XR}:{XR+3}], v{VG}, s[{S_XX}:{S_XX+3}], s{S_T0} offen", id="x0")
                A.vm(f"buffer_load_dwordx4 v[{XR+4}:{XR+7}], v{VG}, s[{S_XX}:{S_XX+3}], s{S_T2} offen", id="x1")
                xdone = True
            for x in nb_[5:10]: A(x)
            A(c[1])
            for x in nb_[10:]: A(x)
        assert xdone and li["n"] == len(loads)
        A.stamp(7, "g2"); A.stamp(7, "att")
        RS = 272; WSZ = 64*RS
        A(f"v_and_b32 v{T}, 31, v{VL}"); A(f"v_mul_u32_u24 v{T}, {RS}, v{T}"); A(f"v_lshrrev_b32 v{T+1}, 5, v{VL}"); A(f"v_lshlrev_b32 v{T+1}, 4, v{T+1}"); A(f"v_add_u32 v{T}, v{T}, v{T+1}")
        A(f"s_mul_i32 s{S_T3}, s{S_WV}, {WSZ}"); A(f"v_add_u32 v{T}, s{S_T3}, v{T}")
        A(f"v_lshrrev_b32 v{T+2}, 3, v{VTID}"); A(f"v_and_b32 v{T+3}, 7, v{VTID}")
        A(f"v_mul_u32_u24 v{T+6}, {RS}, v{T+2}"); A(f"v_lshlrev_b32 v{T+7}, 5, v{T+3}"); A(f"v_add_u32 v{T+6}, v{T+6}, v{T+7}")
        A("s_nop 1")
        for tb in range(2):
            if tb == 1: A("s_nop 7")
            for nb in range(2):
                a = ACC2 + 16*(2*nb+tb)
                for q in range(4):
                    A(f"ds_write_b128 v{T}, v[{a+4*q}:{a+4*q+3}] offset:{tb*32*RS + nb*128 + q*32}")
        A("s_waitcnt lgkmcnt(0)"); A("s_barrier")
        A.stamp(8, "g2"); A.stamp(8, "att")
        for ps in range(2):
            b = 72 + 40*ps
            for w in range(4):
                A(f"ds_read_b128 v[{b+8*w}:{b+8*w+3}], v{T+6} offset:{w*WSZ + ps*32*RS}")
                A(f"ds_read_b128 v[{b+8*w+4}:{b+8*w+7}], v{T+6} offset:{w*WSZ + ps*32*RS + 16}")
        for ps in range(2):
            b = 72 + 40*ps
            A(f"s_waitcnt lgkmcnt({8 if ps == 0 else 0})")
            for e in range(0, 8, 2):
                A(f"v_pk_add_f32 v[{b+e}:{b+e+1}], v[{b+e}:{b+e+1}], v[{b+8+e}:{b+8+e+1}]")
                A(f"v_pk_add_f32 v[{b+16+e}:{b+16+e+1}], v[{b+16+e}:{b+16+e+1}], v[{b+24+e}:{b+24+e+1}]")
            for e in range(0, 8, 2):
                A(f"v_pk_add_f32 v[{b+e}:{b+e+1}], v[{b+e}:{b+e+1}], v[{b+16+e}:{b+16+e+1}]")
            A.wait(f"x{ps}")
            xb = XR + 4*ps
            for e in range(4):
                A(f"v_lshlrev_b32 v{T+8}, 16, v{xb+e}"); A(f"v_and_b32 v{T+9}, 0xffff0000, v{xb+e}")
                A(f"v_pk_add_f32 v[{b+2*e}:{b+2*e+1}], v[{b+2*e}:{b+2*e+1}], v[{T+8}:{T+9}]")
                A(f"v_cvt_pk_bf16_f32 v{b+32+e}, v{b+2*e}, v{b+2*e+1}")
            A.vm(f"buffer_store_dwordx4 v[{b+32}:{b+35}], v{VG}, s[{S_O}:{S_O+3}], s{S_T0 if ps == 0 else S_T2} offen")

def gen_k12():
    A = Prog()
    prologue_common(A)
    A(f"s_cmp_ge_u32 s{S_CP}, 2"); A("s_cbranch_scc1 K12_typeB")
    base_nvm = A.nvm; base_ids = dict(A.ids)
    for typ in ("A", "B"):
        if typ == "B":
            A.label("K12_typeB"); A.nvm = base_nvm; A.ids = dict(base_ids)
        g = G1(A, typ)
        g.prologue()
        if STAMP and SMODE == "wait":
            for c in (1,2,3,4,5,6,7): A(f"s_mov_b32 s{SB+2*c}, 0")
            A(f"s_memtime s[{SB+8}:{SB+9}]"); A("s_waitcnt lgkmcnt(0)")
        A.inloop = True
        g.loop()
        A.inloop = False
        if STAMP and SMODE == "wait":
            A(f"s_memtime s[{SB+10}:{SB+11}]"); A("s_waitcnt lgkmcnt(0)"); A(f"s_sub_u32 s{SB+8}, s{SB+10}, s{SB+8}")
        print(f"type {typ}: leftover W2 items after loop: {g.nleft}", file=sys.stderr)
        A.stamp(4); A.stamp(8, "loop")
        g.transition()
        if typ == "A": A("s_branch K12_g2")
    A.label("K12_g2")
    G2(A).body()
    if STAMP:
        A("s_waitcnt vmcnt(0) lgkmcnt(0)")
        A(f"{STAMP_INS} s[60:61]")
        A("s_waitcnt lgkmcnt(0)")
        A(f"s_lshl_b32 s{S_T0}, s2, 2"); A(f"s_add_u32 s{S_T0}, s{S_T0}, s{S_WV}"); A(f"s_lshl_b32 s{S_T0}, s{S_T0}, 6")
        A(f"s_add_u32 s{S_T0}, s{S_T0}, {WS_STAMP + 65536}")
        A(f"v_mov_b32 v{VT}, s{S_T0}")
        for i in range(9):
            A(f"v_mov_b32 v{VT+1}, s{SB+2*i}")
            A.vm(f"global_store_dword v{VT}, v{VT+1}, s[{S_WSP}:{S_WSP+1}] offset:{4*i}")
        A(f"v_mov_b32 v{VT+1}, s60")
        A.vm(f"global_store_dword v{VT}, v{VT+1}, s[{S_WSP}:{S_WSP+1}] offset:36")
    if STAMP and DBGSTAMP:
        A(f"s_cmp_eq_u32 s{S_WV}, 0"); A("s_cbranch_scc0 K12_end")
        A("s_mov_b64 exec, 1")
        for i in range(9):
            A(f"v_mov_b32 v{VT}, {4*(1+i)}"); A(f"v_mov_b32 v{VT+1}, s{SB+2*i}")
            A.vm(f"global_atomic_umax v{VT}, v{VT+1}, s[{S_DBG}:{S_DBG+1}]")
        A(f"v_mov_b32 v{VT}, 40"); A(f"v_mov_b32 v{VT+1}, s60"); A.vm(f"global_atomic_umax v{VT}, v{VT+1}, s[{S_DBG}:{S_DBG+1}]")
        A(f"s_not_b32 s{S_T0}, s{SB}"); A(f"v_mov_b32 v{VT}, 44"); A(f"v_mov_b32 v{VT+1}, s{S_T0}"); A.vm(f"global_atomic_umax v{VT}, v{VT+1}, s[{S_DBG}:{S_DBG+1}]")
    A.label("K12_end")
    return A.text()

def main(path):
    hdr = open("cdna_kernels/" + NAME + ".s.ref").read().split("; Override")[0]
    n = NAME + "_kernel"
    body = gen_k12()
    out = hdr + "; @launch grid=(256,1,1) block=(256,1,1) lds=163840\n"
    out += '.amdgcn_target "amdgcn-amd-amdhsa--gfx950"\n.text\n'
    out += f""".globl {n}
.p2align 8
.type {n},@function
{n}:
{body}
  s_endpgm
.section .rodata,"a"
.p2align 6
.amdhsa_kernel {n}
  .amdhsa_next_free_vgpr 512
  .amdhsa_next_free_sgpr 102
  .amdhsa_accum_offset 256
  .amdhsa_group_segment_fixed_size 0
  .amdhsa_kernarg_size 80
  .amdhsa_user_sgpr_count 2
  .amdhsa_user_sgpr_kernarg_segment_ptr 1
  .amdhsa_system_sgpr_workgroup_id_x 1
.end_amdhsa_kernel
"""
    open(path, "w").write(out)

if __name__ == "__main__":
    if "--stamp" in sys.argv:
        STAMP = True; sys.argv.remove("--stamp")
    for a in list(sys.argv):
        if a.startswith("--nin="): N_IN = int(a[6:]); sys.argv.remove(a)
        if a.startswith("--smode="): SMODE = a[8:]; sys.argv.remove(a)
        if a.startswith("--ahead="): G2_AHEAD = int(a[8:]); sys.argv.remove(a)
        if a.startswith("--chk="): G2_CHK = int(a[6:]); sys.argv.remove(a)
        if a.startswith("--pf="): G2_PF = int(a[5:]); sys.argv.remove(a)
        if a.startswith("--cpf2="): CODE_PF2 = int(a[7:]); sys.argv.remove(a)
        if a.startswith("--wsh="): WS_H = int(a[6:])*1048576; sys.argv.remove(a)
        if a == "--dbgstamp": DBGSTAMP = 1; sys.argv.remove(a)
        if a.startswith("--w2rot="): W2ROT = int(a[8:]); sys.argv.remove(a)
        if a.startswith("--w2start="): W2_START = int(a[10:]); sys.argv.remove(a)
        if a.startswith("--later="): LATE_R = int(a[8:]); sys.argv.remove(a)
        if a.startswith("--bed="): B_EARLY_D = int(a[6:]); sys.argv.remove(a)
        if a.startswith("--ftb="): FLAG_TB = int(a[6:]); sys.argv.remove(a)
        if a.startswith("--phid="): PHI_D = int(a[7:]); sys.argv.remove(a)
        if a.startswith("--x1e="): X1_EARLY = int(a[6:]); sys.argv.remove(a)
        if a.startswith("--rot="): ROT = int(a[6:]); sys.argv.remove(a)
        if a.startswith("--cap="): CAP = int(a[6:]); sys.argv.remove(a)
    if "--cyc" in sys.argv:
        STAMP = True; STAMP_INS = "s_memtime"; sys.argv.remove("--cyc")
    main(sys.argv[1] if len(sys.argv) > 1 else "cdna_kernels/" + NAME + ".s")
```

```python
import sys

NAME = "parallel_sum__linear_attn_block__glu_gated_bilinear__prompt"
WS_M, WS_R, WS_KV, KV_HEAD = 0, 8192, 32768, 1152
WS_FLAG = WS_KV + 36864
WS_KVCNT = WS_FLAG + 8192
WS_CS = WS_KVCNT + 2048
WS_STCNT = WS_CS + 20480
WS_CSCNT = WS_STCNT + 2048
NZERO = 18
assert WS_CSCNT + 2048 <= WS_KV + NZERO*4096 <= 131072
DBG_INIT = 0
CS_TMP = 140
A_ONES = 220
VC1, VC2, VC3 = 251, 252, 253
WS_H = 131072
H_BYTES = 32*4*36*2048
POLL_MAX = 200000
STAMP = False
STAMP_INS = 's_memrealtime'
WS_STAMP = 1 << 24
SB = 84
CORR_AT = 28
N_IN = 28
CAP = 5
SMODE = 'main'
ROT = 8
PHI_D = 0
K_PT = 0
FLAG_TB = 1
B_EARLY_D = 1
LATE_R = 1
X1_EARLY = 1
W2ROT = 1
DBGSTAMP = 0
CODE_PF2 = 0
G2_AHEAD = 12; G2_CHK = 20; G2_PF = 0
K_INITLD = 1; K_CSAT = 5; K_CNTLD = 17; H_CNT = 11; K_RANK = 25
CODE_KB = 48

class Prog:
    def __init__(self): self.l = []; self.nvm = 0; self.ids = {}; self.pos = {}; self.inloop = False
    def __call__(self, s):
        if s is None: return
        if isinstance(s, tuple):
            if s[0] == "vm":
                self.l.append("  " + s[2]); self.nvm += 1
                if s[1] is not None: self.ids[s[1]] = self.nvm; self.pos[s[1]] = len(self.l)
            elif s[0] == "vmu":
                self.l.append("  " + s[2]); self.ids[s[1]] = self.nvm
            elif s[0] == "wait":
                last = max(self.ids[i] for i in s[1])
                n = self.nvm - last
                assert n <= 63, (s, n)
                if STAMP and SMODE == "wait" and self.inloop:
                    cat = 2 if s[1][0].startswith("w2_") else (1 if s[1][0].startswith("W") else 3)
                    self.l.append(f"  s_memtime s[98:99]"); self.l.append("  s_waitcnt lgkmcnt(0)")
                    self.l.append(f"  s_waitcnt vmcnt({n})")
                    self.l.append(f"  s_memtime s[100:101]"); self.l.append("  s_waitcnt lgkmcnt(0)")
                    self.l.append(f"  s_sub_u32 s100, s100, s98"); self.l.append(f"  s_add_u32 s{SB+2*cat}, s{SB+2*cat}, s100")
                    return
                self.l.append(f"  s_waitcnt vmcnt({n})" + (" " + s[2] if len(s) > 2 and s[2] else ""))
            else: raise ValueError(s)
        elif s.endswith(":"): self.l.append(s)
        elif s.startswith("!"):
            self.l.append("  " + s[1:])
        else:
            assert not ("buffer_" in s or "global_" in s), s
            self.l.append("  " + s)
    def vm(self, text, id=None): self(("vm", id, text))
    def wait(self, *ids): self(("wait", list(ids)))
    def label(self, s): self.l.append(s + ":")
    def text(self): return "\n".join(self.l)
    def stamp(self, i, mode="main"):
        if STAMP and (mode == SMODE or i == 0): self.l.append(f"  {STAMP_INS} s[{SB+2*i}:{SB+2*i+1}]")
    def reset_vm(self):
        self.ids = {}

def vr(b, n=1): return f"v{b}" if n == 1 else f"v[{b}:{b+n-1}]"
def ar(b, n=1): return f"a{b}" if n == 1 else f"a[{b}:{b+n-1}]"
def srd(A, d, lo, hi, size):
    A(f"s_mov_b32 s{d}, s{lo}"); A(f"s_and_b32 s{d+1}, s{hi}, 0xffff"); A(f"s_mov_b32 s{d+2}, {size}"); A(f"s_mov_b32 s{d+3}, 0x20000")
def srd_off(A, d, lo, hi, off, size):
    A(f"s_add_u32 s{d}, s{lo}, {off}"); A(f"s_addc_u32 s{d+1}, s{hi}, 0"); A(f"s_and_b32 s{d+1}, s{d+1}, 0xffff")
    if isinstance(off, int): A(f"s_mov_b32 s{d+2}, {size - off}")
    else: A(f"s_sub_u32 s{d+2}, {size}, {off}")
    A(f"s_mov_b32 s{d+3}, 0x20000")

X_BASE = 0; X_SLOT = 16384
W_BASE = 49152; W_SLOT = 20480; W_NS = 3
W2IN = W_BASE + W_NS*W_SLOT
NSL = 6
LDS_R = W2IN + 4*NSL*2048
LDS_KV = 0
W2_START = 1
W2POST = 69632; NPOST = 11
DLAG = 5

ACC = 0; WF = 160; XF = 200; TRA = 216; XA = 221; VOW = 225; VOX = 230
VR = 234; VLANE = 236; VL16 = 237; VTID = 238; VDM = 239
VT = 240
VTR = 254; VTR1 = 255
AMF = 228; ACF = 236
def acc(blk, tb): return ACC + (blk*2+tb)*16

S_X = 4; S_W = 8; S_H = 28; S_WSP = 32
S_WV = 34; S_WM = 35; S_WN = 36; S_T = 37; S_IDX = 38
S_KW = 39; S_KH = 40; S_R30 = 41; S_R35 = 42; S_RH = 43; S_KX = 44; S_W1K = 45; S_W4K = 46; S_XB = 47
S_WD = 48; S_LB = 52; S_W2O = 53
S_W2B = 74; S_W2R = 75; S_W2T = 76; S_RHO = 77; S_HR = 75; S_HBASE = 74
S_T0 = 54; S_T1 = 55; S_T2 = 56; S_T3 = 57; S_T4 = 58; S_XO = 59
S_E0 = 60; S_E2 = 62
S_P = 64
P_X, P_WQ, P_WO, P_G, P_U, P_D, P_O = 64, 66, 68, 72, 74, 76, 78
S_DBG = 72; S_KSC = 66; S_CG = 67
S_HB = 80; S_I1 = 81; S_CP = 82; S_TAU = 83; S_J = 70; S_HO = 71
S_WO = 8; S_O = 12; S_XX = 16
S_C6 = 20

def w2row(i):
    if i < 16: return ("D", 256, 16*i)
    if i < 24: return ("D", 128, 1024 + 16*(i-16))
    if i < 28: return ("D", 64, 1536 + 16*(i-24))
    return ("O", 128, 16*(i-28))

class W2:
    def __init__(self, A, vdm2=None): self.A = A; self.vdm2 = vdm2
    def frag(self, ks, nb, W2V=192):
        f = ks*2 + nb
        return ar(4*f, 4) if f < 64 else vr(W2V + 4*(f-64), 4)
    def half(self, ks, nb, h, W2V=192):
        f = ks*2 + nb
        return ar(4*f + 2*h, 2) if f < 64 else vr(W2V + 4*(f-64) + 2*h, 2)
    def slot_off(self, i):
        return (i % NSL)*2048 if i < N_IN else ((i - N_IN) % NPOST)*2048
    def D(self, i):
        o = []
        if i < 28: s, so = S_WD, S_W2R
        else:
            s, so = S_WO, S_W2O
            o.append([f"s_mov_b32 s{S_W2O}, {16*(i-28)*1024}"])
        d0 = ("dma", f"s_add_u32 m0, s{S_LB}, {self.slot_off(i)}", ("vm", f"w2_{i}_0", f"buffer_load_dwordx4 v{VDM}, s[{s}:{s+3}], s{so} offen lds"))
        o.append(d0)
        o.append(("dma", f"s_add_u32 m0, s{S_LB}, {self.slot_off(i) + 1024}", ("vm", f"w2_{i}_1", f"buffer_load_dwordx4 v{self.vdm2}, s[{s}:{s+3}], s{so} offen lds")))
        if i < 27:
            o.append([f"s_add_u32 s{S_W2R}, s{S_W2R}, 16384", f"s_cmp_eq_u32 s{S_W2R}, {28*16384}", f"s_cselect_b32 s{S_W2R}, 0, s{S_W2R}"])
        return o
    def R(self, i):
        o = self.slot_off(i)
        r = [[("wait", [f"w2_{i}_1"])]]
        for nb in range(2):
            va = VTR if nb == 0 else VTR1
            r.append([f"ds_read_b64_tr_b16 {self.half(i, nb, 0)}, v{va} offset:{o}", f"ds_read_b64_tr_b16 {self.half(i, nb, 1)}, v{va} offset:{o+1024}"])
        return r

def emit_items(A, items):
    for it in items:
        if isinstance(it, tuple) and it[0] == "dma":
            A(it[1]); A("s_nop 0"); A(it[2])
        else:
            for s in it: A(s)

def prologue_common(A):
    A("s_cmp_ge_u32 s2, 256"); A("s_cbranch_scc1 K12_end")
    A.stamp(0)
    A(f"s_load_dwordx16 s[{S_P}:{S_P+15}], s[0:1], 0")
    A(f"s_load_dwordx2 s[{S_WSP}:{S_WSP+1}], s[0:1], 72")
    A(f"s_getpc_b64 s[{S_E2}:{S_E2+1}]")
    A("K12_pc:")
    A(f"v_and_b32 v{VLANE}, 63, v0")
    A(f"v_lshrrev_b32 v{VT}, 6, v0")
    A(f"v_mov_b32 v{VTID}, v0")
    A(f"v_lshlrev_b32 v{VL16}, 4, v{VLANE}")
    A(f"v_readfirstlane_b32 s{S_WV}, v{VT}")
    A(f"s_and_b32 s{S_T0}, s2, 7"); A(f"s_lshr_b32 s{S_T1}, s2, 3")
    A(f"s_lshl_b32 s{S_T2}, s{S_T1}, 2"); A(f"s_add_u32 s{S_T2}, s{S_T2}, s{S_WV}"); A(f"s_min_u32 s{S_T2}, s{S_T2}, ((K12_end-K12_pc)>>10)-1"); A(f"s_lshl_b32 s{S_T2}, s{S_T2}, 10")
    A(f"v_add_u32 v{VT+4}, s{S_T2}, v{VL16}")
    A.vm(f"global_load_dwordx4 v[{WF+36}:{WF+39}], v{VT+4}, s[{S_E2}:{S_E2+1}]")
    A(f"s_and_b32 s{S_T2}, s{S_T1}, 7"); A(f"s_lshr_b32 s{S_CP}, s{S_T1}, 3")
    A(f"s_lshr_b32 s{S_T}, s{S_T0}, 2"); A(f"s_lshl_b32 s{S_T}, s{S_T}, 3"); A(f"s_add_u32 s{S_T}, s{S_T}, s{S_T2}")
    A(f"s_and_b32 s{S_IDX}, s{S_T0}, 3"); A(f"s_lshl_b32 s{S_IDX}, s{S_IDX}, 1")
    A(f"s_and_b32 s{S_T3}, s{S_CP}, 1"); A(f"s_add_u32 s{S_IDX}, s{S_IDX}, s{S_T3}")
    A(f"s_and_b32 s{S_TAU}, s{S_T1}, 3"); A(f"s_lshl_b32 s{S_T3}, s{S_T0}, 2"); A(f"s_add_u32 s{S_TAU}, s{S_TAU}, s{S_T3}")
    A(f"s_lshr_b32 s{S_T4}, s{S_T1}, 2")
    A(f"s_add_u32 s{S_T0}, s{S_CP}, s{S_T2}"); A(f"s_and_b32 s{S_T0}, s{S_T0}, 3"); A(f"s_lshl_b32 s{S_T0}, s{S_T0}, 1")
    A(f"s_lshr_b32 s{S_T1}, s{S_T2}, 2"); A(f"s_add_u32 s{S_T0}, s{S_T0}, s{S_T1}")
    A(f"s_lshl_b32 s{S_KW}, s{S_T0}, 6")
    A(f"s_lshr_b32 s{S_WM}, s{S_WV}, 1"); A(f"s_and_b32 s{S_WN}, s{S_WV}, 1")
    t0, t1, t3, t4 = VT, VT+1, VT+3, VT+4
    A(f"v_lshrrev_b32 v{t0}, 3, v{VLANE}"); A(f"v_and_b32 v{t1}, 7, v{VLANE}")
    A(f"v_lshrrev_b32 v{t3}, 4, v{VLANE}"); A(f"v_xor_b32 v{t3}, v{t1}, v{t3}"); A(f"v_lshlrev_b32 v{t3}, 4, v{t3}")
    A(f"v_lshlrev_b32 v{t4}, 10, v{t0}"); A(f"v_add_u32 v{VOX}, v{t3}, v{t4}")
    A(f"v_xor_b32 v{VOX+1}, 64, v{VOX}"); A(f"v_add_u32 v{VOX+1}, {8*1024}, v{VOX+1}")
    A(f"v_add_u32 v{VOX+2}, {16*1024}, v{VOX}"); A(f"v_add_u32 v{VOX+3}, {16*1024}, v{VOX+1}")
    A(f"s_lshl_b32 s{S_XB}, s{S_T}, 7"); A(f"s_lshl_b32 s{S_T0}, s{S_WV}, 5"); A(f"s_add_u32 s{S_XB}, s{S_XB}, s{S_T0}"); A(f"s_lshl_b32 s{S_XB}, s{S_XB}, 10")
    A(f"s_lshl_b32 s{S_KX}, s{S_KW}, 1")
    A(f"s_and_b32 s{S_T0}, s{S_WV}, 1"); A(f"s_lshl_b32 s{S_T0}, s{S_T0}, 4"); A(f"s_add_u32 s{S_KH}, s{S_KW}, s{S_T0}")
    A(f"s_lshl_b32 s{S_T0}, s{S_WV}, 3"); A(f"s_add_u32 s{S_KW}, s{S_KW}, s{S_T0}")
    A(f"s_lshl_b32 s{S_W1K}, s{S_WV}, 10"); A(f"s_lshl_b32 s{S_W4K}, s{S_WV}, 12")
    A(f"s_lshr_b32 s{S_T0}, s{S_CP}, 1"); A(f"s_lshl_b32 s{S_T0}, s{S_T0}, 3"); A(f"s_add_u32 s{S_T3}, s{S_T0}, s{S_IDX}")
    A(f"s_lshl_b32 s{S_T0}, s{S_T}, 7"); A(f"s_lshl_b32 s{S_T1}, s{S_T3}, 3"); A(f"s_add_u32 s{S_T0}, s{S_T0}, s{S_T1}"); A(f"s_lshl_b32 s{S_T1}, s{S_WV}, 1"); A(f"s_add_u32 s{S_T2}, s{S_T0}, s{S_T1}")
    A(f"s_lshl_b32 s{S_T0}, s{S_T2}, 10"); A(f"v_add_u32 v{VT+5}, s{S_T0}, v{VL16}")
    A("s_waitcnt lgkmcnt(0)")
    A(f"s_mov_b32 s{S_J}, s{S_T4}")
    A(f"s_cmp_ge_u32 s2, {NZERO}"); A("s_cbranch_scc1 K12_nozero")
    A(f"s_lshl_b32 s{S_T0}, s2, 12"); A(f"s_add_u32 s{S_T0}, s{S_T0}, {WS_KV}")
    A(f"v_lshlrev_b32 v{VT+6}, 4, v{VTID}"); A(f"v_add_u32 v{VT+6}, s{S_T0}, v{VT+6}")
    for i in range(4): A(f"v_mov_b32 v{VT+8+i}, 0")
    A(f"!global_store_dwordx4 v{VT+6}, v[{VT+8}:{VT+11}], s[{S_WSP}:{S_WSP+1}] sc1")
    A("K12_nozero:")
    SX = WF + 20
    A.vm(f"global_load_dwordx4 v[{SX}:{SX+3}], v{VT+5}, s[{P_X}:{P_X+1}]")
    A.vm(f"global_load_dwordx4 v[{SX+4}:{SX+7}], v{VT+5}, s[{P_X}:{P_X+1}] offset:1024", id="strow")
    A(f"s_lshl_b32 s{S_HB}, s{S_T2}, 2")
    A(f"s_mov_b32 s{S_I1}, s{S_T3}")
    srd(A, S_X, P_X, P_X+1, 2048*1024)

class G1:
    def __init__(self, A, typ):
        self.A = A; self.typ = typ; self.w2 = W2(A, 227 if typ == 'A' else 226)
        self.kinds = ["gu","gu","gu","gu","q"] if typ == "A" else ["k","v","gu","gu","guh"]
        if typ == "A": self.strides = [3584,3584,3584,3584,3072]; self.swz = ["g","u","g","u","q"]
        else: self.strides = [3072,3072,3584,3584,3584]; self.swz = ["q","q","g","u","h"]
    def vow(self, rho):
        key = (self.swz[rho], self.strides[rho])
        for r in range(rho + 1):
            if (self.swz[r], self.strides[r]) == key: return VOW + r
    def Wg(self, h):
        o = []
        if h > 0:
            o.append([f"s_add_u32 s{S_KW}, s{S_KW}, 32", f"s_and_b32 s{S_KW}, s{S_KW}, 511"])
            if self.typ == "B": o.append([f"s_add_u32 s{S_KH}, s{S_KH}, 32", f"s_and_b32 s{S_KH}, s{S_KH}, 511"])
        o.append([f"s_mul_i32 s{S_R30}, s{S_KW}, 3072", f"s_mul_i32 s{S_R35}, s{S_KW}, 3584"])
        if self.typ == "B": o.append([f"s_mul_i32 s{S_RH}, s{S_KH}, 3584"])
        for rho in range(5):
            so = S_RH if self.swz[rho] == "h" else (S_R30 if self.strides[rho] == 3072 else S_R35)
            o.append(("dma", f"s_add_u32 m0, s{S_W1K}, {W_BASE + (h % W_NS)*W_SLOT + rho*4096}",
                      ("vm", f"W{h}_{rho}", f"buffer_load_dwordx4 v{self.vow(rho)}, s[{S_W+4*rho}:{S_W+4*rho+3}], s{so} offen lds")))
        return o
    def Xg(self, sg):
        o = []
        if sg > 0: o.append([f"s_add_u32 s{S_KX}, s{S_KX}, 128", f"s_and_b32 s{S_KX}, s{S_KX}, 1023"])
        o.append([f"s_add_u32 s{S_XO}, s{S_XB}, s{S_KX}"])
        for j in range(4):
            o.append(("dma", f"s_add_u32 m0, s{S_W4K}, {X_BASE + (sg % 3)*X_SLOT + j*1024}",
                      ("vm", f"X{sg}_{j}", f"buffer_load_dwordx4 v{VOX+j}, s[{S_X}:{S_X+3}], s{S_XO} offen lds")))
        return o
    def reads(self, s):
        par = s & 1; kk = s & 3; sg = s >> 2; h = s >> 1; second = s & 1
        xo = (sg % 3)*X_SLOT
        o = [f"ds_read_b128 v[{XF+8*par}:{XF+8*par+3}], v{XA+kk} offset:{xo}", f"ds_read_b128 v[{XF+8*par+4}:{XF+8*par+7}], v{XA+kk} offset:{xo+4096}"]
        for blk, kd in enumerate(self.kinds):
            b = WF + 20*par + 4*blk
            if kd == "guh": o1, o2 = (1024 if second else 0), 256
            else: o1, o2 = (2048 if second else 0), 512
            o1 += (h % W_NS)*W_SLOT
            o.append(f"ds_read_b64_tr_b16 v[{b}:{b+1}], v{TRA+blk} offset:{o1}")
            o.append(f"ds_read_b64_tr_b16 v[{b+2}:{b+3}], v{TRA+blk} offset:{o1+o2}")
        return o
    def mfmas(self, s, order=None):
        par = s & 1; o = []
        for blk in (order or range(5)):
            kd = self.kinds[blk]
            wf = f"v[{WF+20*par+4*blk}:{WF+20*par+4*blk+3}]"
            for tb in range(2):
                xf = f"v[{XF+8*par+4*tb}:{XF+8*par+4*tb+3}]"; a = acc(blk, tb)
                c = "0" if s == 0 else f"v[{a}:{a+15}]"
                if kd in ("k", "v"): o.append(f"v_mfma_f32_32x32x16_bf16 v[{a}:{a+15}], {xf}, {wf}, {c}")
                else: o.append(f"v_mfma_f32_32x32x16_bf16 v[{a}:{a+15}], {wf}, {xf}, {c}")
        return o
    def corr(self):
        o = []
        for blk in range(5):
            for tb in range(2):
                a = acc(blk, tb); cf = ar(ACF+4*blk, 4); mf = ar(AMF+4*tb, 4)
                if self.kinds[blk] in ("k", "v"): o.append(f"v_mfma_f32_32x32x16_bf16 v[{a}:{a+15}], {mf}, {cf}, v[{a}:{a+15}]")
                else: o.append(f"v_mfma_f32_32x32x16_bf16 v[{a}:{a+15}], {cf}, {mf}, v[{a}:{a+15}]")
        return o

    def prologue(self):
        A, typ, kinds = self.A, self.typ, self.kinds
        SZQ, SZG = 512*3072, 512*3584
        emit_items(A, self.Xg(0))
        if typ == "A":
            A(f"s_lshr_b32 s{S_T0}, s{S_IDX}, 1"); A(f"s_mul_i32 s{S_T0}, s{S_T0}, 7"); A(f"s_and_b32 s{S_T1}, s{S_IDX}, 1"); A(f"s_lshl_b32 s{S_T1}, s{S_T1}, 1")
            A(f"s_add_u32 s{S_T0}, s{S_T0}, s{S_T1}"); A(f"s_lshl_b32 s{S_T0}, s{S_T0}, 7")
            srd_off(A, S_W+0, P_G, P_G+1, f"s{S_T0}", SZG); srd_off(A, S_W+4, P_U, P_U+1, f"s{S_T0}", SZG)
            A(f"s_add_u32 s{S_T0}, s{S_T0}, 128")
            srd_off(A, S_W+8, P_G, P_G+1, f"s{S_T0}", SZG); srd_off(A, S_W+12, P_U, P_U+1, f"s{S_T0}", SZG)
            A(f"s_lshl_b32 s{S_T0}, s{S_IDX}, 7")
            srd_off(A, S_W+16, P_WQ, P_WQ+1, f"s{S_T0}", SZQ)
        else:
            A(f"s_lshl_b32 s{S_T0}, s{S_IDX}, 7"); A(f"s_add_u32 s{S_T0}, s{S_T0}, 1024")
            srd_off(A, S_W+0, P_WQ, P_WQ+1, f"s{S_T0}", SZQ)
            A(f"s_add_u32 s{S_T0}, s{S_T0}, 1024")
            srd_off(A, S_W+4, P_WQ, P_WQ+1, f"s{S_T0}", SZQ)
            A(f"s_lshr_b32 s{S_T0}, s{S_IDX}, 1"); A(f"s_mul_i32 s{S_T0}, s{S_T0}, 7"); A(f"s_and_b32 s{S_T1}, s{S_IDX}, 1")
            A(f"s_add_u32 s{S_T0}, s{S_T0}, s{S_T1}"); A(f"s_add_u32 s{S_T0}, s{S_T0}, 4"); A(f"s_lshl_b32 s{S_T0}, s{S_T0}, 7")
            srd_off(A, S_W+8, P_G, P_G+1, f"s{S_T0}", SZG); srd_off(A, S_W+12, P_U, P_U+1, f"s{S_T0}", SZG)
            A(f"s_lshr_b32 s{S_T0}, s{S_IDX}, 1"); A(f"s_mul_i32 s{S_T0}, s{S_T0}, 7"); A(f"s_add_u32 s{S_T0}, s{S_T0}, 6"); A(f"s_lshl_b32 s{S_T0}, s{S_T0}, 7")
            A(f"s_and_b32 s{S_T1}, s{S_IDX}, 1"); A(f"s_lshl_b32 s{S_T1}, s{S_T1}, 6"); A(f"s_add_u32 s{S_T0}, s{S_T0}, s{S_T1}")
            A(f"s_cmp_ge_u32 s{S_WV}, 2")
            A(f"s_cselect_b32 s{S_T2}, s{P_U}, s{P_G}"); A(f"s_cselect_b32 s{S_T3}, s{P_U+1}, s{P_G+1}")
            srd_off(A, S_W+16, S_T2, S_T3, f"s{S_T0}", SZG)
        t0, t1, t2, t3, t4 = VT, VT+1, VT+2, VT+3, VT+4
        A(f"v_lshrrev_b32 v{t0}, 3, v{VLANE}"); A(f"v_and_b32 v{t1}, 7, v{VLANE}")
        A(f"v_lshrrev_b32 v{t2}, 4, v{VLANE}"); A(f"v_and_b32 v{t2}, 1, v{t2}")
        done = {}
        for rho in range(5):
            key = (self.swz[rho], self.strides[rho])
            if key in done: continue
            done[key] = rho
            if self.swz[rho] == "h":
                A(f"v_lshrrev_b32 v{t3}, 2, v{VLANE}"); A(f"v_and_b32 v{t4}, 3, v{VLANE}")
                A(f"s_lshr_b32 s{S_T0}, s{S_WV}, 1"); A(f"s_lshl_b32 s{S_T0}, s{S_T0}, 1")
                A(f"v_xor_b32 v{t4}, s{S_T0}, v{t4}")
                A(f"v_mul_u32_u24 v{t3}, 3584, v{t3}"); A(f"v_lshlrev_b32 v{t4}, 4, v{t4}"); A(f"v_add_u32 v{VOW+rho}, v{t3}, v{t4}")
            else:
                if self.swz[rho] == "q": A(f"v_lshlrev_b32 v{t3}, 2, v{t2}")
                else:
                    A(f"v_lshlrev_b32 v{t3}, 1, v{t2}")
                    if self.swz[rho] == "u": A(f"v_or_b32 v{t3}, 4, v{t3}")
                A(f"v_xor_b32 v{t3}, v{t1}, v{t3}"); A(f"v_lshlrev_b32 v{t3}, 4, v{t3}")
                A(f"v_mul_u32_u24 v{t4}, {self.strides[rho]}, v{t0}"); A(f"v_add_u32 v{VOW+rho}, v{t3}, v{t4}")
        emit_items(A, self.Wg(0)); emit_items(A, self.Wg(1))
        A.stamp(1)
        A(f"v_lshlrev_b32 v{t3}, 2, v{t2}"); A(f"v_xor_b32 v{t3}, v{t1}, v{t3}"); A(f"v_lshlrev_b32 v{t3}, 4, v{t3}")
        A(f"v_lshlrev_b32 v{t4}, 10, v{t0}"); A(f"v_add_u32 v{VDM}, v{t3}, v{t4}")
        A(f"v_add_u32 v{self.w2.vdm2}, 8192, v{VDM}")
        A(f"s_lshl_b32 s{S_T0}, s{S_J}, 7"); A(f"s_mul_i32 s{S_T1}, s{S_WV}, {448*1024}"); A(f"s_add_u32 s{S_T0}, s{S_T0}, s{S_T1}")
        srd_off(A, S_WD, P_D, P_D+1, f"s{S_T0}", 1792*1024)
        A(f"s_mul_i32 s{S_LB}, s{S_WV}, {NSL*2048}"); A(f"s_add_u32 s{S_LB}, s{S_LB}, {W2IN}")
        A(f"s_lshr_b32 s{S_T0}, s2, 3"); A(f"s_and_b32 s{S_T1}, s{S_T0}, 3"); A(f"s_mul_i32 s{S_T1}, s{S_T1}, 7"); A(f"s_lshr_b32 s{S_T0}, s{S_T0}, 2"); A(f"s_mul_i32 s{S_T0}, s{S_T0}, 3")
        A(f"s_add_u32 s{S_RHO}, s{S_T0}, s{S_T1}"); A(f"s_cmp_ge_u32 s{S_RHO}, 28"); A(f"s_cselect_b32 s{S_T0}, 28, 0"); A(f"s_sub_u32 s{S_RHO}, s{S_RHO}, s{S_T0}")
        if not W2ROT: A(f"s_mov_b32 s{S_RHO}, 0")
        A(f"s_lshl_b32 s{S_W2R}, s{S_RHO}, 14")
        A(f"s_load_dwordx2 s[{S_DBG}:{S_DBG+1}], s[0:1], 64")
        A(f"s_mov_b32 s{S_CG}, s{S_I1}")
        A(f"s_lshr_b32 s{S_T0}, s{S_T}, 3"); A(f"s_lshl_b32 s{S_T0}, s{S_T0}, 1"); A(f"s_add_u32 s{S_KSC}, s{S_T0}, s{S_WM}")
        A(f"v_and_b32 v{t0}, 31, v{VLANE}")
        A(f"v_and_b32 v{t1}, 15, v{t0}"); A(f"v_lshrrev_b32 v{t2}, 4, v{t0}")
        def cs_addr(dst, soff_code, lane_kind):
            soff_code()
            if lane_kind == "gu":
                A(f"v_mul_u32_u24 v{t3}, 1792, v{t2}"); A(f"v_add_u32 v{t3}, v{t3}, v{t1}")
            elif lane_kind == "kv":
                A(f"v_lshlrev_b32 v{t3}, 9, v{t2}"); A(f"v_add_u32 v{t3}, v{t3}, v{t1}")
            else: A(f"v_mov_b32 v{t3}, v{t0}")
            A(f"v_add_u32 v{t3}, s{S_T0}, v{t3}"); A(f"v_lshlrev_b32 v{t3}, 2, v{t3}"); A(f"v_add_u32 v{dst}, {WS_CS}, v{t3}")
        if typ == "A":
            cs_addr(VC1, lambda: (A(f"s_lshr_b32 s{S_T0}, s{S_IDX}, 1"), A(f"s_mul_i32 s{S_T0}, s{S_T0}, 7"), A(f"s_and_b32 s{S_T1}, s{S_IDX}, 1"), A(f"s_lshl_b32 s{S_T1}, s{S_T1}, 1"), A(f"s_add_u32 s{S_T0}, s{S_T0}, s{S_T1}"),
                                  A(f"s_add_u32 s{S_T0}, s{S_T0}, s{S_WN}"), A(f"s_lshl_b32 s{S_T0}, s{S_T0}, 6"), A(f"s_add_u32 s{S_T0}, s{S_T0}, 1536")), "gu")
            cs_addr(VC2, lambda: (A(f"s_lshl_b32 s{S_T0}, s{S_IDX}, 6"), A(f"s_lshl_b32 s{S_T1}, s{S_WN}, 5"), A(f"s_add_u32 s{S_T0}, s{S_T0}, s{S_T1}")), "q")
            self.csa = [(VC1, 0), (VC1, 64), (VC1, 128), (VC1, 192), (VC2, 0)]
        else:
            cs_addr(VC2, lambda: (A(f"s_lshl_b32 s{S_T0}, s{S_IDX}, 6"), A(f"s_lshl_b32 s{S_T1}, s{S_WN}, 5"), A(f"s_add_u32 s{S_T0}, s{S_T0}, s{S_T1}"), A(f"s_add_u32 s{S_T0}, s{S_T0}, 512")), "q")
            cs_addr(VC1, lambda: (A(f"s_lshr_b32 s{S_T0}, s{S_IDX}, 1"), A(f"s_mul_i32 s{S_T0}, s{S_T0}, 7"), A(f"s_and_b32 s{S_T1}, s{S_IDX}, 1"), A(f"s_add_u32 s{S_T0}, s{S_T0}, s{S_T1}"), A(f"s_add_u32 s{S_T0}, s{S_T0}, 4"), A(f"s_lshl_b32 s{S_T0}, s{S_T0}, 6"), A(f"s_lshl_b32 s{S_T1}, s{S_WN}, 5"), A(f"s_add_u32 s{S_T0}, s{S_T0}, s{S_T1}"), A(f"s_add_u32 s{S_T0}, s{S_T0}, 1536")), "gu")
            cs_addr(VC3, lambda: (A(f"s_lshr_b32 s{S_T0}, s{S_IDX}, 1"), A(f"s_mul_i32 s{S_T0}, s{S_T0}, 7"), A(f"s_add_u32 s{S_T0}, s{S_T0}, 6"), A(f"s_lshl_b32 s{S_T0}, s{S_T0}, 6"),
                                  A(f"s_and_b32 s{S_T1}, s{S_IDX}, 1"), A(f"s_lshl_b32 s{S_T1}, s{S_T1}, 1"), A(f"s_add_u32 s{S_T1}, s{S_T1}, s{S_WN}"), A(f"s_lshl_b32 s{S_T1}, s{S_T1}, 4"),
                                  A(f"s_add_u32 s{S_T0}, s{S_T0}, s{S_T1}"), A(f"s_add_u32 s{S_T0}, s{S_T0}, 1536")), "gu")
            self.csa = [(VC2, 0), (VC2, 2048), (VC1, 0), (VC1, 64), (VC3, 0)]
        A(f"v_mov_b32 v{t3}, 0x3f803f80")
        for i in range(4): A(f"v_accvgpr_write_b32 a{A_ONES+i}, v{t3}")
        srd_off(A, S_H, S_WSP, S_WSP+1, WS_H, WS_H + H_BYTES)
        G, p, r, c = t0, t1, t2, t3
        A(f"v_lshrrev_b32 v{G}, 4, v{VLANE}"); A(f"v_and_b32 v{G}, 1, v{G}")
        A(f"v_lshrrev_b32 v{p}, 5, v{VLANE}")
        A(f"v_and_b32 v{r}, 15, v{VLANE}"); A(f"v_lshrrev_b32 v{r}, 2, v{r}")
        A(f"v_and_b32 v{c}, 3, v{VLANE}")
        k_, rb, u1, u2 = t4, t4+1, t4+2, t4+3
        A(f"v_lshlrev_b32 v{k_}, 3, v{p}"); A(f"v_add_u32 v{k_}, v{k_}, v{r}")
        A(f"v_lshrrev_b32 v{rb}, 1, v{r}"); A(f"v_and_b32 v{rb}, 1, v{rb}")
        for blk, kd in enumerate(kinds):
            d = TRA + blk
            if typ == "A" and kd == "gu" and blk > 0:
                A(f"v_xor_b32 v{d}, {blk*32}, v{TRA}"); continue
            if typ == "B" and blk == 1:
                A(f"v_add_u32 v{d}, 4096, v{d-1}"); continue
            if typ == "B" and blk == 3:
                A(f"v_xor_b32 v{d}, 32, v{d-1}"); continue
            if kd == "guh":
                A(f"v_lshrrev_b32 v{u1}, 1, v{c}"); A(f"s_lshl_b32 s{S_T0}, s{S_WN}, 1"); A(f"v_add_u32 v{u1}, s{S_T0}, v{u1}")
                A(f"v_lshlrev_b32 v{u2}, 1, v{G}"); A(f"v_xor_b32 v{u1}, v{u1}, v{u2}"); A(f"v_lshlrev_b32 v{u1}, 4, v{u1}")
                A(f"v_lshlrev_b32 v{u2}, 6, v{k_}"); A(f"v_add_u32 v{u1}, v{u1}, v{u2}")
                A(f"v_lshlrev_b32 v{u2}, 11, v{G}"); A(f"v_add_u32 v{u1}, v{u1}, v{u2}")
                A(f"v_add_u32 v{u1}, {W_BASE + 4*4096}, v{u1}")
            else:
                if kd in ("q", "k"):
                    A(f"s_lshl_b32 s{S_T0}, s{S_WN}, 1"); A(f"v_add_u32 v{u1}, s{S_T0}, v{G}")
                elif typ == "A": A(f"v_mov_b32 v{u1}, 0")
                else:
                    A(f"s_lshl_b32 s{S_T0}, s{S_WN}, 1"); A(f"v_mov_b32 v{u1}, s{S_T0}")
                A(f"v_lshlrev_b32 v{u1}, 1, v{u1}"); A(f"v_lshrrev_b32 v{u2}, 1, v{c}"); A(f"v_add_u32 v{u1}, v{u1}, v{u2}")
                if kd in ("q", "k"): A(f"v_lshlrev_b32 v{u2}, 2, v{rb}")
                else:
                    A(f"v_lshlrev_b32 v{u2}, 1, v{rb}"); A(f"v_lshlrev_b32 v{d}, 2, v{G}"); A(f"v_or_b32 v{u2}, v{u2}, v{d}")
                A(f"v_xor_b32 v{u1}, v{u1}, v{u2}"); A(f"v_lshlrev_b32 v{u1}, 4, v{u1}")
                A(f"v_lshlrev_b32 v{u2}, 7, v{k_}"); A(f"v_add_u32 v{u1}, v{u1}, v{u2}")
                if kd == "q": A(f"v_add_u32 v{u1}, {W_BASE + 4*4096}, v{u1}")
                elif kd == "k": A(f"v_add_u32 v{u1}, {W_BASE}, v{u1}")
                else:
                    if typ == "A":
                        A(f"s_lshl_b32 s{S_T0}, s{S_WN}, 13"); A(f"s_add_u32 s{S_T0}, s{S_T0}, {W_BASE}")
                    else: A(f"s_mov_b32 s{S_T0}, {W_BASE + 2*4096}")
                    A(f"v_lshlrev_b32 v{u2}, 12, v{G}"); A(f"v_add_u32 v{u1}, v{u1}, v{u2}"); A(f"v_add_u32 v{u1}, s{S_T0}, v{u1}")
            A(f"v_and_b32 v{u2}, 1, v{c}"); A(f"v_lshlrev_b32 v{u2}, 3, v{u2}"); A(f"v_add_u32 v{d}, v{u1}, v{u2}")
        A(f"v_lshlrev_b32 v{u1}, 2, v{p}"); A(f"v_add_u32 v{u1}, v{u1}, v{r}"); A(f"v_lshlrev_b32 v{u1}, 7, v{u1}")
        A(f"v_lshlrev_b32 v{u2}, 1, v{G}"); A(f"v_lshrrev_b32 v{VTR}, 1, v{c}"); A(f"v_add_u32 v{u2}, v{u2}, v{VTR}")
        A(f"v_lshlrev_b32 v{VTR}, 2, v{rb}"); A(f"v_xor_b32 v{u2}, v{u2}, v{VTR}"); A(f"v_lshlrev_b32 v{u2}, 4, v{u2}"); A(f"v_add_u32 v{u1}, v{u1}, v{u2}")
        A(f"v_and_b32 v{u2}, 1, v{c}"); A(f"v_lshlrev_b32 v{u2}, 3, v{u2}"); A(f"v_add_u32 v{u1}, v{u1}, v{u2}")
        A(f"v_add_u32 v{VTR}, s{S_LB}, v{u1}"); A(f"v_xor_b32 v{VTR1}, 64, v{VTR}")
        A(f"v_and_b32 v{u1}, 31, v{VLANE}"); A(f"s_lshl_b32 s{S_T0}, s{S_WM}, 6"); A(f"v_add_u32 v{u1}, s{S_T0}, v{u1}")
        A(f"v_lshrrev_b32 v{u2}, 1, v{u1}"); A(f"v_and_b32 v{u2}, 7, v{u2}"); A(f"v_xor_b32 v{u2}, v{u2}, v{p}"); A(f"v_lshlrev_b32 v{u2}, 4, v{u2}")
        A(f"v_lshlrev_b32 v{u1}, 7, v{u1}"); A(f"v_add_u32 v{u1}, v{u1}, v{u2}")
        for kk in range(4): A(f"v_xor_b32 v{XA+kk}, {kk*32}, v{u1}")
        if X1_EARLY: emit_items(A, self.Xg(1))
        SX = WF + 20
        A.wait("strow")
        P0, P1, Q0, Q1, U = VT, VT+2, VT+4, VT+6, VT+8
        for tok, (P, Q) in enumerate(((P0, Q0), (P1, Q1))):
            for i in range(4):
                src = SX + 4*tok + i
                A(f"v_lshlrev_b32 v{U}, 16, v{src}"); A(f"v_and_b32 v{U+1}, 0xffff0000, v{src}")
                if i == 0:
                    A(f"v_pk_mul_f32 v[{Q}:{Q+1}], v[{U}:{U+1}], v[{U}:{U+1}]"); A(f"v_mov_b32 v{P}, v{U}"); A(f"v_mov_b32 v{P+1}, v{U+1}")
                else:
                    A(f"v_pk_add_f32 v[{P}:{P+1}], v[{P}:{P+1}], v[{U}:{U+1}]"); A(f"v_pk_fma_f32 v[{Q}:{Q+1}], v[{U}:{U+1}], v[{U}:{U+1}], v[{Q}:{Q+1}]")
        for r_ in (P0, P1, Q0, Q1): A(f"v_add_f32 v{r_}, v{r_}, v{r_+1}")
        for dpp in ("row_shr:1 row_mask:0xf bank_mask:0xf", "row_shr:2 row_mask:0xf bank_mask:0xf", "row_shr:4 row_mask:0xf bank_mask:0xf", "row_shr:8 row_mask:0xf bank_mask:0xf",
                    "row_bcast:15 row_mask:0xa bank_mask:0xf", "row_bcast:31 row_mask:0xc bank_mask:0xf"):
            for r_ in (P0, P1, Q0, Q1): A(f"v_add_f32_dpp v{r_}, v{r_}, v{r_} {dpp}")
        A(f"v_mul_f32 v{P0}, 0x3b000000, v{P0}"); A(f"v_mul_f32 v{P0+1}, 0x3b000000, v{P1}")
        A(f"v_mul_f32 v{Q0}, 0x3b000000, v{Q0}"); A(f"v_mul_f32 v{Q0+1}, 0x3b000000, v{Q1}")
        for j in range(2):
            A(f"v_fma_f32 v{Q0+j}, -v{P0+j}, v{P0+j}, v{Q0+j}"); A(f"v_max_f32 v{Q0+j}, 0, v{Q0+j}"); A(f"v_add_f32 v{Q0+j}, 0x3727c5ac, v{Q0+j}"); A(f"v_rsq_f32 v{Q0+j}, v{Q0+j}")
        A(f"v_mov_b32 v{U}, s{S_HB}"); A(f"v_add_u32 v{U+1}, {WS_R}, v{U}")
        A(f"s_mov_b64 s[{S_E0}:{S_E0+1}], exec"); A("s_mov_b32 exec_lo, 0"); A("s_mov_b32 exec_hi, 0x80000000")
        A.vm(f"global_store_dwordx2 v{U}, v[{P0}:{P0+1}], s[{S_WSP}:{S_WSP+1}] sc1")
        A.vm(f"global_store_dwordx2 v{U+1}, v[{Q0}:{Q0+1}], s[{S_WSP}:{S_WSP+1}] sc1", id="stst")
        A(f"s_mov_b64 exec, s[{S_E0}:{S_E0+1}]")
        A.stamp(2)
        A("s_waitcnt lgkmcnt(0)")
        A.wait("X0_3", "W0_4")
        A("s_barrier")
        A.stamp(3)
        for s in self.reads(0): A(s)
        for x in self.sig(f"s_cmp_lt_u32 s2, {NZERO}", S_DBG, DBG_INIT, None, "init"): A(x)

    def sig(self, cond, base, off_imm, off_sgpr, tag):
        L = f"K12{self.typ}_sig_{tag}"
        o = []
        if cond: o += [cond, f"s_cbranch_scc0 {L}"]
        o += [f"s_cmp_eq_u32 s{S_WV}, 0", f"s_cbranch_scc0 {L}"]
        if off_sgpr is None: o += [f"v_mov_b32 v{VT+9}, {off_imm}"]
        else: o += [f"s_lshl_b32 s{S_T4}, s{off_sgpr}, 7", f"s_add_u32 s{S_T4}, s{S_T4}, {off_imm}", f"v_mov_b32 v{VT+9}, s{S_T4}"]
        o += [f"v_mov_b32 v{VT+8}, 1", f"s_mov_b64 s[{S_E0}:{S_E0+1}], exec", "s_mov_b64 exec, 1",
              f"!global_atomic_add v{VT+9}, v{VT+8}, s[{base}:{base+1}] sc1", f"s_mov_b64 exec, s[{S_E0}:{S_E0+1}]", f"{L}:"]
        return o

    def spin(self, tag, base, vaddr, expect):
        L = f"K12{self.typ}_spin_{tag}"
        return [f"s_mov_b32 s{S_T3}, 0", f"{L}:", f"!global_load_dword v{VT+10}, v{vaddr}, s[{base}:{base+1}] sc1", "s_waitcnt vmcnt(0)",
                f"v_readfirstlane_b32 s{S_T4}, v{VT+10}", f"s_add_u32 s{S_T3}, s{S_T3}, 1", f"s_cmp_ge_u32 s{S_T3}, {POLL_MAX}", f"s_cbranch_scc1 {L}_x",
                f"s_cmp_ge_u32 s{S_T4}, {expect}", f"s_cbranch_scc1 {L}_x", "s_sleep 2", f"s_branch {L}", f"{L}_x:"]

    def w0(self, tag, code):
        L = f"K12{self.typ}_w0_{tag}"
        return [f"s_cmp_eq_u32 s{S_WV}, 0", f"s_cbranch_scc0 {L}"] + code + [f"{L}:"]

    def pre_barrier(self, h):
        typ = self.typ; T = VT
        if h == 2:
            return self.w0("initchk", [("wait", ["initld"]), f"v_readfirstlane_b32 s{S_T4}, v{T+10}", "s_nop 0", f"s_cmp_ge_u32 s{S_T4}, {NZERO}", f"s_cbranch_scc1 K12{typ}_initok",
                                       f"v_mov_b32 v{T+9}, {DBG_INIT}"] + self.spin("init", S_DBG, T+9, NZERO) + [f"K12{typ}_initok:"])
        if h == H_CNT:
            return self.w0("cntchk", [("wait", ["cntld"]), f"v_readfirstlane_b32 s{S_T4}, v{T+5}", "s_nop 0", f"s_cmp_ge_u32 s{S_T4}, 16", f"s_cbranch_scc1 K12{typ}_stok"]
                           + self.spin("st", S_WSP, T+7, 16) + [f"K12{typ}_stok:",
                           f"v_readfirstlane_b32 s{S_T4}, v{T+6}", "s_nop 0", f"s_cmp_ge_u32 s{S_T4}, 16", f"s_cbranch_scc1 K12{typ}_csok"]
                           + self.spin("cs", S_WSP, T+8, 16) + [f"K12{typ}_csok:"])
        return []

    def oneshot_items(self, add, at):
        typ = self.typ; wsp = f"s[{S_WSP}:{S_WSP+1}]"; dbg = f"s[{S_DBG}:{S_DBG+1}]"
        T = VT
        for s in range(4):
            par = s & 1
            it = [f"s_cmp_eq_u32 s{S_KSC}, {s}", f"s_cbranch_scc0 K12{typ}_nocs{s}"]
            for blk in range(5):
                b = WF + 20*par + 4*blk
                it.append(f"v_mfma_f32_32x32x16_bf16 a[{CS_TMP+16*blk}:{CS_TMP+16*blk+15}], a[{A_ONES}:{A_ONES+3}], v[{b}:{b+3}], 0")
            it.append(f"K12{typ}_nocs{s}:")
            self.fixed.setdefault(s, []).append(it)
        self.fixed.setdefault(K_INITLD, []).append(self.w0("initld", [f"v_mov_b32 v{T+9}, {DBG_INIT}", f"s_mov_b64 s[{S_E0}:{S_E0+1}], exec", "s_mov_b64 exec, 1",
                                      ("vmu", "initld", f"global_load_dword v{T+10}, v{T+9}, {dbg} sc1"), f"s_mov_b64 exec, s[{S_E0}:{S_E0+1}]"]))
        it = [[f"v_accvgpr_read_b32 v{T+blk}, a{CS_TMP+16*blk}"] for blk in range(5)]
        at_ = [f"s_mov_b64 s[{S_E0}:{S_E0+1}], exec", "s_mov_b32 exec_hi, 0"]
        for blk in range(5):
            va, off = self.csa[blk]
            at_.append(("vm", f"csat{blk}", f"global_atomic_add_f32 v{va}, v{T+blk}, {wsp} offset:{off}"))
        at_.append(f"s_mov_b64 exec, s[{S_E0}:{S_E0+1}]")
        add(at(K_CSAT), it + [at_])
        self.fixed.setdefault(K_CNTLD, []).append(self.w0("cntld", [f"s_lshl_b32 s{S_T4}, s{S_T}, 7", f"s_add_u32 s{S_T4}, s{S_T4}, {WS_STCNT}", f"v_mov_b32 v{T+7}, s{S_T4}",
                          f"s_lshl_b32 s{S_T4}, s{S_CG}, 7", f"s_add_u32 s{S_T4}, s{S_T4}, {WS_CSCNT}", f"v_mov_b32 v{T+8}, s{S_T4}",
                          f"s_mov_b64 s[{S_E0}:{S_E0+1}], exec", "s_mov_b64 exec, 1",
                          f"!global_load_dword v{T+5}, v{T+7}, {wsp} sc1", ("vmu", "cntld", f"global_load_dword v{T+6}, v{T+8}, {wsp} sc1"),
                          f"s_mov_b64 exec, s[{S_E0}:{S_E0+1}]"]))
        VM = T; VCS = T + 2; VRB = T + 7
        lds = [[f"v_and_b32 v{T+8}, 31, v{VLANE}", f"s_lshl_b32 s{S_T4}, s{S_T}, 7", f"s_lshl_b32 s{S_T3}, s{S_WM}, 6", f"s_add_u32 s{S_T4}, s{S_T4}, s{S_T3}"],
               [f"v_add_u32 v{T+8}, s{S_T4}, v{T+8}", f"v_lshlrev_b32 v{T+8}, 2, v{T+8}", f"v_add_u32 v{T+9}, {WS_R}, v{T+8}"],
               [("vm", None, f"global_load_dword v{VM}, v{T+8}, {wsp} sc1")], [("vm", None, f"global_load_dword v{VM+1}, v{T+8}, {wsp} offset:128 sc1")],
               [("vm", None, f"global_load_dword v{VR}, v{T+9}, {wsp} sc1")], [("vm", None, f"global_load_dword v{VR+1}, v{T+9}, {wsp} offset:128 sc1")]]
        for blk in range(5):
            va, off = self.csa[blk]
            lds.append([("vm", "csld" if blk == 4 and typ == "A" else None, f"global_load_dword v{VCS+blk}, v{va}, {wsp} offset:{off} sc1")])
        if typ == "B":
            lds.append([f"s_lshl_b32 s{S_T4}, s{S_T}, 7", f"v_add_u32 v{T+8}, s{S_T4}, v{VTID}", f"v_lshlrev_b32 v{T+8}, 2, v{T+8}", f"v_add_u32 v{T+8}, {WS_R}, v{T+8}"])
            lds.append([("vm", "csld", f"global_load_dword v{VRB}, v{T+8}, {wsp} sc1")])
        add(at(2*H_CNT-1, 1), lds)
        if K_PT:
            add(at(K_PT), [[f"s_lshl_b32 s{S_T4}, s{S_TAU}, 16", f"s_lshl_b32 s{S_T3}, s{S_J}, 7", f"s_add_u32 s{S_T4}, s{S_T4}, s{S_T3}", f"v_mov_b32 v{T+9}, s{S_T4}"],
                           [f"s_mov_b64 s[{S_E0}:{S_E0+1}], exec", "s_mov_b64 exec, 1", ("vm", None, f"global_load_dword a224, v{T+9}, s[{P_O}:{P_O+1}]"), f"s_mov_b64 exec, s[{S_E0}:{S_E0+1}]"],
                           [f"v_mov_b32 v{T+9}, 0"],
                           [f"s_mov_b64 s[{S_E0}:{S_E0+1}], exec", "s_mov_b64 exec, 1", ("vm", None, f"global_load_dword a227, v{T+9}, s[{P_WO}:{P_WO+1}]"), f"s_mov_b64 exec, s[{S_E0}:{S_E0+1}]"]])
        if CODE_PF2:
            add(at(CODE_PF2), [[f"s_getpc_b64 s[{S_E2}:{S_E2+1}]", f"K12{typ}_pc2:", f"s_lshr_b32 s{S_T4}, s2, 3", f"s_lshl_b32 s{S_T4}, s{S_T4}, 2", f"s_add_u32 s{S_T4}, s{S_T4}, s{S_WV}"],
                               [f"s_min_u32 s{S_T4}, s{S_T4}, ((K12_end-K12{typ}_pc2)>>10)-1", f"s_lshl_b32 s{S_T4}, s{S_T4}, 10", f"v_add_u32 v{T+9}, s{S_T4}, v{VL16}"],
                               [("vm", None, f"global_load_dwordx4 a[224:227], v{T+9}, s[{S_E2}:{S_E2+1}]")]])
        tt = T + 8; b = T + 10
        items = [[("wait", ["csld"])], [f"v_cmp_gt_u32 vcc, 32, v{VLANE}", "s_nop 1"]]
        for tb in range(2):
            items += [[f"v_cndmask_b32 v{tt}, 0, v{VM+tb}, vcc"], [f"v_cvt_pk_bf16_f32 v{b}, v{tt}, v{tt}"],
                      [f"v_and_b32 v{tt+1}, 0xffff0000, v{b}"], [f"v_sub_f32 v{tt+1}, v{tt}, v{tt+1}"],
                      [f"v_cvt_pk_bf16_f32 v{b+1}, v{tt+1}, 0"],
                      [f"v_accvgpr_write_b32 a{AMF+4*tb}, v{b}"], [f"v_accvgpr_write_b32 a{AMF+4*tb+1}, v{b+1}"],
                      [f"v_accvgpr_write_b32 a{AMF+4*tb+2}, 0"], [f"v_accvgpr_write_b32 a{AMF+4*tb+3}, 0"]]
        for blk in range(5):
            items += [[f"v_cndmask_b32 v{tt}, 0, v{VCS+blk}, vcc"], [f"v_sub_f32 v{tt}, 0, v{tt}"],
                      [f"v_cvt_pk_bf16_f32 v{b+1}, v{tt}, 0"], [f"v_lshlrev_b32 v{tt+1}, 16, v{b+1}"], [f"v_sub_f32 v{tt+1}, v{tt}, v{tt+1}"],
                      [f"v_cvt_pk_bf16_f32 v{b}, v{tt}, v{tt+1}"],
                      [f"v_accvgpr_write_b32 a{ACF+4*blk}, v{b}"], [f"v_accvgpr_write_b32 a{ACF+4*blk+1}, v{b+1}"],
                      [f"v_accvgpr_write_b32 a{ACF+4*blk+2}, 0"], [f"v_accvgpr_write_b32 a{ACF+4*blk+3}, 0"]]
        if typ == "B":
            items += [[f"v_lshlrev_b32 v{tt}, 2, v{VTID}"], [f"v_add_u32 v{tt}, {LDS_R}, v{tt}"],
                      [f"v_cmp_gt_u32 vcc, 128, v{VTID}", f"s_and_saveexec_b64 s[{S_E0}:{S_E0+1}], vcc", f"ds_write_b32 v{tt}, v{VRB}", f"s_mov_b64 exec, s[{S_E0}:{S_E0+1}]"]]
        add(at(K_RANK), items)

    def loop(self):
        A = self.A
        self.loop_start = len(A.l)
        steps = []
        for s in range(32):
            if s == CORR_AT: steps.append(("c", None))
            steps.append(("k", s))
        order_last = [b for b, kd in enumerate(self.kinds) if kd in ("gu","guh")] + [b for b, kd in enumerate(self.kinds) if kd not in ("gu","guh")]
        idx_of = {st: i for i, st in enumerate(steps)}
        def at(s, g=0): return (idx_of[("k", s)], g)
        flex = []; flex2 = []
        def add(pos, items):
            for it in items: flex.append((pos, it))
        def add2(pos, items):
            for it in items: flex2.append((pos, it))
        add(at(0), self.Wg(2))
        if not X1_EARLY: add(at(0), self.Xg(1))
        add(at(1, 1), self.Xg(2))
        for h in range(1, 14): add(at(2*h-1, 1), self.Wg(h+2))
        for sg in range(1, 6): add(at(4*sg-1, 1), self.Xg(sg+2))
        self.fixed = {}
        tagD = {}; tagR = {}; keep = []; placedR = {}
        self.oneshot_items(add, at)
        self.w2_done_R = []
        for i in range(N_IN):
            dd = self.w2.D(i); tagD[id(dd[0])] = i; keep.append(dd)
            add2(at(min(i+W2_START, 31)), dd)
            rr = self.w2.R(i); tagR[id(rr[-1])] = i; keep.append(rr)
            add2(at(min(i+W2_START+DLAG, 31)), rr); self.w2_done_R.append(i)
        flex.sort(key=lambda x: x[0])
        gaps_all = []
        flex2.sort(key=lambda x: x[0])
        queues = [list(flex), list(flex2)]
        for si, st in enumerate(steps):
            gaps = [[] for _ in range(10)]
            head = []
            if st[0] == "k":
                s = st[1]
                M = self.mfmas(s, order_last if s == 31 else None)
                head = ["s_waitcnt lgkmcnt(0)"]
                odd = s & 1
                if odd:
                    h = (s + 1)//2
                    if h <= 15:
                        ids = [f"W{h}_4"] + ([f"X{h//2}_3"] if h % 2 == 0 else [])
                        if h == 2: ids.append("stst")
                        if h == 6: ids.append("csat4")
                        if STAMP and SMODE == "wait":
                            gaps[0] += self.pre_barrier(h) + [("wait", ids), "s_memtime s[98:99]", "s_waitcnt lgkmcnt(0)", "s_barrier", "s_memtime s[100:101]", "s_waitcnt lgkmcnt(0)", "s_sub_u32 s100, s100, s98", f"s_add_u32 s{SB+12}, s{SB+12}, s100"]
                        else:
                            gaps[0] += self.pre_barrier(h) + [("wait", ids), "s_barrier"]
                        if h == 2: gaps[0] += self.sig(None, S_WSP, WS_STCNT, S_T, "st")
                        if h == 6: gaps[0] += self.sig(None, S_WSP, WS_CSCNT, S_CG, "cs")
                    else:
                        gaps[0] += ["s_barrier"]
                nxt = s + 1
                if nxt < 32:
                    rd = self.reads(nxt)
                    g0 = 1 if odd else 0
                    for i, x in enumerate(rd): gaps[g0 + i//2].append(x)
            else:
                M = self.corr(); head = ["s_waitcnt lgkmcnt(0)"]
            if st[0] == "k" and st[1] in self.fixed:
                for it in self.fixed[st[1]]: gaps[9] += it
            for qi in range(2):
                pending = queues[qi]
                gi = 0
                rest = []
                blocked = False
                for (pos, it) in pending:
                    if blocked or pos[0] > si:
                        rest.append((pos, it)); continue
                    if id(it) in tagD and placedR.get(tagD[id(it)] - NSL, -1) == si:
                        rest.append((pos, it)); blocked = True; continue
                    if id(it) in tagD and tagD[id(it)] >= NSL and (tagD[id(it)] - NSL) not in placedR:
                        rest.append((pos, it)); blocked = True; continue
                    g = max(gi, pos[1] if pos[0] == si else 0)
                    need = 2 if (isinstance(it, tuple) and it[0] == "dma") else len(it)
                    while g < 10 and len(gaps[g]) + min(need, CAP) > CAP: g += 1
                    if g >= 10:
                        rest.append((pos, it)); blocked = True; continue
                    if id(it) in tagR: placedR[tagR[id(it)]] = si
                    if isinstance(it, tuple) and it[0] == "dma":
                        gaps[g].append(it[1]); gaps[g].append("__NOP__"); gaps[g].append(it[2]); gi = g + 1
                    else:
                        gaps[g] += it; gi = g
                queues[qi] = rest
            for g in gaps:
                while "__NOP__" in g:
                    i = g.index("__NOP__")
                    cand = [j for j in range(i-1) if isinstance(g[j], str) and g[j].startswith("ds_read")]
                    if cand:
                        x = g.pop(cand[-1]); i -= 1; g[i] = x
                    else: g[i] = "s_nop 0"
            if st[0] == "k" and st[1] % 4 == 0 and st[1] > 0: A.stamp(st[1]//4, "loop")
            for x in head: A(x)
            for i in range(10):
                A(M[i])
                for x in gaps[i]:
                    if x == "__WOSRD__":
                        assert "W15_4" in A.ids
                        A(f"s_lshl_b32 s{S_T0}, s{S_J}, 7"); A(f"s_lshl_b32 s{S_T1}, s{S_WV}, 17"); A(f"s_add_u32 s{S_T0}, s{S_T0}, s{S_T1}")
                        srd_off(A, S_WO, P_WO, P_WO+1, f"s{S_T0}", 512*1024)
                    else: A(x)
        assert not queues[0], queues[0][:3]
        self.leftover = queues[1]
        for (pos, it) in self.leftover:
            if id(it) in tagD: A("s_waitcnt lgkmcnt(0)")
            if it == ["__WOSRD__"]:
                A(f"s_lshl_b32 s{S_T0}, s{S_J}, 7"); A(f"s_lshl_b32 s{S_T1}, s{S_WV}, 17"); A(f"s_add_u32 s{S_T0}, s{S_T0}, s{S_T1}")
                srd_off(A, S_WO, P_WO, P_WO+1, f"s{S_T0}", 512*1024)
            else: emit_items(A, [it])
        self.nleft = len(self.leftover)
        txt = A.l
        for i in range(N_IN - NSL):
            rd = [n for n, x in enumerate(txt) if n > self.loop_start and "ds_read_b64_tr_b16 a[%d:" % (8*i+6) in x]
            if not rd: continue
            pos_r = rd[-1]; pos_d = A.pos[f"w2_{i+NSL}_0"]
            assert pos_d > pos_r and any("lgkmcnt(0)" in x for x in txt[pos_r:pos_d]), ("no lgkm wait", i)

    def flag_store(self, slot_imm, FA, ONE):
        A = self.A
        FA, ONE = VT+4, VT+5
        A(f"v_mov_b32 v{ONE}, 1")
        A(f"s_lshl_b32 s{S_T0}, s{S_T}, 1"); A(f"s_add_u32 s{S_T0}, s{S_T0}, s{S_WM}"); A(f"s_lshl_b32 s{S_T0}, s{S_T0}, 2")
        A(f"s_lshr_b32 s{S_T1}, s{S_IDX}, 1"); A(f"s_add_u32 s{S_T0}, s{S_T0}, s{S_T1}"); A(f"s_lshl_b32 s{S_T0}, s{S_T0}, 4")
        A(f"s_lshl_b32 s{S_T1}, s{S_I1}, 1"); A(f"s_add_u32 s{S_T0}, s{S_T0}, s{S_T1}"); A(f"s_add_u32 s{S_T0}, s{S_T0}, s{S_WN}")
        A(f"s_add_u32 s{S_T0}, s{S_T0}, {slot_imm}"); A(f"s_lshl_b32 s{S_T0}, s{S_T0}, 2"); A(f"s_add_u32 s{S_T0}, s{S_T0}, {WS_FLAG}")
        A(f"v_mov_b32 v{FA}, s{S_T0}")
        A(f"s_mov_b64 s[{S_E0}:{S_E0+1}], exec"); A("s_mov_b64 exec, 1")
        A.vm(f"global_store_dword v{FA}, v{ONE}, s[{S_WSP}:{S_WSP+1}] sc1")
        A(f"s_mov_b64 exec, s[{S_E0}:{S_E0+1}]")

    def transition(self):
        A, typ, kinds = self.A, self.typ, self.kinds
        w2 = self.w2
        tt = VT
        state = {"D": N_IN, "R": N_IN}
        A.stamp(1, "tr")
        A("s_waitcnt lgkmcnt(0)")
        A("s_barrier")
        A(f"s_mul_i32 s{S_T0}, s{S_WV}, {NPOST*2048}"); A(f"s_add_u32 s{S_T0}, s{S_T0}, {W2POST}")
        A(f"s_sub_u32 s{S_T1}, s{S_T0}, s{S_LB}"); A(f"s_mov_b32 s{S_LB}, s{S_T0}")
        A(f"v_add_u32 v{VTR}, s{S_T1}, v{VTR}"); A(f"v_xor_b32 v{VTR1}, 64, v{VTR}")
        A(f"s_lshl_b32 s{S_T0}, s{S_J}, 7"); A(f"s_lshl_b32 s{S_T1}, s{S_WV}, 17"); A(f"s_add_u32 s{S_T0}, s{S_T0}, s{S_T1}")
        srd_off(A, S_WO, P_WO, P_WO+1, f"s{S_T0}", 512*1024)
        def bgD(n=1):
            for _ in range(n):
                i = state["D"]
                if i >= 36 or i - state["R"] >= NPOST: return
                emit_items(A, w2.D(i)); state["D"] += 1
        def bgR(n=1):
            for _ in range(n):
                i = state["R"]
                if i >= state["D"]: return
                if i >= 32 and not state.get("vfree"): return
                emit_items(A, w2.R(i)); state["R"] += 1
        def bgD_safe(n=1):
            A("s_waitcnt lgkmcnt(0)"); bgD(n)
        A(f"s_lshl_b32 s{S_T0}, s{S_T}, 1"); A(f"s_add_u32 s{S_T0}, s{S_T0}, s{S_WM}"); A(f"s_lshl_b32 s{S_T0}, s{S_T0}, 2")
        A(f"s_lshr_b32 s{S_T1}, s{S_IDX}, 1"); A(f"s_add_u32 s{S_T0}, s{S_T0}, s{S_T1}"); A(f"s_mul_i32 s{S_HB}, s{S_T0}, {36*2048}")
        A(f"s_and_b32 s{S_I1}, s{S_IDX}, 1")
        I1 = S_I1
        R2 = XF
        for tb in range(2):
            A(f"v_mul_f32 v{R2+2*tb}, v{VR+tb}, v{VR+tb}"); A(f"v_mul_f32 v{R2+2*tb+1}, v{VR+tb}, v{VR+tb}")
        PK = WF
        nst = 0
        gublks = [b for b, kd in enumerate(kinds) if kd in ("gu", "guh")]
        lasth = None
        for blk in gublks:
            kd = kinds[blk]
            if typ == "A":
                if blk == 0:
                    A(f"s_lshl_b32 s{S_T2}, s{I1}, 1"); A(f"s_add_u32 s{S_T2}, s{S_T2}, s{S_WN}"); A(f"s_lshl_b32 s{S_T2}, s{S_T2}, 13"); A(f"s_add_u32 s{S_T2}, s{S_T2}, s{S_HB}")
                else: A(f"s_add_u32 s{S_T2}, s{S_T2}, 2048")
            elif kd == "gu":
                if blk == 2:
                    A(f"s_lshl_b32 s{S_T2}, s{I1}, 2"); A(f"s_lshl_b32 s{S_T3}, s{S_WN}, 1"); A(f"s_add_u32 s{S_T2}, s{S_T2}, s{S_T3}"); A(f"s_add_u32 s{S_T2}, s{S_T2}, 16")
                    A(f"s_lshl_b32 s{S_T2}, s{S_T2}, 11"); A(f"s_add_u32 s{S_T2}, s{S_T2}, s{S_HB}")
                else: A(f"s_add_u32 s{S_T2}, s{S_T2}, 2048")
            else:
                A(f"s_lshl_b32 s{S_T2}, s{I1}, 1"); A(f"s_add_u32 s{S_T2}, s{S_T2}, s{S_WN}"); A(f"s_add_u32 s{S_T2}, s{S_T2}, 24")
                A(f"s_lshl_b32 s{S_T2}, s{S_T2}, 11"); A(f"s_add_u32 s{S_T2}, s{S_T2}, s{S_HB}")
            for tb in range(2):
                a = acc(blk, tb); pk = PK + 4*(nst % 4); nst += 1
                for i in range(4): A(f"v_pk_mul_f32 v[{a+2*i}:{a+2*i+1}], v[{a+2*i}:{a+2*i+1}], v[{a+8+2*i}:{a+8+2*i+1}]")
                for i in range(4): A(f"v_pk_mul_f32 v[{a+2*i}:{a+2*i+1}], v[{a+2*i}:{a+2*i+1}], v[{R2+2*tb}:{R2+2*tb+1}]")
                for i in range(4): A(f"v_cvt_pk_bf16_f32 v{pk+i}, v{a+2*i}, v{a+2*i+1}")
                lasth = f"hs_{blk}_{tb}"
                A.vm(f"buffer_store_dwordx4 v[{pk}:{pk+3}], v{VL16}, s[{S_H}:{S_H+3}], s{S_T2} offen offset:{tb*1024} sc1", id=lasth)
        assert (not LATE_R) or 36 - N_IN <= NPOST
        A.stamp(5); A.stamp(2, "tr")
        FA, ONE = VT+4, VT+5
        A(f"s_mov_b32 s{S_C6}, 0x358637bd"); A(f"s_mov_b32 s{S_C6+1}, 0x358637bd")
        C6 = f"s[{S_C6}:{S_C6+1}]"
        if typ == "A":
            A(f"s_lshl_b32 s{S_T2}, s{I1}, 2"); A(f"s_lshl_b32 s{S_T3}, s{S_WN}, 1"); A(f"s_add_u32 s{S_T2}, s{S_T2}, s{S_T3}"); A(f"s_add_u32 s{S_T2}, s{S_T2}, 28")
            A(f"s_lshl_b32 s{S_T2}, s{S_T2}, 11"); A(f"s_add_u32 s{S_T4}, s{S_T2}, s{S_HB}"); A(f"s_add_u32 s{S_XO}, s{S_T4}, 2048")
            RP = XF + 4; RLP = XF + 6
            for tb in range(2):
                a = acc(4, tb)
                A(f"v_mov_b32 v{RP}, v{VR+tb}"); A(f"v_mov_b32 v{RP+1}, v{VR+tb}")
                A(f"v_mul_f32 v{RLP}, 0x3fb8aa3b, v{VR+tb}"); A(f"v_mul_f32 v{RLP+1}, 0x3fb8aa3b, v{VR+tb}")
                for i in range(0, 16, 4):
                    for j in (0, 2): A(f"v_pk_mul_f32 v[{tt+j}:{tt+j+1}], v[{a+i+j}:{a+i+j+1}], v[{RLP}:{RLP+1}]")
                    for j in (0, 2): A(f"v_pk_fma_f32 v[{a+i+j}:{a+i+j+1}], v[{a+i+j}:{a+i+j+1}], v[{RP}:{RP+1}], {C6}")
                    for j in range(4): A(f"v_exp_f32_e64 v{tt+j}, v{tt+j} clamp")
                    for j in range(4): A(f"v_max_f32 v{a+i+j}, s{S_C6}, v{a+i+j}")
                    for j in (0, 2): A(f"v_pk_add_f32 v[{a+i+j}:{a+i+j+1}], v[{a+i+j}:{a+i+j+1}], v[{tt+j}:{tt+j+1}]")
                    if PHI_D: bgD(1)
                if tb == FLAG_TB and FLAG_TB == 0:
                    A.stamp(3, "tr"); A.wait(lasth); A.stamp(4, "tr"); self.flag_store(0, FA, ONE)
                    if LATE_R == 1: bgD(36 - N_IN)
                for hs in range(2):
                    pk = PK + 4*(nst % 4); nst += 1
                    for i in range(4): A(f"v_cvt_pk_bf16_f32 v{pk+i}, v{a+8*hs+2*i}, v{a+8*hs+2*i+1}")
                    A.vm(f"buffer_store_dwordx4 v[{pk}:{pk+3}], v{VL16}, s[{S_H}:{S_H+3}], s{S_XO if hs else S_T4} offen offset:{tb*1024} sc1", id=f"pq_{tb}_{hs}")
            if FLAG_TB == 1:
                A.stamp(3, "tr"); A.wait(lasth); A.stamp(4, "tr"); self.flag_store(0, FA, ONE)
            bgD(11)
            state["vfree"] = True
            A.stamp(5, "tr")
        else:
            RR = WF; RL = WF + 16; TK = WF + 32; TV = VT + 6
            ONES = XF + 4
            for i in range(4): A(f"v_mov_b32 v{ONES+i}, 0x3f803f80")
            A(f"v_lshrrev_b32 v{tt}, 5, v{VLANE}"); A(f"v_lshlrev_b32 v{tt}, 4, v{tt}")
            A(f"s_lshl_b32 s{S_T0}, s{S_WM}, 8"); A(f"s_add_u32 s{S_T0}, s{S_T0}, {LDS_R}"); A(f"v_add_u32 v{XF+9}, s{S_T0}, v{tt}")
            D2, DZ = acc(2,0), acc(2,1)
            for tb in range(2):
                for q4 in range(4): A(f"ds_read_b128 v[{RR+4*q4}:{RR+4*q4+3}], v{XF+9} offset:{tb*128 + q4*32}")
                A("s_waitcnt lgkmcnt(0)")
                A(f"s_mov_b32 s{S_T0}, 0x3fb8aa3b"); A(f"s_mov_b32 s{S_T1}, 0x3fb8aa3b")
                for i in range(8): A(f"v_pk_mul_f32 v[{RL+2*i}:{RL+2*i+1}], v[{RR+2*i}:{RR+2*i+1}], s[{S_T0}:{S_T1}]")
                a = acc(0, tb); av = acc(1, tb)
                for i in range(0, 16, 4):
                    for j in (0, 2): A(f"v_pk_mul_f32 v[{tt+j}:{tt+j+1}], v[{a+i+j}:{a+i+j+1}], v[{RL+i+j}:{RL+i+j+1}]")
                    for j in (0, 2): A(f"v_pk_fma_f32 v[{a+i+j}:{a+i+j+1}], v[{a+i+j}:{a+i+j+1}], v[{RR+i+j}:{RR+i+j+1}], {C6}")
                    for j in range(4): A(f"v_exp_f32_e64 v{tt+j}, v{tt+j} clamp")
                    for j in range(4): A(f"v_max_f32 v{a+i+j}, s{S_C6}, v{a+i+j}")
                    for j in (0, 2): A(f"v_pk_add_f32 v[{a+i+j}:{a+i+j+1}], v[{a+i+j}:{a+i+j+1}], v[{tt+j}:{tt+j+1}]")
                    if PHI_D: bgD(1)
                for i in range(8): A(f"v_pk_mul_f32 v[{av+2*i}:{av+2*i+1}], v[{av+2*i}:{av+2*i+1}], v[{RR+2*i}:{RR+2*i+1}]")
                for i in range(8): A(f"v_cvt_pk_bf16_f32 v{TK+i}, v{a+2*i}, v{a+2*i+1}")
                for i in range(8): A(f"v_cvt_pk_bf16_f32 v{TV+i}, v{av+2*i}, v{av+2*i+1}")
                A("s_nop 1")
                for f in range(2):
                    c = "0" if (tb == 0 and f == 0) else None
                    A(f"v_mfma_f32_32x32x16_bf16 v[{D2}:{D2+15}], v[{TK+4*f}:{TK+4*f+3}], v[{TV+4*f}:{TV+4*f+3}], {c or f'v[{D2}:{D2+15}]'}")
                    A(f"v_mfma_f32_32x32x16_bf16 v[{DZ}:{DZ+15}], v[{TK+4*f}:{TK+4*f+3}], v[{ONES}:{ONES+3}], {c or f'v[{DZ}:{DZ+15}]'}")
                if tb == FLAG_TB:
                    A.stamp(3, "tr"); A.wait(lasth); A.stamp(4, "tr"); self.flag_store(4, FA, ONE)
                    if LATE_R == 1 and B_EARLY_D: bgD(36 - N_IN)
            if PHI_D: bgD(3)
            A(f"v_and_b32 v{tt}, 31, v{VLANE}"); A(f"v_cmp_gt_u32 vcc, 16, v{tt}")
            A(f"s_lshl_b32 s{S_T0}, s{S_WM}, 13"); A(f"s_lshl_b32 s{S_T1}, s{S_WN}, 12"); A(f"s_add_u32 s{S_T0}, s{S_T0}, s{S_T1}"); A(f"s_add_u32 s{S_T0}, s{S_T0}, {LDS_KV}")
            A(f"v_lshlrev_b32 v{tt}, 2, v{VLANE}"); A(f"v_add_u32 v{tt}, s{S_T0}, v{tt}")
            A("s_nop 7"); A("s_nop 3")
            for r_ in range(16):
                if r_ < 8: A(f"v_cndmask_b32 v{D2+r_}, v{DZ+r_}, v{D2+r_}, vcc")
                else: A(f"v_cndmask_b32 v{D2+r_}, v{D2+r_}, v{DZ+r_}, vcc")
            for r_ in range(16): A(f"ds_write_b32 v{tt}, v{D2+r_} offset:{r_*256}")
            A("s_waitcnt lgkmcnt(0)"); A("s_barrier")
            A(f"s_lshr_b32 s{S_T0}, s{S_WV}, 1"); A(f"s_lshl_b32 s{S_T0}, s{S_T0}, 12"); A(f"s_add_u32 s{S_T0}, s{S_T0}, {LDS_KV}")
            A(f"s_and_b32 s{S_T2}, s{S_WV}, 1")
            A(f"s_mul_i32 s{S_T3}, s{S_T2}, {8*256}"); A(f"s_add_u32 s{S_T0}, s{S_T0}, s{S_T3}")
            A(f"s_lshl_b32 s{S_T3}, s{S_T2}, 6")
            A(f"s_lshl_b32 s{S_T1}, s{S_IDX}, 2"); A(f"s_add_u32 s{S_T1}, s{S_T1}, s{S_WV}")
            A(f"s_mul_i32 s{S_T1}, s{S_T1}, {KV_HEAD}"); A(f"s_add_u32 s{S_T1}, s{S_T1}, {WS_KV}")
            A(f"v_and_b32 v{tt}, 7, v{VLANE}"); A(f"v_lshlrev_b32 v{tt}, 8, v{tt}"); A(f"v_add_u32 v{tt}, s{S_T0}, v{tt}")
            A(f"v_lshrrev_b32 v{tt+1}, 3, v{VLANE}"); A(f"v_lshlrev_b32 v{tt+1}, 2, v{tt+1}")
            A(f"v_add_u32 v{tt+2}, v{tt}, v{tt+1}"); A(f"v_add_u32 v{tt+2}, s{S_T3}, v{tt+2}")
            B0 = ACC
            for n in range(4):
                off = (32*(n>>1) + 8*(n&1))*4
                A(f"ds_read_b32 v{B0+2*n}, v{tt+2} offset:{off}"); A(f"ds_read_b32 v{B0+2*n+1}, v{tt+2} offset:{off+8192}")
            A(f"s_sub_u32 s{S_T3}, 64, s{S_T3}")
            A(f"v_lshlrev_b32 v{tt+3}, 5, v{tt+1}"); A(f"v_add_u32 v{tt+3}, v{tt+3}, v{tt}"); A(f"v_add_u32 v{tt+3}, s{S_T3}, v{tt+3}")
            A(f"v_cmp_gt_u32 vcc, 16, v{VLANE}"); A(f"s_and_saveexec_b64 s[{S_E0}:{S_E0+1}], vcc")
            A(f"ds_read_b32 v{B0+8}, v{tt+3}"); A(f"ds_read_b32 v{B0+9}, v{tt+3} offset:8192")
            A(f"s_mov_b64 exec, s[{S_E0}:{S_E0+1}]")
            A(f"v_lshlrev_b32 v{tt+2}, 2, v{VLANE}"); A(f"v_add_u32 v{tt+2}, s{S_T1}, v{tt+2}")
            A("s_waitcnt lgkmcnt(0)")
            for n in range(4):
                A(f"v_add_f32 v{B0+2*n}, v{B0+2*n}, v{B0+2*n+1}")
                A.vm(f"global_atomic_add_f32 v{tt+2}, v{B0+2*n}, s[{S_WSP}:{S_WSP+1}] offset:{n*256}")
            A(f"v_add_f32 v{B0+8}, v{B0+8}, v{B0+9}")
            A(f"s_and_saveexec_b64 s[{S_E0}:{S_E0+1}], vcc")
            A.vm(f"global_atomic_add_f32 v{tt+2}, v{B0+8}, s[{S_WSP}:{S_WSP+1}] offset:1024", id="kvat")
            A(f"s_mov_b64 exec, s[{S_E0}:{S_E0+1}]")
            bgD(11)
            state["vfree"] = True
            A.stamp(5, "tr")
        A.stamp(6); A.stamp(6, "tr")
        if not LATE_R:
            while state["R"] < 36:
                bgR(3); bgD_safe(3)
            A("s_waitcnt lgkmcnt(0)")

class G2:
    ACC2 = 0; HB = 64; NH = 32; W2V = 192
    def __init__(self, A): self.A = A; self.w2 = W2(A)
    def poll(self, label, vaddr, nl, expect=None, novm=False):
        A = self.A; T = VT
        A(f"s_mov_b32 s{S_T3}, 0")
        A(f"s_mov_b64 s[{S_E0}:{S_E0+1}], exec"); A(f"s_mov_b64 exec, {(1<<nl)-1}")
        A.label(label)
        if novm: A.l.append(f"  global_load_dword v{T+9}, v{vaddr}, s[{S_WSP}:{S_WSP+1}] sc1")
        else: A.vm(f"global_load_dword v{T+9}, v{vaddr}, s[{S_WSP}:{S_WSP+1}] sc1")
        A("s_waitcnt vmcnt(0)")
        if expect is None: A(f"v_cmp_ne_u32 vcc, 0, v{T+9}")
        else: A(f"v_cmp_le_u32 vcc, {expect}, v{T+9}")
        A(f"s_add_u32 s{S_T3}, s{S_T3}, 1")
        A(f"s_cmp_ge_u32 s{S_T3}, {POLL_MAX}"); A(f"s_cbranch_scc1 {label}_x")
        A(f"s_cmp_eq_u64 vcc, exec"); A(f"s_cbranch_scc1 {label}_x")
        A("s_sleep 1"); A(f"s_branch {label}")
        A.label(label + "_x")
        A(f"s_mov_b64 exec, s[{S_E0}:{S_E0+1}]")
    def check(self, label, vreg, nl, expect=None):
        pass
    def body(self):
        A = self.A; T = VT; VL = VLANE
        ACC2 = 0; HB = 64; NH = 16; KVR0 = 128
        A.reset_vm()
        VFL, VKV, VCN = T+10, T+11, T+12
        VF1, VF2 = T+8, T+9
        srd(A, S_O, P_O, P_O+1, 2048*1024)
        srd(A, S_XX, P_X, P_X+1, 2048*1024)
        A(f"s_lshl_b32 s{S_HO}, s{S_TAU}, 2"); A(f"s_add_u32 s{S_HO}, s{S_HO}, s{S_WV}")
        A(f"s_lshl_b32 s{S_T0}, s{S_HO}, 6"); A(f"s_add_u32 s{S_T0}, s{S_T0}, {WS_FLAG}")
        A(f"v_lshlrev_b32 v{VFL}, 2, v{VL}"); A(f"v_add_u32 v{VFL}, s{S_T0}, v{VFL}")
        A(f"s_mul_i32 s{S_HO}, s{S_HO}, {36*2048}")
        A(f"s_add_u32 s{S_T4}, s{S_HO}, {56*1024}")
        A(f"s_mov_b32 s{S_HBASE}, s{S_HO}"); A(f"s_lshl_b32 s{S_HR}, s{S_RHO}, 11")
        A(f"v_and_b32 v{T}, 31, v{VL}"); A(f"v_lshrrev_b32 v{T+1}, 5, v{VL}")
        A(f"v_lshlrev_b32 v{T+2}, 4, v{T+1}"); A(f"v_add_u32 v{T+2}, v{T+2}, v{T}"); A(f"v_subrev_u32 v{T+2}, 16, v{T+2}"); A(f"v_lshlrev_b32 v{T+2}, 5, v{T+2}")
        A(f"v_lshlrev_b32 v{T+3}, 5, v{T+1}"); A(f"v_add_u32 v{T+3}, 1024, v{T+3}")
        A(f"v_cmp_gt_u32 vcc, 16, v{T}"); A("s_nop 1"); A(f"v_cndmask_b32 v{T+2}, v{T+2}, v{T+3}, vcc")
        A(f"s_lshl_b32 s{S_T0}, s{S_WV}, 3"); A(f"s_mul_i32 s{S_T0}, s{S_T0}, {KV_HEAD}"); A(f"s_add_u32 s{S_T0}, s{S_T0}, {WS_KV}")
        A(f"v_add_u32 v{VKV}, s{S_T0}, v{T+2}")
        A(f"s_lshl_b32 s{S_T0}, s{S_WV}, 9"); A(f"s_add_u32 s{S_T0}, s{S_T0}, {WS_KVCNT}")
        A(f"v_lshlrev_b32 v{VCN}, 6, v{VL}"); A(f"v_add_u32 v{VCN}, s{S_T0}, v{VCN}")
        A("s_barrier")
        A("s_waitcnt vmcnt(0)")
        A(f"s_cmp_ge_u32 s{S_CP}, 2"); A("s_cbranch_scc1 K12_sigB")
        A(f"s_lshl_b32 s{S_T0}, s{S_T}, 1"); A(f"s_add_u32 s{S_T0}, s{S_T0}, s{S_WM}"); A(f"s_lshl_b32 s{S_T0}, s{S_T0}, 2")
        A(f"s_lshr_b32 s{S_T1}, s{S_IDX}, 1"); A(f"s_add_u32 s{S_T0}, s{S_T0}, s{S_T1}"); A(f"s_lshl_b32 s{S_T0}, s{S_T0}, 4")
        A(f"s_lshl_b32 s{S_T1}, s{S_I1}, 1"); A(f"s_add_u32 s{S_T0}, s{S_T0}, s{S_T1}"); A(f"s_add_u32 s{S_T0}, s{S_T0}, s{S_WN}")
        A(f"s_add_u32 s{S_T0}, s{S_T0}, 8"); A(f"s_lshl_b32 s{S_T0}, s{S_T0}, 2"); A(f"s_add_u32 s{S_T0}, s{S_T0}, {WS_FLAG}")
        A(f"v_mov_b32 v{T+4}, s{S_T0}"); A(f"v_mov_b32 v{T+5}, 1")
        A(f"s_mov_b64 s[{S_E0}:{S_E0+1}], exec"); A("s_mov_b64 exec, 1")
        A(f"!global_store_dword v{T+4}, v{T+5}, s[{S_WSP}:{S_WSP+1}] sc1")
        A(f"s_mov_b64 exec, s[{S_E0}:{S_E0+1}]"); A("s_branch K12_sigX")
        A("K12_sigB:")
        A(f"s_lshl_b32 s{S_T0}, s{S_IDX}, 2"); A(f"s_add_u32 s{S_T0}, s{S_T0}, s{S_WV}"); A(f"s_lshl_b32 s{S_T0}, s{S_T0}, 6"); A(f"s_add_u32 s{S_T0}, s{S_T0}, {WS_KVCNT}")
        A(f"v_mov_b32 v{T+4}, s{S_T0}"); A(f"v_mov_b32 v{T+5}, 1")
        A(f"s_mov_b64 s[{S_E0}:{S_E0+1}], exec"); A("s_mov_b64 exec, 1")
        A(f"!global_atomic_add v{T+4}, v{T+5}, s[{S_WSP}:{S_WSP+1}] sc1")
        A(f"s_mov_b64 exec, s[{S_E0}:{S_E0+1}]")
        A("K12_sigX:")
        A.stamp(7); A.stamp(7, "tr")
        self.poll("K12_pollH", VFL, 8)
        A.stamp(8, "tr")
        A.stamp(8); A.stamp(1, "g2")
        hstate = {"off": 0}
        def h_items(f):
            o = []
            hb = HB + 4*(f % NH)
            if f % 2 == 0: o.append(f"s_add_u32 s{S_HO}, s{S_HBASE}, s{S_HR}")
            o.append(("vm", f"h{f}", f"buffer_load_dwordx4 v[{hb}:{hb+3}], v{VL16}, s[{S_H}:{S_H+3}], s{S_HO} offen offset:{(f%2)*1024} sc1"))
            if f % 2 == 1 and f < 55:
                o += [f"s_add_u32 s{S_HR}, s{S_HR}, 2048", f"s_cmp_eq_u32 s{S_HR}, {28*2048}", f"s_cselect_b32 s{S_HR}, 0, s{S_HR}"]
            return o
        def pq_items(g):
            o = []
            if g % 4 == 0 and g > 0: o.append(f"s_add_u32 s{S_T4}, s{S_T4}, 4096")
            o.append(("vm", f"pq{g}", f"buffer_load_dwordx4 a[{4*g}:{4*g+3}], v{VL16}, s[{S_H}:{S_H+3}], s{S_T4} offen offset:{(g%4)*1024} sc1"))
            return o
        def kv_items(h):
            b = KVR0 + 8*h
            return [("vm", None, f"global_load_dwordx4 v[{b}:{b+3}], v{VKV}, s[{S_WSP}:{S_WSP+1}] sc1"),
                    ("vm", f"kv{h}", f"global_load_dwordx4 v[{b+4}:{b+7}], v{VKV}, s[{S_WSP}:{S_WSP+1}] offset:16 sc1"),
                    f"v_add_u32 v{VKV}, {KV_HEAD}, v{VKV}"]
        AHEAD = G2_AHEAD
        KVB = [KVR0 + 8*h for h in range(8)]
        DO = [224 - 32, 224 - 16]
        DO = [T - 16 - 16 + 0, 0]
        DO = [208, 224]
        DO = [HB + 32, HB + 48]
        OF = [T, T+4]
        loads = [("h", f) for f in range(56)]
        for h in range(8): loads += [("kv", h), ("pq", 2*h), ("pq", 2*h+1)]
        CHK = G2_CHK
        li = {"n": 0}
        def issue(n):
            o = []
            for _ in range(n):
                if li["n"] >= len(loads): break
                k, x = loads[li["n"]]; li["n"] += 1
                o.append(h_items(x) if k == "h" else (kv_items(x) if k == "kv" else pq_items(x)))
            return o
        A(f"s_mul_i32 s{S_T0}, s{S_J}, {7*1024}"); A(f"s_add_u32 s{S_T0}, s{S_T0}, s{S_HO}")
        for x in issue(4):
            for y in x: A(y)
        if G2_PF:
            for k in range(7):
                if k == 4: A(f"s_add_u32 s{S_T0}, s{S_T0}, 4096")
                A.vm(f"buffer_load_dwordx4 v[{T}:{T+3}], v{VL16}, s[{S_H}:{S_H+3}], s{S_T0} offen offset:{(k%4)*1024} sc1")
        for x in issue(AHEAD - 4):
            for y in x: A(y)
        A.stamp(2, "g2")
        for i in range(28):
            if LATE_R and i == N_IN: A("s_waitcnt lgkmcnt(0)")
            A.wait(f"h{2*i+1}")
            if i == 1: A.stamp(3, "g2")
            gaps = [[] for _ in range(4)]
            if i == CHK - 5:
                gaps[0] += [f"v_add_u32 v{VFL}, 32, v{VFL}", f"s_mov_b64 s[{S_E0}:{S_E0+1}], exec", "s_mov_b64 exec, 15",
                            ("vm", "fq", f"global_load_dword v{VF1}, v{VFL}, s[{S_WSP}:{S_WSP+1}] sc1"), "s_mov_b64 exec, 255",
                            ("vm", "fkv", f"global_load_dword v{VF2}, v{VCN}, s[{S_WSP}:{S_WSP+1}] sc1"), f"s_mov_b64 exec, s[{S_E0}:{S_E0+1}]"]
            if LATE_R and i >= 2 and N_IN + (i - 2) < 36:
                rr = self.w2.R(N_IN + (i - 2))[1:]
                gaps[0] += rr[0]; gaps[3] += rr[1]
            n = 2
            if li["n"] + n > 56 and i < CHK: n = max(0, 56 - li["n"])
            for k, x in enumerate(issue(n)): gaps[1+k] += x
            mf = []
            for tb in range(2):
                hb = HB + 4*((2*i+tb) % NH)
                for nb in range(2):
                    a = ACC2 + 16*(2*nb+tb)
                    c = "0" if i == 0 else f"v[{a}:{a+15}]"
                    mf.append(f"v_mfma_f32_32x32x16_bf16 v[{a}:{a+15}], {self.w2.frag(i,nb)}, v[{hb}:{hb+3}], {c}")
            for g in range(4):
                A(mf[g])
                for x in gaps[g]: A(x)
            if i == CHK - 1:
                A.stamp(4, "g2")
                A.wait("fkv")
                A(f"s_mov_b64 s[{S_E0}:{S_E0+1}], exec"); A("s_mov_b64 exec, 15")
                A(f"v_cmp_ne_u32 vcc, 0, v{VF1}"); A("s_nop 3"); A("s_cmp_eq_u64 vcc, exec"); A(f"s_mov_b64 exec, s[{S_E0}:{S_E0+1}]")
                A("s_cbranch_scc1 K12_qok")
                self.poll("K12_pollQ", VFL, 4, novm=True)
                A.label("K12_qok")
                A(f"s_mov_b64 s[{S_E0}:{S_E0+1}], exec"); A("s_mov_b64 exec, 255")
                A(f"v_cmp_le_u32 vcc, 16, v{VF2}"); A("s_nop 3"); A("s_cmp_eq_u64 vcc, exec"); A(f"s_mov_b64 exec, s[{S_E0}:{S_E0+1}]")
                A("s_cbranch_scc1 K12_kvok")
                self.poll("K12_pollKV", VCN, 8, expect=16, novm=True)
                A.label("K12_kvok")
                A.stamp(5, "g2")
        A.stamp(6, "g2"); A.stamp(1, "att")
        A(f"v_lshrrev_b32 v{T+8}, 3, v{VTID}"); A(f"v_and_b32 v{T+9}, 7, v{VTID}")
        A(f"s_lshl_b32 s{S_T0}, s{S_TAU}, 16"); A(f"s_lshl_b32 s{S_T2}, s{S_J}, 7"); A(f"s_add_u32 s{S_T0}, s{S_T0}, s{S_T2}")
        VG = VFL
        A(f"v_lshlrev_b32 v{VG}, 10, v{T+8}"); A(f"v_lshlrev_b32 v{VCN}, 4, v{T+9}"); A(f"v_add_u32 v{VG}, v{VG}, v{VCN}")
        A(f"s_add_u32 s{S_T2}, s{S_T0}, {32*1024}")
        XR = HB
        A(f"s_mov_b32 s{S_T1}, 0x358637bd")
        A("s_waitcnt lgkmcnt(0)")
        units = [(h, tb) for h in range(8) for tb in range(2)]
        def stA(u):
            h, tb = units[u]; d = DO[u & 1]
            o = []
            if tb == 0:
                o.append(("wait", [f"kv{h}", f"pq{2*h}"]))
                o += [f"v_cvt_pk_bf16_f32 v{KVB[h]+e}, v{KVR0+8*h+2*e}, v{KVR0+8*h+2*e+1}" for e in range(4)]
                o.append("s_nop 1")
            else: o.append(("wait", [f"pq{2*h+1}"]))
            o.append(f"v_mfma_f32_32x32x16_bf16 v[{d}:{d+15}], v[{KVB[h]}:{KVB[h]+3}], {ar(4*(2*h+tb), 4)}, 0")
            return o
        def stB(u):
            d = DO[u & 1]; o = OF[u & 1]; rc = T + 8
            l = [f"v_add_f32 v{rc}, s{S_T1}, v{d}", f"v_rcp_f32 v{rc}, v{rc}", "s_nop 0"]
            l += [f"v_mul_f32 v{d+8+e}, v{rc}, v{d+8+e}" for e in range(8)]
            l += [f"v_cvt_pk_bf16_f32 v{o+e}, v{d+8+2*e}, v{d+8+2*e+1}" for e in range(4)]
            return l
        def stC(u):
            h, tb = units[u]; o = OF[u & 1]; i = 28 + h
            return [f"v_mfma_f32_32x32x16_bf16 v[{ACC2+16*(2*nb+tb)}:{ACC2+16*(2*nb+tb)+15}], {self.w2.frag(i,nb)}, v[{o}:{o+3}], v[{ACC2+16*(2*nb+tb)}:{ACC2+16*(2*nb+tb)+15}]" for nb in range(2)]
        for x in stA(0): A(x)
        A.stamp(2, "att")
        for x in issue(1):
            for y in x: A(y)
        for x in stA(1): A(x)
        for x in issue(2):
            for y in x: A(y)
        A("s_nop 7"); A("s_nop 3")
        for x in stB(0): A(x)
        xdone = False
        for u in range(16):
            c = stC(u)
            nb_ = stB(u+1) if u + 1 < 16 else []
            if u in (2, 6, 10, 13): A.stamp({2:3, 6:4, 10:5, 13:6}[u], "att")
            A("s_nop 1"); A(c[0])
            for x in nb_[:5]: A(x)
            if u + 2 < 16:
                for x in stA(u+2): A(x)
            iss = issue(2)
            for x in iss:
                for y in x: A(y)
            if not iss and not xdone:
                A.vm(f"buffer_load_dwordx4 v[{XR}:{XR+3}], v{VG}, s[{S_XX}:{S_XX+3}], s{S_T0} offen", id="x0")
                A.vm(f"buffer_load_dwordx4 v[{XR+4}:{XR+7}], v{VG}, s[{S_XX}:{S_XX+3}], s{S_T2} offen", id="x1")
                xdone = True
            for x in nb_[5:10]: A(x)
            A(c[1])
            for x in nb_[10:]: A(x)
        assert xdone and li["n"] == len(loads)
        A.stamp(7, "g2"); A.stamp(7, "att")
        RS = 272; WSZ = 64*RS
        A(f"v_and_b32 v{T}, 31, v{VL}"); A(f"v_mul_u32_u24 v{T}, {RS}, v{T}"); A(f"v_lshrrev_b32 v{T+1}, 5, v{VL}"); A(f"v_lshlrev_b32 v{T+1}, 4, v{T+1}"); A(f"v_add_u32 v{T}, v{T}, v{T+1}")
        A(f"s_mul_i32 s{S_T3}, s{S_WV}, {WSZ}"); A(f"v_add_u32 v{T}, s{S_T3}, v{T}")
        A(f"v_lshrrev_b32 v{T+2}, 3, v{VTID}"); A(f"v_and_b32 v{T+3}, 7, v{VTID}")
        A(f"v_mul_u32_u24 v{T+6}, {RS}, v{T+2}"); A(f"v_lshlrev_b32 v{T+7}, 5, v{T+3}"); A(f"v_add_u32 v{T+6}, v{T+6}, v{T+7}")
        A("s_nop 1")
        for tb in range(2):
            if tb == 1: A("s_nop 7")
            for nb in range(2):
                a = ACC2 + 16*(2*nb+tb)
                for q in range(4):
                    A(f"ds_write_b128 v{T}, v[{a+4*q}:{a+4*q+3}] offset:{tb*32*RS + nb*128 + q*32}")
        A("s_waitcnt lgkmcnt(0)"); A("s_barrier")
        A.stamp(8, "g2"); A.stamp(8, "att")
        for ps in range(2):
            b = 72 + 40*ps
            for w in range(4):
                A(f"ds_read_b128 v[{b+8*w}:{b+8*w+3}], v{T+6} offset:{w*WSZ + ps*32*RS}")
                A(f"ds_read_b128 v[{b+8*w+4}:{b+8*w+7}], v{T+6} offset:{w*WSZ + ps*32*RS + 16}")
        for ps in range(2):
            b = 72 + 40*ps
            A(f"s_waitcnt lgkmcnt({8 if ps == 0 else 0})")
            for e in range(0, 8, 2):
                A(f"v_pk_add_f32 v[{b+e}:{b+e+1}], v[{b+e}:{b+e+1}], v[{b+8+e}:{b+8+e+1}]")
                A(f"v_pk_add_f32 v[{b+16+e}:{b+16+e+1}], v[{b+16+e}:{b+16+e+1}], v[{b+24+e}:{b+24+e+1}]")
            for e in range(0, 8, 2):
                A(f"v_pk_add_f32 v[{b+e}:{b+e+1}], v[{b+e}:{b+e+1}], v[{b+16+e}:{b+16+e+1}]")
            A.wait(f"x{ps}")
            xb = XR + 4*ps
            for e in range(4):
                A(f"v_lshlrev_b32 v{T+8}, 16, v{xb+e}"); A(f"v_and_b32 v{T+9}, 0xffff0000, v{xb+e}")
                A(f"v_pk_add_f32 v[{b+2*e}:{b+2*e+1}], v[{b+2*e}:{b+2*e+1}], v[{T+8}:{T+9}]")
                A(f"v_cvt_pk_bf16_f32 v{b+32+e}, v{b+2*e}, v{b+2*e+1}")
            A.vm(f"buffer_store_dwordx4 v[{b+32}:{b+35}], v{VG}, s[{S_O}:{S_O+3}], s{S_T0 if ps == 0 else S_T2} offen")

def gen_k12():
    A = Prog()
    prologue_common(A)
    A(f"s_cmp_ge_u32 s{S_CP}, 2"); A("s_cbranch_scc1 K12_typeB")
    base_nvm = A.nvm; base_ids = dict(A.ids)
    for typ in ("A", "B"):
        if typ == "B":
            A.label("K12_typeB"); A.nvm = base_nvm; A.ids = dict(base_ids)
        g = G1(A, typ)
        g.prologue()
        if STAMP and SMODE == "wait":
            for c in (1,2,3,4,5,6,7): A(f"s_mov_b32 s{SB+2*c}, 0")
            A(f"s_memtime s[{SB+8}:{SB+9}]"); A("s_waitcnt lgkmcnt(0)")
        A.inloop = True
        g.loop()
        A.inloop = False
        if STAMP and SMODE == "wait":
            A(f"s_memtime s[{SB+10}:{SB+11}]"); A("s_waitcnt lgkmcnt(0)"); A(f"s_sub_u32 s{SB+8}, s{SB+10}, s{SB+8}")
        print(f"type {typ}: leftover W2 items after loop: {g.nleft}", file=sys.stderr)
        A.stamp(4); A.stamp(8, "loop")
        g.transition()
        if typ == "A": A("s_branch K12_g2")
    A.label("K12_g2")
    G2(A).body()
    if STAMP:
        A("s_waitcnt vmcnt(0) lgkmcnt(0)")
        A(f"{STAMP_INS} s[60:61]")
        A("s_waitcnt lgkmcnt(0)")
        A(f"s_lshl_b32 s{S_T0}, s2, 2"); A(f"s_add_u32 s{S_T0}, s{S_T0}, s{S_WV}"); A(f"s_lshl_b32 s{S_T0}, s{S_T0}, 6")
        A(f"s_add_u32 s{S_T0}, s{S_T0}, {WS_STAMP + 65536}")
        A(f"v_mov_b32 v{VT}, s{S_T0}")
        for i in range(9):
            A(f"v_mov_b32 v{VT+1}, s{SB+2*i}")
            A.vm(f"global_store_dword v{VT}, v{VT+1}, s[{S_WSP}:{S_WSP+1}] offset:{4*i}")
        A(f"v_mov_b32 v{VT+1}, s60")
        A.vm(f"global_store_dword v{VT}, v{VT+1}, s[{S_WSP}:{S_WSP+1}] offset:36")
    if STAMP and DBGSTAMP:
        A(f"s_cmp_eq_u32 s{S_WV}, 0"); A("s_cbranch_scc0 K12_end")
        A("s_mov_b64 exec, 1")
        for i in range(9):
            A(f"v_mov_b32 v{VT}, {4*(1+i)}"); A(f"v_mov_b32 v{VT+1}, s{SB+2*i}")
            A.vm(f"global_atomic_umax v{VT}, v{VT+1}, s[{S_DBG}:{S_DBG+1}]")
        A(f"v_mov_b32 v{VT}, 40"); A(f"v_mov_b32 v{VT+1}, s60"); A.vm(f"global_atomic_umax v{VT}, v{VT+1}, s[{S_DBG}:{S_DBG+1}]")
        A(f"s_not_b32 s{S_T0}, s{SB}"); A(f"v_mov_b32 v{VT}, 44"); A(f"v_mov_b32 v{VT+1}, s{S_T0}"); A.vm(f"global_atomic_umax v{VT}, v{VT+1}, s[{S_DBG}:{S_DBG+1}]")
    A.label("K12_end")
    return A.text()

def main(path):
    hdr = open("cdna_kernels/" + NAME + ".s.ref").read().split("; Override")[0]
    n = NAME + "_kernel"
    body = gen_k12()
    out = hdr + "; @launch grid=(256,1,1) block=(256,1,1) lds=163840\n"
    out += '.amdgcn_target "amdgcn-amd-amdhsa--gfx950"\n.text\n'
    out += f""".globl {n}
.p2align 8
.type {n},@function
{n}:
{body}
  s_endpgm
.section .rodata,"a"
.p2align 6
.amdhsa_kernel {n}
  .amdhsa_next_free_vgpr 512
  .amdhsa_next_free_sgpr 102
  .amdhsa_accum_offset 256
  .amdhsa_group_segment_fixed_size 0
  .amdhsa_kernarg_size 80
  .amdhsa_user_sgpr_count 2
  .amdhsa_user_sgpr_kernarg_segment_ptr 1
  .amdhsa_system_sgpr_workgroup_id_x 1
.end_amdhsa_kernel
"""
    open(path, "w").write(out)

if __name__ == "__main__":
    if "--stamp" in sys.argv:
        STAMP = True; sys.argv.remove("--stamp")
    for a in list(sys.argv):
        if a.startswith("--nin="): N_IN = int(a[6:]); sys.argv.remove(a)
        if a.startswith("--smode="): SMODE = a[8:]; sys.argv.remove(a)
        if a.startswith("--ahead="): G2_AHEAD = int(a[8:]); sys.argv.remove(a)
        if a.startswith("--chk="): G2_CHK = int(a[6:]); sys.argv.remove(a)
        if a.startswith("--pf="): G2_PF = int(a[5:]); sys.argv.remove(a)
        if a.startswith("--cpf2="): CODE_PF2 = int(a[7:]); sys.argv.remove(a)
        if a.startswith("--wsh="): WS_H = int(a[6:])*1048576; sys.argv.remove(a)
        if a == "--dbgstamp": DBGSTAMP = 1; sys.argv.remove(a)
        if a.startswith("--w2rot="): W2ROT = int(a[8:]); sys.argv.remove(a)
        if a.startswith("--w2start="): W2_START = int(a[10:]); sys.argv.remove(a)
        if a.startswith("--later="): LATE_R = int(a[8:]); sys.argv.remove(a)
        if a.startswith("--bed="): B_EARLY_D = int(a[6:]); sys.argv.remove(a)
        if a.startswith("--ftb="): FLAG_TB = int(a[6:]); sys.argv.remove(a)
        if a.startswith("--pt="): K_PT = int(a[5:]); sys.argv.remove(a)
        if a.startswith("--phid="): PHI_D = int(a[7:]); sys.argv.remove(a)
        if a.startswith("--x1e="): X1_EARLY = int(a[6:]); sys.argv.remove(a)
        if a.startswith("--rot="): ROT = int(a[6:]); sys.argv.remove(a)
        if a.startswith("--cap="): CAP = int(a[6:]); sys.argv.remove(a)
    if "--cyc" in sys.argv:
        STAMP = True; STAMP_INS = "s_memtime"; sys.argv.remove("--cyc")
    main(sys.argv[1] if len(sys.argv) > 1 else "cdna_kernels/" + NAME + ".s")
```

```python
import sys

NAME = "parallel_sum__linear_attn_block__glu_gated_bilinear__prompt"
WS_M, WS_R, WS_KV, KV_HEAD = 0, 8192, 32768, 1152
WS_FLAG = WS_KV + 36864
WS_KVCNT = WS_FLAG + 8192
WS_CS = WS_KVCNT + 2048
WS_STCNT = WS_CS + 20480
WS_CSCNT = WS_STCNT + 2048
NZERO = 18
assert WS_CSCNT + 2048 <= WS_KV + NZERO*4096 <= 131072
DBG_INIT = 0
CS_TMP = 140
A_ONES = 220
VC1, VC2, VC3 = 251, 252, 253
WS_H = 131072
H_BYTES = 32*4*36*2048
POLL_MAX = 200000
STAMP = False
STAMP_INS = 's_memrealtime'
WS_STAMP = 1 << 24
SB = 84
CORR_AT = 28
N_IN = 28
CAP = 5
SMODE = 'main'
ROT = 8
PHI_D = 0
DEFER = 0
S_SIG = 6
K_WOPF = 0
ROT2 = 1
KVMASK = 0
TLB_TOUCH = 0
K_PT = 0
FLAG_TB = 1
B_EARLY_D = 1
LATE_R = 1
X1_EARLY = 1
W2ROT = 1
DBGSTAMP = 0
CODE_PF2 = 0
G2_AHEAD = 12; G2_CHK = 20; G2_PF = 0
K_INITLD = 6; H_INIT = 5; K_CSAT = 10; H_CS = 8; K_CNTLD = 18; H_CNT = 11; K_RANK = 25
CODE_KB = 48

class Prog:
    def __init__(self): self.l = []; self.nvm = 0; self.ids = {}; self.pos = {}; self.inloop = False
    def __call__(self, s):
        if s is None: return
        if isinstance(s, tuple):
            if s[0] == "vm":
                self.l.append("  " + s[2]); self.nvm += 1
                if s[1] is not None: self.ids[s[1]] = self.nvm; self.pos[s[1]] = len(self.l)
            elif s[0] == "stamp":
                self.stamp(s[1], s[2])
            elif s[0] == "vmu":
                self.l.append("  " + s[2]); self.ids[s[1]] = self.nvm
            elif s[0] == "wait":
                last = max(self.ids[i] for i in s[1])
                n = self.nvm - last
                assert n <= 63, (s, n)
                if STAMP and SMODE == "wait" and self.inloop:
                    cat = 2 if s[1][0].startswith("w2_") else (1 if s[1][0].startswith("W") else 3)
                    self.l.append(f"  s_memtime s[98:99]"); self.l.append("  s_waitcnt lgkmcnt(0)")
                    self.l.append(f"  s_waitcnt vmcnt({n})")
                    self.l.append(f"  s_memtime s[100:101]"); self.l.append("  s_waitcnt lgkmcnt(0)")
                    self.l.append(f"  s_sub_u32 s100, s100, s98"); self.l.append(f"  s_add_u32 s{SB+2*cat}, s{SB+2*cat}, s100")
                    return
                self.l.append(f"  s_waitcnt vmcnt({n})" + (" " + s[2] if len(s) > 2 and s[2] else ""))
            else: raise ValueError(s)
        elif s.endswith(":"): self.l.append(s)
        elif s.startswith("!"):
            self.l.append("  " + s[1:])
        else:
            assert not ("buffer_" in s or "global_" in s), s
            self.l.append("  " + s)
    def vm(self, text, id=None): self(("vm", id, text))
    def wait(self, *ids): self(("wait", list(ids)))
    def label(self, s): self.l.append(s + ":")
    def text(self): return "\n".join(self.l)
    def stamp(self, i, mode="main"):
        if STAMP and (mode == SMODE or i == 0): self.l.append(f"  {STAMP_INS} s[{SB+2*i}:{SB+2*i+1}]")
    def reset_vm(self):
        self.ids = {}

def vr(b, n=1): return f"v{b}" if n == 1 else f"v[{b}:{b+n-1}]"
def ar(b, n=1): return f"a{b}" if n == 1 else f"a[{b}:{b+n-1}]"
def srd(A, d, lo, hi, size):
    A(f"s_mov_b32 s{d}, s{lo}"); A(f"s_and_b32 s{d+1}, s{hi}, 0xffff"); A(f"s_mov_b32 s{d+2}, {size}"); A(f"s_mov_b32 s{d+3}, 0x20000")
def srd_off(A, d, lo, hi, off, size):
    A(f"s_add_u32 s{d}, s{lo}, {off}"); A(f"s_addc_u32 s{d+1}, s{hi}, 0"); A(f"s_and_b32 s{d+1}, s{d+1}, 0xffff")
    if isinstance(off, int): A(f"s_mov_b32 s{d+2}, {size - off}")
    else: A(f"s_sub_u32 s{d+2}, {size}, {off}")
    A(f"s_mov_b32 s{d+3}, 0x20000")

X_BASE = 0; X_SLOT = 16384
W_BASE = 49152; W_SLOT = 20480; W_NS = 3
W2IN = W_BASE + W_NS*W_SLOT
NSL = 6
LDS_R = W2IN + 4*NSL*2048
LDS_KV = 0
W2_START = 1
W2POST = 69632; NPOST = 11
DLAG = 5

ACC = 0; WF = 160; XF = 200; TRA = 216; XA = 221; VOW = 225; VOX = 230
VR = 234; VLANE = 236; VL16 = 237; VTID = 238; VDM = 239
VT = 240
VTR = 254; VTR1 = 255
AMF = 228; ACF = 236
def acc(blk, tb): return ACC + (blk*2+tb)*16

S_X = 4; S_W = 8; S_H = 28; S_WSP = 32
S_WV = 34; S_WM = 35; S_WN = 36; S_T = 37; S_IDX = 38
S_KW = 39; S_KH = 40; S_R30 = 41; S_R35 = 42; S_RH = 43; S_KX = 44; S_W1K = 45; S_W4K = 46; S_XB = 47
S_WD = 48; S_LB = 52; S_W2O = 53
S_W2B = 74; S_W2R = 75; S_W2T = 76; S_RHO = 77; S_HR = 75; S_HBASE = 74
S_T0 = 54; S_T1 = 55; S_T2 = 56; S_T3 = 57; S_T4 = 58; S_XO = 59
S_E0 = 60; S_E2 = 62
S_P = 64
P_X, P_WQ, P_WO, P_G, P_U, P_D, P_O = 64, 66, 68, 72, 74, 76, 78
S_DBG = 72; S_KSC = 66; S_CG = 67
S_HB = 80; S_I1 = 81; S_CP = 82; S_TAU = 83; S_J = 70; S_HO = 71
S_WO = 8; S_O = 12; S_XX = 16
S_C6 = 20

def w2row(i):
    if i < 16: return ("D", 256, 16*i)
    if i < 24: return ("D", 128, 1024 + 16*(i-16))
    if i < 28: return ("D", 64, 1536 + 16*(i-24))
    return ("O", 128, 16*(i-28))

class W2:
    def __init__(self, A, vdm2=None): self.A = A; self.vdm2 = vdm2
    def frag(self, ks, nb, W2V=192):
        f = ks*2 + nb
        return ar(4*f, 4) if f < 64 else vr(W2V + 4*(f-64), 4)
    def half(self, ks, nb, h, W2V=192):
        f = ks*2 + nb
        return ar(4*f + 2*h, 2) if f < 64 else vr(W2V + 4*(f-64) + 2*h, 2)
    def slot_off(self, i):
        return (i % NSL)*2048 if i < N_IN else ((i - N_IN) % NPOST)*2048
    def D(self, i):
        o = []
        if i < 28: s, so = S_WD, S_W2R
        else:
            s, so = S_WO, S_W2O
            o.append([f"s_mov_b32 s{S_W2O}, {16*(i-28)*1024}"])
        d0 = ("dma", f"s_add_u32 m0, s{S_LB}, {self.slot_off(i)}", ("vm", f"w2_{i}_0", f"buffer_load_dwordx4 v{VDM}, s[{s}:{s+3}], s{so} offen lds"))
        o.append(d0)
        o.append(("dma", f"s_add_u32 m0, s{S_LB}, {self.slot_off(i) + 1024}", ("vm", f"w2_{i}_1", f"buffer_load_dwordx4 v{self.vdm2}, s[{s}:{s+3}], s{so} offen lds")))
        if i < 27:
            o.append([f"s_add_u32 s{S_W2R}, s{S_W2R}, 16384", f"s_cmp_eq_u32 s{S_W2R}, {28*16384}", f"s_cselect_b32 s{S_W2R}, 0, s{S_W2R}"])
        return o
    def R(self, i):
        o = self.slot_off(i)
        r = [[("wait", [f"w2_{i}_1"])]]
        for nb in range(2):
            va = VTR if nb == 0 else VTR1
            r.append([f"ds_read_b64_tr_b16 {self.half(i, nb, 0)}, v{va} offset:{o}", f"ds_read_b64_tr_b16 {self.half(i, nb, 1)}, v{va} offset:{o+1024}"])
        return r

def emit_items(A, items):
    for it in items:
        if isinstance(it, tuple) and it[0] == "dma":
            A(it[1]); A("s_nop 0"); A(it[2])
        else:
            for s in it: A(s)

def prologue_common(A):
    A("s_cmp_ge_u32 s2, 256"); A("s_cbranch_scc1 K12_end")
    A.stamp(0)
    A(f"s_load_dwordx16 s[{S_P}:{S_P+15}], s[0:1], 0")
    A(f"s_load_dwordx2 s[{S_WSP}:{S_WSP+1}], s[0:1], 72")
    A(f"s_getpc_b64 s[{S_E2}:{S_E2+1}]")
    A("K12_pc:")
    A(f"v_and_b32 v{VLANE}, 63, v0")
    A(f"v_lshrrev_b32 v{VT}, 6, v0")
    A(f"v_mov_b32 v{VTID}, v0")
    A(f"v_lshlrev_b32 v{VL16}, 4, v{VLANE}")
    if TLB_TOUCH:
        A(f"v_lshlrev_b32 v{WF+28}, 3, v{VLANE}")
        A("s_mov_b64 exec, 0x1ff")
        A.vm(f"global_load_dwordx2 v[{WF+30}:{WF+31}], v{WF+28}, s[0:1]", id="kptr")
        A("s_mov_b64 exec, -1")
    A(f"v_readfirstlane_b32 s{S_WV}, v{VT}")
    A(f"s_and_b32 s{S_T0}, s2, 7"); A(f"s_lshr_b32 s{S_T1}, s2, 3")
    A(f"s_lshl_b32 s{S_T2}, s{S_T1}, 2"); A(f"s_add_u32 s{S_T2}, s{S_T2}, s{S_WV}"); A(f"s_min_u32 s{S_T2}, s{S_T2}, ((K12_end-K12_pc)>>10)-1"); A(f"s_lshl_b32 s{S_T2}, s{S_T2}, 10")
    A(f"v_add_u32 v{VT+4}, s{S_T2}, v{VL16}")
    A.vm(f"global_load_dwordx4 v[{WF+36}:{WF+39}], v{VT+4}, s[{S_E2}:{S_E2+1}]")
    A(f"s_and_b32 s{S_T2}, s{S_T1}, 7"); A(f"s_lshr_b32 s{S_CP}, s{S_T1}, 3")
    A(f"s_lshr_b32 s{S_T}, s{S_T0}, 2"); A(f"s_lshl_b32 s{S_T}, s{S_T}, 3"); A(f"s_add_u32 s{S_T}, s{S_T}, s{S_T2}")
    A(f"s_and_b32 s{S_IDX}, s{S_T0}, 3"); A(f"s_lshl_b32 s{S_IDX}, s{S_IDX}, 1")
    A(f"s_and_b32 s{S_T3}, s{S_CP}, 1"); A(f"s_add_u32 s{S_IDX}, s{S_IDX}, s{S_T3}")
    A(f"s_and_b32 s{S_TAU}, s{S_T1}, 3"); A(f"s_lshl_b32 s{S_T3}, s{S_T0}, 2"); A(f"s_add_u32 s{S_TAU}, s{S_TAU}, s{S_T3}")
    A(f"s_lshr_b32 s{S_T4}, s{S_T1}, 2")
    A(f"s_add_u32 s{S_T0}, s{S_CP}, s{S_T2}"); A(f"s_and_b32 s{S_T0}, s{S_T0}, 3"); A(f"s_lshl_b32 s{S_T0}, s{S_T0}, 1")
    A(f"s_lshr_b32 s{S_T1}, s{S_T2}, 2"); A(f"s_add_u32 s{S_T0}, s{S_T0}, s{S_T1}")
    if ROT2: A(f"s_add_u32 s{S_T0}, s{S_CP}, s{S_T2}"); A(f"s_and_b32 s{S_T0}, s{S_T0}, 7")
    A(f"s_lshl_b32 s{S_KW}, s{S_T0}, 6")
    A(f"s_lshr_b32 s{S_WM}, s{S_WV}, 1"); A(f"s_and_b32 s{S_WN}, s{S_WV}, 1")
    t0, t1, t3, t4 = VT, VT+1, VT+3, VT+4
    A(f"v_lshrrev_b32 v{t0}, 3, v{VLANE}"); A(f"v_and_b32 v{t1}, 7, v{VLANE}")
    A(f"v_lshrrev_b32 v{t3}, 4, v{VLANE}"); A(f"v_xor_b32 v{t3}, v{t1}, v{t3}"); A(f"v_lshlrev_b32 v{t3}, 4, v{t3}")
    A(f"v_lshlrev_b32 v{t4}, 10, v{t0}"); A(f"v_add_u32 v{VOX}, v{t3}, v{t4}")
    A(f"v_xor_b32 v{VOX+1}, 64, v{VOX}"); A(f"v_add_u32 v{VOX+1}, {8*1024}, v{VOX+1}")
    A(f"v_add_u32 v{VOX+2}, {16*1024}, v{VOX}"); A(f"v_add_u32 v{VOX+3}, {16*1024}, v{VOX+1}")
    A(f"s_lshl_b32 s{S_XB}, s{S_T}, 7"); A(f"s_lshl_b32 s{S_T0}, s{S_WV}, 5"); A(f"s_add_u32 s{S_XB}, s{S_XB}, s{S_T0}"); A(f"s_lshl_b32 s{S_XB}, s{S_XB}, 10")
    A(f"s_lshl_b32 s{S_KX}, s{S_KW}, 1")
    A(f"s_and_b32 s{S_T0}, s{S_WV}, 1"); A(f"s_lshl_b32 s{S_T0}, s{S_T0}, 4"); A(f"s_add_u32 s{S_KH}, s{S_KW}, s{S_T0}")
    A(f"s_lshl_b32 s{S_T0}, s{S_WV}, 3"); A(f"s_add_u32 s{S_KW}, s{S_KW}, s{S_T0}")
    A(f"s_lshl_b32 s{S_W1K}, s{S_WV}, 10"); A(f"s_lshl_b32 s{S_W4K}, s{S_WV}, 12")
    A(f"s_lshr_b32 s{S_T0}, s{S_CP}, 1"); A(f"s_lshl_b32 s{S_T0}, s{S_T0}, 3"); A(f"s_add_u32 s{S_T3}, s{S_T0}, s{S_IDX}")
    A(f"s_lshl_b32 s{S_T0}, s{S_T}, 7"); A(f"s_lshl_b32 s{S_T1}, s{S_T3}, 3"); A(f"s_add_u32 s{S_T0}, s{S_T0}, s{S_T1}"); A(f"s_lshl_b32 s{S_T1}, s{S_WV}, 1"); A(f"s_add_u32 s{S_T2}, s{S_T0}, s{S_T1}")
    A(f"s_lshl_b32 s{S_T0}, s{S_T2}, 10"); A(f"v_add_u32 v{VT+5}, s{S_T0}, v{VL16}")
    if TLB_TOUCH:
        A.wait("kptr")
        A("s_mov_b64 exec, 0x1ff")
        A.vm(f"global_load_dword v{WF+29}, v[{WF+30}:{WF+31}], off offset:128")
        A("s_mov_b64 exec, -1")
    A.stamp(1, "pro")
    A("s_waitcnt lgkmcnt(0)")
    if TLB_TOUCH:
        A(f"v_mov_b32 v{WF+28}, 24576"); A("s_mov_b64 exec, 1")
        A.vm(f"global_load_dword v{WF+32}, v{WF+28}, s[{S_WSP}:{S_WSP+1}]")
        A("s_mov_b64 exec, -1")
    A.stamp(2, "pro")
    A(f"s_mov_b32 s{S_J}, s{S_T4}")
    A(f"s_cmp_ge_u32 s2, {NZERO}"); A("s_cbranch_scc1 K12_nozero")
    A(f"s_lshl_b32 s{S_T0}, s2, 12"); A(f"s_add_u32 s{S_T0}, s{S_T0}, {WS_KV}")
    A(f"v_lshlrev_b32 v{VT+6}, 4, v{VTID}"); A(f"v_add_u32 v{VT+6}, s{S_T0}, v{VT+6}")
    for i in range(4): A(f"v_mov_b32 v{VT+8+i}, 0")
    A(f"!global_store_dwordx4 v{VT+6}, v[{VT+8}:{VT+11}], s[{S_WSP}:{S_WSP+1}] sc1")
    A("K12_nozero:")
    SX = WF + 20
    A.vm(f"global_load_dwordx4 v[{SX}:{SX+3}], v{VT+5}, s[{P_X}:{P_X+1}]")
    A.vm(f"global_load_dwordx4 v[{SX+4}:{SX+7}], v{VT+5}, s[{P_X}:{P_X+1}] offset:1024", id="strow")
    A(f"s_lshl_b32 s{S_HB}, s{S_T2}, 2")
    A(f"s_mov_b32 s{S_I1}, s{S_T3}")
    srd(A, S_X, P_X, P_X+1, 2048*1024)

class G1:
    def __init__(self, A, typ):
        self.A = A; self.typ = typ; self.w2 = W2(A, 227 if typ == 'A' else 226)
        self.kinds = ["gu","gu","gu","gu","q"] if typ == "A" else ["k","v","gu","gu","guh"]
        if typ == "A": self.strides = [3584,3584,3584,3584,3072]; self.swz = ["g","u","g","u","q"]
        else: self.strides = [3072,3072,3584,3584,3584]; self.swz = ["q","q","g","u","h"]
    def vow(self, rho):
        key = (self.swz[rho], self.strides[rho])
        for r in range(rho + 1):
            if (self.swz[r], self.strides[r]) == key: return VOW + r
    def Wg(self, h):
        o = []
        if h > 0:
            o.append([f"s_add_u32 s{S_KW}, s{S_KW}, 32", f"s_and_b32 s{S_KW}, s{S_KW}, 511"])
            if self.typ == "B": o.append([f"s_add_u32 s{S_KH}, s{S_KH}, 32", f"s_and_b32 s{S_KH}, s{S_KH}, 511"])
        o.append([f"s_mul_i32 s{S_R30}, s{S_KW}, 3072", f"s_mul_i32 s{S_R35}, s{S_KW}, 3584"])
        if self.typ == "B": o.append([f"s_mul_i32 s{S_RH}, s{S_KH}, 3584"])
        for rho in range(5):
            so = S_RH if self.swz[rho] == "h" else (S_R30 if self.strides[rho] == 3072 else S_R35)
            o.append(("dma", f"s_add_u32 m0, s{S_W1K}, {W_BASE + (h % W_NS)*W_SLOT + rho*4096}",
                      ("vm", f"W{h}_{rho}", f"buffer_load_dwordx4 v{self.vow(rho)}, s[{S_W+4*rho}:{S_W+4*rho+3}], s{so} offen lds")))
        return o
    def Xg(self, sg):
        o = []
        if sg > 0: o.append([f"s_add_u32 s{S_KX}, s{S_KX}, 128", f"s_and_b32 s{S_KX}, s{S_KX}, 1023"])
        o.append([f"s_add_u32 s{S_XO}, s{S_XB}, s{S_KX}"])
        for j in range(4):
            o.append(("dma", f"s_add_u32 m0, s{S_W4K}, {X_BASE + (sg % 3)*X_SLOT + j*1024}",
                      ("vm", f"X{sg}_{j}", f"buffer_load_dwordx4 v{VOX+j}, s[{S_X}:{S_X+3}], s{S_XO} offen lds")))
        return o
    def reads(self, s):
        par = s & 1; kk = s & 3; sg = s >> 2; h = s >> 1; second = s & 1
        xo = (sg % 3)*X_SLOT
        o = [f"ds_read_b128 v[{XF+8*par}:{XF+8*par+3}], v{XA+kk} offset:{xo}", f"ds_read_b128 v[{XF+8*par+4}:{XF+8*par+7}], v{XA+kk} offset:{xo+4096}"]
        for blk, kd in enumerate(self.kinds):
            b = WF + 20*par + 4*blk
            if kd == "guh": o1, o2 = (1024 if second else 0), 256
            else: o1, o2 = (2048 if second else 0), 512
            o1 += (h % W_NS)*W_SLOT
            o.append(f"ds_read_b64_tr_b16 v[{b}:{b+1}], v{TRA+blk} offset:{o1}")
            o.append(f"ds_read_b64_tr_b16 v[{b+2}:{b+3}], v{TRA+blk} offset:{o1+o2}")
        return o
    def mfmas(self, s, order=None):
        par = s & 1; o = []
        for blk in (order or range(5)):
            kd = self.kinds[blk]
            wf = f"v[{WF+20*par+4*blk}:{WF+20*par+4*blk+3}]"
            for tb in range(2):
                xf = f"v[{XF+8*par+4*tb}:{XF+8*par+4*tb+3}]"; a = acc(blk, tb)
                c = "0" if s == 0 else f"v[{a}:{a+15}]"
                if kd in ("k", "v"): o.append(f"v_mfma_f32_32x32x16_bf16 v[{a}:{a+15}], {xf}, {wf}, {c}")
                else: o.append(f"v_mfma_f32_32x32x16_bf16 v[{a}:{a+15}], {wf}, {xf}, {c}")
        return o
    def corr(self):
        o = []
        for blk in range(5):
            for tb in range(2):
                a = acc(blk, tb); cf = ar(ACF+4*blk, 4); mf = ar(AMF+4*tb, 4)
                if self.kinds[blk] in ("k", "v"): o.append(f"v_mfma_f32_32x32x16_bf16 v[{a}:{a+15}], {mf}, {cf}, v[{a}:{a+15}]")
                else: o.append(f"v_mfma_f32_32x32x16_bf16 v[{a}:{a+15}], {cf}, {mf}, v[{a}:{a+15}]")
        return o

    def prologue(self):
        A, typ, kinds = self.A, self.typ, self.kinds
        SZQ, SZG = 512*3072, 512*3584
        A.stamp(3, "pro")
        emit_items(A, self.Xg(0))
        A.stamp(4, "pro")
        if typ == "A":
            A(f"s_lshr_b32 s{S_T0}, s{S_IDX}, 1"); A(f"s_mul_i32 s{S_T0}, s{S_T0}, 7"); A(f"s_and_b32 s{S_T1}, s{S_IDX}, 1"); A(f"s_lshl_b32 s{S_T1}, s{S_T1}, 1")
            A(f"s_add_u32 s{S_T0}, s{S_T0}, s{S_T1}"); A(f"s_lshl_b32 s{S_T0}, s{S_T0}, 7")
            srd_off(A, S_W+0, P_G, P_G+1, f"s{S_T0}", SZG); srd_off(A, S_W+4, P_U, P_U+1, f"s{S_T0}", SZG)
            A(f"s_add_u32 s{S_T0}, s{S_T0}, 128")
            srd_off(A, S_W+8, P_G, P_G+1, f"s{S_T0}", SZG); srd_off(A, S_W+12, P_U, P_U+1, f"s{S_T0}", SZG)
            A(f"s_lshl_b32 s{S_T0}, s{S_IDX}, 7")
            srd_off(A, S_W+16, P_WQ, P_WQ+1, f"s{S_T0}", SZQ)
        else:
            A(f"s_lshl_b32 s{S_T0}, s{S_IDX}, 7"); A(f"s_add_u32 s{S_T0}, s{S_T0}, 1024")
            srd_off(A, S_W+0, P_WQ, P_WQ+1, f"s{S_T0}", SZQ)
            A(f"s_add_u32 s{S_T0}, s{S_T0}, 1024")
            srd_off(A, S_W+4, P_WQ, P_WQ+1, f"s{S_T0}", SZQ)
            A(f"s_lshr_b32 s{S_T0}, s{S_IDX}, 1"); A(f"s_mul_i32 s{S_T0}, s{S_T0}, 7"); A(f"s_and_b32 s{S_T1}, s{S_IDX}, 1")
            A(f"s_add_u32 s{S_T0}, s{S_T0}, s{S_T1}"); A(f"s_add_u32 s{S_T0}, s{S_T0}, 4"); A(f"s_lshl_b32 s{S_T0}, s{S_T0}, 7")
            srd_off(A, S_W+8, P_G, P_G+1, f"s{S_T0}", SZG); srd_off(A, S_W+12, P_U, P_U+1, f"s{S_T0}", SZG)
            A(f"s_lshr_b32 s{S_T0}, s{S_IDX}, 1"); A(f"s_mul_i32 s{S_T0}, s{S_T0}, 7"); A(f"s_add_u32 s{S_T0}, s{S_T0}, 6"); A(f"s_lshl_b32 s{S_T0}, s{S_T0}, 7")
            A(f"s_and_b32 s{S_T1}, s{S_IDX}, 1"); A(f"s_lshl_b32 s{S_T1}, s{S_T1}, 6"); A(f"s_add_u32 s{S_T0}, s{S_T0}, s{S_T1}")
            A(f"s_cmp_ge_u32 s{S_WV}, 2")
            A(f"s_cselect_b32 s{S_T2}, s{P_U}, s{P_G}"); A(f"s_cselect_b32 s{S_T3}, s{P_U+1}, s{P_G+1}")
            srd_off(A, S_W+16, S_T2, S_T3, f"s{S_T0}", SZG)
        t0, t1, t2, t3, t4 = VT, VT+1, VT+2, VT+3, VT+4
        A(f"v_lshrrev_b32 v{t0}, 3, v{VLANE}"); A(f"v_and_b32 v{t1}, 7, v{VLANE}")
        A(f"v_lshrrev_b32 v{t2}, 4, v{VLANE}"); A(f"v_and_b32 v{t2}, 1, v{t2}")
        done = {}
        for rho in range(5):
            key = (self.swz[rho], self.strides[rho])
            if key in done: continue
            done[key] = rho
            if self.swz[rho] == "h":
                A(f"v_lshrrev_b32 v{t3}, 2, v{VLANE}"); A(f"v_and_b32 v{t4}, 3, v{VLANE}")
                A(f"s_lshr_b32 s{S_T0}, s{S_WV}, 1"); A(f"s_lshl_b32 s{S_T0}, s{S_T0}, 1")
                A(f"v_xor_b32 v{t4}, s{S_T0}, v{t4}")
                A(f"v_mul_u32_u24 v{t3}, 3584, v{t3}"); A(f"v_lshlrev_b32 v{t4}, 4, v{t4}"); A(f"v_add_u32 v{VOW+rho}, v{t3}, v{t4}")
            else:
                if self.swz[rho] == "q": A(f"v_lshlrev_b32 v{t3}, 2, v{t2}")
                else:
                    A(f"v_lshlrev_b32 v{t3}, 1, v{t2}")
                    if self.swz[rho] == "u": A(f"v_or_b32 v{t3}, 4, v{t3}")
                A(f"v_xor_b32 v{t3}, v{t1}, v{t3}"); A(f"v_lshlrev_b32 v{t3}, 4, v{t3}")
                A(f"v_mul_u32_u24 v{t4}, {self.strides[rho]}, v{t0}"); A(f"v_add_u32 v{VOW+rho}, v{t3}, v{t4}")
        A.stamp(5, "pro")
        emit_items(A, self.Wg(0)); A.stamp(6, "pro"); emit_items(A, self.Wg(1))
        A.stamp(1); A.stamp(7, "pro")
        A(f"v_lshlrev_b32 v{t3}, 2, v{t2}"); A(f"v_xor_b32 v{t3}, v{t1}, v{t3}"); A(f"v_lshlrev_b32 v{t3}, 4, v{t3}")
        A(f"v_lshlrev_b32 v{t4}, 10, v{t0}"); A(f"v_add_u32 v{VDM}, v{t3}, v{t4}")
        A(f"v_add_u32 v{self.w2.vdm2}, 8192, v{VDM}")
        A(f"s_lshl_b32 s{S_T0}, s{S_J}, 7"); A(f"s_mul_i32 s{S_T1}, s{S_WV}, {448*1024}"); A(f"s_add_u32 s{S_T0}, s{S_T0}, s{S_T1}")
        srd_off(A, S_WD, P_D, P_D+1, f"s{S_T0}", 1792*1024)
        A(f"s_mul_i32 s{S_LB}, s{S_WV}, {NSL*2048}"); A(f"s_add_u32 s{S_LB}, s{S_LB}, {W2IN}")
        A(f"s_lshr_b32 s{S_T0}, s2, 3"); A(f"s_and_b32 s{S_T1}, s{S_T0}, 3"); A(f"s_mul_i32 s{S_T1}, s{S_T1}, 7"); A(f"s_lshr_b32 s{S_T0}, s{S_T0}, 2"); A(f"s_mul_i32 s{S_T0}, s{S_T0}, 3")
        A(f"s_add_u32 s{S_RHO}, s{S_T0}, s{S_T1}"); A(f"s_cmp_ge_u32 s{S_RHO}, 28"); A(f"s_cselect_b32 s{S_T0}, 28, 0"); A(f"s_sub_u32 s{S_RHO}, s{S_RHO}, s{S_T0}")
        if not W2ROT: A(f"s_mov_b32 s{S_RHO}, 0")
        A(f"s_lshl_b32 s{S_W2R}, s{S_RHO}, 14")
        A(f"s_load_dwordx2 s[{S_DBG}:{S_DBG+1}], s[0:1], 64")
        A(f"s_mov_b32 s{S_CG}, s{S_I1}")
        A(f"s_lshr_b32 s{S_T0}, s{S_T}, 3"); A(f"s_lshl_b32 s{S_T0}, s{S_T0}, 1"); A(f"s_add_u32 s{S_KSC}, s{S_T0}, s{S_WM}")
        A(f"v_and_b32 v{t0}, 31, v{VLANE}")
        A(f"v_and_b32 v{t1}, 15, v{t0}"); A(f"v_lshrrev_b32 v{t2}, 4, v{t0}")
        def cs_addr(dst, soff_code, lane_kind):
            soff_code()
            if lane_kind == "gu":
                A(f"v_mul_u32_u24 v{t3}, 1792, v{t2}"); A(f"v_add_u32 v{t3}, v{t3}, v{t1}")
            elif lane_kind == "kv":
                A(f"v_lshlrev_b32 v{t3}, 9, v{t2}"); A(f"v_add_u32 v{t3}, v{t3}, v{t1}")
            else: A(f"v_mov_b32 v{t3}, v{t0}")
            A(f"v_add_u32 v{t3}, s{S_T0}, v{t3}"); A(f"v_lshlrev_b32 v{t3}, 2, v{t3}"); A(f"v_add_u32 v{dst}, {WS_CS}, v{t3}")
        if typ == "A":
            cs_addr(VC1, lambda: (A(f"s_lshr_b32 s{S_T0}, s{S_IDX}, 1"), A(f"s_mul_i32 s{S_T0}, s{S_T0}, 7"), A(f"s_and_b32 s{S_T1}, s{S_IDX}, 1"), A(f"s_lshl_b32 s{S_T1}, s{S_T1}, 1"), A(f"s_add_u32 s{S_T0}, s{S_T0}, s{S_T1}"),
                                  A(f"s_add_u32 s{S_T0}, s{S_T0}, s{S_WN}"), A(f"s_lshl_b32 s{S_T0}, s{S_T0}, 6"), A(f"s_add_u32 s{S_T0}, s{S_T0}, 1536")), "gu")
            cs_addr(VC2, lambda: (A(f"s_lshl_b32 s{S_T0}, s{S_IDX}, 6"), A(f"s_lshl_b32 s{S_T1}, s{S_WN}, 5"), A(f"s_add_u32 s{S_T0}, s{S_T0}, s{S_T1}")), "q")
            self.csa = [(VC1, 0), (VC1, 64), (VC1, 128), (VC1, 192), (VC2, 0)]
        else:
            cs_addr(VC2, lambda: (A(f"s_lshl_b32 s{S_T0}, s{S_IDX}, 6"), A(f"s_lshl_b32 s{S_T1}, s{S_WN}, 5"), A(f"s_add_u32 s{S_T0}, s{S_T0}, s{S_T1}"), A(f"s_add_u32 s{S_T0}, s{S_T0}, 512")), "q")
            cs_addr(VC1, lambda: (A(f"s_lshr_b32 s{S_T0}, s{S_IDX}, 1"), A(f"s_mul_i32 s{S_T0}, s{S_T0}, 7"), A(f"s_and_b32 s{S_T1}, s{S_IDX}, 1"), A(f"s_add_u32 s{S_T0}, s{S_T0}, s{S_T1}"), A(f"s_add_u32 s{S_T0}, s{S_T0}, 4"), A(f"s_lshl_b32 s{S_T0}, s{S_T0}, 6"), A(f"s_lshl_b32 s{S_T1}, s{S_WN}, 5"), A(f"s_add_u32 s{S_T0}, s{S_T0}, s{S_T1}"), A(f"s_add_u32 s{S_T0}, s{S_T0}, 1536")), "gu")
            cs_addr(VC3, lambda: (A(f"s_lshr_b32 s{S_T0}, s{S_IDX}, 1"), A(f"s_mul_i32 s{S_T0}, s{S_T0}, 7"), A(f"s_add_u32 s{S_T0}, s{S_T0}, 6"), A(f"s_lshl_b32 s{S_T0}, s{S_T0}, 6"),
                                  A(f"s_and_b32 s{S_T1}, s{S_IDX}, 1"), A(f"s_lshl_b32 s{S_T1}, s{S_T1}, 1"), A(f"s_add_u32 s{S_T1}, s{S_T1}, s{S_WN}"), A(f"s_lshl_b32 s{S_T1}, s{S_T1}, 4"),
                                  A(f"s_add_u32 s{S_T0}, s{S_T0}, s{S_T1}"), A(f"s_add_u32 s{S_T0}, s{S_T0}, 1536")), "gu")
            self.csa = [(VC2, 0), (VC2, 2048), (VC1, 0), (VC1, 64), (VC3, 0)]
        A(f"v_mov_b32 v{t3}, 0x3f803f80")
        for i in range(4): A(f"v_accvgpr_write_b32 a{A_ONES+i}, v{t3}")
        srd_off(A, S_H, S_WSP, S_WSP+1, WS_H, WS_H + H_BYTES)
        G, p, r, c = t0, t1, t2, t3
        A(f"v_lshrrev_b32 v{G}, 4, v{VLANE}"); A(f"v_and_b32 v{G}, 1, v{G}")
        A(f"v_lshrrev_b32 v{p}, 5, v{VLANE}")
        A(f"v_and_b32 v{r}, 15, v{VLANE}"); A(f"v_lshrrev_b32 v{r}, 2, v{r}")
        A(f"v_and_b32 v{c}, 3, v{VLANE}")
        k_, rb, u1, u2 = t4, t4+1, t4+2, t4+3
        A(f"v_lshlrev_b32 v{k_}, 3, v{p}"); A(f"v_add_u32 v{k_}, v{k_}, v{r}")
        A(f"v_lshrrev_b32 v{rb}, 1, v{r}"); A(f"v_and_b32 v{rb}, 1, v{rb}")
        for blk, kd in enumerate(kinds):
            d = TRA + blk
            if typ == "A" and kd == "gu" and blk > 0:
                A(f"v_xor_b32 v{d}, {blk*32}, v{TRA}"); continue
            if typ == "B" and blk == 1:
                A(f"v_add_u32 v{d}, 4096, v{d-1}"); continue
            if typ == "B" and blk == 3:
                A(f"v_xor_b32 v{d}, 32, v{d-1}"); continue
            if kd == "guh":
                A(f"v_lshrrev_b32 v{u1}, 1, v{c}"); A(f"s_lshl_b32 s{S_T0}, s{S_WN}, 1"); A(f"v_add_u32 v{u1}, s{S_T0}, v{u1}")
                A(f"v_lshlrev_b32 v{u2}, 1, v{G}"); A(f"v_xor_b32 v{u1}, v{u1}, v{u2}"); A(f"v_lshlrev_b32 v{u1}, 4, v{u1}")
                A(f"v_lshlrev_b32 v{u2}, 6, v{k_}"); A(f"v_add_u32 v{u1}, v{u1}, v{u2}")
                A(f"v_lshlrev_b32 v{u2}, 11, v{G}"); A(f"v_add_u32 v{u1}, v{u1}, v{u2}")
                A(f"v_add_u32 v{u1}, {W_BASE + 4*4096}, v{u1}")
            else:
                if kd in ("q", "k"):
                    A(f"s_lshl_b32 s{S_T0}, s{S_WN}, 1"); A(f"v_add_u32 v{u1}, s{S_T0}, v{G}")
                elif typ == "A": A(f"v_mov_b32 v{u1}, 0")
                else:
                    A(f"s_lshl_b32 s{S_T0}, s{S_WN}, 1"); A(f"v_mov_b32 v{u1}, s{S_T0}")
                A(f"v_lshlrev_b32 v{u1}, 1, v{u1}"); A(f"v_lshrrev_b32 v{u2}, 1, v{c}"); A(f"v_add_u32 v{u1}, v{u1}, v{u2}")
                if kd in ("q", "k"): A(f"v_lshlrev_b32 v{u2}, 2, v{rb}")
                else:
                    A(f"v_lshlrev_b32 v{u2}, 1, v{rb}"); A(f"v_lshlrev_b32 v{d}, 2, v{G}"); A(f"v_or_b32 v{u2}, v{u2}, v{d}")
                A(f"v_xor_b32 v{u1}, v{u1}, v{u2}"); A(f"v_lshlrev_b32 v{u1}, 4, v{u1}")
                A(f"v_lshlrev_b32 v{u2}, 7, v{k_}"); A(f"v_add_u32 v{u1}, v{u1}, v{u2}")
                if kd == "q": A(f"v_add_u32 v{u1}, {W_BASE + 4*4096}, v{u1}")
                elif kd == "k": A(f"v_add_u32 v{u1}, {W_BASE}, v{u1}")
                else:
                    if typ == "A":
                        A(f"s_lshl_b32 s{S_T0}, s{S_WN}, 13"); A(f"s_add_u32 s{S_T0}, s{S_T0}, {W_BASE}")
                    else: A(f"s_mov_b32 s{S_T0}, {W_BASE + 2*4096}")
                    A(f"v_lshlrev_b32 v{u2}, 12, v{G}"); A(f"v_add_u32 v{u1}, v{u1}, v{u2}"); A(f"v_add_u32 v{u1}, s{S_T0}, v{u1}")
            A(f"v_and_b32 v{u2}, 1, v{c}"); A(f"v_lshlrev_b32 v{u2}, 3, v{u2}"); A(f"v_add_u32 v{d}, v{u1}, v{u2}")
        A(f"v_lshlrev_b32 v{u1}, 2, v{p}"); A(f"v_add_u32 v{u1}, v{u1}, v{r}"); A(f"v_lshlrev_b32 v{u1}, 7, v{u1}")
        A(f"v_lshlrev_b32 v{u2}, 1, v{G}"); A(f"v_lshrrev_b32 v{VTR}, 1, v{c}"); A(f"v_add_u32 v{u2}, v{u2}, v{VTR}")
        A(f"v_lshlrev_b32 v{VTR}, 2, v{rb}"); A(f"v_xor_b32 v{u2}, v{u2}, v{VTR}"); A(f"v_lshlrev_b32 v{u2}, 4, v{u2}"); A(f"v_add_u32 v{u1}, v{u1}, v{u2}")
        A(f"v_and_b32 v{u2}, 1, v{c}"); A(f"v_lshlrev_b32 v{u2}, 3, v{u2}"); A(f"v_add_u32 v{u1}, v{u1}, v{u2}")
        A(f"v_add_u32 v{VTR}, s{S_LB}, v{u1}"); A(f"v_xor_b32 v{VTR1}, 64, v{VTR}")
        A(f"v_and_b32 v{u1}, 31, v{VLANE}"); A(f"s_lshl_b32 s{S_T0}, s{S_WM}, 6"); A(f"v_add_u32 v{u1}, s{S_T0}, v{u1}")
        A(f"v_lshrrev_b32 v{u2}, 1, v{u1}"); A(f"v_and_b32 v{u2}, 7, v{u2}"); A(f"v_xor_b32 v{u2}, v{u2}, v{p}"); A(f"v_lshlrev_b32 v{u2}, 4, v{u2}")
        A(f"v_lshlrev_b32 v{u1}, 7, v{u1}"); A(f"v_add_u32 v{u1}, v{u1}, v{u2}")
        for kk in range(4): A(f"v_xor_b32 v{XA+kk}, {kk*32}, v{u1}")
        if X1_EARLY: emit_items(A, self.Xg(1))
        SX = WF + 20
        A.wait("strow")
        P0, P1, Q0, Q1, U = VT, VT+2, VT+4, VT+6, VT+8
        for tok, (P, Q) in enumerate(((P0, Q0), (P1, Q1))):
            for i in range(4):
                src = SX + 4*tok + i
                A(f"v_lshlrev_b32 v{U}, 16, v{src}"); A(f"v_and_b32 v{U+1}, 0xffff0000, v{src}")
                if i == 0:
                    A(f"v_pk_mul_f32 v[{Q}:{Q+1}], v[{U}:{U+1}], v[{U}:{U+1}]"); A(f"v_mov_b32 v{P}, v{U}"); A(f"v_mov_b32 v{P+1}, v{U+1}")
                else:
                    A(f"v_pk_add_f32 v[{P}:{P+1}], v[{P}:{P+1}], v[{U}:{U+1}]"); A(f"v_pk_fma_f32 v[{Q}:{Q+1}], v[{U}:{U+1}], v[{U}:{U+1}], v[{Q}:{Q+1}]")
        for r_ in (P0, P1, Q0, Q1): A(f"v_add_f32 v{r_}, v{r_}, v{r_+1}")
        for dpp in ("row_shr:1 row_mask:0xf bank_mask:0xf", "row_shr:2 row_mask:0xf bank_mask:0xf", "row_shr:4 row_mask:0xf bank_mask:0xf", "row_shr:8 row_mask:0xf bank_mask:0xf",
                    "row_bcast:15 row_mask:0xa bank_mask:0xf", "row_bcast:31 row_mask:0xc bank_mask:0xf"):
            for r_ in (P0, P1, Q0, Q1): A(f"v_add_f32_dpp v{r_}, v{r_}, v{r_} {dpp}")
        A(f"v_mul_f32 v{P0}, 0x3b000000, v{P0}"); A(f"v_mul_f32 v{P0+1}, 0x3b000000, v{P1}")
        A(f"v_mul_f32 v{Q0}, 0x3b000000, v{Q0}"); A(f"v_mul_f32 v{Q0+1}, 0x3b000000, v{Q1}")
        for j in range(2):
            A(f"v_fma_f32 v{Q0+j}, -v{P0+j}, v{P0+j}, v{Q0+j}"); A(f"v_max_f32 v{Q0+j}, 0, v{Q0+j}"); A(f"v_add_f32 v{Q0+j}, 0x3727c5ac, v{Q0+j}"); A(f"v_rsq_f32 v{Q0+j}, v{Q0+j}")
        A(f"v_mov_b32 v{U}, s{S_HB}"); A(f"v_add_u32 v{U+1}, {WS_R}, v{U}")
        A(f"s_mov_b64 s[{S_E0}:{S_E0+1}], exec"); A("s_mov_b32 exec_lo, 0"); A("s_mov_b32 exec_hi, 0x80000000")
        A.vm(f"global_store_dwordx2 v{U}, v[{P0}:{P0+1}], s[{S_WSP}:{S_WSP+1}] sc1")
        A.vm(f"global_store_dwordx2 v{U+1}, v[{Q0}:{Q0+1}], s[{S_WSP}:{S_WSP+1}] sc1", id="stst")
        A(f"s_mov_b64 exec, s[{S_E0}:{S_E0+1}]")
        A.stamp(2)
        A("s_waitcnt lgkmcnt(0)")
        A.wait("X0_3", "W0_4")
        A("s_barrier")
        A.stamp(3); A.stamp(8, "pro")
        for s in self.reads(0): A(s)
        A.stamp(1, "init")
        for x in self.sig(f"s_cmp_lt_u32 s2, {NZERO}", S_DBG, DBG_INIT, None, "init"): A(x)
        A.stamp(2, "init")

    def sig(self, cond, base, off_imm, off_sgpr, tag):
        L = f"K12{self.typ}_sig_{tag}"
        o = []
        if cond: o += [cond, f"s_cbranch_scc0 {L}"]
        o += [f"s_cmp_eq_u32 s{S_WV}, 0", f"s_cbranch_scc0 {L}"]
        if off_sgpr is None: o += [f"v_mov_b32 v{VT+9}, {off_imm}"]
        else: o += [f"s_lshl_b32 s{S_T4}, s{off_sgpr}, 7", f"s_add_u32 s{S_T4}, s{S_T4}, {off_imm}", f"v_mov_b32 v{VT+9}, s{S_T4}"]
        o += [f"v_mov_b32 v{VT+8}, 1", f"s_mov_b64 s[{S_E0}:{S_E0+1}], exec", "s_mov_b64 exec, 1",
              f"!global_atomic_add v{VT+9}, v{VT+8}, s[{base}:{base+1}] sc1", f"s_mov_b64 exec, s[{S_E0}:{S_E0+1}]", f"{L}:"]
        return o

    def spin(self, tag, base, vaddr, expect):
        L = f"K12{self.typ}_spin_{tag}"
        return [f"s_mov_b32 s{S_T3}, 0", f"{L}:", f"!global_load_dword v{VT+10}, v{vaddr}, s[{base}:{base+1}] sc1", "s_waitcnt vmcnt(0)",
                f"v_readfirstlane_b32 s{S_T4}, v{VT+10}", f"s_add_u32 s{S_T3}, s{S_T3}, 1", f"s_cmp_ge_u32 s{S_T3}, {POLL_MAX}", f"s_cbranch_scc1 {L}_x",
                f"s_cmp_ge_u32 s{S_T4}, {expect}", f"s_cbranch_scc1 {L}_x", "s_sleep 2", f"s_branch {L}", f"{L}_x:"]

    def w0(self, tag, code):
        L = f"K12{self.typ}_w0_{tag}"
        return [f"s_cmp_eq_u32 s{S_WV}, 0", f"s_cbranch_scc0 {L}"] + code + [f"{L}:"]

    def pre_barrier(self, h):
        typ = self.typ; T = VT
        if h == H_INIT:
            return [("stamp", 3, "init")] + self.w0("initchk", [("wait", ["initld"]), f"v_readfirstlane_b32 s{S_T4}, v{T+10}", "s_nop 0", f"s_cmp_ge_u32 s{S_T4}, {NZERO}", f"s_cbranch_scc1 K12{typ}_initok",
                                       f"v_mov_b32 v{T+9}, {DBG_INIT}"] + self.spin("init", S_DBG, T+9, NZERO) + [f"K12{typ}_initok:"]) + [("stamp", 4, "init")]
        if h == H_CNT:
            return [("stamp", 6, "init")] + self.w0("cntchk", [("wait", ["cntld"]), f"v_readfirstlane_b32 s{S_T4}, v{T+5}", "s_nop 0", f"s_cmp_ge_u32 s{S_T4}, 16", f"s_cbranch_scc1 K12{typ}_stok"]
                           + self.spin("st", S_WSP, T+7, 16) + [f"K12{typ}_stok:",
                           f"v_readfirstlane_b32 s{S_T4}, v{T+6}", "s_nop 0", f"s_cmp_ge_u32 s{S_T4}, 16", f"s_cbranch_scc1 K12{typ}_csok"]
                           + self.spin("cs", S_WSP, T+8, 16) + [f"K12{typ}_csok:"]) + [("stamp", 7, "init")]
        return []

    def oneshot_items(self, add, at):
        typ = self.typ; wsp = f"s[{S_WSP}:{S_WSP+1}]"; dbg = f"s[{S_DBG}:{S_DBG+1}]"
        T = VT
        for s in range(4):
            par = s & 1
            it = [f"s_cmp_eq_u32 s{S_KSC}, {s}", f"s_cbranch_scc0 K12{typ}_nocs{s}"]
            for blk in range(5):
                b = WF + 20*par + 4*blk
                it.append(f"v_mfma_f32_32x32x16_bf16 a[{CS_TMP+16*blk}:{CS_TMP+16*blk+15}], a[{A_ONES}:{A_ONES+3}], v[{b}:{b+3}], 0")
            it.append(f"K12{typ}_nocs{s}:")
            self.fixed.setdefault(s, []).append(it)
        self.fixed.setdefault(K_INITLD, []).append(self.w0("initld", [f"v_mov_b32 v{T+9}, {DBG_INIT}", f"s_mov_b64 s[{S_E0}:{S_E0+1}], exec", "s_mov_b64 exec, 1",
                                      ("vmu", "initld", f"global_load_dword v{T+10}, v{T+9}, {dbg} sc1"), f"s_mov_b64 exec, s[{S_E0}:{S_E0+1}]"]))
        it = [[f"v_accvgpr_read_b32 v{T+blk}, a{CS_TMP+16*blk}"] for blk in range(5)]
        at_ = [f"s_mov_b64 s[{S_E0}:{S_E0+1}], exec", "s_mov_b32 exec_hi, 0"]
        for blk in range(5):
            va, off = self.csa[blk]
            at_.append(("vm", f"csat{blk}", f"global_atomic_add_f32 v{va}, v{T+blk}, {wsp} offset:{off}"))
        at_.append(f"s_mov_b64 exec, s[{S_E0}:{S_E0+1}]")
        add(at(K_CSAT), it + [at_])
        self.fixed.setdefault(K_CNTLD, []).append(self.w0("cntld", [f"s_lshl_b32 s{S_T4}, s{S_T}, 7", f"s_add_u32 s{S_T4}, s{S_T4}, {WS_STCNT}", f"v_mov_b32 v{T+7}, s{S_T4}",
                          f"s_lshl_b32 s{S_T4}, s{S_CG}, 7", f"s_add_u32 s{S_T4}, s{S_T4}, {WS_CSCNT}", f"v_mov_b32 v{T+8}, s{S_T4}",
                          f"s_mov_b64 s[{S_E0}:{S_E0+1}], exec", "s_mov_b64 exec, 1",
                          f"!global_load_dword v{T+5}, v{T+7}, {wsp} sc1", ("vmu", "cntld", f"global_load_dword v{T+6}, v{T+8}, {wsp} sc1"),
                          f"s_mov_b64 exec, s[{S_E0}:{S_E0+1}]"]))
        VM = T; VCS = T + 2; VRB = T + 7
        lds = [[f"v_and_b32 v{T+8}, 31, v{VLANE}", f"s_lshl_b32 s{S_T4}, s{S_T}, 7", f"s_lshl_b32 s{S_T3}, s{S_WM}, 6", f"s_add_u32 s{S_T4}, s{S_T4}, s{S_T3}"],
               [f"v_add_u32 v{T+8}, s{S_T4}, v{T+8}", f"v_lshlrev_b32 v{T+8}, 2, v{T+8}", f"v_add_u32 v{T+9}, {WS_R}, v{T+8}"],
               [("vm", None, f"global_load_dword v{VM}, v{T+8}, {wsp} sc1")], [("vm", None, f"global_load_dword v{VM+1}, v{T+8}, {wsp} offset:128 sc1")],
               [("vm", None, f"global_load_dword v{VR}, v{T+9}, {wsp} sc1")], [("vm", None, f"global_load_dword v{VR+1}, v{T+9}, {wsp} offset:128 sc1")]]
        for blk in range(5):
            va, off = self.csa[blk]
            lds.append([("vm", "csld" if blk == 4 and typ == "A" else None, f"global_load_dword v{VCS+blk}, v{va}, {wsp} offset:{off} sc1")])
        if typ == "B":
            lds.append([f"s_lshl_b32 s{S_T4}, s{S_T}, 7", f"v_add_u32 v{T+8}, s{S_T4}, v{VTID}", f"v_lshlrev_b32 v{T+8}, 2, v{T+8}", f"v_add_u32 v{T+8}, {WS_R}, v{T+8}"])
            lds.append([("vm", "csld", f"global_load_dword v{VRB}, v{T+8}, {wsp} sc1")])
        add(at(2*H_CNT-1, 1), lds)
        if K_PT:
            add(at(K_PT), [[f"s_lshl_b32 s{S_T4}, s{S_TAU}, 16", f"s_lshl_b32 s{S_T3}, s{S_J}, 7", f"s_add_u32 s{S_T4}, s{S_T4}, s{S_T3}", f"v_mov_b32 v{T+9}, s{S_T4}"],
                           [f"s_mov_b64 s[{S_E0}:{S_E0+1}], exec", "s_mov_b64 exec, 1", ("vm", None, f"global_load_dword a224, v{T+9}, s[{P_O}:{P_O+1}]"), f"s_mov_b64 exec, s[{S_E0}:{S_E0+1}]"],
                           [f"v_mov_b32 v{T+9}, 0"],
                           [f"s_mov_b64 s[{S_E0}:{S_E0+1}], exec", "s_mov_b64 exec, 1", ("vm", None, f"global_load_dword a227, v{T+9}, s[{P_WO}:{P_WO+1}]"), f"s_mov_b64 exec, s[{S_E0}:{S_E0+1}]"]])
        if K_WOPF:
            it = [[f"s_lshl_b32 s{S_T4}, s{S_WV}, 17", f"s_and_b32 s{S_T3}, s{S_TAU}, 3", f"s_lshl_b32 s{S_T3}, s{S_T3}, 15", f"s_add_u32 s{S_T4}, s{S_T4}, s{S_T3}"],
                  [f"s_lshl_b32 s{S_T3}, s{S_J}, 7", f"s_add_u32 s{S_T4}, s{S_T4}, s{S_T3}", f"v_add_u32 v{T+9}, s{S_T4}, v{VDM}"]]
            for k in range(4):
                it.append([("vm", None, f"global_load_dwordx4 a[224:227], v{T+9}, s[{P_WO}:{P_WO+1}]")] + ([f"v_add_u32 v{T+9}, 8192, v{T+9}"] if k < 3 else []))
            add(at(K_WOPF), it)
        if CODE_PF2:
            add(at(CODE_PF2), [[f"s_getpc_b64 s[{S_E2}:{S_E2+1}]", f"K12{typ}_pc2:", f"s_lshr_b32 s{S_T4}, s2, 3", f"s_lshl_b32 s{S_T4}, s{S_T4}, 2", f"s_add_u32 s{S_T4}, s{S_T4}, s{S_WV}"],
                               [f"s_min_u32 s{S_T4}, s{S_T4}, ((K12_end-K12{typ}_pc2)>>10)-1", f"s_lshl_b32 s{S_T4}, s{S_T4}, 10", f"v_add_u32 v{T+9}, s{S_T4}, v{VL16}"],
                               [("vm", None, f"global_load_dwordx4 a[224:227], v{T+9}, s[{S_E2}:{S_E2+1}]")]])
        tt = T + 8; b = T + 10
        items = [[("wait", ["csld"])], [f"v_cmp_gt_u32 vcc, 32, v{VLANE}", "s_nop 1"]]
        for tb in range(2):
            items += [[f"v_cndmask_b32 v{tt}, 0, v{VM+tb}, vcc"], [f"v_cvt_pk_bf16_f32 v{b}, v{tt}, v{tt}"],
                      [f"v_and_b32 v{tt+1}, 0xffff0000, v{b}"], [f"v_sub_f32 v{tt+1}, v{tt}, v{tt+1}"],
                      [f"v_cvt_pk_bf16_f32 v{b+1}, v{tt+1}, 0"],
                      [f"v_accvgpr_write_b32 a{AMF+4*tb}, v{b}"], [f"v_accvgpr_write_b32 a{AMF+4*tb+1}, v{b+1}"],
                      [f"v_accvgpr_write_b32 a{AMF+4*tb+2}, 0"], [f"v_accvgpr_write_b32 a{AMF+4*tb+3}, 0"]]
        for blk in range(5):
            items += [[f"v_cndmask_b32 v{tt}, 0, v{VCS+blk}, vcc"], [f"v_sub_f32 v{tt}, 0, v{tt}"],
                      [f"v_cvt_pk_bf16_f32 v{b+1}, v{tt}, 0"], [f"v_lshlrev_b32 v{tt+1}, 16, v{b+1}"], [f"v_sub_f32 v{tt+1}, v{tt}, v{tt+1}"],
                      [f"v_cvt_pk_bf16_f32 v{b}, v{tt}, v{tt+1}"],
                      [f"v_accvgpr_write_b32 a{ACF+4*blk}, v{b}"], [f"v_accvgpr_write_b32 a{ACF+4*blk+1}, v{b+1}"],
                      [f"v_accvgpr_write_b32 a{ACF+4*blk+2}, 0"], [f"v_accvgpr_write_b32 a{ACF+4*blk+3}, 0"]]
        if typ == "B":
            items += [[f"v_lshlrev_b32 v{tt}, 2, v{VTID}"], [f"v_add_u32 v{tt}, {LDS_R}, v{tt}"],
                      [f"v_cmp_gt_u32 vcc, 128, v{VTID}", f"s_and_saveexec_b64 s[{S_E0}:{S_E0+1}], vcc", f"ds_write_b32 v{tt}, v{VRB}", f"s_mov_b64 exec, s[{S_E0}:{S_E0+1}]"]]
        add(at(K_RANK), items)

    def loop(self):
        A = self.A
        self.loop_start = len(A.l)
        steps = []
        for s in range(32):
            if s == CORR_AT: steps.append(("c", None))
            steps.append(("k", s))
        order_last = [b for b, kd in enumerate(self.kinds) if kd in ("gu","guh")] + [b for b, kd in enumerate(self.kinds) if kd not in ("gu","guh")]
        idx_of = {st: i for i, st in enumerate(steps)}
        def at(s, g=0): return (idx_of[("k", s)], g)
        flex = []; flex2 = []
        def add(pos, items):
            for it in items: flex.append((pos, it))
        def add2(pos, items):
            for it in items: flex2.append((pos, it))
        add(at(0), self.Wg(2))
        if not X1_EARLY: add(at(0), self.Xg(1))
        add(at(1, 1), self.Xg(2))
        for h in range(1, 14): add(at(2*h-1, 1), self.Wg(h+2))
        for sg in range(1, 6): add(at(4*sg-1, 1), self.Xg(sg+2))
        self.fixed = {}
        tagD = {}; tagR = {}; keep = []; placedR = {}
        self.oneshot_items(add, at)
        self.w2_done_R = []
        for i in range(N_IN):
            dd = self.w2.D(i); tagD[id(dd[0])] = i; keep.append(dd)
            add2(at(min(i+W2_START, 31)), dd)
            rr = self.w2.R(i); tagR[id(rr[-1])] = i; keep.append(rr)
            add2(at(min(i+W2_START+DLAG, 31)), rr); self.w2_done_R.append(i)
        flex.sort(key=lambda x: x[0])
        gaps_all = []
        flex2.sort(key=lambda x: x[0])
        queues = [list(flex), list(flex2)]
        for si, st in enumerate(steps):
            gaps = [[] for _ in range(10)]
            head = []
            if st[0] == "k":
                s = st[1]
                M = self.mfmas(s, order_last if s == 31 else None)
                head = ["s_waitcnt lgkmcnt(0)"]
                odd = s & 1
                if odd:
                    h = (s + 1)//2
                    if h <= 15:
                        ids = [f"W{h}_4"] + ([f"X{h//2}_3"] if h % 2 == 0 else [])
                        if h == H_INIT: ids.append("stst")
                        if h == H_CS: ids.append("csat4")
                        if STAMP and SMODE == "wait":
                            gaps[0] += self.pre_barrier(h) + [("wait", ids), "s_memtime s[98:99]", "s_waitcnt lgkmcnt(0)", "s_barrier", "s_memtime s[100:101]", "s_waitcnt lgkmcnt(0)", "s_sub_u32 s100, s100, s98", f"s_add_u32 s{SB+12}, s{SB+12}, s100"]
                        else:
                            gaps[0] += self.pre_barrier(h) + [("wait", ids), "s_barrier"]
                        if h == H_INIT: gaps[0] += self.sig(None, S_WSP, WS_STCNT, S_T, "st")
                        if h == H_CS: gaps[0] += self.sig(None, S_WSP, WS_CSCNT, S_CG, "cs")
                    else:
                        gaps[0] += ["s_barrier"]
                nxt = s + 1
                if nxt < 32:
                    rd = self.reads(nxt)
                    g0 = 1 if odd else 0
                    for i, x in enumerate(rd): gaps[g0 + i//2].append(x)
            else:
                M = self.corr(); head = ["s_waitcnt lgkmcnt(0)"]
            if st[0] == "k" and st[1] in self.fixed:
                for it in self.fixed[st[1]]: gaps[9] += it
            for qi in range(2):
                pending = queues[qi]
                gi = 0
                rest = []
                blocked = False
                for (pos, it) in pending:
                    if blocked or pos[0] > si:
                        rest.append((pos, it)); continue
                    if id(it) in tagD and placedR.get(tagD[id(it)] - NSL, -1) == si:
                        rest.append((pos, it)); blocked = True; continue
                    if id(it) in tagD and tagD[id(it)] >= NSL and (tagD[id(it)] - NSL) not in placedR:
                        rest.append((pos, it)); blocked = True; continue
                    g = max(gi, pos[1] if pos[0] == si else 0)
                    need = 2 if (isinstance(it, tuple) and it[0] == "dma") else len(it)
                    while g < 10 and len(gaps[g]) + min(need, CAP) > CAP: g += 1
                    if g >= 10:
                        rest.append((pos, it)); blocked = True; continue
                    if id(it) in tagR: placedR[tagR[id(it)]] = si
                    if isinstance(it, tuple) and it[0] == "dma":
                        gaps[g].append(it[1]); gaps[g].append("__NOP__"); gaps[g].append(it[2]); gi = g + 1
                    else:
                        gaps[g] += it; gi = g
                queues[qi] = rest
            for g in gaps:
                while "__NOP__" in g:
                    i = g.index("__NOP__")
                    cand = [j for j in range(i-1) if isinstance(g[j], str) and g[j].startswith("ds_read")]
                    if cand:
                        x = g.pop(cand[-1]); i -= 1; g[i] = x
                    else: g[i] = "s_nop 0"
            if st[0] == "k" and st[1] % 4 == 0 and st[1] > 0: A.stamp(st[1]//4, "loop")
            for x in head: A(x)
            for i in range(10):
                A(M[i])
                for x in gaps[i]:
                    if x == "__WOSRD__":
                        assert "W15_4" in A.ids
                        A(f"s_lshl_b32 s{S_T0}, s{S_J}, 7"); A(f"s_lshl_b32 s{S_T1}, s{S_WV}, 17"); A(f"s_add_u32 s{S_T0}, s{S_T0}, s{S_T1}")
                        srd_off(A, S_WO, P_WO, P_WO+1, f"s{S_T0}", 512*1024)
                    else: A(x)
        assert not queues[0], queues[0][:3]
        self.leftover = queues[1]
        for (pos, it) in self.leftover:
            if id(it) in tagD: A("s_waitcnt lgkmcnt(0)")
            if it == ["__WOSRD__"]:
                A(f"s_lshl_b32 s{S_T0}, s{S_J}, 7"); A(f"s_lshl_b32 s{S_T1}, s{S_WV}, 17"); A(f"s_add_u32 s{S_T0}, s{S_T0}, s{S_T1}")
                srd_off(A, S_WO, P_WO, P_WO+1, f"s{S_T0}", 512*1024)
            else: emit_items(A, [it])
        self.nleft = len(self.leftover)
        txt = A.l
        for i in range(N_IN - NSL):
            rd = [n for n, x in enumerate(txt) if n > self.loop_start and "ds_read_b64_tr_b16 a[%d:" % (8*i+6) in x]
            if not rd: continue
            pos_r = rd[-1]; pos_d = A.pos[f"w2_{i+NSL}_0"]
            assert pos_d > pos_r and any("lgkmcnt(0)" in x for x in txt[pos_r:pos_d]), ("no lgkm wait", i)

    def flag_store(self, slot_imm, FA, ONE):
        A = self.A
        FA, ONE = VT+4, VT+5
        A(f"v_mov_b32 v{ONE}, 1")
        A(f"s_lshl_b32 s{S_T0}, s{S_T}, 1"); A(f"s_add_u32 s{S_T0}, s{S_T0}, s{S_WM}"); A(f"s_lshl_b32 s{S_T0}, s{S_T0}, 2")
        A(f"s_lshr_b32 s{S_T1}, s{S_IDX}, 1"); A(f"s_add_u32 s{S_T0}, s{S_T0}, s{S_T1}"); A(f"s_lshl_b32 s{S_T0}, s{S_T0}, 4")
        A(f"s_lshl_b32 s{S_T1}, s{S_I1}, 1"); A(f"s_add_u32 s{S_T0}, s{S_T0}, s{S_T1}"); A(f"s_add_u32 s{S_T0}, s{S_T0}, s{S_WN}")
        A(f"s_add_u32 s{S_T0}, s{S_T0}, {slot_imm}"); A(f"s_lshl_b32 s{S_T0}, s{S_T0}, 2"); A(f"s_add_u32 s{S_T0}, s{S_T0}, {WS_FLAG}")
        A(f"v_mov_b32 v{FA}, s{S_T0}")
        A(f"s_mov_b64 s[{S_E0}:{S_E0+1}], exec"); A("s_mov_b64 exec, 1")
        A.vm(f"global_store_dword v{FA}, v{ONE}, s[{S_WSP}:{S_WSP+1}] sc1")
        A(f"s_mov_b64 exec, s[{S_E0}:{S_E0+1}]")

    def transition(self):
        A, typ, kinds = self.A, self.typ, self.kinds
        w2 = self.w2
        tt = VT
        state = {"D": N_IN, "R": N_IN}
        A.stamp(1, "tr")
        A("s_waitcnt lgkmcnt(0)")
        A("s_barrier")
        A(f"s_mul_i32 s{S_T0}, s{S_WV}, {NPOST*2048}"); A(f"s_add_u32 s{S_T0}, s{S_T0}, {W2POST}")
        A(f"s_sub_u32 s{S_T1}, s{S_T0}, s{S_LB}"); A(f"s_mov_b32 s{S_LB}, s{S_T0}")
        A(f"v_add_u32 v{VTR}, s{S_T1}, v{VTR}"); A(f"v_xor_b32 v{VTR1}, 64, v{VTR}")
        A(f"s_lshl_b32 s{S_T0}, s{S_J}, 7"); A(f"s_lshl_b32 s{S_T1}, s{S_WV}, 17"); A(f"s_add_u32 s{S_T0}, s{S_T0}, s{S_T1}")
        srd_off(A, S_WO, P_WO, P_WO+1, f"s{S_T0}", 512*1024)
        def bgD(n=1):
            for _ in range(n):
                i = state["D"]
                if i >= 36 or i - state["R"] >= NPOST: return
                emit_items(A, w2.D(i)); state["D"] += 1
        def bgR(n=1):
            for _ in range(n):
                i = state["R"]
                if i >= state["D"]: return
                if i >= 32 and not state.get("vfree"): return
                emit_items(A, w2.R(i)); state["R"] += 1
        def bgD_safe(n=1):
            A("s_waitcnt lgkmcnt(0)"); bgD(n)
        A(f"s_lshl_b32 s{S_T0}, s{S_T}, 1"); A(f"s_add_u32 s{S_T0}, s{S_T0}, s{S_WM}"); A(f"s_lshl_b32 s{S_T0}, s{S_T0}, 2")
        A(f"s_lshr_b32 s{S_T1}, s{S_IDX}, 1"); A(f"s_add_u32 s{S_T0}, s{S_T0}, s{S_T1}"); A(f"s_mul_i32 s{S_HB}, s{S_T0}, {36*2048}")
        A(f"s_and_b32 s{S_I1}, s{S_IDX}, 1")
        I1 = S_I1
        R2 = XF
        for tb in range(2):
            A(f"v_mul_f32 v{R2+2*tb}, v{VR+tb}, v{VR+tb}"); A(f"v_mul_f32 v{R2+2*tb+1}, v{VR+tb}, v{VR+tb}")
        PK = WF
        nst = 0
        gublks = [b for b, kd in enumerate(kinds) if kd in ("gu", "guh")]
        lasth = None
        for blk in gublks:
            kd = kinds[blk]
            if typ == "A":
                if blk == 0:
                    A(f"s_lshl_b32 s{S_T2}, s{I1}, 1"); A(f"s_add_u32 s{S_T2}, s{S_T2}, s{S_WN}"); A(f"s_lshl_b32 s{S_T2}, s{S_T2}, 13"); A(f"s_add_u32 s{S_T2}, s{S_T2}, s{S_HB}")
                else: A(f"s_add_u32 s{S_T2}, s{S_T2}, 2048")
            elif kd == "gu":
                if blk == 2:
                    A(f"s_lshl_b32 s{S_T2}, s{I1}, 2"); A(f"s_lshl_b32 s{S_T3}, s{S_WN}, 1"); A(f"s_add_u32 s{S_T2}, s{S_T2}, s{S_T3}"); A(f"s_add_u32 s{S_T2}, s{S_T2}, 16")
                    A(f"s_lshl_b32 s{S_T2}, s{S_T2}, 11"); A(f"s_add_u32 s{S_T2}, s{S_T2}, s{S_HB}")
                else: A(f"s_add_u32 s{S_T2}, s{S_T2}, 2048")
            else:
                A(f"s_lshl_b32 s{S_T2}, s{I1}, 1"); A(f"s_add_u32 s{S_T2}, s{S_T2}, s{S_WN}"); A(f"s_add_u32 s{S_T2}, s{S_T2}, 24")
                A(f"s_lshl_b32 s{S_T2}, s{S_T2}, 11"); A(f"s_add_u32 s{S_T2}, s{S_T2}, s{S_HB}")
            for tb in range(2):
                a = acc(blk, tb); pk = PK + 4*(nst % 4); nst += 1
                for i in range(4): A(f"v_pk_mul_f32 v[{a+2*i}:{a+2*i+1}], v[{a+2*i}:{a+2*i+1}], v[{a+8+2*i}:{a+8+2*i+1}]")
                for i in range(4): A(f"v_pk_mul_f32 v[{a+2*i}:{a+2*i+1}], v[{a+2*i}:{a+2*i+1}], v[{R2+2*tb}:{R2+2*tb+1}]")
                for i in range(4): A(f"v_cvt_pk_bf16_f32 v{pk+i}, v{a+2*i}, v{a+2*i+1}")
                lasth = f"hs_{blk}_{tb}"
                A.vm(f"buffer_store_dwordx4 v[{pk}:{pk+3}], v{VL16}, s[{S_H}:{S_H+3}], s{S_T2} offen offset:{tb*1024} sc1", id=lasth)
        assert (not LATE_R) or 36 - N_IN <= NPOST
        A.stamp(5); A.stamp(2, "tr")
        FA, ONE = VT+4, VT+5
        A(f"s_mov_b32 s{S_C6}, 0x358637bd"); A(f"s_mov_b32 s{S_C6+1}, 0x358637bd")
        C6 = f"s[{S_C6}:{S_C6+1}]"
        if typ == "A":
            A(f"s_lshl_b32 s{S_T2}, s{I1}, 2"); A(f"s_lshl_b32 s{S_T3}, s{S_WN}, 1"); A(f"s_add_u32 s{S_T2}, s{S_T2}, s{S_T3}"); A(f"s_add_u32 s{S_T2}, s{S_T2}, 28")
            A(f"s_lshl_b32 s{S_T2}, s{S_T2}, 11"); A(f"s_add_u32 s{S_T4}, s{S_T2}, s{S_HB}"); A(f"s_add_u32 s{S_XO}, s{S_T4}, 2048")
            A(f"s_mov_b32 s22, s{S_T4}"); A(f"s_mov_b32 s23, s{S_XO}")
            RP = XF + 4; RLP = XF + 6
            for tb in range(2):
                a = acc(4, tb)
                A(f"v_mov_b32 v{RP}, v{VR+tb}"); A(f"v_mov_b32 v{RP+1}, v{VR+tb}")
                A(f"v_mul_f32 v{RLP}, 0x3fb8aa3b, v{VR+tb}"); A(f"v_mul_f32 v{RLP+1}, 0x3fb8aa3b, v{VR+tb}")
                for i in range(0, 16, 4):
                    for j in (0, 2): A(f"v_pk_mul_f32 v[{tt+j}:{tt+j+1}], v[{a+i+j}:{a+i+j+1}], v[{RLP}:{RLP+1}]")
                    for j in (0, 2): A(f"v_pk_fma_f32 v[{a+i+j}:{a+i+j+1}], v[{a+i+j}:{a+i+j+1}], v[{RP}:{RP+1}], {C6}")
                    for j in range(4): A(f"v_exp_f32_e64 v{tt+j}, v{tt+j} clamp")
                    for j in range(4): A(f"v_max_f32 v{a+i+j}, s{S_C6}, v{a+i+j}")
                    for j in (0, 2): A(f"v_pk_add_f32 v[{a+i+j}:{a+i+j+1}], v[{a+i+j}:{a+i+j+1}], v[{tt+j}:{tt+j+1}]")
                    if PHI_D: bgD(1)
                if tb == FLAG_TB and FLAG_TB == 0:
                    A.stamp(3, "tr"); A.wait(lasth); A.stamp(4, "tr"); self.flag_store(0, FA, ONE)
                    if LATE_R == 1: bgD(36 - N_IN)
                for hs in range(2):
                    pk = (128 + 4*(2*tb + hs)) if DEFER else PK + 4*(nst % 4); nst += 1
                    for i in range(4): A(f"v_cvt_pk_bf16_f32 v{pk+i}, v{a+8*hs+2*i}, v{a+8*hs+2*i+1}")
                    if not DEFER: A.vm(f"buffer_store_dwordx4 v[{pk}:{pk+3}], v{VL16}, s[{S_H}:{S_H+3}], s{S_XO if hs else S_T4} offen offset:{tb*1024} sc1", id=f"pq_{tb}_{hs}")
            if FLAG_TB == 1:
                A.stamp(3, "tr"); A.wait(lasth); A.stamp(4, "tr"); self.flag_store(0, FA, ONE)
            bgD(11)
            state["vfree"] = True
            A.stamp(5, "tr")
        else:
            RR = WF; RL = WF + 16; TK = WF + 32; TV = VT + 6
            ONES = XF + 4
            for i in range(4): A(f"v_mov_b32 v{ONES+i}, 0x3f803f80")
            A(f"v_lshrrev_b32 v{tt}, 5, v{VLANE}"); A(f"v_lshlrev_b32 v{tt}, 4, v{tt}")
            A(f"s_lshl_b32 s{S_T0}, s{S_WM}, 8"); A(f"s_add_u32 s{S_T0}, s{S_T0}, {LDS_R}"); A(f"v_add_u32 v{XF+9}, s{S_T0}, v{tt}")
            D2, DZ = acc(2,0), acc(2,1)
            for tb in range(2):
                for q4 in range(4): A(f"ds_read_b128 v[{RR+4*q4}:{RR+4*q4+3}], v{XF+9} offset:{tb*128 + q4*32}")
                A("s_waitcnt lgkmcnt(0)")
                A(f"s_mov_b32 s{S_T0}, 0x3fb8aa3b"); A(f"s_mov_b32 s{S_T1}, 0x3fb8aa3b")
                for i in range(8): A(f"v_pk_mul_f32 v[{RL+2*i}:{RL+2*i+1}], v[{RR+2*i}:{RR+2*i+1}], s[{S_T0}:{S_T1}]")
                a = acc(0, tb); av = acc(1, tb)
                for i in range(0, 16, 4):
                    for j in (0, 2): A(f"v_pk_mul_f32 v[{tt+j}:{tt+j+1}], v[{a+i+j}:{a+i+j+1}], v[{RL+i+j}:{RL+i+j+1}]")
                    for j in (0, 2): A(f"v_pk_fma_f32 v[{a+i+j}:{a+i+j+1}], v[{a+i+j}:{a+i+j+1}], v[{RR+i+j}:{RR+i+j+1}], {C6}")
                    for j in range(4): A(f"v_exp_f32_e64 v{tt+j}, v{tt+j} clamp")
                    for j in range(4): A(f"v_max_f32 v{a+i+j}, s{S_C6}, v{a+i+j}")
                    for j in (0, 2): A(f"v_pk_add_f32 v[{a+i+j}:{a+i+j+1}], v[{a+i+j}:{a+i+j+1}], v[{tt+j}:{tt+j+1}]")
                    if PHI_D: bgD(1)
                for i in range(8): A(f"v_pk_mul_f32 v[{av+2*i}:{av+2*i+1}], v[{av+2*i}:{av+2*i+1}], v[{RR+2*i}:{RR+2*i+1}]")
                for i in range(8): A(f"v_cvt_pk_bf16_f32 v{TK+i}, v{a+2*i}, v{a+2*i+1}")
                for i in range(8): A(f"v_cvt_pk_bf16_f32 v{TV+i}, v{av+2*i}, v{av+2*i+1}")
                A("s_nop 1")
                for f in range(2):
                    c = "0" if (tb == 0 and f == 0) else None
                    A(f"v_mfma_f32_32x32x16_bf16 v[{D2}:{D2+15}], v[{TK+4*f}:{TK+4*f+3}], v[{TV+4*f}:{TV+4*f+3}], {c or f'v[{D2}:{D2+15}]'}")
                    A(f"v_mfma_f32_32x32x16_bf16 v[{DZ}:{DZ+15}], v[{TK+4*f}:{TK+4*f+3}], v[{ONES}:{ONES+3}], {c or f'v[{DZ}:{DZ+15}]'}")
                if tb == FLAG_TB:
                    A.stamp(3, "tr"); A.wait(lasth); A.stamp(4, "tr"); self.flag_store(4, FA, ONE)
                    if LATE_R == 1 and B_EARLY_D: bgD(36 - N_IN)
            if PHI_D: bgD(3)
            A(f"v_and_b32 v{tt}, 31, v{VLANE}"); A(f"v_cmp_gt_u32 vcc, 16, v{tt}")
            A(f"s_lshl_b32 s{S_T0}, s{S_WM}, 13"); A(f"s_lshl_b32 s{S_T1}, s{S_WN}, 12"); A(f"s_add_u32 s{S_T0}, s{S_T0}, s{S_T1}"); A(f"s_add_u32 s{S_T0}, s{S_T0}, {LDS_KV}")
            A(f"v_lshlrev_b32 v{tt}, 2, v{VLANE}"); A(f"v_add_u32 v{tt}, s{S_T0}, v{tt}")
            A("s_nop 7"); A("s_nop 3")
            for r_ in range(16):
                if r_ < 8: A(f"v_cndmask_b32 v{D2+r_}, v{DZ+r_}, v{D2+r_}, vcc")
                else: A(f"v_cndmask_b32 v{D2+r_}, v{D2+r_}, v{DZ+r_}, vcc")
            for r_ in range(16): A(f"ds_write_b32 v{tt}, v{D2+r_} offset:{r_*256}")
            A("s_waitcnt lgkmcnt(0)"); A("s_barrier")
            A(f"s_lshr_b32 s{S_T0}, s{S_WV}, 1"); A(f"s_lshl_b32 s{S_T0}, s{S_T0}, 12"); A(f"s_add_u32 s{S_T0}, s{S_T0}, {LDS_KV}")
            A(f"s_and_b32 s{S_T2}, s{S_WV}, 1")
            A(f"s_mul_i32 s{S_T3}, s{S_T2}, {8*256}"); A(f"s_add_u32 s{S_T0}, s{S_T0}, s{S_T3}")
            A(f"s_lshl_b32 s{S_T3}, s{S_T2}, 6")
            A(f"s_lshl_b32 s{S_T1}, s{S_IDX}, 2"); A(f"s_add_u32 s{S_T1}, s{S_T1}, s{S_WV}")
            A(f"s_mul_i32 s{S_T1}, s{S_T1}, {KV_HEAD}"); A(f"s_add_u32 s{S_T1}, s{S_T1}, {WS_KV}")
            A(f"v_and_b32 v{tt}, 7, v{VLANE}"); A(f"v_lshlrev_b32 v{tt}, 8, v{tt}"); A(f"v_add_u32 v{tt}, s{S_T0}, v{tt}")
            A(f"v_lshrrev_b32 v{tt+1}, 3, v{VLANE}"); A(f"v_lshlrev_b32 v{tt+1}, 2, v{tt+1}")
            A(f"v_add_u32 v{tt+2}, v{tt}, v{tt+1}"); A(f"v_add_u32 v{tt+2}, s{S_T3}, v{tt+2}")
            B0 = ACC
            for n in range(4):
                off = (32*(n>>1) + 8*(n&1))*4
                A(f"ds_read_b32 v{B0+2*n}, v{tt+2} offset:{off}"); A(f"ds_read_b32 v{B0+2*n+1}, v{tt+2} offset:{off+8192}")
            A(f"s_sub_u32 s{S_T3}, 64, s{S_T3}")
            A(f"v_lshlrev_b32 v{tt+3}, 5, v{tt+1}"); A(f"v_add_u32 v{tt+3}, v{tt+3}, v{tt}"); A(f"v_add_u32 v{tt+3}, s{S_T3}, v{tt+3}")
            A(f"v_cmp_gt_u32 vcc, 16, v{VLANE}"); A(f"s_and_saveexec_b64 s[{S_E0}:{S_E0+1}], vcc")
            A(f"ds_read_b32 v{B0+8}, v{tt+3}"); A(f"ds_read_b32 v{B0+9}, v{tt+3} offset:8192")
            A(f"s_mov_b64 exec, s[{S_E0}:{S_E0+1}]")
            A(f"v_lshlrev_b32 v{tt+2}, 2, v{VLANE}"); A(f"v_add_u32 v{tt+2}, s{S_T1}, v{tt+2}")
            A("s_waitcnt lgkmcnt(0)")
            if DEFER:
                for n in range(5): A(f"v_add_f32 v{128+n}, v{B0+2*n}, v{B0+2*n+1}")
                A(f"v_mov_b32 v133, v{tt+2}")
            else:
                for n in range(4):
                    A(f"v_add_f32 v{B0+2*n}, v{B0+2*n}, v{B0+2*n+1}")
                    A.vm(f"global_atomic_add_f32 v{tt+2}, v{B0+2*n}, s[{S_WSP}:{S_WSP+1}] offset:{n*256}")
                A(f"v_add_f32 v{B0+8}, v{B0+8}, v{B0+9}")
                A(f"s_and_saveexec_b64 s[{S_E0}:{S_E0+1}], vcc")
                A.vm(f"global_atomic_add_f32 v{tt+2}, v{B0+8}, s[{S_WSP}:{S_WSP+1}] offset:1024", id="kvat")
                A(f"s_mov_b64 exec, s[{S_E0}:{S_E0+1}]")
            bgD(11)
            state["vfree"] = True
            A.stamp(5, "tr")
        A.stamp(6); A.stamp(6, "tr")
        if not LATE_R:
            while state["R"] < 36:
                bgR(3); bgD_safe(3)
            A("s_waitcnt lgkmcnt(0)")

class G2:
    ACC2 = 0; HB = 64; NH = 32; W2V = 192
    def __init__(self, A): self.A = A; self.w2 = W2(A)
    def poll(self, label, vaddr, nl, expect=None, novm=False):
        A = self.A; T = VT
        A(f"s_mov_b32 s{S_T3}, 0")
        A(f"s_mov_b64 s[{S_E0}:{S_E0+1}], exec"); A(f"s_mov_b64 exec, {(1<<nl)-1}")
        A.label(label)
        if novm: A.l.append(f"  global_load_dword v{T+9}, v{vaddr}, s[{S_WSP}:{S_WSP+1}] sc1")
        else: A.vm(f"global_load_dword v{T+9}, v{vaddr}, s[{S_WSP}:{S_WSP+1}] sc1")
        A("s_waitcnt vmcnt(0)")
        if expect is None: A(f"v_cmp_ne_u32 vcc, 0, v{T+9}")
        else: A(f"v_cmp_le_u32 vcc, {expect}, v{T+9}")
        A(f"s_add_u32 s{S_T3}, s{S_T3}, 1")
        A(f"s_cmp_ge_u32 s{S_T3}, {POLL_MAX}"); A(f"s_cbranch_scc1 {label}_x")
        A(f"s_cmp_eq_u64 vcc, exec"); A(f"s_cbranch_scc1 {label}_x")
        A("s_sleep 1"); A(f"s_branch {label}")
        A.label(label + "_x")
        A(f"s_mov_b64 exec, s[{S_E0}:{S_E0+1}]")
    def check(self, label, vreg, nl, expect=None):
        pass
    def body(self):
        A = self.A; T = VT; VL = VLANE
        ACC2 = 0; HB = 64; NH = 16; KVR0 = 128
        A.reset_vm()
        VFL, VKV, VCN = T+10, T+11, T+12
        VF1, VF2 = T+8, T+9
        srd(A, S_O, P_O, P_O+1, 2048*1024)
        srd(A, S_XX, P_X, P_X+1, 2048*1024)
        A(f"s_lshl_b32 s{S_HO}, s{S_TAU}, 2"); A(f"s_add_u32 s{S_HO}, s{S_HO}, s{S_WV}")
        A(f"s_lshl_b32 s{S_T0}, s{S_HO}, 6"); A(f"s_add_u32 s{S_T0}, s{S_T0}, {WS_FLAG}")
        A(f"v_lshlrev_b32 v{VFL}, 2, v{VL}"); A(f"v_add_u32 v{VFL}, s{S_T0}, v{VFL}")
        A(f"s_mul_i32 s{S_HO}, s{S_HO}, {36*2048}")
        A(f"s_add_u32 s{S_T4}, s{S_HO}, {56*1024}")
        A(f"s_mov_b32 s{S_HBASE}, s{S_HO}"); A(f"s_lshl_b32 s{S_HR}, s{S_RHO}, 11")
        A(f"v_and_b32 v{T}, 31, v{VL}"); A(f"v_lshrrev_b32 v{T+1}, 5, v{VL}")
        A(f"v_lshlrev_b32 v{T+2}, 4, v{T+1}"); A(f"v_add_u32 v{T+2}, v{T+2}, v{T}"); A(f"v_subrev_u32 v{T+2}, 16, v{T+2}"); A(f"v_lshlrev_b32 v{T+2}, 5, v{T+2}")
        A(f"v_lshlrev_b32 v{T+3}, 5, v{T+1}"); A(f"v_add_u32 v{T+3}, 1024, v{T+3}")
        A(f"v_cmp_gt_u32 vcc, 16, v{T}"); A("s_nop 1"); A(f"v_cndmask_b32 v{T+2}, v{T+2}, v{T+3}, vcc")
        A(f"s_lshl_b32 s{S_T0}, s{S_WV}, 3"); A(f"s_mul_i32 s{S_T0}, s{S_T0}, {KV_HEAD}"); A(f"s_add_u32 s{S_T0}, s{S_T0}, {WS_KV}")
        A(f"v_add_u32 v{VKV}, s{S_T0}, v{T+2}")
        A(f"s_lshl_b32 s{S_T0}, s{S_WV}, 9"); A(f"s_add_u32 s{S_T0}, s{S_T0}, {WS_KVCNT}")
        A(f"v_lshlrev_b32 v{VCN}, 6, v{VL}"); A(f"v_add_u32 v{VCN}, s{S_T0}, v{VCN}")
        A("s_barrier")
        def signal_block():
            A(f"s_cmp_ge_u32 s{S_CP}, 2"); A("s_cbranch_scc1 K12_sigB")
            A(f"s_lshl_b32 s{S_T0}, s{S_T}, 1"); A(f"s_add_u32 s{S_T0}, s{S_T0}, s{S_WM}"); A(f"s_lshl_b32 s{S_T0}, s{S_T0}, 2")
            A(f"s_lshr_b32 s{S_T1}, s{S_IDX}, 1"); A(f"s_add_u32 s{S_T0}, s{S_T0}, s{S_T1}"); A(f"s_lshl_b32 s{S_T0}, s{S_T0}, 4")
            A(f"s_lshl_b32 s{S_T1}, s{S_I1}, 1"); A(f"s_add_u32 s{S_T0}, s{S_T0}, s{S_T1}"); A(f"s_add_u32 s{S_T0}, s{S_T0}, s{S_WN}")
            A(f"s_add_u32 s{S_T0}, s{S_T0}, 8"); A(f"s_lshl_b32 s{S_T0}, s{S_T0}, 2"); A(f"s_add_u32 s{S_T0}, s{S_T0}, {WS_FLAG}")
            A(f"v_mov_b32 v{T+4}, s{S_T0}"); A(f"v_mov_b32 v{T+5}, 1")
            A(f"s_mov_b64 s[{S_E0}:{S_E0+1}], exec"); A("s_mov_b64 exec, 1")
            A(f"!global_store_dword v{T+4}, v{T+5}, s[{S_WSP}:{S_WSP+1}] sc1")
            A(f"s_mov_b64 exec, s[{S_E0}:{S_E0+1}]"); A("s_branch K12_sigX")
            A("K12_sigB:")
            A(f"s_lshl_b32 s{S_T0}, s{S_IDX}, 2"); A(f"s_add_u32 s{S_T0}, s{S_T0}, s{S_WV}"); A(f"s_lshl_b32 s{S_T0}, s{S_T0}, 6"); A(f"s_add_u32 s{S_T0}, s{S_T0}, {WS_KVCNT}")
            A(f"v_mov_b32 v{T+4}, s{S_T0}"); A(f"v_mov_b32 v{T+5}, 1")
            A(f"s_mov_b64 s[{S_E0}:{S_E0+1}], exec"); A("s_mov_b64 exec, 1")
            A(f"!global_atomic_add v{T+4}, v{T+5}, s[{S_WSP}:{S_WSP+1}] sc1")
            A(f"s_mov_b64 exec, s[{S_E0}:{S_E0+1}]")
            A("K12_sigX:")
        if not DEFER:
            A("s_waitcnt vmcnt(0)")
            signal_block()
        A.stamp(7); A.stamp(7, "tr")
        self.poll("K12_pollH", VFL, 8)
        A.stamp(8, "tr")
        A.stamp(8); A.stamp(1, "g2")
        hstate = {"off": 0}
        def h_items(f):
            o = []
            hb = HB + 4*(f % NH)
            if f % 2 == 0: o.append(f"s_add_u32 s{S_HO}, s{S_HBASE}, s{S_HR}")
            o.append(("vm", f"h{f}", f"buffer_load_dwordx4 v[{hb}:{hb+3}], v{VL16}, s[{S_H}:{S_H+3}], s{S_HO} offen offset:{(f%2)*1024} sc1"))
            if f % 2 == 1 and f < 55:
                o += [f"s_add_u32 s{S_HR}, s{S_HR}, 2048", f"s_cmp_eq_u32 s{S_HR}, {28*2048}", f"s_cselect_b32 s{S_HR}, 0, s{S_HR}"]
            return o
        def pq_items(g):
            o = []
            if g % 4 == 0 and g > 0: o.append(f"s_add_u32 s{S_T4}, s{S_T4}, 4096")
            o.append(("vm", f"pq{g}", f"buffer_load_dwordx4 a[{4*g}:{4*g+3}], v{VL16}, s[{S_H}:{S_H+3}], s{S_T4} offen offset:{(g%4)*1024} sc1"))
            return o
        def kv_items(h):
            b = KVR0 + 8*h
            pre = [f"s_mov_b64 exec, s[{S_C6}:{S_C6+1}]"] if KVMASK else []
            post = ["s_mov_b64 exec, -1"] if KVMASK else []
            return pre + [("vm", None, f"global_load_dwordx4 v[{b}:{b+3}], v{VKV}, s[{S_WSP}:{S_WSP+1}] sc1"),
                    ("vm", f"kv{h}", f"global_load_dwordx4 v[{b+4}:{b+7}], v{VKV}, s[{S_WSP}:{S_WSP+1}] offset:16 sc1")] + post + [
                    f"v_add_u32 v{VKV}, {KV_HEAD}, v{VKV}"]
        if KVMASK:
            A(f"s_mov_b32 s{S_C6}, 0xffff0011"); A(f"s_mov_b32 s{S_C6+1}, 0xffff0011")
        AHEAD = G2_AHEAD
        KVB = [KVR0 + 8*h for h in range(8)]
        DO = [224 - 32, 224 - 16]
        DO = [T - 16 - 16 + 0, 0]
        DO = [208, 224]
        DO = [HB + 32, HB + 48]
        OF = [T, T+4]
        loads = [("h", f) for f in range(56)]
        for h in range(8): loads += [("kv", h), ("pq", 2*h), ("pq", 2*h+1)]
        CHK = G2_CHK
        li = {"n": 0}
        def issue(n):
            o = []
            for _ in range(n):
                if li["n"] >= len(loads): break
                k, x = loads[li["n"]]; li["n"] += 1
                o.append(h_items(x) if k == "h" else (kv_items(x) if k == "kv" else pq_items(x)))
            return o
        A(f"s_mul_i32 s{S_T0}, s{S_J}, {7*1024}"); A(f"s_add_u32 s{S_T0}, s{S_T0}, s{S_HO}")
        for x in issue(4):
            for y in x: A(y)
        if G2_PF:
            for k in range(7):
                if k == 4: A(f"s_add_u32 s{S_T0}, s{S_T0}, 4096")
                A.vm(f"buffer_load_dwordx4 v[{T}:{T+3}], v{VL16}, s[{S_H}:{S_H+3}], s{S_T0} offen offset:{(k%4)*1024} sc1")
        for x in issue(AHEAD - 4):
            for y in x: A(y)
        if DEFER:
            A(f"s_cmp_ge_u32 s{S_CP}, 2"); A("s_cbranch_scc1 K12_defB")
            for tb in range(2):
                for hs in range(2):
                    pk = 128 + 4*(2*tb + hs)
                    A(f"!buffer_store_dwordx4 v[{pk}:{pk+3}], v{VL16}, s[{S_H}:{S_H+3}], s{23 if hs else 22} offen offset:{tb*1024} sc1")
            A(f"v_mov_b32 v{T+6}, 24576"); A("s_mov_b64 exec, 1")
            A(f"!global_load_dword v{T+7}, v{T+6}, s[{S_WSP}:{S_WSP+1}]")
            A("s_mov_b64 exec, -1"); A("s_branch K12_defX")
            A("K12_defB:")
            for n in range(4): A(f"!global_atomic_add_f32 v133, v{128+n}, s[{S_WSP}:{S_WSP+1}] offset:{n*256}")
            A("s_mov_b64 exec, 0xffff")
            A(f"!global_atomic_add_f32 v133, v132, s[{S_WSP}:{S_WSP+1}] offset:1024")
            A("s_mov_b64 exec, -1")
            A("K12_defX:")
            A.nvm += 5; A.ids["defer"] = A.nvm
        A.stamp(2, "g2")
        for i in range(28):
            if LATE_R and i == N_IN: A("s_waitcnt lgkmcnt(0)")
            A.wait(f"h{2*i+1}")
            if DEFER and i == S_SIG:
                assert A.ids[f"h{2*i+1}"] > A.ids["defer"]
                signal_block()
            if i == 1: A.stamp(3, "g2")
            gaps = [[] for _ in range(4)]
            if i == CHK - 5:
                gaps[0] += [f"v_add_u32 v{VFL}, 32, v{VFL}", f"s_mov_b64 s[{S_E0}:{S_E0+1}], exec", "s_mov_b64 exec, 15",
                            ("vm", "fq", f"global_load_dword v{VF1}, v{VFL}, s[{S_WSP}:{S_WSP+1}] sc1"), "s_mov_b64 exec, 255",
                            ("vm", "fkv", f"global_load_dword v{VF2}, v{VCN}, s[{S_WSP}:{S_WSP+1}] sc1"), f"s_mov_b64 exec, s[{S_E0}:{S_E0+1}]"]
            if LATE_R and i >= 2 and N_IN + (i - 2) < 36:
                rr = self.w2.R(N_IN + (i - 2))[1:]
                gaps[0] += rr[0]; gaps[3] += rr[1]
            n = 2
            if li["n"] + n > 56 and i < CHK: n = max(0, 56 - li["n"])
            for k, x in enumerate(issue(n)): gaps[1+k] += x
            mf = []
            for tb in range(2):
                hb = HB + 4*((2*i+tb) % NH)
                for nb in range(2):
                    a = ACC2 + 16*(2*nb+tb)
                    c = "0" if i == 0 else f"v[{a}:{a+15}]"
                    mf.append(f"v_mfma_f32_32x32x16_bf16 v[{a}:{a+15}], {self.w2.frag(i,nb)}, v[{hb}:{hb+3}], {c}")
            for g in range(4):
                A(mf[g])
                for x in gaps[g]: A(x)
            if i == CHK - 1:
                A.stamp(4, "g2")
                A.wait("fkv")
                A(f"s_mov_b64 s[{S_E0}:{S_E0+1}], exec"); A("s_mov_b64 exec, 15")
                A(f"v_cmp_ne_u32 vcc, 0, v{VF1}"); A("s_nop 3"); A("s_cmp_eq_u64 vcc, exec"); A(f"s_mov_b64 exec, s[{S_E0}:{S_E0+1}]")
                A("s_cbranch_scc1 K12_qok")
                self.poll("K12_pollQ", VFL, 4, novm=True)
                A.label("K12_qok")
                A(f"s_mov_b64 s[{S_E0}:{S_E0+1}], exec"); A("s_mov_b64 exec, 255")
                A(f"v_cmp_le_u32 vcc, 16, v{VF2}"); A("s_nop 3"); A("s_cmp_eq_u64 vcc, exec"); A(f"s_mov_b64 exec, s[{S_E0}:{S_E0+1}]")
                A("s_cbranch_scc1 K12_kvok")
                self.poll("K12_pollKV", VCN, 8, expect=16, novm=True)
                A.label("K12_kvok")
                A.stamp(5, "g2")
        A.stamp(6, "g2"); A.stamp(1, "att")
        A(f"v_lshrrev_b32 v{T+8}, 3, v{VTID}"); A(f"v_and_b32 v{T+9}, 7, v{VTID}")
        A(f"s_lshl_b32 s{S_T0}, s{S_TAU}, 16"); A(f"s_lshl_b32 s{S_T2}, s{S_J}, 7"); A(f"s_add_u32 s{S_T0}, s{S_T0}, s{S_T2}")
        VG = VFL
        A(f"v_lshlrev_b32 v{VG}, 10, v{T+8}"); A(f"v_lshlrev_b32 v{VCN}, 4, v{T+9}"); A(f"v_add_u32 v{VG}, v{VG}, v{VCN}")
        A(f"s_add_u32 s{S_T2}, s{S_T0}, {32*1024}")
        XR = HB
        A(f"s_mov_b32 s{S_T1}, 0x358637bd")
        A("s_waitcnt lgkmcnt(0)")
        units = [(h, tb) for h in range(8) for tb in range(2)]
        def stA(u):
            h, tb = units[u]; d = DO[u & 1]
            o = []
            if tb == 0:
                o.append(("wait", [f"kv{h}", f"pq{2*h}"]))
                o += [f"v_cvt_pk_bf16_f32 v{KVB[h]+e}, v{KVR0+8*h+2*e}, v{KVR0+8*h+2*e+1}" for e in range(4)]
                o.append("s_nop 1")
            else: o.append(("wait", [f"pq{2*h+1}"]))
            o.append(f"v_mfma_f32_32x32x16_bf16 v[{d}:{d+15}], v[{KVB[h]}:{KVB[h]+3}], {ar(4*(2*h+tb), 4)}, 0")
            return o
        def stB(u):
            d = DO[u & 1]; o = OF[u & 1]; rc = T + 8
            l = [f"v_add_f32 v{rc}, s{S_T1}, v{d}", f"v_rcp_f32 v{rc}, v{rc}", "s_nop 0"]
            l += [f"v_mul_f32 v{d+8+e}, v{rc}, v{d+8+e}" for e in range(8)]
            l += [f"v_cvt_pk_bf16_f32 v{o+e}, v{d+8+2*e}, v{d+8+2*e+1}" for e in range(4)]
            return l
        def stC(u):
            h, tb = units[u]; o = OF[u & 1]; i = 28 + h
            return [f"v_mfma_f32_32x32x16_bf16 v[{ACC2+16*(2*nb+tb)}:{ACC2+16*(2*nb+tb)+15}], {self.w2.frag(i,nb)}, v[{o}:{o+3}], v[{ACC2+16*(2*nb+tb)}:{ACC2+16*(2*nb+tb)+15}]" for nb in range(2)]
        for x in stA(0): A(x)
        A.stamp(2, "att")
        for x in issue(1):
            for y in x: A(y)
        for x in stA(1): A(x)
        for x in issue(2):
            for y in x: A(y)
        A("s_nop 7"); A("s_nop 3")
        for x in stB(0): A(x)
        xdone = False
        for u in range(16):
            c = stC(u)
            nb_ = stB(u+1) if u + 1 < 16 else []
            if u in (2, 6, 10, 13): A.stamp({2:3, 6:4, 10:5, 13:6}[u], "att")
            A("s_nop 1"); A(c[0])
            for x in nb_[:5]: A(x)
            if u + 2 < 16:
                for x in stA(u+2): A(x)
            iss = issue(2)
            for x in iss:
                for y in x: A(y)
            if not iss and not xdone:
                A.vm(f"buffer_load_dwordx4 v[{XR}:{XR+3}], v{VG}, s[{S_XX}:{S_XX+3}], s{S_T0} offen", id="x0")
                A.vm(f"buffer_load_dwordx4 v[{XR+4}:{XR+7}], v{VG}, s[{S_XX}:{S_XX+3}], s{S_T2} offen", id="x1")
                xdone = True
            for x in nb_[5:10]: A(x)
            A(c[1])
            for x in nb_[10:]: A(x)
        assert xdone and li["n"] == len(loads)
        A.stamp(7, "g2"); A.stamp(7, "att")
        RS = 272; WSZ = 64*RS
        A(f"v_and_b32 v{T}, 31, v{VL}"); A(f"v_mul_u32_u24 v{T}, {RS}, v{T}"); A(f"v_lshrrev_b32 v{T+1}, 5, v{VL}"); A(f"v_lshlrev_b32 v{T+1}, 4, v{T+1}"); A(f"v_add_u32 v{T}, v{T}, v{T+1}")
        A(f"s_mul_i32 s{S_T3}, s{S_WV}, {WSZ}"); A(f"v_add_u32 v{T}, s{S_T3}, v{T}")
        A(f"v_lshrrev_b32 v{T+2}, 3, v{VTID}"); A(f"v_and_b32 v{T+3}, 7, v{VTID}")
        A(f"v_mul_u32_u24 v{T+6}, {RS}, v{T+2}"); A(f"v_lshlrev_b32 v{T+7}, 5, v{T+3}"); A(f"v_add_u32 v{T+6}, v{T+6}, v{T+7}")
        A("s_nop 1")
        for tb in range(2):
            if tb == 1: A("s_nop 7")
            for nb in range(2):
                a = ACC2 + 16*(2*nb+tb)
                for q in range(4):
                    A(f"ds_write_b128 v{T}, v[{a+4*q}:{a+4*q+3}] offset:{tb*32*RS + nb*128 + q*32}")
        A("s_waitcnt lgkmcnt(0)"); A("s_barrier")
        A.stamp(8, "g2"); A.stamp(8, "att")
        for ps in range(2):
            b = 72 + 40*ps
            for w in range(4):
                A(f"ds_read_b128 v[{b+8*w}:{b+8*w+3}], v{T+6} offset:{w*WSZ + ps*32*RS}")
                A(f"ds_read_b128 v[{b+8*w+4}:{b+8*w+7}], v{T+6} offset:{w*WSZ + ps*32*RS + 16}")
        for ps in range(2):
            b = 72 + 40*ps
            A(f"s_waitcnt lgkmcnt({8 if ps == 0 else 0})")
            for e in range(0, 8, 2):
                A(f"v_pk_add_f32 v[{b+e}:{b+e+1}], v[{b+e}:{b+e+1}], v[{b+8+e}:{b+8+e+1}]")
                A(f"v_pk_add_f32 v[{b+16+e}:{b+16+e+1}], v[{b+16+e}:{b+16+e+1}], v[{b+24+e}:{b+24+e+1}]")
            for e in range(0, 8, 2):
                A(f"v_pk_add_f32 v[{b+e}:{b+e+1}], v[{b+e}:{b+e+1}], v[{b+16+e}:{b+16+e+1}]")
            A.wait(f"x{ps}")
            xb = XR + 4*ps
            for e in range(4):
                A(f"v_lshlrev_b32 v{T+8}, 16, v{xb+e}"); A(f"v_and_b32 v{T+9}, 0xffff0000, v{xb+e}")
                A(f"v_pk_add_f32 v[{b+2*e}:{b+2*e+1}], v[{b+2*e}:{b+2*e+1}], v[{T+8}:{T+9}]")
                A(f"v_cvt_pk_bf16_f32 v{b+32+e}, v{b+2*e}, v{b+2*e+1}")
            A.vm(f"buffer_store_dwordx4 v[{b+32}:{b+35}], v{VG}, s[{S_O}:{S_O+3}], s{S_T0 if ps == 0 else S_T2} offen")

def gen_k12():
    A = Prog()
    prologue_common(A)
    A(f"s_cmp_ge_u32 s{S_CP}, 2"); A("s_cbranch_scc1 K12_typeB")
    base_nvm = A.nvm; base_ids = dict(A.ids)
    for typ in ("A", "B"):
        if typ == "B":
            A.label("K12_typeB"); A.nvm = base_nvm; A.ids = dict(base_ids)
        g = G1(A, typ)
        g.prologue()
        if STAMP and SMODE == "wait":
            for c in (1,2,3,4,5,6,7): A(f"s_mov_b32 s{SB+2*c}, 0")
            A(f"s_memtime s[{SB+8}:{SB+9}]"); A("s_waitcnt lgkmcnt(0)")
        A.inloop = True
        g.loop()
        A.inloop = False
        if STAMP and SMODE == "wait":
            A(f"s_memtime s[{SB+10}:{SB+11}]"); A("s_waitcnt lgkmcnt(0)"); A(f"s_sub_u32 s{SB+8}, s{SB+10}, s{SB+8}")
        print(f"type {typ}: leftover W2 items after loop: {g.nleft}", file=sys.stderr)
        A.stamp(4); A.stamp(8, "loop"); A.stamp(8, "init"); A.stamp(5, "init")
        g.transition()
        if typ == "A": A("s_branch K12_g2")
    A.label("K12_g2")
    G2(A).body()
    if STAMP:
        A("s_waitcnt vmcnt(0) lgkmcnt(0)")
        A(f"{STAMP_INS} s[60:61]")
        A("s_waitcnt lgkmcnt(0)")
        A(f"s_lshl_b32 s{S_T0}, s2, 2"); A(f"s_add_u32 s{S_T0}, s{S_T0}, s{S_WV}"); A(f"s_lshl_b32 s{S_T0}, s{S_T0}, 6")
        A(f"s_add_u32 s{S_T0}, s{S_T0}, {WS_STAMP + 65536}")
        A(f"v_mov_b32 v{VT}, s{S_T0}")
        for i in range(9):
            A(f"v_mov_b32 v{VT+1}, s{SB+2*i}")
            A.vm(f"global_store_dword v{VT}, v{VT+1}, s[{S_WSP}:{S_WSP+1}] offset:{4*i}")
        A(f"v_mov_b32 v{VT+1}, s60")
        A.vm(f"global_store_dword v{VT}, v{VT+1}, s[{S_WSP}:{S_WSP+1}] offset:36")
    if STAMP and DBGSTAMP:
        A(f"s_cmp_eq_u32 s{S_WV}, 0"); A("s_cbranch_scc0 K12_end")
        A("s_mov_b64 exec, 1")
        for i in range(9):
            A(f"v_mov_b32 v{VT}, {4*(1+i)}"); A(f"v_mov_b32 v{VT+1}, s{SB+2*i}")
            A.vm(f"global_atomic_umax v{VT}, v{VT+1}, s[{S_DBG}:{S_DBG+1}]")
        A(f"v_mov_b32 v{VT}, 40"); A(f"v_mov_b32 v{VT+1}, s60"); A.vm(f"global_atomic_umax v{VT}, v{VT+1}, s[{S_DBG}:{S_DBG+1}]")
        A(f"s_not_b32 s{S_T0}, s{SB}"); A(f"v_mov_b32 v{VT}, 44"); A(f"v_mov_b32 v{VT+1}, s{S_T0}"); A.vm(f"global_atomic_umax v{VT}, v{VT+1}, s[{S_DBG}:{S_DBG+1}]")
    A.label("K12_end")
    return A.text()

def main(path):
    hdr = open("cdna_kernels/" + NAME + ".s.ref").read().split("; Override")[0]
    n = NAME + "_kernel"
    body = gen_k12()
    out = hdr + "; @launch grid=(256,1,1) block=(256,1,1) lds=163840\n"
    out += '.amdgcn_target "amdgcn-amd-amdhsa--gfx950"\n.text\n'
    out += f""".globl {n}
.p2align 8
.type {n},@function
{n}:
{body}
  s_endpgm
.section .rodata,"a"
.p2align 6
.amdhsa_kernel {n}
  .amdhsa_next_free_vgpr 512
  .amdhsa_next_free_sgpr 102
  .amdhsa_accum_offset 256
  .amdhsa_group_segment_fixed_size 0
  .amdhsa_kernarg_size 80
  .amdhsa_user_sgpr_count 2
  .amdhsa_user_sgpr_kernarg_segment_ptr 1
  .amdhsa_system_sgpr_workgroup_id_x 1
.end_amdhsa_kernel
"""
    open(path, "w").write(out)

if __name__ == "__main__":
    if "--stamp" in sys.argv:
        STAMP = True; sys.argv.remove("--stamp")
    for a in list(sys.argv):
        if a.startswith("--nin="): N_IN = int(a[6:]); sys.argv.remove(a)
        if a.startswith("--smode="): SMODE = a[8:]; sys.argv.remove(a)
        if a.startswith("--ahead="): G2_AHEAD = int(a[8:]); sys.argv.remove(a)
        if a.startswith("--chk="): G2_CHK = int(a[6:]); sys.argv.remove(a)
        if a.startswith("--pf="): G2_PF = int(a[5:]); sys.argv.remove(a)
        if a.startswith("--cpf2="): CODE_PF2 = int(a[7:]); sys.argv.remove(a)
        if a.startswith("--wsh="): WS_H = int(a[6:])*1048576; sys.argv.remove(a)
        if a == "--dbgstamp": DBGSTAMP = 1; sys.argv.remove(a)
        if a.startswith("--w2rot="): W2ROT = int(a[8:]); sys.argv.remove(a)
        if a.startswith("--w2start="): W2_START = int(a[10:]); sys.argv.remove(a)
        if a.startswith("--later="): LATE_R = int(a[8:]); sys.argv.remove(a)
        if a.startswith("--bed="): B_EARLY_D = int(a[6:]); sys.argv.remove(a)
        if a.startswith("--ftb="): FLAG_TB = int(a[6:]); sys.argv.remove(a)
        if a.startswith("--pt="): K_PT = int(a[5:]); sys.argv.remove(a)
        if a.startswith("--tt="): TLB_TOUCH = int(a[5:]); sys.argv.remove(a)
        if a.startswith("--hinit="):
            H_INIT = int(a[8:]); K_INITLD = 2*H_INIT - 4; K_CSAT = 2*H_INIT; H_CS = H_INIT + 3; sys.argv.remove(a)
        if a.startswith("--rot2="): ROT2 = int(a[7:]); sys.argv.remove(a)
        if a.startswith("--kvmask="): KVMASK = int(a[9:]); sys.argv.remove(a)
        if a.startswith("--wopf="): K_WOPF = int(a[7:]); sys.argv.remove(a)
        if a.startswith("--defer="): DEFER = int(a[8:]); sys.argv.remove(a)
        if a.startswith("--phid="): PHI_D = int(a[7:]); sys.argv.remove(a)
        if a.startswith("--x1e="): X1_EARLY = int(a[6:]); sys.argv.remove(a)
        if a.startswith("--rot="): ROT = int(a[6:]); sys.argv.remove(a)
        if a.startswith("--cap="): CAP = int(a[6:]); sys.argv.remove(a)
    if "--cyc" in sys.argv:
        STAMP = True; STAMP_INS = "s_memtime"; sys.argv.remove("--cyc")
    main(sys.argv[1] if len(sys.argv) > 1 else "cdna_kernels/" + NAME + ".s")
```

```python
import sys

NAME = "parallel_sum__linear_attn_block__glu_gated_bilinear__prompt"
WS_M, WS_R, WS_KV, KV_HEAD = 0, 8192, 32768, 1152
WS_FLAG = WS_KV + 36864
WS_KVCNT = WS_FLAG + 8192
WS_CS = WS_KVCNT + 2048
WS_STCNT = WS_CS + 20480
WS_CSCNT = WS_STCNT + 2048
NZERO = 18
assert WS_CSCNT + 2048 <= WS_KV + NZERO*4096 <= 131072
DBG_INIT = 0
CS_TMP = 140
A_ONES = 220
VC1, VC2, VC3 = 251, 252, 253
WS_H = 131072
H_BYTES = 32*4*36*2048
POLL_MAX = 200000
STAMP = False
STAMP_INS = 's_memrealtime'
WS_STAMP = 1 << 24
SB = 84
CORR_AT = 28
N_IN = 28
CAP = 5
SMODE = 'main'
ROT = 8
PHI_D = 0
TBM = 0
CODE_PF1 = 1
ZLATE = 0
H_Z = 2
DEFER = 0
S_SIG = 6
K_WOPF = 0
ROT2 = 1
KVMASK = 0
TLB_TOUCH = 0
K_PT = 0
FLAG_TB = 1
B_EARLY_D = 1
LATE_R = 1
X1_EARLY = 1
W2ROT = 1
DBGSTAMP = 0
CODE_PF2 = 0
G2_AHEAD = 12; G2_CHK = 20; G2_PF = 0
K_INITLD = 6; H_INIT = 5; K_CSAT = 10; H_CS = 8; K_CNTLD = 18; H_CNT = 11; K_RANK = 25
CODE_KB = 48

class Prog:
    def __init__(self): self.l = []; self.nvm = 0; self.ids = {}; self.pos = {}; self.inloop = False
    def __call__(self, s):
        if s is None: return
        if isinstance(s, tuple):
            if s[0] == "vm":
                self.l.append("  " + s[2]); self.nvm += 1
                if s[1] is not None: self.ids[s[1]] = self.nvm; self.pos[s[1]] = len(self.l)
            elif s[0] == "stamp":
                self.stamp(s[1], s[2])
            elif s[0] == "vmu":
                self.l.append("  " + s[2]); self.ids[s[1]] = self.nvm
            elif s[0] == "wait":
                last = max(self.ids[i] for i in s[1])
                n = self.nvm - last
                assert n <= 63, (s, n)
                if STAMP and SMODE == "wait" and self.inloop:
                    cat = 2 if s[1][0].startswith("w2_") else (1 if s[1][0].startswith("W") else 3)
                    self.l.append(f"  s_memtime s[98:99]"); self.l.append("  s_waitcnt lgkmcnt(0)")
                    self.l.append(f"  s_waitcnt vmcnt({n})")
                    self.l.append(f"  s_memtime s[100:101]"); self.l.append("  s_waitcnt lgkmcnt(0)")
                    self.l.append(f"  s_sub_u32 s100, s100, s98"); self.l.append(f"  s_add_u32 s{SB+2*cat}, s{SB+2*cat}, s100")
                    return
                self.l.append(f"  s_waitcnt vmcnt({n})" + (" " + s[2] if len(s) > 2 and s[2] else ""))
            else: raise ValueError(s)
        elif s.endswith(":"): self.l.append(s)
        elif s.startswith("!"):
            self.l.append("  " + s[1:])
        else:
            assert not ("buffer_" in s or "global_" in s), s
            self.l.append("  " + s)
    def vm(self, text, id=None): self(("vm", id, text))
    def wait(self, *ids): self(("wait", list(ids)))
    def label(self, s): self.l.append(s + ":")
    def text(self): return "\n".join(self.l)
    def stamp(self, i, mode="main"):
        if STAMP and (mode == SMODE or i == 0): self.l.append(f"  {STAMP_INS} s[{SB+2*i}:{SB+2*i+1}]")
    def reset_vm(self):
        self.ids = {}

def vr(b, n=1): return f"v{b}" if n == 1 else f"v[{b}:{b+n-1}]"
def ar(b, n=1): return f"a{b}" if n == 1 else f"a[{b}:{b+n-1}]"
def srd(A, d, lo, hi, size):
    A(f"s_mov_b32 s{d}, s{lo}"); A(f"s_and_b32 s{d+1}, s{hi}, 0xffff"); A(f"s_mov_b32 s{d+2}, {size}"); A(f"s_mov_b32 s{d+3}, 0x20000")
def srd_off(A, d, lo, hi, off, size):
    A(f"s_add_u32 s{d}, s{lo}, {off}"); A(f"s_addc_u32 s{d+1}, s{hi}, 0"); A(f"s_and_b32 s{d+1}, s{d+1}, 0xffff")
    if isinstance(off, int): A(f"s_mov_b32 s{d+2}, {size - off}")
    else: A(f"s_sub_u32 s{d+2}, {size}, {off}")
    A(f"s_mov_b32 s{d+3}, 0x20000")

X_BASE = 0; X_SLOT = 16384
W_BASE = 49152; W_SLOT = 20480; W_NS = 3
W2IN = W_BASE + W_NS*W_SLOT
NSL = 6
LDS_R = W2IN + 4*NSL*2048
LDS_KV = 0
W2_START = 1
W2POST = 69632; NPOST = 11
DLAG = 5

ACC = 0; WF = 160; XF = 200; TRA = 216; XA = 221; VOW = 225; VOX = 230
VR = 234; VLANE = 236; VL16 = 237; VTID = 238; VDM = 239
VT = 240
VTR = 254; VTR1 = 255
AMF = 228; ACF = 236
def acc(blk, tb): return ACC + (blk*2+tb)*16

S_X = 4; S_W = 8; S_H = 28; S_WSP = 32
S_WV = 34; S_WM = 35; S_WN = 36; S_T = 37; S_IDX = 38
S_KW = 39; S_KH = 40; S_R30 = 41; S_R35 = 42; S_RH = 43; S_KX = 44; S_W1K = 45; S_W4K = 46; S_XB = 47
S_WD = 48; S_LB = 52; S_W2O = 53
S_W2B = 74; S_W2R = 75; S_W2T = 76; S_RHO = 77; S_HR = 75; S_HBASE = 74
S_T0 = 54; S_T1 = 55; S_T2 = 56; S_T3 = 57; S_T4 = 58; S_XO = 59
S_E0 = 60; S_E2 = 62
S_P = 64
P_X, P_WQ, P_WO, P_G, P_U, P_D, P_O = 64, 66, 68, 72, 74, 76, 78
S_DBG = 72; S_KSC = 66; S_CG = 67
S_HB = 80; S_I1 = 81; S_CP = 82; S_TAU = 83; S_J = 70; S_HO = 71
S_WO = 8; S_O = 12; S_XX = 16
S_C6 = 20

def w2row(i):
    if i < 16: return ("D", 256, 16*i)
    if i < 24: return ("D", 128, 1024 + 16*(i-16))
    if i < 28: return ("D", 64, 1536 + 16*(i-24))
    return ("O", 128, 16*(i-28))

class W2:
    def __init__(self, A, vdm2=None): self.A = A; self.vdm2 = vdm2
    def frag(self, ks, nb, W2V=192):
        f = ks*2 + nb
        return ar(4*f, 4) if f < 64 else vr(W2V + 4*(f-64), 4)
    def half(self, ks, nb, h, W2V=192):
        f = ks*2 + nb
        return ar(4*f + 2*h, 2) if f < 64 else vr(W2V + 4*(f-64) + 2*h, 2)
    def slot_off(self, i):
        return (i % NSL)*2048 if i < N_IN else ((i - N_IN) % NPOST)*2048
    def D(self, i):
        o = []
        if i < 28: s, so = S_WD, S_W2R
        else:
            s, so = S_WO, S_W2O
            o.append([f"s_mov_b32 s{S_W2O}, {16*(i-28)*1024}"])
        d0 = ("dma", f"s_add_u32 m0, s{S_LB}, {self.slot_off(i)}", ("vm", f"w2_{i}_0", f"buffer_load_dwordx4 v{VDM}, s[{s}:{s+3}], s{so} offen lds"))
        o.append(d0)
        o.append(("dma", f"s_add_u32 m0, s{S_LB}, {self.slot_off(i) + 1024}", ("vm", f"w2_{i}_1", f"buffer_load_dwordx4 v{self.vdm2}, s[{s}:{s+3}], s{so} offen lds")))
        if i < 27:
            o.append([f"s_add_u32 s{S_W2R}, s{S_W2R}, 16384", f"s_cmp_eq_u32 s{S_W2R}, {28*16384}", f"s_cselect_b32 s{S_W2R}, 0, s{S_W2R}"])
        return o
    def R(self, i):
        o = self.slot_off(i)
        r = [[("wait", [f"w2_{i}_1"])]]
        for nb in range(2):
            va = VTR if nb == 0 else VTR1
            r.append([f"ds_read_b64_tr_b16 {self.half(i, nb, 0)}, v{va} offset:{o}", f"ds_read_b64_tr_b16 {self.half(i, nb, 1)}, v{va} offset:{o+1024}"])
        return r

def emit_items(A, items):
    for it in items:
        if isinstance(it, tuple) and it[0] == "dma":
            A(it[1]); A("s_nop 0"); A(it[2])
        else:
            for s in it: A(s)

def prologue_common(A):
    A("s_cmp_ge_u32 s2, 256"); A("s_cbranch_scc1 K12_end")
    A.stamp(0)
    A(f"s_load_dwordx16 s[{S_P}:{S_P+15}], s[0:1], 0")
    A(f"s_load_dwordx2 s[{S_WSP}:{S_WSP+1}], s[0:1], 72")
    A(f"s_getpc_b64 s[{S_E2}:{S_E2+1}]")
    A("K12_pc:")
    A(f"v_and_b32 v{VLANE}, 63, v0")
    A(f"v_lshrrev_b32 v{VT}, 6, v0")
    A(f"v_mov_b32 v{VTID}, v0")
    A(f"v_lshlrev_b32 v{VL16}, 4, v{VLANE}")
    if TLB_TOUCH:
        A(f"v_lshlrev_b32 v{WF+28}, 3, v{VLANE}")
        A("s_mov_b64 exec, 0x1ff")
        A.vm(f"global_load_dwordx2 v[{WF+30}:{WF+31}], v{WF+28}, s[0:1]", id="kptr")
        A("s_mov_b64 exec, -1")
    A(f"v_readfirstlane_b32 s{S_WV}, v{VT}")
    A(f"s_and_b32 s{S_T0}, s2, 7"); A(f"s_lshr_b32 s{S_T1}, s2, 3")
    A(f"s_lshl_b32 s{S_T2}, s{S_T1}, 2"); A(f"s_add_u32 s{S_T2}, s{S_T2}, s{S_WV}"); A(f"s_min_u32 s{S_T2}, s{S_T2}, ((K12_end-K12_pc)>>10)-1"); A(f"s_lshl_b32 s{S_T2}, s{S_T2}, 10")
    A(f"v_add_u32 v{VT+4}, s{S_T2}, v{VL16}")
    if CODE_PF1: A.vm(f"global_load_dwordx4 v[{WF+36}:{WF+39}], v{VT+4}, s[{S_E2}:{S_E2+1}]")
    A(f"s_and_b32 s{S_T2}, s{S_T1}, 7"); A(f"s_lshr_b32 s{S_CP}, s{S_T1}, 3")
    A(f"s_lshr_b32 s{S_T}, s{S_T0}, 2"); A(f"s_lshl_b32 s{S_T}, s{S_T}, 3"); A(f"s_add_u32 s{S_T}, s{S_T}, s{S_T2}")
    A(f"s_and_b32 s{S_IDX}, s{S_T0}, 3"); A(f"s_lshl_b32 s{S_IDX}, s{S_IDX}, 1")
    A(f"s_and_b32 s{S_T3}, s{S_CP}, 1"); A(f"s_add_u32 s{S_IDX}, s{S_IDX}, s{S_T3}")
    A(f"s_and_b32 s{S_TAU}, s{S_T1}, 3"); A(f"s_lshl_b32 s{S_T3}, s{S_T0}, 2"); A(f"s_add_u32 s{S_TAU}, s{S_TAU}, s{S_T3}")
    A(f"s_lshr_b32 s{S_T4}, s{S_T1}, 2")
    A(f"s_add_u32 s{S_T0}, s{S_CP}, s{S_T2}"); A(f"s_and_b32 s{S_T0}, s{S_T0}, 3"); A(f"s_lshl_b32 s{S_T0}, s{S_T0}, 1")
    A(f"s_lshr_b32 s{S_T1}, s{S_T2}, 2"); A(f"s_add_u32 s{S_T0}, s{S_T0}, s{S_T1}")
    if ROT2: A(f"s_add_u32 s{S_T0}, s{S_CP}, s{S_T2}"); A(f"s_and_b32 s{S_T0}, s{S_T0}, 7")
    A(f"s_lshl_b32 s{S_KW}, s{S_T0}, 6")
    A(f"s_lshr_b32 s{S_WM}, s{S_WV}, 1"); A(f"s_and_b32 s{S_WN}, s{S_WV}, 1")
    t0, t1, t3, t4 = VT, VT+1, VT+3, VT+4
    A(f"v_lshrrev_b32 v{t0}, 3, v{VLANE}"); A(f"v_and_b32 v{t1}, 7, v{VLANE}")
    A(f"v_lshrrev_b32 v{t3}, 4, v{VLANE}"); A(f"v_xor_b32 v{t3}, v{t1}, v{t3}"); A(f"v_lshlrev_b32 v{t3}, 4, v{t3}")
    A(f"v_lshlrev_b32 v{t4}, 10, v{t0}"); A(f"v_add_u32 v{VOX}, v{t3}, v{t4}")
    A(f"v_xor_b32 v{VOX+1}, 64, v{VOX}"); A(f"v_add_u32 v{VOX+1}, {8*1024}, v{VOX+1}")
    A(f"v_add_u32 v{VOX+2}, {16*1024}, v{VOX}"); A(f"v_add_u32 v{VOX+3}, {16*1024}, v{VOX+1}")
    A(f"s_lshl_b32 s{S_XB}, s{S_T}, 7"); A(f"s_lshl_b32 s{S_T0}, s{S_WV}, 5"); A(f"s_add_u32 s{S_XB}, s{S_XB}, s{S_T0}"); A(f"s_lshl_b32 s{S_XB}, s{S_XB}, 10")
    A(f"s_lshl_b32 s{S_KX}, s{S_KW}, 1")
    A(f"s_and_b32 s{S_T0}, s{S_WV}, 1"); A(f"s_lshl_b32 s{S_T0}, s{S_T0}, 4"); A(f"s_add_u32 s{S_KH}, s{S_KW}, s{S_T0}")
    A(f"s_lshl_b32 s{S_T0}, s{S_WV}, 3"); A(f"s_add_u32 s{S_KW}, s{S_KW}, s{S_T0}")
    A(f"s_lshl_b32 s{S_W1K}, s{S_WV}, 10"); A(f"s_lshl_b32 s{S_W4K}, s{S_WV}, 12")
    A(f"s_lshr_b32 s{S_T0}, s{S_CP}, 1"); A(f"s_lshl_b32 s{S_T0}, s{S_T0}, 3"); A(f"s_add_u32 s{S_T3}, s{S_T0}, s{S_IDX}")
    A(f"s_lshl_b32 s{S_T0}, s{S_T}, 7"); A(f"s_lshl_b32 s{S_T1}, s{S_T3}, 3"); A(f"s_add_u32 s{S_T0}, s{S_T0}, s{S_T1}"); A(f"s_lshl_b32 s{S_T1}, s{S_WV}, 1"); A(f"s_add_u32 s{S_T2}, s{S_T0}, s{S_T1}")
    A(f"s_lshl_b32 s{S_T0}, s{S_T2}, 10"); A(f"v_add_u32 v{VT+5}, s{S_T0}, v{VL16}")
    if TLB_TOUCH:
        A.wait("kptr")
        A("s_mov_b64 exec, 0x1ff")
        A.vm(f"global_load_dword v{WF+29}, v[{WF+30}:{WF+31}], off offset:128")
        A("s_mov_b64 exec, -1")
    A.stamp(1, "pro")
    A("s_waitcnt lgkmcnt(0)")
    if TLB_TOUCH:
        A(f"v_mov_b32 v{WF+28}, 24576"); A("s_mov_b64 exec, 1")
        A.vm(f"global_load_dword v{WF+32}, v{WF+28}, s[{S_WSP}:{S_WSP+1}]")
        A("s_mov_b64 exec, -1")
    A.stamp(2, "pro")
    A(f"s_mov_b32 s{S_J}, s{S_T4}")
    if not ZLATE:
        A(f"s_cmp_ge_u32 s2, {NZERO}"); A("s_cbranch_scc1 K12_nozero")
        A(f"s_lshl_b32 s{S_T0}, s2, 12"); A(f"s_add_u32 s{S_T0}, s{S_T0}, {WS_KV}")
        A(f"v_lshlrev_b32 v{VT+6}, 4, v{VTID}"); A(f"v_add_u32 v{VT+6}, s{S_T0}, v{VT+6}")
        for i in range(4): A(f"v_mov_b32 v{VT+8+i}, 0")
        A(f"!global_store_dwordx4 v{VT+6}, v[{VT+8}:{VT+11}], s[{S_WSP}:{S_WSP+1}] sc1")
        A("K12_nozero:")
    SX = WF + 20
    A.vm(f"global_load_dwordx4 v[{SX}:{SX+3}], v{VT+5}, s[{P_X}:{P_X+1}]")
    A.vm(f"global_load_dwordx4 v[{SX+4}:{SX+7}], v{VT+5}, s[{P_X}:{P_X+1}] offset:1024", id="strow")
    A(f"s_lshl_b32 s{S_HB}, s{S_T2}, 2")
    A(f"s_mov_b32 s{S_I1}, s{S_T3}")
    srd(A, S_X, P_X, P_X+1, 2048*1024)

class G1:
    def __init__(self, A, typ):
        self.A = A; self.typ = typ; self.w2 = W2(A, 227 if typ == 'A' else 226)
        self.kinds = ["gu","gu","gu","gu","q"] if typ == "A" else ["k","v","gu","gu","guh"]
        if typ == "A": self.strides = [3584,3584,3584,3584,3072]; self.swz = ["g","u","g","u","q"]
        else: self.strides = [3072,3072,3584,3584,3584]; self.swz = ["q","q","g","u","h"]
    def vow(self, rho):
        key = (self.swz[rho], self.strides[rho])
        for r in range(rho + 1):
            if (self.swz[r], self.strides[r]) == key: return VOW + r
    def Wg(self, h):
        o = []
        if h > 0:
            o.append([f"s_add_u32 s{S_KW}, s{S_KW}, 32", f"s_and_b32 s{S_KW}, s{S_KW}, 511"])
            if self.typ == "B": o.append([f"s_add_u32 s{S_KH}, s{S_KH}, 32", f"s_and_b32 s{S_KH}, s{S_KH}, 511"])
        o.append([f"s_mul_i32 s{S_R30}, s{S_KW}, 3072", f"s_mul_i32 s{S_R35}, s{S_KW}, 3584"])
        if self.typ == "B": o.append([f"s_mul_i32 s{S_RH}, s{S_KH}, 3584"])
        for rho in range(5):
            so = S_RH if self.swz[rho] == "h" else (S_R30 if self.strides[rho] == 3072 else S_R35)
            o.append(("dma", f"s_add_u32 m0, s{S_W1K}, {W_BASE + (h % W_NS)*W_SLOT + rho*4096}",
                      ("vm", f"W{h}_{rho}", f"buffer_load_dwordx4 v{self.vow(rho)}, s[{S_W+4*rho}:{S_W+4*rho+3}], s{so} offen lds")))
        return o
    def Xg(self, sg):
        o = []
        if sg > 0: o.append([f"s_add_u32 s{S_KX}, s{S_KX}, 128", f"s_and_b32 s{S_KX}, s{S_KX}, 1023"])
        o.append([f"s_add_u32 s{S_XO}, s{S_XB}, s{S_KX}"])
        for j in range(4):
            o.append(("dma", f"s_add_u32 m0, s{S_W4K}, {X_BASE + (sg % 3)*X_SLOT + j*1024}",
                      ("vm", f"X{sg}_{j}", f"buffer_load_dwordx4 v{VOX+j}, s[{S_X}:{S_X+3}], s{S_XO} offen lds")))
        return o
    def reads(self, s):
        par = s & 1; kk = s & 3; sg = s >> 2; h = s >> 1; second = s & 1
        xo = (sg % 3)*X_SLOT
        o = [f"ds_read_b128 v[{XF+8*par}:{XF+8*par+3}], v{XA+kk} offset:{xo}", f"ds_read_b128 v[{XF+8*par+4}:{XF+8*par+7}], v{XA+kk} offset:{xo+4096}"]
        for blk, kd in enumerate(self.kinds):
            b = WF + 20*par + 4*blk
            if kd == "guh": o1, o2 = (1024 if second else 0), 256
            else: o1, o2 = (2048 if second else 0), 512
            o1 += (h % W_NS)*W_SLOT
            o.append(f"ds_read_b64_tr_b16 v[{b}:{b+1}], v{TRA+blk} offset:{o1}")
            o.append(f"ds_read_b64_tr_b16 v[{b+2}:{b+3}], v{TRA+blk} offset:{o1+o2}")
        return o
    def mfmas(self, s, order=None):
        par = s & 1; o = []
        for blk in (order or range(5)):
            kd = self.kinds[blk]
            wf = f"v[{WF+20*par+4*blk}:{WF+20*par+4*blk+3}]"
            for tb in range(2):
                xf = f"v[{XF+8*par+4*tb}:{XF+8*par+4*tb+3}]"; a = acc(blk, tb)
                c = "0" if s == 0 else f"v[{a}:{a+15}]"
                if kd in ("k", "v"): o.append(f"v_mfma_f32_32x32x16_bf16 v[{a}:{a+15}], {xf}, {wf}, {c}")
                else: o.append(f"v_mfma_f32_32x32x16_bf16 v[{a}:{a+15}], {wf}, {xf}, {c}")
        return o
    def corr(self):
        o = []
        for blk in range(5):
            for tb in range(2):
                a = acc(blk, tb); cf = ar(ACF+4*blk, 4); mf = ar(AMF+4*tb, 4)
                if self.kinds[blk] in ("k", "v"): o.append(f"v_mfma_f32_32x32x16_bf16 v[{a}:{a+15}], {mf}, {cf}, v[{a}:{a+15}]")
                else: o.append(f"v_mfma_f32_32x32x16_bf16 v[{a}:{a+15}], {cf}, {mf}, v[{a}:{a+15}]")
        return o

    def prologue(self):
        A, typ, kinds = self.A, self.typ, self.kinds
        SZQ, SZG = 512*3072, 512*3584
        A.stamp(3, "pro")
        emit_items(A, self.Xg(0))
        A.stamp(4, "pro")
        if typ == "A":
            A(f"s_lshr_b32 s{S_T0}, s{S_IDX}, 1"); A(f"s_mul_i32 s{S_T0}, s{S_T0}, 7"); A(f"s_and_b32 s{S_T1}, s{S_IDX}, 1"); A(f"s_lshl_b32 s{S_T1}, s{S_T1}, 1")
            A(f"s_add_u32 s{S_T0}, s{S_T0}, s{S_T1}"); A(f"s_lshl_b32 s{S_T0}, s{S_T0}, 7")
            srd_off(A, S_W+0, P_G, P_G+1, f"s{S_T0}", SZG); srd_off(A, S_W+4, P_U, P_U+1, f"s{S_T0}", SZG)
            A(f"s_add_u32 s{S_T0}, s{S_T0}, 128")
            srd_off(A, S_W+8, P_G, P_G+1, f"s{S_T0}", SZG); srd_off(A, S_W+12, P_U, P_U+1, f"s{S_T0}", SZG)
            A(f"s_lshl_b32 s{S_T0}, s{S_IDX}, 7")
            srd_off(A, S_W+16, P_WQ, P_WQ+1, f"s{S_T0}", SZQ)
        else:
            A(f"s_lshl_b32 s{S_T0}, s{S_IDX}, 7"); A(f"s_add_u32 s{S_T0}, s{S_T0}, 1024")
            srd_off(A, S_W+0, P_WQ, P_WQ+1, f"s{S_T0}", SZQ)
            A(f"s_add_u32 s{S_T0}, s{S_T0}, 1024")
            srd_off(A, S_W+4, P_WQ, P_WQ+1, f"s{S_T0}", SZQ)
            A(f"s_lshr_b32 s{S_T0}, s{S_IDX}, 1"); A(f"s_mul_i32 s{S_T0}, s{S_T0}, 7"); A(f"s_and_b32 s{S_T1}, s{S_IDX}, 1")
            A(f"s_add_u32 s{S_T0}, s{S_T0}, s{S_T1}"); A(f"s_add_u32 s{S_T0}, s{S_T0}, 4"); A(f"s_lshl_b32 s{S_T0}, s{S_T0}, 7")
            srd_off(A, S_W+8, P_G, P_G+1, f"s{S_T0}", SZG); srd_off(A, S_W+12, P_U, P_U+1, f"s{S_T0}", SZG)
            A(f"s_lshr_b32 s{S_T0}, s{S_IDX}, 1"); A(f"s_mul_i32 s{S_T0}, s{S_T0}, 7"); A(f"s_add_u32 s{S_T0}, s{S_T0}, 6"); A(f"s_lshl_b32 s{S_T0}, s{S_T0}, 7")
            A(f"s_and_b32 s{S_T1}, s{S_IDX}, 1"); A(f"s_lshl_b32 s{S_T1}, s{S_T1}, 6"); A(f"s_add_u32 s{S_T0}, s{S_T0}, s{S_T1}")
            A(f"s_cmp_ge_u32 s{S_WV}, 2")
            A(f"s_cselect_b32 s{S_T2}, s{P_U}, s{P_G}"); A(f"s_cselect_b32 s{S_T3}, s{P_U+1}, s{P_G+1}")
            srd_off(A, S_W+16, S_T2, S_T3, f"s{S_T0}", SZG)
        t0, t1, t2, t3, t4 = VT, VT+1, VT+2, VT+3, VT+4
        A(f"v_lshrrev_b32 v{t0}, 3, v{VLANE}"); A(f"v_and_b32 v{t1}, 7, v{VLANE}")
        A(f"v_lshrrev_b32 v{t2}, 4, v{VLANE}"); A(f"v_and_b32 v{t2}, 1, v{t2}")
        done = {}
        for rho in range(5):
            key = (self.swz[rho], self.strides[rho])
            if key in done: continue
            done[key] = rho
            if self.swz[rho] == "h":
                A(f"v_lshrrev_b32 v{t3}, 2, v{VLANE}"); A(f"v_and_b32 v{t4}, 3, v{VLANE}")
                A(f"s_lshr_b32 s{S_T0}, s{S_WV}, 1"); A(f"s_lshl_b32 s{S_T0}, s{S_T0}, 1")
                A(f"v_xor_b32 v{t4}, s{S_T0}, v{t4}")
                A(f"v_mul_u32_u24 v{t3}, 3584, v{t3}"); A(f"v_lshlrev_b32 v{t4}, 4, v{t4}"); A(f"v_add_u32 v{VOW+rho}, v{t3}, v{t4}")
            else:
                if self.swz[rho] == "q": A(f"v_lshlrev_b32 v{t3}, 2, v{t2}")
                else:
                    A(f"v_lshlrev_b32 v{t3}, 1, v{t2}")
                    if self.swz[rho] == "u": A(f"v_or_b32 v{t3}, 4, v{t3}")
                A(f"v_xor_b32 v{t3}, v{t1}, v{t3}"); A(f"v_lshlrev_b32 v{t3}, 4, v{t3}")
                A(f"v_mul_u32_u24 v{t4}, {self.strides[rho]}, v{t0}"); A(f"v_add_u32 v{VOW+rho}, v{t3}, v{t4}")
        A.stamp(5, "pro")
        emit_items(A, self.Wg(0)); A.stamp(6, "pro"); emit_items(A, self.Wg(1))
        A.stamp(1); A.stamp(7, "pro")
        A(f"v_lshlrev_b32 v{t3}, 2, v{t2}"); A(f"v_xor_b32 v{t3}, v{t1}, v{t3}"); A(f"v_lshlrev_b32 v{t3}, 4, v{t3}")
        A(f"v_lshlrev_b32 v{t4}, 10, v{t0}"); A(f"v_add_u32 v{VDM}, v{t3}, v{t4}")
        A(f"v_add_u32 v{self.w2.vdm2}, 8192, v{VDM}")
        A(f"s_lshl_b32 s{S_T0}, s{S_J}, 7"); A(f"s_mul_i32 s{S_T1}, s{S_WV}, {448*1024}"); A(f"s_add_u32 s{S_T0}, s{S_T0}, s{S_T1}")
        srd_off(A, S_WD, P_D, P_D+1, f"s{S_T0}", 1792*1024)
        A(f"s_mul_i32 s{S_LB}, s{S_WV}, {NSL*2048}"); A(f"s_add_u32 s{S_LB}, s{S_LB}, {W2IN}")
        A(f"s_lshr_b32 s{S_T0}, s2, 3"); A(f"s_and_b32 s{S_T1}, s{S_T0}, 3"); A(f"s_mul_i32 s{S_T1}, s{S_T1}, 7"); A(f"s_lshr_b32 s{S_T0}, s{S_T0}, 2"); A(f"s_mul_i32 s{S_T0}, s{S_T0}, 3")
        A(f"s_add_u32 s{S_RHO}, s{S_T0}, s{S_T1}"); A(f"s_cmp_ge_u32 s{S_RHO}, 28"); A(f"s_cselect_b32 s{S_T0}, 28, 0"); A(f"s_sub_u32 s{S_RHO}, s{S_RHO}, s{S_T0}")
        if not W2ROT: A(f"s_mov_b32 s{S_RHO}, 0")
        A(f"s_lshl_b32 s{S_W2R}, s{S_RHO}, 14")
        A(f"s_load_dwordx2 s[{S_DBG}:{S_DBG+1}], s[0:1], 64")
        A(f"s_mov_b32 s{S_CG}, s{S_I1}")
        A(f"s_lshr_b32 s{S_T0}, s{S_T}, 3"); A(f"s_lshl_b32 s{S_T0}, s{S_T0}, 1"); A(f"s_add_u32 s{S_KSC}, s{S_T0}, s{S_WM}")
        A(f"v_and_b32 v{t0}, 31, v{VLANE}")
        A(f"v_and_b32 v{t1}, 15, v{t0}"); A(f"v_lshrrev_b32 v{t2}, 4, v{t0}")
        def cs_addr(dst, soff_code, lane_kind):
            soff_code()
            if lane_kind == "gu":
                A(f"v_mul_u32_u24 v{t3}, 1792, v{t2}"); A(f"v_add_u32 v{t3}, v{t3}, v{t1}")
            elif lane_kind == "kv":
                A(f"v_lshlrev_b32 v{t3}, 9, v{t2}"); A(f"v_add_u32 v{t3}, v{t3}, v{t1}")
            else: A(f"v_mov_b32 v{t3}, v{t0}")
            A(f"v_add_u32 v{t3}, s{S_T0}, v{t3}"); A(f"v_lshlrev_b32 v{t3}, 2, v{t3}"); A(f"v_add_u32 v{dst}, {WS_CS}, v{t3}")
        if typ == "A":
            cs_addr(VC1, lambda: (A(f"s_lshr_b32 s{S_T0}, s{S_IDX}, 1"), A(f"s_mul_i32 s{S_T0}, s{S_T0}, 7"), A(f"s_and_b32 s{S_T1}, s{S_IDX}, 1"), A(f"s_lshl_b32 s{S_T1}, s{S_T1}, 1"), A(f"s_add_u32 s{S_T0}, s{S_T0}, s{S_T1}"),
                                  A(f"s_add_u32 s{S_T0}, s{S_T0}, s{S_WN}"), A(f"s_lshl_b32 s{S_T0}, s{S_T0}, 6"), A(f"s_add_u32 s{S_T0}, s{S_T0}, 1536")), "gu")
            cs_addr(VC2, lambda: (A(f"s_lshl_b32 s{S_T0}, s{S_IDX}, 6"), A(f"s_lshl_b32 s{S_T1}, s{S_WN}, 5"), A(f"s_add_u32 s{S_T0}, s{S_T0}, s{S_T1}")), "q")
            self.csa = [(VC1, 0), (VC1, 64), (VC1, 128), (VC1, 192), (VC2, 0)]
        else:
            cs_addr(VC2, lambda: (A(f"s_lshl_b32 s{S_T0}, s{S_IDX}, 6"), A(f"s_lshl_b32 s{S_T1}, s{S_WN}, 5"), A(f"s_add_u32 s{S_T0}, s{S_T0}, s{S_T1}"), A(f"s_add_u32 s{S_T0}, s{S_T0}, 512")), "q")
            cs_addr(VC1, lambda: (A(f"s_lshr_b32 s{S_T0}, s{S_IDX}, 1"), A(f"s_mul_i32 s{S_T0}, s{S_T0}, 7"), A(f"s_and_b32 s{S_T1}, s{S_IDX}, 1"), A(f"s_add_u32 s{S_T0}, s{S_T0}, s{S_T1}"), A(f"s_add_u32 s{S_T0}, s{S_T0}, 4"), A(f"s_lshl_b32 s{S_T0}, s{S_T0}, 6"), A(f"s_lshl_b32 s{S_T1}, s{S_WN}, 5"), A(f"s_add_u32 s{S_T0}, s{S_T0}, s{S_T1}"), A(f"s_add_u32 s{S_T0}, s{S_T0}, 1536")), "gu")
            cs_addr(VC3, lambda: (A(f"s_lshr_b32 s{S_T0}, s{S_IDX}, 1"), A(f"s_mul_i32 s{S_T0}, s{S_T0}, 7"), A(f"s_add_u32 s{S_T0}, s{S_T0}, 6"), A(f"s_lshl_b32 s{S_T0}, s{S_T0}, 6"),
                                  A(f"s_and_b32 s{S_T1}, s{S_IDX}, 1"), A(f"s_lshl_b32 s{S_T1}, s{S_T1}, 1"), A(f"s_add_u32 s{S_T1}, s{S_T1}, s{S_WN}"), A(f"s_lshl_b32 s{S_T1}, s{S_T1}, 4"),
                                  A(f"s_add_u32 s{S_T0}, s{S_T0}, s{S_T1}"), A(f"s_add_u32 s{S_T0}, s{S_T0}, 1536")), "gu")
            self.csa = [(VC2, 0), (VC2, 2048), (VC1, 0), (VC1, 64), (VC3, 0)]
        A(f"v_mov_b32 v{t3}, 0x3f803f80")
        for i in range(4): A(f"v_accvgpr_write_b32 a{A_ONES+i}, v{t3}")
        srd_off(A, S_H, S_WSP, S_WSP+1, WS_H, WS_H + H_BYTES)
        G, p, r, c = t0, t1, t2, t3
        A(f"v_lshrrev_b32 v{G}, 4, v{VLANE}"); A(f"v_and_b32 v{G}, 1, v{G}")
        A(f"v_lshrrev_b32 v{p}, 5, v{VLANE}")
        A(f"v_and_b32 v{r}, 15, v{VLANE}"); A(f"v_lshrrev_b32 v{r}, 2, v{r}")
        A(f"v_and_b32 v{c}, 3, v{VLANE}")
        k_, rb, u1, u2 = t4, t4+1, t4+2, t4+3
        A(f"v_lshlrev_b32 v{k_}, 3, v{p}"); A(f"v_add_u32 v{k_}, v{k_}, v{r}")
        A(f"v_lshrrev_b32 v{rb}, 1, v{r}"); A(f"v_and_b32 v{rb}, 1, v{rb}")
        for blk, kd in enumerate(kinds):
            d = TRA + blk
            if typ == "A" and kd == "gu" and blk > 0:
                A(f"v_xor_b32 v{d}, {blk*32}, v{TRA}"); continue
            if typ == "B" and blk == 1:
                A(f"v_add_u32 v{d}, 4096, v{d-1}"); continue
            if typ == "B" and blk == 3:
                A(f"v_xor_b32 v{d}, 32, v{d-1}"); continue
            if kd == "guh":
                A(f"v_lshrrev_b32 v{u1}, 1, v{c}"); A(f"s_lshl_b32 s{S_T0}, s{S_WN}, 1"); A(f"v_add_u32 v{u1}, s{S_T0}, v{u1}")
                A(f"v_lshlrev_b32 v{u2}, 1, v{G}"); A(f"v_xor_b32 v{u1}, v{u1}, v{u2}"); A(f"v_lshlrev_b32 v{u1}, 4, v{u1}")
                A(f"v_lshlrev_b32 v{u2}, 6, v{k_}"); A(f"v_add_u32 v{u1}, v{u1}, v{u2}")
                A(f"v_lshlrev_b32 v{u2}, 11, v{G}"); A(f"v_add_u32 v{u1}, v{u1}, v{u2}")
                A(f"v_add_u32 v{u1}, {W_BASE + 4*4096}, v{u1}")
            else:
                if kd in ("q", "k"):
                    A(f"s_lshl_b32 s{S_T0}, s{S_WN}, 1"); A(f"v_add_u32 v{u1}, s{S_T0}, v{G}")
                elif typ == "A": A(f"v_mov_b32 v{u1}, 0")
                else:
                    A(f"s_lshl_b32 s{S_T0}, s{S_WN}, 1"); A(f"v_mov_b32 v{u1}, s{S_T0}")
                A(f"v_lshlrev_b32 v{u1}, 1, v{u1}"); A(f"v_lshrrev_b32 v{u2}, 1, v{c}"); A(f"v_add_u32 v{u1}, v{u1}, v{u2}")
                if kd in ("q", "k"): A(f"v_lshlrev_b32 v{u2}, 2, v{rb}")
                else:
                    A(f"v_lshlrev_b32 v{u2}, 1, v{rb}"); A(f"v_lshlrev_b32 v{d}, 2, v{G}"); A(f"v_or_b32 v{u2}, v{u2}, v{d}")
                A(f"v_xor_b32 v{u1}, v{u1}, v{u2}"); A(f"v_lshlrev_b32 v{u1}, 4, v{u1}")
                A(f"v_lshlrev_b32 v{u2}, 7, v{k_}"); A(f"v_add_u32 v{u1}, v{u1}, v{u2}")
                if kd == "q": A(f"v_add_u32 v{u1}, {W_BASE + 4*4096}, v{u1}")
                elif kd == "k": A(f"v_add_u32 v{u1}, {W_BASE}, v{u1}")
                else:
                    if typ == "A":
                        A(f"s_lshl_b32 s{S_T0}, s{S_WN}, 13"); A(f"s_add_u32 s{S_T0}, s{S_T0}, {W_BASE}")
                    else: A(f"s_mov_b32 s{S_T0}, {W_BASE + 2*4096}")
                    A(f"v_lshlrev_b32 v{u2}, 12, v{G}"); A(f"v_add_u32 v{u1}, v{u1}, v{u2}"); A(f"v_add_u32 v{u1}, s{S_T0}, v{u1}")
            A(f"v_and_b32 v{u2}, 1, v{c}"); A(f"v_lshlrev_b32 v{u2}, 3, v{u2}"); A(f"v_add_u32 v{d}, v{u1}, v{u2}")
        A(f"v_lshlrev_b32 v{u1}, 2, v{p}"); A(f"v_add_u32 v{u1}, v{u1}, v{r}"); A(f"v_lshlrev_b32 v{u1}, 7, v{u1}")
        A(f"v_lshlrev_b32 v{u2}, 1, v{G}"); A(f"v_lshrrev_b32 v{VTR}, 1, v{c}"); A(f"v_add_u32 v{u2}, v{u2}, v{VTR}")
        A(f"v_lshlrev_b32 v{VTR}, 2, v{rb}"); A(f"v_xor_b32 v{u2}, v{u2}, v{VTR}"); A(f"v_lshlrev_b32 v{u2}, 4, v{u2}"); A(f"v_add_u32 v{u1}, v{u1}, v{u2}")
        A(f"v_and_b32 v{u2}, 1, v{c}"); A(f"v_lshlrev_b32 v{u2}, 3, v{u2}"); A(f"v_add_u32 v{u1}, v{u1}, v{u2}")
        A(f"v_add_u32 v{VTR}, s{S_LB}, v{u1}"); A(f"v_xor_b32 v{VTR1}, 64, v{VTR}")
        A(f"v_and_b32 v{u1}, 31, v{VLANE}"); A(f"s_lshl_b32 s{S_T0}, s{S_WM}, 6"); A(f"v_add_u32 v{u1}, s{S_T0}, v{u1}")
        A(f"v_lshrrev_b32 v{u2}, 1, v{u1}"); A(f"v_and_b32 v{u2}, 7, v{u2}"); A(f"v_xor_b32 v{u2}, v{u2}, v{p}"); A(f"v_lshlrev_b32 v{u2}, 4, v{u2}")
        A(f"v_lshlrev_b32 v{u1}, 7, v{u1}"); A(f"v_add_u32 v{u1}, v{u1}, v{u2}")
        for kk in range(4): A(f"v_xor_b32 v{XA+kk}, {kk*32}, v{u1}")
        if X1_EARLY: emit_items(A, self.Xg(1))
        SX = WF + 20
        A.wait("strow")
        P0, P1, Q0, Q1, U = VT, VT+2, VT+4, VT+6, VT+8
        for tok, (P, Q) in enumerate(((P0, Q0), (P1, Q1))):
            for i in range(4):
                src = SX + 4*tok + i
                A(f"v_lshlrev_b32 v{U}, 16, v{src}"); A(f"v_and_b32 v{U+1}, 0xffff0000, v{src}")
                if i == 0:
                    A(f"v_pk_mul_f32 v[{Q}:{Q+1}], v[{U}:{U+1}], v[{U}:{U+1}]"); A(f"v_mov_b32 v{P}, v{U}"); A(f"v_mov_b32 v{P+1}, v{U+1}")
                else:
                    A(f"v_pk_add_f32 v[{P}:{P+1}], v[{P}:{P+1}], v[{U}:{U+1}]"); A(f"v_pk_fma_f32 v[{Q}:{Q+1}], v[{U}:{U+1}], v[{U}:{U+1}], v[{Q}:{Q+1}]")
        for r_ in (P0, P1, Q0, Q1): A(f"v_add_f32 v{r_}, v{r_}, v{r_+1}")
        for dpp in ("row_shr:1 row_mask:0xf bank_mask:0xf", "row_shr:2 row_mask:0xf bank_mask:0xf", "row_shr:4 row_mask:0xf bank_mask:0xf", "row_shr:8 row_mask:0xf bank_mask:0xf",
                    "row_bcast:15 row_mask:0xa bank_mask:0xf", "row_bcast:31 row_mask:0xc bank_mask:0xf"):
            for r_ in (P0, P1, Q0, Q1): A(f"v_add_f32_dpp v{r_}, v{r_}, v{r_} {dpp}")
        A(f"v_mul_f32 v{P0}, 0x3b000000, v{P0}"); A(f"v_mul_f32 v{P0+1}, 0x3b000000, v{P1}")
        A(f"v_mul_f32 v{Q0}, 0x3b000000, v{Q0}"); A(f"v_mul_f32 v{Q0+1}, 0x3b000000, v{Q1}")
        for j in range(2):
            A(f"v_fma_f32 v{Q0+j}, -v{P0+j}, v{P0+j}, v{Q0+j}"); A(f"v_max_f32 v{Q0+j}, 0, v{Q0+j}"); A(f"v_add_f32 v{Q0+j}, 0x3727c5ac, v{Q0+j}"); A(f"v_rsq_f32 v{Q0+j}, v{Q0+j}")
        A(f"v_mov_b32 v{U}, s{S_HB}"); A(f"v_add_u32 v{U+1}, {WS_R}, v{U}")
        A(f"s_mov_b64 s[{S_E0}:{S_E0+1}], exec"); A("s_mov_b32 exec_lo, 0"); A("s_mov_b32 exec_hi, 0x80000000")
        A.vm(f"global_store_dwordx2 v{U}, v[{P0}:{P0+1}], s[{S_WSP}:{S_WSP+1}] sc1")
        A.vm(f"global_store_dwordx2 v{U+1}, v[{Q0}:{Q0+1}], s[{S_WSP}:{S_WSP+1}] sc1", id="stst")
        A(f"s_mov_b64 exec, s[{S_E0}:{S_E0+1}]")
        A.stamp(2)
        A("s_waitcnt lgkmcnt(0)")
        A.wait("X0_3", "W0_4")
        A("s_barrier")
        A.stamp(3); A.stamp(8, "pro")
        for s in self.reads(0): A(s)
        A.stamp(1, "init")
        if ZLATE:
            L = f"K12{typ}_nozero"
            A(f"s_cmp_ge_u32 s2, {NZERO}"); A(f"s_cbranch_scc1 {L}")
            A(f"s_lshl_b32 s{S_T0}, s2, 12"); A(f"s_add_u32 s{S_T0}, s{S_T0}, {WS_KV}")
            A(f"v_lshlrev_b32 v{VT+6}, 4, v{VTID}"); A(f"v_add_u32 v{VT+6}, s{S_T0}, v{VT+6}")
            for i in range(4): A(f"v_mov_b32 v{VT+0+i}, 0")
            A(("vmu", "zst", f"global_store_dwordx4 v{VT+6}, v[{VT+0}:{VT+3}], s[{S_WSP}:{S_WSP+1}] sc1"))
            A(f"{L}:")
        else:
            for x in self.sig(f"s_cmp_lt_u32 s2, {NZERO}", S_DBG, DBG_INIT, None, "init"): A(x)
        A.stamp(2, "init")

    def sig(self, cond, base, off_imm, off_sgpr, tag):
        L = f"K12{self.typ}_sig_{tag}"
        o = []
        if cond: o += [cond, f"s_cbranch_scc0 {L}"]
        o += [f"s_cmp_eq_u32 s{S_WV}, 0", f"s_cbranch_scc0 {L}"]
        if off_sgpr is None: o += [f"v_mov_b32 v{VT+9}, {off_imm}"]
        else: o += [f"s_lshl_b32 s{S_T4}, s{off_sgpr}, 7", f"s_add_u32 s{S_T4}, s{S_T4}, {off_imm}", f"v_mov_b32 v{VT+9}, s{S_T4}"]
        o += [f"v_mov_b32 v{VT+8}, 1", f"s_mov_b64 s[{S_E0}:{S_E0+1}], exec", "s_mov_b64 exec, 1",
              f"!global_atomic_add v{VT+9}, v{VT+8}, s[{base}:{base+1}] sc1", f"s_mov_b64 exec, s[{S_E0}:{S_E0+1}]", f"{L}:"]
        return o

    def spin(self, tag, base, vaddr, expect):
        L = f"K12{self.typ}_spin_{tag}"
        return [f"s_mov_b32 s{S_T3}, 0", f"{L}:", f"!global_load_dword v{VT+10}, v{vaddr}, s[{base}:{base+1}] sc1", "s_waitcnt vmcnt(0)",
                f"v_readfirstlane_b32 s{S_T4}, v{VT+10}", f"s_add_u32 s{S_T3}, s{S_T3}, 1", f"s_cmp_ge_u32 s{S_T3}, {POLL_MAX}", f"s_cbranch_scc1 {L}_x",
                f"s_cmp_ge_u32 s{S_T4}, {expect}", f"s_cbranch_scc1 {L}_x", "s_sleep 2", f"s_branch {L}", f"{L}_x:"]

    def w0(self, tag, code):
        L = f"K12{self.typ}_w0_{tag}"
        return [f"s_cmp_eq_u32 s{S_WV}, 0", f"s_cbranch_scc0 {L}"] + code + [f"{L}:"]

    def pre_barrier(self, h):
        typ = self.typ; T = VT
        if h == H_INIT:
            return [("stamp", 3, "init")] + self.w0("initchk", [("wait", ["initld"]), f"v_readfirstlane_b32 s{S_T4}, v{T+10}", "s_nop 0", f"s_cmp_ge_u32 s{S_T4}, {NZERO}", f"s_cbranch_scc1 K12{typ}_initok",
                                       f"v_mov_b32 v{T+9}, {DBG_INIT}"] + self.spin("init", S_DBG, T+9, NZERO) + [f"K12{typ}_initok:"]) + [("stamp", 4, "init")]
        if h == H_CNT:
            return [("stamp", 6, "init")] + self.w0("cntchk", [("wait", ["cntld"]), f"v_readfirstlane_b32 s{S_T4}, v{T+5}", "s_nop 0", f"s_cmp_ge_u32 s{S_T4}, 16", f"s_cbranch_scc1 K12{typ}_stok"]
                           + self.spin("st", S_WSP, T+7, 16) + [f"K12{typ}_stok:",
                           f"v_readfirstlane_b32 s{S_T4}, v{T+6}", "s_nop 0", f"s_cmp_ge_u32 s{S_T4}, 16", f"s_cbranch_scc1 K12{typ}_csok"]
                           + self.spin("cs", S_WSP, T+8, 16) + [f"K12{typ}_csok:"]) + [("stamp", 7, "init")]
        return []

    def oneshot_items(self, add, at):
        typ = self.typ; wsp = f"s[{S_WSP}:{S_WSP+1}]"; dbg = f"s[{S_DBG}:{S_DBG+1}]"
        T = VT
        for s in range(4):
            par = s & 1
            it = [f"s_cmp_eq_u32 s{S_KSC}, {s}", f"s_cbranch_scc0 K12{typ}_nocs{s}"]
            for blk in range(5):
                b = WF + 20*par + 4*blk
                it.append(f"v_mfma_f32_32x32x16_bf16 a[{CS_TMP+16*blk}:{CS_TMP+16*blk+15}], a[{A_ONES}:{A_ONES+3}], v[{b}:{b+3}], 0")
            it.append(f"K12{typ}_nocs{s}:")
            self.fixed.setdefault(s, []).append(it)
        self.fixed.setdefault(K_INITLD, []).append(self.w0("initld", [f"v_mov_b32 v{T+9}, {DBG_INIT}", f"s_mov_b64 s[{S_E0}:{S_E0+1}], exec", "s_mov_b64 exec, 1",
                                      ("vmu", "initld", f"global_load_dword v{T+10}, v{T+9}, {dbg} sc1"), f"s_mov_b64 exec, s[{S_E0}:{S_E0+1}]"]))
        it = [[f"v_accvgpr_read_b32 v{T+blk}, a{CS_TMP+16*blk}"] for blk in range(5)]
        at_ = [f"s_mov_b64 s[{S_E0}:{S_E0+1}], exec", "s_mov_b32 exec_hi, 0"]
        for blk in range(5):
            va, off = self.csa[blk]
            at_.append(("vm", f"csat{blk}", f"global_atomic_add_f32 v{va}, v{T+blk}, {wsp} offset:{off}"))
        at_.append(f"s_mov_b64 exec, s[{S_E0}:{S_E0+1}]")
        add(at(K_CSAT), it + [at_])
        self.fixed.setdefault(K_CNTLD, []).append(self.w0("cntld", [f"s_lshl_b32 s{S_T4}, s{S_T}, 7", f"s_add_u32 s{S_T4}, s{S_T4}, {WS_STCNT}", f"v_mov_b32 v{T+7}, s{S_T4}",
                          f"s_lshl_b32 s{S_T4}, s{S_CG}, 7", f"s_add_u32 s{S_T4}, s{S_T4}, {WS_CSCNT}", f"v_mov_b32 v{T+8}, s{S_T4}",
                          f"s_mov_b64 s[{S_E0}:{S_E0+1}], exec", "s_mov_b64 exec, 1",
                          f"!global_load_dword v{T+5}, v{T+7}, {wsp} sc1", ("vmu", "cntld", f"global_load_dword v{T+6}, v{T+8}, {wsp} sc1"),
                          f"s_mov_b64 exec, s[{S_E0}:{S_E0+1}]"]))
        VM = T; VCS = T + 2; VRB = T + 7
        lds = [[f"v_and_b32 v{T+8}, 31, v{VLANE}", f"s_lshl_b32 s{S_T4}, s{S_T}, 7", f"s_lshl_b32 s{S_T3}, s{S_WM}, 6", f"s_add_u32 s{S_T4}, s{S_T4}, s{S_T3}"],
               [f"v_add_u32 v{T+8}, s{S_T4}, v{T+8}", f"v_lshlrev_b32 v{T+8}, 2, v{T+8}", f"v_add_u32 v{T+9}, {WS_R}, v{T+8}"],
               [("vm", None, f"global_load_dword v{VM}, v{T+8}, {wsp} sc1")], [("vm", None, f"global_load_dword v{VM+1}, v{T+8}, {wsp} offset:128 sc1")],
               [("vm", None, f"global_load_dword v{VR}, v{T+9}, {wsp} sc1")], [("vm", None, f"global_load_dword v{VR+1}, v{T+9}, {wsp} offset:128 sc1")]]
        for blk in range(5):
            va, off = self.csa[blk]
            lds.append([("vm", "csld" if blk == 4 and typ == "A" else None, f"global_load_dword v{VCS+blk}, v{va}, {wsp} offset:{off} sc1")])
        if typ == "B":
            lds.append([f"s_lshl_b32 s{S_T4}, s{S_T}, 7", f"v_add_u32 v{T+8}, s{S_T4}, v{VTID}", f"v_lshlrev_b32 v{T+8}, 2, v{T+8}", f"v_add_u32 v{T+8}, {WS_R}, v{T+8}"])
            lds.append([("vm", "csld", f"global_load_dword v{VRB}, v{T+8}, {wsp} sc1")])
        add(at(2*H_CNT-1, 1), lds)
        if K_PT:
            add(at(K_PT), [[f"s_lshl_b32 s{S_T4}, s{S_TAU}, 16", f"s_lshl_b32 s{S_T3}, s{S_J}, 7", f"s_add_u32 s{S_T4}, s{S_T4}, s{S_T3}", f"v_mov_b32 v{T+9}, s{S_T4}"],
                           [f"s_mov_b64 s[{S_E0}:{S_E0+1}], exec", "s_mov_b64 exec, 1", ("vm", None, f"global_load_dword a224, v{T+9}, s[{P_O}:{P_O+1}]"), f"s_mov_b64 exec, s[{S_E0}:{S_E0+1}]"],
                           [f"v_mov_b32 v{T+9}, 0"],
                           [f"s_mov_b64 s[{S_E0}:{S_E0+1}], exec", "s_mov_b64 exec, 1", ("vm", None, f"global_load_dword a227, v{T+9}, s[{P_WO}:{P_WO+1}]"), f"s_mov_b64 exec, s[{S_E0}:{S_E0+1}]"]])
        if K_WOPF:
            it = [[f"s_lshl_b32 s{S_T4}, s{S_WV}, 17", f"s_and_b32 s{S_T3}, s{S_TAU}, 3", f"s_lshl_b32 s{S_T3}, s{S_T3}, 15", f"s_add_u32 s{S_T4}, s{S_T4}, s{S_T3}"],
                  [f"s_lshl_b32 s{S_T3}, s{S_J}, 7", f"s_add_u32 s{S_T4}, s{S_T4}, s{S_T3}", f"v_add_u32 v{T+9}, s{S_T4}, v{VDM}"]]
            for k in range(4):
                it.append([("vm", None, f"global_load_dwordx4 a[224:227], v{T+9}, s[{P_WO}:{P_WO+1}]")] + ([f"v_add_u32 v{T+9}, 8192, v{T+9}"] if k < 3 else []))
            add(at(K_WOPF), it)
        if CODE_PF2:
            add(at(CODE_PF2), [[f"s_getpc_b64 s[{S_E2}:{S_E2+1}]", f"K12{typ}_pc2:", f"s_lshr_b32 s{S_T4}, s2, 3", f"s_lshl_b32 s{S_T4}, s{S_T4}, 2", f"s_add_u32 s{S_T4}, s{S_T4}, s{S_WV}"],
                               [f"s_min_u32 s{S_T4}, s{S_T4}, ((K12_end-K12{typ}_pc2)>>10)-1", f"s_lshl_b32 s{S_T4}, s{S_T4}, 10", f"v_add_u32 v{T+9}, s{S_T4}, v{VL16}"],
                               [("vm", None, f"global_load_dwordx4 a[224:227], v{T+9}, s[{S_E2}:{S_E2+1}]")]])
        tt = T + 8; b = T + 10
        items = [[("wait", ["csld"])], [f"v_cmp_gt_u32 vcc, 32, v{VLANE}", "s_nop 1"]]
        for tb in range(2):
            items += [[f"v_cndmask_b32 v{tt}, 0, v{VM+tb}, vcc"], [f"v_cvt_pk_bf16_f32 v{b}, v{tt}, v{tt}"],
                      [f"v_and_b32 v{tt+1}, 0xffff0000, v{b}"], [f"v_sub_f32 v{tt+1}, v{tt}, v{tt+1}"],
                      [f"v_cvt_pk_bf16_f32 v{b+1}, v{tt+1}, 0"],
                      [f"v_accvgpr_write_b32 a{AMF+4*tb}, v{b}"], [f"v_accvgpr_write_b32 a{AMF+4*tb+1}, v{b+1}"],
                      [f"v_accvgpr_write_b32 a{AMF+4*tb+2}, 0"], [f"v_accvgpr_write_b32 a{AMF+4*tb+3}, 0"]]
        for blk in range(5):
            items += [[f"v_cndmask_b32 v{tt}, 0, v{VCS+blk}, vcc"], [f"v_sub_f32 v{tt}, 0, v{tt}"],
                      [f"v_cvt_pk_bf16_f32 v{b+1}, v{tt}, 0"], [f"v_lshlrev_b32 v{tt+1}, 16, v{b+1}"], [f"v_sub_f32 v{tt+1}, v{tt}, v{tt+1}"],
                      [f"v_cvt_pk_bf16_f32 v{b}, v{tt}, v{tt+1}"],
                      [f"v_accvgpr_write_b32 a{ACF+4*blk}, v{b}"], [f"v_accvgpr_write_b32 a{ACF+4*blk+1}, v{b+1}"],
                      [f"v_accvgpr_write_b32 a{ACF+4*blk+2}, 0"], [f"v_accvgpr_write_b32 a{ACF+4*blk+3}, 0"]]
        if typ == "B":
            items += [[f"v_lshlrev_b32 v{tt}, 2, v{VTID}"], [f"v_add_u32 v{tt}, {LDS_R}, v{tt}"],
                      [f"v_cmp_gt_u32 vcc, 128, v{VTID}", f"s_and_saveexec_b64 s[{S_E0}:{S_E0+1}], vcc", f"ds_write_b32 v{tt}, v{VRB}", f"s_mov_b64 exec, s[{S_E0}:{S_E0+1}]"]]
        add(at(K_RANK), items)

    def loop(self):
        A = self.A
        self.loop_start = len(A.l)
        steps = []
        for s in range(32):
            if s == CORR_AT: steps.append(("c", None))
            steps.append(("k", s))
        order_last = [b for b, kd in enumerate(self.kinds) if kd in ("gu","guh")] + [b for b, kd in enumerate(self.kinds) if kd not in ("gu","guh")]
        idx_of = {st: i for i, st in enumerate(steps)}
        def at(s, g=0): return (idx_of[("k", s)], g)
        flex = []; flex2 = []
        def add(pos, items):
            for it in items: flex.append((pos, it))
        def add2(pos, items):
            for it in items: flex2.append((pos, it))
        add(at(0), self.Wg(2))
        if not X1_EARLY: add(at(0), self.Xg(1))
        add(at(1, 1), self.Xg(2))
        for h in range(1, 14): add(at(2*h-1, 1), self.Wg(h+2))
        for sg in range(1, 6): add(at(4*sg-1, 1), self.Xg(sg+2))
        self.fixed = {}
        tagD = {}; tagR = {}; keep = []; placedR = {}
        self.oneshot_items(add, at)
        self.w2_done_R = []
        for i in range(N_IN):
            dd = self.w2.D(i); tagD[id(dd[0])] = i; keep.append(dd)
            add2(at(min(i+W2_START, 31)), dd)
            rr = self.w2.R(i); tagR[id(rr[-1])] = i; keep.append(rr)
            add2(at(min(i+W2_START+DLAG, 31)), rr); self.w2_done_R.append(i)
        flex.sort(key=lambda x: x[0])
        gaps_all = []
        flex2.sort(key=lambda x: x[0])
        queues = [list(flex), list(flex2)]
        for si, st in enumerate(steps):
            gaps = [[] for _ in range(10)]
            head = []
            if st[0] == "k":
                s = st[1]
                M = self.mfmas(s, order_last if s == 31 else None)
                head = ["s_waitcnt lgkmcnt(0)"]
                odd = s & 1
                if odd:
                    h = (s + 1)//2
                    if h <= 15:
                        ids = [f"W{h}_4"] + ([f"X{h//2}_3"] if h % 2 == 0 else [])
                        if h == H_INIT: ids.append("stst")
                        if ZLATE and h == H_Z: ids.append("zst")
                        if h == H_CS: ids.append("csat4")
                        if STAMP and SMODE == "wait":
                            gaps[0] += self.pre_barrier(h) + [("wait", ids), "s_memtime s[98:99]", "s_waitcnt lgkmcnt(0)", "s_barrier", "s_memtime s[100:101]", "s_waitcnt lgkmcnt(0)", "s_sub_u32 s100, s100, s98", f"s_add_u32 s{SB+12}, s{SB+12}, s100"]
                        else:
                            gaps[0] += self.pre_barrier(h) + [("wait", ids), "s_barrier"]
                        if ZLATE and h == H_Z: gaps[0] += self.sig(f"s_cmp_lt_u32 s2, {NZERO}", S_DBG, DBG_INIT, None, "init")
                        if h == H_INIT: gaps[0] += self.sig(None, S_WSP, WS_STCNT, S_T, "st")
                        if h == H_CS: gaps[0] += self.sig(None, S_WSP, WS_CSCNT, S_CG, "cs")
                    else:
                        gaps[0] += ["s_barrier"]
                nxt = s + 1
                if nxt < 32:
                    rd = self.reads(nxt)
                    g0 = 1 if odd else 0
                    for i, x in enumerate(rd): gaps[g0 + i//2].append(x)
            else:
                M = self.corr(); head = ["s_waitcnt lgkmcnt(0)"]
            if st[0] == "k" and st[1] in self.fixed:
                for it in self.fixed[st[1]]: gaps[9] += it
            for qi in range(2):
                pending = queues[qi]
                gi = 0
                rest = []
                blocked = False
                for (pos, it) in pending:
                    if blocked or pos[0] > si:
                        rest.append((pos, it)); continue
                    if id(it) in tagD and placedR.get(tagD[id(it)] - NSL, -1) == si:
                        rest.append((pos, it)); blocked = True; continue
                    if id(it) in tagD and tagD[id(it)] >= NSL and (tagD[id(it)] - NSL) not in placedR:
                        rest.append((pos, it)); blocked = True; continue
                    g = max(gi, pos[1] if pos[0] == si else 0)
                    need = 2 if (isinstance(it, tuple) and it[0] == "dma") else len(it)
                    while g < 10 and len(gaps[g]) + min(need, CAP) > CAP: g += 1
                    if g >= 10:
                        rest.append((pos, it)); blocked = True; continue
                    if id(it) in tagR: placedR[tagR[id(it)]] = si
                    if isinstance(it, tuple) and it[0] == "dma":
                        gaps[g].append(it[1]); gaps[g].append("__NOP__"); gaps[g].append(it[2]); gi = g + 1
                    else:
                        gaps[g] += it; gi = g
                queues[qi] = rest
            for g in gaps:
                while "__NOP__" in g:
                    i = g.index("__NOP__")
                    cand = [j for j in range(i-1) if isinstance(g[j], str) and g[j].startswith("ds_read")]
                    if cand:
                        x = g.pop(cand[-1]); i -= 1; g[i] = x
                    else: g[i] = "s_nop 0"
            if st[0] == "k" and st[1] % 4 == 0 and st[1] > 0: A.stamp(st[1]//4, "loop")
            for x in head: A(x)
            for i in range(10):
                A(M[i])
                for x in gaps[i]:
                    if x == "__WOSRD__":
                        assert "W15_4" in A.ids
                        A(f"s_lshl_b32 s{S_T0}, s{S_J}, 7"); A(f"s_lshl_b32 s{S_T1}, s{S_WV}, 17"); A(f"s_add_u32 s{S_T0}, s{S_T0}, s{S_T1}")
                        srd_off(A, S_WO, P_WO, P_WO+1, f"s{S_T0}", 512*1024)
                    else: A(x)
        assert not queues[0], queues[0][:3]
        self.leftover = queues[1]
        for (pos, it) in self.leftover:
            if id(it) in tagD: A("s_waitcnt lgkmcnt(0)")
            if it == ["__WOSRD__"]:
                A(f"s_lshl_b32 s{S_T0}, s{S_J}, 7"); A(f"s_lshl_b32 s{S_T1}, s{S_WV}, 17"); A(f"s_add_u32 s{S_T0}, s{S_T0}, s{S_T1}")
                srd_off(A, S_WO, P_WO, P_WO+1, f"s{S_T0}", 512*1024)
            else: emit_items(A, [it])
        self.nleft = len(self.leftover)
        txt = A.l
        for i in range(N_IN - NSL):
            rd = [n for n, x in enumerate(txt) if n > self.loop_start and "ds_read_b64_tr_b16 a[%d:" % (8*i+6) in x]
            if not rd: continue
            pos_r = rd[-1]; pos_d = A.pos[f"w2_{i+NSL}_0"]
            assert pos_d > pos_r and any("lgkmcnt(0)" in x for x in txt[pos_r:pos_d]), ("no lgkm wait", i)

    def flag_store(self, slot_imm, FA, ONE):
        A = self.A
        FA, ONE = VT+4, VT+5
        A(f"v_mov_b32 v{ONE}, 1")
        A(f"s_lshl_b32 s{S_T0}, s{S_T}, 1"); A(f"s_add_u32 s{S_T0}, s{S_T0}, s{S_WM}"); A(f"s_lshl_b32 s{S_T0}, s{S_T0}, 2")
        A(f"s_lshr_b32 s{S_T1}, s{S_IDX}, 1"); A(f"s_add_u32 s{S_T0}, s{S_T0}, s{S_T1}"); A(f"s_lshl_b32 s{S_T0}, s{S_T0}, 4")
        A(f"s_lshl_b32 s{S_T1}, s{S_I1}, 1"); A(f"s_add_u32 s{S_T0}, s{S_T0}, s{S_T1}"); A(f"s_add_u32 s{S_T0}, s{S_T0}, s{S_WN}")
        A(f"s_add_u32 s{S_T0}, s{S_T0}, {slot_imm}"); A(f"s_lshl_b32 s{S_T0}, s{S_T0}, 2"); A(f"s_add_u32 s{S_T0}, s{S_T0}, {WS_FLAG}")
        A(f"v_mov_b32 v{FA}, s{S_T0}")
        A(f"s_mov_b64 s[{S_E0}:{S_E0+1}], exec"); A("s_mov_b64 exec, 1")
        A.vm(f"global_store_dword v{FA}, v{ONE}, s[{S_WSP}:{S_WSP+1}] sc1")
        A(f"s_mov_b64 exec, s[{S_E0}:{S_E0+1}]")

    def transition(self):
        A, typ, kinds = self.A, self.typ, self.kinds
        w2 = self.w2
        tt = VT
        state = {"D": N_IN, "R": N_IN}
        A.stamp(1, "tr")
        A("s_waitcnt lgkmcnt(0)")
        A("s_barrier")
        A(f"s_mul_i32 s{S_T0}, s{S_WV}, {NPOST*2048}"); A(f"s_add_u32 s{S_T0}, s{S_T0}, {W2POST}")
        A(f"s_sub_u32 s{S_T1}, s{S_T0}, s{S_LB}"); A(f"s_mov_b32 s{S_LB}, s{S_T0}")
        A(f"v_add_u32 v{VTR}, s{S_T1}, v{VTR}"); A(f"v_xor_b32 v{VTR1}, 64, v{VTR}")
        A(f"s_lshl_b32 s{S_T0}, s{S_J}, 7"); A(f"s_lshl_b32 s{S_T1}, s{S_WV}, 17"); A(f"s_add_u32 s{S_T0}, s{S_T0}, s{S_T1}")
        srd_off(A, S_WO, P_WO, P_WO+1, f"s{S_T0}", 512*1024)
        def bgD(n=1):
            for _ in range(n):
                i = state["D"]
                if i >= 36 or i - state["R"] >= NPOST: return
                emit_items(A, w2.D(i)); state["D"] += 1
        def bgR(n=1):
            for _ in range(n):
                i = state["R"]
                if i >= state["D"]: return
                if i >= 32 and not state.get("vfree"): return
                emit_items(A, w2.R(i)); state["R"] += 1
        def bgD_safe(n=1):
            A("s_waitcnt lgkmcnt(0)"); bgD(n)
        A(f"s_lshl_b32 s{S_T0}, s{S_T}, 1"); A(f"s_add_u32 s{S_T0}, s{S_T0}, s{S_WM}"); A(f"s_lshl_b32 s{S_T0}, s{S_T0}, 2")
        A(f"s_lshr_b32 s{S_T1}, s{S_IDX}, 1"); A(f"s_add_u32 s{S_T0}, s{S_T0}, s{S_T1}"); A(f"s_mul_i32 s{S_HB}, s{S_T0}, {36*2048}")
        A(f"s_and_b32 s{S_I1}, s{S_IDX}, 1")
        I1 = S_I1
        R2 = XF
        for tb in range(2):
            A(f"v_mul_f32 v{R2+2*tb}, v{VR+tb}, v{VR+tb}"); A(f"v_mul_f32 v{R2+2*tb+1}, v{VR+tb}, v{VR+tb}")
        PK = WF
        nst = 0
        gublks = [b for b, kd in enumerate(kinds) if kd in ("gu", "guh")]
        lasth = None
        for blk in gublks:
            kd = kinds[blk]
            if typ == "A":
                if blk == 0:
                    A(f"s_lshl_b32 s{S_T2}, s{I1}, 1"); A(f"s_add_u32 s{S_T2}, s{S_T2}, s{S_WN}"); A(f"s_lshl_b32 s{S_T2}, s{S_T2}, 13"); A(f"s_add_u32 s{S_T2}, s{S_T2}, s{S_HB}")
                else: A(f"s_add_u32 s{S_T2}, s{S_T2}, 2048")
            elif kd == "gu":
                if blk == 2:
                    A(f"s_lshl_b32 s{S_T2}, s{I1}, 2"); A(f"s_lshl_b32 s{S_T3}, s{S_WN}, 1"); A(f"s_add_u32 s{S_T2}, s{S_T2}, s{S_T3}"); A(f"s_add_u32 s{S_T2}, s{S_T2}, 16")
                    A(f"s_lshl_b32 s{S_T2}, s{S_T2}, 11"); A(f"s_add_u32 s{S_T2}, s{S_T2}, s{S_HB}")
                else: A(f"s_add_u32 s{S_T2}, s{S_T2}, 2048")
            else:
                A(f"s_lshl_b32 s{S_T2}, s{I1}, 1"); A(f"s_add_u32 s{S_T2}, s{S_T2}, s{S_WN}"); A(f"s_add_u32 s{S_T2}, s{S_T2}, 24")
                A(f"s_lshl_b32 s{S_T2}, s{S_T2}, 11"); A(f"s_add_u32 s{S_T2}, s{S_T2}, s{S_HB}")
            for tb in range(2):
                a = acc(blk, tb); pk = PK + 4*(nst % 4); nst += 1
                for i in range(4): A(f"v_pk_mul_f32 v[{a+2*i}:{a+2*i+1}], v[{a+2*i}:{a+2*i+1}], v[{a+8+2*i}:{a+8+2*i+1}]")
                for i in range(4): A(f"v_pk_mul_f32 v[{a+2*i}:{a+2*i+1}], v[{a+2*i}:{a+2*i+1}], v[{R2+2*tb}:{R2+2*tb+1}]")
                for i in range(4): A(f"v_cvt_pk_bf16_f32 v{pk+i}, v{a+2*i}, v{a+2*i+1}")
                lasth = f"hs_{blk}_{tb}"
                A.vm(f"buffer_store_dwordx4 v[{pk}:{pk+3}], v{VL16}, s[{S_H}:{S_H+3}], s{S_T2} offen offset:{tb*1024} sc1", id=lasth)
        assert (not LATE_R) or 36 - N_IN <= NPOST
        A.stamp(5); A.stamp(2, "tr")
        FA, ONE = VT+4, VT+5
        A(f"s_mov_b32 s{S_C6}, 0x358637bd"); A(f"s_mov_b32 s{S_C6+1}, 0x358637bd")
        C6 = f"s[{S_C6}:{S_C6+1}]"
        if typ == "A":
            A(f"s_lshl_b32 s{S_T2}, s{I1}, 2"); A(f"s_lshl_b32 s{S_T3}, s{S_WN}, 1"); A(f"s_add_u32 s{S_T2}, s{S_T2}, s{S_T3}"); A(f"s_add_u32 s{S_T2}, s{S_T2}, 28")
            A(f"s_lshl_b32 s{S_T2}, s{S_T2}, 11"); A(f"s_add_u32 s{S_T4}, s{S_T2}, s{S_HB}"); A(f"s_add_u32 s{S_XO}, s{S_T4}, 2048")
            A(f"s_mov_b32 s22, s{S_T4}"); A(f"s_mov_b32 s23, s{S_XO}")
            RP = XF + 4; RLP = XF + 6
            for tb in range(2):
                a = acc(4, tb)
                A(f"v_mov_b32 v{RP}, v{VR+tb}"); A(f"v_mov_b32 v{RP+1}, v{VR+tb}")
                A(f"v_mul_f32 v{RLP}, 0x3fb8aa3b, v{VR+tb}"); A(f"v_mul_f32 v{RLP+1}, 0x3fb8aa3b, v{VR+tb}")
                for i in range(0, 16, 4):
                    for j in (0, 2): A(f"v_pk_mul_f32 v[{tt+j}:{tt+j+1}], v[{a+i+j}:{a+i+j+1}], v[{RLP}:{RLP+1}]")
                    for j in (0, 2): A(f"v_pk_fma_f32 v[{a+i+j}:{a+i+j+1}], v[{a+i+j}:{a+i+j+1}], v[{RP}:{RP+1}], {C6}")
                    for j in range(4): A(f"v_exp_f32_e64 v{tt+j}, v{tt+j} clamp")
                    for j in range(4): A(f"v_max_f32 v{a+i+j}, s{S_C6}, v{a+i+j}")
                    for j in (0, 2): A(f"v_pk_add_f32 v[{a+i+j}:{a+i+j+1}], v[{a+i+j}:{a+i+j+1}], v[{tt+j}:{tt+j+1}]")
                    if PHI_D: bgD(1)
                if tb == FLAG_TB and FLAG_TB == 0:
                    A.stamp(3, "tr"); A.wait(lasth); A.stamp(4, "tr"); self.flag_store(0, FA, ONE)
                    if LATE_R == 1: bgD(36 - N_IN)
                for hs in range(2):
                    pk = (128 + 4*(2*tb + hs)) if DEFER else PK + 4*(nst % 4); nst += 1
                    for i in range(4): A(f"v_cvt_pk_bf16_f32 v{pk+i}, v{a+8*hs+2*i}, v{a+8*hs+2*i+1}")
                    if not DEFER: A.vm(f"buffer_store_dwordx4 v[{pk}:{pk+3}], v{VL16}, s[{S_H}:{S_H+3}], s{S_XO if hs else S_T4} offen offset:{tb*1024} sc1", id=f"pq_{tb}_{hs}")
            if FLAG_TB == 1:
                A.stamp(3, "tr"); A.wait(lasth); A.stamp(4, "tr"); self.flag_store(0, FA, ONE)
            bgD(11)
            state["vfree"] = True
            A.stamp(5, "tr")
        else:
            RR = WF; RL = WF + 16; TK = WF + 32; TV = VT + 6
            ONES = XF + 4
            for i in range(4): A(f"v_mov_b32 v{ONES+i}, 0x3f803f80")
            A(f"v_lshrrev_b32 v{tt}, 5, v{VLANE}"); A(f"v_lshlrev_b32 v{tt}, 4, v{tt}")
            A(f"s_lshl_b32 s{S_T0}, s{S_WM}, 8"); A(f"s_add_u32 s{S_T0}, s{S_T0}, {LDS_R}"); A(f"v_add_u32 v{XF+9}, s{S_T0}, v{tt}")
            D2, DZ = acc(2,0), acc(2,1)
            for tb in range(2):
                for q4 in range(4): A(f"ds_read_b128 v[{RR+4*q4}:{RR+4*q4+3}], v{XF+9} offset:{tb*128 + q4*32}")
                A("s_waitcnt lgkmcnt(0)")
                A(f"s_mov_b32 s{S_T0}, 0x3fb8aa3b"); A(f"s_mov_b32 s{S_T1}, 0x3fb8aa3b")
                for i in range(8): A(f"v_pk_mul_f32 v[{RL+2*i}:{RL+2*i+1}], v[{RR+2*i}:{RR+2*i+1}], s[{S_T0}:{S_T1}]")
                a = acc(0, tb); av = acc(1, tb)
                for i in range(0, 16, 4):
                    for j in (0, 2): A(f"v_pk_mul_f32 v[{tt+j}:{tt+j+1}], v[{a+i+j}:{a+i+j+1}], v[{RL+i+j}:{RL+i+j+1}]")
                    for j in (0, 2): A(f"v_pk_fma_f32 v[{a+i+j}:{a+i+j+1}], v[{a+i+j}:{a+i+j+1}], v[{RR+i+j}:{RR+i+j+1}], {C6}")
                    for j in range(4): A(f"v_exp_f32_e64 v{tt+j}, v{tt+j} clamp")
                    for j in range(4): A(f"v_max_f32 v{a+i+j}, s{S_C6}, v{a+i+j}")
                    for j in (0, 2): A(f"v_pk_add_f32 v[{a+i+j}:{a+i+j+1}], v[{a+i+j}:{a+i+j+1}], v[{tt+j}:{tt+j+1}]")
                    if PHI_D: bgD(1)
                for i in range(8): A(f"v_pk_mul_f32 v[{av+2*i}:{av+2*i+1}], v[{av+2*i}:{av+2*i+1}], v[{RR+2*i}:{RR+2*i+1}]")
                for i in range(8): A(f"v_cvt_pk_bf16_f32 v{TK+i}, v{a+2*i}, v{a+2*i+1}")
                for i in range(8): A(f"v_cvt_pk_bf16_f32 v{TV+i}, v{av+2*i}, v{av+2*i+1}")
                A("s_nop 1")
                for f in range(2):
                    c = "0" if (tb == 0 and f == 0) else None
                    A(f"v_mfma_f32_32x32x16_bf16 v[{D2}:{D2+15}], v[{TK+4*f}:{TK+4*f+3}], v[{TV+4*f}:{TV+4*f+3}], {c or f'v[{D2}:{D2+15}]'}")
                    A(f"v_mfma_f32_32x32x16_bf16 v[{DZ}:{DZ+15}], v[{TK+4*f}:{TK+4*f+3}], v[{ONES}:{ONES+3}], {c or f'v[{DZ}:{DZ+15}]'}")
                if tb == FLAG_TB:
                    A.stamp(3, "tr"); A.wait(lasth); A.stamp(4, "tr"); self.flag_store(4, FA, ONE)
                    if LATE_R == 1 and B_EARLY_D: bgD(36 - N_IN)
            if PHI_D: bgD(3)
            A(f"v_and_b32 v{tt}, 31, v{VLANE}"); A(f"v_cmp_gt_u32 vcc, 16, v{tt}")
            A(f"s_lshl_b32 s{S_T0}, s{S_WM}, 13"); A(f"s_lshl_b32 s{S_T1}, s{S_WN}, 12"); A(f"s_add_u32 s{S_T0}, s{S_T0}, s{S_T1}"); A(f"s_add_u32 s{S_T0}, s{S_T0}, {LDS_KV}")
            A(f"v_lshlrev_b32 v{tt}, 2, v{VLANE}"); A(f"v_add_u32 v{tt}, s{S_T0}, v{tt}")
            A("s_nop 7"); A("s_nop 3")
            for r_ in range(16):
                if r_ < 8: A(f"v_cndmask_b32 v{D2+r_}, v{DZ+r_}, v{D2+r_}, vcc")
                else: A(f"v_cndmask_b32 v{D2+r_}, v{D2+r_}, v{DZ+r_}, vcc")
            for r_ in range(16): A(f"ds_write_b32 v{tt}, v{D2+r_} offset:{r_*256}")
            A("s_waitcnt lgkmcnt(0)"); A("s_barrier")
            A(f"s_lshr_b32 s{S_T0}, s{S_WV}, 1"); A(f"s_lshl_b32 s{S_T0}, s{S_T0}, 12"); A(f"s_add_u32 s{S_T0}, s{S_T0}, {LDS_KV}")
            A(f"s_and_b32 s{S_T2}, s{S_WV}, 1")
            A(f"s_mul_i32 s{S_T3}, s{S_T2}, {8*256}"); A(f"s_add_u32 s{S_T0}, s{S_T0}, s{S_T3}")
            A(f"s_lshl_b32 s{S_T3}, s{S_T2}, 6")
            A(f"s_lshl_b32 s{S_T1}, s{S_IDX}, 2"); A(f"s_add_u32 s{S_T1}, s{S_T1}, s{S_WV}")
            A(f"s_mul_i32 s{S_T1}, s{S_T1}, {KV_HEAD}"); A(f"s_add_u32 s{S_T1}, s{S_T1}, {WS_KV}")
            A(f"v_and_b32 v{tt}, 7, v{VLANE}"); A(f"v_lshlrev_b32 v{tt}, 8, v{tt}"); A(f"v_add_u32 v{tt}, s{S_T0}, v{tt}")
            A(f"v_lshrrev_b32 v{tt+1}, 3, v{VLANE}"); A(f"v_lshlrev_b32 v{tt+1}, 2, v{tt+1}")
            A(f"v_add_u32 v{tt+2}, v{tt}, v{tt+1}"); A(f"v_add_u32 v{tt+2}, s{S_T3}, v{tt+2}")
            B0 = ACC
            for n in range(4):
                off = (32*(n>>1) + 8*(n&1))*4
                A(f"ds_read_b32 v{B0+2*n}, v{tt+2} offset:{off}"); A(f"ds_read_b32 v{B0+2*n+1}, v{tt+2} offset:{off+8192}")
            A(f"s_sub_u32 s{S_T3}, 64, s{S_T3}")
            A(f"v_lshlrev_b32 v{tt+3}, 5, v{tt+1}"); A(f"v_add_u32 v{tt+3}, v{tt+3}, v{tt}"); A(f"v_add_u32 v{tt+3}, s{S_T3}, v{tt+3}")
            A(f"v_cmp_gt_u32 vcc, 16, v{VLANE}"); A(f"s_and_saveexec_b64 s[{S_E0}:{S_E0+1}], vcc")
            A(f"ds_read_b32 v{B0+8}, v{tt+3}"); A(f"ds_read_b32 v{B0+9}, v{tt+3} offset:8192")
            A(f"s_mov_b64 exec, s[{S_E0}:{S_E0+1}]")
            A(f"v_lshlrev_b32 v{tt+2}, 2, v{VLANE}"); A(f"v_add_u32 v{tt+2}, s{S_T1}, v{tt+2}")
            A("s_waitcnt lgkmcnt(0)")
            if DEFER:
                for n in range(5): A(f"v_add_f32 v{128+n}, v{B0+2*n}, v{B0+2*n+1}")
                A(f"v_mov_b32 v133, v{tt+2}")
            else:
                for n in range(4):
                    A(f"v_add_f32 v{B0+2*n}, v{B0+2*n}, v{B0+2*n+1}")
                    A.vm(f"global_atomic_add_f32 v{tt+2}, v{B0+2*n}, s[{S_WSP}:{S_WSP+1}] offset:{n*256}")
                A(f"v_add_f32 v{B0+8}, v{B0+8}, v{B0+9}")
                A(f"s_and_saveexec_b64 s[{S_E0}:{S_E0+1}], vcc")
                A.vm(f"global_atomic_add_f32 v{tt+2}, v{B0+8}, s[{S_WSP}:{S_WSP+1}] offset:1024", id="kvat")
                A(f"s_mov_b64 exec, s[{S_E0}:{S_E0+1}]")
            bgD(11)
            state["vfree"] = True
            A.stamp(5, "tr")
        A.stamp(6); A.stamp(6, "tr")
        if not LATE_R:
            while state["R"] < 36:
                bgR(3); bgD_safe(3)
            A("s_waitcnt lgkmcnt(0)")

class G2:
    ACC2 = 0; HB = 64; NH = 32; W2V = 192
    def __init__(self, A): self.A = A; self.w2 = W2(A)
    def poll(self, label, vaddr, nl, expect=None, novm=False):
        A = self.A; T = VT
        A(f"s_mov_b32 s{S_T3}, 0")
        A(f"s_mov_b64 s[{S_E0}:{S_E0+1}], exec"); A(f"s_mov_b64 exec, {(1<<nl)-1}")
        A.label(label)
        if novm: A.l.append(f"  global_load_dword v{T+9}, v{vaddr}, s[{S_WSP}:{S_WSP+1}] sc1")
        else: A.vm(f"global_load_dword v{T+9}, v{vaddr}, s[{S_WSP}:{S_WSP+1}] sc1")
        A("s_waitcnt vmcnt(0)")
        if expect is None: A(f"v_cmp_ne_u32 vcc, 0, v{T+9}")
        else: A(f"v_cmp_le_u32 vcc, {expect}, v{T+9}")
        A(f"s_add_u32 s{S_T3}, s{S_T3}, 1")
        A(f"s_cmp_ge_u32 s{S_T3}, {POLL_MAX}"); A(f"s_cbranch_scc1 {label}_x")
        A(f"s_cmp_eq_u64 vcc, exec"); A(f"s_cbranch_scc1 {label}_x")
        A("s_sleep 1"); A(f"s_branch {label}")
        A.label(label + "_x")
        A(f"s_mov_b64 exec, s[{S_E0}:{S_E0+1}]")
    def check(self, label, vreg, nl, expect=None):
        pass
    def body(self):
        A = self.A; T = VT; VL = VLANE
        ACC2 = 0; HB = 64; NH = 16; KVR0 = 128
        A.reset_vm()
        VFL, VKV, VCN = T+10, T+11, T+12
        VF1, VF2 = T+8, T+9
        srd(A, S_O, P_O, P_O+1, 2048*1024)
        srd(A, S_XX, P_X, P_X+1, 2048*1024)
        A(f"s_lshl_b32 s{S_HO}, s{S_TAU}, 2"); A(f"s_add_u32 s{S_HO}, s{S_HO}, s{S_WV}")
        A(f"s_lshl_b32 s{S_T0}, s{S_HO}, 6"); A(f"s_add_u32 s{S_T0}, s{S_T0}, {WS_FLAG}")
        A(f"v_lshlrev_b32 v{VFL}, 2, v{VL}"); A(f"v_add_u32 v{VFL}, s{S_T0}, v{VFL}")
        A(f"s_mul_i32 s{S_HO}, s{S_HO}, {36*2048}")
        A(f"s_add_u32 s{S_T4}, s{S_HO}, {56*1024}")
        A(f"s_mov_b32 s{S_HBASE}, s{S_HO}"); A(f"s_lshl_b32 s{S_HR}, s{S_RHO}, 11")
        A(f"v_and_b32 v{T}, 31, v{VL}"); A(f"v_lshrrev_b32 v{T+1}, 5, v{VL}")
        A(f"v_lshlrev_b32 v{T+2}, 4, v{T+1}"); A(f"v_add_u32 v{T+2}, v{T+2}, v{T}"); A(f"v_subrev_u32 v{T+2}, 16, v{T+2}"); A(f"v_lshlrev_b32 v{T+2}, 5, v{T+2}")
        A(f"v_lshlrev_b32 v{T+3}, 5, v{T+1}"); A(f"v_add_u32 v{T+3}, 1024, v{T+3}")
        A(f"v_cmp_gt_u32 vcc, 16, v{T}"); A("s_nop 1"); A(f"v_cndmask_b32 v{T+2}, v{T+2}, v{T+3}, vcc")
        A(f"s_lshl_b32 s{S_T0}, s{S_WV}, 3"); A(f"s_mul_i32 s{S_T0}, s{S_T0}, {KV_HEAD}"); A(f"s_add_u32 s{S_T0}, s{S_T0}, {WS_KV}")
        A(f"v_add_u32 v{VKV}, s{S_T0}, v{T+2}")
        A(f"s_lshl_b32 s{S_T0}, s{S_WV}, 9"); A(f"s_add_u32 s{S_T0}, s{S_T0}, {WS_KVCNT}")
        A(f"v_lshlrev_b32 v{VCN}, 6, v{VL}"); A(f"v_add_u32 v{VCN}, s{S_T0}, v{VCN}")
        A("s_barrier")
        def signal_block():
            A(f"s_cmp_ge_u32 s{S_CP}, 2"); A("s_cbranch_scc1 K12_sigB")
            A(f"s_lshl_b32 s{S_T0}, s{S_T}, 1"); A(f"s_add_u32 s{S_T0}, s{S_T0}, s{S_WM}"); A(f"s_lshl_b32 s{S_T0}, s{S_T0}, 2")
            A(f"s_lshr_b32 s{S_T1}, s{S_IDX}, 1"); A(f"s_add_u32 s{S_T0}, s{S_T0}, s{S_T1}"); A(f"s_lshl_b32 s{S_T0}, s{S_T0}, 4")
            A(f"s_lshl_b32 s{S_T1}, s{S_I1}, 1"); A(f"s_add_u32 s{S_T0}, s{S_T0}, s{S_T1}"); A(f"s_add_u32 s{S_T0}, s{S_T0}, s{S_WN}")
            A(f"s_add_u32 s{S_T0}, s{S_T0}, 8"); A(f"s_lshl_b32 s{S_T0}, s{S_T0}, 2"); A(f"s_add_u32 s{S_T0}, s{S_T0}, {WS_FLAG}")
            A(f"v_mov_b32 v{T+4}, s{S_T0}"); A(f"v_mov_b32 v{T+5}, 1")
            A(f"s_mov_b64 s[{S_E0}:{S_E0+1}], exec"); A("s_mov_b64 exec, 1")
            A(f"!global_store_dword v{T+4}, v{T+5}, s[{S_WSP}:{S_WSP+1}] sc1")
            A(f"s_mov_b64 exec, s[{S_E0}:{S_E0+1}]"); A("s_branch K12_sigX")
            A("K12_sigB:")
            A(f"s_lshl_b32 s{S_T0}, s{S_IDX}, 2"); A(f"s_add_u32 s{S_T0}, s{S_T0}, s{S_WV}"); A(f"s_lshl_b32 s{S_T0}, s{S_T0}, 6"); A(f"s_add_u32 s{S_T0}, s{S_T0}, {WS_KVCNT}")
            A(f"v_mov_b32 v{T+4}, s{S_T0}"); A(f"v_mov_b32 v{T+5}, 1")
            A(f"s_mov_b64 s[{S_E0}:{S_E0+1}], exec"); A("s_mov_b64 exec, 1")
            A(f"!global_atomic_add v{T+4}, v{T+5}, s[{S_WSP}:{S_WSP+1}] sc1")
            A(f"s_mov_b64 exec, s[{S_E0}:{S_E0+1}]")
            A("K12_sigX:")
        if not DEFER:
            A("s_waitcnt vmcnt(0)")
            signal_block()
        A.stamp(7); A.stamp(7, "tr")
        self.poll("K12_pollH", VFL, 8)
        A.stamp(8, "tr")
        A.stamp(8); A.stamp(1, "g2")
        hstate = {"off": 0}
        def h_items(f):
            o = []
            hb = HB + 4*(f % NH)
            if f % 2 == 0: o.append(f"s_add_u32 s{S_HO}, s{S_HBASE}, s{S_HR}")
            o.append(("vm", f"h{f}", f"buffer_load_dwordx4 v[{hb}:{hb+3}], v{VL16}, s[{S_H}:{S_H+3}], s{S_HO} offen offset:{(f%2)*1024} sc1"))
            if f % 2 == 1 and f < 55:
                o += [f"s_add_u32 s{S_HR}, s{S_HR}, 2048", f"s_cmp_eq_u32 s{S_HR}, {28*2048}", f"s_cselect_b32 s{S_HR}, 0, s{S_HR}"]
            return o
        def pq_items(g):
            return [f"s_add_u32 s{S_HO}, s{S_T4}, {(g//4)*4096}",
                    ("vm", f"pq{g}", f"buffer_load_dwordx4 a[{4*g}:{4*g+3}], v{VL16}, s[{S_H}:{S_H+3}], s{S_HO} offen offset:{(g%4)*1024} sc1")]
        def kv_items(h):
            b = KVR0 + 8*h
            pre = [f"s_mov_b64 exec, s[{S_C6}:{S_C6+1}]"] if KVMASK else []
            post = ["s_mov_b64 exec, -1"] if KVMASK else []
            return pre + [("vm", None, f"global_load_dwordx4 v[{b}:{b+3}], v{VKV}, s[{S_WSP}:{S_WSP+1}] sc1"),
                    ("vm", f"kv{h}", f"global_load_dwordx4 v[{b+4}:{b+7}], v{VKV}, s[{S_WSP}:{S_WSP+1}] offset:16 sc1")] + post + [
                    f"v_add_u32 v{VKV}, {KV_HEAD}, v{VKV}"]
        if KVMASK:
            A(f"s_mov_b32 s{S_C6}, 0xffff0011"); A(f"s_mov_b32 s{S_C6+1}, 0xffff0011")
        AHEAD = G2_AHEAD
        KVB = [KVR0 + 8*h for h in range(8)]
        DO = [224 - 32, 224 - 16]
        DO = [T - 16 - 16 + 0, 0]
        DO = [208, 224]
        DO = [HB + 32, HB + 48]
        OF = [T, T+4]
        loads = [("h", f) for f in range(56)]
        if TBM:
            for h in range(8): loads += [("kv", h), ("pq", 2*h)]
            for h in range(8): loads += [("pq", 2*h+1)]
        else:
            for h in range(8): loads += [("kv", h), ("pq", 2*h), ("pq", 2*h+1)]
        CHK = G2_CHK
        li = {"n": 0}
        def issue(n):
            o = []
            for _ in range(n):
                if li["n"] >= len(loads): break
                k, x = loads[li["n"]]; li["n"] += 1
                o.append(h_items(x) if k == "h" else (kv_items(x) if k == "kv" else pq_items(x)))
            return o
        A(f"s_mul_i32 s{S_T0}, s{S_J}, {7*1024}"); A(f"s_add_u32 s{S_T0}, s{S_T0}, s{S_HO}")
        for x in issue(4):
            for y in x: A(y)
        if G2_PF:
            for k in range(7):
                if k == 4: A(f"s_add_u32 s{S_T0}, s{S_T0}, 4096")
                A.vm(f"buffer_load_dwordx4 v[{T}:{T+3}], v{VL16}, s[{S_H}:{S_H+3}], s{S_T0} offen offset:{(k%4)*1024} sc1")
        for x in issue(AHEAD - 4):
            for y in x: A(y)
        if DEFER:
            A(f"s_cmp_ge_u32 s{S_CP}, 2"); A("s_cbranch_scc1 K12_defB")
            for tb in range(2):
                for hs in range(2):
                    pk = 128 + 4*(2*tb + hs)
                    A(f"!buffer_store_dwordx4 v[{pk}:{pk+3}], v{VL16}, s[{S_H}:{S_H+3}], s{23 if hs else 22} offen offset:{tb*1024} sc1")
            A(f"v_mov_b32 v{T+6}, 24576"); A("s_mov_b64 exec, 1")
            A(f"!global_load_dword v{T+7}, v{T+6}, s[{S_WSP}:{S_WSP+1}]")
            A("s_mov_b64 exec, -1"); A("s_branch K12_defX")
            A("K12_defB:")
            for n in range(4): A(f"!global_atomic_add_f32 v133, v{128+n}, s[{S_WSP}:{S_WSP+1}] offset:{n*256}")
            A("s_mov_b64 exec, 0xffff")
            A(f"!global_atomic_add_f32 v133, v132, s[{S_WSP}:{S_WSP+1}] offset:1024")
            A("s_mov_b64 exec, -1")
            A("K12_defX:")
            A.nvm += 5; A.ids["defer"] = A.nvm
        A.stamp(2, "g2")
        for i in range(28):
            if LATE_R and i == N_IN: A("s_waitcnt lgkmcnt(0)")
            A.wait(f"h{2*i+1}")
            if DEFER and i == S_SIG:
                assert A.ids[f"h{2*i+1}"] > A.ids["defer"]
                signal_block()
            if i == 1: A.stamp(3, "g2")
            gaps = [[] for _ in range(4)]
            if i == CHK - 5:
                gaps[0] += [f"v_add_u32 v{VFL}, 32, v{VFL}", f"s_mov_b64 s[{S_E0}:{S_E0+1}], exec", "s_mov_b64 exec, 15",
                            ("vm", "fq", f"global_load_dword v{VF1}, v{VFL}, s[{S_WSP}:{S_WSP+1}] sc1"), "s_mov_b64 exec, 255",
                            ("vm", "fkv", f"global_load_dword v{VF2}, v{VCN}, s[{S_WSP}:{S_WSP+1}] sc1"), f"s_mov_b64 exec, s[{S_E0}:{S_E0+1}]"]
            if LATE_R and i >= 2 and N_IN + (i - 2) < 36:
                rr = self.w2.R(N_IN + (i - 2))[1:]
                gaps[0] += rr[0]; gaps[3] += rr[1]
            n = 2
            if li["n"] + n > 56 and i < CHK: n = max(0, 56 - li["n"])
            for k, x in enumerate(issue(n)): gaps[1+k] += x
            mf = []
            for tb in range(2):
                hb = HB + 4*((2*i+tb) % NH)
                for nb in range(2):
                    a = ACC2 + 16*(2*nb+tb)
                    c = "0" if i == 0 else f"v[{a}:{a+15}]"
                    mf.append(f"v_mfma_f32_32x32x16_bf16 v[{a}:{a+15}], {self.w2.frag(i,nb)}, v[{hb}:{hb+3}], {c}")
            for g in range(4):
                A(mf[g])
                for x in gaps[g]: A(x)
            if i == CHK - 1:
                A.stamp(4, "g2")
                A.wait("fkv")
                A(f"s_mov_b64 s[{S_E0}:{S_E0+1}], exec"); A("s_mov_b64 exec, 15")
                A(f"v_cmp_ne_u32 vcc, 0, v{VF1}"); A("s_nop 3"); A("s_cmp_eq_u64 vcc, exec"); A(f"s_mov_b64 exec, s[{S_E0}:{S_E0+1}]")
                A("s_cbranch_scc1 K12_qok")
                self.poll("K12_pollQ", VFL, 4, novm=True)
                A.label("K12_qok")
                A(f"s_mov_b64 s[{S_E0}:{S_E0+1}], exec"); A("s_mov_b64 exec, 255")
                A(f"v_cmp_le_u32 vcc, 16, v{VF2}"); A("s_nop 3"); A("s_cmp_eq_u64 vcc, exec"); A(f"s_mov_b64 exec, s[{S_E0}:{S_E0+1}]")
                A("s_cbranch_scc1 K12_kvok")
                self.poll("K12_pollKV", VCN, 8, expect=16, novm=True)
                A.label("K12_kvok")
                A.stamp(5, "g2")
        A.stamp(6, "g2"); A.stamp(1, "att")
        A(f"v_lshrrev_b32 v{T+8}, 3, v{VTID}"); A(f"v_and_b32 v{T+9}, 7, v{VTID}")
        A(f"s_lshl_b32 s{S_T0}, s{S_TAU}, 16"); A(f"s_lshl_b32 s{S_T2}, s{S_J}, 7"); A(f"s_add_u32 s{S_T0}, s{S_T0}, s{S_T2}")
        VG = VFL
        A(f"v_lshlrev_b32 v{VG}, 10, v{T+8}"); A(f"v_lshlrev_b32 v{VCN}, 4, v{T+9}"); A(f"v_add_u32 v{VG}, v{VG}, v{VCN}")
        A(f"s_add_u32 s{S_T2}, s{S_T0}, {32*1024}")
        XR = HB
        A(f"s_mov_b32 s{S_T1}, 0x358637bd")
        A("s_waitcnt lgkmcnt(0)")
        units = [(h, tb) for tb in range(2) for h in range(8)] if TBM else [(h, tb) for h in range(8) for tb in range(2)]
        RS = 272; WSZ = 64*RS; VW = VCN
        A(f"v_and_b32 v{VW}, 31, v{VL}"); A(f"v_mul_u32_u24 v{VW}, {RS}, v{VW}"); A(f"v_lshrrev_b32 v{T+9}, 5, v{VL}"); A(f"v_lshlrev_b32 v{T+9}, 4, v{T+9}"); A(f"v_add_u32 v{VW}, v{VW}, v{T+9}")
        A(f"s_mul_i32 s{S_T3}, s{S_WV}, {WSZ}"); A(f"v_add_u32 v{VW}, s{S_T3}, v{VW}")
        def wr(tb, k):
            nb, q = k // 4, k % 4; a = ACC2 + 16*(2*nb+tb)
            return f"ds_write_b128 v{VW}, v[{a+4*q}:{a+4*q+3}] offset:{tb*32*RS + nb*128 + q*32}"
        def stA(u):
            h, tb = units[u]; d = DO[u & 1]
            o = []
            if tb == 0:
                o.append(("wait", [f"kv{h}", f"pq{2*h}"]))
                o += [f"v_cvt_pk_bf16_f32 v{KVB[h]+e}, v{KVR0+8*h+2*e}, v{KVR0+8*h+2*e+1}" for e in range(4)]
                o.append("s_nop 1")
            else: o.append(("wait", [f"pq{2*h+1}"]))
            o.append(f"v_mfma_f32_32x32x16_bf16 v[{d}:{d+15}], v[{KVB[h]}:{KVB[h]+3}], {ar(4*(2*h+tb), 4)}, 0")
            return o
        def stB(u):
            d = DO[u & 1]; o = OF[u & 1]; rc = T + 8
            l = [f"v_add_f32 v{rc}, s{S_T1}, v{d}", f"v_rcp_f32 v{rc}, v{rc}", "s_nop 0"]
            l += [f"v_mul_f32 v{d+8+e}, v{rc}, v{d+8+e}" for e in range(8)]
            l += [f"v_cvt_pk_bf16_f32 v{o+e}, v{d+8+2*e}, v{d+8+2*e+1}" for e in range(4)]
            return l
        def stC(u):
            h, tb = units[u]; o = OF[u & 1]; i = 28 + h
            return [f"v_mfma_f32_32x32x16_bf16 v[{ACC2+16*(2*nb+tb)}:{ACC2+16*(2*nb+tb)+15}], {self.w2.frag(i,nb)}, v[{o}:{o+3}], v[{ACC2+16*(2*nb+tb)}:{ACC2+16*(2*nb+tb)+15}]" for nb in range(2)]
        for x in stA(0): A(x)
        A.stamp(2, "att")
        for x in issue(1):
            for y in x: A(y)
        for x in stA(1): A(x)
        for x in issue(2):
            for y in x: A(y)
        A("s_nop 7"); A("s_nop 3")
        for x in stB(0): A(x)
        xdone = False
        for u in range(16):
            c = stC(u)
            nb_ = stB(u+1) if u + 1 < 16 else []
            if u in (2, 6, 10, 13): A.stamp({2:3, 6:4, 10:5, 13:6}[u], "att")
            A("s_nop 1"); A(c[0])
            for x in nb_[:5]: A(x)
            if u + 2 < 16:
                for x in stA(u+2): A(x)
            iss = issue(2)
            for x in iss:
                for y in x: A(y)
            if not iss and not xdone:
                A.vm(f"buffer_load_dwordx4 v[{XR}:{XR+3}], v{VG}, s[{S_XX}:{S_XX+3}], s{S_T0} offen", id="x0")
                A.vm(f"buffer_load_dwordx4 v[{XR+4}:{XR+7}], v{VG}, s[{S_XX}:{S_XX+3}], s{S_T2} offen", id="x1")
                xdone = True
            for x in nb_[5:10]: A(x)
            A(c[1])
            for x in nb_[10:]: A(x)
            if TBM and 9 <= u <= 12:
                A(wr(0, 2*(u-9))); A(wr(0, 2*(u-9)+1))
        assert xdone and li["n"] == len(loads)
        A.stamp(7, "g2"); A.stamp(7, "att")
        A(f"v_lshrrev_b32 v{T+2}, 3, v{VTID}"); A(f"v_and_b32 v{T+3}, 7, v{VTID}")
        A(f"v_mul_u32_u24 v{T+6}, {RS}, v{T+2}"); A(f"v_lshlrev_b32 v{T+7}, 5, v{T+3}"); A(f"v_add_u32 v{T+6}, v{T+6}, v{T+7}")
        if not TBM:
            A("s_nop 7")
            for k in range(8): A(wr(0, k))
        A("s_nop 7"); A("s_nop 1")
        for k in range(8): A(wr(1, k))
        A("s_waitcnt lgkmcnt(0)"); A("s_barrier")
        A.stamp(8, "g2"); A.stamp(8, "att")
        for ps in range(2):
            b = 72 + 40*ps
            for w in range(4):
                A(f"ds_read_b128 v[{b+8*w}:{b+8*w+3}], v{T+6} offset:{w*WSZ + ps*32*RS}")
                A(f"ds_read_b128 v[{b+8*w+4}:{b+8*w+7}], v{T+6} offset:{w*WSZ + ps*32*RS + 16}")
        for ps in range(2):
            b = 72 + 40*ps
            A(f"s_waitcnt lgkmcnt({8 if ps == 0 else 0})")
            for e in range(0, 8, 2):
                A(f"v_pk_add_f32 v[{b+e}:{b+e+1}], v[{b+e}:{b+e+1}], v[{b+8+e}:{b+8+e+1}]")
                A(f"v_pk_add_f32 v[{b+16+e}:{b+16+e+1}], v[{b+16+e}:{b+16+e+1}], v[{b+24+e}:{b+24+e+1}]")
            for e in range(0, 8, 2):
                A(f"v_pk_add_f32 v[{b+e}:{b+e+1}], v[{b+e}:{b+e+1}], v[{b+16+e}:{b+16+e+1}]")
            A.wait(f"x{ps}")
            xb = XR + 4*ps
            for e in range(4):
                A(f"v_lshlrev_b32 v{T+8}, 16, v{xb+e}"); A(f"v_and_b32 v{T+9}, 0xffff0000, v{xb+e}")
                A(f"v_pk_add_f32 v[{b+2*e}:{b+2*e+1}], v[{b+2*e}:{b+2*e+1}], v[{T+8}:{T+9}]")
                A(f"v_cvt_pk_bf16_f32 v{b+32+e}, v{b+2*e}, v{b+2*e+1}")
            A.vm(f"buffer_store_dwordx4 v[{b+32}:{b+35}], v{VG}, s[{S_O}:{S_O+3}], s{S_T0 if ps == 0 else S_T2} offen")

def gen_k12():
    A = Prog()
    prologue_common(A)
    A(f"s_cmp_ge_u32 s{S_CP}, 2"); A("s_cbranch_scc1 K12_typeB")
    base_nvm = A.nvm; base_ids = dict(A.ids)
    for typ in ("A", "B"):
        if typ == "B":
            A.label("K12_typeB"); A.nvm = base_nvm; A.ids = dict(base_ids)
        g = G1(A, typ)
        g.prologue()
        if STAMP and SMODE == "wait":
            for c in (1,2,3,4,5,6,7): A(f"s_mov_b32 s{SB+2*c}, 0")
            A(f"s_memtime s[{SB+8}:{SB+9}]"); A("s_waitcnt lgkmcnt(0)")
        A.inloop = True
        g.loop()
        A.inloop = False
        if STAMP and SMODE == "wait":
            A(f"s_memtime s[{SB+10}:{SB+11}]"); A("s_waitcnt lgkmcnt(0)"); A(f"s_sub_u32 s{SB+8}, s{SB+10}, s{SB+8}")
        print(f"type {typ}: leftover W2 items after loop: {g.nleft}", file=sys.stderr)
        A.stamp(4); A.stamp(8, "loop"); A.stamp(8, "init"); A.stamp(5, "init")
        g.transition()
        if typ == "A": A("s_branch K12_g2")
    A.label("K12_g2")
    G2(A).body()
    if STAMP:
        A("s_waitcnt vmcnt(0) lgkmcnt(0)")
        A(f"{STAMP_INS} s[60:61]")
        A("s_waitcnt lgkmcnt(0)")
        A(f"s_lshl_b32 s{S_T0}, s2, 2"); A(f"s_add_u32 s{S_T0}, s{S_T0}, s{S_WV}"); A(f"s_lshl_b32 s{S_T0}, s{S_T0}, 6")
        A(f"s_add_u32 s{S_T0}, s{S_T0}, {WS_STAMP + 65536}")
        A(f"v_mov_b32 v{VT}, s{S_T0}")
        for i in range(9):
            A(f"v_mov_b32 v{VT+1}, s{SB+2*i}")
            A.vm(f"global_store_dword v{VT}, v{VT+1}, s[{S_WSP}:{S_WSP+1}] offset:{4*i}")
        A(f"v_mov_b32 v{VT+1}, s60")
        A.vm(f"global_store_dword v{VT}, v{VT+1}, s[{S_WSP}:{S_WSP+1}] offset:36")
    if STAMP and DBGSTAMP:
        A(f"s_cmp_eq_u32 s{S_WV}, 0"); A("s_cbranch_scc0 K12_end")
        A("s_mov_b64 exec, 1")
        for i in range(9):
            A(f"v_mov_b32 v{VT}, {4*(1+i)}"); A(f"v_mov_b32 v{VT+1}, s{SB+2*i}")
            A.vm(f"global_atomic_umax v{VT}, v{VT+1}, s[{S_DBG}:{S_DBG+1}]")
        A(f"v_mov_b32 v{VT}, 40"); A(f"v_mov_b32 v{VT+1}, s60"); A.vm(f"global_atomic_umax v{VT}, v{VT+1}, s[{S_DBG}:{S_DBG+1}]")
        A(f"s_not_b32 s{S_T0}, s{SB}"); A(f"v_mov_b32 v{VT}, 44"); A(f"v_mov_b32 v{VT+1}, s{S_T0}"); A.vm(f"global_atomic_umax v{VT}, v{VT+1}, s[{S_DBG}:{S_DBG+1}]")
    A.label("K12_end")
    return A.text()

def main(path):
    hdr = open("cdna_kernels/" + NAME + ".s.ref").read().split("; Override")[0]
    n = NAME + "_kernel"
    body = gen_k12()
    out = hdr + "; @launch grid=(256,1,1) block=(256,1,1) lds=163840\n"
    out += '.amdgcn_target "amdgcn-amd-amdhsa--gfx950"\n.text\n'
    out += f""".globl {n}
.p2align 8
.type {n},@function
{n}:
{body}
  s_endpgm
.section .rodata,"a"
.p2align 6
.amdhsa_kernel {n}
  .amdhsa_next_free_vgpr 512
  .amdhsa_next_free_sgpr 102
  .amdhsa_accum_offset 256
  .amdhsa_group_segment_fixed_size 0
  .amdhsa_kernarg_size 80
  .amdhsa_user_sgpr_count 2
  .amdhsa_user_sgpr_kernarg_segment_ptr 1
  .amdhsa_system_sgpr_workgroup_id_x 1
.end_amdhsa_kernel
"""
    open(path, "w").write(out)

if __name__ == "__main__":
    if "--stamp" in sys.argv:
        STAMP = True; sys.argv.remove("--stamp")
    for a in list(sys.argv):
        if a.startswith("--nin="): N_IN = int(a[6:]); sys.argv.remove(a)
        if a.startswith("--smode="): SMODE = a[8:]; sys.argv.remove(a)
        if a.startswith("--ahead="): G2_AHEAD = int(a[8:]); sys.argv.remove(a)
        if a.startswith("--chk="): G2_CHK = int(a[6:]); sys.argv.remove(a)
        if a.startswith("--pf="): G2_PF = int(a[5:]); sys.argv.remove(a)
        if a.startswith("--cpf2="): CODE_PF2 = int(a[7:]); sys.argv.remove(a)
        if a.startswith("--wsh="): WS_H = int(a[6:])*1048576; sys.argv.remove(a)
        if a == "--dbgstamp": DBGSTAMP = 1; sys.argv.remove(a)
        if a.startswith("--w2rot="): W2ROT = int(a[8:]); sys.argv.remove(a)
        if a.startswith("--w2start="): W2_START = int(a[10:]); sys.argv.remove(a)
        if a.startswith("--later="): LATE_R = int(a[8:]); sys.argv.remove(a)
        if a.startswith("--bed="): B_EARLY_D = int(a[6:]); sys.argv.remove(a)
        if a.startswith("--ftb="): FLAG_TB = int(a[6:]); sys.argv.remove(a)
        if a.startswith("--pt="): K_PT = int(a[5:]); sys.argv.remove(a)
        if a.startswith("--tt="): TLB_TOUCH = int(a[5:]); sys.argv.remove(a)
        if a.startswith("--hinit="):
            H_INIT = int(a[8:]); K_INITLD = 2*H_INIT - 4; K_CSAT = 2*H_INIT; H_CS = H_INIT + 3; sys.argv.remove(a)
        if a.startswith("--rot2="): ROT2 = int(a[7:]); sys.argv.remove(a)
        if a.startswith("--kvmask="): KVMASK = int(a[9:]); sys.argv.remove(a)
        if a.startswith("--wopf="): K_WOPF = int(a[7:]); sys.argv.remove(a)
        if a.startswith("--defer="): DEFER = int(a[8:]); sys.argv.remove(a)
        if a.startswith("--cpf1="): CODE_PF1 = int(a[7:]); sys.argv.remove(a)
        if a.startswith("--zlate="): ZLATE = int(a[8:]); sys.argv.remove(a)
        if a.startswith("--tbm="): TBM = int(a[6:]); sys.argv.remove(a)
        if a.startswith("--phid="): PHI_D = int(a[7:]); sys.argv.remove(a)
        if a.startswith("--x1e="): X1_EARLY = int(a[6:]); sys.argv.remove(a)
        if a.startswith("--rot="): ROT = int(a[6:]); sys.argv.remove(a)
        if a.startswith("--cap="): CAP = int(a[6:]); sys.argv.remove(a)
    if "--cyc" in sys.argv:
        STAMP = True; STAMP_INS = "s_memtime"; sys.argv.remove("--cyc")
    main(sys.argv[1] if len(sys.argv) > 1 else "cdna_kernels/" + NAME + ".s")
```

```python
import sys

NAME = "parallel_sum__linear_attn_block__glu_gated_bilinear__prompt"
WS_M, WS_R, WS_KV, KV_HEAD = 0, 8192, 32768, 1152
WS_FLAG = WS_KV + 36864
WS_KVCNT = WS_FLAG + 8192
WS_CS = WS_KVCNT + 2048
WS_STCNT = WS_CS + 20480
WS_CSCNT = WS_STCNT + 2048
NZERO = 18
assert WS_CSCNT + 2048 <= WS_KV + NZERO*4096 <= 131072
DBG_INIT = 0
CS_TMP = 140
A_ONES = 220
VC1, VC2, VC3 = 251, 252, 253
WS_H = 131072
H_BYTES = 32*4*36*2048
POLL_MAX = 200000
STAMP = False
STAMP_INS = 's_memrealtime'
WS_STAMP = 1 << 24
SB = 84
CORR_AT = 28
N_IN = 28
CAP = 5
SMODE = 'main'
ROT = 8
PHI_D = 0
TT3 = 0
GATE = 0
TBM = 0
CODE_PF1 = 1
ZLATE = 0
H_Z = 2
DEFER = 0
S_SIG = 6
K_WOPF = 0
ROT2 = 1
KVMASK = 0
TLB_TOUCH = 0
K_PT = 0
FLAG_TB = 1
B_EARLY_D = 1
LATE_R = 1
X1_EARLY = 1
W2ROT = 1
DBGSTAMP = 0
CODE_PF2 = 0
G2_AHEAD = 12; G2_CHK = 20; G2_PF = 0
K_INITLD = 6; H_INIT = 5; K_CSAT = 10; H_CS = 8; K_CNTLD = 18; H_CNT = 11; K_RANK = 25
CODE_KB = 48

class Prog:
    def __init__(self): self.l = []; self.nvm = 0; self.ids = {}; self.pos = {}; self.inloop = False
    def __call__(self, s):
        if s is None: return
        if isinstance(s, tuple):
            if s[0] == "vm":
                self.l.append("  " + s[2]); self.nvm += 1
                if s[1] is not None: self.ids[s[1]] = self.nvm; self.pos[s[1]] = len(self.l)
            elif s[0] == "stamp":
                self.stamp(s[1], s[2])
            elif s[0] == "vmu":
                self.l.append("  " + s[2]); self.ids[s[1]] = self.nvm
            elif s[0] == "wait":
                last = max(self.ids[i] for i in s[1])
                n = self.nvm - last
                assert n <= 63, (s, n)
                if STAMP and SMODE == "wait" and self.inloop:
                    cat = 2 if s[1][0].startswith("w2_") else (1 if s[1][0].startswith("W") else 3)
                    self.l.append(f"  s_memtime s[98:99]"); self.l.append("  s_waitcnt lgkmcnt(0)")
                    self.l.append(f"  s_waitcnt vmcnt({n})")
                    self.l.append(f"  s_memtime s[100:101]"); self.l.append("  s_waitcnt lgkmcnt(0)")
                    self.l.append(f"  s_sub_u32 s100, s100, s98"); self.l.append(f"  s_add_u32 s{SB+2*cat}, s{SB+2*cat}, s100")
                    return
                self.l.append(f"  s_waitcnt vmcnt({n})" + (" " + s[2] if len(s) > 2 and s[2] else ""))
            else: raise ValueError(s)
        elif s.endswith(":"): self.l.append(s)
        elif s.startswith("!"):
            self.l.append("  " + s[1:])
        else:
            assert not ("buffer_" in s or "global_" in s), s
            self.l.append("  " + s)
    def vm(self, text, id=None): self(("vm", id, text))
    def wait(self, *ids): self(("wait", list(ids)))
    def label(self, s): self.l.append(s + ":")
    def text(self): return "\n".join(self.l)
    def stamp(self, i, mode="main"):
        if STAMP and (mode == SMODE or i == 0): self.l.append(f"  {STAMP_INS} s[{SB+2*i}:{SB+2*i+1}]")
    def reset_vm(self):
        self.ids = {}

def vr(b, n=1): return f"v{b}" if n == 1 else f"v[{b}:{b+n-1}]"
def ar(b, n=1): return f"a{b}" if n == 1 else f"a[{b}:{b+n-1}]"
def srd(A, d, lo, hi, size):
    A(f"s_mov_b32 s{d}, s{lo}"); A(f"s_and_b32 s{d+1}, s{hi}, 0xffff"); A(f"s_mov_b32 s{d+2}, {size}"); A(f"s_mov_b32 s{d+3}, 0x20000")
def srd_off(A, d, lo, hi, off, size):
    A(f"s_add_u32 s{d}, s{lo}, {off}"); A(f"s_addc_u32 s{d+1}, s{hi}, 0"); A(f"s_and_b32 s{d+1}, s{d+1}, 0xffff")
    if isinstance(off, int): A(f"s_mov_b32 s{d+2}, {size - off}")
    else: A(f"s_sub_u32 s{d+2}, {size}, {off}")
    A(f"s_mov_b32 s{d+3}, 0x20000")

X_BASE = 0; X_SLOT = 16384
W_BASE = 49152; W_SLOT = 20480; W_NS = 3
W2IN = W_BASE + W_NS*W_SLOT
NSL = 6
LDS_R = W2IN + 4*NSL*2048
LDS_KV = 0
W2_START = 1
W2POST = 69632; NPOST = 11
DLAG = 5

ACC = 0; WF = 160; XF = 200; TRA = 216; XA = 221; VOW = 225; VOX = 230
VR = 234; VLANE = 236; VL16 = 237; VTID = 238; VDM = 239
VT = 240
VTR = 254; VTR1 = 255
AMF = 228; ACF = 236
def acc(blk, tb): return ACC + (blk*2+tb)*16

S_X = 4; S_W = 8; S_H = 28; S_WSP = 32
S_WV = 34; S_WM = 35; S_WN = 36; S_T = 37; S_IDX = 38
S_KW = 39; S_KH = 40; S_R30 = 41; S_R35 = 42; S_RH = 43; S_KX = 44; S_W1K = 45; S_W4K = 46; S_XB = 47
S_WD = 48; S_LB = 52; S_W2O = 53
S_W2B = 74; S_W2R = 75; S_W2T = 76; S_RHO = 77; S_HR = 75; S_HBASE = 74
S_T0 = 54; S_T1 = 55; S_T2 = 56; S_T3 = 57; S_T4 = 58; S_XO = 59
S_E0 = 60; S_E2 = 62
S_P = 64
P_X, P_WQ, P_WO, P_G, P_U, P_D, P_O = 64, 66, 68, 72, 74, 76, 78
S_DBG = 72; S_KSC = 66; S_CG = 67
S_HB = 80; S_I1 = 81; S_CP = 82; S_TAU = 83; S_J = 70; S_HO = 71
S_WO = 8; S_O = 12; S_XX = 16
S_C6 = 20

def w2row(i):
    if i < 16: return ("D", 256, 16*i)
    if i < 24: return ("D", 128, 1024 + 16*(i-16))
    if i < 28: return ("D", 64, 1536 + 16*(i-24))
    return ("O", 128, 16*(i-28))

class W2:
    def __init__(self, A, vdm2=None): self.A = A; self.vdm2 = vdm2
    def frag(self, ks, nb, W2V=192):
        f = ks*2 + nb
        return ar(4*f, 4) if f < 64 else vr(W2V + 4*(f-64), 4)
    def half(self, ks, nb, h, W2V=192):
        f = ks*2 + nb
        return ar(4*f + 2*h, 2) if f < 64 else vr(W2V + 4*(f-64) + 2*h, 2)
    def slot_off(self, i):
        return (i % NSL)*2048 if i < N_IN else ((i - N_IN) % NPOST)*2048
    def D(self, i):
        o = []
        if i < 28: s, so = S_WD, S_W2R
        else:
            s, so = S_WO, S_W2O
            o.append([f"s_mov_b32 s{S_W2O}, {16*(i-28)*1024}"])
        d0 = ("dma", f"s_add_u32 m0, s{S_LB}, {self.slot_off(i)}", ("vm", f"w2_{i}_0", f"buffer_load_dwordx4 v{VDM}, s[{s}:{s+3}], s{so} offen lds"))
        o.append(d0)
        o.append(("dma", f"s_add_u32 m0, s{S_LB}, {self.slot_off(i) + 1024}", ("vm", f"w2_{i}_1", f"buffer_load_dwordx4 v{self.vdm2}, s[{s}:{s+3}], s{so} offen lds")))
        if i < 27:
            o.append([f"s_add_u32 s{S_W2R}, s{S_W2R}, 16384", f"s_cmp_eq_u32 s{S_W2R}, {28*16384}", f"s_cselect_b32 s{S_W2R}, 0, s{S_W2R}"])
        return o
    def R(self, i):
        o = self.slot_off(i)
        r = [[("wait", [f"w2_{i}_1"])]]
        for nb in range(2):
            va = VTR if nb == 0 else VTR1
            r.append([f"ds_read_b64_tr_b16 {self.half(i, nb, 0)}, v{va} offset:{o}", f"ds_read_b64_tr_b16 {self.half(i, nb, 1)}, v{va} offset:{o+1024}"])
        return r

def emit_items(A, items):
    for it in items:
        if isinstance(it, tuple) and it[0] == "dma":
            A(it[1]); A("s_nop 0"); A(it[2])
        else:
            for s in it: A(s)

def prologue_common(A):
    A("s_cmp_ge_u32 s2, 256"); A("s_cbranch_scc1 K12_end")
    A.stamp(0)
    A(f"s_load_dwordx16 s[{S_P}:{S_P+15}], s[0:1], 0")
    A(f"s_load_dwordx2 s[{S_WSP}:{S_WSP+1}], s[0:1], 72")
    A(f"s_getpc_b64 s[{S_E2}:{S_E2+1}]")
    A("K12_pc:")
    A(f"v_and_b32 v{VLANE}, 63, v0")
    A(f"v_lshrrev_b32 v{VT}, 6, v0")
    A(f"v_mov_b32 v{VTID}, v0")
    A(f"v_lshlrev_b32 v{VL16}, 4, v{VLANE}")
    if TLB_TOUCH:
        A(f"v_lshlrev_b32 v{WF+28}, 3, v{VLANE}")
        A("s_mov_b64 exec, 0x1ff")
        A.vm(f"global_load_dwordx2 v[{WF+30}:{WF+31}], v{WF+28}, s[0:1]", id="kptr")
        A("s_mov_b64 exec, -1")
    A(f"v_readfirstlane_b32 s{S_WV}, v{VT}")
    A(f"s_and_b32 s{S_T0}, s2, 7"); A(f"s_lshr_b32 s{S_T1}, s2, 3")
    A(f"s_lshl_b32 s{S_T2}, s{S_T1}, 2"); A(f"s_add_u32 s{S_T2}, s{S_T2}, s{S_WV}"); A(f"s_min_u32 s{S_T2}, s{S_T2}, ((K12_end-K12_pc)>>10)-1"); A(f"s_lshl_b32 s{S_T2}, s{S_T2}, 10")
    A(f"v_add_u32 v{VT+4}, s{S_T2}, v{VL16}")
    if CODE_PF1: A.vm(f"global_load_dwordx4 v[{WF+36}:{WF+39}], v{VT+4}, s[{S_E2}:{S_E2+1}]")
    A(f"s_and_b32 s{S_T2}, s{S_T1}, 7"); A(f"s_lshr_b32 s{S_CP}, s{S_T1}, 3")
    A(f"s_lshr_b32 s{S_T}, s{S_T0}, 2"); A(f"s_lshl_b32 s{S_T}, s{S_T}, 3"); A(f"s_add_u32 s{S_T}, s{S_T}, s{S_T2}")
    A(f"s_and_b32 s{S_IDX}, s{S_T0}, 3"); A(f"s_lshl_b32 s{S_IDX}, s{S_IDX}, 1")
    A(f"s_and_b32 s{S_T3}, s{S_CP}, 1"); A(f"s_add_u32 s{S_IDX}, s{S_IDX}, s{S_T3}")
    A(f"s_and_b32 s{S_TAU}, s{S_T1}, 3"); A(f"s_lshl_b32 s{S_T3}, s{S_T0}, 2"); A(f"s_add_u32 s{S_TAU}, s{S_TAU}, s{S_T3}")
    A(f"s_lshr_b32 s{S_T4}, s{S_T1}, 2")
    A(f"s_add_u32 s{S_T0}, s{S_CP}, s{S_T2}"); A(f"s_and_b32 s{S_T0}, s{S_T0}, 3"); A(f"s_lshl_b32 s{S_T0}, s{S_T0}, 1")
    A(f"s_lshr_b32 s{S_T1}, s{S_T2}, 2"); A(f"s_add_u32 s{S_T0}, s{S_T0}, s{S_T1}")
    if ROT2: A(f"s_add_u32 s{S_T0}, s{S_CP}, s{S_T2}"); A(f"s_and_b32 s{S_T0}, s{S_T0}, 7")
    A(f"s_lshl_b32 s{S_KW}, s{S_T0}, 6")
    A(f"s_lshr_b32 s{S_WM}, s{S_WV}, 1"); A(f"s_and_b32 s{S_WN}, s{S_WV}, 1")
    t0, t1, t3, t4 = VT, VT+1, VT+3, VT+4
    A(f"v_lshrrev_b32 v{t0}, 3, v{VLANE}"); A(f"v_and_b32 v{t1}, 7, v{VLANE}")
    A(f"v_lshrrev_b32 v{t3}, 4, v{VLANE}"); A(f"v_xor_b32 v{t3}, v{t1}, v{t3}"); A(f"v_lshlrev_b32 v{t3}, 4, v{t3}")
    A(f"v_lshlrev_b32 v{t4}, 10, v{t0}"); A(f"v_add_u32 v{VOX}, v{t3}, v{t4}")
    A(f"v_xor_b32 v{VOX+1}, 64, v{VOX}"); A(f"v_add_u32 v{VOX+1}, {8*1024}, v{VOX+1}")
    A(f"v_add_u32 v{VOX+2}, {16*1024}, v{VOX}"); A(f"v_add_u32 v{VOX+3}, {16*1024}, v{VOX+1}")
    A(f"s_lshl_b32 s{S_XB}, s{S_T}, 7"); A(f"s_lshl_b32 s{S_T0}, s{S_WV}, 5"); A(f"s_add_u32 s{S_XB}, s{S_XB}, s{S_T0}"); A(f"s_lshl_b32 s{S_XB}, s{S_XB}, 10")
    A(f"s_lshl_b32 s{S_KX}, s{S_KW}, 1")
    A(f"s_and_b32 s{S_T0}, s{S_WV}, 1"); A(f"s_lshl_b32 s{S_T0}, s{S_T0}, 4"); A(f"s_add_u32 s{S_KH}, s{S_KW}, s{S_T0}")
    A(f"s_lshl_b32 s{S_T0}, s{S_WV}, 3"); A(f"s_add_u32 s{S_KW}, s{S_KW}, s{S_T0}")
    A(f"s_lshl_b32 s{S_W1K}, s{S_WV}, 10"); A(f"s_lshl_b32 s{S_W4K}, s{S_WV}, 12")
    A(f"s_lshr_b32 s{S_T0}, s{S_CP}, 1"); A(f"s_lshl_b32 s{S_T0}, s{S_T0}, 3"); A(f"s_add_u32 s{S_T3}, s{S_T0}, s{S_IDX}")
    A(f"s_lshl_b32 s{S_T0}, s{S_T}, 7"); A(f"s_lshl_b32 s{S_T1}, s{S_T3}, 3"); A(f"s_add_u32 s{S_T0}, s{S_T0}, s{S_T1}"); A(f"s_lshl_b32 s{S_T1}, s{S_WV}, 1"); A(f"s_add_u32 s{S_T2}, s{S_T0}, s{S_T1}")
    A(f"s_lshl_b32 s{S_T0}, s{S_T2}, 10"); A(f"v_add_u32 v{VT+5}, s{S_T0}, v{VL16}")
    if TLB_TOUCH:
        A.wait("kptr")
        A("s_mov_b64 exec, 0x1ff")
        A.vm(f"global_load_dword v{WF+29}, v[{WF+30}:{WF+31}], off offset:128")
        A("s_mov_b64 exec, -1")
    A.stamp(1, "pro")
    if GATE:
        A(f"s_load_dwordx2 s[{S_E0}:{S_E0+1}], s[0:1], 64")
    A("s_waitcnt lgkmcnt(0)")
    if GATE:
        A(f"s_cmp_eq_u32 s{S_WV}, 0"); A("s_cbranch_scc0 K12_gate_w")
        A(f"v_mov_b32 v{VT+8}, 192"); A(f"v_mov_b32 v{VT+9}, 1"); A("s_mov_b64 exec, 1")
        A(f"!global_atomic_add v{VT+8}, v{VT+9}, s[{S_E0}:{S_E0+1}] sc1")
        A(f"s_mov_b32 s{S_T1+0}, 0") if False else None
        A(f"s_mov_b32 s3, 0")
        A("K12_gate_l:")
        A(f"!global_load_dword v{VT+9}, v{VT+8}, s[{S_E0}:{S_E0+1}] sc1"); A("s_waitcnt vmcnt(0)")
        A(f"v_readfirstlane_b32 s{S_E2}, v{VT+9}"); A("s_add_u32 s3, s3, 1"); A(f"s_cmp_ge_u32 s3, {POLL_MAX}"); A("s_cbranch_scc1 K12_gate_x")
        A(f"s_cmp_ge_u32 s{S_E2}, 256"); A("s_cbranch_scc1 K12_gate_x"); A(f"s_sleep {GATE}"); A("s_branch K12_gate_l")
        A("K12_gate_x:"); A("s_mov_b64 exec, -1")
        A("K12_gate_w:"); A("s_barrier")
    if TLB_TOUCH:
        A(f"v_mov_b32 v{WF+28}, 24576"); A("s_mov_b64 exec, 1")
        A.vm(f"global_load_dword v{WF+32}, v{WF+28}, s[{S_WSP}:{S_WSP+1}]")
        A("s_mov_b64 exec, -1")
    A.stamp(2, "pro")
    if TT3:
        lo, hi = WF+30, WF+31
        A(f"v_mov_b32 v{lo}, s{P_WQ}"); A(f"v_mov_b32 v{hi}, s{P_WQ+1}")
        for ln, p in ((1, P_G), (2, P_U)):
            A(f"v_writelane_b32 v{lo}, s{p}, {ln}"); A(f"v_writelane_b32 v{hi}, s{p+1}, {ln}")
        A("s_mov_b64 exec, 7")
        A.vm(f"global_load_dword v{WF+29}, v[{lo}:{hi}], off")
        A("s_mov_b64 exec, -1")
    A(f"s_mov_b32 s{S_J}, s{S_T4}")
    if not ZLATE:
        A(f"s_cmp_ge_u32 s2, {NZERO}"); A("s_cbranch_scc1 K12_nozero")
        A(f"s_lshl_b32 s{S_T0}, s2, 12"); A(f"s_add_u32 s{S_T0}, s{S_T0}, {WS_KV}")
        A(f"v_lshlrev_b32 v{VT+6}, 4, v{VTID}"); A(f"v_add_u32 v{VT+6}, s{S_T0}, v{VT+6}")
        for i in range(4): A(f"v_mov_b32 v{VT+8+i}, 0")
        A(f"!global_store_dwordx4 v{VT+6}, v[{VT+8}:{VT+11}], s[{S_WSP}:{S_WSP+1}] sc1")
        A("K12_nozero:")
    SX = WF + 20
    A.vm(f"global_load_dwordx4 v[{SX}:{SX+3}], v{VT+5}, s[{P_X}:{P_X+1}]")
    A.vm(f"global_load_dwordx4 v[{SX+4}:{SX+7}], v{VT+5}, s[{P_X}:{P_X+1}] offset:1024", id="strow")
    A(f"s_lshl_b32 s{S_HB}, s{S_T2}, 2")
    A(f"s_mov_b32 s{S_I1}, s{S_T3}")
    srd(A, S_X, P_X, P_X+1, 2048*1024)

class G1:
    def __init__(self, A, typ):
        self.A = A; self.typ = typ; self.w2 = W2(A, 227 if typ == 'A' else 226)
        self.kinds = ["gu","gu","gu","gu","q"] if typ == "A" else ["k","v","gu","gu","guh"]
        if typ == "A": self.strides = [3584,3584,3584,3584,3072]; self.swz = ["g","u","g","u","q"]
        else: self.strides = [3072,3072,3584,3584,3584]; self.swz = ["q","q","g","u","h"]
    def vow(self, rho):
        key = (self.swz[rho], self.strides[rho])
        for r in range(rho + 1):
            if (self.swz[r], self.strides[r]) == key: return VOW + r
    def Wg(self, h):
        o = []
        if h > 0:
            o.append([f"s_add_u32 s{S_KW}, s{S_KW}, 32", f"s_and_b32 s{S_KW}, s{S_KW}, 511"])
            if self.typ == "B": o.append([f"s_add_u32 s{S_KH}, s{S_KH}, 32", f"s_and_b32 s{S_KH}, s{S_KH}, 511"])
        o.append([f"s_mul_i32 s{S_R30}, s{S_KW}, 3072", f"s_mul_i32 s{S_R35}, s{S_KW}, 3584"])
        if self.typ == "B": o.append([f"s_mul_i32 s{S_RH}, s{S_KH}, 3584"])
        for rho in range(5):
            so = S_RH if self.swz[rho] == "h" else (S_R30 if self.strides[rho] == 3072 else S_R35)
            o.append(("dma", f"s_add_u32 m0, s{S_W1K}, {W_BASE + (h % W_NS)*W_SLOT + rho*4096}",
                      ("vm", f"W{h}_{rho}", f"buffer_load_dwordx4 v{self.vow(rho)}, s[{S_W+4*rho}:{S_W+4*rho+3}], s{so} offen lds")))
        return o
    def Xg(self, sg):
        o = []
        if sg > 0: o.append([f"s_add_u32 s{S_KX}, s{S_KX}, 128", f"s_and_b32 s{S_KX}, s{S_KX}, 1023"])
        o.append([f"s_add_u32 s{S_XO}, s{S_XB}, s{S_KX}"])
        for j in range(4):
            o.append(("dma", f"s_add_u32 m0, s{S_W4K}, {X_BASE + (sg % 3)*X_SLOT + j*1024}",
                      ("vm", f"X{sg}_{j}", f"buffer_load_dwordx4 v{VOX+j}, s[{S_X}:{S_X+3}], s{S_XO} offen lds")))
        return o
    def reads(self, s):
        par = s & 1; kk = s & 3; sg = s >> 2; h = s >> 1; second = s & 1
        xo = (sg % 3)*X_SLOT
        o = [f"ds_read_b128 v[{XF+8*par}:{XF+8*par+3}], v{XA+kk} offset:{xo}", f"ds_read_b128 v[{XF+8*par+4}:{XF+8*par+7}], v{XA+kk} offset:{xo+4096}"]
        for blk, kd in enumerate(self.kinds):
            b = WF + 20*par + 4*blk
            if kd == "guh": o1, o2 = (1024 if second else 0), 256
            else: o1, o2 = (2048 if second else 0), 512
            o1 += (h % W_NS)*W_SLOT
            o.append(f"ds_read_b64_tr_b16 v[{b}:{b+1}], v{TRA+blk} offset:{o1}")
            o.append(f"ds_read_b64_tr_b16 v[{b+2}:{b+3}], v{TRA+blk} offset:{o1+o2}")
        return o
    def mfmas(self, s, order=None):
        par = s & 1; o = []
        for blk in (order or range(5)):
            kd = self.kinds[blk]
            wf = f"v[{WF+20*par+4*blk}:{WF+20*par+4*blk+3}]"
            for tb in range(2):
                xf = f"v[{XF+8*par+4*tb}:{XF+8*par+4*tb+3}]"; a = acc(blk, tb)
                c = "0" if s == 0 else f"v[{a}:{a+15}]"
                if kd in ("k", "v"): o.append(f"v_mfma_f32_32x32x16_bf16 v[{a}:{a+15}], {xf}, {wf}, {c}")
                else: o.append(f"v_mfma_f32_32x32x16_bf16 v[{a}:{a+15}], {wf}, {xf}, {c}")
        return o
    def corr(self):
        o = []
        for blk in range(5):
            for tb in range(2):
                a = acc(blk, tb); cf = ar(ACF+4*blk, 4); mf = ar(AMF+4*tb, 4)
                if self.kinds[blk] in ("k", "v"): o.append(f"v_mfma_f32_32x32x16_bf16 v[{a}:{a+15}], {mf}, {cf}, v[{a}:{a+15}]")
                else: o.append(f"v_mfma_f32_32x32x16_bf16 v[{a}:{a+15}], {cf}, {mf}, v[{a}:{a+15}]")
        return o

    def prologue(self):
        A, typ, kinds = self.A, self.typ, self.kinds
        SZQ, SZG = 512*3072, 512*3584
        A.stamp(3, "pro")
        emit_items(A, self.Xg(0))
        A.stamp(4, "pro")
        if typ == "A":
            A(f"s_lshr_b32 s{S_T0}, s{S_IDX}, 1"); A(f"s_mul_i32 s{S_T0}, s{S_T0}, 7"); A(f"s_and_b32 s{S_T1}, s{S_IDX}, 1"); A(f"s_lshl_b32 s{S_T1}, s{S_T1}, 1")
            A(f"s_add_u32 s{S_T0}, s{S_T0}, s{S_T1}"); A(f"s_lshl_b32 s{S_T0}, s{S_T0}, 7")
            srd_off(A, S_W+0, P_G, P_G+1, f"s{S_T0}", SZG); srd_off(A, S_W+4, P_U, P_U+1, f"s{S_T0}", SZG)
            A(f"s_add_u32 s{S_T0}, s{S_T0}, 128")
            srd_off(A, S_W+8, P_G, P_G+1, f"s{S_T0}", SZG); srd_off(A, S_W+12, P_U, P_U+1, f"s{S_T0}", SZG)
            A(f"s_lshl_b32 s{S_T0}, s{S_IDX}, 7")
            srd_off(A, S_W+16, P_WQ, P_WQ+1, f"s{S_T0}", SZQ)
        else:
            A(f"s_lshl_b32 s{S_T0}, s{S_IDX}, 7"); A(f"s_add_u32 s{S_T0}, s{S_T0}, 1024")
            srd_off(A, S_W+0, P_WQ, P_WQ+1, f"s{S_T0}", SZQ)
            A(f"s_add_u32 s{S_T0}, s{S_T0}, 1024")
            srd_off(A, S_W+4, P_WQ, P_WQ+1, f"s{S_T0}", SZQ)
            A(f"s_lshr_b32 s{S_T0}, s{S_IDX}, 1"); A(f"s_mul_i32 s{S_T0}, s{S_T0}, 7"); A(f"s_and_b32 s{S_T1}, s{S_IDX}, 1")
            A(f"s_add_u32 s{S_T0}, s{S_T0}, s{S_T1}"); A(f"s_add_u32 s{S_T0}, s{S_T0}, 4"); A(f"s_lshl_b32 s{S_T0}, s{S_T0}, 7")
            srd_off(A, S_W+8, P_G, P_G+1, f"s{S_T0}", SZG); srd_off(A, S_W+12, P_U, P_U+1, f"s{S_T0}", SZG)
            A(f"s_lshr_b32 s{S_T0}, s{S_IDX}, 1"); A(f"s_mul_i32 s{S_T0}, s{S_T0}, 7"); A(f"s_add_u32 s{S_T0}, s{S_T0}, 6"); A(f"s_lshl_b32 s{S_T0}, s{S_T0}, 7")
            A(f"s_and_b32 s{S_T1}, s{S_IDX}, 1"); A(f"s_lshl_b32 s{S_T1}, s{S_T1}, 6"); A(f"s_add_u32 s{S_T0}, s{S_T0}, s{S_T1}")
            A(f"s_cmp_ge_u32 s{S_WV}, 2")
            A(f"s_cselect_b32 s{S_T2}, s{P_U}, s{P_G}"); A(f"s_cselect_b32 s{S_T3}, s{P_U+1}, s{P_G+1}")
            srd_off(A, S_W+16, S_T2, S_T3, f"s{S_T0}", SZG)
        t0, t1, t2, t3, t4 = VT, VT+1, VT+2, VT+3, VT+4
        A(f"v_lshrrev_b32 v{t0}, 3, v{VLANE}"); A(f"v_and_b32 v{t1}, 7, v{VLANE}")
        A(f"v_lshrrev_b32 v{t2}, 4, v{VLANE}"); A(f"v_and_b32 v{t2}, 1, v{t2}")
        done = {}
        for rho in range(5):
            key = (self.swz[rho], self.strides[rho])
            if key in done: continue
            done[key] = rho
            if self.swz[rho] == "h":
                A(f"v_lshrrev_b32 v{t3}, 2, v{VLANE}"); A(f"v_and_b32 v{t4}, 3, v{VLANE}")
                A(f"s_lshr_b32 s{S_T0}, s{S_WV}, 1"); A(f"s_lshl_b32 s{S_T0}, s{S_T0}, 1")
                A(f"v_xor_b32 v{t4}, s{S_T0}, v{t4}")
                A(f"v_mul_u32_u24 v{t3}, 3584, v{t3}"); A(f"v_lshlrev_b32 v{t4}, 4, v{t4}"); A(f"v_add_u32 v{VOW+rho}, v{t3}, v{t4}")
            else:
                if self.swz[rho] == "q": A(f"v_lshlrev_b32 v{t3}, 2, v{t2}")
                else:
                    A(f"v_lshlrev_b32 v{t3}, 1, v{t2}")
                    if self.swz[rho] == "u": A(f"v_or_b32 v{t3}, 4, v{t3}")
                A(f"v_xor_b32 v{t3}, v{t1}, v{t3}"); A(f"v_lshlrev_b32 v{t3}, 4, v{t3}")
                A(f"v_mul_u32_u24 v{t4}, {self.strides[rho]}, v{t0}"); A(f"v_add_u32 v{VOW+rho}, v{t3}, v{t4}")
        A.stamp(5, "pro")
        emit_items(A, self.Wg(0)); A.stamp(6, "pro"); emit_items(A, self.Wg(1))
        A.stamp(1); A.stamp(7, "pro")
        A(f"v_lshlrev_b32 v{t3}, 2, v{t2}"); A(f"v_xor_b32 v{t3}, v{t1}, v{t3}"); A(f"v_lshlrev_b32 v{t3}, 4, v{t3}")
        A(f"v_lshlrev_b32 v{t4}, 10, v{t0}"); A(f"v_add_u32 v{VDM}, v{t3}, v{t4}")
        A(f"v_add_u32 v{self.w2.vdm2}, 8192, v{VDM}")
        A(f"s_lshl_b32 s{S_T0}, s{S_J}, 7"); A(f"s_mul_i32 s{S_T1}, s{S_WV}, {448*1024}"); A(f"s_add_u32 s{S_T0}, s{S_T0}, s{S_T1}")
        srd_off(A, S_WD, P_D, P_D+1, f"s{S_T0}", 1792*1024)
        A(f"s_mul_i32 s{S_LB}, s{S_WV}, {NSL*2048}"); A(f"s_add_u32 s{S_LB}, s{S_LB}, {W2IN}")
        A(f"s_lshr_b32 s{S_T0}, s2, 3"); A(f"s_and_b32 s{S_T1}, s{S_T0}, 3"); A(f"s_mul_i32 s{S_T1}, s{S_T1}, 7"); A(f"s_lshr_b32 s{S_T0}, s{S_T0}, 2"); A(f"s_mul_i32 s{S_T0}, s{S_T0}, 3")
        A(f"s_add_u32 s{S_RHO}, s{S_T0}, s{S_T1}"); A(f"s_cmp_ge_u32 s{S_RHO}, 28"); A(f"s_cselect_b32 s{S_T0}, 28, 0"); A(f"s_sub_u32 s{S_RHO}, s{S_RHO}, s{S_T0}")
        if not W2ROT: A(f"s_mov_b32 s{S_RHO}, 0")
        A(f"s_lshl_b32 s{S_W2R}, s{S_RHO}, 14")
        A(f"s_load_dwordx2 s[{S_DBG}:{S_DBG+1}], s[0:1], 64")
        A(f"s_mov_b32 s{S_CG}, s{S_I1}")
        A(f"s_lshr_b32 s{S_T0}, s{S_T}, 3"); A(f"s_lshl_b32 s{S_T0}, s{S_T0}, 1"); A(f"s_add_u32 s{S_KSC}, s{S_T0}, s{S_WM}")
        A(f"v_and_b32 v{t0}, 31, v{VLANE}")
        A(f"v_and_b32 v{t1}, 15, v{t0}"); A(f"v_lshrrev_b32 v{t2}, 4, v{t0}")
        def cs_addr(dst, soff_code, lane_kind):
            soff_code()
            if lane_kind == "gu":
                A(f"v_mul_u32_u24 v{t3}, 1792, v{t2}"); A(f"v_add_u32 v{t3}, v{t3}, v{t1}")
            elif lane_kind == "kv":
                A(f"v_lshlrev_b32 v{t3}, 9, v{t2}"); A(f"v_add_u32 v{t3}, v{t3}, v{t1}")
            else: A(f"v_mov_b32 v{t3}, v{t0}")
            A(f"v_add_u32 v{t3}, s{S_T0}, v{t3}"); A(f"v_lshlrev_b32 v{t3}, 2, v{t3}"); A(f"v_add_u32 v{dst}, {WS_CS}, v{t3}")
        if typ == "A":
            cs_addr(VC1, lambda: (A(f"s_lshr_b32 s{S_T0}, s{S_IDX}, 1"), A(f"s_mul_i32 s{S_T0}, s{S_T0}, 7"), A(f"s_and_b32 s{S_T1}, s{S_IDX}, 1"), A(f"s_lshl_b32 s{S_T1}, s{S_T1}, 1"), A(f"s_add_u32 s{S_T0}, s{S_T0}, s{S_T1}"),
                                  A(f"s_add_u32 s{S_T0}, s{S_T0}, s{S_WN}"), A(f"s_lshl_b32 s{S_T0}, s{S_T0}, 6"), A(f"s_add_u32 s{S_T0}, s{S_T0}, 1536")), "gu")
            cs_addr(VC2, lambda: (A(f"s_lshl_b32 s{S_T0}, s{S_IDX}, 6"), A(f"s_lshl_b32 s{S_T1}, s{S_WN}, 5"), A(f"s_add_u32 s{S_T0}, s{S_T0}, s{S_T1}")), "q")
            self.csa = [(VC1, 0), (VC1, 64), (VC1, 128), (VC1, 192), (VC2, 0)]
        else:
            cs_addr(VC2, lambda: (A(f"s_lshl_b32 s{S_T0}, s{S_IDX}, 6"), A(f"s_lshl_b32 s{S_T1}, s{S_WN}, 5"), A(f"s_add_u32 s{S_T0}, s{S_T0}, s{S_T1}"), A(f"s_add_u32 s{S_T0}, s{S_T0}, 512")), "q")
            cs_addr(VC1, lambda: (A(f"s_lshr_b32 s{S_T0}, s{S_IDX}, 1"), A(f"s_mul_i32 s{S_T0}, s{S_T0}, 7"), A(f"s_and_b32 s{S_T1}, s{S_IDX}, 1"), A(f"s_add_u32 s{S_T0}, s{S_T0}, s{S_T1}"), A(f"s_add_u32 s{S_T0}, s{S_T0}, 4"), A(f"s_lshl_b32 s{S_T0}, s{S_T0}, 6"), A(f"s_lshl_b32 s{S_T1}, s{S_WN}, 5"), A(f"s_add_u32 s{S_T0}, s{S_T0}, s{S_T1}"), A(f"s_add_u32 s{S_T0}, s{S_T0}, 1536")), "gu")
            cs_addr(VC3, lambda: (A(f"s_lshr_b32 s{S_T0}, s{S_IDX}, 1"), A(f"s_mul_i32 s{S_T0}, s{S_T0}, 7"), A(f"s_add_u32 s{S_T0}, s{S_T0}, 6"), A(f"s_lshl_b32 s{S_T0}, s{S_T0}, 6"),
                                  A(f"s_and_b32 s{S_T1}, s{S_IDX}, 1"), A(f"s_lshl_b32 s{S_T1}, s{S_T1}, 1"), A(f"s_add_u32 s{S_T1}, s{S_T1}, s{S_WN}"), A(f"s_lshl_b32 s{S_T1}, s{S_T1}, 4"),
                                  A(f"s_add_u32 s{S_T0}, s{S_T0}, s{S_T1}"), A(f"s_add_u32 s{S_T0}, s{S_T0}, 1536")), "gu")
            self.csa = [(VC2, 0), (VC2, 2048), (VC1, 0), (VC1, 64), (VC3, 0)]
        A(f"v_mov_b32 v{t3}, 0x3f803f80")
        for i in range(4): A(f"v_accvgpr_write_b32 a{A_ONES+i}, v{t3}")
        srd_off(A, S_H, S_WSP, S_WSP+1, WS_H, WS_H + H_BYTES)
        G, p, r, c = t0, t1, t2, t3
        A(f"v_lshrrev_b32 v{G}, 4, v{VLANE}"); A(f"v_and_b32 v{G}, 1, v{G}")
        A(f"v_lshrrev_b32 v{p}, 5, v{VLANE}")
        A(f"v_and_b32 v{r}, 15, v{VLANE}"); A(f"v_lshrrev_b32 v{r}, 2, v{r}")
        A(f"v_and_b32 v{c}, 3, v{VLANE}")
        k_, rb, u1, u2 = t4, t4+1, t4+2, t4+3
        A(f"v_lshlrev_b32 v{k_}, 3, v{p}"); A(f"v_add_u32 v{k_}, v{k_}, v{r}")
        A(f"v_lshrrev_b32 v{rb}, 1, v{r}"); A(f"v_and_b32 v{rb}, 1, v{rb}")
        for blk, kd in enumerate(kinds):
            d = TRA + blk
            if typ == "A" and kd == "gu" and blk > 0:
                A(f"v_xor_b32 v{d}, {blk*32}, v{TRA}"); continue
            if typ == "B" and blk == 1:
                A(f"v_add_u32 v{d}, 4096, v{d-1}"); continue
            if typ == "B" and blk == 3:
                A(f"v_xor_b32 v{d}, 32, v{d-1}"); continue
            if kd == "guh":
                A(f"v_lshrrev_b32 v{u1}, 1, v{c}"); A(f"s_lshl_b32 s{S_T0}, s{S_WN}, 1"); A(f"v_add_u32 v{u1}, s{S_T0}, v{u1}")
                A(f"v_lshlrev_b32 v{u2}, 1, v{G}"); A(f"v_xor_b32 v{u1}, v{u1}, v{u2}"); A(f"v_lshlrev_b32 v{u1}, 4, v{u1}")
                A(f"v_lshlrev_b32 v{u2}, 6, v{k_}"); A(f"v_add_u32 v{u1}, v{u1}, v{u2}")
                A(f"v_lshlrev_b32 v{u2}, 11, v{G}"); A(f"v_add_u32 v{u1}, v{u1}, v{u2}")
                A(f"v_add_u32 v{u1}, {W_BASE + 4*4096}, v{u1}")
            else:
                if kd in ("q", "k"):
                    A(f"s_lshl_b32 s{S_T0}, s{S_WN}, 1"); A(f"v_add_u32 v{u1}, s{S_T0}, v{G}")
                elif typ == "A": A(f"v_mov_b32 v{u1}, 0")
                else:
                    A(f"s_lshl_b32 s{S_T0}, s{S_WN}, 1"); A(f"v_mov_b32 v{u1}, s{S_T0}")
                A(f"v_lshlrev_b32 v{u1}, 1, v{u1}"); A(f"v_lshrrev_b32 v{u2}, 1, v{c}"); A(f"v_add_u32 v{u1}, v{u1}, v{u2}")
                if kd in ("q", "k"): A(f"v_lshlrev_b32 v{u2}, 2, v{rb}")
                else:
                    A(f"v_lshlrev_b32 v{u2}, 1, v{rb}"); A(f"v_lshlrev_b32 v{d}, 2, v{G}"); A(f"v_or_b32 v{u2}, v{u2}, v{d}")
                A(f"v_xor_b32 v{u1}, v{u1}, v{u2}"); A(f"v_lshlrev_b32 v{u1}, 4, v{u1}")
                A(f"v_lshlrev_b32 v{u2}, 7, v{k_}"); A(f"v_add_u32 v{u1}, v{u1}, v{u2}")
                if kd == "q": A(f"v_add_u32 v{u1}, {W_BASE + 4*4096}, v{u1}")
                elif kd == "k": A(f"v_add_u32 v{u1}, {W_BASE}, v{u1}")
                else:
                    if typ == "A":
                        A(f"s_lshl_b32 s{S_T0}, s{S_WN}, 13"); A(f"s_add_u32 s{S_T0}, s{S_T0}, {W_BASE}")
                    else: A(f"s_mov_b32 s{S_T0}, {W_BASE + 2*4096}")
                    A(f"v_lshlrev_b32 v{u2}, 12, v{G}"); A(f"v_add_u32 v{u1}, v{u1}, v{u2}"); A(f"v_add_u32 v{u1}, s{S_T0}, v{u1}")
            A(f"v_and_b32 v{u2}, 1, v{c}"); A(f"v_lshlrev_b32 v{u2}, 3, v{u2}"); A(f"v_add_u32 v{d}, v{u1}, v{u2}")
        A(f"v_lshlrev_b32 v{u1}, 2, v{p}"); A(f"v_add_u32 v{u1}, v{u1}, v{r}"); A(f"v_lshlrev_b32 v{u1}, 7, v{u1}")
        A(f"v_lshlrev_b32 v{u2}, 1, v{G}"); A(f"v_lshrrev_b32 v{VTR}, 1, v{c}"); A(f"v_add_u32 v{u2}, v{u2}, v{VTR}")
        A(f"v_lshlrev_b32 v{VTR}, 2, v{rb}"); A(f"v_xor_b32 v{u2}, v{u2}, v{VTR}"); A(f"v_lshlrev_b32 v{u2}, 4, v{u2}"); A(f"v_add_u32 v{u1}, v{u1}, v{u2}")
        A(f"v_and_b32 v{u2}, 1, v{c}"); A(f"v_lshlrev_b32 v{u2}, 3, v{u2}"); A(f"v_add_u32 v{u1}, v{u1}, v{u2}")
        A(f"v_add_u32 v{VTR}, s{S_LB}, v{u1}"); A(f"v_xor_b32 v{VTR1}, 64, v{VTR}")
        A(f"v_and_b32 v{u1}, 31, v{VLANE}"); A(f"s_lshl_b32 s{S_T0}, s{S_WM}, 6"); A(f"v_add_u32 v{u1}, s{S_T0}, v{u1}")
        A(f"v_lshrrev_b32 v{u2}, 1, v{u1}"); A(f"v_and_b32 v{u2}, 7, v{u2}"); A(f"v_xor_b32 v{u2}, v{u2}, v{p}"); A(f"v_lshlrev_b32 v{u2}, 4, v{u2}")
        A(f"v_lshlrev_b32 v{u1}, 7, v{u1}"); A(f"v_add_u32 v{u1}, v{u1}, v{u2}")
        for kk in range(4): A(f"v_xor_b32 v{XA+kk}, {kk*32}, v{u1}")
        if X1_EARLY: emit_items(A, self.Xg(1))
        SX = WF + 20
        A.wait("strow")
        P0, P1, Q0, Q1, U = VT, VT+2, VT+4, VT+6, VT+8
        for tok, (P, Q) in enumerate(((P0, Q0), (P1, Q1))):
            for i in range(4):
                src = SX + 4*tok + i
                A(f"v_lshlrev_b32 v{U}, 16, v{src}"); A(f"v_and_b32 v{U+1}, 0xffff0000, v{src}")
                if i == 0:
                    A(f"v_pk_mul_f32 v[{Q}:{Q+1}], v[{U}:{U+1}], v[{U}:{U+1}]"); A(f"v_mov_b32 v{P}, v{U}"); A(f"v_mov_b32 v{P+1}, v{U+1}")
                else:
                    A(f"v_pk_add_f32 v[{P}:{P+1}], v[{P}:{P+1}], v[{U}:{U+1}]"); A(f"v_pk_fma_f32 v[{Q}:{Q+1}], v[{U}:{U+1}], v[{U}:{U+1}], v[{Q}:{Q+1}]")
        for r_ in (P0, P1, Q0, Q1): A(f"v_add_f32 v{r_}, v{r_}, v{r_+1}")
        for dpp in ("row_shr:1 row_mask:0xf bank_mask:0xf", "row_shr:2 row_mask:0xf bank_mask:0xf", "row_shr:4 row_mask:0xf bank_mask:0xf", "row_shr:8 row_mask:0xf bank_mask:0xf",
                    "row_bcast:15 row_mask:0xa bank_mask:0xf", "row_bcast:31 row_mask:0xc bank_mask:0xf"):
            for r_ in (P0, P1, Q0, Q1): A(f"v_add_f32_dpp v{r_}, v{r_}, v{r_} {dpp}")
        A(f"v_mul_f32 v{P0}, 0x3b000000, v{P0}"); A(f"v_mul_f32 v{P0+1}, 0x3b000000, v{P1}")
        A(f"v_mul_f32 v{Q0}, 0x3b000000, v{Q0}"); A(f"v_mul_f32 v{Q0+1}, 0x3b000000, v{Q1}")
        for j in range(2):
            A(f"v_fma_f32 v{Q0+j}, -v{P0+j}, v{P0+j}, v{Q0+j}"); A(f"v_max_f32 v{Q0+j}, 0, v{Q0+j}"); A(f"v_add_f32 v{Q0+j}, 0x3727c5ac, v{Q0+j}"); A(f"v_rsq_f32 v{Q0+j}, v{Q0+j}")
        A(f"v_mov_b32 v{U}, s{S_HB}"); A(f"v_add_u32 v{U+1}, {WS_R}, v{U}")
        A(f"s_mov_b64 s[{S_E0}:{S_E0+1}], exec"); A("s_mov_b32 exec_lo, 0"); A("s_mov_b32 exec_hi, 0x80000000")
        A.vm(f"global_store_dwordx2 v{U}, v[{P0}:{P0+1}], s[{S_WSP}:{S_WSP+1}] sc1")
        A.vm(f"global_store_dwordx2 v{U+1}, v[{Q0}:{Q0+1}], s[{S_WSP}:{S_WSP+1}] sc1", id="stst")
        A(f"s_mov_b64 exec, s[{S_E0}:{S_E0+1}]")
        A.stamp(2)
        A("s_waitcnt lgkmcnt(0)")
        A.wait("X0_3", "W0_4")
        A("s_barrier")
        A.stamp(3); A.stamp(8, "pro")
        for s in self.reads(0): A(s)
        A.stamp(1, "init")
        if ZLATE:
            L = f"K12{typ}_nozero"
            A(f"s_cmp_ge_u32 s2, {NZERO}"); A(f"s_cbranch_scc1 {L}")
            A(f"s_lshl_b32 s{S_T0}, s2, 12"); A(f"s_add_u32 s{S_T0}, s{S_T0}, {WS_KV}")
            A(f"v_lshlrev_b32 v{VT+6}, 4, v{VTID}"); A(f"v_add_u32 v{VT+6}, s{S_T0}, v{VT+6}")
            for i in range(4): A(f"v_mov_b32 v{VT+0+i}, 0")
            A(("vmu", "zst", f"global_store_dwordx4 v{VT+6}, v[{VT+0}:{VT+3}], s[{S_WSP}:{S_WSP+1}] sc1"))
            A(f"{L}:")
        else:
            for x in self.sig(f"s_cmp_lt_u32 s2, {NZERO}", S_DBG, DBG_INIT, None, "init"): A(x)
        A.stamp(2, "init")

    def sig(self, cond, base, off_imm, off_sgpr, tag):
        L = f"K12{self.typ}_sig_{tag}"
        o = []
        if cond: o += [cond, f"s_cbranch_scc0 {L}"]
        o += [f"s_cmp_eq_u32 s{S_WV}, 0", f"s_cbranch_scc0 {L}"]
        if off_sgpr is None: o += [f"v_mov_b32 v{VT+9}, {off_imm}"]
        else: o += [f"s_lshl_b32 s{S_T4}, s{off_sgpr}, 7", f"s_add_u32 s{S_T4}, s{S_T4}, {off_imm}", f"v_mov_b32 v{VT+9}, s{S_T4}"]
        o += [f"v_mov_b32 v{VT+8}, 1", f"s_mov_b64 s[{S_E0}:{S_E0+1}], exec", "s_mov_b64 exec, 1",
              f"!global_atomic_add v{VT+9}, v{VT+8}, s[{base}:{base+1}] sc1", f"s_mov_b64 exec, s[{S_E0}:{S_E0+1}]", f"{L}:"]
        return o

    def spin(self, tag, base, vaddr, expect):
        L = f"K12{self.typ}_spin_{tag}"
        return [f"s_mov_b32 s{S_T3}, 0", f"{L}:", f"!global_load_dword v{VT+10}, v{vaddr}, s[{base}:{base+1}] sc1", "s_waitcnt vmcnt(0)",
                f"v_readfirstlane_b32 s{S_T4}, v{VT+10}", f"s_add_u32 s{S_T3}, s{S_T3}, 1", f"s_cmp_ge_u32 s{S_T3}, {POLL_MAX}", f"s_cbranch_scc1 {L}_x",
                f"s_cmp_ge_u32 s{S_T4}, {expect}", f"s_cbranch_scc1 {L}_x", "s_sleep 2", f"s_branch {L}", f"{L}_x:"]

    def w0(self, tag, code):
        L = f"K12{self.typ}_w0_{tag}"
        return [f"s_cmp_eq_u32 s{S_WV}, 0", f"s_cbranch_scc0 {L}"] + code + [f"{L}:"]

    def pre_barrier(self, h):
        typ = self.typ; T = VT
        if h == H_INIT:
            return [("stamp", 3, "init")] + self.w0("initchk", [("wait", ["initld"]), f"v_readfirstlane_b32 s{S_T4}, v{T+10}", "s_nop 0", f"s_cmp_ge_u32 s{S_T4}, {NZERO}", f"s_cbranch_scc1 K12{typ}_initok",
                                       f"v_mov_b32 v{T+9}, {DBG_INIT}"] + self.spin("init", S_DBG, T+9, NZERO) + [f"K12{typ}_initok:"]) + [("stamp", 4, "init")]
        if h == H_CNT:
            return [("stamp", 6, "init")] + self.w0("cntchk", [("wait", ["cntld"]), f"v_readfirstlane_b32 s{S_T4}, v{T+5}", "s_nop 0", f"s_cmp_ge_u32 s{S_T4}, 16", f"s_cbranch_scc1 K12{typ}_stok"]
                           + self.spin("st", S_WSP, T+7, 16) + [f"K12{typ}_stok:",
                           f"v_readfirstlane_b32 s{S_T4}, v{T+6}", "s_nop 0", f"s_cmp_ge_u32 s{S_T4}, 16", f"s_cbranch_scc1 K12{typ}_csok"]
                           + self.spin("cs", S_WSP, T+8, 16) + [f"K12{typ}_csok:"]) + [("stamp", 7, "init")]
        return []

    def oneshot_items(self, add, at):
        typ = self.typ; wsp = f"s[{S_WSP}:{S_WSP+1}]"; dbg = f"s[{S_DBG}:{S_DBG+1}]"
        T = VT
        for s in range(4):
            par = s & 1
            it = [f"s_cmp_eq_u32 s{S_KSC}, {s}", f"s_cbranch_scc0 K12{typ}_nocs{s}"]
            for blk in range(5):
                b = WF + 20*par + 4*blk
                it.append(f"v_mfma_f32_32x32x16_bf16 a[{CS_TMP+16*blk}:{CS_TMP+16*blk+15}], a[{A_ONES}:{A_ONES+3}], v[{b}:{b+3}], 0")
            it.append(f"K12{typ}_nocs{s}:")
            self.fixed.setdefault(s, []).append(it)
        self.fixed.setdefault(K_INITLD, []).append(self.w0("initld", [f"v_mov_b32 v{T+9}, {DBG_INIT}", f"s_mov_b64 s[{S_E0}:{S_E0+1}], exec", "s_mov_b64 exec, 1",
                                      ("vmu", "initld", f"global_load_dword v{T+10}, v{T+9}, {dbg} sc1"), f"s_mov_b64 exec, s[{S_E0}:{S_E0+1}]"]))
        it = [[f"v_accvgpr_read_b32 v{T+blk}, a{CS_TMP+16*blk}"] for blk in range(5)]
        at_ = [f"s_mov_b64 s[{S_E0}:{S_E0+1}], exec", "s_mov_b32 exec_hi, 0"]
        for blk in range(5):
            va, off = self.csa[blk]
            at_.append(("vm", f"csat{blk}", f"global_atomic_add_f32 v{va}, v{T+blk}, {wsp} offset:{off}"))
        at_.append(f"s_mov_b64 exec, s[{S_E0}:{S_E0+1}]")
        add(at(K_CSAT), it + [at_])
        self.fixed.setdefault(K_CNTLD, []).append(self.w0("cntld", [f"s_lshl_b32 s{S_T4}, s{S_T}, 7", f"s_add_u32 s{S_T4}, s{S_T4}, {WS_STCNT}", f"v_mov_b32 v{T+7}, s{S_T4}",
                          f"s_lshl_b32 s{S_T4}, s{S_CG}, 7", f"s_add_u32 s{S_T4}, s{S_T4}, {WS_CSCNT}", f"v_mov_b32 v{T+8}, s{S_T4}",
                          f"s_mov_b64 s[{S_E0}:{S_E0+1}], exec", "s_mov_b64 exec, 1",
                          f"!global_load_dword v{T+5}, v{T+7}, {wsp} sc1", ("vmu", "cntld", f"global_load_dword v{T+6}, v{T+8}, {wsp} sc1"),
                          f"s_mov_b64 exec, s[{S_E0}:{S_E0+1}]"]))
        VM = T; VCS = T + 2; VRB = T + 7
        lds = [[f"v_and_b32 v{T+8}, 31, v{VLANE}", f"s_lshl_b32 s{S_T4}, s{S_T}, 7", f"s_lshl_b32 s{S_T3}, s{S_WM}, 6", f"s_add_u32 s{S_T4}, s{S_T4}, s{S_T3}"],
               [f"v_add_u32 v{T+8}, s{S_T4}, v{T+8}", f"v_lshlrev_b32 v{T+8}, 2, v{T+8}", f"v_add_u32 v{T+9}, {WS_R}, v{T+8}"],
               [("vm", None, f"global_load_dword v{VM}, v{T+8}, {wsp} sc1")], [("vm", None, f"global_load_dword v{VM+1}, v{T+8}, {wsp} offset:128 sc1")],
               [("vm", None, f"global_load_dword v{VR}, v{T+9}, {wsp} sc1")], [("vm", None, f"global_load_dword v{VR+1}, v{T+9}, {wsp} offset:128 sc1")]]
        for blk in range(5):
            va, off = self.csa[blk]
            lds.append([("vm", "csld" if blk == 4 and typ == "A" else None, f"global_load_dword v{VCS+blk}, v{va}, {wsp} offset:{off} sc1")])
        if typ == "B":
            lds.append([f"s_lshl_b32 s{S_T4}, s{S_T}, 7", f"v_add_u32 v{T+8}, s{S_T4}, v{VTID}", f"v_lshlrev_b32 v{T+8}, 2, v{T+8}", f"v_add_u32 v{T+8}, {WS_R}, v{T+8}"])
            lds.append([("vm", "csld", f"global_load_dword v{VRB}, v{T+8}, {wsp} sc1")])
        add(at(2*H_CNT-1, 1), lds)
        if K_PT:
            add(at(K_PT), [[f"s_lshl_b32 s{S_T4}, s{S_TAU}, 16", f"s_lshl_b32 s{S_T3}, s{S_J}, 7", f"s_add_u32 s{S_T4}, s{S_T4}, s{S_T3}", f"v_mov_b32 v{T+9}, s{S_T4}"],
                           [f"s_mov_b64 s[{S_E0}:{S_E0+1}], exec", "s_mov_b64 exec, 1", ("vm", None, f"global_load_dword a224, v{T+9}, s[{P_O}:{P_O+1}]"), f"s_mov_b64 exec, s[{S_E0}:{S_E0+1}]"],
                           [f"v_mov_b32 v{T+9}, 0"],
                           [f"s_mov_b64 s[{S_E0}:{S_E0+1}], exec", "s_mov_b64 exec, 1", ("vm", None, f"global_load_dword a227, v{T+9}, s[{P_WO}:{P_WO+1}]"), f"s_mov_b64 exec, s[{S_E0}:{S_E0+1}]"]])
        if K_WOPF:
            it = [[f"s_lshl_b32 s{S_T4}, s{S_WV}, 17", f"s_and_b32 s{S_T3}, s{S_TAU}, 3", f"s_lshl_b32 s{S_T3}, s{S_T3}, 15", f"s_add_u32 s{S_T4}, s{S_T4}, s{S_T3}"],
                  [f"s_lshl_b32 s{S_T3}, s{S_J}, 7", f"s_add_u32 s{S_T4}, s{S_T4}, s{S_T3}", f"v_add_u32 v{T+9}, s{S_T4}, v{VDM}"]]
            for k in range(4):
                it.append([("vm", None, f"global_load_dwordx4 a[224:227], v{T+9}, s[{P_WO}:{P_WO+1}]")] + ([f"v_add_u32 v{T+9}, 8192, v{T+9}"] if k < 3 else []))
            add(at(K_WOPF), it)
        if CODE_PF2:
            add(at(CODE_PF2), [[f"s_getpc_b64 s[{S_E2}:{S_E2+1}]", f"K12{typ}_pc2:", f"s_lshr_b32 s{S_T4}, s2, 3", f"s_lshl_b32 s{S_T4}, s{S_T4}, 2", f"s_add_u32 s{S_T4}, s{S_T4}, s{S_WV}"],
                               [f"s_min_u32 s{S_T4}, s{S_T4}, ((K12_end-K12{typ}_pc2)>>10)-1", f"s_lshl_b32 s{S_T4}, s{S_T4}, 10", f"v_add_u32 v{T+9}, s{S_T4}, v{VL16}"],
                               [("vm", None, f"global_load_dwordx4 a[224:227], v{T+9}, s[{S_E2}:{S_E2+1}]")]])
        tt = T + 8; b = T + 10
        items = [[("wait", ["csld"])], [f"v_cmp_gt_u32 vcc, 32, v{VLANE}", "s_nop 1"]]
        for tb in range(2):
            items += [[f"v_cndmask_b32 v{tt}, 0, v{VM+tb}, vcc"], [f"v_cvt_pk_bf16_f32 v{b}, v{tt}, v{tt}"],
                      [f"v_and_b32 v{tt+1}, 0xffff0000, v{b}"], [f"v_sub_f32 v{tt+1}, v{tt}, v{tt+1}"],
                      [f"v_cvt_pk_bf16_f32 v{b+1}, v{tt+1}, 0"],
                      [f"v_accvgpr_write_b32 a{AMF+4*tb}, v{b}"], [f"v_accvgpr_write_b32 a{AMF+4*tb+1}, v{b+1}"],
                      [f"v_accvgpr_write_b32 a{AMF+4*tb+2}, 0"], [f"v_accvgpr_write_b32 a{AMF+4*tb+3}, 0"]]
        for blk in range(5):
            items += [[f"v_cndmask_b32 v{tt}, 0, v{VCS+blk}, vcc"], [f"v_sub_f32 v{tt}, 0, v{tt}"],
                      [f"v_cvt_pk_bf16_f32 v{b+1}, v{tt}, 0"], [f"v_lshlrev_b32 v{tt+1}, 16, v{b+1}"], [f"v_sub_f32 v{tt+1}, v{tt}, v{tt+1}"],
                      [f"v_cvt_pk_bf16_f32 v{b}, v{tt}, v{tt+1}"],
                      [f"v_accvgpr_write_b32 a{ACF+4*blk}, v{b}"], [f"v_accvgpr_write_b32 a{ACF+4*blk+1}, v{b+1}"],
                      [f"v_accvgpr_write_b32 a{ACF+4*blk+2}, 0"], [f"v_accvgpr_write_b32 a{ACF+4*blk+3}, 0"]]
        if typ == "B":
            items += [[f"v_lshlrev_b32 v{tt}, 2, v{VTID}"], [f"v_add_u32 v{tt}, {LDS_R}, v{tt}"],
                      [f"v_cmp_gt_u32 vcc, 128, v{VTID}", f"s_and_saveexec_b64 s[{S_E0}:{S_E0+1}], vcc", f"ds_write_b32 v{tt}, v{VRB}", f"s_mov_b64 exec, s[{S_E0}:{S_E0+1}]"]]
        add(at(K_RANK), items)

    def loop(self):
        A = self.A
        self.loop_start = len(A.l)
        steps = []
        for s in range(32):
            if s == CORR_AT: steps.append(("c", None))
            steps.append(("k", s))
        order_last = [b for b, kd in enumerate(self.kinds) if kd in ("gu","guh")] + [b for b, kd in enumerate(self.kinds) if kd not in ("gu","guh")]
        idx_of = {st: i for i, st in enumerate(steps)}
        def at(s, g=0): return (idx_of[("k", s)], g)
        flex = []; flex2 = []
        def add(pos, items):
            for it in items: flex.append((pos, it))
        def add2(pos, items):
            for it in items: flex2.append((pos, it))
        add(at(0), self.Wg(2))
        if not X1_EARLY: add(at(0), self.Xg(1))
        add(at(1, 1), self.Xg(2))
        for h in range(1, 14): add(at(2*h-1, 1), self.Wg(h+2))
        for sg in range(1, 6): add(at(4*sg-1, 1), self.Xg(sg+2))
        self.fixed = {}
        tagD = {}; tagR = {}; keep = []; placedR = {}
        self.oneshot_items(add, at)
        self.w2_done_R = []
        for i in range(N_IN):
            dd = self.w2.D(i); tagD[id(dd[0])] = i; keep.append(dd)
            add2(at(min(i+W2_START, 31)), dd)
            rr = self.w2.R(i); tagR[id(rr[-1])] = i; keep.append(rr)
            add2(at(min(i+W2_START+DLAG, 31)), rr); self.w2_done_R.append(i)
        flex.sort(key=lambda x: x[0])
        gaps_all = []
        flex2.sort(key=lambda x: x[0])
        queues = [list(flex), list(flex2)]
        for si, st in enumerate(steps):
            gaps = [[] for _ in range(10)]
            head = []
            if st[0] == "k":
                s = st[1]
                M = self.mfmas(s, order_last if s == 31 else None)
                head = ["s_waitcnt lgkmcnt(0)"]
                odd = s & 1
                if odd:
                    h = (s + 1)//2
                    if h <= 15:
                        ids = [f"W{h}_4"] + ([f"X{h//2}_3"] if h % 2 == 0 else [])
                        if h == H_INIT: ids.append("stst")
                        if ZLATE and h == H_Z: ids.append("zst")
                        if h == H_CS: ids.append("csat4")
                        if STAMP and SMODE == "wait":
                            gaps[0] += self.pre_barrier(h) + [("wait", ids), "s_memtime s[98:99]", "s_waitcnt lgkmcnt(0)", "s_barrier", "s_memtime s[100:101]", "s_waitcnt lgkmcnt(0)", "s_sub_u32 s100, s100, s98", f"s_add_u32 s{SB+12}, s{SB+12}, s100"]
                        else:
                            gaps[0] += self.pre_barrier(h) + [("wait", ids), "s_barrier"]
                        if ZLATE and h == H_Z: gaps[0] += self.sig(f"s_cmp_lt_u32 s2, {NZERO}", S_DBG, DBG_INIT, None, "init")
                        if h == H_INIT: gaps[0] += self.sig(None, S_WSP, WS_STCNT, S_T, "st")
                        if h == H_CS: gaps[0] += self.sig(None, S_WSP, WS_CSCNT, S_CG, "cs")
                    else:
                        gaps[0] += ["s_barrier"]
                nxt = s + 1
                if nxt < 32:
                    rd = self.reads(nxt)
                    g0 = 1 if odd else 0
                    for i, x in enumerate(rd): gaps[g0 + i//2].append(x)
            else:
                M = self.corr(); head = ["s_waitcnt lgkmcnt(0)"]
            if st[0] == "k" and st[1] in self.fixed:
                for it in self.fixed[st[1]]: gaps[9] += it
            for qi in range(2):
                pending = queues[qi]
                gi = 0
                rest = []
                blocked = False
                for (pos, it) in pending:
                    if blocked or pos[0] > si:
                        rest.append((pos, it)); continue
                    if id(it) in tagD and placedR.get(tagD[id(it)] - NSL, -1) == si:
                        rest.append((pos, it)); blocked = True; continue
                    if id(it) in tagD and tagD[id(it)] >= NSL and (tagD[id(it)] - NSL) not in placedR:
                        rest.append((pos, it)); blocked = True; continue
                    g = max(gi, pos[1] if pos[0] == si else 0)
                    need = 2 if (isinstance(it, tuple) and it[0] == "dma") else len(it)
                    while g < 10 and len(gaps[g]) + min(need, CAP) > CAP: g += 1
                    if g >= 10:
                        rest.append((pos, it)); blocked = True; continue
                    if id(it) in tagR: placedR[tagR[id(it)]] = si
                    if isinstance(it, tuple) and it[0] == "dma":
                        gaps[g].append(it[1]); gaps[g].append("__NOP__"); gaps[g].append(it[2]); gi = g + 1
                    else:
                        gaps[g] += it; gi = g
                queues[qi] = rest
            for g in gaps:
                while "__NOP__" in g:
                    i = g.index("__NOP__")
                    cand = [j for j in range(i-1) if isinstance(g[j], str) and g[j].startswith("ds_read")]
                    if cand:
                        x = g.pop(cand[-1]); i -= 1; g[i] = x
                    else: g[i] = "s_nop 0"
            if st[0] == "k" and st[1] % 4 == 0 and st[1] > 0: A.stamp(st[1]//4, "loop")
            for x in head: A(x)
            for i in range(10):
                A(M[i])
                for x in gaps[i]:
                    if x == "__WOSRD__":
                        assert "W15_4" in A.ids
                        A(f"s_lshl_b32 s{S_T0}, s{S_J}, 7"); A(f"s_lshl_b32 s{S_T1}, s{S_WV}, 17"); A(f"s_add_u32 s{S_T0}, s{S_T0}, s{S_T1}")
                        srd_off(A, S_WO, P_WO, P_WO+1, f"s{S_T0}", 512*1024)
                    else: A(x)
        assert not queues[0], queues[0][:3]
        self.leftover = queues[1]
        for (pos, it) in self.leftover:
            if id(it) in tagD: A("s_waitcnt lgkmcnt(0)")
            if it == ["__WOSRD__"]:
                A(f"s_lshl_b32 s{S_T0}, s{S_J}, 7"); A(f"s_lshl_b32 s{S_T1}, s{S_WV}, 17"); A(f"s_add_u32 s{S_T0}, s{S_T0}, s{S_T1}")
                srd_off(A, S_WO, P_WO, P_WO+1, f"s{S_T0}", 512*1024)
            else: emit_items(A, [it])
        self.nleft = len(self.leftover)
        txt = A.l
        for i in range(N_IN - NSL):
            rd = [n for n, x in enumerate(txt) if n > self.loop_start and "ds_read_b64_tr_b16 a[%d:" % (8*i+6) in x]
            if not rd: continue
            pos_r = rd[-1]; pos_d = A.pos[f"w2_{i+NSL}_0"]
            assert pos_d > pos_r and any("lgkmcnt(0)" in x for x in txt[pos_r:pos_d]), ("no lgkm wait", i)

    def flag_store(self, slot_imm, FA, ONE):
        A = self.A
        FA, ONE = VT+4, VT+5
        A(f"v_mov_b32 v{ONE}, 1")
        A(f"s_lshl_b32 s{S_T0}, s{S_T}, 1"); A(f"s_add_u32 s{S_T0}, s{S_T0}, s{S_WM}"); A(f"s_lshl_b32 s{S_T0}, s{S_T0}, 2")
        A(f"s_lshr_b32 s{S_T1}, s{S_IDX}, 1"); A(f"s_add_u32 s{S_T0}, s{S_T0}, s{S_T1}"); A(f"s_lshl_b32 s{S_T0}, s{S_T0}, 4")
        A(f"s_lshl_b32 s{S_T1}, s{S_I1}, 1"); A(f"s_add_u32 s{S_T0}, s{S_T0}, s{S_T1}"); A(f"s_add_u32 s{S_T0}, s{S_T0}, s{S_WN}")
        A(f"s_add_u32 s{S_T0}, s{S_T0}, {slot_imm}"); A(f"s_lshl_b32 s{S_T0}, s{S_T0}, 2"); A(f"s_add_u32 s{S_T0}, s{S_T0}, {WS_FLAG}")
        A(f"v_mov_b32 v{FA}, s{S_T0}")
        A(f"s_mov_b64 s[{S_E0}:{S_E0+1}], exec"); A("s_mov_b64 exec, 1")
        A.vm(f"global_store_dword v{FA}, v{ONE}, s[{S_WSP}:{S_WSP+1}] sc1")
        A(f"s_mov_b64 exec, s[{S_E0}:{S_E0+1}]")

    def transition(self):
        A, typ, kinds = self.A, self.typ, self.kinds
        w2 = self.w2
        tt = VT
        state = {"D": N_IN, "R": N_IN}
        A.stamp(1, "tr")
        A("s_waitcnt lgkmcnt(0)")
        A("s_barrier")
        A(f"s_mul_i32 s{S_T0}, s{S_WV}, {NPOST*2048}"); A(f"s_add_u32 s{S_T0}, s{S_T0}, {W2POST}")
        A(f"s_sub_u32 s{S_T1}, s{S_T0}, s{S_LB}"); A(f"s_mov_b32 s{S_LB}, s{S_T0}")
        A(f"v_add_u32 v{VTR}, s{S_T1}, v{VTR}"); A(f"v_xor_b32 v{VTR1}, 64, v{VTR}")
        A(f"s_lshl_b32 s{S_T0}, s{S_J}, 7"); A(f"s_lshl_b32 s{S_T1}, s{S_WV}, 17"); A(f"s_add_u32 s{S_T0}, s{S_T0}, s{S_T1}")
        srd_off(A, S_WO, P_WO, P_WO+1, f"s{S_T0}", 512*1024)
        def bgD(n=1):
            for _ in range(n):
                i = state["D"]
                if i >= 36 or i - state["R"] >= NPOST: return
                emit_items(A, w2.D(i)); state["D"] += 1
        def bgR(n=1):
            for _ in range(n):
                i = state["R"]
                if i >= state["D"]: return
                if i >= 32 and not state.get("vfree"): return
                emit_items(A, w2.R(i)); state["R"] += 1
        def bgD_safe(n=1):
            A("s_waitcnt lgkmcnt(0)"); bgD(n)
        A(f"s_lshl_b32 s{S_T0}, s{S_T}, 1"); A(f"s_add_u32 s{S_T0}, s{S_T0}, s{S_WM}"); A(f"s_lshl_b32 s{S_T0}, s{S_T0}, 2")
        A(f"s_lshr_b32 s{S_T1}, s{S_IDX}, 1"); A(f"s_add_u32 s{S_T0}, s{S_T0}, s{S_T1}"); A(f"s_mul_i32 s{S_HB}, s{S_T0}, {36*2048}")
        A(f"s_and_b32 s{S_I1}, s{S_IDX}, 1")
        I1 = S_I1
        R2 = XF
        for tb in range(2):
            A(f"v_mul_f32 v{R2+2*tb}, v{VR+tb}, v{VR+tb}"); A(f"v_mul_f32 v{R2+2*tb+1}, v{VR+tb}, v{VR+tb}")
        PK = WF
        nst = 0
        gublks = [b for b, kd in enumerate(kinds) if kd in ("gu", "guh")]
        lasth = None
        for blk in gublks:
            kd = kinds[blk]
            if typ == "A":
                if blk == 0:
                    A(f"s_lshl_b32 s{S_T2}, s{I1}, 1"); A(f"s_add_u32 s{S_T2}, s{S_T2}, s{S_WN}"); A(f"s_lshl_b32 s{S_T2}, s{S_T2}, 13"); A(f"s_add_u32 s{S_T2}, s{S_T2}, s{S_HB}")
                else: A(f"s_add_u32 s{S_T2}, s{S_T2}, 2048")
            elif kd == "gu":
                if blk == 2:
                    A(f"s_lshl_b32 s{S_T2}, s{I1}, 2"); A(f"s_lshl_b32 s{S_T3}, s{S_WN}, 1"); A(f"s_add_u32 s{S_T2}, s{S_T2}, s{S_T3}"); A(f"s_add_u32 s{S_T2}, s{S_T2}, 16")
                    A(f"s_lshl_b32 s{S_T2}, s{S_T2}, 11"); A(f"s_add_u32 s{S_T2}, s{S_T2}, s{S_HB}")
                else: A(f"s_add_u32 s{S_T2}, s{S_T2}, 2048")
            else:
                A(f"s_lshl_b32 s{S_T2}, s{I1}, 1"); A(f"s_add_u32 s{S_T2}, s{S_T2}, s{S_WN}"); A(f"s_add_u32 s{S_T2}, s{S_T2}, 24")
                A(f"s_lshl_b32 s{S_T2}, s{S_T2}, 11"); A(f"s_add_u32 s{S_T2}, s{S_T2}, s{S_HB}")
            for tb in range(2):
                a = acc(blk, tb); pk = PK + 4*(nst % 4); nst += 1
                for i in range(4): A(f"v_pk_mul_f32 v[{a+2*i}:{a+2*i+1}], v[{a+2*i}:{a+2*i+1}], v[{a+8+2*i}:{a+8+2*i+1}]")
                for i in range(4): A(f"v_pk_mul_f32 v[{a+2*i}:{a+2*i+1}], v[{a+2*i}:{a+2*i+1}], v[{R2+2*tb}:{R2+2*tb+1}]")
                for i in range(4): A(f"v_cvt_pk_bf16_f32 v{pk+i}, v{a+2*i}, v{a+2*i+1}")
                lasth = f"hs_{blk}_{tb}"
                A.vm(f"buffer_store_dwordx4 v[{pk}:{pk+3}], v{VL16}, s[{S_H}:{S_H+3}], s{S_T2} offen offset:{tb*1024} sc1", id=lasth)
        assert (not LATE_R) or 36 - N_IN <= NPOST
        A.stamp(5); A.stamp(2, "tr")
        FA, ONE = VT+4, VT+5
        A(f"s_mov_b32 s{S_C6}, 0x358637bd"); A(f"s_mov_b32 s{S_C6+1}, 0x358637bd")
        C6 = f"s[{S_C6}:{S_C6+1}]"
        if typ == "A":
            A(f"s_lshl_b32 s{S_T2}, s{I1}, 2"); A(f"s_lshl_b32 s{S_T3}, s{S_WN}, 1"); A(f"s_add_u32 s{S_T2}, s{S_T2}, s{S_T3}"); A(f"s_add_u32 s{S_T2}, s{S_T2}, 28")
            A(f"s_lshl_b32 s{S_T2}, s{S_T2}, 11"); A(f"s_add_u32 s{S_T4}, s{S_T2}, s{S_HB}"); A(f"s_add_u32 s{S_XO}, s{S_T4}, 2048")
            A(f"s_mov_b32 s22, s{S_T4}"); A(f"s_mov_b32 s23, s{S_XO}")
            RP = XF + 4; RLP = XF + 6
            for tb in range(2):
                a = acc(4, tb)
                A(f"v_mov_b32 v{RP}, v{VR+tb}"); A(f"v_mov_b32 v{RP+1}, v{VR+tb}")
                A(f"v_mul_f32 v{RLP}, 0x3fb8aa3b, v{VR+tb}"); A(f"v_mul_f32 v{RLP+1}, 0x3fb8aa3b, v{VR+tb}")
                for i in range(0, 16, 4):
                    for j in (0, 2): A(f"v_pk_mul_f32 v[{tt+j}:{tt+j+1}], v[{a+i+j}:{a+i+j+1}], v[{RLP}:{RLP+1}]")
                    for j in (0, 2): A(f"v_pk_fma_f32 v[{a+i+j}:{a+i+j+1}], v[{a+i+j}:{a+i+j+1}], v[{RP}:{RP+1}], {C6}")
                    for j in range(4): A(f"v_exp_f32_e64 v{tt+j}, v{tt+j} clamp")
                    for j in range(4): A(f"v_max_f32 v{a+i+j}, s{S_C6}, v{a+i+j}")
                    for j in (0, 2): A(f"v_pk_add_f32 v[{a+i+j}:{a+i+j+1}], v[{a+i+j}:{a+i+j+1}], v[{tt+j}:{tt+j+1}]")
                    if PHI_D: bgD(1)
                if tb == FLAG_TB and FLAG_TB == 0:
                    A.stamp(3, "tr"); A.wait(lasth); A.stamp(4, "tr"); self.flag_store(0, FA, ONE)
                    if LATE_R == 1: bgD(36 - N_IN)
                for hs in range(2):
                    pk = (128 + 4*(2*tb + hs)) if DEFER else PK + 4*(nst % 4); nst += 1
                    for i in range(4): A(f"v_cvt_pk_bf16_f32 v{pk+i}, v{a+8*hs+2*i}, v{a+8*hs+2*i+1}")
                    if not DEFER: A.vm(f"buffer_store_dwordx4 v[{pk}:{pk+3}], v{VL16}, s[{S_H}:{S_H+3}], s{S_XO if hs else S_T4} offen offset:{tb*1024} sc1", id=f"pq_{tb}_{hs}")
            if FLAG_TB == 1:
                A.stamp(3, "tr"); A.wait(lasth); A.stamp(4, "tr"); self.flag_store(0, FA, ONE)
            bgD(11)
            state["vfree"] = True
            A.stamp(5, "tr")
        else:
            RR = WF; RL = WF + 16; TK = WF + 32; TV = VT + 6
            ONES = XF + 4
            for i in range(4): A(f"v_mov_b32 v{ONES+i}, 0x3f803f80")
            A(f"v_lshrrev_b32 v{tt}, 5, v{VLANE}"); A(f"v_lshlrev_b32 v{tt}, 4, v{tt}")
            A(f"s_lshl_b32 s{S_T0}, s{S_WM}, 8"); A(f"s_add_u32 s{S_T0}, s{S_T0}, {LDS_R}"); A(f"v_add_u32 v{XF+9}, s{S_T0}, v{tt}")
            D2, DZ = acc(2,0), acc(2,1)
            for tb in range(2):
                for q4 in range(4): A(f"ds_read_b128 v[{RR+4*q4}:{RR+4*q4+3}], v{XF+9} offset:{tb*128 + q4*32}")
                A("s_waitcnt lgkmcnt(0)")
                A(f"s_mov_b32 s{S_T0}, 0x3fb8aa3b"); A(f"s_mov_b32 s{S_T1}, 0x3fb8aa3b")
                for i in range(8): A(f"v_pk_mul_f32 v[{RL+2*i}:{RL+2*i+1}], v[{RR+2*i}:{RR+2*i+1}], s[{S_T0}:{S_T1}]")
                a = acc(0, tb); av = acc(1, tb)
                for i in range(0, 16, 4):
                    for j in (0, 2): A(f"v_pk_mul_f32 v[{tt+j}:{tt+j+1}], v[{a+i+j}:{a+i+j+1}], v[{RL+i+j}:{RL+i+j+1}]")
                    for j in (0, 2): A(f"v_pk_fma_f32 v[{a+i+j}:{a+i+j+1}], v[{a+i+j}:{a+i+j+1}], v[{RR+i+j}:{RR+i+j+1}], {C6}")
                    for j in range(4): A(f"v_exp_f32_e64 v{tt+j}, v{tt+j} clamp")
                    for j in range(4): A(f"v_max_f32 v{a+i+j}, s{S_C6}, v{a+i+j}")
                    for j in (0, 2): A(f"v_pk_add_f32 v[{a+i+j}:{a+i+j+1}], v[{a+i+j}:{a+i+j+1}], v[{tt+j}:{tt+j+1}]")
                    if PHI_D: bgD(1)
                for i in range(8): A(f"v_pk_mul_f32 v[{av+2*i}:{av+2*i+1}], v[{av+2*i}:{av+2*i+1}], v[{RR+2*i}:{RR+2*i+1}]")
                for i in range(8): A(f"v_cvt_pk_bf16_f32 v{TK+i}, v{a+2*i}, v{a+2*i+1}")
                for i in range(8): A(f"v_cvt_pk_bf16_f32 v{TV+i}, v{av+2*i}, v{av+2*i+1}")
                A("s_nop 1")
                for f in range(2):
                    c = "0" if (tb == 0 and f == 0) else None
                    A(f"v_mfma_f32_32x32x16_bf16 v[{D2}:{D2+15}], v[{TK+4*f}:{TK+4*f+3}], v[{TV+4*f}:{TV+4*f+3}], {c or f'v[{D2}:{D2+15}]'}")
                    A(f"v_mfma_f32_32x32x16_bf16 v[{DZ}:{DZ+15}], v[{TK+4*f}:{TK+4*f+3}], v[{ONES}:{ONES+3}], {c or f'v[{DZ}:{DZ+15}]'}")
                if tb == FLAG_TB:
                    A.stamp(3, "tr"); A.wait(lasth); A.stamp(4, "tr"); self.flag_store(4, FA, ONE)
                    if LATE_R == 1 and B_EARLY_D: bgD(36 - N_IN)
            if PHI_D: bgD(3)
            A(f"v_and_b32 v{tt}, 31, v{VLANE}"); A(f"v_cmp_gt_u32 vcc, 16, v{tt}")
            A(f"s_lshl_b32 s{S_T0}, s{S_WM}, 13"); A(f"s_lshl_b32 s{S_T1}, s{S_WN}, 12"); A(f"s_add_u32 s{S_T0}, s{S_T0}, s{S_T1}"); A(f"s_add_u32 s{S_T0}, s{S_T0}, {LDS_KV}")
            A(f"v_lshlrev_b32 v{tt}, 2, v{VLANE}"); A(f"v_add_u32 v{tt}, s{S_T0}, v{tt}")
            A("s_nop 7"); A("s_nop 3")
            for r_ in range(16):
                if r_ < 8: A(f"v_cndmask_b32 v{D2+r_}, v{DZ+r_}, v{D2+r_}, vcc")
                else: A(f"v_cndmask_b32 v{D2+r_}, v{D2+r_}, v{DZ+r_}, vcc")
            for r_ in range(16): A(f"ds_write_b32 v{tt}, v{D2+r_} offset:{r_*256}")
            A("s_waitcnt lgkmcnt(0)"); A("s_barrier")
            A(f"s_lshr_b32 s{S_T0}, s{S_WV}, 1"); A(f"s_lshl_b32 s{S_T0}, s{S_T0}, 12"); A(f"s_add_u32 s{S_T0}, s{S_T0}, {LDS_KV}")
            A(f"s_and_b32 s{S_T2}, s{S_WV}, 1")
            A(f"s_mul_i32 s{S_T3}, s{S_T2}, {8*256}"); A(f"s_add_u32 s{S_T0}, s{S_T0}, s{S_T3}")
            A(f"s_lshl_b32 s{S_T3}, s{S_T2}, 6")
            A(f"s_lshl_b32 s{S_T1}, s{S_IDX}, 2"); A(f"s_add_u32 s{S_T1}, s{S_T1}, s{S_WV}")
            A(f"s_mul_i32 s{S_T1}, s{S_T1}, {KV_HEAD}"); A(f"s_add_u32 s{S_T1}, s{S_T1}, {WS_KV}")
            A(f"v_and_b32 v{tt}, 7, v{VLANE}"); A(f"v_lshlrev_b32 v{tt}, 8, v{tt}"); A(f"v_add_u32 v{tt}, s{S_T0}, v{tt}")
            A(f"v_lshrrev_b32 v{tt+1}, 3, v{VLANE}"); A(f"v_lshlrev_b32 v{tt+1}, 2, v{tt+1}")
            A(f"v_add_u32 v{tt+2}, v{tt}, v{tt+1}"); A(f"v_add_u32 v{tt+2}, s{S_T3}, v{tt+2}")
            B0 = ACC
            for n in range(4):
                off = (32*(n>>1) + 8*(n&1))*4
                A(f"ds_read_b32 v{B0+2*n}, v{tt+2} offset:{off}"); A(f"ds_read_b32 v{B0+2*n+1}, v{tt+2} offset:{off+8192}")
            A(f"s_sub_u32 s{S_T3}, 64, s{S_T3}")
            A(f"v_lshlrev_b32 v{tt+3}, 5, v{tt+1}"); A(f"v_add_u32 v{tt+3}, v{tt+3}, v{tt}"); A(f"v_add_u32 v{tt+3}, s{S_T3}, v{tt+3}")
            A(f"v_cmp_gt_u32 vcc, 16, v{VLANE}"); A(f"s_and_saveexec_b64 s[{S_E0}:{S_E0+1}], vcc")
            A(f"ds_read_b32 v{B0+8}, v{tt+3}"); A(f"ds_read_b32 v{B0+9}, v{tt+3} offset:8192")
            A(f"s_mov_b64 exec, s[{S_E0}:{S_E0+1}]")
            A(f"v_lshlrev_b32 v{tt+2}, 2, v{VLANE}"); A(f"v_add_u32 v{tt+2}, s{S_T1}, v{tt+2}")
            A("s_waitcnt lgkmcnt(0)")
            if DEFER:
                for n in range(5): A(f"v_add_f32 v{128+n}, v{B0+2*n}, v{B0+2*n+1}")
                A(f"v_mov_b32 v133, v{tt+2}")
            else:
                for n in range(4):
                    A(f"v_add_f32 v{B0+2*n}, v{B0+2*n}, v{B0+2*n+1}")
                    A.vm(f"global_atomic_add_f32 v{tt+2}, v{B0+2*n}, s[{S_WSP}:{S_WSP+1}] offset:{n*256}")
                A(f"v_add_f32 v{B0+8}, v{B0+8}, v{B0+9}")
                A(f"s_and_saveexec_b64 s[{S_E0}:{S_E0+1}], vcc")
                A.vm(f"global_atomic_add_f32 v{tt+2}, v{B0+8}, s[{S_WSP}:{S_WSP+1}] offset:1024", id="kvat")
                A(f"s_mov_b64 exec, s[{S_E0}:{S_E0+1}]")
            bgD(11)
            state["vfree"] = True
            A.stamp(5, "tr")
        A.stamp(6); A.stamp(6, "tr")
        if not LATE_R:
            while state["R"] < 36:
                bgR(3); bgD_safe(3)
            A("s_waitcnt lgkmcnt(0)")

class G2:
    ACC2 = 0; HB = 64; NH = 32; W2V = 192
    def __init__(self, A): self.A = A; self.w2 = W2(A)
    def poll(self, label, vaddr, nl, expect=None, novm=False):
        A = self.A; T = VT
        A(f"s_mov_b32 s{S_T3}, 0")
        A(f"s_mov_b64 s[{S_E0}:{S_E0+1}], exec"); A(f"s_mov_b64 exec, {(1<<nl)-1}")
        A.label(label)
        if novm: A.l.append(f"  global_load_dword v{T+9}, v{vaddr}, s[{S_WSP}:{S_WSP+1}] sc1")
        else: A.vm(f"global_load_dword v{T+9}, v{vaddr}, s[{S_WSP}:{S_WSP+1}] sc1")
        A("s_waitcnt vmcnt(0)")
        if expect is None: A(f"v_cmp_ne_u32 vcc, 0, v{T+9}")
        else: A(f"v_cmp_le_u32 vcc, {expect}, v{T+9}")
        A(f"s_add_u32 s{S_T3}, s{S_T3}, 1")
        A(f"s_cmp_ge_u32 s{S_T3}, {POLL_MAX}"); A(f"s_cbranch_scc1 {label}_x")
        A(f"s_cmp_eq_u64 vcc, exec"); A(f"s_cbranch_scc1 {label}_x")
        A("s_sleep 1"); A(f"s_branch {label}")
        A.label(label + "_x")
        A(f"s_mov_b64 exec, s[{S_E0}:{S_E0+1}]")
    def check(self, label, vreg, nl, expect=None):
        pass
    def body(self):
        A = self.A; T = VT; VL = VLANE
        ACC2 = 0; HB = 64; NH = 16; KVR0 = 128
        A.reset_vm()
        VFL, VKV, VCN = T+10, T+11, T+12
        VF1, VF2 = T+8, T+9
        srd(A, S_O, P_O, P_O+1, 2048*1024)
        srd(A, S_XX, P_X, P_X+1, 2048*1024)
        A(f"s_lshl_b32 s{S_HO}, s{S_TAU}, 2"); A(f"s_add_u32 s{S_HO}, s{S_HO}, s{S_WV}")
        A(f"s_lshl_b32 s{S_T0}, s{S_HO}, 6"); A(f"s_add_u32 s{S_T0}, s{S_T0}, {WS_FLAG}")
        A(f"v_lshlrev_b32 v{VFL}, 2, v{VL}"); A(f"v_add_u32 v{VFL}, s{S_T0}, v{VFL}")
        A(f"s_mul_i32 s{S_HO}, s{S_HO}, {36*2048}")
        A(f"s_add_u32 s{S_T4}, s{S_HO}, {56*1024}")
        A(f"s_mov_b32 s{S_HBASE}, s{S_HO}"); A(f"s_lshl_b32 s{S_HR}, s{S_RHO}, 11")
        A(f"v_and_b32 v{T}, 31, v{VL}"); A(f"v_lshrrev_b32 v{T+1}, 5, v{VL}")
        A(f"v_lshlrev_b32 v{T+2}, 4, v{T+1}"); A(f"v_add_u32 v{T+2}, v{T+2}, v{T}"); A(f"v_subrev_u32 v{T+2}, 16, v{T+2}"); A(f"v_lshlrev_b32 v{T+2}, 5, v{T+2}")
        A(f"v_lshlrev_b32 v{T+3}, 5, v{T+1}"); A(f"v_add_u32 v{T+3}, 1024, v{T+3}")
        A(f"v_cmp_gt_u32 vcc, 16, v{T}"); A("s_nop 1"); A(f"v_cndmask_b32 v{T+2}, v{T+2}, v{T+3}, vcc")
        A(f"s_lshl_b32 s{S_T0}, s{S_WV}, 3"); A(f"s_mul_i32 s{S_T0}, s{S_T0}, {KV_HEAD}"); A(f"s_add_u32 s{S_T0}, s{S_T0}, {WS_KV}")
        A(f"v_add_u32 v{VKV}, s{S_T0}, v{T+2}")
        A(f"s_lshl_b32 s{S_T0}, s{S_WV}, 9"); A(f"s_add_u32 s{S_T0}, s{S_T0}, {WS_KVCNT}")
        A(f"v_lshlrev_b32 v{VCN}, 6, v{VL}"); A(f"v_add_u32 v{VCN}, s{S_T0}, v{VCN}")
        A("s_barrier")
        def signal_block():
            A(f"s_cmp_ge_u32 s{S_CP}, 2"); A("s_cbranch_scc1 K12_sigB")
            A(f"s_lshl_b32 s{S_T0}, s{S_T}, 1"); A(f"s_add_u32 s{S_T0}, s{S_T0}, s{S_WM}"); A(f"s_lshl_b32 s{S_T0}, s{S_T0}, 2")
            A(f"s_lshr_b32 s{S_T1}, s{S_IDX}, 1"); A(f"s_add_u32 s{S_T0}, s{S_T0}, s{S_T1}"); A(f"s_lshl_b32 s{S_T0}, s{S_T0}, 4")
            A(f"s_lshl_b32 s{S_T1}, s{S_I1}, 1"); A(f"s_add_u32 s{S_T0}, s{S_T0}, s{S_T1}"); A(f"s_add_u32 s{S_T0}, s{S_T0}, s{S_WN}")
            A(f"s_add_u32 s{S_T0}, s{S_T0}, 8"); A(f"s_lshl_b32 s{S_T0}, s{S_T0}, 2"); A(f"s_add_u32 s{S_T0}, s{S_T0}, {WS_FLAG}")
            A(f"v_mov_b32 v{T+4}, s{S_T0}"); A(f"v_mov_b32 v{T+5}, 1")
            A(f"s_mov_b64 s[{S_E0}:{S_E0+1}], exec"); A("s_mov_b64 exec, 1")
            A(f"!global_store_dword v{T+4}, v{T+5}, s[{S_WSP}:{S_WSP+1}] sc1")
            A(f"s_mov_b64 exec, s[{S_E0}:{S_E0+1}]"); A("s_branch K12_sigX")
            A("K12_sigB:")
            A(f"s_lshl_b32 s{S_T0}, s{S_IDX}, 2"); A(f"s_add_u32 s{S_T0}, s{S_T0}, s{S_WV}"); A(f"s_lshl_b32 s{S_T0}, s{S_T0}, 6"); A(f"s_add_u32 s{S_T0}, s{S_T0}, {WS_KVCNT}")
            A(f"v_mov_b32 v{T+4}, s{S_T0}"); A(f"v_mov_b32 v{T+5}, 1")
            A(f"s_mov_b64 s[{S_E0}:{S_E0+1}], exec"); A("s_mov_b64 exec, 1")
            A(f"!global_atomic_add v{T+4}, v{T+5}, s[{S_WSP}:{S_WSP+1}] sc1")
            A(f"s_mov_b64 exec, s[{S_E0}:{S_E0+1}]")
            A("K12_sigX:")
        if not DEFER:
            A("s_waitcnt vmcnt(0)")
            signal_block()
        A.stamp(7); A.stamp(7, "tr")
        self.poll("K12_pollH", VFL, 8)
        A.stamp(8, "tr")
        A.stamp(8); A.stamp(1, "g2")
        hstate = {"off": 0}
        def h_items(f):
            o = []
            hb = HB + 4*(f % NH)
            if f % 2 == 0: o.append(f"s_add_u32 s{S_HO}, s{S_HBASE}, s{S_HR}")
            o.append(("vm", f"h{f}", f"buffer_load_dwordx4 v[{hb}:{hb+3}], v{VL16}, s[{S_H}:{S_H+3}], s{S_HO} offen offset:{(f%2)*1024} sc1"))
            if f % 2 == 1 and f < 55:
                o += [f"s_add_u32 s{S_HR}, s{S_HR}, 2048", f"s_cmp_eq_u32 s{S_HR}, {28*2048}", f"s_cselect_b32 s{S_HR}, 0, s{S_HR}"]
            return o
        def pq_items(g):
            return [f"s_add_u32 s{S_HO}, s{S_T4}, {(g//4)*4096}",
                    ("vm", f"pq{g}", f"buffer_load_dwordx4 a[{4*g}:{4*g+3}], v{VL16}, s[{S_H}:{S_H+3}], s{S_HO} offen offset:{(g%4)*1024} sc1")]
        def kv_items(h):
            b = KVR0 + 8*h
            pre = [f"s_mov_b64 exec, s[{S_C6}:{S_C6+1}]"] if KVMASK else []
            post = ["s_mov_b64 exec, -1"] if KVMASK else []
            return pre + [("vm", None, f"global_load_dwordx4 v[{b}:{b+3}], v{VKV}, s[{S_WSP}:{S_WSP+1}] sc1"),
                    ("vm", f"kv{h}", f"global_load_dwordx4 v[{b+4}:{b+7}], v{VKV}, s[{S_WSP}:{S_WSP+1}] offset:16 sc1")] + post + [
                    f"v_add_u32 v{VKV}, {KV_HEAD}, v{VKV}"]
        if KVMASK:
            A(f"s_mov_b32 s{S_C6}, 0xffff0011"); A(f"s_mov_b32 s{S_C6+1}, 0xffff0011")
        AHEAD = G2_AHEAD
        KVB = [KVR0 + 8*h for h in range(8)]
        DO = [224 - 32, 224 - 16]
        DO = [T - 16 - 16 + 0, 0]
        DO = [208, 224]
        DO = [HB + 32, HB + 48]
        OF = [T, T+4]
        loads = [("h", f) for f in range(56)]
        if TBM:
            for h in range(8): loads += [("kv", h), ("pq", 2*h)]
            for h in range(8): loads += [("pq", 2*h+1)]
        else:
            for h in range(8): loads += [("kv", h), ("pq", 2*h), ("pq", 2*h+1)]
        CHK = G2_CHK
        li = {"n": 0}
        def issue(n):
            o = []
            for _ in range(n):
                if li["n"] >= len(loads): break
                k, x = loads[li["n"]]; li["n"] += 1
                o.append(h_items(x) if k == "h" else (kv_items(x) if k == "kv" else pq_items(x)))
            return o
        A(f"s_mul_i32 s{S_T0}, s{S_J}, {7*1024}"); A(f"s_add_u32 s{S_T0}, s{S_T0}, s{S_HO}")
        for x in issue(4):
            for y in x: A(y)
        if G2_PF:
            for k in range(7):
                if k == 4: A(f"s_add_u32 s{S_T0}, s{S_T0}, 4096")
                A.vm(f"buffer_load_dwordx4 v[{T}:{T+3}], v{VL16}, s[{S_H}:{S_H+3}], s{S_T0} offen offset:{(k%4)*1024} sc1")
        for x in issue(AHEAD - 4):
            for y in x: A(y)
        if DEFER:
            A(f"s_cmp_ge_u32 s{S_CP}, 2"); A("s_cbranch_scc1 K12_defB")
            for tb in range(2):
                for hs in range(2):
                    pk = 128 + 4*(2*tb + hs)
                    A(f"!buffer_store_dwordx4 v[{pk}:{pk+3}], v{VL16}, s[{S_H}:{S_H+3}], s{23 if hs else 22} offen offset:{tb*1024} sc1")
            A(f"v_mov_b32 v{T+6}, 24576"); A("s_mov_b64 exec, 1")
            A(f"!global_load_dword v{T+7}, v{T+6}, s[{S_WSP}:{S_WSP+1}]")
            A("s_mov_b64 exec, -1"); A("s_branch K12_defX")
            A("K12_defB:")
            for n in range(4): A(f"!global_atomic_add_f32 v133, v{128+n}, s[{S_WSP}:{S_WSP+1}] offset:{n*256}")
            A("s_mov_b64 exec, 0xffff")
            A(f"!global_atomic_add_f32 v133, v132, s[{S_WSP}:{S_WSP+1}] offset:1024")
            A("s_mov_b64 exec, -1")
            A("K12_defX:")
            A.nvm += 5; A.ids["defer"] = A.nvm
        A.stamp(2, "g2")
        for i in range(28):
            if LATE_R and i == N_IN: A("s_waitcnt lgkmcnt(0)")
            A.wait(f"h{2*i+1}")
            if DEFER and i == S_SIG:
                assert A.ids[f"h{2*i+1}"] > A.ids["defer"]
                signal_block()
            if i == 1: A.stamp(3, "g2")
            gaps = [[] for _ in range(4)]
            if i == CHK - 5:
                gaps[0] += [f"v_add_u32 v{VFL}, 32, v{VFL}", f"s_mov_b64 s[{S_E0}:{S_E0+1}], exec", "s_mov_b64 exec, 15",
                            ("vm", "fq", f"global_load_dword v{VF1}, v{VFL}, s[{S_WSP}:{S_WSP+1}] sc1"), "s_mov_b64 exec, 255",
                            ("vm", "fkv", f"global_load_dword v{VF2}, v{VCN}, s[{S_WSP}:{S_WSP+1}] sc1"), f"s_mov_b64 exec, s[{S_E0}:{S_E0+1}]"]
            if LATE_R and i >= 2 and N_IN + (i - 2) < 36:
                rr = self.w2.R(N_IN + (i - 2))[1:]
                gaps[0] += rr[0]; gaps[3] += rr[1]
            n = 2
            if li["n"] + n > 56 and i < CHK: n = max(0, 56 - li["n"])
            for k, x in enumerate(issue(n)): gaps[1+k] += x
            mf = []
            for tb in range(2):
                hb = HB + 4*((2*i+tb) % NH)
                for nb in range(2):
                    a = ACC2 + 16*(2*nb+tb)
                    c = "0" if i == 0 else f"v[{a}:{a+15}]"
                    mf.append(f"v_mfma_f32_32x32x16_bf16 v[{a}:{a+15}], {self.w2.frag(i,nb)}, v[{hb}:{hb+3}], {c}")
            for g in range(4):
                A(mf[g])
                for x in gaps[g]: A(x)
            if i == CHK - 1:
                A.stamp(4, "g2")
                A.wait("fkv")
                A(f"s_mov_b64 s[{S_E0}:{S_E0+1}], exec"); A("s_mov_b64 exec, 15")
                A(f"v_cmp_ne_u32 vcc, 0, v{VF1}"); A("s_nop 3"); A("s_cmp_eq_u64 vcc, exec"); A(f"s_mov_b64 exec, s[{S_E0}:{S_E0+1}]")
                A("s_cbranch_scc1 K12_qok")
                self.poll("K12_pollQ", VFL, 4, novm=True)
                A.label("K12_qok")
                A(f"s_mov_b64 s[{S_E0}:{S_E0+1}], exec"); A("s_mov_b64 exec, 255")
                A(f"v_cmp_le_u32 vcc, 16, v{VF2}"); A("s_nop 3"); A("s_cmp_eq_u64 vcc, exec"); A(f"s_mov_b64 exec, s[{S_E0}:{S_E0+1}]")
                A("s_cbranch_scc1 K12_kvok")
                self.poll("K12_pollKV", VCN, 8, expect=16, novm=True)
                A.label("K12_kvok")
                A.stamp(5, "g2")
        A.stamp(6, "g2"); A.stamp(1, "att")
        A(f"v_lshrrev_b32 v{T+8}, 3, v{VTID}"); A(f"v_and_b32 v{T+9}, 7, v{VTID}")
        A(f"s_lshl_b32 s{S_T0}, s{S_TAU}, 16"); A(f"s_lshl_b32 s{S_T2}, s{S_J}, 7"); A(f"s_add_u32 s{S_T0}, s{S_T0}, s{S_T2}")
        VG = VFL
        A(f"v_lshlrev_b32 v{VG}, 10, v{T+8}"); A(f"v_lshlrev_b32 v{VCN}, 4, v{T+9}"); A(f"v_add_u32 v{VG}, v{VG}, v{VCN}")
        A(f"s_add_u32 s{S_T2}, s{S_T0}, {32*1024}")
        XR = HB
        A(f"s_mov_b32 s{S_T1}, 0x358637bd")
        A("s_waitcnt lgkmcnt(0)")
        units = [(h, tb) for tb in range(2) for h in range(8)] if TBM else [(h, tb) for h in range(8) for tb in range(2)]
        RS = 272; WSZ = 64*RS; VW = VCN
        A(f"v_and_b32 v{VW}, 31, v{VL}"); A(f"v_mul_u32_u24 v{VW}, {RS}, v{VW}"); A(f"v_lshrrev_b32 v{T+9}, 5, v{VL}"); A(f"v_lshlrev_b32 v{T+9}, 4, v{T+9}"); A(f"v_add_u32 v{VW}, v{VW}, v{T+9}")
        A(f"s_mul_i32 s{S_T3}, s{S_WV}, {WSZ}"); A(f"v_add_u32 v{VW}, s{S_T3}, v{VW}")
        def wr(tb, k):
            nb, q = k // 4, k % 4; a = ACC2 + 16*(2*nb+tb)
            return f"ds_write_b128 v{VW}, v[{a+4*q}:{a+4*q+3}] offset:{tb*32*RS + nb*128 + q*32}"
        def stA(u):
            h, tb = units[u]; d = DO[u & 1]
            o = []
            if tb == 0:
                o.append(("wait", [f"kv{h}", f"pq{2*h}"]))
                o += [f"v_cvt_pk_bf16_f32 v{KVB[h]+e}, v{KVR0+8*h+2*e}, v{KVR0+8*h+2*e+1}" for e in range(4)]
                o.append("s_nop 1")
            else: o.append(("wait", [f"pq{2*h+1}"]))
            o.append(f"v_mfma_f32_32x32x16_bf16 v[{d}:{d+15}], v[{KVB[h]}:{KVB[h]+3}], {ar(4*(2*h+tb), 4)}, 0")
            return o
        def stB(u):
            d = DO[u & 1]; o = OF[u & 1]; rc = T + 8
            l = [f"v_add_f32 v{rc}, s{S_T1}, v{d}", f"v_rcp_f32 v{rc}, v{rc}", "s_nop 0"]
            l += [f"v_mul_f32 v{d+8+e}, v{rc}, v{d+8+e}" for e in range(8)]
            l += [f"v_cvt_pk_bf16_f32 v{o+e}, v{d+8+2*e}, v{d+8+2*e+1}" for e in range(4)]
            return l
        def stC(u):
            h, tb = units[u]; o = OF[u & 1]; i = 28 + h
            return [f"v_mfma_f32_32x32x16_bf16 v[{ACC2+16*(2*nb+tb)}:{ACC2+16*(2*nb+tb)+15}], {self.w2.frag(i,nb)}, v[{o}:{o+3}], v[{ACC2+16*(2*nb+tb)}:{ACC2+16*(2*nb+tb)+15}]" for nb in range(2)]
        for x in stA(0): A(x)
        A.stamp(2, "att")
        for x in issue(1):
            for y in x: A(y)
        for x in stA(1): A(x)
        for x in issue(2):
            for y in x: A(y)
        A("s_nop 7"); A("s_nop 3")
        for x in stB(0): A(x)
        xdone = False
        for u in range(16):
            c = stC(u)
            nb_ = stB(u+1) if u + 1 < 16 else []
            if u in (2, 6, 10, 13): A.stamp({2:3, 6:4, 10:5, 13:6}[u], "att")
            A("s_nop 1"); A(c[0])
            for x in nb_[:5]: A(x)
            if u + 2 < 16:
                for x in stA(u+2): A(x)
            iss = issue(2)
            for x in iss:
                for y in x: A(y)
            if not iss and not xdone:
                A.vm(f"buffer_load_dwordx4 v[{XR}:{XR+3}], v{VG}, s[{S_XX}:{S_XX+3}], s{S_T0} offen", id="x0")
                A.vm(f"buffer_load_dwordx4 v[{XR+4}:{XR+7}], v{VG}, s[{S_XX}:{S_XX+3}], s{S_T2} offen", id="x1")
                xdone = True
            for x in nb_[5:10]: A(x)
            A(c[1])
            for x in nb_[10:]: A(x)
            if TBM and 9 <= u <= 12:
                A(wr(0, 2*(u-9))); A(wr(0, 2*(u-9)+1))
        assert xdone and li["n"] == len(loads)
        A.stamp(7, "g2"); A.stamp(7, "att")
        A(f"v_lshrrev_b32 v{T+2}, 3, v{VTID}"); A(f"v_and_b32 v{T+3}, 7, v{VTID}")
        A(f"v_mul_u32_u24 v{T+6}, {RS}, v{T+2}"); A(f"v_lshlrev_b32 v{T+7}, 5, v{T+3}"); A(f"v_add_u32 v{T+6}, v{T+6}, v{T+7}")
        if not TBM:
            A("s_nop 7")
            for k in range(8): A(wr(0, k))
        A("s_nop 7"); A("s_nop 1")
        for k in range(8): A(wr(1, k))
        A("s_waitcnt lgkmcnt(0)"); A("s_barrier")
        A.stamp(8, "g2"); A.stamp(8, "att")
        for ps in range(2):
            b = 72 + 40*ps
            for w in range(4):
                A(f"ds_read_b128 v[{b+8*w}:{b+8*w+3}], v{T+6} offset:{w*WSZ + ps*32*RS}")
                A(f"ds_read_b128 v[{b+8*w+4}:{b+8*w+7}], v{T+6} offset:{w*WSZ + ps*32*RS + 16}")
        for ps in range(2):
            b = 72 + 40*ps
            A(f"s_waitcnt lgkmcnt({8 if ps == 0 else 0})")
            for e in range(0, 8, 2):
                A(f"v_pk_add_f32 v[{b+e}:{b+e+1}], v[{b+e}:{b+e+1}], v[{b+8+e}:{b+8+e+1}]")
                A(f"v_pk_add_f32 v[{b+16+e}:{b+16+e+1}], v[{b+16+e}:{b+16+e+1}], v[{b+24+e}:{b+24+e+1}]")
            for e in range(0, 8, 2):
                A(f"v_pk_add_f32 v[{b+e}:{b+e+1}], v[{b+e}:{b+e+1}], v[{b+16+e}:{b+16+e+1}]")
            A.wait(f"x{ps}")
            xb = XR + 4*ps
            for e in range(4):
                A(f"v_lshlrev_b32 v{T+8}, 16, v{xb+e}"); A(f"v_and_b32 v{T+9}, 0xffff0000, v{xb+e}")
                A(f"v_pk_add_f32 v[{b+2*e}:{b+2*e+1}], v[{b+2*e}:{b+2*e+1}], v[{T+8}:{T+9}]")
                A(f"v_cvt_pk_bf16_f32 v{b+32+e}, v{b+2*e}, v{b+2*e+1}")
            A.vm(f"buffer_store_dwordx4 v[{b+32}:{b+35}], v{VG}, s[{S_O}:{S_O+3}], s{S_T0 if ps == 0 else S_T2} offen")

def gen_k12():
    A = Prog()
    prologue_common(A)
    A(f"s_cmp_ge_u32 s{S_CP}, 2"); A("s_cbranch_scc1 K12_typeB")
    base_nvm = A.nvm; base_ids = dict(A.ids)
    for typ in ("A", "B"):
        if typ == "B":
            A.label("K12_typeB"); A.nvm = base_nvm; A.ids = dict(base_ids)
        g = G1(A, typ)
        g.prologue()
        if STAMP and SMODE == "wait":
            for c in (1,2,3,4,5,6,7): A(f"s_mov_b32 s{SB+2*c}, 0")
            A(f"s_memtime s[{SB+8}:{SB+9}]"); A("s_waitcnt lgkmcnt(0)")
        A.inloop = True
        g.loop()
        A.inloop = False
        if STAMP and SMODE == "wait":
            A(f"s_memtime s[{SB+10}:{SB+11}]"); A("s_waitcnt lgkmcnt(0)"); A(f"s_sub_u32 s{SB+8}, s{SB+10}, s{SB+8}")
        print(f"type {typ}: leftover W2 items after loop: {g.nleft}", file=sys.stderr)
        A.stamp(4); A.stamp(8, "loop"); A.stamp(8, "init"); A.stamp(5, "init")
        g.transition()
        if typ == "A": A("s_branch K12_g2")
    A.label("K12_g2")
    G2(A).body()
    if STAMP:
        A("s_waitcnt vmcnt(0) lgkmcnt(0)")
        A(f"{STAMP_INS} s[60:61]")
        A("s_waitcnt lgkmcnt(0)")
        A(f"s_lshl_b32 s{S_T0}, s2, 2"); A(f"s_add_u32 s{S_T0}, s{S_T0}, s{S_WV}"); A(f"s_lshl_b32 s{S_T0}, s{S_T0}, 6")
        A(f"s_add_u32 s{S_T0}, s{S_T0}, {WS_STAMP + 65536}")
        A(f"v_mov_b32 v{VT}, s{S_T0}")
        for i in range(9):
            A(f"v_mov_b32 v{VT+1}, s{SB+2*i}")
            A.vm(f"global_store_dword v{VT}, v{VT+1}, s[{S_WSP}:{S_WSP+1}] offset:{4*i}")
        A(f"v_mov_b32 v{VT+1}, s60")
        A.vm(f"global_store_dword v{VT}, v{VT+1}, s[{S_WSP}:{S_WSP+1}] offset:36")
    if STAMP and DBGSTAMP:
        A(f"s_cmp_eq_u32 s{S_WV}, 0"); A("s_cbranch_scc0 K12_end")
        A("s_mov_b64 exec, 1")
        for i in range(9):
            A(f"v_mov_b32 v{VT}, {4*(1+i)}"); A(f"v_mov_b32 v{VT+1}, s{SB+2*i}")
            A.vm(f"global_atomic_umax v{VT}, v{VT+1}, s[{S_DBG}:{S_DBG+1}]")
        A(f"v_mov_b32 v{VT}, 40"); A(f"v_mov_b32 v{VT+1}, s60"); A.vm(f"global_atomic_umax v{VT}, v{VT+1}, s[{S_DBG}:{S_DBG+1}]")
        A(f"s_not_b32 s{S_T0}, s{SB}"); A(f"v_mov_b32 v{VT}, 44"); A(f"v_mov_b32 v{VT+1}, s{S_T0}"); A.vm(f"global_atomic_umax v{VT}, v{VT+1}, s[{S_DBG}:{S_DBG+1}]")
    A.label("K12_end")
    return A.text()

def main(path):
    hdr = open("cdna_kernels/" + NAME + ".s.ref").read().split("; Override")[0]
    n = NAME + "_kernel"
    body = gen_k12()
    out = hdr + "; @launch grid=(256,1,1) block=(256,1,1) lds=163840\n"
    out += '.amdgcn_target "amdgcn-amd-amdhsa--gfx950"\n.text\n'
    out += f""".globl {n}
.p2align 8
.type {n},@function
{n}:
{body}
  s_endpgm
.section .rodata,"a"
.p2align 6
.amdhsa_kernel {n}
  .amdhsa_next_free_vgpr 512
  .amdhsa_next_free_sgpr 102
  .amdhsa_accum_offset 256
  .amdhsa_group_segment_fixed_size 0
  .amdhsa_kernarg_size 80
  .amdhsa_user_sgpr_count 2
  .amdhsa_user_sgpr_kernarg_segment_ptr 1
  .amdhsa_system_sgpr_workgroup_id_x 1
.end_amdhsa_kernel
"""
    open(path, "w").write(out)

if __name__ == "__main__":
    if "--stamp" in sys.argv:
        STAMP = True; sys.argv.remove("--stamp")
    for a in list(sys.argv):
        if a.startswith("--nin="): N_IN = int(a[6:]); sys.argv.remove(a)
        if a.startswith("--smode="): SMODE = a[8:]; sys.argv.remove(a)
        if a.startswith("--ahead="): G2_AHEAD = int(a[8:]); sys.argv.remove(a)
        if a.startswith("--chk="): G2_CHK = int(a[6:]); sys.argv.remove(a)
        if a.startswith("--pf="): G2_PF = int(a[5:]); sys.argv.remove(a)
        if a.startswith("--cpf2="): CODE_PF2 = int(a[7:]); sys.argv.remove(a)
        if a.startswith("--wsh="): WS_H = int(a[6:])*1048576; sys.argv.remove(a)
        if a == "--dbgstamp": DBGSTAMP = 1; sys.argv.remove(a)
        if a.startswith("--w2rot="): W2ROT = int(a[8:]); sys.argv.remove(a)
        if a.startswith("--w2start="): W2_START = int(a[10:]); sys.argv.remove(a)
        if a.startswith("--later="): LATE_R = int(a[8:]); sys.argv.remove(a)
        if a.startswith("--bed="): B_EARLY_D = int(a[6:]); sys.argv.remove(a)
        if a.startswith("--ftb="): FLAG_TB = int(a[6:]); sys.argv.remove(a)
        if a.startswith("--pt="): K_PT = int(a[5:]); sys.argv.remove(a)
        if a.startswith("--tt="): TLB_TOUCH = int(a[5:]); sys.argv.remove(a)
        if a.startswith("--hinit="):
            H_INIT = int(a[8:]); K_INITLD = 2*H_INIT - 4; K_CSAT = 2*H_INIT; H_CS = H_INIT + 3; sys.argv.remove(a)
        if a.startswith("--rot2="): ROT2 = int(a[7:]); sys.argv.remove(a)
        if a.startswith("--kvmask="): KVMASK = int(a[9:]); sys.argv.remove(a)
        if a.startswith("--wopf="): K_WOPF = int(a[7:]); sys.argv.remove(a)
        if a.startswith("--defer="): DEFER = int(a[8:]); sys.argv.remove(a)
        if a.startswith("--cpf1="): CODE_PF1 = int(a[7:]); sys.argv.remove(a)
        if a.startswith("--zlate="): ZLATE = int(a[8:]); sys.argv.remove(a)
        if a.startswith("--tbm="): TBM = int(a[6:]); sys.argv.remove(a)
        if a.startswith("--gate="): GATE = int(a[7:]); sys.argv.remove(a)
        if a.startswith("--tt3="): TT3 = int(a[6:]); sys.argv.remove(a)
        if a.startswith("--phid="): PHI_D = int(a[7:]); sys.argv.remove(a)
        if a.startswith("--x1e="): X1_EARLY = int(a[6:]); sys.argv.remove(a)
        if a.startswith("--rot="): ROT = int(a[6:]); sys.argv.remove(a)
        if a.startswith("--cap="): CAP = int(a[6:]); sys.argv.remove(a)
    if "--cyc" in sys.argv:
        STAMP = True; STAMP_INS = "s_memtime"; sys.argv.remove("--cyc")
    main(sys.argv[1] if len(sys.argv) > 1 else "cdna_kernels/" + NAME + ".s")
```

```python
import sys

NAME = "parallel_sum__linear_attn_block__glu_gated_bilinear__prompt"
WS_M, WS_R, WS_KV, KV_HEAD = 0, 8192, 32768, 1152
WS_FLAG = WS_KV + 36864
WS_KVCNT = WS_FLAG + 8192
WS_CS = WS_KVCNT + 2048
WS_STCNT = WS_CS + 20480
WS_CSCNT = WS_STCNT + 2048
NZERO = 18
assert WS_CSCNT + 2048 <= WS_KV + NZERO*4096 <= 131072
DBG_INIT = 0
CS_TMP = 140
A_ONES = 220
VC1, VC2, VC3 = 251, 252, 253
WS_H = 131072
H_BYTES = 32*4*36*2048
POLL_MAX = 200000
STAMP = False
STAMP_INS = 's_memrealtime'
WS_STAMP = 1 << 24
SB = 84
CORR_AT = 28
N_IN = 28
CAP = 5
SMODE = 'main'
ROT = 8
PHI_D = 0
OUT_TOUCH = 0
PQ_LATE = 0
TT3 = 0
GATE = 0
TBM = 0
CODE_PF1 = 1
ZLATE = 0
H_Z = 2
DEFER = 0
S_SIG = 6
K_WOPF = 0
ROT2 = 1
KVMASK = 0
TLB_TOUCH = 0
K_PT = 0
FLAG_TB = 1
FLAG_TB_A = 0
B_EARLY_D = 1
LATE_R = 1
X1_EARLY = 1
W2ROT = 1
DBGSTAMP = 0
CODE_PF2 = 0
G2_AHEAD = 12; G2_CHK = 20; G2_PF = 0
K_INITLD = 6; H_INIT = 5; K_CSAT = 10; H_CS = 8; K_CNTLD = 18; H_CNT = 11; K_RANK = 25
CODE_KB = 48

class Prog:
    def __init__(self): self.l = []; self.nvm = 0; self.ids = {}; self.pos = {}; self.inloop = False
    def __call__(self, s):
        if s is None: return
        if isinstance(s, tuple):
            if s[0] == "vm":
                self.l.append("  " + s[2]); self.nvm += 1
                if s[1] is not None: self.ids[s[1]] = self.nvm; self.pos[s[1]] = len(self.l)
            elif s[0] == "stamp":
                self.stamp(s[1], s[2])
            elif s[0] == "vmu":
                self.l.append("  " + s[2]); self.ids[s[1]] = self.nvm
            elif s[0] == "wait":
                last = max(self.ids[i] for i in s[1])
                n = self.nvm - last
                assert n <= 63, (s, n)
                if STAMP and SMODE == "wait" and self.inloop:
                    cat = 2 if s[1][0].startswith("w2_") else (1 if s[1][0].startswith("W") else 3)
                    self.l.append(f"  s_memtime s[98:99]"); self.l.append("  s_waitcnt lgkmcnt(0)")
                    self.l.append(f"  s_waitcnt vmcnt({n})")
                    self.l.append(f"  s_memtime s[100:101]"); self.l.append("  s_waitcnt lgkmcnt(0)")
                    self.l.append(f"  s_sub_u32 s100, s100, s98"); self.l.append(f"  s_add_u32 s{SB+2*cat}, s{SB+2*cat}, s100")
                    return
                self.l.append(f"  s_waitcnt vmcnt({n})" + (" " + s[2] if len(s) > 2 and s[2] else ""))
            else: raise ValueError(s)
        elif s.endswith(":"): self.l.append(s)
        elif s.startswith("!"):
            self.l.append("  " + s[1:])
        else:
            assert not ("buffer_" in s or "global_" in s), s
            self.l.append("  " + s)
    def vm(self, text, id=None): self(("vm", id, text))
    def wait(self, *ids): self(("wait", list(ids)))
    def label(self, s): self.l.append(s + ":")
    def text(self): return "\n".join(self.l)
    def stamp(self, i, mode="main"):
        if STAMP and (mode == SMODE or i == 0): self.l.append(f"  {STAMP_INS} s[{SB+2*i}:{SB+2*i+1}]")
    def reset_vm(self):
        self.ids = {}

def vr(b, n=1): return f"v{b}" if n == 1 else f"v[{b}:{b+n-1}]"
def ar(b, n=1): return f"a{b}" if n == 1 else f"a[{b}:{b+n-1}]"
def srd(A, d, lo, hi, size):
    A(f"s_mov_b32 s{d}, s{lo}"); A(f"s_and_b32 s{d+1}, s{hi}, 0xffff"); A(f"s_mov_b32 s{d+2}, {size}"); A(f"s_mov_b32 s{d+3}, 0x20000")
def srd_off(A, d, lo, hi, off, size):
    A(f"s_add_u32 s{d}, s{lo}, {off}"); A(f"s_addc_u32 s{d+1}, s{hi}, 0"); A(f"s_and_b32 s{d+1}, s{d+1}, 0xffff")
    if isinstance(off, int): A(f"s_mov_b32 s{d+2}, {size - off}")
    else: A(f"s_sub_u32 s{d+2}, {size}, {off}")
    A(f"s_mov_b32 s{d+3}, 0x20000")

X_BASE = 0; X_SLOT = 16384
W_BASE = 49152; W_SLOT = 20480; W_NS = 3
W2IN = W_BASE + W_NS*W_SLOT
NSL = 6
LDS_R = W2IN + 4*NSL*2048
LDS_KV = 0
W2_START = 1
W2POST = 69632; NPOST = 11
DLAG = 5

ACC = 0; WF = 160; XF = 200; TRA = 216; XA = 221; VOW = 225; VOX = 230
VR = 234; VLANE = 236; VL16 = 237; VTID = 238; VDM = 239
VT = 240
VTR = 254; VTR1 = 255
AMF = 228; ACF = 236
def acc(blk, tb): return ACC + (blk*2+tb)*16

S_X = 4; S_W = 8; S_H = 28; S_WSP = 32
S_WV = 34; S_WM = 35; S_WN = 36; S_T = 37; S_IDX = 38
S_KW = 39; S_KH = 40; S_R30 = 41; S_R35 = 42; S_RH = 43; S_KX = 44; S_W1K = 45; S_W4K = 46; S_XB = 47
S_WD = 48; S_LB = 52; S_W2O = 53
S_W2B = 74; S_W2R = 75; S_W2T = 76; S_RHO = 77; S_HR = 75; S_HBASE = 74
S_T0 = 54; S_T1 = 55; S_T2 = 56; S_T3 = 57; S_T4 = 58; S_XO = 59
S_E0 = 60; S_E2 = 62
S_P = 64
P_X, P_WQ, P_WO, P_G, P_U, P_D, P_O = 64, 66, 68, 72, 74, 76, 78
S_DBG = 72; S_KSC = 66; S_CG = 67
S_HB = 80; S_I1 = 81; S_CP = 82; S_TAU = 83; S_J = 70; S_HO = 71
S_WO = 8; S_O = 12; S_XX = 16
S_C6 = 20

def w2row(i):
    if i < 16: return ("D", 256, 16*i)
    if i < 24: return ("D", 128, 1024 + 16*(i-16))
    if i < 28: return ("D", 64, 1536 + 16*(i-24))
    return ("O", 128, 16*(i-28))

class W2:
    def __init__(self, A, vdm2=None): self.A = A; self.vdm2 = vdm2
    def frag(self, ks, nb, W2V=192):
        f = ks*2 + nb
        return ar(4*f, 4) if f < 64 else vr(W2V + 4*(f-64), 4)
    def half(self, ks, nb, h, W2V=192):
        f = ks*2 + nb
        return ar(4*f + 2*h, 2) if f < 64 else vr(W2V + 4*(f-64) + 2*h, 2)
    def slot_off(self, i):
        return (i % NSL)*2048 if i < N_IN else ((i - N_IN) % NPOST)*2048
    def D(self, i):
        o = []
        if i < 28: s, so = S_WD, S_W2R
        else:
            s, so = S_WO, S_W2O
            o.append([f"s_mov_b32 s{S_W2O}, {16*(i-28)*1024}"])
        d0 = ("dma", f"s_add_u32 m0, s{S_LB}, {self.slot_off(i)}", ("vm", f"w2_{i}_0", f"buffer_load_dwordx4 v{VDM}, s[{s}:{s+3}], s{so} offen lds"))
        o.append(d0)
        o.append(("dma", f"s_add_u32 m0, s{S_LB}, {self.slot_off(i) + 1024}", ("vm", f"w2_{i}_1", f"buffer_load_dwordx4 v{self.vdm2}, s[{s}:{s+3}], s{so} offen lds")))
        if i < 27:
            o.append([f"s_add_u32 s{S_W2R}, s{S_W2R}, 16384", f"s_cmp_eq_u32 s{S_W2R}, {28*16384}", f"s_cselect_b32 s{S_W2R}, 0, s{S_W2R}"])
        return o
    def R(self, i):
        o = self.slot_off(i)
        r = [[("wait", [f"w2_{i}_1"])]]
        for nb in range(2):
            va = VTR if nb == 0 else VTR1
            r.append([f"ds_read_b64_tr_b16 {self.half(i, nb, 0)}, v{va} offset:{o}", f"ds_read_b64_tr_b16 {self.half(i, nb, 1)}, v{va} offset:{o+1024}"])
        return r

def emit_items(A, items):
    for it in items:
        if isinstance(it, tuple) and it[0] == "dma":
            A(it[1]); A("s_nop 0"); A(it[2])
        else:
            for s in it: A(s)

def prologue_common(A):
    A("s_cmp_ge_u32 s2, 256"); A("s_cbranch_scc1 K12_end")
    A.stamp(0)
    A(f"s_load_dwordx16 s[{S_P}:{S_P+15}], s[0:1], 0")
    A(f"s_load_dwordx2 s[{S_WSP}:{S_WSP+1}], s[0:1], 72")
    A(f"s_getpc_b64 s[{S_E2}:{S_E2+1}]")
    A("K12_pc:")
    A(f"v_and_b32 v{VLANE}, 63, v0")
    A(f"v_lshrrev_b32 v{VT}, 6, v0")
    A(f"v_mov_b32 v{VTID}, v0")
    A(f"v_lshlrev_b32 v{VL16}, 4, v{VLANE}")
    if TLB_TOUCH:
        A(f"v_lshlrev_b32 v{WF+28}, 3, v{VLANE}")
        A("s_mov_b64 exec, 0x1ff")
        A.vm(f"global_load_dwordx2 v[{WF+30}:{WF+31}], v{WF+28}, s[0:1]", id="kptr")
        A("s_mov_b64 exec, -1")
    A(f"v_readfirstlane_b32 s{S_WV}, v{VT}")
    A(f"s_and_b32 s{S_T0}, s2, 7"); A(f"s_lshr_b32 s{S_T1}, s2, 3")
    A(f"s_lshl_b32 s{S_T2}, s{S_T1}, 2"); A(f"s_add_u32 s{S_T2}, s{S_T2}, s{S_WV}"); A(f"s_min_u32 s{S_T2}, s{S_T2}, ((K12_end-K12_pc)>>10)-1"); A(f"s_lshl_b32 s{S_T2}, s{S_T2}, 10")
    A(f"v_add_u32 v{VT+4}, s{S_T2}, v{VL16}")
    if CODE_PF1: A.vm(f"global_load_dwordx4 v[{WF+36}:{WF+39}], v{VT+4}, s[{S_E2}:{S_E2+1}]")
    A(f"s_and_b32 s{S_T2}, s{S_T1}, 7"); A(f"s_lshr_b32 s{S_CP}, s{S_T1}, 3")
    A(f"s_lshr_b32 s{S_T}, s{S_T0}, 2"); A(f"s_lshl_b32 s{S_T}, s{S_T}, 3"); A(f"s_add_u32 s{S_T}, s{S_T}, s{S_T2}")
    A(f"s_and_b32 s{S_IDX}, s{S_T0}, 3"); A(f"s_lshl_b32 s{S_IDX}, s{S_IDX}, 1")
    A(f"s_and_b32 s{S_T3}, s{S_CP}, 1"); A(f"s_add_u32 s{S_IDX}, s{S_IDX}, s{S_T3}")
    A(f"s_and_b32 s{S_TAU}, s{S_T1}, 3"); A(f"s_lshl_b32 s{S_T3}, s{S_T0}, 2"); A(f"s_add_u32 s{S_TAU}, s{S_TAU}, s{S_T3}")
    A(f"s_lshr_b32 s{S_T4}, s{S_T1}, 2")
    A(f"s_add_u32 s{S_T0}, s{S_CP}, s{S_T2}"); A(f"s_and_b32 s{S_T0}, s{S_T0}, 3"); A(f"s_lshl_b32 s{S_T0}, s{S_T0}, 1")
    A(f"s_lshr_b32 s{S_T1}, s{S_T2}, 2"); A(f"s_add_u32 s{S_T0}, s{S_T0}, s{S_T1}")
    if ROT2: A(f"s_add_u32 s{S_T0}, s{S_CP}, s{S_T2}"); A(f"s_and_b32 s{S_T0}, s{S_T0}, 7")
    A(f"s_lshl_b32 s{S_KW}, s{S_T0}, 6")
    A(f"s_lshr_b32 s{S_WM}, s{S_WV}, 1"); A(f"s_and_b32 s{S_WN}, s{S_WV}, 1")
    t0, t1, t3, t4 = VT, VT+1, VT+3, VT+4
    A(f"v_lshrrev_b32 v{t0}, 3, v{VLANE}"); A(f"v_and_b32 v{t1}, 7, v{VLANE}")
    A(f"v_lshrrev_b32 v{t3}, 4, v{VLANE}"); A(f"v_xor_b32 v{t3}, v{t1}, v{t3}"); A(f"v_lshlrev_b32 v{t3}, 4, v{t3}")
    A(f"v_lshlrev_b32 v{t4}, 10, v{t0}"); A(f"v_add_u32 v{VOX}, v{t3}, v{t4}")
    A(f"v_xor_b32 v{VOX+1}, 64, v{VOX}"); A(f"v_add_u32 v{VOX+1}, {8*1024}, v{VOX+1}")
    A(f"v_add_u32 v{VOX+2}, {16*1024}, v{VOX}"); A(f"v_add_u32 v{VOX+3}, {16*1024}, v{VOX+1}")
    A(f"s_lshl_b32 s{S_XB}, s{S_T}, 7"); A(f"s_lshl_b32 s{S_T0}, s{S_WV}, 5"); A(f"s_add_u32 s{S_XB}, s{S_XB}, s{S_T0}"); A(f"s_lshl_b32 s{S_XB}, s{S_XB}, 10")
    A(f"s_lshl_b32 s{S_KX}, s{S_KW}, 1")
    A(f"s_and_b32 s{S_T0}, s{S_WV}, 1"); A(f"s_lshl_b32 s{S_T0}, s{S_T0}, 4"); A(f"s_add_u32 s{S_KH}, s{S_KW}, s{S_T0}")
    A(f"s_lshl_b32 s{S_T0}, s{S_WV}, 3"); A(f"s_add_u32 s{S_KW}, s{S_KW}, s{S_T0}")
    A(f"s_lshl_b32 s{S_W1K}, s{S_WV}, 10"); A(f"s_lshl_b32 s{S_W4K}, s{S_WV}, 12")
    A(f"s_lshr_b32 s{S_T0}, s{S_CP}, 1"); A(f"s_lshl_b32 s{S_T0}, s{S_T0}, 3"); A(f"s_add_u32 s{S_T3}, s{S_T0}, s{S_IDX}")
    A(f"s_lshl_b32 s{S_T0}, s{S_T}, 7"); A(f"s_lshl_b32 s{S_T1}, s{S_T3}, 3"); A(f"s_add_u32 s{S_T0}, s{S_T0}, s{S_T1}"); A(f"s_lshl_b32 s{S_T1}, s{S_WV}, 1"); A(f"s_add_u32 s{S_T2}, s{S_T0}, s{S_T1}")
    A(f"s_lshl_b32 s{S_T0}, s{S_T2}, 10"); A(f"v_add_u32 v{VT+5}, s{S_T0}, v{VL16}")
    if TLB_TOUCH:
        A.wait("kptr")
        A("s_mov_b64 exec, 0x1ff")
        A.vm(f"global_load_dword v{WF+29}, v[{WF+30}:{WF+31}], off offset:128")
        A("s_mov_b64 exec, -1")
    A.stamp(1, "pro")
    if GATE:
        A(f"s_load_dwordx2 s[{S_E0}:{S_E0+1}], s[0:1], 64")
    A("s_waitcnt lgkmcnt(0)")
    if GATE:
        A(f"s_cmp_eq_u32 s{S_WV}, 0"); A("s_cbranch_scc0 K12_gate_w")
        A(f"v_mov_b32 v{VT+8}, 192"); A(f"v_mov_b32 v{VT+9}, 1"); A("s_mov_b64 exec, 1")
        A(f"!global_atomic_add v{VT+8}, v{VT+9}, s[{S_E0}:{S_E0+1}] sc1")
        A(f"s_mov_b32 s{S_T1+0}, 0") if False else None
        A(f"s_mov_b32 s3, 0")
        A("K12_gate_l:")
        A(f"!global_load_dword v{VT+9}, v{VT+8}, s[{S_E0}:{S_E0+1}] sc1"); A("s_waitcnt vmcnt(0)")
        A(f"v_readfirstlane_b32 s{S_E2}, v{VT+9}"); A("s_add_u32 s3, s3, 1"); A(f"s_cmp_ge_u32 s3, {POLL_MAX}"); A("s_cbranch_scc1 K12_gate_x")
        A(f"s_cmp_ge_u32 s{S_E2}, 256"); A("s_cbranch_scc1 K12_gate_x"); A(f"s_sleep {GATE}"); A("s_branch K12_gate_l")
        A("K12_gate_x:"); A("s_mov_b64 exec, -1")
        A("K12_gate_w:"); A("s_barrier")
    if TLB_TOUCH:
        A(f"v_mov_b32 v{WF+28}, 24576"); A("s_mov_b64 exec, 1")
        A.vm(f"global_load_dword v{WF+32}, v{WF+28}, s[{S_WSP}:{S_WSP+1}]")
        A("s_mov_b64 exec, -1")
    A.stamp(2, "pro")
    if TT3:
        lo, hi = WF+30, WF+31
        A(f"v_mov_b32 v{lo}, s{P_WQ}"); A(f"v_mov_b32 v{hi}, s{P_WQ+1}")
        for ln, p in ((1, P_G), (2, P_U)):
            A(f"v_writelane_b32 v{lo}, s{p}, {ln}"); A(f"v_writelane_b32 v{hi}, s{p+1}, {ln}")
        A("s_mov_b64 exec, 7")
        A.vm(f"global_load_dword v{WF+29}, v[{lo}:{hi}], off")
        A("s_mov_b64 exec, -1")
    A(f"s_mov_b32 s{S_J}, s{S_T4}")
    if not ZLATE:
        A(f"s_cmp_ge_u32 s2, {NZERO}"); A("s_cbranch_scc1 K12_nozero")
        A(f"s_lshl_b32 s{S_T0}, s2, 12"); A(f"s_add_u32 s{S_T0}, s{S_T0}, {WS_KV}")
        A(f"v_lshlrev_b32 v{VT+6}, 4, v{VTID}"); A(f"v_add_u32 v{VT+6}, s{S_T0}, v{VT+6}")
        for i in range(4): A(f"v_mov_b32 v{VT+8+i}, 0")
        A(f"!global_store_dwordx4 v{VT+6}, v[{VT+8}:{VT+11}], s[{S_WSP}:{S_WSP+1}] sc1")
        A("K12_nozero:")
    SX = WF + 20
    A.vm(f"global_load_dwordx4 v[{SX}:{SX+3}], v{VT+5}, s[{P_X}:{P_X+1}]")
    A.vm(f"global_load_dwordx4 v[{SX+4}:{SX+7}], v{VT+5}, s[{P_X}:{P_X+1}] offset:1024", id="strow")
    A(f"s_lshl_b32 s{S_HB}, s{S_T2}, 2")
    A(f"s_mov_b32 s{S_I1}, s{S_T3}")
    srd(A, S_X, P_X, P_X+1, 2048*1024)

class G1:
    def __init__(self, A, typ):
        self.A = A; self.typ = typ; self.w2 = W2(A, 227 if typ == 'A' else 226)
        self.kinds = ["gu","gu","gu","gu","q"] if typ == "A" else ["k","v","gu","gu","guh"]
        if typ == "A": self.strides = [3584,3584,3584,3584,3072]; self.swz = ["g","u","g","u","q"]
        else: self.strides = [3072,3072,3584,3584,3584]; self.swz = ["q","q","g","u","h"]
    def vow(self, rho):
        key = (self.swz[rho], self.strides[rho])
        for r in range(rho + 1):
            if (self.swz[r], self.strides[r]) == key: return VOW + r
    def Wg(self, h):
        o = []
        if h > 0:
            o.append([f"s_add_u32 s{S_KW}, s{S_KW}, 32", f"s_and_b32 s{S_KW}, s{S_KW}, 511"])
            if self.typ == "B": o.append([f"s_add_u32 s{S_KH}, s{S_KH}, 32", f"s_and_b32 s{S_KH}, s{S_KH}, 511"])
        o.append([f"s_mul_i32 s{S_R30}, s{S_KW}, 3072", f"s_mul_i32 s{S_R35}, s{S_KW}, 3584"])
        if self.typ == "B": o.append([f"s_mul_i32 s{S_RH}, s{S_KH}, 3584"])
        for rho in range(5):
            so = S_RH if self.swz[rho] == "h" else (S_R30 if self.strides[rho] == 3072 else S_R35)
            o.append(("dma", f"s_add_u32 m0, s{S_W1K}, {W_BASE + (h % W_NS)*W_SLOT + rho*4096}",
                      ("vm", f"W{h}_{rho}", f"buffer_load_dwordx4 v{self.vow(rho)}, s[{S_W+4*rho}:{S_W+4*rho+3}], s{so} offen lds")))
        return o
    def Xg(self, sg):
        o = []
        if sg > 0: o.append([f"s_add_u32 s{S_KX}, s{S_KX}, 128", f"s_and_b32 s{S_KX}, s{S_KX}, 1023"])
        o.append([f"s_add_u32 s{S_XO}, s{S_XB}, s{S_KX}"])
        for j in range(4):
            o.append(("dma", f"s_add_u32 m0, s{S_W4K}, {X_BASE + (sg % 3)*X_SLOT + j*1024}",
                      ("vm", f"X{sg}_{j}", f"buffer_load_dwordx4 v{VOX+j}, s[{S_X}:{S_X+3}], s{S_XO} offen lds")))
        return o
    def reads(self, s):
        par = s & 1; kk = s & 3; sg = s >> 2; h = s >> 1; second = s & 1
        xo = (sg % 3)*X_SLOT
        o = [f"ds_read_b128 v[{XF+8*par}:{XF+8*par+3}], v{XA+kk} offset:{xo}", f"ds_read_b128 v[{XF+8*par+4}:{XF+8*par+7}], v{XA+kk} offset:{xo+4096}"]
        for blk, kd in enumerate(self.kinds):
            b = WF + 20*par + 4*blk
            if kd == "guh": o1, o2 = (1024 if second else 0), 256
            else: o1, o2 = (2048 if second else 0), 512
            o1 += (h % W_NS)*W_SLOT
            o.append(f"ds_read_b64_tr_b16 v[{b}:{b+1}], v{TRA+blk} offset:{o1}")
            o.append(f"ds_read_b64_tr_b16 v[{b+2}:{b+3}], v{TRA+blk} offset:{o1+o2}")
        return o
    def mfmas(self, s, order=None):
        par = s & 1; o = []
        for blk in (order or range(5)):
            kd = self.kinds[blk]
            wf = f"v[{WF+20*par+4*blk}:{WF+20*par+4*blk+3}]"
            for tb in range(2):
                xf = f"v[{XF+8*par+4*tb}:{XF+8*par+4*tb+3}]"; a = acc(blk, tb)
                c = "0" if s == 0 else f"v[{a}:{a+15}]"
                if kd in ("k", "v"): o.append(f"v_mfma_f32_32x32x16_bf16 v[{a}:{a+15}], {xf}, {wf}, {c}")
                else: o.append(f"v_mfma_f32_32x32x16_bf16 v[{a}:{a+15}], {wf}, {xf}, {c}")
        return o
    def corr(self):
        o = []
        for blk in range(5):
            for tb in range(2):
                a = acc(blk, tb); cf = ar(ACF+4*blk, 4); mf = ar(AMF+4*tb, 4)
                if self.kinds[blk] in ("k", "v"): o.append(f"v_mfma_f32_32x32x16_bf16 v[{a}:{a+15}], {mf}, {cf}, v[{a}:{a+15}]")
                else: o.append(f"v_mfma_f32_32x32x16_bf16 v[{a}:{a+15}], {cf}, {mf}, v[{a}:{a+15}]")
        return o

    def prologue(self):
        A, typ, kinds = self.A, self.typ, self.kinds
        SZQ, SZG = 512*3072, 512*3584
        A.stamp(3, "pro")
        emit_items(A, self.Xg(0))
        A.stamp(4, "pro")
        if typ == "A":
            A(f"s_lshr_b32 s{S_T0}, s{S_IDX}, 1"); A(f"s_mul_i32 s{S_T0}, s{S_T0}, 7"); A(f"s_and_b32 s{S_T1}, s{S_IDX}, 1"); A(f"s_lshl_b32 s{S_T1}, s{S_T1}, 1")
            A(f"s_add_u32 s{S_T0}, s{S_T0}, s{S_T1}"); A(f"s_lshl_b32 s{S_T0}, s{S_T0}, 7")
            srd_off(A, S_W+0, P_G, P_G+1, f"s{S_T0}", SZG); srd_off(A, S_W+4, P_U, P_U+1, f"s{S_T0}", SZG)
            A(f"s_add_u32 s{S_T0}, s{S_T0}, 128")
            srd_off(A, S_W+8, P_G, P_G+1, f"s{S_T0}", SZG); srd_off(A, S_W+12, P_U, P_U+1, f"s{S_T0}", SZG)
            A(f"s_lshl_b32 s{S_T0}, s{S_IDX}, 7")
            srd_off(A, S_W+16, P_WQ, P_WQ+1, f"s{S_T0}", SZQ)
        else:
            A(f"s_lshl_b32 s{S_T0}, s{S_IDX}, 7"); A(f"s_add_u32 s{S_T0}, s{S_T0}, 1024")
            srd_off(A, S_W+0, P_WQ, P_WQ+1, f"s{S_T0}", SZQ)
            A(f"s_add_u32 s{S_T0}, s{S_T0}, 1024")
            srd_off(A, S_W+4, P_WQ, P_WQ+1, f"s{S_T0}", SZQ)
            A(f"s_lshr_b32 s{S_T0}, s{S_IDX}, 1"); A(f"s_mul_i32 s{S_T0}, s{S_T0}, 7"); A(f"s_and_b32 s{S_T1}, s{S_IDX}, 1")
            A(f"s_add_u32 s{S_T0}, s{S_T0}, s{S_T1}"); A(f"s_add_u32 s{S_T0}, s{S_T0}, 4"); A(f"s_lshl_b32 s{S_T0}, s{S_T0}, 7")
            srd_off(A, S_W+8, P_G, P_G+1, f"s{S_T0}", SZG); srd_off(A, S_W+12, P_U, P_U+1, f"s{S_T0}", SZG)
            A(f"s_lshr_b32 s{S_T0}, s{S_IDX}, 1"); A(f"s_mul_i32 s{S_T0}, s{S_T0}, 7"); A(f"s_add_u32 s{S_T0}, s{S_T0}, 6"); A(f"s_lshl_b32 s{S_T0}, s{S_T0}, 7")
            A(f"s_and_b32 s{S_T1}, s{S_IDX}, 1"); A(f"s_lshl_b32 s{S_T1}, s{S_T1}, 6"); A(f"s_add_u32 s{S_T0}, s{S_T0}, s{S_T1}")
            A(f"s_cmp_ge_u32 s{S_WV}, 2")
            A(f"s_cselect_b32 s{S_T2}, s{P_U}, s{P_G}"); A(f"s_cselect_b32 s{S_T3}, s{P_U+1}, s{P_G+1}")
            srd_off(A, S_W+16, S_T2, S_T3, f"s{S_T0}", SZG)
        t0, t1, t2, t3, t4 = VT, VT+1, VT+2, VT+3, VT+4
        A(f"v_lshrrev_b32 v{t0}, 3, v{VLANE}"); A(f"v_and_b32 v{t1}, 7, v{VLANE}")
        A(f"v_lshrrev_b32 v{t2}, 4, v{VLANE}"); A(f"v_and_b32 v{t2}, 1, v{t2}")
        done = {}
        for rho in range(5):
            key = (self.swz[rho], self.strides[rho])
            if key in done: continue
            done[key] = rho
            if self.swz[rho] == "h":
                A(f"v_lshrrev_b32 v{t3}, 2, v{VLANE}"); A(f"v_and_b32 v{t4}, 3, v{VLANE}")
                A(f"s_lshr_b32 s{S_T0}, s{S_WV}, 1"); A(f"s_lshl_b32 s{S_T0}, s{S_T0}, 1")
                A(f"v_xor_b32 v{t4}, s{S_T0}, v{t4}")
                A(f"v_mul_u32_u24 v{t3}, 3584, v{t3}"); A(f"v_lshlrev_b32 v{t4}, 4, v{t4}"); A(f"v_add_u32 v{VOW+rho}, v{t3}, v{t4}")
            else:
                if self.swz[rho] == "q": A(f"v_lshlrev_b32 v{t3}, 2, v{t2}")
                else:
                    A(f"v_lshlrev_b32 v{t3}, 1, v{t2}")
                    if self.swz[rho] == "u": A(f"v_or_b32 v{t3}, 4, v{t3}")
                A(f"v_xor_b32 v{t3}, v{t1}, v{t3}"); A(f"v_lshlrev_b32 v{t3}, 4, v{t3}")
                A(f"v_mul_u32_u24 v{t4}, {self.strides[rho]}, v{t0}"); A(f"v_add_u32 v{VOW+rho}, v{t3}, v{t4}")
        A.stamp(5, "pro")
        emit_items(A, self.Wg(0)); A.stamp(6, "pro"); emit_items(A, self.Wg(1))
        A.stamp(1); A.stamp(7, "pro")
        A(f"v_lshlrev_b32 v{t3}, 2, v{t2}"); A(f"v_xor_b32 v{t3}, v{t1}, v{t3}"); A(f"v_lshlrev_b32 v{t3}, 4, v{t3}")
        A(f"v_lshlrev_b32 v{t4}, 10, v{t0}"); A(f"v_add_u32 v{VDM}, v{t3}, v{t4}")
        A(f"v_add_u32 v{self.w2.vdm2}, 8192, v{VDM}")
        A(f"s_lshl_b32 s{S_T0}, s{S_J}, 7"); A(f"s_mul_i32 s{S_T1}, s{S_WV}, {448*1024}"); A(f"s_add_u32 s{S_T0}, s{S_T0}, s{S_T1}")
        srd_off(A, S_WD, P_D, P_D+1, f"s{S_T0}", 1792*1024)
        A(f"s_mul_i32 s{S_LB}, s{S_WV}, {NSL*2048}"); A(f"s_add_u32 s{S_LB}, s{S_LB}, {W2IN}")
        A(f"s_lshr_b32 s{S_T0}, s2, 3"); A(f"s_and_b32 s{S_T1}, s{S_T0}, 3"); A(f"s_mul_i32 s{S_T1}, s{S_T1}, 7"); A(f"s_lshr_b32 s{S_T0}, s{S_T0}, 2"); A(f"s_mul_i32 s{S_T0}, s{S_T0}, 3")
        A(f"s_add_u32 s{S_RHO}, s{S_T0}, s{S_T1}"); A(f"s_cmp_ge_u32 s{S_RHO}, 28"); A(f"s_cselect_b32 s{S_T0}, 28, 0"); A(f"s_sub_u32 s{S_RHO}, s{S_RHO}, s{S_T0}")
        if not W2ROT: A(f"s_mov_b32 s{S_RHO}, 0")
        A(f"s_lshl_b32 s{S_W2R}, s{S_RHO}, 14")
        A(f"s_load_dwordx2 s[{S_DBG}:{S_DBG+1}], s[0:1], 64")
        A(f"s_mov_b32 s{S_CG}, s{S_I1}")
        A(f"s_lshr_b32 s{S_T0}, s{S_T}, 3"); A(f"s_lshl_b32 s{S_T0}, s{S_T0}, 1"); A(f"s_add_u32 s{S_KSC}, s{S_T0}, s{S_WM}")
        A(f"v_and_b32 v{t0}, 31, v{VLANE}")
        A(f"v_and_b32 v{t1}, 15, v{t0}"); A(f"v_lshrrev_b32 v{t2}, 4, v{t0}")
        def cs_addr(dst, soff_code, lane_kind):
            soff_code()
            if lane_kind == "gu":
                A(f"v_mul_u32_u24 v{t3}, 1792, v{t2}"); A(f"v_add_u32 v{t3}, v{t3}, v{t1}")
            elif lane_kind == "kv":
                A(f"v_lshlrev_b32 v{t3}, 9, v{t2}"); A(f"v_add_u32 v{t3}, v{t3}, v{t1}")
            else: A(f"v_mov_b32 v{t3}, v{t0}")
            A(f"v_add_u32 v{t3}, s{S_T0}, v{t3}"); A(f"v_lshlrev_b32 v{t3}, 2, v{t3}"); A(f"v_add_u32 v{dst}, {WS_CS}, v{t3}")
        if typ == "A":
            cs_addr(VC1, lambda: (A(f"s_lshr_b32 s{S_T0}, s{S_IDX}, 1"), A(f"s_mul_i32 s{S_T0}, s{S_T0}, 7"), A(f"s_and_b32 s{S_T1}, s{S_IDX}, 1"), A(f"s_lshl_b32 s{S_T1}, s{S_T1}, 1"), A(f"s_add_u32 s{S_T0}, s{S_T0}, s{S_T1}"),
                                  A(f"s_add_u32 s{S_T0}, s{S_T0}, s{S_WN}"), A(f"s_lshl_b32 s{S_T0}, s{S_T0}, 6"), A(f"s_add_u32 s{S_T0}, s{S_T0}, 1536")), "gu")
            cs_addr(VC2, lambda: (A(f"s_lshl_b32 s{S_T0}, s{S_IDX}, 6"), A(f"s_lshl_b32 s{S_T1}, s{S_WN}, 5"), A(f"s_add_u32 s{S_T0}, s{S_T0}, s{S_T1}")), "q")
            self.csa = [(VC1, 0), (VC1, 64), (VC1, 128), (VC1, 192), (VC2, 0)]
        else:
            cs_addr(VC2, lambda: (A(f"s_lshl_b32 s{S_T0}, s{S_IDX}, 6"), A(f"s_lshl_b32 s{S_T1}, s{S_WN}, 5"), A(f"s_add_u32 s{S_T0}, s{S_T0}, s{S_T1}"), A(f"s_add_u32 s{S_T0}, s{S_T0}, 512")), "q")
            cs_addr(VC1, lambda: (A(f"s_lshr_b32 s{S_T0}, s{S_IDX}, 1"), A(f"s_mul_i32 s{S_T0}, s{S_T0}, 7"), A(f"s_and_b32 s{S_T1}, s{S_IDX}, 1"), A(f"s_add_u32 s{S_T0}, s{S_T0}, s{S_T1}"), A(f"s_add_u32 s{S_T0}, s{S_T0}, 4"), A(f"s_lshl_b32 s{S_T0}, s{S_T0}, 6"), A(f"s_lshl_b32 s{S_T1}, s{S_WN}, 5"), A(f"s_add_u32 s{S_T0}, s{S_T0}, s{S_T1}"), A(f"s_add_u32 s{S_T0}, s{S_T0}, 1536")), "gu")
            cs_addr(VC3, lambda: (A(f"s_lshr_b32 s{S_T0}, s{S_IDX}, 1"), A(f"s_mul_i32 s{S_T0}, s{S_T0}, 7"), A(f"s_add_u32 s{S_T0}, s{S_T0}, 6"), A(f"s_lshl_b32 s{S_T0}, s{S_T0}, 6"),
                                  A(f"s_and_b32 s{S_T1}, s{S_IDX}, 1"), A(f"s_lshl_b32 s{S_T1}, s{S_T1}, 1"), A(f"s_add_u32 s{S_T1}, s{S_T1}, s{S_WN}"), A(f"s_lshl_b32 s{S_T1}, s{S_T1}, 4"),
                                  A(f"s_add_u32 s{S_T0}, s{S_T0}, s{S_T1}"), A(f"s_add_u32 s{S_T0}, s{S_T0}, 1536")), "gu")
            self.csa = [(VC2, 0), (VC2, 2048), (VC1, 0), (VC1, 64), (VC3, 0)]
        A(f"v_mov_b32 v{t3}, 0x3f803f80")
        for i in range(4): A(f"v_accvgpr_write_b32 a{A_ONES+i}, v{t3}")
        srd_off(A, S_H, S_WSP, S_WSP+1, WS_H, WS_H + H_BYTES)
        G, p, r, c = t0, t1, t2, t3
        A(f"v_lshrrev_b32 v{G}, 4, v{VLANE}"); A(f"v_and_b32 v{G}, 1, v{G}")
        A(f"v_lshrrev_b32 v{p}, 5, v{VLANE}")
        A(f"v_and_b32 v{r}, 15, v{VLANE}"); A(f"v_lshrrev_b32 v{r}, 2, v{r}")
        A(f"v_and_b32 v{c}, 3, v{VLANE}")
        k_, rb, u1, u2 = t4, t4+1, t4+2, t4+3
        A(f"v_lshlrev_b32 v{k_}, 3, v{p}"); A(f"v_add_u32 v{k_}, v{k_}, v{r}")
        A(f"v_lshrrev_b32 v{rb}, 1, v{r}"); A(f"v_and_b32 v{rb}, 1, v{rb}")
        for blk, kd in enumerate(kinds):
            d = TRA + blk
            if typ == "A" and kd == "gu" and blk > 0:
                A(f"v_xor_b32 v{d}, {blk*32}, v{TRA}"); continue
            if typ == "B" and blk == 1:
                A(f"v_add_u32 v{d}, 4096, v{d-1}"); continue
            if typ == "B" and blk == 3:
                A(f"v_xor_b32 v{d}, 32, v{d-1}"); continue
            if kd == "guh":
                A(f"v_lshrrev_b32 v{u1}, 1, v{c}"); A(f"s_lshl_b32 s{S_T0}, s{S_WN}, 1"); A(f"v_add_u32 v{u1}, s{S_T0}, v{u1}")
                A(f"v_lshlrev_b32 v{u2}, 1, v{G}"); A(f"v_xor_b32 v{u1}, v{u1}, v{u2}"); A(f"v_lshlrev_b32 v{u1}, 4, v{u1}")
                A(f"v_lshlrev_b32 v{u2}, 6, v{k_}"); A(f"v_add_u32 v{u1}, v{u1}, v{u2}")
                A(f"v_lshlrev_b32 v{u2}, 11, v{G}"); A(f"v_add_u32 v{u1}, v{u1}, v{u2}")
                A(f"v_add_u32 v{u1}, {W_BASE + 4*4096}, v{u1}")
            else:
                if kd in ("q", "k"):
                    A(f"s_lshl_b32 s{S_T0}, s{S_WN}, 1"); A(f"v_add_u32 v{u1}, s{S_T0}, v{G}")
                elif typ == "A": A(f"v_mov_b32 v{u1}, 0")
                else:
                    A(f"s_lshl_b32 s{S_T0}, s{S_WN}, 1"); A(f"v_mov_b32 v{u1}, s{S_T0}")
                A(f"v_lshlrev_b32 v{u1}, 1, v{u1}"); A(f"v_lshrrev_b32 v{u2}, 1, v{c}"); A(f"v_add_u32 v{u1}, v{u1}, v{u2}")
                if kd in ("q", "k"): A(f"v_lshlrev_b32 v{u2}, 2, v{rb}")
                else:
                    A(f"v_lshlrev_b32 v{u2}, 1, v{rb}"); A(f"v_lshlrev_b32 v{d}, 2, v{G}"); A(f"v_or_b32 v{u2}, v{u2}, v{d}")
                A(f"v_xor_b32 v{u1}, v{u1}, v{u2}"); A(f"v_lshlrev_b32 v{u1}, 4, v{u1}")
                A(f"v_lshlrev_b32 v{u2}, 7, v{k_}"); A(f"v_add_u32 v{u1}, v{u1}, v{u2}")
                if kd == "q": A(f"v_add_u32 v{u1}, {W_BASE + 4*4096}, v{u1}")
                elif kd == "k": A(f"v_add_u32 v{u1}, {W_BASE}, v{u1}")
                else:
                    if typ == "A":
                        A(f"s_lshl_b32 s{S_T0}, s{S_WN}, 13"); A(f"s_add_u32 s{S_T0}, s{S_T0}, {W_BASE}")
                    else: A(f"s_mov_b32 s{S_T0}, {W_BASE + 2*4096}")
                    A(f"v_lshlrev_b32 v{u2}, 12, v{G}"); A(f"v_add_u32 v{u1}, v{u1}, v{u2}"); A(f"v_add_u32 v{u1}, s{S_T0}, v{u1}")
            A(f"v_and_b32 v{u2}, 1, v{c}"); A(f"v_lshlrev_b32 v{u2}, 3, v{u2}"); A(f"v_add_u32 v{d}, v{u1}, v{u2}")
        A(f"v_lshlrev_b32 v{u1}, 2, v{p}"); A(f"v_add_u32 v{u1}, v{u1}, v{r}"); A(f"v_lshlrev_b32 v{u1}, 7, v{u1}")
        A(f"v_lshlrev_b32 v{u2}, 1, v{G}"); A(f"v_lshrrev_b32 v{VTR}, 1, v{c}"); A(f"v_add_u32 v{u2}, v{u2}, v{VTR}")
        A(f"v_lshlrev_b32 v{VTR}, 2, v{rb}"); A(f"v_xor_b32 v{u2}, v{u2}, v{VTR}"); A(f"v_lshlrev_b32 v{u2}, 4, v{u2}"); A(f"v_add_u32 v{u1}, v{u1}, v{u2}")
        A(f"v_and_b32 v{u2}, 1, v{c}"); A(f"v_lshlrev_b32 v{u2}, 3, v{u2}"); A(f"v_add_u32 v{u1}, v{u1}, v{u2}")
        A(f"v_add_u32 v{VTR}, s{S_LB}, v{u1}"); A(f"v_xor_b32 v{VTR1}, 64, v{VTR}")
        A(f"v_and_b32 v{u1}, 31, v{VLANE}"); A(f"s_lshl_b32 s{S_T0}, s{S_WM}, 6"); A(f"v_add_u32 v{u1}, s{S_T0}, v{u1}")
        A(f"v_lshrrev_b32 v{u2}, 1, v{u1}"); A(f"v_and_b32 v{u2}, 7, v{u2}"); A(f"v_xor_b32 v{u2}, v{u2}, v{p}"); A(f"v_lshlrev_b32 v{u2}, 4, v{u2}")
        A(f"v_lshlrev_b32 v{u1}, 7, v{u1}"); A(f"v_add_u32 v{u1}, v{u1}, v{u2}")
        for kk in range(4): A(f"v_xor_b32 v{XA+kk}, {kk*32}, v{u1}")
        if X1_EARLY: emit_items(A, self.Xg(1))
        SX = WF + 20
        A.wait("strow")
        P0, P1, Q0, Q1, U = VT, VT+2, VT+4, VT+6, VT+8
        for tok, (P, Q) in enumerate(((P0, Q0), (P1, Q1))):
            for i in range(4):
                src = SX + 4*tok + i
                A(f"v_lshlrev_b32 v{U}, 16, v{src}"); A(f"v_and_b32 v{U+1}, 0xffff0000, v{src}")
                if i == 0:
                    A(f"v_pk_mul_f32 v[{Q}:{Q+1}], v[{U}:{U+1}], v[{U}:{U+1}]"); A(f"v_mov_b32 v{P}, v{U}"); A(f"v_mov_b32 v{P+1}, v{U+1}")
                else:
                    A(f"v_pk_add_f32 v[{P}:{P+1}], v[{P}:{P+1}], v[{U}:{U+1}]"); A(f"v_pk_fma_f32 v[{Q}:{Q+1}], v[{U}:{U+1}], v[{U}:{U+1}], v[{Q}:{Q+1}]")
        for r_ in (P0, P1, Q0, Q1): A(f"v_add_f32 v{r_}, v{r_}, v{r_+1}")
        for dpp in ("row_shr:1 row_mask:0xf bank_mask:0xf", "row_shr:2 row_mask:0xf bank_mask:0xf", "row_shr:4 row_mask:0xf bank_mask:0xf", "row_shr:8 row_mask:0xf bank_mask:0xf",
                    "row_bcast:15 row_mask:0xa bank_mask:0xf", "row_bcast:31 row_mask:0xc bank_mask:0xf"):
            for r_ in (P0, P1, Q0, Q1): A(f"v_add_f32_dpp v{r_}, v{r_}, v{r_} {dpp}")
        A(f"v_mul_f32 v{P0}, 0x3b000000, v{P0}"); A(f"v_mul_f32 v{P0+1}, 0x3b000000, v{P1}")
        A(f"v_mul_f32 v{Q0}, 0x3b000000, v{Q0}"); A(f"v_mul_f32 v{Q0+1}, 0x3b000000, v{Q1}")
        for j in range(2):
            A(f"v_fma_f32 v{Q0+j}, -v{P0+j}, v{P0+j}, v{Q0+j}"); A(f"v_max_f32 v{Q0+j}, 0, v{Q0+j}"); A(f"v_add_f32 v{Q0+j}, 0x3727c5ac, v{Q0+j}"); A(f"v_rsq_f32 v{Q0+j}, v{Q0+j}")
        A(f"v_mov_b32 v{U}, s{S_HB}"); A(f"v_add_u32 v{U+1}, {WS_R}, v{U}")
        A(f"s_mov_b64 s[{S_E0}:{S_E0+1}], exec"); A("s_mov_b32 exec_lo, 0"); A("s_mov_b32 exec_hi, 0x80000000")
        A.vm(f"global_store_dwordx2 v{U}, v[{P0}:{P0+1}], s[{S_WSP}:{S_WSP+1}] sc1")
        A.vm(f"global_store_dwordx2 v{U+1}, v[{Q0}:{Q0+1}], s[{S_WSP}:{S_WSP+1}] sc1", id="stst")
        A(f"s_mov_b64 exec, s[{S_E0}:{S_E0+1}]")
        A.stamp(2)
        A("s_waitcnt lgkmcnt(0)")
        A.wait("X0_3", "W0_4")
        A("s_barrier")
        A.stamp(3); A.stamp(8, "pro")
        for s in self.reads(0): A(s)
        A.stamp(1, "init")
        if ZLATE:
            L = f"K12{typ}_nozero"
            A(f"s_cmp_ge_u32 s2, {NZERO}"); A(f"s_cbranch_scc1 {L}")
            A(f"s_lshl_b32 s{S_T0}, s2, 12"); A(f"s_add_u32 s{S_T0}, s{S_T0}, {WS_KV}")
            A(f"v_lshlrev_b32 v{VT+6}, 4, v{VTID}"); A(f"v_add_u32 v{VT+6}, s{S_T0}, v{VT+6}")
            for i in range(4): A(f"v_mov_b32 v{VT+0+i}, 0")
            A(("vmu", "zst", f"global_store_dwordx4 v{VT+6}, v[{VT+0}:{VT+3}], s[{S_WSP}:{S_WSP+1}] sc1"))
            A(f"{L}:")
        else:
            for x in self.sig(f"s_cmp_lt_u32 s2, {NZERO}", S_DBG, DBG_INIT, None, "init"): A(x)
        A.stamp(2, "init")

    def sig(self, cond, base, off_imm, off_sgpr, tag):
        L = f"K12{self.typ}_sig_{tag}"
        o = []
        if cond: o += [cond, f"s_cbranch_scc0 {L}"]
        o += [f"s_cmp_eq_u32 s{S_WV}, 0", f"s_cbranch_scc0 {L}"]
        if off_sgpr is None: o += [f"v_mov_b32 v{VT+9}, {off_imm}"]
        else: o += [f"s_lshl_b32 s{S_T4}, s{off_sgpr}, 7", f"s_add_u32 s{S_T4}, s{S_T4}, {off_imm}", f"v_mov_b32 v{VT+9}, s{S_T4}"]
        o += [f"v_mov_b32 v{VT+8}, 1", f"s_mov_b64 s[{S_E0}:{S_E0+1}], exec", "s_mov_b64 exec, 1",
              f"!global_atomic_add v{VT+9}, v{VT+8}, s[{base}:{base+1}] sc1", f"s_mov_b64 exec, s[{S_E0}:{S_E0+1}]", f"{L}:"]
        return o

    def spin(self, tag, base, vaddr, expect):
        L = f"K12{self.typ}_spin_{tag}"
        return [f"s_mov_b32 s{S_T3}, 0", f"{L}:", f"!global_load_dword v{VT+10}, v{vaddr}, s[{base}:{base+1}] sc1", "s_waitcnt vmcnt(0)",
                f"v_readfirstlane_b32 s{S_T4}, v{VT+10}", f"s_add_u32 s{S_T3}, s{S_T3}, 1", f"s_cmp_ge_u32 s{S_T3}, {POLL_MAX}", f"s_cbranch_scc1 {L}_x",
                f"s_cmp_ge_u32 s{S_T4}, {expect}", f"s_cbranch_scc1 {L}_x", "s_sleep 2", f"s_branch {L}", f"{L}_x:"]

    def w0(self, tag, code):
        L = f"K12{self.typ}_w0_{tag}"
        return [f"s_cmp_eq_u32 s{S_WV}, 0", f"s_cbranch_scc0 {L}"] + code + [f"{L}:"]

    def pre_barrier(self, h):
        typ = self.typ; T = VT
        if h == H_INIT:
            return [("stamp", 3, "init")] + self.w0("initchk", [("wait", ["initld"]), f"v_readfirstlane_b32 s{S_T4}, v{T+10}", "s_nop 0", f"s_cmp_ge_u32 s{S_T4}, {NZERO}", f"s_cbranch_scc1 K12{typ}_initok",
                                       f"v_mov_b32 v{T+9}, {DBG_INIT}"] + self.spin("init", S_DBG, T+9, NZERO) + [f"K12{typ}_initok:"]) + [("stamp", 4, "init")]
        if h == H_CNT:
            return [("stamp", 6, "init")] + self.w0("cntchk", [("wait", ["cntld"]), f"v_readfirstlane_b32 s{S_T4}, v{T+5}", "s_nop 0", f"s_cmp_ge_u32 s{S_T4}, 16", f"s_cbranch_scc1 K12{typ}_stok"]
                           + self.spin("st", S_WSP, T+7, 16) + [f"K12{typ}_stok:",
                           f"v_readfirstlane_b32 s{S_T4}, v{T+6}", "s_nop 0", f"s_cmp_ge_u32 s{S_T4}, 16", f"s_cbranch_scc1 K12{typ}_csok"]
                           + self.spin("cs", S_WSP, T+8, 16) + [f"K12{typ}_csok:"]) + [("stamp", 7, "init")]
        return []

    def oneshot_items(self, add, at):
        typ = self.typ; wsp = f"s[{S_WSP}:{S_WSP+1}]"; dbg = f"s[{S_DBG}:{S_DBG+1}]"
        T = VT
        for s in range(4):
            par = s & 1
            it = [f"s_cmp_eq_u32 s{S_KSC}, {s}", f"s_cbranch_scc0 K12{typ}_nocs{s}"]
            for blk in range(5):
                b = WF + 20*par + 4*blk
                it.append(f"v_mfma_f32_32x32x16_bf16 a[{CS_TMP+16*blk}:{CS_TMP+16*blk+15}], a[{A_ONES}:{A_ONES+3}], v[{b}:{b+3}], 0")
            it.append(f"K12{typ}_nocs{s}:")
            self.fixed.setdefault(s, []).append(it)
        self.fixed.setdefault(K_INITLD, []).append(self.w0("initld", [f"v_mov_b32 v{T+9}, {DBG_INIT}", f"s_mov_b64 s[{S_E0}:{S_E0+1}], exec", "s_mov_b64 exec, 1",
                                      ("vmu", "initld", f"global_load_dword v{T+10}, v{T+9}, {dbg} sc1"), f"s_mov_b64 exec, s[{S_E0}:{S_E0+1}]"]))
        it = [[f"v_accvgpr_read_b32 v{T+blk}, a{CS_TMP+16*blk}"] for blk in range(5)]
        at_ = [f"s_mov_b64 s[{S_E0}:{S_E0+1}], exec", "s_mov_b32 exec_hi, 0"]
        for blk in range(5):
            va, off = self.csa[blk]
            at_.append(("vm", f"csat{blk}", f"global_atomic_add_f32 v{va}, v{T+blk}, {wsp} offset:{off}"))
        at_.append(f"s_mov_b64 exec, s[{S_E0}:{S_E0+1}]")
        add(at(K_CSAT), it + [at_])
        self.fixed.setdefault(K_CNTLD, []).append(self.w0("cntld", [f"s_lshl_b32 s{S_T4}, s{S_T}, 7", f"s_add_u32 s{S_T4}, s{S_T4}, {WS_STCNT}", f"v_mov_b32 v{T+7}, s{S_T4}",
                          f"s_lshl_b32 s{S_T4}, s{S_CG}, 7", f"s_add_u32 s{S_T4}, s{S_T4}, {WS_CSCNT}", f"v_mov_b32 v{T+8}, s{S_T4}",
                          f"s_mov_b64 s[{S_E0}:{S_E0+1}], exec", "s_mov_b64 exec, 1",
                          f"!global_load_dword v{T+5}, v{T+7}, {wsp} sc1", ("vmu", "cntld", f"global_load_dword v{T+6}, v{T+8}, {wsp} sc1"),
                          f"s_mov_b64 exec, s[{S_E0}:{S_E0+1}]"]))
        VM = T; VCS = T + 2; VRB = T + 7
        lds = [[f"v_and_b32 v{T+8}, 31, v{VLANE}", f"s_lshl_b32 s{S_T4}, s{S_T}, 7", f"s_lshl_b32 s{S_T3}, s{S_WM}, 6", f"s_add_u32 s{S_T4}, s{S_T4}, s{S_T3}"],
               [f"v_add_u32 v{T+8}, s{S_T4}, v{T+8}", f"v_lshlrev_b32 v{T+8}, 2, v{T+8}", f"v_add_u32 v{T+9}, {WS_R}, v{T+8}"],
               [("vm", None, f"global_load_dword v{VM}, v{T+8}, {wsp} sc1")], [("vm", None, f"global_load_dword v{VM+1}, v{T+8}, {wsp} offset:128 sc1")],
               [("vm", None, f"global_load_dword v{VR}, v{T+9}, {wsp} sc1")], [("vm", None, f"global_load_dword v{VR+1}, v{T+9}, {wsp} offset:128 sc1")]]
        for blk in range(5):
            va, off = self.csa[blk]
            lds.append([("vm", "csld" if blk == 4 and typ == "A" else None, f"global_load_dword v{VCS+blk}, v{va}, {wsp} offset:{off} sc1")])
        if typ == "B":
            lds.append([f"s_lshl_b32 s{S_T4}, s{S_T}, 7", f"v_add_u32 v{T+8}, s{S_T4}, v{VTID}", f"v_lshlrev_b32 v{T+8}, 2, v{T+8}", f"v_add_u32 v{T+8}, {WS_R}, v{T+8}"])
            lds.append([("vm", "csld", f"global_load_dword v{VRB}, v{T+8}, {wsp} sc1")])
        add(at(2*H_CNT-1, 1), lds)
        if K_PT:
            add(at(K_PT), [[f"s_lshl_b32 s{S_T4}, s{S_TAU}, 16", f"s_lshl_b32 s{S_T3}, s{S_J}, 7", f"s_add_u32 s{S_T4}, s{S_T4}, s{S_T3}", f"v_mov_b32 v{T+9}, s{S_T4}"],
                           [f"s_mov_b64 s[{S_E0}:{S_E0+1}], exec", "s_mov_b64 exec, 1", ("vm", None, f"global_load_dword a224, v{T+9}, s[{P_O}:{P_O+1}]"), f"s_mov_b64 exec, s[{S_E0}:{S_E0+1}]"],
                           [f"v_mov_b32 v{T+9}, 0"],
                           [f"s_mov_b64 s[{S_E0}:{S_E0+1}], exec", "s_mov_b64 exec, 1", ("vm", None, f"global_load_dword a227, v{T+9}, s[{P_WO}:{P_WO+1}]"), f"s_mov_b64 exec, s[{S_E0}:{S_E0+1}]"]])
        if K_WOPF:
            it = [[f"s_lshl_b32 s{S_T4}, s{S_WV}, 17", f"s_and_b32 s{S_T3}, s{S_TAU}, 3", f"s_lshl_b32 s{S_T3}, s{S_T3}, 15", f"s_add_u32 s{S_T4}, s{S_T4}, s{S_T3}"],
                  [f"s_lshl_b32 s{S_T3}, s{S_J}, 7", f"s_add_u32 s{S_T4}, s{S_T4}, s{S_T3}", f"v_add_u32 v{T+9}, s{S_T4}, v{VDM}"]]
            for k in range(4):
                it.append([("vm", None, f"global_load_dwordx4 a[224:227], v{T+9}, s[{P_WO}:{P_WO+1}]")] + ([f"v_add_u32 v{T+9}, 8192, v{T+9}"] if k < 3 else []))
            add(at(K_WOPF), it)
        if CODE_PF2:
            add(at(CODE_PF2), [[f"s_getpc_b64 s[{S_E2}:{S_E2+1}]", f"K12{typ}_pc2:", f"s_lshr_b32 s{S_T4}, s2, 3", f"s_lshl_b32 s{S_T4}, s{S_T4}, 2", f"s_add_u32 s{S_T4}, s{S_T4}, s{S_WV}"],
                               [f"s_min_u32 s{S_T4}, s{S_T4}, ((K12_end-K12{typ}_pc2)>>10)-1", f"s_lshl_b32 s{S_T4}, s{S_T4}, 10", f"v_add_u32 v{T+9}, s{S_T4}, v{VL16}"],
                               [("vm", None, f"global_load_dwordx4 a[224:227], v{T+9}, s[{S_E2}:{S_E2+1}]")]])
        tt = T + 8; b = T + 10
        items = [[("wait", ["csld"])], [f"v_cmp_gt_u32 vcc, 32, v{VLANE}", "s_nop 1"]]
        for tb in range(2):
            items += [[f"v_cndmask_b32 v{tt}, 0, v{VM+tb}, vcc"], [f"v_cvt_pk_bf16_f32 v{b}, v{tt}, v{tt}"],
                      [f"v_and_b32 v{tt+1}, 0xffff0000, v{b}"], [f"v_sub_f32 v{tt+1}, v{tt}, v{tt+1}"],
                      [f"v_cvt_pk_bf16_f32 v{b+1}, v{tt+1}, 0"],
                      [f"v_accvgpr_write_b32 a{AMF+4*tb}, v{b}"], [f"v_accvgpr_write_b32 a{AMF+4*tb+1}, v{b+1}"],
                      [f"v_accvgpr_write_b32 a{AMF+4*tb+2}, 0"], [f"v_accvgpr_write_b32 a{AMF+4*tb+3}, 0"]]
        for blk in range(5):
            items += [[f"v_cndmask_b32 v{tt}, 0, v{VCS+blk}, vcc"], [f"v_sub_f32 v{tt}, 0, v{tt}"],
                      [f"v_cvt_pk_bf16_f32 v{b+1}, v{tt}, 0"], [f"v_lshlrev_b32 v{tt+1}, 16, v{b+1}"], [f"v_sub_f32 v{tt+1}, v{tt}, v{tt+1}"],
                      [f"v_cvt_pk_bf16_f32 v{b}, v{tt}, v{tt+1}"],
                      [f"v_accvgpr_write_b32 a{ACF+4*blk}, v{b}"], [f"v_accvgpr_write_b32 a{ACF+4*blk+1}, v{b+1}"],
                      [f"v_accvgpr_write_b32 a{ACF+4*blk+2}, 0"], [f"v_accvgpr_write_b32 a{ACF+4*blk+3}, 0"]]
        if typ == "B":
            items += [[f"v_lshlrev_b32 v{tt}, 2, v{VTID}"], [f"v_add_u32 v{tt}, {LDS_R}, v{tt}"],
                      [f"v_cmp_gt_u32 vcc, 128, v{VTID}", f"s_and_saveexec_b64 s[{S_E0}:{S_E0+1}], vcc", f"ds_write_b32 v{tt}, v{VRB}", f"s_mov_b64 exec, s[{S_E0}:{S_E0+1}]"]]
        add(at(K_RANK), items)

    def loop(self):
        A = self.A
        self.loop_start = len(A.l)
        steps = []
        for s in range(32):
            if s == CORR_AT: steps.append(("c", None))
            steps.append(("k", s))
        order_last = [b for b, kd in enumerate(self.kinds) if kd in ("gu","guh")] + [b for b, kd in enumerate(self.kinds) if kd not in ("gu","guh")]
        idx_of = {st: i for i, st in enumerate(steps)}
        def at(s, g=0): return (idx_of[("k", s)], g)
        flex = []; flex2 = []
        def add(pos, items):
            for it in items: flex.append((pos, it))
        def add2(pos, items):
            for it in items: flex2.append((pos, it))
        add(at(0), self.Wg(2))
        if not X1_EARLY: add(at(0), self.Xg(1))
        add(at(1, 1), self.Xg(2))
        for h in range(1, 14): add(at(2*h-1, 1), self.Wg(h+2))
        for sg in range(1, 6): add(at(4*sg-1, 1), self.Xg(sg+2))
        self.fixed = {}
        tagD = {}; tagR = {}; keep = []; placedR = {}
        self.oneshot_items(add, at)
        self.w2_done_R = []
        for i in range(N_IN):
            dd = self.w2.D(i); tagD[id(dd[0])] = i; keep.append(dd)
            add2(at(min(i+W2_START, 31)), dd)
            rr = self.w2.R(i); tagR[id(rr[-1])] = i; keep.append(rr)
            add2(at(min(i+W2_START+DLAG, 31)), rr); self.w2_done_R.append(i)
        flex.sort(key=lambda x: x[0])
        gaps_all = []
        flex2.sort(key=lambda x: x[0])
        queues = [list(flex), list(flex2)]
        for si, st in enumerate(steps):
            gaps = [[] for _ in range(10)]
            head = []
            if st[0] == "k":
                s = st[1]
                M = self.mfmas(s, order_last if s == 31 else None)
                head = ["s_waitcnt lgkmcnt(0)"]
                odd = s & 1
                if odd:
                    h = (s + 1)//2
                    if h <= 15:
                        ids = [f"W{h}_4"] + ([f"X{h//2}_3"] if h % 2 == 0 else [])
                        if h == H_INIT: ids.append("stst")
                        if ZLATE and h == H_Z: ids.append("zst")
                        if h == H_CS: ids.append("csat4")
                        if STAMP and SMODE == "wait":
                            gaps[0] += self.pre_barrier(h) + [("wait", ids), "s_memtime s[98:99]", "s_waitcnt lgkmcnt(0)", "s_barrier", "s_memtime s[100:101]", "s_waitcnt lgkmcnt(0)", "s_sub_u32 s100, s100, s98", f"s_add_u32 s{SB+12}, s{SB+12}, s100"]
                        else:
                            gaps[0] += self.pre_barrier(h) + [("wait", ids), "s_barrier"]
                        if ZLATE and h == H_Z: gaps[0] += self.sig(f"s_cmp_lt_u32 s2, {NZERO}", S_DBG, DBG_INIT, None, "init")
                        if h == H_INIT: gaps[0] += self.sig(None, S_WSP, WS_STCNT, S_T, "st")
                        if h == H_CS: gaps[0] += self.sig(None, S_WSP, WS_CSCNT, S_CG, "cs")
                    else:
                        gaps[0] += ["s_barrier"]
                nxt = s + 1
                if nxt < 32:
                    rd = self.reads(nxt)
                    g0 = 1 if odd else 0
                    for i, x in enumerate(rd): gaps[g0 + i//2].append(x)
            else:
                M = self.corr(); head = ["s_waitcnt lgkmcnt(0)"]
            if st[0] == "k" and st[1] in self.fixed:
                for it in self.fixed[st[1]]: gaps[9] += it
            for qi in range(2):
                pending = queues[qi]
                gi = 0
                rest = []
                blocked = False
                for (pos, it) in pending:
                    if blocked or pos[0] > si:
                        rest.append((pos, it)); continue
                    if id(it) in tagD and placedR.get(tagD[id(it)] - NSL, -1) == si:
                        rest.append((pos, it)); blocked = True; continue
                    if id(it) in tagD and tagD[id(it)] >= NSL and (tagD[id(it)] - NSL) not in placedR:
                        rest.append((pos, it)); blocked = True; continue
                    g = max(gi, pos[1] if pos[0] == si else 0)
                    need = 2 if (isinstance(it, tuple) and it[0] == "dma") else len(it)
                    while g < 10 and len(gaps[g]) + min(need, CAP) > CAP: g += 1
                    if g >= 10:
                        rest.append((pos, it)); blocked = True; continue
                    if id(it) in tagR: placedR[tagR[id(it)]] = si
                    if isinstance(it, tuple) and it[0] == "dma":
                        gaps[g].append(it[1]); gaps[g].append("__NOP__"); gaps[g].append(it[2]); gi = g + 1
                    else:
                        gaps[g] += it; gi = g
                queues[qi] = rest
            for g in gaps:
                while "__NOP__" in g:
                    i = g.index("__NOP__")
                    cand = [j for j in range(i-1) if isinstance(g[j], str) and g[j].startswith("ds_read")]
                    if cand:
                        x = g.pop(cand[-1]); i -= 1; g[i] = x
                    else: g[i] = "s_nop 0"
            if st[0] == "k" and st[1] % 4 == 0 and st[1] > 0: A.stamp(st[1]//4, "loop")
            for x in head: A(x)
            for i in range(10):
                A(M[i])
                for x in gaps[i]:
                    if x == "__WOSRD__":
                        assert "W15_4" in A.ids
                        A(f"s_lshl_b32 s{S_T0}, s{S_J}, 7"); A(f"s_lshl_b32 s{S_T1}, s{S_WV}, 17"); A(f"s_add_u32 s{S_T0}, s{S_T0}, s{S_T1}")
                        srd_off(A, S_WO, P_WO, P_WO+1, f"s{S_T0}", 512*1024)
                    else: A(x)
        assert not queues[0], queues[0][:3]
        self.leftover = queues[1]
        for (pos, it) in self.leftover:
            if id(it) in tagD: A("s_waitcnt lgkmcnt(0)")
            if it == ["__WOSRD__"]:
                A(f"s_lshl_b32 s{S_T0}, s{S_J}, 7"); A(f"s_lshl_b32 s{S_T1}, s{S_WV}, 17"); A(f"s_add_u32 s{S_T0}, s{S_T0}, s{S_T1}")
                srd_off(A, S_WO, P_WO, P_WO+1, f"s{S_T0}", 512*1024)
            else: emit_items(A, [it])
        self.nleft = len(self.leftover)
        txt = A.l
        for i in range(N_IN - NSL):
            rd = [n for n, x in enumerate(txt) if n > self.loop_start and "ds_read_b64_tr_b16 a[%d:" % (8*i+6) in x]
            if not rd: continue
            pos_r = rd[-1]; pos_d = A.pos[f"w2_{i+NSL}_0"]
            assert pos_d > pos_r and any("lgkmcnt(0)" in x for x in txt[pos_r:pos_d]), ("no lgkm wait", i)

    def flag_store(self, slot_imm, FA, ONE):
        A = self.A
        FA, ONE = VT+4, VT+5
        A(f"v_mov_b32 v{ONE}, 1")
        A(f"s_lshl_b32 s{S_T0}, s{S_T}, 1"); A(f"s_add_u32 s{S_T0}, s{S_T0}, s{S_WM}"); A(f"s_lshl_b32 s{S_T0}, s{S_T0}, 2")
        A(f"s_lshr_b32 s{S_T1}, s{S_IDX}, 1"); A(f"s_add_u32 s{S_T0}, s{S_T0}, s{S_T1}"); A(f"s_lshl_b32 s{S_T0}, s{S_T0}, 4")
        A(f"s_lshl_b32 s{S_T1}, s{S_I1}, 1"); A(f"s_add_u32 s{S_T0}, s{S_T0}, s{S_T1}"); A(f"s_add_u32 s{S_T0}, s{S_T0}, s{S_WN}")
        A(f"s_add_u32 s{S_T0}, s{S_T0}, {slot_imm}"); A(f"s_lshl_b32 s{S_T0}, s{S_T0}, 2"); A(f"s_add_u32 s{S_T0}, s{S_T0}, {WS_FLAG}")
        A(f"v_mov_b32 v{FA}, s{S_T0}")
        A(f"s_mov_b64 s[{S_E0}:{S_E0+1}], exec"); A("s_mov_b64 exec, 1")
        A.vm(f"global_store_dword v{FA}, v{ONE}, s[{S_WSP}:{S_WSP+1}] sc1")
        A(f"s_mov_b64 exec, s[{S_E0}:{S_E0+1}]")

    def transition(self):
        A, typ, kinds = self.A, self.typ, self.kinds
        w2 = self.w2
        tt = VT
        state = {"D": N_IN, "R": N_IN}
        A.stamp(1, "tr")
        A("s_waitcnt lgkmcnt(0)")
        A("s_barrier")
        A(f"s_mul_i32 s{S_T0}, s{S_WV}, {NPOST*2048}"); A(f"s_add_u32 s{S_T0}, s{S_T0}, {W2POST}")
        A(f"s_sub_u32 s{S_T1}, s{S_T0}, s{S_LB}"); A(f"s_mov_b32 s{S_LB}, s{S_T0}")
        A(f"v_add_u32 v{VTR}, s{S_T1}, v{VTR}"); A(f"v_xor_b32 v{VTR1}, 64, v{VTR}")
        A(f"s_lshl_b32 s{S_T0}, s{S_J}, 7"); A(f"s_lshl_b32 s{S_T1}, s{S_WV}, 17"); A(f"s_add_u32 s{S_T0}, s{S_T0}, s{S_T1}")
        srd_off(A, S_WO, P_WO, P_WO+1, f"s{S_T0}", 512*1024)
        def bgD(n=1):
            for _ in range(n):
                i = state["D"]
                if i >= 36 or i - state["R"] >= NPOST: return
                emit_items(A, w2.D(i)); state["D"] += 1
        def bgR(n=1):
            for _ in range(n):
                i = state["R"]
                if i >= state["D"]: return
                if i >= 32 and not state.get("vfree"): return
                emit_items(A, w2.R(i)); state["R"] += 1
        def bgD_safe(n=1):
            A("s_waitcnt lgkmcnt(0)"); bgD(n)
        A(f"s_lshl_b32 s{S_T0}, s{S_T}, 1"); A(f"s_add_u32 s{S_T0}, s{S_T0}, s{S_WM}"); A(f"s_lshl_b32 s{S_T0}, s{S_T0}, 2")
        A(f"s_lshr_b32 s{S_T1}, s{S_IDX}, 1"); A(f"s_add_u32 s{S_T0}, s{S_T0}, s{S_T1}"); A(f"s_mul_i32 s{S_HB}, s{S_T0}, {36*2048}")
        A(f"s_and_b32 s{S_I1}, s{S_IDX}, 1")
        I1 = S_I1
        R2 = XF
        for tb in range(2):
            A(f"v_mul_f32 v{R2+2*tb}, v{VR+tb}, v{VR+tb}"); A(f"v_mul_f32 v{R2+2*tb+1}, v{VR+tb}, v{VR+tb}")
        PK = WF
        nst = 0
        gublks = [b for b, kd in enumerate(kinds) if kd in ("gu", "guh")]
        lasth = None
        for blk in gublks:
            kd = kinds[blk]
            if typ == "A":
                if blk == 0:
                    A(f"s_lshl_b32 s{S_T2}, s{I1}, 1"); A(f"s_add_u32 s{S_T2}, s{S_T2}, s{S_WN}"); A(f"s_lshl_b32 s{S_T2}, s{S_T2}, 13"); A(f"s_add_u32 s{S_T2}, s{S_T2}, s{S_HB}")
                else: A(f"s_add_u32 s{S_T2}, s{S_T2}, 2048")
            elif kd == "gu":
                if blk == 2:
                    A(f"s_lshl_b32 s{S_T2}, s{I1}, 2"); A(f"s_lshl_b32 s{S_T3}, s{S_WN}, 1"); A(f"s_add_u32 s{S_T2}, s{S_T2}, s{S_T3}"); A(f"s_add_u32 s{S_T2}, s{S_T2}, 16")
                    A(f"s_lshl_b32 s{S_T2}, s{S_T2}, 11"); A(f"s_add_u32 s{S_T2}, s{S_T2}, s{S_HB}")
                else: A(f"s_add_u32 s{S_T2}, s{S_T2}, 2048")
            else:
                A(f"s_lshl_b32 s{S_T2}, s{I1}, 1"); A(f"s_add_u32 s{S_T2}, s{S_T2}, s{S_WN}"); A(f"s_add_u32 s{S_T2}, s{S_T2}, 24")
                A(f"s_lshl_b32 s{S_T2}, s{S_T2}, 11"); A(f"s_add_u32 s{S_T2}, s{S_T2}, s{S_HB}")
            for tb in range(2):
                a = acc(blk, tb); pk = PK + 4*(nst % 4); nst += 1
                for i in range(4): A(f"v_pk_mul_f32 v[{a+2*i}:{a+2*i+1}], v[{a+2*i}:{a+2*i+1}], v[{a+8+2*i}:{a+8+2*i+1}]")
                for i in range(4): A(f"v_pk_mul_f32 v[{a+2*i}:{a+2*i+1}], v[{a+2*i}:{a+2*i+1}], v[{R2+2*tb}:{R2+2*tb+1}]")
                for i in range(4): A(f"v_cvt_pk_bf16_f32 v{pk+i}, v{a+2*i}, v{a+2*i+1}")
                lasth = f"hs_{blk}_{tb}"
                A.vm(f"buffer_store_dwordx4 v[{pk}:{pk+3}], v{VL16}, s[{S_H}:{S_H+3}], s{S_T2} offen offset:{tb*1024} sc1", id=lasth)
        assert (not LATE_R) or 36 - N_IN <= NPOST
        A.stamp(5); A.stamp(2, "tr")
        FA, ONE = VT+4, VT+5
        A(f"s_mov_b32 s{S_C6}, 0x358637bd"); A(f"s_mov_b32 s{S_C6+1}, 0x358637bd")
        C6 = f"s[{S_C6}:{S_C6+1}]"
        if typ == "A":
            A(f"s_lshl_b32 s{S_T2}, s{I1}, 2"); A(f"s_lshl_b32 s{S_T3}, s{S_WN}, 1"); A(f"s_add_u32 s{S_T2}, s{S_T2}, s{S_T3}"); A(f"s_add_u32 s{S_T2}, s{S_T2}, 28")
            A(f"s_lshl_b32 s{S_T2}, s{S_T2}, 11"); A(f"s_add_u32 s{S_T4}, s{S_T2}, s{S_HB}"); A(f"s_add_u32 s{S_XO}, s{S_T4}, 2048")
            A(f"s_mov_b32 s22, s{S_T4}"); A(f"s_mov_b32 s23, s{S_XO}")
            RP = XF + 4; RLP = XF + 6
            for tb in range(2):
                a = acc(4, tb)
                A(f"v_mov_b32 v{RP}, v{VR+tb}"); A(f"v_mov_b32 v{RP+1}, v{VR+tb}")
                A(f"v_mul_f32 v{RLP}, 0x3fb8aa3b, v{VR+tb}"); A(f"v_mul_f32 v{RLP+1}, 0x3fb8aa3b, v{VR+tb}")
                for i in range(0, 16, 4):
                    for j in (0, 2): A(f"v_pk_mul_f32 v[{tt+j}:{tt+j+1}], v[{a+i+j}:{a+i+j+1}], v[{RLP}:{RLP+1}]")
                    for j in (0, 2): A(f"v_pk_fma_f32 v[{a+i+j}:{a+i+j+1}], v[{a+i+j}:{a+i+j+1}], v[{RP}:{RP+1}], {C6}")
                    for j in range(4): A(f"v_exp_f32_e64 v{tt+j}, v{tt+j} clamp")
                    for j in range(4): A(f"v_max_f32 v{a+i+j}, s{S_C6}, v{a+i+j}")
                    for j in (0, 2): A(f"v_pk_add_f32 v[{a+i+j}:{a+i+j+1}], v[{a+i+j}:{a+i+j+1}], v[{tt+j}:{tt+j+1}]")
                    if PHI_D: bgD(1)
                if tb == 0 and FLAG_TB_A == 0:
                    A.stamp(3, "tr"); A.wait(lasth); A.stamp(4, "tr"); self.flag_store(0, FA, ONE)
                    if LATE_R == 1: bgD(36 - N_IN)
                for hs in range(2):
                    pk = (128 + 4*(2*tb + hs)) if (DEFER or PQ_LATE) else PK + 4*(nst % 4); nst += 1
                    for i in range(4): A(f"v_cvt_pk_bf16_f32 v{pk+i}, v{a+8*hs+2*i}, v{a+8*hs+2*i+1}")
                    if not (DEFER or PQ_LATE): A.vm(f"buffer_store_dwordx4 v[{pk}:{pk+3}], v{VL16}, s[{S_H}:{S_H+3}], s{S_XO if hs else S_T4} offen offset:{tb*1024} sc1", id=f"pq_{tb}_{hs}")
            if FLAG_TB_A == 1:
                A.stamp(3, "tr"); A.wait(lasth); A.stamp(4, "tr"); self.flag_store(0, FA, ONE)
            if PQ_LATE and not DEFER:
                for tb in range(2):
                    for hs in range(2):
                        pk = 128 + 4*(2*tb + hs)
                        A.vm(f"buffer_store_dwordx4 v[{pk}:{pk+3}], v{VL16}, s[{S_H}:{S_H+3}], s{23 if hs else 22} offen offset:{tb*1024} sc1")
            bgD(11)
            state["vfree"] = True
            A.stamp(5, "tr")
        else:
            RR = WF; RL = WF + 16; TK = WF + 32; TV = VT + 6
            ONES = XF + 4
            for i in range(4): A(f"v_mov_b32 v{ONES+i}, 0x3f803f80")
            A(f"v_lshrrev_b32 v{tt}, 5, v{VLANE}"); A(f"v_lshlrev_b32 v{tt}, 4, v{tt}")
            A(f"s_lshl_b32 s{S_T0}, s{S_WM}, 8"); A(f"s_add_u32 s{S_T0}, s{S_T0}, {LDS_R}"); A(f"v_add_u32 v{XF+9}, s{S_T0}, v{tt}")
            D2, DZ = acc(2,0), acc(2,1)
            for tb in range(2):
                for q4 in range(4): A(f"ds_read_b128 v[{RR+4*q4}:{RR+4*q4+3}], v{XF+9} offset:{tb*128 + q4*32}")
                A("s_waitcnt lgkmcnt(0)")
                A(f"s_mov_b32 s{S_T0}, 0x3fb8aa3b"); A(f"s_mov_b32 s{S_T1}, 0x3fb8aa3b")
                for i in range(8): A(f"v_pk_mul_f32 v[{RL+2*i}:{RL+2*i+1}], v[{RR+2*i}:{RR+2*i+1}], s[{S_T0}:{S_T1}]")
                a = acc(0, tb); av = acc(1, tb)
                for i in range(0, 16, 4):
                    for j in (0, 2): A(f"v_pk_mul_f32 v[{tt+j}:{tt+j+1}], v[{a+i+j}:{a+i+j+1}], v[{RL+i+j}:{RL+i+j+1}]")
                    for j in (0, 2): A(f"v_pk_fma_f32 v[{a+i+j}:{a+i+j+1}], v[{a+i+j}:{a+i+j+1}], v[{RR+i+j}:{RR+i+j+1}], {C6}")
                    for j in range(4): A(f"v_exp_f32_e64 v{tt+j}, v{tt+j} clamp")
                    for j in range(4): A(f"v_max_f32 v{a+i+j}, s{S_C6}, v{a+i+j}")
                    for j in (0, 2): A(f"v_pk_add_f32 v[{a+i+j}:{a+i+j+1}], v[{a+i+j}:{a+i+j+1}], v[{tt+j}:{tt+j+1}]")
                    if PHI_D: bgD(1)
                for i in range(8): A(f"v_pk_mul_f32 v[{av+2*i}:{av+2*i+1}], v[{av+2*i}:{av+2*i+1}], v[{RR+2*i}:{RR+2*i+1}]")
                for i in range(8): A(f"v_cvt_pk_bf16_f32 v{TK+i}, v{a+2*i}, v{a+2*i+1}")
                for i in range(8): A(f"v_cvt_pk_bf16_f32 v{TV+i}, v{av+2*i}, v{av+2*i+1}")
                A("s_nop 1")
                for f in range(2):
                    c = "0" if (tb == 0 and f == 0) else None
                    A(f"v_mfma_f32_32x32x16_bf16 v[{D2}:{D2+15}], v[{TK+4*f}:{TK+4*f+3}], v[{TV+4*f}:{TV+4*f+3}], {c or f'v[{D2}:{D2+15}]'}")
                    A(f"v_mfma_f32_32x32x16_bf16 v[{DZ}:{DZ+15}], v[{TK+4*f}:{TK+4*f+3}], v[{ONES}:{ONES+3}], {c or f'v[{DZ}:{DZ+15}]'}")
                if tb == FLAG_TB:
                    A.stamp(3, "tr"); A.wait(lasth); A.stamp(4, "tr"); self.flag_store(4, FA, ONE)
                    if LATE_R == 1 and B_EARLY_D: bgD(36 - N_IN)
            if PHI_D: bgD(3)
            A(f"v_and_b32 v{tt}, 31, v{VLANE}"); A(f"v_cmp_gt_u32 vcc, 16, v{tt}")
            A(f"s_lshl_b32 s{S_T0}, s{S_WM}, 13"); A(f"s_lshl_b32 s{S_T1}, s{S_WN}, 12"); A(f"s_add_u32 s{S_T0}, s{S_T0}, s{S_T1}"); A(f"s_add_u32 s{S_T0}, s{S_T0}, {LDS_KV}")
            A(f"v_lshlrev_b32 v{tt}, 2, v{VLANE}"); A(f"v_add_u32 v{tt}, s{S_T0}, v{tt}")
            A("s_nop 7"); A("s_nop 3")
            for r_ in range(16):
                if r_ < 8: A(f"v_cndmask_b32 v{D2+r_}, v{DZ+r_}, v{D2+r_}, vcc")
                else: A(f"v_cndmask_b32 v{D2+r_}, v{D2+r_}, v{DZ+r_}, vcc")
            for r_ in range(16): A(f"ds_write_b32 v{tt}, v{D2+r_} offset:{r_*256}")
            A("s_waitcnt lgkmcnt(0)"); A("s_barrier")
            A(f"s_lshr_b32 s{S_T0}, s{S_WV}, 1"); A(f"s_lshl_b32 s{S_T0}, s{S_T0}, 12"); A(f"s_add_u32 s{S_T0}, s{S_T0}, {LDS_KV}")
            A(f"s_and_b32 s{S_T2}, s{S_WV}, 1")
            A(f"s_mul_i32 s{S_T3}, s{S_T2}, {8*256}"); A(f"s_add_u32 s{S_T0}, s{S_T0}, s{S_T3}")
            A(f"s_lshl_b32 s{S_T3}, s{S_T2}, 6")
            A(f"s_lshl_b32 s{S_T1}, s{S_IDX}, 2"); A(f"s_add_u32 s{S_T1}, s{S_T1}, s{S_WV}")
            A(f"s_mul_i32 s{S_T1}, s{S_T1}, {KV_HEAD}"); A(f"s_add_u32 s{S_T1}, s{S_T1}, {WS_KV}")
            A(f"v_and_b32 v{tt}, 7, v{VLANE}"); A(f"v_lshlrev_b32 v{tt}, 8, v{tt}"); A(f"v_add_u32 v{tt}, s{S_T0}, v{tt}")
            A(f"v_lshrrev_b32 v{tt+1}, 3, v{VLANE}"); A(f"v_lshlrev_b32 v{tt+1}, 2, v{tt+1}")
            A(f"v_add_u32 v{tt+2}, v{tt}, v{tt+1}"); A(f"v_add_u32 v{tt+2}, s{S_T3}, v{tt+2}")
            B0 = ACC
            for n in range(4):
                off = (32*(n>>1) + 8*(n&1))*4
                A(f"ds_read_b32 v{B0+2*n}, v{tt+2} offset:{off}"); A(f"ds_read_b32 v{B0+2*n+1}, v{tt+2} offset:{off+8192}")
            A(f"s_sub_u32 s{S_T3}, 64, s{S_T3}")
            A(f"v_lshlrev_b32 v{tt+3}, 5, v{tt+1}"); A(f"v_add_u32 v{tt+3}, v{tt+3}, v{tt}"); A(f"v_add_u32 v{tt+3}, s{S_T3}, v{tt+3}")
            A(f"v_cmp_gt_u32 vcc, 16, v{VLANE}"); A(f"s_and_saveexec_b64 s[{S_E0}:{S_E0+1}], vcc")
            A(f"ds_read_b32 v{B0+8}, v{tt+3}"); A(f"ds_read_b32 v{B0+9}, v{tt+3} offset:8192")
            A(f"s_mov_b64 exec, s[{S_E0}:{S_E0+1}]")
            A(f"v_lshlrev_b32 v{tt+2}, 2, v{VLANE}"); A(f"v_add_u32 v{tt+2}, s{S_T1}, v{tt+2}")
            A("s_waitcnt lgkmcnt(0)")
            if DEFER:
                for n in range(5): A(f"v_add_f32 v{128+n}, v{B0+2*n}, v{B0+2*n+1}")
                A(f"v_mov_b32 v133, v{tt+2}")
            else:
                for n in range(4):
                    A(f"v_add_f32 v{B0+2*n}, v{B0+2*n}, v{B0+2*n+1}")
                    A.vm(f"global_atomic_add_f32 v{tt+2}, v{B0+2*n}, s[{S_WSP}:{S_WSP+1}] offset:{n*256}")
                A(f"v_add_f32 v{B0+8}, v{B0+8}, v{B0+9}")
                A(f"s_and_saveexec_b64 s[{S_E0}:{S_E0+1}], vcc")
                A.vm(f"global_atomic_add_f32 v{tt+2}, v{B0+8}, s[{S_WSP}:{S_WSP+1}] offset:1024", id="kvat")
                A(f"s_mov_b64 exec, s[{S_E0}:{S_E0+1}]")
            bgD(11)
            state["vfree"] = True
            A.stamp(5, "tr")
        A.stamp(6); A.stamp(6, "tr")
        if not LATE_R:
            while state["R"] < 36:
                bgR(3); bgD_safe(3)
            A("s_waitcnt lgkmcnt(0)")

class G2:
    ACC2 = 0; HB = 64; NH = 32; W2V = 192
    def __init__(self, A): self.A = A; self.w2 = W2(A)
    def poll(self, label, vaddr, nl, expect=None, novm=False):
        A = self.A; T = VT
        A(f"s_mov_b32 s{S_T3}, 0")
        A(f"s_mov_b64 s[{S_E0}:{S_E0+1}], exec"); A(f"s_mov_b64 exec, {(1<<nl)-1}")
        A.label(label)
        if novm: A.l.append(f"  global_load_dword v{T+9}, v{vaddr}, s[{S_WSP}:{S_WSP+1}] sc1")
        else: A.vm(f"global_load_dword v{T+9}, v{vaddr}, s[{S_WSP}:{S_WSP+1}] sc1")
        A("s_waitcnt vmcnt(0)")
        if expect is None: A(f"v_cmp_ne_u32 vcc, 0, v{T+9}")
        else: A(f"v_cmp_le_u32 vcc, {expect}, v{T+9}")
        A(f"s_add_u32 s{S_T3}, s{S_T3}, 1")
        A(f"s_cmp_ge_u32 s{S_T3}, {POLL_MAX}"); A(f"s_cbranch_scc1 {label}_x")
        A(f"s_cmp_eq_u64 vcc, exec"); A(f"s_cbranch_scc1 {label}_x")
        A("s_sleep 1"); A(f"s_branch {label}")
        A.label(label + "_x")
        A(f"s_mov_b64 exec, s[{S_E0}:{S_E0+1}]")
    def check(self, label, vreg, nl, expect=None):
        pass
    def body(self):
        A = self.A; T = VT; VL = VLANE
        ACC2 = 0; HB = 64; NH = 16; KVR0 = 128
        A.reset_vm()
        VFL, VKV, VCN = T+10, T+11, T+12
        VF1, VF2 = T+8, T+9
        srd(A, S_O, P_O, P_O+1, 2048*1024)
        srd(A, S_XX, P_X, P_X+1, 2048*1024)
        A(f"s_lshl_b32 s{S_HO}, s{S_TAU}, 2"); A(f"s_add_u32 s{S_HO}, s{S_HO}, s{S_WV}")
        A(f"s_lshl_b32 s{S_T0}, s{S_HO}, 6"); A(f"s_add_u32 s{S_T0}, s{S_T0}, {WS_FLAG}")
        A(f"v_lshlrev_b32 v{VFL}, 2, v{VL}"); A(f"v_add_u32 v{VFL}, s{S_T0}, v{VFL}")
        A(f"s_mul_i32 s{S_HO}, s{S_HO}, {36*2048}")
        A(f"s_add_u32 s{S_T4}, s{S_HO}, {56*1024}")
        A(f"s_mov_b32 s{S_HBASE}, s{S_HO}"); A(f"s_lshl_b32 s{S_HR}, s{S_RHO}, 11")
        A(f"v_and_b32 v{T}, 31, v{VL}"); A(f"v_lshrrev_b32 v{T+1}, 5, v{VL}")
        A(f"v_lshlrev_b32 v{T+2}, 4, v{T+1}"); A(f"v_add_u32 v{T+2}, v{T+2}, v{T}"); A(f"v_subrev_u32 v{T+2}, 16, v{T+2}"); A(f"v_lshlrev_b32 v{T+2}, 5, v{T+2}")
        A(f"v_lshlrev_b32 v{T+3}, 5, v{T+1}"); A(f"v_add_u32 v{T+3}, 1024, v{T+3}")
        A(f"v_cmp_gt_u32 vcc, 16, v{T}"); A("s_nop 1"); A(f"v_cndmask_b32 v{T+2}, v{T+2}, v{T+3}, vcc")
        A(f"s_lshl_b32 s{S_T0}, s{S_WV}, 3"); A(f"s_mul_i32 s{S_T0}, s{S_T0}, {KV_HEAD}"); A(f"s_add_u32 s{S_T0}, s{S_T0}, {WS_KV}")
        A(f"v_add_u32 v{VKV}, s{S_T0}, v{T+2}")
        A(f"s_lshl_b32 s{S_T0}, s{S_WV}, 9"); A(f"s_add_u32 s{S_T0}, s{S_T0}, {WS_KVCNT}")
        A(f"v_lshlrev_b32 v{VCN}, 6, v{VL}"); A(f"v_add_u32 v{VCN}, s{S_T0}, v{VCN}")
        A("s_barrier")
        def signal_block():
            A(f"s_cmp_ge_u32 s{S_CP}, 2"); A("s_cbranch_scc1 K12_sigB")
            A(f"s_lshl_b32 s{S_T0}, s{S_T}, 1"); A(f"s_add_u32 s{S_T0}, s{S_T0}, s{S_WM}"); A(f"s_lshl_b32 s{S_T0}, s{S_T0}, 2")
            A(f"s_lshr_b32 s{S_T1}, s{S_IDX}, 1"); A(f"s_add_u32 s{S_T0}, s{S_T0}, s{S_T1}"); A(f"s_lshl_b32 s{S_T0}, s{S_T0}, 4")
            A(f"s_lshl_b32 s{S_T1}, s{S_I1}, 1"); A(f"s_add_u32 s{S_T0}, s{S_T0}, s{S_T1}"); A(f"s_add_u32 s{S_T0}, s{S_T0}, s{S_WN}")
            A(f"s_add_u32 s{S_T0}, s{S_T0}, 8"); A(f"s_lshl_b32 s{S_T0}, s{S_T0}, 2"); A(f"s_add_u32 s{S_T0}, s{S_T0}, {WS_FLAG}")
            A(f"v_mov_b32 v{T+4}, s{S_T0}"); A(f"v_mov_b32 v{T+5}, 1")
            A(f"s_mov_b64 s[{S_E0}:{S_E0+1}], exec"); A("s_mov_b64 exec, 1")
            A(f"!global_store_dword v{T+4}, v{T+5}, s[{S_WSP}:{S_WSP+1}] sc1")
            A(f"s_mov_b64 exec, s[{S_E0}:{S_E0+1}]"); A("s_branch K12_sigX")
            A("K12_sigB:")
            A(f"s_lshl_b32 s{S_T0}, s{S_IDX}, 2"); A(f"s_add_u32 s{S_T0}, s{S_T0}, s{S_WV}"); A(f"s_lshl_b32 s{S_T0}, s{S_T0}, 6"); A(f"s_add_u32 s{S_T0}, s{S_T0}, {WS_KVCNT}")
            A(f"v_mov_b32 v{T+4}, s{S_T0}"); A(f"v_mov_b32 v{T+5}, 1")
            A(f"s_mov_b64 s[{S_E0}:{S_E0+1}], exec"); A("s_mov_b64 exec, 1")
            A(f"!global_atomic_add v{T+4}, v{T+5}, s[{S_WSP}:{S_WSP+1}] sc1")
            A(f"s_mov_b64 exec, s[{S_E0}:{S_E0+1}]")
            A("K12_sigX:")
        if not DEFER:
            A("s_waitcnt vmcnt(0)")
            signal_block()
        if OUT_TOUCH:
            A(f"s_lshl_b32 s{S_T0}, s{S_TAU}, 16"); A(f"s_lshl_b32 s{S_T1}, s{S_J}, 7"); A(f"s_add_u32 s{S_T0}, s{S_T0}, s{S_T1}"); A(f"v_mov_b32 v{T+6}, s{S_T0}")
            A("s_mov_b64 exec, 1"); A.vm(f"global_load_dword v{T+7}, v{T+6}, s[{P_O}:{P_O+1}]"); A("s_mov_b64 exec, -1")
        A.stamp(7); A.stamp(7, "tr")
        self.poll("K12_pollH", VFL, 8)
        A.stamp(8, "tr")
        A.stamp(8); A.stamp(1, "g2")
        hstate = {"off": 0}
        def h_items(f):
            o = []
            hb = HB + 4*(f % NH)
            if f % 2 == 0: o.append(f"s_add_u32 s{S_HO}, s{S_HBASE}, s{S_HR}")
            o.append(("vm", f"h{f}", f"buffer_load_dwordx4 v[{hb}:{hb+3}], v{VL16}, s[{S_H}:{S_H+3}], s{S_HO} offen offset:{(f%2)*1024} sc1"))
            if f % 2 == 1 and f < 55:
                o += [f"s_add_u32 s{S_HR}, s{S_HR}, 2048", f"s_cmp_eq_u32 s{S_HR}, {28*2048}", f"s_cselect_b32 s{S_HR}, 0, s{S_HR}"]
            return o
        def pq_items(g):
            return [f"s_add_u32 s{S_HO}, s{S_T4}, {(g//4)*4096}",
                    ("vm", f"pq{g}", f"buffer_load_dwordx4 a[{4*g}:{4*g+3}], v{VL16}, s[{S_H}:{S_H+3}], s{S_HO} offen offset:{(g%4)*1024} sc1")]
        def kv_items(h):
            b = KVR0 + 8*h
            pre = [f"s_mov_b64 exec, s[{S_C6}:{S_C6+1}]"] if KVMASK else []
            post = ["s_mov_b64 exec, -1"] if KVMASK else []
            return pre + [("vm", None, f"global_load_dwordx4 v[{b}:{b+3}], v{VKV}, s[{S_WSP}:{S_WSP+1}] sc1"),
                    ("vm", f"kv{h}", f"global_load_dwordx4 v[{b+4}:{b+7}], v{VKV}, s[{S_WSP}:{S_WSP+1}] offset:16 sc1")] + post + [
                    f"v_add_u32 v{VKV}, {KV_HEAD}, v{VKV}"]
        if KVMASK:
            A(f"s_mov_b32 s{S_C6}, 0xffff0011"); A(f"s_mov_b32 s{S_C6+1}, 0xffff0011")
        AHEAD = G2_AHEAD
        KVB = [KVR0 + 8*h for h in range(8)]
        DO = [224 - 32, 224 - 16]
        DO = [T - 16 - 16 + 0, 0]
        DO = [208, 224]
        DO = [HB + 32, HB + 48]
        OF = [T, T+4]
        loads = [("h", f) for f in range(56)]
        if TBM:
            for h in range(8): loads += [("kv", h), ("pq", 2*h)]
            for h in range(8): loads += [("pq", 2*h+1)]
        else:
            for h in range(8): loads += [("kv", h), ("pq", 2*h), ("pq", 2*h+1)]
        CHK = G2_CHK
        li = {"n": 0}
        def issue(n):
            o = []
            for _ in range(n):
                if li["n"] >= len(loads): break
                k, x = loads[li["n"]]; li["n"] += 1
                o.append(h_items(x) if k == "h" else (kv_items(x) if k == "kv" else pq_items(x)))
            return o
        A(f"s_mul_i32 s{S_T0}, s{S_J}, {7*1024}"); A(f"s_add_u32 s{S_T0}, s{S_T0}, s{S_HO}")
        for x in issue(4):
            for y in x: A(y)
        if G2_PF:
            for k in range(7):
                if k == 4: A(f"s_add_u32 s{S_T0}, s{S_T0}, 4096")
                A.vm(f"buffer_load_dwordx4 v[{T}:{T+3}], v{VL16}, s[{S_H}:{S_H+3}], s{S_T0} offen offset:{(k%4)*1024} sc1")
        for x in issue(AHEAD - 4):
            for y in x: A(y)
        if DEFER:
            A(f"s_cmp_ge_u32 s{S_CP}, 2"); A("s_cbranch_scc1 K12_defB")
            for tb in range(2):
                for hs in range(2):
                    pk = 128 + 4*(2*tb + hs)
                    A(f"!buffer_store_dwordx4 v[{pk}:{pk+3}], v{VL16}, s[{S_H}:{S_H+3}], s{23 if hs else 22} offen offset:{tb*1024} sc1")
            A(f"v_mov_b32 v{T+6}, 24576"); A("s_mov_b64 exec, 1")
            A(f"!global_load_dword v{T+7}, v{T+6}, s[{S_WSP}:{S_WSP+1}]")
            A("s_mov_b64 exec, -1"); A("s_branch K12_defX")
            A("K12_defB:")
            for n in range(4): A(f"!global_atomic_add_f32 v133, v{128+n}, s[{S_WSP}:{S_WSP+1}] offset:{n*256}")
            A("s_mov_b64 exec, 0xffff")
            A(f"!global_atomic_add_f32 v133, v132, s[{S_WSP}:{S_WSP+1}] offset:1024")
            A("s_mov_b64 exec, -1")
            A("K12_defX:")
            A.nvm += 5; A.ids["defer"] = A.nvm
        A.stamp(2, "g2")
        for i in range(28):
            if LATE_R and i == N_IN: A("s_waitcnt lgkmcnt(0)")
            A.wait(f"h{2*i+1}")
            if DEFER and i == S_SIG:
                assert A.ids[f"h{2*i+1}"] > A.ids["defer"]
                signal_block()
            if i == 1: A.stamp(3, "g2")
            gaps = [[] for _ in range(4)]
            if i == CHK - 5:
                gaps[0] += [f"v_add_u32 v{VFL}, 32, v{VFL}", f"s_mov_b64 s[{S_E0}:{S_E0+1}], exec", "s_mov_b64 exec, 15",
                            ("vm", "fq", f"global_load_dword v{VF1}, v{VFL}, s[{S_WSP}:{S_WSP+1}] sc1"), "s_mov_b64 exec, 255",
                            ("vm", "fkv", f"global_load_dword v{VF2}, v{VCN}, s[{S_WSP}:{S_WSP+1}] sc1"), f"s_mov_b64 exec, s[{S_E0}:{S_E0+1}]"]
            if LATE_R and i >= 2 and N_IN + (i - 2) < 36:
                rr = self.w2.R(N_IN + (i - 2))[1:]
                gaps[0] += rr[0]; gaps[3] += rr[1]
            n = 2
            if li["n"] + n > 56 and i < CHK: n = max(0, 56 - li["n"])
            for k, x in enumerate(issue(n)): gaps[1+k] += x
            mf = []
            for tb in range(2):
                hb = HB + 4*((2*i+tb) % NH)
                for nb in range(2):
                    a = ACC2 + 16*(2*nb+tb)
                    c = "0" if i == 0 else f"v[{a}:{a+15}]"
                    mf.append(f"v_mfma_f32_32x32x16_bf16 v[{a}:{a+15}], {self.w2.frag(i,nb)}, v[{hb}:{hb+3}], {c}")
            for g in range(4):
                A(mf[g])
                for x in gaps[g]: A(x)
            if i == CHK - 1:
                A.stamp(4, "g2")
                A.wait("fkv")
                A(f"s_mov_b64 s[{S_E0}:{S_E0+1}], exec"); A("s_mov_b64 exec, 15")
                A(f"v_cmp_ne_u32 vcc, 0, v{VF1}"); A("s_nop 3"); A("s_cmp_eq_u64 vcc, exec"); A(f"s_mov_b64 exec, s[{S_E0}:{S_E0+1}]")
                A("s_cbranch_scc1 K12_qok")
                self.poll("K12_pollQ", VFL, 4, novm=True)
                A.label("K12_qok")
                A(f"s_mov_b64 s[{S_E0}:{S_E0+1}], exec"); A("s_mov_b64 exec, 255")
                A(f"v_cmp_le_u32 vcc, 16, v{VF2}"); A("s_nop 3"); A("s_cmp_eq_u64 vcc, exec"); A(f"s_mov_b64 exec, s[{S_E0}:{S_E0+1}]")
                A("s_cbranch_scc1 K12_kvok")
                self.poll("K12_pollKV", VCN, 8, expect=16, novm=True)
                A.label("K12_kvok")
                A.stamp(5, "g2")
        A.stamp(6, "g2"); A.stamp(1, "att")
        A(f"v_lshrrev_b32 v{T+8}, 3, v{VTID}"); A(f"v_and_b32 v{T+9}, 7, v{VTID}")
        A(f"s_lshl_b32 s{S_T0}, s{S_TAU}, 16"); A(f"s_lshl_b32 s{S_T2}, s{S_J}, 7"); A(f"s_add_u32 s{S_T0}, s{S_T0}, s{S_T2}")
        VG = VFL
        A(f"v_lshlrev_b32 v{VG}, 10, v{T+8}"); A(f"v_lshlrev_b32 v{VCN}, 4, v{T+9}"); A(f"v_add_u32 v{VG}, v{VG}, v{VCN}")
        A(f"s_add_u32 s{S_T2}, s{S_T0}, {32*1024}")
        XR = HB
        A(f"s_mov_b32 s{S_T1}, 0x358637bd")
        A("s_waitcnt lgkmcnt(0)")
        units = [(h, tb) for tb in range(2) for h in range(8)] if TBM else [(h, tb) for h in range(8) for tb in range(2)]
        RS = 272; WSZ = 64*RS; VW = VCN
        A(f"v_and_b32 v{VW}, 31, v{VL}"); A(f"v_mul_u32_u24 v{VW}, {RS}, v{VW}"); A(f"v_lshrrev_b32 v{T+9}, 5, v{VL}"); A(f"v_lshlrev_b32 v{T+9}, 4, v{T+9}"); A(f"v_add_u32 v{VW}, v{VW}, v{T+9}")
        A(f"s_mul_i32 s{S_T3}, s{S_WV}, {WSZ}"); A(f"v_add_u32 v{VW}, s{S_T3}, v{VW}")
        def wr(tb, k):
            nb, q = k // 4, k % 4; a = ACC2 + 16*(2*nb+tb)
            return f"ds_write_b128 v{VW}, v[{a+4*q}:{a+4*q+3}] offset:{tb*32*RS + nb*128 + q*32}"
        def stA(u):
            h, tb = units[u]; d = DO[u & 1]
            o = []
            if tb == 0:
                o.append(("wait", [f"kv{h}", f"pq{2*h}"]))
                o += [f"v_cvt_pk_bf16_f32 v{KVB[h]+e}, v{KVR0+8*h+2*e}, v{KVR0+8*h+2*e+1}" for e in range(4)]
                o.append("s_nop 1")
            else: o.append(("wait", [f"pq{2*h+1}"]))
            o.append(f"v_mfma_f32_32x32x16_bf16 v[{d}:{d+15}], v[{KVB[h]}:{KVB[h]+3}], {ar(4*(2*h+tb), 4)}, 0")
            return o
        def stB(u):
            d = DO[u & 1]; o = OF[u & 1]; rc = T + 8
            l = [f"v_add_f32 v{rc}, s{S_T1}, v{d}", f"v_rcp_f32 v{rc}, v{rc}", "s_nop 0"]
            l += [f"v_mul_f32 v{d+8+e}, v{rc}, v{d+8+e}" for e in range(8)]
            l += [f"v_cvt_pk_bf16_f32 v{o+e}, v{d+8+2*e}, v{d+8+2*e+1}" for e in range(4)]
            return l
        def stC(u):
            h, tb = units[u]; o = OF[u & 1]; i = 28 + h
            return [f"v_mfma_f32_32x32x16_bf16 v[{ACC2+16*(2*nb+tb)}:{ACC2+16*(2*nb+tb)+15}], {self.w2.frag(i,nb)}, v[{o}:{o+3}], v[{ACC2+16*(2*nb+tb)}:{ACC2+16*(2*nb+tb)+15}]" for nb in range(2)]
        for x in stA(0): A(x)
        A.stamp(2, "att")
        for x in issue(1):
            for y in x: A(y)
        for x in stA(1): A(x)
        for x in issue(2):
            for y in x: A(y)
        A("s_nop 7"); A("s_nop 3")
        for x in stB(0): A(x)
        xdone = False
        for u in range(16):
            c = stC(u)
            nb_ = stB(u+1) if u + 1 < 16 else []
            if u in (2, 6, 10, 13): A.stamp({2:3, 6:4, 10:5, 13:6}[u], "att")
            A("s_nop 1"); A(c[0])
            for x in nb_[:5]: A(x)
            if u + 2 < 16:
                for x in stA(u+2): A(x)
            iss = issue(2)
            for x in iss:
                for y in x: A(y)
            if not iss and not xdone:
                A.vm(f"buffer_load_dwordx4 v[{XR}:{XR+3}], v{VG}, s[{S_XX}:{S_XX+3}], s{S_T0} offen", id="x0")
                A.vm(f"buffer_load_dwordx4 v[{XR+4}:{XR+7}], v{VG}, s[{S_XX}:{S_XX+3}], s{S_T2} offen", id="x1")
                xdone = True
            for x in nb_[5:10]: A(x)
            A(c[1])
            for x in nb_[10:]: A(x)
            if TBM and 9 <= u <= 12:
                A(wr(0, 2*(u-9))); A(wr(0, 2*(u-9)+1))
        assert xdone and li["n"] == len(loads)
        A.stamp(7, "g2"); A.stamp(7, "att")
        A(f"v_lshrrev_b32 v{T+2}, 3, v{VTID}"); A(f"v_and_b32 v{T+3}, 7, v{VTID}")
        A(f"v_mul_u32_u24 v{T+6}, {RS}, v{T+2}"); A(f"v_lshlrev_b32 v{T+7}, 5, v{T+3}"); A(f"v_add_u32 v{T+6}, v{T+6}, v{T+7}")
        if not TBM:
            A("s_nop 7")
            for k in range(8): A(wr(0, k))
        A("s_nop 7"); A("s_nop 1")
        for k in range(8): A(wr(1, k))
        A("s_waitcnt lgkmcnt(0)"); A("s_barrier")
        A.stamp(8, "g2"); A.stamp(8, "att")
        for ps in range(2):
            b = 72 + 40*ps
            for w in range(4):
                A(f"ds_read_b128 v[{b+8*w}:{b+8*w+3}], v{T+6} offset:{w*WSZ + ps*32*RS}")
                A(f"ds_read_b128 v[{b+8*w+4}:{b+8*w+7}], v{T+6} offset:{w*WSZ + ps*32*RS + 16}")
        for ps in range(2):
            b = 72 + 40*ps
            A(f"s_waitcnt lgkmcnt({8 if ps == 0 else 0})")
            for e in range(0, 8, 2):
                A(f"v_pk_add_f32 v[{b+e}:{b+e+1}], v[{b+e}:{b+e+1}], v[{b+8+e}:{b+8+e+1}]")
                A(f"v_pk_add_f32 v[{b+16+e}:{b+16+e+1}], v[{b+16+e}:{b+16+e+1}], v[{b+24+e}:{b+24+e+1}]")
            for e in range(0, 8, 2):
                A(f"v_pk_add_f32 v[{b+e}:{b+e+1}], v[{b+e}:{b+e+1}], v[{b+16+e}:{b+16+e+1}]")
            A.wait(f"x{ps}")
            xb = XR + 4*ps
            for e in range(4):
                A(f"v_lshlrev_b32 v{T+8}, 16, v{xb+e}"); A(f"v_and_b32 v{T+9}, 0xffff0000, v{xb+e}")
                A(f"v_pk_add_f32 v[{b+2*e}:{b+2*e+1}], v[{b+2*e}:{b+2*e+1}], v[{T+8}:{T+9}]")
                A(f"v_cvt_pk_bf16_f32 v{b+32+e}, v{b+2*e}, v{b+2*e+1}")
            A.vm(f"buffer_store_dwordx4 v[{b+32}:{b+35}], v{VG}, s[{S_O}:{S_O+3}], s{S_T0 if ps == 0 else S_T2} offen")

def gen_k12():
    A = Prog()
    prologue_common(A)
    A(f"s_cmp_ge_u32 s{S_CP}, 2"); A("s_cbranch_scc1 K12_typeB")
    base_nvm = A.nvm; base_ids = dict(A.ids)
    for typ in ("A", "B"):
        if typ == "B":
            A.label("K12_typeB"); A.nvm = base_nvm; A.ids = dict(base_ids)
        g = G1(A, typ)
        g.prologue()
        if STAMP and SMODE == "wait":
            for c in (1,2,3,4,5,6,7): A(f"s_mov_b32 s{SB+2*c}, 0")
            A(f"s_memtime s[{SB+8}:{SB+9}]"); A("s_waitcnt lgkmcnt(0)")
        A.inloop = True
        g.loop()
        A.inloop = False
        if STAMP and SMODE == "wait":
            A(f"s_memtime s[{SB+10}:{SB+11}]"); A("s_waitcnt lgkmcnt(0)"); A(f"s_sub_u32 s{SB+8}, s{SB+10}, s{SB+8}")
        print(f"type {typ}: leftover W2 items after loop: {g.nleft}", file=sys.stderr)
        A.stamp(4); A.stamp(8, "loop"); A.stamp(8, "init"); A.stamp(5, "init")
        g.transition()
        if typ == "A": A("s_branch K12_g2")
    A.label("K12_g2")
    G2(A).body()
    if STAMP:
        A("s_waitcnt vmcnt(0) lgkmcnt(0)")
        A(f"{STAMP_INS} s[60:61]")
        A("s_waitcnt lgkmcnt(0)")
        A(f"s_lshl_b32 s{S_T0}, s2, 2"); A(f"s_add_u32 s{S_T0}, s{S_T0}, s{S_WV}"); A(f"s_lshl_b32 s{S_T0}, s{S_T0}, 6")
        A(f"s_add_u32 s{S_T0}, s{S_T0}, {WS_STAMP + 65536}")
        A(f"v_mov_b32 v{VT}, s{S_T0}")
        for i in range(9):
            A(f"v_mov_b32 v{VT+1}, s{SB+2*i}")
            A.vm(f"global_store_dword v{VT}, v{VT+1}, s[{S_WSP}:{S_WSP+1}] offset:{4*i}")
        A(f"v_mov_b32 v{VT+1}, s60")
        A.vm(f"global_store_dword v{VT}, v{VT+1}, s[{S_WSP}:{S_WSP+1}] offset:36")
    if STAMP and DBGSTAMP:
        A(f"s_cmp_eq_u32 s{S_WV}, 0"); A("s_cbranch_scc0 K12_end")
        A("s_mov_b64 exec, 1")
        for i in range(9):
            A(f"v_mov_b32 v{VT}, {4*(1+i)}"); A(f"v_mov_b32 v{VT+1}, s{SB+2*i}")
            A.vm(f"global_atomic_umax v{VT}, v{VT+1}, s[{S_DBG}:{S_DBG+1}]")
        A(f"v_mov_b32 v{VT}, 40"); A(f"v_mov_b32 v{VT+1}, s60"); A.vm(f"global_atomic_umax v{VT}, v{VT+1}, s[{S_DBG}:{S_DBG+1}]")
        A(f"s_not_b32 s{S_T0}, s{SB}"); A(f"v_mov_b32 v{VT}, 44"); A(f"v_mov_b32 v{VT+1}, s{S_T0}"); A.vm(f"global_atomic_umax v{VT}, v{VT+1}, s[{S_DBG}:{S_DBG+1}]")
    A.label("K12_end")
    return A.text()

def main(path):
    hdr = open("cdna_kernels/" + NAME + ".s.ref").read().split("; Override")[0]
    n = NAME + "_kernel"
    body = gen_k12()
    out = hdr + "; @launch grid=(256,1,1) block=(256,1,1) lds=163840\n"
    out += '.amdgcn_target "amdgcn-amd-amdhsa--gfx950"\n.text\n'
    out += f""".globl {n}
.p2align 8
.type {n},@function
{n}:
{body}
  s_endpgm
.section .rodata,"a"
.p2align 6
.amdhsa_kernel {n}
  .amdhsa_next_free_vgpr 512
  .amdhsa_next_free_sgpr 102
  .amdhsa_accum_offset 256
  .amdhsa_group_segment_fixed_size 0
  .amdhsa_kernarg_size 80
  .amdhsa_user_sgpr_count 2
  .amdhsa_user_sgpr_kernarg_segment_ptr 1
  .amdhsa_system_sgpr_workgroup_id_x 1
.end_amdhsa_kernel
"""
    open(path, "w").write(out)

if __name__ == "__main__":
    if "--stamp" in sys.argv:
        STAMP = True; sys.argv.remove("--stamp")
    for a in list(sys.argv):
        if a.startswith("--nin="): N_IN = int(a[6:]); sys.argv.remove(a)
        if a.startswith("--smode="): SMODE = a[8:]; sys.argv.remove(a)
        if a.startswith("--ahead="): G2_AHEAD = int(a[8:]); sys.argv.remove(a)
        if a.startswith("--chk="): G2_CHK = int(a[6:]); sys.argv.remove(a)
        if a.startswith("--pf="): G2_PF = int(a[5:]); sys.argv.remove(a)
        if a.startswith("--cpf2="): CODE_PF2 = int(a[7:]); sys.argv.remove(a)
        if a.startswith("--wsh="): WS_H = int(a[6:])*1048576; sys.argv.remove(a)
        if a == "--dbgstamp": DBGSTAMP = 1; sys.argv.remove(a)
        if a.startswith("--w2rot="): W2ROT = int(a[8:]); sys.argv.remove(a)
        if a.startswith("--w2start="): W2_START = int(a[10:]); sys.argv.remove(a)
        if a.startswith("--later="): LATE_R = int(a[8:]); sys.argv.remove(a)
        if a.startswith("--bed="): B_EARLY_D = int(a[6:]); sys.argv.remove(a)
        if a.startswith("--ftb="): FLAG_TB = int(a[6:]); sys.argv.remove(a)
        if a.startswith("--pt="): K_PT = int(a[5:]); sys.argv.remove(a)
        if a.startswith("--tt="): TLB_TOUCH = int(a[5:]); sys.argv.remove(a)
        if a.startswith("--hinit="):
            H_INIT = int(a[8:]); K_INITLD = 2*H_INIT - 4; K_CSAT = 2*H_INIT; H_CS = H_INIT + 3; sys.argv.remove(a)
        if a.startswith("--rot2="): ROT2 = int(a[7:]); sys.argv.remove(a)
        if a.startswith("--kvmask="): KVMASK = int(a[9:]); sys.argv.remove(a)
        if a.startswith("--wopf="): K_WOPF = int(a[7:]); sys.argv.remove(a)
        if a.startswith("--defer="): DEFER = int(a[8:]); sys.argv.remove(a)
        if a.startswith("--cpf1="): CODE_PF1 = int(a[7:]); sys.argv.remove(a)
        if a.startswith("--zlate="): ZLATE = int(a[8:]); sys.argv.remove(a)
        if a.startswith("--tbm="): TBM = int(a[6:]); sys.argv.remove(a)
        if a.startswith("--gate="): GATE = int(a[7:]); sys.argv.remove(a)
        if a.startswith("--tt3="): TT3 = int(a[6:]); sys.argv.remove(a)
        if a.startswith("--pqlate="): PQ_LATE = int(a[9:]); sys.argv.remove(a)
        if a.startswith("--ftba="): FLAG_TB_A = int(a[7:]); sys.argv.remove(a)
        if a.startswith("--ot="): OUT_TOUCH = int(a[5:]); sys.argv.remove(a)
        if a.startswith("--phid="): PHI_D = int(a[7:]); sys.argv.remove(a)
        if a.startswith("--x1e="): X1_EARLY = int(a[6:]); sys.argv.remove(a)
        if a.startswith("--rot="): ROT = int(a[6:]); sys.argv.remove(a)
        if a.startswith("--cap="): CAP = int(a[6:]); sys.argv.remove(a)
    if "--cyc" in sys.argv:
        STAMP = True; STAMP_INS = "s_memtime"; sys.argv.remove("--cyc")
    main(sys.argv[1] if len(sys.argv) > 1 else "cdna_kernels/" + NAME + ".s")
```

```python
import sys

NAME = "parallel_sum__linear_attn_block__glu_gated_bilinear__prompt"
WS_M, WS_R, WS_KV, KV_HEAD = 0, 8192, 32768, 1152
WS_FLAG = WS_KV + 36864
WS_KVCNT = WS_FLAG + 8192
WS_CS = WS_KVCNT + 2048
WS_STCNT = WS_CS + 20480
WS_CSCNT = WS_STCNT + 2048
NZERO = 18
assert WS_CSCNT + 2048 <= WS_KV + NZERO*4096 <= 131072
DBG_INIT = 0
CS_TMP = 140
A_ONES = 220
VC1, VC2, VC3 = 251, 252, 253
WS_H = 131072
H_BYTES = 32*4*36*2048
POLL_MAX = 200000
STAMP = False
STAMP_INS = 's_memrealtime'
WS_STAMP = 1 << 24
SB = 84
CORR_AT = 28
N_IN = 28
CAP = 5
SMODE = 'main'
ROT = 8
PHI_D = 0
EARLY_POLL = 1
OUT_TOUCH = 0
PQ_LATE = 0
TT3 = 0
GATE = 0
TBM = 0
CODE_PF1 = 1
ZLATE = 0
H_Z = 2
DEFER = 0
S_SIG = 6
K_WOPF = 0
ROT2 = 1
KVMASK = 0
TLB_TOUCH = 0
K_PT = 0
FLAG_TB = 1
FLAG_TB_A = 0
B_EARLY_D = 1
LATE_R = 1
X1_EARLY = 1
W2ROT = 1
DBGSTAMP = 0
CODE_PF2 = 0
G2_AHEAD = 12; G2_CHK = 20; G2_PF = 0
K_INITLD = 6; H_INIT = 5; K_CSAT = 10; H_CS = 8; K_CNTLD = 18; H_CNT = 11; K_RANK = 25
CODE_KB = 48

class Prog:
    def __init__(self): self.l = []; self.nvm = 0; self.ids = {}; self.pos = {}; self.inloop = False
    def __call__(self, s):
        if s is None: return
        if isinstance(s, tuple):
            if s[0] == "vm":
                self.l.append("  " + s[2]); self.nvm += 1
                if s[1] is not None: self.ids[s[1]] = self.nvm; self.pos[s[1]] = len(self.l)
            elif s[0] == "stamp":
                self.stamp(s[1], s[2])
            elif s[0] == "vmu":
                self.l.append("  " + s[2]); self.ids[s[1]] = self.nvm
            elif s[0] == "wait":
                last = max(self.ids[i] for i in s[1])
                n = self.nvm - last
                assert n <= 63, (s, n)
                if STAMP and SMODE == "wait" and self.inloop:
                    cat = 2 if s[1][0].startswith("w2_") else (1 if s[1][0].startswith("W") else 3)
                    self.l.append(f"  s_memtime s[98:99]"); self.l.append("  s_waitcnt lgkmcnt(0)")
                    self.l.append(f"  s_waitcnt vmcnt({n})")
                    self.l.append(f"  s_memtime s[100:101]"); self.l.append("  s_waitcnt lgkmcnt(0)")
                    self.l.append(f"  s_sub_u32 s100, s100, s98"); self.l.append(f"  s_add_u32 s{SB+2*cat}, s{SB+2*cat}, s100")
                    return
                self.l.append(f"  s_waitcnt vmcnt({n})" + (" " + s[2] if len(s) > 2 and s[2] else ""))
            else: raise ValueError(s)
        elif s.endswith(":"): self.l.append(s)
        elif s.startswith("!"):
            self.l.append("  " + s[1:])
        else:
            assert not ("buffer_" in s or "global_" in s), s
            self.l.append("  " + s)
    def vm(self, text, id=None): self(("vm", id, text))
    def wait(self, *ids): self(("wait", list(ids)))
    def label(self, s): self.l.append(s + ":")
    def text(self): return "\n".join(self.l)
    def stamp(self, i, mode="main"):
        if STAMP and (mode == SMODE or i == 0): self.l.append(f"  {STAMP_INS} s[{SB+2*i}:{SB+2*i+1}]")
    def reset_vm(self):
        self.ids = {}

def vr(b, n=1): return f"v{b}" if n == 1 else f"v[{b}:{b+n-1}]"
def ar(b, n=1): return f"a{b}" if n == 1 else f"a[{b}:{b+n-1}]"
def srd(A, d, lo, hi, size):
    A(f"s_mov_b32 s{d}, s{lo}"); A(f"s_and_b32 s{d+1}, s{hi}, 0xffff"); A(f"s_mov_b32 s{d+2}, {size}"); A(f"s_mov_b32 s{d+3}, 0x20000")
def srd_off(A, d, lo, hi, off, size):
    A(f"s_add_u32 s{d}, s{lo}, {off}"); A(f"s_addc_u32 s{d+1}, s{hi}, 0"); A(f"s_and_b32 s{d+1}, s{d+1}, 0xffff")
    if isinstance(off, int): A(f"s_mov_b32 s{d+2}, {size - off}")
    else: A(f"s_sub_u32 s{d+2}, {size}, {off}")
    A(f"s_mov_b32 s{d+3}, 0x20000")

X_BASE = 0; X_SLOT = 16384
W_BASE = 49152; W_SLOT = 20480; W_NS = 3
W2IN = W_BASE + W_NS*W_SLOT
NSL = 6
LDS_R = W2IN + 4*NSL*2048
LDS_KV = 0
W2_START = 1
W2POST = 69632; NPOST = 11
DLAG = 5

ACC = 0; WF = 160; XF = 200; TRA = 216; XA = 221; VOW = 225; VOX = 230
VR = 234; VLANE = 236; VL16 = 237; VTID = 238; VDM = 239
VT = 240
VTR = 254; VTR1 = 255
AMF = 228; ACF = 236
def acc(blk, tb): return ACC + (blk*2+tb)*16

S_X = 4; S_W = 8; S_H = 28; S_WSP = 32
S_WV = 34; S_WM = 35; S_WN = 36; S_T = 37; S_IDX = 38
S_KW = 39; S_KH = 40; S_R30 = 41; S_R35 = 42; S_RH = 43; S_KX = 44; S_W1K = 45; S_W4K = 46; S_XB = 47
S_WD = 48; S_LB = 52; S_W2O = 53
S_W2B = 74; S_W2R = 75; S_W2T = 76; S_RHO = 77; S_HR = 75; S_HBASE = 74
S_T0 = 54; S_T1 = 55; S_T2 = 56; S_T3 = 57; S_T4 = 58; S_XO = 59
S_E0 = 60; S_E2 = 62
S_P = 64
P_X, P_WQ, P_WO, P_G, P_U, P_D, P_O = 64, 66, 68, 72, 74, 76, 78
S_DBG = 72; S_KSC = 66; S_CG = 67
S_HB = 80; S_I1 = 81; S_CP = 82; S_TAU = 83; S_J = 70; S_HO = 71
S_WO = 8; S_O = 12; S_XX = 16
S_C6 = 20

def w2row(i):
    if i < 16: return ("D", 256, 16*i)
    if i < 24: return ("D", 128, 1024 + 16*(i-16))
    if i < 28: return ("D", 64, 1536 + 16*(i-24))
    return ("O", 128, 16*(i-28))

class W2:
    def __init__(self, A, vdm2=None): self.A = A; self.vdm2 = vdm2
    def frag(self, ks, nb, W2V=192):
        f = ks*2 + nb
        return ar(4*f, 4) if f < 64 else vr(W2V + 4*(f-64), 4)
    def half(self, ks, nb, h, W2V=192):
        f = ks*2 + nb
        return ar(4*f + 2*h, 2) if f < 64 else vr(W2V + 4*(f-64) + 2*h, 2)
    def slot_off(self, i):
        return (i % NSL)*2048 if i < N_IN else ((i - N_IN) % NPOST)*2048
    def D(self, i):
        o = []
        if i < 28: s, so = S_WD, S_W2R
        else:
            s, so = S_WO, S_W2O
            o.append([f"s_mov_b32 s{S_W2O}, {16*(i-28)*1024}"])
        d0 = ("dma", f"s_add_u32 m0, s{S_LB}, {self.slot_off(i)}", ("vm", f"w2_{i}_0", f"buffer_load_dwordx4 v{VDM}, s[{s}:{s+3}], s{so} offen lds"))
        o.append(d0)
        o.append(("dma", f"s_add_u32 m0, s{S_LB}, {self.slot_off(i) + 1024}", ("vm", f"w2_{i}_1", f"buffer_load_dwordx4 v{self.vdm2}, s[{s}:{s+3}], s{so} offen lds")))
        if i < 27:
            o.append([f"s_add_u32 s{S_W2R}, s{S_W2R}, 16384", f"s_cmp_eq_u32 s{S_W2R}, {28*16384}", f"s_cselect_b32 s{S_W2R}, 0, s{S_W2R}"])
        return o
    def R(self, i):
        o = self.slot_off(i)
        r = [[("wait", [f"w2_{i}_1"])]]
        for nb in range(2):
            va = VTR if nb == 0 else VTR1
            r.append([f"ds_read_b64_tr_b16 {self.half(i, nb, 0)}, v{va} offset:{o}", f"ds_read_b64_tr_b16 {self.half(i, nb, 1)}, v{va} offset:{o+1024}"])
        return r

def emit_items(A, items):
    for it in items:
        if isinstance(it, tuple) and it[0] == "dma":
            A(it[1]); A("s_nop 0"); A(it[2])
        else:
            for s in it: A(s)

def prologue_common(A):
    A("s_cmp_ge_u32 s2, 256"); A("s_cbranch_scc1 K12_end")
    A.stamp(0)
    A(f"s_load_dwordx16 s[{S_P}:{S_P+15}], s[0:1], 0")
    A(f"s_load_dwordx2 s[{S_WSP}:{S_WSP+1}], s[0:1], 72")
    A(f"s_getpc_b64 s[{S_E2}:{S_E2+1}]")
    A("K12_pc:")
    A(f"v_and_b32 v{VLANE}, 63, v0")
    A(f"v_lshrrev_b32 v{VT}, 6, v0")
    A(f"v_mov_b32 v{VTID}, v0")
    A(f"v_lshlrev_b32 v{VL16}, 4, v{VLANE}")
    if TLB_TOUCH:
        A(f"v_lshlrev_b32 v{WF+28}, 3, v{VLANE}")
        A("s_mov_b64 exec, 0x1ff")
        A.vm(f"global_load_dwordx2 v[{WF+30}:{WF+31}], v{WF+28}, s[0:1]", id="kptr")
        A("s_mov_b64 exec, -1")
    A(f"v_readfirstlane_b32 s{S_WV}, v{VT}")
    A(f"s_and_b32 s{S_T0}, s2, 7"); A(f"s_lshr_b32 s{S_T1}, s2, 3")
    A(f"s_lshl_b32 s{S_T2}, s{S_T1}, 2"); A(f"s_add_u32 s{S_T2}, s{S_T2}, s{S_WV}"); A(f"s_min_u32 s{S_T2}, s{S_T2}, ((K12_end-K12_pc)>>10)-1"); A(f"s_lshl_b32 s{S_T2}, s{S_T2}, 10")
    A(f"v_add_u32 v{VT+4}, s{S_T2}, v{VL16}")
    if CODE_PF1: A.vm(f"global_load_dwordx4 v[{WF+36}:{WF+39}], v{VT+4}, s[{S_E2}:{S_E2+1}]")
    A(f"s_and_b32 s{S_T2}, s{S_T1}, 7"); A(f"s_lshr_b32 s{S_CP}, s{S_T1}, 3")
    A(f"s_lshr_b32 s{S_T}, s{S_T0}, 2"); A(f"s_lshl_b32 s{S_T}, s{S_T}, 3"); A(f"s_add_u32 s{S_T}, s{S_T}, s{S_T2}")
    A(f"s_and_b32 s{S_IDX}, s{S_T0}, 3"); A(f"s_lshl_b32 s{S_IDX}, s{S_IDX}, 1")
    A(f"s_and_b32 s{S_T3}, s{S_CP}, 1"); A(f"s_add_u32 s{S_IDX}, s{S_IDX}, s{S_T3}")
    A(f"s_and_b32 s{S_TAU}, s{S_T1}, 3"); A(f"s_lshl_b32 s{S_T3}, s{S_T0}, 2"); A(f"s_add_u32 s{S_TAU}, s{S_TAU}, s{S_T3}")
    A(f"s_lshr_b32 s{S_T4}, s{S_T1}, 2")
    A(f"s_add_u32 s{S_T0}, s{S_CP}, s{S_T2}"); A(f"s_and_b32 s{S_T0}, s{S_T0}, 3"); A(f"s_lshl_b32 s{S_T0}, s{S_T0}, 1")
    A(f"s_lshr_b32 s{S_T1}, s{S_T2}, 2"); A(f"s_add_u32 s{S_T0}, s{S_T0}, s{S_T1}")
    if ROT2: A(f"s_add_u32 s{S_T0}, s{S_CP}, s{S_T2}"); A(f"s_and_b32 s{S_T0}, s{S_T0}, 7")
    A(f"s_lshl_b32 s{S_KW}, s{S_T0}, 6")
    A(f"s_lshr_b32 s{S_WM}, s{S_WV}, 1"); A(f"s_and_b32 s{S_WN}, s{S_WV}, 1")
    t0, t1, t3, t4 = VT, VT+1, VT+3, VT+4
    A(f"v_lshrrev_b32 v{t0}, 3, v{VLANE}"); A(f"v_and_b32 v{t1}, 7, v{VLANE}")
    A(f"v_lshrrev_b32 v{t3}, 4, v{VLANE}"); A(f"v_xor_b32 v{t3}, v{t1}, v{t3}"); A(f"v_lshlrev_b32 v{t3}, 4, v{t3}")
    A(f"v_lshlrev_b32 v{t4}, 10, v{t0}"); A(f"v_add_u32 v{VOX}, v{t3}, v{t4}")
    A(f"v_xor_b32 v{VOX+1}, 64, v{VOX}"); A(f"v_add_u32 v{VOX+1}, {8*1024}, v{VOX+1}")
    A(f"v_add_u32 v{VOX+2}, {16*1024}, v{VOX}"); A(f"v_add_u32 v{VOX+3}, {16*1024}, v{VOX+1}")
    A(f"s_lshl_b32 s{S_XB}, s{S_T}, 7"); A(f"s_lshl_b32 s{S_T0}, s{S_WV}, 5"); A(f"s_add_u32 s{S_XB}, s{S_XB}, s{S_T0}"); A(f"s_lshl_b32 s{S_XB}, s{S_XB}, 10")
    A(f"s_lshl_b32 s{S_KX}, s{S_KW}, 1")
    A(f"s_and_b32 s{S_T0}, s{S_WV}, 1"); A(f"s_lshl_b32 s{S_T0}, s{S_T0}, 4"); A(f"s_add_u32 s{S_KH}, s{S_KW}, s{S_T0}")
    A(f"s_lshl_b32 s{S_T0}, s{S_WV}, 3"); A(f"s_add_u32 s{S_KW}, s{S_KW}, s{S_T0}")
    A(f"s_lshl_b32 s{S_W1K}, s{S_WV}, 10"); A(f"s_lshl_b32 s{S_W4K}, s{S_WV}, 12")
    A(f"s_lshr_b32 s{S_T0}, s{S_CP}, 1"); A(f"s_lshl_b32 s{S_T0}, s{S_T0}, 3"); A(f"s_add_u32 s{S_T3}, s{S_T0}, s{S_IDX}")
    A(f"s_lshl_b32 s{S_T0}, s{S_T}, 7"); A(f"s_lshl_b32 s{S_T1}, s{S_T3}, 3"); A(f"s_add_u32 s{S_T0}, s{S_T0}, s{S_T1}"); A(f"s_lshl_b32 s{S_T1}, s{S_WV}, 1"); A(f"s_add_u32 s{S_T2}, s{S_T0}, s{S_T1}")
    A(f"s_lshl_b32 s{S_T0}, s{S_T2}, 10"); A(f"v_add_u32 v{VT+5}, s{S_T0}, v{VL16}")
    if TLB_TOUCH:
        A.wait("kptr")
        A("s_mov_b64 exec, 0x1ff")
        A.vm(f"global_load_dword v{WF+29}, v[{WF+30}:{WF+31}], off offset:128")
        A("s_mov_b64 exec, -1")
    A.stamp(1, "pro")
    if GATE:
        A(f"s_load_dwordx2 s[{S_E0}:{S_E0+1}], s[0:1], 64")
    A("s_waitcnt lgkmcnt(0)")
    if GATE:
        A(f"s_cmp_eq_u32 s{S_WV}, 0"); A("s_cbranch_scc0 K12_gate_w")
        A(f"v_mov_b32 v{VT+8}, 192"); A(f"v_mov_b32 v{VT+9}, 1"); A("s_mov_b64 exec, 1")
        A(f"!global_atomic_add v{VT+8}, v{VT+9}, s[{S_E0}:{S_E0+1}] sc1")
        A(f"s_mov_b32 s{S_T1+0}, 0") if False else None
        A(f"s_mov_b32 s3, 0")
        A("K12_gate_l:")
        A(f"!global_load_dword v{VT+9}, v{VT+8}, s[{S_E0}:{S_E0+1}] sc1"); A("s_waitcnt vmcnt(0)")
        A(f"v_readfirstlane_b32 s{S_E2}, v{VT+9}"); A("s_add_u32 s3, s3, 1"); A(f"s_cmp_ge_u32 s3, {POLL_MAX}"); A("s_cbranch_scc1 K12_gate_x")
        A(f"s_cmp_ge_u32 s{S_E2}, 256"); A("s_cbranch_scc1 K12_gate_x"); A(f"s_sleep {GATE}"); A("s_branch K12_gate_l")
        A("K12_gate_x:"); A("s_mov_b64 exec, -1")
        A("K12_gate_w:"); A("s_barrier")
    if TLB_TOUCH:
        A(f"v_mov_b32 v{WF+28}, 24576"); A("s_mov_b64 exec, 1")
        A.vm(f"global_load_dword v{WF+32}, v{WF+28}, s[{S_WSP}:{S_WSP+1}]")
        A("s_mov_b64 exec, -1")
    A.stamp(2, "pro")
    if TT3:
        lo, hi = WF+30, WF+31
        A(f"v_mov_b32 v{lo}, s{P_WQ}"); A(f"v_mov_b32 v{hi}, s{P_WQ+1}")
        for ln, p in ((1, P_G), (2, P_U)):
            A(f"v_writelane_b32 v{lo}, s{p}, {ln}"); A(f"v_writelane_b32 v{hi}, s{p+1}, {ln}")
        A("s_mov_b64 exec, 7")
        A.vm(f"global_load_dword v{WF+29}, v[{lo}:{hi}], off")
        A("s_mov_b64 exec, -1")
    A(f"s_mov_b32 s{S_J}, s{S_T4}")
    if not ZLATE:
        A(f"s_cmp_ge_u32 s2, {NZERO}"); A("s_cbranch_scc1 K12_nozero")
        A(f"s_lshl_b32 s{S_T0}, s2, 12"); A(f"s_add_u32 s{S_T0}, s{S_T0}, {WS_KV}")
        A(f"v_lshlrev_b32 v{VT+6}, 4, v{VTID}"); A(f"v_add_u32 v{VT+6}, s{S_T0}, v{VT+6}")
        for i in range(4): A(f"v_mov_b32 v{VT+8+i}, 0")
        A(f"!global_store_dwordx4 v{VT+6}, v[{VT+8}:{VT+11}], s[{S_WSP}:{S_WSP+1}] sc1")
        A("K12_nozero:")
    SX = WF + 20
    A.vm(f"global_load_dwordx4 v[{SX}:{SX+3}], v{VT+5}, s[{P_X}:{P_X+1}]")
    A.vm(f"global_load_dwordx4 v[{SX+4}:{SX+7}], v{VT+5}, s[{P_X}:{P_X+1}] offset:1024", id="strow")
    A(f"s_lshl_b32 s{S_HB}, s{S_T2}, 2")
    A(f"s_mov_b32 s{S_I1}, s{S_T3}")
    srd(A, S_X, P_X, P_X+1, 2048*1024)

class G1:
    def __init__(self, A, typ):
        self.A = A; self.typ = typ; self.w2 = W2(A, 227 if typ == 'A' else 226)
        self.kinds = ["gu","gu","gu","gu","q"] if typ == "A" else ["k","v","gu","gu","guh"]
        if typ == "A": self.strides = [3584,3584,3584,3584,3072]; self.swz = ["g","u","g","u","q"]
        else: self.strides = [3072,3072,3584,3584,3584]; self.swz = ["q","q","g","u","h"]
    def vow(self, rho):
        key = (self.swz[rho], self.strides[rho])
        for r in range(rho + 1):
            if (self.swz[r], self.strides[r]) == key: return VOW + r
    def Wg(self, h):
        o = []
        if h > 0:
            o.append([f"s_add_u32 s{S_KW}, s{S_KW}, 32", f"s_and_b32 s{S_KW}, s{S_KW}, 511"])
            if self.typ == "B": o.append([f"s_add_u32 s{S_KH}, s{S_KH}, 32", f"s_and_b32 s{S_KH}, s{S_KH}, 511"])
        o.append([f"s_mul_i32 s{S_R30}, s{S_KW}, 3072", f"s_mul_i32 s{S_R35}, s{S_KW}, 3584"])
        if self.typ == "B": o.append([f"s_mul_i32 s{S_RH}, s{S_KH}, 3584"])
        for rho in range(5):
            so = S_RH if self.swz[rho] == "h" else (S_R30 if self.strides[rho] == 3072 else S_R35)
            o.append(("dma", f"s_add_u32 m0, s{S_W1K}, {W_BASE + (h % W_NS)*W_SLOT + rho*4096}",
                      ("vm", f"W{h}_{rho}", f"buffer_load_dwordx4 v{self.vow(rho)}, s[{S_W+4*rho}:{S_W+4*rho+3}], s{so} offen lds")))
        return o
    def Xg(self, sg):
        o = []
        if sg > 0: o.append([f"s_add_u32 s{S_KX}, s{S_KX}, 128", f"s_and_b32 s{S_KX}, s{S_KX}, 1023"])
        o.append([f"s_add_u32 s{S_XO}, s{S_XB}, s{S_KX}"])
        for j in range(4):
            o.append(("dma", f"s_add_u32 m0, s{S_W4K}, {X_BASE + (sg % 3)*X_SLOT + j*1024}",
                      ("vm", f"X{sg}_{j}", f"buffer_load_dwordx4 v{VOX+j}, s[{S_X}:{S_X+3}], s{S_XO} offen lds")))
        return o
    def reads(self, s):
        par = s & 1; kk = s & 3; sg = s >> 2; h = s >> 1; second = s & 1
        xo = (sg % 3)*X_SLOT
        o = [f"ds_read_b128 v[{XF+8*par}:{XF+8*par+3}], v{XA+kk} offset:{xo}", f"ds_read_b128 v[{XF+8*par+4}:{XF+8*par+7}], v{XA+kk} offset:{xo+4096}"]
        for blk, kd in enumerate(self.kinds):
            b = WF + 20*par + 4*blk
            if kd == "guh": o1, o2 = (1024 if second else 0), 256
            else: o1, o2 = (2048 if second else 0), 512
            o1 += (h % W_NS)*W_SLOT
            o.append(f"ds_read_b64_tr_b16 v[{b}:{b+1}], v{TRA+blk} offset:{o1}")
            o.append(f"ds_read_b64_tr_b16 v[{b+2}:{b+3}], v{TRA+blk} offset:{o1+o2}")
        return o
    def mfmas(self, s, order=None):
        par = s & 1; o = []
        for blk in (order or range(5)):
            kd = self.kinds[blk]
            wf = f"v[{WF+20*par+4*blk}:{WF+20*par+4*blk+3}]"
            for tb in range(2):
                xf = f"v[{XF+8*par+4*tb}:{XF+8*par+4*tb+3}]"; a = acc(blk, tb)
                c = "0" if s == 0 else f"v[{a}:{a+15}]"
                if kd in ("k", "v"): o.append(f"v_mfma_f32_32x32x16_bf16 v[{a}:{a+15}], {xf}, {wf}, {c}")
                else: o.append(f"v_mfma_f32_32x32x16_bf16 v[{a}:{a+15}], {wf}, {xf}, {c}")
        return o
    def corr(self):
        o = []
        for blk in range(5):
            for tb in range(2):
                a = acc(blk, tb); cf = ar(ACF+4*blk, 4); mf = ar(AMF+4*tb, 4)
                if self.kinds[blk] in ("k", "v"): o.append(f"v_mfma_f32_32x32x16_bf16 v[{a}:{a+15}], {mf}, {cf}, v[{a}:{a+15}]")
                else: o.append(f"v_mfma_f32_32x32x16_bf16 v[{a}:{a+15}], {cf}, {mf}, v[{a}:{a+15}]")
        return o

    def prologue(self):
        A, typ, kinds = self.A, self.typ, self.kinds
        SZQ, SZG = 512*3072, 512*3584
        A.stamp(3, "pro")
        emit_items(A, self.Xg(0))
        A.stamp(4, "pro")
        if typ == "A":
            A(f"s_lshr_b32 s{S_T0}, s{S_IDX}, 1"); A(f"s_mul_i32 s{S_T0}, s{S_T0}, 7"); A(f"s_and_b32 s{S_T1}, s{S_IDX}, 1"); A(f"s_lshl_b32 s{S_T1}, s{S_T1}, 1")
            A(f"s_add_u32 s{S_T0}, s{S_T0}, s{S_T1}"); A(f"s_lshl_b32 s{S_T0}, s{S_T0}, 7")
            srd_off(A, S_W+0, P_G, P_G+1, f"s{S_T0}", SZG); srd_off(A, S_W+4, P_U, P_U+1, f"s{S_T0}", SZG)
            A(f"s_add_u32 s{S_T0}, s{S_T0}, 128")
            srd_off(A, S_W+8, P_G, P_G+1, f"s{S_T0}", SZG); srd_off(A, S_W+12, P_U, P_U+1, f"s{S_T0}", SZG)
            A(f"s_lshl_b32 s{S_T0}, s{S_IDX}, 7")
            srd_off(A, S_W+16, P_WQ, P_WQ+1, f"s{S_T0}", SZQ)
        else:
            A(f"s_lshl_b32 s{S_T0}, s{S_IDX}, 7"); A(f"s_add_u32 s{S_T0}, s{S_T0}, 1024")
            srd_off(A, S_W+0, P_WQ, P_WQ+1, f"s{S_T0}", SZQ)
            A(f"s_add_u32 s{S_T0}, s{S_T0}, 1024")
            srd_off(A, S_W+4, P_WQ, P_WQ+1, f"s{S_T0}", SZQ)
            A(f"s_lshr_b32 s{S_T0}, s{S_IDX}, 1"); A(f"s_mul_i32 s{S_T0}, s{S_T0}, 7"); A(f"s_and_b32 s{S_T1}, s{S_IDX}, 1")
            A(f"s_add_u32 s{S_T0}, s{S_T0}, s{S_T1}"); A(f"s_add_u32 s{S_T0}, s{S_T0}, 4"); A(f"s_lshl_b32 s{S_T0}, s{S_T0}, 7")
            srd_off(A, S_W+8, P_G, P_G+1, f"s{S_T0}", SZG); srd_off(A, S_W+12, P_U, P_U+1, f"s{S_T0}", SZG)
            A(f"s_lshr_b32 s{S_T0}, s{S_IDX}, 1"); A(f"s_mul_i32 s{S_T0}, s{S_T0}, 7"); A(f"s_add_u32 s{S_T0}, s{S_T0}, 6"); A(f"s_lshl_b32 s{S_T0}, s{S_T0}, 7")
            A(f"s_and_b32 s{S_T1}, s{S_IDX}, 1"); A(f"s_lshl_b32 s{S_T1}, s{S_T1}, 6"); A(f"s_add_u32 s{S_T0}, s{S_T0}, s{S_T1}")
            A(f"s_cmp_ge_u32 s{S_WV}, 2")
            A(f"s_cselect_b32 s{S_T2}, s{P_U}, s{P_G}"); A(f"s_cselect_b32 s{S_T3}, s{P_U+1}, s{P_G+1}")
            srd_off(A, S_W+16, S_T2, S_T3, f"s{S_T0}", SZG)
        t0, t1, t2, t3, t4 = VT, VT+1, VT+2, VT+3, VT+4
        A(f"v_lshrrev_b32 v{t0}, 3, v{VLANE}"); A(f"v_and_b32 v{t1}, 7, v{VLANE}")
        A(f"v_lshrrev_b32 v{t2}, 4, v{VLANE}"); A(f"v_and_b32 v{t2}, 1, v{t2}")
        done = {}
        for rho in range(5):
            key = (self.swz[rho], self.strides[rho])
            if key in done: continue
            done[key] = rho
            if self.swz[rho] == "h":
                A(f"v_lshrrev_b32 v{t3}, 2, v{VLANE}"); A(f"v_and_b32 v{t4}, 3, v{VLANE}")
                A(f"s_lshr_b32 s{S_T0}, s{S_WV}, 1"); A(f"s_lshl_b32 s{S_T0}, s{S_T0}, 1")
                A(f"v_xor_b32 v{t4}, s{S_T0}, v{t4}")
                A(f"v_mul_u32_u24 v{t3}, 3584, v{t3}"); A(f"v_lshlrev_b32 v{t4}, 4, v{t4}"); A(f"v_add_u32 v{VOW+rho}, v{t3}, v{t4}")
            else:
                if self.swz[rho] == "q": A(f"v_lshlrev_b32 v{t3}, 2, v{t2}")
                else:
                    A(f"v_lshlrev_b32 v{t3}, 1, v{t2}")
                    if self.swz[rho] == "u": A(f"v_or_b32 v{t3}, 4, v{t3}")
                A(f"v_xor_b32 v{t3}, v{t1}, v{t3}"); A(f"v_lshlrev_b32 v{t3}, 4, v{t3}")
                A(f"v_mul_u32_u24 v{t4}, {self.strides[rho]}, v{t0}"); A(f"v_add_u32 v{VOW+rho}, v{t3}, v{t4}")
        A.stamp(5, "pro")
        emit_items(A, self.Wg(0)); A.stamp(6, "pro"); emit_items(A, self.Wg(1))
        A.stamp(1); A.stamp(7, "pro")
        A(f"v_lshlrev_b32 v{t3}, 2, v{t2}"); A(f"v_xor_b32 v{t3}, v{t1}, v{t3}"); A(f"v_lshlrev_b32 v{t3}, 4, v{t3}")
        A(f"v_lshlrev_b32 v{t4}, 10, v{t0}"); A(f"v_add_u32 v{VDM}, v{t3}, v{t4}")
        A(f"v_add_u32 v{self.w2.vdm2}, 8192, v{VDM}")
        A(f"s_lshl_b32 s{S_T0}, s{S_J}, 7"); A(f"s_mul_i32 s{S_T1}, s{S_WV}, {448*1024}"); A(f"s_add_u32 s{S_T0}, s{S_T0}, s{S_T1}")
        srd_off(A, S_WD, P_D, P_D+1, f"s{S_T0}", 1792*1024)
        A(f"s_mul_i32 s{S_LB}, s{S_WV}, {NSL*2048}"); A(f"s_add_u32 s{S_LB}, s{S_LB}, {W2IN}")
        A(f"s_lshr_b32 s{S_T0}, s2, 3"); A(f"s_and_b32 s{S_T1}, s{S_T0}, 3"); A(f"s_mul_i32 s{S_T1}, s{S_T1}, 7"); A(f"s_lshr_b32 s{S_T0}, s{S_T0}, 2"); A(f"s_mul_i32 s{S_T0}, s{S_T0}, 3")
        A(f"s_add_u32 s{S_RHO}, s{S_T0}, s{S_T1}"); A(f"s_cmp_ge_u32 s{S_RHO}, 28"); A(f"s_cselect_b32 s{S_T0}, 28, 0"); A(f"s_sub_u32 s{S_RHO}, s{S_RHO}, s{S_T0}")
        if not W2ROT: A(f"s_mov_b32 s{S_RHO}, 0")
        A(f"s_lshl_b32 s{S_W2R}, s{S_RHO}, 14")
        A(f"s_load_dwordx2 s[{S_DBG}:{S_DBG+1}], s[0:1], 64")
        A(f"s_mov_b32 s{S_CG}, s{S_I1}")
        A(f"s_lshr_b32 s{S_T0}, s{S_T}, 3"); A(f"s_lshl_b32 s{S_T0}, s{S_T0}, 1"); A(f"s_add_u32 s{S_KSC}, s{S_T0}, s{S_WM}")
        A(f"v_and_b32 v{t0}, 31, v{VLANE}")
        A(f"v_and_b32 v{t1}, 15, v{t0}"); A(f"v_lshrrev_b32 v{t2}, 4, v{t0}")
        def cs_addr(dst, soff_code, lane_kind):
            soff_code()
            if lane_kind == "gu":
                A(f"v_mul_u32_u24 v{t3}, 1792, v{t2}"); A(f"v_add_u32 v{t3}, v{t3}, v{t1}")
            elif lane_kind == "kv":
                A(f"v_lshlrev_b32 v{t3}, 9, v{t2}"); A(f"v_add_u32 v{t3}, v{t3}, v{t1}")
            else: A(f"v_mov_b32 v{t3}, v{t0}")
            A(f"v_add_u32 v{t3}, s{S_T0}, v{t3}"); A(f"v_lshlrev_b32 v{t3}, 2, v{t3}"); A(f"v_add_u32 v{dst}, {WS_CS}, v{t3}")
        if typ == "A":
            cs_addr(VC1, lambda: (A(f"s_lshr_b32 s{S_T0}, s{S_IDX}, 1"), A(f"s_mul_i32 s{S_T0}, s{S_T0}, 7"), A(f"s_and_b32 s{S_T1}, s{S_IDX}, 1"), A(f"s_lshl_b32 s{S_T1}, s{S_T1}, 1"), A(f"s_add_u32 s{S_T0}, s{S_T0}, s{S_T1}"),
                                  A(f"s_add_u32 s{S_T0}, s{S_T0}, s{S_WN}"), A(f"s_lshl_b32 s{S_T0}, s{S_T0}, 6"), A(f"s_add_u32 s{S_T0}, s{S_T0}, 1536")), "gu")
            cs_addr(VC2, lambda: (A(f"s_lshl_b32 s{S_T0}, s{S_IDX}, 6"), A(f"s_lshl_b32 s{S_T1}, s{S_WN}, 5"), A(f"s_add_u32 s{S_T0}, s{S_T0}, s{S_T1}")), "q")
            self.csa = [(VC1, 0), (VC1, 64), (VC1, 128), (VC1, 192), (VC2, 0)]
        else:
            cs_addr(VC2, lambda: (A(f"s_lshl_b32 s{S_T0}, s{S_IDX}, 6"), A(f"s_lshl_b32 s{S_T1}, s{S_WN}, 5"), A(f"s_add_u32 s{S_T0}, s{S_T0}, s{S_T1}"), A(f"s_add_u32 s{S_T0}, s{S_T0}, 512")), "q")
            cs_addr(VC1, lambda: (A(f"s_lshr_b32 s{S_T0}, s{S_IDX}, 1"), A(f"s_mul_i32 s{S_T0}, s{S_T0}, 7"), A(f"s_and_b32 s{S_T1}, s{S_IDX}, 1"), A(f"s_add_u32 s{S_T0}, s{S_T0}, s{S_T1}"), A(f"s_add_u32 s{S_T0}, s{S_T0}, 4"), A(f"s_lshl_b32 s{S_T0}, s{S_T0}, 6"), A(f"s_lshl_b32 s{S_T1}, s{S_WN}, 5"), A(f"s_add_u32 s{S_T0}, s{S_T0}, s{S_T1}"), A(f"s_add_u32 s{S_T0}, s{S_T0}, 1536")), "gu")
            cs_addr(VC3, lambda: (A(f"s_lshr_b32 s{S_T0}, s{S_IDX}, 1"), A(f"s_mul_i32 s{S_T0}, s{S_T0}, 7"), A(f"s_add_u32 s{S_T0}, s{S_T0}, 6"), A(f"s_lshl_b32 s{S_T0}, s{S_T0}, 6"),
                                  A(f"s_and_b32 s{S_T1}, s{S_IDX}, 1"), A(f"s_lshl_b32 s{S_T1}, s{S_T1}, 1"), A(f"s_add_u32 s{S_T1}, s{S_T1}, s{S_WN}"), A(f"s_lshl_b32 s{S_T1}, s{S_T1}, 4"),
                                  A(f"s_add_u32 s{S_T0}, s{S_T0}, s{S_T1}"), A(f"s_add_u32 s{S_T0}, s{S_T0}, 1536")), "gu")
            self.csa = [(VC2, 0), (VC2, 2048), (VC1, 0), (VC1, 64), (VC3, 0)]
        A(f"v_mov_b32 v{t3}, 0x3f803f80")
        for i in range(4): A(f"v_accvgpr_write_b32 a{A_ONES+i}, v{t3}")
        srd_off(A, S_H, S_WSP, S_WSP+1, WS_H, WS_H + H_BYTES)
        G, p, r, c = t0, t1, t2, t3
        A(f"v_lshrrev_b32 v{G}, 4, v{VLANE}"); A(f"v_and_b32 v{G}, 1, v{G}")
        A(f"v_lshrrev_b32 v{p}, 5, v{VLANE}")
        A(f"v_and_b32 v{r}, 15, v{VLANE}"); A(f"v_lshrrev_b32 v{r}, 2, v{r}")
        A(f"v_and_b32 v{c}, 3, v{VLANE}")
        k_, rb, u1, u2 = t4, t4+1, t4+2, t4+3
        A(f"v_lshlrev_b32 v{k_}, 3, v{p}"); A(f"v_add_u32 v{k_}, v{k_}, v{r}")
        A(f"v_lshrrev_b32 v{rb}, 1, v{r}"); A(f"v_and_b32 v{rb}, 1, v{rb}")
        for blk, kd in enumerate(kinds):
            d = TRA + blk
            if typ == "A" and kd == "gu" and blk > 0:
                A(f"v_xor_b32 v{d}, {blk*32}, v{TRA}"); continue
            if typ == "B" and blk == 1:
                A(f"v_add_u32 v{d}, 4096, v{d-1}"); continue
            if typ == "B" and blk == 3:
                A(f"v_xor_b32 v{d}, 32, v{d-1}"); continue
            if kd == "guh":
                A(f"v_lshrrev_b32 v{u1}, 1, v{c}"); A(f"s_lshl_b32 s{S_T0}, s{S_WN}, 1"); A(f"v_add_u32 v{u1}, s{S_T0}, v{u1}")
                A(f"v_lshlrev_b32 v{u2}, 1, v{G}"); A(f"v_xor_b32 v{u1}, v{u1}, v{u2}"); A(f"v_lshlrev_b32 v{u1}, 4, v{u1}")
                A(f"v_lshlrev_b32 v{u2}, 6, v{k_}"); A(f"v_add_u32 v{u1}, v{u1}, v{u2}")
                A(f"v_lshlrev_b32 v{u2}, 11, v{G}"); A(f"v_add_u32 v{u1}, v{u1}, v{u2}")
                A(f"v_add_u32 v{u1}, {W_BASE + 4*4096}, v{u1}")
            else:
                if kd in ("q", "k"):
                    A(f"s_lshl_b32 s{S_T0}, s{S_WN}, 1"); A(f"v_add_u32 v{u1}, s{S_T0}, v{G}")
                elif typ == "A": A(f"v_mov_b32 v{u1}, 0")
                else:
                    A(f"s_lshl_b32 s{S_T0}, s{S_WN}, 1"); A(f"v_mov_b32 v{u1}, s{S_T0}")
                A(f"v_lshlrev_b32 v{u1}, 1, v{u1}"); A(f"v_lshrrev_b32 v{u2}, 1, v{c}"); A(f"v_add_u32 v{u1}, v{u1}, v{u2}")
                if kd in ("q", "k"): A(f"v_lshlrev_b32 v{u2}, 2, v{rb}")
                else:
                    A(f"v_lshlrev_b32 v{u2}, 1, v{rb}"); A(f"v_lshlrev_b32 v{d}, 2, v{G}"); A(f"v_or_b32 v{u2}, v{u2}, v{d}")
                A(f"v_xor_b32 v{u1}, v{u1}, v{u2}"); A(f"v_lshlrev_b32 v{u1}, 4, v{u1}")
                A(f"v_lshlrev_b32 v{u2}, 7, v{k_}"); A(f"v_add_u32 v{u1}, v{u1}, v{u2}")
                if kd == "q": A(f"v_add_u32 v{u1}, {W_BASE + 4*4096}, v{u1}")
                elif kd == "k": A(f"v_add_u32 v{u1}, {W_BASE}, v{u1}")
                else:
                    if typ == "A":
                        A(f"s_lshl_b32 s{S_T0}, s{S_WN}, 13"); A(f"s_add_u32 s{S_T0}, s{S_T0}, {W_BASE}")
                    else: A(f"s_mov_b32 s{S_T0}, {W_BASE + 2*4096}")
                    A(f"v_lshlrev_b32 v{u2}, 12, v{G}"); A(f"v_add_u32 v{u1}, v{u1}, v{u2}"); A(f"v_add_u32 v{u1}, s{S_T0}, v{u1}")
            A(f"v_and_b32 v{u2}, 1, v{c}"); A(f"v_lshlrev_b32 v{u2}, 3, v{u2}"); A(f"v_add_u32 v{d}, v{u1}, v{u2}")
        A(f"v_lshlrev_b32 v{u1}, 2, v{p}"); A(f"v_add_u32 v{u1}, v{u1}, v{r}"); A(f"v_lshlrev_b32 v{u1}, 7, v{u1}")
        A(f"v_lshlrev_b32 v{u2}, 1, v{G}"); A(f"v_lshrrev_b32 v{VTR}, 1, v{c}"); A(f"v_add_u32 v{u2}, v{u2}, v{VTR}")
        A(f"v_lshlrev_b32 v{VTR}, 2, v{rb}"); A(f"v_xor_b32 v{u2}, v{u2}, v{VTR}"); A(f"v_lshlrev_b32 v{u2}, 4, v{u2}"); A(f"v_add_u32 v{u1}, v{u1}, v{u2}")
        A(f"v_and_b32 v{u2}, 1, v{c}"); A(f"v_lshlrev_b32 v{u2}, 3, v{u2}"); A(f"v_add_u32 v{u1}, v{u1}, v{u2}")
        A(f"v_add_u32 v{VTR}, s{S_LB}, v{u1}"); A(f"v_xor_b32 v{VTR1}, 64, v{VTR}")
        A(f"v_and_b32 v{u1}, 31, v{VLANE}"); A(f"s_lshl_b32 s{S_T0}, s{S_WM}, 6"); A(f"v_add_u32 v{u1}, s{S_T0}, v{u1}")
        A(f"v_lshrrev_b32 v{u2}, 1, v{u1}"); A(f"v_and_b32 v{u2}, 7, v{u2}"); A(f"v_xor_b32 v{u2}, v{u2}, v{p}"); A(f"v_lshlrev_b32 v{u2}, 4, v{u2}")
        A(f"v_lshlrev_b32 v{u1}, 7, v{u1}"); A(f"v_add_u32 v{u1}, v{u1}, v{u2}")
        for kk in range(4): A(f"v_xor_b32 v{XA+kk}, {kk*32}, v{u1}")
        if X1_EARLY: emit_items(A, self.Xg(1))
        SX = WF + 20
        A.wait("strow")
        P0, P1, Q0, Q1, U = VT, VT+2, VT+4, VT+6, VT+8
        for tok, (P, Q) in enumerate(((P0, Q0), (P1, Q1))):
            for i in range(4):
                src = SX + 4*tok + i
                A(f"v_lshlrev_b32 v{U}, 16, v{src}"); A(f"v_and_b32 v{U+1}, 0xffff0000, v{src}")
                if i == 0:
                    A(f"v_pk_mul_f32 v[{Q}:{Q+1}], v[{U}:{U+1}], v[{U}:{U+1}]"); A(f"v_mov_b32 v{P}, v{U}"); A(f"v_mov_b32 v{P+1}, v{U+1}")
                else:
                    A(f"v_pk_add_f32 v[{P}:{P+1}], v[{P}:{P+1}], v[{U}:{U+1}]"); A(f"v_pk_fma_f32 v[{Q}:{Q+1}], v[{U}:{U+1}], v[{U}:{U+1}], v[{Q}:{Q+1}]")
        for r_ in (P0, P1, Q0, Q1): A(f"v_add_f32 v{r_}, v{r_}, v{r_+1}")
        for dpp in ("row_shr:1 row_mask:0xf bank_mask:0xf", "row_shr:2 row_mask:0xf bank_mask:0xf", "row_shr:4 row_mask:0xf bank_mask:0xf", "row_shr:8 row_mask:0xf bank_mask:0xf",
                    "row_bcast:15 row_mask:0xa bank_mask:0xf", "row_bcast:31 row_mask:0xc bank_mask:0xf"):
            for r_ in (P0, P1, Q0, Q1): A(f"v_add_f32_dpp v{r_}, v{r_}, v{r_} {dpp}")
        A(f"v_mul_f32 v{P0}, 0x3b000000, v{P0}"); A(f"v_mul_f32 v{P0+1}, 0x3b000000, v{P1}")
        A(f"v_mul_f32 v{Q0}, 0x3b000000, v{Q0}"); A(f"v_mul_f32 v{Q0+1}, 0x3b000000, v{Q1}")
        for j in range(2):
            A(f"v_fma_f32 v{Q0+j}, -v{P0+j}, v{P0+j}, v{Q0+j}"); A(f"v_max_f32 v{Q0+j}, 0, v{Q0+j}"); A(f"v_add_f32 v{Q0+j}, 0x3727c5ac, v{Q0+j}"); A(f"v_rsq_f32 v{Q0+j}, v{Q0+j}")
        A(f"v_mov_b32 v{U}, s{S_HB}"); A(f"v_add_u32 v{U+1}, {WS_R}, v{U}")
        A(f"s_mov_b64 s[{S_E0}:{S_E0+1}], exec"); A("s_mov_b32 exec_lo, 0"); A("s_mov_b32 exec_hi, 0x80000000")
        A.vm(f"global_store_dwordx2 v{U}, v[{P0}:{P0+1}], s[{S_WSP}:{S_WSP+1}] sc1")
        A.vm(f"global_store_dwordx2 v{U+1}, v[{Q0}:{Q0+1}], s[{S_WSP}:{S_WSP+1}] sc1", id="stst")
        A(f"s_mov_b64 exec, s[{S_E0}:{S_E0+1}]")
        A.stamp(2)
        A("s_waitcnt lgkmcnt(0)")
        A.wait("X0_3", "W0_4")
        A("s_barrier")
        A.stamp(3); A.stamp(8, "pro")
        for s in self.reads(0): A(s)
        A.stamp(1, "init")
        if ZLATE:
            L = f"K12{typ}_nozero"
            A(f"s_cmp_ge_u32 s2, {NZERO}"); A(f"s_cbranch_scc1 {L}")
            A(f"s_lshl_b32 s{S_T0}, s2, 12"); A(f"s_add_u32 s{S_T0}, s{S_T0}, {WS_KV}")
            A(f"v_lshlrev_b32 v{VT+6}, 4, v{VTID}"); A(f"v_add_u32 v{VT+6}, s{S_T0}, v{VT+6}")
            for i in range(4): A(f"v_mov_b32 v{VT+0+i}, 0")
            A(("vmu", "zst", f"global_store_dwordx4 v{VT+6}, v[{VT+0}:{VT+3}], s[{S_WSP}:{S_WSP+1}] sc1"))
            A(f"{L}:")
        else:
            for x in self.sig(f"s_cmp_lt_u32 s2, {NZERO}", S_DBG, DBG_INIT, None, "init"): A(x)
        A.stamp(2, "init")

    def sig(self, cond, base, off_imm, off_sgpr, tag):
        L = f"K12{self.typ}_sig_{tag}"
        o = []
        if cond: o += [cond, f"s_cbranch_scc0 {L}"]
        o += [f"s_cmp_eq_u32 s{S_WV}, 0", f"s_cbranch_scc0 {L}"]
        if off_sgpr is None: o += [f"v_mov_b32 v{VT+9}, {off_imm}"]
        else: o += [f"s_lshl_b32 s{S_T4}, s{off_sgpr}, 7", f"s_add_u32 s{S_T4}, s{S_T4}, {off_imm}", f"v_mov_b32 v{VT+9}, s{S_T4}"]
        o += [f"v_mov_b32 v{VT+8}, 1", f"s_mov_b64 s[{S_E0}:{S_E0+1}], exec", "s_mov_b64 exec, 1",
              f"!global_atomic_add v{VT+9}, v{VT+8}, s[{base}:{base+1}] sc1", f"s_mov_b64 exec, s[{S_E0}:{S_E0+1}]", f"{L}:"]
        return o

    def spin(self, tag, base, vaddr, expect):
        L = f"K12{self.typ}_spin_{tag}"
        return [f"s_mov_b32 s{S_T3}, 0", f"{L}:", f"!global_load_dword v{VT+10}, v{vaddr}, s[{base}:{base+1}] sc1", "s_waitcnt vmcnt(0)",
                f"v_readfirstlane_b32 s{S_T4}, v{VT+10}", f"s_add_u32 s{S_T3}, s{S_T3}, 1", f"s_cmp_ge_u32 s{S_T3}, {POLL_MAX}", f"s_cbranch_scc1 {L}_x",
                f"s_cmp_ge_u32 s{S_T4}, {expect}", f"s_cbranch_scc1 {L}_x", "s_sleep 2", f"s_branch {L}", f"{L}_x:"]

    def w0(self, tag, code):
        L = f"K12{self.typ}_w0_{tag}"
        return [f"s_cmp_eq_u32 s{S_WV}, 0", f"s_cbranch_scc0 {L}"] + code + [f"{L}:"]

    def pre_barrier(self, h):
        typ = self.typ; T = VT
        if h == H_INIT:
            return [("stamp", 3, "init")] + self.w0("initchk", [("wait", ["initld"]), f"v_readfirstlane_b32 s{S_T4}, v{T+10}", "s_nop 0", f"s_cmp_ge_u32 s{S_T4}, {NZERO}", f"s_cbranch_scc1 K12{typ}_initok",
                                       f"v_mov_b32 v{T+9}, {DBG_INIT}"] + self.spin("init", S_DBG, T+9, NZERO) + [f"K12{typ}_initok:"]) + [("stamp", 4, "init")]
        if h == H_CNT:
            return [("stamp", 6, "init")] + self.w0("cntchk", [("wait", ["cntld"]), f"v_readfirstlane_b32 s{S_T4}, v{T+5}", "s_nop 0", f"s_cmp_ge_u32 s{S_T4}, 16", f"s_cbranch_scc1 K12{typ}_stok"]
                           + self.spin("st", S_WSP, T+7, 16) + [f"K12{typ}_stok:",
                           f"v_readfirstlane_b32 s{S_T4}, v{T+6}", "s_nop 0", f"s_cmp_ge_u32 s{S_T4}, 16", f"s_cbranch_scc1 K12{typ}_csok"]
                           + self.spin("cs", S_WSP, T+8, 16) + [f"K12{typ}_csok:"]) + [("stamp", 7, "init")]
        return []

    def oneshot_items(self, add, at):
        typ = self.typ; wsp = f"s[{S_WSP}:{S_WSP+1}]"; dbg = f"s[{S_DBG}:{S_DBG+1}]"
        T = VT
        for s in range(4):
            par = s & 1
            it = [f"s_cmp_eq_u32 s{S_KSC}, {s}", f"s_cbranch_scc0 K12{typ}_nocs{s}"]
            for blk in range(5):
                b = WF + 20*par + 4*blk
                it.append(f"v_mfma_f32_32x32x16_bf16 a[{CS_TMP+16*blk}:{CS_TMP+16*blk+15}], a[{A_ONES}:{A_ONES+3}], v[{b}:{b+3}], 0")
            it.append(f"K12{typ}_nocs{s}:")
            self.fixed.setdefault(s, []).append(it)
        self.fixed.setdefault(K_INITLD, []).append(self.w0("initld", [f"v_mov_b32 v{T+9}, {DBG_INIT}", f"s_mov_b64 s[{S_E0}:{S_E0+1}], exec", "s_mov_b64 exec, 1",
                                      ("vmu", "initld", f"global_load_dword v{T+10}, v{T+9}, {dbg} sc1"), f"s_mov_b64 exec, s[{S_E0}:{S_E0+1}]"]))
        it = [[f"v_accvgpr_read_b32 v{T+blk}, a{CS_TMP+16*blk}"] for blk in range(5)]
        at_ = [f"s_mov_b64 s[{S_E0}:{S_E0+1}], exec", "s_mov_b32 exec_hi, 0"]
        for blk in range(5):
            va, off = self.csa[blk]
            at_.append(("vm", f"csat{blk}", f"global_atomic_add_f32 v{va}, v{T+blk}, {wsp} offset:{off}"))
        at_.append(f"s_mov_b64 exec, s[{S_E0}:{S_E0+1}]")
        add(at(K_CSAT), it + [at_])
        self.fixed.setdefault(K_CNTLD, []).append(self.w0("cntld", [f"s_lshl_b32 s{S_T4}, s{S_T}, 7", f"s_add_u32 s{S_T4}, s{S_T4}, {WS_STCNT}", f"v_mov_b32 v{T+7}, s{S_T4}",
                          f"s_lshl_b32 s{S_T4}, s{S_CG}, 7", f"s_add_u32 s{S_T4}, s{S_T4}, {WS_CSCNT}", f"v_mov_b32 v{T+8}, s{S_T4}",
                          f"s_mov_b64 s[{S_E0}:{S_E0+1}], exec", "s_mov_b64 exec, 1",
                          f"!global_load_dword v{T+5}, v{T+7}, {wsp} sc1", ("vmu", "cntld", f"global_load_dword v{T+6}, v{T+8}, {wsp} sc1"),
                          f"s_mov_b64 exec, s[{S_E0}:{S_E0+1}]"]))
        VM = T; VCS = T + 2; VRB = T + 7
        lds = [[f"v_and_b32 v{T+8}, 31, v{VLANE}", f"s_lshl_b32 s{S_T4}, s{S_T}, 7", f"s_lshl_b32 s{S_T3}, s{S_WM}, 6", f"s_add_u32 s{S_T4}, s{S_T4}, s{S_T3}"],
               [f"v_add_u32 v{T+8}, s{S_T4}, v{T+8}", f"v_lshlrev_b32 v{T+8}, 2, v{T+8}", f"v_add_u32 v{T+9}, {WS_R}, v{T+8}"],
               [("vm", None, f"global_load_dword v{VM}, v{T+8}, {wsp} sc1")], [("vm", None, f"global_load_dword v{VM+1}, v{T+8}, {wsp} offset:128 sc1")],
               [("vm", None, f"global_load_dword v{VR}, v{T+9}, {wsp} sc1")], [("vm", None, f"global_load_dword v{VR+1}, v{T+9}, {wsp} offset:128 sc1")]]
        for blk in range(5):
            va, off = self.csa[blk]
            lds.append([("vm", "csld" if blk == 4 and typ == "A" else None, f"global_load_dword v{VCS+blk}, v{va}, {wsp} offset:{off} sc1")])
        if typ == "B":
            lds.append([f"s_lshl_b32 s{S_T4}, s{S_T}, 7", f"v_add_u32 v{T+8}, s{S_T4}, v{VTID}", f"v_lshlrev_b32 v{T+8}, 2, v{T+8}", f"v_add_u32 v{T+8}, {WS_R}, v{T+8}"])
            lds.append([("vm", "csld", f"global_load_dword v{VRB}, v{T+8}, {wsp} sc1")])
        add(at(2*H_CNT-1, 1), lds)
        if K_PT:
            add(at(K_PT), [[f"s_lshl_b32 s{S_T4}, s{S_TAU}, 16", f"s_lshl_b32 s{S_T3}, s{S_J}, 7", f"s_add_u32 s{S_T4}, s{S_T4}, s{S_T3}", f"v_mov_b32 v{T+9}, s{S_T4}"],
                           [f"s_mov_b64 s[{S_E0}:{S_E0+1}], exec", "s_mov_b64 exec, 1", ("vm", None, f"global_load_dword a224, v{T+9}, s[{P_O}:{P_O+1}]"), f"s_mov_b64 exec, s[{S_E0}:{S_E0+1}]"],
                           [f"v_mov_b32 v{T+9}, 0"],
                           [f"s_mov_b64 s[{S_E0}:{S_E0+1}], exec", "s_mov_b64 exec, 1", ("vm", None, f"global_load_dword a227, v{T+9}, s[{P_WO}:{P_WO+1}]"), f"s_mov_b64 exec, s[{S_E0}:{S_E0+1}]"]])
        if K_WOPF:
            it = [[f"s_lshl_b32 s{S_T4}, s{S_WV}, 17", f"s_and_b32 s{S_T3}, s{S_TAU}, 3", f"s_lshl_b32 s{S_T3}, s{S_T3}, 15", f"s_add_u32 s{S_T4}, s{S_T4}, s{S_T3}"],
                  [f"s_lshl_b32 s{S_T3}, s{S_J}, 7", f"s_add_u32 s{S_T4}, s{S_T4}, s{S_T3}", f"v_add_u32 v{T+9}, s{S_T4}, v{VDM}"]]
            for k in range(4):
                it.append([("vm", None, f"global_load_dwordx4 a[224:227], v{T+9}, s[{P_WO}:{P_WO+1}]")] + ([f"v_add_u32 v{T+9}, 8192, v{T+9}"] if k < 3 else []))
            add(at(K_WOPF), it)
        if CODE_PF2:
            add(at(CODE_PF2), [[f"s_getpc_b64 s[{S_E2}:{S_E2+1}]", f"K12{typ}_pc2:", f"s_lshr_b32 s{S_T4}, s2, 3", f"s_lshl_b32 s{S_T4}, s{S_T4}, 2", f"s_add_u32 s{S_T4}, s{S_T4}, s{S_WV}"],
                               [f"s_min_u32 s{S_T4}, s{S_T4}, ((K12_end-K12{typ}_pc2)>>10)-1", f"s_lshl_b32 s{S_T4}, s{S_T4}, 10", f"v_add_u32 v{T+9}, s{S_T4}, v{VL16}"],
                               [("vm", None, f"global_load_dwordx4 a[224:227], v{T+9}, s[{S_E2}:{S_E2+1}]")]])
        tt = T + 8; b = T + 10
        items = [[("wait", ["csld"])], [f"v_cmp_gt_u32 vcc, 32, v{VLANE}", "s_nop 1"]]
        for tb in range(2):
            items += [[f"v_cndmask_b32 v{tt}, 0, v{VM+tb}, vcc"], [f"v_cvt_pk_bf16_f32 v{b}, v{tt}, v{tt}"],
                      [f"v_and_b32 v{tt+1}, 0xffff0000, v{b}"], [f"v_sub_f32 v{tt+1}, v{tt}, v{tt+1}"],
                      [f"v_cvt_pk_bf16_f32 v{b+1}, v{tt+1}, 0"],
                      [f"v_accvgpr_write_b32 a{AMF+4*tb}, v{b}"], [f"v_accvgpr_write_b32 a{AMF+4*tb+1}, v{b+1}"],
                      [f"v_accvgpr_write_b32 a{AMF+4*tb+2}, 0"], [f"v_accvgpr_write_b32 a{AMF+4*tb+3}, 0"]]
        for blk in range(5):
            items += [[f"v_cndmask_b32 v{tt}, 0, v{VCS+blk}, vcc"], [f"v_sub_f32 v{tt}, 0, v{tt}"],
                      [f"v_cvt_pk_bf16_f32 v{b+1}, v{tt}, 0"], [f"v_lshlrev_b32 v{tt+1}, 16, v{b+1}"], [f"v_sub_f32 v{tt+1}, v{tt}, v{tt+1}"],
                      [f"v_cvt_pk_bf16_f32 v{b}, v{tt}, v{tt+1}"],
                      [f"v_accvgpr_write_b32 a{ACF+4*blk}, v{b}"], [f"v_accvgpr_write_b32 a{ACF+4*blk+1}, v{b+1}"],
                      [f"v_accvgpr_write_b32 a{ACF+4*blk+2}, 0"], [f"v_accvgpr_write_b32 a{ACF+4*blk+3}, 0"]]
        if typ == "B":
            items += [[f"v_lshlrev_b32 v{tt}, 2, v{VTID}"], [f"v_add_u32 v{tt}, {LDS_R}, v{tt}"],
                      [f"v_cmp_gt_u32 vcc, 128, v{VTID}", f"s_and_saveexec_b64 s[{S_E0}:{S_E0+1}], vcc", f"ds_write_b32 v{tt}, v{VRB}", f"s_mov_b64 exec, s[{S_E0}:{S_E0+1}]"]]
        add(at(K_RANK), items)

    def loop(self):
        A = self.A
        self.loop_start = len(A.l)
        steps = []
        for s in range(32):
            if s == CORR_AT: steps.append(("c", None))
            steps.append(("k", s))
        order_last = [b for b, kd in enumerate(self.kinds) if kd in ("gu","guh")] + [b for b, kd in enumerate(self.kinds) if kd not in ("gu","guh")]
        idx_of = {st: i for i, st in enumerate(steps)}
        def at(s, g=0): return (idx_of[("k", s)], g)
        flex = []; flex2 = []
        def add(pos, items):
            for it in items: flex.append((pos, it))
        def add2(pos, items):
            for it in items: flex2.append((pos, it))
        add(at(0), self.Wg(2))
        if not X1_EARLY: add(at(0), self.Xg(1))
        add(at(1, 1), self.Xg(2))
        for h in range(1, 14): add(at(2*h-1, 1), self.Wg(h+2))
        for sg in range(1, 6): add(at(4*sg-1, 1), self.Xg(sg+2))
        self.fixed = {}
        tagD = {}; tagR = {}; keep = []; placedR = {}
        self.oneshot_items(add, at)
        self.w2_done_R = []
        for i in range(N_IN):
            dd = self.w2.D(i); tagD[id(dd[0])] = i; keep.append(dd)
            add2(at(min(i+W2_START, 31)), dd)
            rr = self.w2.R(i); tagR[id(rr[-1])] = i; keep.append(rr)
            add2(at(min(i+W2_START+DLAG, 31)), rr); self.w2_done_R.append(i)
        flex.sort(key=lambda x: x[0])
        gaps_all = []
        flex2.sort(key=lambda x: x[0])
        queues = [list(flex), list(flex2)]
        for si, st in enumerate(steps):
            gaps = [[] for _ in range(10)]
            head = []
            if st[0] == "k":
                s = st[1]
                M = self.mfmas(s, order_last if s == 31 else None)
                head = ["s_waitcnt lgkmcnt(0)"]
                odd = s & 1
                if odd:
                    h = (s + 1)//2
                    if h <= 15:
                        ids = [f"W{h}_4"] + ([f"X{h//2}_3"] if h % 2 == 0 else [])
                        if h == H_INIT: ids.append("stst")
                        if ZLATE and h == H_Z: ids.append("zst")
                        if h == H_CS: ids.append("csat4")
                        if STAMP and SMODE == "wait":
                            gaps[0] += self.pre_barrier(h) + [("wait", ids), "s_memtime s[98:99]", "s_waitcnt lgkmcnt(0)", "s_barrier", "s_memtime s[100:101]", "s_waitcnt lgkmcnt(0)", "s_sub_u32 s100, s100, s98", f"s_add_u32 s{SB+12}, s{SB+12}, s100"]
                        else:
                            gaps[0] += self.pre_barrier(h) + [("wait", ids), "s_barrier"]
                        if ZLATE and h == H_Z: gaps[0] += self.sig(f"s_cmp_lt_u32 s2, {NZERO}", S_DBG, DBG_INIT, None, "init")
                        if h == H_INIT: gaps[0] += self.sig(None, S_WSP, WS_STCNT, S_T, "st")
                        if h == H_CS: gaps[0] += self.sig(None, S_WSP, WS_CSCNT, S_CG, "cs")
                    else:
                        gaps[0] += ["s_barrier"]
                nxt = s + 1
                if nxt < 32:
                    rd = self.reads(nxt)
                    g0 = 1 if odd else 0
                    for i, x in enumerate(rd): gaps[g0 + i//2].append(x)
            else:
                M = self.corr(); head = ["s_waitcnt lgkmcnt(0)"]
            if st[0] == "k" and st[1] in self.fixed:
                for it in self.fixed[st[1]]: gaps[9] += it
            for qi in range(2):
                pending = queues[qi]
                gi = 0
                rest = []
                blocked = False
                for (pos, it) in pending:
                    if blocked or pos[0] > si:
                        rest.append((pos, it)); continue
                    if id(it) in tagD and placedR.get(tagD[id(it)] - NSL, -1) == si:
                        rest.append((pos, it)); blocked = True; continue
                    if id(it) in tagD and tagD[id(it)] >= NSL and (tagD[id(it)] - NSL) not in placedR:
                        rest.append((pos, it)); blocked = True; continue
                    g = max(gi, pos[1] if pos[0] == si else 0)
                    need = 2 if (isinstance(it, tuple) and it[0] == "dma") else len(it)
                    while g < 10 and len(gaps[g]) + min(need, CAP) > CAP: g += 1
                    if g >= 10:
                        rest.append((pos, it)); blocked = True; continue
                    if id(it) in tagR: placedR[tagR[id(it)]] = si
                    if isinstance(it, tuple) and it[0] == "dma":
                        gaps[g].append(it[1]); gaps[g].append("__NOP__"); gaps[g].append(it[2]); gi = g + 1
                    else:
                        gaps[g] += it; gi = g
                queues[qi] = rest
            for g in gaps:
                while "__NOP__" in g:
                    i = g.index("__NOP__")
                    cand = [j for j in range(i-1) if isinstance(g[j], str) and g[j].startswith("ds_read")]
                    if cand:
                        x = g.pop(cand[-1]); i -= 1; g[i] = x
                    else: g[i] = "s_nop 0"
            if st[0] == "k" and st[1] % 4 == 0 and st[1] > 0: A.stamp(st[1]//4, "loop")
            for x in head: A(x)
            for i in range(10):
                A(M[i])
                for x in gaps[i]:
                    if x == "__WOSRD__":
                        assert "W15_4" in A.ids
                        A(f"s_lshl_b32 s{S_T0}, s{S_J}, 7"); A(f"s_lshl_b32 s{S_T1}, s{S_WV}, 17"); A(f"s_add_u32 s{S_T0}, s{S_T0}, s{S_T1}")
                        srd_off(A, S_WO, P_WO, P_WO+1, f"s{S_T0}", 512*1024)
                    else: A(x)
        assert not queues[0], queues[0][:3]
        self.leftover = queues[1]
        for (pos, it) in self.leftover:
            if id(it) in tagD: A("s_waitcnt lgkmcnt(0)")
            if it == ["__WOSRD__"]:
                A(f"s_lshl_b32 s{S_T0}, s{S_J}, 7"); A(f"s_lshl_b32 s{S_T1}, s{S_WV}, 17"); A(f"s_add_u32 s{S_T0}, s{S_T0}, s{S_T1}")
                srd_off(A, S_WO, P_WO, P_WO+1, f"s{S_T0}", 512*1024)
            else: emit_items(A, [it])
        self.nleft = len(self.leftover)
        txt = A.l
        for i in range(N_IN - NSL):
            rd = [n for n, x in enumerate(txt) if n > self.loop_start and "ds_read_b64_tr_b16 a[%d:" % (8*i+6) in x]
            if not rd: continue
            pos_r = rd[-1]; pos_d = A.pos[f"w2_{i+NSL}_0"]
            assert pos_d > pos_r and any("lgkmcnt(0)" in x for x in txt[pos_r:pos_d]), ("no lgkm wait", i)

    def flag_store(self, slot_imm, FA, ONE):
        A = self.A
        FA, ONE = VT+4, VT+5
        A(f"v_mov_b32 v{ONE}, 1")
        A(f"s_lshl_b32 s{S_T0}, s{S_T}, 1"); A(f"s_add_u32 s{S_T0}, s{S_T0}, s{S_WM}"); A(f"s_lshl_b32 s{S_T0}, s{S_T0}, 2")
        A(f"s_lshr_b32 s{S_T1}, s{S_IDX}, 1"); A(f"s_add_u32 s{S_T0}, s{S_T0}, s{S_T1}"); A(f"s_lshl_b32 s{S_T0}, s{S_T0}, 4")
        A(f"s_lshl_b32 s{S_T1}, s{S_I1}, 1"); A(f"s_add_u32 s{S_T0}, s{S_T0}, s{S_T1}"); A(f"s_add_u32 s{S_T0}, s{S_T0}, s{S_WN}")
        A(f"s_add_u32 s{S_T0}, s{S_T0}, {slot_imm}"); A(f"s_lshl_b32 s{S_T0}, s{S_T0}, 2"); A(f"s_add_u32 s{S_T0}, s{S_T0}, {WS_FLAG}")
        A(f"v_mov_b32 v{FA}, s{S_T0}")
        A(f"s_mov_b64 s[{S_E0}:{S_E0+1}], exec"); A("s_mov_b64 exec, 1")
        A.vm(f"global_store_dword v{FA}, v{ONE}, s[{S_WSP}:{S_WSP+1}] sc1")
        A(f"s_mov_b64 exec, s[{S_E0}:{S_E0+1}]")

    def transition(self):
        A, typ, kinds = self.A, self.typ, self.kinds
        w2 = self.w2
        tt = VT
        state = {"D": N_IN, "R": N_IN}
        A.stamp(1, "tr")
        A("s_waitcnt lgkmcnt(0)")
        A("s_barrier")
        A(f"s_mul_i32 s{S_T0}, s{S_WV}, {NPOST*2048}"); A(f"s_add_u32 s{S_T0}, s{S_T0}, {W2POST}")
        A(f"s_sub_u32 s{S_T1}, s{S_T0}, s{S_LB}"); A(f"s_mov_b32 s{S_LB}, s{S_T0}")
        A(f"v_add_u32 v{VTR}, s{S_T1}, v{VTR}"); A(f"v_xor_b32 v{VTR1}, 64, v{VTR}")
        A(f"s_lshl_b32 s{S_T0}, s{S_J}, 7"); A(f"s_lshl_b32 s{S_T1}, s{S_WV}, 17"); A(f"s_add_u32 s{S_T0}, s{S_T0}, s{S_T1}")
        srd_off(A, S_WO, P_WO, P_WO+1, f"s{S_T0}", 512*1024)
        def bgD(n=1):
            for _ in range(n):
                i = state["D"]
                if i >= 36 or i - state["R"] >= NPOST: return
                emit_items(A, w2.D(i)); state["D"] += 1
        def bgR(n=1):
            for _ in range(n):
                i = state["R"]
                if i >= state["D"]: return
                if i >= 32 and not state.get("vfree"): return
                emit_items(A, w2.R(i)); state["R"] += 1
        def bgD_safe(n=1):
            A("s_waitcnt lgkmcnt(0)"); bgD(n)
        A(f"s_lshl_b32 s{S_T0}, s{S_T}, 1"); A(f"s_add_u32 s{S_T0}, s{S_T0}, s{S_WM}"); A(f"s_lshl_b32 s{S_T0}, s{S_T0}, 2")
        A(f"s_lshr_b32 s{S_T1}, s{S_IDX}, 1"); A(f"s_add_u32 s{S_T0}, s{S_T0}, s{S_T1}"); A(f"s_mul_i32 s{S_HB}, s{S_T0}, {36*2048}")
        A(f"s_and_b32 s{S_I1}, s{S_IDX}, 1")
        I1 = S_I1
        R2 = XF
        for tb in range(2):
            A(f"v_mul_f32 v{R2+2*tb}, v{VR+tb}, v{VR+tb}"); A(f"v_mul_f32 v{R2+2*tb+1}, v{VR+tb}, v{VR+tb}")
        PK = WF
        nst = 0
        gublks = [b for b, kd in enumerate(kinds) if kd in ("gu", "guh")]
        lasth = None
        for blk in gublks:
            kd = kinds[blk]
            if typ == "A":
                if blk == 0:
                    A(f"s_lshl_b32 s{S_T2}, s{I1}, 1"); A(f"s_add_u32 s{S_T2}, s{S_T2}, s{S_WN}"); A(f"s_lshl_b32 s{S_T2}, s{S_T2}, 13"); A(f"s_add_u32 s{S_T2}, s{S_T2}, s{S_HB}")
                else: A(f"s_add_u32 s{S_T2}, s{S_T2}, 2048")
            elif kd == "gu":
                if blk == 2:
                    A(f"s_lshl_b32 s{S_T2}, s{I1}, 2"); A(f"s_lshl_b32 s{S_T3}, s{S_WN}, 1"); A(f"s_add_u32 s{S_T2}, s{S_T2}, s{S_T3}"); A(f"s_add_u32 s{S_T2}, s{S_T2}, 16")
                    A(f"s_lshl_b32 s{S_T2}, s{S_T2}, 11"); A(f"s_add_u32 s{S_T2}, s{S_T2}, s{S_HB}")
                else: A(f"s_add_u32 s{S_T2}, s{S_T2}, 2048")
            else:
                A(f"s_lshl_b32 s{S_T2}, s{I1}, 1"); A(f"s_add_u32 s{S_T2}, s{S_T2}, s{S_WN}"); A(f"s_add_u32 s{S_T2}, s{S_T2}, 24")
                A(f"s_lshl_b32 s{S_T2}, s{S_T2}, 11"); A(f"s_add_u32 s{S_T2}, s{S_T2}, s{S_HB}")
            for tb in range(2):
                a = acc(blk, tb); pk = PK + 4*(nst % 4); nst += 1
                for i in range(4): A(f"v_pk_mul_f32 v[{a+2*i}:{a+2*i+1}], v[{a+2*i}:{a+2*i+1}], v[{a+8+2*i}:{a+8+2*i+1}]")
                for i in range(4): A(f"v_pk_mul_f32 v[{a+2*i}:{a+2*i+1}], v[{a+2*i}:{a+2*i+1}], v[{R2+2*tb}:{R2+2*tb+1}]")
                for i in range(4): A(f"v_cvt_pk_bf16_f32 v{pk+i}, v{a+2*i}, v{a+2*i+1}")
                lasth = f"hs_{blk}_{tb}"
                A.vm(f"buffer_store_dwordx4 v[{pk}:{pk+3}], v{VL16}, s[{S_H}:{S_H+3}], s{S_T2} offen offset:{tb*1024} sc1", id=lasth)
        assert (not LATE_R) or 36 - N_IN <= NPOST
        A.stamp(5); A.stamp(2, "tr")
        FA, ONE = VT+4, VT+5
        A(f"s_mov_b32 s{S_C6}, 0x358637bd"); A(f"s_mov_b32 s{S_C6+1}, 0x358637bd")
        C6 = f"s[{S_C6}:{S_C6+1}]"
        if typ == "A":
            A(f"s_lshl_b32 s{S_T2}, s{I1}, 2"); A(f"s_lshl_b32 s{S_T3}, s{S_WN}, 1"); A(f"s_add_u32 s{S_T2}, s{S_T2}, s{S_T3}"); A(f"s_add_u32 s{S_T2}, s{S_T2}, 28")
            A(f"s_lshl_b32 s{S_T2}, s{S_T2}, 11"); A(f"s_add_u32 s{S_T4}, s{S_T2}, s{S_HB}"); A(f"s_add_u32 s{S_XO}, s{S_T4}, 2048")
            A(f"s_mov_b32 s22, s{S_T4}"); A(f"s_mov_b32 s23, s{S_XO}")
            RP = XF + 4; RLP = XF + 6
            for tb in range(2):
                a = acc(4, tb)
                A(f"v_mov_b32 v{RP}, v{VR+tb}"); A(f"v_mov_b32 v{RP+1}, v{VR+tb}")
                A(f"v_mul_f32 v{RLP}, 0x3fb8aa3b, v{VR+tb}"); A(f"v_mul_f32 v{RLP+1}, 0x3fb8aa3b, v{VR+tb}")
                for i in range(0, 16, 4):
                    for j in (0, 2): A(f"v_pk_mul_f32 v[{tt+j}:{tt+j+1}], v[{a+i+j}:{a+i+j+1}], v[{RLP}:{RLP+1}]")
                    for j in (0, 2): A(f"v_pk_fma_f32 v[{a+i+j}:{a+i+j+1}], v[{a+i+j}:{a+i+j+1}], v[{RP}:{RP+1}], {C6}")
                    for j in range(4): A(f"v_exp_f32_e64 v{tt+j}, v{tt+j} clamp")
                    for j in range(4): A(f"v_max_f32 v{a+i+j}, s{S_C6}, v{a+i+j}")
                    for j in (0, 2): A(f"v_pk_add_f32 v[{a+i+j}:{a+i+j+1}], v[{a+i+j}:{a+i+j+1}], v[{tt+j}:{tt+j+1}]")
                    if PHI_D: bgD(1)
                if tb == 0 and FLAG_TB_A == 0:
                    A.stamp(3, "tr"); A.wait(lasth); A.stamp(4, "tr"); self.flag_store(0, FA, ONE)
                    if LATE_R == 1: bgD(36 - N_IN)
                for hs in range(2):
                    pk = (128 + 4*(2*tb + hs)) if (DEFER or PQ_LATE) else PK + 4*(nst % 4); nst += 1
                    for i in range(4): A(f"v_cvt_pk_bf16_f32 v{pk+i}, v{a+8*hs+2*i}, v{a+8*hs+2*i+1}")
                    if not (DEFER or PQ_LATE): A.vm(f"buffer_store_dwordx4 v[{pk}:{pk+3}], v{VL16}, s[{S_H}:{S_H+3}], s{S_XO if hs else S_T4} offen offset:{tb*1024} sc1", id=f"pq_{tb}_{hs}")
            if FLAG_TB_A == 1:
                A.stamp(3, "tr"); A.wait(lasth); A.stamp(4, "tr"); self.flag_store(0, FA, ONE)
            if PQ_LATE and not DEFER:
                for tb in range(2):
                    for hs in range(2):
                        pk = 128 + 4*(2*tb + hs)
                        A.vm(f"buffer_store_dwordx4 v[{pk}:{pk+3}], v{VL16}, s[{S_H}:{S_H+3}], s{23 if hs else 22} offen offset:{tb*1024} sc1")
            bgD(11)
            state["vfree"] = True
            A.stamp(5, "tr")
        else:
            RR = WF; RL = WF + 16; TK = WF + 32; TV = VT + 6
            ONES = XF + 4
            for i in range(4): A(f"v_mov_b32 v{ONES+i}, 0x3f803f80")
            A(f"v_lshrrev_b32 v{tt}, 5, v{VLANE}"); A(f"v_lshlrev_b32 v{tt}, 4, v{tt}")
            A(f"s_lshl_b32 s{S_T0}, s{S_WM}, 8"); A(f"s_add_u32 s{S_T0}, s{S_T0}, {LDS_R}"); A(f"v_add_u32 v{XF+9}, s{S_T0}, v{tt}")
            D2, DZ = acc(2,0), acc(2,1)
            for tb in range(2):
                for q4 in range(4): A(f"ds_read_b128 v[{RR+4*q4}:{RR+4*q4+3}], v{XF+9} offset:{tb*128 + q4*32}")
                A("s_waitcnt lgkmcnt(0)")
                A(f"s_mov_b32 s{S_T0}, 0x3fb8aa3b"); A(f"s_mov_b32 s{S_T1}, 0x3fb8aa3b")
                for i in range(8): A(f"v_pk_mul_f32 v[{RL+2*i}:{RL+2*i+1}], v[{RR+2*i}:{RR+2*i+1}], s[{S_T0}:{S_T1}]")
                a = acc(0, tb); av = acc(1, tb)
                for i in range(0, 16, 4):
                    for j in (0, 2): A(f"v_pk_mul_f32 v[{tt+j}:{tt+j+1}], v[{a+i+j}:{a+i+j+1}], v[{RL+i+j}:{RL+i+j+1}]")
                    for j in (0, 2): A(f"v_pk_fma_f32 v[{a+i+j}:{a+i+j+1}], v[{a+i+j}:{a+i+j+1}], v[{RR+i+j}:{RR+i+j+1}], {C6}")
                    for j in range(4): A(f"v_exp_f32_e64 v{tt+j}, v{tt+j} clamp")
                    for j in range(4): A(f"v_max_f32 v{a+i+j}, s{S_C6}, v{a+i+j}")
                    for j in (0, 2): A(f"v_pk_add_f32 v[{a+i+j}:{a+i+j+1}], v[{a+i+j}:{a+i+j+1}], v[{tt+j}:{tt+j+1}]")
                    if PHI_D: bgD(1)
                for i in range(8): A(f"v_pk_mul_f32 v[{av+2*i}:{av+2*i+1}], v[{av+2*i}:{av+2*i+1}], v[{RR+2*i}:{RR+2*i+1}]")
                for i in range(8): A(f"v_cvt_pk_bf16_f32 v{TK+i}, v{a+2*i}, v{a+2*i+1}")
                for i in range(8): A(f"v_cvt_pk_bf16_f32 v{TV+i}, v{av+2*i}, v{av+2*i+1}")
                A("s_nop 1")
                for f in range(2):
                    c = "0" if (tb == 0 and f == 0) else None
                    A(f"v_mfma_f32_32x32x16_bf16 v[{D2}:{D2+15}], v[{TK+4*f}:{TK+4*f+3}], v[{TV+4*f}:{TV+4*f+3}], {c or f'v[{D2}:{D2+15}]'}")
                    A(f"v_mfma_f32_32x32x16_bf16 v[{DZ}:{DZ+15}], v[{TK+4*f}:{TK+4*f+3}], v[{ONES}:{ONES+3}], {c or f'v[{DZ}:{DZ+15}]'}")
                if tb == FLAG_TB:
                    A.stamp(3, "tr"); A.wait(lasth); A.stamp(4, "tr"); self.flag_store(4, FA, ONE)
                    if LATE_R == 1 and B_EARLY_D: bgD(36 - N_IN)
            if PHI_D: bgD(3)
            A(f"v_and_b32 v{tt}, 31, v{VLANE}"); A(f"v_cmp_gt_u32 vcc, 16, v{tt}")
            A(f"s_lshl_b32 s{S_T0}, s{S_WM}, 13"); A(f"s_lshl_b32 s{S_T1}, s{S_WN}, 12"); A(f"s_add_u32 s{S_T0}, s{S_T0}, s{S_T1}"); A(f"s_add_u32 s{S_T0}, s{S_T0}, {LDS_KV}")
            A(f"v_lshlrev_b32 v{tt}, 2, v{VLANE}"); A(f"v_add_u32 v{tt}, s{S_T0}, v{tt}")
            A("s_nop 7"); A("s_nop 3")
            for r_ in range(16):
                if r_ < 8: A(f"v_cndmask_b32 v{D2+r_}, v{DZ+r_}, v{D2+r_}, vcc")
                else: A(f"v_cndmask_b32 v{D2+r_}, v{D2+r_}, v{DZ+r_}, vcc")
            for r_ in range(16): A(f"ds_write_b32 v{tt}, v{D2+r_} offset:{r_*256}")
            A("s_waitcnt lgkmcnt(0)"); A("s_barrier")
            A(f"s_lshr_b32 s{S_T0}, s{S_WV}, 1"); A(f"s_lshl_b32 s{S_T0}, s{S_T0}, 12"); A(f"s_add_u32 s{S_T0}, s{S_T0}, {LDS_KV}")
            A(f"s_and_b32 s{S_T2}, s{S_WV}, 1")
            A(f"s_mul_i32 s{S_T3}, s{S_T2}, {8*256}"); A(f"s_add_u32 s{S_T0}, s{S_T0}, s{S_T3}")
            A(f"s_lshl_b32 s{S_T3}, s{S_T2}, 6")
            A(f"s_lshl_b32 s{S_T1}, s{S_IDX}, 2"); A(f"s_add_u32 s{S_T1}, s{S_T1}, s{S_WV}")
            A(f"s_mul_i32 s{S_T1}, s{S_T1}, {KV_HEAD}"); A(f"s_add_u32 s{S_T1}, s{S_T1}, {WS_KV}")
            A(f"v_and_b32 v{tt}, 7, v{VLANE}"); A(f"v_lshlrev_b32 v{tt}, 8, v{tt}"); A(f"v_add_u32 v{tt}, s{S_T0}, v{tt}")
            A(f"v_lshrrev_b32 v{tt+1}, 3, v{VLANE}"); A(f"v_lshlrev_b32 v{tt+1}, 2, v{tt+1}")
            A(f"v_add_u32 v{tt+2}, v{tt}, v{tt+1}"); A(f"v_add_u32 v{tt+2}, s{S_T3}, v{tt+2}")
            B0 = ACC
            for n in range(4):
                off = (32*(n>>1) + 8*(n&1))*4
                A(f"ds_read_b32 v{B0+2*n}, v{tt+2} offset:{off}"); A(f"ds_read_b32 v{B0+2*n+1}, v{tt+2} offset:{off+8192}")
            A(f"s_sub_u32 s{S_T3}, 64, s{S_T3}")
            A(f"v_lshlrev_b32 v{tt+3}, 5, v{tt+1}"); A(f"v_add_u32 v{tt+3}, v{tt+3}, v{tt}"); A(f"v_add_u32 v{tt+3}, s{S_T3}, v{tt+3}")
            A(f"v_cmp_gt_u32 vcc, 16, v{VLANE}"); A(f"s_and_saveexec_b64 s[{S_E0}:{S_E0+1}], vcc")
            A(f"ds_read_b32 v{B0+8}, v{tt+3}"); A(f"ds_read_b32 v{B0+9}, v{tt+3} offset:8192")
            A(f"s_mov_b64 exec, s[{S_E0}:{S_E0+1}]")
            A(f"v_lshlrev_b32 v{tt+2}, 2, v{VLANE}"); A(f"v_add_u32 v{tt+2}, s{S_T1}, v{tt+2}")
            A("s_waitcnt lgkmcnt(0)")
            if DEFER:
                for n in range(5): A(f"v_add_f32 v{128+n}, v{B0+2*n}, v{B0+2*n+1}")
                A(f"v_mov_b32 v133, v{tt+2}")
            else:
                for n in range(4):
                    A(f"v_add_f32 v{B0+2*n}, v{B0+2*n}, v{B0+2*n+1}")
                    A.vm(f"global_atomic_add_f32 v{tt+2}, v{B0+2*n}, s[{S_WSP}:{S_WSP+1}] offset:{n*256}")
                A(f"v_add_f32 v{B0+8}, v{B0+8}, v{B0+9}")
                A(f"s_and_saveexec_b64 s[{S_E0}:{S_E0+1}], vcc")
                A.vm(f"global_atomic_add_f32 v{tt+2}, v{B0+8}, s[{S_WSP}:{S_WSP+1}] offset:1024", id="kvat")
                A(f"s_mov_b64 exec, s[{S_E0}:{S_E0+1}]")
            bgD(11)
            state["vfree"] = True
            A.stamp(5, "tr")
        A.stamp(6); A.stamp(6, "tr")
        if not LATE_R:
            while state["R"] < 36:
                bgR(3); bgD_safe(3)
            A("s_waitcnt lgkmcnt(0)")

class G2:
    ACC2 = 0; HB = 64; NH = 32; W2V = 192
    def __init__(self, A): self.A = A; self.w2 = W2(A)
    def poll(self, label, vaddr, nl, expect=None, novm=False):
        A = self.A; T = VT
        A(f"s_mov_b32 s{S_T3}, 0")
        A(f"s_mov_b64 s[{S_E0}:{S_E0+1}], exec"); A(f"s_mov_b64 exec, {(1<<nl)-1}")
        A.label(label)
        if novm: A.l.append(f"  global_load_dword v{T+9}, v{vaddr}, s[{S_WSP}:{S_WSP+1}] sc1")
        else: A.vm(f"global_load_dword v{T+9}, v{vaddr}, s[{S_WSP}:{S_WSP+1}] sc1")
        A("s_waitcnt vmcnt(0)")
        if expect is None: A(f"v_cmp_ne_u32 vcc, 0, v{T+9}")
        else: A(f"v_cmp_le_u32 vcc, {expect}, v{T+9}")
        A(f"s_add_u32 s{S_T3}, s{S_T3}, 1")
        A(f"s_cmp_ge_u32 s{S_T3}, {POLL_MAX}"); A(f"s_cbranch_scc1 {label}_x")
        A(f"s_cmp_eq_u64 vcc, exec"); A(f"s_cbranch_scc1 {label}_x")
        A("s_sleep 1"); A(f"s_branch {label}")
        A.label(label + "_x")
        A(f"s_mov_b64 exec, s[{S_E0}:{S_E0+1}]")
    def check(self, label, vreg, nl, expect=None):
        pass
    def body(self):
        A = self.A; T = VT; VL = VLANE
        ACC2 = 0; HB = 64; NH = 16; KVR0 = 128
        A.reset_vm()
        VFL, VKV, VCN = T+10, T+11, T+12
        VF1, VF2 = T+8, T+9
        srd(A, S_O, P_O, P_O+1, 2048*1024)
        srd(A, S_XX, P_X, P_X+1, 2048*1024)
        A(f"s_lshl_b32 s{S_HO}, s{S_TAU}, 2"); A(f"s_add_u32 s{S_HO}, s{S_HO}, s{S_WV}")
        A(f"s_lshl_b32 s{S_T0}, s{S_HO}, 6"); A(f"s_add_u32 s{S_T0}, s{S_T0}, {WS_FLAG}")
        A(f"v_lshlrev_b32 v{VFL}, 2, v{VL}"); A(f"v_add_u32 v{VFL}, s{S_T0}, v{VFL}")
        A(f"s_mul_i32 s{S_HO}, s{S_HO}, {36*2048}")
        A(f"s_add_u32 s{S_T4}, s{S_HO}, {56*1024}")
        A(f"s_mov_b32 s{S_HBASE}, s{S_HO}"); A(f"s_lshl_b32 s{S_HR}, s{S_RHO}, 11")
        A(f"v_and_b32 v{T}, 31, v{VL}"); A(f"v_lshrrev_b32 v{T+1}, 5, v{VL}")
        A(f"v_lshlrev_b32 v{T+2}, 4, v{T+1}"); A(f"v_add_u32 v{T+2}, v{T+2}, v{T}"); A(f"v_subrev_u32 v{T+2}, 16, v{T+2}"); A(f"v_lshlrev_b32 v{T+2}, 5, v{T+2}")
        A(f"v_lshlrev_b32 v{T+3}, 5, v{T+1}"); A(f"v_add_u32 v{T+3}, 1024, v{T+3}")
        A(f"v_cmp_gt_u32 vcc, 16, v{T}"); A("s_nop 1"); A(f"v_cndmask_b32 v{T+2}, v{T+2}, v{T+3}, vcc")
        A(f"s_lshl_b32 s{S_T0}, s{S_WV}, 3"); A(f"s_mul_i32 s{S_T0}, s{S_T0}, {KV_HEAD}"); A(f"s_add_u32 s{S_T0}, s{S_T0}, {WS_KV}")
        A(f"v_add_u32 v{VKV}, s{S_T0}, v{T+2}")
        A(f"s_lshl_b32 s{S_T0}, s{S_WV}, 9"); A(f"s_add_u32 s{S_T0}, s{S_T0}, {WS_KVCNT}")
        A(f"v_lshlrev_b32 v{VCN}, 6, v{VL}"); A(f"v_add_u32 v{VCN}, s{S_T0}, v{VCN}")
        A("s_barrier")
        def signal_block():
            A(f"s_cmp_ge_u32 s{S_CP}, 2"); A("s_cbranch_scc1 K12_sigB")
            A(f"s_lshl_b32 s{S_T0}, s{S_T}, 1"); A(f"s_add_u32 s{S_T0}, s{S_T0}, s{S_WM}"); A(f"s_lshl_b32 s{S_T0}, s{S_T0}, 2")
            A(f"s_lshr_b32 s{S_T1}, s{S_IDX}, 1"); A(f"s_add_u32 s{S_T0}, s{S_T0}, s{S_T1}"); A(f"s_lshl_b32 s{S_T0}, s{S_T0}, 4")
            A(f"s_lshl_b32 s{S_T1}, s{S_I1}, 1"); A(f"s_add_u32 s{S_T0}, s{S_T0}, s{S_T1}"); A(f"s_add_u32 s{S_T0}, s{S_T0}, s{S_WN}")
            A(f"s_add_u32 s{S_T0}, s{S_T0}, 8"); A(f"s_lshl_b32 s{S_T0}, s{S_T0}, 2"); A(f"s_add_u32 s{S_T0}, s{S_T0}, {WS_FLAG}")
            A(f"v_mov_b32 v{T+4}, s{S_T0}"); A(f"v_mov_b32 v{T+5}, 1")
            A(f"s_mov_b64 s[{S_E0}:{S_E0+1}], exec"); A("s_mov_b64 exec, 1")
            A(f"!global_store_dword v{T+4}, v{T+5}, s[{S_WSP}:{S_WSP+1}] sc1")
            A(f"s_mov_b64 exec, s[{S_E0}:{S_E0+1}]"); A("s_branch K12_sigX")
            A("K12_sigB:")
            A(f"s_lshl_b32 s{S_T0}, s{S_IDX}, 2"); A(f"s_add_u32 s{S_T0}, s{S_T0}, s{S_WV}"); A(f"s_lshl_b32 s{S_T0}, s{S_T0}, 6"); A(f"s_add_u32 s{S_T0}, s{S_T0}, {WS_KVCNT}")
            A(f"v_mov_b32 v{T+4}, s{S_T0}"); A(f"v_mov_b32 v{T+5}, 1")
            A(f"s_mov_b64 s[{S_E0}:{S_E0+1}], exec"); A("s_mov_b64 exec, 1")
            A(f"!global_atomic_add v{T+4}, v{T+5}, s[{S_WSP}:{S_WSP+1}] sc1")
            A(f"s_mov_b64 exec, s[{S_E0}:{S_E0+1}]")
            A("K12_sigX:")
        if not DEFER:
            if EARLY_POLL:
                A("s_mov_b64 exec, 255"); A.vm(f"global_load_dword v{T+9}, v{VFL}, s[{S_WSP}:{S_WSP+1}] sc1"); A("s_mov_b64 exec, -1")
            A("s_waitcnt vmcnt(0)")
            signal_block()
        if OUT_TOUCH:
            A(f"s_lshl_b32 s{S_T0}, s{S_TAU}, 16"); A(f"s_lshl_b32 s{S_T1}, s{S_J}, 7"); A(f"s_add_u32 s{S_T0}, s{S_T0}, s{S_T1}"); A(f"v_mov_b32 v{T+6}, s{S_T0}")
            A("s_mov_b64 exec, 1"); A.vm(f"global_load_dword v{T+7}, v{T+6}, s[{P_O}:{P_O+1}]"); A("s_mov_b64 exec, -1")
        A.stamp(7); A.stamp(7, "tr")
        if EARLY_POLL and not DEFER:
            A("s_mov_b64 exec, 255"); A(f"v_cmp_ne_u32 vcc, 0, v{T+9}"); A("s_nop 3"); A("s_cmp_eq_u64 vcc, exec"); A("s_mov_b64 exec, -1")
            A("s_cbranch_scc1 K12_hok")
        self.poll("K12_pollH", VFL, 8)
        A("K12_hok:")
        A.stamp(8, "tr")
        A.stamp(8); A.stamp(1, "g2")
        hstate = {"off": 0}
        def h_items(f):
            o = []
            hb = HB + 4*(f % NH)
            if f % 2 == 0: o.append(f"s_add_u32 s{S_HO}, s{S_HBASE}, s{S_HR}")
            o.append(("vm", f"h{f}", f"buffer_load_dwordx4 v[{hb}:{hb+3}], v{VL16}, s[{S_H}:{S_H+3}], s{S_HO} offen offset:{(f%2)*1024} sc1"))
            if f % 2 == 1 and f < 55:
                o += [f"s_add_u32 s{S_HR}, s{S_HR}, 2048", f"s_cmp_eq_u32 s{S_HR}, {28*2048}", f"s_cselect_b32 s{S_HR}, 0, s{S_HR}"]
            return o
        def pq_items(g):
            return [f"s_add_u32 s{S_HO}, s{S_T4}, {(g//4)*4096}",
                    ("vm", f"pq{g}", f"buffer_load_dwordx4 a[{4*g}:{4*g+3}], v{VL16}, s[{S_H}:{S_H+3}], s{S_HO} offen offset:{(g%4)*1024} sc1")]
        def kv_items(h):
            b = KVR0 + 8*h
            pre = [f"s_mov_b64 exec, s[{S_C6}:{S_C6+1}]"] if KVMASK else []
            post = ["s_mov_b64 exec, -1"] if KVMASK else []
            return pre + [("vm", None, f"global_load_dwordx4 v[{b}:{b+3}], v{VKV}, s[{S_WSP}:{S_WSP+1}] sc1"),
                    ("vm", f"kv{h}", f"global_load_dwordx4 v[{b+4}:{b+7}], v{VKV}, s[{S_WSP}:{S_WSP+1}] offset:16 sc1")] + post + [
                    f"v_add_u32 v{VKV}, {KV_HEAD}, v{VKV}"]
        if KVMASK:
            A(f"s_mov_b32 s{S_C6}, 0xffff0011"); A(f"s_mov_b32 s{S_C6+1}, 0xffff0011")
        AHEAD = G2_AHEAD
        KVB = [KVR0 + 8*h for h in range(8)]
        DO = [224 - 32, 224 - 16]
        DO = [T - 16 - 16 + 0, 0]
        DO = [208, 224]
        DO = [HB + 32, HB + 48]
        OF = [T, T+4]
        loads = [("h", f) for f in range(56)]
        if TBM:
            for h in range(8): loads += [("kv", h), ("pq", 2*h)]
            for h in range(8): loads += [("pq", 2*h+1)]
        else:
            for h in range(8): loads += [("kv", h), ("pq", 2*h), ("pq", 2*h+1)]
        CHK = G2_CHK
        li = {"n": 0}
        def issue(n):
            o = []
            for _ in range(n):
                if li["n"] >= len(loads): break
                k, x = loads[li["n"]]; li["n"] += 1
                o.append(h_items(x) if k == "h" else (kv_items(x) if k == "kv" else pq_items(x)))
            return o
        A(f"s_mul_i32 s{S_T0}, s{S_J}, {7*1024}"); A(f"s_add_u32 s{S_T0}, s{S_T0}, s{S_HO}")
        for x in issue(4):
            for y in x: A(y)
        if G2_PF:
            for k in range(7):
                if k == 4: A(f"s_add_u32 s{S_T0}, s{S_T0}, 4096")
                A.vm(f"buffer_load_dwordx4 v[{T}:{T+3}], v{VL16}, s[{S_H}:{S_H+3}], s{S_T0} offen offset:{(k%4)*1024} sc1")
        for x in issue(AHEAD - 4):
            for y in x: A(y)
        if DEFER:
            A(f"s_cmp_ge_u32 s{S_CP}, 2"); A("s_cbranch_scc1 K12_defB")
            for tb in range(2):
                for hs in range(2):
                    pk = 128 + 4*(2*tb + hs)
                    A(f"!buffer_store_dwordx4 v[{pk}:{pk+3}], v{VL16}, s[{S_H}:{S_H+3}], s{23 if hs else 22} offen offset:{tb*1024} sc1")
            A(f"v_mov_b32 v{T+6}, 24576"); A("s_mov_b64 exec, 1")
            A(f"!global_load_dword v{T+7}, v{T+6}, s[{S_WSP}:{S_WSP+1}]")
            A("s_mov_b64 exec, -1"); A("s_branch K12_defX")
            A("K12_defB:")
            for n in range(4): A(f"!global_atomic_add_f32 v133, v{128+n}, s[{S_WSP}:{S_WSP+1}] offset:{n*256}")
            A("s_mov_b64 exec, 0xffff")
            A(f"!global_atomic_add_f32 v133, v132, s[{S_WSP}:{S_WSP+1}] offset:1024")
            A("s_mov_b64 exec, -1")
            A("K12_defX:")
            A.nvm += 5; A.ids["defer"] = A.nvm
        A.stamp(2, "g2")
        for i in range(28):
            if LATE_R and i == N_IN: A("s_waitcnt lgkmcnt(0)")
            A.wait(f"h{2*i+1}")
            if DEFER and i == S_SIG:
                assert A.ids[f"h{2*i+1}"] > A.ids["defer"]
                signal_block()
            if i == 1: A.stamp(3, "g2")
            gaps = [[] for _ in range(4)]
            if i == CHK - 5:
                gaps[0] += [f"v_add_u32 v{VFL}, 32, v{VFL}", f"s_mov_b64 s[{S_E0}:{S_E0+1}], exec", "s_mov_b64 exec, 15",
                            ("vm", "fq", f"global_load_dword v{VF1}, v{VFL}, s[{S_WSP}:{S_WSP+1}] sc1"), "s_mov_b64 exec, 255",
                            ("vm", "fkv", f"global_load_dword v{VF2}, v{VCN}, s[{S_WSP}:{S_WSP+1}] sc1"), f"s_mov_b64 exec, s[{S_E0}:{S_E0+1}]"]
            if LATE_R and i >= 2 and N_IN + (i - 2) < 36:
                rr = self.w2.R(N_IN + (i - 2))[1:]
                gaps[0] += rr[0]; gaps[3] += rr[1]
            n = 2
            if li["n"] + n > 56 and i < CHK: n = max(0, 56 - li["n"])
            for k, x in enumerate(issue(n)): gaps[1+k] += x
            mf = []
            for tb in range(2):
                hb = HB + 4*((2*i+tb) % NH)
                for nb in range(2):
                    a = ACC2 + 16*(2*nb+tb)
                    c = "0" if i == 0 else f"v[{a}:{a+15}]"
                    mf.append(f"v_mfma_f32_32x32x16_bf16 v[{a}:{a+15}], {self.w2.frag(i,nb)}, v[{hb}:{hb+3}], {c}")
            for g in range(4):
                A(mf[g])
                for x in gaps[g]: A(x)
            if i == CHK - 1:
                A.stamp(4, "g2")
                A.wait("fkv")
                A(f"s_mov_b64 s[{S_E0}:{S_E0+1}], exec"); A("s_mov_b64 exec, 15")
                A(f"v_cmp_ne_u32 vcc, 0, v{VF1}"); A("s_nop 3"); A("s_cmp_eq_u64 vcc, exec"); A(f"s_mov_b64 exec, s[{S_E0}:{S_E0+1}]")
                A("s_cbranch_scc1 K12_qok")
                self.poll("K12_pollQ", VFL, 4, novm=True)
                A.label("K12_qok")
                A(f"s_mov_b64 s[{S_E0}:{S_E0+1}], exec"); A("s_mov_b64 exec, 255")
                A(f"v_cmp_le_u32 vcc, 16, v{VF2}"); A("s_nop 3"); A("s_cmp_eq_u64 vcc, exec"); A(f"s_mov_b64 exec, s[{S_E0}:{S_E0+1}]")
                A("s_cbranch_scc1 K12_kvok")
                self.poll("K12_pollKV", VCN, 8, expect=16, novm=True)
                A.label("K12_kvok")
                A.stamp(5, "g2")
        A.stamp(6, "g2"); A.stamp(1, "att")
        A(f"v_lshrrev_b32 v{T+8}, 3, v{VTID}"); A(f"v_and_b32 v{T+9}, 7, v{VTID}")
        A(f"s_lshl_b32 s{S_T0}, s{S_TAU}, 16"); A(f"s_lshl_b32 s{S_T2}, s{S_J}, 7"); A(f"s_add_u32 s{S_T0}, s{S_T0}, s{S_T2}")
        VG = VFL
        A(f"v_lshlrev_b32 v{VG}, 10, v{T+8}"); A(f"v_lshlrev_b32 v{VCN}, 4, v{T+9}"); A(f"v_add_u32 v{VG}, v{VG}, v{VCN}")
        A(f"s_add_u32 s{S_T2}, s{S_T0}, {32*1024}")
        XR = HB
        A(f"s_mov_b32 s{S_T1}, 0x358637bd")
        A("s_waitcnt lgkmcnt(0)")
        units = [(h, tb) for tb in range(2) for h in range(8)] if TBM else [(h, tb) for h in range(8) for tb in range(2)]
        RS = 272; WSZ = 64*RS; VW = VCN
        A(f"v_and_b32 v{VW}, 31, v{VL}"); A(f"v_mul_u32_u24 v{VW}, {RS}, v{VW}"); A(f"v_lshrrev_b32 v{T+9}, 5, v{VL}"); A(f"v_lshlrev_b32 v{T+9}, 4, v{T+9}"); A(f"v_add_u32 v{VW}, v{VW}, v{T+9}")
        A(f"s_mul_i32 s{S_T3}, s{S_WV}, {WSZ}"); A(f"v_add_u32 v{VW}, s{S_T3}, v{VW}")
        def wr(tb, k):
            nb, q = k // 4, k % 4; a = ACC2 + 16*(2*nb+tb)
            return f"ds_write_b128 v{VW}, v[{a+4*q}:{a+4*q+3}] offset:{tb*32*RS + nb*128 + q*32}"
        def stA(u):
            h, tb = units[u]; d = DO[u & 1]
            o = []
            if tb == 0:
                o.append(("wait", [f"kv{h}", f"pq{2*h}"]))
                o += [f"v_cvt_pk_bf16_f32 v{KVB[h]+e}, v{KVR0+8*h+2*e}, v{KVR0+8*h+2*e+1}" for e in range(4)]
                o.append("s_nop 1")
            else: o.append(("wait", [f"pq{2*h+1}"]))
            o.append(f"v_mfma_f32_32x32x16_bf16 v[{d}:{d+15}], v[{KVB[h]}:{KVB[h]+3}], {ar(4*(2*h+tb), 4)}, 0")
            return o
        def stB(u):
            d = DO[u & 1]; o = OF[u & 1]; rc = T + 8
            l = [f"v_add_f32 v{rc}, s{S_T1}, v{d}", f"v_rcp_f32 v{rc}, v{rc}", "s_nop 0"]
            l += [f"v_mul_f32 v{d+8+e}, v{rc}, v{d+8+e}" for e in range(8)]
            l += [f"v_cvt_pk_bf16_f32 v{o+e}, v{d+8+2*e}, v{d+8+2*e+1}" for e in range(4)]
            return l
        def stC(u):
            h, tb = units[u]; o = OF[u & 1]; i = 28 + h
            return [f"v_mfma_f32_32x32x16_bf16 v[{ACC2+16*(2*nb+tb)}:{ACC2+16*(2*nb+tb)+15}], {self.w2.frag(i,nb)}, v[{o}:{o+3}], v[{ACC2+16*(2*nb+tb)}:{ACC2+16*(2*nb+tb)+15}]" for nb in range(2)]
        for x in stA(0): A(x)
        A.stamp(2, "att")
        for x in issue(1):
            for y in x: A(y)
        for x in stA(1): A(x)
        for x in issue(2):
            for y in x: A(y)
        A("s_nop 7"); A("s_nop 3")
        for x in stB(0): A(x)
        xdone = False
        for u in range(16):
            c = stC(u)
            nb_ = stB(u+1) if u + 1 < 16 else []
            if u in (2, 6, 10, 13): A.stamp({2:3, 6:4, 10:5, 13:6}[u], "att")
            A("s_nop 1"); A(c[0])
            for x in nb_[:5]: A(x)
            if u + 2 < 16:
                for x in stA(u+2): A(x)
            iss = issue(2)
            for x in iss:
                for y in x: A(y)
            if not iss and not xdone:
                A.vm(f"buffer_load_dwordx4 v[{XR}:{XR+3}], v{VG}, s[{S_XX}:{S_XX+3}], s{S_T0} offen", id="x0")
                A.vm(f"buffer_load_dwordx4 v[{XR+4}:{XR+7}], v{VG}, s[{S_XX}:{S_XX+3}], s{S_T2} offen", id="x1")
                xdone = True
            for x in nb_[5:10]: A(x)
            A(c[1])
            for x in nb_[10:]: A(x)
            if TBM and 9 <= u <= 12:
                A(wr(0, 2*(u-9))); A(wr(0, 2*(u-9)+1))
        assert xdone and li["n"] == len(loads)
        A.stamp(7, "g2"); A.stamp(7, "att")
        A(f"v_lshrrev_b32 v{T+2}, 3, v{VTID}"); A(f"v_and_b32 v{T+3}, 7, v{VTID}")
        A(f"v_mul_u32_u24 v{T+6}, {RS}, v{T+2}"); A(f"v_lshlrev_b32 v{T+7}, 5, v{T+3}"); A(f"v_add_u32 v{T+6}, v{T+6}, v{T+7}")
        if not TBM:
            A("s_nop 7")
            for k in range(8): A(wr(0, k))
        A("s_nop 7"); A("s_nop 1")
        for k in range(8): A(wr(1, k))
        A("s_waitcnt lgkmcnt(0)"); A("s_barrier")
        A.stamp(8, "g2"); A.stamp(8, "att")
        for ps in range(2):
            b = 72 + 40*ps
            for w in range(4):
                A(f"ds_read_b128 v[{b+8*w}:{b+8*w+3}], v{T+6} offset:{w*WSZ + ps*32*RS}")
                A(f"ds_read_b128 v[{b+8*w+4}:{b+8*w+7}], v{T+6} offset:{w*WSZ + ps*32*RS + 16}")
        for ps in range(2):
            b = 72 + 40*ps
            A(f"s_waitcnt lgkmcnt({8 if ps == 0 else 0})")
            for e in range(0, 8, 2):
                A(f"v_pk_add_f32 v[{b+e}:{b+e+1}], v[{b+e}:{b+e+1}], v[{b+8+e}:{b+8+e+1}]")
                A(f"v_pk_add_f32 v[{b+16+e}:{b+16+e+1}], v[{b+16+e}:{b+16+e+1}], v[{b+24+e}:{b+24+e+1}]")
            for e in range(0, 8, 2):
                A(f"v_pk_add_f32 v[{b+e}:{b+e+1}], v[{b+e}:{b+e+1}], v[{b+16+e}:{b+16+e+1}]")
            A.wait(f"x{ps}")
            xb = XR + 4*ps
            for e in range(4):
                A(f"v_lshlrev_b32 v{T+8}, 16, v{xb+e}"); A(f"v_and_b32 v{T+9}, 0xffff0000, v{xb+e}")
                A(f"v_pk_add_f32 v[{b+2*e}:{b+2*e+1}], v[{b+2*e}:{b+2*e+1}], v[{T+8}:{T+9}]")
                A(f"v_cvt_pk_bf16_f32 v{b+32+e}, v{b+2*e}, v{b+2*e+1}")
            A.vm(f"buffer_store_dwordx4 v[{b+32}:{b+35}], v{VG}, s[{S_O}:{S_O+3}], s{S_T0 if ps == 0 else S_T2} offen")

def gen_k12():
    A = Prog()
    prologue_common(A)
    A(f"s_cmp_ge_u32 s{S_CP}, 2"); A("s_cbranch_scc1 K12_typeB")
    base_nvm = A.nvm; base_ids = dict(A.ids)
    for typ in ("A", "B"):
        if typ == "B":
            A.label("K12_typeB"); A.nvm = base_nvm; A.ids = dict(base_ids)
        g = G1(A, typ)
        g.prologue()
        if STAMP and SMODE == "wait":
            for c in (1,2,3,4,5,6,7): A(f"s_mov_b32 s{SB+2*c}, 0")
            A(f"s_memtime s[{SB+8}:{SB+9}]"); A("s_waitcnt lgkmcnt(0)")
        A.inloop = True
        g.loop()
        A.inloop = False
        if STAMP and SMODE == "wait":
            A(f"s_memtime s[{SB+10}:{SB+11}]"); A("s_waitcnt lgkmcnt(0)"); A(f"s_sub_u32 s{SB+8}, s{SB+10}, s{SB+8}")
        print(f"type {typ}: leftover W2 items after loop: {g.nleft}", file=sys.stderr)
        A.stamp(4); A.stamp(8, "loop"); A.stamp(8, "init"); A.stamp(5, "init")
        g.transition()
        if typ == "A": A("s_branch K12_g2")
    A.label("K12_g2")
    G2(A).body()
    if STAMP:
        A("s_waitcnt vmcnt(0) lgkmcnt(0)")
        A(f"{STAMP_INS} s[60:61]")
        A("s_waitcnt lgkmcnt(0)")
        A(f"s_lshl_b32 s{S_T0}, s2, 2"); A(f"s_add_u32 s{S_T0}, s{S_T0}, s{S_WV}"); A(f"s_lshl_b32 s{S_T0}, s{S_T0}, 6")
        A(f"s_add_u32 s{S_T0}, s{S_T0}, {WS_STAMP + 65536}")
        A(f"v_mov_b32 v{VT}, s{S_T0}")
        for i in range(9):
            A(f"v_mov_b32 v{VT+1}, s{SB+2*i}")
            A.vm(f"global_store_dword v{VT}, v{VT+1}, s[{S_WSP}:{S_WSP+1}] offset:{4*i}")
        A(f"v_mov_b32 v{VT+1}, s60")
        A.vm(f"global_store_dword v{VT}, v{VT+1}, s[{S_WSP}:{S_WSP+1}] offset:36")
    if STAMP and DBGSTAMP:
        A(f"s_cmp_eq_u32 s{S_WV}, 0"); A("s_cbranch_scc0 K12_end")
        A("s_mov_b64 exec, 1")
        for i in range(9):
            A(f"v_mov_b32 v{VT}, {4*(1+i)}"); A(f"v_mov_b32 v{VT+1}, s{SB+2*i}")
            A.vm(f"global_atomic_umax v{VT}, v{VT+1}, s[{S_DBG}:{S_DBG+1}]")
        A(f"v_mov_b32 v{VT}, 40"); A(f"v_mov_b32 v{VT+1}, s60"); A.vm(f"global_atomic_umax v{VT}, v{VT+1}, s[{S_DBG}:{S_DBG+1}]")
        A(f"s_not_b32 s{S_T0}, s{SB}"); A(f"v_mov_b32 v{VT}, 44"); A(f"v_mov_b32 v{VT+1}, s{S_T0}"); A.vm(f"global_atomic_umax v{VT}, v{VT+1}, s[{S_DBG}:{S_DBG+1}]")
    A.label("K12_end")
    return A.text()

def main(path):
    hdr = open("cdna_kernels/" + NAME + ".s.ref").read().split("; Override")[0]
    n = NAME + "_kernel"
    body = gen_k12()
    out = hdr + "; @launch grid=(256,1,1) block=(256,1,1) lds=163840\n"
    out += '.amdgcn_target "amdgcn-amd-amdhsa--gfx950"\n.text\n'
    out += f""".globl {n}
.p2align 8
.type {n},@function
{n}:
{body}
  s_endpgm
.section .rodata,"a"
.p2align 6
.amdhsa_kernel {n}
  .amdhsa_next_free_vgpr 512
  .amdhsa_next_free_sgpr 102
  .amdhsa_accum_offset 256
  .amdhsa_group_segment_fixed_size 0
  .amdhsa_kernarg_size 80
  .amdhsa_user_sgpr_count 2
  .amdhsa_user_sgpr_kernarg_segment_ptr 1
  .amdhsa_system_sgpr_workgroup_id_x 1
.end_amdhsa_kernel
"""
    open(path, "w").write(out)

if __name__ == "__main__":
    if "--stamp" in sys.argv:
        STAMP = True; sys.argv.remove("--stamp")
    for a in list(sys.argv):
        if a.startswith("--nin="): N_IN = int(a[6:]); sys.argv.remove(a)
        if a.startswith("--smode="): SMODE = a[8:]; sys.argv.remove(a)
        if a.startswith("--ahead="): G2_AHEAD = int(a[8:]); sys.argv.remove(a)
        if a.startswith("--chk="): G2_CHK = int(a[6:]); sys.argv.remove(a)
        if a.startswith("--pf="): G2_PF = int(a[5:]); sys.argv.remove(a)
        if a.startswith("--cpf2="): CODE_PF2 = int(a[7:]); sys.argv.remove(a)
        if a.startswith("--wsh="): WS_H = int(a[6:])*1048576; sys.argv.remove(a)
        if a == "--dbgstamp": DBGSTAMP = 1; sys.argv.remove(a)
        if a.startswith("--w2rot="): W2ROT = int(a[8:]); sys.argv.remove(a)
        if a.startswith("--w2start="): W2_START = int(a[10:]); sys.argv.remove(a)
        if a.startswith("--later="): LATE_R = int(a[8:]); sys.argv.remove(a)
        if a.startswith("--bed="): B_EARLY_D = int(a[6:]); sys.argv.remove(a)
        if a.startswith("--ftb="): FLAG_TB = int(a[6:]); sys.argv.remove(a)
        if a.startswith("--pt="): K_PT = int(a[5:]); sys.argv.remove(a)
        if a.startswith("--tt="): TLB_TOUCH = int(a[5:]); sys.argv.remove(a)
        if a.startswith("--hinit="):
            H_INIT = int(a[8:]); K_INITLD = 2*H_INIT - 4; K_CSAT = 2*H_INIT; H_CS = H_INIT + 3; sys.argv.remove(a)
        if a.startswith("--rot2="): ROT2 = int(a[7:]); sys.argv.remove(a)
        if a.startswith("--kvmask="): KVMASK = int(a[9:]); sys.argv.remove(a)
        if a.startswith("--wopf="): K_WOPF = int(a[7:]); sys.argv.remove(a)
        if a.startswith("--defer="): DEFER = int(a[8:]); sys.argv.remove(a)
        if a.startswith("--cpf1="): CODE_PF1 = int(a[7:]); sys.argv.remove(a)
        if a.startswith("--zlate="): ZLATE = int(a[8:]); sys.argv.remove(a)
        if a.startswith("--tbm="): TBM = int(a[6:]); sys.argv.remove(a)
        if a.startswith("--gate="): GATE = int(a[7:]); sys.argv.remove(a)
        if a.startswith("--tt3="): TT3 = int(a[6:]); sys.argv.remove(a)
        if a.startswith("--pqlate="): PQ_LATE = int(a[9:]); sys.argv.remove(a)
        if a.startswith("--ftba="): FLAG_TB_A = int(a[7:]); sys.argv.remove(a)
        if a.startswith("--ot="): OUT_TOUCH = int(a[5:]); sys.argv.remove(a)
        if a.startswith("--ep="): EARLY_POLL = int(a[5:]); sys.argv.remove(a)
        if a.startswith("--phid="): PHI_D = int(a[7:]); sys.argv.remove(a)
        if a.startswith("--x1e="): X1_EARLY = int(a[6:]); sys.argv.remove(a)
        if a.startswith("--rot="): ROT = int(a[6:]); sys.argv.remove(a)
        if a.startswith("--cap="): CAP = int(a[6:]); sys.argv.remove(a)
    if "--cyc" in sys.argv:
        STAMP = True; STAMP_INS = "s_memtime"; sys.argv.remove("--cyc")
    main(sys.argv[1] if len(sys.argv) > 1 else "cdna_kernels/" + NAME + ".s")
```

```python
import sys

NAME = "parallel_sum__linear_attn_block__glu_gated_bilinear__prompt"
WS_M, WS_R, WS_KV, KV_HEAD = 0, 8192, 32768, 1152
WS_FLAG = WS_KV + 36864
WS_KVCNT = WS_FLAG + 8192
WS_CS = WS_KVCNT + 2048
WS_STCNT = WS_CS + 20480
WS_CSCNT = WS_STCNT + 2048
NZERO = 18
assert WS_CSCNT + 2048 <= WS_KV + NZERO*4096 <= 131072
DBG_INIT = 0
CS_TMP = 140
A_ONES = 220
VC1, VC2, VC3 = 251, 252, 253
WS_H = 131072
H_BYTES = 32*4*36*2048
POLL_MAX = 200000
STAMP = False
STAMP_INS = 's_memrealtime'
WS_STAMP = 1 << 24
SB = 84
CORR_AT = 28
N_IN = 28
CAP = 5
SMODE = 'main'
ROT = 8
PHI_D = 0
FASTG2 = 0
EARLY_POLL = 1
OUT_TOUCH = 0
PQ_LATE = 0
TT3 = 0
GATE = 0
TBM = 0
CODE_PF1 = 1
ZLATE = 0
H_Z = 2
DEFER = 0
S_SIG = 6
K_WOPF = 0
ROT2 = 1
KVMASK = 0
TLB_TOUCH = 0
K_PT = 0
FLAG_TB = 1
FLAG_TB_A = 0
B_EARLY_D = 1
LATE_R = 1
X1_EARLY = 1
W2ROT = 1
DBGSTAMP = 0
CODE_PF2 = 0
G2_AHEAD = 12; G2_CHK = 20; G2_PF = 0
K_INITLD = 6; H_INIT = 5; K_CSAT = 10; H_CS = 8; K_CNTLD = 18; H_CNT = 11; K_RANK = 25
CODE_KB = 48

class Prog:
    def __init__(self): self.l = []; self.nvm = 0; self.ids = {}; self.pos = {}; self.inloop = False
    def __call__(self, s):
        if s is None: return
        if isinstance(s, tuple):
            if s[0] == "vm":
                self.l.append("  " + s[2]); self.nvm += 1
                if s[1] is not None: self.ids[s[1]] = self.nvm; self.pos[s[1]] = len(self.l)
            elif s[0] == "stamp":
                self.stamp(s[1], s[2])
            elif s[0] == "vmu":
                self.l.append("  " + s[2]); self.ids[s[1]] = self.nvm
            elif s[0] == "wait":
                last = max(self.ids[i] for i in s[1])
                n = self.nvm - last
                assert n <= 63, (s, n)
                if STAMP and SMODE == "wait" and self.inloop:
                    cat = 2 if s[1][0].startswith("w2_") else (1 if s[1][0].startswith("W") else 3)
                    self.l.append(f"  s_memtime s[98:99]"); self.l.append("  s_waitcnt lgkmcnt(0)")
                    self.l.append(f"  s_waitcnt vmcnt({n})")
                    self.l.append(f"  s_memtime s[100:101]"); self.l.append("  s_waitcnt lgkmcnt(0)")
                    self.l.append(f"  s_sub_u32 s100, s100, s98"); self.l.append(f"  s_add_u32 s{SB+2*cat}, s{SB+2*cat}, s100")
                    return
                self.l.append(f"  s_waitcnt vmcnt({n})" + (" " + s[2] if len(s) > 2 and s[2] else ""))
            else: raise ValueError(s)
        elif s.endswith(":"): self.l.append(s)
        elif s.startswith("!"):
            self.l.append("  " + s[1:])
        else:
            assert not ("buffer_" in s or "global_" in s), s
            self.l.append("  " + s)
    def vm(self, text, id=None): self(("vm", id, text))
    def wait(self, *ids): self(("wait", list(ids)))
    def label(self, s): self.l.append(s + ":")
    def text(self): return "\n".join(self.l)
    def stamp(self, i, mode="main"):
        if STAMP and (mode == SMODE or i == 0): self.l.append(f"  {STAMP_INS} s[{SB+2*i}:{SB+2*i+1}]")
    def reset_vm(self):
        self.ids = {}

def vr(b, n=1): return f"v{b}" if n == 1 else f"v[{b}:{b+n-1}]"
def ar(b, n=1): return f"a{b}" if n == 1 else f"a[{b}:{b+n-1}]"
def srd(A, d, lo, hi, size):
    A(f"s_mov_b32 s{d}, s{lo}"); A(f"s_and_b32 s{d+1}, s{hi}, 0xffff"); A(f"s_mov_b32 s{d+2}, {size}"); A(f"s_mov_b32 s{d+3}, 0x20000")
def srd_off(A, d, lo, hi, off, size):
    A(f"s_add_u32 s{d}, s{lo}, {off}"); A(f"s_addc_u32 s{d+1}, s{hi}, 0"); A(f"s_and_b32 s{d+1}, s{d+1}, 0xffff")
    if isinstance(off, int): A(f"s_mov_b32 s{d+2}, {size - off}")
    else: A(f"s_sub_u32 s{d+2}, {size}, {off}")
    A(f"s_mov_b32 s{d+3}, 0x20000")

X_BASE = 0; X_SLOT = 16384
W_BASE = 49152; W_SLOT = 20480; W_NS = 3
W2IN = W_BASE + W_NS*W_SLOT
NSL = 6
LDS_R = W2IN + 4*NSL*2048
LDS_KV = 0
W2_START = 1
W2POST = 69632; NPOST = 11
DLAG = 5

ACC = 0; WF = 160; XF = 200; TRA = 216; XA = 221; VOW = 225; VOX = 230
VR = 234; VLANE = 236; VL16 = 237; VTID = 238; VDM = 239
VT = 240
VTR = 254; VTR1 = 255
AMF = 228; ACF = 236
def acc(blk, tb): return ACC + (blk*2+tb)*16

S_X = 4; S_W = 8; S_H = 28; S_WSP = 32
S_WV = 34; S_WM = 35; S_WN = 36; S_T = 37; S_IDX = 38
S_KW = 39; S_KH = 40; S_R30 = 41; S_R35 = 42; S_RH = 43; S_KX = 44; S_W1K = 45; S_W4K = 46; S_XB = 47
S_WD = 48; S_LB = 52; S_W2O = 53
S_W2B = 74; S_W2R = 75; S_W2T = 76; S_RHO = 77; S_HR = 75; S_HBASE = 74
S_T0 = 54; S_T1 = 55; S_T2 = 56; S_T3 = 57; S_T4 = 58; S_XO = 59
S_E0 = 60; S_E2 = 62
S_P = 64
P_X, P_WQ, P_WO, P_G, P_U, P_D, P_O = 64, 66, 68, 72, 74, 76, 78
S_DBG = 72; S_KSC = 66; S_CG = 67
S_HB = 80; S_I1 = 81; S_CP = 82; S_TAU = 83; S_J = 70; S_HO = 71
S_WO = 8; S_O = 12; S_XX = 16
S_C6 = 20

def w2row(i):
    if i < 16: return ("D", 256, 16*i)
    if i < 24: return ("D", 128, 1024 + 16*(i-16))
    if i < 28: return ("D", 64, 1536 + 16*(i-24))
    return ("O", 128, 16*(i-28))

class W2:
    def __init__(self, A, vdm2=None): self.A = A; self.vdm2 = vdm2
    def frag(self, ks, nb, W2V=192):
        f = ks*2 + nb
        return ar(4*f, 4) if f < 64 else vr(W2V + 4*(f-64), 4)
    def half(self, ks, nb, h, W2V=192):
        f = ks*2 + nb
        return ar(4*f + 2*h, 2) if f < 64 else vr(W2V + 4*(f-64) + 2*h, 2)
    def slot_off(self, i):
        return (i % NSL)*2048 if i < N_IN else ((i - N_IN) % NPOST)*2048
    def D(self, i):
        o = []
        if i < 28: s, so = S_WD, S_W2R
        else:
            s, so = S_WO, S_W2O
            o.append([f"s_mov_b32 s{S_W2O}, {16*(i-28)*1024}"])
        d0 = ("dma", f"s_add_u32 m0, s{S_LB}, {self.slot_off(i)}", ("vm", f"w2_{i}_0", f"buffer_load_dwordx4 v{VDM}, s[{s}:{s+3}], s{so} offen lds"))
        o.append(d0)
        o.append(("dma", f"s_add_u32 m0, s{S_LB}, {self.slot_off(i) + 1024}", ("vm", f"w2_{i}_1", f"buffer_load_dwordx4 v{self.vdm2}, s[{s}:{s+3}], s{so} offen lds")))
        if i < 27:
            o.append([f"s_add_u32 s{S_W2R}, s{S_W2R}, 16384", f"s_cmp_eq_u32 s{S_W2R}, {28*16384}", f"s_cselect_b32 s{S_W2R}, 0, s{S_W2R}"])
        return o
    def R(self, i):
        o = self.slot_off(i)
        r = [[("wait", [f"w2_{i}_1"])]]
        for nb in range(2):
            va = VTR if nb == 0 else VTR1
            r.append([f"ds_read_b64_tr_b16 {self.half(i, nb, 0)}, v{va} offset:{o}", f"ds_read_b64_tr_b16 {self.half(i, nb, 1)}, v{va} offset:{o+1024}"])
        return r

def emit_items(A, items):
    for it in items:
        if isinstance(it, tuple) and it[0] == "dma":
            A(it[1]); A("s_nop 0"); A(it[2])
        else:
            for s in it: A(s)

def prologue_common(A):
    A("s_cmp_ge_u32 s2, 256"); A("s_cbranch_scc1 K12_end")
    A.stamp(0)
    A(f"s_load_dwordx16 s[{S_P}:{S_P+15}], s[0:1], 0")
    A(f"s_load_dwordx2 s[{S_WSP}:{S_WSP+1}], s[0:1], 72")
    A(f"s_getpc_b64 s[{S_E2}:{S_E2+1}]")
    A("K12_pc:")
    A(f"v_and_b32 v{VLANE}, 63, v0")
    A(f"v_lshrrev_b32 v{VT}, 6, v0")
    A(f"v_mov_b32 v{VTID}, v0")
    A(f"v_lshlrev_b32 v{VL16}, 4, v{VLANE}")
    if TLB_TOUCH:
        A(f"v_lshlrev_b32 v{WF+28}, 3, v{VLANE}")
        A("s_mov_b64 exec, 0x1ff")
        A.vm(f"global_load_dwordx2 v[{WF+30}:{WF+31}], v{WF+28}, s[0:1]", id="kptr")
        A("s_mov_b64 exec, -1")
    A(f"v_readfirstlane_b32 s{S_WV}, v{VT}")
    A(f"s_and_b32 s{S_T0}, s2, 7"); A(f"s_lshr_b32 s{S_T1}, s2, 3")
    A(f"s_lshl_b32 s{S_T2}, s{S_T1}, 2"); A(f"s_add_u32 s{S_T2}, s{S_T2}, s{S_WV}"); A(f"s_min_u32 s{S_T2}, s{S_T2}, ((K12_end-K12_pc)>>10)-1"); A(f"s_lshl_b32 s{S_T2}, s{S_T2}, 10")
    A(f"v_add_u32 v{VT+4}, s{S_T2}, v{VL16}")
    if CODE_PF1: A.vm(f"global_load_dwordx4 v[{WF+36}:{WF+39}], v{VT+4}, s[{S_E2}:{S_E2+1}]")
    A(f"s_and_b32 s{S_T2}, s{S_T1}, 7"); A(f"s_lshr_b32 s{S_CP}, s{S_T1}, 3")
    A(f"s_lshr_b32 s{S_T}, s{S_T0}, 2"); A(f"s_lshl_b32 s{S_T}, s{S_T}, 3"); A(f"s_add_u32 s{S_T}, s{S_T}, s{S_T2}")
    A(f"s_and_b32 s{S_IDX}, s{S_T0}, 3"); A(f"s_lshl_b32 s{S_IDX}, s{S_IDX}, 1")
    A(f"s_and_b32 s{S_T3}, s{S_CP}, 1"); A(f"s_add_u32 s{S_IDX}, s{S_IDX}, s{S_T3}")
    A(f"s_and_b32 s{S_TAU}, s{S_T1}, 3"); A(f"s_lshl_b32 s{S_T3}, s{S_T0}, 2"); A(f"s_add_u32 s{S_TAU}, s{S_TAU}, s{S_T3}")
    A(f"s_lshr_b32 s{S_T4}, s{S_T1}, 2")
    A(f"s_add_u32 s{S_T0}, s{S_CP}, s{S_T2}"); A(f"s_and_b32 s{S_T0}, s{S_T0}, 3"); A(f"s_lshl_b32 s{S_T0}, s{S_T0}, 1")
    A(f"s_lshr_b32 s{S_T1}, s{S_T2}, 2"); A(f"s_add_u32 s{S_T0}, s{S_T0}, s{S_T1}")
    if ROT2: A(f"s_add_u32 s{S_T0}, s{S_CP}, s{S_T2}"); A(f"s_and_b32 s{S_T0}, s{S_T0}, 7")
    A(f"s_lshl_b32 s{S_KW}, s{S_T0}, 6")
    A(f"s_lshr_b32 s{S_WM}, s{S_WV}, 1"); A(f"s_and_b32 s{S_WN}, s{S_WV}, 1")
    t0, t1, t3, t4 = VT, VT+1, VT+3, VT+4
    A(f"v_lshrrev_b32 v{t0}, 3, v{VLANE}"); A(f"v_and_b32 v{t1}, 7, v{VLANE}")
    A(f"v_lshrrev_b32 v{t3}, 4, v{VLANE}"); A(f"v_xor_b32 v{t3}, v{t1}, v{t3}"); A(f"v_lshlrev_b32 v{t3}, 4, v{t3}")
    A(f"v_lshlrev_b32 v{t4}, 10, v{t0}"); A(f"v_add_u32 v{VOX}, v{t3}, v{t4}")
    A(f"v_xor_b32 v{VOX+1}, 64, v{VOX}"); A(f"v_add_u32 v{VOX+1}, {8*1024}, v{VOX+1}")
    A(f"v_add_u32 v{VOX+2}, {16*1024}, v{VOX}"); A(f"v_add_u32 v{VOX+3}, {16*1024}, v{VOX+1}")
    A(f"s_lshl_b32 s{S_XB}, s{S_T}, 7"); A(f"s_lshl_b32 s{S_T0}, s{S_WV}, 5"); A(f"s_add_u32 s{S_XB}, s{S_XB}, s{S_T0}"); A(f"s_lshl_b32 s{S_XB}, s{S_XB}, 10")
    A(f"s_lshl_b32 s{S_KX}, s{S_KW}, 1")
    A(f"s_and_b32 s{S_T0}, s{S_WV}, 1"); A(f"s_lshl_b32 s{S_T0}, s{S_T0}, 4"); A(f"s_add_u32 s{S_KH}, s{S_KW}, s{S_T0}")
    A(f"s_lshl_b32 s{S_T0}, s{S_WV}, 3"); A(f"s_add_u32 s{S_KW}, s{S_KW}, s{S_T0}")
    A(f"s_lshl_b32 s{S_W1K}, s{S_WV}, 10"); A(f"s_lshl_b32 s{S_W4K}, s{S_WV}, 12")
    A(f"s_lshr_b32 s{S_T0}, s{S_CP}, 1"); A(f"s_lshl_b32 s{S_T0}, s{S_T0}, 3"); A(f"s_add_u32 s{S_T3}, s{S_T0}, s{S_IDX}")
    A(f"s_lshl_b32 s{S_T0}, s{S_T}, 7"); A(f"s_lshl_b32 s{S_T1}, s{S_T3}, 3"); A(f"s_add_u32 s{S_T0}, s{S_T0}, s{S_T1}"); A(f"s_lshl_b32 s{S_T1}, s{S_WV}, 1"); A(f"s_add_u32 s{S_T2}, s{S_T0}, s{S_T1}")
    A(f"s_lshl_b32 s{S_T0}, s{S_T2}, 10"); A(f"v_add_u32 v{VT+5}, s{S_T0}, v{VL16}")
    if TLB_TOUCH:
        A.wait("kptr")
        A("s_mov_b64 exec, 0x1ff")
        A.vm(f"global_load_dword v{WF+29}, v[{WF+30}:{WF+31}], off offset:128")
        A("s_mov_b64 exec, -1")
    A.stamp(1, "pro")
    if GATE:
        A(f"s_load_dwordx2 s[{S_E0}:{S_E0+1}], s[0:1], 64")
    A("s_waitcnt lgkmcnt(0)")
    if GATE:
        A(f"s_cmp_eq_u32 s{S_WV}, 0"); A("s_cbranch_scc0 K12_gate_w")
        A(f"v_mov_b32 v{VT+8}, 192"); A(f"v_mov_b32 v{VT+9}, 1"); A("s_mov_b64 exec, 1")
        A(f"!global_atomic_add v{VT+8}, v{VT+9}, s[{S_E0}:{S_E0+1}] sc1")
        A(f"s_mov_b32 s{S_T1+0}, 0") if False else None
        A(f"s_mov_b32 s3, 0")
        A("K12_gate_l:")
        A(f"!global_load_dword v{VT+9}, v{VT+8}, s[{S_E0}:{S_E0+1}] sc1"); A("s_waitcnt vmcnt(0)")
        A(f"v_readfirstlane_b32 s{S_E2}, v{VT+9}"); A("s_add_u32 s3, s3, 1"); A(f"s_cmp_ge_u32 s3, {POLL_MAX}"); A("s_cbranch_scc1 K12_gate_x")
        A(f"s_cmp_ge_u32 s{S_E2}, 256"); A("s_cbranch_scc1 K12_gate_x"); A(f"s_sleep {GATE}"); A("s_branch K12_gate_l")
        A("K12_gate_x:"); A("s_mov_b64 exec, -1")
        A("K12_gate_w:"); A("s_barrier")
    if TLB_TOUCH:
        A(f"v_mov_b32 v{WF+28}, 24576"); A("s_mov_b64 exec, 1")
        A.vm(f"global_load_dword v{WF+32}, v{WF+28}, s[{S_WSP}:{S_WSP+1}]")
        A("s_mov_b64 exec, -1")
    A.stamp(2, "pro")
    if TT3:
        lo, hi = WF+30, WF+31
        A(f"v_mov_b32 v{lo}, s{P_WQ}"); A(f"v_mov_b32 v{hi}, s{P_WQ+1}")
        for ln, p in ((1, P_G), (2, P_U)):
            A(f"v_writelane_b32 v{lo}, s{p}, {ln}"); A(f"v_writelane_b32 v{hi}, s{p+1}, {ln}")
        A("s_mov_b64 exec, 7")
        A.vm(f"global_load_dword v{WF+29}, v[{lo}:{hi}], off")
        A("s_mov_b64 exec, -1")
    A(f"s_mov_b32 s{S_J}, s{S_T4}")
    if not ZLATE:
        A(f"s_cmp_ge_u32 s2, {NZERO}"); A("s_cbranch_scc1 K12_nozero")
        A(f"s_lshl_b32 s{S_T0}, s2, 12"); A(f"s_add_u32 s{S_T0}, s{S_T0}, {WS_KV}")
        A(f"v_lshlrev_b32 v{VT+6}, 4, v{VTID}"); A(f"v_add_u32 v{VT+6}, s{S_T0}, v{VT+6}")
        for i in range(4): A(f"v_mov_b32 v{VT+8+i}, 0")
        A(f"!global_store_dwordx4 v{VT+6}, v[{VT+8}:{VT+11}], s[{S_WSP}:{S_WSP+1}] sc1")
        A("K12_nozero:")
    SX = WF + 20
    A.vm(f"global_load_dwordx4 v[{SX}:{SX+3}], v{VT+5}, s[{P_X}:{P_X+1}]")
    A.vm(f"global_load_dwordx4 v[{SX+4}:{SX+7}], v{VT+5}, s[{P_X}:{P_X+1}] offset:1024", id="strow")
    A(f"s_lshl_b32 s{S_HB}, s{S_T2}, 2")
    A(f"s_mov_b32 s{S_I1}, s{S_T3}")
    srd(A, S_X, P_X, P_X+1, 2048*1024)

class G1:
    def __init__(self, A, typ):
        self.A = A; self.typ = typ; self.w2 = W2(A, 227 if typ == 'A' else 226)
        self.kinds = ["gu","gu","gu","gu","q"] if typ == "A" else ["k","v","gu","gu","guh"]
        if typ == "A": self.strides = [3584,3584,3584,3584,3072]; self.swz = ["g","u","g","u","q"]
        else: self.strides = [3072,3072,3584,3584,3584]; self.swz = ["q","q","g","u","h"]
    def vow(self, rho):
        key = (self.swz[rho], self.strides[rho])
        for r in range(rho + 1):
            if (self.swz[r], self.strides[r]) == key: return VOW + r
    def Wg(self, h):
        o = []
        if h > 0:
            o.append([f"s_add_u32 s{S_KW}, s{S_KW}, 32", f"s_and_b32 s{S_KW}, s{S_KW}, 511"])
            if self.typ == "B": o.append([f"s_add_u32 s{S_KH}, s{S_KH}, 32", f"s_and_b32 s{S_KH}, s{S_KH}, 511"])
        o.append([f"s_mul_i32 s{S_R30}, s{S_KW}, 3072", f"s_mul_i32 s{S_R35}, s{S_KW}, 3584"])
        if self.typ == "B": o.append([f"s_mul_i32 s{S_RH}, s{S_KH}, 3584"])
        for rho in range(5):
            so = S_RH if self.swz[rho] == "h" else (S_R30 if self.strides[rho] == 3072 else S_R35)
            o.append(("dma", f"s_add_u32 m0, s{S_W1K}, {W_BASE + (h % W_NS)*W_SLOT + rho*4096}",
                      ("vm", f"W{h}_{rho}", f"buffer_load_dwordx4 v{self.vow(rho)}, s[{S_W+4*rho}:{S_W+4*rho+3}], s{so} offen lds")))
        return o
    def Xg(self, sg):
        o = []
        if sg > 0: o.append([f"s_add_u32 s{S_KX}, s{S_KX}, 128", f"s_and_b32 s{S_KX}, s{S_KX}, 1023"])
        o.append([f"s_add_u32 s{S_XO}, s{S_XB}, s{S_KX}"])
        for j in range(4):
            o.append(("dma", f"s_add_u32 m0, s{S_W4K}, {X_BASE + (sg % 3)*X_SLOT + j*1024}",
                      ("vm", f"X{sg}_{j}", f"buffer_load_dwordx4 v{VOX+j}, s[{S_X}:{S_X+3}], s{S_XO} offen lds")))
        return o
    def reads(self, s):
        par = s & 1; kk = s & 3; sg = s >> 2; h = s >> 1; second = s & 1
        xo = (sg % 3)*X_SLOT
        o = [f"ds_read_b128 v[{XF+8*par}:{XF+8*par+3}], v{XA+kk} offset:{xo}", f"ds_read_b128 v[{XF+8*par+4}:{XF+8*par+7}], v{XA+kk} offset:{xo+4096}"]
        for blk, kd in enumerate(self.kinds):
            b = WF + 20*par + 4*blk
            if kd == "guh": o1, o2 = (1024 if second else 0), 256
            else: o1, o2 = (2048 if second else 0), 512
            o1 += (h % W_NS)*W_SLOT
            o.append(f"ds_read_b64_tr_b16 v[{b}:{b+1}], v{TRA+blk} offset:{o1}")
            o.append(f"ds_read_b64_tr_b16 v[{b+2}:{b+3}], v{TRA+blk} offset:{o1+o2}")
        return o
    def mfmas(self, s, order=None):
        par = s & 1; o = []
        for blk in (order or range(5)):
            kd = self.kinds[blk]
            wf = f"v[{WF+20*par+4*blk}:{WF+20*par+4*blk+3}]"
            for tb in range(2):
                xf = f"v[{XF+8*par+4*tb}:{XF+8*par+4*tb+3}]"; a = acc(blk, tb)
                c = "0" if s == 0 else f"v[{a}:{a+15}]"
                if kd in ("k", "v"): o.append(f"v_mfma_f32_32x32x16_bf16 v[{a}:{a+15}], {xf}, {wf}, {c}")
                else: o.append(f"v_mfma_f32_32x32x16_bf16 v[{a}:{a+15}], {wf}, {xf}, {c}")
        return o
    def corr(self):
        o = []
        for blk in range(5):
            for tb in range(2):
                a = acc(blk, tb); cf = ar(ACF+4*blk, 4); mf = ar(AMF+4*tb, 4)
                if self.kinds[blk] in ("k", "v"): o.append(f"v_mfma_f32_32x32x16_bf16 v[{a}:{a+15}], {mf}, {cf}, v[{a}:{a+15}]")
                else: o.append(f"v_mfma_f32_32x32x16_bf16 v[{a}:{a+15}], {cf}, {mf}, v[{a}:{a+15}]")
        return o

    def prologue(self):
        A, typ, kinds = self.A, self.typ, self.kinds
        SZQ, SZG = 512*3072, 512*3584
        A.stamp(3, "pro")
        emit_items(A, self.Xg(0))
        A.stamp(4, "pro")
        if typ == "A":
            A(f"s_lshr_b32 s{S_T0}, s{S_IDX}, 1"); A(f"s_mul_i32 s{S_T0}, s{S_T0}, 7"); A(f"s_and_b32 s{S_T1}, s{S_IDX}, 1"); A(f"s_lshl_b32 s{S_T1}, s{S_T1}, 1")
            A(f"s_add_u32 s{S_T0}, s{S_T0}, s{S_T1}"); A(f"s_lshl_b32 s{S_T0}, s{S_T0}, 7")
            srd_off(A, S_W+0, P_G, P_G+1, f"s{S_T0}", SZG); srd_off(A, S_W+4, P_U, P_U+1, f"s{S_T0}", SZG)
            A(f"s_add_u32 s{S_T0}, s{S_T0}, 128")
            srd_off(A, S_W+8, P_G, P_G+1, f"s{S_T0}", SZG); srd_off(A, S_W+12, P_U, P_U+1, f"s{S_T0}", SZG)
            A(f"s_lshl_b32 s{S_T0}, s{S_IDX}, 7")
            srd_off(A, S_W+16, P_WQ, P_WQ+1, f"s{S_T0}", SZQ)
        else:
            A(f"s_lshl_b32 s{S_T0}, s{S_IDX}, 7"); A(f"s_add_u32 s{S_T0}, s{S_T0}, 1024")
            srd_off(A, S_W+0, P_WQ, P_WQ+1, f"s{S_T0}", SZQ)
            A(f"s_add_u32 s{S_T0}, s{S_T0}, 1024")
            srd_off(A, S_W+4, P_WQ, P_WQ+1, f"s{S_T0}", SZQ)
            A(f"s_lshr_b32 s{S_T0}, s{S_IDX}, 1"); A(f"s_mul_i32 s{S_T0}, s{S_T0}, 7"); A(f"s_and_b32 s{S_T1}, s{S_IDX}, 1")
            A(f"s_add_u32 s{S_T0}, s{S_T0}, s{S_T1}"); A(f"s_add_u32 s{S_T0}, s{S_T0}, 4"); A(f"s_lshl_b32 s{S_T0}, s{S_T0}, 7")
            srd_off(A, S_W+8, P_G, P_G+1, f"s{S_T0}", SZG); srd_off(A, S_W+12, P_U, P_U+1, f"s{S_T0}", SZG)
            A(f"s_lshr_b32 s{S_T0}, s{S_IDX}, 1"); A(f"s_mul_i32 s{S_T0}, s{S_T0}, 7"); A(f"s_add_u32 s{S_T0}, s{S_T0}, 6"); A(f"s_lshl_b32 s{S_T0}, s{S_T0}, 7")
            A(f"s_and_b32 s{S_T1}, s{S_IDX}, 1"); A(f"s_lshl_b32 s{S_T1}, s{S_T1}, 6"); A(f"s_add_u32 s{S_T0}, s{S_T0}, s{S_T1}")
            A(f"s_cmp_ge_u32 s{S_WV}, 2")
            A(f"s_cselect_b32 s{S_T2}, s{P_U}, s{P_G}"); A(f"s_cselect_b32 s{S_T3}, s{P_U+1}, s{P_G+1}")
            srd_off(A, S_W+16, S_T2, S_T3, f"s{S_T0}", SZG)
        t0, t1, t2, t3, t4 = VT, VT+1, VT+2, VT+3, VT+4
        A(f"v_lshrrev_b32 v{t0}, 3, v{VLANE}"); A(f"v_and_b32 v{t1}, 7, v{VLANE}")
        A(f"v_lshrrev_b32 v{t2}, 4, v{VLANE}"); A(f"v_and_b32 v{t2}, 1, v{t2}")
        done = {}
        for rho in range(5):
            key = (self.swz[rho], self.strides[rho])
            if key in done: continue
            done[key] = rho
            if self.swz[rho] == "h":
                A(f"v_lshrrev_b32 v{t3}, 2, v{VLANE}"); A(f"v_and_b32 v{t4}, 3, v{VLANE}")
                A(f"s_lshr_b32 s{S_T0}, s{S_WV}, 1"); A(f"s_lshl_b32 s{S_T0}, s{S_T0}, 1")
                A(f"v_xor_b32 v{t4}, s{S_T0}, v{t4}")
                A(f"v_mul_u32_u24 v{t3}, 3584, v{t3}"); A(f"v_lshlrev_b32 v{t4}, 4, v{t4}"); A(f"v_add_u32 v{VOW+rho}, v{t3}, v{t4}")
            else:
                if self.swz[rho] == "q": A(f"v_lshlrev_b32 v{t3}, 2, v{t2}")
                else:
                    A(f"v_lshlrev_b32 v{t3}, 1, v{t2}")
                    if self.swz[rho] == "u": A(f"v_or_b32 v{t3}, 4, v{t3}")
                A(f"v_xor_b32 v{t3}, v{t1}, v{t3}"); A(f"v_lshlrev_b32 v{t3}, 4, v{t3}")
                A(f"v_mul_u32_u24 v{t4}, {self.strides[rho]}, v{t0}"); A(f"v_add_u32 v{VOW+rho}, v{t3}, v{t4}")
        A.stamp(5, "pro")
        emit_items(A, self.Wg(0)); A.stamp(6, "pro"); emit_items(A, self.Wg(1))
        A.stamp(1); A.stamp(7, "pro")
        A(f"v_lshlrev_b32 v{t3}, 2, v{t2}"); A(f"v_xor_b32 v{t3}, v{t1}, v{t3}"); A(f"v_lshlrev_b32 v{t3}, 4, v{t3}")
        A(f"v_lshlrev_b32 v{t4}, 10, v{t0}"); A(f"v_add_u32 v{VDM}, v{t3}, v{t4}")
        A(f"v_add_u32 v{self.w2.vdm2}, 8192, v{VDM}")
        A(f"s_lshl_b32 s{S_T0}, s{S_J}, 7"); A(f"s_mul_i32 s{S_T1}, s{S_WV}, {448*1024}"); A(f"s_add_u32 s{S_T0}, s{S_T0}, s{S_T1}")
        srd_off(A, S_WD, P_D, P_D+1, f"s{S_T0}", 1792*1024)
        A(f"s_mul_i32 s{S_LB}, s{S_WV}, {NSL*2048}"); A(f"s_add_u32 s{S_LB}, s{S_LB}, {W2IN}")
        A(f"s_lshr_b32 s{S_T0}, s2, 3"); A(f"s_and_b32 s{S_T1}, s{S_T0}, 3"); A(f"s_mul_i32 s{S_T1}, s{S_T1}, 7"); A(f"s_lshr_b32 s{S_T0}, s{S_T0}, 2"); A(f"s_mul_i32 s{S_T0}, s{S_T0}, 3")
        A(f"s_add_u32 s{S_RHO}, s{S_T0}, s{S_T1}"); A(f"s_cmp_ge_u32 s{S_RHO}, 28"); A(f"s_cselect_b32 s{S_T0}, 28, 0"); A(f"s_sub_u32 s{S_RHO}, s{S_RHO}, s{S_T0}")
        if not W2ROT: A(f"s_mov_b32 s{S_RHO}, 0")
        A(f"s_lshl_b32 s{S_W2R}, s{S_RHO}, 14")
        A(f"s_load_dwordx2 s[{S_DBG}:{S_DBG+1}], s[0:1], 64")
        A(f"s_mov_b32 s{S_CG}, s{S_I1}")
        A(f"s_lshr_b32 s{S_T0}, s{S_T}, 3"); A(f"s_lshl_b32 s{S_T0}, s{S_T0}, 1"); A(f"s_add_u32 s{S_KSC}, s{S_T0}, s{S_WM}")
        A(f"v_and_b32 v{t0}, 31, v{VLANE}")
        A(f"v_and_b32 v{t1}, 15, v{t0}"); A(f"v_lshrrev_b32 v{t2}, 4, v{t0}")
        def cs_addr(dst, soff_code, lane_kind):
            soff_code()
            if lane_kind == "gu":
                A(f"v_mul_u32_u24 v{t3}, 1792, v{t2}"); A(f"v_add_u32 v{t3}, v{t3}, v{t1}")
            elif lane_kind == "kv":
                A(f"v_lshlrev_b32 v{t3}, 9, v{t2}"); A(f"v_add_u32 v{t3}, v{t3}, v{t1}")
            else: A(f"v_mov_b32 v{t3}, v{t0}")
            A(f"v_add_u32 v{t3}, s{S_T0}, v{t3}"); A(f"v_lshlrev_b32 v{t3}, 2, v{t3}"); A(f"v_add_u32 v{dst}, {WS_CS}, v{t3}")
        if typ == "A":
            cs_addr(VC1, lambda: (A(f"s_lshr_b32 s{S_T0}, s{S_IDX}, 1"), A(f"s_mul_i32 s{S_T0}, s{S_T0}, 7"), A(f"s_and_b32 s{S_T1}, s{S_IDX}, 1"), A(f"s_lshl_b32 s{S_T1}, s{S_T1}, 1"), A(f"s_add_u32 s{S_T0}, s{S_T0}, s{S_T1}"),
                                  A(f"s_add_u32 s{S_T0}, s{S_T0}, s{S_WN}"), A(f"s_lshl_b32 s{S_T0}, s{S_T0}, 6"), A(f"s_add_u32 s{S_T0}, s{S_T0}, 1536")), "gu")
            cs_addr(VC2, lambda: (A(f"s_lshl_b32 s{S_T0}, s{S_IDX}, 6"), A(f"s_lshl_b32 s{S_T1}, s{S_WN}, 5"), A(f"s_add_u32 s{S_T0}, s{S_T0}, s{S_T1}")), "q")
            self.csa = [(VC1, 0), (VC1, 64), (VC1, 128), (VC1, 192), (VC2, 0)]
        else:
            cs_addr(VC2, lambda: (A(f"s_lshl_b32 s{S_T0}, s{S_IDX}, 6"), A(f"s_lshl_b32 s{S_T1}, s{S_WN}, 5"), A(f"s_add_u32 s{S_T0}, s{S_T0}, s{S_T1}"), A(f"s_add_u32 s{S_T0}, s{S_T0}, 512")), "q")
            cs_addr(VC1, lambda: (A(f"s_lshr_b32 s{S_T0}, s{S_IDX}, 1"), A(f"s_mul_i32 s{S_T0}, s{S_T0}, 7"), A(f"s_and_b32 s{S_T1}, s{S_IDX}, 1"), A(f"s_add_u32 s{S_T0}, s{S_T0}, s{S_T1}"), A(f"s_add_u32 s{S_T0}, s{S_T0}, 4"), A(f"s_lshl_b32 s{S_T0}, s{S_T0}, 6"), A(f"s_lshl_b32 s{S_T1}, s{S_WN}, 5"), A(f"s_add_u32 s{S_T0}, s{S_T0}, s{S_T1}"), A(f"s_add_u32 s{S_T0}, s{S_T0}, 1536")), "gu")
            cs_addr(VC3, lambda: (A(f"s_lshr_b32 s{S_T0}, s{S_IDX}, 1"), A(f"s_mul_i32 s{S_T0}, s{S_T0}, 7"), A(f"s_add_u32 s{S_T0}, s{S_T0}, 6"), A(f"s_lshl_b32 s{S_T0}, s{S_T0}, 6"),
                                  A(f"s_and_b32 s{S_T1}, s{S_IDX}, 1"), A(f"s_lshl_b32 s{S_T1}, s{S_T1}, 1"), A(f"s_add_u32 s{S_T1}, s{S_T1}, s{S_WN}"), A(f"s_lshl_b32 s{S_T1}, s{S_T1}, 4"),
                                  A(f"s_add_u32 s{S_T0}, s{S_T0}, s{S_T1}"), A(f"s_add_u32 s{S_T0}, s{S_T0}, 1536")), "gu")
            self.csa = [(VC2, 0), (VC2, 2048), (VC1, 0), (VC1, 64), (VC3, 0)]
        A(f"v_mov_b32 v{t3}, 0x3f803f80")
        for i in range(4): A(f"v_accvgpr_write_b32 a{A_ONES+i}, v{t3}")
        srd_off(A, S_H, S_WSP, S_WSP+1, WS_H, WS_H + H_BYTES)
        G, p, r, c = t0, t1, t2, t3
        A(f"v_lshrrev_b32 v{G}, 4, v{VLANE}"); A(f"v_and_b32 v{G}, 1, v{G}")
        A(f"v_lshrrev_b32 v{p}, 5, v{VLANE}")
        A(f"v_and_b32 v{r}, 15, v{VLANE}"); A(f"v_lshrrev_b32 v{r}, 2, v{r}")
        A(f"v_and_b32 v{c}, 3, v{VLANE}")
        k_, rb, u1, u2 = t4, t4+1, t4+2, t4+3
        A(f"v_lshlrev_b32 v{k_}, 3, v{p}"); A(f"v_add_u32 v{k_}, v{k_}, v{r}")
        A(f"v_lshrrev_b32 v{rb}, 1, v{r}"); A(f"v_and_b32 v{rb}, 1, v{rb}")
        for blk, kd in enumerate(kinds):
            d = TRA + blk
            if typ == "A" and kd == "gu" and blk > 0:
                A(f"v_xor_b32 v{d}, {blk*32}, v{TRA}"); continue
            if typ == "B" and blk == 1:
                A(f"v_add_u32 v{d}, 4096, v{d-1}"); continue
            if typ == "B" and blk == 3:
                A(f"v_xor_b32 v{d}, 32, v{d-1}"); continue
            if kd == "guh":
                A(f"v_lshrrev_b32 v{u1}, 1, v{c}"); A(f"s_lshl_b32 s{S_T0}, s{S_WN}, 1"); A(f"v_add_u32 v{u1}, s{S_T0}, v{u1}")
                A(f"v_lshlrev_b32 v{u2}, 1, v{G}"); A(f"v_xor_b32 v{u1}, v{u1}, v{u2}"); A(f"v_lshlrev_b32 v{u1}, 4, v{u1}")
                A(f"v_lshlrev_b32 v{u2}, 6, v{k_}"); A(f"v_add_u32 v{u1}, v{u1}, v{u2}")
                A(f"v_lshlrev_b32 v{u2}, 11, v{G}"); A(f"v_add_u32 v{u1}, v{u1}, v{u2}")
                A(f"v_add_u32 v{u1}, {W_BASE + 4*4096}, v{u1}")
            else:
                if kd in ("q", "k"):
                    A(f"s_lshl_b32 s{S_T0}, s{S_WN}, 1"); A(f"v_add_u32 v{u1}, s{S_T0}, v{G}")
                elif typ == "A": A(f"v_mov_b32 v{u1}, 0")
                else:
                    A(f"s_lshl_b32 s{S_T0}, s{S_WN}, 1"); A(f"v_mov_b32 v{u1}, s{S_T0}")
                A(f"v_lshlrev_b32 v{u1}, 1, v{u1}"); A(f"v_lshrrev_b32 v{u2}, 1, v{c}"); A(f"v_add_u32 v{u1}, v{u1}, v{u2}")
                if kd in ("q", "k"): A(f"v_lshlrev_b32 v{u2}, 2, v{rb}")
                else:
                    A(f"v_lshlrev_b32 v{u2}, 1, v{rb}"); A(f"v_lshlrev_b32 v{d}, 2, v{G}"); A(f"v_or_b32 v{u2}, v{u2}, v{d}")
                A(f"v_xor_b32 v{u1}, v{u1}, v{u2}"); A(f"v_lshlrev_b32 v{u1}, 4, v{u1}")
                A(f"v_lshlrev_b32 v{u2}, 7, v{k_}"); A(f"v_add_u32 v{u1}, v{u1}, v{u2}")
                if kd == "q": A(f"v_add_u32 v{u1}, {W_BASE + 4*4096}, v{u1}")
                elif kd == "k": A(f"v_add_u32 v{u1}, {W_BASE}, v{u1}")
                else:
                    if typ == "A":
                        A(f"s_lshl_b32 s{S_T0}, s{S_WN}, 13"); A(f"s_add_u32 s{S_T0}, s{S_T0}, {W_BASE}")
                    else: A(f"s_mov_b32 s{S_T0}, {W_BASE + 2*4096}")
                    A(f"v_lshlrev_b32 v{u2}, 12, v{G}"); A(f"v_add_u32 v{u1}, v{u1}, v{u2}"); A(f"v_add_u32 v{u1}, s{S_T0}, v{u1}")
            A(f"v_and_b32 v{u2}, 1, v{c}"); A(f"v_lshlrev_b32 v{u2}, 3, v{u2}"); A(f"v_add_u32 v{d}, v{u1}, v{u2}")
        A(f"v_lshlrev_b32 v{u1}, 2, v{p}"); A(f"v_add_u32 v{u1}, v{u1}, v{r}"); A(f"v_lshlrev_b32 v{u1}, 7, v{u1}")
        A(f"v_lshlrev_b32 v{u2}, 1, v{G}"); A(f"v_lshrrev_b32 v{VTR}, 1, v{c}"); A(f"v_add_u32 v{u2}, v{u2}, v{VTR}")
        A(f"v_lshlrev_b32 v{VTR}, 2, v{rb}"); A(f"v_xor_b32 v{u2}, v{u2}, v{VTR}"); A(f"v_lshlrev_b32 v{u2}, 4, v{u2}"); A(f"v_add_u32 v{u1}, v{u1}, v{u2}")
        A(f"v_and_b32 v{u2}, 1, v{c}"); A(f"v_lshlrev_b32 v{u2}, 3, v{u2}"); A(f"v_add_u32 v{u1}, v{u1}, v{u2}")
        A(f"v_add_u32 v{VTR}, s{S_LB}, v{u1}"); A(f"v_xor_b32 v{VTR1}, 64, v{VTR}")
        A(f"v_and_b32 v{u1}, 31, v{VLANE}"); A(f"s_lshl_b32 s{S_T0}, s{S_WM}, 6"); A(f"v_add_u32 v{u1}, s{S_T0}, v{u1}")
        A(f"v_lshrrev_b32 v{u2}, 1, v{u1}"); A(f"v_and_b32 v{u2}, 7, v{u2}"); A(f"v_xor_b32 v{u2}, v{u2}, v{p}"); A(f"v_lshlrev_b32 v{u2}, 4, v{u2}")
        A(f"v_lshlrev_b32 v{u1}, 7, v{u1}"); A(f"v_add_u32 v{u1}, v{u1}, v{u2}")
        for kk in range(4): A(f"v_xor_b32 v{XA+kk}, {kk*32}, v{u1}")
        if X1_EARLY: emit_items(A, self.Xg(1))
        SX = WF + 20
        A.wait("strow")
        P0, P1, Q0, Q1, U = VT, VT+2, VT+4, VT+6, VT+8
        for tok, (P, Q) in enumerate(((P0, Q0), (P1, Q1))):
            for i in range(4):
                src = SX + 4*tok + i
                A(f"v_lshlrev_b32 v{U}, 16, v{src}"); A(f"v_and_b32 v{U+1}, 0xffff0000, v{src}")
                if i == 0:
                    A(f"v_pk_mul_f32 v[{Q}:{Q+1}], v[{U}:{U+1}], v[{U}:{U+1}]"); A(f"v_mov_b32 v{P}, v{U}"); A(f"v_mov_b32 v{P+1}, v{U+1}")
                else:
                    A(f"v_pk_add_f32 v[{P}:{P+1}], v[{P}:{P+1}], v[{U}:{U+1}]"); A(f"v_pk_fma_f32 v[{Q}:{Q+1}], v[{U}:{U+1}], v[{U}:{U+1}], v[{Q}:{Q+1}]")
        for r_ in (P0, P1, Q0, Q1): A(f"v_add_f32 v{r_}, v{r_}, v{r_+1}")
        for dpp in ("row_shr:1 row_mask:0xf bank_mask:0xf", "row_shr:2 row_mask:0xf bank_mask:0xf", "row_shr:4 row_mask:0xf bank_mask:0xf", "row_shr:8 row_mask:0xf bank_mask:0xf",
                    "row_bcast:15 row_mask:0xa bank_mask:0xf", "row_bcast:31 row_mask:0xc bank_mask:0xf"):
            for r_ in (P0, P1, Q0, Q1): A(f"v_add_f32_dpp v{r_}, v{r_}, v{r_} {dpp}")
        A(f"v_mul_f32 v{P0}, 0x3b000000, v{P0}"); A(f"v_mul_f32 v{P0+1}, 0x3b000000, v{P1}")
        A(f"v_mul_f32 v{Q0}, 0x3b000000, v{Q0}"); A(f"v_mul_f32 v{Q0+1}, 0x3b000000, v{Q1}")
        for j in range(2):
            A(f"v_fma_f32 v{Q0+j}, -v{P0+j}, v{P0+j}, v{Q0+j}"); A(f"v_max_f32 v{Q0+j}, 0, v{Q0+j}"); A(f"v_add_f32 v{Q0+j}, 0x3727c5ac, v{Q0+j}"); A(f"v_rsq_f32 v{Q0+j}, v{Q0+j}")
        A(f"v_mov_b32 v{U}, s{S_HB}"); A(f"v_add_u32 v{U+1}, {WS_R}, v{U}")
        A(f"s_mov_b64 s[{S_E0}:{S_E0+1}], exec"); A("s_mov_b32 exec_lo, 0"); A("s_mov_b32 exec_hi, 0x80000000")
        A.vm(f"global_store_dwordx2 v{U}, v[{P0}:{P0+1}], s[{S_WSP}:{S_WSP+1}] sc1")
        A.vm(f"global_store_dwordx2 v{U+1}, v[{Q0}:{Q0+1}], s[{S_WSP}:{S_WSP+1}] sc1", id="stst")
        A(f"s_mov_b64 exec, s[{S_E0}:{S_E0+1}]")
        A.stamp(2)
        A("s_waitcnt lgkmcnt(0)")
        A.wait("X0_3", "W0_4")
        A("s_barrier")
        A.stamp(3); A.stamp(8, "pro")
        for s in self.reads(0): A(s)
        A.stamp(1, "init")
        if ZLATE:
            L = f"K12{typ}_nozero"
            A(f"s_cmp_ge_u32 s2, {NZERO}"); A(f"s_cbranch_scc1 {L}")
            A(f"s_lshl_b32 s{S_T0}, s2, 12"); A(f"s_add_u32 s{S_T0}, s{S_T0}, {WS_KV}")
            A(f"v_lshlrev_b32 v{VT+6}, 4, v{VTID}"); A(f"v_add_u32 v{VT+6}, s{S_T0}, v{VT+6}")
            for i in range(4): A(f"v_mov_b32 v{VT+0+i}, 0")
            A(("vmu", "zst", f"global_store_dwordx4 v{VT+6}, v[{VT+0}:{VT+3}], s[{S_WSP}:{S_WSP+1}] sc1"))
            A(f"{L}:")
        else:
            for x in self.sig(f"s_cmp_lt_u32 s2, {NZERO}", S_DBG, DBG_INIT, None, "init"): A(x)
        A.stamp(2, "init")

    def sig(self, cond, base, off_imm, off_sgpr, tag):
        L = f"K12{self.typ}_sig_{tag}"
        o = []
        if cond: o += [cond, f"s_cbranch_scc0 {L}"]
        o += [f"s_cmp_eq_u32 s{S_WV}, 0", f"s_cbranch_scc0 {L}"]
        if off_sgpr is None: o += [f"v_mov_b32 v{VT+9}, {off_imm}"]
        else: o += [f"s_lshl_b32 s{S_T4}, s{off_sgpr}, 7", f"s_add_u32 s{S_T4}, s{S_T4}, {off_imm}", f"v_mov_b32 v{VT+9}, s{S_T4}"]
        o += [f"v_mov_b32 v{VT+8}, 1", f"s_mov_b64 s[{S_E0}:{S_E0+1}], exec", "s_mov_b64 exec, 1",
              f"!global_atomic_add v{VT+9}, v{VT+8}, s[{base}:{base+1}] sc1", f"s_mov_b64 exec, s[{S_E0}:{S_E0+1}]", f"{L}:"]
        return o

    def spin(self, tag, base, vaddr, expect):
        L = f"K12{self.typ}_spin_{tag}"
        return [f"s_mov_b32 s{S_T3}, 0", f"{L}:", f"!global_load_dword v{VT+10}, v{vaddr}, s[{base}:{base+1}] sc1", "s_waitcnt vmcnt(0)",
                f"v_readfirstlane_b32 s{S_T4}, v{VT+10}", f"s_add_u32 s{S_T3}, s{S_T3}, 1", f"s_cmp_ge_u32 s{S_T3}, {POLL_MAX}", f"s_cbranch_scc1 {L}_x",
                f"s_cmp_ge_u32 s{S_T4}, {expect}", f"s_cbranch_scc1 {L}_x", "s_sleep 2", f"s_branch {L}", f"{L}_x:"]

    def w0(self, tag, code):
        L = f"K12{self.typ}_w0_{tag}"
        return [f"s_cmp_eq_u32 s{S_WV}, 0", f"s_cbranch_scc0 {L}"] + code + [f"{L}:"]

    def pre_barrier(self, h):
        typ = self.typ; T = VT
        if h == H_INIT:
            return [("stamp", 3, "init")] + self.w0("initchk", [("wait", ["initld"]), f"v_readfirstlane_b32 s{S_T4}, v{T+10}", "s_nop 0", f"s_cmp_ge_u32 s{S_T4}, {NZERO}", f"s_cbranch_scc1 K12{typ}_initok",
                                       f"v_mov_b32 v{T+9}, {DBG_INIT}"] + self.spin("init", S_DBG, T+9, NZERO) + [f"K12{typ}_initok:"]) + [("stamp", 4, "init")]
        if h == H_CNT:
            return [("stamp", 6, "init")] + self.w0("cntchk", [("wait", ["cntld"]), f"v_readfirstlane_b32 s{S_T4}, v{T+5}", "s_nop 0", f"s_cmp_ge_u32 s{S_T4}, 16", f"s_cbranch_scc1 K12{typ}_stok"]
                           + self.spin("st", S_WSP, T+7, 16) + [f"K12{typ}_stok:",
                           f"v_readfirstlane_b32 s{S_T4}, v{T+6}", "s_nop 0", f"s_cmp_ge_u32 s{S_T4}, 16", f"s_cbranch_scc1 K12{typ}_csok"]
                           + self.spin("cs", S_WSP, T+8, 16) + [f"K12{typ}_csok:"]) + [("stamp", 7, "init")]
        return []

    def oneshot_items(self, add, at):
        typ = self.typ; wsp = f"s[{S_WSP}:{S_WSP+1}]"; dbg = f"s[{S_DBG}:{S_DBG+1}]"
        T = VT
        for s in range(4):
            par = s & 1
            it = [f"s_cmp_eq_u32 s{S_KSC}, {s}", f"s_cbranch_scc0 K12{typ}_nocs{s}"]
            for blk in range(5):
                b = WF + 20*par + 4*blk
                it.append(f"v_mfma_f32_32x32x16_bf16 a[{CS_TMP+16*blk}:{CS_TMP+16*blk+15}], a[{A_ONES}:{A_ONES+3}], v[{b}:{b+3}], 0")
            it.append(f"K12{typ}_nocs{s}:")
            self.fixed.setdefault(s, []).append(it)
        self.fixed.setdefault(K_INITLD, []).append(self.w0("initld", [f"v_mov_b32 v{T+9}, {DBG_INIT}", f"s_mov_b64 s[{S_E0}:{S_E0+1}], exec", "s_mov_b64 exec, 1",
                                      ("vmu", "initld", f"global_load_dword v{T+10}, v{T+9}, {dbg} sc1"), f"s_mov_b64 exec, s[{S_E0}:{S_E0+1}]"]))
        it = [[f"v_accvgpr_read_b32 v{T+blk}, a{CS_TMP+16*blk}"] for blk in range(5)]
        at_ = [f"s_mov_b64 s[{S_E0}:{S_E0+1}], exec", "s_mov_b32 exec_hi, 0"]
        for blk in range(5):
            va, off = self.csa[blk]
            at_.append(("vm", f"csat{blk}", f"global_atomic_add_f32 v{va}, v{T+blk}, {wsp} offset:{off}"))
        at_.append(f"s_mov_b64 exec, s[{S_E0}:{S_E0+1}]")
        add(at(K_CSAT), it + [at_])
        self.fixed.setdefault(K_CNTLD, []).append(self.w0("cntld", [f"s_lshl_b32 s{S_T4}, s{S_T}, 7", f"s_add_u32 s{S_T4}, s{S_T4}, {WS_STCNT}", f"v_mov_b32 v{T+7}, s{S_T4}",
                          f"s_lshl_b32 s{S_T4}, s{S_CG}, 7", f"s_add_u32 s{S_T4}, s{S_T4}, {WS_CSCNT}", f"v_mov_b32 v{T+8}, s{S_T4}",
                          f"s_mov_b64 s[{S_E0}:{S_E0+1}], exec", "s_mov_b64 exec, 1",
                          f"!global_load_dword v{T+5}, v{T+7}, {wsp} sc1", ("vmu", "cntld", f"global_load_dword v{T+6}, v{T+8}, {wsp} sc1"),
                          f"s_mov_b64 exec, s[{S_E0}:{S_E0+1}]"]))
        VM = T; VCS = T + 2; VRB = T + 7
        lds = [[f"v_and_b32 v{T+8}, 31, v{VLANE}", f"s_lshl_b32 s{S_T4}, s{S_T}, 7", f"s_lshl_b32 s{S_T3}, s{S_WM}, 6", f"s_add_u32 s{S_T4}, s{S_T4}, s{S_T3}"],
               [f"v_add_u32 v{T+8}, s{S_T4}, v{T+8}", f"v_lshlrev_b32 v{T+8}, 2, v{T+8}", f"v_add_u32 v{T+9}, {WS_R}, v{T+8}"],
               [("vm", None, f"global_load_dword v{VM}, v{T+8}, {wsp} sc1")], [("vm", None, f"global_load_dword v{VM+1}, v{T+8}, {wsp} offset:128 sc1")],
               [("vm", None, f"global_load_dword v{VR}, v{T+9}, {wsp} sc1")], [("vm", None, f"global_load_dword v{VR+1}, v{T+9}, {wsp} offset:128 sc1")]]
        for blk in range(5):
            va, off = self.csa[blk]
            lds.append([("vm", "csld" if blk == 4 and typ == "A" else None, f"global_load_dword v{VCS+blk}, v{va}, {wsp} offset:{off} sc1")])
        if typ == "B":
            lds.append([f"s_lshl_b32 s{S_T4}, s{S_T}, 7", f"v_add_u32 v{T+8}, s{S_T4}, v{VTID}", f"v_lshlrev_b32 v{T+8}, 2, v{T+8}", f"v_add_u32 v{T+8}, {WS_R}, v{T+8}"])
            lds.append([("vm", "csld", f"global_load_dword v{VRB}, v{T+8}, {wsp} sc1")])
        add(at(2*H_CNT-1, 1), lds)
        if K_PT:
            add(at(K_PT), [[f"s_lshl_b32 s{S_T4}, s{S_TAU}, 16", f"s_lshl_b32 s{S_T3}, s{S_J}, 7", f"s_add_u32 s{S_T4}, s{S_T4}, s{S_T3}", f"v_mov_b32 v{T+9}, s{S_T4}"],
                           [f"s_mov_b64 s[{S_E0}:{S_E0+1}], exec", "s_mov_b64 exec, 1", ("vm", None, f"global_load_dword a224, v{T+9}, s[{P_O}:{P_O+1}]"), f"s_mov_b64 exec, s[{S_E0}:{S_E0+1}]"],
                           [f"v_mov_b32 v{T+9}, 0"],
                           [f"s_mov_b64 s[{S_E0}:{S_E0+1}], exec", "s_mov_b64 exec, 1", ("vm", None, f"global_load_dword a227, v{T+9}, s[{P_WO}:{P_WO+1}]"), f"s_mov_b64 exec, s[{S_E0}:{S_E0+1}]"]])
        if K_WOPF:
            it = [[f"s_lshl_b32 s{S_T4}, s{S_WV}, 17", f"s_and_b32 s{S_T3}, s{S_TAU}, 3", f"s_lshl_b32 s{S_T3}, s{S_T3}, 15", f"s_add_u32 s{S_T4}, s{S_T4}, s{S_T3}"],
                  [f"s_lshl_b32 s{S_T3}, s{S_J}, 7", f"s_add_u32 s{S_T4}, s{S_T4}, s{S_T3}", f"v_add_u32 v{T+9}, s{S_T4}, v{VDM}"]]
            for k in range(4):
                it.append([("vm", None, f"global_load_dwordx4 a[224:227], v{T+9}, s[{P_WO}:{P_WO+1}]")] + ([f"v_add_u32 v{T+9}, 8192, v{T+9}"] if k < 3 else []))
            add(at(K_WOPF), it)
        if CODE_PF2:
            add(at(CODE_PF2), [[f"s_getpc_b64 s[{S_E2}:{S_E2+1}]", f"K12{typ}_pc2:", f"s_lshr_b32 s{S_T4}, s2, 3", f"s_lshl_b32 s{S_T4}, s{S_T4}, 2", f"s_add_u32 s{S_T4}, s{S_T4}, s{S_WV}"],
                               [f"s_min_u32 s{S_T4}, s{S_T4}, ((K12_end-K12{typ}_pc2)>>10)-1", f"s_lshl_b32 s{S_T4}, s{S_T4}, 10", f"v_add_u32 v{T+9}, s{S_T4}, v{VL16}"],
                               [("vm", None, f"global_load_dwordx4 a[224:227], v{T+9}, s[{S_E2}:{S_E2+1}]")]])
        tt = T + 8; b = T + 10
        items = [[("wait", ["csld"])], [f"v_cmp_gt_u32 vcc, 32, v{VLANE}", "s_nop 1"]]
        for tb in range(2):
            items += [[f"v_cndmask_b32 v{tt}, 0, v{VM+tb}, vcc"], [f"v_cvt_pk_bf16_f32 v{b}, v{tt}, v{tt}"],
                      [f"v_and_b32 v{tt+1}, 0xffff0000, v{b}"], [f"v_sub_f32 v{tt+1}, v{tt}, v{tt+1}"],
                      [f"v_cvt_pk_bf16_f32 v{b+1}, v{tt+1}, 0"],
                      [f"v_accvgpr_write_b32 a{AMF+4*tb}, v{b}"], [f"v_accvgpr_write_b32 a{AMF+4*tb+1}, v{b+1}"],
                      [f"v_accvgpr_write_b32 a{AMF+4*tb+2}, 0"], [f"v_accvgpr_write_b32 a{AMF+4*tb+3}, 0"]]
        for blk in range(5):
            items += [[f"v_cndmask_b32 v{tt}, 0, v{VCS+blk}, vcc"], [f"v_sub_f32 v{tt}, 0, v{tt}"],
                      [f"v_cvt_pk_bf16_f32 v{b+1}, v{tt}, 0"], [f"v_lshlrev_b32 v{tt+1}, 16, v{b+1}"], [f"v_sub_f32 v{tt+1}, v{tt}, v{tt+1}"],
                      [f"v_cvt_pk_bf16_f32 v{b}, v{tt}, v{tt+1}"],
                      [f"v_accvgpr_write_b32 a{ACF+4*blk}, v{b}"], [f"v_accvgpr_write_b32 a{ACF+4*blk+1}, v{b+1}"],
                      [f"v_accvgpr_write_b32 a{ACF+4*blk+2}, 0"], [f"v_accvgpr_write_b32 a{ACF+4*blk+3}, 0"]]
        if typ == "B":
            items += [[f"v_lshlrev_b32 v{tt}, 2, v{VTID}"], [f"v_add_u32 v{tt}, {LDS_R}, v{tt}"],
                      [f"v_cmp_gt_u32 vcc, 128, v{VTID}", f"s_and_saveexec_b64 s[{S_E0}:{S_E0+1}], vcc", f"ds_write_b32 v{tt}, v{VRB}", f"s_mov_b64 exec, s[{S_E0}:{S_E0+1}]"]]
        add(at(K_RANK), items)

    def loop(self):
        A = self.A
        self.loop_start = len(A.l)
        steps = []
        for s in range(32):
            if s == CORR_AT: steps.append(("c", None))
            steps.append(("k", s))
        order_last = [b for b, kd in enumerate(self.kinds) if kd in ("gu","guh")] + [b for b, kd in enumerate(self.kinds) if kd not in ("gu","guh")]
        idx_of = {st: i for i, st in enumerate(steps)}
        def at(s, g=0): return (idx_of[("k", s)], g)
        flex = []; flex2 = []
        def add(pos, items):
            for it in items: flex.append((pos, it))
        def add2(pos, items):
            for it in items: flex2.append((pos, it))
        add(at(0), self.Wg(2))
        if not X1_EARLY: add(at(0), self.Xg(1))
        add(at(1, 1), self.Xg(2))
        for h in range(1, 14): add(at(2*h-1, 1), self.Wg(h+2))
        for sg in range(1, 6): add(at(4*sg-1, 1), self.Xg(sg+2))
        self.fixed = {}
        tagD = {}; tagR = {}; keep = []; placedR = {}
        self.oneshot_items(add, at)
        self.w2_done_R = []
        for i in range(N_IN):
            dd = self.w2.D(i); tagD[id(dd[0])] = i; keep.append(dd)
            add2(at(min(i+W2_START, 31)), dd)
            rr = self.w2.R(i); tagR[id(rr[-1])] = i; keep.append(rr)
            add2(at(min(i+W2_START+DLAG, 31)), rr); self.w2_done_R.append(i)
        flex.sort(key=lambda x: x[0])
        gaps_all = []
        flex2.sort(key=lambda x: x[0])
        queues = [list(flex), list(flex2)]
        for si, st in enumerate(steps):
            gaps = [[] for _ in range(10)]
            head = []
            if st[0] == "k":
                s = st[1]
                M = self.mfmas(s, order_last if s == 31 else None)
                head = ["s_waitcnt lgkmcnt(0)"]
                odd = s & 1
                if odd:
                    h = (s + 1)//2
                    if h <= 15:
                        ids = [f"W{h}_4"] + ([f"X{h//2}_3"] if h % 2 == 0 else [])
                        if h == H_INIT: ids.append("stst")
                        if ZLATE and h == H_Z: ids.append("zst")
                        if h == H_CS: ids.append("csat4")
                        if STAMP and SMODE == "wait":
                            gaps[0] += self.pre_barrier(h) + [("wait", ids), "s_memtime s[98:99]", "s_waitcnt lgkmcnt(0)", "s_barrier", "s_memtime s[100:101]", "s_waitcnt lgkmcnt(0)", "s_sub_u32 s100, s100, s98", f"s_add_u32 s{SB+12}, s{SB+12}, s100"]
                        else:
                            gaps[0] += self.pre_barrier(h) + [("wait", ids), "s_barrier"]
                        if ZLATE and h == H_Z: gaps[0] += self.sig(f"s_cmp_lt_u32 s2, {NZERO}", S_DBG, DBG_INIT, None, "init")
                        if h == H_INIT: gaps[0] += self.sig(None, S_WSP, WS_STCNT, S_T, "st")
                        if h == H_CS: gaps[0] += self.sig(None, S_WSP, WS_CSCNT, S_CG, "cs")
                    else:
                        gaps[0] += ["s_barrier"]
                nxt = s + 1
                if nxt < 32:
                    rd = self.reads(nxt)
                    g0 = 1 if odd else 0
                    for i, x in enumerate(rd): gaps[g0 + i//2].append(x)
            else:
                M = self.corr(); head = ["s_waitcnt lgkmcnt(0)"]
            if st[0] == "k" and st[1] in self.fixed:
                for it in self.fixed[st[1]]: gaps[9] += it
            for qi in range(2):
                pending = queues[qi]
                gi = 0
                rest = []
                blocked = False
                for (pos, it) in pending:
                    if blocked or pos[0] > si:
                        rest.append((pos, it)); continue
                    if id(it) in tagD and placedR.get(tagD[id(it)] - NSL, -1) == si:
                        rest.append((pos, it)); blocked = True; continue
                    if id(it) in tagD and tagD[id(it)] >= NSL and (tagD[id(it)] - NSL) not in placedR:
                        rest.append((pos, it)); blocked = True; continue
                    g = max(gi, pos[1] if pos[0] == si else 0)
                    need = 2 if (isinstance(it, tuple) and it[0] == "dma") else len(it)
                    while g < 10 and len(gaps[g]) + min(need, CAP) > CAP: g += 1
                    if g >= 10:
                        rest.append((pos, it)); blocked = True; continue
                    if id(it) in tagR: placedR[tagR[id(it)]] = si
                    if isinstance(it, tuple) and it[0] == "dma":
                        gaps[g].append(it[1]); gaps[g].append("__NOP__"); gaps[g].append(it[2]); gi = g + 1
                    else:
                        gaps[g] += it; gi = g
                queues[qi] = rest
            for g in gaps:
                while "__NOP__" in g:
                    i = g.index("__NOP__")
                    cand = [j for j in range(i-1) if isinstance(g[j], str) and g[j].startswith("ds_read")]
                    if cand:
                        x = g.pop(cand[-1]); i -= 1; g[i] = x
                    else: g[i] = "s_nop 0"
            if st[0] == "k" and st[1] % 4 == 0 and st[1] > 0: A.stamp(st[1]//4, "loop")
            for x in head: A(x)
            for i in range(10):
                A(M[i])
                for x in gaps[i]:
                    if x == "__WOSRD__":
                        assert "W15_4" in A.ids
                        A(f"s_lshl_b32 s{S_T0}, s{S_J}, 7"); A(f"s_lshl_b32 s{S_T1}, s{S_WV}, 17"); A(f"s_add_u32 s{S_T0}, s{S_T0}, s{S_T1}")
                        srd_off(A, S_WO, P_WO, P_WO+1, f"s{S_T0}", 512*1024)
                    else: A(x)
        assert not queues[0], queues[0][:3]
        self.leftover = queues[1]
        for (pos, it) in self.leftover:
            if id(it) in tagD: A("s_waitcnt lgkmcnt(0)")
            if it == ["__WOSRD__"]:
                A(f"s_lshl_b32 s{S_T0}, s{S_J}, 7"); A(f"s_lshl_b32 s{S_T1}, s{S_WV}, 17"); A(f"s_add_u32 s{S_T0}, s{S_T0}, s{S_T1}")
                srd_off(A, S_WO, P_WO, P_WO+1, f"s{S_T0}", 512*1024)
            else: emit_items(A, [it])
        self.nleft = len(self.leftover)
        txt = A.l
        for i in range(N_IN - NSL):
            rd = [n for n, x in enumerate(txt) if n > self.loop_start and "ds_read_b64_tr_b16 a[%d:" % (8*i+6) in x]
            if not rd: continue
            pos_r = rd[-1]; pos_d = A.pos[f"w2_{i+NSL}_0"]
            assert pos_d > pos_r and any("lgkmcnt(0)" in x for x in txt[pos_r:pos_d]), ("no lgkm wait", i)

    def flag_addr(self, slot_imm):
        A = self.A
        FA, ONE = VT+4, VT+5
        A(f"v_mov_b32 v{ONE}, 1")
        A(f"s_lshl_b32 s{S_T0}, s{S_T}, 1"); A(f"s_add_u32 s{S_T0}, s{S_T0}, s{S_WM}"); A(f"s_lshl_b32 s{S_T0}, s{S_T0}, 2")
        A(f"s_lshr_b32 s{S_T1}, s{S_IDX}, 1"); A(f"s_add_u32 s{S_T0}, s{S_T0}, s{S_T1}"); A(f"s_lshl_b32 s{S_T0}, s{S_T0}, 4")
        A(f"s_lshl_b32 s{S_T1}, s{S_I1}, 1"); A(f"s_add_u32 s{S_T0}, s{S_T0}, s{S_T1}"); A(f"s_add_u32 s{S_T0}, s{S_T0}, s{S_WN}")
        A(f"s_add_u32 s{S_T0}, s{S_T0}, {slot_imm}"); A(f"s_lshl_b32 s{S_T0}, s{S_T0}, 2"); A(f"s_add_u32 s{S_T0}, s{S_T0}, {WS_FLAG}")
        A(f"v_mov_b32 v{FA}, s{S_T0}")
        A(f"s_mov_b64 s[{S_E0}:{S_E0+1}], exec"); A("s_mov_b64 exec, 1")
    def flag_fire(self):
        A = self.A
        A.vm(f"global_store_dword v{VT+4}, v{VT+5}, s[{S_WSP}:{S_WSP+1}] sc1")
        A(f"s_mov_b64 exec, s[{S_E0}:{S_E0+1}]")
    def flag_store(self, slot_imm, FA, ONE):
        self.flag_addr(slot_imm); self.flag_fire()
    def early_flag_load(self):
        A = self.A
        A(f"s_lshl_b32 s{S_T0}, s{S_TAU}, 2"); A(f"s_add_u32 s{S_T0}, s{S_T0}, s{S_WV}"); A(f"s_lshl_b32 s{S_T0}, s{S_T0}, 6"); A(f"s_add_u32 s{S_T0}, s{S_T0}, {WS_FLAG}")
        A(f"v_lshlrev_b32 v32, 2, v{VLANE}"); A(f"v_add_u32 v32, s{S_T0}, v32")
        A("s_mov_b64 exec, 255"); A.vm(f"global_load_dword v33, v32, s[{S_WSP}:{S_WSP+1}] sc1", id="eflag"); A("s_mov_b64 exec, -1")

    def transition(self):
        A, typ, kinds = self.A, self.typ, self.kinds
        w2 = self.w2
        tt = VT
        state = {"D": N_IN, "R": N_IN}
        A.stamp(1, "tr")
        A("s_waitcnt lgkmcnt(0)")
        A("s_barrier")
        A(f"s_mul_i32 s{S_T0}, s{S_WV}, {NPOST*2048}"); A(f"s_add_u32 s{S_T0}, s{S_T0}, {W2POST}")
        A(f"s_sub_u32 s{S_T1}, s{S_T0}, s{S_LB}"); A(f"s_mov_b32 s{S_LB}, s{S_T0}")
        A(f"v_add_u32 v{VTR}, s{S_T1}, v{VTR}"); A(f"v_xor_b32 v{VTR1}, 64, v{VTR}")
        A(f"s_lshl_b32 s{S_T0}, s{S_J}, 7"); A(f"s_lshl_b32 s{S_T1}, s{S_WV}, 17"); A(f"s_add_u32 s{S_T0}, s{S_T0}, s{S_T1}")
        srd_off(A, S_WO, P_WO, P_WO+1, f"s{S_T0}", 512*1024)
        def bgD(n=1):
            for _ in range(n):
                i = state["D"]
                if i >= 36 or i - state["R"] >= NPOST: return
                emit_items(A, w2.D(i)); state["D"] += 1
        def bgR(n=1):
            for _ in range(n):
                i = state["R"]
                if i >= state["D"]: return
                if i >= 32 and not state.get("vfree"): return
                emit_items(A, w2.R(i)); state["R"] += 1
        def bgD_safe(n=1):
            A("s_waitcnt lgkmcnt(0)"); bgD(n)
        A(f"s_lshl_b32 s{S_T0}, s{S_T}, 1"); A(f"s_add_u32 s{S_T0}, s{S_T0}, s{S_WM}"); A(f"s_lshl_b32 s{S_T0}, s{S_T0}, 2")
        A(f"s_lshr_b32 s{S_T1}, s{S_IDX}, 1"); A(f"s_add_u32 s{S_T0}, s{S_T0}, s{S_T1}"); A(f"s_mul_i32 s{S_HB}, s{S_T0}, {36*2048}")
        A(f"s_and_b32 s{S_I1}, s{S_IDX}, 1")
        I1 = S_I1
        R2 = XF
        for tb in range(2):
            A(f"v_mul_f32 v{R2+2*tb}, v{VR+tb}, v{VR+tb}"); A(f"v_mul_f32 v{R2+2*tb+1}, v{VR+tb}, v{VR+tb}")
        PK = WF
        nst = 0
        gublks = [b for b, kd in enumerate(kinds) if kd in ("gu", "guh")]
        lasth = None
        for blk in gublks:
            kd = kinds[blk]
            if typ == "A":
                if blk == 0:
                    A(f"s_lshl_b32 s{S_T2}, s{I1}, 1"); A(f"s_add_u32 s{S_T2}, s{S_T2}, s{S_WN}"); A(f"s_lshl_b32 s{S_T2}, s{S_T2}, 13"); A(f"s_add_u32 s{S_T2}, s{S_T2}, s{S_HB}")
                else: A(f"s_add_u32 s{S_T2}, s{S_T2}, 2048")
            elif kd == "gu":
                if blk == 2:
                    A(f"s_lshl_b32 s{S_T2}, s{I1}, 2"); A(f"s_lshl_b32 s{S_T3}, s{S_WN}, 1"); A(f"s_add_u32 s{S_T2}, s{S_T2}, s{S_T3}"); A(f"s_add_u32 s{S_T2}, s{S_T2}, 16")
                    A(f"s_lshl_b32 s{S_T2}, s{S_T2}, 11"); A(f"s_add_u32 s{S_T2}, s{S_T2}, s{S_HB}")
                else: A(f"s_add_u32 s{S_T2}, s{S_T2}, 2048")
            else:
                A(f"s_lshl_b32 s{S_T2}, s{I1}, 1"); A(f"s_add_u32 s{S_T2}, s{S_T2}, s{S_WN}"); A(f"s_add_u32 s{S_T2}, s{S_T2}, 24")
                A(f"s_lshl_b32 s{S_T2}, s{S_T2}, 11"); A(f"s_add_u32 s{S_T2}, s{S_T2}, s{S_HB}")
            for tb in range(2):
                a = acc(blk, tb); pk = PK + 4*(nst % 4); nst += 1
                for i in range(4): A(f"v_pk_mul_f32 v[{a+2*i}:{a+2*i+1}], v[{a+2*i}:{a+2*i+1}], v[{a+8+2*i}:{a+8+2*i+1}]")
                for i in range(4): A(f"v_pk_mul_f32 v[{a+2*i}:{a+2*i+1}], v[{a+2*i}:{a+2*i+1}], v[{R2+2*tb}:{R2+2*tb+1}]")
                for i in range(4): A(f"v_cvt_pk_bf16_f32 v{pk+i}, v{a+2*i}, v{a+2*i+1}")
                lasth = f"hs_{blk}_{tb}"
                A.vm(f"buffer_store_dwordx4 v[{pk}:{pk+3}], v{VL16}, s[{S_H}:{S_H+3}], s{S_T2} offen offset:{tb*1024} sc1", id=lasth)
        assert (not LATE_R) or 36 - N_IN <= NPOST
        A.stamp(5); A.stamp(2, "tr")
        FA, ONE = VT+4, VT+5
        A(f"s_mov_b32 s{S_C6}, 0x358637bd"); A(f"s_mov_b32 s{S_C6+1}, 0x358637bd")
        C6 = f"s[{S_C6}:{S_C6+1}]"
        if typ == "A":
            A(f"s_lshl_b32 s{S_T2}, s{I1}, 2"); A(f"s_lshl_b32 s{S_T3}, s{S_WN}, 1"); A(f"s_add_u32 s{S_T2}, s{S_T2}, s{S_T3}"); A(f"s_add_u32 s{S_T2}, s{S_T2}, 28")
            A(f"s_lshl_b32 s{S_T2}, s{S_T2}, 11"); A(f"s_add_u32 s{S_T4}, s{S_T2}, s{S_HB}"); A(f"s_add_u32 s{S_XO}, s{S_T4}, 2048")
            A(f"s_mov_b32 s22, s{S_T4}"); A(f"s_mov_b32 s23, s{S_XO}")
            RP = XF + 4; RLP = XF + 6
            for tb in range(2):
                a = acc(4, tb)
                A(f"v_mov_b32 v{RP}, v{VR+tb}"); A(f"v_mov_b32 v{RP+1}, v{VR+tb}")
                A(f"v_mul_f32 v{RLP}, 0x3fb8aa3b, v{VR+tb}"); A(f"v_mul_f32 v{RLP+1}, 0x3fb8aa3b, v{VR+tb}")
                for i in range(0, 16, 4):
                    for j in (0, 2): A(f"v_pk_mul_f32 v[{tt+j}:{tt+j+1}], v[{a+i+j}:{a+i+j+1}], v[{RLP}:{RLP+1}]")
                    for j in (0, 2): A(f"v_pk_fma_f32 v[{a+i+j}:{a+i+j+1}], v[{a+i+j}:{a+i+j+1}], v[{RP}:{RP+1}], {C6}")
                    for j in range(4): A(f"v_exp_f32_e64 v{tt+j}, v{tt+j} clamp")
                    for j in range(4): A(f"v_max_f32 v{a+i+j}, s{S_C6}, v{a+i+j}")
                    for j in (0, 2): A(f"v_pk_add_f32 v[{a+i+j}:{a+i+j+1}], v[{a+i+j}:{a+i+j+1}], v[{tt+j}:{tt+j+1}]")
                    if PHI_D: bgD(1)
                if tb == 0 and FLAG_TB_A == 0:
                    A.stamp(3, "tr"); self.flag_addr(0); A.wait(lasth); self.flag_fire(); A.stamp(4, "tr")
                    if LATE_R == 1: bgD(36 - N_IN)
                if FASTG2 and tb == 1: self.early_flag_load()
                for hs in range(2):
                    pk = (128 + 4*(2*tb + hs)) if (DEFER or PQ_LATE) else PK + 4*(nst % 4); nst += 1
                    for i in range(4): A(f"v_cvt_pk_bf16_f32 v{pk+i}, v{a+8*hs+2*i}, v{a+8*hs+2*i+1}")
                    if not (DEFER or PQ_LATE): A.vm(f"buffer_store_dwordx4 v[{pk}:{pk+3}], v{VL16}, s[{S_H}:{S_H+3}], s{S_XO if hs else S_T4} offen offset:{tb*1024} sc1", id=f"pq_{tb}_{hs}")
            if FLAG_TB_A == 1:
                A.stamp(3, "tr"); self.flag_addr(0); A.wait(lasth); self.flag_fire(); A.stamp(4, "tr")
            if PQ_LATE and not DEFER:
                for tb in range(2):
                    for hs in range(2):
                        pk = 128 + 4*(2*tb + hs)
                        A.vm(f"buffer_store_dwordx4 v[{pk}:{pk+3}], v{VL16}, s[{S_H}:{S_H+3}], s{23 if hs else 22} offen offset:{tb*1024} sc1")
            bgD(11)
            state["vfree"] = True
            A.stamp(5, "tr")
        else:
            RR = WF; RL = WF + 16; TK = WF + 32; TV = VT + 6
            ONES = XF + 4
            for i in range(4): A(f"v_mov_b32 v{ONES+i}, 0x3f803f80")
            A(f"v_lshrrev_b32 v{tt}, 5, v{VLANE}"); A(f"v_lshlrev_b32 v{tt}, 4, v{tt}")
            A(f"s_lshl_b32 s{S_T0}, s{S_WM}, 8"); A(f"s_add_u32 s{S_T0}, s{S_T0}, {LDS_R}"); A(f"v_add_u32 v{XF+9}, s{S_T0}, v{tt}")
            D2, DZ = acc(2,0), acc(2,1)
            for tb in range(2):
                for q4 in range(4): A(f"ds_read_b128 v[{RR+4*q4}:{RR+4*q4+3}], v{XF+9} offset:{tb*128 + q4*32}")
                A("s_waitcnt lgkmcnt(0)")
                A(f"s_mov_b32 s{S_T0}, 0x3fb8aa3b"); A(f"s_mov_b32 s{S_T1}, 0x3fb8aa3b")
                for i in range(8): A(f"v_pk_mul_f32 v[{RL+2*i}:{RL+2*i+1}], v[{RR+2*i}:{RR+2*i+1}], s[{S_T0}:{S_T1}]")
                a = acc(0, tb); av = acc(1, tb)
                for i in range(0, 16, 4):
                    for j in (0, 2): A(f"v_pk_mul_f32 v[{tt+j}:{tt+j+1}], v[{a+i+j}:{a+i+j+1}], v[{RL+i+j}:{RL+i+j+1}]")
                    for j in (0, 2): A(f"v_pk_fma_f32 v[{a+i+j}:{a+i+j+1}], v[{a+i+j}:{a+i+j+1}], v[{RR+i+j}:{RR+i+j+1}], {C6}")
                    for j in range(4): A(f"v_exp_f32_e64 v{tt+j}, v{tt+j} clamp")
                    for j in range(4): A(f"v_max_f32 v{a+i+j}, s{S_C6}, v{a+i+j}")
                    for j in (0, 2): A(f"v_pk_add_f32 v[{a+i+j}:{a+i+j+1}], v[{a+i+j}:{a+i+j+1}], v[{tt+j}:{tt+j+1}]")
                    if PHI_D: bgD(1)
                for i in range(8): A(f"v_pk_mul_f32 v[{av+2*i}:{av+2*i+1}], v[{av+2*i}:{av+2*i+1}], v[{RR+2*i}:{RR+2*i+1}]")
                for i in range(8): A(f"v_cvt_pk_bf16_f32 v{TK+i}, v{a+2*i}, v{a+2*i+1}")
                for i in range(8): A(f"v_cvt_pk_bf16_f32 v{TV+i}, v{av+2*i}, v{av+2*i+1}")
                A("s_nop 1")
                for f in range(2):
                    c = "0" if (tb == 0 and f == 0) else None
                    A(f"v_mfma_f32_32x32x16_bf16 v[{D2}:{D2+15}], v[{TK+4*f}:{TK+4*f+3}], v[{TV+4*f}:{TV+4*f+3}], {c or f'v[{D2}:{D2+15}]'}")
                    A(f"v_mfma_f32_32x32x16_bf16 v[{DZ}:{DZ+15}], v[{TK+4*f}:{TK+4*f+3}], v[{ONES}:{ONES+3}], {c or f'v[{DZ}:{DZ+15}]'}")
                if tb == FLAG_TB:
                    A.stamp(3, "tr"); self.flag_addr(4); A.wait(lasth); self.flag_fire(); A.stamp(4, "tr")
                    if LATE_R == 1 and B_EARLY_D: bgD(36 - N_IN)
            if PHI_D: bgD(3)
            A(f"v_and_b32 v{tt}, 31, v{VLANE}"); A(f"v_cmp_gt_u32 vcc, 16, v{tt}")
            A(f"s_lshl_b32 s{S_T0}, s{S_WM}, 13"); A(f"s_lshl_b32 s{S_T1}, s{S_WN}, 12"); A(f"s_add_u32 s{S_T0}, s{S_T0}, s{S_T1}"); A(f"s_add_u32 s{S_T0}, s{S_T0}, {LDS_KV}")
            A(f"v_lshlrev_b32 v{tt}, 2, v{VLANE}"); A(f"v_add_u32 v{tt}, s{S_T0}, v{tt}")
            A("s_nop 7"); A("s_nop 3")
            for r_ in range(16):
                if r_ < 8: A(f"v_cndmask_b32 v{D2+r_}, v{DZ+r_}, v{D2+r_}, vcc")
                else: A(f"v_cndmask_b32 v{D2+r_}, v{D2+r_}, v{DZ+r_}, vcc")
            for r_ in range(16): A(f"ds_write_b32 v{tt}, v{D2+r_} offset:{r_*256}")
            A("s_waitcnt lgkmcnt(0)"); A("s_barrier")
            A(f"s_lshr_b32 s{S_T0}, s{S_WV}, 1"); A(f"s_lshl_b32 s{S_T0}, s{S_T0}, 12"); A(f"s_add_u32 s{S_T0}, s{S_T0}, {LDS_KV}")
            A(f"s_and_b32 s{S_T2}, s{S_WV}, 1")
            A(f"s_mul_i32 s{S_T3}, s{S_T2}, {8*256}"); A(f"s_add_u32 s{S_T0}, s{S_T0}, s{S_T3}")
            A(f"s_lshl_b32 s{S_T3}, s{S_T2}, 6")
            A(f"s_lshl_b32 s{S_T1}, s{S_IDX}, 2"); A(f"s_add_u32 s{S_T1}, s{S_T1}, s{S_WV}")
            A(f"s_mul_i32 s{S_T1}, s{S_T1}, {KV_HEAD}"); A(f"s_add_u32 s{S_T1}, s{S_T1}, {WS_KV}")
            A(f"v_and_b32 v{tt}, 7, v{VLANE}"); A(f"v_lshlrev_b32 v{tt}, 8, v{tt}"); A(f"v_add_u32 v{tt}, s{S_T0}, v{tt}")
            A(f"v_lshrrev_b32 v{tt+1}, 3, v{VLANE}"); A(f"v_lshlrev_b32 v{tt+1}, 2, v{tt+1}")
            A(f"v_add_u32 v{tt+2}, v{tt}, v{tt+1}"); A(f"v_add_u32 v{tt+2}, s{S_T3}, v{tt+2}")
            B0 = ACC
            for n in range(4):
                off = (32*(n>>1) + 8*(n&1))*4
                A(f"ds_read_b32 v{B0+2*n}, v{tt+2} offset:{off}"); A(f"ds_read_b32 v{B0+2*n+1}, v{tt+2} offset:{off+8192}")
            A(f"s_sub_u32 s{S_T3}, 64, s{S_T3}")
            A(f"v_lshlrev_b32 v{tt+3}, 5, v{tt+1}"); A(f"v_add_u32 v{tt+3}, v{tt+3}, v{tt}"); A(f"v_add_u32 v{tt+3}, s{S_T3}, v{tt+3}")
            A(f"v_cmp_gt_u32 vcc, 16, v{VLANE}"); A(f"s_and_saveexec_b64 s[{S_E0}:{S_E0+1}], vcc")
            A(f"ds_read_b32 v{B0+8}, v{tt+3}"); A(f"ds_read_b32 v{B0+9}, v{tt+3} offset:8192")
            A(f"s_mov_b64 exec, s[{S_E0}:{S_E0+1}]")
            A(f"v_lshlrev_b32 v{tt+2}, 2, v{VLANE}"); A(f"v_add_u32 v{tt+2}, s{S_T1}, v{tt+2}")
            A("s_waitcnt lgkmcnt(0)")
            if DEFER:
                for n in range(5): A(f"v_add_f32 v{128+n}, v{B0+2*n}, v{B0+2*n+1}")
                A(f"v_mov_b32 v133, v{tt+2}")
            else:
                if FASTG2:
                    A(f"s_mov_b32 s{S_XO}, s{S_T1}")
                    self.early_flag_load()
                for n in range(4):
                    A(f"v_add_f32 v{B0+2*n}, v{B0+2*n}, v{B0+2*n+1}")
                    A.vm(f"global_atomic_add_f32 v{tt+2}, v{B0+2*n}, s[{S_WSP}:{S_WSP+1}] offset:{n*256}")
                A(f"v_add_f32 v{B0+8}, v{B0+8}, v{B0+9}")
                A(f"s_and_saveexec_b64 s[{S_E0}:{S_E0+1}], vcc")
                A.vm(f"global_atomic_add_f32 v{tt+2}, v{B0+8}, s[{S_WSP}:{S_WSP+1}] offset:1024", id="kvat")
                A(f"s_mov_b64 exec, s[{S_E0}:{S_E0+1}]")
            bgD(11)
            state["vfree"] = True
            A.stamp(5, "tr")
        if FASTG2: A.wait("eflag")
        A.stamp(6); A.stamp(6, "tr")
        if not LATE_R:
            while state["R"] < 36:
                bgR(3); bgD_safe(3)
            A("s_waitcnt lgkmcnt(0)")

class G2:
    ACC2 = 0; HB = 64; NH = 32; W2V = 192
    def __init__(self, A): self.A = A; self.w2 = W2(A)
    def poll(self, label, vaddr, nl, expect=None, novm=False):
        A = self.A; T = VT
        A(f"s_mov_b32 s{S_T3}, 0")
        A(f"s_mov_b64 s[{S_E0}:{S_E0+1}], exec"); A(f"s_mov_b64 exec, {(1<<nl)-1}")
        A.label(label)
        if novm: A.l.append(f"  global_load_dword v{T+9}, v{vaddr}, s[{S_WSP}:{S_WSP+1}] sc1")
        else: A.vm(f"global_load_dword v{T+9}, v{vaddr}, s[{S_WSP}:{S_WSP+1}] sc1")
        A("s_waitcnt vmcnt(0)")
        if expect is None: A(f"v_cmp_ne_u32 vcc, 0, v{T+9}")
        else: A(f"v_cmp_le_u32 vcc, {expect}, v{T+9}")
        A(f"s_add_u32 s{S_T3}, s{S_T3}, 1")
        A(f"s_cmp_ge_u32 s{S_T3}, {POLL_MAX}"); A(f"s_cbranch_scc1 {label}_x")
        A(f"s_cmp_eq_u64 vcc, exec"); A(f"s_cbranch_scc1 {label}_x")
        A("s_sleep 1"); A(f"s_branch {label}")
        A.label(label + "_x")
        A(f"s_mov_b64 exec, s[{S_E0}:{S_E0+1}]")
    def check(self, label, vreg, nl, expect=None):
        pass
    def body(self):
        A = self.A; T = VT; VL = VLANE
        ACC2 = 0; HB = 64; NH = 16; KVR0 = 128
        A.reset_vm()
        VFL, VKV, VCN = T+10, T+11, T+12
        VF1, VF2 = T+8, T+9
        srd(A, S_O, P_O, P_O+1, 2048*1024)
        srd(A, S_XX, P_X, P_X+1, 2048*1024)
        A(f"s_lshl_b32 s{S_HO}, s{S_TAU}, 2"); A(f"s_add_u32 s{S_HO}, s{S_HO}, s{S_WV}")
        A(f"s_lshl_b32 s{S_T0}, s{S_HO}, 6"); A(f"s_add_u32 s{S_T0}, s{S_T0}, {WS_FLAG}")
        A(f"v_lshlrev_b32 v{VFL}, 2, v{VL}"); A(f"v_add_u32 v{VFL}, s{S_T0}, v{VFL}")
        A(f"s_mul_i32 s{S_HO}, s{S_HO}, {36*2048}")
        A(f"s_add_u32 s{S_T4}, s{S_HO}, {56*1024}")
        A(f"s_mov_b32 s{S_HBASE}, s{S_HO}"); A(f"s_lshl_b32 s{S_HR}, s{S_RHO}, 11")
        A(f"v_and_b32 v{T}, 31, v{VL}"); A(f"v_lshrrev_b32 v{T+1}, 5, v{VL}")
        A(f"v_lshlrev_b32 v{T+2}, 4, v{T+1}"); A(f"v_add_u32 v{T+2}, v{T+2}, v{T}"); A(f"v_subrev_u32 v{T+2}, 16, v{T+2}"); A(f"v_lshlrev_b32 v{T+2}, 5, v{T+2}")
        A(f"v_lshlrev_b32 v{T+3}, 5, v{T+1}"); A(f"v_add_u32 v{T+3}, 1024, v{T+3}")
        A(f"v_cmp_gt_u32 vcc, 16, v{T}"); A("s_nop 1"); A(f"v_cndmask_b32 v{T+2}, v{T+2}, v{T+3}, vcc")
        A(f"s_lshl_b32 s{S_T0}, s{S_WV}, 3"); A(f"s_mul_i32 s{S_T0}, s{S_T0}, {KV_HEAD}"); A(f"s_add_u32 s{S_T0}, s{S_T0}, {WS_KV}")
        A(f"v_add_u32 v{VKV}, s{S_T0}, v{T+2}")
        A(f"s_lshl_b32 s{S_T0}, s{S_WV}, 9"); A(f"s_add_u32 s{S_T0}, s{S_T0}, {WS_KVCNT}")
        A(f"v_lshlrev_b32 v{VCN}, 6, v{VL}"); A(f"v_add_u32 v{VCN}, s{S_T0}, v{VCN}")
        A("s_barrier")
        def signal_block(sfx=''):
            A(f"s_cmp_ge_u32 s{S_CP}, 2"); A(f"s_cbranch_scc1 K12_sigB{sfx}")
            A(f"s_lshl_b32 s{S_T0}, s{S_T}, 1"); A(f"s_add_u32 s{S_T0}, s{S_T0}, s{S_WM}"); A(f"s_lshl_b32 s{S_T0}, s{S_T0}, 2")
            A(f"s_lshr_b32 s{S_T1}, s{S_IDX}, 1"); A(f"s_add_u32 s{S_T0}, s{S_T0}, s{S_T1}"); A(f"s_lshl_b32 s{S_T0}, s{S_T0}, 4")
            A(f"s_lshl_b32 s{S_T1}, s{S_I1}, 1"); A(f"s_add_u32 s{S_T0}, s{S_T0}, s{S_T1}"); A(f"s_add_u32 s{S_T0}, s{S_T0}, s{S_WN}")
            A(f"s_add_u32 s{S_T0}, s{S_T0}, 8"); A(f"s_lshl_b32 s{S_T0}, s{S_T0}, 2"); A(f"s_add_u32 s{S_T0}, s{S_T0}, {WS_FLAG}")
            A(f"v_mov_b32 v{T+4}, s{S_T0}"); A(f"v_mov_b32 v{T+5}, 1")
            A(f"s_mov_b64 s[{S_E0}:{S_E0+1}], exec"); A("s_mov_b64 exec, 1")
            A(f"!global_store_dword v{T+4}, v{T+5}, s[{S_WSP}:{S_WSP+1}] sc1")
            A(f"s_mov_b64 exec, s[{S_E0}:{S_E0+1}]"); A(f"s_branch K12_sigX{sfx}")
            A(f"K12_sigB{sfx}:")
            A(f"s_lshl_b32 s{S_T0}, s{S_IDX}, 2"); A(f"s_add_u32 s{S_T0}, s{S_T0}, s{S_WV}"); A(f"s_lshl_b32 s{S_T0}, s{S_T0}, 6"); A(f"s_add_u32 s{S_T0}, s{S_T0}, {WS_KVCNT}")
            A(f"v_mov_b32 v{T+4}, s{S_T0}"); A(f"v_mov_b32 v{T+5}, 1")
            A(f"s_mov_b64 s[{S_E0}:{S_E0+1}], exec"); A("s_mov_b64 exec, 1")
            A(f"!global_atomic_add v{T+4}, v{T+5}, s[{S_WSP}:{S_WSP+1}] sc1")
            A(f"s_mov_b64 exec, s[{S_E0}:{S_E0+1}]")
            A(f"K12_sigX{sfx}:")
        if FASTG2:
            A("s_mov_b64 exec, 255"); A(f"v_cmp_ne_u32 vcc, 0, v33"); A("s_nop 3"); A("s_cmp_eq_u64 vcc, exec"); A("s_mov_b64 exec, -1")
            A(f"s_cselect_b32 s{S_XO}, 1, 0")
            A("s_cbranch_scc1 K12_hok")
            A("s_waitcnt vmcnt(0)")
            signal_block()
        elif not DEFER:
            if EARLY_POLL:
                A("s_mov_b64 exec, 255"); A.vm(f"global_load_dword v{T+9}, v{VFL}, s[{S_WSP}:{S_WSP+1}] sc1"); A("s_mov_b64 exec, -1")
            A("s_waitcnt vmcnt(0)")
            signal_block()
        if OUT_TOUCH:
            A(f"s_lshl_b32 s{S_T0}, s{S_TAU}, 16"); A(f"s_lshl_b32 s{S_T1}, s{S_J}, 7"); A(f"s_add_u32 s{S_T0}, s{S_T0}, s{S_T1}"); A(f"v_mov_b32 v{T+6}, s{S_T0}")
            A("s_mov_b64 exec, 1"); A.vm(f"global_load_dword v{T+7}, v{T+6}, s[{P_O}:{P_O+1}]"); A("s_mov_b64 exec, -1")
        A.stamp(7); A.stamp(7, "tr")
        if EARLY_POLL and not DEFER and not FASTG2:
            A("s_mov_b64 exec, 255"); A(f"v_cmp_ne_u32 vcc, 0, v{T+9}"); A("s_nop 3"); A("s_cmp_eq_u64 vcc, exec"); A("s_mov_b64 exec, -1")
            A("s_cbranch_scc1 K12_hok")
        self.poll("K12_pollH", VFL, 8)
        A("K12_hok:")
        A.stamp(8, "tr")
        A.stamp(8); A.stamp(1, "g2")
        hstate = {"off": 0}
        def h_items(f):
            o = []
            hb = HB + 4*(f % NH)
            if f % 2 == 0: o.append(f"s_add_u32 s{S_HO}, s{S_HBASE}, s{S_HR}")
            o.append(("vm", f"h{f}", f"buffer_load_dwordx4 v[{hb}:{hb+3}], v{VL16}, s[{S_H}:{S_H+3}], s{S_HO} offen offset:{(f%2)*1024} sc1"))
            if f % 2 == 1 and f < 55:
                o += [f"s_add_u32 s{S_HR}, s{S_HR}, 2048", f"s_cmp_eq_u32 s{S_HR}, {28*2048}", f"s_cselect_b32 s{S_HR}, 0, s{S_HR}"]
            return o
        def pq_items(g):
            return [f"s_add_u32 s{S_HO}, s{S_T4}, {(g//4)*4096}",
                    ("vm", f"pq{g}", f"buffer_load_dwordx4 a[{4*g}:{4*g+3}], v{VL16}, s[{S_H}:{S_H+3}], s{S_HO} offen offset:{(g%4)*1024} sc1")]
        def kv_items(h):
            b = KVR0 + 8*h
            pre = [f"s_mov_b64 exec, s[{S_C6}:{S_C6+1}]"] if KVMASK else []
            post = ["s_mov_b64 exec, -1"] if KVMASK else []
            return pre + [("vm", None, f"global_load_dwordx4 v[{b}:{b+3}], v{VKV}, s[{S_WSP}:{S_WSP+1}] sc1"),
                    ("vm", f"kv{h}", f"global_load_dwordx4 v[{b+4}:{b+7}], v{VKV}, s[{S_WSP}:{S_WSP+1}] offset:16 sc1")] + post + [
                    f"v_add_u32 v{VKV}, {KV_HEAD}, v{VKV}"]
        if KVMASK:
            A(f"s_mov_b32 s{S_C6}, 0xffff0011"); A(f"s_mov_b32 s{S_C6+1}, 0xffff0011")
        AHEAD = G2_AHEAD
        KVB = [KVR0 + 8*h for h in range(8)]
        DO = [224 - 32, 224 - 16]
        DO = [T - 16 - 16 + 0, 0]
        DO = [208, 224]
        DO = [HB + 32, HB + 48]
        OF = [T, T+4]
        loads = [("h", f) for f in range(56)]
        if TBM:
            for h in range(8): loads += [("kv", h), ("pq", 2*h)]
            for h in range(8): loads += [("pq", 2*h+1)]
        else:
            for h in range(8): loads += [("kv", h), ("pq", 2*h), ("pq", 2*h+1)]
        CHK = G2_CHK
        li = {"n": 0}
        def issue(n):
            o = []
            for _ in range(n):
                if li["n"] >= len(loads): break
                k, x = loads[li["n"]]; li["n"] += 1
                o.append(h_items(x) if k == "h" else (kv_items(x) if k == "kv" else pq_items(x)))
            return o
        A(f"s_mul_i32 s{S_T0}, s{S_J}, {7*1024}"); A(f"s_add_u32 s{S_T0}, s{S_T0}, s{S_HO}")
        for x in issue(4):
            for y in x: A(y)
        if G2_PF:
            for k in range(7):
                if k == 4: A(f"s_add_u32 s{S_T0}, s{S_T0}, 4096")
                A.vm(f"buffer_load_dwordx4 v[{T}:{T+3}], v{VL16}, s[{S_H}:{S_H+3}], s{S_T0} offen offset:{(k%4)*1024} sc1")
        for x in issue(AHEAD - 4):
            for y in x: A(y)
        if DEFER:
            A(f"s_cmp_ge_u32 s{S_CP}, 2"); A("s_cbranch_scc1 K12_defB")
            for tb in range(2):
                for hs in range(2):
                    pk = 128 + 4*(2*tb + hs)
                    A(f"!buffer_store_dwordx4 v[{pk}:{pk+3}], v{VL16}, s[{S_H}:{S_H+3}], s{23 if hs else 22} offen offset:{tb*1024} sc1")
            A(f"v_mov_b32 v{T+6}, 24576"); A("s_mov_b64 exec, 1")
            A(f"!global_load_dword v{T+7}, v{T+6}, s[{S_WSP}:{S_WSP+1}]")
            A("s_mov_b64 exec, -1"); A("s_branch K12_defX")
            A("K12_defB:")
            for n in range(4): A(f"!global_atomic_add_f32 v133, v{128+n}, s[{S_WSP}:{S_WSP+1}] offset:{n*256}")
            A("s_mov_b64 exec, 0xffff")
            A(f"!global_atomic_add_f32 v133, v132, s[{S_WSP}:{S_WSP+1}] offset:1024")
            A("s_mov_b64 exec, -1")
            A("K12_defX:")
            A.nvm += 5; A.ids["defer"] = A.nvm
        A.stamp(2, "g2")
        for i in range(28):
            if LATE_R and i == N_IN: A("s_waitcnt lgkmcnt(0)")
            A.wait(f"h{2*i+1}")
            if FASTG2 and i == 0:
                A(f"s_cmp_eq_u32 s{S_XO}, 0"); A("s_cbranch_scc1 K12_sigdone")
                signal_block("2")
                A("K12_sigdone:")
            if DEFER and i == S_SIG:
                assert A.ids[f"h{2*i+1}"] > A.ids["defer"]
                signal_block()
            if i == 1: A.stamp(3, "g2")
            gaps = [[] for _ in range(4)]
            if i == CHK - 5:
                gaps[0] += [f"v_add_u32 v{VFL}, 32, v{VFL}", f"s_mov_b64 s[{S_E0}:{S_E0+1}], exec", "s_mov_b64 exec, 15",
                            ("vm", "fq", f"global_load_dword v{VF1}, v{VFL}, s[{S_WSP}:{S_WSP+1}] sc1"), "s_mov_b64 exec, 255",
                            ("vm", "fkv", f"global_load_dword v{VF2}, v{VCN}, s[{S_WSP}:{S_WSP+1}] sc1"), f"s_mov_b64 exec, s[{S_E0}:{S_E0+1}]"]
            if LATE_R and i >= 2 and N_IN + (i - 2) < 36:
                rr = self.w2.R(N_IN + (i - 2))[1:]
                gaps[0] += rr[0]; gaps[3] += rr[1]
            n = 2
            if li["n"] + n > 56 and i < CHK: n = max(0, 56 - li["n"])
            for k, x in enumerate(issue(n)): gaps[1+k] += x
            mf = []
            for tb in range(2):
                hb = HB + 4*((2*i+tb) % NH)
                for nb in range(2):
                    a = ACC2 + 16*(2*nb+tb)
                    c = "0" if i == 0 else f"v[{a}:{a+15}]"
                    mf.append(f"v_mfma_f32_32x32x16_bf16 v[{a}:{a+15}], {self.w2.frag(i,nb)}, v[{hb}:{hb+3}], {c}")
            for g in range(4):
                A(mf[g])
                for x in gaps[g]: A(x)
            if i == CHK - 1:
                A.stamp(4, "g2")
                A.wait("fkv")
                A(f"s_mov_b64 s[{S_E0}:{S_E0+1}], exec"); A("s_mov_b64 exec, 15")
                A(f"v_cmp_ne_u32 vcc, 0, v{VF1}"); A("s_nop 3"); A("s_cmp_eq_u64 vcc, exec"); A(f"s_mov_b64 exec, s[{S_E0}:{S_E0+1}]")
                A("s_cbranch_scc1 K12_qok")
                self.poll("K12_pollQ", VFL, 4, novm=True)
                A.label("K12_qok")
                A(f"s_mov_b64 s[{S_E0}:{S_E0+1}], exec"); A("s_mov_b64 exec, 255")
                A(f"v_cmp_le_u32 vcc, 16, v{VF2}"); A("s_nop 3"); A("s_cmp_eq_u64 vcc, exec"); A(f"s_mov_b64 exec, s[{S_E0}:{S_E0+1}]")
                A("s_cbranch_scc1 K12_kvok")
                self.poll("K12_pollKV", VCN, 8, expect=16, novm=True)
                A.label("K12_kvok")
                A.stamp(5, "g2")
        A.stamp(6, "g2"); A.stamp(1, "att")
        A(f"v_lshrrev_b32 v{T+8}, 3, v{VTID}"); A(f"v_and_b32 v{T+9}, 7, v{VTID}")
        A(f"s_lshl_b32 s{S_T0}, s{S_TAU}, 16"); A(f"s_lshl_b32 s{S_T2}, s{S_J}, 7"); A(f"s_add_u32 s{S_T0}, s{S_T0}, s{S_T2}")
        VG = VFL
        A(f"v_lshlrev_b32 v{VG}, 10, v{T+8}"); A(f"v_lshlrev_b32 v{VCN}, 4, v{T+9}"); A(f"v_add_u32 v{VG}, v{VG}, v{VCN}")
        A(f"s_add_u32 s{S_T2}, s{S_T0}, {32*1024}")
        XR = HB
        A(f"s_mov_b32 s{S_T1}, 0x358637bd")
        A("s_waitcnt lgkmcnt(0)")
        units = [(h, tb) for tb in range(2) for h in range(8)] if TBM else [(h, tb) for h in range(8) for tb in range(2)]
        RS = 272; WSZ = 64*RS; VW = VCN
        A(f"v_and_b32 v{VW}, 31, v{VL}"); A(f"v_mul_u32_u24 v{VW}, {RS}, v{VW}"); A(f"v_lshrrev_b32 v{T+9}, 5, v{VL}"); A(f"v_lshlrev_b32 v{T+9}, 4, v{T+9}"); A(f"v_add_u32 v{VW}, v{VW}, v{T+9}")
        A(f"s_mul_i32 s{S_T3}, s{S_WV}, {WSZ}"); A(f"v_add_u32 v{VW}, s{S_T3}, v{VW}")
        def wr(tb, k):
            nb, q = k // 4, k % 4; a = ACC2 + 16*(2*nb+tb)
            return f"ds_write_b128 v{VW}, v[{a+4*q}:{a+4*q+3}] offset:{tb*32*RS + nb*128 + q*32}"
        def stA(u):
            h, tb = units[u]; d = DO[u & 1]
            o = []
            if tb == 0:
                o.append(("wait", [f"kv{h}", f"pq{2*h}"]))
                o += [f"v_cvt_pk_bf16_f32 v{KVB[h]+e}, v{KVR0+8*h+2*e}, v{KVR0+8*h+2*e+1}" for e in range(4)]
                o.append("s_nop 1")
            else: o.append(("wait", [f"pq{2*h+1}"]))
            o.append(f"v_mfma_f32_32x32x16_bf16 v[{d}:{d+15}], v[{KVB[h]}:{KVB[h]+3}], {ar(4*(2*h+tb), 4)}, 0")
            return o
        def stB(u):
            d = DO[u & 1]; o = OF[u & 1]; rc = T + 8
            l = [f"v_add_f32 v{rc}, s{S_T1}, v{d}", f"v_rcp_f32 v{rc}, v{rc}", "s_nop 0"]
            l += [f"v_mul_f32 v{d+8+e}, v{rc}, v{d+8+e}" for e in range(8)]
            l += [f"v_cvt_pk_bf16_f32 v{o+e}, v{d+8+2*e}, v{d+8+2*e+1}" for e in range(4)]
            return l
        def stC(u):
            h, tb = units[u]; o = OF[u & 1]; i = 28 + h
            return [f"v_mfma_f32_32x32x16_bf16 v[{ACC2+16*(2*nb+tb)}:{ACC2+16*(2*nb+tb)+15}], {self.w2.frag(i,nb)}, v[{o}:{o+3}], v[{ACC2+16*(2*nb+tb)}:{ACC2+16*(2*nb+tb)+15}]" for nb in range(2)]
        for x in stA(0): A(x)
        A.stamp(2, "att")
        for x in issue(1):
            for y in x: A(y)
        for x in stA(1): A(x)
        for x in issue(2):
            for y in x: A(y)
        A("s_nop 7"); A("s_nop 3")
        for x in stB(0): A(x)
        xdone = False
        for u in range(16):
            c = stC(u)
            nb_ = stB(u+1) if u + 1 < 16 else []
            if u in (2, 6, 10, 13): A.stamp({2:3, 6:4, 10:5, 13:6}[u], "att")
            A("s_nop 1"); A(c[0])
            for x in nb_[:5]: A(x)
            if u + 2 < 16:
                for x in stA(u+2): A(x)
            iss = issue(2)
            for x in iss:
                for y in x: A(y)
            if not iss and not xdone:
                A.vm(f"buffer_load_dwordx4 v[{XR}:{XR+3}], v{VG}, s[{S_XX}:{S_XX+3}], s{S_T0} offen", id="x0")
                A.vm(f"buffer_load_dwordx4 v[{XR+4}:{XR+7}], v{VG}, s[{S_XX}:{S_XX+3}], s{S_T2} offen", id="x1")
                xdone = True
            for x in nb_[5:10]: A(x)
            A(c[1])
            for x in nb_[10:]: A(x)
            if TBM and 9 <= u <= 12:
                A(wr(0, 2*(u-9))); A(wr(0, 2*(u-9)+1))
        assert xdone and li["n"] == len(loads)
        A.stamp(7, "g2"); A.stamp(7, "att")
        A(f"v_lshrrev_b32 v{T+2}, 3, v{VTID}"); A(f"v_and_b32 v{T+3}, 7, v{VTID}")
        A(f"v_mul_u32_u24 v{T+6}, {RS}, v{T+2}"); A(f"v_lshlrev_b32 v{T+7}, 5, v{T+3}"); A(f"v_add_u32 v{T+6}, v{T+6}, v{T+7}")
        if not TBM:
            A("s_nop 7")
            for k in range(8): A(wr(0, k))
        A("s_nop 7"); A("s_nop 1")
        for k in range(8): A(wr(1, k))
        A("s_waitcnt lgkmcnt(0)"); A("s_barrier")
        A.stamp(8, "g2"); A.stamp(8, "att")
        for ps in range(2):
            b = 72 + 40*ps
            for w in range(4):
                A(f"ds_read_b128 v[{b+8*w}:{b+8*w+3}], v{T+6} offset:{w*WSZ + ps*32*RS}")
                A(f"ds_read_b128 v[{b+8*w+4}:{b+8*w+7}], v{T+6} offset:{w*WSZ + ps*32*RS + 16}")
        for ps in range(2):
            b = 72 + 40*ps
            A(f"s_waitcnt lgkmcnt({8 if ps == 0 else 0})")
            for e in range(0, 8, 2):
                A(f"v_pk_add_f32 v[{b+e}:{b+e+1}], v[{b+e}:{b+e+1}], v[{b+8+e}:{b+8+e+1}]")
                A(f"v_pk_add_f32 v[{b+16+e}:{b+16+e+1}], v[{b+16+e}:{b+16+e+1}], v[{b+24+e}:{b+24+e+1}]")
            for e in range(0, 8, 2):
                A(f"v_pk_add_f32 v[{b+e}:{b+e+1}], v[{b+e}:{b+e+1}], v[{b+16+e}:{b+16+e+1}]")
            A.wait(f"x{ps}")
            xb = XR + 4*ps
            for e in range(4):
                A(f"v_lshlrev_b32 v{T+8}, 16, v{xb+e}"); A(f"v_and_b32 v{T+9}, 0xffff0000, v{xb+e}")
                A(f"v_pk_add_f32 v[{b+2*e}:{b+2*e+1}], v[{b+2*e}:{b+2*e+1}], v[{T+8}:{T+9}]")
                A(f"v_cvt_pk_bf16_f32 v{b+32+e}, v{b+2*e}, v{b+2*e+1}")
            A.vm(f"buffer_store_dwordx4 v[{b+32}:{b+35}], v{VG}, s[{S_O}:{S_O+3}], s{S_T0 if ps == 0 else S_T2} offen")

def gen_k12():
    A = Prog()
    prologue_common(A)
    A(f"s_cmp_ge_u32 s{S_CP}, 2"); A("s_cbranch_scc1 K12_typeB")
    base_nvm = A.nvm; base_ids = dict(A.ids)
    for typ in ("A", "B"):
        if typ == "B":
            A.label("K12_typeB"); A.nvm = base_nvm; A.ids = dict(base_ids)
        g = G1(A, typ)
        g.prologue()
        if STAMP and SMODE == "wait":
            for c in (1,2,3,4,5,6,7): A(f"s_mov_b32 s{SB+2*c}, 0")
            A(f"s_memtime s[{SB+8}:{SB+9}]"); A("s_waitcnt lgkmcnt(0)")
        A.inloop = True
        g.loop()
        A.inloop = False
        if STAMP and SMODE == "wait":
            A(f"s_memtime s[{SB+10}:{SB+11}]"); A("s_waitcnt lgkmcnt(0)"); A(f"s_sub_u32 s{SB+8}, s{SB+10}, s{SB+8}")
        print(f"type {typ}: leftover W2 items after loop: {g.nleft}", file=sys.stderr)
        A.stamp(4); A.stamp(8, "loop"); A.stamp(8, "init"); A.stamp(5, "init")
        g.transition()
        if typ == "A": A("s_branch K12_g2")
    A.label("K12_g2")
    G2(A).body()
    if STAMP:
        A("s_waitcnt vmcnt(0) lgkmcnt(0)")
        A(f"{STAMP_INS} s[60:61]")
        A("s_waitcnt lgkmcnt(0)")
        A(f"s_lshl_b32 s{S_T0}, s2, 2"); A(f"s_add_u32 s{S_T0}, s{S_T0}, s{S_WV}"); A(f"s_lshl_b32 s{S_T0}, s{S_T0}, 6")
        A(f"s_add_u32 s{S_T0}, s{S_T0}, {WS_STAMP + 65536}")
        A(f"v_mov_b32 v{VT}, s{S_T0}")
        for i in range(9):
            A(f"v_mov_b32 v{VT+1}, s{SB+2*i}")
            A.vm(f"global_store_dword v{VT}, v{VT+1}, s[{S_WSP}:{S_WSP+1}] offset:{4*i}")
        A(f"v_mov_b32 v{VT+1}, s60")
        A.vm(f"global_store_dword v{VT}, v{VT+1}, s[{S_WSP}:{S_WSP+1}] offset:36")
    if STAMP and DBGSTAMP:
        A(f"s_cmp_eq_u32 s{S_WV}, 0"); A("s_cbranch_scc0 K12_end")
        A("s_mov_b64 exec, 1")
        for i in range(9):
            A(f"v_mov_b32 v{VT}, {4*(1+i)}"); A(f"v_mov_b32 v{VT+1}, s{SB+2*i}")
            A.vm(f"global_atomic_umax v{VT}, v{VT+1}, s[{S_DBG}:{S_DBG+1}]")
        A(f"v_mov_b32 v{VT}, 40"); A(f"v_mov_b32 v{VT+1}, s60"); A.vm(f"global_atomic_umax v{VT}, v{VT+1}, s[{S_DBG}:{S_DBG+1}]")
        A(f"s_not_b32 s{S_T0}, s{SB}"); A(f"v_mov_b32 v{VT}, 44"); A(f"v_mov_b32 v{VT+1}, s{S_T0}"); A.vm(f"global_atomic_umax v{VT}, v{VT+1}, s[{S_DBG}:{S_DBG+1}]")
    A.label("K12_end")
    return A.text()

def main(path):
    hdr = open("cdna_kernels/" + NAME + ".s.ref").read().split("; Override")[0]
    n = NAME + "_kernel"
    body = gen_k12()
    out = hdr + "; @launch grid=(256,1,1) block=(256,1,1) lds=163840\n"
    out += '.amdgcn_target "amdgcn-amd-amdhsa--gfx950"\n.text\n'
    out += f""".globl {n}
.p2align 8
.type {n},@function
{n}:
{body}
  s_endpgm
.section .rodata,"a"
.p2align 6
.amdhsa_kernel {n}
  .amdhsa_next_free_vgpr 512
  .amdhsa_next_free_sgpr 102
  .amdhsa_accum_offset 256
  .amdhsa_group_segment_fixed_size 0
  .amdhsa_kernarg_size 80
  .amdhsa_user_sgpr_count 2
  .amdhsa_user_sgpr_kernarg_segment_ptr 1
  .amdhsa_system_sgpr_workgroup_id_x 1
.end_amdhsa_kernel
"""
    open(path, "w").write(out)

if __name__ == "__main__":
    if "--stamp" in sys.argv:
        STAMP = True; sys.argv.remove("--stamp")
    for a in list(sys.argv):
        if a.startswith("--nin="): N_IN = int(a[6:]); sys.argv.remove(a)
        if a.startswith("--smode="): SMODE = a[8:]; sys.argv.remove(a)
        if a.startswith("--ahead="): G2_AHEAD = int(a[8:]); sys.argv.remove(a)
        if a.startswith("--chk="): G2_CHK = int(a[6:]); sys.argv.remove(a)
        if a.startswith("--pf="): G2_PF = int(a[5:]); sys.argv.remove(a)
        if a.startswith("--cpf2="): CODE_PF2 = int(a[7:]); sys.argv.remove(a)
        if a.startswith("--wsh="): WS_H = int(a[6:])*1048576; sys.argv.remove(a)
        if a == "--dbgstamp": DBGSTAMP = 1; sys.argv.remove(a)
        if a.startswith("--w2rot="): W2ROT = int(a[8:]); sys.argv.remove(a)
        if a.startswith("--w2start="): W2_START = int(a[10:]); sys.argv.remove(a)
        if a.startswith("--later="): LATE_R = int(a[8:]); sys.argv.remove(a)
        if a.startswith("--bed="): B_EARLY_D = int(a[6:]); sys.argv.remove(a)
        if a.startswith("--ftb="): FLAG_TB = int(a[6:]); sys.argv.remove(a)
        if a.startswith("--pt="): K_PT = int(a[5:]); sys.argv.remove(a)
        if a.startswith("--tt="): TLB_TOUCH = int(a[5:]); sys.argv.remove(a)
        if a.startswith("--hinit="):
            H_INIT = int(a[8:]); K_INITLD = 2*H_INIT - 4; K_CSAT = 2*H_INIT; H_CS = H_INIT + 3; sys.argv.remove(a)
        if a.startswith("--rot2="): ROT2 = int(a[7:]); sys.argv.remove(a)
        if a.startswith("--kvmask="): KVMASK = int(a[9:]); sys.argv.remove(a)
        if a.startswith("--wopf="): K_WOPF = int(a[7:]); sys.argv.remove(a)
        if a.startswith("--defer="): DEFER = int(a[8:]); sys.argv.remove(a)
        if a.startswith("--cpf1="): CODE_PF1 = int(a[7:]); sys.argv.remove(a)
        if a.startswith("--zlate="): ZLATE = int(a[8:]); sys.argv.remove(a)
        if a.startswith("--tbm="): TBM = int(a[6:]); sys.argv.remove(a)
        if a.startswith("--gate="): GATE = int(a[7:]); sys.argv.remove(a)
        if a.startswith("--tt3="): TT3 = int(a[6:]); sys.argv.remove(a)
        if a.startswith("--pqlate="): PQ_LATE = int(a[9:]); sys.argv.remove(a)
        if a.startswith("--ftba="): FLAG_TB_A = int(a[7:]); sys.argv.remove(a)
        if a.startswith("--ot="): OUT_TOUCH = int(a[5:]); sys.argv.remove(a)
        if a.startswith("--ep="): EARLY_POLL = int(a[5:]); sys.argv.remove(a)
        if a.startswith("--fast="): FASTG2 = int(a[7:]); sys.argv.remove(a)
        if a.startswith("--phid="): PHI_D = int(a[7:]); sys.argv.remove(a)
        if a.startswith("--x1e="): X1_EARLY = int(a[6:]); sys.argv.remove(a)
        if a.startswith("--rot="): ROT = int(a[6:]); sys.argv.remove(a)
        if a.startswith("--cap="): CAP = int(a[6:]); sys.argv.remove(a)
    if "--cyc" in sys.argv:
        STAMP = True; STAMP_INS = "s_memtime"; sys.argv.remove("--cyc")
    main(sys.argv[1] if len(sys.argv) > 1 else "cdna_kernels/" + NAME + ".s")
```

```python
import sys

NAME = "parallel_sum__linear_attn_block__glu_gated_bilinear__prompt"
WS_M, WS_R, WS_KV, KV_HEAD = 0, 8192, 32768, 1152
WS_FLAG = WS_KV + 36864
WS_KVCNT = WS_FLAG + 8192
WS_CS = WS_KVCNT + 2048
WS_STCNT = WS_CS + 20480
WS_CSCNT = WS_STCNT + 2048
NZERO = 18
assert WS_CSCNT + 2048 <= WS_KV + NZERO*4096 <= 131072
DBG_INIT = 0
CS_TMP = 140
A_ONES = 220
VC1, VC2, VC3 = 251, 252, 253
WS_H = 131072
H_BYTES = 32*4*36*2048
POLL_MAX = 200000
STAMP = False
STAMP_INS = 's_memrealtime'
WS_STAMP = 1 << 24
SB = 84
CORR_AT = 28
N_IN = 28
CAP = 5
SMODE = 'main'
ROT = 8
PHI_D = 0
ALIGN8 = 0
FASTG2 = 0
EARLY_POLL = 1
OUT_TOUCH = 0
PQ_LATE = 0
TT3 = 0
GATE = 0
TBM = 1
CODE_PF1 = 1
ZLATE = 0
H_Z = 2
DEFER = 0
S_SIG = 6
K_WOPF = 0
ROT2 = 1
KVMASK = 0
TLB_TOUCH = 0
K_PT = 0
FLAG_TB = 1
FLAG_TB_A = 0
B_EARLY_D = 1
LATE_R = 1
X1_EARLY = 1
W2ROT = 1
DBGSTAMP = 0
CODE_PF2 = 0
G2_AHEAD = 14; G2_CHK = 22; G2_PF = 0
K_INITLD = 2; H_INIT = 3; K_CSAT = 6; H_CS = 6; K_CNTLD = 18; H_CNT = 11; K_RANK = 25
CODE_KB = 48

class Prog:
    def __init__(self): self.l = []; self.nvm = 0; self.ids = {}; self.pos = {}; self.inloop = False
    def __call__(self, s):
        if s is None: return
        if isinstance(s, tuple):
            if s[0] == "vm":
                self.l.append("  " + s[2]); self.nvm += 1
                if s[1] is not None: self.ids[s[1]] = self.nvm; self.pos[s[1]] = len(self.l)
            elif s[0] == "stamp":
                self.stamp(s[1], s[2])
            elif s[0] == "vmu":
                self.l.append("  " + s[2]); self.ids[s[1]] = self.nvm
            elif s[0] == "wait":
                last = max(self.ids[i] for i in s[1])
                n = self.nvm - last
                assert n <= 63, (s, n)
                if STAMP and SMODE == "wait" and self.inloop:
                    cat = 2 if s[1][0].startswith("w2_") else (1 if s[1][0].startswith("W") else 3)
                    self.l.append(f"  s_memtime s[98:99]"); self.l.append("  s_waitcnt lgkmcnt(0)")
                    self.l.append(f"  s_waitcnt vmcnt({n})")
                    self.l.append(f"  s_memtime s[100:101]"); self.l.append("  s_waitcnt lgkmcnt(0)")
                    self.l.append(f"  s_sub_u32 s100, s100, s98"); self.l.append(f"  s_add_u32 s{SB+2*cat}, s{SB+2*cat}, s100")
                    return
                self.l.append(f"  s_waitcnt vmcnt({n})" + (" " + s[2] if len(s) > 2 and s[2] else ""))
            else: raise ValueError(s)
        elif s.endswith(":"): self.l.append(s)
        elif s.startswith("!"):
            self.l.append("  " + s[1:])
        else:
            assert not ("buffer_" in s or "global_" in s), s
            self.l.append("  " + s)
    def vm(self, text, id=None): self(("vm", id, text))
    def wait(self, *ids): self(("wait", list(ids)))
    def label(self, s): self.l.append(s + ":")
    def text(self):
        if not ALIGN8: return "\n".join(self.l)
        out = []
        for x in self.l:
            if x.lstrip().startswith("v_mfma"): out.append("  .p2align 3")
            out.append(x)
        return "\n".join(out)
    def stamp(self, i, mode="main"):
        if STAMP and (mode == SMODE or i == 0): self.l.append(f"  {STAMP_INS} s[{SB+2*i}:{SB+2*i+1}]")
    def reset_vm(self):
        self.ids = {}

def vr(b, n=1): return f"v{b}" if n == 1 else f"v[{b}:{b+n-1}]"
def ar(b, n=1): return f"a{b}" if n == 1 else f"a[{b}:{b+n-1}]"
def srd(A, d, lo, hi, size):
    A(f"s_mov_b32 s{d}, s{lo}"); A(f"s_and_b32 s{d+1}, s{hi}, 0xffff"); A(f"s_mov_b32 s{d+2}, {size}"); A(f"s_mov_b32 s{d+3}, 0x20000")
def srd_off(A, d, lo, hi, off, size):
    A(f"s_add_u32 s{d}, s{lo}, {off}"); A(f"s_addc_u32 s{d+1}, s{hi}, 0"); A(f"s_and_b32 s{d+1}, s{d+1}, 0xffff")
    if isinstance(off, int): A(f"s_mov_b32 s{d+2}, {size - off}")
    else: A(f"s_sub_u32 s{d+2}, {size}, {off}")
    A(f"s_mov_b32 s{d+3}, 0x20000")

X_BASE = 0; X_SLOT = 16384
W_BASE = 49152; W_SLOT = 20480; W_NS = 3
W2IN = W_BASE + W_NS*W_SLOT
NSL = 6
LDS_R = W2IN + 4*NSL*2048
LDS_KV = 0
W2_START = 1
W2POST = 69632; NPOST = 11
DLAG = 5

ACC = 0; WF = 160; XF = 200; TRA = 216; XA = 221; VOW = 225; VOX = 230
VR = 234; VLANE = 236; VL16 = 237; VTID = 238; VDM = 239
VT = 240
VTR = 254; VTR1 = 255
AMF = 228; ACF = 236
def acc(blk, tb): return ACC + (blk*2+tb)*16

S_X = 4; S_W = 8; S_H = 28; S_WSP = 32
S_WV = 34; S_WM = 35; S_WN = 36; S_T = 37; S_IDX = 38
S_KW = 39; S_KH = 40; S_R30 = 41; S_R35 = 42; S_RH = 43; S_KX = 44; S_W1K = 45; S_W4K = 46; S_XB = 47
S_WD = 48; S_LB = 52; S_W2O = 53
S_W2B = 74; S_W2R = 75; S_W2T = 76; S_RHO = 77; S_HR = 75; S_HBASE = 74
S_T0 = 54; S_T1 = 55; S_T2 = 56; S_T3 = 57; S_T4 = 58; S_XO = 59
S_E0 = 60; S_E2 = 62
S_P = 64
P_X, P_WQ, P_WO, P_G, P_U, P_D, P_O = 64, 66, 68, 72, 74, 76, 78
S_DBG = 72; S_KSC = 66; S_CG = 67
S_HB = 80; S_I1 = 81; S_CP = 82; S_TAU = 83; S_J = 70; S_HO = 71
S_WO = 8; S_O = 12; S_XX = 16
S_C6 = 20

def w2row(i):
    if i < 16: return ("D", 256, 16*i)
    if i < 24: return ("D", 128, 1024 + 16*(i-16))
    if i < 28: return ("D", 64, 1536 + 16*(i-24))
    return ("O", 128, 16*(i-28))

class W2:
    def __init__(self, A, vdm2=None): self.A = A; self.vdm2 = vdm2
    def frag(self, ks, nb, W2V=192):
        f = ks*2 + nb
        return ar(4*f, 4) if f < 64 else vr(W2V + 4*(f-64), 4)
    def half(self, ks, nb, h, W2V=192):
        f = ks*2 + nb
        return ar(4*f + 2*h, 2) if f < 64 else vr(W2V + 4*(f-64) + 2*h, 2)
    def slot_off(self, i):
        return (i % NSL)*2048 if i < N_IN else ((i - N_IN) % NPOST)*2048
    def D(self, i):
        o = []
        if i < 28: s, so = S_WD, S_W2R
        else:
            s, so = S_WO, S_W2O
            o.append([f"s_mov_b32 s{S_W2O}, {16*(i-28)*1024}"])
        d0 = ("dma", f"s_add_u32 m0, s{S_LB}, {self.slot_off(i)}", ("vm", f"w2_{i}_0", f"buffer_load_dwordx4 v{VDM}, s[{s}:{s+3}], s{so} offen lds"))
        o.append(d0)
        o.append(("dma", f"s_add_u32 m0, s{S_LB}, {self.slot_off(i) + 1024}", ("vm", f"w2_{i}_1", f"buffer_load_dwordx4 v{self.vdm2}, s[{s}:{s+3}], s{so} offen lds")))
        if i < 27:
            o.append([f"s_add_u32 s{S_W2R}, s{S_W2R}, 16384", f"s_cmp_eq_u32 s{S_W2R}, {28*16384}", f"s_cselect_b32 s{S_W2R}, 0, s{S_W2R}"])
        return o
    def R(self, i):
        o = self.slot_off(i)
        r = [[("wait", [f"w2_{i}_1"])]]
        for nb in range(2):
            va = VTR if nb == 0 else VTR1
            r.append([f"ds_read_b64_tr_b16 {self.half(i, nb, 0)}, v{va} offset:{o}", f"ds_read_b64_tr_b16 {self.half(i, nb, 1)}, v{va} offset:{o+1024}"])
        return r

def emit_items(A, items):
    for it in items:
        if isinstance(it, tuple) and it[0] == "dma":
            A(it[1]); A("s_nop 0"); A(it[2])
        else:
            for s in it: A(s)

def prologue_common(A):
    A("s_cmp_ge_u32 s2, 256"); A("s_cbranch_scc1 K12_end")
    A.stamp(0)
    A(f"s_load_dwordx16 s[{S_P}:{S_P+15}], s[0:1], 0")
    A(f"s_load_dwordx2 s[{S_WSP}:{S_WSP+1}], s[0:1], 72")
    A(f"s_getpc_b64 s[{S_E2}:{S_E2+1}]")
    A("K12_pc:")
    A(f"v_and_b32 v{VLANE}, 63, v0")
    A(f"v_lshrrev_b32 v{VT}, 6, v0")
    A(f"v_mov_b32 v{VTID}, v0")
    A(f"v_lshlrev_b32 v{VL16}, 4, v{VLANE}")
    if TLB_TOUCH:
        A(f"v_lshlrev_b32 v{WF+28}, 3, v{VLANE}")
        A("s_mov_b64 exec, 0x1ff")
        A.vm(f"global_load_dwordx2 v[{WF+30}:{WF+31}], v{WF+28}, s[0:1]", id="kptr")
        A("s_mov_b64 exec, -1")
    A(f"v_readfirstlane_b32 s{S_WV}, v{VT}")
    A(f"s_and_b32 s{S_T0}, s2, 7"); A(f"s_lshr_b32 s{S_T1}, s2, 3")
    A(f"s_lshl_b32 s{S_T2}, s{S_T1}, 2"); A(f"s_add_u32 s{S_T2}, s{S_T2}, s{S_WV}"); A(f"s_min_u32 s{S_T2}, s{S_T2}, ((K12_end-K12_pc)>>10)-1"); A(f"s_lshl_b32 s{S_T2}, s{S_T2}, 10")
    A(f"v_add_u32 v{VT+4}, s{S_T2}, v{VL16}")
    if CODE_PF1: A.vm(f"global_load_dwordx4 v[{WF+36}:{WF+39}], v{VT+4}, s[{S_E2}:{S_E2+1}]")
    A(f"s_and_b32 s{S_T2}, s{S_T1}, 7"); A(f"s_lshr_b32 s{S_CP}, s{S_T1}, 3")
    A(f"s_lshr_b32 s{S_T}, s{S_T0}, 2"); A(f"s_lshl_b32 s{S_T}, s{S_T}, 3"); A(f"s_add_u32 s{S_T}, s{S_T}, s{S_T2}")
    A(f"s_and_b32 s{S_IDX}, s{S_T0}, 3"); A(f"s_lshl_b32 s{S_IDX}, s{S_IDX}, 1")
    A(f"s_and_b32 s{S_T3}, s{S_CP}, 1"); A(f"s_add_u32 s{S_IDX}, s{S_IDX}, s{S_T3}")
    A(f"s_and_b32 s{S_TAU}, s{S_T1}, 3"); A(f"s_lshl_b32 s{S_T3}, s{S_T0}, 2"); A(f"s_add_u32 s{S_TAU}, s{S_TAU}, s{S_T3}")
    A(f"s_lshr_b32 s{S_T4}, s{S_T1}, 2")
    A(f"s_add_u32 s{S_T0}, s{S_CP}, s{S_T2}"); A(f"s_and_b32 s{S_T0}, s{S_T0}, 3"); A(f"s_lshl_b32 s{S_T0}, s{S_T0}, 1")
    A(f"s_lshr_b32 s{S_T1}, s{S_T2}, 2"); A(f"s_add_u32 s{S_T0}, s{S_T0}, s{S_T1}")
    if ROT2: A(f"s_add_u32 s{S_T0}, s{S_CP}, s{S_T2}"); A(f"s_and_b32 s{S_T0}, s{S_T0}, 7")
    A(f"s_lshl_b32 s{S_KW}, s{S_T0}, 6")
    A(f"s_lshr_b32 s{S_WM}, s{S_WV}, 1"); A(f"s_and_b32 s{S_WN}, s{S_WV}, 1")
    t0, t1, t3, t4 = VT, VT+1, VT+3, VT+4
    A(f"v_lshrrev_b32 v{t0}, 3, v{VLANE}"); A(f"v_and_b32 v{t1}, 7, v{VLANE}")
    A(f"v_lshrrev_b32 v{t3}, 4, v{VLANE}"); A(f"v_xor_b32 v{t3}, v{t1}, v{t3}"); A(f"v_lshlrev_b32 v{t3}, 4, v{t3}")
    A(f"v_lshlrev_b32 v{t4}, 10, v{t0}"); A(f"v_add_u32 v{VOX}, v{t3}, v{t4}")
    A(f"v_xor_b32 v{VOX+1}, 64, v{VOX}"); A(f"v_add_u32 v{VOX+1}, {8*1024}, v{VOX+1}")
    A(f"v_add_u32 v{VOX+2}, {16*1024}, v{VOX}"); A(f"v_add_u32 v{VOX+3}, {16*1024}, v{VOX+1}")
    A(f"s_lshl_b32 s{S_XB}, s{S_T}, 7"); A(f"s_lshl_b32 s{S_T0}, s{S_WV}, 5"); A(f"s_add_u32 s{S_XB}, s{S_XB}, s{S_T0}"); A(f"s_lshl_b32 s{S_XB}, s{S_XB}, 10")
    A(f"s_lshl_b32 s{S_KX}, s{S_KW}, 1")
    A(f"s_and_b32 s{S_T0}, s{S_WV}, 1"); A(f"s_lshl_b32 s{S_T0}, s{S_T0}, 4"); A(f"s_add_u32 s{S_KH}, s{S_KW}, s{S_T0}")
    A(f"s_lshl_b32 s{S_T0}, s{S_WV}, 3"); A(f"s_add_u32 s{S_KW}, s{S_KW}, s{S_T0}")
    A(f"s_lshl_b32 s{S_W1K}, s{S_WV}, 10"); A(f"s_lshl_b32 s{S_W4K}, s{S_WV}, 12")
    A(f"s_lshr_b32 s{S_T0}, s{S_CP}, 1"); A(f"s_lshl_b32 s{S_T0}, s{S_T0}, 3"); A(f"s_add_u32 s{S_T3}, s{S_T0}, s{S_IDX}")
    A(f"s_lshl_b32 s{S_T0}, s{S_T}, 7"); A(f"s_lshl_b32 s{S_T1}, s{S_T3}, 3"); A(f"s_add_u32 s{S_T0}, s{S_T0}, s{S_T1}"); A(f"s_lshl_b32 s{S_T1}, s{S_WV}, 1"); A(f"s_add_u32 s{S_T2}, s{S_T0}, s{S_T1}")
    A(f"s_lshl_b32 s{S_T0}, s{S_T2}, 10"); A(f"v_add_u32 v{VT+5}, s{S_T0}, v{VL16}")
    if TLB_TOUCH:
        A.wait("kptr")
        A("s_mov_b64 exec, 0x1ff")
        A.vm(f"global_load_dword v{WF+29}, v[{WF+30}:{WF+31}], off offset:128")
        A("s_mov_b64 exec, -1")
    A.stamp(1, "pro")
    if GATE:
        A(f"s_load_dwordx2 s[{S_E0}:{S_E0+1}], s[0:1], 64")
    A("s_waitcnt lgkmcnt(0)")
    if GATE:
        A(f"s_cmp_eq_u32 s{S_WV}, 0"); A("s_cbranch_scc0 K12_gate_w")
        A(f"v_mov_b32 v{VT+8}, 192"); A(f"v_mov_b32 v{VT+9}, 1"); A("s_mov_b64 exec, 1")
        A(f"!global_atomic_add v{VT+8}, v{VT+9}, s[{S_E0}:{S_E0+1}] sc1")
        A(f"s_mov_b32 s{S_T1+0}, 0") if False else None
        A(f"s_mov_b32 s3, 0")
        A("K12_gate_l:")
        A(f"!global_load_dword v{VT+9}, v{VT+8}, s[{S_E0}:{S_E0+1}] sc1"); A("s_waitcnt vmcnt(0)")
        A(f"v_readfirstlane_b32 s{S_E2}, v{VT+9}"); A("s_add_u32 s3, s3, 1"); A(f"s_cmp_ge_u32 s3, {POLL_MAX}"); A("s_cbranch_scc1 K12_gate_x")
        A(f"s_cmp_ge_u32 s{S_E2}, 256"); A("s_cbranch_scc1 K12_gate_x"); A(f"s_sleep {GATE}"); A("s_branch K12_gate_l")
        A("K12_gate_x:"); A("s_mov_b64 exec, -1")
        A("K12_gate_w:"); A("s_barrier")
    if TLB_TOUCH:
        A(f"v_mov_b32 v{WF+28}, 24576"); A("s_mov_b64 exec, 1")
        A.vm(f"global_load_dword v{WF+32}, v{WF+28}, s[{S_WSP}:{S_WSP+1}]")
        A("s_mov_b64 exec, -1")
    A.stamp(2, "pro")
    if TT3:
        lo, hi = WF+30, WF+31
        A(f"v_mov_b32 v{lo}, s{P_WQ}"); A(f"v_mov_b32 v{hi}, s{P_WQ+1}")
        for ln, p in ((1, P_G), (2, P_U)):
            A(f"v_writelane_b32 v{lo}, s{p}, {ln}"); A(f"v_writelane_b32 v{hi}, s{p+1}, {ln}")
        A("s_mov_b64 exec, 7")
        A.vm(f"global_load_dword v{WF+29}, v[{lo}:{hi}], off")
        A("s_mov_b64 exec, -1")
    A(f"s_mov_b32 s{S_J}, s{S_T4}")
    if not ZLATE:
        A(f"s_cmp_ge_u32 s2, {NZERO}"); A("s_cbranch_scc1 K12_nozero")
        A(f"s_lshl_b32 s{S_T0}, s2, 12"); A(f"s_add_u32 s{S_T0}, s{S_T0}, {WS_KV}")
        A(f"v_lshlrev_b32 v{VT+6}, 4, v{VTID}"); A(f"v_add_u32 v{VT+6}, s{S_T0}, v{VT+6}")
        for i in range(4): A(f"v_mov_b32 v{VT+8+i}, 0")
        A(f"!global_store_dwordx4 v{VT+6}, v[{VT+8}:{VT+11}], s[{S_WSP}:{S_WSP+1}] sc1")
        A("K12_nozero:")
    SX = WF + 20
    A.vm(f"global_load_dwordx4 v[{SX}:{SX+3}], v{VT+5}, s[{P_X}:{P_X+1}]")
    A.vm(f"global_load_dwordx4 v[{SX+4}:{SX+7}], v{VT+5}, s[{P_X}:{P_X+1}] offset:1024", id="strow")
    A(f"s_lshl_b32 s{S_HB}, s{S_T2}, 2")
    A(f"s_mov_b32 s{S_I1}, s{S_T3}")
    srd(A, S_X, P_X, P_X+1, 2048*1024)

class G1:
    def __init__(self, A, typ):
        self.A = A; self.typ = typ; self.w2 = W2(A, 227 if typ == 'A' else 226)
        self.kinds = ["gu","gu","gu","gu","q"] if typ == "A" else ["k","v","gu","gu","guh"]
        if typ == "A": self.strides = [3584,3584,3584,3584,3072]; self.swz = ["g","u","g","u","q"]
        else: self.strides = [3072,3072,3584,3584,3584]; self.swz = ["q","q","g","u","h"]
    def vow(self, rho):
        key = (self.swz[rho], self.strides[rho])
        for r in range(rho + 1):
            if (self.swz[r], self.strides[r]) == key: return VOW + r
    def Wg(self, h):
        o = []
        if h > 0:
            o.append([f"s_add_u32 s{S_KW}, s{S_KW}, 32", f"s_and_b32 s{S_KW}, s{S_KW}, 511"])
            if self.typ == "B": o.append([f"s_add_u32 s{S_KH}, s{S_KH}, 32", f"s_and_b32 s{S_KH}, s{S_KH}, 511"])
        o.append([f"s_mul_i32 s{S_R30}, s{S_KW}, 3072", f"s_mul_i32 s{S_R35}, s{S_KW}, 3584"])
        if self.typ == "B": o.append([f"s_mul_i32 s{S_RH}, s{S_KH}, 3584"])
        for rho in range(5):
            so = S_RH if self.swz[rho] == "h" else (S_R30 if self.strides[rho] == 3072 else S_R35)
            o.append(("dma", f"s_add_u32 m0, s{S_W1K}, {W_BASE + (h % W_NS)*W_SLOT + rho*4096}",
                      ("vm", f"W{h}_{rho}", f"buffer_load_dwordx4 v{self.vow(rho)}, s[{S_W+4*rho}:{S_W+4*rho+3}], s{so} offen lds")))
        return o
    def Xg(self, sg):
        o = []
        if sg > 0: o.append([f"s_add_u32 s{S_KX}, s{S_KX}, 128", f"s_and_b32 s{S_KX}, s{S_KX}, 1023"])
        o.append([f"s_add_u32 s{S_XO}, s{S_XB}, s{S_KX}"])
        for j in range(4):
            o.append(("dma", f"s_add_u32 m0, s{S_W4K}, {X_BASE + (sg % 3)*X_SLOT + j*1024}",
                      ("vm", f"X{sg}_{j}", f"buffer_load_dwordx4 v{VOX+j}, s[{S_X}:{S_X+3}], s{S_XO} offen lds")))
        return o
    def reads(self, s):
        par = s & 1; kk = s & 3; sg = s >> 2; h = s >> 1; second = s & 1
        xo = (sg % 3)*X_SLOT
        o = [f"ds_read_b128 v[{XF+8*par}:{XF+8*par+3}], v{XA+kk} offset:{xo}", f"ds_read_b128 v[{XF+8*par+4}:{XF+8*par+7}], v{XA+kk} offset:{xo+4096}"]
        for blk, kd in enumerate(self.kinds):
            b = WF + 20*par + 4*blk
            if kd == "guh": o1, o2 = (1024 if second else 0), 256
            else: o1, o2 = (2048 if second else 0), 512
            o1 += (h % W_NS)*W_SLOT
            o.append(f"ds_read_b64_tr_b16 v[{b}:{b+1}], v{TRA+blk} offset:{o1}")
            o.append(f"ds_read_b64_tr_b16 v[{b+2}:{b+3}], v{TRA+blk} offset:{o1+o2}")
        return o
    def mfmas(self, s, order=None):
        par = s & 1; o = []
        for blk in (order or range(5)):
            kd = self.kinds[blk]
            wf = f"v[{WF+20*par+4*blk}:{WF+20*par+4*blk+3}]"
            for tb in range(2):
                xf = f"v[{XF+8*par+4*tb}:{XF+8*par+4*tb+3}]"; a = acc(blk, tb)
                c = "0" if s == 0 else f"v[{a}:{a+15}]"
                if kd in ("k", "v"): o.append(f"v_mfma_f32_32x32x16_bf16 v[{a}:{a+15}], {xf}, {wf}, {c}")
                else: o.append(f"v_mfma_f32_32x32x16_bf16 v[{a}:{a+15}], {wf}, {xf}, {c}")
        return o
    def corr(self):
        o = []
        for blk in range(5):
            for tb in range(2):
                a = acc(blk, tb); cf = ar(ACF+4*blk, 4); mf = ar(AMF+4*tb, 4)
                if self.kinds[blk] in ("k", "v"): o.append(f"v_mfma_f32_32x32x16_bf16 v[{a}:{a+15}], {mf}, {cf}, v[{a}:{a+15}]")
                else: o.append(f"v_mfma_f32_32x32x16_bf16 v[{a}:{a+15}], {cf}, {mf}, v[{a}:{a+15}]")
        return o

    def prologue(self):
        A, typ, kinds = self.A, self.typ, self.kinds
        SZQ, SZG = 512*3072, 512*3584
        A.stamp(3, "pro")
        emit_items(A, self.Xg(0))
        A.stamp(4, "pro")
        if typ == "A":
            A(f"s_lshr_b32 s{S_T0}, s{S_IDX}, 1"); A(f"s_mul_i32 s{S_T0}, s{S_T0}, 7"); A(f"s_and_b32 s{S_T1}, s{S_IDX}, 1"); A(f"s_lshl_b32 s{S_T1}, s{S_T1}, 1")
            A(f"s_add_u32 s{S_T0}, s{S_T0}, s{S_T1}"); A(f"s_lshl_b32 s{S_T0}, s{S_T0}, 7")
            srd_off(A, S_W+0, P_G, P_G+1, f"s{S_T0}", SZG); srd_off(A, S_W+4, P_U, P_U+1, f"s{S_T0}", SZG)
            A(f"s_add_u32 s{S_T0}, s{S_T0}, 128")
            srd_off(A, S_W+8, P_G, P_G+1, f"s{S_T0}", SZG); srd_off(A, S_W+12, P_U, P_U+1, f"s{S_T0}", SZG)
            A(f"s_lshl_b32 s{S_T0}, s{S_IDX}, 7")
            srd_off(A, S_W+16, P_WQ, P_WQ+1, f"s{S_T0}", SZQ)
        else:
            A(f"s_lshl_b32 s{S_T0}, s{S_IDX}, 7"); A(f"s_add_u32 s{S_T0}, s{S_T0}, 1024")
            srd_off(A, S_W+0, P_WQ, P_WQ+1, f"s{S_T0}", SZQ)
            A(f"s_add_u32 s{S_T0}, s{S_T0}, 1024")
            srd_off(A, S_W+4, P_WQ, P_WQ+1, f"s{S_T0}", SZQ)
            A(f"s_lshr_b32 s{S_T0}, s{S_IDX}, 1"); A(f"s_mul_i32 s{S_T0}, s{S_T0}, 7"); A(f"s_and_b32 s{S_T1}, s{S_IDX}, 1")
            A(f"s_add_u32 s{S_T0}, s{S_T0}, s{S_T1}"); A(f"s_add_u32 s{S_T0}, s{S_T0}, 4"); A(f"s_lshl_b32 s{S_T0}, s{S_T0}, 7")
            srd_off(A, S_W+8, P_G, P_G+1, f"s{S_T0}", SZG); srd_off(A, S_W+12, P_U, P_U+1, f"s{S_T0}", SZG)
            A(f"s_lshr_b32 s{S_T0}, s{S_IDX}, 1"); A(f"s_mul_i32 s{S_T0}, s{S_T0}, 7"); A(f"s_add_u32 s{S_T0}, s{S_T0}, 6"); A(f"s_lshl_b32 s{S_T0}, s{S_T0}, 7")
            A(f"s_and_b32 s{S_T1}, s{S_IDX}, 1"); A(f"s_lshl_b32 s{S_T1}, s{S_T1}, 6"); A(f"s_add_u32 s{S_T0}, s{S_T0}, s{S_T1}")
            A(f"s_cmp_ge_u32 s{S_WV}, 2")
            A(f"s_cselect_b32 s{S_T2}, s{P_U}, s{P_G}"); A(f"s_cselect_b32 s{S_T3}, s{P_U+1}, s{P_G+1}")
            srd_off(A, S_W+16, S_T2, S_T3, f"s{S_T0}", SZG)
        t0, t1, t2, t3, t4 = VT, VT+1, VT+2, VT+3, VT+4
        A(f"v_lshrrev_b32 v{t0}, 3, v{VLANE}"); A(f"v_and_b32 v{t1}, 7, v{VLANE}")
        A(f"v_lshrrev_b32 v{t2}, 4, v{VLANE}"); A(f"v_and_b32 v{t2}, 1, v{t2}")
        done = {}
        for rho in range(5):
            key = (self.swz[rho], self.strides[rho])
            if key in done: continue
            done[key] = rho
            if self.swz[rho] == "h":
                A(f"v_lshrrev_b32 v{t3}, 2, v{VLANE}"); A(f"v_and_b32 v{t4}, 3, v{VLANE}")
                A(f"s_lshr_b32 s{S_T0}, s{S_WV}, 1"); A(f"s_lshl_b32 s{S_T0}, s{S_T0}, 1")
                A(f"v_xor_b32 v{t4}, s{S_T0}, v{t4}")
                A(f"v_mul_u32_u24 v{t3}, 3584, v{t3}"); A(f"v_lshlrev_b32 v{t4}, 4, v{t4}"); A(f"v_add_u32 v{VOW+rho}, v{t3}, v{t4}")
            else:
                if self.swz[rho] == "q": A(f"v_lshlrev_b32 v{t3}, 2, v{t2}")
                else:
                    A(f"v_lshlrev_b32 v{t3}, 1, v{t2}")
                    if self.swz[rho] == "u": A(f"v_or_b32 v{t3}, 4, v{t3}")
                A(f"v_xor_b32 v{t3}, v{t1}, v{t3}"); A(f"v_lshlrev_b32 v{t3}, 4, v{t3}")
                A(f"v_mul_u32_u24 v{t4}, {self.strides[rho]}, v{t0}"); A(f"v_add_u32 v{VOW+rho}, v{t3}, v{t4}")
        A.stamp(5, "pro")
        emit_items(A, self.Wg(0)); A.stamp(6, "pro"); emit_items(A, self.Wg(1))
        A.stamp(1); A.stamp(7, "pro")
        A(f"v_lshlrev_b32 v{t3}, 2, v{t2}"); A(f"v_xor_b32 v{t3}, v{t1}, v{t3}"); A(f"v_lshlrev_b32 v{t3}, 4, v{t3}")
        A(f"v_lshlrev_b32 v{t4}, 10, v{t0}"); A(f"v_add_u32 v{VDM}, v{t3}, v{t4}")
        A(f"v_add_u32 v{self.w2.vdm2}, 8192, v{VDM}")
        A(f"s_lshl_b32 s{S_T0}, s{S_J}, 7"); A(f"s_mul_i32 s{S_T1}, s{S_WV}, {448*1024}"); A(f"s_add_u32 s{S_T0}, s{S_T0}, s{S_T1}")
        srd_off(A, S_WD, P_D, P_D+1, f"s{S_T0}", 1792*1024)
        A(f"s_mul_i32 s{S_LB}, s{S_WV}, {NSL*2048}"); A(f"s_add_u32 s{S_LB}, s{S_LB}, {W2IN}")
        A(f"s_lshr_b32 s{S_T0}, s2, 3"); A(f"s_and_b32 s{S_T1}, s{S_T0}, 3"); A(f"s_mul_i32 s{S_T1}, s{S_T1}, 7"); A(f"s_lshr_b32 s{S_T0}, s{S_T0}, 2"); A(f"s_mul_i32 s{S_T0}, s{S_T0}, 3")
        A(f"s_add_u32 s{S_RHO}, s{S_T0}, s{S_T1}"); A(f"s_cmp_ge_u32 s{S_RHO}, 28"); A(f"s_cselect_b32 s{S_T0}, 28, 0"); A(f"s_sub_u32 s{S_RHO}, s{S_RHO}, s{S_T0}")
        if not W2ROT: A(f"s_mov_b32 s{S_RHO}, 0")
        A(f"s_lshl_b32 s{S_W2R}, s{S_RHO}, 14")
        A(f"s_load_dwordx2 s[{S_DBG}:{S_DBG+1}], s[0:1], 64")
        A(f"s_mov_b32 s{S_CG}, s{S_I1}")
        A(f"s_lshr_b32 s{S_T0}, s{S_T}, 3"); A(f"s_lshl_b32 s{S_T0}, s{S_T0}, 1"); A(f"s_add_u32 s{S_KSC}, s{S_T0}, s{S_WM}")
        A(f"v_and_b32 v{t0}, 31, v{VLANE}")
        A(f"v_and_b32 v{t1}, 15, v{t0}"); A(f"v_lshrrev_b32 v{t2}, 4, v{t0}")
        def cs_addr(dst, soff_code, lane_kind):
            soff_code()
            if lane_kind == "gu":
                A(f"v_mul_u32_u24 v{t3}, 1792, v{t2}"); A(f"v_add_u32 v{t3}, v{t3}, v{t1}")
            elif lane_kind == "kv":
                A(f"v_lshlrev_b32 v{t3}, 9, v{t2}"); A(f"v_add_u32 v{t3}, v{t3}, v{t1}")
            else: A(f"v_mov_b32 v{t3}, v{t0}")
            A(f"v_add_u32 v{t3}, s{S_T0}, v{t3}"); A(f"v_lshlrev_b32 v{t3}, 2, v{t3}"); A(f"v_add_u32 v{dst}, {WS_CS}, v{t3}")
        if typ == "A":
            cs_addr(VC1, lambda: (A(f"s_lshr_b32 s{S_T0}, s{S_IDX}, 1"), A(f"s_mul_i32 s{S_T0}, s{S_T0}, 7"), A(f"s_and_b32 s{S_T1}, s{S_IDX}, 1"), A(f"s_lshl_b32 s{S_T1}, s{S_T1}, 1"), A(f"s_add_u32 s{S_T0}, s{S_T0}, s{S_T1}"),
                                  A(f"s_add_u32 s{S_T0}, s{S_T0}, s{S_WN}"), A(f"s_lshl_b32 s{S_T0}, s{S_T0}, 6"), A(f"s_add_u32 s{S_T0}, s{S_T0}, 1536")), "gu")
            cs_addr(VC2, lambda: (A(f"s_lshl_b32 s{S_T0}, s{S_IDX}, 6"), A(f"s_lshl_b32 s{S_T1}, s{S_WN}, 5"), A(f"s_add_u32 s{S_T0}, s{S_T0}, s{S_T1}")), "q")
            self.csa = [(VC1, 0), (VC1, 64), (VC1, 128), (VC1, 192), (VC2, 0)]
        else:
            cs_addr(VC2, lambda: (A(f"s_lshl_b32 s{S_T0}, s{S_IDX}, 6"), A(f"s_lshl_b32 s{S_T1}, s{S_WN}, 5"), A(f"s_add_u32 s{S_T0}, s{S_T0}, s{S_T1}"), A(f"s_add_u32 s{S_T0}, s{S_T0}, 512")), "q")
            cs_addr(VC1, lambda: (A(f"s_lshr_b32 s{S_T0}, s{S_IDX}, 1"), A(f"s_mul_i32 s{S_T0}, s{S_T0}, 7"), A(f"s_and_b32 s{S_T1}, s{S_IDX}, 1"), A(f"s_add_u32 s{S_T0}, s{S_T0}, s{S_T1}"), A(f"s_add_u32 s{S_T0}, s{S_T0}, 4"), A(f"s_lshl_b32 s{S_T0}, s{S_T0}, 6"), A(f"s_lshl_b32 s{S_T1}, s{S_WN}, 5"), A(f"s_add_u32 s{S_T0}, s{S_T0}, s{S_T1}"), A(f"s_add_u32 s{S_T0}, s{S_T0}, 1536")), "gu")
            cs_addr(VC3, lambda: (A(f"s_lshr_b32 s{S_T0}, s{S_IDX}, 1"), A(f"s_mul_i32 s{S_T0}, s{S_T0}, 7"), A(f"s_add_u32 s{S_T0}, s{S_T0}, 6"), A(f"s_lshl_b32 s{S_T0}, s{S_T0}, 6"),
                                  A(f"s_and_b32 s{S_T1}, s{S_IDX}, 1"), A(f"s_lshl_b32 s{S_T1}, s{S_T1}, 1"), A(f"s_add_u32 s{S_T1}, s{S_T1}, s{S_WN}"), A(f"s_lshl_b32 s{S_T1}, s{S_T1}, 4"),
                                  A(f"s_add_u32 s{S_T0}, s{S_T0}, s{S_T1}"), A(f"s_add_u32 s{S_T0}, s{S_T0}, 1536")), "gu")
            self.csa = [(VC2, 0), (VC2, 2048), (VC1, 0), (VC1, 64), (VC3, 0)]
        A(f"v_mov_b32 v{t3}, 0x3f803f80")
        for i in range(4): A(f"v_accvgpr_write_b32 a{A_ONES+i}, v{t3}")
        srd_off(A, S_H, S_WSP, S_WSP+1, WS_H, WS_H + H_BYTES)
        G, p, r, c = t0, t1, t2, t3
        A(f"v_lshrrev_b32 v{G}, 4, v{VLANE}"); A(f"v_and_b32 v{G}, 1, v{G}")
        A(f"v_lshrrev_b32 v{p}, 5, v{VLANE}")
        A(f"v_and_b32 v{r}, 15, v{VLANE}"); A(f"v_lshrrev_b32 v{r}, 2, v{r}")
        A(f"v_and_b32 v{c}, 3, v{VLANE}")
        k_, rb, u1, u2 = t4, t4+1, t4+2, t4+3
        A(f"v_lshlrev_b32 v{k_}, 3, v{p}"); A(f"v_add_u32 v{k_}, v{k_}, v{r}")
        A(f"v_lshrrev_b32 v{rb}, 1, v{r}"); A(f"v_and_b32 v{rb}, 1, v{rb}")
        for blk, kd in enumerate(kinds):
            d = TRA + blk
            if typ == "A" and kd == "gu" and blk > 0:
                A(f"v_xor_b32 v{d}, {blk*32}, v{TRA}"); continue
            if typ == "B" and blk == 1:
                A(f"v_add_u32 v{d}, 4096, v{d-1}"); continue
            if typ == "B" and blk == 3:
                A(f"v_xor_b32 v{d}, 32, v{d-1}"); continue
            if kd == "guh":
                A(f"v_lshrrev_b32 v{u1}, 1, v{c}"); A(f"s_lshl_b32 s{S_T0}, s{S_WN}, 1"); A(f"v_add_u32 v{u1}, s{S_T0}, v{u1}")
                A(f"v_lshlrev_b32 v{u2}, 1, v{G}"); A(f"v_xor_b32 v{u1}, v{u1}, v{u2}"); A(f"v_lshlrev_b32 v{u1}, 4, v{u1}")
                A(f"v_lshlrev_b32 v{u2}, 6, v{k_}"); A(f"v_add_u32 v{u1}, v{u1}, v{u2}")
                A(f"v_lshlrev_b32 v{u2}, 11, v{G}"); A(f"v_add_u32 v{u1}, v{u1}, v{u2}")
                A(f"v_add_u32 v{u1}, {W_BASE + 4*4096}, v{u1}")
            else:
                if kd in ("q", "k"):
                    A(f"s_lshl_b32 s{S_T0}, s{S_WN}, 1"); A(f"v_add_u32 v{u1}, s{S_T0}, v{G}")
                elif typ == "A": A(f"v_mov_b32 v{u1}, 0")
                else:
                    A(f"s_lshl_b32 s{S_T0}, s{S_WN}, 1"); A(f"v_mov_b32 v{u1}, s{S_T0}")
                A(f"v_lshlrev_b32 v{u1}, 1, v{u1}"); A(f"v_lshrrev_b32 v{u2}, 1, v{c}"); A(f"v_add_u32 v{u1}, v{u1}, v{u2}")
                if kd in ("q", "k"): A(f"v_lshlrev_b32 v{u2}, 2, v{rb}")
                else:
                    A(f"v_lshlrev_b32 v{u2}, 1, v{rb}"); A(f"v_lshlrev_b32 v{d}, 2, v{G}"); A(f"v_or_b32 v{u2}, v{u2}, v{d}")
                A(f"v_xor_b32 v{u1}, v{u1}, v{u2}"); A(f"v_lshlrev_b32 v{u1}, 4, v{u1}")
                A(f"v_lshlrev_b32 v{u2}, 7, v{k_}"); A(f"v_add_u32 v{u1}, v{u1}, v{u2}")
                if kd == "q": A(f"v_add_u32 v{u1}, {W_BASE + 4*4096}, v{u1}")
                elif kd == "k": A(f"v_add_u32 v{u1}, {W_BASE}, v{u1}")
                else:
                    if typ == "A":
                        A(f"s_lshl_b32 s{S_T0}, s{S_WN}, 13"); A(f"s_add_u32 s{S_T0}, s{S_T0}, {W_BASE}")
                    else: A(f"s_mov_b32 s{S_T0}, {W_BASE + 2*4096}")
                    A(f"v_lshlrev_b32 v{u2}, 12, v{G}"); A(f"v_add_u32 v{u1}, v{u1}, v{u2}"); A(f"v_add_u32 v{u1}, s{S_T0}, v{u1}")
            A(f"v_and_b32 v{u2}, 1, v{c}"); A(f"v_lshlrev_b32 v{u2}, 3, v{u2}"); A(f"v_add_u32 v{d}, v{u1}, v{u2}")
        A(f"v_lshlrev_b32 v{u1}, 2, v{p}"); A(f"v_add_u32 v{u1}, v{u1}, v{r}"); A(f"v_lshlrev_b32 v{u1}, 7, v{u1}")
        A(f"v_lshlrev_b32 v{u2}, 1, v{G}"); A(f"v_lshrrev_b32 v{VTR}, 1, v{c}"); A(f"v_add_u32 v{u2}, v{u2}, v{VTR}")
        A(f"v_lshlrev_b32 v{VTR}, 2, v{rb}"); A(f"v_xor_b32 v{u2}, v{u2}, v{VTR}"); A(f"v_lshlrev_b32 v{u2}, 4, v{u2}"); A(f"v_add_u32 v{u1}, v{u1}, v{u2}")
        A(f"v_and_b32 v{u2}, 1, v{c}"); A(f"v_lshlrev_b32 v{u2}, 3, v{u2}"); A(f"v_add_u32 v{u1}, v{u1}, v{u2}")
        A(f"v_add_u32 v{VTR}, s{S_LB}, v{u1}"); A(f"v_xor_b32 v{VTR1}, 64, v{VTR}")
        A(f"v_and_b32 v{u1}, 31, v{VLANE}"); A(f"s_lshl_b32 s{S_T0}, s{S_WM}, 6"); A(f"v_add_u32 v{u1}, s{S_T0}, v{u1}")
        A(f"v_lshrrev_b32 v{u2}, 1, v{u1}"); A(f"v_and_b32 v{u2}, 7, v{u2}"); A(f"v_xor_b32 v{u2}, v{u2}, v{p}"); A(f"v_lshlrev_b32 v{u2}, 4, v{u2}")
        A(f"v_lshlrev_b32 v{u1}, 7, v{u1}"); A(f"v_add_u32 v{u1}, v{u1}, v{u2}")
        for kk in range(4): A(f"v_xor_b32 v{XA+kk}, {kk*32}, v{u1}")
        if X1_EARLY: emit_items(A, self.Xg(1))
        SX = WF + 20
        A.wait("strow")
        P0, P1, Q0, Q1, U = VT, VT+2, VT+4, VT+6, VT+8
        for tok, (P, Q) in enumerate(((P0, Q0), (P1, Q1))):
            for i in range(4):
                src = SX + 4*tok + i
                A(f"v_lshlrev_b32 v{U}, 16, v{src}"); A(f"v_and_b32 v{U+1}, 0xffff0000, v{src}")
                if i == 0:
                    A(f"v_pk_mul_f32 v[{Q}:{Q+1}], v[{U}:{U+1}], v[{U}:{U+1}]"); A(f"v_mov_b32 v{P}, v{U}"); A(f"v_mov_b32 v{P+1}, v{U+1}")
                else:
                    A(f"v_pk_add_f32 v[{P}:{P+1}], v[{P}:{P+1}], v[{U}:{U+1}]"); A(f"v_pk_fma_f32 v[{Q}:{Q+1}], v[{U}:{U+1}], v[{U}:{U+1}], v[{Q}:{Q+1}]")
        for r_ in (P0, P1, Q0, Q1): A(f"v_add_f32 v{r_}, v{r_}, v{r_+1}")
        for dpp in ("row_shr:1 row_mask:0xf bank_mask:0xf", "row_shr:2 row_mask:0xf bank_mask:0xf", "row_shr:4 row_mask:0xf bank_mask:0xf", "row_shr:8 row_mask:0xf bank_mask:0xf",
                    "row_bcast:15 row_mask:0xa bank_mask:0xf", "row_bcast:31 row_mask:0xc bank_mask:0xf"):
            for r_ in (P0, P1, Q0, Q1): A(f"v_add_f32_dpp v{r_}, v{r_}, v{r_} {dpp}")
        A(f"v_mul_f32 v{P0}, 0x3b000000, v{P0}"); A(f"v_mul_f32 v{P0+1}, 0x3b000000, v{P1}")
        A(f"v_mul_f32 v{Q0}, 0x3b000000, v{Q0}"); A(f"v_mul_f32 v{Q0+1}, 0x3b000000, v{Q1}")
        for j in range(2):
            A(f"v_fma_f32 v{Q0+j}, -v{P0+j}, v{P0+j}, v{Q0+j}"); A(f"v_max_f32 v{Q0+j}, 0, v{Q0+j}"); A(f"v_add_f32 v{Q0+j}, 0x3727c5ac, v{Q0+j}"); A(f"v_rsq_f32 v{Q0+j}, v{Q0+j}")
        A(f"v_mov_b32 v{U}, s{S_HB}"); A(f"v_add_u32 v{U+1}, {WS_R}, v{U}")
        A(f"s_mov_b64 s[{S_E0}:{S_E0+1}], exec"); A("s_mov_b32 exec_lo, 0"); A("s_mov_b32 exec_hi, 0x80000000")
        A.vm(f"global_store_dwordx2 v{U}, v[{P0}:{P0+1}], s[{S_WSP}:{S_WSP+1}] sc1")
        A.vm(f"global_store_dwordx2 v{U+1}, v[{Q0}:{Q0+1}], s[{S_WSP}:{S_WSP+1}] sc1", id="stst")
        A(f"s_mov_b64 exec, s[{S_E0}:{S_E0+1}]")
        A.stamp(2)
        A("s_waitcnt lgkmcnt(0)")
        A.wait("X0_3", "W0_4")
        A("s_barrier")
        A.stamp(3); A.stamp(8, "pro")
        for s in self.reads(0): A(s)
        A.stamp(1, "init")
        if ZLATE:
            L = f"K12{typ}_nozero"
            A(f"s_cmp_ge_u32 s2, {NZERO}"); A(f"s_cbranch_scc1 {L}")
            A(f"s_lshl_b32 s{S_T0}, s2, 12"); A(f"s_add_u32 s{S_T0}, s{S_T0}, {WS_KV}")
            A(f"v_lshlrev_b32 v{VT+6}, 4, v{VTID}"); A(f"v_add_u32 v{VT+6}, s{S_T0}, v{VT+6}")
            for i in range(4): A(f"v_mov_b32 v{VT+0+i}, 0")
            A(("vmu", "zst", f"global_store_dwordx4 v{VT+6}, v[{VT+0}:{VT+3}], s[{S_WSP}:{S_WSP+1}] sc1"))
            A(f"{L}:")
        else:
            for x in self.sig(f"s_cmp_lt_u32 s2, {NZERO}", S_DBG, DBG_INIT, None, "init"): A(x)
        A.stamp(2, "init")

    def sig(self, cond, base, off_imm, off_sgpr, tag):
        L = f"K12{self.typ}_sig_{tag}"
        o = []
        if cond: o += [cond, f"s_cbranch_scc0 {L}"]
        o += [f"s_cmp_eq_u32 s{S_WV}, 0", f"s_cbranch_scc0 {L}"]
        if off_sgpr is None: o += [f"v_mov_b32 v{VT+9}, {off_imm}"]
        else: o += [f"s_lshl_b32 s{S_T4}, s{off_sgpr}, 7", f"s_add_u32 s{S_T4}, s{S_T4}, {off_imm}", f"v_mov_b32 v{VT+9}, s{S_T4}"]
        o += [f"v_mov_b32 v{VT+8}, 1", f"s_mov_b64 s[{S_E0}:{S_E0+1}], exec", "s_mov_b64 exec, 1",
              f"!global_atomic_add v{VT+9}, v{VT+8}, s[{base}:{base+1}] sc1", f"s_mov_b64 exec, s[{S_E0}:{S_E0+1}]", f"{L}:"]
        return o

    def spin(self, tag, base, vaddr, expect):
        L = f"K12{self.typ}_spin_{tag}"
        return [f"s_mov_b32 s{S_T3}, 0", f"{L}:", f"!global_load_dword v{VT+10}, v{vaddr}, s[{base}:{base+1}] sc1", "s_waitcnt vmcnt(0)",
                f"v_readfirstlane_b32 s{S_T4}, v{VT+10}", f"s_add_u32 s{S_T3}, s{S_T3}, 1", f"s_cmp_ge_u32 s{S_T3}, {POLL_MAX}", f"s_cbranch_scc1 {L}_x",
                f"s_cmp_ge_u32 s{S_T4}, {expect}", f"s_cbranch_scc1 {L}_x", "s_sleep 2", f"s_branch {L}", f"{L}_x:"]

    def w0(self, tag, code):
        L = f"K12{self.typ}_w0_{tag}"
        return [f"s_cmp_eq_u32 s{S_WV}, 0", f"s_cbranch_scc0 {L}"] + code + [f"{L}:"]

    def pre_barrier(self, h):
        typ = self.typ; T = VT
        if h == H_INIT:
            return [("stamp", 3, "init")] + self.w0("initchk", [("wait", ["initld"]), f"v_readfirstlane_b32 s{S_T4}, v{T+10}", "s_nop 0", f"s_cmp_ge_u32 s{S_T4}, {NZERO}", f"s_cbranch_scc1 K12{typ}_initok",
                                       f"v_mov_b32 v{T+9}, {DBG_INIT}"] + self.spin("init", S_DBG, T+9, NZERO) + [f"K12{typ}_initok:"]) + [("stamp", 4, "init")]
        if h == H_CNT:
            return [("stamp", 6, "init")] + self.w0("cntchk", [("wait", ["cntld"]), f"v_readfirstlane_b32 s{S_T4}, v{T+5}", "s_nop 0", f"s_cmp_ge_u32 s{S_T4}, 16", f"s_cbranch_scc1 K12{typ}_stok"]
                           + self.spin("st", S_WSP, T+7, 16) + [f"K12{typ}_stok:",
                           f"v_readfirstlane_b32 s{S_T4}, v{T+6}", "s_nop 0", f"s_cmp_ge_u32 s{S_T4}, 16", f"s_cbranch_scc1 K12{typ}_csok"]
                           + self.spin("cs", S_WSP, T+8, 16) + [f"K12{typ}_csok:"]) + [("stamp", 7, "init")]
        return []

    def oneshot_items(self, add, at):
        typ = self.typ; wsp = f"s[{S_WSP}:{S_WSP+1}]"; dbg = f"s[{S_DBG}:{S_DBG+1}]"
        T = VT
        for s in range(4):
            par = s & 1
            it = [f"s_cmp_eq_u32 s{S_KSC}, {s}", f"s_cbranch_scc0 K12{typ}_nocs{s}"]
            for blk in range(5):
                b = WF + 20*par + 4*blk
                it.append(f"v_mfma_f32_32x32x16_bf16 a[{CS_TMP+16*blk}:{CS_TMP+16*blk+15}], a[{A_ONES}:{A_ONES+3}], v[{b}:{b+3}], 0")
            it.append(f"K12{typ}_nocs{s}:")
            self.fixed.setdefault(s, []).append(it)
        self.fixed.setdefault(K_INITLD, []).append(self.w0("initld", [f"v_mov_b32 v{T+9}, {DBG_INIT}", f"s_mov_b64 s[{S_E0}:{S_E0+1}], exec", "s_mov_b64 exec, 1",
                                      ("vmu", "initld", f"global_load_dword v{T+10}, v{T+9}, {dbg} sc1"), f"s_mov_b64 exec, s[{S_E0}:{S_E0+1}]"]))
        it = [[f"v_accvgpr_read_b32 v{T+blk}, a{CS_TMP+16*blk}"] for blk in range(5)]
        at_ = [f"s_mov_b64 s[{S_E0}:{S_E0+1}], exec", "s_mov_b32 exec_hi, 0"]
        for blk in range(5):
            va, off = self.csa[blk]
            at_.append(("vm", f"csat{blk}", f"global_atomic_add_f32 v{va}, v{T+blk}, {wsp} offset:{off}"))
        at_.append(f"s_mov_b64 exec, s[{S_E0}:{S_E0+1}]")
        add(at(K_CSAT), it + [at_])
        self.fixed.setdefault(K_CNTLD, []).append(self.w0("cntld", [f"s_lshl_b32 s{S_T4}, s{S_T}, 7", f"s_add_u32 s{S_T4}, s{S_T4}, {WS_STCNT}", f"v_mov_b32 v{T+7}, s{S_T4}",
                          f"s_lshl_b32 s{S_T4}, s{S_CG}, 7", f"s_add_u32 s{S_T4}, s{S_T4}, {WS_CSCNT}", f"v_mov_b32 v{T+8}, s{S_T4}",
                          f"s_mov_b64 s[{S_E0}:{S_E0+1}], exec", "s_mov_b64 exec, 1",
                          f"!global_load_dword v{T+5}, v{T+7}, {wsp} sc1", ("vmu", "cntld", f"global_load_dword v{T+6}, v{T+8}, {wsp} sc1"),
                          f"s_mov_b64 exec, s[{S_E0}:{S_E0+1}]"]))
        VM = T; VCS = T + 2; VRB = T + 7
        lds = [[f"v_and_b32 v{T+8}, 31, v{VLANE}", f"s_lshl_b32 s{S_T4}, s{S_T}, 7", f"s_lshl_b32 s{S_T3}, s{S_WM}, 6", f"s_add_u32 s{S_T4}, s{S_T4}, s{S_T3}"],
               [f"v_add_u32 v{T+8}, s{S_T4}, v{T+8}", f"v_lshlrev_b32 v{T+8}, 2, v{T+8}", f"v_add_u32 v{T+9}, {WS_R}, v{T+8}"],
               [("vm", None, f"global_load_dword v{VM}, v{T+8}, {wsp} sc1")], [("vm", None, f"global_load_dword v{VM+1}, v{T+8}, {wsp} offset:128 sc1")],
               [("vm", None, f"global_load_dword v{VR}, v{T+9}, {wsp} sc1")], [("vm", None, f"global_load_dword v{VR+1}, v{T+9}, {wsp} offset:128 sc1")]]
        for blk in range(5):
            va, off = self.csa[blk]
            lds.append([("vm", "csld" if blk == 4 and typ == "A" else None, f"global_load_dword v{VCS+blk}, v{va}, {wsp} offset:{off} sc1")])
        if typ == "B":
            lds.append([f"s_lshl_b32 s{S_T4}, s{S_T}, 7", f"v_add_u32 v{T+8}, s{S_T4}, v{VTID}", f"v_lshlrev_b32 v{T+8}, 2, v{T+8}", f"v_add_u32 v{T+8}, {WS_R}, v{T+8}"])
            lds.append([("vm", "csld", f"global_load_dword v{VRB}, v{T+8}, {wsp} sc1")])
        add(at(2*H_CNT-1, 1), lds)
        if K_PT:
            add(at(K_PT), [[f"s_lshl_b32 s{S_T4}, s{S_TAU}, 16", f"s_lshl_b32 s{S_T3}, s{S_J}, 7", f"s_add_u32 s{S_T4}, s{S_T4}, s{S_T3}", f"v_mov_b32 v{T+9}, s{S_T4}"],
                           [f"s_mov_b64 s[{S_E0}:{S_E0+1}], exec", "s_mov_b64 exec, 1", ("vm", None, f"global_load_dword a224, v{T+9}, s[{P_O}:{P_O+1}]"), f"s_mov_b64 exec, s[{S_E0}:{S_E0+1}]"],
                           [f"v_mov_b32 v{T+9}, 0"],
                           [f"s_mov_b64 s[{S_E0}:{S_E0+1}], exec", "s_mov_b64 exec, 1", ("vm", None, f"global_load_dword a227, v{T+9}, s[{P_WO}:{P_WO+1}]"), f"s_mov_b64 exec, s[{S_E0}:{S_E0+1}]"]])
        if K_WOPF:
            it = [[f"s_lshl_b32 s{S_T4}, s{S_WV}, 17", f"s_and_b32 s{S_T3}, s{S_TAU}, 3", f"s_lshl_b32 s{S_T3}, s{S_T3}, 15", f"s_add_u32 s{S_T4}, s{S_T4}, s{S_T3}"],
                  [f"s_lshl_b32 s{S_T3}, s{S_J}, 7", f"s_add_u32 s{S_T4}, s{S_T4}, s{S_T3}", f"v_add_u32 v{T+9}, s{S_T4}, v{VDM}"]]
            for k in range(4):
                it.append([("vm", None, f"global_load_dwordx4 a[224:227], v{T+9}, s[{P_WO}:{P_WO+1}]")] + ([f"v_add_u32 v{T+9}, 8192, v{T+9}"] if k < 3 else []))
            add(at(K_WOPF), it)
        if CODE_PF2:
            add(at(CODE_PF2), [[f"s_getpc_b64 s[{S_E2}:{S_E2+1}]", f"K12{typ}_pc2:", f"s_lshr_b32 s{S_T4}, s2, 3", f"s_lshl_b32 s{S_T4}, s{S_T4}, 2", f"s_add_u32 s{S_T4}, s{S_T4}, s{S_WV}"],
                               [f"s_min_u32 s{S_T4}, s{S_T4}, ((K12_end-K12{typ}_pc2)>>10)-1", f"s_lshl_b32 s{S_T4}, s{S_T4}, 10", f"v_add_u32 v{T+9}, s{S_T4}, v{VL16}"],
                               [("vm", None, f"global_load_dwordx4 a[224:227], v{T+9}, s[{S_E2}:{S_E2+1}]")]])
        tt = T + 8; b = T + 10
        items = [[("wait", ["csld"])], [f"v_cmp_gt_u32 vcc, 32, v{VLANE}", "s_nop 1"]]
        for tb in range(2):
            items += [[f"v_cndmask_b32 v{tt}, 0, v{VM+tb}, vcc"], [f"v_cvt_pk_bf16_f32 v{b}, v{tt}, v{tt}"],
                      [f"v_and_b32 v{tt+1}, 0xffff0000, v{b}"], [f"v_sub_f32 v{tt+1}, v{tt}, v{tt+1}"],
                      [f"v_cvt_pk_bf16_f32 v{b+1}, v{tt+1}, 0"],
                      [f"v_accvgpr_write_b32 a{AMF+4*tb}, v{b}"], [f"v_accvgpr_write_b32 a{AMF+4*tb+1}, v{b+1}"],
                      [f"v_accvgpr_write_b32 a{AMF+4*tb+2}, 0"], [f"v_accvgpr_write_b32 a{AMF+4*tb+3}, 0"]]
        for blk in range(5):
            items += [[f"v_cndmask_b32 v{tt}, 0, v{VCS+blk}, vcc"], [f"v_sub_f32 v{tt}, 0, v{tt}"],
                      [f"v_cvt_pk_bf16_f32 v{b+1}, v{tt}, 0"], [f"v_lshlrev_b32 v{tt+1}, 16, v{b+1}"], [f"v_sub_f32 v{tt+1}, v{tt}, v{tt+1}"],
                      [f"v_cvt_pk_bf16_f32 v{b}, v{tt}, v{tt+1}"],
                      [f"v_accvgpr_write_b32 a{ACF+4*blk}, v{b}"], [f"v_accvgpr_write_b32 a{ACF+4*blk+1}, v{b+1}"],
                      [f"v_accvgpr_write_b32 a{ACF+4*blk+2}, 0"], [f"v_accvgpr_write_b32 a{ACF+4*blk+3}, 0"]]
        if typ == "B":
            items += [[f"v_lshlrev_b32 v{tt}, 2, v{VTID}"], [f"v_add_u32 v{tt}, {LDS_R}, v{tt}"],
                      [f"v_cmp_gt_u32 vcc, 128, v{VTID}", f"s_and_saveexec_b64 s[{S_E0}:{S_E0+1}], vcc", f"ds_write_b32 v{tt}, v{VRB}", f"s_mov_b64 exec, s[{S_E0}:{S_E0+1}]"]]
        add(at(K_RANK), items)

    def loop(self):
        A = self.A
        self.loop_start = len(A.l)
        steps = []
        for s in range(32):
            if s == CORR_AT: steps.append(("c", None))
            steps.append(("k", s))
        order_last = [b for b, kd in enumerate(self.kinds) if kd in ("gu","guh")] + [b for b, kd in enumerate(self.kinds) if kd not in ("gu","guh")]
        idx_of = {st: i for i, st in enumerate(steps)}
        def at(s, g=0): return (idx_of[("k", s)], g)
        flex = []; flex2 = []
        def add(pos, items):
            for it in items: flex.append((pos, it))
        def add2(pos, items):
            for it in items: flex2.append((pos, it))
        add(at(0), self.Wg(2))
        if not X1_EARLY: add(at(0), self.Xg(1))
        add(at(1, 1), self.Xg(2))
        for h in range(1, 14): add(at(2*h-1, 1), self.Wg(h+2))
        for sg in range(1, 6): add(at(4*sg-1, 1), self.Xg(sg+2))
        self.fixed = {}
        tagD = {}; tagR = {}; keep = []; placedR = {}
        self.oneshot_items(add, at)
        self.w2_done_R = []
        for i in range(N_IN):
            dd = self.w2.D(i); tagD[id(dd[0])] = i; keep.append(dd)
            add2(at(min(i+W2_START, 31)), dd)
            rr = self.w2.R(i); tagR[id(rr[-1])] = i; keep.append(rr)
            add2(at(min(i+W2_START+DLAG, 31)), rr); self.w2_done_R.append(i)
        flex.sort(key=lambda x: x[0])
        gaps_all = []
        flex2.sort(key=lambda x: x[0])
        queues = [list(flex), list(flex2)]
        for si, st in enumerate(steps):
            gaps = [[] for _ in range(10)]
            head = []
            if st[0] == "k":
                s = st[1]
                M = self.mfmas(s, order_last if s == 31 else None)
                head = ["s_waitcnt lgkmcnt(0)"]
                odd = s & 1
                if odd:
                    h = (s + 1)//2
                    if h <= 15:
                        ids = [f"W{h}_4"] + ([f"X{h//2}_3"] if h % 2 == 0 else [])
                        if h == H_INIT: ids.append("stst")
                        if ZLATE and h == H_Z: ids.append("zst")
                        if h == H_CS: ids.append("csat4")
                        if STAMP and SMODE == "wait":
                            gaps[0] += self.pre_barrier(h) + [("wait", ids), "s_memtime s[98:99]", "s_waitcnt lgkmcnt(0)", "s_barrier", "s_memtime s[100:101]", "s_waitcnt lgkmcnt(0)", "s_sub_u32 s100, s100, s98", f"s_add_u32 s{SB+12}, s{SB+12}, s100"]
                        else:
                            gaps[0] += self.pre_barrier(h) + [("wait", ids), "s_barrier"]
                        if ZLATE and h == H_Z: gaps[0] += self.sig(f"s_cmp_lt_u32 s2, {NZERO}", S_DBG, DBG_INIT, None, "init")
                        if h == H_INIT: gaps[0] += self.sig(None, S_WSP, WS_STCNT, S_T, "st")
                        if h == H_CS: gaps[0] += self.sig(None, S_WSP, WS_CSCNT, S_CG, "cs")
                    else:
                        gaps[0] += ["s_barrier"]
                nxt = s + 1
                if nxt < 32:
                    rd = self.reads(nxt)
                    g0 = 1 if odd else 0
                    for i, x in enumerate(rd): gaps[g0 + i//2].append(x)
            else:
                M = self.corr(); head = ["s_waitcnt lgkmcnt(0)"]
            if st[0] == "k" and st[1] in self.fixed:
                for it in self.fixed[st[1]]: gaps[9] += it
            for qi in range(2):
                pending = queues[qi]
                gi = 0
                rest = []
                blocked = False
                for (pos, it) in pending:
                    if blocked or pos[0] > si:
                        rest.append((pos, it)); continue
                    if id(it) in tagD and placedR.get(tagD[id(it)] - NSL, -1) == si:
                        rest.append((pos, it)); blocked = True; continue
                    if id(it) in tagD and tagD[id(it)] >= NSL and (tagD[id(it)] - NSL) not in placedR:
                        rest.append((pos, it)); blocked = True; continue
                    g = max(gi, pos[1] if pos[0] == si else 0)
                    need = 2 if (isinstance(it, tuple) and it[0] == "dma") else len(it)
                    while g < 10 and len(gaps[g]) + min(need, CAP) > CAP: g += 1
                    if g >= 10:
                        rest.append((pos, it)); blocked = True; continue
                    if id(it) in tagR: placedR[tagR[id(it)]] = si
                    if isinstance(it, tuple) and it[0] == "dma":
                        gaps[g].append(it[1]); gaps[g].append("__NOP__"); gaps[g].append(it[2]); gi = g + 1
                    else:
                        gaps[g] += it; gi = g
                queues[qi] = rest
            for g in gaps:
                while "__NOP__" in g:
                    i = g.index("__NOP__")
                    cand = [j for j in range(i-1) if isinstance(g[j], str) and g[j].startswith("ds_read")]
                    if cand:
                        x = g.pop(cand[-1]); i -= 1; g[i] = x
                    else: g[i] = "s_nop 0"
            if st[0] == "k" and st[1] % 4 == 0 and st[1] > 0: A.stamp(st[1]//4, "loop")
            for x in head: A(x)
            for i in range(10):
                A(M[i])
                for x in gaps[i]:
                    if x == "__WOSRD__":
                        assert "W15_4" in A.ids
                        A(f"s_lshl_b32 s{S_T0}, s{S_J}, 7"); A(f"s_lshl_b32 s{S_T1}, s{S_WV}, 17"); A(f"s_add_u32 s{S_T0}, s{S_T0}, s{S_T1}")
                        srd_off(A, S_WO, P_WO, P_WO+1, f"s{S_T0}", 512*1024)
                    else: A(x)
        assert not queues[0], queues[0][:3]
        self.leftover = queues[1]
        for (pos, it) in self.leftover:
            if id(it) in tagD: A("s_waitcnt lgkmcnt(0)")
            if it == ["__WOSRD__"]:
                A(f"s_lshl_b32 s{S_T0}, s{S_J}, 7"); A(f"s_lshl_b32 s{S_T1}, s{S_WV}, 17"); A(f"s_add_u32 s{S_T0}, s{S_T0}, s{S_T1}")
                srd_off(A, S_WO, P_WO, P_WO+1, f"s{S_T0}", 512*1024)
            else: emit_items(A, [it])
        self.nleft = len(self.leftover)
        txt = A.l
        for i in range(N_IN - NSL):
            rd = [n for n, x in enumerate(txt) if n > self.loop_start and "ds_read_b64_tr_b16 a[%d:" % (8*i+6) in x]
            if not rd: continue
            pos_r = rd[-1]; pos_d = A.pos[f"w2_{i+NSL}_0"]
            assert pos_d > pos_r and any("lgkmcnt(0)" in x for x in txt[pos_r:pos_d]), ("no lgkm wait", i)

    def flag_addr(self, slot_imm):
        A = self.A
        FA, ONE = VT+4, VT+5
        A(f"v_mov_b32 v{ONE}, 1")
        A(f"s_lshl_b32 s{S_T0}, s{S_T}, 1"); A(f"s_add_u32 s{S_T0}, s{S_T0}, s{S_WM}"); A(f"s_lshl_b32 s{S_T0}, s{S_T0}, 2")
        A(f"s_lshr_b32 s{S_T1}, s{S_IDX}, 1"); A(f"s_add_u32 s{S_T0}, s{S_T0}, s{S_T1}"); A(f"s_lshl_b32 s{S_T0}, s{S_T0}, 4")
        A(f"s_lshl_b32 s{S_T1}, s{S_I1}, 1"); A(f"s_add_u32 s{S_T0}, s{S_T0}, s{S_T1}"); A(f"s_add_u32 s{S_T0}, s{S_T0}, s{S_WN}")
        A(f"s_add_u32 s{S_T0}, s{S_T0}, {slot_imm}"); A(f"s_lshl_b32 s{S_T0}, s{S_T0}, 2"); A(f"s_add_u32 s{S_T0}, s{S_T0}, {WS_FLAG}")
        A(f"v_mov_b32 v{FA}, s{S_T0}")
        A(f"s_mov_b64 s[{S_E0}:{S_E0+1}], exec"); A("s_mov_b64 exec, 1")
    def flag_fire(self):
        A = self.A
        A.vm(f"global_store_dword v{VT+4}, v{VT+5}, s[{S_WSP}:{S_WSP+1}] sc1")
        A(f"s_mov_b64 exec, s[{S_E0}:{S_E0+1}]")
    def flag_store(self, slot_imm, FA, ONE):
        self.flag_addr(slot_imm); self.flag_fire()
    def early_flag_load(self):
        A = self.A
        A(f"s_lshl_b32 s{S_T0}, s{S_TAU}, 2"); A(f"s_add_u32 s{S_T0}, s{S_T0}, s{S_WV}"); A(f"s_lshl_b32 s{S_T0}, s{S_T0}, 6"); A(f"s_add_u32 s{S_T0}, s{S_T0}, {WS_FLAG}")
        A(f"v_lshlrev_b32 v32, 2, v{VLANE}"); A(f"v_add_u32 v32, s{S_T0}, v32")
        A("s_mov_b64 exec, 255"); A.vm(f"global_load_dword v33, v32, s[{S_WSP}:{S_WSP+1}] sc1", id="eflag"); A("s_mov_b64 exec, -1")

    def transition(self):
        A, typ, kinds = self.A, self.typ, self.kinds
        w2 = self.w2
        tt = VT
        state = {"D": N_IN, "R": N_IN}
        A.stamp(1, "tr")
        A("s_waitcnt lgkmcnt(0)")
        A("s_barrier")
        A(f"s_mul_i32 s{S_T0}, s{S_WV}, {NPOST*2048}"); A(f"s_add_u32 s{S_T0}, s{S_T0}, {W2POST}")
        A(f"s_sub_u32 s{S_T1}, s{S_T0}, s{S_LB}"); A(f"s_mov_b32 s{S_LB}, s{S_T0}")
        A(f"v_add_u32 v{VTR}, s{S_T1}, v{VTR}"); A(f"v_xor_b32 v{VTR1}, 64, v{VTR}")
        A(f"s_lshl_b32 s{S_T0}, s{S_J}, 7"); A(f"s_lshl_b32 s{S_T1}, s{S_WV}, 17"); A(f"s_add_u32 s{S_T0}, s{S_T0}, s{S_T1}")
        srd_off(A, S_WO, P_WO, P_WO+1, f"s{S_T0}", 512*1024)
        def bgD(n=1):
            for _ in range(n):
                i = state["D"]
                if i >= 36 or i - state["R"] >= NPOST: return
                emit_items(A, w2.D(i)); state["D"] += 1
        def bgR(n=1):
            for _ in range(n):
                i = state["R"]
                if i >= state["D"]: return
                if i >= 32 and not state.get("vfree"): return
                emit_items(A, w2.R(i)); state["R"] += 1
        def bgD_safe(n=1):
            A("s_waitcnt lgkmcnt(0)"); bgD(n)
        A(f"s_lshl_b32 s{S_T0}, s{S_T}, 1"); A(f"s_add_u32 s{S_T0}, s{S_T0}, s{S_WM}"); A(f"s_lshl_b32 s{S_T0}, s{S_T0}, 2")
        A(f"s_lshr_b32 s{S_T1}, s{S_IDX}, 1"); A(f"s_add_u32 s{S_T0}, s{S_T0}, s{S_T1}"); A(f"s_mul_i32 s{S_HB}, s{S_T0}, {36*2048}")
        A(f"s_and_b32 s{S_I1}, s{S_IDX}, 1")
        I1 = S_I1
        R2 = XF
        for tb in range(2):
            A(f"v_mul_f32 v{R2+2*tb}, v{VR+tb}, v{VR+tb}"); A(f"v_mul_f32 v{R2+2*tb+1}, v{VR+tb}, v{VR+tb}")
        PK = WF
        nst = 0
        gublks = [b for b, kd in enumerate(kinds) if kd in ("gu", "guh")]
        lasth = None
        for blk in gublks:
            kd = kinds[blk]
            if typ == "A":
                if blk == 0:
                    A(f"s_lshl_b32 s{S_T2}, s{I1}, 1"); A(f"s_add_u32 s{S_T2}, s{S_T2}, s{S_WN}"); A(f"s_lshl_b32 s{S_T2}, s{S_T2}, 13"); A(f"s_add_u32 s{S_T2}, s{S_T2}, s{S_HB}")
                else: A(f"s_add_u32 s{S_T2}, s{S_T2}, 2048")
            elif kd == "gu":
                if blk == 2:
                    A(f"s_lshl_b32 s{S_T2}, s{I1}, 2"); A(f"s_lshl_b32 s{S_T3}, s{S_WN}, 1"); A(f"s_add_u32 s{S_T2}, s{S_T2}, s{S_T3}"); A(f"s_add_u32 s{S_T2}, s{S_T2}, 16")
                    A(f"s_lshl_b32 s{S_T2}, s{S_T2}, 11"); A(f"s_add_u32 s{S_T2}, s{S_T2}, s{S_HB}")
                else: A(f"s_add_u32 s{S_T2}, s{S_T2}, 2048")
            else:
                A(f"s_lshl_b32 s{S_T2}, s{I1}, 1"); A(f"s_add_u32 s{S_T2}, s{S_T2}, s{S_WN}"); A(f"s_add_u32 s{S_T2}, s{S_T2}, 24")
                A(f"s_lshl_b32 s{S_T2}, s{S_T2}, 11"); A(f"s_add_u32 s{S_T2}, s{S_T2}, s{S_HB}")
            for tb in range(2):
                a = acc(blk, tb); pk = PK + 4*(nst % 4); nst += 1
                for i in range(4): A(f"v_pk_mul_f32 v[{a+2*i}:{a+2*i+1}], v[{a+2*i}:{a+2*i+1}], v[{a+8+2*i}:{a+8+2*i+1}]")
                for i in range(4): A(f"v_pk_mul_f32 v[{a+2*i}:{a+2*i+1}], v[{a+2*i}:{a+2*i+1}], v[{R2+2*tb}:{R2+2*tb+1}]")
                for i in range(4): A(f"v_cvt_pk_bf16_f32 v{pk+i}, v{a+2*i}, v{a+2*i+1}")
                lasth = f"hs_{blk}_{tb}"
                A.vm(f"buffer_store_dwordx4 v[{pk}:{pk+3}], v{VL16}, s[{S_H}:{S_H+3}], s{S_T2} offen offset:{tb*1024} sc1", id=lasth)
        assert (not LATE_R) or 36 - N_IN <= NPOST
        A.stamp(5); A.stamp(2, "tr")
        FA, ONE = VT+4, VT+5
        A(f"s_mov_b32 s{S_C6}, 0x358637bd"); A(f"s_mov_b32 s{S_C6+1}, 0x358637bd")
        C6 = f"s[{S_C6}:{S_C6+1}]"
        if typ == "A":
            A(f"s_lshl_b32 s{S_T2}, s{I1}, 2"); A(f"s_lshl_b32 s{S_T3}, s{S_WN}, 1"); A(f"s_add_u32 s{S_T2}, s{S_T2}, s{S_T3}"); A(f"s_add_u32 s{S_T2}, s{S_T2}, 28")
            A(f"s_lshl_b32 s{S_T2}, s{S_T2}, 11"); A(f"s_add_u32 s{S_T4}, s{S_T2}, s{S_HB}"); A(f"s_add_u32 s{S_XO}, s{S_T4}, 2048")
            A(f"s_mov_b32 s22, s{S_T4}"); A(f"s_mov_b32 s23, s{S_XO}")
            RP = XF + 4; RLP = XF + 6
            for tb in range(2):
                a = acc(4, tb)
                A(f"v_mov_b32 v{RP}, v{VR+tb}"); A(f"v_mov_b32 v{RP+1}, v{VR+tb}")
                A(f"v_mul_f32 v{RLP}, 0x3fb8aa3b, v{VR+tb}"); A(f"v_mul_f32 v{RLP+1}, 0x3fb8aa3b, v{VR+tb}")
                for i in range(0, 16, 4):
                    for j in (0, 2): A(f"v_pk_mul_f32 v[{tt+j}:{tt+j+1}], v[{a+i+j}:{a+i+j+1}], v[{RLP}:{RLP+1}]")
                    for j in (0, 2): A(f"v_pk_fma_f32 v[{a+i+j}:{a+i+j+1}], v[{a+i+j}:{a+i+j+1}], v[{RP}:{RP+1}], {C6}")
                    for j in range(4): A(f"v_exp_f32_e64 v{tt+j}, v{tt+j} clamp")
                    for j in range(4): A(f"v_max_f32 v{a+i+j}, s{S_C6}, v{a+i+j}")
                    for j in (0, 2): A(f"v_pk_add_f32 v[{a+i+j}:{a+i+j+1}], v[{a+i+j}:{a+i+j+1}], v[{tt+j}:{tt+j+1}]")
                    if PHI_D: bgD(1)
                if tb == 0 and FLAG_TB_A == 0:
                    A.stamp(3, "tr"); self.flag_addr(0); A.wait(lasth); self.flag_fire(); A.stamp(4, "tr")
                    if LATE_R == 1: bgD(36 - N_IN)
                if FASTG2 and tb == 1: self.early_flag_load()
                for hs in range(2):
                    pk = (128 + 4*(2*tb + hs)) if (DEFER or PQ_LATE) else PK + 4*(nst % 4); nst += 1
                    for i in range(4): A(f"v_cvt_pk_bf16_f32 v{pk+i}, v{a+8*hs+2*i}, v{a+8*hs+2*i+1}")
                    if not (DEFER or PQ_LATE): A.vm(f"buffer_store_dwordx4 v[{pk}:{pk+3}], v{VL16}, s[{S_H}:{S_H+3}], s{S_XO if hs else S_T4} offen offset:{tb*1024} sc1", id=f"pq_{tb}_{hs}")
            if FLAG_TB_A == 1:
                A.stamp(3, "tr"); self.flag_addr(0); A.wait(lasth); self.flag_fire(); A.stamp(4, "tr")
            if PQ_LATE and not DEFER:
                for tb in range(2):
                    for hs in range(2):
                        pk = 128 + 4*(2*tb + hs)
                        A.vm(f"buffer_store_dwordx4 v[{pk}:{pk+3}], v{VL16}, s[{S_H}:{S_H+3}], s{23 if hs else 22} offen offset:{tb*1024} sc1")
            bgD(11)
            state["vfree"] = True
            A.stamp(5, "tr")
        else:
            RR = WF; RL = WF + 16; TK = WF + 32; TV = VT + 6
            ONES = XF + 4
            for i in range(4): A(f"v_mov_b32 v{ONES+i}, 0x3f803f80")
            A(f"v_lshrrev_b32 v{tt}, 5, v{VLANE}"); A(f"v_lshlrev_b32 v{tt}, 4, v{tt}")
            A(f"s_lshl_b32 s{S_T0}, s{S_WM}, 8"); A(f"s_add_u32 s{S_T0}, s{S_T0}, {LDS_R}"); A(f"v_add_u32 v{XF+9}, s{S_T0}, v{tt}")
            D2, DZ = acc(2,0), acc(2,1)
            for tb in range(2):
                for q4 in range(4): A(f"ds_read_b128 v[{RR+4*q4}:{RR+4*q4+3}], v{XF+9} offset:{tb*128 + q4*32}")
                A("s_waitcnt lgkmcnt(0)")
                A(f"s_mov_b32 s{S_T0}, 0x3fb8aa3b"); A(f"s_mov_b32 s{S_T1}, 0x3fb8aa3b")
                for i in range(8): A(f"v_pk_mul_f32 v[{RL+2*i}:{RL+2*i+1}], v[{RR+2*i}:{RR+2*i+1}], s[{S_T0}:{S_T1}]")
                a = acc(0, tb); av = acc(1, tb)
                for i in range(0, 16, 4):
                    for j in (0, 2): A(f"v_pk_mul_f32 v[{tt+j}:{tt+j+1}], v[{a+i+j}:{a+i+j+1}], v[{RL+i+j}:{RL+i+j+1}]")
                    for j in (0, 2): A(f"v_pk_fma_f32 v[{a+i+j}:{a+i+j+1}], v[{a+i+j}:{a+i+j+1}], v[{RR+i+j}:{RR+i+j+1}], {C6}")
                    for j in range(4): A(f"v_exp_f32_e64 v{tt+j}, v{tt+j} clamp")
                    for j in range(4): A(f"v_max_f32 v{a+i+j}, s{S_C6}, v{a+i+j}")
                    for j in (0, 2): A(f"v_pk_add_f32 v[{a+i+j}:{a+i+j+1}], v[{a+i+j}:{a+i+j+1}], v[{tt+j}:{tt+j+1}]")
                    if PHI_D: bgD(1)
                for i in range(8): A(f"v_pk_mul_f32 v[{av+2*i}:{av+2*i+1}], v[{av+2*i}:{av+2*i+1}], v[{RR+2*i}:{RR+2*i+1}]")
                for i in range(8): A(f"v_cvt_pk_bf16_f32 v{TK+i}, v{a+2*i}, v{a+2*i+1}")
                for i in range(8): A(f"v_cvt_pk_bf16_f32 v{TV+i}, v{av+2*i}, v{av+2*i+1}")
                A("s_nop 1")
                for f in range(2):
                    c = "0" if (tb == 0 and f == 0) else None
                    A(f"v_mfma_f32_32x32x16_bf16 v[{D2}:{D2+15}], v[{TK+4*f}:{TK+4*f+3}], v[{TV+4*f}:{TV+4*f+3}], {c or f'v[{D2}:{D2+15}]'}")
                    A(f"v_mfma_f32_32x32x16_bf16 v[{DZ}:{DZ+15}], v[{TK+4*f}:{TK+4*f+3}], v[{ONES}:{ONES+3}], {c or f'v[{DZ}:{DZ+15}]'}")
                if tb == FLAG_TB:
                    A.stamp(3, "tr"); self.flag_addr(4); A.wait(lasth); self.flag_fire(); A.stamp(4, "tr")
                    if LATE_R == 1 and B_EARLY_D: bgD(36 - N_IN)
            if PHI_D: bgD(3)
            A(f"v_and_b32 v{tt}, 31, v{VLANE}"); A(f"v_cmp_gt_u32 vcc, 16, v{tt}")
            A(f"s_lshl_b32 s{S_T0}, s{S_WM}, 13"); A(f"s_lshl_b32 s{S_T1}, s{S_WN}, 12"); A(f"s_add_u32 s{S_T0}, s{S_T0}, s{S_T1}"); A(f"s_add_u32 s{S_T0}, s{S_T0}, {LDS_KV}")
            A(f"v_lshlrev_b32 v{tt}, 2, v{VLANE}"); A(f"v_add_u32 v{tt}, s{S_T0}, v{tt}")
            A("s_nop 7"); A("s_nop 3")
            for r_ in range(16):
                if r_ < 8: A(f"v_cndmask_b32 v{D2+r_}, v{DZ+r_}, v{D2+r_}, vcc")
                else: A(f"v_cndmask_b32 v{D2+r_}, v{D2+r_}, v{DZ+r_}, vcc")
            for r_ in range(16): A(f"ds_write_b32 v{tt}, v{D2+r_} offset:{r_*256}")
            A("s_waitcnt lgkmcnt(0)"); A("s_barrier")
            A(f"s_lshr_b32 s{S_T0}, s{S_WV}, 1"); A(f"s_lshl_b32 s{S_T0}, s{S_T0}, 12"); A(f"s_add_u32 s{S_T0}, s{S_T0}, {LDS_KV}")
            A(f"s_and_b32 s{S_T2}, s{S_WV}, 1")
            A(f"s_mul_i32 s{S_T3}, s{S_T2}, {8*256}"); A(f"s_add_u32 s{S_T0}, s{S_T0}, s{S_T3}")
            A(f"s_lshl_b32 s{S_T3}, s{S_T2}, 6")
            A(f"s_lshl_b32 s{S_T1}, s{S_IDX}, 2"); A(f"s_add_u32 s{S_T1}, s{S_T1}, s{S_WV}")
            A(f"s_mul_i32 s{S_T1}, s{S_T1}, {KV_HEAD}"); A(f"s_add_u32 s{S_T1}, s{S_T1}, {WS_KV}")
            A(f"v_and_b32 v{tt}, 7, v{VLANE}"); A(f"v_lshlrev_b32 v{tt}, 8, v{tt}"); A(f"v_add_u32 v{tt}, s{S_T0}, v{tt}")
            A(f"v_lshrrev_b32 v{tt+1}, 3, v{VLANE}"); A(f"v_lshlrev_b32 v{tt+1}, 2, v{tt+1}")
            A(f"v_add_u32 v{tt+2}, v{tt}, v{tt+1}"); A(f"v_add_u32 v{tt+2}, s{S_T3}, v{tt+2}")
            B0 = ACC
            for n in range(4):
                off = (32*(n>>1) + 8*(n&1))*4
                A(f"ds_read_b32 v{B0+2*n}, v{tt+2} offset:{off}"); A(f"ds_read_b32 v{B0+2*n+1}, v{tt+2} offset:{off+8192}")
            A(f"s_sub_u32 s{S_T3}, 64, s{S_T3}")
            A(f"v_lshlrev_b32 v{tt+3}, 5, v{tt+1}"); A(f"v_add_u32 v{tt+3}, v{tt+3}, v{tt}"); A(f"v_add_u32 v{tt+3}, s{S_T3}, v{tt+3}")
            A(f"v_cmp_gt_u32 vcc, 16, v{VLANE}"); A(f"s_and_saveexec_b64 s[{S_E0}:{S_E0+1}], vcc")
            A(f"ds_read_b32 v{B0+8}, v{tt+3}"); A(f"ds_read_b32 v{B0+9}, v{tt+3} offset:8192")
            A(f"s_mov_b64 exec, s[{S_E0}:{S_E0+1}]")
            A(f"v_lshlrev_b32 v{tt+2}, 2, v{VLANE}"); A(f"v_add_u32 v{tt+2}, s{S_T1}, v{tt+2}")
            A("s_waitcnt lgkmcnt(0)")
            if DEFER:
                for n in range(5): A(f"v_add_f32 v{128+n}, v{B0+2*n}, v{B0+2*n+1}")
                A(f"v_mov_b32 v133, v{tt+2}")
            else:
                if FASTG2:
                    A(f"s_mov_b32 s{S_XO}, s{S_T1}")
                    self.early_flag_load()
                for n in range(4):
                    A(f"v_add_f32 v{B0+2*n}, v{B0+2*n}, v{B0+2*n+1}")
                    A.vm(f"global_atomic_add_f32 v{tt+2}, v{B0+2*n}, s[{S_WSP}:{S_WSP+1}] offset:{n*256}")
                A(f"v_add_f32 v{B0+8}, v{B0+8}, v{B0+9}")
                A(f"s_and_saveexec_b64 s[{S_E0}:{S_E0+1}], vcc")
                A.vm(f"global_atomic_add_f32 v{tt+2}, v{B0+8}, s[{S_WSP}:{S_WSP+1}] offset:1024", id="kvat")
                A(f"s_mov_b64 exec, s[{S_E0}:{S_E0+1}]")
            bgD(11)
            state["vfree"] = True
            A.stamp(5, "tr")
        if FASTG2: A.wait("eflag")
        A.stamp(6); A.stamp(6, "tr")
        if not LATE_R:
            while state["R"] < 36:
                bgR(3); bgD_safe(3)
            A("s_waitcnt lgkmcnt(0)")

class G2:
    ACC2 = 0; HB = 64; NH = 32; W2V = 192
    def __init__(self, A): self.A = A; self.w2 = W2(A)
    def poll(self, label, vaddr, nl, expect=None, novm=False):
        A = self.A; T = VT
        A(f"s_mov_b32 s{S_T3}, 0")
        A(f"s_mov_b64 s[{S_E0}:{S_E0+1}], exec"); A(f"s_mov_b64 exec, {(1<<nl)-1}")
        A.label(label)
        if novm: A.l.append(f"  global_load_dword v{T+9}, v{vaddr}, s[{S_WSP}:{S_WSP+1}] sc1")
        else: A.vm(f"global_load_dword v{T+9}, v{vaddr}, s[{S_WSP}:{S_WSP+1}] sc1")
        A("s_waitcnt vmcnt(0)")
        if expect is None: A(f"v_cmp_ne_u32 vcc, 0, v{T+9}")
        else: A(f"v_cmp_le_u32 vcc, {expect}, v{T+9}")
        A(f"s_add_u32 s{S_T3}, s{S_T3}, 1")
        A(f"s_cmp_ge_u32 s{S_T3}, {POLL_MAX}"); A(f"s_cbranch_scc1 {label}_x")
        A(f"s_cmp_eq_u64 vcc, exec"); A(f"s_cbranch_scc1 {label}_x")
        A("s_sleep 1"); A(f"s_branch {label}")
        A.label(label + "_x")
        A(f"s_mov_b64 exec, s[{S_E0}:{S_E0+1}]")
    def check(self, label, vreg, nl, expect=None):
        pass
    def body(self):
        A = self.A; T = VT; VL = VLANE
        ACC2 = 0; HB = 64; NH = 16; KVR0 = 128
        A.reset_vm()
        VFL, VKV, VCN = T+10, T+11, T+12
        VF1, VF2 = T+8, T+9
        srd(A, S_O, P_O, P_O+1, 2048*1024)
        srd(A, S_XX, P_X, P_X+1, 2048*1024)
        A(f"s_lshl_b32 s{S_HO}, s{S_TAU}, 2"); A(f"s_add_u32 s{S_HO}, s{S_HO}, s{S_WV}")
        A(f"s_lshl_b32 s{S_T0}, s{S_HO}, 6"); A(f"s_add_u32 s{S_T0}, s{S_T0}, {WS_FLAG}")
        A(f"v_lshlrev_b32 v{VFL}, 2, v{VL}"); A(f"v_add_u32 v{VFL}, s{S_T0}, v{VFL}")
        A(f"s_mul_i32 s{S_HO}, s{S_HO}, {36*2048}")
        A(f"s_add_u32 s{S_T4}, s{S_HO}, {56*1024}")
        A(f"s_mov_b32 s{S_HBASE}, s{S_HO}"); A(f"s_lshl_b32 s{S_HR}, s{S_RHO}, 11")
        A(f"v_and_b32 v{T}, 31, v{VL}"); A(f"v_lshrrev_b32 v{T+1}, 5, v{VL}")
        A(f"v_lshlrev_b32 v{T+2}, 4, v{T+1}"); A(f"v_add_u32 v{T+2}, v{T+2}, v{T}"); A(f"v_subrev_u32 v{T+2}, 16, v{T+2}"); A(f"v_lshlrev_b32 v{T+2}, 5, v{T+2}")
        A(f"v_lshlrev_b32 v{T+3}, 5, v{T+1}"); A(f"v_add_u32 v{T+3}, 1024, v{T+3}")
        A(f"v_cmp_gt_u32 vcc, 16, v{T}"); A("s_nop 1"); A(f"v_cndmask_b32 v{T+2}, v{T+2}, v{T+3}, vcc")
        A(f"s_lshl_b32 s{S_T0}, s{S_WV}, 3"); A(f"s_mul_i32 s{S_T0}, s{S_T0}, {KV_HEAD}"); A(f"s_add_u32 s{S_T0}, s{S_T0}, {WS_KV}")
        A(f"v_add_u32 v{VKV}, s{S_T0}, v{T+2}")
        A(f"s_lshl_b32 s{S_T0}, s{S_WV}, 9"); A(f"s_add_u32 s{S_T0}, s{S_T0}, {WS_KVCNT}")
        A(f"v_lshlrev_b32 v{VCN}, 6, v{VL}"); A(f"v_add_u32 v{VCN}, s{S_T0}, v{VCN}")
        A("s_barrier")
        def signal_block(sfx=''):
            A(f"s_cmp_ge_u32 s{S_CP}, 2"); A(f"s_cbranch_scc1 K12_sigB{sfx}")
            A(f"s_lshl_b32 s{S_T0}, s{S_T}, 1"); A(f"s_add_u32 s{S_T0}, s{S_T0}, s{S_WM}"); A(f"s_lshl_b32 s{S_T0}, s{S_T0}, 2")
            A(f"s_lshr_b32 s{S_T1}, s{S_IDX}, 1"); A(f"s_add_u32 s{S_T0}, s{S_T0}, s{S_T1}"); A(f"s_lshl_b32 s{S_T0}, s{S_T0}, 4")
            A(f"s_lshl_b32 s{S_T1}, s{S_I1}, 1"); A(f"s_add_u32 s{S_T0}, s{S_T0}, s{S_T1}"); A(f"s_add_u32 s{S_T0}, s{S_T0}, s{S_WN}")
            A(f"s_add_u32 s{S_T0}, s{S_T0}, 8"); A(f"s_lshl_b32 s{S_T0}, s{S_T0}, 2"); A(f"s_add_u32 s{S_T0}, s{S_T0}, {WS_FLAG}")
            A(f"v_mov_b32 v{T+4}, s{S_T0}"); A(f"v_mov_b32 v{T+5}, 1")
            A(f"s_mov_b64 s[{S_E0}:{S_E0+1}], exec"); A("s_mov_b64 exec, 1")
            A(f"!global_store_dword v{T+4}, v{T+5}, s[{S_WSP}:{S_WSP+1}] sc1")
            A(f"s_mov_b64 exec, s[{S_E0}:{S_E0+1}]"); A(f"s_branch K12_sigX{sfx}")
            A(f"K12_sigB{sfx}:")
            A(f"s_lshl_b32 s{S_T0}, s{S_IDX}, 2"); A(f"s_add_u32 s{S_T0}, s{S_T0}, s{S_WV}"); A(f"s_lshl_b32 s{S_T0}, s{S_T0}, 6"); A(f"s_add_u32 s{S_T0}, s{S_T0}, {WS_KVCNT}")
            A(f"v_mov_b32 v{T+4}, s{S_T0}"); A(f"v_mov_b32 v{T+5}, 1")
            A(f"s_mov_b64 s[{S_E0}:{S_E0+1}], exec"); A("s_mov_b64 exec, 1")
            A(f"!global_atomic_add v{T+4}, v{T+5}, s[{S_WSP}:{S_WSP+1}] sc1")
            A(f"s_mov_b64 exec, s[{S_E0}:{S_E0+1}]")
            A(f"K12_sigX{sfx}:")
        if FASTG2:
            A("s_mov_b64 exec, 255"); A(f"v_cmp_ne_u32 vcc, 0, v33"); A("s_nop 3"); A("s_cmp_eq_u64 vcc, exec"); A("s_mov_b64 exec, -1")
            A(f"s_cselect_b32 s{S_XO}, 1, 0")
            A("s_cbranch_scc1 K12_hok")
            A("s_waitcnt vmcnt(0)")
            signal_block()
        elif not DEFER:
            if EARLY_POLL:
                A("s_mov_b64 exec, 255"); A.vm(f"global_load_dword v{T+9}, v{VFL}, s[{S_WSP}:{S_WSP+1}] sc1"); A("s_mov_b64 exec, -1")
            A("s_waitcnt vmcnt(0)")
            signal_block()
        if OUT_TOUCH:
            A(f"s_lshl_b32 s{S_T0}, s{S_TAU}, 16"); A(f"s_lshl_b32 s{S_T1}, s{S_J}, 7"); A(f"s_add_u32 s{S_T0}, s{S_T0}, s{S_T1}"); A(f"v_mov_b32 v{T+6}, s{S_T0}")
            A("s_mov_b64 exec, 1"); A.vm(f"global_load_dword v{T+7}, v{T+6}, s[{P_O}:{P_O+1}]"); A("s_mov_b64 exec, -1")
        A.stamp(7); A.stamp(7, "tr")
        if EARLY_POLL and not DEFER and not FASTG2:
            A("s_mov_b64 exec, 255"); A(f"v_cmp_ne_u32 vcc, 0, v{T+9}"); A("s_nop 3"); A("s_cmp_eq_u64 vcc, exec"); A("s_mov_b64 exec, -1")
            A("s_cbranch_scc1 K12_hok")
        self.poll("K12_pollH", VFL, 8)
        A("K12_hok:")
        A.stamp(8, "tr")
        A.stamp(8); A.stamp(1, "g2")
        hstate = {"off": 0}
        def h_items(f):
            o = []
            hb = HB + 4*(f % NH)
            if f % 2 == 0: o.append(f"s_add_u32 s{S_HO}, s{S_HBASE}, s{S_HR}")
            o.append(("vm", f"h{f}", f"buffer_load_dwordx4 v[{hb}:{hb+3}], v{VL16}, s[{S_H}:{S_H+3}], s{S_HO} offen offset:{(f%2)*1024} sc1"))
            if f % 2 == 1 and f < 55:
                o += [f"s_add_u32 s{S_HR}, s{S_HR}, 2048", f"s_cmp_eq_u32 s{S_HR}, {28*2048}", f"s_cselect_b32 s{S_HR}, 0, s{S_HR}"]
            return o
        def pq_items(g):
            return [f"s_add_u32 s{S_HO}, s{S_T4}, {(g//4)*4096}",
                    ("vm", f"pq{g}", f"buffer_load_dwordx4 a[{4*g}:{4*g+3}], v{VL16}, s[{S_H}:{S_H+3}], s{S_HO} offen offset:{(g%4)*1024} sc1")]
        def kv_items(h):
            b = KVR0 + 8*h
            pre = [f"s_mov_b64 exec, s[{S_C6}:{S_C6+1}]"] if KVMASK else []
            post = ["s_mov_b64 exec, -1"] if KVMASK else []
            return pre + [("vm", None, f"global_load_dwordx4 v[{b}:{b+3}], v{VKV}, s[{S_WSP}:{S_WSP+1}] sc1"),
                    ("vm", f"kv{h}", f"global_load_dwordx4 v[{b+4}:{b+7}], v{VKV}, s[{S_WSP}:{S_WSP+1}] offset:16 sc1")] + post + [
                    f"v_add_u32 v{VKV}, {KV_HEAD}, v{VKV}"]
        if KVMASK:
            A(f"s_mov_b32 s{S_C6}, 0xffff0011"); A(f"s_mov_b32 s{S_C6+1}, 0xffff0011")
        AHEAD = G2_AHEAD
        KVB = [KVR0 + 8*h for h in range(8)]
        DO = [224 - 32, 224 - 16]
        DO = [T - 16 - 16 + 0, 0]
        DO = [208, 224]
        DO = [HB + 32, HB + 48]
        OF = [T, T+4]
        loads = [("h", f) for f in range(56)]
        if TBM:
            for h in range(8): loads += [("kv", h), ("pq", 2*h)]
            for h in range(8): loads += [("pq", 2*h+1)]
        else:
            for h in range(8): loads += [("kv", h), ("pq", 2*h), ("pq", 2*h+1)]
        CHK = G2_CHK
        li = {"n": 0}
        def issue(n):
            o = []
            for _ in range(n):
                if li["n"] >= len(loads): break
                k, x = loads[li["n"]]; li["n"] += 1
                o.append(h_items(x) if k == "h" else (kv_items(x) if k == "kv" else pq_items(x)))
            return o
        A(f"s_mul_i32 s{S_T0}, s{S_J}, {7*1024}"); A(f"s_add_u32 s{S_T0}, s{S_T0}, s{S_HO}")
        for x in issue(4):
            for y in x: A(y)
        if G2_PF:
            for k in range(7):
                if k == 4: A(f"s_add_u32 s{S_T0}, s{S_T0}, 4096")
                A.vm(f"buffer_load_dwordx4 v[{T}:{T+3}], v{VL16}, s[{S_H}:{S_H+3}], s{S_T0} offen offset:{(k%4)*1024} sc1")
        for x in issue(AHEAD - 4):
            for y in x: A(y)
        if DEFER:
            A(f"s_cmp_ge_u32 s{S_CP}, 2"); A("s_cbranch_scc1 K12_defB")
            for tb in range(2):
                for hs in range(2):
                    pk = 128 + 4*(2*tb + hs)
                    A(f"!buffer_store_dwordx4 v[{pk}:{pk+3}], v{VL16}, s[{S_H}:{S_H+3}], s{23 if hs else 22} offen offset:{tb*1024} sc1")
            A(f"v_mov_b32 v{T+6}, 24576"); A("s_mov_b64 exec, 1")
            A(f"!global_load_dword v{T+7}, v{T+6}, s[{S_WSP}:{S_WSP+1}]")
            A("s_mov_b64 exec, -1"); A("s_branch K12_defX")
            A("K12_defB:")
            for n in range(4): A(f"!global_atomic_add_f32 v133, v{128+n}, s[{S_WSP}:{S_WSP+1}] offset:{n*256}")
            A("s_mov_b64 exec, 0xffff")
            A(f"!global_atomic_add_f32 v133, v132, s[{S_WSP}:{S_WSP+1}] offset:1024")
            A("s_mov_b64 exec, -1")
            A("K12_defX:")
            A.nvm += 5; A.ids["defer"] = A.nvm
        A.stamp(2, "g2")
        for i in range(28):
            if LATE_R and i == N_IN: A("s_waitcnt lgkmcnt(0)")
            A.wait(f"h{2*i+1}")
            if FASTG2 and i == 0:
                A(f"s_cmp_eq_u32 s{S_XO}, 0"); A("s_cbranch_scc1 K12_sigdone")
                signal_block("2")
                A("K12_sigdone:")
            if DEFER and i == S_SIG:
                assert A.ids[f"h{2*i+1}"] > A.ids["defer"]
                signal_block()
            if i == 1: A.stamp(3, "g2")
            gaps = [[] for _ in range(4)]
            if i == CHK - 5:
                gaps[0] += [f"v_add_u32 v{VFL}, 32, v{VFL}", f"s_mov_b64 s[{S_E0}:{S_E0+1}], exec", "s_mov_b64 exec, 15",
                            ("vm", "fq", f"global_load_dword v{VF1}, v{VFL}, s[{S_WSP}:{S_WSP+1}] sc1"), "s_mov_b64 exec, 255",
                            ("vm", "fkv", f"global_load_dword v{VF2}, v{VCN}, s[{S_WSP}:{S_WSP+1}] sc1"), f"s_mov_b64 exec, s[{S_E0}:{S_E0+1}]"]
            if LATE_R and i >= 2 and N_IN + (i - 2) < 36:
                rr = self.w2.R(N_IN + (i - 2))[1:]
                gaps[0] += rr[0]; gaps[3] += rr[1]
            n = 2
            if li["n"] + n > 56 and i < CHK: n = max(0, 56 - li["n"])
            for k, x in enumerate(issue(n)): gaps[1+k] += x
            mf = []
            for tb in range(2):
                hb = HB + 4*((2*i+tb) % NH)
                for nb in range(2):
                    a = ACC2 + 16*(2*nb+tb)
                    c = "0" if i == 0 else f"v[{a}:{a+15}]"
                    mf.append(f"v_mfma_f32_32x32x16_bf16 v[{a}:{a+15}], {self.w2.frag(i,nb)}, v[{hb}:{hb+3}], {c}")
            for g in range(4):
                A(mf[g])
                for x in gaps[g]: A(x)
            if i == CHK - 1:
                A.stamp(4, "g2")
                A.wait("fkv")
                A(f"s_mov_b64 s[{S_E0}:{S_E0+1}], exec"); A("s_mov_b64 exec, 15")
                A(f"v_cmp_ne_u32 vcc, 0, v{VF1}"); A("s_nop 3"); A("s_cmp_eq_u64 vcc, exec"); A(f"s_mov_b64 exec, s[{S_E0}:{S_E0+1}]")
                A("s_cbranch_scc1 K12_qok")
                self.poll("K12_pollQ", VFL, 4, novm=True)
                A.label("K12_qok")
                A(f"s_mov_b64 s[{S_E0}:{S_E0+1}], exec"); A("s_mov_b64 exec, 255")
                A(f"v_cmp_le_u32 vcc, 16, v{VF2}"); A("s_nop 3"); A("s_cmp_eq_u64 vcc, exec"); A(f"s_mov_b64 exec, s[{S_E0}:{S_E0+1}]")
                A("s_cbranch_scc1 K12_kvok")
                self.poll("K12_pollKV", VCN, 8, expect=16, novm=True)
                A.label("K12_kvok")
                A.stamp(5, "g2")
        A.stamp(6, "g2"); A.stamp(1, "att")
        A(f"v_lshrrev_b32 v{T+8}, 3, v{VTID}"); A(f"v_and_b32 v{T+9}, 7, v{VTID}")
        A(f"s_lshl_b32 s{S_T0}, s{S_TAU}, 16"); A(f"s_lshl_b32 s{S_T2}, s{S_J}, 7"); A(f"s_add_u32 s{S_T0}, s{S_T0}, s{S_T2}")
        VG = VFL
        A(f"v_lshlrev_b32 v{VG}, 10, v{T+8}"); A(f"v_lshlrev_b32 v{VCN}, 4, v{T+9}"); A(f"v_add_u32 v{VG}, v{VG}, v{VCN}")
        A(f"s_add_u32 s{S_T2}, s{S_T0}, {32*1024}")
        XR = HB
        A(f"s_mov_b32 s{S_T1}, 0x358637bd")
        A("s_waitcnt lgkmcnt(0)")
        units = [(h, tb) for tb in range(2) for h in range(8)] if TBM else [(h, tb) for h in range(8) for tb in range(2)]
        RS = 272; WSZ = 64*RS; VW = VCN
        A(f"v_and_b32 v{VW}, 31, v{VL}"); A(f"v_mul_u32_u24 v{VW}, {RS}, v{VW}"); A(f"v_lshrrev_b32 v{T+9}, 5, v{VL}"); A(f"v_lshlrev_b32 v{T+9}, 4, v{T+9}"); A(f"v_add_u32 v{VW}, v{VW}, v{T+9}")
        A(f"s_mul_i32 s{S_T3}, s{S_WV}, {WSZ}"); A(f"v_add_u32 v{VW}, s{S_T3}, v{VW}")
        def wr(tb, k):
            nb, q = k // 4, k % 4; a = ACC2 + 16*(2*nb+tb)
            return f"ds_write_b128 v{VW}, v[{a+4*q}:{a+4*q+3}] offset:{tb*32*RS + nb*128 + q*32}"
        def stA(u):
            h, tb = units[u]; d = DO[u & 1]
            o = []
            if tb == 0:
                o.append(("wait", [f"kv{h}", f"pq{2*h}"]))
                o += [f"v_cvt_pk_bf16_f32 v{KVB[h]+e}, v{KVR0+8*h+2*e}, v{KVR0+8*h+2*e+1}" for e in range(4)]
                o.append("s_nop 1")
            else: o.append(("wait", [f"pq{2*h+1}"]))
            o.append(f"v_mfma_f32_32x32x16_bf16 v[{d}:{d+15}], v[{KVB[h]}:{KVB[h]+3}], {ar(4*(2*h+tb), 4)}, 0")
            return o
        def stB(u):
            d = DO[u & 1]; o = OF[u & 1]; rc = T + 8
            l = [f"v_add_f32 v{rc}, s{S_T1}, v{d}", f"v_rcp_f32 v{rc}, v{rc}", "s_nop 0"]
            l += [f"v_mul_f32 v{d+8+e}, v{rc}, v{d+8+e}" for e in range(8)]
            l += [f"v_cvt_pk_bf16_f32 v{o+e}, v{d+8+2*e}, v{d+8+2*e+1}" for e in range(4)]
            return l
        def stC(u):
            h, tb = units[u]; o = OF[u & 1]; i = 28 + h
            return [f"v_mfma_f32_32x32x16_bf16 v[{ACC2+16*(2*nb+tb)}:{ACC2+16*(2*nb+tb)+15}], {self.w2.frag(i,nb)}, v[{o}:{o+3}], v[{ACC2+16*(2*nb+tb)}:{ACC2+16*(2*nb+tb)+15}]" for nb in range(2)]
        for x in stA(0): A(x)
        A.stamp(2, "att")
        for x in issue(1):
            for y in x: A(y)
        for x in stA(1): A(x)
        for x in issue(2):
            for y in x: A(y)
        A("s_nop 7"); A("s_nop 3")
        for x in stB(0): A(x)
        xdone = False
        for u in range(16):
            c = stC(u)
            nb_ = stB(u+1) if u + 1 < 16 else []
            if u in (2, 6, 10, 13): A.stamp({2:3, 6:4, 10:5, 13:6}[u], "att")
            A("s_nop 1"); A(c[0])
            for x in nb_[:5]: A(x)
            if u + 2 < 16:
                for x in stA(u+2): A(x)
            iss = issue(2)
            for x in iss:
                for y in x: A(y)
            if not iss and not xdone:
                A.vm(f"buffer_load_dwordx4 v[{XR}:{XR+3}], v{VG}, s[{S_XX}:{S_XX+3}], s{S_T0} offen", id="x0")
                A.vm(f"buffer_load_dwordx4 v[{XR+4}:{XR+7}], v{VG}, s[{S_XX}:{S_XX+3}], s{S_T2} offen", id="x1")
                xdone = True
            for x in nb_[5:10]: A(x)
            A(c[1])
            for x in nb_[10:]: A(x)
            if TBM and 9 <= u <= 12:
                A(wr(0, 2*(u-9))); A(wr(0, 2*(u-9)+1))
        assert xdone and li["n"] == len(loads)
        A.stamp(7, "g2"); A.stamp(7, "att")
        A(f"v_lshrrev_b32 v{T+2}, 3, v{VTID}"); A(f"v_and_b32 v{T+3}, 7, v{VTID}")
        A(f"v_mul_u32_u24 v{T+6}, {RS}, v{T+2}"); A(f"v_lshlrev_b32 v{T+7}, 5, v{T+3}"); A(f"v_add_u32 v{T+6}, v{T+6}, v{T+7}")
        if not TBM:
            A("s_nop 7")
            for k in range(8): A(wr(0, k))
        A("s_nop 7"); A("s_nop 1")
        for k in range(8): A(wr(1, k))
        A("s_waitcnt lgkmcnt(0)"); A("s_barrier")
        A.stamp(8, "g2"); A.stamp(8, "att")
        for ps in range(2):
            b = 72 + 40*ps
            for w in range(4):
                A(f"ds_read_b128 v[{b+8*w}:{b+8*w+3}], v{T+6} offset:{w*WSZ + ps*32*RS}")
                A(f"ds_read_b128 v[{b+8*w+4}:{b+8*w+7}], v{T+6} offset:{w*WSZ + ps*32*RS + 16}")
        for ps in range(2):
            b = 72 + 40*ps
            A(f"s_waitcnt lgkmcnt({8 if ps == 0 else 0})")
            for e in range(0, 8, 2):
                A(f"v_pk_add_f32 v[{b+e}:{b+e+1}], v[{b+e}:{b+e+1}], v[{b+8+e}:{b+8+e+1}]")
                A(f"v_pk_add_f32 v[{b+16+e}:{b+16+e+1}], v[{b+16+e}:{b+16+e+1}], v[{b+24+e}:{b+24+e+1}]")
            for e in range(0, 8, 2):
                A(f"v_pk_add_f32 v[{b+e}:{b+e+1}], v[{b+e}:{b+e+1}], v[{b+16+e}:{b+16+e+1}]")
            A.wait(f"x{ps}")
            xb = XR + 4*ps
            for e in range(4):
                A(f"v_lshlrev_b32 v{T+8}, 16, v{xb+e}"); A(f"v_and_b32 v{T+9}, 0xffff0000, v{xb+e}")
                A(f"v_pk_add_f32 v[{b+2*e}:{b+2*e+1}], v[{b+2*e}:{b+2*e+1}], v[{T+8}:{T+9}]")
                A(f"v_cvt_pk_bf16_f32 v{b+32+e}, v{b+2*e}, v{b+2*e+1}")
            A.vm(f"buffer_store_dwordx4 v[{b+32}:{b+35}], v{VG}, s[{S_O}:{S_O+3}], s{S_T0 if ps == 0 else S_T2} offen")

def gen_k12():
    A = Prog()
    prologue_common(A)
    A(f"s_cmp_ge_u32 s{S_CP}, 2"); A("s_cbranch_scc1 K12_typeB")
    base_nvm = A.nvm; base_ids = dict(A.ids)
    for typ in ("A", "B"):
        if typ == "B":
            A.label("K12_typeB"); A.nvm = base_nvm; A.ids = dict(base_ids)
        g = G1(A, typ)
        g.prologue()
        if STAMP and SMODE == "wait":
            for c in (1,2,3,4,5,6,7): A(f"s_mov_b32 s{SB+2*c}, 0")
            A(f"s_memtime s[{SB+8}:{SB+9}]"); A("s_waitcnt lgkmcnt(0)")
        A.inloop = True
        g.loop()
        A.inloop = False
        if STAMP and SMODE == "wait":
            A(f"s_memtime s[{SB+10}:{SB+11}]"); A("s_waitcnt lgkmcnt(0)"); A(f"s_sub_u32 s{SB+8}, s{SB+10}, s{SB+8}")
        print(f"type {typ}: leftover W2 items after loop: {g.nleft}", file=sys.stderr)
        A.stamp(4); A.stamp(8, "loop"); A.stamp(8, "init"); A.stamp(5, "init")
        g.transition()
        if typ == "A": A("s_branch K12_g2")
    A.label("K12_g2")
    G2(A).body()
    if STAMP:
        A("s_waitcnt vmcnt(0) lgkmcnt(0)")
        A(f"{STAMP_INS} s[60:61]")
        A("s_waitcnt lgkmcnt(0)")
        A(f"s_lshl_b32 s{S_T0}, s2, 2"); A(f"s_add_u32 s{S_T0}, s{S_T0}, s{S_WV}"); A(f"s_lshl_b32 s{S_T0}, s{S_T0}, 6")
        A(f"s_add_u32 s{S_T0}, s{S_T0}, {WS_STAMP + 65536}")
        A(f"v_mov_b32 v{VT}, s{S_T0}")
        for i in range(9):
            A(f"v_mov_b32 v{VT+1}, s{SB+2*i}")
            A.vm(f"global_store_dword v{VT}, v{VT+1}, s[{S_WSP}:{S_WSP+1}] offset:{4*i}")
        A(f"v_mov_b32 v{VT+1}, s60")
        A.vm(f"global_store_dword v{VT}, v{VT+1}, s[{S_WSP}:{S_WSP+1}] offset:36")
    if STAMP and DBGSTAMP:
        A(f"s_cmp_eq_u32 s{S_WV}, 0"); A("s_cbranch_scc0 K12_end")
        A("s_mov_b64 exec, 1")
        for i in range(9):
            A(f"v_mov_b32 v{VT}, {4*(1+i)}"); A(f"v_mov_b32 v{VT+1}, s{SB+2*i}")
            A.vm(f"global_atomic_umax v{VT}, v{VT+1}, s[{S_DBG}:{S_DBG+1}]")
        A(f"v_mov_b32 v{VT}, 40"); A(f"v_mov_b32 v{VT+1}, s60"); A.vm(f"global_atomic_umax v{VT}, v{VT+1}, s[{S_DBG}:{S_DBG+1}]")
        A(f"s_not_b32 s{S_T0}, s{SB}"); A(f"v_mov_b32 v{VT}, 44"); A(f"v_mov_b32 v{VT+1}, s{S_T0}"); A.vm(f"global_atomic_umax v{VT}, v{VT+1}, s[{S_DBG}:{S_DBG+1}]")
    A.label("K12_end")
    return A.text()

def main(path):
    hdr = open("cdna_kernels/" + NAME + ".s.ref").read().split("; Override")[0]
    n = NAME + "_kernel"
    body = gen_k12()
    out = hdr + "; @launch grid=(256,1,1) block=(256,1,1) lds=163840\n"
    out += '.amdgcn_target "amdgcn-amd-amdhsa--gfx950"\n.text\n'
    out += f""".globl {n}
.p2align 8
.type {n},@function
{n}:
{body}
  s_endpgm
.section .rodata,"a"
.p2align 6
.amdhsa_kernel {n}
  .amdhsa_next_free_vgpr 512
  .amdhsa_next_free_sgpr 102
  .amdhsa_accum_offset 256
  .amdhsa_group_segment_fixed_size 0
  .amdhsa_kernarg_size 80
  .amdhsa_user_sgpr_count 2
  .amdhsa_user_sgpr_kernarg_segment_ptr 1
  .amdhsa_system_sgpr_workgroup_id_x 1
.end_amdhsa_kernel
"""
    open(path, "w").write(out)

if __name__ == "__main__":
    if "--stamp" in sys.argv:
        STAMP = True; sys.argv.remove("--stamp")
    for a in list(sys.argv):
        if a.startswith("--nin="): N_IN = int(a[6:]); sys.argv.remove(a)
        if a.startswith("--smode="): SMODE = a[8:]; sys.argv.remove(a)
        if a.startswith("--ahead="): G2_AHEAD = int(a[8:]); sys.argv.remove(a)
        if a.startswith("--chk="): G2_CHK = int(a[6:]); sys.argv.remove(a)
        if a.startswith("--pf="): G2_PF = int(a[5:]); sys.argv.remove(a)
        if a.startswith("--cpf2="): CODE_PF2 = int(a[7:]); sys.argv.remove(a)
        if a.startswith("--wsh="): WS_H = int(a[6:])*1048576; sys.argv.remove(a)
        if a == "--dbgstamp": DBGSTAMP = 1; sys.argv.remove(a)
        if a.startswith("--w2rot="): W2ROT = int(a[8:]); sys.argv.remove(a)
        if a.startswith("--w2start="): W2_START = int(a[10:]); sys.argv.remove(a)
        if a.startswith("--later="): LATE_R = int(a[8:]); sys.argv.remove(a)
        if a.startswith("--bed="): B_EARLY_D = int(a[6:]); sys.argv.remove(a)
        if a.startswith("--ftb="): FLAG_TB = int(a[6:]); sys.argv.remove(a)
        if a.startswith("--pt="): K_PT = int(a[5:]); sys.argv.remove(a)
        if a.startswith("--tt="): TLB_TOUCH = int(a[5:]); sys.argv.remove(a)
        if a.startswith("--hinit="):
            H_INIT = int(a[8:]); K_INITLD = 2*H_INIT - 4; K_CSAT = 2*H_INIT; H_CS = H_INIT + 3; sys.argv.remove(a)
        if a.startswith("--rot2="): ROT2 = int(a[7:]); sys.argv.remove(a)
        if a.startswith("--kvmask="): KVMASK = int(a[9:]); sys.argv.remove(a)
        if a.startswith("--wopf="): K_WOPF = int(a[7:]); sys.argv.remove(a)
        if a.startswith("--defer="): DEFER = int(a[8:]); sys.argv.remove(a)
        if a.startswith("--cpf1="): CODE_PF1 = int(a[7:]); sys.argv.remove(a)
        if a.startswith("--zlate="): ZLATE = int(a[8:]); sys.argv.remove(a)
        if a.startswith("--tbm="): TBM = int(a[6:]); sys.argv.remove(a)
        if a.startswith("--gate="): GATE = int(a[7:]); sys.argv.remove(a)
        if a.startswith("--tt3="): TT3 = int(a[6:]); sys.argv.remove(a)
        if a.startswith("--pqlate="): PQ_LATE = int(a[9:]); sys.argv.remove(a)
        if a.startswith("--ftba="): FLAG_TB_A = int(a[7:]); sys.argv.remove(a)
        if a.startswith("--ot="): OUT_TOUCH = int(a[5:]); sys.argv.remove(a)
        if a.startswith("--ep="): EARLY_POLL = int(a[5:]); sys.argv.remove(a)
        if a.startswith("--fast="): FASTG2 = int(a[7:]); sys.argv.remove(a)
        if a.startswith("--al8="): ALIGN8 = int(a[6:]); sys.argv.remove(a)
        if a.startswith("--phid="): PHI_D = int(a[7:]); sys.argv.remove(a)
        if a.startswith("--x1e="): X1_EARLY = int(a[6:]); sys.argv.remove(a)
        if a.startswith("--rot="): ROT = int(a[6:]); sys.argv.remove(a)
        if a.startswith("--cap="): CAP = int(a[6:]); sys.argv.remove(a)
    if "--cyc" in sys.argv:
        STAMP = True; STAMP_INS = "s_memtime"; sys.argv.remove("--cyc")
    main(sys.argv[1] if len(sys.argv) > 1 else "cdna_kernels/" + NAME + ".s")
```

```python
import sys

NAME = "parallel_sum__linear_attn_block__glu_gated_bilinear__prompt"
WS_M, WS_R, WS_KV, KV_HEAD = 0, 8192, 32768, 1152
WS_FLAG = WS_KV + 36864
WS_KVCNT = WS_FLAG + 8192
WS_CS = WS_KVCNT + 2048
WS_STCNT = WS_CS + 20480
WS_CSCNT = WS_STCNT + 2048
NZERO = 18
assert WS_CSCNT + 2048 <= WS_KV + NZERO*4096 <= 131072
DBG_INIT = 0
CS_TMP = 140
A_ONES = 220
VC1, VC2, VC3 = 251, 252, 253
WS_H = 131072
H_BYTES = 32*4*36*2048
POLL_MAX = 200000
STAMP = False
STAMP_INS = 's_memrealtime'
WS_STAMP = 1 << 24
SB = 84
CORR_AT = 28
N_IN = 28
CAP = 5
SMODE = 'main'
ROT = 8
PHI_D = 0
TT_AFTER = 0
ALIGN8 = 0
FASTG2 = 0
EARLY_POLL = 1
OUT_TOUCH = 0
PQ_LATE = 0
TT3 = 0
GATE = 0
TBM = 1
CODE_PF1 = 1
ZLATE = 0
H_Z = 2
DEFER = 0
S_SIG = 6
K_WOPF = 0
ROT2 = 1
KVMASK = 0
TLB_TOUCH = 0
K_PT = 0
FLAG_TB = 1
FLAG_TB_A = 0
B_EARLY_D = 1
LATE_R = 1
X1_EARLY = 1
W2ROT = 1
DBGSTAMP = 0
CODE_PF2 = 0
G2_AHEAD = 14; G2_CHK = 22; G2_PF = 0
K_INITLD = 2; H_INIT = 3; K_CSAT = 6; H_CS = 6; K_CNTLD = 18; H_CNT = 11; K_RANK = 25
CODE_KB = 48

class Prog:
    def __init__(self): self.l = []; self.nvm = 0; self.ids = {}; self.pos = {}; self.inloop = False
    def __call__(self, s):
        if s is None: return
        if isinstance(s, tuple):
            if s[0] == "vm":
                self.l.append("  " + s[2]); self.nvm += 1
                if s[1] is not None: self.ids[s[1]] = self.nvm; self.pos[s[1]] = len(self.l)
            elif s[0] == "stamp":
                self.stamp(s[1], s[2])
            elif s[0] == "vmu":
                self.l.append("  " + s[2]); self.ids[s[1]] = self.nvm
            elif s[0] == "wait":
                last = max(self.ids[i] for i in s[1])
                n = self.nvm - last
                assert n <= 63, (s, n)
                if STAMP and SMODE == "wait" and self.inloop:
                    cat = 2 if s[1][0].startswith("w2_") else (1 if s[1][0].startswith("W") else 3)
                    self.l.append(f"  s_memtime s[98:99]"); self.l.append("  s_waitcnt lgkmcnt(0)")
                    self.l.append(f"  s_waitcnt vmcnt({n})")
                    self.l.append(f"  s_memtime s[100:101]"); self.l.append("  s_waitcnt lgkmcnt(0)")
                    self.l.append(f"  s_sub_u32 s100, s100, s98"); self.l.append(f"  s_add_u32 s{SB+2*cat}, s{SB+2*cat}, s100")
                    return
                self.l.append(f"  s_waitcnt vmcnt({n})" + (" " + s[2] if len(s) > 2 and s[2] else ""))
            else: raise ValueError(s)
        elif s.endswith(":"): self.l.append(s)
        elif s.startswith("!"):
            self.l.append("  " + s[1:])
        else:
            assert not ("buffer_" in s or "global_" in s), s
            self.l.append("  " + s)
    def vm(self, text, id=None): self(("vm", id, text))
    def wait(self, *ids): self(("wait", list(ids)))
    def label(self, s): self.l.append(s + ":")
    def text(self):
        if not ALIGN8: return "\n".join(self.l)
        out = []
        for x in self.l:
            if x.lstrip().startswith("v_mfma"): out.append("  .p2align 3")
            out.append(x)
        return "\n".join(out)
    def stamp(self, i, mode="main"):
        if STAMP and (mode == SMODE or i == 0): self.l.append(f"  {STAMP_INS} s[{SB+2*i}:{SB+2*i+1}]")
    def reset_vm(self):
        self.ids = {}

def vr(b, n=1): return f"v{b}" if n == 1 else f"v[{b}:{b+n-1}]"
def ar(b, n=1): return f"a{b}" if n == 1 else f"a[{b}:{b+n-1}]"
def srd(A, d, lo, hi, size):
    A(f"s_mov_b32 s{d}, s{lo}"); A(f"s_and_b32 s{d+1}, s{hi}, 0xffff"); A(f"s_mov_b32 s{d+2}, {size}"); A(f"s_mov_b32 s{d+3}, 0x20000")
def srd_off(A, d, lo, hi, off, size):
    A(f"s_add_u32 s{d}, s{lo}, {off}"); A(f"s_addc_u32 s{d+1}, s{hi}, 0"); A(f"s_and_b32 s{d+1}, s{d+1}, 0xffff")
    if isinstance(off, int): A(f"s_mov_b32 s{d+2}, {size - off}")
    else: A(f"s_sub_u32 s{d+2}, {size}, {off}")
    A(f"s_mov_b32 s{d+3}, 0x20000")

X_BASE = 0; X_SLOT = 16384
W_BASE = 49152; W_SLOT = 20480; W_NS = 3
W2IN = W_BASE + W_NS*W_SLOT
NSL = 6
LDS_R = W2IN + 4*NSL*2048
LDS_KV = 0
W2_START = 1
W2POST = 69632; NPOST = 11
DLAG = 5

ACC = 0; WF = 160; XF = 200; TRA = 216; XA = 221; VOW = 225; VOX = 230
VR = 234; VLANE = 236; VL16 = 237; VTID = 238; VDM = 239
VT = 240
VTR = 254; VTR1 = 255
AMF = 228; ACF = 236
def acc(blk, tb): return ACC + (blk*2+tb)*16

S_X = 4; S_W = 8; S_H = 28; S_WSP = 32
S_WV = 34; S_WM = 35; S_WN = 36; S_T = 37; S_IDX = 38
S_KW = 39; S_KH = 40; S_R30 = 41; S_R35 = 42; S_RH = 43; S_KX = 44; S_W1K = 45; S_W4K = 46; S_XB = 47
S_WD = 48; S_LB = 52; S_W2O = 53
S_W2B = 74; S_W2R = 75; S_W2T = 76; S_RHO = 77; S_HR = 75; S_HBASE = 74
S_T0 = 54; S_T1 = 55; S_T2 = 56; S_T3 = 57; S_T4 = 58; S_XO = 59
S_E0 = 60; S_E2 = 62
S_P = 64
P_X, P_WQ, P_WO, P_G, P_U, P_D, P_O = 64, 66, 68, 72, 74, 76, 78
S_DBG = 72; S_KSC = 66; S_CG = 67
S_HB = 80; S_I1 = 81; S_CP = 82; S_TAU = 83; S_J = 70; S_HO = 71
S_WO = 8; S_O = 12; S_XX = 16
S_C6 = 20

def w2row(i):
    if i < 16: return ("D", 256, 16*i)
    if i < 24: return ("D", 128, 1024 + 16*(i-16))
    if i < 28: return ("D", 64, 1536 + 16*(i-24))
    return ("O", 128, 16*(i-28))

class W2:
    def __init__(self, A, vdm2=None): self.A = A; self.vdm2 = vdm2
    def frag(self, ks, nb, W2V=192):
        f = ks*2 + nb
        return ar(4*f, 4) if f < 64 else vr(W2V + 4*(f-64), 4)
    def half(self, ks, nb, h, W2V=192):
        f = ks*2 + nb
        return ar(4*f + 2*h, 2) if f < 64 else vr(W2V + 4*(f-64) + 2*h, 2)
    def slot_off(self, i):
        return (i % NSL)*2048 if i < N_IN else ((i - N_IN) % NPOST)*2048
    def D(self, i):
        o = []
        if i < 28: s, so = S_WD, S_W2R
        else:
            s, so = S_WO, S_W2O
            o.append([f"s_mov_b32 s{S_W2O}, {16*(i-28)*1024}"])
        d0 = ("dma", f"s_add_u32 m0, s{S_LB}, {self.slot_off(i)}", ("vm", f"w2_{i}_0", f"buffer_load_dwordx4 v{VDM}, s[{s}:{s+3}], s{so} offen lds"))
        o.append(d0)
        o.append(("dma", f"s_add_u32 m0, s{S_LB}, {self.slot_off(i) + 1024}", ("vm", f"w2_{i}_1", f"buffer_load_dwordx4 v{self.vdm2}, s[{s}:{s+3}], s{so} offen lds")))
        if i < 27:
            o.append([f"s_add_u32 s{S_W2R}, s{S_W2R}, 16384", f"s_cmp_eq_u32 s{S_W2R}, {28*16384}", f"s_cselect_b32 s{S_W2R}, 0, s{S_W2R}"])
        return o
    def R(self, i):
        o = self.slot_off(i)
        r = [[("wait", [f"w2_{i}_1"])]]
        for nb in range(2):
            va = VTR if nb == 0 else VTR1
            r.append([f"ds_read_b64_tr_b16 {self.half(i, nb, 0)}, v{va} offset:{o}", f"ds_read_b64_tr_b16 {self.half(i, nb, 1)}, v{va} offset:{o+1024}"])
        return r

def emit_items(A, items):
    for it in items:
        if isinstance(it, tuple) and it[0] == "dma":
            A(it[1]); A("s_nop 0"); A(it[2])
        else:
            for s in it: A(s)

def prologue_common(A):
    A("s_cmp_ge_u32 s2, 256"); A("s_cbranch_scc1 K12_end")
    A.stamp(0)
    A(f"s_load_dwordx16 s[{S_P}:{S_P+15}], s[0:1], 0")
    A(f"s_load_dwordx2 s[{S_WSP}:{S_WSP+1}], s[0:1], 72")
    A(f"s_getpc_b64 s[{S_E2}:{S_E2+1}]")
    A("K12_pc:")
    A(f"v_and_b32 v{VLANE}, 63, v0")
    A(f"v_lshrrev_b32 v{VT}, 6, v0")
    A(f"v_mov_b32 v{VTID}, v0")
    A(f"v_lshlrev_b32 v{VL16}, 4, v{VLANE}")
    if TLB_TOUCH:
        A(f"v_lshlrev_b32 v{WF+28}, 3, v{VLANE}")
        A("s_mov_b64 exec, 0x1ff")
        A.vm(f"global_load_dwordx2 v[{WF+30}:{WF+31}], v{WF+28}, s[0:1]", id="kptr")
        A("s_mov_b64 exec, -1")
    A(f"v_readfirstlane_b32 s{S_WV}, v{VT}")
    A(f"s_and_b32 s{S_T0}, s2, 7"); A(f"s_lshr_b32 s{S_T1}, s2, 3")
    A(f"s_lshl_b32 s{S_T2}, s{S_T1}, 2"); A(f"s_add_u32 s{S_T2}, s{S_T2}, s{S_WV}"); A(f"s_min_u32 s{S_T2}, s{S_T2}, ((K12_end-K12_pc)>>10)-1"); A(f"s_lshl_b32 s{S_T2}, s{S_T2}, 10")
    A(f"v_add_u32 v{VT+4}, s{S_T2}, v{VL16}")
    if CODE_PF1: A.vm(f"global_load_dwordx4 v[{WF+36}:{WF+39}], v{VT+4}, s[{S_E2}:{S_E2+1}]")
    A(f"s_and_b32 s{S_T2}, s{S_T1}, 7"); A(f"s_lshr_b32 s{S_CP}, s{S_T1}, 3")
    A(f"s_lshr_b32 s{S_T}, s{S_T0}, 2"); A(f"s_lshl_b32 s{S_T}, s{S_T}, 3"); A(f"s_add_u32 s{S_T}, s{S_T}, s{S_T2}")
    A(f"s_and_b32 s{S_IDX}, s{S_T0}, 3"); A(f"s_lshl_b32 s{S_IDX}, s{S_IDX}, 1")
    A(f"s_and_b32 s{S_T3}, s{S_CP}, 1"); A(f"s_add_u32 s{S_IDX}, s{S_IDX}, s{S_T3}")
    A(f"s_and_b32 s{S_TAU}, s{S_T1}, 3"); A(f"s_lshl_b32 s{S_T3}, s{S_T0}, 2"); A(f"s_add_u32 s{S_TAU}, s{S_TAU}, s{S_T3}")
    A(f"s_lshr_b32 s{S_T4}, s{S_T1}, 2")
    A(f"s_add_u32 s{S_T0}, s{S_CP}, s{S_T2}"); A(f"s_and_b32 s{S_T0}, s{S_T0}, 3"); A(f"s_lshl_b32 s{S_T0}, s{S_T0}, 1")
    A(f"s_lshr_b32 s{S_T1}, s{S_T2}, 2"); A(f"s_add_u32 s{S_T0}, s{S_T0}, s{S_T1}")
    if ROT2: A(f"s_add_u32 s{S_T0}, s{S_CP}, s{S_T2}"); A(f"s_and_b32 s{S_T0}, s{S_T0}, 7")
    A(f"s_lshl_b32 s{S_KW}, s{S_T0}, 6")
    A(f"s_lshr_b32 s{S_WM}, s{S_WV}, 1"); A(f"s_and_b32 s{S_WN}, s{S_WV}, 1")
    t0, t1, t3, t4 = VT, VT+1, VT+3, VT+4
    A(f"v_lshrrev_b32 v{t0}, 3, v{VLANE}"); A(f"v_and_b32 v{t1}, 7, v{VLANE}")
    A(f"v_lshrrev_b32 v{t3}, 4, v{VLANE}"); A(f"v_xor_b32 v{t3}, v{t1}, v{t3}"); A(f"v_lshlrev_b32 v{t3}, 4, v{t3}")
    A(f"v_lshlrev_b32 v{t4}, 10, v{t0}"); A(f"v_add_u32 v{VOX}, v{t3}, v{t4}")
    A(f"v_xor_b32 v{VOX+1}, 64, v{VOX}"); A(f"v_add_u32 v{VOX+1}, {8*1024}, v{VOX+1}")
    A(f"v_add_u32 v{VOX+2}, {16*1024}, v{VOX}"); A(f"v_add_u32 v{VOX+3}, {16*1024}, v{VOX+1}")
    A(f"s_lshl_b32 s{S_XB}, s{S_T}, 7"); A(f"s_lshl_b32 s{S_T0}, s{S_WV}, 5"); A(f"s_add_u32 s{S_XB}, s{S_XB}, s{S_T0}"); A(f"s_lshl_b32 s{S_XB}, s{S_XB}, 10")
    A(f"s_lshl_b32 s{S_KX}, s{S_KW}, 1")
    A(f"s_and_b32 s{S_T0}, s{S_WV}, 1"); A(f"s_lshl_b32 s{S_T0}, s{S_T0}, 4"); A(f"s_add_u32 s{S_KH}, s{S_KW}, s{S_T0}")
    A(f"s_lshl_b32 s{S_T0}, s{S_WV}, 3"); A(f"s_add_u32 s{S_KW}, s{S_KW}, s{S_T0}")
    A(f"s_lshl_b32 s{S_W1K}, s{S_WV}, 10"); A(f"s_lshl_b32 s{S_W4K}, s{S_WV}, 12")
    A(f"s_lshr_b32 s{S_T0}, s{S_CP}, 1"); A(f"s_lshl_b32 s{S_T0}, s{S_T0}, 3"); A(f"s_add_u32 s{S_T3}, s{S_T0}, s{S_IDX}")
    A(f"s_lshl_b32 s{S_T0}, s{S_T}, 7"); A(f"s_lshl_b32 s{S_T1}, s{S_T3}, 3"); A(f"s_add_u32 s{S_T0}, s{S_T0}, s{S_T1}"); A(f"s_lshl_b32 s{S_T1}, s{S_WV}, 1"); A(f"s_add_u32 s{S_T2}, s{S_T0}, s{S_T1}")
    A(f"s_lshl_b32 s{S_T0}, s{S_T2}, 10"); A(f"v_add_u32 v{VT+5}, s{S_T0}, v{VL16}")
    if TLB_TOUCH:
        A.wait("kptr")
        A("s_mov_b64 exec, 0x1ff")
        A.vm(f"global_load_dword v{WF+29}, v[{WF+30}:{WF+31}], off offset:128")
        A("s_mov_b64 exec, -1")
    A.stamp(1, "pro")
    if GATE:
        A(f"s_load_dwordx2 s[{S_E0}:{S_E0+1}], s[0:1], 64")
    A("s_waitcnt lgkmcnt(0)")
    if GATE:
        A(f"s_cmp_eq_u32 s{S_WV}, 0"); A("s_cbranch_scc0 K12_gate_w")
        A(f"v_mov_b32 v{VT+8}, 192"); A(f"v_mov_b32 v{VT+9}, 1"); A("s_mov_b64 exec, 1")
        A(f"!global_atomic_add v{VT+8}, v{VT+9}, s[{S_E0}:{S_E0+1}] sc1")
        A(f"s_mov_b32 s{S_T1+0}, 0") if False else None
        A(f"s_mov_b32 s3, 0")
        A("K12_gate_l:")
        A(f"!global_load_dword v{VT+9}, v{VT+8}, s[{S_E0}:{S_E0+1}] sc1"); A("s_waitcnt vmcnt(0)")
        A(f"v_readfirstlane_b32 s{S_E2}, v{VT+9}"); A("s_add_u32 s3, s3, 1"); A(f"s_cmp_ge_u32 s3, {POLL_MAX}"); A("s_cbranch_scc1 K12_gate_x")
        A(f"s_cmp_ge_u32 s{S_E2}, 256"); A("s_cbranch_scc1 K12_gate_x"); A(f"s_sleep {GATE}"); A("s_branch K12_gate_l")
        A("K12_gate_x:"); A("s_mov_b64 exec, -1")
        A("K12_gate_w:"); A("s_barrier")
    if TLB_TOUCH:
        A(f"v_mov_b32 v{WF+28}, 24576"); A("s_mov_b64 exec, 1")
        A.vm(f"global_load_dword v{WF+32}, v{WF+28}, s[{S_WSP}:{S_WSP+1}]")
        A("s_mov_b64 exec, -1")
    A.stamp(2, "pro")
    if TT3:
        lo, hi = WF+30, WF+31
        A(f"v_mov_b32 v{lo}, s{P_WQ}"); A(f"v_mov_b32 v{hi}, s{P_WQ+1}")
        for ln, p in ((1, P_G), (2, P_U)):
            A(f"v_writelane_b32 v{lo}, s{p}, {ln}"); A(f"v_writelane_b32 v{hi}, s{p+1}, {ln}")
        A("s_mov_b64 exec, 7")
        A.vm(f"global_load_dword v{WF+29}, v[{lo}:{hi}], off")
        A("s_mov_b64 exec, -1")
    A(f"s_mov_b32 s{S_J}, s{S_T4}")
    if not ZLATE:
        A(f"s_cmp_ge_u32 s2, {NZERO}"); A("s_cbranch_scc1 K12_nozero")
        A(f"s_lshl_b32 s{S_T0}, s2, 12"); A(f"s_add_u32 s{S_T0}, s{S_T0}, {WS_KV}")
        A(f"v_lshlrev_b32 v{VT+6}, 4, v{VTID}"); A(f"v_add_u32 v{VT+6}, s{S_T0}, v{VT+6}")
        for i in range(4): A(f"v_mov_b32 v{VT+8+i}, 0")
        A(f"!global_store_dwordx4 v{VT+6}, v[{VT+8}:{VT+11}], s[{S_WSP}:{S_WSP+1}] sc1")
        A("K12_nozero:")
    SX = WF + 20
    A.vm(f"global_load_dwordx4 v[{SX}:{SX+3}], v{VT+5}, s[{P_X}:{P_X+1}]")
    A.vm(f"global_load_dwordx4 v[{SX+4}:{SX+7}], v{VT+5}, s[{P_X}:{P_X+1}] offset:1024", id="strow")
    A(f"s_lshl_b32 s{S_HB}, s{S_T2}, 2")
    A(f"s_mov_b32 s{S_I1}, s{S_T3}")
    srd(A, S_X, P_X, P_X+1, 2048*1024)

class G1:
    def __init__(self, A, typ):
        self.A = A; self.typ = typ; self.w2 = W2(A, 227 if typ == 'A' else 226)
        self.kinds = ["gu","gu","gu","gu","q"] if typ == "A" else ["k","v","gu","gu","guh"]
        if typ == "A": self.strides = [3584,3584,3584,3584,3072]; self.swz = ["g","u","g","u","q"]
        else: self.strides = [3072,3072,3584,3584,3584]; self.swz = ["q","q","g","u","h"]
    def vow(self, rho):
        key = (self.swz[rho], self.strides[rho])
        for r in range(rho + 1):
            if (self.swz[r], self.strides[r]) == key: return VOW + r
    def Wg(self, h):
        o = []
        if h > 0:
            o.append([f"s_add_u32 s{S_KW}, s{S_KW}, 32", f"s_and_b32 s{S_KW}, s{S_KW}, 511"])
            if self.typ == "B": o.append([f"s_add_u32 s{S_KH}, s{S_KH}, 32", f"s_and_b32 s{S_KH}, s{S_KH}, 511"])
        o.append([f"s_mul_i32 s{S_R30}, s{S_KW}, 3072", f"s_mul_i32 s{S_R35}, s{S_KW}, 3584"])
        if self.typ == "B": o.append([f"s_mul_i32 s{S_RH}, s{S_KH}, 3584"])
        for rho in range(5):
            so = S_RH if self.swz[rho] == "h" else (S_R30 if self.strides[rho] == 3072 else S_R35)
            o.append(("dma", f"s_add_u32 m0, s{S_W1K}, {W_BASE + (h % W_NS)*W_SLOT + rho*4096}",
                      ("vm", f"W{h}_{rho}", f"buffer_load_dwordx4 v{self.vow(rho)}, s[{S_W+4*rho}:{S_W+4*rho+3}], s{so} offen lds")))
        return o
    def Xg(self, sg):
        o = []
        if sg > 0: o.append([f"s_add_u32 s{S_KX}, s{S_KX}, 128", f"s_and_b32 s{S_KX}, s{S_KX}, 1023"])
        o.append([f"s_add_u32 s{S_XO}, s{S_XB}, s{S_KX}"])
        for j in range(4):
            o.append(("dma", f"s_add_u32 m0, s{S_W4K}, {X_BASE + (sg % 3)*X_SLOT + j*1024}",
                      ("vm", f"X{sg}_{j}", f"buffer_load_dwordx4 v{VOX+j}, s[{S_X}:{S_X+3}], s{S_XO} offen lds")))
        return o
    def reads(self, s):
        par = s & 1; kk = s & 3; sg = s >> 2; h = s >> 1; second = s & 1
        xo = (sg % 3)*X_SLOT
        o = [f"ds_read_b128 v[{XF+8*par}:{XF+8*par+3}], v{XA+kk} offset:{xo}", f"ds_read_b128 v[{XF+8*par+4}:{XF+8*par+7}], v{XA+kk} offset:{xo+4096}"]
        for blk, kd in enumerate(self.kinds):
            b = WF + 20*par + 4*blk
            if kd == "guh": o1, o2 = (1024 if second else 0), 256
            else: o1, o2 = (2048 if second else 0), 512
            o1 += (h % W_NS)*W_SLOT
            o.append(f"ds_read_b64_tr_b16 v[{b}:{b+1}], v{TRA+blk} offset:{o1}")
            o.append(f"ds_read_b64_tr_b16 v[{b+2}:{b+3}], v{TRA+blk} offset:{o1+o2}")
        return o
    def mfmas(self, s, order=None):
        par = s & 1; o = []
        for blk in (order or range(5)):
            kd = self.kinds[blk]
            wf = f"v[{WF+20*par+4*blk}:{WF+20*par+4*blk+3}]"
            for tb in range(2):
                xf = f"v[{XF+8*par+4*tb}:{XF+8*par+4*tb+3}]"; a = acc(blk, tb)
                c = "0" if s == 0 else f"v[{a}:{a+15}]"
                if kd in ("k", "v"): o.append(f"v_mfma_f32_32x32x16_bf16 v[{a}:{a+15}], {xf}, {wf}, {c}")
                else: o.append(f"v_mfma_f32_32x32x16_bf16 v[{a}:{a+15}], {wf}, {xf}, {c}")
        return o
    def corr(self):
        o = []
        for blk in range(5):
            for tb in range(2):
                a = acc(blk, tb); cf = ar(ACF+4*blk, 4); mf = ar(AMF+4*tb, 4)
                if self.kinds[blk] in ("k", "v"): o.append(f"v_mfma_f32_32x32x16_bf16 v[{a}:{a+15}], {mf}, {cf}, v[{a}:{a+15}]")
                else: o.append(f"v_mfma_f32_32x32x16_bf16 v[{a}:{a+15}], {cf}, {mf}, v[{a}:{a+15}]")
        return o

    def prologue(self):
        A, typ, kinds = self.A, self.typ, self.kinds
        SZQ, SZG = 512*3072, 512*3584
        A.stamp(3, "pro")
        emit_items(A, self.Xg(0))
        A.stamp(4, "pro")
        if typ == "A":
            A(f"s_lshr_b32 s{S_T0}, s{S_IDX}, 1"); A(f"s_mul_i32 s{S_T0}, s{S_T0}, 7"); A(f"s_and_b32 s{S_T1}, s{S_IDX}, 1"); A(f"s_lshl_b32 s{S_T1}, s{S_T1}, 1")
            A(f"s_add_u32 s{S_T0}, s{S_T0}, s{S_T1}"); A(f"s_lshl_b32 s{S_T0}, s{S_T0}, 7")
            srd_off(A, S_W+0, P_G, P_G+1, f"s{S_T0}", SZG); srd_off(A, S_W+4, P_U, P_U+1, f"s{S_T0}", SZG)
            A(f"s_add_u32 s{S_T0}, s{S_T0}, 128")
            srd_off(A, S_W+8, P_G, P_G+1, f"s{S_T0}", SZG); srd_off(A, S_W+12, P_U, P_U+1, f"s{S_T0}", SZG)
            A(f"s_lshl_b32 s{S_T0}, s{S_IDX}, 7")
            srd_off(A, S_W+16, P_WQ, P_WQ+1, f"s{S_T0}", SZQ)
        else:
            A(f"s_lshl_b32 s{S_T0}, s{S_IDX}, 7"); A(f"s_add_u32 s{S_T0}, s{S_T0}, 1024")
            srd_off(A, S_W+0, P_WQ, P_WQ+1, f"s{S_T0}", SZQ)
            A(f"s_add_u32 s{S_T0}, s{S_T0}, 1024")
            srd_off(A, S_W+4, P_WQ, P_WQ+1, f"s{S_T0}", SZQ)
            A(f"s_lshr_b32 s{S_T0}, s{S_IDX}, 1"); A(f"s_mul_i32 s{S_T0}, s{S_T0}, 7"); A(f"s_and_b32 s{S_T1}, s{S_IDX}, 1")
            A(f"s_add_u32 s{S_T0}, s{S_T0}, s{S_T1}"); A(f"s_add_u32 s{S_T0}, s{S_T0}, 4"); A(f"s_lshl_b32 s{S_T0}, s{S_T0}, 7")
            srd_off(A, S_W+8, P_G, P_G+1, f"s{S_T0}", SZG); srd_off(A, S_W+12, P_U, P_U+1, f"s{S_T0}", SZG)
            A(f"s_lshr_b32 s{S_T0}, s{S_IDX}, 1"); A(f"s_mul_i32 s{S_T0}, s{S_T0}, 7"); A(f"s_add_u32 s{S_T0}, s{S_T0}, 6"); A(f"s_lshl_b32 s{S_T0}, s{S_T0}, 7")
            A(f"s_and_b32 s{S_T1}, s{S_IDX}, 1"); A(f"s_lshl_b32 s{S_T1}, s{S_T1}, 6"); A(f"s_add_u32 s{S_T0}, s{S_T0}, s{S_T1}")
            A(f"s_cmp_ge_u32 s{S_WV}, 2")
            A(f"s_cselect_b32 s{S_T2}, s{P_U}, s{P_G}"); A(f"s_cselect_b32 s{S_T3}, s{P_U+1}, s{P_G+1}")
            srd_off(A, S_W+16, S_T2, S_T3, f"s{S_T0}", SZG)
        t0, t1, t2, t3, t4 = VT, VT+1, VT+2, VT+3, VT+4
        A(f"v_lshrrev_b32 v{t0}, 3, v{VLANE}"); A(f"v_and_b32 v{t1}, 7, v{VLANE}")
        A(f"v_lshrrev_b32 v{t2}, 4, v{VLANE}"); A(f"v_and_b32 v{t2}, 1, v{t2}")
        done = {}
        for rho in range(5):
            key = (self.swz[rho], self.strides[rho])
            if key in done: continue
            done[key] = rho
            if self.swz[rho] == "h":
                A(f"v_lshrrev_b32 v{t3}, 2, v{VLANE}"); A(f"v_and_b32 v{t4}, 3, v{VLANE}")
                A(f"s_lshr_b32 s{S_T0}, s{S_WV}, 1"); A(f"s_lshl_b32 s{S_T0}, s{S_T0}, 1")
                A(f"v_xor_b32 v{t4}, s{S_T0}, v{t4}")
                A(f"v_mul_u32_u24 v{t3}, 3584, v{t3}"); A(f"v_lshlrev_b32 v{t4}, 4, v{t4}"); A(f"v_add_u32 v{VOW+rho}, v{t3}, v{t4}")
            else:
                if self.swz[rho] == "q": A(f"v_lshlrev_b32 v{t3}, 2, v{t2}")
                else:
                    A(f"v_lshlrev_b32 v{t3}, 1, v{t2}")
                    if self.swz[rho] == "u": A(f"v_or_b32 v{t3}, 4, v{t3}")
                A(f"v_xor_b32 v{t3}, v{t1}, v{t3}"); A(f"v_lshlrev_b32 v{t3}, 4, v{t3}")
                A(f"v_mul_u32_u24 v{t4}, {self.strides[rho]}, v{t0}"); A(f"v_add_u32 v{VOW+rho}, v{t3}, v{t4}")
        A.stamp(5, "pro")
        emit_items(A, self.Wg(0)); A.stamp(6, "pro"); emit_items(A, self.Wg(1))
        A.stamp(1); A.stamp(7, "pro")
        A(f"v_lshlrev_b32 v{t3}, 2, v{t2}"); A(f"v_xor_b32 v{t3}, v{t1}, v{t3}"); A(f"v_lshlrev_b32 v{t3}, 4, v{t3}")
        A(f"v_lshlrev_b32 v{t4}, 10, v{t0}"); A(f"v_add_u32 v{VDM}, v{t3}, v{t4}")
        A(f"v_add_u32 v{self.w2.vdm2}, 8192, v{VDM}")
        A(f"s_lshl_b32 s{S_T0}, s{S_J}, 7"); A(f"s_mul_i32 s{S_T1}, s{S_WV}, {448*1024}"); A(f"s_add_u32 s{S_T0}, s{S_T0}, s{S_T1}")
        srd_off(A, S_WD, P_D, P_D+1, f"s{S_T0}", 1792*1024)
        A(f"s_mul_i32 s{S_LB}, s{S_WV}, {NSL*2048}"); A(f"s_add_u32 s{S_LB}, s{S_LB}, {W2IN}")
        A(f"s_lshr_b32 s{S_T0}, s2, 3"); A(f"s_and_b32 s{S_T1}, s{S_T0}, 3"); A(f"s_mul_i32 s{S_T1}, s{S_T1}, 7"); A(f"s_lshr_b32 s{S_T0}, s{S_T0}, 2"); A(f"s_mul_i32 s{S_T0}, s{S_T0}, 3")
        A(f"s_add_u32 s{S_RHO}, s{S_T0}, s{S_T1}"); A(f"s_cmp_ge_u32 s{S_RHO}, 28"); A(f"s_cselect_b32 s{S_T0}, 28, 0"); A(f"s_sub_u32 s{S_RHO}, s{S_RHO}, s{S_T0}")
        if not W2ROT: A(f"s_mov_b32 s{S_RHO}, 0")
        A(f"s_lshl_b32 s{S_W2R}, s{S_RHO}, 14")
        A(f"s_load_dwordx2 s[{S_DBG}:{S_DBG+1}], s[0:1], 64")
        A(f"s_mov_b32 s{S_CG}, s{S_I1}")
        A(f"s_lshr_b32 s{S_T0}, s{S_T}, 3"); A(f"s_lshl_b32 s{S_T0}, s{S_T0}, 1"); A(f"s_add_u32 s{S_KSC}, s{S_T0}, s{S_WM}")
        A(f"v_and_b32 v{t0}, 31, v{VLANE}")
        A(f"v_and_b32 v{t1}, 15, v{t0}"); A(f"v_lshrrev_b32 v{t2}, 4, v{t0}")
        def cs_addr(dst, soff_code, lane_kind):
            soff_code()
            if lane_kind == "gu":
                A(f"v_mul_u32_u24 v{t3}, 1792, v{t2}"); A(f"v_add_u32 v{t3}, v{t3}, v{t1}")
            elif lane_kind == "kv":
                A(f"v_lshlrev_b32 v{t3}, 9, v{t2}"); A(f"v_add_u32 v{t3}, v{t3}, v{t1}")
            else: A(f"v_mov_b32 v{t3}, v{t0}")
            A(f"v_add_u32 v{t3}, s{S_T0}, v{t3}"); A(f"v_lshlrev_b32 v{t3}, 2, v{t3}"); A(f"v_add_u32 v{dst}, {WS_CS}, v{t3}")
        if typ == "A":
            cs_addr(VC1, lambda: (A(f"s_lshr_b32 s{S_T0}, s{S_IDX}, 1"), A(f"s_mul_i32 s{S_T0}, s{S_T0}, 7"), A(f"s_and_b32 s{S_T1}, s{S_IDX}, 1"), A(f"s_lshl_b32 s{S_T1}, s{S_T1}, 1"), A(f"s_add_u32 s{S_T0}, s{S_T0}, s{S_T1}"),
                                  A(f"s_add_u32 s{S_T0}, s{S_T0}, s{S_WN}"), A(f"s_lshl_b32 s{S_T0}, s{S_T0}, 6"), A(f"s_add_u32 s{S_T0}, s{S_T0}, 1536")), "gu")
            cs_addr(VC2, lambda: (A(f"s_lshl_b32 s{S_T0}, s{S_IDX}, 6"), A(f"s_lshl_b32 s{S_T1}, s{S_WN}, 5"), A(f"s_add_u32 s{S_T0}, s{S_T0}, s{S_T1}")), "q")
            self.csa = [(VC1, 0), (VC1, 64), (VC1, 128), (VC1, 192), (VC2, 0)]
        else:
            cs_addr(VC2, lambda: (A(f"s_lshl_b32 s{S_T0}, s{S_IDX}, 6"), A(f"s_lshl_b32 s{S_T1}, s{S_WN}, 5"), A(f"s_add_u32 s{S_T0}, s{S_T0}, s{S_T1}"), A(f"s_add_u32 s{S_T0}, s{S_T0}, 512")), "q")
            cs_addr(VC1, lambda: (A(f"s_lshr_b32 s{S_T0}, s{S_IDX}, 1"), A(f"s_mul_i32 s{S_T0}, s{S_T0}, 7"), A(f"s_and_b32 s{S_T1}, s{S_IDX}, 1"), A(f"s_add_u32 s{S_T0}, s{S_T0}, s{S_T1}"), A(f"s_add_u32 s{S_T0}, s{S_T0}, 4"), A(f"s_lshl_b32 s{S_T0}, s{S_T0}, 6"), A(f"s_lshl_b32 s{S_T1}, s{S_WN}, 5"), A(f"s_add_u32 s{S_T0}, s{S_T0}, s{S_T1}"), A(f"s_add_u32 s{S_T0}, s{S_T0}, 1536")), "gu")
            cs_addr(VC3, lambda: (A(f"s_lshr_b32 s{S_T0}, s{S_IDX}, 1"), A(f"s_mul_i32 s{S_T0}, s{S_T0}, 7"), A(f"s_add_u32 s{S_T0}, s{S_T0}, 6"), A(f"s_lshl_b32 s{S_T0}, s{S_T0}, 6"),
                                  A(f"s_and_b32 s{S_T1}, s{S_IDX}, 1"), A(f"s_lshl_b32 s{S_T1}, s{S_T1}, 1"), A(f"s_add_u32 s{S_T1}, s{S_T1}, s{S_WN}"), A(f"s_lshl_b32 s{S_T1}, s{S_T1}, 4"),
                                  A(f"s_add_u32 s{S_T0}, s{S_T0}, s{S_T1}"), A(f"s_add_u32 s{S_T0}, s{S_T0}, 1536")), "gu")
            self.csa = [(VC2, 0), (VC2, 2048), (VC1, 0), (VC1, 64), (VC3, 0)]
        A(f"v_mov_b32 v{t3}, 0x3f803f80")
        for i in range(4): A(f"v_accvgpr_write_b32 a{A_ONES+i}, v{t3}")
        srd_off(A, S_H, S_WSP, S_WSP+1, WS_H, WS_H + H_BYTES)
        G, p, r, c = t0, t1, t2, t3
        A(f"v_lshrrev_b32 v{G}, 4, v{VLANE}"); A(f"v_and_b32 v{G}, 1, v{G}")
        A(f"v_lshrrev_b32 v{p}, 5, v{VLANE}")
        A(f"v_and_b32 v{r}, 15, v{VLANE}"); A(f"v_lshrrev_b32 v{r}, 2, v{r}")
        A(f"v_and_b32 v{c}, 3, v{VLANE}")
        k_, rb, u1, u2 = t4, t4+1, t4+2, t4+3
        A(f"v_lshlrev_b32 v{k_}, 3, v{p}"); A(f"v_add_u32 v{k_}, v{k_}, v{r}")
        A(f"v_lshrrev_b32 v{rb}, 1, v{r}"); A(f"v_and_b32 v{rb}, 1, v{rb}")
        for blk, kd in enumerate(kinds):
            d = TRA + blk
            if typ == "A" and kd == "gu" and blk > 0:
                A(f"v_xor_b32 v{d}, {blk*32}, v{TRA}"); continue
            if typ == "B" and blk == 1:
                A(f"v_add_u32 v{d}, 4096, v{d-1}"); continue
            if typ == "B" and blk == 3:
                A(f"v_xor_b32 v{d}, 32, v{d-1}"); continue
            if kd == "guh":
                A(f"v_lshrrev_b32 v{u1}, 1, v{c}"); A(f"s_lshl_b32 s{S_T0}, s{S_WN}, 1"); A(f"v_add_u32 v{u1}, s{S_T0}, v{u1}")
                A(f"v_lshlrev_b32 v{u2}, 1, v{G}"); A(f"v_xor_b32 v{u1}, v{u1}, v{u2}"); A(f"v_lshlrev_b32 v{u1}, 4, v{u1}")
                A(f"v_lshlrev_b32 v{u2}, 6, v{k_}"); A(f"v_add_u32 v{u1}, v{u1}, v{u2}")
                A(f"v_lshlrev_b32 v{u2}, 11, v{G}"); A(f"v_add_u32 v{u1}, v{u1}, v{u2}")
                A(f"v_add_u32 v{u1}, {W_BASE + 4*4096}, v{u1}")
            else:
                if kd in ("q", "k"):
                    A(f"s_lshl_b32 s{S_T0}, s{S_WN}, 1"); A(f"v_add_u32 v{u1}, s{S_T0}, v{G}")
                elif typ == "A": A(f"v_mov_b32 v{u1}, 0")
                else:
                    A(f"s_lshl_b32 s{S_T0}, s{S_WN}, 1"); A(f"v_mov_b32 v{u1}, s{S_T0}")
                A(f"v_lshlrev_b32 v{u1}, 1, v{u1}"); A(f"v_lshrrev_b32 v{u2}, 1, v{c}"); A(f"v_add_u32 v{u1}, v{u1}, v{u2}")
                if kd in ("q", "k"): A(f"v_lshlrev_b32 v{u2}, 2, v{rb}")
                else:
                    A(f"v_lshlrev_b32 v{u2}, 1, v{rb}"); A(f"v_lshlrev_b32 v{d}, 2, v{G}"); A(f"v_or_b32 v{u2}, v{u2}, v{d}")
                A(f"v_xor_b32 v{u1}, v{u1}, v{u2}"); A(f"v_lshlrev_b32 v{u1}, 4, v{u1}")
                A(f"v_lshlrev_b32 v{u2}, 7, v{k_}"); A(f"v_add_u32 v{u1}, v{u1}, v{u2}")
                if kd == "q": A(f"v_add_u32 v{u1}, {W_BASE + 4*4096}, v{u1}")
                elif kd == "k": A(f"v_add_u32 v{u1}, {W_BASE}, v{u1}")
                else:
                    if typ == "A":
                        A(f"s_lshl_b32 s{S_T0}, s{S_WN}, 13"); A(f"s_add_u32 s{S_T0}, s{S_T0}, {W_BASE}")
                    else: A(f"s_mov_b32 s{S_T0}, {W_BASE + 2*4096}")
                    A(f"v_lshlrev_b32 v{u2}, 12, v{G}"); A(f"v_add_u32 v{u1}, v{u1}, v{u2}"); A(f"v_add_u32 v{u1}, s{S_T0}, v{u1}")
            A(f"v_and_b32 v{u2}, 1, v{c}"); A(f"v_lshlrev_b32 v{u2}, 3, v{u2}"); A(f"v_add_u32 v{d}, v{u1}, v{u2}")
        A(f"v_lshlrev_b32 v{u1}, 2, v{p}"); A(f"v_add_u32 v{u1}, v{u1}, v{r}"); A(f"v_lshlrev_b32 v{u1}, 7, v{u1}")
        A(f"v_lshlrev_b32 v{u2}, 1, v{G}"); A(f"v_lshrrev_b32 v{VTR}, 1, v{c}"); A(f"v_add_u32 v{u2}, v{u2}, v{VTR}")
        A(f"v_lshlrev_b32 v{VTR}, 2, v{rb}"); A(f"v_xor_b32 v{u2}, v{u2}, v{VTR}"); A(f"v_lshlrev_b32 v{u2}, 4, v{u2}"); A(f"v_add_u32 v{u1}, v{u1}, v{u2}")
        A(f"v_and_b32 v{u2}, 1, v{c}"); A(f"v_lshlrev_b32 v{u2}, 3, v{u2}"); A(f"v_add_u32 v{u1}, v{u1}, v{u2}")
        A(f"v_add_u32 v{VTR}, s{S_LB}, v{u1}"); A(f"v_xor_b32 v{VTR1}, 64, v{VTR}")
        A(f"v_and_b32 v{u1}, 31, v{VLANE}"); A(f"s_lshl_b32 s{S_T0}, s{S_WM}, 6"); A(f"v_add_u32 v{u1}, s{S_T0}, v{u1}")
        A(f"v_lshrrev_b32 v{u2}, 1, v{u1}"); A(f"v_and_b32 v{u2}, 7, v{u2}"); A(f"v_xor_b32 v{u2}, v{u2}, v{p}"); A(f"v_lshlrev_b32 v{u2}, 4, v{u2}")
        A(f"v_lshlrev_b32 v{u1}, 7, v{u1}"); A(f"v_add_u32 v{u1}, v{u1}, v{u2}")
        for kk in range(4): A(f"v_xor_b32 v{XA+kk}, {kk*32}, v{u1}")
        if X1_EARLY: emit_items(A, self.Xg(1))
        if TT_AFTER:
            A(f"v_mov_b32 v{WF+32}, 0"); A("s_mov_b64 exec, 1")
            if TT_AFTER & 1: A.vm(f"buffer_load_dword v{WF+33}, v{WF+32}, s[{S_WD}:{S_WD+3}], 0 offen")
            if TT_AFTER & 2: A.vm(f"global_load_dword v{WF+34}, v{WF+32}, s[{P_WO}:{P_WO+1}]")
            if TT_AFTER & 4: A.vm(f"global_load_dword v{WF+35}, v{WF+32}, s[{P_O}:{P_O+1}]")
            A("s_mov_b64 exec, -1")
        SX = WF + 20
        A.wait("strow")
        P0, P1, Q0, Q1, U = VT, VT+2, VT+4, VT+6, VT+8
        for tok, (P, Q) in enumerate(((P0, Q0), (P1, Q1))):
            for i in range(4):
                src = SX + 4*tok + i
                A(f"v_lshlrev_b32 v{U}, 16, v{src}"); A(f"v_and_b32 v{U+1}, 0xffff0000, v{src}")
                if i == 0:
                    A(f"v_pk_mul_f32 v[{Q}:{Q+1}], v[{U}:{U+1}], v[{U}:{U+1}]"); A(f"v_mov_b32 v{P}, v{U}"); A(f"v_mov_b32 v{P+1}, v{U+1}")
                else:
                    A(f"v_pk_add_f32 v[{P}:{P+1}], v[{P}:{P+1}], v[{U}:{U+1}]"); A(f"v_pk_fma_f32 v[{Q}:{Q+1}], v[{U}:{U+1}], v[{U}:{U+1}], v[{Q}:{Q+1}]")
        for r_ in (P0, P1, Q0, Q1): A(f"v_add_f32 v{r_}, v{r_}, v{r_+1}")
        for dpp in ("row_shr:1 row_mask:0xf bank_mask:0xf", "row_shr:2 row_mask:0xf bank_mask:0xf", "row_shr:4 row_mask:0xf bank_mask:0xf", "row_shr:8 row_mask:0xf bank_mask:0xf",
                    "row_bcast:15 row_mask:0xa bank_mask:0xf", "row_bcast:31 row_mask:0xc bank_mask:0xf"):
            for r_ in (P0, P1, Q0, Q1): A(f"v_add_f32_dpp v{r_}, v{r_}, v{r_} {dpp}")
        A(f"v_mul_f32 v{P0}, 0x3b000000, v{P0}"); A(f"v_mul_f32 v{P0+1}, 0x3b000000, v{P1}")
        A(f"v_mul_f32 v{Q0}, 0x3b000000, v{Q0}"); A(f"v_mul_f32 v{Q0+1}, 0x3b000000, v{Q1}")
        for j in range(2):
            A(f"v_fma_f32 v{Q0+j}, -v{P0+j}, v{P0+j}, v{Q0+j}"); A(f"v_max_f32 v{Q0+j}, 0, v{Q0+j}"); A(f"v_add_f32 v{Q0+j}, 0x3727c5ac, v{Q0+j}"); A(f"v_rsq_f32 v{Q0+j}, v{Q0+j}")
        A(f"v_mov_b32 v{U}, s{S_HB}"); A(f"v_add_u32 v{U+1}, {WS_R}, v{U}")
        A(f"s_mov_b64 s[{S_E0}:{S_E0+1}], exec"); A("s_mov_b32 exec_lo, 0"); A("s_mov_b32 exec_hi, 0x80000000")
        A.vm(f"global_store_dwordx2 v{U}, v[{P0}:{P0+1}], s[{S_WSP}:{S_WSP+1}] sc1")
        A.vm(f"global_store_dwordx2 v{U+1}, v[{Q0}:{Q0+1}], s[{S_WSP}:{S_WSP+1}] sc1", id="stst")
        A(f"s_mov_b64 exec, s[{S_E0}:{S_E0+1}]")
        A.stamp(2)
        A("s_waitcnt lgkmcnt(0)")
        A.wait("X0_3", "W0_4")
        A("s_barrier")
        A.stamp(3); A.stamp(8, "pro")
        for s in self.reads(0): A(s)
        A.stamp(1, "init")
        if ZLATE:
            L = f"K12{typ}_nozero"
            A(f"s_cmp_ge_u32 s2, {NZERO}"); A(f"s_cbranch_scc1 {L}")
            A(f"s_lshl_b32 s{S_T0}, s2, 12"); A(f"s_add_u32 s{S_T0}, s{S_T0}, {WS_KV}")
            A(f"v_lshlrev_b32 v{VT+6}, 4, v{VTID}"); A(f"v_add_u32 v{VT+6}, s{S_T0}, v{VT+6}")
            for i in range(4): A(f"v_mov_b32 v{VT+0+i}, 0")
            A(("vmu", "zst", f"global_store_dwordx4 v{VT+6}, v[{VT+0}:{VT+3}], s[{S_WSP}:{S_WSP+1}] sc1"))
            A(f"{L}:")
        else:
            for x in self.sig(f"s_cmp_lt_u32 s2, {NZERO}", S_DBG, DBG_INIT, None, "init"): A(x)
        A.stamp(2, "init")

    def sig(self, cond, base, off_imm, off_sgpr, tag):
        L = f"K12{self.typ}_sig_{tag}"
        o = []
        if cond: o += [cond, f"s_cbranch_scc0 {L}"]
        o += [f"s_cmp_eq_u32 s{S_WV}, 0", f"s_cbranch_scc0 {L}"]
        if off_sgpr is None: o += [f"v_mov_b32 v{VT+9}, {off_imm}"]
        else: o += [f"s_lshl_b32 s{S_T4}, s{off_sgpr}, 7", f"s_add_u32 s{S_T4}, s{S_T4}, {off_imm}", f"v_mov_b32 v{VT+9}, s{S_T4}"]
        o += [f"v_mov_b32 v{VT+8}, 1", f"s_mov_b64 s[{S_E0}:{S_E0+1}], exec", "s_mov_b64 exec, 1",
              f"!global_atomic_add v{VT+9}, v{VT+8}, s[{base}:{base+1}] sc1", f"s_mov_b64 exec, s[{S_E0}:{S_E0+1}]", f"{L}:"]
        return o

    def spin(self, tag, base, vaddr, expect):
        L = f"K12{self.typ}_spin_{tag}"
        return [f"s_mov_b32 s{S_T3}, 0", f"{L}:", f"!global_load_dword v{VT+10}, v{vaddr}, s[{base}:{base+1}] sc1", "s_waitcnt vmcnt(0)",
                f"v_readfirstlane_b32 s{S_T4}, v{VT+10}", f"s_add_u32 s{S_T3}, s{S_T3}, 1", f"s_cmp_ge_u32 s{S_T3}, {POLL_MAX}", f"s_cbranch_scc1 {L}_x",
                f"s_cmp_ge_u32 s{S_T4}, {expect}", f"s_cbranch_scc1 {L}_x", "s_sleep 2", f"s_branch {L}", f"{L}_x:"]

    def w0(self, tag, code):
        L = f"K12{self.typ}_w0_{tag}"
        return [f"s_cmp_eq_u32 s{S_WV}, 0", f"s_cbranch_scc0 {L}"] + code + [f"{L}:"]

    def pre_barrier(self, h):
        typ = self.typ; T = VT
        if h == H_INIT:
            return [("stamp", 3, "init")] + self.w0("initchk", [("wait", ["initld"]), f"v_readfirstlane_b32 s{S_T4}, v{T+10}", "s_nop 0", f"s_cmp_ge_u32 s{S_T4}, {NZERO}", f"s_cbranch_scc1 K12{typ}_initok",
                                       f"v_mov_b32 v{T+9}, {DBG_INIT}"] + self.spin("init", S_DBG, T+9, NZERO) + [f"K12{typ}_initok:"]) + [("stamp", 4, "init")]
        if h == H_CNT:
            return [("stamp", 6, "init")] + self.w0("cntchk", [("wait", ["cntld"]), f"v_readfirstlane_b32 s{S_T4}, v{T+5}", "s_nop 0", f"s_cmp_ge_u32 s{S_T4}, 16", f"s_cbranch_scc1 K12{typ}_stok"]
                           + self.spin("st", S_WSP, T+7, 16) + [f"K12{typ}_stok:",
                           f"v_readfirstlane_b32 s{S_T4}, v{T+6}", "s_nop 0", f"s_cmp_ge_u32 s{S_T4}, 16", f"s_cbranch_scc1 K12{typ}_csok"]
                           + self.spin("cs", S_WSP, T+8, 16) + [f"K12{typ}_csok:"]) + [("stamp", 7, "init")]
        return []

    def oneshot_items(self, add, at):
        typ = self.typ; wsp = f"s[{S_WSP}:{S_WSP+1}]"; dbg = f"s[{S_DBG}:{S_DBG+1}]"
        T = VT
        for s in range(4):
            par = s & 1
            it = [f"s_cmp_eq_u32 s{S_KSC}, {s}", f"s_cbranch_scc0 K12{typ}_nocs{s}"]
            for blk in range(5):
                b = WF + 20*par + 4*blk
                it.append(f"v_mfma_f32_32x32x16_bf16 a[{CS_TMP+16*blk}:{CS_TMP+16*blk+15}], a[{A_ONES}:{A_ONES+3}], v[{b}:{b+3}], 0")
            it.append(f"K12{typ}_nocs{s}:")
            self.fixed.setdefault(s, []).append(it)
        self.fixed.setdefault(K_INITLD, []).append(self.w0("initld", [f"v_mov_b32 v{T+9}, {DBG_INIT}", f"s_mov_b64 s[{S_E0}:{S_E0+1}], exec", "s_mov_b64 exec, 1",
                                      ("vmu", "initld", f"global_load_dword v{T+10}, v{T+9}, {dbg} sc1"), f"s_mov_b64 exec, s[{S_E0}:{S_E0+1}]"]))
        it = [[f"v_accvgpr_read_b32 v{T+blk}, a{CS_TMP+16*blk}"] for blk in range(5)]
        at_ = [f"s_mov_b64 s[{S_E0}:{S_E0+1}], exec", "s_mov_b32 exec_hi, 0"]
        for blk in range(5):
            va, off = self.csa[blk]
            at_.append(("vm", f"csat{blk}", f"global_atomic_add_f32 v{va}, v{T+blk}, {wsp} offset:{off}"))
        at_.append(f"s_mov_b64 exec, s[{S_E0}:{S_E0+1}]")
        add(at(K_CSAT), it + [at_])
        self.fixed.setdefault(K_CNTLD, []).append(self.w0("cntld", [f"s_lshl_b32 s{S_T4}, s{S_T}, 7", f"s_add_u32 s{S_T4}, s{S_T4}, {WS_STCNT}", f"v_mov_b32 v{T+7}, s{S_T4}",
                          f"s_lshl_b32 s{S_T4}, s{S_CG}, 7", f"s_add_u32 s{S_T4}, s{S_T4}, {WS_CSCNT}", f"v_mov_b32 v{T+8}, s{S_T4}",
                          f"s_mov_b64 s[{S_E0}:{S_E0+1}], exec", "s_mov_b64 exec, 1",
                          f"!global_load_dword v{T+5}, v{T+7}, {wsp} sc1", ("vmu", "cntld", f"global_load_dword v{T+6}, v{T+8}, {wsp} sc1"),
                          f"s_mov_b64 exec, s[{S_E0}:{S_E0+1}]"]))
        VM = T; VCS = T + 2; VRB = T + 7
        lds = [[f"v_and_b32 v{T+8}, 31, v{VLANE}", f"s_lshl_b32 s{S_T4}, s{S_T}, 7", f"s_lshl_b32 s{S_T3}, s{S_WM}, 6", f"s_add_u32 s{S_T4}, s{S_T4}, s{S_T3}"],
               [f"v_add_u32 v{T+8}, s{S_T4}, v{T+8}", f"v_lshlrev_b32 v{T+8}, 2, v{T+8}", f"v_add_u32 v{T+9}, {WS_R}, v{T+8}"],
               [("vm", None, f"global_load_dword v{VM}, v{T+8}, {wsp} sc1")], [("vm", None, f"global_load_dword v{VM+1}, v{T+8}, {wsp} offset:128 sc1")],
               [("vm", None, f"global_load_dword v{VR}, v{T+9}, {wsp} sc1")], [("vm", None, f"global_load_dword v{VR+1}, v{T+9}, {wsp} offset:128 sc1")]]
        for blk in range(5):
            va, off = self.csa[blk]
            lds.append([("vm", "csld" if blk == 4 and typ == "A" else None, f"global_load_dword v{VCS+blk}, v{va}, {wsp} offset:{off} sc1")])
        if typ == "B":
            lds.append([f"s_lshl_b32 s{S_T4}, s{S_T}, 7", f"v_add_u32 v{T+8}, s{S_T4}, v{VTID}", f"v_lshlrev_b32 v{T+8}, 2, v{T+8}", f"v_add_u32 v{T+8}, {WS_R}, v{T+8}"])
            lds.append([("vm", "csld", f"global_load_dword v{VRB}, v{T+8}, {wsp} sc1")])
        add(at(2*H_CNT-1, 1), lds)
        if K_PT:
            add(at(K_PT), [[f"s_lshl_b32 s{S_T4}, s{S_TAU}, 16", f"s_lshl_b32 s{S_T3}, s{S_J}, 7", f"s_add_u32 s{S_T4}, s{S_T4}, s{S_T3}", f"v_mov_b32 v{T+9}, s{S_T4}"],
                           [f"s_mov_b64 s[{S_E0}:{S_E0+1}], exec", "s_mov_b64 exec, 1", ("vm", None, f"global_load_dword a224, v{T+9}, s[{P_O}:{P_O+1}]"), f"s_mov_b64 exec, s[{S_E0}:{S_E0+1}]"],
                           [f"v_mov_b32 v{T+9}, 0"],
                           [f"s_mov_b64 s[{S_E0}:{S_E0+1}], exec", "s_mov_b64 exec, 1", ("vm", None, f"global_load_dword a227, v{T+9}, s[{P_WO}:{P_WO+1}]"), f"s_mov_b64 exec, s[{S_E0}:{S_E0+1}]"]])
        if K_WOPF:
            it = [[f"s_lshl_b32 s{S_T4}, s{S_WV}, 17", f"s_and_b32 s{S_T3}, s{S_TAU}, 3", f"s_lshl_b32 s{S_T3}, s{S_T3}, 15", f"s_add_u32 s{S_T4}, s{S_T4}, s{S_T3}"],
                  [f"s_lshl_b32 s{S_T3}, s{S_J}, 7", f"s_add_u32 s{S_T4}, s{S_T4}, s{S_T3}", f"v_add_u32 v{T+9}, s{S_T4}, v{VDM}"]]
            for k in range(4):
                it.append([("vm", None, f"global_load_dwordx4 a[224:227], v{T+9}, s[{P_WO}:{P_WO+1}]")] + ([f"v_add_u32 v{T+9}, 8192, v{T+9}"] if k < 3 else []))
            add(at(K_WOPF), it)
        if CODE_PF2:
            add(at(CODE_PF2), [[f"s_getpc_b64 s[{S_E2}:{S_E2+1}]", f"K12{typ}_pc2:", f"s_lshr_b32 s{S_T4}, s2, 3", f"s_lshl_b32 s{S_T4}, s{S_T4}, 2", f"s_add_u32 s{S_T4}, s{S_T4}, s{S_WV}"],
                               [f"s_min_u32 s{S_T4}, s{S_T4}, ((K12_end-K12{typ}_pc2)>>10)-1", f"s_lshl_b32 s{S_T4}, s{S_T4}, 10", f"v_add_u32 v{T+9}, s{S_T4}, v{VL16}"],
                               [("vm", None, f"global_load_dwordx4 a[224:227], v{T+9}, s[{S_E2}:{S_E2+1}]")]])
        tt = T + 8; b = T + 10
        items = [[("wait", ["csld"])], [f"v_cmp_gt_u32 vcc, 32, v{VLANE}", "s_nop 1"]]
        for tb in range(2):
            items += [[f"v_cndmask_b32 v{tt}, 0, v{VM+tb}, vcc"], [f"v_cvt_pk_bf16_f32 v{b}, v{tt}, v{tt}"],
                      [f"v_and_b32 v{tt+1}, 0xffff0000, v{b}"], [f"v_sub_f32 v{tt+1}, v{tt}, v{tt+1}"],
                      [f"v_cvt_pk_bf16_f32 v{b+1}, v{tt+1}, 0"],
                      [f"v_accvgpr_write_b32 a{AMF+4*tb}, v{b}"], [f"v_accvgpr_write_b32 a{AMF+4*tb+1}, v{b+1}"],
                      [f"v_accvgpr_write_b32 a{AMF+4*tb+2}, 0"], [f"v_accvgpr_write_b32 a{AMF+4*tb+3}, 0"]]
        for blk in range(5):
            items += [[f"v_cndmask_b32 v{tt}, 0, v{VCS+blk}, vcc"], [f"v_sub_f32 v{tt}, 0, v{tt}"],
                      [f"v_cvt_pk_bf16_f32 v{b+1}, v{tt}, 0"], [f"v_lshlrev_b32 v{tt+1}, 16, v{b+1}"], [f"v_sub_f32 v{tt+1}, v{tt}, v{tt+1}"],
                      [f"v_cvt_pk_bf16_f32 v{b}, v{tt}, v{tt+1}"],
                      [f"v_accvgpr_write_b32 a{ACF+4*blk}, v{b}"], [f"v_accvgpr_write_b32 a{ACF+4*blk+1}, v{b+1}"],
                      [f"v_accvgpr_write_b32 a{ACF+4*blk+2}, 0"], [f"v_accvgpr_write_b32 a{ACF+4*blk+3}, 0"]]
        if typ == "B":
            items += [[f"v_lshlrev_b32 v{tt}, 2, v{VTID}"], [f"v_add_u32 v{tt}, {LDS_R}, v{tt}"],
                      [f"v_cmp_gt_u32 vcc, 128, v{VTID}", f"s_and_saveexec_b64 s[{S_E0}:{S_E0+1}], vcc", f"ds_write_b32 v{tt}, v{VRB}", f"s_mov_b64 exec, s[{S_E0}:{S_E0+1}]"]]
        add(at(K_RANK), items)

    def loop(self):
        A = self.A
        self.loop_start = len(A.l)
        steps = []
        for s in range(32):
            if s == CORR_AT: steps.append(("c", None))
            steps.append(("k", s))
        order_last = [b for b, kd in enumerate(self.kinds) if kd in ("gu","guh")] + [b for b, kd in enumerate(self.kinds) if kd not in ("gu","guh")]
        idx_of = {st: i for i, st in enumerate(steps)}
        def at(s, g=0): return (idx_of[("k", s)], g)
        flex = []; flex2 = []
        def add(pos, items):
            for it in items: flex.append((pos, it))
        def add2(pos, items):
            for it in items: flex2.append((pos, it))
        add(at(0), self.Wg(2))
        if not X1_EARLY: add(at(0), self.Xg(1))
        add(at(1, 1), self.Xg(2))
        for h in range(1, 14): add(at(2*h-1, 1), self.Wg(h+2))
        for sg in range(1, 6): add(at(4*sg-1, 1), self.Xg(sg+2))
        self.fixed = {}
        tagD = {}; tagR = {}; keep = []; placedR = {}
        self.oneshot_items(add, at)
        self.w2_done_R = []
        for i in range(N_IN):
            dd = self.w2.D(i); tagD[id(dd[0])] = i; keep.append(dd)
            add2(at(min(i+W2_START, 31)), dd)
            rr = self.w2.R(i); tagR[id(rr[-1])] = i; keep.append(rr)
            add2(at(min(i+W2_START+DLAG, 31)), rr); self.w2_done_R.append(i)
        flex.sort(key=lambda x: x[0])
        gaps_all = []
        flex2.sort(key=lambda x: x[0])
        queues = [list(flex), list(flex2)]
        for si, st in enumerate(steps):
            gaps = [[] for _ in range(10)]
            head = []
            if st[0] == "k":
                s = st[1]
                M = self.mfmas(s, order_last if s == 31 else None)
                head = ["s_waitcnt lgkmcnt(0)"]
                odd = s & 1
                if odd:
                    h = (s + 1)//2
                    if h <= 15:
                        ids = [f"W{h}_4"] + ([f"X{h//2}_3"] if h % 2 == 0 else [])
                        if h == H_INIT: ids.append("stst")
                        if ZLATE and h == H_Z: ids.append("zst")
                        if h == H_CS: ids.append("csat4")
                        if STAMP and SMODE == "wait":
                            gaps[0] += self.pre_barrier(h) + [("wait", ids), "s_memtime s[98:99]", "s_waitcnt lgkmcnt(0)", "s_barrier", "s_memtime s[100:101]", "s_waitcnt lgkmcnt(0)", "s_sub_u32 s100, s100, s98", f"s_add_u32 s{SB+12}, s{SB+12}, s100"]
                        else:
                            gaps[0] += self.pre_barrier(h) + [("wait", ids), "s_barrier"]
                        if ZLATE and h == H_Z: gaps[0] += self.sig(f"s_cmp_lt_u32 s2, {NZERO}", S_DBG, DBG_INIT, None, "init")
                        if h == H_INIT: gaps[0] += self.sig(None, S_WSP, WS_STCNT, S_T, "st")
                        if h == H_CS: gaps[0] += self.sig(None, S_WSP, WS_CSCNT, S_CG, "cs")
                    else:
                        gaps[0] += ["s_barrier"]
                nxt = s + 1
                if nxt < 32:
                    rd = self.reads(nxt)
                    g0 = 1 if odd else 0
                    for i, x in enumerate(rd): gaps[g0 + i//2].append(x)
            else:
                M = self.corr(); head = ["s_waitcnt lgkmcnt(0)"]
            if st[0] == "k" and st[1] in self.fixed:
                for it in self.fixed[st[1]]: gaps[9] += it
            for qi in range(2):
                pending = queues[qi]
                gi = 0
                rest = []
                blocked = False
                for (pos, it) in pending:
                    if blocked or pos[0] > si:
                        rest.append((pos, it)); continue
                    if id(it) in tagD and placedR.get(tagD[id(it)] - NSL, -1) == si:
                        rest.append((pos, it)); blocked = True; continue
                    if id(it) in tagD and tagD[id(it)] >= NSL and (tagD[id(it)] - NSL) not in placedR:
                        rest.append((pos, it)); blocked = True; continue
                    g = max(gi, pos[1] if pos[0] == si else 0)
                    need = 2 if (isinstance(it, tuple) and it[0] == "dma") else len(it)
                    while g < 10 and len(gaps[g]) + min(need, CAP) > CAP: g += 1
                    if g >= 10:
                        rest.append((pos, it)); blocked = True; continue
                    if id(it) in tagR: placedR[tagR[id(it)]] = si
                    if isinstance(it, tuple) and it[0] == "dma":
                        gaps[g].append(it[1]); gaps[g].append("__NOP__"); gaps[g].append(it[2]); gi = g + 1
                    else:
                        gaps[g] += it; gi = g
                queues[qi] = rest
            for g in gaps:
                while "__NOP__" in g:
                    i = g.index("__NOP__")
                    cand = [j for j in range(i-1) if isinstance(g[j], str) and g[j].startswith("ds_read")]
                    if cand:
                        x = g.pop(cand[-1]); i -= 1; g[i] = x
                    else: g[i] = "s_nop 0"
            if st[0] == "k" and st[1] % 4 == 0 and st[1] > 0: A.stamp(st[1]//4, "loop")
            for x in head: A(x)
            for i in range(10):
                A(M[i])
                for x in gaps[i]:
                    if x == "__WOSRD__":
                        assert "W15_4" in A.ids
                        A(f"s_lshl_b32 s{S_T0}, s{S_J}, 7"); A(f"s_lshl_b32 s{S_T1}, s{S_WV}, 17"); A(f"s_add_u32 s{S_T0}, s{S_T0}, s{S_T1}")
                        srd_off(A, S_WO, P_WO, P_WO+1, f"s{S_T0}", 512*1024)
                    else: A(x)
        assert not queues[0], queues[0][:3]
        self.leftover = queues[1]
        for (pos, it) in self.leftover:
            if id(it) in tagD: A("s_waitcnt lgkmcnt(0)")
            if it == ["__WOSRD__"]:
                A(f"s_lshl_b32 s{S_T0}, s{S_J}, 7"); A(f"s_lshl_b32 s{S_T1}, s{S_WV}, 17"); A(f"s_add_u32 s{S_T0}, s{S_T0}, s{S_T1}")
                srd_off(A, S_WO, P_WO, P_WO+1, f"s{S_T0}", 512*1024)
            else: emit_items(A, [it])
        self.nleft = len(self.leftover)
        txt = A.l
        for i in range(N_IN - NSL):
            rd = [n for n, x in enumerate(txt) if n > self.loop_start and "ds_read_b64_tr_b16 a[%d:" % (8*i+6) in x]
            if not rd: continue
            pos_r = rd[-1]; pos_d = A.pos[f"w2_{i+NSL}_0"]
            assert pos_d > pos_r and any("lgkmcnt(0)" in x for x in txt[pos_r:pos_d]), ("no lgkm wait", i)

    def flag_addr(self, slot_imm):
        A = self.A
        FA, ONE = VT+4, VT+5
        A(f"v_mov_b32 v{ONE}, 1")
        A(f"s_lshl_b32 s{S_T0}, s{S_T}, 1"); A(f"s_add_u32 s{S_T0}, s{S_T0}, s{S_WM}"); A(f"s_lshl_b32 s{S_T0}, s{S_T0}, 2")
        A(f"s_lshr_b32 s{S_T1}, s{S_IDX}, 1"); A(f"s_add_u32 s{S_T0}, s{S_T0}, s{S_T1}"); A(f"s_lshl_b32 s{S_T0}, s{S_T0}, 4")
        A(f"s_lshl_b32 s{S_T1}, s{S_I1}, 1"); A(f"s_add_u32 s{S_T0}, s{S_T0}, s{S_T1}"); A(f"s_add_u32 s{S_T0}, s{S_T0}, s{S_WN}")
        A(f"s_add_u32 s{S_T0}, s{S_T0}, {slot_imm}"); A(f"s_lshl_b32 s{S_T0}, s{S_T0}, 2"); A(f"s_add_u32 s{S_T0}, s{S_T0}, {WS_FLAG}")
        A(f"v_mov_b32 v{FA}, s{S_T0}")
        A(f"s_mov_b64 s[{S_E0}:{S_E0+1}], exec"); A("s_mov_b64 exec, 1")
    def flag_fire(self):
        A = self.A
        A.vm(f"global_store_dword v{VT+4}, v{VT+5}, s[{S_WSP}:{S_WSP+1}] sc1")
        A(f"s_mov_b64 exec, s[{S_E0}:{S_E0+1}]")
    def flag_store(self, slot_imm, FA, ONE):
        self.flag_addr(slot_imm); self.flag_fire()
    def early_flag_load(self):
        A = self.A
        A(f"s_lshl_b32 s{S_T0}, s{S_TAU}, 2"); A(f"s_add_u32 s{S_T0}, s{S_T0}, s{S_WV}"); A(f"s_lshl_b32 s{S_T0}, s{S_T0}, 6"); A(f"s_add_u32 s{S_T0}, s{S_T0}, {WS_FLAG}")
        A(f"v_lshlrev_b32 v32, 2, v{VLANE}"); A(f"v_add_u32 v32, s{S_T0}, v32")
        A("s_mov_b64 exec, 255"); A.vm(f"global_load_dword v33, v32, s[{S_WSP}:{S_WSP+1}] sc1", id="eflag"); A("s_mov_b64 exec, -1")

    def transition(self):
        A, typ, kinds = self.A, self.typ, self.kinds
        w2 = self.w2
        tt = VT
        state = {"D": N_IN, "R": N_IN}
        A.stamp(1, "tr")
        A("s_waitcnt lgkmcnt(0)")
        A("s_barrier")
        A(f"s_mul_i32 s{S_T0}, s{S_WV}, {NPOST*2048}"); A(f"s_add_u32 s{S_T0}, s{S_T0}, {W2POST}")
        A(f"s_sub_u32 s{S_T1}, s{S_T0}, s{S_LB}"); A(f"s_mov_b32 s{S_LB}, s{S_T0}")
        A(f"v_add_u32 v{VTR}, s{S_T1}, v{VTR}"); A(f"v_xor_b32 v{VTR1}, 64, v{VTR}")
        A(f"s_lshl_b32 s{S_T0}, s{S_J}, 7"); A(f"s_lshl_b32 s{S_T1}, s{S_WV}, 17"); A(f"s_add_u32 s{S_T0}, s{S_T0}, s{S_T1}")
        srd_off(A, S_WO, P_WO, P_WO+1, f"s{S_T0}", 512*1024)
        def bgD(n=1):
            for _ in range(n):
                i = state["D"]
                if i >= 36 or i - state["R"] >= NPOST: return
                emit_items(A, w2.D(i)); state["D"] += 1
        def bgR(n=1):
            for _ in range(n):
                i = state["R"]
                if i >= state["D"]: return
                if i >= 32 and not state.get("vfree"): return
                emit_items(A, w2.R(i)); state["R"] += 1
        def bgD_safe(n=1):
            A("s_waitcnt lgkmcnt(0)"); bgD(n)
        A(f"s_lshl_b32 s{S_T0}, s{S_T}, 1"); A(f"s_add_u32 s{S_T0}, s{S_T0}, s{S_WM}"); A(f"s_lshl_b32 s{S_T0}, s{S_T0}, 2")
        A(f"s_lshr_b32 s{S_T1}, s{S_IDX}, 1"); A(f"s_add_u32 s{S_T0}, s{S_T0}, s{S_T1}"); A(f"s_mul_i32 s{S_HB}, s{S_T0}, {36*2048}")
        A(f"s_and_b32 s{S_I1}, s{S_IDX}, 1")
        I1 = S_I1
        R2 = XF
        for tb in range(2):
            A(f"v_mul_f32 v{R2+2*tb}, v{VR+tb}, v{VR+tb}"); A(f"v_mul_f32 v{R2+2*tb+1}, v{VR+tb}, v{VR+tb}")
        PK = WF
        nst = 0
        gublks = [b for b, kd in enumerate(kinds) if kd in ("gu", "guh")]
        lasth = None
        for blk in gublks:
            kd = kinds[blk]
            if typ == "A":
                if blk == 0:
                    A(f"s_lshl_b32 s{S_T2}, s{I1}, 1"); A(f"s_add_u32 s{S_T2}, s{S_T2}, s{S_WN}"); A(f"s_lshl_b32 s{S_T2}, s{S_T2}, 13"); A(f"s_add_u32 s{S_T2}, s{S_T2}, s{S_HB}")
                else: A(f"s_add_u32 s{S_T2}, s{S_T2}, 2048")
            elif kd == "gu":
                if blk == 2:
                    A(f"s_lshl_b32 s{S_T2}, s{I1}, 2"); A(f"s_lshl_b32 s{S_T3}, s{S_WN}, 1"); A(f"s_add_u32 s{S_T2}, s{S_T2}, s{S_T3}"); A(f"s_add_u32 s{S_T2}, s{S_T2}, 16")
                    A(f"s_lshl_b32 s{S_T2}, s{S_T2}, 11"); A(f"s_add_u32 s{S_T2}, s{S_T2}, s{S_HB}")
                else: A(f"s_add_u32 s{S_T2}, s{S_T2}, 2048")
            else:
                A(f"s_lshl_b32 s{S_T2}, s{I1}, 1"); A(f"s_add_u32 s{S_T2}, s{S_T2}, s{S_WN}"); A(f"s_add_u32 s{S_T2}, s{S_T2}, 24")
                A(f"s_lshl_b32 s{S_T2}, s{S_T2}, 11"); A(f"s_add_u32 s{S_T2}, s{S_T2}, s{S_HB}")
            for tb in range(2):
                a = acc(blk, tb); pk = PK + 4*(nst % 4); nst += 1
                for i in range(4): A(f"v_pk_mul_f32 v[{a+2*i}:{a+2*i+1}], v[{a+2*i}:{a+2*i+1}], v[{a+8+2*i}:{a+8+2*i+1}]")
                for i in range(4): A(f"v_pk_mul_f32 v[{a+2*i}:{a+2*i+1}], v[{a+2*i}:{a+2*i+1}], v[{R2+2*tb}:{R2+2*tb+1}]")
                for i in range(4): A(f"v_cvt_pk_bf16_f32 v{pk+i}, v{a+2*i}, v{a+2*i+1}")
                lasth = f"hs_{blk}_{tb}"
                A.vm(f"buffer_store_dwordx4 v[{pk}:{pk+3}], v{VL16}, s[{S_H}:{S_H+3}], s{S_T2} offen offset:{tb*1024} sc1", id=lasth)
        assert (not LATE_R) or 36 - N_IN <= NPOST
        A.stamp(5); A.stamp(2, "tr")
        FA, ONE = VT+4, VT+5
        A(f"s_mov_b32 s{S_C6}, 0x358637bd"); A(f"s_mov_b32 s{S_C6+1}, 0x358637bd")
        C6 = f"s[{S_C6}:{S_C6+1}]"
        if typ == "A":
            A(f"s_lshl_b32 s{S_T2}, s{I1}, 2"); A(f"s_lshl_b32 s{S_T3}, s{S_WN}, 1"); A(f"s_add_u32 s{S_T2}, s{S_T2}, s{S_T3}"); A(f"s_add_u32 s{S_T2}, s{S_T2}, 28")
            A(f"s_lshl_b32 s{S_T2}, s{S_T2}, 11"); A(f"s_add_u32 s{S_T4}, s{S_T2}, s{S_HB}"); A(f"s_add_u32 s{S_XO}, s{S_T4}, 2048")
            A(f"s_mov_b32 s22, s{S_T4}"); A(f"s_mov_b32 s23, s{S_XO}")
            RP = XF + 4; RLP = XF + 6
            for tb in range(2):
                a = acc(4, tb)
                A(f"v_mov_b32 v{RP}, v{VR+tb}"); A(f"v_mov_b32 v{RP+1}, v{VR+tb}")
                A(f"v_mul_f32 v{RLP}, 0x3fb8aa3b, v{VR+tb}"); A(f"v_mul_f32 v{RLP+1}, 0x3fb8aa3b, v{VR+tb}")
                for i in range(0, 16, 4):
                    for j in (0, 2): A(f"v_pk_mul_f32 v[{tt+j}:{tt+j+1}], v[{a+i+j}:{a+i+j+1}], v[{RLP}:{RLP+1}]")
                    for j in (0, 2): A(f"v_pk_fma_f32 v[{a+i+j}:{a+i+j+1}], v[{a+i+j}:{a+i+j+1}], v[{RP}:{RP+1}], {C6}")
                    for j in range(4): A(f"v_exp_f32_e64 v{tt+j}, v{tt+j} clamp")
                    for j in range(4): A(f"v_max_f32 v{a+i+j}, s{S_C6}, v{a+i+j}")
                    for j in (0, 2): A(f"v_pk_add_f32 v[{a+i+j}:{a+i+j+1}], v[{a+i+j}:{a+i+j+1}], v[{tt+j}:{tt+j+1}]")
                    if PHI_D: bgD(1)
                if tb == 0 and FLAG_TB_A == 0:
                    A.stamp(3, "tr"); self.flag_addr(0); A.wait(lasth); self.flag_fire(); A.stamp(4, "tr")
                    if LATE_R == 1: bgD(36 - N_IN)
                if FASTG2 and tb == 1: self.early_flag_load()
                for hs in range(2):
                    pk = (128 + 4*(2*tb + hs)) if (DEFER or PQ_LATE) else PK + 4*(nst % 4); nst += 1
                    for i in range(4): A(f"v_cvt_pk_bf16_f32 v{pk+i}, v{a+8*hs+2*i}, v{a+8*hs+2*i+1}")
                    if not (DEFER or PQ_LATE): A.vm(f"buffer_store_dwordx4 v[{pk}:{pk+3}], v{VL16}, s[{S_H}:{S_H+3}], s{S_XO if hs else S_T4} offen offset:{tb*1024} sc1", id=f"pq_{tb}_{hs}")
            if FLAG_TB_A == 1:
                A.stamp(3, "tr"); self.flag_addr(0); A.wait(lasth); self.flag_fire(); A.stamp(4, "tr")
            if PQ_LATE and not DEFER:
                for tb in range(2):
                    for hs in range(2):
                        pk = 128 + 4*(2*tb + hs)
                        A.vm(f"buffer_store_dwordx4 v[{pk}:{pk+3}], v{VL16}, s[{S_H}:{S_H+3}], s{23 if hs else 22} offen offset:{tb*1024} sc1")
            bgD(11)
            state["vfree"] = True
            A.stamp(5, "tr")
        else:
            RR = WF; RL = WF + 16; TK = WF + 32; TV = VT + 6
            ONES = XF + 4
            for i in range(4): A(f"v_mov_b32 v{ONES+i}, 0x3f803f80")
            A(f"v_lshrrev_b32 v{tt}, 5, v{VLANE}"); A(f"v_lshlrev_b32 v{tt}, 4, v{tt}")
            A(f"s_lshl_b32 s{S_T0}, s{S_WM}, 8"); A(f"s_add_u32 s{S_T0}, s{S_T0}, {LDS_R}"); A(f"v_add_u32 v{XF+9}, s{S_T0}, v{tt}")
            D2, DZ = acc(2,0), acc(2,1)
            for tb in range(2):
                for q4 in range(4): A(f"ds_read_b128 v[{RR+4*q4}:{RR+4*q4+3}], v{XF+9} offset:{tb*128 + q4*32}")
                A("s_waitcnt lgkmcnt(0)")
                A(f"s_mov_b32 s{S_T0}, 0x3fb8aa3b"); A(f"s_mov_b32 s{S_T1}, 0x3fb8aa3b")
                for i in range(8): A(f"v_pk_mul_f32 v[{RL+2*i}:{RL+2*i+1}], v[{RR+2*i}:{RR+2*i+1}], s[{S_T0}:{S_T1}]")
                a = acc(0, tb); av = acc(1, tb)
                for i in range(0, 16, 4):
                    for j in (0, 2): A(f"v_pk_mul_f32 v[{tt+j}:{tt+j+1}], v[{a+i+j}:{a+i+j+1}], v[{RL+i+j}:{RL+i+j+1}]")
                    for j in (0, 2): A(f"v_pk_fma_f32 v[{a+i+j}:{a+i+j+1}], v[{a+i+j}:{a+i+j+1}], v[{RR+i+j}:{RR+i+j+1}], {C6}")
                    for j in range(4): A(f"v_exp_f32_e64 v{tt+j}, v{tt+j} clamp")
                    for j in range(4): A(f"v_max_f32 v{a+i+j}, s{S_C6}, v{a+i+j}")
                    for j in (0, 2): A(f"v_pk_add_f32 v[{a+i+j}:{a+i+j+1}], v[{a+i+j}:{a+i+j+1}], v[{tt+j}:{tt+j+1}]")
                    if PHI_D: bgD(1)
                for i in range(8): A(f"v_pk_mul_f32 v[{av+2*i}:{av+2*i+1}], v[{av+2*i}:{av+2*i+1}], v[{RR+2*i}:{RR+2*i+1}]")
                for i in range(8): A(f"v_cvt_pk_bf16_f32 v{TK+i}, v{a+2*i}, v{a+2*i+1}")
                for i in range(8): A(f"v_cvt_pk_bf16_f32 v{TV+i}, v{av+2*i}, v{av+2*i+1}")
                A("s_nop 1")
                for f in range(2):
                    c = "0" if (tb == 0 and f == 0) else None
                    A(f"v_mfma_f32_32x32x16_bf16 v[{D2}:{D2+15}], v[{TK+4*f}:{TK+4*f+3}], v[{TV+4*f}:{TV+4*f+3}], {c or f'v[{D2}:{D2+15}]'}")
                    A(f"v_mfma_f32_32x32x16_bf16 v[{DZ}:{DZ+15}], v[{TK+4*f}:{TK+4*f+3}], v[{ONES}:{ONES+3}], {c or f'v[{DZ}:{DZ+15}]'}")
                if tb == FLAG_TB:
                    A.stamp(3, "tr"); self.flag_addr(4); A.wait(lasth); self.flag_fire(); A.stamp(4, "tr")
                    if LATE_R == 1 and B_EARLY_D: bgD(36 - N_IN)
            if PHI_D: bgD(3)
            A(f"v_and_b32 v{tt}, 31, v{VLANE}"); A(f"v_cmp_gt_u32 vcc, 16, v{tt}")
            A(f"s_lshl_b32 s{S_T0}, s{S_WM}, 13"); A(f"s_lshl_b32 s{S_T1}, s{S_WN}, 12"); A(f"s_add_u32 s{S_T0}, s{S_T0}, s{S_T1}"); A(f"s_add_u32 s{S_T0}, s{S_T0}, {LDS_KV}")
            A(f"v_lshlrev_b32 v{tt}, 2, v{VLANE}"); A(f"v_add_u32 v{tt}, s{S_T0}, v{tt}")
            A("s_nop 7"); A("s_nop 3")
            for r_ in range(16):
                if r_ < 8: A(f"v_cndmask_b32 v{D2+r_}, v{DZ+r_}, v{D2+r_}, vcc")
                else: A(f"v_cndmask_b32 v{D2+r_}, v{D2+r_}, v{DZ+r_}, vcc")
            for r_ in range(16): A(f"ds_write_b32 v{tt}, v{D2+r_} offset:{r_*256}")
            A("s_waitcnt lgkmcnt(0)"); A("s_barrier")
            A(f"s_lshr_b32 s{S_T0}, s{S_WV}, 1"); A(f"s_lshl_b32 s{S_T0}, s{S_T0}, 12"); A(f"s_add_u32 s{S_T0}, s{S_T0}, {LDS_KV}")
            A(f"s_and_b32 s{S_T2}, s{S_WV}, 1")
            A(f"s_mul_i32 s{S_T3}, s{S_T2}, {8*256}"); A(f"s_add_u32 s{S_T0}, s{S_T0}, s{S_T3}")
            A(f"s_lshl_b32 s{S_T3}, s{S_T2}, 6")
            A(f"s_lshl_b32 s{S_T1}, s{S_IDX}, 2"); A(f"s_add_u32 s{S_T1}, s{S_T1}, s{S_WV}")
            A(f"s_mul_i32 s{S_T1}, s{S_T1}, {KV_HEAD}"); A(f"s_add_u32 s{S_T1}, s{S_T1}, {WS_KV}")
            A(f"v_and_b32 v{tt}, 7, v{VLANE}"); A(f"v_lshlrev_b32 v{tt}, 8, v{tt}"); A(f"v_add_u32 v{tt}, s{S_T0}, v{tt}")
            A(f"v_lshrrev_b32 v{tt+1}, 3, v{VLANE}"); A(f"v_lshlrev_b32 v{tt+1}, 2, v{tt+1}")
            A(f"v_add_u32 v{tt+2}, v{tt}, v{tt+1}"); A(f"v_add_u32 v{tt+2}, s{S_T3}, v{tt+2}")
            B0 = ACC
            for n in range(4):
                off = (32*(n>>1) + 8*(n&1))*4
                A(f"ds_read_b32 v{B0+2*n}, v{tt+2} offset:{off}"); A(f"ds_read_b32 v{B0+2*n+1}, v{tt+2} offset:{off+8192}")
            A(f"s_sub_u32 s{S_T3}, 64, s{S_T3}")
            A(f"v_lshlrev_b32 v{tt+3}, 5, v{tt+1}"); A(f"v_add_u32 v{tt+3}, v{tt+3}, v{tt}"); A(f"v_add_u32 v{tt+3}, s{S_T3}, v{tt+3}")
            A(f"v_cmp_gt_u32 vcc, 16, v{VLANE}"); A(f"s_and_saveexec_b64 s[{S_E0}:{S_E0+1}], vcc")
            A(f"ds_read_b32 v{B0+8}, v{tt+3}"); A(f"ds_read_b32 v{B0+9}, v{tt+3} offset:8192")
            A(f"s_mov_b64 exec, s[{S_E0}:{S_E0+1}]")
            A(f"v_lshlrev_b32 v{tt+2}, 2, v{VLANE}"); A(f"v_add_u32 v{tt+2}, s{S_T1}, v{tt+2}")
            A("s_waitcnt lgkmcnt(0)")
            if DEFER:
                for n in range(5): A(f"v_add_f32 v{128+n}, v{B0+2*n}, v{B0+2*n+1}")
                A(f"v_mov_b32 v133, v{tt+2}")
            else:
                if FASTG2:
                    A(f"s_mov_b32 s{S_XO}, s{S_T1}")
                    self.early_flag_load()
                for n in range(4):
                    A(f"v_add_f32 v{B0+2*n}, v{B0+2*n}, v{B0+2*n+1}")
                    A.vm(f"global_atomic_add_f32 v{tt+2}, v{B0+2*n}, s[{S_WSP}:{S_WSP+1}] offset:{n*256}")
                A(f"v_add_f32 v{B0+8}, v{B0+8}, v{B0+9}")
                A(f"s_and_saveexec_b64 s[{S_E0}:{S_E0+1}], vcc")
                A.vm(f"global_atomic_add_f32 v{tt+2}, v{B0+8}, s[{S_WSP}:{S_WSP+1}] offset:1024", id="kvat")
                A(f"s_mov_b64 exec, s[{S_E0}:{S_E0+1}]")
            bgD(11)
            state["vfree"] = True
            A.stamp(5, "tr")
        if FASTG2: A.wait("eflag")
        A.stamp(6); A.stamp(6, "tr")
        if not LATE_R:
            while state["R"] < 36:
                bgR(3); bgD_safe(3)
            A("s_waitcnt lgkmcnt(0)")

class G2:
    ACC2 = 0; HB = 64; NH = 32; W2V = 192
    def __init__(self, A): self.A = A; self.w2 = W2(A)
    def poll(self, label, vaddr, nl, expect=None, novm=False):
        A = self.A; T = VT
        A(f"s_mov_b32 s{S_T3}, 0")
        A(f"s_mov_b64 s[{S_E0}:{S_E0+1}], exec"); A(f"s_mov_b64 exec, {(1<<nl)-1}")
        A.label(label)
        if novm: A.l.append(f"  global_load_dword v{T+9}, v{vaddr}, s[{S_WSP}:{S_WSP+1}] sc1")
        else: A.vm(f"global_load_dword v{T+9}, v{vaddr}, s[{S_WSP}:{S_WSP+1}] sc1")
        A("s_waitcnt vmcnt(0)")
        if expect is None: A(f"v_cmp_ne_u32 vcc, 0, v{T+9}")
        else: A(f"v_cmp_le_u32 vcc, {expect}, v{T+9}")
        A(f"s_add_u32 s{S_T3}, s{S_T3}, 1")
        A(f"s_cmp_ge_u32 s{S_T3}, {POLL_MAX}"); A(f"s_cbranch_scc1 {label}_x")
        A(f"s_cmp_eq_u64 vcc, exec"); A(f"s_cbranch_scc1 {label}_x")
        A("s_sleep 1"); A(f"s_branch {label}")
        A.label(label + "_x")
        A(f"s_mov_b64 exec, s[{S_E0}:{S_E0+1}]")
    def check(self, label, vreg, nl, expect=None):
        pass
    def body(self):
        A = self.A; T = VT; VL = VLANE
        ACC2 = 0; HB = 64; NH = 16; KVR0 = 128
        A.reset_vm()
        VFL, VKV, VCN = T+10, T+11, T+12
        VF1, VF2 = T+8, T+9
        srd(A, S_O, P_O, P_O+1, 2048*1024)
        srd(A, S_XX, P_X, P_X+1, 2048*1024)
        A(f"s_lshl_b32 s{S_HO}, s{S_TAU}, 2"); A(f"s_add_u32 s{S_HO}, s{S_HO}, s{S_WV}")
        A(f"s_lshl_b32 s{S_T0}, s{S_HO}, 6"); A(f"s_add_u32 s{S_T0}, s{S_T0}, {WS_FLAG}")
        A(f"v_lshlrev_b32 v{VFL}, 2, v{VL}"); A(f"v_add_u32 v{VFL}, s{S_T0}, v{VFL}")
        A(f"s_mul_i32 s{S_HO}, s{S_HO}, {36*2048}")
        A(f"s_add_u32 s{S_T4}, s{S_HO}, {56*1024}")
        A(f"s_mov_b32 s{S_HBASE}, s{S_HO}"); A(f"s_lshl_b32 s{S_HR}, s{S_RHO}, 11")
        A(f"v_and_b32 v{T}, 31, v{VL}"); A(f"v_lshrrev_b32 v{T+1}, 5, v{VL}")
        A(f"v_lshlrev_b32 v{T+2}, 4, v{T+1}"); A(f"v_add_u32 v{T+2}, v{T+2}, v{T}"); A(f"v_subrev_u32 v{T+2}, 16, v{T+2}"); A(f"v_lshlrev_b32 v{T+2}, 5, v{T+2}")
        A(f"v_lshlrev_b32 v{T+3}, 5, v{T+1}"); A(f"v_add_u32 v{T+3}, 1024, v{T+3}")
        A(f"v_cmp_gt_u32 vcc, 16, v{T}"); A("s_nop 1"); A(f"v_cndmask_b32 v{T+2}, v{T+2}, v{T+3}, vcc")
        A(f"s_lshl_b32 s{S_T0}, s{S_WV}, 3"); A(f"s_mul_i32 s{S_T0}, s{S_T0}, {KV_HEAD}"); A(f"s_add_u32 s{S_T0}, s{S_T0}, {WS_KV}")
        A(f"v_add_u32 v{VKV}, s{S_T0}, v{T+2}")
        A(f"s_lshl_b32 s{S_T0}, s{S_WV}, 9"); A(f"s_add_u32 s{S_T0}, s{S_T0}, {WS_KVCNT}")
        A(f"v_lshlrev_b32 v{VCN}, 6, v{VL}"); A(f"v_add_u32 v{VCN}, s{S_T0}, v{VCN}")
        A("s_barrier")
        def signal_block(sfx=''):
            A(f"s_cmp_ge_u32 s{S_CP}, 2"); A(f"s_cbranch_scc1 K12_sigB{sfx}")
            A(f"s_lshl_b32 s{S_T0}, s{S_T}, 1"); A(f"s_add_u32 s{S_T0}, s{S_T0}, s{S_WM}"); A(f"s_lshl_b32 s{S_T0}, s{S_T0}, 2")
            A(f"s_lshr_b32 s{S_T1}, s{S_IDX}, 1"); A(f"s_add_u32 s{S_T0}, s{S_T0}, s{S_T1}"); A(f"s_lshl_b32 s{S_T0}, s{S_T0}, 4")
            A(f"s_lshl_b32 s{S_T1}, s{S_I1}, 1"); A(f"s_add_u32 s{S_T0}, s{S_T0}, s{S_T1}"); A(f"s_add_u32 s{S_T0}, s{S_T0}, s{S_WN}")
            A(f"s_add_u32 s{S_T0}, s{S_T0}, 8"); A(f"s_lshl_b32 s{S_T0}, s{S_T0}, 2"); A(f"s_add_u32 s{S_T0}, s{S_T0}, {WS_FLAG}")
            A(f"v_mov_b32 v{T+4}, s{S_T0}"); A(f"v_mov_b32 v{T+5}, 1")
            A(f"s_mov_b64 s[{S_E0}:{S_E0+1}], exec"); A("s_mov_b64 exec, 1")
            A(f"!global_store_dword v{T+4}, v{T+5}, s[{S_WSP}:{S_WSP+1}] sc1")
            A(f"s_mov_b64 exec, s[{S_E0}:{S_E0+1}]"); A(f"s_branch K12_sigX{sfx}")
            A(f"K12_sigB{sfx}:")
            A(f"s_lshl_b32 s{S_T0}, s{S_IDX}, 2"); A(f"s_add_u32 s{S_T0}, s{S_T0}, s{S_WV}"); A(f"s_lshl_b32 s{S_T0}, s{S_T0}, 6"); A(f"s_add_u32 s{S_T0}, s{S_T0}, {WS_KVCNT}")
            A(f"v_mov_b32 v{T+4}, s{S_T0}"); A(f"v_mov_b32 v{T+5}, 1")
            A(f"s_mov_b64 s[{S_E0}:{S_E0+1}], exec"); A("s_mov_b64 exec, 1")
            A(f"!global_atomic_add v{T+4}, v{T+5}, s[{S_WSP}:{S_WSP+1}] sc1")
            A(f"s_mov_b64 exec, s[{S_E0}:{S_E0+1}]")
            A(f"K12_sigX{sfx}:")
        if FASTG2:
            A("s_mov_b64 exec, 255"); A(f"v_cmp_ne_u32 vcc, 0, v33"); A("s_nop 3"); A("s_cmp_eq_u64 vcc, exec"); A("s_mov_b64 exec, -1")
            A(f"s_cselect_b32 s{S_XO}, 1, 0")
            A("s_cbranch_scc1 K12_hok")
            A("s_waitcnt vmcnt(0)")
            signal_block()
        elif not DEFER:
            if EARLY_POLL:
                A("s_mov_b64 exec, 255"); A.vm(f"global_load_dword v{T+9}, v{VFL}, s[{S_WSP}:{S_WSP+1}] sc1"); A("s_mov_b64 exec, -1")
            A("s_waitcnt vmcnt(0)")
            signal_block()
        if OUT_TOUCH:
            A(f"s_lshl_b32 s{S_T0}, s{S_TAU}, 16"); A(f"s_lshl_b32 s{S_T1}, s{S_J}, 7"); A(f"s_add_u32 s{S_T0}, s{S_T0}, s{S_T1}"); A(f"v_mov_b32 v{T+6}, s{S_T0}")
            A("s_mov_b64 exec, 1"); A.vm(f"global_load_dword v{T+7}, v{T+6}, s[{P_O}:{P_O+1}]"); A("s_mov_b64 exec, -1")
        A.stamp(7); A.stamp(7, "tr")
        if EARLY_POLL and not DEFER and not FASTG2:
            A("s_mov_b64 exec, 255"); A(f"v_cmp_ne_u32 vcc, 0, v{T+9}"); A("s_nop 3"); A("s_cmp_eq_u64 vcc, exec"); A("s_mov_b64 exec, -1")
            A("s_cbranch_scc1 K12_hok")
        self.poll("K12_pollH", VFL, 8)
        A("K12_hok:")
        A.stamp(8, "tr")
        A.stamp(8); A.stamp(1, "g2")
        hstate = {"off": 0}
        def h_items(f):
            o = []
            hb = HB + 4*(f % NH)
            if f % 2 == 0: o.append(f"s_add_u32 s{S_HO}, s{S_HBASE}, s{S_HR}")
            o.append(("vm", f"h{f}", f"buffer_load_dwordx4 v[{hb}:{hb+3}], v{VL16}, s[{S_H}:{S_H+3}], s{S_HO} offen offset:{(f%2)*1024} sc1"))
            if f % 2 == 1 and f < 55:
                o += [f"s_add_u32 s{S_HR}, s{S_HR}, 2048", f"s_cmp_eq_u32 s{S_HR}, {28*2048}", f"s_cselect_b32 s{S_HR}, 0, s{S_HR}"]
            return o
        def pq_items(g):
            return [f"s_add_u32 s{S_HO}, s{S_T4}, {(g//4)*4096}",
                    ("vm", f"pq{g}", f"buffer_load_dwordx4 a[{4*g}:{4*g+3}], v{VL16}, s[{S_H}:{S_H+3}], s{S_HO} offen offset:{(g%4)*1024} sc1")]
        def kv_items(h):
            b = KVR0 + 8*h
            pre = [f"s_mov_b64 exec, s[{S_C6}:{S_C6+1}]"] if KVMASK else []
            post = ["s_mov_b64 exec, -1"] if KVMASK else []
            return pre + [("vm", None, f"global_load_dwordx4 v[{b}:{b+3}], v{VKV}, s[{S_WSP}:{S_WSP+1}] sc1"),
                    ("vm", f"kv{h}", f"global_load_dwordx4 v[{b+4}:{b+7}], v{VKV}, s[{S_WSP}:{S_WSP+1}] offset:16 sc1")] + post + [
                    f"v_add_u32 v{VKV}, {KV_HEAD}, v{VKV}"]
        if KVMASK:
            A(f"s_mov_b32 s{S_C6}, 0xffff0011"); A(f"s_mov_b32 s{S_C6+1}, 0xffff0011")
        AHEAD = G2_AHEAD
        KVB = [KVR0 + 8*h for h in range(8)]
        DO = [224 - 32, 224 - 16]
        DO = [T - 16 - 16 + 0, 0]
        DO = [208, 224]
        DO = [HB + 32, HB + 48]
        OF = [T, T+4]
        loads = [("h", f) for f in range(56)]
        if TBM:
            for h in range(8): loads += [("kv", h), ("pq", 2*h)]
            for h in range(8): loads += [("pq", 2*h+1)]
        else:
            for h in range(8): loads += [("kv", h), ("pq", 2*h), ("pq", 2*h+1)]
        CHK = G2_CHK
        li = {"n": 0}
        def issue(n):
            o = []
            for _ in range(n):
                if li["n"] >= len(loads): break
                k, x = loads[li["n"]]; li["n"] += 1
                o.append(h_items(x) if k == "h" else (kv_items(x) if k == "kv" else pq_items(x)))
            return o
        A(f"s_mul_i32 s{S_T0}, s{S_J}, {7*1024}"); A(f"s_add_u32 s{S_T0}, s{S_T0}, s{S_HO}")
        for x in issue(4):
            for y in x: A(y)
        if G2_PF:
            for k in range(7):
                if k == 4: A(f"s_add_u32 s{S_T0}, s{S_T0}, 4096")
                A.vm(f"buffer_load_dwordx4 v[{T}:{T+3}], v{VL16}, s[{S_H}:{S_H+3}], s{S_T0} offen offset:{(k%4)*1024} sc1")
        for x in issue(AHEAD - 4):
            for y in x: A(y)
        if DEFER:
            A(f"s_cmp_ge_u32 s{S_CP}, 2"); A("s_cbranch_scc1 K12_defB")
            for tb in range(2):
                for hs in range(2):
                    pk = 128 + 4*(2*tb + hs)
                    A(f"!buffer_store_dwordx4 v[{pk}:{pk+3}], v{VL16}, s[{S_H}:{S_H+3}], s{23 if hs else 22} offen offset:{tb*1024} sc1")
            A(f"v_mov_b32 v{T+6}, 24576"); A("s_mov_b64 exec, 1")
            A(f"!global_load_dword v{T+7}, v{T+6}, s[{S_WSP}:{S_WSP+1}]")
            A("s_mov_b64 exec, -1"); A("s_branch K12_defX")
            A("K12_defB:")
            for n in range(4): A(f"!global_atomic_add_f32 v133, v{128+n}, s[{S_WSP}:{S_WSP+1}] offset:{n*256}")
            A("s_mov_b64 exec, 0xffff")
            A(f"!global_atomic_add_f32 v133, v132, s[{S_WSP}:{S_WSP+1}] offset:1024")
            A("s_mov_b64 exec, -1")
            A("K12_defX:")
            A.nvm += 5; A.ids["defer"] = A.nvm
        A.stamp(2, "g2")
        for i in range(28):
            if LATE_R and i == N_IN: A("s_waitcnt lgkmcnt(0)")
            A.wait(f"h{2*i+1}")
            if FASTG2 and i == 0:
                A(f"s_cmp_eq_u32 s{S_XO}, 0"); A("s_cbranch_scc1 K12_sigdone")
                signal_block("2")
                A("K12_sigdone:")
            if DEFER and i == S_SIG:
                assert A.ids[f"h{2*i+1}"] > A.ids["defer"]
                signal_block()
            if i == 1: A.stamp(3, "g2")
            gaps = [[] for _ in range(4)]
            if i == CHK - 5:
                gaps[0] += [f"v_add_u32 v{VFL}, 32, v{VFL}", f"s_mov_b64 s[{S_E0}:{S_E0+1}], exec", "s_mov_b64 exec, 15",
                            ("vm", "fq", f"global_load_dword v{VF1}, v{VFL}, s[{S_WSP}:{S_WSP+1}] sc1"), "s_mov_b64 exec, 255",
                            ("vm", "fkv", f"global_load_dword v{VF2}, v{VCN}, s[{S_WSP}:{S_WSP+1}] sc1"), f"s_mov_b64 exec, s[{S_E0}:{S_E0+1}]"]
            if LATE_R and i >= 2 and N_IN + (i - 2) < 36:
                rr = self.w2.R(N_IN + (i - 2))[1:]
                gaps[0] += rr[0]; gaps[3] += rr[1]
            n = 2
            if li["n"] + n > 56 and i < CHK: n = max(0, 56 - li["n"])
            for k, x in enumerate(issue(n)): gaps[1+k] += x
            mf = []
            for tb in range(2):
                hb = HB + 4*((2*i+tb) % NH)
                for nb in range(2):
                    a = ACC2 + 16*(2*nb+tb)
                    c = "0" if i == 0 else f"v[{a}:{a+15}]"
                    mf.append(f"v_mfma_f32_32x32x16_bf16 v[{a}:{a+15}], {self.w2.frag(i,nb)}, v[{hb}:{hb+3}], {c}")
            for g in range(4):
                A(mf[g])
                for x in gaps[g]: A(x)
            if i == CHK - 1:
                A.stamp(4, "g2")
                A.wait("fkv")
                A(f"s_mov_b64 s[{S_E0}:{S_E0+1}], exec"); A("s_mov_b64 exec, 15")
                A(f"v_cmp_ne_u32 vcc, 0, v{VF1}"); A("s_nop 3"); A("s_cmp_eq_u64 vcc, exec"); A(f"s_mov_b64 exec, s[{S_E0}:{S_E0+1}]")
                A("s_cbranch_scc1 K12_qok")
                self.poll("K12_pollQ", VFL, 4, novm=True)
                A.label("K12_qok")
                A(f"s_mov_b64 s[{S_E0}:{S_E0+1}], exec"); A("s_mov_b64 exec, 255")
                A(f"v_cmp_le_u32 vcc, 16, v{VF2}"); A("s_nop 3"); A("s_cmp_eq_u64 vcc, exec"); A(f"s_mov_b64 exec, s[{S_E0}:{S_E0+1}]")
                A("s_cbranch_scc1 K12_kvok")
                self.poll("K12_pollKV", VCN, 8, expect=16, novm=True)
                A.label("K12_kvok")
                A.stamp(5, "g2")
        A.stamp(6, "g2"); A.stamp(1, "att")
        A(f"v_lshrrev_b32 v{T+8}, 3, v{VTID}"); A(f"v_and_b32 v{T+9}, 7, v{VTID}")
        A(f"s_lshl_b32 s{S_T0}, s{S_TAU}, 16"); A(f"s_lshl_b32 s{S_T2}, s{S_J}, 7"); A(f"s_add_u32 s{S_T0}, s{S_T0}, s{S_T2}")
        VG = VFL
        A(f"v_lshlrev_b32 v{VG}, 10, v{T+8}"); A(f"v_lshlrev_b32 v{VCN}, 4, v{T+9}"); A(f"v_add_u32 v{VG}, v{VG}, v{VCN}")
        A(f"s_add_u32 s{S_T2}, s{S_T0}, {32*1024}")
        XR = HB
        A(f"s_mov_b32 s{S_T1}, 0x358637bd")
        A("s_waitcnt lgkmcnt(0)")
        units = [(h, tb) for tb in range(2) for h in range(8)] if TBM else [(h, tb) for h in range(8) for tb in range(2)]
        RS = 272; WSZ = 64*RS; VW = VCN
        A(f"v_and_b32 v{VW}, 31, v{VL}"); A(f"v_mul_u32_u24 v{VW}, {RS}, v{VW}"); A(f"v_lshrrev_b32 v{T+9}, 5, v{VL}"); A(f"v_lshlrev_b32 v{T+9}, 4, v{T+9}"); A(f"v_add_u32 v{VW}, v{VW}, v{T+9}")
        A(f"s_mul_i32 s{S_T3}, s{S_WV}, {WSZ}"); A(f"v_add_u32 v{VW}, s{S_T3}, v{VW}")
        def wr(tb, k):
            nb, q = k // 4, k % 4; a = ACC2 + 16*(2*nb+tb)
            return f"ds_write_b128 v{VW}, v[{a+4*q}:{a+4*q+3}] offset:{tb*32*RS + nb*128 + q*32}"
        def stA(u):
            h, tb = units[u]; d = DO[u & 1]
            o = []
            if tb == 0:
                o.append(("wait", [f"kv{h}", f"pq{2*h}"]))
                o += [f"v_cvt_pk_bf16_f32 v{KVB[h]+e}, v{KVR0+8*h+2*e}, v{KVR0+8*h+2*e+1}" for e in range(4)]
                o.append("s_nop 1")
            else: o.append(("wait", [f"pq{2*h+1}"]))
            o.append(f"v_mfma_f32_32x32x16_bf16 v[{d}:{d+15}], v[{KVB[h]}:{KVB[h]+3}], {ar(4*(2*h+tb), 4)}, 0")
            return o
        def stB(u):
            d = DO[u & 1]; o = OF[u & 1]; rc = T + 8
            l = [f"v_add_f32 v{rc}, s{S_T1}, v{d}", f"v_rcp_f32 v{rc}, v{rc}", "s_nop 0"]
            l += [f"v_mul_f32 v{d+8+e}, v{rc}, v{d+8+e}" for e in range(8)]
            l += [f"v_cvt_pk_bf16_f32 v{o+e}, v{d+8+2*e}, v{d+8+2*e+1}" for e in range(4)]
            return l
        def stC(u):
            h, tb = units[u]; o = OF[u & 1]; i = 28 + h
            return [f"v_mfma_f32_32x32x16_bf16 v[{ACC2+16*(2*nb+tb)}:{ACC2+16*(2*nb+tb)+15}], {self.w2.frag(i,nb)}, v[{o}:{o+3}], v[{ACC2+16*(2*nb+tb)}:{ACC2+16*(2*nb+tb)+15}]" for nb in range(2)]
        for x in stA(0): A(x)
        A.stamp(2, "att")
        for x in issue(1):
            for y in x: A(y)
        for x in stA(1): A(x)
        for x in issue(2):
            for y in x: A(y)
        A("s_nop 7"); A("s_nop 3")
        for x in stB(0): A(x)
        xdone = False
        for u in range(16):
            c = stC(u)
            nb_ = stB(u+1) if u + 1 < 16 else []
            if u in (2, 6, 10, 13): A.stamp({2:3, 6:4, 10:5, 13:6}[u], "att")
            A("s_nop 1"); A(c[0])
            for x in nb_[:5]: A(x)
            if u + 2 < 16:
                for x in stA(u+2): A(x)
            iss = issue(2)
            for x in iss:
                for y in x: A(y)
            if not iss and not xdone:
                A.vm(f"buffer_load_dwordx4 v[{XR}:{XR+3}], v{VG}, s[{S_XX}:{S_XX+3}], s{S_T0} offen", id="x0")
                A.vm(f"buffer_load_dwordx4 v[{XR+4}:{XR+7}], v{VG}, s[{S_XX}:{S_XX+3}], s{S_T2} offen", id="x1")
                xdone = True
            for x in nb_[5:10]: A(x)
            A(c[1])
            for x in nb_[10:]: A(x)
            if TBM and 9 <= u <= 12:
                A(wr(0, 2*(u-9))); A(wr(0, 2*(u-9)+1))
        assert xdone and li["n"] == len(loads)
        A.stamp(7, "g2"); A.stamp(7, "att")
        A(f"v_lshrrev_b32 v{T+2}, 3, v{VTID}"); A(f"v_and_b32 v{T+3}, 7, v{VTID}")
        A(f"v_mul_u32_u24 v{T+6}, {RS}, v{T+2}"); A(f"v_lshlrev_b32 v{T+7}, 5, v{T+3}"); A(f"v_add_u32 v{T+6}, v{T+6}, v{T+7}")
        if not TBM:
            A("s_nop 7")
            for k in range(8): A(wr(0, k))
        A("s_nop 7"); A("s_nop 1")
        for k in range(8): A(wr(1, k))
        A("s_waitcnt lgkmcnt(0)"); A("s_barrier")
        A.stamp(8, "g2"); A.stamp(8, "att")
        for ps in range(2):
            b = 72 + 40*ps
            for w in range(4):
                A(f"ds_read_b128 v[{b+8*w}:{b+8*w+3}], v{T+6} offset:{w*WSZ + ps*32*RS}")
                A(f"ds_read_b128 v[{b+8*w+4}:{b+8*w+7}], v{T+6} offset:{w*WSZ + ps*32*RS + 16}")
        for ps in range(2):
            b = 72 + 40*ps
            A(f"s_waitcnt lgkmcnt({8 if ps == 0 else 0})")
            for e in range(0, 8, 2):
                A(f"v_pk_add_f32 v[{b+e}:{b+e+1}], v[{b+e}:{b+e+1}], v[{b+8+e}:{b+8+e+1}]")
                A(f"v_pk_add_f32 v[{b+16+e}:{b+16+e+1}], v[{b+16+e}:{b+16+e+1}], v[{b+24+e}:{b+24+e+1}]")
            for e in range(0, 8, 2):
                A(f"v_pk_add_f32 v[{b+e}:{b+e+1}], v[{b+e}:{b+e+1}], v[{b+16+e}:{b+16+e+1}]")
            A.wait(f"x{ps}")
            xb = XR + 4*ps
            for e in range(4):
                A(f"v_lshlrev_b32 v{T+8}, 16, v{xb+e}"); A(f"v_and_b32 v{T+9}, 0xffff0000, v{xb+e}")
                A(f"v_pk_add_f32 v[{b+2*e}:{b+2*e+1}], v[{b+2*e}:{b+2*e+1}], v[{T+8}:{T+9}]")
                A(f"v_cvt_pk_bf16_f32 v{b+32+e}, v{b+2*e}, v{b+2*e+1}")
            A.vm(f"buffer_store_dwordx4 v[{b+32}:{b+35}], v{VG}, s[{S_O}:{S_O+3}], s{S_T0 if ps == 0 else S_T2} offen")

def gen_k12():
    A = Prog()
    prologue_common(A)
    A(f"s_cmp_ge_u32 s{S_CP}, 2"); A("s_cbranch_scc1 K12_typeB")
    base_nvm = A.nvm; base_ids = dict(A.ids)
    for typ in ("A", "B"):
        if typ == "B":
            A.label("K12_typeB"); A.nvm = base_nvm; A.ids = dict(base_ids)
        g = G1(A, typ)
        g.prologue()
        if STAMP and SMODE == "wait":
            for c in (1,2,3,4,5,6,7): A(f"s_mov_b32 s{SB+2*c}, 0")
            A(f"s_memtime s[{SB+8}:{SB+9}]"); A("s_waitcnt lgkmcnt(0)")
        A.inloop = True
        g.loop()
        A.inloop = False
        if STAMP and SMODE == "wait":
            A(f"s_memtime s[{SB+10}:{SB+11}]"); A("s_waitcnt lgkmcnt(0)"); A(f"s_sub_u32 s{SB+8}, s{SB+10}, s{SB+8}")
        print(f"type {typ}: leftover W2 items after loop: {g.nleft}", file=sys.stderr)
        A.stamp(4); A.stamp(8, "loop"); A.stamp(8, "init"); A.stamp(5, "init")
        g.transition()
        if typ == "A": A("s_branch K12_g2")
    A.label("K12_g2")
    G2(A).body()
    if STAMP:
        A("s_waitcnt vmcnt(0) lgkmcnt(0)")
        A(f"{STAMP_INS} s[60:61]")
        A("s_waitcnt lgkmcnt(0)")
        A(f"s_lshl_b32 s{S_T0}, s2, 2"); A(f"s_add_u32 s{S_T0}, s{S_T0}, s{S_WV}"); A(f"s_lshl_b32 s{S_T0}, s{S_T0}, 6")
        A(f"s_add_u32 s{S_T0}, s{S_T0}, {WS_STAMP + 65536}")
        A(f"v_mov_b32 v{VT}, s{S_T0}")
        for i in range(9):
            A(f"v_mov_b32 v{VT+1}, s{SB+2*i}")
            A.vm(f"global_store_dword v{VT}, v{VT+1}, s[{S_WSP}:{S_WSP+1}] offset:{4*i}")
        A(f"v_mov_b32 v{VT+1}, s60")
        A.vm(f"global_store_dword v{VT}, v{VT+1}, s[{S_WSP}:{S_WSP+1}] offset:36")
    if STAMP and DBGSTAMP:
        A(f"s_cmp_eq_u32 s{S_WV}, 0"); A("s_cbranch_scc0 K12_end")
        A("s_mov_b64 exec, 1")
        for i in range(9):
            A(f"v_mov_b32 v{VT}, {4*(1+i)}"); A(f"v_mov_b32 v{VT+1}, s{SB+2*i}")
            A.vm(f"global_atomic_umax v{VT}, v{VT+1}, s[{S_DBG}:{S_DBG+1}]")
        A(f"v_mov_b32 v{VT}, 40"); A(f"v_mov_b32 v{VT+1}, s60"); A.vm(f"global_atomic_umax v{VT}, v{VT+1}, s[{S_DBG}:{S_DBG+1}]")
        A(f"s_not_b32 s{S_T0}, s{SB}"); A(f"v_mov_b32 v{VT}, 44"); A(f"v_mov_b32 v{VT+1}, s{S_T0}"); A.vm(f"global_atomic_umax v{VT}, v{VT+1}, s[{S_DBG}:{S_DBG+1}]")
    A.label("K12_end")
    return A.text()

def main(path):
    hdr = open("cdna_kernels/" + NAME + ".s.ref").read().split("; Override")[0]
    n = NAME + "_kernel"
    body = gen_k12()
    out = hdr + "; @launch grid=(256,1,1) block=(256,1,1) lds=163840\n"
    out += '.amdgcn_target "amdgcn-amd-amdhsa--gfx950"\n.text\n'
    out += f""".globl {n}
.p2align 8
.type {n},@function
{n}:
{body}
  s_endpgm
.section .rodata,"a"
.p2align 6
.amdhsa_kernel {n}
  .amdhsa_next_free_vgpr 512
  .amdhsa_next_free_sgpr 102
  .amdhsa_accum_offset 256
  .amdhsa_group_segment_fixed_size 0
  .amdhsa_kernarg_size 80
  .amdhsa_user_sgpr_count 2
  .amdhsa_user_sgpr_kernarg_segment_ptr 1
  .amdhsa_system_sgpr_workgroup_id_x 1
.end_amdhsa_kernel
"""
    open(path, "w").write(out)

if __name__ == "__main__":
    if "--stamp" in sys.argv:
        STAMP = True; sys.argv.remove("--stamp")
    for a in list(sys.argv):
        if a.startswith("--nin="): N_IN = int(a[6:]); sys.argv.remove(a)
        if a.startswith("--smode="): SMODE = a[8:]; sys.argv.remove(a)
        if a.startswith("--ahead="): G2_AHEAD = int(a[8:]); sys.argv.remove(a)
        if a.startswith("--chk="): G2_CHK = int(a[6:]); sys.argv.remove(a)
        if a.startswith("--pf="): G2_PF = int(a[5:]); sys.argv.remove(a)
        if a.startswith("--cpf2="): CODE_PF2 = int(a[7:]); sys.argv.remove(a)
        if a.startswith("--wsh="): WS_H = int(a[6:])*1048576; sys.argv.remove(a)
        if a == "--dbgstamp": DBGSTAMP = 1; sys.argv.remove(a)
        if a.startswith("--w2rot="): W2ROT = int(a[8:]); sys.argv.remove(a)
        if a.startswith("--w2start="): W2_START = int(a[10:]); sys.argv.remove(a)
        if a.startswith("--later="): LATE_R = int(a[8:]); sys.argv.remove(a)
        if a.startswith("--bed="): B_EARLY_D = int(a[6:]); sys.argv.remove(a)
        if a.startswith("--ftb="): FLAG_TB = int(a[6:]); sys.argv.remove(a)
        if a.startswith("--pt="): K_PT = int(a[5:]); sys.argv.remove(a)
        if a.startswith("--tt="): TLB_TOUCH = int(a[5:]); sys.argv.remove(a)
        if a.startswith("--hinit="):
            H_INIT = int(a[8:]); K_INITLD = 2*H_INIT - 4; K_CSAT = 2*H_INIT; H_CS = H_INIT + 3; sys.argv.remove(a)
        if a.startswith("--rot2="): ROT2 = int(a[7:]); sys.argv.remove(a)
        if a.startswith("--kvmask="): KVMASK = int(a[9:]); sys.argv.remove(a)
        if a.startswith("--wopf="): K_WOPF = int(a[7:]); sys.argv.remove(a)
        if a.startswith("--defer="): DEFER = int(a[8:]); sys.argv.remove(a)
        if a.startswith("--cpf1="): CODE_PF1 = int(a[7:]); sys.argv.remove(a)
        if a.startswith("--zlate="): ZLATE = int(a[8:]); sys.argv.remove(a)
        if a.startswith("--tbm="): TBM = int(a[6:]); sys.argv.remove(a)
        if a.startswith("--gate="): GATE = int(a[7:]); sys.argv.remove(a)
        if a.startswith("--tt3="): TT3 = int(a[6:]); sys.argv.remove(a)
        if a.startswith("--pqlate="): PQ_LATE = int(a[9:]); sys.argv.remove(a)
        if a.startswith("--ftba="): FLAG_TB_A = int(a[7:]); sys.argv.remove(a)
        if a.startswith("--ot="): OUT_TOUCH = int(a[5:]); sys.argv.remove(a)
        if a.startswith("--ep="): EARLY_POLL = int(a[5:]); sys.argv.remove(a)
        if a.startswith("--fast="): FASTG2 = int(a[7:]); sys.argv.remove(a)
        if a.startswith("--al8="): ALIGN8 = int(a[6:]); sys.argv.remove(a)
        if a.startswith("--tta="): TT_AFTER = int(a[6:]); sys.argv.remove(a)
        if a.startswith("--phid="): PHI_D = int(a[7:]); sys.argv.remove(a)
        if a.startswith("--x1e="): X1_EARLY = int(a[6:]); sys.argv.remove(a)
        if a.startswith("--rot="): ROT = int(a[6:]); sys.argv.remove(a)
        if a.startswith("--cap="): CAP = int(a[6:]); sys.argv.remove(a)
    if "--cyc" in sys.argv:
        STAMP = True; STAMP_INS = "s_memtime"; sys.argv.remove("--cyc")
    main(sys.argv[1] if len(sys.argv) > 1 else "cdna_kernels/" + NAME + ".s")
```

```python
import sys

NAME = "parallel_sum__linear_attn_block__glu_gated_bilinear__prompt"
WS_M, WS_R, WS_KV, KV_HEAD = 0, 8192, 32768, 1152
WS_FLAG = WS_KV + 36864
WS_KVCNT = WS_FLAG + 8192
WS_CS = WS_KVCNT + 2048
WS_STCNT = WS_CS + 20480
WS_CSCNT = WS_STCNT + 2048
NZERO = 18
assert WS_CSCNT + 2048 <= WS_KV + NZERO*4096 <= 131072
DBG_INIT = 0
CS_TMP = 140
A_ONES = 220
VC1, VC2, VC3 = 251, 252, 253
WS_H = 131072
H_BYTES = 32*4*36*2048
POLL_MAX = 200000
STAMP = False
STAMP_INS = 's_memrealtime'
WS_STAMP = 1 << 24
SB = 84
CORR_AT = 28
N_IN = 28
CAP = 5
SMODE = 'main'
ROT = 8
PHI_D = 0
W2NT = ''
OUTNT = ''
LATEWS = 0
TT_AFTER = 0
ALIGN8 = 0
FASTG2 = 0
EARLY_POLL = 1
OUT_TOUCH = 0
PQ_LATE = 0
TT3 = 0
GATE = 0
TBM = 1
CODE_PF1 = 1
ZLATE = 0
H_Z = 2
DEFER = 0
S_SIG = 6
K_WOPF = 0
ROT2 = 1
KVMASK = 0
TLB_TOUCH = 0
K_PT = 0
FLAG_TB = 1
FLAG_TB_A = 0
B_EARLY_D = 1
LATE_R = 1
X1_EARLY = 1
W2ROT = 1
DBGSTAMP = 0
CODE_PF2 = 0
G2_AHEAD = 14; G2_CHK = 22; G2_PF = 0
K_INITLD = 2; H_INIT = 3; K_CSAT = 6; H_CS = 6; K_CNTLD = 18; H_CNT = 11; K_RANK = 25
CODE_KB = 48

class Prog:
    def __init__(self): self.l = []; self.nvm = 0; self.ids = {}; self.pos = {}; self.inloop = False
    def __call__(self, s):
        if s is None: return
        if isinstance(s, tuple):
            if s[0] == "vm":
                self.l.append("  " + s[2]); self.nvm += 1
                if s[1] is not None: self.ids[s[1]] = self.nvm; self.pos[s[1]] = len(self.l)
            elif s[0] == "stamp":
                self.stamp(s[1], s[2])
            elif s[0] == "vmu":
                self.l.append("  " + s[2]); self.ids[s[1]] = self.nvm
            elif s[0] == "wait":
                last = max(self.ids[i] for i in s[1])
                n = self.nvm - last
                assert n <= 63, (s, n)
                if STAMP and SMODE == "wait" and self.inloop:
                    cat = 2 if s[1][0].startswith("w2_") else (1 if s[1][0].startswith("W") else 3)
                    self.l.append(f"  s_memtime s[98:99]"); self.l.append("  s_waitcnt lgkmcnt(0)")
                    self.l.append(f"  s_waitcnt vmcnt({n})")
                    self.l.append(f"  s_memtime s[100:101]"); self.l.append("  s_waitcnt lgkmcnt(0)")
                    self.l.append(f"  s_sub_u32 s100, s100, s98"); self.l.append(f"  s_add_u32 s{SB+2*cat}, s{SB+2*cat}, s100")
                    return
                self.l.append(f"  s_waitcnt vmcnt({n})" + (" " + s[2] if len(s) > 2 and s[2] else ""))
            else: raise ValueError(s)
        elif s.endswith(":"): self.l.append(s)
        elif s.startswith("!"):
            self.l.append("  " + s[1:])
        else:
            assert not ("buffer_" in s or "global_" in s), s
            self.l.append("  " + s)
    def vm(self, text, id=None): self(("vm", id, text))
    def wait(self, *ids): self(("wait", list(ids)))
    def label(self, s): self.l.append(s + ":")
    def text(self):
        if not ALIGN8: return "\n".join(self.l)
        out = []
        for x in self.l:
            if x.lstrip().startswith("v_mfma"): out.append("  .p2align 3")
            out.append(x)
        return "\n".join(out)
    def stamp(self, i, mode="main"):
        if STAMP and (mode == SMODE or i == 0): self.l.append(f"  {STAMP_INS} s[{SB+2*i}:{SB+2*i+1}]")
    def reset_vm(self):
        self.ids = {}

def vr(b, n=1): return f"v{b}" if n == 1 else f"v[{b}:{b+n-1}]"
def ar(b, n=1): return f"a{b}" if n == 1 else f"a[{b}:{b+n-1}]"
def srd(A, d, lo, hi, size):
    A(f"s_mov_b32 s{d}, s{lo}"); A(f"s_and_b32 s{d+1}, s{hi}, 0xffff"); A(f"s_mov_b32 s{d+2}, {size}"); A(f"s_mov_b32 s{d+3}, 0x20000")
def srd_off(A, d, lo, hi, off, size):
    A(f"s_add_u32 s{d}, s{lo}, {off}"); A(f"s_addc_u32 s{d+1}, s{hi}, 0"); A(f"s_and_b32 s{d+1}, s{d+1}, 0xffff")
    if isinstance(off, int): A(f"s_mov_b32 s{d+2}, {size - off}")
    else: A(f"s_sub_u32 s{d+2}, {size}, {off}")
    A(f"s_mov_b32 s{d+3}, 0x20000")

X_BASE = 0; X_SLOT = 16384
W_BASE = 49152; W_SLOT = 20480; W_NS = 3
W2IN = W_BASE + W_NS*W_SLOT
NSL = 6
LDS_R = W2IN + 4*NSL*2048
LDS_KV = 0
W2_START = 1
W2POST = 69632; NPOST = 11
DLAG = 5

ACC = 0; WF = 160; XF = 200; TRA = 216; XA = 221; VOW = 225; VOX = 230
VR = 234; VLANE = 236; VL16 = 237; VTID = 238; VDM = 239
VT = 240
VTR = 254; VTR1 = 255
AMF = 228; ACF = 236
def acc(blk, tb): return ACC + (blk*2+tb)*16

S_X = 4; S_W = 8; S_H = 28; S_WSP = 32
S_WV = 34; S_WM = 35; S_WN = 36; S_T = 37; S_IDX = 38
S_KW = 39; S_KH = 40; S_R30 = 41; S_R35 = 42; S_RH = 43; S_KX = 44; S_W1K = 45; S_W4K = 46; S_XB = 47
S_WD = 48; S_LB = 52; S_W2O = 53
S_W2B = 74; S_W2R = 75; S_W2T = 76; S_RHO = 77; S_HR = 75; S_HBASE = 74
S_T0 = 54; S_T1 = 55; S_T2 = 56; S_T3 = 57; S_T4 = 58; S_XO = 59
S_E0 = 60; S_E2 = 62
S_P = 64
P_X, P_WQ, P_WO, P_G, P_U, P_D, P_O = 64, 66, 68, 72, 74, 76, 78
S_DBG = 72; S_KSC = 66; S_CG = 67
S_HB = 80; S_I1 = 81; S_CP = 82; S_TAU = 83; S_J = 70; S_HO = 71
S_WO = 8; S_O = 12; S_XX = 16
S_C6 = 20

def w2row(i):
    if i < 16: return ("D", 256, 16*i)
    if i < 24: return ("D", 128, 1024 + 16*(i-16))
    if i < 28: return ("D", 64, 1536 + 16*(i-24))
    return ("O", 128, 16*(i-28))

class W2:
    def __init__(self, A, vdm2=None): self.A = A; self.vdm2 = vdm2
    def frag(self, ks, nb, W2V=192):
        f = ks*2 + nb
        return ar(4*f, 4) if f < 64 else vr(W2V + 4*(f-64), 4)
    def half(self, ks, nb, h, W2V=192):
        f = ks*2 + nb
        return ar(4*f + 2*h, 2) if f < 64 else vr(W2V + 4*(f-64) + 2*h, 2)
    def slot_off(self, i):
        return (i % NSL)*2048 if i < N_IN else ((i - N_IN) % NPOST)*2048
    def D(self, i):
        o = []
        if i < 28: s, so = S_WD, S_W2R
        else:
            s, so = S_WO, S_W2O
            o.append([f"s_mov_b32 s{S_W2O}, {16*(i-28)*1024}"])
        d0 = ("dma", f"s_add_u32 m0, s{S_LB}, {self.slot_off(i)}", ("vm", f"w2_{i}_0", f"buffer_load_dwordx4 v{VDM}, s[{s}:{s+3}], s{so} offen{W2NT} lds"))
        o.append(d0)
        o.append(("dma", f"s_add_u32 m0, s{S_LB}, {self.slot_off(i) + 1024}", ("vm", f"w2_{i}_1", f"buffer_load_dwordx4 v{self.vdm2}, s[{s}:{s+3}], s{so} offen{W2NT} lds")))
        if i < 27:
            o.append([f"s_add_u32 s{S_W2R}, s{S_W2R}, 16384", f"s_cmp_eq_u32 s{S_W2R}, {28*16384}", f"s_cselect_b32 s{S_W2R}, 0, s{S_W2R}"])
        return o
    def R(self, i):
        o = self.slot_off(i)
        r = [[("wait", [f"w2_{i}_1"])]]
        for nb in range(2):
            va = VTR if nb == 0 else VTR1
            r.append([f"ds_read_b64_tr_b16 {self.half(i, nb, 0)}, v{va} offset:{o}", f"ds_read_b64_tr_b16 {self.half(i, nb, 1)}, v{va} offset:{o+1024}"])
        return r

def emit_items(A, items):
    for it in items:
        if isinstance(it, tuple) and it[0] == "dma":
            A(it[1]); A("s_nop 0"); A(it[2])
        else:
            for s in it: A(s)

def prologue_common(A):
    A("s_cmp_ge_u32 s2, 256"); A("s_cbranch_scc1 K12_end")
    A.stamp(0)
    A(f"s_load_dwordx16 s[{S_P}:{S_P+15}], s[0:1], 0")
    A(f"s_load_dwordx2 s[{S_WSP}:{S_WSP+1}], s[0:1], 72")
    A(f"s_getpc_b64 s[{S_E2}:{S_E2+1}]")
    A("K12_pc:")
    A(f"v_and_b32 v{VLANE}, 63, v0")
    A(f"v_lshrrev_b32 v{VT}, 6, v0")
    A(f"v_mov_b32 v{VTID}, v0")
    A(f"v_lshlrev_b32 v{VL16}, 4, v{VLANE}")
    if TLB_TOUCH:
        A(f"v_lshlrev_b32 v{WF+28}, 3, v{VLANE}")
        A("s_mov_b64 exec, 0x1ff")
        A.vm(f"global_load_dwordx2 v[{WF+30}:{WF+31}], v{WF+28}, s[0:1]", id="kptr")
        A("s_mov_b64 exec, -1")
    A(f"v_readfirstlane_b32 s{S_WV}, v{VT}")
    A(f"s_and_b32 s{S_T0}, s2, 7"); A(f"s_lshr_b32 s{S_T1}, s2, 3")
    A(f"s_lshl_b32 s{S_T2}, s{S_T1}, 2"); A(f"s_add_u32 s{S_T2}, s{S_T2}, s{S_WV}"); A(f"s_min_u32 s{S_T2}, s{S_T2}, ((K12_end-K12_pc)>>10)-1"); A(f"s_lshl_b32 s{S_T2}, s{S_T2}, 10")
    A(f"v_add_u32 v{VT+4}, s{S_T2}, v{VL16}")
    if CODE_PF1: A.vm(f"global_load_dwordx4 v[{WF+36}:{WF+39}], v{VT+4}, s[{S_E2}:{S_E2+1}]")
    A(f"s_and_b32 s{S_T2}, s{S_T1}, 7"); A(f"s_lshr_b32 s{S_CP}, s{S_T1}, 3")
    A(f"s_lshr_b32 s{S_T}, s{S_T0}, 2"); A(f"s_lshl_b32 s{S_T}, s{S_T}, 3"); A(f"s_add_u32 s{S_T}, s{S_T}, s{S_T2}")
    A(f"s_and_b32 s{S_IDX}, s{S_T0}, 3"); A(f"s_lshl_b32 s{S_IDX}, s{S_IDX}, 1")
    A(f"s_and_b32 s{S_T3}, s{S_CP}, 1"); A(f"s_add_u32 s{S_IDX}, s{S_IDX}, s{S_T3}")
    A(f"s_and_b32 s{S_TAU}, s{S_T1}, 3"); A(f"s_lshl_b32 s{S_T3}, s{S_T0}, 2"); A(f"s_add_u32 s{S_TAU}, s{S_TAU}, s{S_T3}")
    A(f"s_lshr_b32 s{S_T4}, s{S_T1}, 2")
    A(f"s_add_u32 s{S_T0}, s{S_CP}, s{S_T2}"); A(f"s_and_b32 s{S_T0}, s{S_T0}, 3"); A(f"s_lshl_b32 s{S_T0}, s{S_T0}, 1")
    A(f"s_lshr_b32 s{S_T1}, s{S_T2}, 2"); A(f"s_add_u32 s{S_T0}, s{S_T0}, s{S_T1}")
    if ROT2: A(f"s_add_u32 s{S_T0}, s{S_CP}, s{S_T2}"); A(f"s_and_b32 s{S_T0}, s{S_T0}, 7")
    A(f"s_lshl_b32 s{S_KW}, s{S_T0}, 6")
    A(f"s_lshr_b32 s{S_WM}, s{S_WV}, 1"); A(f"s_and_b32 s{S_WN}, s{S_WV}, 1")
    t0, t1, t3, t4 = VT, VT+1, VT+3, VT+4
    A(f"v_lshrrev_b32 v{t0}, 3, v{VLANE}"); A(f"v_and_b32 v{t1}, 7, v{VLANE}")
    A(f"v_lshrrev_b32 v{t3}, 4, v{VLANE}"); A(f"v_xor_b32 v{t3}, v{t1}, v{t3}"); A(f"v_lshlrev_b32 v{t3}, 4, v{t3}")
    A(f"v_lshlrev_b32 v{t4}, 10, v{t0}"); A(f"v_add_u32 v{VOX}, v{t3}, v{t4}")
    A(f"v_xor_b32 v{VOX+1}, 64, v{VOX}"); A(f"v_add_u32 v{VOX+1}, {8*1024}, v{VOX+1}")
    A(f"v_add_u32 v{VOX+2}, {16*1024}, v{VOX}"); A(f"v_add_u32 v{VOX+3}, {16*1024}, v{VOX+1}")
    A(f"s_lshl_b32 s{S_XB}, s{S_T}, 7"); A(f"s_lshl_b32 s{S_T0}, s{S_WV}, 5"); A(f"s_add_u32 s{S_XB}, s{S_XB}, s{S_T0}"); A(f"s_lshl_b32 s{S_XB}, s{S_XB}, 10")
    A(f"s_lshl_b32 s{S_KX}, s{S_KW}, 1")
    A(f"s_and_b32 s{S_T0}, s{S_WV}, 1"); A(f"s_lshl_b32 s{S_T0}, s{S_T0}, 4"); A(f"s_add_u32 s{S_KH}, s{S_KW}, s{S_T0}")
    A(f"s_lshl_b32 s{S_T0}, s{S_WV}, 3"); A(f"s_add_u32 s{S_KW}, s{S_KW}, s{S_T0}")
    A(f"s_lshl_b32 s{S_W1K}, s{S_WV}, 10"); A(f"s_lshl_b32 s{S_W4K}, s{S_WV}, 12")
    A(f"s_lshr_b32 s{S_T0}, s{S_CP}, 1"); A(f"s_lshl_b32 s{S_T0}, s{S_T0}, 3"); A(f"s_add_u32 s{S_T3}, s{S_T0}, s{S_IDX}")
    A(f"s_lshl_b32 s{S_T0}, s{S_T}, 7"); A(f"s_lshl_b32 s{S_T1}, s{S_T3}, 3"); A(f"s_add_u32 s{S_T0}, s{S_T0}, s{S_T1}"); A(f"s_lshl_b32 s{S_T1}, s{S_WV}, 1"); A(f"s_add_u32 s{S_T2}, s{S_T0}, s{S_T1}")
    A(f"s_lshl_b32 s{S_T0}, s{S_T2}, 10"); A(f"v_add_u32 v{VT+5}, s{S_T0}, v{VL16}")
    if TLB_TOUCH:
        A.wait("kptr")
        A("s_mov_b64 exec, 0x1ff")
        A.vm(f"global_load_dword v{WF+29}, v[{WF+30}:{WF+31}], off offset:128")
        A("s_mov_b64 exec, -1")
    A.stamp(1, "pro")
    if GATE:
        A(f"s_load_dwordx2 s[{S_E0}:{S_E0+1}], s[0:1], 64")
    A("s_waitcnt lgkmcnt(0)")
    if GATE:
        A(f"s_cmp_eq_u32 s{S_WV}, 0"); A("s_cbranch_scc0 K12_gate_w")
        A(f"v_mov_b32 v{VT+8}, 192"); A(f"v_mov_b32 v{VT+9}, 1"); A("s_mov_b64 exec, 1")
        A(f"!global_atomic_add v{VT+8}, v{VT+9}, s[{S_E0}:{S_E0+1}] sc1")
        A(f"s_mov_b32 s{S_T1+0}, 0") if False else None
        A(f"s_mov_b32 s3, 0")
        A("K12_gate_l:")
        A(f"!global_load_dword v{VT+9}, v{VT+8}, s[{S_E0}:{S_E0+1}] sc1"); A("s_waitcnt vmcnt(0)")
        A(f"v_readfirstlane_b32 s{S_E2}, v{VT+9}"); A("s_add_u32 s3, s3, 1"); A(f"s_cmp_ge_u32 s3, {POLL_MAX}"); A("s_cbranch_scc1 K12_gate_x")
        A(f"s_cmp_ge_u32 s{S_E2}, 256"); A("s_cbranch_scc1 K12_gate_x"); A(f"s_sleep {GATE}"); A("s_branch K12_gate_l")
        A("K12_gate_x:"); A("s_mov_b64 exec, -1")
        A("K12_gate_w:"); A("s_barrier")
    if TLB_TOUCH:
        A(f"v_mov_b32 v{WF+28}, 24576"); A("s_mov_b64 exec, 1")
        A.vm(f"global_load_dword v{WF+32}, v{WF+28}, s[{S_WSP}:{S_WSP+1}]")
        A("s_mov_b64 exec, -1")
    A.stamp(2, "pro")
    if TT3:
        lo, hi = WF+30, WF+31
        A(f"v_mov_b32 v{lo}, s{P_WQ}"); A(f"v_mov_b32 v{hi}, s{P_WQ+1}")
        for ln, p in ((1, P_G), (2, P_U)):
            A(f"v_writelane_b32 v{lo}, s{p}, {ln}"); A(f"v_writelane_b32 v{hi}, s{p+1}, {ln}")
        A("s_mov_b64 exec, 7")
        A.vm(f"global_load_dword v{WF+29}, v[{lo}:{hi}], off")
        A("s_mov_b64 exec, -1")
    A(f"s_mov_b32 s{S_J}, s{S_T4}")
    if not (ZLATE or LATEWS):
        A(f"s_cmp_ge_u32 s2, {NZERO}"); A("s_cbranch_scc1 K12_nozero")
        A(f"s_lshl_b32 s{S_T0}, s2, 12"); A(f"s_add_u32 s{S_T0}, s{S_T0}, {WS_KV}")
        A(f"v_lshlrev_b32 v{VT+6}, 4, v{VTID}"); A(f"v_add_u32 v{VT+6}, s{S_T0}, v{VT+6}")
        for i in range(4): A(f"v_mov_b32 v{VT+8+i}, 0")
        A(f"!global_store_dwordx4 v{VT+6}, v[{VT+8}:{VT+11}], s[{S_WSP}:{S_WSP+1}] sc1")
        A("K12_nozero:")
    SX = WF + 20
    A.vm(f"global_load_dwordx4 v[{SX}:{SX+3}], v{VT+5}, s[{P_X}:{P_X+1}]")
    A.vm(f"global_load_dwordx4 v[{SX+4}:{SX+7}], v{VT+5}, s[{P_X}:{P_X+1}] offset:1024", id="strow")
    A(f"s_lshl_b32 s{S_HB}, s{S_T2}, 2")
    A(f"s_mov_b32 s{S_I1}, s{S_T3}")
    srd(A, S_X, P_X, P_X+1, 2048*1024)

class G1:
    def __init__(self, A, typ):
        self.A = A; self.typ = typ; self.w2 = W2(A, 227 if typ == 'A' else 226)
        self.kinds = ["gu","gu","gu","gu","q"] if typ == "A" else ["k","v","gu","gu","guh"]
        if typ == "A": self.strides = [3584,3584,3584,3584,3072]; self.swz = ["g","u","g","u","q"]
        else: self.strides = [3072,3072,3584,3584,3584]; self.swz = ["q","q","g","u","h"]
    def vow(self, rho):
        key = (self.swz[rho], self.strides[rho])
        for r in range(rho + 1):
            if (self.swz[r], self.strides[r]) == key: return VOW + r
    def Wg(self, h):
        o = []
        if h > 0:
            o.append([f"s_add_u32 s{S_KW}, s{S_KW}, 32", f"s_and_b32 s{S_KW}, s{S_KW}, 511"])
            if self.typ == "B": o.append([f"s_add_u32 s{S_KH}, s{S_KH}, 32", f"s_and_b32 s{S_KH}, s{S_KH}, 511"])
        o.append([f"s_mul_i32 s{S_R30}, s{S_KW}, 3072", f"s_mul_i32 s{S_R35}, s{S_KW}, 3584"])
        if self.typ == "B": o.append([f"s_mul_i32 s{S_RH}, s{S_KH}, 3584"])
        for rho in range(5):
            so = S_RH if self.swz[rho] == "h" else (S_R30 if self.strides[rho] == 3072 else S_R35)
            o.append(("dma", f"s_add_u32 m0, s{S_W1K}, {W_BASE + (h % W_NS)*W_SLOT + rho*4096}",
                      ("vm", f"W{h}_{rho}", f"buffer_load_dwordx4 v{self.vow(rho)}, s[{S_W+4*rho}:{S_W+4*rho+3}], s{so} offen lds")))
        return o
    def Xg(self, sg):
        o = []
        if sg > 0: o.append([f"s_add_u32 s{S_KX}, s{S_KX}, 128", f"s_and_b32 s{S_KX}, s{S_KX}, 1023"])
        o.append([f"s_add_u32 s{S_XO}, s{S_XB}, s{S_KX}"])
        for j in range(4):
            o.append(("dma", f"s_add_u32 m0, s{S_W4K}, {X_BASE + (sg % 3)*X_SLOT + j*1024}",
                      ("vm", f"X{sg}_{j}", f"buffer_load_dwordx4 v{VOX+j}, s[{S_X}:{S_X+3}], s{S_XO} offen lds")))
        return o
    def reads(self, s):
        par = s & 1; kk = s & 3; sg = s >> 2; h = s >> 1; second = s & 1
        xo = (sg % 3)*X_SLOT
        o = [f"ds_read_b128 v[{XF+8*par}:{XF+8*par+3}], v{XA+kk} offset:{xo}", f"ds_read_b128 v[{XF+8*par+4}:{XF+8*par+7}], v{XA+kk} offset:{xo+4096}"]
        for blk, kd in enumerate(self.kinds):
            b = WF + 20*par + 4*blk
            if kd == "guh": o1, o2 = (1024 if second else 0), 256
            else: o1, o2 = (2048 if second else 0), 512
            o1 += (h % W_NS)*W_SLOT
            o.append(f"ds_read_b64_tr_b16 v[{b}:{b+1}], v{TRA+blk} offset:{o1}")
            o.append(f"ds_read_b64_tr_b16 v[{b+2}:{b+3}], v{TRA+blk} offset:{o1+o2}")
        return o
    def mfmas(self, s, order=None):
        par = s & 1; o = []
        for blk in (order or range(5)):
            kd = self.kinds[blk]
            wf = f"v[{WF+20*par+4*blk}:{WF+20*par+4*blk+3}]"
            for tb in range(2):
                xf = f"v[{XF+8*par+4*tb}:{XF+8*par+4*tb+3}]"; a = acc(blk, tb)
                c = "0" if s == 0 else f"v[{a}:{a+15}]"
                if kd in ("k", "v"): o.append(f"v_mfma_f32_32x32x16_bf16 v[{a}:{a+15}], {xf}, {wf}, {c}")
                else: o.append(f"v_mfma_f32_32x32x16_bf16 v[{a}:{a+15}], {wf}, {xf}, {c}")
        return o
    def corr(self):
        o = []
        for blk in range(5):
            for tb in range(2):
                a = acc(blk, tb); cf = ar(ACF+4*blk, 4); mf = ar(AMF+4*tb, 4)
                if self.kinds[blk] in ("k", "v"): o.append(f"v_mfma_f32_32x32x16_bf16 v[{a}:{a+15}], {mf}, {cf}, v[{a}:{a+15}]")
                else: o.append(f"v_mfma_f32_32x32x16_bf16 v[{a}:{a+15}], {cf}, {mf}, v[{a}:{a+15}]")
        return o

    def prologue(self):
        A, typ, kinds = self.A, self.typ, self.kinds
        SZQ, SZG = 512*3072, 512*3584
        A.stamp(3, "pro")
        emit_items(A, self.Xg(0))
        A.stamp(4, "pro")
        if typ == "A":
            A(f"s_lshr_b32 s{S_T0}, s{S_IDX}, 1"); A(f"s_mul_i32 s{S_T0}, s{S_T0}, 7"); A(f"s_and_b32 s{S_T1}, s{S_IDX}, 1"); A(f"s_lshl_b32 s{S_T1}, s{S_T1}, 1")
            A(f"s_add_u32 s{S_T0}, s{S_T0}, s{S_T1}"); A(f"s_lshl_b32 s{S_T0}, s{S_T0}, 7")
            srd_off(A, S_W+0, P_G, P_G+1, f"s{S_T0}", SZG); srd_off(A, S_W+4, P_U, P_U+1, f"s{S_T0}", SZG)
            A(f"s_add_u32 s{S_T0}, s{S_T0}, 128")
            srd_off(A, S_W+8, P_G, P_G+1, f"s{S_T0}", SZG); srd_off(A, S_W+12, P_U, P_U+1, f"s{S_T0}", SZG)
            A(f"s_lshl_b32 s{S_T0}, s{S_IDX}, 7")
            srd_off(A, S_W+16, P_WQ, P_WQ+1, f"s{S_T0}", SZQ)
        else:
            A(f"s_lshl_b32 s{S_T0}, s{S_IDX}, 7"); A(f"s_add_u32 s{S_T0}, s{S_T0}, 1024")
            srd_off(A, S_W+0, P_WQ, P_WQ+1, f"s{S_T0}", SZQ)
            A(f"s_add_u32 s{S_T0}, s{S_T0}, 1024")
            srd_off(A, S_W+4, P_WQ, P_WQ+1, f"s{S_T0}", SZQ)
            A(f"s_lshr_b32 s{S_T0}, s{S_IDX}, 1"); A(f"s_mul_i32 s{S_T0}, s{S_T0}, 7"); A(f"s_and_b32 s{S_T1}, s{S_IDX}, 1")
            A(f"s_add_u32 s{S_T0}, s{S_T0}, s{S_T1}"); A(f"s_add_u32 s{S_T0}, s{S_T0}, 4"); A(f"s_lshl_b32 s{S_T0}, s{S_T0}, 7")
            srd_off(A, S_W+8, P_G, P_G+1, f"s{S_T0}", SZG); srd_off(A, S_W+12, P_U, P_U+1, f"s{S_T0}", SZG)
            A(f"s_lshr_b32 s{S_T0}, s{S_IDX}, 1"); A(f"s_mul_i32 s{S_T0}, s{S_T0}, 7"); A(f"s_add_u32 s{S_T0}, s{S_T0}, 6"); A(f"s_lshl_b32 s{S_T0}, s{S_T0}, 7")
            A(f"s_and_b32 s{S_T1}, s{S_IDX}, 1"); A(f"s_lshl_b32 s{S_T1}, s{S_T1}, 6"); A(f"s_add_u32 s{S_T0}, s{S_T0}, s{S_T1}")
            A(f"s_cmp_ge_u32 s{S_WV}, 2")
            A(f"s_cselect_b32 s{S_T2}, s{P_U}, s{P_G}"); A(f"s_cselect_b32 s{S_T3}, s{P_U+1}, s{P_G+1}")
            srd_off(A, S_W+16, S_T2, S_T3, f"s{S_T0}", SZG)
        t0, t1, t2, t3, t4 = VT, VT+1, VT+2, VT+3, VT+4
        A(f"v_lshrrev_b32 v{t0}, 3, v{VLANE}"); A(f"v_and_b32 v{t1}, 7, v{VLANE}")
        A(f"v_lshrrev_b32 v{t2}, 4, v{VLANE}"); A(f"v_and_b32 v{t2}, 1, v{t2}")
        done = {}
        for rho in range(5):
            key = (self.swz[rho], self.strides[rho])
            if key in done: continue
            done[key] = rho
            if self.swz[rho] == "h":
                A(f"v_lshrrev_b32 v{t3}, 2, v{VLANE}"); A(f"v_and_b32 v{t4}, 3, v{VLANE}")
                A(f"s_lshr_b32 s{S_T0}, s{S_WV}, 1"); A(f"s_lshl_b32 s{S_T0}, s{S_T0}, 1")
                A(f"v_xor_b32 v{t4}, s{S_T0}, v{t4}")
                A(f"v_mul_u32_u24 v{t3}, 3584, v{t3}"); A(f"v_lshlrev_b32 v{t4}, 4, v{t4}"); A(f"v_add_u32 v{VOW+rho}, v{t3}, v{t4}")
            else:
                if self.swz[rho] == "q": A(f"v_lshlrev_b32 v{t3}, 2, v{t2}")
                else:
                    A(f"v_lshlrev_b32 v{t3}, 1, v{t2}")
                    if self.swz[rho] == "u": A(f"v_or_b32 v{t3}, 4, v{t3}")
                A(f"v_xor_b32 v{t3}, v{t1}, v{t3}"); A(f"v_lshlrev_b32 v{t3}, 4, v{t3}")
                A(f"v_mul_u32_u24 v{t4}, {self.strides[rho]}, v{t0}"); A(f"v_add_u32 v{VOW+rho}, v{t3}, v{t4}")
        A.stamp(5, "pro")
        emit_items(A, self.Wg(0)); A.stamp(6, "pro"); emit_items(A, self.Wg(1))
        A.stamp(1); A.stamp(7, "pro")
        A(f"v_lshlrev_b32 v{t3}, 2, v{t2}"); A(f"v_xor_b32 v{t3}, v{t1}, v{t3}"); A(f"v_lshlrev_b32 v{t3}, 4, v{t3}")
        A(f"v_lshlrev_b32 v{t4}, 10, v{t0}"); A(f"v_add_u32 v{VDM}, v{t3}, v{t4}")
        A(f"v_add_u32 v{self.w2.vdm2}, 8192, v{VDM}")
        A(f"s_lshl_b32 s{S_T0}, s{S_J}, 7"); A(f"s_mul_i32 s{S_T1}, s{S_WV}, {448*1024}"); A(f"s_add_u32 s{S_T0}, s{S_T0}, s{S_T1}")
        srd_off(A, S_WD, P_D, P_D+1, f"s{S_T0}", 1792*1024)
        A(f"s_mul_i32 s{S_LB}, s{S_WV}, {NSL*2048}"); A(f"s_add_u32 s{S_LB}, s{S_LB}, {W2IN}")
        A(f"s_lshr_b32 s{S_T0}, s2, 3"); A(f"s_and_b32 s{S_T1}, s{S_T0}, 3"); A(f"s_mul_i32 s{S_T1}, s{S_T1}, 7"); A(f"s_lshr_b32 s{S_T0}, s{S_T0}, 2"); A(f"s_mul_i32 s{S_T0}, s{S_T0}, 3")
        A(f"s_add_u32 s{S_RHO}, s{S_T0}, s{S_T1}"); A(f"s_cmp_ge_u32 s{S_RHO}, 28"); A(f"s_cselect_b32 s{S_T0}, 28, 0"); A(f"s_sub_u32 s{S_RHO}, s{S_RHO}, s{S_T0}")
        if not W2ROT: A(f"s_mov_b32 s{S_RHO}, 0")
        A(f"s_lshl_b32 s{S_W2R}, s{S_RHO}, 14")
        A(f"s_load_dwordx2 s[{S_DBG}:{S_DBG+1}], s[0:1], 64")
        A(f"s_mov_b32 s{S_CG}, s{S_I1}")
        A(f"s_lshr_b32 s{S_T0}, s{S_T}, 3"); A(f"s_lshl_b32 s{S_T0}, s{S_T0}, 1"); A(f"s_add_u32 s{S_KSC}, s{S_T0}, s{S_WM}")
        A(f"v_and_b32 v{t0}, 31, v{VLANE}")
        A(f"v_and_b32 v{t1}, 15, v{t0}"); A(f"v_lshrrev_b32 v{t2}, 4, v{t0}")
        def cs_addr(dst, soff_code, lane_kind):
            soff_code()
            if lane_kind == "gu":
                A(f"v_mul_u32_u24 v{t3}, 1792, v{t2}"); A(f"v_add_u32 v{t3}, v{t3}, v{t1}")
            elif lane_kind == "kv":
                A(f"v_lshlrev_b32 v{t3}, 9, v{t2}"); A(f"v_add_u32 v{t3}, v{t3}, v{t1}")
            else: A(f"v_mov_b32 v{t3}, v{t0}")
            A(f"v_add_u32 v{t3}, s{S_T0}, v{t3}"); A(f"v_lshlrev_b32 v{t3}, 2, v{t3}"); A(f"v_add_u32 v{dst}, {WS_CS}, v{t3}")
        if typ == "A":
            cs_addr(VC1, lambda: (A(f"s_lshr_b32 s{S_T0}, s{S_IDX}, 1"), A(f"s_mul_i32 s{S_T0}, s{S_T0}, 7"), A(f"s_and_b32 s{S_T1}, s{S_IDX}, 1"), A(f"s_lshl_b32 s{S_T1}, s{S_T1}, 1"), A(f"s_add_u32 s{S_T0}, s{S_T0}, s{S_T1}"),
                                  A(f"s_add_u32 s{S_T0}, s{S_T0}, s{S_WN}"), A(f"s_lshl_b32 s{S_T0}, s{S_T0}, 6"), A(f"s_add_u32 s{S_T0}, s{S_T0}, 1536")), "gu")
            cs_addr(VC2, lambda: (A(f"s_lshl_b32 s{S_T0}, s{S_IDX}, 6"), A(f"s_lshl_b32 s{S_T1}, s{S_WN}, 5"), A(f"s_add_u32 s{S_T0}, s{S_T0}, s{S_T1}")), "q")
            self.csa = [(VC1, 0), (VC1, 64), (VC1, 128), (VC1, 192), (VC2, 0)]
        else:
            cs_addr(VC2, lambda: (A(f"s_lshl_b32 s{S_T0}, s{S_IDX}, 6"), A(f"s_lshl_b32 s{S_T1}, s{S_WN}, 5"), A(f"s_add_u32 s{S_T0}, s{S_T0}, s{S_T1}"), A(f"s_add_u32 s{S_T0}, s{S_T0}, 512")), "q")
            cs_addr(VC1, lambda: (A(f"s_lshr_b32 s{S_T0}, s{S_IDX}, 1"), A(f"s_mul_i32 s{S_T0}, s{S_T0}, 7"), A(f"s_and_b32 s{S_T1}, s{S_IDX}, 1"), A(f"s_add_u32 s{S_T0}, s{S_T0}, s{S_T1}"), A(f"s_add_u32 s{S_T0}, s{S_T0}, 4"), A(f"s_lshl_b32 s{S_T0}, s{S_T0}, 6"), A(f"s_lshl_b32 s{S_T1}, s{S_WN}, 5"), A(f"s_add_u32 s{S_T0}, s{S_T0}, s{S_T1}"), A(f"s_add_u32 s{S_T0}, s{S_T0}, 1536")), "gu")
            cs_addr(VC3, lambda: (A(f"s_lshr_b32 s{S_T0}, s{S_IDX}, 1"), A(f"s_mul_i32 s{S_T0}, s{S_T0}, 7"), A(f"s_add_u32 s{S_T0}, s{S_T0}, 6"), A(f"s_lshl_b32 s{S_T0}, s{S_T0}, 6"),
                                  A(f"s_and_b32 s{S_T1}, s{S_IDX}, 1"), A(f"s_lshl_b32 s{S_T1}, s{S_T1}, 1"), A(f"s_add_u32 s{S_T1}, s{S_T1}, s{S_WN}"), A(f"s_lshl_b32 s{S_T1}, s{S_T1}, 4"),
                                  A(f"s_add_u32 s{S_T0}, s{S_T0}, s{S_T1}"), A(f"s_add_u32 s{S_T0}, s{S_T0}, 1536")), "gu")
            self.csa = [(VC2, 0), (VC2, 2048), (VC1, 0), (VC1, 64), (VC3, 0)]
        A(f"v_mov_b32 v{t3}, 0x3f803f80")
        for i in range(4): A(f"v_accvgpr_write_b32 a{A_ONES+i}, v{t3}")
        srd_off(A, S_H, S_WSP, S_WSP+1, WS_H, WS_H + H_BYTES)
        G, p, r, c = t0, t1, t2, t3
        A(f"v_lshrrev_b32 v{G}, 4, v{VLANE}"); A(f"v_and_b32 v{G}, 1, v{G}")
        A(f"v_lshrrev_b32 v{p}, 5, v{VLANE}")
        A(f"v_and_b32 v{r}, 15, v{VLANE}"); A(f"v_lshrrev_b32 v{r}, 2, v{r}")
        A(f"v_and_b32 v{c}, 3, v{VLANE}")
        k_, rb, u1, u2 = t4, t4+1, t4+2, t4+3
        A(f"v_lshlrev_b32 v{k_}, 3, v{p}"); A(f"v_add_u32 v{k_}, v{k_}, v{r}")
        A(f"v_lshrrev_b32 v{rb}, 1, v{r}"); A(f"v_and_b32 v{rb}, 1, v{rb}")
        for blk, kd in enumerate(kinds):
            d = TRA + blk
            if typ == "A" and kd == "gu" and blk > 0:
                A(f"v_xor_b32 v{d}, {blk*32}, v{TRA}"); continue
            if typ == "B" and blk == 1:
                A(f"v_add_u32 v{d}, 4096, v{d-1}"); continue
            if typ == "B" and blk == 3:
                A(f"v_xor_b32 v{d}, 32, v{d-1}"); continue
            if kd == "guh":
                A(f"v_lshrrev_b32 v{u1}, 1, v{c}"); A(f"s_lshl_b32 s{S_T0}, s{S_WN}, 1"); A(f"v_add_u32 v{u1}, s{S_T0}, v{u1}")
                A(f"v_lshlrev_b32 v{u2}, 1, v{G}"); A(f"v_xor_b32 v{u1}, v{u1}, v{u2}"); A(f"v_lshlrev_b32 v{u1}, 4, v{u1}")
                A(f"v_lshlrev_b32 v{u2}, 6, v{k_}"); A(f"v_add_u32 v{u1}, v{u1}, v{u2}")
                A(f"v_lshlrev_b32 v{u2}, 11, v{G}"); A(f"v_add_u32 v{u1}, v{u1}, v{u2}")
                A(f"v_add_u32 v{u1}, {W_BASE + 4*4096}, v{u1}")
            else:
                if kd in ("q", "k"):
                    A(f"s_lshl_b32 s{S_T0}, s{S_WN}, 1"); A(f"v_add_u32 v{u1}, s{S_T0}, v{G}")
                elif typ == "A": A(f"v_mov_b32 v{u1}, 0")
                else:
                    A(f"s_lshl_b32 s{S_T0}, s{S_WN}, 1"); A(f"v_mov_b32 v{u1}, s{S_T0}")
                A(f"v_lshlrev_b32 v{u1}, 1, v{u1}"); A(f"v_lshrrev_b32 v{u2}, 1, v{c}"); A(f"v_add_u32 v{u1}, v{u1}, v{u2}")
                if kd in ("q", "k"): A(f"v_lshlrev_b32 v{u2}, 2, v{rb}")
                else:
                    A(f"v_lshlrev_b32 v{u2}, 1, v{rb}"); A(f"v_lshlrev_b32 v{d}, 2, v{G}"); A(f"v_or_b32 v{u2}, v{u2}, v{d}")
                A(f"v_xor_b32 v{u1}, v{u1}, v{u2}"); A(f"v_lshlrev_b32 v{u1}, 4, v{u1}")
                A(f"v_lshlrev_b32 v{u2}, 7, v{k_}"); A(f"v_add_u32 v{u1}, v{u1}, v{u2}")
                if kd == "q": A(f"v_add_u32 v{u1}, {W_BASE + 4*4096}, v{u1}")
                elif kd == "k": A(f"v_add_u32 v{u1}, {W_BASE}, v{u1}")
                else:
                    if typ == "A":
                        A(f"s_lshl_b32 s{S_T0}, s{S_WN}, 13"); A(f"s_add_u32 s{S_T0}, s{S_T0}, {W_BASE}")
                    else: A(f"s_mov_b32 s{S_T0}, {W_BASE + 2*4096}")
                    A(f"v_lshlrev_b32 v{u2}, 12, v{G}"); A(f"v_add_u32 v{u1}, v{u1}, v{u2}"); A(f"v_add_u32 v{u1}, s{S_T0}, v{u1}")
            A(f"v_and_b32 v{u2}, 1, v{c}"); A(f"v_lshlrev_b32 v{u2}, 3, v{u2}"); A(f"v_add_u32 v{d}, v{u1}, v{u2}")
        A(f"v_lshlrev_b32 v{u1}, 2, v{p}"); A(f"v_add_u32 v{u1}, v{u1}, v{r}"); A(f"v_lshlrev_b32 v{u1}, 7, v{u1}")
        A(f"v_lshlrev_b32 v{u2}, 1, v{G}"); A(f"v_lshrrev_b32 v{VTR}, 1, v{c}"); A(f"v_add_u32 v{u2}, v{u2}, v{VTR}")
        A(f"v_lshlrev_b32 v{VTR}, 2, v{rb}"); A(f"v_xor_b32 v{u2}, v{u2}, v{VTR}"); A(f"v_lshlrev_b32 v{u2}, 4, v{u2}"); A(f"v_add_u32 v{u1}, v{u1}, v{u2}")
        A(f"v_and_b32 v{u2}, 1, v{c}"); A(f"v_lshlrev_b32 v{u2}, 3, v{u2}"); A(f"v_add_u32 v{u1}, v{u1}, v{u2}")
        A(f"v_add_u32 v{VTR}, s{S_LB}, v{u1}"); A(f"v_xor_b32 v{VTR1}, 64, v{VTR}")
        A(f"v_and_b32 v{u1}, 31, v{VLANE}"); A(f"s_lshl_b32 s{S_T0}, s{S_WM}, 6"); A(f"v_add_u32 v{u1}, s{S_T0}, v{u1}")
        A(f"v_lshrrev_b32 v{u2}, 1, v{u1}"); A(f"v_and_b32 v{u2}, 7, v{u2}"); A(f"v_xor_b32 v{u2}, v{u2}, v{p}"); A(f"v_lshlrev_b32 v{u2}, 4, v{u2}")
        A(f"v_lshlrev_b32 v{u1}, 7, v{u1}"); A(f"v_add_u32 v{u1}, v{u1}, v{u2}")
        for kk in range(4): A(f"v_xor_b32 v{XA+kk}, {kk*32}, v{u1}")
        if X1_EARLY: emit_items(A, self.Xg(1))
        if TT_AFTER:
            A(f"v_mov_b32 v{WF+32}, 0"); A("s_mov_b64 exec, 1")
            if TT_AFTER & 1: A.vm(f"buffer_load_dword a224, v{WF+32}, s[{S_WD}:{S_WD+3}], 0 offen")
            if TT_AFTER & 2: A.vm(f"global_load_dword a225, v{WF+32}, s[{P_WO}:{P_WO+1}]")
            if TT_AFTER & 4: A.vm(f"global_load_dword a226, v{WF+32}, s[{P_O}:{P_O+1}]")
            A("s_mov_b64 exec, -1")
        SX = WF + 20
        A.wait("strow")
        P0, P1, Q0, Q1, U = VT, VT+2, VT+4, VT+6, VT+8
        for tok, (P, Q) in enumerate(((P0, Q0), (P1, Q1))):
            for i in range(4):
                src = SX + 4*tok + i
                A(f"v_lshlrev_b32 v{U}, 16, v{src}"); A(f"v_and_b32 v{U+1}, 0xffff0000, v{src}")
                if i == 0:
                    A(f"v_pk_mul_f32 v[{Q}:{Q+1}], v[{U}:{U+1}], v[{U}:{U+1}]"); A(f"v_mov_b32 v{P}, v{U}"); A(f"v_mov_b32 v{P+1}, v{U+1}")
                else:
                    A(f"v_pk_add_f32 v[{P}:{P+1}], v[{P}:{P+1}], v[{U}:{U+1}]"); A(f"v_pk_fma_f32 v[{Q}:{Q+1}], v[{U}:{U+1}], v[{U}:{U+1}], v[{Q}:{Q+1}]")
        for r_ in (P0, P1, Q0, Q1): A(f"v_add_f32 v{r_}, v{r_}, v{r_+1}")
        for dpp in ("row_shr:1 row_mask:0xf bank_mask:0xf", "row_shr:2 row_mask:0xf bank_mask:0xf", "row_shr:4 row_mask:0xf bank_mask:0xf", "row_shr:8 row_mask:0xf bank_mask:0xf",
                    "row_bcast:15 row_mask:0xa bank_mask:0xf", "row_bcast:31 row_mask:0xc bank_mask:0xf"):
            for r_ in (P0, P1, Q0, Q1): A(f"v_add_f32_dpp v{r_}, v{r_}, v{r_} {dpp}")
        A(f"v_mul_f32 v{P0}, 0x3b000000, v{P0}"); A(f"v_mul_f32 v{P0+1}, 0x3b000000, v{P1}")
        A(f"v_mul_f32 v{Q0}, 0x3b000000, v{Q0}"); A(f"v_mul_f32 v{Q0+1}, 0x3b000000, v{Q1}")
        for j in range(2):
            A(f"v_fma_f32 v{Q0+j}, -v{P0+j}, v{P0+j}, v{Q0+j}"); A(f"v_max_f32 v{Q0+j}, 0, v{Q0+j}"); A(f"v_add_f32 v{Q0+j}, 0x3727c5ac, v{Q0+j}"); A(f"v_rsq_f32 v{Q0+j}, v{Q0+j}")
        A(f"v_mov_b32 v{U}, s{S_HB}"); A(f"v_add_u32 v{U+1}, {WS_R}, v{U}")
        st_item = [f"s_mov_b64 s[{S_E0}:{S_E0+1}], exec", "s_mov_b32 exec_lo, 0", "s_mov_b32 exec_hi, 0x80000000",
                   ("vm", None, f"global_store_dwordx2 v{U}, v[{P0}:{P0+1}], s[{S_WSP}:{S_WSP+1}] sc1"),
                   ("vm", "stst", f"global_store_dwordx2 v{U+1}, v[{Q0}:{Q0+1}], s[{S_WSP}:{S_WSP+1}] sc1"),
                   f"s_mov_b64 exec, s[{S_E0}:{S_E0+1}]"]
        self.st_item = st_item
        if not LATEWS:
            for x in st_item: A(x)
        A.stamp(2)
        A("s_waitcnt lgkmcnt(0)")
        A.wait("X0_3", "W0_4")
        A("s_barrier")
        A.stamp(3); A.stamp(8, "pro")
        for s in self.reads(0): A(s)
        A.stamp(1, "init")
        if ZLATE and not LATEWS:
            L = f"K12{typ}_nozero"
            A(f"s_cmp_ge_u32 s2, {NZERO}"); A(f"s_cbranch_scc1 {L}")
            A(f"s_lshl_b32 s{S_T0}, s2, 12"); A(f"s_add_u32 s{S_T0}, s{S_T0}, {WS_KV}")
            A(f"v_lshlrev_b32 v{VT+6}, 4, v{VTID}"); A(f"v_add_u32 v{VT+6}, s{S_T0}, v{VT+6}")
            for i in range(4): A(f"v_mov_b32 v{VT+0+i}, 0")
            A(("vmu", "zst", f"global_store_dwordx4 v{VT+6}, v[{VT+0}:{VT+3}], s[{S_WSP}:{S_WSP+1}] sc1"))
            A(f"{L}:")
        elif not LATEWS:
            for x in self.sig(f"s_cmp_lt_u32 s2, {NZERO}", S_DBG, DBG_INIT, None, "init"): A(x)
        A.stamp(2, "init")

    def sig(self, cond, base, off_imm, off_sgpr, tag):
        L = f"K12{self.typ}_sig_{tag}"
        o = []
        if cond: o += [cond, f"s_cbranch_scc0 {L}"]
        o += [f"s_cmp_eq_u32 s{S_WV}, 0", f"s_cbranch_scc0 {L}"]
        if off_sgpr is None: o += [f"v_mov_b32 v{VT+9}, {off_imm}"]
        else: o += [f"s_lshl_b32 s{S_T4}, s{off_sgpr}, 7", f"s_add_u32 s{S_T4}, s{S_T4}, {off_imm}", f"v_mov_b32 v{VT+9}, s{S_T4}"]
        o += [f"v_mov_b32 v{VT+8}, 1", f"s_mov_b64 s[{S_E0}:{S_E0+1}], exec", "s_mov_b64 exec, 1",
              f"!global_atomic_add v{VT+9}, v{VT+8}, s[{base}:{base+1}] sc1", f"s_mov_b64 exec, s[{S_E0}:{S_E0+1}]", f"{L}:"]
        return o

    def spin(self, tag, base, vaddr, expect):
        L = f"K12{self.typ}_spin_{tag}"
        return [f"s_mov_b32 s{S_T3}, 0", f"{L}:", f"!global_load_dword v{VT+10}, v{vaddr}, s[{base}:{base+1}] sc1", "s_waitcnt vmcnt(0)",
                f"v_readfirstlane_b32 s{S_T4}, v{VT+10}", f"s_add_u32 s{S_T3}, s{S_T3}, 1", f"s_cmp_ge_u32 s{S_T3}, {POLL_MAX}", f"s_cbranch_scc1 {L}_x",
                f"s_cmp_ge_u32 s{S_T4}, {expect}", f"s_cbranch_scc1 {L}_x", "s_sleep 2", f"s_branch {L}", f"{L}_x:"]

    def w0(self, tag, code):
        L = f"K12{self.typ}_w0_{tag}"
        return [f"s_cmp_eq_u32 s{S_WV}, 0", f"s_cbranch_scc0 {L}"] + code + [f"{L}:"]

    def pre_barrier(self, h):
        typ = self.typ; T = VT
        if h == H_INIT:
            return [("stamp", 3, "init")] + self.w0("initchk", [("wait", ["initld"]), f"v_readfirstlane_b32 s{S_T4}, v{T+10}", "s_nop 0", f"s_cmp_ge_u32 s{S_T4}, {NZERO}", f"s_cbranch_scc1 K12{typ}_initok",
                                       f"v_mov_b32 v{T+9}, {DBG_INIT}"] + self.spin("init", S_DBG, T+9, NZERO) + [f"K12{typ}_initok:"]) + [("stamp", 4, "init")]
        if h == H_CNT:
            return [("stamp", 6, "init")] + self.w0("cntchk", [("wait", ["cntld"]), f"v_readfirstlane_b32 s{S_T4}, v{T+5}", "s_nop 0", f"s_cmp_ge_u32 s{S_T4}, 16", f"s_cbranch_scc1 K12{typ}_stok"]
                           + self.spin("st", S_WSP, T+7, 16) + [f"K12{typ}_stok:",
                           f"v_readfirstlane_b32 s{S_T4}, v{T+6}", "s_nop 0", f"s_cmp_ge_u32 s{S_T4}, 16", f"s_cbranch_scc1 K12{typ}_csok"]
                           + self.spin("cs", S_WSP, T+8, 16) + [f"K12{typ}_csok:"]) + [("stamp", 7, "init")]
        return []

    def oneshot_items(self, add, at):
        typ = self.typ; wsp = f"s[{S_WSP}:{S_WSP+1}]"; dbg = f"s[{S_DBG}:{S_DBG+1}]"
        T = VT
        for s in range(4):
            par = s & 1
            it = [f"s_cmp_eq_u32 s{S_KSC}, {s}", f"s_cbranch_scc0 K12{typ}_nocs{s}"]
            for blk in range(5):
                b = WF + 20*par + 4*blk
                it.append(f"v_mfma_f32_32x32x16_bf16 a[{CS_TMP+16*blk}:{CS_TMP+16*blk+15}], a[{A_ONES}:{A_ONES+3}], v[{b}:{b+3}], 0")
            it.append(f"K12{typ}_nocs{s}:")
            self.fixed.setdefault(s, []).append(it)
        if LATEWS:
            L = f"K12{typ}_nozero"
            z = [f"s_cmp_ge_u32 s2, {NZERO}", f"s_cbranch_scc1 {L}", f"s_lshl_b32 s{S_T4}, s2, 12", f"s_add_u32 s{S_T4}, s{S_T4}, {WS_KV}",
                 f"v_lshlrev_b32 v{T+6}, 4, v{VTID}", f"v_add_u32 v{T+6}, s{S_T4}, v{T+6}"] + [f"v_accvgpr_write_b32 a{224+i}, 0" for i in range(4)] + [
                 "s_nop 1", ("vmu", "zst", f"global_store_dwordx4 v{T+6}, a[224:227], {wsp} sc1"), f"{L}:"]
            self.fixed.setdefault(LATEWS, []).append(z)
            self.fixed.setdefault(LATEWS + 1, []).append(self.st_item)
        self.fixed.setdefault(K_INITLD, []).append(self.w0("initld", [f"v_mov_b32 v{T+9}, {DBG_INIT}", f"s_mov_b64 s[{S_E0}:{S_E0+1}], exec", "s_mov_b64 exec, 1",
                                      ("vmu", "initld", f"global_load_dword v{T+10}, v{T+9}, {dbg} sc1"), f"s_mov_b64 exec, s[{S_E0}:{S_E0+1}]"]))
        it = [[f"v_accvgpr_read_b32 v{T+blk}, a{CS_TMP+16*blk}"] for blk in range(5)]
        at_ = [f"s_mov_b64 s[{S_E0}:{S_E0+1}], exec", "s_mov_b32 exec_hi, 0"]
        for blk in range(5):
            va, off = self.csa[blk]
            at_.append(("vm", f"csat{blk}", f"global_atomic_add_f32 v{va}, v{T+blk}, {wsp} offset:{off}"))
        at_.append(f"s_mov_b64 exec, s[{S_E0}:{S_E0+1}]")
        add(at(K_CSAT), it + [at_])
        self.fixed.setdefault(K_CNTLD, []).append(self.w0("cntld", [f"s_lshl_b32 s{S_T4}, s{S_T}, 7", f"s_add_u32 s{S_T4}, s{S_T4}, {WS_STCNT}", f"v_mov_b32 v{T+7}, s{S_T4}",
                          f"s_lshl_b32 s{S_T4}, s{S_CG}, 7", f"s_add_u32 s{S_T4}, s{S_T4}, {WS_CSCNT}", f"v_mov_b32 v{T+8}, s{S_T4}",
                          f"s_mov_b64 s[{S_E0}:{S_E0+1}], exec", "s_mov_b64 exec, 1",
                          f"!global_load_dword v{T+5}, v{T+7}, {wsp} sc1", ("vmu", "cntld", f"global_load_dword v{T+6}, v{T+8}, {wsp} sc1"),
                          f"s_mov_b64 exec, s[{S_E0}:{S_E0+1}]"]))
        VM = T; VCS = T + 2; VRB = T + 7
        lds = [[f"v_and_b32 v{T+8}, 31, v{VLANE}", f"s_lshl_b32 s{S_T4}, s{S_T}, 7", f"s_lshl_b32 s{S_T3}, s{S_WM}, 6", f"s_add_u32 s{S_T4}, s{S_T4}, s{S_T3}"],
               [f"v_add_u32 v{T+8}, s{S_T4}, v{T+8}", f"v_lshlrev_b32 v{T+8}, 2, v{T+8}", f"v_add_u32 v{T+9}, {WS_R}, v{T+8}"],
               [("vm", None, f"global_load_dword v{VM}, v{T+8}, {wsp} sc1")], [("vm", None, f"global_load_dword v{VM+1}, v{T+8}, {wsp} offset:128 sc1")],
               [("vm", None, f"global_load_dword v{VR}, v{T+9}, {wsp} sc1")], [("vm", None, f"global_load_dword v{VR+1}, v{T+9}, {wsp} offset:128 sc1")]]
        for blk in range(5):
            va, off = self.csa[blk]
            lds.append([("vm", "csld" if blk == 4 and typ == "A" else None, f"global_load_dword v{VCS+blk}, v{va}, {wsp} offset:{off} sc1")])
        if typ == "B":
            lds.append([f"s_lshl_b32 s{S_T4}, s{S_T}, 7", f"v_add_u32 v{T+8}, s{S_T4}, v{VTID}", f"v_lshlrev_b32 v{T+8}, 2, v{T+8}", f"v_add_u32 v{T+8}, {WS_R}, v{T+8}"])
            lds.append([("vm", "csld", f"global_load_dword v{VRB}, v{T+8}, {wsp} sc1")])
        add(at(2*H_CNT-1, 1), lds)
        if K_PT:
            add(at(K_PT), [[f"s_lshl_b32 s{S_T4}, s{S_TAU}, 16", f"s_lshl_b32 s{S_T3}, s{S_J}, 7", f"s_add_u32 s{S_T4}, s{S_T4}, s{S_T3}", f"v_mov_b32 v{T+9}, s{S_T4}"],
                           [f"s_mov_b64 s[{S_E0}:{S_E0+1}], exec", "s_mov_b64 exec, 1", ("vm", None, f"global_load_dword a224, v{T+9}, s[{P_O}:{P_O+1}]"), f"s_mov_b64 exec, s[{S_E0}:{S_E0+1}]"],
                           [f"v_mov_b32 v{T+9}, 0"],
                           [f"s_mov_b64 s[{S_E0}:{S_E0+1}], exec", "s_mov_b64 exec, 1", ("vm", None, f"global_load_dword a227, v{T+9}, s[{P_WO}:{P_WO+1}]"), f"s_mov_b64 exec, s[{S_E0}:{S_E0+1}]"]])
        if K_WOPF:
            it = [[f"s_lshl_b32 s{S_T4}, s{S_WV}, 17", f"s_and_b32 s{S_T3}, s{S_TAU}, 3", f"s_lshl_b32 s{S_T3}, s{S_T3}, 15", f"s_add_u32 s{S_T4}, s{S_T4}, s{S_T3}"],
                  [f"s_lshl_b32 s{S_T3}, s{S_J}, 7", f"s_add_u32 s{S_T4}, s{S_T4}, s{S_T3}", f"v_add_u32 v{T+9}, s{S_T4}, v{VDM}"]]
            for k in range(4):
                it.append([("vm", None, f"global_load_dwordx4 a[224:227], v{T+9}, s[{P_WO}:{P_WO+1}]")] + ([f"v_add_u32 v{T+9}, 8192, v{T+9}"] if k < 3 else []))
            add(at(K_WOPF), it)
        if CODE_PF2:
            add(at(CODE_PF2), [[f"s_getpc_b64 s[{S_E2}:{S_E2+1}]", f"K12{typ}_pc2:", f"s_lshr_b32 s{S_T4}, s2, 3", f"s_lshl_b32 s{S_T4}, s{S_T4}, 2", f"s_add_u32 s{S_T4}, s{S_T4}, s{S_WV}"],
                               [f"s_min_u32 s{S_T4}, s{S_T4}, ((K12_end-K12{typ}_pc2)>>10)-1", f"s_lshl_b32 s{S_T4}, s{S_T4}, 10", f"v_add_u32 v{T+9}, s{S_T4}, v{VL16}"],
                               [("vm", None, f"global_load_dwordx4 a[224:227], v{T+9}, s[{S_E2}:{S_E2+1}]")]])
        tt = T + 8; b = T + 10
        items = [[("wait", ["csld"])], [f"v_cmp_gt_u32 vcc, 32, v{VLANE}", "s_nop 1"]]
        for tb in range(2):
            items += [[f"v_cndmask_b32 v{tt}, 0, v{VM+tb}, vcc"], [f"v_cvt_pk_bf16_f32 v{b}, v{tt}, v{tt}"],
                      [f"v_and_b32 v{tt+1}, 0xffff0000, v{b}"], [f"v_sub_f32 v{tt+1}, v{tt}, v{tt+1}"],
                      [f"v_cvt_pk_bf16_f32 v{b+1}, v{tt+1}, 0"],
                      [f"v_accvgpr_write_b32 a{AMF+4*tb}, v{b}"], [f"v_accvgpr_write_b32 a{AMF+4*tb+1}, v{b+1}"],
                      [f"v_accvgpr_write_b32 a{AMF+4*tb+2}, 0"], [f"v_accvgpr_write_b32 a{AMF+4*tb+3}, 0"]]
        for blk in range(5):
            items += [[f"v_cndmask_b32 v{tt}, 0, v{VCS+blk}, vcc"], [f"v_sub_f32 v{tt}, 0, v{tt}"],
                      [f"v_cvt_pk_bf16_f32 v{b+1}, v{tt}, 0"], [f"v_lshlrev_b32 v{tt+1}, 16, v{b+1}"], [f"v_sub_f32 v{tt+1}, v{tt}, v{tt+1}"],
                      [f"v_cvt_pk_bf16_f32 v{b}, v{tt}, v{tt+1}"],
                      [f"v_accvgpr_write_b32 a{ACF+4*blk}, v{b}"], [f"v_accvgpr_write_b32 a{ACF+4*blk+1}, v{b+1}"],
                      [f"v_accvgpr_write_b32 a{ACF+4*blk+2}, 0"], [f"v_accvgpr_write_b32 a{ACF+4*blk+3}, 0"]]
        if typ == "B":
            items += [[f"v_lshlrev_b32 v{tt}, 2, v{VTID}"], [f"v_add_u32 v{tt}, {LDS_R}, v{tt}"],
                      [f"v_cmp_gt_u32 vcc, 128, v{VTID}", f"s_and_saveexec_b64 s[{S_E0}:{S_E0+1}], vcc", f"ds_write_b32 v{tt}, v{VRB}", f"s_mov_b64 exec, s[{S_E0}:{S_E0+1}]"]]
        add(at(K_RANK), items)

    def loop(self):
        A = self.A
        self.loop_start = len(A.l)
        steps = []
        for s in range(32):
            if s == CORR_AT: steps.append(("c", None))
            steps.append(("k", s))
        order_last = [b for b, kd in enumerate(self.kinds) if kd in ("gu","guh")] + [b for b, kd in enumerate(self.kinds) if kd not in ("gu","guh")]
        idx_of = {st: i for i, st in enumerate(steps)}
        def at(s, g=0): return (idx_of[("k", s)], g)
        flex = []; flex2 = []
        def add(pos, items):
            for it in items: flex.append((pos, it))
        def add2(pos, items):
            for it in items: flex2.append((pos, it))
        add(at(0), self.Wg(2))
        if not X1_EARLY: add(at(0), self.Xg(1))
        add(at(1, 1), self.Xg(2))
        for h in range(1, 14): add(at(2*h-1, 1), self.Wg(h+2))
        for sg in range(1, 6): add(at(4*sg-1, 1), self.Xg(sg+2))
        self.fixed = {}
        tagD = {}; tagR = {}; keep = []; placedR = {}
        self.oneshot_items(add, at)
        self.w2_done_R = []
        for i in range(N_IN):
            dd = self.w2.D(i); tagD[id(dd[0])] = i; keep.append(dd)
            add2(at(min(i+W2_START, 31)), dd)
            rr = self.w2.R(i); tagR[id(rr[-1])] = i; keep.append(rr)
            add2(at(min(i+W2_START+DLAG, 31)), rr); self.w2_done_R.append(i)
        flex.sort(key=lambda x: x[0])
        gaps_all = []
        flex2.sort(key=lambda x: x[0])
        queues = [list(flex), list(flex2)]
        for si, st in enumerate(steps):
            gaps = [[] for _ in range(10)]
            head = []
            if st[0] == "k":
                s = st[1]
                M = self.mfmas(s, order_last if s == 31 else None)
                head = ["s_waitcnt lgkmcnt(0)"]
                odd = s & 1
                if odd:
                    h = (s + 1)//2
                    if h <= 15:
                        ids = [f"W{h}_4"] + ([f"X{h//2}_3"] if h % 2 == 0 else [])
                        if h == H_INIT: ids.append("stst")
                        if (ZLATE or LATEWS) and h == H_Z: ids.append("zst")
                        if h == H_CS: ids.append("csat4")
                        if STAMP and SMODE == "wait":
                            gaps[0] += self.pre_barrier(h) + [("wait", ids), "s_memtime s[98:99]", "s_waitcnt lgkmcnt(0)", "s_barrier", "s_memtime s[100:101]", "s_waitcnt lgkmcnt(0)", "s_sub_u32 s100, s100, s98", f"s_add_u32 s{SB+12}, s{SB+12}, s100"]
                        else:
                            gaps[0] += self.pre_barrier(h) + [("wait", ids), "s_barrier"]
                        if (ZLATE or LATEWS) and h == H_Z: gaps[0] += self.sig(f"s_cmp_lt_u32 s2, {NZERO}", S_DBG, DBG_INIT, None, "init")
                        if h == H_INIT: gaps[0] += self.sig(None, S_WSP, WS_STCNT, S_T, "st")
                        if h == H_CS: gaps[0] += self.sig(None, S_WSP, WS_CSCNT, S_CG, "cs")
                    else:
                        gaps[0] += ["s_barrier"]
                nxt = s + 1
                if nxt < 32:
                    rd = self.reads(nxt)
                    g0 = 1 if odd else 0
                    for i, x in enumerate(rd): gaps[g0 + i//2].append(x)
            else:
                M = self.corr(); head = ["s_waitcnt lgkmcnt(0)"]
            if st[0] == "k" and st[1] in self.fixed:
                for it in self.fixed[st[1]]: gaps[9] += it
            for qi in range(2):
                pending = queues[qi]
                gi = 0
                rest = []
                blocked = False
                for (pos, it) in pending:
                    if blocked or pos[0] > si:
                        rest.append((pos, it)); continue
                    if id(it) in tagD and placedR.get(tagD[id(it)] - NSL, -1) == si:
                        rest.append((pos, it)); blocked = True; continue
                    if id(it) in tagD and tagD[id(it)] >= NSL and (tagD[id(it)] - NSL) not in placedR:
                        rest.append((pos, it)); blocked = True; continue
                    g = max(gi, pos[1] if pos[0] == si else 0)
                    need = 2 if (isinstance(it, tuple) and it[0] == "dma") else len(it)
                    while g < 10 and len(gaps[g]) + min(need, CAP) > CAP: g += 1
                    if g >= 10:
                        rest.append((pos, it)); blocked = True; continue
                    if id(it) in tagR: placedR[tagR[id(it)]] = si
                    if isinstance(it, tuple) and it[0] == "dma":
                        gaps[g].append(it[1]); gaps[g].append("__NOP__"); gaps[g].append(it[2]); gi = g + 1
                    else:
                        gaps[g] += it; gi = g
                queues[qi] = rest
            for g in gaps:
                while "__NOP__" in g:
                    i = g.index("__NOP__")
                    cand = [j for j in range(i-1) if isinstance(g[j], str) and g[j].startswith("ds_read")]
                    if cand:
                        x = g.pop(cand[-1]); i -= 1; g[i] = x
                    else: g[i] = "s_nop 0"
            if st[0] == "k" and st[1] % 4 == 0 and st[1] > 0: A.stamp(st[1]//4, "loop")
            for x in head: A(x)
            for i in range(10):
                A(M[i])
                for x in gaps[i]:
                    if x == "__WOSRD__":
                        assert "W15_4" in A.ids
                        A(f"s_lshl_b32 s{S_T0}, s{S_J}, 7"); A(f"s_lshl_b32 s{S_T1}, s{S_WV}, 17"); A(f"s_add_u32 s{S_T0}, s{S_T0}, s{S_T1}")
                        srd_off(A, S_WO, P_WO, P_WO+1, f"s{S_T0}", 512*1024)
                    else: A(x)
        assert not queues[0], queues[0][:3]
        self.leftover = queues[1]
        for (pos, it) in self.leftover:
            if id(it) in tagD: A("s_waitcnt lgkmcnt(0)")
            if it == ["__WOSRD__"]:
                A(f"s_lshl_b32 s{S_T0}, s{S_J}, 7"); A(f"s_lshl_b32 s{S_T1}, s{S_WV}, 17"); A(f"s_add_u32 s{S_T0}, s{S_T0}, s{S_T1}")
                srd_off(A, S_WO, P_WO, P_WO+1, f"s{S_T0}", 512*1024)
            else: emit_items(A, [it])
        self.nleft = len(self.leftover)
        txt = A.l
        for i in range(N_IN - NSL):
            rd = [n for n, x in enumerate(txt) if n > self.loop_start and "ds_read_b64_tr_b16 a[%d:" % (8*i+6) in x]
            if not rd: continue
            pos_r = rd[-1]; pos_d = A.pos[f"w2_{i+NSL}_0"]
            assert pos_d > pos_r and any("lgkmcnt(0)" in x for x in txt[pos_r:pos_d]), ("no lgkm wait", i)

    def flag_addr(self, slot_imm):
        A = self.A
        FA, ONE = VT+4, VT+5
        A(f"v_mov_b32 v{ONE}, 1")
        A(f"s_lshl_b32 s{S_T0}, s{S_T}, 1"); A(f"s_add_u32 s{S_T0}, s{S_T0}, s{S_WM}"); A(f"s_lshl_b32 s{S_T0}, s{S_T0}, 2")
        A(f"s_lshr_b32 s{S_T1}, s{S_IDX}, 1"); A(f"s_add_u32 s{S_T0}, s{S_T0}, s{S_T1}"); A(f"s_lshl_b32 s{S_T0}, s{S_T0}, 4")
        A(f"s_lshl_b32 s{S_T1}, s{S_I1}, 1"); A(f"s_add_u32 s{S_T0}, s{S_T0}, s{S_T1}"); A(f"s_add_u32 s{S_T0}, s{S_T0}, s{S_WN}")
        A(f"s_add_u32 s{S_T0}, s{S_T0}, {slot_imm}"); A(f"s_lshl_b32 s{S_T0}, s{S_T0}, 2"); A(f"s_add_u32 s{S_T0}, s{S_T0}, {WS_FLAG}")
        A(f"v_mov_b32 v{FA}, s{S_T0}")
        A(f"s_mov_b64 s[{S_E0}:{S_E0+1}], exec"); A("s_mov_b64 exec, 1")
    def flag_fire(self):
        A = self.A
        A.vm(f"global_store_dword v{VT+4}, v{VT+5}, s[{S_WSP}:{S_WSP+1}] sc1")
        A(f"s_mov_b64 exec, s[{S_E0}:{S_E0+1}]")
    def flag_store(self, slot_imm, FA, ONE):
        self.flag_addr(slot_imm); self.flag_fire()
    def early_flag_load(self):
        A = self.A
        A(f"s_lshl_b32 s{S_T0}, s{S_TAU}, 2"); A(f"s_add_u32 s{S_T0}, s{S_T0}, s{S_WV}"); A(f"s_lshl_b32 s{S_T0}, s{S_T0}, 6"); A(f"s_add_u32 s{S_T0}, s{S_T0}, {WS_FLAG}")
        A(f"v_lshlrev_b32 v32, 2, v{VLANE}"); A(f"v_add_u32 v32, s{S_T0}, v32")
        A("s_mov_b64 exec, 255"); A.vm(f"global_load_dword v33, v32, s[{S_WSP}:{S_WSP+1}] sc1", id="eflag"); A("s_mov_b64 exec, -1")

    def transition(self):
        A, typ, kinds = self.A, self.typ, self.kinds
        w2 = self.w2
        tt = VT
        state = {"D": N_IN, "R": N_IN}
        A.stamp(1, "tr")
        A("s_waitcnt lgkmcnt(0)")
        A("s_barrier")
        A(f"s_mul_i32 s{S_T0}, s{S_WV}, {NPOST*2048}"); A(f"s_add_u32 s{S_T0}, s{S_T0}, {W2POST}")
        A(f"s_sub_u32 s{S_T1}, s{S_T0}, s{S_LB}"); A(f"s_mov_b32 s{S_LB}, s{S_T0}")
        A(f"v_add_u32 v{VTR}, s{S_T1}, v{VTR}"); A(f"v_xor_b32 v{VTR1}, 64, v{VTR}")
        A(f"s_lshl_b32 s{S_T0}, s{S_J}, 7"); A(f"s_lshl_b32 s{S_T1}, s{S_WV}, 17"); A(f"s_add_u32 s{S_T0}, s{S_T0}, s{S_T1}")
        srd_off(A, S_WO, P_WO, P_WO+1, f"s{S_T0}", 512*1024)
        def bgD(n=1):
            for _ in range(n):
                i = state["D"]
                if i >= 36 or i - state["R"] >= NPOST: return
                emit_items(A, w2.D(i)); state["D"] += 1
        def bgR(n=1):
            for _ in range(n):
                i = state["R"]
                if i >= state["D"]: return
                if i >= 32 and not state.get("vfree"): return
                emit_items(A, w2.R(i)); state["R"] += 1
        def bgD_safe(n=1):
            A("s_waitcnt lgkmcnt(0)"); bgD(n)
        A(f"s_lshl_b32 s{S_T0}, s{S_T}, 1"); A(f"s_add_u32 s{S_T0}, s{S_T0}, s{S_WM}"); A(f"s_lshl_b32 s{S_T0}, s{S_T0}, 2")
        A(f"s_lshr_b32 s{S_T1}, s{S_IDX}, 1"); A(f"s_add_u32 s{S_T0}, s{S_T0}, s{S_T1}"); A(f"s_mul_i32 s{S_HB}, s{S_T0}, {36*2048}")
        A(f"s_and_b32 s{S_I1}, s{S_IDX}, 1")
        I1 = S_I1
        R2 = XF
        for tb in range(2):
            A(f"v_mul_f32 v{R2+2*tb}, v{VR+tb}, v{VR+tb}"); A(f"v_mul_f32 v{R2+2*tb+1}, v{VR+tb}, v{VR+tb}")
        PK = WF
        nst = 0
        gublks = [b for b, kd in enumerate(kinds) if kd in ("gu", "guh")]
        lasth = None
        for blk in gublks:
            kd = kinds[blk]
            if typ == "A":
                if blk == 0:
                    A(f"s_lshl_b32 s{S_T2}, s{I1}, 1"); A(f"s_add_u32 s{S_T2}, s{S_T2}, s{S_WN}"); A(f"s_lshl_b32 s{S_T2}, s{S_T2}, 13"); A(f"s_add_u32 s{S_T2}, s{S_T2}, s{S_HB}")
                else: A(f"s_add_u32 s{S_T2}, s{S_T2}, 2048")
            elif kd == "gu":
                if blk == 2:
                    A(f"s_lshl_b32 s{S_T2}, s{I1}, 2"); A(f"s_lshl_b32 s{S_T3}, s{S_WN}, 1"); A(f"s_add_u32 s{S_T2}, s{S_T2}, s{S_T3}"); A(f"s_add_u32 s{S_T2}, s{S_T2}, 16")
                    A(f"s_lshl_b32 s{S_T2}, s{S_T2}, 11"); A(f"s_add_u32 s{S_T2}, s{S_T2}, s{S_HB}")
                else: A(f"s_add_u32 s{S_T2}, s{S_T2}, 2048")
            else:
                A(f"s_lshl_b32 s{S_T2}, s{I1}, 1"); A(f"s_add_u32 s{S_T2}, s{S_T2}, s{S_WN}"); A(f"s_add_u32 s{S_T2}, s{S_T2}, 24")
                A(f"s_lshl_b32 s{S_T2}, s{S_T2}, 11"); A(f"s_add_u32 s{S_T2}, s{S_T2}, s{S_HB}")
            for tb in range(2):
                a = acc(blk, tb); pk = PK + 4*(nst % 4); nst += 1
                for i in range(4): A(f"v_pk_mul_f32 v[{a+2*i}:{a+2*i+1}], v[{a+2*i}:{a+2*i+1}], v[{a+8+2*i}:{a+8+2*i+1}]")
                for i in range(4): A(f"v_pk_mul_f32 v[{a+2*i}:{a+2*i+1}], v[{a+2*i}:{a+2*i+1}], v[{R2+2*tb}:{R2+2*tb+1}]")
                for i in range(4): A(f"v_cvt_pk_bf16_f32 v{pk+i}, v{a+2*i}, v{a+2*i+1}")
                lasth = f"hs_{blk}_{tb}"
                A.vm(f"buffer_store_dwordx4 v[{pk}:{pk+3}], v{VL16}, s[{S_H}:{S_H+3}], s{S_T2} offen offset:{tb*1024} sc1", id=lasth)
        assert (not LATE_R) or 36 - N_IN <= NPOST
        A.stamp(5); A.stamp(2, "tr")
        FA, ONE = VT+4, VT+5
        A(f"s_mov_b32 s{S_C6}, 0x358637bd"); A(f"s_mov_b32 s{S_C6+1}, 0x358637bd")
        C6 = f"s[{S_C6}:{S_C6+1}]"
        if typ == "A":
            A(f"s_lshl_b32 s{S_T2}, s{I1}, 2"); A(f"s_lshl_b32 s{S_T3}, s{S_WN}, 1"); A(f"s_add_u32 s{S_T2}, s{S_T2}, s{S_T3}"); A(f"s_add_u32 s{S_T2}, s{S_T2}, 28")
            A(f"s_lshl_b32 s{S_T2}, s{S_T2}, 11"); A(f"s_add_u32 s{S_T4}, s{S_T2}, s{S_HB}"); A(f"s_add_u32 s{S_XO}, s{S_T4}, 2048")
            A(f"s_mov_b32 s22, s{S_T4}"); A(f"s_mov_b32 s23, s{S_XO}")
            RP = XF + 4; RLP = XF + 6
            for tb in range(2):
                a = acc(4, tb)
                A(f"v_mov_b32 v{RP}, v{VR+tb}"); A(f"v_mov_b32 v{RP+1}, v{VR+tb}")
                A(f"v_mul_f32 v{RLP}, 0x3fb8aa3b, v{VR+tb}"); A(f"v_mul_f32 v{RLP+1}, 0x3fb8aa3b, v{VR+tb}")
                for i in range(0, 16, 4):
                    for j in (0, 2): A(f"v_pk_mul_f32 v[{tt+j}:{tt+j+1}], v[{a+i+j}:{a+i+j+1}], v[{RLP}:{RLP+1}]")
                    for j in (0, 2): A(f"v_pk_fma_f32 v[{a+i+j}:{a+i+j+1}], v[{a+i+j}:{a+i+j+1}], v[{RP}:{RP+1}], {C6}")
                    for j in range(4): A(f"v_exp_f32_e64 v{tt+j}, v{tt+j} clamp")
                    for j in range(4): A(f"v_max_f32 v{a+i+j}, s{S_C6}, v{a+i+j}")
                    for j in (0, 2): A(f"v_pk_add_f32 v[{a+i+j}:{a+i+j+1}], v[{a+i+j}:{a+i+j+1}], v[{tt+j}:{tt+j+1}]")
                    if PHI_D: bgD(1)
                if tb == 0 and FLAG_TB_A == 0:
                    A.stamp(3, "tr"); self.flag_addr(0); A.wait(lasth); self.flag_fire(); A.stamp(4, "tr")
                    if LATE_R == 1: bgD(36 - N_IN)
                if FASTG2 and tb == 1: self.early_flag_load()
                for hs in range(2):
                    pk = (128 + 4*(2*tb + hs)) if (DEFER or PQ_LATE) else PK + 4*(nst % 4); nst += 1
                    for i in range(4): A(f"v_cvt_pk_bf16_f32 v{pk+i}, v{a+8*hs+2*i}, v{a+8*hs+2*i+1}")
                    if not (DEFER or PQ_LATE): A.vm(f"buffer_store_dwordx4 v[{pk}:{pk+3}], v{VL16}, s[{S_H}:{S_H+3}], s{S_XO if hs else S_T4} offen offset:{tb*1024} sc1", id=f"pq_{tb}_{hs}")
            if FLAG_TB_A == 1:
                A.stamp(3, "tr"); self.flag_addr(0); A.wait(lasth); self.flag_fire(); A.stamp(4, "tr")
            if PQ_LATE and not DEFER:
                for tb in range(2):
                    for hs in range(2):
                        pk = 128 + 4*(2*tb + hs)
                        A.vm(f"buffer_store_dwordx4 v[{pk}:{pk+3}], v{VL16}, s[{S_H}:{S_H+3}], s{23 if hs else 22} offen offset:{tb*1024} sc1")
            bgD(11)
            state["vfree"] = True
            A.stamp(5, "tr")
        else:
            RR = WF; RL = WF + 16; TK = WF + 32; TV = VT + 6
            ONES = XF + 4
            for i in range(4): A(f"v_mov_b32 v{ONES+i}, 0x3f803f80")
            A(f"v_lshrrev_b32 v{tt}, 5, v{VLANE}"); A(f"v_lshlrev_b32 v{tt}, 4, v{tt}")
            A(f"s_lshl_b32 s{S_T0}, s{S_WM}, 8"); A(f"s_add_u32 s{S_T0}, s{S_T0}, {LDS_R}"); A(f"v_add_u32 v{XF+9}, s{S_T0}, v{tt}")
            D2, DZ = acc(2,0), acc(2,1)
            for tb in range(2):
                for q4 in range(4): A(f"ds_read_b128 v[{RR+4*q4}:{RR+4*q4+3}], v{XF+9} offset:{tb*128 + q4*32}")
                A("s_waitcnt lgkmcnt(0)")
                A(f"s_mov_b32 s{S_T0}, 0x3fb8aa3b"); A(f"s_mov_b32 s{S_T1}, 0x3fb8aa3b")
                for i in range(8): A(f"v_pk_mul_f32 v[{RL+2*i}:{RL+2*i+1}], v[{RR+2*i}:{RR+2*i+1}], s[{S_T0}:{S_T1}]")
                a = acc(0, tb); av = acc(1, tb)
                for i in range(0, 16, 4):
                    for j in (0, 2): A(f"v_pk_mul_f32 v[{tt+j}:{tt+j+1}], v[{a+i+j}:{a+i+j+1}], v[{RL+i+j}:{RL+i+j+1}]")
                    for j in (0, 2): A(f"v_pk_fma_f32 v[{a+i+j}:{a+i+j+1}], v[{a+i+j}:{a+i+j+1}], v[{RR+i+j}:{RR+i+j+1}], {C6}")
                    for j in range(4): A(f"v_exp_f32_e64 v{tt+j}, v{tt+j} clamp")
                    for j in range(4): A(f"v_max_f32 v{a+i+j}, s{S_C6}, v{a+i+j}")
                    for j in (0, 2): A(f"v_pk_add_f32 v[{a+i+j}:{a+i+j+1}], v[{a+i+j}:{a+i+j+1}], v[{tt+j}:{tt+j+1}]")
                    if PHI_D: bgD(1)
                for i in range(8): A(f"v_pk_mul_f32 v[{av+2*i}:{av+2*i+1}], v[{av+2*i}:{av+2*i+1}], v[{RR+2*i}:{RR+2*i+1}]")
                for i in range(8): A(f"v_cvt_pk_bf16_f32 v{TK+i}, v{a+2*i}, v{a+2*i+1}")
                for i in range(8): A(f"v_cvt_pk_bf16_f32 v{TV+i}, v{av+2*i}, v{av+2*i+1}")
                A("s_nop 1")
                for f in range(2):
                    c = "0" if (tb == 0 and f == 0) else None
                    A(f"v_mfma_f32_32x32x16_bf16 v[{D2}:{D2+15}], v[{TK+4*f}:{TK+4*f+3}], v[{TV+4*f}:{TV+4*f+3}], {c or f'v[{D2}:{D2+15}]'}")
                    A(f"v_mfma_f32_32x32x16_bf16 v[{DZ}:{DZ+15}], v[{TK+4*f}:{TK+4*f+3}], v[{ONES}:{ONES+3}], {c or f'v[{DZ}:{DZ+15}]'}")
                if tb == FLAG_TB:
                    A.stamp(3, "tr"); self.flag_addr(4); A.wait(lasth); self.flag_fire(); A.stamp(4, "tr")
                    if LATE_R == 1 and B_EARLY_D: bgD(36 - N_IN)
            if PHI_D: bgD(3)
            A(f"v_and_b32 v{tt}, 31, v{VLANE}"); A(f"v_cmp_gt_u32 vcc, 16, v{tt}")
            A(f"s_lshl_b32 s{S_T0}, s{S_WM}, 13"); A(f"s_lshl_b32 s{S_T1}, s{S_WN}, 12"); A(f"s_add_u32 s{S_T0}, s{S_T0}, s{S_T1}"); A(f"s_add_u32 s{S_T0}, s{S_T0}, {LDS_KV}")
            A(f"v_lshlrev_b32 v{tt}, 2, v{VLANE}"); A(f"v_add_u32 v{tt}, s{S_T0}, v{tt}")
            A("s_nop 7"); A("s_nop 3")
            for r_ in range(16):
                if r_ < 8: A(f"v_cndmask_b32 v{D2+r_}, v{DZ+r_}, v{D2+r_}, vcc")
                else: A(f"v_cndmask_b32 v{D2+r_}, v{D2+r_}, v{DZ+r_}, vcc")
            for r_ in range(16): A(f"ds_write_b32 v{tt}, v{D2+r_} offset:{r_*256}")
            A("s_waitcnt lgkmcnt(0)"); A("s_barrier")
            A(f"s_lshr_b32 s{S_T0}, s{S_WV}, 1"); A(f"s_lshl_b32 s{S_T0}, s{S_T0}, 12"); A(f"s_add_u32 s{S_T0}, s{S_T0}, {LDS_KV}")
            A(f"s_and_b32 s{S_T2}, s{S_WV}, 1")
            A(f"s_mul_i32 s{S_T3}, s{S_T2}, {8*256}"); A(f"s_add_u32 s{S_T0}, s{S_T0}, s{S_T3}")
            A(f"s_lshl_b32 s{S_T3}, s{S_T2}, 6")
            A(f"s_lshl_b32 s{S_T1}, s{S_IDX}, 2"); A(f"s_add_u32 s{S_T1}, s{S_T1}, s{S_WV}")
            A(f"s_mul_i32 s{S_T1}, s{S_T1}, {KV_HEAD}"); A(f"s_add_u32 s{S_T1}, s{S_T1}, {WS_KV}")
            A(f"v_and_b32 v{tt}, 7, v{VLANE}"); A(f"v_lshlrev_b32 v{tt}, 8, v{tt}"); A(f"v_add_u32 v{tt}, s{S_T0}, v{tt}")
            A(f"v_lshrrev_b32 v{tt+1}, 3, v{VLANE}"); A(f"v_lshlrev_b32 v{tt+1}, 2, v{tt+1}")
            A(f"v_add_u32 v{tt+2}, v{tt}, v{tt+1}"); A(f"v_add_u32 v{tt+2}, s{S_T3}, v{tt+2}")
            B0 = ACC
            for n in range(4):
                off = (32*(n>>1) + 8*(n&1))*4
                A(f"ds_read_b32 v{B0+2*n}, v{tt+2} offset:{off}"); A(f"ds_read_b32 v{B0+2*n+1}, v{tt+2} offset:{off+8192}")
            A(f"s_sub_u32 s{S_T3}, 64, s{S_T3}")
            A(f"v_lshlrev_b32 v{tt+3}, 5, v{tt+1}"); A(f"v_add_u32 v{tt+3}, v{tt+3}, v{tt}"); A(f"v_add_u32 v{tt+3}, s{S_T3}, v{tt+3}")
            A(f"v_cmp_gt_u32 vcc, 16, v{VLANE}"); A(f"s_and_saveexec_b64 s[{S_E0}:{S_E0+1}], vcc")
            A(f"ds_read_b32 v{B0+8}, v{tt+3}"); A(f"ds_read_b32 v{B0+9}, v{tt+3} offset:8192")
            A(f"s_mov_b64 exec, s[{S_E0}:{S_E0+1}]")
            A(f"v_lshlrev_b32 v{tt+2}, 2, v{VLANE}"); A(f"v_add_u32 v{tt+2}, s{S_T1}, v{tt+2}")
            A("s_waitcnt lgkmcnt(0)")
            if DEFER:
                for n in range(5): A(f"v_add_f32 v{128+n}, v{B0+2*n}, v{B0+2*n+1}")
                A(f"v_mov_b32 v133, v{tt+2}")
            else:
                if FASTG2:
                    A(f"s_mov_b32 s{S_XO}, s{S_T1}")
                    self.early_flag_load()
                for n in range(4):
                    A(f"v_add_f32 v{B0+2*n}, v{B0+2*n}, v{B0+2*n+1}")
                    A.vm(f"global_atomic_add_f32 v{tt+2}, v{B0+2*n}, s[{S_WSP}:{S_WSP+1}] offset:{n*256}")
                A(f"v_add_f32 v{B0+8}, v{B0+8}, v{B0+9}")
                A(f"s_and_saveexec_b64 s[{S_E0}:{S_E0+1}], vcc")
                A.vm(f"global_atomic_add_f32 v{tt+2}, v{B0+8}, s[{S_WSP}:{S_WSP+1}] offset:1024", id="kvat")
                A(f"s_mov_b64 exec, s[{S_E0}:{S_E0+1}]")
            bgD(11)
            state["vfree"] = True
            A.stamp(5, "tr")
        if FASTG2: A.wait("eflag")
        A.stamp(6); A.stamp(6, "tr")
        if not LATE_R:
            while state["R"] < 36:
                bgR(3); bgD_safe(3)
            A("s_waitcnt lgkmcnt(0)")

class G2:
    ACC2 = 0; HB = 64; NH = 32; W2V = 192
    def __init__(self, A): self.A = A; self.w2 = W2(A)
    def poll(self, label, vaddr, nl, expect=None, novm=False):
        A = self.A; T = VT
        A(f"s_mov_b32 s{S_T3}, 0")
        A(f"s_mov_b64 s[{S_E0}:{S_E0+1}], exec"); A(f"s_mov_b64 exec, {(1<<nl)-1}")
        A.label(label)
        if novm: A.l.append(f"  global_load_dword v{T+9}, v{vaddr}, s[{S_WSP}:{S_WSP+1}] sc1")
        else: A.vm(f"global_load_dword v{T+9}, v{vaddr}, s[{S_WSP}:{S_WSP+1}] sc1")
        A("s_waitcnt vmcnt(0)")
        if expect is None: A(f"v_cmp_ne_u32 vcc, 0, v{T+9}")
        else: A(f"v_cmp_le_u32 vcc, {expect}, v{T+9}")
        A(f"s_add_u32 s{S_T3}, s{S_T3}, 1")
        A(f"s_cmp_ge_u32 s{S_T3}, {POLL_MAX}"); A(f"s_cbranch_scc1 {label}_x")
        A(f"s_cmp_eq_u64 vcc, exec"); A(f"s_cbranch_scc1 {label}_x")
        A("s_sleep 1"); A(f"s_branch {label}")
        A.label(label + "_x")
        A(f"s_mov_b64 exec, s[{S_E0}:{S_E0+1}]")
    def check(self, label, vreg, nl, expect=None):
        pass
    def body(self):
        A = self.A; T = VT; VL = VLANE
        ACC2 = 0; HB = 64; NH = 16; KVR0 = 128
        A.reset_vm()
        VFL, VKV, VCN = T+10, T+11, T+12
        VF1, VF2 = T+8, T+9
        srd(A, S_O, P_O, P_O+1, 2048*1024)
        srd(A, S_XX, P_X, P_X+1, 2048*1024)
        A(f"s_lshl_b32 s{S_HO}, s{S_TAU}, 2"); A(f"s_add_u32 s{S_HO}, s{S_HO}, s{S_WV}")
        A(f"s_lshl_b32 s{S_T0}, s{S_HO}, 6"); A(f"s_add_u32 s{S_T0}, s{S_T0}, {WS_FLAG}")
        A(f"v_lshlrev_b32 v{VFL}, 2, v{VL}"); A(f"v_add_u32 v{VFL}, s{S_T0}, v{VFL}")
        A(f"s_mul_i32 s{S_HO}, s{S_HO}, {36*2048}")
        A(f"s_add_u32 s{S_T4}, s{S_HO}, {56*1024}")
        A(f"s_mov_b32 s{S_HBASE}, s{S_HO}"); A(f"s_lshl_b32 s{S_HR}, s{S_RHO}, 11")
        A(f"v_and_b32 v{T}, 31, v{VL}"); A(f"v_lshrrev_b32 v{T+1}, 5, v{VL}")
        A(f"v_lshlrev_b32 v{T+2}, 4, v{T+1}"); A(f"v_add_u32 v{T+2}, v{T+2}, v{T}"); A(f"v_subrev_u32 v{T+2}, 16, v{T+2}"); A(f"v_lshlrev_b32 v{T+2}, 5, v{T+2}")
        A(f"v_lshlrev_b32 v{T+3}, 5, v{T+1}"); A(f"v_add_u32 v{T+3}, 1024, v{T+3}")
        A(f"v_cmp_gt_u32 vcc, 16, v{T}"); A("s_nop 1"); A(f"v_cndmask_b32 v{T+2}, v{T+2}, v{T+3}, vcc")
        A(f"s_lshl_b32 s{S_T0}, s{S_WV}, 3"); A(f"s_mul_i32 s{S_T0}, s{S_T0}, {KV_HEAD}"); A(f"s_add_u32 s{S_T0}, s{S_T0}, {WS_KV}")
        A(f"v_add_u32 v{VKV}, s{S_T0}, v{T+2}")
        A(f"s_lshl_b32 s{S_T0}, s{S_WV}, 9"); A(f"s_add_u32 s{S_T0}, s{S_T0}, {WS_KVCNT}")
        A(f"v_lshlrev_b32 v{VCN}, 6, v{VL}"); A(f"v_add_u32 v{VCN}, s{S_T0}, v{VCN}")
        A("s_barrier")
        def signal_block(sfx=''):
            A(f"s_cmp_ge_u32 s{S_CP}, 2"); A(f"s_cbranch_scc1 K12_sigB{sfx}")
            A(f"s_lshl_b32 s{S_T0}, s{S_T}, 1"); A(f"s_add_u32 s{S_T0}, s{S_T0}, s{S_WM}"); A(f"s_lshl_b32 s{S_T0}, s{S_T0}, 2")
            A(f"s_lshr_b32 s{S_T1}, s{S_IDX}, 1"); A(f"s_add_u32 s{S_T0}, s{S_T0}, s{S_T1}"); A(f"s_lshl_b32 s{S_T0}, s{S_T0}, 4")
            A(f"s_lshl_b32 s{S_T1}, s{S_I1}, 1"); A(f"s_add_u32 s{S_T0}, s{S_T0}, s{S_T1}"); A(f"s_add_u32 s{S_T0}, s{S_T0}, s{S_WN}")
            A(f"s_add_u32 s{S_T0}, s{S_T0}, 8"); A(f"s_lshl_b32 s{S_T0}, s{S_T0}, 2"); A(f"s_add_u32 s{S_T0}, s{S_T0}, {WS_FLAG}")
            A(f"v_mov_b32 v{T+4}, s{S_T0}"); A(f"v_mov_b32 v{T+5}, 1")
            A(f"s_mov_b64 s[{S_E0}:{S_E0+1}], exec"); A("s_mov_b64 exec, 1")
            A(f"!global_store_dword v{T+4}, v{T+5}, s[{S_WSP}:{S_WSP+1}] sc1")
            A(f"s_mov_b64 exec, s[{S_E0}:{S_E0+1}]"); A(f"s_branch K12_sigX{sfx}")
            A(f"K12_sigB{sfx}:")
            A(f"s_lshl_b32 s{S_T0}, s{S_IDX}, 2"); A(f"s_add_u32 s{S_T0}, s{S_T0}, s{S_WV}"); A(f"s_lshl_b32 s{S_T0}, s{S_T0}, 6"); A(f"s_add_u32 s{S_T0}, s{S_T0}, {WS_KVCNT}")
            A(f"v_mov_b32 v{T+4}, s{S_T0}"); A(f"v_mov_b32 v{T+5}, 1")
            A(f"s_mov_b64 s[{S_E0}:{S_E0+1}], exec"); A("s_mov_b64 exec, 1")
            A(f"!global_atomic_add v{T+4}, v{T+5}, s[{S_WSP}:{S_WSP+1}] sc1")
            A(f"s_mov_b64 exec, s[{S_E0}:{S_E0+1}]")
            A(f"K12_sigX{sfx}:")
        if FASTG2:
            A("s_mov_b64 exec, 255"); A(f"v_cmp_ne_u32 vcc, 0, v33"); A("s_nop 3"); A("s_cmp_eq_u64 vcc, exec"); A("s_mov_b64 exec, -1")
            A(f"s_cselect_b32 s{S_XO}, 1, 0")
            A("s_cbranch_scc1 K12_hok")
            A("s_waitcnt vmcnt(0)")
            signal_block()
        elif not DEFER:
            if EARLY_POLL:
                A("s_mov_b64 exec, 255"); A.vm(f"global_load_dword v{T+9}, v{VFL}, s[{S_WSP}:{S_WSP+1}] sc1"); A("s_mov_b64 exec, -1")
            A("s_waitcnt vmcnt(0)")
            signal_block()
        if OUT_TOUCH:
            A(f"s_lshl_b32 s{S_T0}, s{S_TAU}, 16"); A(f"s_lshl_b32 s{S_T1}, s{S_J}, 7"); A(f"s_add_u32 s{S_T0}, s{S_T0}, s{S_T1}"); A(f"v_mov_b32 v{T+6}, s{S_T0}")
            A("s_mov_b64 exec, 1"); A.vm(f"global_load_dword v{T+7}, v{T+6}, s[{P_O}:{P_O+1}]"); A("s_mov_b64 exec, -1")
        A.stamp(7); A.stamp(7, "tr")
        if EARLY_POLL and not DEFER and not FASTG2:
            A("s_mov_b64 exec, 255"); A(f"v_cmp_ne_u32 vcc, 0, v{T+9}"); A("s_nop 3"); A("s_cmp_eq_u64 vcc, exec"); A("s_mov_b64 exec, -1")
            A("s_cbranch_scc1 K12_hok")
        self.poll("K12_pollH", VFL, 8)
        A("K12_hok:")
        A.stamp(8, "tr")
        A.stamp(8); A.stamp(1, "g2")
        hstate = {"off": 0}
        def h_items(f):
            o = []
            hb = HB + 4*(f % NH)
            if f % 2 == 0: o.append(f"s_add_u32 s{S_HO}, s{S_HBASE}, s{S_HR}")
            o.append(("vm", f"h{f}", f"buffer_load_dwordx4 v[{hb}:{hb+3}], v{VL16}, s[{S_H}:{S_H+3}], s{S_HO} offen offset:{(f%2)*1024} sc1"))
            if f % 2 == 1 and f < 55:
                o += [f"s_add_u32 s{S_HR}, s{S_HR}, 2048", f"s_cmp_eq_u32 s{S_HR}, {28*2048}", f"s_cselect_b32 s{S_HR}, 0, s{S_HR}"]
            return o
        def pq_items(g):
            return [f"s_add_u32 s{S_HO}, s{S_T4}, {(g//4)*4096}",
                    ("vm", f"pq{g}", f"buffer_load_dwordx4 a[{4*g}:{4*g+3}], v{VL16}, s[{S_H}:{S_H+3}], s{S_HO} offen offset:{(g%4)*1024} sc1")]
        def kv_items(h):
            b = KVR0 + 8*h
            pre = [f"s_mov_b64 exec, s[{S_C6}:{S_C6+1}]"] if KVMASK else []
            post = ["s_mov_b64 exec, -1"] if KVMASK else []
            return pre + [("vm", None, f"global_load_dwordx4 v[{b}:{b+3}], v{VKV}, s[{S_WSP}:{S_WSP+1}] sc1"),
                    ("vm", f"kv{h}", f"global_load_dwordx4 v[{b+4}:{b+7}], v{VKV}, s[{S_WSP}:{S_WSP+1}] offset:16 sc1")] + post + [
                    f"v_add_u32 v{VKV}, {KV_HEAD}, v{VKV}"]
        if KVMASK:
            A(f"s_mov_b32 s{S_C6}, 0xffff0011"); A(f"s_mov_b32 s{S_C6+1}, 0xffff0011")
        AHEAD = G2_AHEAD
        KVB = [KVR0 + 8*h for h in range(8)]
        DO = [224 - 32, 224 - 16]
        DO = [T - 16 - 16 + 0, 0]
        DO = [208, 224]
        DO = [HB + 32, HB + 48]
        OF = [T, T+4]
        loads = [("h", f) for f in range(56)]
        if TBM:
            for h in range(8): loads += [("kv", h), ("pq", 2*h)]
            for h in range(8): loads += [("pq", 2*h+1)]
        else:
            for h in range(8): loads += [("kv", h), ("pq", 2*h), ("pq", 2*h+1)]
        CHK = G2_CHK
        li = {"n": 0}
        def issue(n):
            o = []
            for _ in range(n):
                if li["n"] >= len(loads): break
                k, x = loads[li["n"]]; li["n"] += 1
                o.append(h_items(x) if k == "h" else (kv_items(x) if k == "kv" else pq_items(x)))
            return o
        A(f"s_mul_i32 s{S_T0}, s{S_J}, {7*1024}"); A(f"s_add_u32 s{S_T0}, s{S_T0}, s{S_HO}")
        for x in issue(4):
            for y in x: A(y)
        if G2_PF:
            for k in range(7):
                if k == 4: A(f"s_add_u32 s{S_T0}, s{S_T0}, 4096")
                A.vm(f"buffer_load_dwordx4 v[{T}:{T+3}], v{VL16}, s[{S_H}:{S_H+3}], s{S_T0} offen offset:{(k%4)*1024} sc1")
        for x in issue(AHEAD - 4):
            for y in x: A(y)
        if DEFER:
            A(f"s_cmp_ge_u32 s{S_CP}, 2"); A("s_cbranch_scc1 K12_defB")
            for tb in range(2):
                for hs in range(2):
                    pk = 128 + 4*(2*tb + hs)
                    A(f"!buffer_store_dwordx4 v[{pk}:{pk+3}], v{VL16}, s[{S_H}:{S_H+3}], s{23 if hs else 22} offen offset:{tb*1024} sc1")
            A(f"v_mov_b32 v{T+6}, 24576"); A("s_mov_b64 exec, 1")
            A(f"!global_load_dword v{T+7}, v{T+6}, s[{S_WSP}:{S_WSP+1}]")
            A("s_mov_b64 exec, -1"); A("s_branch K12_defX")
            A("K12_defB:")
            for n in range(4): A(f"!global_atomic_add_f32 v133, v{128+n}, s[{S_WSP}:{S_WSP+1}] offset:{n*256}")
            A("s_mov_b64 exec, 0xffff")
            A(f"!global_atomic_add_f32 v133, v132, s[{S_WSP}:{S_WSP+1}] offset:1024")
            A("s_mov_b64 exec, -1")
            A("K12_defX:")
            A.nvm += 5; A.ids["defer"] = A.nvm
        A.stamp(2, "g2")
        for i in range(28):
            if LATE_R and i == N_IN: A("s_waitcnt lgkmcnt(0)")
            A.wait(f"h{2*i+1}")
            if FASTG2 and i == 0:
                A(f"s_cmp_eq_u32 s{S_XO}, 0"); A("s_cbranch_scc1 K12_sigdone")
                signal_block("2")
                A("K12_sigdone:")
            if DEFER and i == S_SIG:
                assert A.ids[f"h{2*i+1}"] > A.ids["defer"]
                signal_block()
            if i == 1: A.stamp(3, "g2")
            gaps = [[] for _ in range(4)]
            if i == CHK - 5:
                gaps[0] += [f"v_add_u32 v{VFL}, 32, v{VFL}", f"s_mov_b64 s[{S_E0}:{S_E0+1}], exec", "s_mov_b64 exec, 15",
                            ("vm", "fq", f"global_load_dword v{VF1}, v{VFL}, s[{S_WSP}:{S_WSP+1}] sc1"), "s_mov_b64 exec, 255",
                            ("vm", "fkv", f"global_load_dword v{VF2}, v{VCN}, s[{S_WSP}:{S_WSP+1}] sc1"), f"s_mov_b64 exec, s[{S_E0}:{S_E0+1}]"]
            if LATE_R and i >= 2 and N_IN + (i - 2) < 36:
                rr = self.w2.R(N_IN + (i - 2))[1:]
                gaps[0] += rr[0]; gaps[3] += rr[1]
            n = 2
            if li["n"] + n > 56 and i < CHK: n = max(0, 56 - li["n"])
            for k, x in enumerate(issue(n)): gaps[1+k] += x
            mf = []
            for tb in range(2):
                hb = HB + 4*((2*i+tb) % NH)
                for nb in range(2):
                    a = ACC2 + 16*(2*nb+tb)
                    c = "0" if i == 0 else f"v[{a}:{a+15}]"
                    mf.append(f"v_mfma_f32_32x32x16_bf16 v[{a}:{a+15}], {self.w2.frag(i,nb)}, v[{hb}:{hb+3}], {c}")
            for g in range(4):
                A(mf[g])
                for x in gaps[g]: A(x)
            if i == CHK - 1:
                A.stamp(4, "g2")
                A.wait("fkv")
                A(f"s_mov_b64 s[{S_E0}:{S_E0+1}], exec"); A("s_mov_b64 exec, 15")
                A(f"v_cmp_ne_u32 vcc, 0, v{VF1}"); A("s_nop 3"); A("s_cmp_eq_u64 vcc, exec"); A(f"s_mov_b64 exec, s[{S_E0}:{S_E0+1}]")
                A("s_cbranch_scc1 K12_qok")
                self.poll("K12_pollQ", VFL, 4, novm=True)
                A.label("K12_qok")
                A(f"s_mov_b64 s[{S_E0}:{S_E0+1}], exec"); A("s_mov_b64 exec, 255")
                A(f"v_cmp_le_u32 vcc, 16, v{VF2}"); A("s_nop 3"); A("s_cmp_eq_u64 vcc, exec"); A(f"s_mov_b64 exec, s[{S_E0}:{S_E0+1}]")
                A("s_cbranch_scc1 K12_kvok")
                self.poll("K12_pollKV", VCN, 8, expect=16, novm=True)
                A.label("K12_kvok")
                A.stamp(5, "g2")
        A.stamp(6, "g2"); A.stamp(1, "att")
        A(f"v_lshrrev_b32 v{T+8}, 3, v{VTID}"); A(f"v_and_b32 v{T+9}, 7, v{VTID}")
        A(f"s_lshl_b32 s{S_T0}, s{S_TAU}, 16"); A(f"s_lshl_b32 s{S_T2}, s{S_J}, 7"); A(f"s_add_u32 s{S_T0}, s{S_T0}, s{S_T2}")
        VG = VFL
        A(f"v_lshlrev_b32 v{VG}, 10, v{T+8}"); A(f"v_lshlrev_b32 v{VCN}, 4, v{T+9}"); A(f"v_add_u32 v{VG}, v{VG}, v{VCN}")
        A(f"s_add_u32 s{S_T2}, s{S_T0}, {32*1024}")
        XR = HB
        A(f"s_mov_b32 s{S_T1}, 0x358637bd")
        A("s_waitcnt lgkmcnt(0)")
        units = [(h, tb) for tb in range(2) for h in range(8)] if TBM else [(h, tb) for h in range(8) for tb in range(2)]
        RS = 272; WSZ = 64*RS; VW = VCN
        A(f"v_and_b32 v{VW}, 31, v{VL}"); A(f"v_mul_u32_u24 v{VW}, {RS}, v{VW}"); A(f"v_lshrrev_b32 v{T+9}, 5, v{VL}"); A(f"v_lshlrev_b32 v{T+9}, 4, v{T+9}"); A(f"v_add_u32 v{VW}, v{VW}, v{T+9}")
        A(f"s_mul_i32 s{S_T3}, s{S_WV}, {WSZ}"); A(f"v_add_u32 v{VW}, s{S_T3}, v{VW}")
        def wr(tb, k):
            nb, q = k // 4, k % 4; a = ACC2 + 16*(2*nb+tb)
            return f"ds_write_b128 v{VW}, v[{a+4*q}:{a+4*q+3}] offset:{tb*32*RS + nb*128 + q*32}"
        def stA(u):
            h, tb = units[u]; d = DO[u & 1]
            o = []
            if tb == 0:
                o.append(("wait", [f"kv{h}", f"pq{2*h}"]))
                o += [f"v_cvt_pk_bf16_f32 v{KVB[h]+e}, v{KVR0+8*h+2*e}, v{KVR0+8*h+2*e+1}" for e in range(4)]
                o.append("s_nop 1")
            else: o.append(("wait", [f"pq{2*h+1}"]))
            o.append(f"v_mfma_f32_32x32x16_bf16 v[{d}:{d+15}], v[{KVB[h]}:{KVB[h]+3}], {ar(4*(2*h+tb), 4)}, 0")
            return o
        def stB(u):
            d = DO[u & 1]; o = OF[u & 1]; rc = T + 8
            l = [f"v_add_f32 v{rc}, s{S_T1}, v{d}", f"v_rcp_f32 v{rc}, v{rc}", "s_nop 0"]
            l += [f"v_mul_f32 v{d+8+e}, v{rc}, v{d+8+e}" for e in range(8)]
            l += [f"v_cvt_pk_bf16_f32 v{o+e}, v{d+8+2*e}, v{d+8+2*e+1}" for e in range(4)]
            return l
        def stC(u):
            h, tb = units[u]; o = OF[u & 1]; i = 28 + h
            return [f"v_mfma_f32_32x32x16_bf16 v[{ACC2+16*(2*nb+tb)}:{ACC2+16*(2*nb+tb)+15}], {self.w2.frag(i,nb)}, v[{o}:{o+3}], v[{ACC2+16*(2*nb+tb)}:{ACC2+16*(2*nb+tb)+15}]" for nb in range(2)]
        for x in stA(0): A(x)
        A.stamp(2, "att")
        for x in issue(1):
            for y in x: A(y)
        for x in stA(1): A(x)
        for x in issue(2):
            for y in x: A(y)
        A("s_nop 7"); A("s_nop 3")
        for x in stB(0): A(x)
        xdone = False
        for u in range(16):
            c = stC(u)
            nb_ = stB(u+1) if u + 1 < 16 else []
            if u in (2, 6, 10, 13): A.stamp({2:3, 6:4, 10:5, 13:6}[u], "att")
            A("s_nop 1"); A(c[0])
            for x in nb_[:5]: A(x)
            if u + 2 < 16:
                for x in stA(u+2): A(x)
            iss = issue(2)
            for x in iss:
                for y in x: A(y)
            if not iss and not xdone:
                A.vm(f"buffer_load_dwordx4 v[{XR}:{XR+3}], v{VG}, s[{S_XX}:{S_XX+3}], s{S_T0} offen", id="x0")
                A.vm(f"buffer_load_dwordx4 v[{XR+4}:{XR+7}], v{VG}, s[{S_XX}:{S_XX+3}], s{S_T2} offen", id="x1")
                xdone = True
            for x in nb_[5:10]: A(x)
            A(c[1])
            for x in nb_[10:]: A(x)
            if TBM and 9 <= u <= 12:
                A(wr(0, 2*(u-9))); A(wr(0, 2*(u-9)+1))
        assert xdone and li["n"] == len(loads)
        A.stamp(7, "g2"); A.stamp(7, "att")
        A(f"v_lshrrev_b32 v{T+2}, 3, v{VTID}"); A(f"v_and_b32 v{T+3}, 7, v{VTID}")
        A(f"v_mul_u32_u24 v{T+6}, {RS}, v{T+2}"); A(f"v_lshlrev_b32 v{T+7}, 5, v{T+3}"); A(f"v_add_u32 v{T+6}, v{T+6}, v{T+7}")
        if not TBM:
            A("s_nop 7")
            for k in range(8): A(wr(0, k))
        A("s_nop 7"); A("s_nop 1")
        for k in range(8): A(wr(1, k))
        A("s_waitcnt lgkmcnt(0)"); A("s_barrier")
        A.stamp(8, "g2"); A.stamp(8, "att")
        for ps in range(2):
            b = 72 + 40*ps
            for w in range(4):
                A(f"ds_read_b128 v[{b+8*w}:{b+8*w+3}], v{T+6} offset:{w*WSZ + ps*32*RS}")
                A(f"ds_read_b128 v[{b+8*w+4}:{b+8*w+7}], v{T+6} offset:{w*WSZ + ps*32*RS + 16}")
        for ps in range(2):
            b = 72 + 40*ps
            A(f"s_waitcnt lgkmcnt({8 if ps == 0 else 0})")
            for e in range(0, 8, 2):
                A(f"v_pk_add_f32 v[{b+e}:{b+e+1}], v[{b+e}:{b+e+1}], v[{b+8+e}:{b+8+e+1}]")
                A(f"v_pk_add_f32 v[{b+16+e}:{b+16+e+1}], v[{b+16+e}:{b+16+e+1}], v[{b+24+e}:{b+24+e+1}]")
            for e in range(0, 8, 2):
                A(f"v_pk_add_f32 v[{b+e}:{b+e+1}], v[{b+e}:{b+e+1}], v[{b+16+e}:{b+16+e+1}]")
            A.wait(f"x{ps}")
            xb = XR + 4*ps
            for e in range(4):
                A(f"v_lshlrev_b32 v{T+8}, 16, v{xb+e}"); A(f"v_and_b32 v{T+9}, 0xffff0000, v{xb+e}")
                A(f"v_pk_add_f32 v[{b+2*e}:{b+2*e+1}], v[{b+2*e}:{b+2*e+1}], v[{T+8}:{T+9}]")
                A(f"v_cvt_pk_bf16_f32 v{b+32+e}, v{b+2*e}, v{b+2*e+1}")
            A.vm(f"buffer_store_dwordx4 v[{b+32}:{b+35}], v{VG}, s[{S_O}:{S_O+3}], s{S_T0 if ps == 0 else S_T2} offen{OUTNT}")

def gen_k12():
    A = Prog()
    prologue_common(A)
    A(f"s_cmp_ge_u32 s{S_CP}, 2"); A("s_cbranch_scc1 K12_typeB")
    base_nvm = A.nvm; base_ids = dict(A.ids)
    for typ in ("A", "B"):
        if typ == "B":
            A.label("K12_typeB"); A.nvm = base_nvm; A.ids = dict(base_ids)
        g = G1(A, typ)
        g.prologue()
        if STAMP and SMODE == "wait":
            for c in (1,2,3,4,5,6,7): A(f"s_mov_b32 s{SB+2*c}, 0")
            A(f"s_memtime s[{SB+8}:{SB+9}]"); A("s_waitcnt lgkmcnt(0)")
        A.inloop = True
        g.loop()
        A.inloop = False
        if STAMP and SMODE == "wait":
            A(f"s_memtime s[{SB+10}:{SB+11}]"); A("s_waitcnt lgkmcnt(0)"); A(f"s_sub_u32 s{SB+8}, s{SB+10}, s{SB+8}")
        print(f"type {typ}: leftover W2 items after loop: {g.nleft}", file=sys.stderr)
        A.stamp(4); A.stamp(8, "loop"); A.stamp(8, "init"); A.stamp(5, "init")
        g.transition()
        if typ == "A": A("s_branch K12_g2")
    A.label("K12_g2")
    G2(A).body()
    if STAMP:
        A("s_waitcnt vmcnt(0) lgkmcnt(0)")
        A(f"{STAMP_INS} s[60:61]")
        A("s_waitcnt lgkmcnt(0)")
        A(f"s_lshl_b32 s{S_T0}, s2, 2"); A(f"s_add_u32 s{S_T0}, s{S_T0}, s{S_WV}"); A(f"s_lshl_b32 s{S_T0}, s{S_T0}, 6")
        A(f"s_add_u32 s{S_T0}, s{S_T0}, {WS_STAMP + 65536}")
        A(f"v_mov_b32 v{VT}, s{S_T0}")
        for i in range(9):
            A(f"v_mov_b32 v{VT+1}, s{SB+2*i}")
            A.vm(f"global_store_dword v{VT}, v{VT+1}, s[{S_WSP}:{S_WSP+1}] offset:{4*i}")
        A(f"v_mov_b32 v{VT+1}, s60")
        A.vm(f"global_store_dword v{VT}, v{VT+1}, s[{S_WSP}:{S_WSP+1}] offset:36")
    if STAMP and DBGSTAMP:
        A(f"s_cmp_eq_u32 s{S_WV}, 0"); A("s_cbranch_scc0 K12_end")
        A("s_mov_b64 exec, 1")
        for i in range(9):
            A(f"v_mov_b32 v{VT}, {4*(1+i)}"); A(f"v_mov_b32 v{VT+1}, s{SB+2*i}")
            A.vm(f"global_atomic_umax v{VT}, v{VT+1}, s[{S_DBG}:{S_DBG+1}]")
        A(f"v_mov_b32 v{VT}, 40"); A(f"v_mov_b32 v{VT+1}, s60"); A.vm(f"global_atomic_umax v{VT}, v{VT+1}, s[{S_DBG}:{S_DBG+1}]")
        A(f"s_not_b32 s{S_T0}, s{SB}"); A(f"v_mov_b32 v{VT}, 44"); A(f"v_mov_b32 v{VT+1}, s{S_T0}"); A.vm(f"global_atomic_umax v{VT}, v{VT+1}, s[{S_DBG}:{S_DBG+1}]")
    A.label("K12_end")
    return A.text()

def main(path):
    hdr = open("cdna_kernels/" + NAME + ".s.ref").read().split("; Override")[0]
    n = NAME + "_kernel"
    body = gen_k12()
    out = hdr + "; @launch grid=(256,1,1) block=(256,1,1) lds=163840\n"
    out += '.amdgcn_target "amdgcn-amd-amdhsa--gfx950"\n.text\n'
    out += f""".globl {n}
.p2align 8
.type {n},@function
{n}:
{body}
  s_endpgm
.section .rodata,"a"
.p2align 6
.amdhsa_kernel {n}
  .amdhsa_next_free_vgpr 512
  .amdhsa_next_free_sgpr 102
  .amdhsa_accum_offset 256
  .amdhsa_group_segment_fixed_size 0
  .amdhsa_kernarg_size 80
  .amdhsa_user_sgpr_count 2
  .amdhsa_user_sgpr_kernarg_segment_ptr 1
  .amdhsa_system_sgpr_workgroup_id_x 1
.end_amdhsa_kernel
"""
    open(path, "w").write(out)

if __name__ == "__main__":
    if "--stamp" in sys.argv:
        STAMP = True; sys.argv.remove("--stamp")
    for a in list(sys.argv):
        if a.startswith("--nin="): N_IN = int(a[6:]); sys.argv.remove(a)
        if a.startswith("--smode="): SMODE = a[8:]; sys.argv.remove(a)
        if a.startswith("--ahead="): G2_AHEAD = int(a[8:]); sys.argv.remove(a)
        if a.startswith("--chk="): G2_CHK = int(a[6:]); sys.argv.remove(a)
        if a.startswith("--pf="): G2_PF = int(a[5:]); sys.argv.remove(a)
        if a.startswith("--cpf2="): CODE_PF2 = int(a[7:]); sys.argv.remove(a)
        if a.startswith("--wsh="): WS_H = int(a[6:])*1048576; sys.argv.remove(a)
        if a == "--dbgstamp": DBGSTAMP = 1; sys.argv.remove(a)
        if a.startswith("--w2rot="): W2ROT = int(a[8:]); sys.argv.remove(a)
        if a.startswith("--w2start="): W2_START = int(a[10:]); sys.argv.remove(a)
        if a.startswith("--later="): LATE_R = int(a[8:]); sys.argv.remove(a)
        if a.startswith("--bed="): B_EARLY_D = int(a[6:]); sys.argv.remove(a)
        if a.startswith("--ftb="): FLAG_TB = int(a[6:]); sys.argv.remove(a)
        if a.startswith("--pt="): K_PT = int(a[5:]); sys.argv.remove(a)
        if a.startswith("--tt="): TLB_TOUCH = int(a[5:]); sys.argv.remove(a)
        if a.startswith("--hinit="):
            H_INIT = int(a[8:]); K_INITLD = 2*H_INIT - 4; K_CSAT = 2*H_INIT; H_CS = H_INIT + 3; sys.argv.remove(a)
        if a.startswith("--rot2="): ROT2 = int(a[7:]); sys.argv.remove(a)
        if a.startswith("--kvmask="): KVMASK = int(a[9:]); sys.argv.remove(a)
        if a.startswith("--wopf="): K_WOPF = int(a[7:]); sys.argv.remove(a)
        if a.startswith("--defer="): DEFER = int(a[8:]); sys.argv.remove(a)
        if a.startswith("--cpf1="): CODE_PF1 = int(a[7:]); sys.argv.remove(a)
        if a.startswith("--zlate="): ZLATE = int(a[8:]); sys.argv.remove(a)
        if a.startswith("--tbm="): TBM = int(a[6:]); sys.argv.remove(a)
        if a.startswith("--gate="): GATE = int(a[7:]); sys.argv.remove(a)
        if a.startswith("--tt3="): TT3 = int(a[6:]); sys.argv.remove(a)
        if a.startswith("--pqlate="): PQ_LATE = int(a[9:]); sys.argv.remove(a)
        if a.startswith("--ftba="): FLAG_TB_A = int(a[7:]); sys.argv.remove(a)
        if a.startswith("--ot="): OUT_TOUCH = int(a[5:]); sys.argv.remove(a)
        if a.startswith("--ep="): EARLY_POLL = int(a[5:]); sys.argv.remove(a)
        if a.startswith("--fast="): FASTG2 = int(a[7:]); sys.argv.remove(a)
        if a.startswith("--al8="): ALIGN8 = int(a[6:]); sys.argv.remove(a)
        if a.startswith("--tta="): TT_AFTER = int(a[6:]); sys.argv.remove(a)
        if a.startswith("--latews="):
            LATEWS = int(a[9:]); H_Z = 3; H_INIT = 6; K_INITLD = 8; K_CSAT = 12; H_CS = 9; K_CNTLD = 20; H_CNT = 12; K_RANK = 26; CORR_AT = 30; sys.argv.remove(a)
        if a.startswith("--hcs="): H_CS = int(a[6:]); sys.argv.remove(a)
        if a.startswith("--kinit="): K_INITLD = int(a[8:]); sys.argv.remove(a)
        if a.startswith("--kcnt="): K_CNTLD = int(a[7:]); sys.argv.remove(a)
        if a.startswith("--hcnt="): H_CNT = int(a[7:]); K_RANK = 2*H_CNT + 2; CORR_AT = min(31, K_RANK + 4); sys.argv.remove(a)
        if a == "--w2nt": W2NT = " nt"; sys.argv.remove(a)
        if a == "--outnt": OUTNT = " nt"; sys.argv.remove(a)
        if a == "--outsc1": OUTNT = " sc1"; sys.argv.remove(a)
        if a.startswith("--phid="): PHI_D = int(a[7:]); sys.argv.remove(a)
        if a.startswith("--x1e="): X1_EARLY = int(a[6:]); sys.argv.remove(a)
        if a.startswith("--rot="): ROT = int(a[6:]); sys.argv.remove(a)
        if a.startswith("--cap="): CAP = int(a[6:]); sys.argv.remove(a)
    if "--cyc" in sys.argv:
        STAMP = True; STAMP_INS = "s_memtime"; sys.argv.remove("--cyc")
    main(sys.argv[1] if len(sys.argv) > 1 else "cdna_kernels/" + NAME + ".s")
```

```python
import sys

NAME = "parallel_sum__linear_attn_block__glu_gated_bilinear__prompt"
WS_M, WS_R, WS_KV, KV_HEAD = 0, 8192, 32768, 1152
WS_FLAG = WS_KV + 36864
WS_KVCNT = WS_FLAG + 8192
WS_CS = WS_KVCNT + 2048
WS_STCNT = WS_CS + 20480
WS_CSCNT = WS_STCNT + 2048
NZERO = 18
assert WS_CSCNT + 2048 <= WS_KV + NZERO*4096 <= 131072
DBG_INIT = 0
CS_TMP = 140
A_ONES = 220
VC1, VC2, VC3 = 251, 252, 253
WS_H = 131072
H_BYTES = 32*4*36*2048
POLL_MAX = 200000
STAMP = False
STAMP_INS = 's_memrealtime'
WS_STAMP = 1 << 24
SB = 84
CORR_AT = 28
N_IN = 28
CAP = 5
SMODE = 'main'
ROT = 8
PHI_D = 0
LATEWS = 0
TT_AFTER = 0
ALIGN8 = 0
FASTG2 = 0
EARLY_POLL = 1
OUT_TOUCH = 0
PQ_LATE = 0
TT3 = 0
GATE = 0
TBM = 1
CODE_PF1 = 1
ZLATE = 0
H_Z = 2
DEFER = 0
S_SIG = 6
K_WOPF = 0
ROT2 = 1
KVMASK = 0
TLB_TOUCH = 0
K_PT = 0
FLAG_TB = 1
FLAG_TB_A = 0
B_EARLY_D = 1
LATE_R = 1
X1_EARLY = 1
W2ROT = 1
DBGSTAMP = 0
CODE_PF2 = 0
G2_AHEAD = 14; G2_CHK = 22; G2_PF = 0
K_INITLD = 2; H_INIT = 3; K_CSAT = 6; H_CS = 6; K_CNTLD = 18; H_CNT = 11; K_RANK = 25
CODE_KB = 48

class Prog:
    def __init__(self): self.l = []; self.nvm = 0; self.ids = {}; self.pos = {}; self.inloop = False
    def __call__(self, s):
        if s is None: return
        if isinstance(s, tuple):
            if s[0] == "vm":
                self.l.append("  " + s[2]); self.nvm += 1
                if s[1] is not None: self.ids[s[1]] = self.nvm; self.pos[s[1]] = len(self.l)
            elif s[0] == "stamp":
                self.stamp(s[1], s[2])
            elif s[0] == "vmu":
                self.l.append("  " + s[2]); self.ids[s[1]] = self.nvm
            elif s[0] == "wait":
                last = max(self.ids[i] for i in s[1])
                n = self.nvm - last
                assert n <= 63, (s, n)
                if STAMP and SMODE == "wait" and self.inloop:
                    cat = 2 if s[1][0].startswith("w2_") else (1 if s[1][0].startswith("W") else 3)
                    self.l.append(f"  s_memtime s[98:99]"); self.l.append("  s_waitcnt lgkmcnt(0)")
                    self.l.append(f"  s_waitcnt vmcnt({n})")
                    self.l.append(f"  s_memtime s[100:101]"); self.l.append("  s_waitcnt lgkmcnt(0)")
                    self.l.append(f"  s_sub_u32 s100, s100, s98"); self.l.append(f"  s_add_u32 s{SB+2*cat}, s{SB+2*cat}, s100")
                    return
                self.l.append(f"  s_waitcnt vmcnt({n})" + (" " + s[2] if len(s) > 2 and s[2] else ""))
            else: raise ValueError(s)
        elif s.endswith(":"): self.l.append(s)
        elif s.startswith("!"):
            self.l.append("  " + s[1:])
        else:
            assert not ("buffer_" in s or "global_" in s), s
            self.l.append("  " + s)
    def vm(self, text, id=None): self(("vm", id, text))
    def wait(self, *ids): self(("wait", list(ids)))
    def label(self, s): self.l.append(s + ":")
    def text(self):
        if not ALIGN8: return "\n".join(self.l)
        out = []
        for x in self.l:
            if x.lstrip().startswith("v_mfma"): out.append("  .p2align 3")
            out.append(x)
        return "\n".join(out)
    def stamp(self, i, mode="main"):
        if STAMP and (mode == SMODE or i == 0): self.l.append(f"  {STAMP_INS} s[{SB+2*i}:{SB+2*i+1}]")
    def reset_vm(self):
        self.ids = {}

def vr(b, n=1): return f"v{b}" if n == 1 else f"v[{b}:{b+n-1}]"
def ar(b, n=1): return f"a{b}" if n == 1 else f"a[{b}:{b+n-1}]"
def srd(A, d, lo, hi, size):
    A(f"s_mov_b32 s{d}, s{lo}"); A(f"s_and_b32 s{d+1}, s{hi}, 0xffff"); A(f"s_mov_b32 s{d+2}, {size}"); A(f"s_mov_b32 s{d+3}, 0x20000")
def srd_off(A, d, lo, hi, off, size):
    A(f"s_add_u32 s{d}, s{lo}, {off}"); A(f"s_addc_u32 s{d+1}, s{hi}, 0"); A(f"s_and_b32 s{d+1}, s{d+1}, 0xffff")
    if isinstance(off, int): A(f"s_mov_b32 s{d+2}, {size - off}")
    else: A(f"s_sub_u32 s{d+2}, {size}, {off}")
    A(f"s_mov_b32 s{d+3}, 0x20000")

X_BASE = 0; X_SLOT = 16384
W_BASE = 49152; W_SLOT = 20480; W_NS = 3
W2IN = W_BASE + W_NS*W_SLOT
NSL = 6
LDS_R = W2IN + 4*NSL*2048
LDS_KV = 0
W2_START = 1
W2POST = 69632; NPOST = 11
DLAG = 5

ACC = 0; WF = 160; XF = 200; TRA = 216; XA = 221; VOW = 225; VOX = 230
VR = 234; VLANE = 236; VL16 = 237; VTID = 238; VDM = 239
VT = 240
VTR = 254; VTR1 = 255
AMF = 228; ACF = 236
def acc(blk, tb): return ACC + (blk*2+tb)*16

S_X = 4; S_W = 8; S_H = 28; S_WSP = 32
S_WV = 34; S_WM = 35; S_WN = 36; S_T = 37; S_IDX = 38
S_KW = 39; S_KH = 40; S_R30 = 41; S_R35 = 42; S_RH = 43; S_KX = 44; S_W1K = 45; S_W4K = 46; S_XB = 47
S_WD = 48; S_LB = 52; S_W2O = 53
S_W2B = 74; S_W2R = 75; S_W2T = 76; S_RHO = 77; S_HR = 75; S_HBASE = 74
S_T0 = 54; S_T1 = 55; S_T2 = 56; S_T3 = 57; S_T4 = 58; S_XO = 59
S_E0 = 60; S_E2 = 62
S_P = 64
P_X, P_WQ, P_WO, P_G, P_U, P_D, P_O = 64, 66, 68, 72, 74, 76, 78
S_DBG = 72; S_KSC = 66; S_CG = 67
S_HB = 80; S_I1 = 81; S_CP = 82; S_TAU = 83; S_J = 70; S_HO = 71
S_WO = 8; S_O = 12; S_XX = 16
S_C6 = 20

def w2row(i):
    if i < 16: return ("D", 256, 16*i)
    if i < 24: return ("D", 128, 1024 + 16*(i-16))
    if i < 28: return ("D", 64, 1536 + 16*(i-24))
    return ("O", 128, 16*(i-28))

class W2:
    def __init__(self, A, vdm2=None): self.A = A; self.vdm2 = vdm2
    def frag(self, ks, nb, W2V=192):
        f = ks*2 + nb
        return ar(4*f, 4) if f < 64 else vr(W2V + 4*(f-64), 4)
    def half(self, ks, nb, h, W2V=192):
        f = ks*2 + nb
        return ar(4*f + 2*h, 2) if f < 64 else vr(W2V + 4*(f-64) + 2*h, 2)
    def slot_off(self, i):
        return (i % NSL)*2048 if i < N_IN else ((i - N_IN) % NPOST)*2048
    def D(self, i):
        o = []
        if i < 28: s, so = S_WD, S_W2R
        else:
            s, so = S_WO, S_W2O
            o.append([f"s_mov_b32 s{S_W2O}, {16*(i-28)*1024}"])
        d0 = ("dma", f"s_add_u32 m0, s{S_LB}, {self.slot_off(i)}", ("vm", f"w2_{i}_0", f"buffer_load_dwordx4 v{VDM}, s[{s}:{s+3}], s{so} offen lds"))
        o.append(d0)
        o.append(("dma", f"s_add_u32 m0, s{S_LB}, {self.slot_off(i) + 1024}", ("vm", f"w2_{i}_1", f"buffer_load_dwordx4 v{self.vdm2}, s[{s}:{s+3}], s{so} offen lds")))
        if i < 27:
            o.append([f"s_add_u32 s{S_W2R}, s{S_W2R}, 16384", f"s_cmp_eq_u32 s{S_W2R}, {28*16384}", f"s_cselect_b32 s{S_W2R}, 0, s{S_W2R}"])
        return o
    def R(self, i):
        o = self.slot_off(i)
        r = [[("wait", [f"w2_{i}_1"])]]
        for nb in range(2):
            va = VTR if nb == 0 else VTR1
            r.append([f"ds_read_b64_tr_b16 {self.half(i, nb, 0)}, v{va} offset:{o}", f"ds_read_b64_tr_b16 {self.half(i, nb, 1)}, v{va} offset:{o+1024}"])
        return r

def emit_items(A, items):
    for it in items:
        if isinstance(it, tuple) and it[0] == "dma":
            A(it[1]); A("s_nop 0"); A(it[2])
        else:
            for s in it: A(s)

def prologue_common(A):
    A("s_cmp_ge_u32 s2, 256"); A("s_cbranch_scc1 K12_end")
    A.stamp(0)
    A(f"s_load_dwordx16 s[{S_P}:{S_P+15}], s[0:1], 0")
    A(f"s_load_dwordx2 s[{S_WSP}:{S_WSP+1}], s[0:1], 72")
    A(f"s_getpc_b64 s[{S_E2}:{S_E2+1}]")
    A("K12_pc:")
    A(f"v_and_b32 v{VLANE}, 63, v0")
    A(f"v_lshrrev_b32 v{VT}, 6, v0")
    A(f"v_mov_b32 v{VTID}, v0")
    A(f"v_lshlrev_b32 v{VL16}, 4, v{VLANE}")
    if TLB_TOUCH:
        A(f"v_lshlrev_b32 v{WF+28}, 3, v{VLANE}")
        A("s_mov_b64 exec, 0x1ff")
        A.vm(f"global_load_dwordx2 v[{WF+30}:{WF+31}], v{WF+28}, s[0:1]", id="kptr")
        A("s_mov_b64 exec, -1")
    A(f"v_readfirstlane_b32 s{S_WV}, v{VT}")
    A(f"s_and_b32 s{S_T0}, s2, 7"); A(f"s_lshr_b32 s{S_T1}, s2, 3")
    A(f"s_lshl_b32 s{S_T2}, s{S_T1}, 2"); A(f"s_add_u32 s{S_T2}, s{S_T2}, s{S_WV}"); A(f"s_min_u32 s{S_T2}, s{S_T2}, ((K12_end-K12_pc)>>10)-1"); A(f"s_lshl_b32 s{S_T2}, s{S_T2}, 10")
    A(f"v_add_u32 v{VT+4}, s{S_T2}, v{VL16}")
    if CODE_PF1: A.vm(f"global_load_dwordx4 v[{WF+36}:{WF+39}], v{VT+4}, s[{S_E2}:{S_E2+1}]")
    A(f"s_and_b32 s{S_T2}, s{S_T1}, 7"); A(f"s_lshr_b32 s{S_CP}, s{S_T1}, 3")
    A(f"s_lshr_b32 s{S_T}, s{S_T0}, 2"); A(f"s_lshl_b32 s{S_T}, s{S_T}, 3"); A(f"s_add_u32 s{S_T}, s{S_T}, s{S_T2}")
    A(f"s_and_b32 s{S_IDX}, s{S_T0}, 3"); A(f"s_lshl_b32 s{S_IDX}, s{S_IDX}, 1")
    A(f"s_and_b32 s{S_T3}, s{S_CP}, 1"); A(f"s_add_u32 s{S_IDX}, s{S_IDX}, s{S_T3}")
    A(f"s_and_b32 s{S_TAU}, s{S_T1}, 3"); A(f"s_lshl_b32 s{S_T3}, s{S_T0}, 2"); A(f"s_add_u32 s{S_TAU}, s{S_TAU}, s{S_T3}")
    A(f"s_lshr_b32 s{S_T4}, s{S_T1}, 2")
    A(f"s_add_u32 s{S_T0}, s{S_CP}, s{S_T2}"); A(f"s_and_b32 s{S_T0}, s{S_T0}, 3"); A(f"s_lshl_b32 s{S_T0}, s{S_T0}, 1")
    A(f"s_lshr_b32 s{S_T1}, s{S_T2}, 2"); A(f"s_add_u32 s{S_T0}, s{S_T0}, s{S_T1}")
    if ROT2: A(f"s_add_u32 s{S_T0}, s{S_CP}, s{S_T2}"); A(f"s_and_b32 s{S_T0}, s{S_T0}, 7")
    A(f"s_lshl_b32 s{S_KW}, s{S_T0}, 6")
    A(f"s_lshr_b32 s{S_WM}, s{S_WV}, 1"); A(f"s_and_b32 s{S_WN}, s{S_WV}, 1")
    t0, t1, t3, t4 = VT, VT+1, VT+3, VT+4
    A(f"v_lshrrev_b32 v{t0}, 3, v{VLANE}"); A(f"v_and_b32 v{t1}, 7, v{VLANE}")
    A(f"v_lshrrev_b32 v{t3}, 4, v{VLANE}"); A(f"v_xor_b32 v{t3}, v{t1}, v{t3}"); A(f"v_lshlrev_b32 v{t3}, 4, v{t3}")
    A(f"v_lshlrev_b32 v{t4}, 10, v{t0}"); A(f"v_add_u32 v{VOX}, v{t3}, v{t4}")
    A(f"v_xor_b32 v{VOX+1}, 64, v{VOX}"); A(f"v_add_u32 v{VOX+1}, {8*1024}, v{VOX+1}")
    A(f"v_add_u32 v{VOX+2}, {16*1024}, v{VOX}"); A(f"v_add_u32 v{VOX+3}, {16*1024}, v{VOX+1}")
    A(f"s_lshl_b32 s{S_XB}, s{S_T}, 7"); A(f"s_lshl_b32 s{S_T0}, s{S_WV}, 5"); A(f"s_add_u32 s{S_XB}, s{S_XB}, s{S_T0}"); A(f"s_lshl_b32 s{S_XB}, s{S_XB}, 10")
    A(f"s_lshl_b32 s{S_KX}, s{S_KW}, 1")
    A(f"s_and_b32 s{S_T0}, s{S_WV}, 1"); A(f"s_lshl_b32 s{S_T0}, s{S_T0}, 4"); A(f"s_add_u32 s{S_KH}, s{S_KW}, s{S_T0}")
    A(f"s_lshl_b32 s{S_T0}, s{S_WV}, 3"); A(f"s_add_u32 s{S_KW}, s{S_KW}, s{S_T0}")
    A(f"s_lshl_b32 s{S_W1K}, s{S_WV}, 10"); A(f"s_lshl_b32 s{S_W4K}, s{S_WV}, 12")
    A(f"s_lshr_b32 s{S_T0}, s{S_CP}, 1"); A(f"s_lshl_b32 s{S_T0}, s{S_T0}, 3"); A(f"s_add_u32 s{S_T3}, s{S_T0}, s{S_IDX}")
    A(f"s_lshl_b32 s{S_T0}, s{S_T}, 7"); A(f"s_lshl_b32 s{S_T1}, s{S_T3}, 3"); A(f"s_add_u32 s{S_T0}, s{S_T0}, s{S_T1}"); A(f"s_lshl_b32 s{S_T1}, s{S_WV}, 1"); A(f"s_add_u32 s{S_T2}, s{S_T0}, s{S_T1}")
    A(f"s_lshl_b32 s{S_T0}, s{S_T2}, 10"); A(f"v_add_u32 v{VT+5}, s{S_T0}, v{VL16}")
    if TLB_TOUCH:
        A.wait("kptr")
        A("s_mov_b64 exec, 0x1ff")
        A.vm(f"global_load_dword v{WF+29}, v[{WF+30}:{WF+31}], off offset:128")
        A("s_mov_b64 exec, -1")
    A.stamp(1, "pro")
    if GATE:
        A(f"s_load_dwordx2 s[{S_E0}:{S_E0+1}], s[0:1], 64")
    A("s_waitcnt lgkmcnt(0)")
    if GATE:
        A(f"s_cmp_eq_u32 s{S_WV}, 0"); A("s_cbranch_scc0 K12_gate_w")
        A(f"v_mov_b32 v{VT+8}, 192"); A(f"v_mov_b32 v{VT+9}, 1"); A("s_mov_b64 exec, 1")
        A(f"!global_atomic_add v{VT+8}, v{VT+9}, s[{S_E0}:{S_E0+1}] sc1")
        A(f"s_mov_b32 s{S_T1+0}, 0") if False else None
        A(f"s_mov_b32 s3, 0")
        A("K12_gate_l:")
        A(f"!global_load_dword v{VT+9}, v{VT+8}, s[{S_E0}:{S_E0+1}] sc1"); A("s_waitcnt vmcnt(0)")
        A(f"v_readfirstlane_b32 s{S_E2}, v{VT+9}"); A("s_add_u32 s3, s3, 1"); A(f"s_cmp_ge_u32 s3, {POLL_MAX}"); A("s_cbranch_scc1 K12_gate_x")
        A(f"s_cmp_ge_u32 s{S_E2}, 256"); A("s_cbranch_scc1 K12_gate_x"); A(f"s_sleep {GATE}"); A("s_branch K12_gate_l")
        A("K12_gate_x:"); A("s_mov_b64 exec, -1")
        A("K12_gate_w:"); A("s_barrier")
    if TLB_TOUCH:
        A(f"v_mov_b32 v{WF+28}, 24576"); A("s_mov_b64 exec, 1")
        A.vm(f"global_load_dword v{WF+32}, v{WF+28}, s[{S_WSP}:{S_WSP+1}]")
        A("s_mov_b64 exec, -1")
    A.stamp(2, "pro")
    if TT3:
        lo, hi = WF+30, WF+31
        A(f"v_mov_b32 v{lo}, s{P_WQ}"); A(f"v_mov_b32 v{hi}, s{P_WQ+1}")
        for ln, p in ((1, P_G), (2, P_U)):
            A(f"v_writelane_b32 v{lo}, s{p}, {ln}"); A(f"v_writelane_b32 v{hi}, s{p+1}, {ln}")
        A("s_mov_b64 exec, 7")
        A.vm(f"global_load_dword v{WF+29}, v[{lo}:{hi}], off")
        A("s_mov_b64 exec, -1")
    A(f"s_mov_b32 s{S_J}, s{S_T4}")
    if not (ZLATE or LATEWS):
        A(f"s_cmp_ge_u32 s2, {NZERO}"); A("s_cbranch_scc1 K12_nozero")
        A(f"s_lshl_b32 s{S_T0}, s2, 12"); A(f"s_add_u32 s{S_T0}, s{S_T0}, {WS_KV}")
        A(f"v_lshlrev_b32 v{VT+6}, 4, v{VTID}"); A(f"v_add_u32 v{VT+6}, s{S_T0}, v{VT+6}")
        for i in range(4): A(f"v_mov_b32 v{VT+8+i}, 0")
        A(f"!global_store_dwordx4 v{VT+6}, v[{VT+8}:{VT+11}], s[{S_WSP}:{S_WSP+1}] sc1")
        A("K12_nozero:")
    SX = WF + 20
    A.vm(f"global_load_dwordx4 v[{SX}:{SX+3}], v{VT+5}, s[{P_X}:{P_X+1}]")
    A.vm(f"global_load_dwordx4 v[{SX+4}:{SX+7}], v{VT+5}, s[{P_X}:{P_X+1}] offset:1024", id="strow")
    A(f"s_lshl_b32 s{S_HB}, s{S_T2}, 2")
    A(f"s_mov_b32 s{S_I1}, s{S_T3}")
    srd(A, S_X, P_X, P_X+1, 2048*1024)

class G1:
    def __init__(self, A, typ):
        self.A = A; self.typ = typ; self.w2 = W2(A, 227 if typ == 'A' else 226)
        self.kinds = ["gu","gu","gu","gu","q"] if typ == "A" else ["k","v","gu","gu","guh"]
        if typ == "A": self.strides = [3584,3584,3584,3584,3072]; self.swz = ["g","u","g","u","q"]
        else: self.strides = [3072,3072,3584,3584,3584]; self.swz = ["q","q","g","u","h"]
    def vow(self, rho):
        key = (self.swz[rho], self.strides[rho])
        for r in range(rho + 1):
            if (self.swz[r], self.strides[r]) == key: return VOW + r
    def Wg(self, h):
        o = []
        if h > 0:
            o.append([f"s_add_u32 s{S_KW}, s{S_KW}, 32", f"s_and_b32 s{S_KW}, s{S_KW}, 511"])
            if self.typ == "B": o.append([f"s_add_u32 s{S_KH}, s{S_KH}, 32", f"s_and_b32 s{S_KH}, s{S_KH}, 511"])
        o.append([f"s_mul_i32 s{S_R30}, s{S_KW}, 3072", f"s_mul_i32 s{S_R35}, s{S_KW}, 3584"])
        if self.typ == "B": o.append([f"s_mul_i32 s{S_RH}, s{S_KH}, 3584"])
        for rho in range(5):
            so = S_RH if self.swz[rho] == "h" else (S_R30 if self.strides[rho] == 3072 else S_R35)
            o.append(("dma", f"s_add_u32 m0, s{S_W1K}, {W_BASE + (h % W_NS)*W_SLOT + rho*4096}",
                      ("vm", f"W{h}_{rho}", f"buffer_load_dwordx4 v{self.vow(rho)}, s[{S_W+4*rho}:{S_W+4*rho+3}], s{so} offen lds")))
        return o
    def Xg(self, sg):
        o = []
        if sg > 0: o.append([f"s_add_u32 s{S_KX}, s{S_KX}, 128", f"s_and_b32 s{S_KX}, s{S_KX}, 1023"])
        o.append([f"s_add_u32 s{S_XO}, s{S_XB}, s{S_KX}"])
        for j in range(4):
            o.append(("dma", f"s_add_u32 m0, s{S_W4K}, {X_BASE + (sg % 3)*X_SLOT + j*1024}",
                      ("vm", f"X{sg}_{j}", f"buffer_load_dwordx4 v{VOX+j}, s[{S_X}:{S_X+3}], s{S_XO} offen lds")))
        return o
    def reads(self, s):
        par = s & 1; kk = s & 3; sg = s >> 2; h = s >> 1; second = s & 1
        xo = (sg % 3)*X_SLOT
        o = [f"ds_read_b128 v[{XF+8*par}:{XF+8*par+3}], v{XA+kk} offset:{xo}", f"ds_read_b128 v[{XF+8*par+4}:{XF+8*par+7}], v{XA+kk} offset:{xo+4096}"]
        for blk, kd in enumerate(self.kinds):
            b = WF + 20*par + 4*blk
            if kd == "guh": o1, o2 = (1024 if second else 0), 256
            else: o1, o2 = (2048 if second else 0), 512
            o1 += (h % W_NS)*W_SLOT
            o.append(f"ds_read_b64_tr_b16 v[{b}:{b+1}], v{TRA+blk} offset:{o1}")
            o.append(f"ds_read_b64_tr_b16 v[{b+2}:{b+3}], v{TRA+blk} offset:{o1+o2}")
        return o
    def mfmas(self, s, order=None):
        par = s & 1; o = []
        for blk in (order or range(5)):
            kd = self.kinds[blk]
            wf = f"v[{WF+20*par+4*blk}:{WF+20*par+4*blk+3}]"
            for tb in range(2):
                xf = f"v[{XF+8*par+4*tb}:{XF+8*par+4*tb+3}]"; a = acc(blk, tb)
                c = "0" if s == 0 else f"v[{a}:{a+15}]"
                if kd in ("k", "v"): o.append(f"v_mfma_f32_32x32x16_bf16 v[{a}:{a+15}], {xf}, {wf}, {c}")
                else: o.append(f"v_mfma_f32_32x32x16_bf16 v[{a}:{a+15}], {wf}, {xf}, {c}")
        return o
    def corr(self):
        o = []
        for blk in range(5):
            for tb in range(2):
                a = acc(blk, tb); cf = ar(ACF+4*blk, 4); mf = ar(AMF+4*tb, 4)
                if self.kinds[blk] in ("k", "v"): o.append(f"v_mfma_f32_32x32x16_bf16 v[{a}:{a+15}], {mf}, {cf}, v[{a}:{a+15}]")
                else: o.append(f"v_mfma_f32_32x32x16_bf16 v[{a}:{a+15}], {cf}, {mf}, v[{a}:{a+15}]")
        return o

    def prologue(self):
        A, typ, kinds = self.A, self.typ, self.kinds
        SZQ, SZG = 512*3072, 512*3584
        A.stamp(3, "pro")
        emit_items(A, self.Xg(0))
        A.stamp(4, "pro")
        if typ == "A":
            A(f"s_lshr_b32 s{S_T0}, s{S_IDX}, 1"); A(f"s_mul_i32 s{S_T0}, s{S_T0}, 7"); A(f"s_and_b32 s{S_T1}, s{S_IDX}, 1"); A(f"s_lshl_b32 s{S_T1}, s{S_T1}, 1")
            A(f"s_add_u32 s{S_T0}, s{S_T0}, s{S_T1}"); A(f"s_lshl_b32 s{S_T0}, s{S_T0}, 7")
            srd_off(A, S_W+0, P_G, P_G+1, f"s{S_T0}", SZG); srd_off(A, S_W+4, P_U, P_U+1, f"s{S_T0}", SZG)
            A(f"s_add_u32 s{S_T0}, s{S_T0}, 128")
            srd_off(A, S_W+8, P_G, P_G+1, f"s{S_T0}", SZG); srd_off(A, S_W+12, P_U, P_U+1, f"s{S_T0}", SZG)
            A(f"s_lshl_b32 s{S_T0}, s{S_IDX}, 7")
            srd_off(A, S_W+16, P_WQ, P_WQ+1, f"s{S_T0}", SZQ)
        else:
            A(f"s_lshl_b32 s{S_T0}, s{S_IDX}, 7"); A(f"s_add_u32 s{S_T0}, s{S_T0}, 1024")
            srd_off(A, S_W+0, P_WQ, P_WQ+1, f"s{S_T0}", SZQ)
            A(f"s_add_u32 s{S_T0}, s{S_T0}, 1024")
            srd_off(A, S_W+4, P_WQ, P_WQ+1, f"s{S_T0}", SZQ)
            A(f"s_lshr_b32 s{S_T0}, s{S_IDX}, 1"); A(f"s_mul_i32 s{S_T0}, s{S_T0}, 7"); A(f"s_and_b32 s{S_T1}, s{S_IDX}, 1")
            A(f"s_add_u32 s{S_T0}, s{S_T0}, s{S_T1}"); A(f"s_add_u32 s{S_T0}, s{S_T0}, 4"); A(f"s_lshl_b32 s{S_T0}, s{S_T0}, 7")
            srd_off(A, S_W+8, P_G, P_G+1, f"s{S_T0}", SZG); srd_off(A, S_W+12, P_U, P_U+1, f"s{S_T0}", SZG)
            A(f"s_lshr_b32 s{S_T0}, s{S_IDX}, 1"); A(f"s_mul_i32 s{S_T0}, s{S_T0}, 7"); A(f"s_add_u32 s{S_T0}, s{S_T0}, 6"); A(f"s_lshl_b32 s{S_T0}, s{S_T0}, 7")
            A(f"s_and_b32 s{S_T1}, s{S_IDX}, 1"); A(f"s_lshl_b32 s{S_T1}, s{S_T1}, 6"); A(f"s_add_u32 s{S_T0}, s{S_T0}, s{S_T1}")
            A(f"s_cmp_ge_u32 s{S_WV}, 2")
            A(f"s_cselect_b32 s{S_T2}, s{P_U}, s{P_G}"); A(f"s_cselect_b32 s{S_T3}, s{P_U+1}, s{P_G+1}")
            srd_off(A, S_W+16, S_T2, S_T3, f"s{S_T0}", SZG)
        t0, t1, t2, t3, t4 = VT, VT+1, VT+2, VT+3, VT+4
        A(f"v_lshrrev_b32 v{t0}, 3, v{VLANE}"); A(f"v_and_b32 v{t1}, 7, v{VLANE}")
        A(f"v_lshrrev_b32 v{t2}, 4, v{VLANE}"); A(f"v_and_b32 v{t2}, 1, v{t2}")
        done = {}
        for rho in range(5):
            key = (self.swz[rho], self.strides[rho])
            if key in done: continue
            done[key] = rho
            if self.swz[rho] == "h":
                A(f"v_lshrrev_b32 v{t3}, 2, v{VLANE}"); A(f"v_and_b32 v{t4}, 3, v{VLANE}")
                A(f"s_lshr_b32 s{S_T0}, s{S_WV}, 1"); A(f"s_lshl_b32 s{S_T0}, s{S_T0}, 1")
                A(f"v_xor_b32 v{t4}, s{S_T0}, v{t4}")
                A(f"v_mul_u32_u24 v{t3}, 3584, v{t3}"); A(f"v_lshlrev_b32 v{t4}, 4, v{t4}"); A(f"v_add_u32 v{VOW+rho}, v{t3}, v{t4}")
            else:
                if self.swz[rho] == "q": A(f"v_lshlrev_b32 v{t3}, 2, v{t2}")
                else:
                    A(f"v_lshlrev_b32 v{t3}, 1, v{t2}")
                    if self.swz[rho] == "u": A(f"v_or_b32 v{t3}, 4, v{t3}")
                A(f"v_xor_b32 v{t3}, v{t1}, v{t3}"); A(f"v_lshlrev_b32 v{t3}, 4, v{t3}")
                A(f"v_mul_u32_u24 v{t4}, {self.strides[rho]}, v{t0}"); A(f"v_add_u32 v{VOW+rho}, v{t3}, v{t4}")
        A.stamp(5, "pro")
        emit_items(A, self.Wg(0)); A.stamp(6, "pro"); emit_items(A, self.Wg(1))
        A.stamp(1); A.stamp(7, "pro")
        A(f"v_lshlrev_b32 v{t3}, 2, v{t2}"); A(f"v_xor_b32 v{t3}, v{t1}, v{t3}"); A(f"v_lshlrev_b32 v{t3}, 4, v{t3}")
        A(f"v_lshlrev_b32 v{t4}, 10, v{t0}"); A(f"v_add_u32 v{VDM}, v{t3}, v{t4}")
        A(f"v_add_u32 v{self.w2.vdm2}, 8192, v{VDM}")
        A(f"s_lshl_b32 s{S_T0}, s{S_J}, 7"); A(f"s_mul_i32 s{S_T1}, s{S_WV}, {448*1024}"); A(f"s_add_u32 s{S_T0}, s{S_T0}, s{S_T1}")
        srd_off(A, S_WD, P_D, P_D+1, f"s{S_T0}", 1792*1024)
        A(f"s_mul_i32 s{S_LB}, s{S_WV}, {NSL*2048}"); A(f"s_add_u32 s{S_LB}, s{S_LB}, {W2IN}")
        A(f"s_lshr_b32 s{S_T0}, s2, 3"); A(f"s_and_b32 s{S_T1}, s{S_T0}, 3"); A(f"s_mul_i32 s{S_T1}, s{S_T1}, 7"); A(f"s_lshr_b32 s{S_T0}, s{S_T0}, 2"); A(f"s_mul_i32 s{S_T0}, s{S_T0}, 3")
        A(f"s_add_u32 s{S_RHO}, s{S_T0}, s{S_T1}"); A(f"s_cmp_ge_u32 s{S_RHO}, 28"); A(f"s_cselect_b32 s{S_T0}, 28, 0"); A(f"s_sub_u32 s{S_RHO}, s{S_RHO}, s{S_T0}")
        if not W2ROT: A(f"s_mov_b32 s{S_RHO}, 0")
        A(f"s_lshl_b32 s{S_W2R}, s{S_RHO}, 14")
        A(f"s_load_dwordx2 s[{S_DBG}:{S_DBG+1}], s[0:1], 64")
        A(f"s_mov_b32 s{S_CG}, s{S_I1}")
        A(f"s_lshr_b32 s{S_T0}, s{S_T}, 3"); A(f"s_lshl_b32 s{S_T0}, s{S_T0}, 1"); A(f"s_add_u32 s{S_KSC}, s{S_T0}, s{S_WM}")
        A(f"v_and_b32 v{t0}, 31, v{VLANE}")
        A(f"v_and_b32 v{t1}, 15, v{t0}"); A(f"v_lshrrev_b32 v{t2}, 4, v{t0}")
        def cs_addr(dst, soff_code, lane_kind):
            soff_code()
            if lane_kind == "gu":
                A(f"v_mul_u32_u24 v{t3}, 1792, v{t2}"); A(f"v_add_u32 v{t3}, v{t3}, v{t1}")
            elif lane_kind == "kv":
                A(f"v_lshlrev_b32 v{t3}, 9, v{t2}"); A(f"v_add_u32 v{t3}, v{t3}, v{t1}")
            else: A(f"v_mov_b32 v{t3}, v{t0}")
            A(f"v_add_u32 v{t3}, s{S_T0}, v{t3}"); A(f"v_lshlrev_b32 v{t3}, 2, v{t3}"); A(f"v_add_u32 v{dst}, {WS_CS}, v{t3}")
        if typ == "A":
            cs_addr(VC1, lambda: (A(f"s_lshr_b32 s{S_T0}, s{S_IDX}, 1"), A(f"s_mul_i32 s{S_T0}, s{S_T0}, 7"), A(f"s_and_b32 s{S_T1}, s{S_IDX}, 1"), A(f"s_lshl_b32 s{S_T1}, s{S_T1}, 1"), A(f"s_add_u32 s{S_T0}, s{S_T0}, s{S_T1}"),
                                  A(f"s_add_u32 s{S_T0}, s{S_T0}, s{S_WN}"), A(f"s_lshl_b32 s{S_T0}, s{S_T0}, 6"), A(f"s_add_u32 s{S_T0}, s{S_T0}, 1536")), "gu")
            cs_addr(VC2, lambda: (A(f"s_lshl_b32 s{S_T0}, s{S_IDX}, 6"), A(f"s_lshl_b32 s{S_T1}, s{S_WN}, 5"), A(f"s_add_u32 s{S_T0}, s{S_T0}, s{S_T1}")), "q")
            self.csa = [(VC1, 0), (VC1, 64), (VC1, 128), (VC1, 192), (VC2, 0)]
        else:
            cs_addr(VC2, lambda: (A(f"s_lshl_b32 s{S_T0}, s{S_IDX}, 6"), A(f"s_lshl_b32 s{S_T1}, s{S_WN}, 5"), A(f"s_add_u32 s{S_T0}, s{S_T0}, s{S_T1}"), A(f"s_add_u32 s{S_T0}, s{S_T0}, 512")), "q")
            cs_addr(VC1, lambda: (A(f"s_lshr_b32 s{S_T0}, s{S_IDX}, 1"), A(f"s_mul_i32 s{S_T0}, s{S_T0}, 7"), A(f"s_and_b32 s{S_T1}, s{S_IDX}, 1"), A(f"s_add_u32 s{S_T0}, s{S_T0}, s{S_T1}"), A(f"s_add_u32 s{S_T0}, s{S_T0}, 4"), A(f"s_lshl_b32 s{S_T0}, s{S_T0}, 6"), A(f"s_lshl_b32 s{S_T1}, s{S_WN}, 5"), A(f"s_add_u32 s{S_T0}, s{S_T0}, s{S_T1}"), A(f"s_add_u32 s{S_T0}, s{S_T0}, 1536")), "gu")
            cs_addr(VC3, lambda: (A(f"s_lshr_b32 s{S_T0}, s{S_IDX}, 1"), A(f"s_mul_i32 s{S_T0}, s{S_T0}, 7"), A(f"s_add_u32 s{S_T0}, s{S_T0}, 6"), A(f"s_lshl_b32 s{S_T0}, s{S_T0}, 6"),
                                  A(f"s_and_b32 s{S_T1}, s{S_IDX}, 1"), A(f"s_lshl_b32 s{S_T1}, s{S_T1}, 1"), A(f"s_add_u32 s{S_T1}, s{S_T1}, s{S_WN}"), A(f"s_lshl_b32 s{S_T1}, s{S_T1}, 4"),
                                  A(f"s_add_u32 s{S_T0}, s{S_T0}, s{S_T1}"), A(f"s_add_u32 s{S_T0}, s{S_T0}, 1536")), "gu")
            self.csa = [(VC2, 0), (VC2, 2048), (VC1, 0), (VC1, 64), (VC3, 0)]
        A(f"v_mov_b32 v{t3}, 0x3f803f80")
        for i in range(4): A(f"v_accvgpr_write_b32 a{A_ONES+i}, v{t3}")
        srd_off(A, S_H, S_WSP, S_WSP+1, WS_H, WS_H + H_BYTES)
        G, p, r, c = t0, t1, t2, t3
        A(f"v_lshrrev_b32 v{G}, 4, v{VLANE}"); A(f"v_and_b32 v{G}, 1, v{G}")
        A(f"v_lshrrev_b32 v{p}, 5, v{VLANE}")
        A(f"v_and_b32 v{r}, 15, v{VLANE}"); A(f"v_lshrrev_b32 v{r}, 2, v{r}")
        A(f"v_and_b32 v{c}, 3, v{VLANE}")
        k_, rb, u1, u2 = t4, t4+1, t4+2, t4+3
        A(f"v_lshlrev_b32 v{k_}, 3, v{p}"); A(f"v_add_u32 v{k_}, v{k_}, v{r}")
        A(f"v_lshrrev_b32 v{rb}, 1, v{r}"); A(f"v_and_b32 v{rb}, 1, v{rb}")
        for blk, kd in enumerate(kinds):
            d = TRA + blk
            if typ == "A" and kd == "gu" and blk > 0:
                A(f"v_xor_b32 v{d}, {blk*32}, v{TRA}"); continue
            if typ == "B" and blk == 1:
                A(f"v_add_u32 v{d}, 4096, v{d-1}"); continue
            if typ == "B" and blk == 3:
                A(f"v_xor_b32 v{d}, 32, v{d-1}"); continue
            if kd == "guh":
                A(f"v_lshrrev_b32 v{u1}, 1, v{c}"); A(f"s_lshl_b32 s{S_T0}, s{S_WN}, 1"); A(f"v_add_u32 v{u1}, s{S_T0}, v{u1}")
                A(f"v_lshlrev_b32 v{u2}, 1, v{G}"); A(f"v_xor_b32 v{u1}, v{u1}, v{u2}"); A(f"v_lshlrev_b32 v{u1}, 4, v{u1}")
                A(f"v_lshlrev_b32 v{u2}, 6, v{k_}"); A(f"v_add_u32 v{u1}, v{u1}, v{u2}")
                A(f"v_lshlrev_b32 v{u2}, 11, v{G}"); A(f"v_add_u32 v{u1}, v{u1}, v{u2}")
                A(f"v_add_u32 v{u1}, {W_BASE + 4*4096}, v{u1}")
            else:
                if kd in ("q", "k"):
                    A(f"s_lshl_b32 s{S_T0}, s{S_WN}, 1"); A(f"v_add_u32 v{u1}, s{S_T0}, v{G}")
                elif typ == "A": A(f"v_mov_b32 v{u1}, 0")
                else:
                    A(f"s_lshl_b32 s{S_T0}, s{S_WN}, 1"); A(f"v_mov_b32 v{u1}, s{S_T0}")
                A(f"v_lshlrev_b32 v{u1}, 1, v{u1}"); A(f"v_lshrrev_b32 v{u2}, 1, v{c}"); A(f"v_add_u32 v{u1}, v{u1}, v{u2}")
                if kd in ("q", "k"): A(f"v_lshlrev_b32 v{u2}, 2, v{rb}")
                else:
                    A(f"v_lshlrev_b32 v{u2}, 1, v{rb}"); A(f"v_lshlrev_b32 v{d}, 2, v{G}"); A(f"v_or_b32 v{u2}, v{u2}, v{d}")
                A(f"v_xor_b32 v{u1}, v{u1}, v{u2}"); A(f"v_lshlrev_b32 v{u1}, 4, v{u1}")
                A(f"v_lshlrev_b32 v{u2}, 7, v{k_}"); A(f"v_add_u32 v{u1}, v{u1}, v{u2}")
                if kd == "q": A(f"v_add_u32 v{u1}, {W_BASE + 4*4096}, v{u1}")
                elif kd == "k": A(f"v_add_u32 v{u1}, {W_BASE}, v{u1}")
                else:
                    if typ == "A":
                        A(f"s_lshl_b32 s{S_T0}, s{S_WN}, 13"); A(f"s_add_u32 s{S_T0}, s{S_T0}, {W_BASE}")
                    else: A(f"s_mov_b32 s{S_T0}, {W_BASE + 2*4096}")
                    A(f"v_lshlrev_b32 v{u2}, 12, v{G}"); A(f"v_add_u32 v{u1}, v{u1}, v{u2}"); A(f"v_add_u32 v{u1}, s{S_T0}, v{u1}")
            A(f"v_and_b32 v{u2}, 1, v{c}"); A(f"v_lshlrev_b32 v{u2}, 3, v{u2}"); A(f"v_add_u32 v{d}, v{u1}, v{u2}")
        A(f"v_lshlrev_b32 v{u1}, 2, v{p}"); A(f"v_add_u32 v{u1}, v{u1}, v{r}"); A(f"v_lshlrev_b32 v{u1}, 7, v{u1}")
        A(f"v_lshlrev_b32 v{u2}, 1, v{G}"); A(f"v_lshrrev_b32 v{VTR}, 1, v{c}"); A(f"v_add_u32 v{u2}, v{u2}, v{VTR}")
        A(f"v_lshlrev_b32 v{VTR}, 2, v{rb}"); A(f"v_xor_b32 v{u2}, v{u2}, v{VTR}"); A(f"v_lshlrev_b32 v{u2}, 4, v{u2}"); A(f"v_add_u32 v{u1}, v{u1}, v{u2}")
        A(f"v_and_b32 v{u2}, 1, v{c}"); A(f"v_lshlrev_b32 v{u2}, 3, v{u2}"); A(f"v_add_u32 v{u1}, v{u1}, v{u2}")
        A(f"v_add_u32 v{VTR}, s{S_LB}, v{u1}"); A(f"v_xor_b32 v{VTR1}, 64, v{VTR}")
        A(f"v_and_b32 v{u1}, 31, v{VLANE}"); A(f"s_lshl_b32 s{S_T0}, s{S_WM}, 6"); A(f"v_add_u32 v{u1}, s{S_T0}, v{u1}")
        A(f"v_lshrrev_b32 v{u2}, 1, v{u1}"); A(f"v_and_b32 v{u2}, 7, v{u2}"); A(f"v_xor_b32 v{u2}, v{u2}, v{p}"); A(f"v_lshlrev_b32 v{u2}, 4, v{u2}")
        A(f"v_lshlrev_b32 v{u1}, 7, v{u1}"); A(f"v_add_u32 v{u1}, v{u1}, v{u2}")
        for kk in range(4): A(f"v_xor_b32 v{XA+kk}, {kk*32}, v{u1}")
        if X1_EARLY: emit_items(A, self.Xg(1))
        if TT_AFTER:
            A(f"v_mov_b32 v{WF+32}, 0"); A("s_mov_b64 exec, 1")
            if TT_AFTER & 1: A.vm(f"buffer_load_dword a224, v{WF+32}, s[{S_WD}:{S_WD+3}], 0 offen")
            if TT_AFTER & 2: A.vm(f"global_load_dword a225, v{WF+32}, s[{P_WO}:{P_WO+1}]")
            if TT_AFTER & 4: A.vm(f"global_load_dword a226, v{WF+32}, s[{P_O}:{P_O+1}]")
            A("s_mov_b64 exec, -1")
        SX = WF + 20
        A.wait("strow")
        P0, P1, Q0, Q1, U = VT, VT+2, VT+4, VT+6, VT+8
        for tok, (P, Q) in enumerate(((P0, Q0), (P1, Q1))):
            for i in range(4):
                src = SX + 4*tok + i
                A(f"v_lshlrev_b32 v{U}, 16, v{src}"); A(f"v_and_b32 v{U+1}, 0xffff0000, v{src}")
                if i == 0:
                    A(f"v_pk_mul_f32 v[{Q}:{Q+1}], v[{U}:{U+1}], v[{U}:{U+1}]"); A(f"v_mov_b32 v{P}, v{U}"); A(f"v_mov_b32 v{P+1}, v{U+1}")
                else:
                    A(f"v_pk_add_f32 v[{P}:{P+1}], v[{P}:{P+1}], v[{U}:{U+1}]"); A(f"v_pk_fma_f32 v[{Q}:{Q+1}], v[{U}:{U+1}], v[{U}:{U+1}], v[{Q}:{Q+1}]")
        for r_ in (P0, P1, Q0, Q1): A(f"v_add_f32 v{r_}, v{r_}, v{r_+1}")
        for dpp in ("row_shr:1 row_mask:0xf bank_mask:0xf", "row_shr:2 row_mask:0xf bank_mask:0xf", "row_shr:4 row_mask:0xf bank_mask:0xf", "row_shr:8 row_mask:0xf bank_mask:0xf",
                    "row_bcast:15 row_mask:0xa bank_mask:0xf", "row_bcast:31 row_mask:0xc bank_mask:0xf"):
            for r_ in (P0, P1, Q0, Q1): A(f"v_add_f32_dpp v{r_}, v{r_}, v{r_} {dpp}")
        A(f"v_mul_f32 v{P0}, 0x3b000000, v{P0}"); A(f"v_mul_f32 v{P0+1}, 0x3b000000, v{P1}")
        A(f"v_mul_f32 v{Q0}, 0x3b000000, v{Q0}"); A(f"v_mul_f32 v{Q0+1}, 0x3b000000, v{Q1}")
        for j in range(2):
            A(f"v_fma_f32 v{Q0+j}, -v{P0+j}, v{P0+j}, v{Q0+j}"); A(f"v_max_f32 v{Q0+j}, 0, v{Q0+j}"); A(f"v_add_f32 v{Q0+j}, 0x3727c5ac, v{Q0+j}"); A(f"v_rsq_f32 v{Q0+j}, v{Q0+j}")
        A(f"v_mov_b32 v{U}, s{S_HB}"); A(f"v_add_u32 v{U+1}, {WS_R}, v{U}")
        st_item = [f"s_mov_b64 s[{S_E0}:{S_E0+1}], exec", "s_mov_b32 exec_lo, 0", "s_mov_b32 exec_hi, 0x80000000",
                   ("vm", None, f"global_store_dwordx2 v{U}, v[{P0}:{P0+1}], s[{S_WSP}:{S_WSP+1}] sc1"),
                   ("vm", "stst", f"global_store_dwordx2 v{U+1}, v[{Q0}:{Q0+1}], s[{S_WSP}:{S_WSP+1}] sc1"),
                   f"s_mov_b64 exec, s[{S_E0}:{S_E0+1}]"]
        self.st_item = st_item
        if not LATEWS:
            for x in st_item: A(x)
        A.stamp(2)
        A("s_waitcnt lgkmcnt(0)")
        A.wait("X0_3", "W0_4")
        A("s_barrier")
        A.stamp(3); A.stamp(8, "pro")
        for s in self.reads(0): A(s)
        A.stamp(1, "init")
        if ZLATE and not LATEWS:
            L = f"K12{typ}_nozero"
            A(f"s_cmp_ge_u32 s2, {NZERO}"); A(f"s_cbranch_scc1 {L}")
            A(f"s_lshl_b32 s{S_T0}, s2, 12"); A(f"s_add_u32 s{S_T0}, s{S_T0}, {WS_KV}")
            A(f"v_lshlrev_b32 v{VT+6}, 4, v{VTID}"); A(f"v_add_u32 v{VT+6}, s{S_T0}, v{VT+6}")
            for i in range(4): A(f"v_mov_b32 v{VT+0+i}, 0")
            A(("vmu", "zst", f"global_store_dwordx4 v{VT+6}, v[{VT+0}:{VT+3}], s[{S_WSP}:{S_WSP+1}] sc1"))
            A(f"{L}:")
        elif not LATEWS:
            for x in self.sig(f"s_cmp_lt_u32 s2, {NZERO}", S_DBG, DBG_INIT, None, "init"): A(x)
        A.stamp(2, "init")

    def sig(self, cond, base, off_imm, off_sgpr, tag):
        L = f"K12{self.typ}_sig_{tag}"
        o = []
        if cond: o += [cond, f"s_cbranch_scc0 {L}"]
        o += [f"s_cmp_eq_u32 s{S_WV}, 0", f"s_cbranch_scc0 {L}"]
        if off_sgpr is None: o += [f"v_mov_b32 v{VT+9}, {off_imm}"]
        else: o += [f"s_lshl_b32 s{S_T4}, s{off_sgpr}, 7", f"s_add_u32 s{S_T4}, s{S_T4}, {off_imm}", f"v_mov_b32 v{VT+9}, s{S_T4}"]
        o += [f"v_mov_b32 v{VT+8}, 1", f"s_mov_b64 s[{S_E0}:{S_E0+1}], exec", "s_mov_b64 exec, 1",
              f"!global_atomic_add v{VT+9}, v{VT+8}, s[{base}:{base+1}] sc1", f"s_mov_b64 exec, s[{S_E0}:{S_E0+1}]", f"{L}:"]
        return o

    def spin(self, tag, base, vaddr, expect):
        L = f"K12{self.typ}_spin_{tag}"
        return [f"s_mov_b32 s{S_T3}, 0", f"{L}:", f"!global_load_dword v{VT+10}, v{vaddr}, s[{base}:{base+1}] sc1", "s_waitcnt vmcnt(0)",
                f"v_readfirstlane_b32 s{S_T4}, v{VT+10}", f"s_add_u32 s{S_T3}, s{S_T3}, 1", f"s_cmp_ge_u32 s{S_T3}, {POLL_MAX}", f"s_cbranch_scc1 {L}_x",
                f"s_cmp_ge_u32 s{S_T4}, {expect}", f"s_cbranch_scc1 {L}_x", "s_sleep 2", f"s_branch {L}", f"{L}_x:"]

    def w0(self, tag, code):
        L = f"K12{self.typ}_w0_{tag}"
        return [f"s_cmp_eq_u32 s{S_WV}, 0", f"s_cbranch_scc0 {L}"] + code + [f"{L}:"]

    def pre_barrier(self, h):
        typ = self.typ; T = VT
        if h == H_INIT:
            return [("stamp", 3, "init")] + self.w0("initchk", [("wait", ["initld"]), f"v_readfirstlane_b32 s{S_T4}, v{T+10}", "s_nop 0", f"s_cmp_ge_u32 s{S_T4}, {NZERO}", f"s_cbranch_scc1 K12{typ}_initok",
                                       f"v_mov_b32 v{T+9}, {DBG_INIT}"] + self.spin("init", S_DBG, T+9, NZERO) + [f"K12{typ}_initok:"]) + [("stamp", 4, "init")]
        if h == H_CNT:
            return [("stamp", 6, "init")] + self.w0("cntchk", [("wait", ["cntld"]), f"v_readfirstlane_b32 s{S_T4}, v{T+5}", "s_nop 0", f"s_cmp_ge_u32 s{S_T4}, 16", f"s_cbranch_scc1 K12{typ}_stok"]
                           + self.spin("st", S_WSP, T+7, 16) + [f"K12{typ}_stok:",
                           f"v_readfirstlane_b32 s{S_T4}, v{T+6}", "s_nop 0", f"s_cmp_ge_u32 s{S_T4}, 16", f"s_cbranch_scc1 K12{typ}_csok"]
                           + self.spin("cs", S_WSP, T+8, 16) + [f"K12{typ}_csok:"]) + [("stamp", 7, "init")]
        return []

    def oneshot_items(self, add, at):
        typ = self.typ; wsp = f"s[{S_WSP}:{S_WSP+1}]"; dbg = f"s[{S_DBG}:{S_DBG+1}]"
        T = VT
        for s in range(4):
            par = s & 1
            it = [f"s_cmp_eq_u32 s{S_KSC}, {s}", f"s_cbranch_scc0 K12{typ}_nocs{s}"]
            for blk in range(5):
                b = WF + 20*par + 4*blk
                it.append(f"v_mfma_f32_32x32x16_bf16 a[{CS_TMP+16*blk}:{CS_TMP+16*blk+15}], a[{A_ONES}:{A_ONES+3}], v[{b}:{b+3}], 0")
            it.append(f"K12{typ}_nocs{s}:")
            self.fixed.setdefault(s, []).append(it)
        if LATEWS:
            L = f"K12{typ}_nozero"
            z = [f"s_cmp_ge_u32 s2, {NZERO}", f"s_cbranch_scc1 {L}", f"s_lshl_b32 s{S_T4}, s2, 12", f"s_add_u32 s{S_T4}, s{S_T4}, {WS_KV}",
                 f"v_lshlrev_b32 v{T+6}, 4, v{VTID}", f"v_add_u32 v{T+6}, s{S_T4}, v{T+6}"] + [f"v_accvgpr_write_b32 a{224+i}, 0" for i in range(4)] + [
                 "s_nop 1", ("vmu", "zst", f"global_store_dwordx4 v{T+6}, a[224:227], {wsp} sc1"), f"{L}:"]
            self.fixed.setdefault(LATEWS, []).append(z)
            self.fixed.setdefault(LATEWS + 1, []).append(self.st_item)
        self.fixed.setdefault(K_INITLD, []).append(self.w0("initld", [f"v_mov_b32 v{T+9}, {DBG_INIT}", f"s_mov_b64 s[{S_E0}:{S_E0+1}], exec", "s_mov_b64 exec, 1",
                                      ("vmu", "initld", f"global_load_dword v{T+10}, v{T+9}, {dbg} sc1"), f"s_mov_b64 exec, s[{S_E0}:{S_E0+1}]"]))
        it = [[f"v_accvgpr_read_b32 v{T+blk}, a{CS_TMP+16*blk}"] for blk in range(5)]
        at_ = [f"s_mov_b64 s[{S_E0}:{S_E0+1}], exec", "s_mov_b32 exec_hi, 0"]
        for blk in range(5):
            va, off = self.csa[blk]
            at_.append(("vm", f"csat{blk}", f"global_atomic_add_f32 v{va}, v{T+blk}, {wsp} offset:{off}"))
        at_.append(f"s_mov_b64 exec, s[{S_E0}:{S_E0+1}]")
        add(at(K_CSAT), it + [at_])
        self.fixed.setdefault(K_CNTLD, []).append(self.w0("cntld", [f"s_lshl_b32 s{S_T4}, s{S_T}, 7", f"s_add_u32 s{S_T4}, s{S_T4}, {WS_STCNT}", f"v_mov_b32 v{T+7}, s{S_T4}",
                          f"s_lshl_b32 s{S_T4}, s{S_CG}, 7", f"s_add_u32 s{S_T4}, s{S_T4}, {WS_CSCNT}", f"v_mov_b32 v{T+8}, s{S_T4}",
                          f"s_mov_b64 s[{S_E0}:{S_E0+1}], exec", "s_mov_b64 exec, 1",
                          f"!global_load_dword v{T+5}, v{T+7}, {wsp} sc1", ("vmu", "cntld", f"global_load_dword v{T+6}, v{T+8}, {wsp} sc1"),
                          f"s_mov_b64 exec, s[{S_E0}:{S_E0+1}]"]))
        VM = T; VCS = T + 2; VRB = T + 7
        lds = [[f"v_and_b32 v{T+8}, 31, v{VLANE}", f"s_lshl_b32 s{S_T4}, s{S_T}, 7", f"s_lshl_b32 s{S_T3}, s{S_WM}, 6", f"s_add_u32 s{S_T4}, s{S_T4}, s{S_T3}"],
               [f"v_add_u32 v{T+8}, s{S_T4}, v{T+8}", f"v_lshlrev_b32 v{T+8}, 2, v{T+8}", f"v_add_u32 v{T+9}, {WS_R}, v{T+8}"],
               [("vm", None, f"global_load_dword v{VM}, v{T+8}, {wsp} sc1")], [("vm", None, f"global_load_dword v{VM+1}, v{T+8}, {wsp} offset:128 sc1")],
               [("vm", None, f"global_load_dword v{VR}, v{T+9}, {wsp} sc1")], [("vm", None, f"global_load_dword v{VR+1}, v{T+9}, {wsp} offset:128 sc1")]]
        for blk in range(5):
            va, off = self.csa[blk]
            lds.append([("vm", "csld" if blk == 4 and typ == "A" else None, f"global_load_dword v{VCS+blk}, v{va}, {wsp} offset:{off} sc1")])
        if typ == "B":
            lds.append([f"s_lshl_b32 s{S_T4}, s{S_T}, 7", f"v_add_u32 v{T+8}, s{S_T4}, v{VTID}", f"v_lshlrev_b32 v{T+8}, 2, v{T+8}", f"v_add_u32 v{T+8}, {WS_R}, v{T+8}"])
            lds.append([("vm", "csld", f"global_load_dword v{VRB}, v{T+8}, {wsp} sc1")])
        add(at(2*H_CNT-1, 1), lds)
        if K_PT:
            add(at(K_PT), [[f"s_lshl_b32 s{S_T4}, s{S_TAU}, 16", f"s_lshl_b32 s{S_T3}, s{S_J}, 7", f"s_add_u32 s{S_T4}, s{S_T4}, s{S_T3}", f"v_mov_b32 v{T+9}, s{S_T4}"],
                           [f"s_mov_b64 s[{S_E0}:{S_E0+1}], exec", "s_mov_b64 exec, 1", ("vm", None, f"global_load_dword a224, v{T+9}, s[{P_O}:{P_O+1}]"), f"s_mov_b64 exec, s[{S_E0}:{S_E0+1}]"],
                           [f"v_mov_b32 v{T+9}, 0"],
                           [f"s_mov_b64 s[{S_E0}:{S_E0+1}], exec", "s_mov_b64 exec, 1", ("vm", None, f"global_load_dword a227, v{T+9}, s[{P_WO}:{P_WO+1}]"), f"s_mov_b64 exec, s[{S_E0}:{S_E0+1}]"]])
        if K_WOPF:
            it = [[f"s_lshl_b32 s{S_T4}, s{S_WV}, 17", f"s_and_b32 s{S_T3}, s{S_TAU}, 3", f"s_lshl_b32 s{S_T3}, s{S_T3}, 15", f"s_add_u32 s{S_T4}, s{S_T4}, s{S_T3}"],
                  [f"s_lshl_b32 s{S_T3}, s{S_J}, 7", f"s_add_u32 s{S_T4}, s{S_T4}, s{S_T3}", f"v_add_u32 v{T+9}, s{S_T4}, v{VDM}"]]
            for k in range(4):
                it.append([("vm", None, f"global_load_dwordx4 a[224:227], v{T+9}, s[{P_WO}:{P_WO+1}]")] + ([f"v_add_u32 v{T+9}, 8192, v{T+9}"] if k < 3 else []))
            add(at(K_WOPF), it)
        if CODE_PF2:
            add(at(CODE_PF2), [[f"s_getpc_b64 s[{S_E2}:{S_E2+1}]", f"K12{typ}_pc2:", f"s_lshr_b32 s{S_T4}, s2, 3", f"s_lshl_b32 s{S_T4}, s{S_T4}, 2", f"s_add_u32 s{S_T4}, s{S_T4}, s{S_WV}"],
                               [f"s_min_u32 s{S_T4}, s{S_T4}, ((K12_end-K12{typ}_pc2)>>10)-1", f"s_lshl_b32 s{S_T4}, s{S_T4}, 10", f"v_add_u32 v{T+9}, s{S_T4}, v{VL16}"],
                               [("vm", None, f"global_load_dwordx4 a[224:227], v{T+9}, s[{S_E2}:{S_E2+1}]")]])
        tt = T + 8; b = T + 10
        items = [[("wait", ["csld"])], [f"v_cmp_gt_u32 vcc, 32, v{VLANE}", "s_nop 1"]]
        for tb in range(2):
            items += [[f"v_cndmask_b32 v{tt}, 0, v{VM+tb}, vcc"], [f"v_cvt_pk_bf16_f32 v{b}, v{tt}, v{tt}"],
                      [f"v_and_b32 v{tt+1}, 0xffff0000, v{b}"], [f"v_sub_f32 v{tt+1}, v{tt}, v{tt+1}"],
                      [f"v_cvt_pk_bf16_f32 v{b+1}, v{tt+1}, 0"],
                      [f"v_accvgpr_write_b32 a{AMF+4*tb}, v{b}"], [f"v_accvgpr_write_b32 a{AMF+4*tb+1}, v{b+1}"],
                      [f"v_accvgpr_write_b32 a{AMF+4*tb+2}, 0"], [f"v_accvgpr_write_b32 a{AMF+4*tb+3}, 0"]]
        for blk in range(5):
            items += [[f"v_cndmask_b32 v{tt}, 0, v{VCS+blk}, vcc"], [f"v_sub_f32 v{tt}, 0, v{tt}"],
                      [f"v_cvt_pk_bf16_f32 v{b+1}, v{tt}, 0"], [f"v_lshlrev_b32 v{tt+1}, 16, v{b+1}"], [f"v_sub_f32 v{tt+1}, v{tt}, v{tt+1}"],
                      [f"v_cvt_pk_bf16_f32 v{b}, v{tt}, v{tt+1}"],
                      [f"v_accvgpr_write_b32 a{ACF+4*blk}, v{b}"], [f"v_accvgpr_write_b32 a{ACF+4*blk+1}, v{b+1}"],
                      [f"v_accvgpr_write_b32 a{ACF+4*blk+2}, 0"], [f"v_accvgpr_write_b32 a{ACF+4*blk+3}, 0"]]
        if typ == "B":
            items += [[f"v_lshlrev_b32 v{tt}, 2, v{VTID}"], [f"v_add_u32 v{tt}, {LDS_R}, v{tt}"],
                      [f"v_cmp_gt_u32 vcc, 128, v{VTID}", f"s_and_saveexec_b64 s[{S_E0}:{S_E0+1}], vcc", f"ds_write_b32 v{tt}, v{VRB}", f"s_mov_b64 exec, s[{S_E0}:{S_E0+1}]"]]
        add(at(K_RANK), items)

    def loop(self):
        A = self.A
        self.loop_start = len(A.l)
        steps = []
        for s in range(32):
            if s == CORR_AT: steps.append(("c", None))
            steps.append(("k", s))
        order_last = [b for b, kd in enumerate(self.kinds) if kd in ("gu","guh")] + [b for b, kd in enumerate(self.kinds) if kd not in ("gu","guh")]
        idx_of = {st: i for i, st in enumerate(steps)}
        def at(s, g=0): return (idx_of[("k", s)], g)
        flex = []; flex2 = []
        def add(pos, items):
            for it in items: flex.append((pos, it))
        def add2(pos, items):
            for it in items: flex2.append((pos, it))
        add(at(0), self.Wg(2))
        if not X1_EARLY: add(at(0), self.Xg(1))
        add(at(1, 1), self.Xg(2))
        for h in range(1, 14): add(at(2*h-1, 1), self.Wg(h+2))
        for sg in range(1, 6): add(at(4*sg-1, 1), self.Xg(sg+2))
        self.fixed = {}
        tagD = {}; tagR = {}; keep = []; placedR = {}
        self.oneshot_items(add, at)
        self.w2_done_R = []
        for i in range(N_IN):
            dd = self.w2.D(i); tagD[id(dd[0])] = i; keep.append(dd)
            add2(at(min(i+W2_START, 31)), dd)
            rr = self.w2.R(i); tagR[id(rr[-1])] = i; keep.append(rr)
            add2(at(min(i+W2_START+DLAG, 31)), rr); self.w2_done_R.append(i)
        flex.sort(key=lambda x: x[0])
        gaps_all = []
        flex2.sort(key=lambda x: x[0])
        queues = [list(flex), list(flex2)]
        for si, st in enumerate(steps):
            gaps = [[] for _ in range(10)]
            head = []
            if st[0] == "k":
                s = st[1]
                M = self.mfmas(s, order_last if s == 31 else None)
                head = ["s_waitcnt lgkmcnt(0)"]
                odd = s & 1
                if odd:
                    h = (s + 1)//2
                    if h <= 15:
                        ids = [f"W{h}_4"] + ([f"X{h//2}_3"] if h % 2 == 0 else [])
                        if h == H_INIT: ids.append("stst")
                        if (ZLATE or LATEWS) and h == H_Z: ids.append("zst")
                        if h == H_CS: ids.append("csat4")
                        if STAMP and SMODE == "wait":
                            gaps[0] += self.pre_barrier(h) + [("wait", ids), "s_memtime s[98:99]", "s_waitcnt lgkmcnt(0)", "s_barrier", "s_memtime s[100:101]", "s_waitcnt lgkmcnt(0)", "s_sub_u32 s100, s100, s98", f"s_add_u32 s{SB+12}, s{SB+12}, s100"]
                        else:
                            gaps[0] += self.pre_barrier(h) + [("wait", ids), "s_barrier"]
                        if (ZLATE or LATEWS) and h == H_Z: gaps[0] += self.sig(f"s_cmp_lt_u32 s2, {NZERO}", S_DBG, DBG_INIT, None, "init")
                        if h == H_INIT: gaps[0] += self.sig(None, S_WSP, WS_STCNT, S_T, "st")
                        if h == H_CS: gaps[0] += self.sig(None, S_WSP, WS_CSCNT, S_CG, "cs")
                    else:
                        gaps[0] += ["s_barrier"]
                nxt = s + 1
                if nxt < 32:
                    rd = self.reads(nxt)
                    g0 = 1 if odd else 0
                    for i, x in enumerate(rd): gaps[g0 + i//2].append(x)
            else:
                M = self.corr(); head = ["s_waitcnt lgkmcnt(0)"]
            if st[0] == "k" and st[1] in self.fixed:
                for it in self.fixed[st[1]]: gaps[9] += it
            for qi in range(2):
                pending = queues[qi]
                gi = 0
                rest = []
                blocked = False
                for (pos, it) in pending:
                    if blocked or pos[0] > si:
                        rest.append((pos, it)); continue
                    if id(it) in tagD and placedR.get(tagD[id(it)] - NSL, -1) == si:
                        rest.append((pos, it)); blocked = True; continue
                    if id(it) in tagD and tagD[id(it)] >= NSL and (tagD[id(it)] - NSL) not in placedR:
                        rest.append((pos, it)); blocked = True; continue
                    g = max(gi, pos[1] if pos[0] == si else 0)
                    need = 2 if (isinstance(it, tuple) and it[0] == "dma") else len(it)
                    while g < 10 and len(gaps[g]) + min(need, CAP) > CAP: g += 1
                    if g >= 10:
                        rest.append((pos, it)); blocked = True; continue
                    if id(it) in tagR: placedR[tagR[id(it)]] = si
                    if isinstance(it, tuple) and it[0] == "dma":
                        gaps[g].append(it[1]); gaps[g].append("__NOP__"); gaps[g].append(it[2]); gi = g + 1
                    else:
                        gaps[g] += it; gi = g
                queues[qi] = rest
            for g in gaps:
                while "__NOP__" in g:
                    i = g.index("__NOP__")
                    cand = [j for j in range(i-1) if isinstance(g[j], str) and g[j].startswith("ds_read")]
                    if cand:
                        x = g.pop(cand[-1]); i -= 1; g[i] = x
                    else: g[i] = "s_nop 0"
            if st[0] == "k" and st[1] % 4 == 0 and st[1] > 0: A.stamp(st[1]//4, "loop")
            for x in head: A(x)
            for i in range(10):
                A(M[i])
                for x in gaps[i]:
                    if x == "__WOSRD__":
                        assert "W15_4" in A.ids
                        A(f"s_lshl_b32 s{S_T0}, s{S_J}, 7"); A(f"s_lshl_b32 s{S_T1}, s{S_WV}, 17"); A(f"s_add_u32 s{S_T0}, s{S_T0}, s{S_T1}")
                        srd_off(A, S_WO, P_WO, P_WO+1, f"s{S_T0}", 512*1024)
                    else: A(x)
        assert not queues[0], queues[0][:3]
        self.leftover = queues[1]
        for (pos, it) in self.leftover:
            if id(it) in tagD: A("s_waitcnt lgkmcnt(0)")
            if it == ["__WOSRD__"]:
                A(f"s_lshl_b32 s{S_T0}, s{S_J}, 7"); A(f"s_lshl_b32 s{S_T1}, s{S_WV}, 17"); A(f"s_add_u32 s{S_T0}, s{S_T0}, s{S_T1}")
                srd_off(A, S_WO, P_WO, P_WO+1, f"s{S_T0}", 512*1024)
            else: emit_items(A, [it])
        self.nleft = len(self.leftover)
        txt = A.l
        for i in range(N_IN - NSL):
            rd = [n for n, x in enumerate(txt) if n > self.loop_start and "ds_read_b64_tr_b16 a[%d:" % (8*i+6) in x]
            if not rd: continue
            pos_r = rd[-1]; pos_d = A.pos[f"w2_{i+NSL}_0"]
            assert pos_d > pos_r and any("lgkmcnt(0)" in x for x in txt[pos_r:pos_d]), ("no lgkm wait", i)

    def flag_addr(self, slot_imm):
        A = self.A
        FA, ONE = VT+4, VT+5
        A(f"v_mov_b32 v{ONE}, 1")
        A(f"s_lshl_b32 s{S_T0}, s{S_T}, 1"); A(f"s_add_u32 s{S_T0}, s{S_T0}, s{S_WM}"); A(f"s_lshl_b32 s{S_T0}, s{S_T0}, 2")
        A(f"s_lshr_b32 s{S_T1}, s{S_IDX}, 1"); A(f"s_add_u32 s{S_T0}, s{S_T0}, s{S_T1}"); A(f"s_lshl_b32 s{S_T0}, s{S_T0}, 4")
        A(f"s_lshl_b32 s{S_T1}, s{S_I1}, 1"); A(f"s_add_u32 s{S_T0}, s{S_T0}, s{S_T1}"); A(f"s_add_u32 s{S_T0}, s{S_T0}, s{S_WN}")
        A(f"s_add_u32 s{S_T0}, s{S_T0}, {slot_imm}"); A(f"s_lshl_b32 s{S_T0}, s{S_T0}, 2"); A(f"s_add_u32 s{S_T0}, s{S_T0}, {WS_FLAG}")
        A(f"v_mov_b32 v{FA}, s{S_T0}")
        A(f"s_mov_b64 s[{S_E0}:{S_E0+1}], exec"); A("s_mov_b64 exec, 1")
    def flag_fire(self):
        A = self.A
        A.vm(f"global_store_dword v{VT+4}, v{VT+5}, s[{S_WSP}:{S_WSP+1}] sc1")
        A(f"s_mov_b64 exec, s[{S_E0}:{S_E0+1}]")
    def flag_store(self, slot_imm, FA, ONE):
        self.flag_addr(slot_imm); self.flag_fire()
    def early_flag_load(self):
        A = self.A
        A(f"s_lshl_b32 s{S_T0}, s{S_TAU}, 2"); A(f"s_add_u32 s{S_T0}, s{S_T0}, s{S_WV}"); A(f"s_lshl_b32 s{S_T0}, s{S_T0}, 6"); A(f"s_add_u32 s{S_T0}, s{S_T0}, {WS_FLAG}")
        A(f"v_lshlrev_b32 v32, 2, v{VLANE}"); A(f"v_add_u32 v32, s{S_T0}, v32")
        A("s_mov_b64 exec, 255"); A.vm(f"global_load_dword v33, v32, s[{S_WSP}:{S_WSP+1}] sc1", id="eflag"); A("s_mov_b64 exec, -1")

    def transition(self):
        A, typ, kinds = self.A, self.typ, self.kinds
        w2 = self.w2
        tt = VT
        state = {"D": N_IN, "R": N_IN}
        A.stamp(1, "tr")
        A("s_waitcnt lgkmcnt(0)")
        A("s_barrier")
        A(f"s_mul_i32 s{S_T0}, s{S_WV}, {NPOST*2048}"); A(f"s_add_u32 s{S_T0}, s{S_T0}, {W2POST}")
        A(f"s_sub_u32 s{S_T1}, s{S_T0}, s{S_LB}"); A(f"s_mov_b32 s{S_LB}, s{S_T0}")
        A(f"v_add_u32 v{VTR}, s{S_T1}, v{VTR}"); A(f"v_xor_b32 v{VTR1}, 64, v{VTR}")
        A(f"s_lshl_b32 s{S_T0}, s{S_J}, 7"); A(f"s_lshl_b32 s{S_T1}, s{S_WV}, 17"); A(f"s_add_u32 s{S_T0}, s{S_T0}, s{S_T1}")
        srd_off(A, S_WO, P_WO, P_WO+1, f"s{S_T0}", 512*1024)
        def bgD(n=1):
            for _ in range(n):
                i = state["D"]
                if i >= 36 or i - state["R"] >= NPOST: return
                emit_items(A, w2.D(i)); state["D"] += 1
        def bgR(n=1):
            for _ in range(n):
                i = state["R"]
                if i >= state["D"]: return
                if i >= 32 and not state.get("vfree"): return
                emit_items(A, w2.R(i)); state["R"] += 1
        def bgD_safe(n=1):
            A("s_waitcnt lgkmcnt(0)"); bgD(n)
        A(f"s_lshl_b32 s{S_T0}, s{S_T}, 1"); A(f"s_add_u32 s{S_T0}, s{S_T0}, s{S_WM}"); A(f"s_lshl_b32 s{S_T0}, s{S_T0}, 2")
        A(f"s_lshr_b32 s{S_T1}, s{S_IDX}, 1"); A(f"s_add_u32 s{S_T0}, s{S_T0}, s{S_T1}"); A(f"s_mul_i32 s{S_HB}, s{S_T0}, {36*2048}")
        A(f"s_and_b32 s{S_I1}, s{S_IDX}, 1")
        I1 = S_I1
        R2 = XF
        for tb in range(2):
            A(f"v_mul_f32 v{R2+2*tb}, v{VR+tb}, v{VR+tb}"); A(f"v_mul_f32 v{R2+2*tb+1}, v{VR+tb}, v{VR+tb}")
        PK = WF
        nst = 0
        gublks = [b for b, kd in enumerate(kinds) if kd in ("gu", "guh")]
        lasth = None
        for blk in gublks:
            kd = kinds[blk]
            if typ == "A":
                if blk == 0:
                    A(f"s_lshl_b32 s{S_T2}, s{I1}, 1"); A(f"s_add_u32 s{S_T2}, s{S_T2}, s{S_WN}"); A(f"s_lshl_b32 s{S_T2}, s{S_T2}, 13"); A(f"s_add_u32 s{S_T2}, s{S_T2}, s{S_HB}")
                else: A(f"s_add_u32 s{S_T2}, s{S_T2}, 2048")
            elif kd == "gu":
                if blk == 2:
                    A(f"s_lshl_b32 s{S_T2}, s{I1}, 2"); A(f"s_lshl_b32 s{S_T3}, s{S_WN}, 1"); A(f"s_add_u32 s{S_T2}, s{S_T2}, s{S_T3}"); A(f"s_add_u32 s{S_T2}, s{S_T2}, 16")
                    A(f"s_lshl_b32 s{S_T2}, s{S_T2}, 11"); A(f"s_add_u32 s{S_T2}, s{S_T2}, s{S_HB}")
                else: A(f"s_add_u32 s{S_T2}, s{S_T2}, 2048")
            else:
                A(f"s_lshl_b32 s{S_T2}, s{I1}, 1"); A(f"s_add_u32 s{S_T2}, s{S_T2}, s{S_WN}"); A(f"s_add_u32 s{S_T2}, s{S_T2}, 24")
                A(f"s_lshl_b32 s{S_T2}, s{S_T2}, 11"); A(f"s_add_u32 s{S_T2}, s{S_T2}, s{S_HB}")
            for tb in range(2):
                a = acc(blk, tb); pk = PK + 4*(nst % 4); nst += 1
                for i in range(4): A(f"v_pk_mul_f32 v[{a+2*i}:{a+2*i+1}], v[{a+2*i}:{a+2*i+1}], v[{a+8+2*i}:{a+8+2*i+1}]")
                for i in range(4): A(f"v_pk_mul_f32 v[{a+2*i}:{a+2*i+1}], v[{a+2*i}:{a+2*i+1}], v[{R2+2*tb}:{R2+2*tb+1}]")
                for i in range(4): A(f"v_cvt_pk_bf16_f32 v{pk+i}, v{a+2*i}, v{a+2*i+1}")
                lasth = f"hs_{blk}_{tb}"
                A.vm(f"buffer_store_dwordx4 v[{pk}:{pk+3}], v{VL16}, s[{S_H}:{S_H+3}], s{S_T2} offen offset:{tb*1024} sc1", id=lasth)
        assert (not LATE_R) or 36 - N_IN <= NPOST
        A.stamp(5); A.stamp(2, "tr")
        FA, ONE = VT+4, VT+5
        A(f"s_mov_b32 s{S_C6}, 0x358637bd"); A(f"s_mov_b32 s{S_C6+1}, 0x358637bd")
        C6 = f"s[{S_C6}:{S_C6+1}]"
        if typ == "A":
            A(f"s_lshl_b32 s{S_T2}, s{I1}, 2"); A(f"s_lshl_b32 s{S_T3}, s{S_WN}, 1"); A(f"s_add_u32 s{S_T2}, s{S_T2}, s{S_T3}"); A(f"s_add_u32 s{S_T2}, s{S_T2}, 28")
            A(f"s_lshl_b32 s{S_T2}, s{S_T2}, 11"); A(f"s_add_u32 s{S_T4}, s{S_T2}, s{S_HB}"); A(f"s_add_u32 s{S_XO}, s{S_T4}, 2048")
            A(f"s_mov_b32 s22, s{S_T4}"); A(f"s_mov_b32 s23, s{S_XO}")
            RP = XF + 4; RLP = XF + 6
            for tb in range(2):
                a = acc(4, tb)
                A(f"v_mov_b32 v{RP}, v{VR+tb}"); A(f"v_mov_b32 v{RP+1}, v{VR+tb}")
                A(f"v_mul_f32 v{RLP}, 0x3fb8aa3b, v{VR+tb}"); A(f"v_mul_f32 v{RLP+1}, 0x3fb8aa3b, v{VR+tb}")
                for i in range(0, 16, 4):
                    for j in (0, 2): A(f"v_pk_mul_f32 v[{tt+j}:{tt+j+1}], v[{a+i+j}:{a+i+j+1}], v[{RLP}:{RLP+1}]")
                    for j in (0, 2): A(f"v_pk_fma_f32 v[{a+i+j}:{a+i+j+1}], v[{a+i+j}:{a+i+j+1}], v[{RP}:{RP+1}], {C6}")
                    for j in range(4): A(f"v_exp_f32_e64 v{tt+j}, v{tt+j} clamp")
                    for j in range(4): A(f"v_max_f32 v{a+i+j}, s{S_C6}, v{a+i+j}")
                    for j in (0, 2): A(f"v_pk_add_f32 v[{a+i+j}:{a+i+j+1}], v[{a+i+j}:{a+i+j+1}], v[{tt+j}:{tt+j+1}]")
                    if PHI_D: bgD(1)
                if tb == 0 and FLAG_TB_A == 0:
                    A.stamp(3, "tr"); self.flag_addr(0); A.wait(lasth); self.flag_fire(); A.stamp(4, "tr")
                    if LATE_R == 1: bgD(36 - N_IN)
                if FASTG2 and tb == 1: self.early_flag_load()
                for hs in range(2):
                    pk = (128 + 4*(2*tb + hs)) if (DEFER or PQ_LATE) else PK + 4*(nst % 4); nst += 1
                    for i in range(4): A(f"v_cvt_pk_bf16_f32 v{pk+i}, v{a+8*hs+2*i}, v{a+8*hs+2*i+1}")
                    if not (DEFER or PQ_LATE): A.vm(f"buffer_store_dwordx4 v[{pk}:{pk+3}], v{VL16}, s[{S_H}:{S_H+3}], s{S_XO if hs else S_T4} offen offset:{tb*1024} sc1", id=f"pq_{tb}_{hs}")
            if FLAG_TB_A == 1:
                A.stamp(3, "tr"); self.flag_addr(0); A.wait(lasth); self.flag_fire(); A.stamp(4, "tr")
            if PQ_LATE and not DEFER:
                for tb in range(2):
                    for hs in range(2):
                        pk = 128 + 4*(2*tb + hs)
                        A.vm(f"buffer_store_dwordx4 v[{pk}:{pk+3}], v{VL16}, s[{S_H}:{S_H+3}], s{23 if hs else 22} offen offset:{tb*1024} sc1")
            bgD(11)
            state["vfree"] = True
            A.stamp(5, "tr")
        else:
            RR = WF; RL = WF + 16; TK = WF + 32; TV = VT + 6
            ONES = XF + 4
            for i in range(4): A(f"v_mov_b32 v{ONES+i}, 0x3f803f80")
            A(f"v_lshrrev_b32 v{tt}, 5, v{VLANE}"); A(f"v_lshlrev_b32 v{tt}, 4, v{tt}")
            A(f"s_lshl_b32 s{S_T0}, s{S_WM}, 8"); A(f"s_add_u32 s{S_T0}, s{S_T0}, {LDS_R}"); A(f"v_add_u32 v{XF+9}, s{S_T0}, v{tt}")
            D2, DZ = acc(2,0), acc(2,1)
            for tb in range(2):
                for q4 in range(4): A(f"ds_read_b128 v[{RR+4*q4}:{RR+4*q4+3}], v{XF+9} offset:{tb*128 + q4*32}")
                A("s_waitcnt lgkmcnt(0)")
                A(f"s_mov_b32 s{S_T0}, 0x3fb8aa3b"); A(f"s_mov_b32 s{S_T1}, 0x3fb8aa3b")
                for i in range(8): A(f"v_pk_mul_f32 v[{RL+2*i}:{RL+2*i+1}], v[{RR+2*i}:{RR+2*i+1}], s[{S_T0}:{S_T1}]")
                a = acc(0, tb); av = acc(1, tb)
                for i in range(0, 16, 4):
                    for j in (0, 2): A(f"v_pk_mul_f32 v[{tt+j}:{tt+j+1}], v[{a+i+j}:{a+i+j+1}], v[{RL+i+j}:{RL+i+j+1}]")
                    for j in (0, 2): A(f"v_pk_fma_f32 v[{a+i+j}:{a+i+j+1}], v[{a+i+j}:{a+i+j+1}], v[{RR+i+j}:{RR+i+j+1}], {C6}")
                    for j in range(4): A(f"v_exp_f32_e64 v{tt+j}, v{tt+j} clamp")
                    for j in range(4): A(f"v_max_f32 v{a+i+j}, s{S_C6}, v{a+i+j}")
                    for j in (0, 2): A(f"v_pk_add_f32 v[{a+i+j}:{a+i+j+1}], v[{a+i+j}:{a+i+j+1}], v[{tt+j}:{tt+j+1}]")
                    if PHI_D: bgD(1)
                for i in range(8): A(f"v_pk_mul_f32 v[{av+2*i}:{av+2*i+1}], v[{av+2*i}:{av+2*i+1}], v[{RR+2*i}:{RR+2*i+1}]")
                for i in range(8): A(f"v_cvt_pk_bf16_f32 v{TK+i}, v{a+2*i}, v{a+2*i+1}")
                for i in range(8): A(f"v_cvt_pk_bf16_f32 v{TV+i}, v{av+2*i}, v{av+2*i+1}")
                A("s_nop 1")
                for f in range(2):
                    c = "0" if (tb == 0 and f == 0) else None
                    A(f"v_mfma_f32_32x32x16_bf16 v[{D2}:{D2+15}], v[{TK+4*f}:{TK+4*f+3}], v[{TV+4*f}:{TV+4*f+3}], {c or f'v[{D2}:{D2+15}]'}")
                    A(f"v_mfma_f32_32x32x16_bf16 v[{DZ}:{DZ+15}], v[{TK+4*f}:{TK+4*f+3}], v[{ONES}:{ONES+3}], {c or f'v[{DZ}:{DZ+15}]'}")
                if tb == FLAG_TB:
                    A.stamp(3, "tr"); self.flag_addr(4); A.wait(lasth); self.flag_fire(); A.stamp(4, "tr")
                    if LATE_R == 1 and B_EARLY_D: bgD(36 - N_IN)
            if PHI_D: bgD(3)
            A(f"v_and_b32 v{tt}, 31, v{VLANE}"); A(f"v_cmp_gt_u32 vcc, 16, v{tt}")
            A(f"s_lshl_b32 s{S_T0}, s{S_WM}, 13"); A(f"s_lshl_b32 s{S_T1}, s{S_WN}, 12"); A(f"s_add_u32 s{S_T0}, s{S_T0}, s{S_T1}"); A(f"s_add_u32 s{S_T0}, s{S_T0}, {LDS_KV}")
            A(f"v_lshlrev_b32 v{tt}, 2, v{VLANE}"); A(f"v_add_u32 v{tt}, s{S_T0}, v{tt}")
            A("s_nop 7"); A("s_nop 3")
            for r_ in range(16):
                if r_ < 8: A(f"v_cndmask_b32 v{D2+r_}, v{DZ+r_}, v{D2+r_}, vcc")
                else: A(f"v_cndmask_b32 v{D2+r_}, v{D2+r_}, v{DZ+r_}, vcc")
            for r_ in range(16): A(f"ds_write_b32 v{tt}, v{D2+r_} offset:{r_*256}")
            A("s_waitcnt lgkmcnt(0)"); A("s_barrier")
            A(f"s_lshr_b32 s{S_T0}, s{S_WV}, 1"); A(f"s_lshl_b32 s{S_T0}, s{S_T0}, 12"); A(f"s_add_u32 s{S_T0}, s{S_T0}, {LDS_KV}")
            A(f"s_and_b32 s{S_T2}, s{S_WV}, 1")
            A(f"s_mul_i32 s{S_T3}, s{S_T2}, {8*256}"); A(f"s_add_u32 s{S_T0}, s{S_T0}, s{S_T3}")
            A(f"s_lshl_b32 s{S_T3}, s{S_T2}, 6")
            A(f"s_lshl_b32 s{S_T1}, s{S_IDX}, 2"); A(f"s_add_u32 s{S_T1}, s{S_T1}, s{S_WV}")
            A(f"s_mul_i32 s{S_T1}, s{S_T1}, {KV_HEAD}"); A(f"s_add_u32 s{S_T1}, s{S_T1}, {WS_KV}")
            A(f"v_and_b32 v{tt}, 7, v{VLANE}"); A(f"v_lshlrev_b32 v{tt}, 8, v{tt}"); A(f"v_add_u32 v{tt}, s{S_T0}, v{tt}")
            A(f"v_lshrrev_b32 v{tt+1}, 3, v{VLANE}"); A(f"v_lshlrev_b32 v{tt+1}, 2, v{tt+1}")
            A(f"v_add_u32 v{tt+2}, v{tt}, v{tt+1}"); A(f"v_add_u32 v{tt+2}, s{S_T3}, v{tt+2}")
            B0 = ACC
            for n in range(4):
                off = (32*(n>>1) + 8*(n&1))*4
                A(f"ds_read_b32 v{B0+2*n}, v{tt+2} offset:{off}"); A(f"ds_read_b32 v{B0+2*n+1}, v{tt+2} offset:{off+8192}")
            A(f"s_sub_u32 s{S_T3}, 64, s{S_T3}")
            A(f"v_lshlrev_b32 v{tt+3}, 5, v{tt+1}"); A(f"v_add_u32 v{tt+3}, v{tt+3}, v{tt}"); A(f"v_add_u32 v{tt+3}, s{S_T3}, v{tt+3}")
            A(f"v_cmp_gt_u32 vcc, 16, v{VLANE}"); A(f"s_and_saveexec_b64 s[{S_E0}:{S_E0+1}], vcc")
            A(f"ds_read_b32 v{B0+8}, v{tt+3}"); A(f"ds_read_b32 v{B0+9}, v{tt+3} offset:8192")
            A(f"s_mov_b64 exec, s[{S_E0}:{S_E0+1}]")
            A(f"v_lshlrev_b32 v{tt+2}, 2, v{VLANE}"); A(f"v_add_u32 v{tt+2}, s{S_T1}, v{tt+2}")
            A("s_waitcnt lgkmcnt(0)")
            if DEFER:
                for n in range(5): A(f"v_add_f32 v{128+n}, v{B0+2*n}, v{B0+2*n+1}")
                A(f"v_mov_b32 v133, v{tt+2}")
            else:
                if FASTG2:
                    A(f"s_mov_b32 s{S_XO}, s{S_T1}")
                    self.early_flag_load()
                for n in range(4):
                    A(f"v_add_f32 v{B0+2*n}, v{B0+2*n}, v{B0+2*n+1}")
                    A.vm(f"global_atomic_add_f32 v{tt+2}, v{B0+2*n}, s[{S_WSP}:{S_WSP+1}] offset:{n*256}")
                A(f"v_add_f32 v{B0+8}, v{B0+8}, v{B0+9}")
                A(f"s_and_saveexec_b64 s[{S_E0}:{S_E0+1}], vcc")
                A.vm(f"global_atomic_add_f32 v{tt+2}, v{B0+8}, s[{S_WSP}:{S_WSP+1}] offset:1024", id="kvat")
                A(f"s_mov_b64 exec, s[{S_E0}:{S_E0+1}]")
            bgD(11)
            state["vfree"] = True
            A.stamp(5, "tr")
        if FASTG2: A.wait("eflag")
        A.stamp(6); A.stamp(6, "tr")
        if not LATE_R:
            while state["R"] < 36:
                bgR(3); bgD_safe(3)
            A("s_waitcnt lgkmcnt(0)")

class G2:
    ACC2 = 0; HB = 64; NH = 32; W2V = 192
    def __init__(self, A): self.A = A; self.w2 = W2(A)
    def poll(self, label, vaddr, nl, expect=None, novm=False):
        A = self.A; T = VT
        A(f"s_mov_b32 s{S_T3}, 0")
        A(f"s_mov_b64 s[{S_E0}:{S_E0+1}], exec"); A(f"s_mov_b64 exec, {(1<<nl)-1}")
        A.label(label)
        if novm: A.l.append(f"  global_load_dword v{T+9}, v{vaddr}, s[{S_WSP}:{S_WSP+1}] sc1")
        else: A.vm(f"global_load_dword v{T+9}, v{vaddr}, s[{S_WSP}:{S_WSP+1}] sc1")
        A("s_waitcnt vmcnt(0)")
        if expect is None: A(f"v_cmp_ne_u32 vcc, 0, v{T+9}")
        else: A(f"v_cmp_le_u32 vcc, {expect}, v{T+9}")
        A(f"s_add_u32 s{S_T3}, s{S_T3}, 1")
        A(f"s_cmp_ge_u32 s{S_T3}, {POLL_MAX}"); A(f"s_cbranch_scc1 {label}_x")
        A(f"s_cmp_eq_u64 vcc, exec"); A(f"s_cbranch_scc1 {label}_x")
        A("s_sleep 1"); A(f"s_branch {label}")
        A.label(label + "_x")
        A(f"s_mov_b64 exec, s[{S_E0}:{S_E0+1}]")
    def check(self, label, vreg, nl, expect=None):
        pass
    def body(self):
        A = self.A; T = VT; VL = VLANE
        ACC2 = 0; HB = 64; NH = 16; KVR0 = 128
        A.reset_vm()
        VFL, VKV, VCN = T+10, T+11, T+12
        VF1, VF2 = T+8, T+9
        srd(A, S_O, P_O, P_O+1, 2048*1024)
        srd(A, S_XX, P_X, P_X+1, 2048*1024)
        A(f"s_lshl_b32 s{S_HO}, s{S_TAU}, 2"); A(f"s_add_u32 s{S_HO}, s{S_HO}, s{S_WV}")
        A(f"s_lshl_b32 s{S_T0}, s{S_HO}, 6"); A(f"s_add_u32 s{S_T0}, s{S_T0}, {WS_FLAG}")
        A(f"v_lshlrev_b32 v{VFL}, 2, v{VL}"); A(f"v_add_u32 v{VFL}, s{S_T0}, v{VFL}")
        A(f"s_mul_i32 s{S_HO}, s{S_HO}, {36*2048}")
        A(f"s_add_u32 s{S_T4}, s{S_HO}, {56*1024}")
        A(f"s_mov_b32 s{S_HBASE}, s{S_HO}"); A(f"s_lshl_b32 s{S_HR}, s{S_RHO}, 11")
        A(f"v_and_b32 v{T}, 31, v{VL}"); A(f"v_lshrrev_b32 v{T+1}, 5, v{VL}")
        A(f"v_lshlrev_b32 v{T+2}, 4, v{T+1}"); A(f"v_add_u32 v{T+2}, v{T+2}, v{T}"); A(f"v_subrev_u32 v{T+2}, 16, v{T+2}"); A(f"v_lshlrev_b32 v{T+2}, 5, v{T+2}")
        A(f"v_lshlrev_b32 v{T+3}, 5, v{T+1}"); A(f"v_add_u32 v{T+3}, 1024, v{T+3}")
        A(f"v_cmp_gt_u32 vcc, 16, v{T}"); A("s_nop 1"); A(f"v_cndmask_b32 v{T+2}, v{T+2}, v{T+3}, vcc")
        A(f"s_lshl_b32 s{S_T0}, s{S_WV}, 3"); A(f"s_mul_i32 s{S_T0}, s{S_T0}, {KV_HEAD}"); A(f"s_add_u32 s{S_T0}, s{S_T0}, {WS_KV}")
        A(f"v_add_u32 v{VKV}, s{S_T0}, v{T+2}")
        A(f"s_lshl_b32 s{S_T0}, s{S_WV}, 9"); A(f"s_add_u32 s{S_T0}, s{S_T0}, {WS_KVCNT}")
        A(f"v_lshlrev_b32 v{VCN}, 6, v{VL}"); A(f"v_add_u32 v{VCN}, s{S_T0}, v{VCN}")
        A("s_barrier")
        def signal_block(sfx=''):
            A(f"s_cmp_ge_u32 s{S_CP}, 2"); A(f"s_cbranch_scc1 K12_sigB{sfx}")
            A(f"s_lshl_b32 s{S_T0}, s{S_T}, 1"); A(f"s_add_u32 s{S_T0}, s{S_T0}, s{S_WM}"); A(f"s_lshl_b32 s{S_T0}, s{S_T0}, 2")
            A(f"s_lshr_b32 s{S_T1}, s{S_IDX}, 1"); A(f"s_add_u32 s{S_T0}, s{S_T0}, s{S_T1}"); A(f"s_lshl_b32 s{S_T0}, s{S_T0}, 4")
            A(f"s_lshl_b32 s{S_T1}, s{S_I1}, 1"); A(f"s_add_u32 s{S_T0}, s{S_T0}, s{S_T1}"); A(f"s_add_u32 s{S_T0}, s{S_T0}, s{S_WN}")
            A(f"s_add_u32 s{S_T0}, s{S_T0}, 8"); A(f"s_lshl_b32 s{S_T0}, s{S_T0}, 2"); A(f"s_add_u32 s{S_T0}, s{S_T0}, {WS_FLAG}")
            A(f"v_mov_b32 v{T+4}, s{S_T0}"); A(f"v_mov_b32 v{T+5}, 1")
            A(f"s_mov_b64 s[{S_E0}:{S_E0+1}], exec"); A("s_mov_b64 exec, 1")
            A(f"!global_store_dword v{T+4}, v{T+5}, s[{S_WSP}:{S_WSP+1}] sc1")
            A(f"s_mov_b64 exec, s[{S_E0}:{S_E0+1}]"); A(f"s_branch K12_sigX{sfx}")
            A(f"K12_sigB{sfx}:")
            A(f"s_lshl_b32 s{S_T0}, s{S_IDX}, 2"); A(f"s_add_u32 s{S_T0}, s{S_T0}, s{S_WV}"); A(f"s_lshl_b32 s{S_T0}, s{S_T0}, 6"); A(f"s_add_u32 s{S_T0}, s{S_T0}, {WS_KVCNT}")
            A(f"v_mov_b32 v{T+4}, s{S_T0}"); A(f"v_mov_b32 v{T+5}, 1")
            A(f"s_mov_b64 s[{S_E0}:{S_E0+1}], exec"); A("s_mov_b64 exec, 1")
            A(f"!global_atomic_add v{T+4}, v{T+5}, s[{S_WSP}:{S_WSP+1}] sc1")
            A(f"s_mov_b64 exec, s[{S_E0}:{S_E0+1}]")
            A(f"K12_sigX{sfx}:")
        if FASTG2:
            A("s_mov_b64 exec, 255"); A(f"v_cmp_ne_u32 vcc, 0, v33"); A("s_nop 3"); A("s_cmp_eq_u64 vcc, exec"); A("s_mov_b64 exec, -1")
            A(f"s_cselect_b32 s{S_XO}, 1, 0")
            A("s_cbranch_scc1 K12_hok")
            A("s_waitcnt vmcnt(0)")
            signal_block()
        elif not DEFER:
            if EARLY_POLL:
                A("s_mov_b64 exec, 255"); A.vm(f"global_load_dword v{T+9}, v{VFL}, s[{S_WSP}:{S_WSP+1}] sc1"); A("s_mov_b64 exec, -1")
            A("s_waitcnt vmcnt(0)")
            signal_block()
        if OUT_TOUCH:
            A(f"s_lshl_b32 s{S_T0}, s{S_TAU}, 16"); A(f"s_lshl_b32 s{S_T1}, s{S_J}, 7"); A(f"s_add_u32 s{S_T0}, s{S_T0}, s{S_T1}"); A(f"v_mov_b32 v{T+6}, s{S_T0}")
            A("s_mov_b64 exec, 1"); A.vm(f"global_load_dword v{T+7}, v{T+6}, s[{P_O}:{P_O+1}]"); A("s_mov_b64 exec, -1")
        A.stamp(7); A.stamp(7, "tr")
        if EARLY_POLL and not DEFER and not FASTG2:
            A("s_mov_b64 exec, 255"); A(f"v_cmp_ne_u32 vcc, 0, v{T+9}"); A("s_nop 3"); A("s_cmp_eq_u64 vcc, exec"); A("s_mov_b64 exec, -1")
            A("s_cbranch_scc1 K12_hok")
        self.poll("K12_pollH", VFL, 8)
        A("K12_hok:")
        A.stamp(8, "tr")
        A.stamp(8); A.stamp(1, "g2")
        hstate = {"off": 0}
        def h_items(f):
            o = []
            hb = HB + 4*(f % NH)
            if f % 2 == 0: o.append(f"s_add_u32 s{S_HO}, s{S_HBASE}, s{S_HR}")
            o.append(("vm", f"h{f}", f"buffer_load_dwordx4 v[{hb}:{hb+3}], v{VL16}, s[{S_H}:{S_H+3}], s{S_HO} offen offset:{(f%2)*1024} sc1"))
            if f % 2 == 1 and f < 55:
                o += [f"s_add_u32 s{S_HR}, s{S_HR}, 2048", f"s_cmp_eq_u32 s{S_HR}, {28*2048}", f"s_cselect_b32 s{S_HR}, 0, s{S_HR}"]
            return o
        def pq_items(g):
            return [f"s_add_u32 s{S_HO}, s{S_T4}, {(g//4)*4096}",
                    ("vm", f"pq{g}", f"buffer_load_dwordx4 a[{4*g}:{4*g+3}], v{VL16}, s[{S_H}:{S_H+3}], s{S_HO} offen offset:{(g%4)*1024} sc1")]
        def kv_items(h):
            b = KVR0 + 8*h
            pre = [f"s_mov_b64 exec, s[{S_C6}:{S_C6+1}]"] if KVMASK else []
            post = ["s_mov_b64 exec, -1"] if KVMASK else []
            return pre + [("vm", None, f"global_load_dwordx4 v[{b}:{b+3}], v{VKV}, s[{S_WSP}:{S_WSP+1}] sc1"),
                    ("vm", f"kv{h}", f"global_load_dwordx4 v[{b+4}:{b+7}], v{VKV}, s[{S_WSP}:{S_WSP+1}] offset:16 sc1")] + post + [
                    f"v_add_u32 v{VKV}, {KV_HEAD}, v{VKV}"]
        if KVMASK:
            A(f"s_mov_b32 s{S_C6}, 0xffff0011"); A(f"s_mov_b32 s{S_C6+1}, 0xffff0011")
        AHEAD = G2_AHEAD
        KVB = [KVR0 + 8*h for h in range(8)]
        DO = [224 - 32, 224 - 16]
        DO = [T - 16 - 16 + 0, 0]
        DO = [208, 224]
        DO = [HB + 32, HB + 48]
        OF = [T, T+4]
        loads = [("h", f) for f in range(56)]
        if TBM:
            for h in range(8): loads += [("kv", h), ("pq", 2*h)]
            for h in range(8): loads += [("pq", 2*h+1)]
        else:
            for h in range(8): loads += [("kv", h), ("pq", 2*h), ("pq", 2*h+1)]
        CHK = G2_CHK
        li = {"n": 0}
        def issue(n):
            o = []
            for _ in range(n):
                if li["n"] >= len(loads): break
                k, x = loads[li["n"]]; li["n"] += 1
                o.append(h_items(x) if k == "h" else (kv_items(x) if k == "kv" else pq_items(x)))
            return o
        A(f"s_mul_i32 s{S_T0}, s{S_J}, {7*1024}"); A(f"s_add_u32 s{S_T0}, s{S_T0}, s{S_HO}")
        for x in issue(4):
            for y in x: A(y)
        if G2_PF:
            for k in range(7):
                if k == 4: A(f"s_add_u32 s{S_T0}, s{S_T0}, 4096")
                A.vm(f"buffer_load_dwordx4 v[{T}:{T+3}], v{VL16}, s[{S_H}:{S_H+3}], s{S_T0} offen offset:{(k%4)*1024} sc1")
        for x in issue(AHEAD - 4):
            for y in x: A(y)
        if DEFER:
            A(f"s_cmp_ge_u32 s{S_CP}, 2"); A("s_cbranch_scc1 K12_defB")
            for tb in range(2):
                for hs in range(2):
                    pk = 128 + 4*(2*tb + hs)
                    A(f"!buffer_store_dwordx4 v[{pk}:{pk+3}], v{VL16}, s[{S_H}:{S_H+3}], s{23 if hs else 22} offen offset:{tb*1024} sc1")
            A(f"v_mov_b32 v{T+6}, 24576"); A("s_mov_b64 exec, 1")
            A(f"!global_load_dword v{T+7}, v{T+6}, s[{S_WSP}:{S_WSP+1}]")
            A("s_mov_b64 exec, -1"); A("s_branch K12_defX")
            A("K12_defB:")
            for n in range(4): A(f"!global_atomic_add_f32 v133, v{128+n}, s[{S_WSP}:{S_WSP+1}] offset:{n*256}")
            A("s_mov_b64 exec, 0xffff")
            A(f"!global_atomic_add_f32 v133, v132, s[{S_WSP}:{S_WSP+1}] offset:1024")
            A("s_mov_b64 exec, -1")
            A("K12_defX:")
            A.nvm += 5; A.ids["defer"] = A.nvm
        A.stamp(2, "g2")
        for i in range(28):
            if LATE_R and i == N_IN: A("s_waitcnt lgkmcnt(0)")
            A.wait(f"h{2*i+1}")
            if FASTG2 and i == 0:
                A(f"s_cmp_eq_u32 s{S_XO}, 0"); A("s_cbranch_scc1 K12_sigdone")
                signal_block("2")
                A("K12_sigdone:")
            if DEFER and i == S_SIG:
                assert A.ids[f"h{2*i+1}"] > A.ids["defer"]
                signal_block()
            if i == 1: A.stamp(3, "g2")
            gaps = [[] for _ in range(4)]
            if i == CHK - 5:
                gaps[0] += [f"v_add_u32 v{VFL}, 32, v{VFL}", f"s_mov_b64 s[{S_E0}:{S_E0+1}], exec", "s_mov_b64 exec, 15",
                            ("vm", "fq", f"global_load_dword v{VF1}, v{VFL}, s[{S_WSP}:{S_WSP+1}] sc1"), "s_mov_b64 exec, 255",
                            ("vm", "fkv", f"global_load_dword v{VF2}, v{VCN}, s[{S_WSP}:{S_WSP+1}] sc1"), f"s_mov_b64 exec, s[{S_E0}:{S_E0+1}]"]
            if LATE_R and i >= 2 and N_IN + (i - 2) < 36:
                rr = self.w2.R(N_IN + (i - 2))[1:]
                gaps[0] += rr[0]; gaps[3] += rr[1]
            n = 2
            if li["n"] + n > 56 and i < CHK: n = max(0, 56 - li["n"])
            for k, x in enumerate(issue(n)): gaps[1+k] += x
            mf = []
            for tb in range(2):
                hb = HB + 4*((2*i+tb) % NH)
                for nb in range(2):
                    a = ACC2 + 16*(2*nb+tb)
                    c = "0" if i == 0 else f"v[{a}:{a+15}]"
                    mf.append(f"v_mfma_f32_32x32x16_bf16 v[{a}:{a+15}], {self.w2.frag(i,nb)}, v[{hb}:{hb+3}], {c}")
            for g in range(4):
                A(mf[g])
                for x in gaps[g]: A(x)
            if i == CHK - 1:
                A.stamp(4, "g2")
                A.wait("fkv")
                A(f"s_mov_b64 s[{S_E0}:{S_E0+1}], exec"); A("s_mov_b64 exec, 15")
                A(f"v_cmp_ne_u32 vcc, 0, v{VF1}"); A("s_nop 3"); A("s_cmp_eq_u64 vcc, exec"); A(f"s_mov_b64 exec, s[{S_E0}:{S_E0+1}]")
                A("s_cbranch_scc1 K12_qok")
                self.poll("K12_pollQ", VFL, 4, novm=True)
                A.label("K12_qok")
                A(f"s_mov_b64 s[{S_E0}:{S_E0+1}], exec"); A("s_mov_b64 exec, 255")
                A(f"v_cmp_le_u32 vcc, 16, v{VF2}"); A("s_nop 3"); A("s_cmp_eq_u64 vcc, exec"); A(f"s_mov_b64 exec, s[{S_E0}:{S_E0+1}]")
                A("s_cbranch_scc1 K12_kvok")
                self.poll("K12_pollKV", VCN, 8, expect=16, novm=True)
                A.label("K12_kvok")
                A.stamp(5, "g2")
        A.stamp(6, "g2"); A.stamp(1, "att")
        A(f"v_lshrrev_b32 v{T+8}, 3, v{VTID}"); A(f"v_and_b32 v{T+9}, 7, v{VTID}")
        A(f"s_lshl_b32 s{S_T0}, s{S_TAU}, 16"); A(f"s_lshl_b32 s{S_T2}, s{S_J}, 7"); A(f"s_add_u32 s{S_T0}, s{S_T0}, s{S_T2}")
        VG = VFL
        A(f"v_lshlrev_b32 v{VG}, 10, v{T+8}"); A(f"v_lshlrev_b32 v{VCN}, 4, v{T+9}"); A(f"v_add_u32 v{VG}, v{VG}, v{VCN}")
        A(f"s_add_u32 s{S_T2}, s{S_T0}, {32*1024}")
        XR = HB
        A(f"s_mov_b32 s{S_T1}, 0x358637bd")
        A("s_waitcnt lgkmcnt(0)")
        units = [(h, tb) for tb in range(2) for h in range(8)] if TBM else [(h, tb) for h in range(8) for tb in range(2)]
        RS = 272; WSZ = 64*RS; VW = VCN
        A(f"v_and_b32 v{VW}, 31, v{VL}"); A(f"v_mul_u32_u24 v{VW}, {RS}, v{VW}"); A(f"v_lshrrev_b32 v{T+9}, 5, v{VL}"); A(f"v_lshlrev_b32 v{T+9}, 4, v{T+9}"); A(f"v_add_u32 v{VW}, v{VW}, v{T+9}")
        A(f"s_mul_i32 s{S_T3}, s{S_WV}, {WSZ}"); A(f"v_add_u32 v{VW}, s{S_T3}, v{VW}")
        def wr(tb, k):
            nb, q = k // 4, k % 4; a = ACC2 + 16*(2*nb+tb)
            return f"ds_write_b128 v{VW}, v[{a+4*q}:{a+4*q+3}] offset:{tb*32*RS + nb*128 + q*32}"
        def stA(u):
            h, tb = units[u]; d = DO[u & 1]
            o = []
            if tb == 0:
                o.append(("wait", [f"kv{h}", f"pq{2*h}"]))
                o += [f"v_cvt_pk_bf16_f32 v{KVB[h]+e}, v{KVR0+8*h+2*e}, v{KVR0+8*h+2*e+1}" for e in range(4)]
                o.append("s_nop 1")
            else: o.append(("wait", [f"pq{2*h+1}"]))
            o.append(f"v_mfma_f32_32x32x16_bf16 v[{d}:{d+15}], v[{KVB[h]}:{KVB[h]+3}], {ar(4*(2*h+tb), 4)}, 0")
            return o
        def stB(u):
            d = DO[u & 1]; o = OF[u & 1]; rc = T + 8
            l = [f"v_add_f32 v{rc}, s{S_T1}, v{d}", f"v_rcp_f32 v{rc}, v{rc}", "s_nop 0"]
            l += [f"v_mul_f32 v{d+8+e}, v{rc}, v{d+8+e}" for e in range(8)]
            l += [f"v_cvt_pk_bf16_f32 v{o+e}, v{d+8+2*e}, v{d+8+2*e+1}" for e in range(4)]
            return l
        def stC(u):
            h, tb = units[u]; o = OF[u & 1]; i = 28 + h
            return [f"v_mfma_f32_32x32x16_bf16 v[{ACC2+16*(2*nb+tb)}:{ACC2+16*(2*nb+tb)+15}], {self.w2.frag(i,nb)}, v[{o}:{o+3}], v[{ACC2+16*(2*nb+tb)}:{ACC2+16*(2*nb+tb)+15}]" for nb in range(2)]
        for x in stA(0): A(x)
        A.stamp(2, "att")
        for x in issue(1):
            for y in x: A(y)
        for x in stA(1): A(x)
        for x in issue(2):
            for y in x: A(y)
        A("s_nop 7"); A("s_nop 3")
        for x in stB(0): A(x)
        xdone = False
        for u in range(16):
            c = stC(u)
            nb_ = stB(u+1) if u + 1 < 16 else []
            if u in (2, 6, 10, 13): A.stamp({2:3, 6:4, 10:5, 13:6}[u], "att")
            A("s_nop 1"); A(c[0])
            for x in nb_[:5]: A(x)
            if u + 2 < 16:
                for x in stA(u+2): A(x)
            iss = issue(2)
            for x in iss:
                for y in x: A(y)
            if not iss and not xdone:
                A.vm(f"buffer_load_dwordx4 v[{XR}:{XR+3}], v{VG}, s[{S_XX}:{S_XX+3}], s{S_T0} offen", id="x0")
                A.vm(f"buffer_load_dwordx4 v[{XR+4}:{XR+7}], v{VG}, s[{S_XX}:{S_XX+3}], s{S_T2} offen", id="x1")
                xdone = True
            for x in nb_[5:10]: A(x)
            A(c[1])
            for x in nb_[10:]: A(x)
            if TBM and 9 <= u <= 12:
                A(wr(0, 2*(u-9))); A(wr(0, 2*(u-9)+1))
        assert xdone and li["n"] == len(loads)
        A.stamp(7, "g2"); A.stamp(7, "att")
        A(f"v_lshrrev_b32 v{T+2}, 3, v{VTID}"); A(f"v_and_b32 v{T+3}, 7, v{VTID}")
        A(f"v_mul_u32_u24 v{T+6}, {RS}, v{T+2}"); A(f"v_lshlrev_b32 v{T+7}, 5, v{T+3}"); A(f"v_add_u32 v{T+6}, v{T+6}, v{T+7}")
        if not TBM:
            A("s_nop 7")
            for k in range(8): A(wr(0, k))
        A("s_nop 7"); A("s_nop 1")
        for k in range(8): A(wr(1, k))
        A("s_waitcnt lgkmcnt(0)"); A("s_barrier")
        A.stamp(8, "g2"); A.stamp(8, "att")
        for ps in range(2):
            b = 72 + 40*ps
            for w in range(4):
                A(f"ds_read_b128 v[{b+8*w}:{b+8*w+3}], v{T+6} offset:{w*WSZ + ps*32*RS}")
                A(f"ds_read_b128 v[{b+8*w+4}:{b+8*w+7}], v{T+6} offset:{w*WSZ + ps*32*RS + 16}")
        for ps in range(2):
            b = 72 + 40*ps
            A(f"s_waitcnt lgkmcnt({8 if ps == 0 else 0})")
            for e in range(0, 8, 2):
                A(f"v_pk_add_f32 v[{b+e}:{b+e+1}], v[{b+e}:{b+e+1}], v[{b+8+e}:{b+8+e+1}]")
                A(f"v_pk_add_f32 v[{b+16+e}:{b+16+e+1}], v[{b+16+e}:{b+16+e+1}], v[{b+24+e}:{b+24+e+1}]")
            for e in range(0, 8, 2):
                A(f"v_pk_add_f32 v[{b+e}:{b+e+1}], v[{b+e}:{b+e+1}], v[{b+16+e}:{b+16+e+1}]")
            A.wait(f"x{ps}")
            xb = XR + 4*ps
            for e in range(4):
                A(f"v_lshlrev_b32 v{T+8}, 16, v{xb+e}"); A(f"v_and_b32 v{T+9}, 0xffff0000, v{xb+e}")
                A(f"v_pk_add_f32 v[{b+2*e}:{b+2*e+1}], v[{b+2*e}:{b+2*e+1}], v[{T+8}:{T+9}]")
                A(f"v_cvt_pk_bf16_f32 v{b+32+e}, v{b+2*e}, v{b+2*e+1}")
            A.vm(f"buffer_store_dwordx4 v[{b+32}:{b+35}], v{VG}, s[{S_O}:{S_O+3}], s{S_T0 if ps == 0 else S_T2} offen")

def gen_k12():
    A = Prog()
    prologue_common(A)
    A(f"s_cmp_ge_u32 s{S_CP}, 2"); A("s_cbranch_scc1 K12_typeB")
    base_nvm = A.nvm; base_ids = dict(A.ids)
    for typ in ("A", "B"):
        if typ == "B":
            A.label("K12_typeB"); A.nvm = base_nvm; A.ids = dict(base_ids)
        g = G1(A, typ)
        g.prologue()
        if STAMP and SMODE == "wait":
            for c in (1,2,3,4,5,6,7): A(f"s_mov_b32 s{SB+2*c}, 0")
            A(f"s_memtime s[{SB+8}:{SB+9}]"); A("s_waitcnt lgkmcnt(0)")
        A.inloop = True
        g.loop()
        A.inloop = False
        if STAMP and SMODE == "wait":
            A(f"s_memtime s[{SB+10}:{SB+11}]"); A("s_waitcnt lgkmcnt(0)"); A(f"s_sub_u32 s{SB+8}, s{SB+10}, s{SB+8}")
        print(f"type {typ}: leftover W2 items after loop: {g.nleft}", file=sys.stderr)
        A.stamp(4); A.stamp(8, "loop"); A.stamp(8, "init"); A.stamp(5, "init")
        g.transition()
        if typ == "A": A("s_branch K12_g2")
    A.label("K12_g2")
    G2(A).body()
    if STAMP:
        A("s_waitcnt vmcnt(0) lgkmcnt(0)")
        A(f"{STAMP_INS} s[60:61]")
        A("s_waitcnt lgkmcnt(0)")
        A(f"s_lshl_b32 s{S_T0}, s2, 2"); A(f"s_add_u32 s{S_T0}, s{S_T0}, s{S_WV}"); A(f"s_lshl_b32 s{S_T0}, s{S_T0}, 6")
        A(f"s_add_u32 s{S_T0}, s{S_T0}, {WS_STAMP + 65536}")
        A(f"v_mov_b32 v{VT}, s{S_T0}")
        for i in range(9):
            A(f"v_mov_b32 v{VT+1}, s{SB+2*i}")
            A.vm(f"global_store_dword v{VT}, v{VT+1}, s[{S_WSP}:{S_WSP+1}] offset:{4*i}")
        A(f"v_mov_b32 v{VT+1}, s60")
        A.vm(f"global_store_dword v{VT}, v{VT+1}, s[{S_WSP}:{S_WSP+1}] offset:36")
    if STAMP and DBGSTAMP:
        A(f"s_cmp_eq_u32 s{S_WV}, 0"); A("s_cbranch_scc0 K12_end")
        A("s_mov_b64 exec, 1")
        for i in range(9):
            A(f"v_mov_b32 v{VT}, {4*(1+i)}"); A(f"v_mov_b32 v{VT+1}, s{SB+2*i}")
            A.vm(f"global_atomic_umax v{VT}, v{VT+1}, s[{S_DBG}:{S_DBG+1}]")
        A(f"v_mov_b32 v{VT}, 40"); A(f"v_mov_b32 v{VT+1}, s60"); A.vm(f"global_atomic_umax v{VT}, v{VT+1}, s[{S_DBG}:{S_DBG+1}]")
        A(f"s_not_b32 s{S_T0}, s{SB}"); A(f"v_mov_b32 v{VT}, 44"); A(f"v_mov_b32 v{VT+1}, s{S_T0}"); A.vm(f"global_atomic_umax v{VT}, v{VT+1}, s[{S_DBG}:{S_DBG+1}]")
    A.label("K12_end")
    return A.text()

def main(path):
    hdr = open("cdna_kernels/" + NAME + ".s.ref").read().split("; Override")[0]
    n = NAME + "_kernel"
    body = gen_k12()
    out = hdr + "; @launch grid=(256,1,1) block=(256,1,1) lds=163840\n"
    out += '.amdgcn_target "amdgcn-amd-amdhsa--gfx950"\n.text\n'
    out += f""".globl {n}
.p2align 8
.type {n},@function
{n}:
{body}
  s_endpgm
.section .rodata,"a"
.p2align 6
.amdhsa_kernel {n}
  .amdhsa_next_free_vgpr 512
  .amdhsa_next_free_sgpr 102
  .amdhsa_accum_offset 256
  .amdhsa_group_segment_fixed_size 0
  .amdhsa_kernarg_size 80
  .amdhsa_user_sgpr_count 2
  .amdhsa_user_sgpr_kernarg_segment_ptr 1
  .amdhsa_system_sgpr_workgroup_id_x 1
.end_amdhsa_kernel
"""
    open(path, "w").write(out)

if __name__ == "__main__":
    if "--stamp" in sys.argv:
        STAMP = True; sys.argv.remove("--stamp")
    for a in list(sys.argv):
        if a.startswith("--nin="): N_IN = int(a[6:]); sys.argv.remove(a)
        if a.startswith("--smode="): SMODE = a[8:]; sys.argv.remove(a)
        if a.startswith("--ahead="): G2_AHEAD = int(a[8:]); sys.argv.remove(a)
        if a.startswith("--chk="): G2_CHK = int(a[6:]); sys.argv.remove(a)
        if a.startswith("--pf="): G2_PF = int(a[5:]); sys.argv.remove(a)
        if a.startswith("--cpf2="): CODE_PF2 = int(a[7:]); sys.argv.remove(a)
        if a.startswith("--wsh="): WS_H = int(a[6:])*1048576; sys.argv.remove(a)
        if a == "--dbgstamp": DBGSTAMP = 1; sys.argv.remove(a)
        if a.startswith("--w2rot="): W2ROT = int(a[8:]); sys.argv.remove(a)
        if a.startswith("--w2start="): W2_START = int(a[10:]); sys.argv.remove(a)
        if a.startswith("--later="): LATE_R = int(a[8:]); sys.argv.remove(a)
        if a.startswith("--bed="): B_EARLY_D = int(a[6:]); sys.argv.remove(a)
        if a.startswith("--ftb="): FLAG_TB = int(a[6:]); sys.argv.remove(a)
        if a.startswith("--pt="): K_PT = int(a[5:]); sys.argv.remove(a)
        if a.startswith("--tt="): TLB_TOUCH = int(a[5:]); sys.argv.remove(a)
        if a.startswith("--hinit="):
            H_INIT = int(a[8:]); K_INITLD = 2*H_INIT - 4; K_CSAT = 2*H_INIT; H_CS = H_INIT + 3; sys.argv.remove(a)
        if a.startswith("--rot2="): ROT2 = int(a[7:]); sys.argv.remove(a)
        if a.startswith("--kvmask="): KVMASK = int(a[9:]); sys.argv.remove(a)
        if a.startswith("--wopf="): K_WOPF = int(a[7:]); sys.argv.remove(a)
        if a.startswith("--defer="): DEFER = int(a[8:]); sys.argv.remove(a)
        if a.startswith("--cpf1="): CODE_PF1 = int(a[7:]); sys.argv.remove(a)
        if a.startswith("--zlate="): ZLATE = int(a[8:]); sys.argv.remove(a)
        if a.startswith("--tbm="): TBM = int(a[6:]); sys.argv.remove(a)
        if a.startswith("--gate="): GATE = int(a[7:]); sys.argv.remove(a)
        if a.startswith("--tt3="): TT3 = int(a[6:]); sys.argv.remove(a)
        if a.startswith("--pqlate="): PQ_LATE = int(a[9:]); sys.argv.remove(a)
        if a.startswith("--ftba="): FLAG_TB_A = int(a[7:]); sys.argv.remove(a)
        if a.startswith("--ot="): OUT_TOUCH = int(a[5:]); sys.argv.remove(a)
        if a.startswith("--ep="): EARLY_POLL = int(a[5:]); sys.argv.remove(a)
        if a.startswith("--fast="): FASTG2 = int(a[7:]); sys.argv.remove(a)
        if a.startswith("--al8="): ALIGN8 = int(a[6:]); sys.argv.remove(a)
        if a.startswith("--tta="): TT_AFTER = int(a[6:]); sys.argv.remove(a)
        if a.startswith("--latews="):
            LATEWS = int(a[9:]); H_Z = 3; H_INIT = 6; K_INITLD = 8; K_CSAT = 12; H_CS = 9; K_CNTLD = 20; H_CNT = 12; K_RANK = 26; CORR_AT = 30; sys.argv.remove(a)
        if a.startswith("--hcs="): H_CS = int(a[6:]); sys.argv.remove(a)
        if a.startswith("--kinit="): K_INITLD = int(a[8:]); sys.argv.remove(a)
        if a.startswith("--kcnt="): K_CNTLD = int(a[7:]); sys.argv.remove(a)
        if a.startswith("--hcnt="): H_CNT = int(a[7:]); K_RANK = 2*H_CNT + 2; CORR_AT = min(31, K_RANK + 4); sys.argv.remove(a)
        if a.startswith("--phid="): PHI_D = int(a[7:]); sys.argv.remove(a)
        if a.startswith("--x1e="): X1_EARLY = int(a[6:]); sys.argv.remove(a)
        if a.startswith("--rot="): ROT = int(a[6:]); sys.argv.remove(a)
        if a.startswith("--cap="): CAP = int(a[6:]); sys.argv.remove(a)
    if "--cyc" in sys.argv:
        STAMP = True; STAMP_INS = "s_memtime"; sys.argv.remove("--cyc")
    main(sys.argv[1] if len(sys.argv) > 1 else "cdna_kernels/" + NAME + ".s")
```

```python
import sys

NAME = "parallel_sum__linear_attn_block__glu_gated_bilinear__prompt"
WS_M, WS_R, WS_KV, KV_HEAD = 0, 8192, 32768, 1152
WS_FLAG = WS_KV + 36864
WS_KVCNT = WS_FLAG + 8192
WS_CS = WS_KVCNT + 2048
WS_STCNT = WS_CS + 20480
WS_CSCNT = WS_STCNT + 2048
NZERO = 18
assert WS_CSCNT + 2048 <= WS_KV + NZERO*4096 <= 131072
DBG_INIT = 0
CS_TMP = 140
A_ONES = 220
VC1, VC2, VC3 = 251, 252, 253
WS_H = 131072
H_BYTES = 32*4*36*2048
POLL_MAX = 200000
STAMP = False
STAMP_INS = 's_memrealtime'
WS_STAMP = 1 << 24
SB = 84
CORR_AT = 28
N_IN = 28
CAP = 5
SMODE = 'main'
ROT = 8
PHI_D = 0
G2MAP = 0
XMAP = 0
W2NT = ''
OUTNT = ''
LATEWS = 0
TT_AFTER = 0
ALIGN8 = 0
FASTG2 = 0
EARLY_POLL = 1
OUT_TOUCH = 0
PQ_LATE = 0
TT3 = 0
GATE = 0
TBM = 1
CODE_PF1 = 1
ZLATE = 0
H_Z = 2
DEFER = 0
S_SIG = 6
K_WOPF = 0
ROT2 = 1
KVMASK = 0
TLB_TOUCH = 0
K_PT = 0
FLAG_TB = 1
FLAG_TB_A = 0
B_EARLY_D = 1
LATE_R = 1
X1_EARLY = 1
W2ROT = 1
DBGSTAMP = 0
CODE_PF2 = 0
G2_AHEAD = 14; G2_CHK = 22; G2_PF = 0
K_INITLD = 2; H_INIT = 3; K_CSAT = 6; H_CS = 6; K_CNTLD = 18; H_CNT = 11; K_RANK = 25
CODE_KB = 48

class Prog:
    def __init__(self): self.l = []; self.nvm = 0; self.ids = {}; self.pos = {}; self.inloop = False
    def __call__(self, s):
        if s is None: return
        if isinstance(s, tuple):
            if s[0] == "vm":
                self.l.append("  " + s[2]); self.nvm += 1
                if s[1] is not None: self.ids[s[1]] = self.nvm; self.pos[s[1]] = len(self.l)
            elif s[0] == "stamp":
                self.stamp(s[1], s[2])
            elif s[0] == "vmu":
                self.l.append("  " + s[2]); self.ids[s[1]] = self.nvm
            elif s[0] == "wait":
                last = max(self.ids[i] for i in s[1])
                n = self.nvm - last
                assert n <= 63, (s, n)
                if STAMP and SMODE == "wait" and self.inloop:
                    cat = 2 if s[1][0].startswith("w2_") else (1 if s[1][0].startswith("W") else 3)
                    self.l.append(f"  s_memtime s[98:99]"); self.l.append("  s_waitcnt lgkmcnt(0)")
                    self.l.append(f"  s_waitcnt vmcnt({n})")
                    self.l.append(f"  s_memtime s[100:101]"); self.l.append("  s_waitcnt lgkmcnt(0)")
                    self.l.append(f"  s_sub_u32 s100, s100, s98"); self.l.append(f"  s_add_u32 s{SB+2*cat}, s{SB+2*cat}, s100")
                    return
                self.l.append(f"  s_waitcnt vmcnt({n})" + (" " + s[2] if len(s) > 2 and s[2] else ""))
            else: raise ValueError(s)
        elif s.endswith(":"): self.l.append(s)
        elif s.startswith("!"):
            self.l.append("  " + s[1:])
        else:
            assert not ("buffer_" in s or "global_" in s), s
            self.l.append("  " + s)
    def vm(self, text, id=None): self(("vm", id, text))
    def wait(self, *ids): self(("wait", list(ids)))
    def label(self, s): self.l.append(s + ":")
    def text(self):
        if not ALIGN8: return "\n".join(self.l)
        out = []
        for x in self.l:
            if x.lstrip().startswith("v_mfma"): out.append("  .p2align 3")
            out.append(x)
        return "\n".join(out)
    def stamp(self, i, mode="main"):
        if STAMP and (mode == SMODE or i == 0): self.l.append(f"  {STAMP_INS} s[{SB+2*i}:{SB+2*i+1}]")
    def reset_vm(self):
        self.ids = {}

def vr(b, n=1): return f"v{b}" if n == 1 else f"v[{b}:{b+n-1}]"
def ar(b, n=1): return f"a{b}" if n == 1 else f"a[{b}:{b+n-1}]"
def srd(A, d, lo, hi, size):
    A(f"s_mov_b32 s{d}, s{lo}"); A(f"s_and_b32 s{d+1}, s{hi}, 0xffff"); A(f"s_mov_b32 s{d+2}, {size}"); A(f"s_mov_b32 s{d+3}, 0x20000")
def srd_off(A, d, lo, hi, off, size):
    A(f"s_add_u32 s{d}, s{lo}, {off}"); A(f"s_addc_u32 s{d+1}, s{hi}, 0"); A(f"s_and_b32 s{d+1}, s{d+1}, 0xffff")
    if isinstance(off, int): A(f"s_mov_b32 s{d+2}, {size - off}")
    else: A(f"s_sub_u32 s{d+2}, {size}, {off}")
    A(f"s_mov_b32 s{d+3}, 0x20000")

X_BASE = 0; X_SLOT = 16384
W_BASE = 49152; W_SLOT = 20480; W_NS = 3
W2IN = W_BASE + W_NS*W_SLOT
NSL = 6
LDS_R = W2IN + 4*NSL*2048
LDS_KV = 0
W2_START = 1
W2POST = 69632; NPOST = 11
DLAG = 5

ACC = 0; WF = 160; XF = 200; TRA = 216; XA = 221; VOW = 225; VOX = 230
VR = 234; VLANE = 236; VL16 = 237; VTID = 238; VDM = 239
VT = 240
VTR = 254; VTR1 = 255
AMF = 228; ACF = 236
def acc(blk, tb): return ACC + (blk*2+tb)*16

S_X = 4; S_W = 8; S_H = 28; S_WSP = 32
S_WV = 34; S_WM = 35; S_WN = 36; S_T = 37; S_IDX = 38
S_KW = 39; S_KH = 40; S_R30 = 41; S_R35 = 42; S_RH = 43; S_KX = 44; S_W1K = 45; S_W4K = 46; S_XB = 47
S_WD = 48; S_LB = 52; S_W2O = 53
S_W2B = 74; S_W2R = 75; S_W2T = 76; S_RHO = 77; S_HR = 75; S_HBASE = 74
S_T0 = 54; S_T1 = 55; S_T2 = 56; S_T3 = 57; S_T4 = 58; S_XO = 59
S_E0 = 60; S_E2 = 62
S_P = 64
P_X, P_WQ, P_WO, P_G, P_U, P_D, P_O = 64, 66, 68, 72, 74, 76, 78
S_DBG = 72; S_KSC = 66; S_CG = 67
S_HB = 80; S_I1 = 81; S_CP = 82; S_TAU = 83; S_J = 70; S_HO = 71
S_WO = 8; S_O = 12; S_XX = 16
S_C6 = 20

def w2row(i):
    if i < 16: return ("D", 256, 16*i)
    if i < 24: return ("D", 128, 1024 + 16*(i-16))
    if i < 28: return ("D", 64, 1536 + 16*(i-24))
    return ("O", 128, 16*(i-28))

class W2:
    def __init__(self, A, vdm2=None): self.A = A; self.vdm2 = vdm2
    def frag(self, ks, nb, W2V=192):
        f = ks*2 + nb
        return ar(4*f, 4) if f < 64 else vr(W2V + 4*(f-64), 4)
    def half(self, ks, nb, h, W2V=192):
        f = ks*2 + nb
        return ar(4*f + 2*h, 2) if f < 64 else vr(W2V + 4*(f-64) + 2*h, 2)
    def slot_off(self, i):
        return (i % NSL)*2048 if i < N_IN else ((i - N_IN) % NPOST)*2048
    def D(self, i):
        o = []
        if i < 28: s, so = S_WD, S_W2R
        else:
            s, so = S_WO, S_W2O
            o.append([f"s_mov_b32 s{S_W2O}, {16*(i-28)*1024}"])
        d0 = ("dma", f"s_add_u32 m0, s{S_LB}, {self.slot_off(i)}", ("vm", f"w2_{i}_0", f"buffer_load_dwordx4 v{VDM}, s[{s}:{s+3}], s{so} offen{W2NT} lds"))
        o.append(d0)
        o.append(("dma", f"s_add_u32 m0, s{S_LB}, {self.slot_off(i) + 1024}", ("vm", f"w2_{i}_1", f"buffer_load_dwordx4 v{self.vdm2}, s[{s}:{s+3}], s{so} offen{W2NT} lds")))
        if i < 27:
            o.append([f"s_add_u32 s{S_W2R}, s{S_W2R}, 16384", f"s_cmp_eq_u32 s{S_W2R}, {28*16384}", f"s_cselect_b32 s{S_W2R}, 0, s{S_W2R}"])
        return o
    def R(self, i):
        o = self.slot_off(i)
        r = [[("wait", [f"w2_{i}_1"])]]
        for nb in range(2):
            va = VTR if nb == 0 else VTR1
            r.append([f"ds_read_b64_tr_b16 {self.half(i, nb, 0)}, v{va} offset:{o}", f"ds_read_b64_tr_b16 {self.half(i, nb, 1)}, v{va} offset:{o+1024}"])
        return r

def emit_items(A, items):
    for it in items:
        if isinstance(it, tuple) and it[0] == "dma":
            A(it[1]); A("s_nop 0"); A(it[2])
        else:
            for s in it: A(s)

def prologue_common(A):
    A("s_cmp_ge_u32 s2, 256"); A("s_cbranch_scc1 K12_end")
    A.stamp(0)
    A(f"s_load_dwordx16 s[{S_P}:{S_P+15}], s[0:1], 0")
    A(f"s_load_dwordx2 s[{S_WSP}:{S_WSP+1}], s[0:1], 72")
    A(f"s_getpc_b64 s[{S_E2}:{S_E2+1}]")
    A("K12_pc:")
    A(f"v_and_b32 v{VLANE}, 63, v0")
    A(f"v_lshrrev_b32 v{VT}, 6, v0")
    A(f"v_mov_b32 v{VTID}, v0")
    A(f"v_lshlrev_b32 v{VL16}, 4, v{VLANE}")
    if TLB_TOUCH:
        A(f"v_lshlrev_b32 v{WF+28}, 3, v{VLANE}")
        A("s_mov_b64 exec, 0x1ff")
        A.vm(f"global_load_dwordx2 v[{WF+30}:{WF+31}], v{WF+28}, s[0:1]", id="kptr")
        A("s_mov_b64 exec, -1")
    A(f"v_readfirstlane_b32 s{S_WV}, v{VT}")
    A(f"s_and_b32 s{S_T0}, s2, 7"); A(f"s_lshr_b32 s{S_T1}, s2, 3")
    A(f"s_lshl_b32 s{S_T2}, s{S_T1}, 2"); A(f"s_add_u32 s{S_T2}, s{S_T2}, s{S_WV}"); A(f"s_min_u32 s{S_T2}, s{S_T2}, ((K12_end-K12_pc)>>10)-1"); A(f"s_lshl_b32 s{S_T2}, s{S_T2}, 10")
    A(f"v_add_u32 v{VT+4}, s{S_T2}, v{VL16}")
    if CODE_PF1: A.vm(f"global_load_dwordx4 v[{WF+36}:{WF+39}], v{VT+4}, s[{S_E2}:{S_E2+1}]")
    A(f"s_and_b32 s{S_T2}, s{S_T1}, 7"); A(f"s_lshr_b32 s{S_CP}, s{S_T1}, 3")
    if XMAP:
        A(f"s_and_b32 s{S_T}, s{S_T0}, 1"); A(f"s_lshl_b32 s{S_T}, s{S_T}, 3"); A(f"s_add_u32 s{S_T}, s{S_T}, s{S_T2}")
        A(f"s_lshr_b32 s{S_IDX}, s{S_T0}, 1"); A(f"s_and_b32 s{S_IDX}, s{S_IDX}, 1"); A(f"s_lshl_b32 s{S_IDX}, s{S_IDX}, 2"); A(f"s_add_u32 s{S_IDX}, s{S_IDX}, s{S_CP}")
        A(f"s_lshr_b32 s{S_I1}, s{S_T0}, 2")
        if XMAP == 2: A(f"s_xor_b32 s{S_I1}, s{S_I1}, 1")
        A(f"s_lshl_b32 s{S_I1}, s{S_I1}, 1")
    else:
        A(f"s_lshr_b32 s{S_T}, s{S_T0}, 2"); A(f"s_lshl_b32 s{S_T}, s{S_T}, 3"); A(f"s_add_u32 s{S_T}, s{S_T}, s{S_T2}")
        A(f"s_and_b32 s{S_IDX}, s{S_T0}, 3"); A(f"s_lshl_b32 s{S_IDX}, s{S_IDX}, 1")
        A(f"s_and_b32 s{S_T3}, s{S_CP}, 1"); A(f"s_add_u32 s{S_IDX}, s{S_IDX}, s{S_T3}")
    if G2MAP:
        A(f"s_lshr_b32 s{S_TAU}, s{S_T0}, 1"); A(f"s_lshl_b32 s{S_TAU}, s{S_TAU}, 3"); A(f"s_and_b32 s{S_T3}, s{S_T1}, 7"); A(f"s_add_u32 s{S_TAU}, s{S_TAU}, s{S_T3}")
        A(f"s_and_b32 s{S_T4}, s{S_T0}, 1"); A(f"s_lshl_b32 s{S_T4}, s{S_T4}, 2"); A(f"s_lshr_b32 s{S_T3}, s{S_T1}, 3"); A(f"s_add_u32 s{S_T4}, s{S_T4}, s{S_T3}")
    else:
        A(f"s_and_b32 s{S_TAU}, s{S_T1}, 3"); A(f"s_lshl_b32 s{S_T3}, s{S_T0}, 2"); A(f"s_add_u32 s{S_TAU}, s{S_TAU}, s{S_T3}")
        A(f"s_lshr_b32 s{S_T4}, s{S_T1}, 2")
    A(f"s_add_u32 s{S_T0}, s{S_CP}, s{S_T2}"); A(f"s_and_b32 s{S_T0}, s{S_T0}, 3"); A(f"s_lshl_b32 s{S_T0}, s{S_T0}, 1")
    A(f"s_lshr_b32 s{S_T1}, s{S_T2}, 2"); A(f"s_add_u32 s{S_T0}, s{S_T0}, s{S_T1}")
    if ROT2: A(f"s_add_u32 s{S_T0}, s{S_CP}, s{S_T2}"); A(f"s_and_b32 s{S_T0}, s{S_T0}, 7")
    A(f"s_lshl_b32 s{S_KW}, s{S_T0}, 6")
    if XMAP: A(f"s_mov_b32 s{S_CP}, s{S_I1}")
    A(f"s_lshr_b32 s{S_WM}, s{S_WV}, 1"); A(f"s_and_b32 s{S_WN}, s{S_WV}, 1")
    t0, t1, t3, t4 = VT, VT+1, VT+3, VT+4
    A(f"v_lshrrev_b32 v{t0}, 3, v{VLANE}"); A(f"v_and_b32 v{t1}, 7, v{VLANE}")
    A(f"v_lshrrev_b32 v{t3}, 4, v{VLANE}"); A(f"v_xor_b32 v{t3}, v{t1}, v{t3}"); A(f"v_lshlrev_b32 v{t3}, 4, v{t3}")
    A(f"v_lshlrev_b32 v{t4}, 10, v{t0}"); A(f"v_add_u32 v{VOX}, v{t3}, v{t4}")
    A(f"v_xor_b32 v{VOX+1}, 64, v{VOX}"); A(f"v_add_u32 v{VOX+1}, {8*1024}, v{VOX+1}")
    A(f"v_add_u32 v{VOX+2}, {16*1024}, v{VOX}"); A(f"v_add_u32 v{VOX+3}, {16*1024}, v{VOX+1}")
    A(f"s_lshl_b32 s{S_XB}, s{S_T}, 7"); A(f"s_lshl_b32 s{S_T0}, s{S_WV}, 5"); A(f"s_add_u32 s{S_XB}, s{S_XB}, s{S_T0}"); A(f"s_lshl_b32 s{S_XB}, s{S_XB}, 10")
    A(f"s_lshl_b32 s{S_KX}, s{S_KW}, 1")
    A(f"s_and_b32 s{S_T0}, s{S_WV}, 1"); A(f"s_lshl_b32 s{S_T0}, s{S_T0}, 4"); A(f"s_add_u32 s{S_KH}, s{S_KW}, s{S_T0}")
    A(f"s_lshl_b32 s{S_T0}, s{S_WV}, 3"); A(f"s_add_u32 s{S_KW}, s{S_KW}, s{S_T0}")
    A(f"s_lshl_b32 s{S_W1K}, s{S_WV}, 10"); A(f"s_lshl_b32 s{S_W4K}, s{S_WV}, 12")
    A(f"s_lshr_b32 s{S_T0}, s{S_CP}, 1"); A(f"s_lshl_b32 s{S_T0}, s{S_T0}, 3"); A(f"s_add_u32 s{S_T3}, s{S_T0}, s{S_IDX}")
    A(f"s_lshl_b32 s{S_T0}, s{S_T}, 7"); A(f"s_lshl_b32 s{S_T1}, s{S_T3}, 3"); A(f"s_add_u32 s{S_T0}, s{S_T0}, s{S_T1}"); A(f"s_lshl_b32 s{S_T1}, s{S_WV}, 1"); A(f"s_add_u32 s{S_T2}, s{S_T0}, s{S_T1}")
    A(f"s_lshl_b32 s{S_T0}, s{S_T2}, 10"); A(f"v_add_u32 v{VT+5}, s{S_T0}, v{VL16}")
    if TLB_TOUCH:
        A.wait("kptr")
        A("s_mov_b64 exec, 0x1ff")
        A.vm(f"global_load_dword v{WF+29}, v[{WF+30}:{WF+31}], off offset:128")
        A("s_mov_b64 exec, -1")
    A.stamp(1, "pro")
    if GATE:
        A(f"s_load_dwordx2 s[{S_E0}:{S_E0+1}], s[0:1], 64")
    A("s_waitcnt lgkmcnt(0)")
    if GATE:
        A(f"s_cmp_eq_u32 s{S_WV}, 0"); A("s_cbranch_scc0 K12_gate_w")
        A(f"v_mov_b32 v{VT+8}, 192"); A(f"v_mov_b32 v{VT+9}, 1"); A("s_mov_b64 exec, 1")
        A(f"!global_atomic_add v{VT+8}, v{VT+9}, s[{S_E0}:{S_E0+1}] sc1")
        A(f"s_mov_b32 s{S_T1+0}, 0") if False else None
        A(f"s_mov_b32 s3, 0")
        A("K12_gate_l:")
        A(f"!global_load_dword v{VT+9}, v{VT+8}, s[{S_E0}:{S_E0+1}] sc1"); A("s_waitcnt vmcnt(0)")
        A(f"v_readfirstlane_b32 s{S_E2}, v{VT+9}"); A("s_add_u32 s3, s3, 1"); A(f"s_cmp_ge_u32 s3, {POLL_MAX}"); A("s_cbranch_scc1 K12_gate_x")
        A(f"s_cmp_ge_u32 s{S_E2}, 256"); A("s_cbranch_scc1 K12_gate_x"); A(f"s_sleep {GATE}"); A("s_branch K12_gate_l")
        A("K12_gate_x:"); A("s_mov_b64 exec, -1")
        A("K12_gate_w:"); A("s_barrier")
    if TLB_TOUCH:
        A(f"v_mov_b32 v{WF+28}, 24576"); A("s_mov_b64 exec, 1")
        A.vm(f"global_load_dword v{WF+32}, v{WF+28}, s[{S_WSP}:{S_WSP+1}]")
        A("s_mov_b64 exec, -1")
    A.stamp(2, "pro")
    if TT3:
        lo, hi = WF+30, WF+31
        A(f"v_mov_b32 v{lo}, s{P_WQ}"); A(f"v_mov_b32 v{hi}, s{P_WQ+1}")
        for ln, p in ((1, P_G), (2, P_U)):
            A(f"v_writelane_b32 v{lo}, s{p}, {ln}"); A(f"v_writelane_b32 v{hi}, s{p+1}, {ln}")
        A("s_mov_b64 exec, 7")
        A.vm(f"global_load_dword v{WF+29}, v[{lo}:{hi}], off")
        A("s_mov_b64 exec, -1")
    A(f"s_mov_b32 s{S_J}, s{S_T4}")
    if not (ZLATE or LATEWS):
        A(f"s_cmp_ge_u32 s2, {NZERO}"); A("s_cbranch_scc1 K12_nozero")
        A(f"s_lshl_b32 s{S_T0}, s2, 12"); A(f"s_add_u32 s{S_T0}, s{S_T0}, {WS_KV}")
        A(f"v_lshlrev_b32 v{VT+6}, 4, v{VTID}"); A(f"v_add_u32 v{VT+6}, s{S_T0}, v{VT+6}")
        for i in range(4): A(f"v_mov_b32 v{VT+8+i}, 0")
        A(f"!global_store_dwordx4 v{VT+6}, v[{VT+8}:{VT+11}], s[{S_WSP}:{S_WSP+1}] sc1")
        A("K12_nozero:")
    SX = WF + 20
    A.vm(f"global_load_dwordx4 v[{SX}:{SX+3}], v{VT+5}, s[{P_X}:{P_X+1}]")
    A.vm(f"global_load_dwordx4 v[{SX+4}:{SX+7}], v{VT+5}, s[{P_X}:{P_X+1}] offset:1024", id="strow")
    A(f"s_lshl_b32 s{S_HB}, s{S_T2}, 2")
    A(f"s_mov_b32 s{S_I1}, s{S_T3}")
    srd(A, S_X, P_X, P_X+1, 2048*1024)

class G1:
    def __init__(self, A, typ):
        self.A = A; self.typ = typ; self.w2 = W2(A, 227 if typ == 'A' else 226)
        self.kinds = ["gu","gu","gu","gu","q"] if typ == "A" else ["k","v","gu","gu","guh"]
        if typ == "A": self.strides = [3584,3584,3584,3584,3072]; self.swz = ["g","u","g","u","q"]
        else: self.strides = [3072,3072,3584,3584,3584]; self.swz = ["q","q","g","u","h"]
    def vow(self, rho):
        key = (self.swz[rho], self.strides[rho])
        for r in range(rho + 1):
            if (self.swz[r], self.strides[r]) == key: return VOW + r
    def Wg(self, h):
        o = []
        if h > 0:
            o.append([f"s_add_u32 s{S_KW}, s{S_KW}, 32", f"s_and_b32 s{S_KW}, s{S_KW}, 511"])
            if self.typ == "B": o.append([f"s_add_u32 s{S_KH}, s{S_KH}, 32", f"s_and_b32 s{S_KH}, s{S_KH}, 511"])
        o.append([f"s_mul_i32 s{S_R30}, s{S_KW}, 3072", f"s_mul_i32 s{S_R35}, s{S_KW}, 3584"])
        if self.typ == "B": o.append([f"s_mul_i32 s{S_RH}, s{S_KH}, 3584"])
        for rho in range(5):
            so = S_RH if self.swz[rho] == "h" else (S_R30 if self.strides[rho] == 3072 else S_R35)
            o.append(("dma", f"s_add_u32 m0, s{S_W1K}, {W_BASE + (h % W_NS)*W_SLOT + rho*4096}",
                      ("vm", f"W{h}_{rho}", f"buffer_load_dwordx4 v{self.vow(rho)}, s[{S_W+4*rho}:{S_W+4*rho+3}], s{so} offen lds")))
        return o
    def Xg(self, sg):
        o = []
        if sg > 0: o.append([f"s_add_u32 s{S_KX}, s{S_KX}, 128", f"s_and_b32 s{S_KX}, s{S_KX}, 1023"])
        o.append([f"s_add_u32 s{S_XO}, s{S_XB}, s{S_KX}"])
        for j in range(4):
            o.append(("dma", f"s_add_u32 m0, s{S_W4K}, {X_BASE + (sg % 3)*X_SLOT + j*1024}",
                      ("vm", f"X{sg}_{j}", f"buffer_load_dwordx4 v{VOX+j}, s[{S_X}:{S_X+3}], s{S_XO} offen lds")))
        return o
    def reads(self, s):
        par = s & 1; kk = s & 3; sg = s >> 2; h = s >> 1; second = s & 1
        xo = (sg % 3)*X_SLOT
        o = [f"ds_read_b128 v[{XF+8*par}:{XF+8*par+3}], v{XA+kk} offset:{xo}", f"ds_read_b128 v[{XF+8*par+4}:{XF+8*par+7}], v{XA+kk} offset:{xo+4096}"]
        for blk, kd in enumerate(self.kinds):
            b = WF + 20*par + 4*blk
            if kd == "guh": o1, o2 = (1024 if second else 0), 256
            else: o1, o2 = (2048 if second else 0), 512
            o1 += (h % W_NS)*W_SLOT
            o.append(f"ds_read_b64_tr_b16 v[{b}:{b+1}], v{TRA+blk} offset:{o1}")
            o.append(f"ds_read_b64_tr_b16 v[{b+2}:{b+3}], v{TRA+blk} offset:{o1+o2}")
        return o
    def mfmas(self, s, order=None):
        par = s & 1; o = []
        for blk in (order or range(5)):
            kd = self.kinds[blk]
            wf = f"v[{WF+20*par+4*blk}:{WF+20*par+4*blk+3}]"
            for tb in range(2):
                xf = f"v[{XF+8*par+4*tb}:{XF+8*par+4*tb+3}]"; a = acc(blk, tb)
                c = "0" if s == 0 else f"v[{a}:{a+15}]"
                if kd in ("k", "v"): o.append(f"v_mfma_f32_32x32x16_bf16 v[{a}:{a+15}], {xf}, {wf}, {c}")
                else: o.append(f"v_mfma_f32_32x32x16_bf16 v[{a}:{a+15}], {wf}, {xf}, {c}")
        return o
    def corr(self):
        o = []
        for blk in range(5):
            for tb in range(2):
                a = acc(blk, tb); cf = ar(ACF+4*blk, 4); mf = ar(AMF+4*tb, 4)
                if self.kinds[blk] in ("k", "v"): o.append(f"v_mfma_f32_32x32x16_bf16 v[{a}:{a+15}], {mf}, {cf}, v[{a}:{a+15}]")
                else: o.append(f"v_mfma_f32_32x32x16_bf16 v[{a}:{a+15}], {cf}, {mf}, v[{a}:{a+15}]")
        return o

    def prologue(self):
        A, typ, kinds = self.A, self.typ, self.kinds
        SZQ, SZG = 512*3072, 512*3584
        A.stamp(3, "pro")
        emit_items(A, self.Xg(0))
        A.stamp(4, "pro")
        if typ == "A":
            A(f"s_lshr_b32 s{S_T0}, s{S_IDX}, 1"); A(f"s_mul_i32 s{S_T0}, s{S_T0}, 7"); A(f"s_and_b32 s{S_T1}, s{S_IDX}, 1"); A(f"s_lshl_b32 s{S_T1}, s{S_T1}, 1")
            A(f"s_add_u32 s{S_T0}, s{S_T0}, s{S_T1}"); A(f"s_lshl_b32 s{S_T0}, s{S_T0}, 7")
            srd_off(A, S_W+0, P_G, P_G+1, f"s{S_T0}", SZG); srd_off(A, S_W+4, P_U, P_U+1, f"s{S_T0}", SZG)
            A(f"s_add_u32 s{S_T0}, s{S_T0}, 128")
            srd_off(A, S_W+8, P_G, P_G+1, f"s{S_T0}", SZG); srd_off(A, S_W+12, P_U, P_U+1, f"s{S_T0}", SZG)
            A(f"s_lshl_b32 s{S_T0}, s{S_IDX}, 7")
            srd_off(A, S_W+16, P_WQ, P_WQ+1, f"s{S_T0}", SZQ)
        else:
            A(f"s_lshl_b32 s{S_T0}, s{S_IDX}, 7"); A(f"s_add_u32 s{S_T0}, s{S_T0}, 1024")
            srd_off(A, S_W+0, P_WQ, P_WQ+1, f"s{S_T0}", SZQ)
            A(f"s_add_u32 s{S_T0}, s{S_T0}, 1024")
            srd_off(A, S_W+4, P_WQ, P_WQ+1, f"s{S_T0}", SZQ)
            A(f"s_lshr_b32 s{S_T0}, s{S_IDX}, 1"); A(f"s_mul_i32 s{S_T0}, s{S_T0}, 7"); A(f"s_and_b32 s{S_T1}, s{S_IDX}, 1")
            A(f"s_add_u32 s{S_T0}, s{S_T0}, s{S_T1}"); A(f"s_add_u32 s{S_T0}, s{S_T0}, 4"); A(f"s_lshl_b32 s{S_T0}, s{S_T0}, 7")
            srd_off(A, S_W+8, P_G, P_G+1, f"s{S_T0}", SZG); srd_off(A, S_W+12, P_U, P_U+1, f"s{S_T0}", SZG)
            A(f"s_lshr_b32 s{S_T0}, s{S_IDX}, 1"); A(f"s_mul_i32 s{S_T0}, s{S_T0}, 7"); A(f"s_add_u32 s{S_T0}, s{S_T0}, 6"); A(f"s_lshl_b32 s{S_T0}, s{S_T0}, 7")
            A(f"s_and_b32 s{S_T1}, s{S_IDX}, 1"); A(f"s_lshl_b32 s{S_T1}, s{S_T1}, 6"); A(f"s_add_u32 s{S_T0}, s{S_T0}, s{S_T1}")
            A(f"s_cmp_ge_u32 s{S_WV}, 2")
            A(f"s_cselect_b32 s{S_T2}, s{P_U}, s{P_G}"); A(f"s_cselect_b32 s{S_T3}, s{P_U+1}, s{P_G+1}")
            srd_off(A, S_W+16, S_T2, S_T3, f"s{S_T0}", SZG)
        t0, t1, t2, t3, t4 = VT, VT+1, VT+2, VT+3, VT+4
        A(f"v_lshrrev_b32 v{t0}, 3, v{VLANE}"); A(f"v_and_b32 v{t1}, 7, v{VLANE}")
        A(f"v_lshrrev_b32 v{t2}, 4, v{VLANE}"); A(f"v_and_b32 v{t2}, 1, v{t2}")
        done = {}
        for rho in range(5):
            key = (self.swz[rho], self.strides[rho])
            if key in done: continue
            done[key] = rho
            if self.swz[rho] == "h":
                A(f"v_lshrrev_b32 v{t3}, 2, v{VLANE}"); A(f"v_and_b32 v{t4}, 3, v{VLANE}")
                A(f"s_lshr_b32 s{S_T0}, s{S_WV}, 1"); A(f"s_lshl_b32 s{S_T0}, s{S_T0}, 1")
                A(f"v_xor_b32 v{t4}, s{S_T0}, v{t4}")
                A(f"v_mul_u32_u24 v{t3}, 3584, v{t3}"); A(f"v_lshlrev_b32 v{t4}, 4, v{t4}"); A(f"v_add_u32 v{VOW+rho}, v{t3}, v{t4}")
            else:
                if self.swz[rho] == "q": A(f"v_lshlrev_b32 v{t3}, 2, v{t2}")
                else:
                    A(f"v_lshlrev_b32 v{t3}, 1, v{t2}")
                    if self.swz[rho] == "u": A(f"v_or_b32 v{t3}, 4, v{t3}")
                A(f"v_xor_b32 v{t3}, v{t1}, v{t3}"); A(f"v_lshlrev_b32 v{t3}, 4, v{t3}")
                A(f"v_mul_u32_u24 v{t4}, {self.strides[rho]}, v{t0}"); A(f"v_add_u32 v{VOW+rho}, v{t3}, v{t4}")
        A.stamp(5, "pro")
        emit_items(A, self.Wg(0)); A.stamp(6, "pro"); emit_items(A, self.Wg(1))
        A.stamp(1); A.stamp(7, "pro")
        A(f"v_lshlrev_b32 v{t3}, 2, v{t2}"); A(f"v_xor_b32 v{t3}, v{t1}, v{t3}"); A(f"v_lshlrev_b32 v{t3}, 4, v{t3}")
        A(f"v_lshlrev_b32 v{t4}, 10, v{t0}"); A(f"v_add_u32 v{VDM}, v{t3}, v{t4}")
        A(f"v_add_u32 v{self.w2.vdm2}, 8192, v{VDM}")
        A(f"s_lshl_b32 s{S_T0}, s{S_J}, 7"); A(f"s_mul_i32 s{S_T1}, s{S_WV}, {448*1024}"); A(f"s_add_u32 s{S_T0}, s{S_T0}, s{S_T1}")
        srd_off(A, S_WD, P_D, P_D+1, f"s{S_T0}", 1792*1024)
        A(f"s_mul_i32 s{S_LB}, s{S_WV}, {NSL*2048}"); A(f"s_add_u32 s{S_LB}, s{S_LB}, {W2IN}")
        if G2MAP:
            A(f"s_lshr_b32 s{S_T0}, s2, 3"); A(f"s_and_b32 s{S_T1}, s{S_T0}, 7"); A(f"s_mul_i32 s{S_T1}, s{S_T1}, 3"); A(f"s_lshr_b32 s{S_T0}, s{S_T0}, 3"); A(f"s_mul_i32 s{S_T0}, s{S_T0}, 7")
        else:
            A(f"s_lshr_b32 s{S_T0}, s2, 3"); A(f"s_and_b32 s{S_T1}, s{S_T0}, 3"); A(f"s_mul_i32 s{S_T1}, s{S_T1}, 7"); A(f"s_lshr_b32 s{S_T0}, s{S_T0}, 2"); A(f"s_mul_i32 s{S_T0}, s{S_T0}, 3")
        A(f"s_add_u32 s{S_RHO}, s{S_T0}, s{S_T1}"); A(f"s_cmp_ge_u32 s{S_RHO}, 28"); A(f"s_cselect_b32 s{S_T0}, 28, 0"); A(f"s_sub_u32 s{S_RHO}, s{S_RHO}, s{S_T0}")
        if not W2ROT: A(f"s_mov_b32 s{S_RHO}, 0")
        A(f"s_lshl_b32 s{S_W2R}, s{S_RHO}, 14")
        A(f"s_load_dwordx2 s[{S_DBG}:{S_DBG+1}], s[0:1], 64")
        A(f"s_mov_b32 s{S_CG}, s{S_I1}")
        A(f"s_lshr_b32 s{S_T0}, s{S_T}, 3"); A(f"s_lshl_b32 s{S_T0}, s{S_T0}, 1"); A(f"s_add_u32 s{S_KSC}, s{S_T0}, s{S_WM}")
        A(f"v_and_b32 v{t0}, 31, v{VLANE}")
        A(f"v_and_b32 v{t1}, 15, v{t0}"); A(f"v_lshrrev_b32 v{t2}, 4, v{t0}")
        def cs_addr(dst, soff_code, lane_kind):
            soff_code()
            if lane_kind == "gu":
                A(f"v_mul_u32_u24 v{t3}, 1792, v{t2}"); A(f"v_add_u32 v{t3}, v{t3}, v{t1}")
            elif lane_kind == "kv":
                A(f"v_lshlrev_b32 v{t3}, 9, v{t2}"); A(f"v_add_u32 v{t3}, v{t3}, v{t1}")
            else: A(f"v_mov_b32 v{t3}, v{t0}")
            A(f"v_add_u32 v{t3}, s{S_T0}, v{t3}"); A(f"v_lshlrev_b32 v{t3}, 2, v{t3}"); A(f"v_add_u32 v{dst}, {WS_CS}, v{t3}")
        if typ == "A":
            cs_addr(VC1, lambda: (A(f"s_lshr_b32 s{S_T0}, s{S_IDX}, 1"), A(f"s_mul_i32 s{S_T0}, s{S_T0}, 7"), A(f"s_and_b32 s{S_T1}, s{S_IDX}, 1"), A(f"s_lshl_b32 s{S_T1}, s{S_T1}, 1"), A(f"s_add_u32 s{S_T0}, s{S_T0}, s{S_T1}"),
                                  A(f"s_add_u32 s{S_T0}, s{S_T0}, s{S_WN}"), A(f"s_lshl_b32 s{S_T0}, s{S_T0}, 6"), A(f"s_add_u32 s{S_T0}, s{S_T0}, 1536")), "gu")
            cs_addr(VC2, lambda: (A(f"s_lshl_b32 s{S_T0}, s{S_IDX}, 6"), A(f"s_lshl_b32 s{S_T1}, s{S_WN}, 5"), A(f"s_add_u32 s{S_T0}, s{S_T0}, s{S_T1}")), "q")
            self.csa = [(VC1, 0), (VC1, 64), (VC1, 128), (VC1, 192), (VC2, 0)]
        else:
            cs_addr(VC2, lambda: (A(f"s_lshl_b32 s{S_T0}, s{S_IDX}, 6"), A(f"s_lshl_b32 s{S_T1}, s{S_WN}, 5"), A(f"s_add_u32 s{S_T0}, s{S_T0}, s{S_T1}"), A(f"s_add_u32 s{S_T0}, s{S_T0}, 512")), "q")
            cs_addr(VC1, lambda: (A(f"s_lshr_b32 s{S_T0}, s{S_IDX}, 1"), A(f"s_mul_i32 s{S_T0}, s{S_T0}, 7"), A(f"s_and_b32 s{S_T1}, s{S_IDX}, 1"), A(f"s_add_u32 s{S_T0}, s{S_T0}, s{S_T1}"), A(f"s_add_u32 s{S_T0}, s{S_T0}, 4"), A(f"s_lshl_b32 s{S_T0}, s{S_T0}, 6"), A(f"s_lshl_b32 s{S_T1}, s{S_WN}, 5"), A(f"s_add_u32 s{S_T0}, s{S_T0}, s{S_T1}"), A(f"s_add_u32 s{S_T0}, s{S_T0}, 1536")), "gu")
            cs_addr(VC3, lambda: (A(f"s_lshr_b32 s{S_T0}, s{S_IDX}, 1"), A(f"s_mul_i32 s{S_T0}, s{S_T0}, 7"), A(f"s_add_u32 s{S_T0}, s{S_T0}, 6"), A(f"s_lshl_b32 s{S_T0}, s{S_T0}, 6"),
                                  A(f"s_and_b32 s{S_T1}, s{S_IDX}, 1"), A(f"s_lshl_b32 s{S_T1}, s{S_T1}, 1"), A(f"s_add_u32 s{S_T1}, s{S_T1}, s{S_WN}"), A(f"s_lshl_b32 s{S_T1}, s{S_T1}, 4"),
                                  A(f"s_add_u32 s{S_T0}, s{S_T0}, s{S_T1}"), A(f"s_add_u32 s{S_T0}, s{S_T0}, 1536")), "gu")
            self.csa = [(VC2, 0), (VC2, 2048), (VC1, 0), (VC1, 64), (VC3, 0)]
        A(f"v_mov_b32 v{t3}, 0x3f803f80")
        for i in range(4): A(f"v_accvgpr_write_b32 a{A_ONES+i}, v{t3}")
        srd_off(A, S_H, S_WSP, S_WSP+1, WS_H, WS_H + H_BYTES)
        G, p, r, c = t0, t1, t2, t3
        A(f"v_lshrrev_b32 v{G}, 4, v{VLANE}"); A(f"v_and_b32 v{G}, 1, v{G}")
        A(f"v_lshrrev_b32 v{p}, 5, v{VLANE}")
        A(f"v_and_b32 v{r}, 15, v{VLANE}"); A(f"v_lshrrev_b32 v{r}, 2, v{r}")
        A(f"v_and_b32 v{c}, 3, v{VLANE}")
        k_, rb, u1, u2 = t4, t4+1, t4+2, t4+3
        A(f"v_lshlrev_b32 v{k_}, 3, v{p}"); A(f"v_add_u32 v{k_}, v{k_}, v{r}")
        A(f"v_lshrrev_b32 v{rb}, 1, v{r}"); A(f"v_and_b32 v{rb}, 1, v{rb}")
        for blk, kd in enumerate(kinds):
            d = TRA + blk
            if typ == "A" and kd == "gu" and blk > 0:
                A(f"v_xor_b32 v{d}, {blk*32}, v{TRA}"); continue
            if typ == "B" and blk == 1:
                A(f"v_add_u32 v{d}, 4096, v{d-1}"); continue
            if typ == "B" and blk == 3:
                A(f"v_xor_b32 v{d}, 32, v{d-1}"); continue
            if kd == "guh":
                A(f"v_lshrrev_b32 v{u1}, 1, v{c}"); A(f"s_lshl_b32 s{S_T0}, s{S_WN}, 1"); A(f"v_add_u32 v{u1}, s{S_T0}, v{u1}")
                A(f"v_lshlrev_b32 v{u2}, 1, v{G}"); A(f"v_xor_b32 v{u1}, v{u1}, v{u2}"); A(f"v_lshlrev_b32 v{u1}, 4, v{u1}")
                A(f"v_lshlrev_b32 v{u2}, 6, v{k_}"); A(f"v_add_u32 v{u1}, v{u1}, v{u2}")
                A(f"v_lshlrev_b32 v{u2}, 11, v{G}"); A(f"v_add_u32 v{u1}, v{u1}, v{u2}")
                A(f"v_add_u32 v{u1}, {W_BASE + 4*4096}, v{u1}")
            else:
                if kd in ("q", "k"):
                    A(f"s_lshl_b32 s{S_T0}, s{S_WN}, 1"); A(f"v_add_u32 v{u1}, s{S_T0}, v{G}")
                elif typ == "A": A(f"v_mov_b32 v{u1}, 0")
                else:
                    A(f"s_lshl_b32 s{S_T0}, s{S_WN}, 1"); A(f"v_mov_b32 v{u1}, s{S_T0}")
                A(f"v_lshlrev_b32 v{u1}, 1, v{u1}"); A(f"v_lshrrev_b32 v{u2}, 1, v{c}"); A(f"v_add_u32 v{u1}, v{u1}, v{u2}")
                if kd in ("q", "k"): A(f"v_lshlrev_b32 v{u2}, 2, v{rb}")
                else:
                    A(f"v_lshlrev_b32 v{u2}, 1, v{rb}"); A(f"v_lshlrev_b32 v{d}, 2, v{G}"); A(f"v_or_b32 v{u2}, v{u2}, v{d}")
                A(f"v_xor_b32 v{u1}, v{u1}, v{u2}"); A(f"v_lshlrev_b32 v{u1}, 4, v{u1}")
                A(f"v_lshlrev_b32 v{u2}, 7, v{k_}"); A(f"v_add_u32 v{u1}, v{u1}, v{u2}")
                if kd == "q": A(f"v_add_u32 v{u1}, {W_BASE + 4*4096}, v{u1}")
                elif kd == "k": A(f"v_add_u32 v{u1}, {W_BASE}, v{u1}")
                else:
                    if typ == "A":
                        A(f"s_lshl_b32 s{S_T0}, s{S_WN}, 13"); A(f"s_add_u32 s{S_T0}, s{S_T0}, {W_BASE}")
                    else: A(f"s_mov_b32 s{S_T0}, {W_BASE + 2*4096}")
                    A(f"v_lshlrev_b32 v{u2}, 12, v{G}"); A(f"v_add_u32 v{u1}, v{u1}, v{u2}"); A(f"v_add_u32 v{u1}, s{S_T0}, v{u1}")
            A(f"v_and_b32 v{u2}, 1, v{c}"); A(f"v_lshlrev_b32 v{u2}, 3, v{u2}"); A(f"v_add_u32 v{d}, v{u1}, v{u2}")
        A(f"v_lshlrev_b32 v{u1}, 2, v{p}"); A(f"v_add_u32 v{u1}, v{u1}, v{r}"); A(f"v_lshlrev_b32 v{u1}, 7, v{u1}")
        A(f"v_lshlrev_b32 v{u2}, 1, v{G}"); A(f"v_lshrrev_b32 v{VTR}, 1, v{c}"); A(f"v_add_u32 v{u2}, v{u2}, v{VTR}")
        A(f"v_lshlrev_b32 v{VTR}, 2, v{rb}"); A(f"v_xor_b32 v{u2}, v{u2}, v{VTR}"); A(f"v_lshlrev_b32 v{u2}, 4, v{u2}"); A(f"v_add_u32 v{u1}, v{u1}, v{u2}")
        A(f"v_and_b32 v{u2}, 1, v{c}"); A(f"v_lshlrev_b32 v{u2}, 3, v{u2}"); A(f"v_add_u32 v{u1}, v{u1}, v{u2}")
        A(f"v_add_u32 v{VTR}, s{S_LB}, v{u1}"); A(f"v_xor_b32 v{VTR1}, 64, v{VTR}")
        A(f"v_and_b32 v{u1}, 31, v{VLANE}"); A(f"s_lshl_b32 s{S_T0}, s{S_WM}, 6"); A(f"v_add_u32 v{u1}, s{S_T0}, v{u1}")
        A(f"v_lshrrev_b32 v{u2}, 1, v{u1}"); A(f"v_and_b32 v{u2}, 7, v{u2}"); A(f"v_xor_b32 v{u2}, v{u2}, v{p}"); A(f"v_lshlrev_b32 v{u2}, 4, v{u2}")
        A(f"v_lshlrev_b32 v{u1}, 7, v{u1}"); A(f"v_add_u32 v{u1}, v{u1}, v{u2}")
        for kk in range(4): A(f"v_xor_b32 v{XA+kk}, {kk*32}, v{u1}")
        if X1_EARLY: emit_items(A, self.Xg(1))
        if TT_AFTER:
            A(f"v_mov_b32 v{WF+32}, 0"); A("s_mov_b64 exec, 1")
            if TT_AFTER & 1: A.vm(f"buffer_load_dword a224, v{WF+32}, s[{S_WD}:{S_WD+3}], 0 offen")
            if TT_AFTER & 2: A.vm(f"global_load_dword a225, v{WF+32}, s[{P_WO}:{P_WO+1}]")
            if TT_AFTER & 4: A.vm(f"global_load_dword a226, v{WF+32}, s[{P_O}:{P_O+1}]")
            A("s_mov_b64 exec, -1")
        SX = WF + 20
        A.wait("strow")
        P0, P1, Q0, Q1, U = VT, VT+2, VT+4, VT+6, VT+8
        for tok, (P, Q) in enumerate(((P0, Q0), (P1, Q1))):
            for i in range(4):
                src = SX + 4*tok + i
                A(f"v_lshlrev_b32 v{U}, 16, v{src}"); A(f"v_and_b32 v{U+1}, 0xffff0000, v{src}")
                if i == 0:
                    A(f"v_pk_mul_f32 v[{Q}:{Q+1}], v[{U}:{U+1}], v[{U}:{U+1}]"); A(f"v_mov_b32 v{P}, v{U}"); A(f"v_mov_b32 v{P+1}, v{U+1}")
                else:
                    A(f"v_pk_add_f32 v[{P}:{P+1}], v[{P}:{P+1}], v[{U}:{U+1}]"); A(f"v_pk_fma_f32 v[{Q}:{Q+1}], v[{U}:{U+1}], v[{U}:{U+1}], v[{Q}:{Q+1}]")
        for r_ in (P0, P1, Q0, Q1): A(f"v_add_f32 v{r_}, v{r_}, v{r_+1}")
        for dpp in ("row_shr:1 row_mask:0xf bank_mask:0xf", "row_shr:2 row_mask:0xf bank_mask:0xf", "row_shr:4 row_mask:0xf bank_mask:0xf", "row_shr:8 row_mask:0xf bank_mask:0xf",
                    "row_bcast:15 row_mask:0xa bank_mask:0xf", "row_bcast:31 row_mask:0xc bank_mask:0xf"):
            for r_ in (P0, P1, Q0, Q1): A(f"v_add_f32_dpp v{r_}, v{r_}, v{r_} {dpp}")
        A(f"v_mul_f32 v{P0}, 0x3b000000, v{P0}"); A(f"v_mul_f32 v{P0+1}, 0x3b000000, v{P1}")
        A(f"v_mul_f32 v{Q0}, 0x3b000000, v{Q0}"); A(f"v_mul_f32 v{Q0+1}, 0x3b000000, v{Q1}")
        for j in range(2):
            A(f"v_fma_f32 v{Q0+j}, -v{P0+j}, v{P0+j}, v{Q0+j}"); A(f"v_max_f32 v{Q0+j}, 0, v{Q0+j}"); A(f"v_add_f32 v{Q0+j}, 0x3727c5ac, v{Q0+j}"); A(f"v_rsq_f32 v{Q0+j}, v{Q0+j}")
        A(f"v_mov_b32 v{U}, s{S_HB}"); A(f"v_add_u32 v{U+1}, {WS_R}, v{U}")
        st_item = [f"s_mov_b64 s[{S_E0}:{S_E0+1}], exec", "s_mov_b32 exec_lo, 0", "s_mov_b32 exec_hi, 0x80000000",
                   ("vm", None, f"global_store_dwordx2 v{U}, v[{P0}:{P0+1}], s[{S_WSP}:{S_WSP+1}] sc1"),
                   ("vm", "stst", f"global_store_dwordx2 v{U+1}, v[{Q0}:{Q0+1}], s[{S_WSP}:{S_WSP+1}] sc1"),
                   f"s_mov_b64 exec, s[{S_E0}:{S_E0+1}]"]
        self.st_item = st_item
        if not LATEWS:
            for x in st_item: A(x)
        A.stamp(2)
        A("s_waitcnt lgkmcnt(0)")
        A.wait("X0_3", "W0_4")
        A("s_barrier")
        A.stamp(3); A.stamp(8, "pro")
        for s in self.reads(0): A(s)
        A.stamp(1, "init")
        if ZLATE and not LATEWS:
            L = f"K12{typ}_nozero"
            A(f"s_cmp_ge_u32 s2, {NZERO}"); A(f"s_cbranch_scc1 {L}")
            A(f"s_lshl_b32 s{S_T0}, s2, 12"); A(f"s_add_u32 s{S_T0}, s{S_T0}, {WS_KV}")
            A(f"v_lshlrev_b32 v{VT+6}, 4, v{VTID}"); A(f"v_add_u32 v{VT+6}, s{S_T0}, v{VT+6}")
            for i in range(4): A(f"v_mov_b32 v{VT+0+i}, 0")
            A(("vmu", "zst", f"global_store_dwordx4 v{VT+6}, v[{VT+0}:{VT+3}], s[{S_WSP}:{S_WSP+1}] sc1"))
            A(f"{L}:")
        elif not LATEWS:
            for x in self.sig(f"s_cmp_lt_u32 s2, {NZERO}", S_DBG, DBG_INIT, None, "init"): A(x)
        A.stamp(2, "init")

    def sig(self, cond, base, off_imm, off_sgpr, tag):
        L = f"K12{self.typ}_sig_{tag}"
        o = []
        if cond: o += [cond, f"s_cbranch_scc0 {L}"]
        o += [f"s_cmp_eq_u32 s{S_WV}, 0", f"s_cbranch_scc0 {L}"]
        if off_sgpr is None: o += [f"v_mov_b32 v{VT+9}, {off_imm}"]
        else: o += [f"s_lshl_b32 s{S_T4}, s{off_sgpr}, 7", f"s_add_u32 s{S_T4}, s{S_T4}, {off_imm}", f"v_mov_b32 v{VT+9}, s{S_T4}"]
        o += [f"v_mov_b32 v{VT+8}, 1", f"s_mov_b64 s[{S_E0}:{S_E0+1}], exec", "s_mov_b64 exec, 1",
              f"!global_atomic_add v{VT+9}, v{VT+8}, s[{base}:{base+1}] sc1", f"s_mov_b64 exec, s[{S_E0}:{S_E0+1}]", f"{L}:"]
        return o

    def spin(self, tag, base, vaddr, expect):
        L = f"K12{self.typ}_spin_{tag}"
        return [f"s_mov_b32 s{S_T3}, 0", f"{L}:", f"!global_load_dword v{VT+10}, v{vaddr}, s[{base}:{base+1}] sc1", "s_waitcnt vmcnt(0)",
                f"v_readfirstlane_b32 s{S_T4}, v{VT+10}", f"s_add_u32 s{S_T3}, s{S_T3}, 1", f"s_cmp_ge_u32 s{S_T3}, {POLL_MAX}", f"s_cbranch_scc1 {L}_x",
                f"s_cmp_ge_u32 s{S_T4}, {expect}", f"s_cbranch_scc1 {L}_x", "s_sleep 2", f"s_branch {L}", f"{L}_x:"]

    def w0(self, tag, code):
        L = f"K12{self.typ}_w0_{tag}"
        return [f"s_cmp_eq_u32 s{S_WV}, 0", f"s_cbranch_scc0 {L}"] + code + [f"{L}:"]

    def pre_barrier(self, h):
        typ = self.typ; T = VT
        if h == H_INIT:
            return [("stamp", 3, "init")] + self.w0("initchk", [("wait", ["initld"]), f"v_readfirstlane_b32 s{S_T4}, v{T+10}", "s_nop 0", f"s_cmp_ge_u32 s{S_T4}, {NZERO}", f"s_cbranch_scc1 K12{typ}_initok",
                                       f"v_mov_b32 v{T+9}, {DBG_INIT}"] + self.spin("init", S_DBG, T+9, NZERO) + [f"K12{typ}_initok:"]) + [("stamp", 4, "init")]
        if h == H_CNT:
            return [("stamp", 6, "init")] + self.w0("cntchk", [("wait", ["cntld"]), f"v_readfirstlane_b32 s{S_T4}, v{T+5}", "s_nop 0", f"s_cmp_ge_u32 s{S_T4}, 16", f"s_cbranch_scc1 K12{typ}_stok"]
                           + self.spin("st", S_WSP, T+7, 16) + [f"K12{typ}_stok:",
                           f"v_readfirstlane_b32 s{S_T4}, v{T+6}", "s_nop 0", f"s_cmp_ge_u32 s{S_T4}, 16", f"s_cbranch_scc1 K12{typ}_csok"]
                           + self.spin("cs", S_WSP, T+8, 16) + [f"K12{typ}_csok:"]) + [("stamp", 7, "init")]
        return []

    def oneshot_items(self, add, at):
        typ = self.typ; wsp = f"s[{S_WSP}:{S_WSP+1}]"; dbg = f"s[{S_DBG}:{S_DBG+1}]"
        T = VT
        for s in range(4):
            par = s & 1
            it = [f"s_cmp_eq_u32 s{S_KSC}, {s}", f"s_cbranch_scc0 K12{typ}_nocs{s}"]
            for blk in range(5):
                b = WF + 20*par + 4*blk
                it.append(f"v_mfma_f32_32x32x16_bf16 a[{CS_TMP+16*blk}:{CS_TMP+16*blk+15}], a[{A_ONES}:{A_ONES+3}], v[{b}:{b+3}], 0")
            it.append(f"K12{typ}_nocs{s}:")
            self.fixed.setdefault(s, []).append(it)
        if LATEWS:
            L = f"K12{typ}_nozero"
            z = [f"s_cmp_ge_u32 s2, {NZERO}", f"s_cbranch_scc1 {L}", f"s_lshl_b32 s{S_T4}, s2, 12", f"s_add_u32 s{S_T4}, s{S_T4}, {WS_KV}",
                 f"v_lshlrev_b32 v{T+6}, 4, v{VTID}", f"v_add_u32 v{T+6}, s{S_T4}, v{T+6}"] + [f"v_accvgpr_write_b32 a{224+i}, 0" for i in range(4)] + [
                 "s_nop 1", ("vmu", "zst", f"global_store_dwordx4 v{T+6}, a[224:227], {wsp} sc1"), f"{L}:"]
            self.fixed.setdefault(LATEWS, []).append(z)
            self.fixed.setdefault(LATEWS + 1, []).append(self.st_item)
        self.fixed.setdefault(K_INITLD, []).append(self.w0("initld", [f"v_mov_b32 v{T+9}, {DBG_INIT}", f"s_mov_b64 s[{S_E0}:{S_E0+1}], exec", "s_mov_b64 exec, 1",
                                      ("vmu", "initld", f"global_load_dword v{T+10}, v{T+9}, {dbg} sc1"), f"s_mov_b64 exec, s[{S_E0}:{S_E0+1}]"]))
        it = [[f"v_accvgpr_read_b32 v{T+blk}, a{CS_TMP+16*blk}"] for blk in range(5)]
        at_ = [f"s_mov_b64 s[{S_E0}:{S_E0+1}], exec", "s_mov_b32 exec_hi, 0"]
        for blk in range(5):
            va, off = self.csa[blk]
            at_.append(("vm", f"csat{blk}", f"global_atomic_add_f32 v{va}, v{T+blk}, {wsp} offset:{off}"))
        at_.append(f"s_mov_b64 exec, s[{S_E0}:{S_E0+1}]")
        add(at(K_CSAT), it + [at_])
        self.fixed.setdefault(K_CNTLD, []).append(self.w0("cntld", [f"s_lshl_b32 s{S_T4}, s{S_T}, 7", f"s_add_u32 s{S_T4}, s{S_T4}, {WS_STCNT}", f"v_mov_b32 v{T+7}, s{S_T4}",
                          f"s_lshl_b32 s{S_T4}, s{S_CG}, 7", f"s_add_u32 s{S_T4}, s{S_T4}, {WS_CSCNT}", f"v_mov_b32 v{T+8}, s{S_T4}",
                          f"s_mov_b64 s[{S_E0}:{S_E0+1}], exec", "s_mov_b64 exec, 1",
                          f"!global_load_dword v{T+5}, v{T+7}, {wsp} sc1", ("vmu", "cntld", f"global_load_dword v{T+6}, v{T+8}, {wsp} sc1"),
                          f"s_mov_b64 exec, s[{S_E0}:{S_E0+1}]"]))
        VM = T; VCS = T + 2; VRB = T + 7
        lds = [[f"v_and_b32 v{T+8}, 31, v{VLANE}", f"s_lshl_b32 s{S_T4}, s{S_T}, 7", f"s_lshl_b32 s{S_T3}, s{S_WM}, 6", f"s_add_u32 s{S_T4}, s{S_T4}, s{S_T3}"],
               [f"v_add_u32 v{T+8}, s{S_T4}, v{T+8}", f"v_lshlrev_b32 v{T+8}, 2, v{T+8}", f"v_add_u32 v{T+9}, {WS_R}, v{T+8}"],
               [("vm", None, f"global_load_dword v{VM}, v{T+8}, {wsp} sc1")], [("vm", None, f"global_load_dword v{VM+1}, v{T+8}, {wsp} offset:128 sc1")],
               [("vm", None, f"global_load_dword v{VR}, v{T+9}, {wsp} sc1")], [("vm", None, f"global_load_dword v{VR+1}, v{T+9}, {wsp} offset:128 sc1")]]
        for blk in range(5):
            va, off = self.csa[blk]
            lds.append([("vm", "csld" if blk == 4 and typ == "A" else None, f"global_load_dword v{VCS+blk}, v{va}, {wsp} offset:{off} sc1")])
        if typ == "B":
            lds.append([f"s_lshl_b32 s{S_T4}, s{S_T}, 7", f"v_add_u32 v{T+8}, s{S_T4}, v{VTID}", f"v_lshlrev_b32 v{T+8}, 2, v{T+8}", f"v_add_u32 v{T+8}, {WS_R}, v{T+8}"])
            lds.append([("vm", "csld", f"global_load_dword v{VRB}, v{T+8}, {wsp} sc1")])
        add(at(2*H_CNT-1, 1), lds)
        if K_PT:
            add(at(K_PT), [[f"s_lshl_b32 s{S_T4}, s{S_TAU}, 16", f"s_lshl_b32 s{S_T3}, s{S_J}, 7", f"s_add_u32 s{S_T4}, s{S_T4}, s{S_T3}", f"v_mov_b32 v{T+9}, s{S_T4}"],
                           [f"s_mov_b64 s[{S_E0}:{S_E0+1}], exec", "s_mov_b64 exec, 1", ("vm", None, f"global_load_dword a224, v{T+9}, s[{P_O}:{P_O+1}]"), f"s_mov_b64 exec, s[{S_E0}:{S_E0+1}]"],
                           [f"v_mov_b32 v{T+9}, 0"],
                           [f"s_mov_b64 s[{S_E0}:{S_E0+1}], exec", "s_mov_b64 exec, 1", ("vm", None, f"global_load_dword a227, v{T+9}, s[{P_WO}:{P_WO+1}]"), f"s_mov_b64 exec, s[{S_E0}:{S_E0+1}]"]])
        if K_WOPF:
            it = [[f"s_lshl_b32 s{S_T4}, s{S_WV}, 17", f"s_and_b32 s{S_T3}, s{S_TAU}, 3", f"s_lshl_b32 s{S_T3}, s{S_T3}, 15", f"s_add_u32 s{S_T4}, s{S_T4}, s{S_T3}"],
                  [f"s_lshl_b32 s{S_T3}, s{S_J}, 7", f"s_add_u32 s{S_T4}, s{S_T4}, s{S_T3}", f"v_add_u32 v{T+9}, s{S_T4}, v{VDM}"]]
            for k in range(4):
                it.append([("vm", None, f"global_load_dwordx4 a[224:227], v{T+9}, s[{P_WO}:{P_WO+1}]")] + ([f"v_add_u32 v{T+9}, 8192, v{T+9}"] if k < 3 else []))
            add(at(K_WOPF), it)
        if CODE_PF2:
            add(at(CODE_PF2), [[f"s_getpc_b64 s[{S_E2}:{S_E2+1}]", f"K12{typ}_pc2:", f"s_lshr_b32 s{S_T4}, s2, 3", f"s_lshl_b32 s{S_T4}, s{S_T4}, 2", f"s_add_u32 s{S_T4}, s{S_T4}, s{S_WV}"],
                               [f"s_min_u32 s{S_T4}, s{S_T4}, ((K12_end-K12{typ}_pc2)>>10)-1", f"s_lshl_b32 s{S_T4}, s{S_T4}, 10", f"v_add_u32 v{T+9}, s{S_T4}, v{VL16}"],
                               [("vm", None, f"global_load_dwordx4 a[224:227], v{T+9}, s[{S_E2}:{S_E2+1}]")]])
        tt = T + 8; b = T + 10
        items = [[("wait", ["csld"])], [f"v_cmp_gt_u32 vcc, 32, v{VLANE}", "s_nop 1"]]
        for tb in range(2):
            items += [[f"v_cndmask_b32 v{tt}, 0, v{VM+tb}, vcc"], [f"v_cvt_pk_bf16_f32 v{b}, v{tt}, v{tt}"],
                      [f"v_and_b32 v{tt+1}, 0xffff0000, v{b}"], [f"v_sub_f32 v{tt+1}, v{tt}, v{tt+1}"],
                      [f"v_cvt_pk_bf16_f32 v{b+1}, v{tt+1}, 0"],
                      [f"v_accvgpr_write_b32 a{AMF+4*tb}, v{b}"], [f"v_accvgpr_write_b32 a{AMF+4*tb+1}, v{b+1}"],
                      [f"v_accvgpr_write_b32 a{AMF+4*tb+2}, 0"], [f"v_accvgpr_write_b32 a{AMF+4*tb+3}, 0"]]
        for blk in range(5):
            items += [[f"v_cndmask_b32 v{tt}, 0, v{VCS+blk}, vcc"], [f"v_sub_f32 v{tt}, 0, v{tt}"],
                      [f"v_cvt_pk_bf16_f32 v{b+1}, v{tt}, 0"], [f"v_lshlrev_b32 v{tt+1}, 16, v{b+1}"], [f"v_sub_f32 v{tt+1}, v{tt}, v{tt+1}"],
                      [f"v_cvt_pk_bf16_f32 v{b}, v{tt}, v{tt+1}"],
                      [f"v_accvgpr_write_b32 a{ACF+4*blk}, v{b}"], [f"v_accvgpr_write_b32 a{ACF+4*blk+1}, v{b+1}"],
                      [f"v_accvgpr_write_b32 a{ACF+4*blk+2}, 0"], [f"v_accvgpr_write_b32 a{ACF+4*blk+3}, 0"]]
        if typ == "B":
            items += [[f"v_lshlrev_b32 v{tt}, 2, v{VTID}"], [f"v_add_u32 v{tt}, {LDS_R}, v{tt}"],
                      [f"v_cmp_gt_u32 vcc, 128, v{VTID}", f"s_and_saveexec_b64 s[{S_E0}:{S_E0+1}], vcc", f"ds_write_b32 v{tt}, v{VRB}", f"s_mov_b64 exec, s[{S_E0}:{S_E0+1}]"]]
        add(at(K_RANK), items)

    def loop(self):
        A = self.A
        self.loop_start = len(A.l)
        steps = []
        for s in range(32):
            if s == CORR_AT: steps.append(("c", None))
            steps.append(("k", s))
        order_last = [b for b, kd in enumerate(self.kinds) if kd in ("gu","guh")] + [b for b, kd in enumerate(self.kinds) if kd not in ("gu","guh")]
        idx_of = {st: i for i, st in enumerate(steps)}
        def at(s, g=0): return (idx_of[("k", s)], g)
        flex = []; flex2 = []
        def add(pos, items):
            for it in items: flex.append((pos, it))
        def add2(pos, items):
            for it in items: flex2.append((pos, it))
        add(at(0), self.Wg(2))
        if not X1_EARLY: add(at(0), self.Xg(1))
        add(at(1, 1), self.Xg(2))
        for h in range(1, 14): add(at(2*h-1, 1), self.Wg(h+2))
        for sg in range(1, 6): add(at(4*sg-1, 1), self.Xg(sg+2))
        self.fixed = {}
        tagD = {}; tagR = {}; keep = []; placedR = {}
        self.oneshot_items(add, at)
        self.w2_done_R = []
        for i in range(N_IN):
            dd = self.w2.D(i); tagD[id(dd[0])] = i; keep.append(dd)
            add2(at(min(i+W2_START, 31)), dd)
            rr = self.w2.R(i); tagR[id(rr[-1])] = i; keep.append(rr)
            add2(at(min(i+W2_START+DLAG, 31)), rr); self.w2_done_R.append(i)
        flex.sort(key=lambda x: x[0])
        gaps_all = []
        flex2.sort(key=lambda x: x[0])
        queues = [list(flex), list(flex2)]
        for si, st in enumerate(steps):
            gaps = [[] for _ in range(10)]
            head = []
            if st[0] == "k":
                s = st[1]
                M = self.mfmas(s, order_last if s == 31 else None)
                head = ["s_waitcnt lgkmcnt(0)"]
                odd = s & 1
                if odd:
                    h = (s + 1)//2
                    if h <= 15:
                        ids = [f"W{h}_4"] + ([f"X{h//2}_3"] if h % 2 == 0 else [])
                        if h == H_INIT: ids.append("stst")
                        if (ZLATE or LATEWS) and h == H_Z: ids.append("zst")
                        if h == H_CS: ids.append("csat4")
                        if STAMP and SMODE == "wait":
                            gaps[0] += self.pre_barrier(h) + [("wait", ids), "s_memtime s[98:99]", "s_waitcnt lgkmcnt(0)", "s_barrier", "s_memtime s[100:101]", "s_waitcnt lgkmcnt(0)", "s_sub_u32 s100, s100, s98", f"s_add_u32 s{SB+12}, s{SB+12}, s100"]
                        else:
                            gaps[0] += self.pre_barrier(h) + [("wait", ids), "s_barrier"]
                        if (ZLATE or LATEWS) and h == H_Z: gaps[0] += self.sig(f"s_cmp_lt_u32 s2, {NZERO}", S_DBG, DBG_INIT, None, "init")
                        if h == H_INIT: gaps[0] += self.sig(None, S_WSP, WS_STCNT, S_T, "st")
                        if h == H_CS: gaps[0] += self.sig(None, S_WSP, WS_CSCNT, S_CG, "cs")
                    else:
                        gaps[0] += ["s_barrier"]
                nxt = s + 1
                if nxt < 32:
                    rd = self.reads(nxt)
                    g0 = 1 if odd else 0
                    for i, x in enumerate(rd): gaps[g0 + i//2].append(x)
            else:
                M = self.corr(); head = ["s_waitcnt lgkmcnt(0)"]
            if st[0] == "k" and st[1] in self.fixed:
                for it in self.fixed[st[1]]: gaps[9] += it
            for qi in range(2):
                pending = queues[qi]
                gi = 0
                rest = []
                blocked = False
                for (pos, it) in pending:
                    if blocked or pos[0] > si:
                        rest.append((pos, it)); continue
                    if id(it) in tagD and placedR.get(tagD[id(it)] - NSL, -1) == si:
                        rest.append((pos, it)); blocked = True; continue
                    if id(it) in tagD and tagD[id(it)] >= NSL and (tagD[id(it)] - NSL) not in placedR:
                        rest.append((pos, it)); blocked = True; continue
                    g = max(gi, pos[1] if pos[0] == si else 0)
                    need = 2 if (isinstance(it, tuple) and it[0] == "dma") else len(it)
                    while g < 10 and len(gaps[g]) + min(need, CAP) > CAP: g += 1
                    if g >= 10:
                        rest.append((pos, it)); blocked = True; continue
                    if id(it) in tagR: placedR[tagR[id(it)]] = si
                    if isinstance(it, tuple) and it[0] == "dma":
                        gaps[g].append(it[1]); gaps[g].append("__NOP__"); gaps[g].append(it[2]); gi = g + 1
                    else:
                        gaps[g] += it; gi = g
                queues[qi] = rest
            for g in gaps:
                while "__NOP__" in g:
                    i = g.index("__NOP__")
                    cand = [j for j in range(i-1) if isinstance(g[j], str) and g[j].startswith("ds_read")]
                    if cand:
                        x = g.pop(cand[-1]); i -= 1; g[i] = x
                    else: g[i] = "s_nop 0"
            if st[0] == "k" and st[1] % 4 == 0 and st[1] > 0: A.stamp(st[1]//4, "loop")
            for x in head: A(x)
            for i in range(10):
                A(M[i])
                for x in gaps[i]:
                    if x == "__WOSRD__":
                        assert "W15_4" in A.ids
                        A(f"s_lshl_b32 s{S_T0}, s{S_J}, 7"); A(f"s_lshl_b32 s{S_T1}, s{S_WV}, 17"); A(f"s_add_u32 s{S_T0}, s{S_T0}, s{S_T1}")
                        srd_off(A, S_WO, P_WO, P_WO+1, f"s{S_T0}", 512*1024)
                    else: A(x)
        assert not queues[0], queues[0][:3]
        self.leftover = queues[1]
        for (pos, it) in self.leftover:
            if id(it) in tagD: A("s_waitcnt lgkmcnt(0)")
            if it == ["__WOSRD__"]:
                A(f"s_lshl_b32 s{S_T0}, s{S_J}, 7"); A(f"s_lshl_b32 s{S_T1}, s{S_WV}, 17"); A(f"s_add_u32 s{S_T0}, s{S_T0}, s{S_T1}")
                srd_off(A, S_WO, P_WO, P_WO+1, f"s{S_T0}", 512*1024)
            else: emit_items(A, [it])
        self.nleft = len(self.leftover)
        txt = A.l
        for i in range(N_IN - NSL):
            rd = [n for n, x in enumerate(txt) if n > self.loop_start and "ds_read_b64_tr_b16 a[%d:" % (8*i+6) in x]
            if not rd: continue
            pos_r = rd[-1]; pos_d = A.pos[f"w2_{i+NSL}_0"]
            assert pos_d > pos_r and any("lgkmcnt(0)" in x for x in txt[pos_r:pos_d]), ("no lgkm wait", i)

    def flag_addr(self, slot_imm):
        A = self.A
        FA, ONE = VT+4, VT+5
        A(f"v_mov_b32 v{ONE}, 1")
        A(f"s_lshl_b32 s{S_T0}, s{S_T}, 1"); A(f"s_add_u32 s{S_T0}, s{S_T0}, s{S_WM}"); A(f"s_lshl_b32 s{S_T0}, s{S_T0}, 2")
        A(f"s_lshr_b32 s{S_T1}, s{S_IDX}, 1"); A(f"s_add_u32 s{S_T0}, s{S_T0}, s{S_T1}"); A(f"s_lshl_b32 s{S_T0}, s{S_T0}, 4")
        A(f"s_lshl_b32 s{S_T1}, s{S_I1}, 1"); A(f"s_add_u32 s{S_T0}, s{S_T0}, s{S_T1}"); A(f"s_add_u32 s{S_T0}, s{S_T0}, s{S_WN}")
        A(f"s_add_u32 s{S_T0}, s{S_T0}, {slot_imm}"); A(f"s_lshl_b32 s{S_T0}, s{S_T0}, 2"); A(f"s_add_u32 s{S_T0}, s{S_T0}, {WS_FLAG}")
        A(f"v_mov_b32 v{FA}, s{S_T0}")
        A(f"s_mov_b64 s[{S_E0}:{S_E0+1}], exec"); A("s_mov_b64 exec, 1")
    def flag_fire(self):
        A = self.A
        A.vm(f"global_store_dword v{VT+4}, v{VT+5}, s[{S_WSP}:{S_WSP+1}] sc1")
        A(f"s_mov_b64 exec, s[{S_E0}:{S_E0+1}]")
    def flag_store(self, slot_imm, FA, ONE):
        self.flag_addr(slot_imm); self.flag_fire()
    def early_flag_load(self):
        A = self.A
        A(f"s_lshl_b32 s{S_T0}, s{S_TAU}, 2"); A(f"s_add_u32 s{S_T0}, s{S_T0}, s{S_WV}"); A(f"s_lshl_b32 s{S_T0}, s{S_T0}, 6"); A(f"s_add_u32 s{S_T0}, s{S_T0}, {WS_FLAG}")
        A(f"v_lshlrev_b32 v32, 2, v{VLANE}"); A(f"v_add_u32 v32, s{S_T0}, v32")
        A("s_mov_b64 exec, 255"); A.vm(f"global_load_dword v33, v32, s[{S_WSP}:{S_WSP+1}] sc1", id="eflag"); A("s_mov_b64 exec, -1")

    def transition(self):
        A, typ, kinds = self.A, self.typ, self.kinds
        w2 = self.w2
        tt = VT
        state = {"D": N_IN, "R": N_IN}
        A.stamp(1, "tr")
        A("s_waitcnt lgkmcnt(0)")
        A("s_barrier")
        A(f"s_mul_i32 s{S_T0}, s{S_WV}, {NPOST*2048}"); A(f"s_add_u32 s{S_T0}, s{S_T0}, {W2POST}")
        A(f"s_sub_u32 s{S_T1}, s{S_T0}, s{S_LB}"); A(f"s_mov_b32 s{S_LB}, s{S_T0}")
        A(f"v_add_u32 v{VTR}, s{S_T1}, v{VTR}"); A(f"v_xor_b32 v{VTR1}, 64, v{VTR}")
        A(f"s_lshl_b32 s{S_T0}, s{S_J}, 7"); A(f"s_lshl_b32 s{S_T1}, s{S_WV}, 17"); A(f"s_add_u32 s{S_T0}, s{S_T0}, s{S_T1}")
        srd_off(A, S_WO, P_WO, P_WO+1, f"s{S_T0}", 512*1024)
        def bgD(n=1):
            for _ in range(n):
                i = state["D"]
                if i >= 36 or i - state["R"] >= NPOST: return
                emit_items(A, w2.D(i)); state["D"] += 1
        def bgR(n=1):
            for _ in range(n):
                i = state["R"]
                if i >= state["D"]: return
                if i >= 32 and not state.get("vfree"): return
                emit_items(A, w2.R(i)); state["R"] += 1
        def bgD_safe(n=1):
            A("s_waitcnt lgkmcnt(0)"); bgD(n)
        A(f"s_lshl_b32 s{S_T0}, s{S_T}, 1"); A(f"s_add_u32 s{S_T0}, s{S_T0}, s{S_WM}"); A(f"s_lshl_b32 s{S_T0}, s{S_T0}, 2")
        A(f"s_lshr_b32 s{S_T1}, s{S_IDX}, 1"); A(f"s_add_u32 s{S_T0}, s{S_T0}, s{S_T1}"); A(f"s_mul_i32 s{S_HB}, s{S_T0}, {36*2048}")
        A(f"s_and_b32 s{S_I1}, s{S_IDX}, 1")
        I1 = S_I1
        R2 = XF
        for tb in range(2):
            A(f"v_mul_f32 v{R2+2*tb}, v{VR+tb}, v{VR+tb}"); A(f"v_mul_f32 v{R2+2*tb+1}, v{VR+tb}, v{VR+tb}")
        PK = WF
        nst = 0
        gublks = [b for b, kd in enumerate(kinds) if kd in ("gu", "guh")]
        lasth = None
        for blk in gublks:
            kd = kinds[blk]
            if typ == "A":
                if blk == 0:
                    A(f"s_lshl_b32 s{S_T2}, s{I1}, 1"); A(f"s_add_u32 s{S_T2}, s{S_T2}, s{S_WN}"); A(f"s_lshl_b32 s{S_T2}, s{S_T2}, 13"); A(f"s_add_u32 s{S_T2}, s{S_T2}, s{S_HB}")
                else: A(f"s_add_u32 s{S_T2}, s{S_T2}, 2048")
            elif kd == "gu":
                if blk == 2:
                    A(f"s_lshl_b32 s{S_T2}, s{I1}, 2"); A(f"s_lshl_b32 s{S_T3}, s{S_WN}, 1"); A(f"s_add_u32 s{S_T2}, s{S_T2}, s{S_T3}"); A(f"s_add_u32 s{S_T2}, s{S_T2}, 16")
                    A(f"s_lshl_b32 s{S_T2}, s{S_T2}, 11"); A(f"s_add_u32 s{S_T2}, s{S_T2}, s{S_HB}")
                else: A(f"s_add_u32 s{S_T2}, s{S_T2}, 2048")
            else:
                A(f"s_lshl_b32 s{S_T2}, s{I1}, 1"); A(f"s_add_u32 s{S_T2}, s{S_T2}, s{S_WN}"); A(f"s_add_u32 s{S_T2}, s{S_T2}, 24")
                A(f"s_lshl_b32 s{S_T2}, s{S_T2}, 11"); A(f"s_add_u32 s{S_T2}, s{S_T2}, s{S_HB}")
            for tb in range(2):
                a = acc(blk, tb); pk = PK + 4*(nst % 4); nst += 1
                for i in range(4): A(f"v_pk_mul_f32 v[{a+2*i}:{a+2*i+1}], v[{a+2*i}:{a+2*i+1}], v[{a+8+2*i}:{a+8+2*i+1}]")
                for i in range(4): A(f"v_pk_mul_f32 v[{a+2*i}:{a+2*i+1}], v[{a+2*i}:{a+2*i+1}], v[{R2+2*tb}:{R2+2*tb+1}]")
                for i in range(4): A(f"v_cvt_pk_bf16_f32 v{pk+i}, v{a+2*i}, v{a+2*i+1}")
                lasth = f"hs_{blk}_{tb}"
                A.vm(f"buffer_store_dwordx4 v[{pk}:{pk+3}], v{VL16}, s[{S_H}:{S_H+3}], s{S_T2} offen offset:{tb*1024} sc1", id=lasth)
        assert (not LATE_R) or 36 - N_IN <= NPOST
        A.stamp(5); A.stamp(2, "tr")
        FA, ONE = VT+4, VT+5
        A(f"s_mov_b32 s{S_C6}, 0x358637bd"); A(f"s_mov_b32 s{S_C6+1}, 0x358637bd")
        C6 = f"s[{S_C6}:{S_C6+1}]"
        if typ == "A":
            A(f"s_lshl_b32 s{S_T2}, s{I1}, 2"); A(f"s_lshl_b32 s{S_T3}, s{S_WN}, 1"); A(f"s_add_u32 s{S_T2}, s{S_T2}, s{S_T3}"); A(f"s_add_u32 s{S_T2}, s{S_T2}, 28")
            A(f"s_lshl_b32 s{S_T2}, s{S_T2}, 11"); A(f"s_add_u32 s{S_T4}, s{S_T2}, s{S_HB}"); A(f"s_add_u32 s{S_XO}, s{S_T4}, 2048")
            A(f"s_mov_b32 s22, s{S_T4}"); A(f"s_mov_b32 s23, s{S_XO}")
            RP = XF + 4; RLP = XF + 6
            for tb in range(2):
                a = acc(4, tb)
                A(f"v_mov_b32 v{RP}, v{VR+tb}"); A(f"v_mov_b32 v{RP+1}, v{VR+tb}")
                A(f"v_mul_f32 v{RLP}, 0x3fb8aa3b, v{VR+tb}"); A(f"v_mul_f32 v{RLP+1}, 0x3fb8aa3b, v{VR+tb}")
                for i in range(0, 16, 4):
                    for j in (0, 2): A(f"v_pk_mul_f32 v[{tt+j}:{tt+j+1}], v[{a+i+j}:{a+i+j+1}], v[{RLP}:{RLP+1}]")
                    for j in (0, 2): A(f"v_pk_fma_f32 v[{a+i+j}:{a+i+j+1}], v[{a+i+j}:{a+i+j+1}], v[{RP}:{RP+1}], {C6}")
                    for j in range(4): A(f"v_exp_f32_e64 v{tt+j}, v{tt+j} clamp")
                    for j in range(4): A(f"v_max_f32 v{a+i+j}, s{S_C6}, v{a+i+j}")
                    for j in (0, 2): A(f"v_pk_add_f32 v[{a+i+j}:{a+i+j+1}], v[{a+i+j}:{a+i+j+1}], v[{tt+j}:{tt+j+1}]")
                    if PHI_D: bgD(1)
                if tb == 0 and FLAG_TB_A == 0:
                    A.stamp(3, "tr"); self.flag_addr(0); A.wait(lasth); self.flag_fire(); A.stamp(4, "tr")
                    if LATE_R == 1: bgD(36 - N_IN)
                if FASTG2 and tb == 1: self.early_flag_load()
                for hs in range(2):
                    pk = (128 + 4*(2*tb + hs)) if (DEFER or PQ_LATE) else PK + 4*(nst % 4); nst += 1
                    for i in range(4): A(f"v_cvt_pk_bf16_f32 v{pk+i}, v{a+8*hs+2*i}, v{a+8*hs+2*i+1}")
                    if not (DEFER or PQ_LATE): A.vm(f"buffer_store_dwordx4 v[{pk}:{pk+3}], v{VL16}, s[{S_H}:{S_H+3}], s{S_XO if hs else S_T4} offen offset:{tb*1024} sc1", id=f"pq_{tb}_{hs}")
            if FLAG_TB_A == 1:
                A.stamp(3, "tr"); self.flag_addr(0); A.wait(lasth); self.flag_fire(); A.stamp(4, "tr")
            if PQ_LATE and not DEFER:
                for tb in range(2):
                    for hs in range(2):
                        pk = 128 + 4*(2*tb + hs)
                        A.vm(f"buffer_store_dwordx4 v[{pk}:{pk+3}], v{VL16}, s[{S_H}:{S_H+3}], s{23 if hs else 22} offen offset:{tb*1024} sc1")
            bgD(11)
            state["vfree"] = True
            A.stamp(5, "tr")
        else:
            RR = WF; RL = WF + 16; TK = WF + 32; TV = VT + 6
            ONES = XF + 4
            for i in range(4): A(f"v_mov_b32 v{ONES+i}, 0x3f803f80")
            A(f"v_lshrrev_b32 v{tt}, 5, v{VLANE}"); A(f"v_lshlrev_b32 v{tt}, 4, v{tt}")
            A(f"s_lshl_b32 s{S_T0}, s{S_WM}, 8"); A(f"s_add_u32 s{S_T0}, s{S_T0}, {LDS_R}"); A(f"v_add_u32 v{XF+9}, s{S_T0}, v{tt}")
            D2, DZ = acc(2,0), acc(2,1)
            for tb in range(2):
                for q4 in range(4): A(f"ds_read_b128 v[{RR+4*q4}:{RR+4*q4+3}], v{XF+9} offset:{tb*128 + q4*32}")
                A("s_waitcnt lgkmcnt(0)")
                A(f"s_mov_b32 s{S_T0}, 0x3fb8aa3b"); A(f"s_mov_b32 s{S_T1}, 0x3fb8aa3b")
                for i in range(8): A(f"v_pk_mul_f32 v[{RL+2*i}:{RL+2*i+1}], v[{RR+2*i}:{RR+2*i+1}], s[{S_T0}:{S_T1}]")
                a = acc(0, tb); av = acc(1, tb)
                for i in range(0, 16, 4):
                    for j in (0, 2): A(f"v_pk_mul_f32 v[{tt+j}:{tt+j+1}], v[{a+i+j}:{a+i+j+1}], v[{RL+i+j}:{RL+i+j+1}]")
                    for j in (0, 2): A(f"v_pk_fma_f32 v[{a+i+j}:{a+i+j+1}], v[{a+i+j}:{a+i+j+1}], v[{RR+i+j}:{RR+i+j+1}], {C6}")
                    for j in range(4): A(f"v_exp_f32_e64 v{tt+j}, v{tt+j} clamp")
                    for j in range(4): A(f"v_max_f32 v{a+i+j}, s{S_C6}, v{a+i+j}")
                    for j in (0, 2): A(f"v_pk_add_f32 v[{a+i+j}:{a+i+j+1}], v[{a+i+j}:{a+i+j+1}], v[{tt+j}:{tt+j+1}]")
                    if PHI_D: bgD(1)
                for i in range(8): A(f"v_pk_mul_f32 v[{av+2*i}:{av+2*i+1}], v[{av+2*i}:{av+2*i+1}], v[{RR+2*i}:{RR+2*i+1}]")
                for i in range(8): A(f"v_cvt_pk_bf16_f32 v{TK+i}, v{a+2*i}, v{a+2*i+1}")
                for i in range(8): A(f"v_cvt_pk_bf16_f32 v{TV+i}, v{av+2*i}, v{av+2*i+1}")
                A("s_nop 1")
                for f in range(2):
                    c = "0" if (tb == 0 and f == 0) else None
                    A(f"v_mfma_f32_32x32x16_bf16 v[{D2}:{D2+15}], v[{TK+4*f}:{TK+4*f+3}], v[{TV+4*f}:{TV+4*f+3}], {c or f'v[{D2}:{D2+15}]'}")
                    A(f"v_mfma_f32_32x32x16_bf16 v[{DZ}:{DZ+15}], v[{TK+4*f}:{TK+4*f+3}], v[{ONES}:{ONES+3}], {c or f'v[{DZ}:{DZ+15}]'}")
                if tb == FLAG_TB:
                    A.stamp(3, "tr"); self.flag_addr(4); A.wait(lasth); self.flag_fire(); A.stamp(4, "tr")
                    if LATE_R == 1 and B_EARLY_D: bgD(36 - N_IN)
            if PHI_D: bgD(3)
            A(f"v_and_b32 v{tt}, 31, v{VLANE}"); A(f"v_cmp_gt_u32 vcc, 16, v{tt}")
            A(f"s_lshl_b32 s{S_T0}, s{S_WM}, 13"); A(f"s_lshl_b32 s{S_T1}, s{S_WN}, 12"); A(f"s_add_u32 s{S_T0}, s{S_T0}, s{S_T1}"); A(f"s_add_u32 s{S_T0}, s{S_T0}, {LDS_KV}")
            A(f"v_lshlrev_b32 v{tt}, 2, v{VLANE}"); A(f"v_add_u32 v{tt}, s{S_T0}, v{tt}")
            A("s_nop 7"); A("s_nop 3")
            for r_ in range(16):
                if r_ < 8: A(f"v_cndmask_b32 v{D2+r_}, v{DZ+r_}, v{D2+r_}, vcc")
                else: A(f"v_cndmask_b32 v{D2+r_}, v{D2+r_}, v{DZ+r_}, vcc")
            for r_ in range(16): A(f"ds_write_b32 v{tt}, v{D2+r_} offset:{r_*256}")
            A("s_waitcnt lgkmcnt(0)"); A("s_barrier")
            A(f"s_lshr_b32 s{S_T0}, s{S_WV}, 1"); A(f"s_lshl_b32 s{S_T0}, s{S_T0}, 12"); A(f"s_add_u32 s{S_T0}, s{S_T0}, {LDS_KV}")
            A(f"s_and_b32 s{S_T2}, s{S_WV}, 1")
            A(f"s_mul_i32 s{S_T3}, s{S_T2}, {8*256}"); A(f"s_add_u32 s{S_T0}, s{S_T0}, s{S_T3}")
            A(f"s_lshl_b32 s{S_T3}, s{S_T2}, 6")
            A(f"s_lshl_b32 s{S_T1}, s{S_IDX}, 2"); A(f"s_add_u32 s{S_T1}, s{S_T1}, s{S_WV}")
            A(f"s_mul_i32 s{S_T1}, s{S_T1}, {KV_HEAD}"); A(f"s_add_u32 s{S_T1}, s{S_T1}, {WS_KV}")
            A(f"v_and_b32 v{tt}, 7, v{VLANE}"); A(f"v_lshlrev_b32 v{tt}, 8, v{tt}"); A(f"v_add_u32 v{tt}, s{S_T0}, v{tt}")
            A(f"v_lshrrev_b32 v{tt+1}, 3, v{VLANE}"); A(f"v_lshlrev_b32 v{tt+1}, 2, v{tt+1}")
            A(f"v_add_u32 v{tt+2}, v{tt}, v{tt+1}"); A(f"v_add_u32 v{tt+2}, s{S_T3}, v{tt+2}")
            B0 = ACC
            for n in range(4):
                off = (32*(n>>1) + 8*(n&1))*4
                A(f"ds_read_b32 v{B0+2*n}, v{tt+2} offset:{off}"); A(f"ds_read_b32 v{B0+2*n+1}, v{tt+2} offset:{off+8192}")
            A(f"s_sub_u32 s{S_T3}, 64, s{S_T3}")
            A(f"v_lshlrev_b32 v{tt+3}, 5, v{tt+1}"); A(f"v_add_u32 v{tt+3}, v{tt+3}, v{tt}"); A(f"v_add_u32 v{tt+3}, s{S_T3}, v{tt+3}")
            A(f"v_cmp_gt_u32 vcc, 16, v{VLANE}"); A(f"s_and_saveexec_b64 s[{S_E0}:{S_E0+1}], vcc")
            A(f"ds_read_b32 v{B0+8}, v{tt+3}"); A(f"ds_read_b32 v{B0+9}, v{tt+3} offset:8192")
            A(f"s_mov_b64 exec, s[{S_E0}:{S_E0+1}]")
            A(f"v_lshlrev_b32 v{tt+2}, 2, v{VLANE}"); A(f"v_add_u32 v{tt+2}, s{S_T1}, v{tt+2}")
            A("s_waitcnt lgkmcnt(0)")
            if DEFER:
                for n in range(5): A(f"v_add_f32 v{128+n}, v{B0+2*n}, v{B0+2*n+1}")
                A(f"v_mov_b32 v133, v{tt+2}")
            else:
                if FASTG2:
                    A(f"s_mov_b32 s{S_XO}, s{S_T1}")
                    self.early_flag_load()
                for n in range(4):
                    A(f"v_add_f32 v{B0+2*n}, v{B0+2*n}, v{B0+2*n+1}")
                    A.vm(f"global_atomic_add_f32 v{tt+2}, v{B0+2*n}, s[{S_WSP}:{S_WSP+1}] offset:{n*256}")
                A(f"v_add_f32 v{B0+8}, v{B0+8}, v{B0+9}")
                A(f"s_and_saveexec_b64 s[{S_E0}:{S_E0+1}], vcc")
                A.vm(f"global_atomic_add_f32 v{tt+2}, v{B0+8}, s[{S_WSP}:{S_WSP+1}] offset:1024", id="kvat")
                A(f"s_mov_b64 exec, s[{S_E0}:{S_E0+1}]")
            bgD(11)
            state["vfree"] = True
            A.stamp(5, "tr")
        if FASTG2: A.wait("eflag")
        A.stamp(6); A.stamp(6, "tr")
        if not LATE_R:
            while state["R"] < 36:
                bgR(3); bgD_safe(3)
            A("s_waitcnt lgkmcnt(0)")

class G2:
    ACC2 = 0; HB = 64; NH = 32; W2V = 192
    def __init__(self, A): self.A = A; self.w2 = W2(A)
    def poll(self, label, vaddr, nl, expect=None, novm=False):
        A = self.A; T = VT
        A(f"s_mov_b32 s{S_T3}, 0")
        A(f"s_mov_b64 s[{S_E0}:{S_E0+1}], exec"); A(f"s_mov_b64 exec, {(1<<nl)-1}")
        A.label(label)
        if novm: A.l.append(f"  global_load_dword v{T+9}, v{vaddr}, s[{S_WSP}:{S_WSP+1}] sc1")
        else: A.vm(f"global_load_dword v{T+9}, v{vaddr}, s[{S_WSP}:{S_WSP+1}] sc1")
        A("s_waitcnt vmcnt(0)")
        if expect is None: A(f"v_cmp_ne_u32 vcc, 0, v{T+9}")
        else: A(f"v_cmp_le_u32 vcc, {expect}, v{T+9}")
        A(f"s_add_u32 s{S_T3}, s{S_T3}, 1")
        A(f"s_cmp_ge_u32 s{S_T3}, {POLL_MAX}"); A(f"s_cbranch_scc1 {label}_x")
        A(f"s_cmp_eq_u64 vcc, exec"); A(f"s_cbranch_scc1 {label}_x")
        A("s_sleep 1"); A(f"s_branch {label}")
        A.label(label + "_x")
        A(f"s_mov_b64 exec, s[{S_E0}:{S_E0+1}]")
    def check(self, label, vreg, nl, expect=None):
        pass
    def body(self):
        A = self.A; T = VT; VL = VLANE
        ACC2 = 0; HB = 64; NH = 16; KVR0 = 128
        A.reset_vm()
        VFL, VKV, VCN = T+10, T+11, T+12
        VF1, VF2 = T+8, T+9
        srd(A, S_O, P_O, P_O+1, 2048*1024)
        srd(A, S_XX, P_X, P_X+1, 2048*1024)
        A(f"s_lshl_b32 s{S_HO}, s{S_TAU}, 2"); A(f"s_add_u32 s{S_HO}, s{S_HO}, s{S_WV}")
        A(f"s_lshl_b32 s{S_T0}, s{S_HO}, 6"); A(f"s_add_u32 s{S_T0}, s{S_T0}, {WS_FLAG}")
        A(f"v_lshlrev_b32 v{VFL}, 2, v{VL}"); A(f"v_add_u32 v{VFL}, s{S_T0}, v{VFL}")
        A(f"s_mul_i32 s{S_HO}, s{S_HO}, {36*2048}")
        A(f"s_add_u32 s{S_T4}, s{S_HO}, {56*1024}")
        A(f"s_mov_b32 s{S_HBASE}, s{S_HO}"); A(f"s_lshl_b32 s{S_HR}, s{S_RHO}, 11")
        A(f"v_and_b32 v{T}, 31, v{VL}"); A(f"v_lshrrev_b32 v{T+1}, 5, v{VL}")
        A(f"v_lshlrev_b32 v{T+2}, 4, v{T+1}"); A(f"v_add_u32 v{T+2}, v{T+2}, v{T}"); A(f"v_subrev_u32 v{T+2}, 16, v{T+2}"); A(f"v_lshlrev_b32 v{T+2}, 5, v{T+2}")
        A(f"v_lshlrev_b32 v{T+3}, 5, v{T+1}"); A(f"v_add_u32 v{T+3}, 1024, v{T+3}")
        A(f"v_cmp_gt_u32 vcc, 16, v{T}"); A("s_nop 1"); A(f"v_cndmask_b32 v{T+2}, v{T+2}, v{T+3}, vcc")
        A(f"s_lshl_b32 s{S_T0}, s{S_WV}, 3"); A(f"s_mul_i32 s{S_T0}, s{S_T0}, {KV_HEAD}"); A(f"s_add_u32 s{S_T0}, s{S_T0}, {WS_KV}")
        A(f"v_add_u32 v{VKV}, s{S_T0}, v{T+2}")
        A(f"s_lshl_b32 s{S_T0}, s{S_WV}, 9"); A(f"s_add_u32 s{S_T0}, s{S_T0}, {WS_KVCNT}")
        A(f"v_lshlrev_b32 v{VCN}, 6, v{VL}"); A(f"v_add_u32 v{VCN}, s{S_T0}, v{VCN}")
        A("s_barrier")
        def signal_block(sfx=''):
            A(f"s_cmp_ge_u32 s{S_CP}, 2"); A(f"s_cbranch_scc1 K12_sigB{sfx}")
            A(f"s_lshl_b32 s{S_T0}, s{S_T}, 1"); A(f"s_add_u32 s{S_T0}, s{S_T0}, s{S_WM}"); A(f"s_lshl_b32 s{S_T0}, s{S_T0}, 2")
            A(f"s_lshr_b32 s{S_T1}, s{S_IDX}, 1"); A(f"s_add_u32 s{S_T0}, s{S_T0}, s{S_T1}"); A(f"s_lshl_b32 s{S_T0}, s{S_T0}, 4")
            A(f"s_lshl_b32 s{S_T1}, s{S_I1}, 1"); A(f"s_add_u32 s{S_T0}, s{S_T0}, s{S_T1}"); A(f"s_add_u32 s{S_T0}, s{S_T0}, s{S_WN}")
            A(f"s_add_u32 s{S_T0}, s{S_T0}, 8"); A(f"s_lshl_b32 s{S_T0}, s{S_T0}, 2"); A(f"s_add_u32 s{S_T0}, s{S_T0}, {WS_FLAG}")
            A(f"v_mov_b32 v{T+4}, s{S_T0}"); A(f"v_mov_b32 v{T+5}, 1")
            A(f"s_mov_b64 s[{S_E0}:{S_E0+1}], exec"); A("s_mov_b64 exec, 1")
            A(f"!global_store_dword v{T+4}, v{T+5}, s[{S_WSP}:{S_WSP+1}] sc1")
            A(f"s_mov_b64 exec, s[{S_E0}:{S_E0+1}]"); A(f"s_branch K12_sigX{sfx}")
            A(f"K12_sigB{sfx}:")
            A(f"s_lshl_b32 s{S_T0}, s{S_IDX}, 2"); A(f"s_add_u32 s{S_T0}, s{S_T0}, s{S_WV}"); A(f"s_lshl_b32 s{S_T0}, s{S_T0}, 6"); A(f"s_add_u32 s{S_T0}, s{S_T0}, {WS_KVCNT}")
            A(f"v_mov_b32 v{T+4}, s{S_T0}"); A(f"v_mov_b32 v{T+5}, 1")
            A(f"s_mov_b64 s[{S_E0}:{S_E0+1}], exec"); A("s_mov_b64 exec, 1")
            A(f"!global_atomic_add v{T+4}, v{T+5}, s[{S_WSP}:{S_WSP+1}] sc1")
            A(f"s_mov_b64 exec, s[{S_E0}:{S_E0+1}]")
            A(f"K12_sigX{sfx}:")
        if FASTG2:
            A("s_mov_b64 exec, 255"); A(f"v_cmp_ne_u32 vcc, 0, v33"); A("s_nop 3"); A("s_cmp_eq_u64 vcc, exec"); A("s_mov_b64 exec, -1")
            A(f"s_cselect_b32 s{S_XO}, 1, 0")
            A("s_cbranch_scc1 K12_hok")
            A("s_waitcnt vmcnt(0)")
            signal_block()
        elif not DEFER:
            if EARLY_POLL:
                A("s_mov_b64 exec, 255"); A.vm(f"global_load_dword v{T+9}, v{VFL}, s[{S_WSP}:{S_WSP+1}] sc1"); A("s_mov_b64 exec, -1")
            A("s_waitcnt vmcnt(0)")
            signal_block()
        if OUT_TOUCH:
            A(f"s_lshl_b32 s{S_T0}, s{S_TAU}, 16"); A(f"s_lshl_b32 s{S_T1}, s{S_J}, 7"); A(f"s_add_u32 s{S_T0}, s{S_T0}, s{S_T1}"); A(f"v_mov_b32 v{T+6}, s{S_T0}")
            A("s_mov_b64 exec, 1"); A.vm(f"global_load_dword v{T+7}, v{T+6}, s[{P_O}:{P_O+1}]"); A("s_mov_b64 exec, -1")
        A.stamp(7); A.stamp(7, "tr")
        if EARLY_POLL and not DEFER and not FASTG2:
            A("s_mov_b64 exec, 255"); A(f"v_cmp_ne_u32 vcc, 0, v{T+9}"); A("s_nop 3"); A("s_cmp_eq_u64 vcc, exec"); A("s_mov_b64 exec, -1")
            A("s_cbranch_scc1 K12_hok")
        self.poll("K12_pollH", VFL, 8)
        A("K12_hok:")
        A.stamp(8, "tr")
        A.stamp(8); A.stamp(1, "g2")
        hstate = {"off": 0}
        def h_items(f):
            o = []
            hb = HB + 4*(f % NH)
            if f % 2 == 0: o.append(f"s_add_u32 s{S_HO}, s{S_HBASE}, s{S_HR}")
            o.append(("vm", f"h{f}", f"buffer_load_dwordx4 v[{hb}:{hb+3}], v{VL16}, s[{S_H}:{S_H+3}], s{S_HO} offen offset:{(f%2)*1024} sc1"))
            if f % 2 == 1 and f < 55:
                o += [f"s_add_u32 s{S_HR}, s{S_HR}, 2048", f"s_cmp_eq_u32 s{S_HR}, {28*2048}", f"s_cselect_b32 s{S_HR}, 0, s{S_HR}"]
            return o
        def pq_items(g):
            return [f"s_add_u32 s{S_HO}, s{S_T4}, {(g//4)*4096}",
                    ("vm", f"pq{g}", f"buffer_load_dwordx4 a[{4*g}:{4*g+3}], v{VL16}, s[{S_H}:{S_H+3}], s{S_HO} offen offset:{(g%4)*1024} sc1")]
        def kv_items(h):
            b = KVR0 + 8*h
            pre = [f"s_mov_b64 exec, s[{S_C6}:{S_C6+1}]"] if KVMASK else []
            post = ["s_mov_b64 exec, -1"] if KVMASK else []
            return pre + [("vm", None, f"global_load_dwordx4 v[{b}:{b+3}], v{VKV}, s[{S_WSP}:{S_WSP+1}] sc1"),
                    ("vm", f"kv{h}", f"global_load_dwordx4 v[{b+4}:{b+7}], v{VKV}, s[{S_WSP}:{S_WSP+1}] offset:16 sc1")] + post + [
                    f"v_add_u32 v{VKV}, {KV_HEAD}, v{VKV}"]
        if KVMASK:
            A(f"s_mov_b32 s{S_C6}, 0xffff0011"); A(f"s_mov_b32 s{S_C6+1}, 0xffff0011")
        AHEAD = G2_AHEAD
        KVB = [KVR0 + 8*h for h in range(8)]
        DO = [224 - 32, 224 - 16]
        DO = [T - 16 - 16 + 0, 0]
        DO = [208, 224]
        DO = [HB + 32, HB + 48]
        OF = [T, T+4]
        loads = [("h", f) for f in range(56)]
        if TBM:
            for h in range(8): loads += [("kv", h), ("pq", 2*h)]
            for h in range(8): loads += [("pq", 2*h+1)]
        else:
            for h in range(8): loads += [("kv", h), ("pq", 2*h), ("pq", 2*h+1)]
        CHK = G2_CHK
        li = {"n": 0}
        def issue(n):
            o = []
            for _ in range(n):
                if li["n"] >= len(loads): break
                k, x = loads[li["n"]]; li["n"] += 1
                o.append(h_items(x) if k == "h" else (kv_items(x) if k == "kv" else pq_items(x)))
            return o
        A(f"s_mul_i32 s{S_T0}, s{S_J}, {7*1024}"); A(f"s_add_u32 s{S_T0}, s{S_T0}, s{S_HO}")
        for x in issue(4):
            for y in x: A(y)
        if G2_PF:
            for k in range(7):
                if k == 4: A(f"s_add_u32 s{S_T0}, s{S_T0}, 4096")
                A.vm(f"buffer_load_dwordx4 v[{T}:{T+3}], v{VL16}, s[{S_H}:{S_H+3}], s{S_T0} offen offset:{(k%4)*1024} sc1")
        for x in issue(AHEAD - 4):
            for y in x: A(y)
        if DEFER:
            A(f"s_cmp_ge_u32 s{S_CP}, 2"); A("s_cbranch_scc1 K12_defB")
            for tb in range(2):
                for hs in range(2):
                    pk = 128 + 4*(2*tb + hs)
                    A(f"!buffer_store_dwordx4 v[{pk}:{pk+3}], v{VL16}, s[{S_H}:{S_H+3}], s{23 if hs else 22} offen offset:{tb*1024} sc1")
            A(f"v_mov_b32 v{T+6}, 24576"); A("s_mov_b64 exec, 1")
            A(f"!global_load_dword v{T+7}, v{T+6}, s[{S_WSP}:{S_WSP+1}]")
            A("s_mov_b64 exec, -1"); A("s_branch K12_defX")
            A("K12_defB:")
            for n in range(4): A(f"!global_atomic_add_f32 v133, v{128+n}, s[{S_WSP}:{S_WSP+1}] offset:{n*256}")
            A("s_mov_b64 exec, 0xffff")
            A(f"!global_atomic_add_f32 v133, v132, s[{S_WSP}:{S_WSP+1}] offset:1024")
            A("s_mov_b64 exec, -1")
            A("K12_defX:")
            A.nvm += 5; A.ids["defer"] = A.nvm
        A.stamp(2, "g2")
        for i in range(28):
            if LATE_R and i == N_IN: A("s_waitcnt lgkmcnt(0)")
            A.wait(f"h{2*i+1}")
            if FASTG2 and i == 0:
                A(f"s_cmp_eq_u32 s{S_XO}, 0"); A("s_cbranch_scc1 K12_sigdone")
                signal_block("2")
                A("K12_sigdone:")
            if DEFER and i == S_SIG:
                assert A.ids[f"h{2*i+1}"] > A.ids["defer"]
                signal_block()
            if i == 1: A.stamp(3, "g2")
            gaps = [[] for _ in range(4)]
            if i == CHK - 5:
                gaps[0] += [f"v_add_u32 v{VFL}, 32, v{VFL}", f"s_mov_b64 s[{S_E0}:{S_E0+1}], exec", "s_mov_b64 exec, 15",
                            ("vm", "fq", f"global_load_dword v{VF1}, v{VFL}, s[{S_WSP}:{S_WSP+1}] sc1"), "s_mov_b64 exec, 255",
                            ("vm", "fkv", f"global_load_dword v{VF2}, v{VCN}, s[{S_WSP}:{S_WSP+1}] sc1"), f"s_mov_b64 exec, s[{S_E0}:{S_E0+1}]"]
            if LATE_R and i >= 2 and N_IN + (i - 2) < 36:
                rr = self.w2.R(N_IN + (i - 2))[1:]
                gaps[0] += rr[0]; gaps[3] += rr[1]
            n = 2
            if li["n"] + n > 56 and i < CHK: n = max(0, 56 - li["n"])
            for k, x in enumerate(issue(n)): gaps[1+k] += x
            mf = []
            for tb in range(2):
                hb = HB + 4*((2*i+tb) % NH)
                for nb in range(2):
                    a = ACC2 + 16*(2*nb+tb)
                    c = "0" if i == 0 else f"v[{a}:{a+15}]"
                    mf.append(f"v_mfma_f32_32x32x16_bf16 v[{a}:{a+15}], {self.w2.frag(i,nb)}, v[{hb}:{hb+3}], {c}")
            for g in range(4):
                A(mf[g])
                for x in gaps[g]: A(x)
            if i == CHK - 1:
                A.stamp(4, "g2")
                A.wait("fkv")
                A(f"s_mov_b64 s[{S_E0}:{S_E0+1}], exec"); A("s_mov_b64 exec, 15")
                A(f"v_cmp_ne_u32 vcc, 0, v{VF1}"); A("s_nop 3"); A("s_cmp_eq_u64 vcc, exec"); A(f"s_mov_b64 exec, s[{S_E0}:{S_E0+1}]")
                A("s_cbranch_scc1 K12_qok")
                self.poll("K12_pollQ", VFL, 4, novm=True)
                A.label("K12_qok")
                A(f"s_mov_b64 s[{S_E0}:{S_E0+1}], exec"); A("s_mov_b64 exec, 255")
                A(f"v_cmp_le_u32 vcc, 16, v{VF2}"); A("s_nop 3"); A("s_cmp_eq_u64 vcc, exec"); A(f"s_mov_b64 exec, s[{S_E0}:{S_E0+1}]")
                A("s_cbranch_scc1 K12_kvok")
                self.poll("K12_pollKV", VCN, 8, expect=16, novm=True)
                A.label("K12_kvok")
                A.stamp(5, "g2")
        A.stamp(6, "g2"); A.stamp(1, "att")
        A(f"v_lshrrev_b32 v{T+8}, 3, v{VTID}"); A(f"v_and_b32 v{T+9}, 7, v{VTID}")
        A(f"s_lshl_b32 s{S_T0}, s{S_TAU}, 16"); A(f"s_lshl_b32 s{S_T2}, s{S_J}, 7"); A(f"s_add_u32 s{S_T0}, s{S_T0}, s{S_T2}")
        VG = VFL
        A(f"v_lshlrev_b32 v{VG}, 10, v{T+8}"); A(f"v_lshlrev_b32 v{VCN}, 4, v{T+9}"); A(f"v_add_u32 v{VG}, v{VG}, v{VCN}")
        A(f"s_add_u32 s{S_T2}, s{S_T0}, {32*1024}")
        XR = HB
        A(f"s_mov_b32 s{S_T1}, 0x358637bd")
        A("s_waitcnt lgkmcnt(0)")
        units = [(h, tb) for tb in range(2) for h in range(8)] if TBM else [(h, tb) for h in range(8) for tb in range(2)]
        RS = 272; WSZ = 64*RS; VW = VCN
        A(f"v_and_b32 v{VW}, 31, v{VL}"); A(f"v_mul_u32_u24 v{VW}, {RS}, v{VW}"); A(f"v_lshrrev_b32 v{T+9}, 5, v{VL}"); A(f"v_lshlrev_b32 v{T+9}, 4, v{T+9}"); A(f"v_add_u32 v{VW}, v{VW}, v{T+9}")
        A(f"s_mul_i32 s{S_T3}, s{S_WV}, {WSZ}"); A(f"v_add_u32 v{VW}, s{S_T3}, v{VW}")
        def wr(tb, k):
            nb, q = k // 4, k % 4; a = ACC2 + 16*(2*nb+tb)
            return f"ds_write_b128 v{VW}, v[{a+4*q}:{a+4*q+3}] offset:{tb*32*RS + nb*128 + q*32}"
        def stA(u):
            h, tb = units[u]; d = DO[u & 1]
            o = []
            if tb == 0:
                o.append(("wait", [f"kv{h}", f"pq{2*h}"]))
                o += [f"v_cvt_pk_bf16_f32 v{KVB[h]+e}, v{KVR0+8*h+2*e}, v{KVR0+8*h+2*e+1}" for e in range(4)]
                o.append("s_nop 1")
            else: o.append(("wait", [f"pq{2*h+1}"]))
            o.append(f"v_mfma_f32_32x32x16_bf16 v[{d}:{d+15}], v[{KVB[h]}:{KVB[h]+3}], {ar(4*(2*h+tb), 4)}, 0")
            return o
        def stB(u):
            d = DO[u & 1]; o = OF[u & 1]; rc = T + 8
            l = [f"v_add_f32 v{rc}, s{S_T1}, v{d}", f"v_rcp_f32 v{rc}, v{rc}", "s_nop 0"]
            l += [f"v_mul_f32 v{d+8+e}, v{rc}, v{d+8+e}" for e in range(8)]
            l += [f"v_cvt_pk_bf16_f32 v{o+e}, v{d+8+2*e}, v{d+8+2*e+1}" for e in range(4)]
            return l
        def stC(u):
            h, tb = units[u]; o = OF[u & 1]; i = 28 + h
            return [f"v_mfma_f32_32x32x16_bf16 v[{ACC2+16*(2*nb+tb)}:{ACC2+16*(2*nb+tb)+15}], {self.w2.frag(i,nb)}, v[{o}:{o+3}], v[{ACC2+16*(2*nb+tb)}:{ACC2+16*(2*nb+tb)+15}]" for nb in range(2)]
        for x in stA(0): A(x)
        A.stamp(2, "att")
        for x in issue(1):
            for y in x: A(y)
        for x in stA(1): A(x)
        for x in issue(2):
            for y in x: A(y)
        A("s_nop 7"); A("s_nop 3")
        for x in stB(0): A(x)
        xdone = False
        for u in range(16):
            c = stC(u)
            nb_ = stB(u+1) if u + 1 < 16 else []
            if u in (2, 6, 10, 13): A.stamp({2:3, 6:4, 10:5, 13:6}[u], "att")
            A("s_nop 1"); A(c[0])
            for x in nb_[:5]: A(x)
            if u + 2 < 16:
                for x in stA(u+2): A(x)
            iss = issue(2)
            for x in iss:
                for y in x: A(y)
            if not iss and not xdone:
                A.vm(f"buffer_load_dwordx4 v[{XR}:{XR+3}], v{VG}, s[{S_XX}:{S_XX+3}], s{S_T0} offen", id="x0")
                A.vm(f"buffer_load_dwordx4 v[{XR+4}:{XR+7}], v{VG}, s[{S_XX}:{S_XX+3}], s{S_T2} offen", id="x1")
                xdone = True
            for x in nb_[5:10]: A(x)
            A(c[1])
            for x in nb_[10:]: A(x)
            if TBM and 9 <= u <= 12:
                A(wr(0, 2*(u-9))); A(wr(0, 2*(u-9)+1))
        assert xdone and li["n"] == len(loads)
        A.stamp(7, "g2"); A.stamp(7, "att")
        A(f"v_lshrrev_b32 v{T+2}, 3, v{VTID}"); A(f"v_and_b32 v{T+3}, 7, v{VTID}")
        A(f"v_mul_u32_u24 v{T+6}, {RS}, v{T+2}"); A(f"v_lshlrev_b32 v{T+7}, 5, v{T+3}"); A(f"v_add_u32 v{T+6}, v{T+6}, v{T+7}")
        if not TBM:
            A("s_nop 7")
            for k in range(8): A(wr(0, k))
        A("s_nop 7"); A("s_nop 1")
        for k in range(8): A(wr(1, k))
        A("s_waitcnt lgkmcnt(0)"); A("s_barrier")
        A.stamp(8, "g2"); A.stamp(8, "att")
        for ps in range(2):
            b = 72 + 40*ps
            for w in range(4):
                A(f"ds_read_b128 v[{b+8*w}:{b+8*w+3}], v{T+6} offset:{w*WSZ + ps*32*RS}")
                A(f"ds_read_b128 v[{b+8*w+4}:{b+8*w+7}], v{T+6} offset:{w*WSZ + ps*32*RS + 16}")
        for ps in range(2):
            b = 72 + 40*ps
            A(f"s_waitcnt lgkmcnt({8 if ps == 0 else 0})")
            for e in range(0, 8, 2):
                A(f"v_pk_add_f32 v[{b+e}:{b+e+1}], v[{b+e}:{b+e+1}], v[{b+8+e}:{b+8+e+1}]")
                A(f"v_pk_add_f32 v[{b+16+e}:{b+16+e+1}], v[{b+16+e}:{b+16+e+1}], v[{b+24+e}:{b+24+e+1}]")
            for e in range(0, 8, 2):
                A(f"v_pk_add_f32 v[{b+e}:{b+e+1}], v[{b+e}:{b+e+1}], v[{b+16+e}:{b+16+e+1}]")
            A.wait(f"x{ps}")
            xb = XR + 4*ps
            for e in range(4):
                A(f"v_lshlrev_b32 v{T+8}, 16, v{xb+e}"); A(f"v_and_b32 v{T+9}, 0xffff0000, v{xb+e}")
                A(f"v_pk_add_f32 v[{b+2*e}:{b+2*e+1}], v[{b+2*e}:{b+2*e+1}], v[{T+8}:{T+9}]")
                A(f"v_cvt_pk_bf16_f32 v{b+32+e}, v{b+2*e}, v{b+2*e+1}")
            A.vm(f"buffer_store_dwordx4 v[{b+32}:{b+35}], v{VG}, s[{S_O}:{S_O+3}], s{S_T0 if ps == 0 else S_T2} offen{OUTNT}")

def gen_k12():
    A = Prog()
    prologue_common(A)
    A(f"s_cmp_ge_u32 s{S_CP}, 2"); A("s_cbranch_scc1 K12_typeB")
    base_nvm = A.nvm; base_ids = dict(A.ids)
    for typ in ("A", "B"):
        if typ == "B":
            A.label("K12_typeB"); A.nvm = base_nvm; A.ids = dict(base_ids)
        g = G1(A, typ)
        g.prologue()
        if STAMP and SMODE == "wait":
            for c in (1,2,3,4,5,6,7): A(f"s_mov_b32 s{SB+2*c}, 0")
            A(f"s_memtime s[{SB+8}:{SB+9}]"); A("s_waitcnt lgkmcnt(0)")
        A.inloop = True
        g.loop()
        A.inloop = False
        if STAMP and SMODE == "wait":
            A(f"s_memtime s[{SB+10}:{SB+11}]"); A("s_waitcnt lgkmcnt(0)"); A(f"s_sub_u32 s{SB+8}, s{SB+10}, s{SB+8}")
        print(f"type {typ}: leftover W2 items after loop: {g.nleft}", file=sys.stderr)
        A.stamp(4); A.stamp(8, "loop"); A.stamp(8, "init"); A.stamp(5, "init")
        g.transition()
        if typ == "A": A("s_branch K12_g2")
    A.label("K12_g2")
    G2(A).body()
    if STAMP:
        A("s_waitcnt vmcnt(0) lgkmcnt(0)")
        A(f"{STAMP_INS} s[60:61]")
        A("s_waitcnt lgkmcnt(0)")
        A(f"s_lshl_b32 s{S_T0}, s2, 2"); A(f"s_add_u32 s{S_T0}, s{S_T0}, s{S_WV}"); A(f"s_lshl_b32 s{S_T0}, s{S_T0}, 6")
        A(f"s_add_u32 s{S_T0}, s{S_T0}, {WS_STAMP + 65536}")
        A(f"v_mov_b32 v{VT}, s{S_T0}")
        for i in range(9):
            A(f"v_mov_b32 v{VT+1}, s{SB+2*i}")
            A.vm(f"global_store_dword v{VT}, v{VT+1}, s[{S_WSP}:{S_WSP+1}] offset:{4*i}")
        A(f"v_mov_b32 v{VT+1}, s60")
        A.vm(f"global_store_dword v{VT}, v{VT+1}, s[{S_WSP}:{S_WSP+1}] offset:36")
    if STAMP and DBGSTAMP:
        A(f"s_cmp_eq_u32 s{S_WV}, 0"); A("s_cbranch_scc0 K12_end")
        A("s_mov_b64 exec, 1")
        for i in range(9):
            A(f"v_mov_b32 v{VT}, {4*(1+i)}"); A(f"v_mov_b32 v{VT+1}, s{SB+2*i}")
            A.vm(f"global_atomic_umax v{VT}, v{VT+1}, s[{S_DBG}:{S_DBG+1}]")
        A(f"v_mov_b32 v{VT}, 40"); A(f"v_mov_b32 v{VT+1}, s60"); A.vm(f"global_atomic_umax v{VT}, v{VT+1}, s[{S_DBG}:{S_DBG+1}]")
        A(f"s_not_b32 s{S_T0}, s{SB}"); A(f"v_mov_b32 v{VT}, 44"); A(f"v_mov_b32 v{VT+1}, s{S_T0}"); A.vm(f"global_atomic_umax v{VT}, v{VT+1}, s[{S_DBG}:{S_DBG+1}]")
    A.label("K12_end")
    return A.text()

def main(path):
    hdr = open("cdna_kernels/" + NAME + ".s.ref").read().split("; Override")[0]
    n = NAME + "_kernel"
    body = gen_k12()
    out = hdr + "; @launch grid=(256,1,1) block=(256,1,1) lds=163840\n"
    out += '.amdgcn_target "amdgcn-amd-amdhsa--gfx950"\n.text\n'
    out += f""".globl {n}
.p2align 8
.type {n},@function
{n}:
{body}
  s_endpgm
.section .rodata,"a"
.p2align 6
.amdhsa_kernel {n}
  .amdhsa_next_free_vgpr 512
  .amdhsa_next_free_sgpr 102
  .amdhsa_accum_offset 256
  .amdhsa_group_segment_fixed_size 0
  .amdhsa_kernarg_size 80
  .amdhsa_user_sgpr_count 2
  .amdhsa_user_sgpr_kernarg_segment_ptr 1
  .amdhsa_system_sgpr_workgroup_id_x 1
.end_amdhsa_kernel
"""
    open(path, "w").write(out)

if __name__ == "__main__":
    if "--stamp" in sys.argv:
        STAMP = True; sys.argv.remove("--stamp")
    for a in list(sys.argv):
        if a.startswith("--nin="): N_IN = int(a[6:]); sys.argv.remove(a)
        if a.startswith("--smode="): SMODE = a[8:]; sys.argv.remove(a)
        if a.startswith("--ahead="): G2_AHEAD = int(a[8:]); sys.argv.remove(a)
        if a.startswith("--chk="): G2_CHK = int(a[6:]); sys.argv.remove(a)
        if a.startswith("--pf="): G2_PF = int(a[5:]); sys.argv.remove(a)
        if a.startswith("--cpf2="): CODE_PF2 = int(a[7:]); sys.argv.remove(a)
        if a.startswith("--wsh="): WS_H = int(a[6:])*1048576; sys.argv.remove(a)
        if a == "--dbgstamp": DBGSTAMP = 1; sys.argv.remove(a)
        if a.startswith("--w2rot="): W2ROT = int(a[8:]); sys.argv.remove(a)
        if a.startswith("--w2start="): W2_START = int(a[10:]); sys.argv.remove(a)
        if a.startswith("--later="): LATE_R = int(a[8:]); sys.argv.remove(a)
        if a.startswith("--bed="): B_EARLY_D = int(a[6:]); sys.argv.remove(a)
        if a.startswith("--ftb="): FLAG_TB = int(a[6:]); sys.argv.remove(a)
        if a.startswith("--pt="): K_PT = int(a[5:]); sys.argv.remove(a)
        if a.startswith("--tt="): TLB_TOUCH = int(a[5:]); sys.argv.remove(a)
        if a.startswith("--hinit="):
            H_INIT = int(a[8:]); K_INITLD = 2*H_INIT - 4; K_CSAT = 2*H_INIT; H_CS = H_INIT + 3; sys.argv.remove(a)
        if a.startswith("--rot2="): ROT2 = int(a[7:]); sys.argv.remove(a)
        if a.startswith("--kvmask="): KVMASK = int(a[9:]); sys.argv.remove(a)
        if a.startswith("--wopf="): K_WOPF = int(a[7:]); sys.argv.remove(a)
        if a.startswith("--defer="): DEFER = int(a[8:]); sys.argv.remove(a)
        if a.startswith("--cpf1="): CODE_PF1 = int(a[7:]); sys.argv.remove(a)
        if a.startswith("--zlate="): ZLATE = int(a[8:]); sys.argv.remove(a)
        if a.startswith("--tbm="): TBM = int(a[6:]); sys.argv.remove(a)
        if a.startswith("--gate="): GATE = int(a[7:]); sys.argv.remove(a)
        if a.startswith("--tt3="): TT3 = int(a[6:]); sys.argv.remove(a)
        if a.startswith("--pqlate="): PQ_LATE = int(a[9:]); sys.argv.remove(a)
        if a.startswith("--ftba="): FLAG_TB_A = int(a[7:]); sys.argv.remove(a)
        if a.startswith("--ot="): OUT_TOUCH = int(a[5:]); sys.argv.remove(a)
        if a.startswith("--ep="): EARLY_POLL = int(a[5:]); sys.argv.remove(a)
        if a.startswith("--fast="): FASTG2 = int(a[7:]); sys.argv.remove(a)
        if a.startswith("--al8="): ALIGN8 = int(a[6:]); sys.argv.remove(a)
        if a.startswith("--tta="): TT_AFTER = int(a[6:]); sys.argv.remove(a)
        if a.startswith("--latews="):
            LATEWS = int(a[9:]); H_Z = 3; H_INIT = 6; K_INITLD = 8; K_CSAT = 12; H_CS = 9; K_CNTLD = 20; H_CNT = 12; K_RANK = 26; CORR_AT = 30; sys.argv.remove(a)
        if a.startswith("--hcs="): H_CS = int(a[6:]); sys.argv.remove(a)
        if a.startswith("--kinit="): K_INITLD = int(a[8:]); sys.argv.remove(a)
        if a.startswith("--kcnt="): K_CNTLD = int(a[7:]); sys.argv.remove(a)
        if a.startswith("--hcnt="): H_CNT = int(a[7:]); K_RANK = 2*H_CNT + 2; CORR_AT = min(31, K_RANK + 4); sys.argv.remove(a)
        if a == "--w2nt": W2NT = " nt"; sys.argv.remove(a)
        if a == "--outnt": OUTNT = " nt"; sys.argv.remove(a)
        if a == "--outsc1": OUTNT = " sc1"; sys.argv.remove(a)
        if a.startswith("--xmap="): XMAP = int(a[7:]); sys.argv.remove(a)
        if a.startswith("--g2map="): G2MAP = int(a[8:]); sys.argv.remove(a)
        if a.startswith("--phid="): PHI_D = int(a[7:]); sys.argv.remove(a)
        if a.startswith("--x1e="): X1_EARLY = int(a[6:]); sys.argv.remove(a)
        if a.startswith("--rot="): ROT = int(a[6:]); sys.argv.remove(a)
        if a.startswith("--cap="): CAP = int(a[6:]); sys.argv.remove(a)
    if "--cyc" in sys.argv:
        STAMP = True; STAMP_INS = "s_memtime"; sys.argv.remove("--cyc")
    main(sys.argv[1] if len(sys.argv) > 1 else "cdna_kernels/" + NAME + ".s")
```
